```python
import torch

def _softmax(x, axis=-1):
    return torch.softmax(x, dim=axis)

def _gelu(x):
    return torch.nn.functional.gelu(x, approximate='tanh')

def _silu(x):
    return torch.nn.functional.silu(x)

def _sigmoid(x):
    return torch.sigmoid(x)

def _layernorm(x, axis=-1, eps=1e-05):
    m = x.mean(dim=axis, keepdim=True)
    v = x.var(dim=axis, keepdim=True, unbiased=False)
    return (x - m) / torch.sqrt(v + eps)

def _scatter_add(tgt, idx, src, axis=0):
    return tgt.clone().index_add_(axis, idx, src)

def _segment_sum(src, seg, n):
    out = torch.zeros((n,) + src.shape[1:], dtype=src.dtype)
    return out.index_add_(0, seg, src)

def _pad(x, pw):
    flat = tuple((v for pair in reversed(pw) for v in pair))
    return torch.nn.functional.pad(x, flat)
kernel_name = 'standalone__kv_cache_quant_pre_rope_vs_post_rope__sampling'

def setup_inputs():

    _w = lambda a: (lambda t: t.to(torch.bfloat16) if t.is_floating_point() else t)(torch.as_tensor(a))
    B, Sq, Skv = (8, 1, 2048)
    H, Dh0 = (32, 192)
    G = -1 if -1 > 0 else Dh0
    G = max(2, G // 2 * 2)
    Dh = max(G, Dh0 // G * G)
    Skv = max(Skv, Sq)
    ng = Dh // G
    bits = 4 if 4 > 1 else 4
    bits = max(2, min(8, bits))
    qmax = (1 << bits) - 1
    half = Dh // 2
    inv = 1.0 / 10000.0 ** (torch.arange(half) / max(1, half))
    ang_k = torch.arange(Skv)[:, None] * inv[None, :]
    ang_q = torch.arange(Skv - Sq, Skv)[:, None] * inv[None, :]
    kc = torch.cat([torch.cos(ang_k), torch.cos(ang_k)], dim=-1)
    ks = torch.cat([torch.sin(ang_k), torch.sin(ang_k)], dim=-1)
    qc = torch.cat([torch.cos(ang_q), torch.cos(ang_q)], dim=-1)
    qs = torch.cat([torch.sin(ang_q), torch.sin(ang_q)], dim=-1)
    qk_i = torch.randint(0, qmax + 1, (B, H, Skv, Dh)).to(torch.int32)
    qv_i = torch.randint(0, qmax + 1, (B, H, Skv, Dh)).to(torch.int32)
    ksc = torch.abs((lambda *s: torch.randn(*s, dtype=torch.bfloat16) * 0.2)(B, H, Skv, ng)) * 0.1 + 0.01
    kzp = torch.full((B, H, Skv, ng), qmax / 2.0)
    vsc = torch.abs((lambda *s: torch.randn(*s, dtype=torch.bfloat16) * 0.2)(B, H, Skv, ng)) * 0.1 + 0.01
    vzp = torch.full((B, H, Skv, ng), qmax / 2.0)
    return {'q': _w((lambda *s: torch.randn(*s, dtype=torch.bfloat16) * 6.4)(B, H, Sq, Dh) * 0.5), 'qk': _w(qk_i), 'k_scales': _w(ksc), 'k_zeros': _w(kzp), 'qv': _w(qv_i), 'v_scales': _w(vsc), 'v_zeros': _w(vzp), 'q_cos': _w(qc), 'q_sin': _w(qs), 'k_cos': _w(kc), 'k_sin': _w(ks)}

def reference(q, qk, k_scales, k_zeros, qv, v_scales, v_zeros, q_cos, q_sin, k_cos, k_sin):
    B, H, Sq, Dh = q.shape
    ng = k_scales.shape[-1]
    G = Dh // ng
    half = Dh // 2
    ks = (lambda x, n, axis: torch.repeat_interleave(x, n, dim=axis))(k_scales, G, axis=-1)
    kz = (lambda x, n, axis: torch.repeat_interleave(x, n, dim=axis))(k_zeros, G, axis=-1)
    k = ((lambda x, dt: x.to(dt))(qk, q.dtype) - kz) * ks
    vs = (lambda x, n, axis: torch.repeat_interleave(x, n, dim=axis))(v_scales, G, axis=-1)
    vz = (lambda x, n, axis: torch.repeat_interleave(x, n, dim=axis))(v_zeros, G, axis=-1)
    v = ((lambda x, dt: x.to(dt))(qv, q.dtype) - vz) * vs
    k1 = k[..., :half].clone()
    k2 = k[..., half:].clone()
    krh = torch.concatenate([-k2, k1], axis=-1)
    kr = k * k_cos[None, None, :, :] + krh * k_sin[None, None, :, :]
    q1 = q[..., :half].clone()
    q2 = q[..., half:].clone()
    qrh = torch.concatenate([-q2, q1], axis=-1)
    qr = q * q_cos[None, None, :, :] + qrh * q_sin[None, None, :, :]
    logits = torch.einsum('bhqd,bhkd->bhqk', qr, kr) * float(Dh) ** (-0.5)
    attn = _softmax(logits, axis=-1)
    out = torch.einsum('bhqk,bhkd->bhqd', attn, v)
    return out
```

```python
import argparse
import math
import struct

NAME = "standalone__kv_cache_quant_pre_rope_vs_post_rope__sampling"

HEADER = """; Kernarg layout for this problem (112 bytes, ptrs only, base s[0:1]):
"""


def f32bits(x):
    return struct.unpack("<I", struct.pack("<f", x))[0]


class Alloc:
    def __init__(self, start):
        self.n = start

    def take(self, cnt, align=1):
        while self.n % align:
            self.n += 1
        r = self.n
        self.n += cnt
        return r


def vr(a, n=1):
    return f"v{a}" if n == 1 else f"v[{a}:{a + n - 1}]"


def gen(NW=16, T=1, pattern="wg", kvflag="nt", tflag="", dot2=True,
        notab=False, nocomp=False, stamp=False, rot=0):
    S = 2048
    RW = S // NW
    NI = RW // (4 * T)
    if pattern == "wave":
        IS, WS = 4 * T, RW
    else:
        IS, WS = 4 * T * NW, 4 * T
    lgT4 = int(math.log2(4 * T))
    o = []
    e = o.append

    SC_BASE = 0
    Q_BASE = S * 16
    RED_BASE = Q_BASE + NW * 768
    ML_BASE = RED_BASE + NW * 768
    LDS = ML_BASE + NW * 8

    sQ, sQK, sKS, sKZ, sQV, sVS, sVZ, sQC = 4, 6, 8, 10, 12, 14, 16, 18
    sQS, sKC, sKSN, sOUT = 20, 22, 24, 26
    rK, rV, rC, rS = 28, 32, 36, 40
    sW, sCNT, sMASK, sT0, sT1 = 44, 45, 46, 47, 48
    sSCALE = 49
    nso = (T + 0) // 1
    sOK = 52
    sOT = sOK + T
    sEX = 80
    sST = 84

    va = Alloc(1)
    vKV = va.take(1)
    vT = va.take(1)
    vT2 = va.take(1)
    vL = va.take(1)
    vM = va.take(1)
    qa = va.take(12, 4)
    qb = va.take(12, 4)
    acc = va.take(12, 2)
    vLs = va.take(1)
    vCo = va.take(1)
    dacc = va.take(2, 2)
    alpha = va.take(2, 2)
    vA = va.take(max(T, 2), 2)
    wt = va.take(4 if dot2 else 12, 2)
    sc = va.take(4 * T, 4)
    Kb = [va.take(12, 4) for _ in range(T)]
    Cb = [va.take(6, 2) for _ in range(T)]
    Sb = [va.take(6, 2) for _ in range(T)]
    Vb = [va.take(12, 4) for _ in range(T)]
    nsl = max(1, RW // 128)
    pro = va.take(0, 4)
    pq = va.take(8, 2)
    psc = va.take(4 * nsl, 4)
    ptmp = va.take(12, 4)
    NV = va.n

    kvf = (" " + kvflag) if kvflag else ""
    tf = (" " + tflag) if tflag else ""
    per_k = 1 if notab else 3
    RING = T * (3 * per_k + 3)

    def ld_k(t, j):
        e(f"  buffer_load_dwordx4 {vr(Kb[t] + 4 * j, 4)}, {vr(vKV)}, s[{rK}:{rK + 3}], s{sOK + t} offen offset:{256 * j}{kvf}")
        if notab:
            return
        e(f"  buffer_load_dwordx2 {vr(Cb[t] + 2 * j, 2)}, {vr(vT)}, s[{rC}:{rC + 3}], s{sOT + t} offen offset:{128 * j}{tf}")
        if j == 1:
            e(f"  buffer_load_dwordx2 {vr(Sb[t] + 2 * j, 2)}, {vr(vT2)}, s[{rS}:{rS + 3}], s{sOT + t} offen{tf}")
        else:
            e(f"  buffer_load_dwordx2 {vr(Sb[t] + 2 * j, 2)}, {vr(vT)}, s[{rS}:{rS + 3}], s{sOT + t} offen offset:{192 if j == 0 else 64}{tf}")

    def ld_v(t, j):
        e(f"  buffer_load_dwordx4 {vr(Vb[t] + 4 * j, 4)}, {vr(vKV)}, s[{rV}:{rV + 3}], s{sOK + t} offen offset:{256 * j}{kvf}")

    e(HEADER.rstrip("\n"))
    e(f"; @launch grid=(256,1,1) block=({NW * 64},1,1) lds={LDS}")
    e('.amdgcn_target "amdgcn-amd-amdhsa--gfx950"')
    e(".text")
    e(f".globl {NAME}_kernel")
    e(".p2align 8")
    e(f".type {NAME}_kernel,@function")
    e(f"{NAME}_kernel:")
    e("  s_cmp_ge_u32 s2, 256")
    e("  s_cbranch_scc1 L_end")
    if stamp:
        e(f"  s_memrealtime s[{sST}:{sST + 1}]")
    e("  s_load_dwordx16 s[4:19], s[0:1], 0")
    e("  s_load_dwordx8 s[20:27], s[0:1], 64")
    l, r, c = ptmp, ptmp + 1, ptmp + 2
    t0, t1, t2 = ptmp + 3, ptmp + 4, ptmp + 5
    e(f"  v_lshrrev_b32 {vr(t0)}, 6, v0")
    e(f"  v_and_b32 {vr(l)}, 63, v0")
    e(f"  v_readfirstlane_b32 s{sW}, {vr(t0)}")
    e(f"  v_lshrrev_b32 {vr(r)}, 4, {vr(l)}")
    e(f"  v_and_b32 {vr(c)}, 15, v0")
    e(f"  s_mov_b32 s{sMASK}, 0xffff0000")
    e(f"  s_mov_b32 s{sSCALE}, {f32bits(math.log2(math.e) / math.sqrt(192.0)):#x}")
    e(f"  v_mul_u32_u24 {vr(vT)}, 384, {vr(r)}")
    e(f"  v_lshl_add_u32 {vr(vT)}, {vr(c)}, 3, {vr(vT)}")
    e(f"  v_lshlrev_b32 {vr(vKV)}, 1, {vr(vT)}")
    e(f"  v_cmp_gt_u32 vcc, 8, {vr(c)}")
    e(f"  v_add_u32 {vr(t0)}, 320, {vr(vT)}")
    e(f"  v_subrev_u32 {vr(t1)}, 64, {vr(vT)}")
    e(f"  v_cndmask_b32 {vr(vT2)}, {vr(t1)}, {vr(t0)}, vcc")
    e(f"  s_mul_i32 s{sT0}, s{sW}, {WS}")
    for t in range(T):
        e(f"  s_add_u32 s{sT1}, s{sT0}, {4 * t}")
        e(f"  s_mul_i32 s{sOK + t}, s{sT1}, 768")
        e(f"  s_mul_i32 s{sOT + t}, s{sT1}, 384")
    qo, qo2 = ptmp + 6, ptmp + 7
    e(f"  v_min_u32 {vr(t2)}, 47, {vr(l)}")
    e(f"  v_lshlrev_b32 {vr(qo)}, 3, {vr(t2)}")
    e(f"  v_cmp_gt_u32 vcc, 24, {vr(t2)}")
    e(f"  v_add_u32 {vr(t0)}, 192, {vr(qo)}")
    e(f"  v_subrev_u32 {vr(t1)}, 192, {vr(qo)}")
    e(f"  v_cndmask_b32 {vr(qo2)}, {vr(t1)}, {vr(t0)}, vcc")
    so = ptmp + 8
    e(f"  v_lshlrev_b32 {vr(t0)}, 1, {vr(l)}")
    e(f"  v_lshrrev_b32 {vr(t1)}, {lgT4}, {vr(t0)}")
    e(f"  v_and_b32 {vr(t0)}, {4 * T - 1}, {vr(t0)}")
    e(f"  v_mul_u32_u24 {vr(t1)}, {IS}, {vr(t1)}")
    e(f"  v_add3_u32 {vr(so)}, {vr(t0)}, {vr(t1)}, s{sT0}")
    e(f"  v_lshlrev_b32 {vr(so)}, 1, {vr(so)}")
    e(f"  s_lshl_b32 s{sT0}, s2, 12")
    e(f"  v_add_u32 {vr(so)}, s{sT0}, {vr(so)}")
    e(f"  s_mul_i32 s{sT1}, s2, 384")
    e(f"  s_mul_i32 s{sCNT}, s2, {S * 768}")
    e("  s_waitcnt lgkmcnt(0)")
    e(f"  s_add_u32 s{sQ}, s{sQ}, s{sT1}")
    e(f"  s_addc_u32 s{sQ + 1}, s{sQ + 1}, 0")
    e(f"  s_add_u32 s{sOUT}, s{sOUT}, s{sT1}")
    e(f"  s_addc_u32 s{sOUT + 1}, s{sOUT + 1}, 0")
    e(f"  global_load_dwordx2 {vr(pq, 2)}, {vr(qo)}, s[{sQ}:{sQ + 1}]")
    e(f"  global_load_dwordx2 {vr(pq + 2, 2)}, {vr(qo2)}, s[{sQ}:{sQ + 1}]")
    e(f"  global_load_dwordx2 {vr(pq + 4, 2)}, {vr(qo)}, s[{sQC}:{sQC + 1}]")
    e(f"  global_load_dwordx2 {vr(pq + 6, 2)}, {vr(qo)}, s[{sQS}:{sQS + 1}]")
    kstep = (128 >> lgT4) * IS * 2
    assert kstep * (nsl - 1) < 4096
    for k in range(nsl):
        for a, sp in enumerate((sKS, sKZ, sVS, sVZ)):
            e(f"  global_load_dword {vr(psc + 4 * k + a)}, {vr(so)}, s[{sp}:{sp + 1}] offset:{k * kstep}")
    for rr, sp in ((rK, sQK), (rV, sQV)):
        e(f"  s_add_u32 s{rr}, s{sp}, s{sCNT}")
        e(f"  s_addc_u32 s{rr + 1}, s{sp + 1}, 0")
        e(f"  s_mov_b32 s{rr + 2}, {S * 768}")
        e(f"  s_mov_b32 s{rr + 3}, 0x20000")
    for rr, sp in ((rC, sKC), (rS, sKSN)):
        e(f"  s_mov_b32 s{rr}, s{sp}")
        e(f"  s_mov_b32 s{rr + 1}, s{sp + 1}")
        e(f"  s_mov_b32 s{rr + 2}, {S * 384}")
        e(f"  s_mov_b32 s{rr + 3}, 0x20000")
    for t in range(T):
        for j in range(3):
            ld_k(t, j)
    for t in range(T):
        for j in range(3):
            ld_v(t, j)
    e(f"  s_waitcnt vmcnt({RING + 4 * nsl})")
    u = [qa + i for i in range(12)]
    w = [qb + i for i in range(12)]
    for k, dst in enumerate((u[0], u[4], u[8], w[0])):
        for h in range(2):
            e(f"  v_lshlrev_b32 {vr(dst + 2 * h)}, 16, {vr(pq + 2 * k + h)}")
            e(f"  v_and_b32 {vr(dst + 2 * h + 1)}, s{sMASK}, {vr(pq + 2 * k + h)}")
    e(f"  v_cmp_gt_u32 vcc, 24, {vr(t2)}")
    e(f"  v_mov_b32 {vr(t0)}, 1.0")
    e(f"  v_mov_b32 {vr(t1)}, -1.0")
    e(f"  v_cndmask_b32 {vr(t0)}, {vr(t0)}, {vr(t1)}, vcc")
    for i in range(4):
        e(f"  v_mul_f32 {vr(u[i])}, {vr(u[i])}, {vr(u[8 + i])}")
        e(f"  v_mul_f32 {vr(u[4 + i])}, {vr(u[4 + i])}, {vr(w[i])}")
    for i in range(4):
        e(f"  v_cvt_pk_bf16_f32 {vr(w[4 + i])}, {vr(u[i])}, {vr(u[4 + i])}")
    for i in range(4):
        e(f"  v_lshlrev_b32 {vr(u[i])}, 16, {vr(w[4 + i])}")
        e(f"  v_and_b32 {vr(u[4 + i])}, s{sMASK}, {vr(w[4 + i])}")
    for i in range(4):
        e(f"  v_fma_f32 {vr(u[i])}, {vr(u[4 + i])}, {vr(t0)}, {vr(u[i])}")
    e(f"  v_cvt_pk_bf16_f32 {vr(w[0])}, {vr(u[0])}, {vr(u[1])}")
    e(f"  v_cvt_pk_bf16_f32 {vr(w[1])}, {vr(u[2])}, {vr(u[3])}")
    e(f"  v_lshlrev_b32 {vr(u[0])}, 16, {vr(w[0])}")
    e(f"  v_and_b32 {vr(u[1])}, s{sMASK}, {vr(w[0])}")
    e(f"  v_lshlrev_b32 {vr(u[2])}, 16, {vr(w[1])}")
    e(f"  v_and_b32 {vr(u[3])}, s{sMASK}, {vr(w[1])}")
    e(f"  s_mul_i32 s{sT0}, s{sW}, 768")
    e(f"  s_add_u32 s{sT0}, s{sT0}, {Q_BASE}")
    e(f"  v_lshl_add_u32 {vr(t1)}, {vr(t2)}, 4, s{sT0}")
    e(f"  ds_write_b128 {vr(t1)}, {vr(u[0], 4)}")
    e(f"  v_lshl_add_u32 {vr(t0)}, {vr(c)}, 4, s{sT0}")
    e(f"  v_cmp_gt_u32 vcc, 8, {vr(c)}")
    e(f"  v_add_u32 {vr(qo)}, 640, {vr(t0)}")
    e(f"  v_subrev_u32 {vr(qo2)}, 128, {vr(t0)}")
    e(f"  v_cndmask_b32 {vr(t1)}, {vr(qo2)}, {vr(qo)}, vcc")
    e(f"  v_mov_b32 {vr(qo)}, 0")
    e(f"  v_mov_b32 {vr(qo2)}, 0x80000000")
    e(f"  v_cndmask_b32 {vr(qo)}, {vr(qo2)}, {vr(qo)}, vcc")
    e("  s_waitcnt lgkmcnt(0)")
    for j in range(3):
        e(f"  ds_read_b128 {vr(qa + 4 * j, 4)}, {vr(t0)} offset:{256 * j}")
    e(f"  ds_read_b128 {vr(qb, 4)}, {vr(t0)} offset:384")
    e(f"  ds_read_b128 {vr(qb + 4, 4)}, {vr(t1)}")
    e(f"  ds_read_b128 {vr(qb + 8, 4)}, {vr(t0)} offset:128")
    e(f"  s_mul_i32 s{sT0}, s{sW}, {RW * 16}")
    e(f"  v_lshl_add_u32 {vr(t2)}, {vr(l)}, 5, s{sT0}")
    e(f"  v_lshl_add_u32 {vr(vL)}, {vr(r)}, 4, s{sT0}")
    e(f"  s_waitcnt vmcnt({RING})")
    a0 = acc + (-acc) % 4
    assert a0 + 8 <= acc + 12
    if RW < 128:
        e(f"  v_cmp_gt_u32 vcc, {RW // 2}, {vr(l)}")
        e(f"  s_and_saveexec_b64 s[{sEX}:{sEX + 1}], vcc")
    for k in range(nsl):
        for a in range(4):
            e(f"  v_lshlrev_b32 {vr(a0 + a)}, 16, {vr(psc + 4 * k + a)}")
            e(f"  v_and_b32 {vr(a0 + 4 + a)}, s{sMASK}, {vr(psc + 4 * k + a)}")
        e(f"  v_mul_f32 {vr(a0)}, s{sSCALE}, {vr(a0)}")
        e(f"  v_mul_f32 {vr(a0 + 4)}, s{sSCALE}, {vr(a0 + 4)}")
        e(f"  ds_write_b128 {vr(t2)}, {vr(a0, 4)} offset:{k * 2048}")
        e(f"  ds_write_b128 {vr(t2)}, {vr(a0 + 4, 4)} offset:{k * 2048 + 16}")
        e("  s_waitcnt lgkmcnt(0)")
    if RW < 128:
        e(f"  s_mov_b64 exec, s[{sEX}:{sEX + 1}]")
    e("  s_waitcnt lgkmcnt(0)")
    for i in range(4):
        e(f"  v_xor_b32 {vr(qb + 4 + i)}, {vr(qo)}, {vr(qb + 4 + i)}")
        e(f"  v_xor_b32 {vr(qb + 8 + i)}, 0x80000000, {vr(qb + 8 + i)}")
    if dot2:
        for i in range(0, 12, 2):
            e(f"  v_lshrrev_b32 {vr(qa + i)}, 16, {vr(qa + i)}")
            e(f"  v_lshrrev_b32 {vr(qb + i)}, 16, {vr(qb + i)}")
    for i in range(12):
        e(f"  v_mov_b32 {vr(acc + i)}, 0")
    e(f"  v_mov_b32 {vr(vLs)}, 0")
    e(f"  v_mov_b32 {vr(vCo)}, 0")
    e(f"  v_mov_b32 {vr(vM)}, 0xff800000")
    e(f"  s_mov_b32 s{sCNT}, {NI}")
    if notab:
        for t in range(T):
            for i in range(6):
                e(f"  v_mov_b32 {vr(Cb[t] + i)}, 0x3f803f80")
                e(f"  v_mov_b32 {vr(Sb[t] + i)}, 0")

    e(".p2align 6")
    e("L_loop:")
    for t in range(T):
        e(f"  ds_read_b128 {vr(sc + 4 * t, 4)}, {vr(vL)} offset:{64 * t}")
    e(f"  v_add_u32 {vr(vL)}, {64 * T}, {vr(vL)}")
    for t in range(T):
        e(f"  s_add_u32 s{sOK + t}, s{sOK + t}, {IS * 768}")
        e(f"  s_add_u32 s{sOT + t}, s{sOT + t}, {IS * 384}")
    e(f"  s_cmp_eq_u32 s{sCNT}, 1")
    for rr in (rK, rV, rC, rS):
        e(f"  s_cselect_b32 s{rr + 2}, 0, s{rr + 2}")
    for t in range(T):
        for j in range(3):
            lg = f" lgkmcnt({T - 1 - t})" if j == 0 else ""
            e(f"  s_waitcnt vmcnt({RING - per_k}){lg}")
            k0 = Kb[t] + 4 * j
            if nocomp:
                if j == 0:
                    e(f"  v_mov_b32 {vr(dacc)}, 0")
                    e(f"  v_mov_b32 {vr(dacc + 1)}, 0")
                e(f"  v_or3_b32 {vr(dacc)}, {vr(k0)}, {vr(k0 + 1)}, {vr(dacc)}")
                e(f"  v_or3_b32 {vr(dacc)}, {vr(k0 + 2)}, {vr(k0 + 3)}, {vr(dacc)}")
            else:
                cb, sb = Cb[t] + 2 * j, Sb[t] + 2 * j
                q0 = 4 * j
                if dot2:
                    for i in range(4):
                        e(f"  v_dot2_f32_bf16 {vr(wt + i)}, {vr(cb + i // 2)}, {vr(qa + q0 + i)}, 0")
                    for i in range(4):
                        e(f"  v_dot2_f32_bf16 {vr(wt + i)}, {vr(sb + i // 2)}, {vr(qb + q0 + i)}, {vr(wt + i)}")
                else:
                    for h in range(2):
                        e(f"  v_lshlrev_b32 {vr(wt + 4 + 2 * h)}, 16, {vr(cb + h)}")
                        e(f"  v_and_b32 {vr(wt + 5 + 2 * h)}, s{sMASK}, {vr(cb + h)}")
                        e(f"  v_lshlrev_b32 {vr(wt + 8 + 2 * h)}, 16, {vr(sb + h)}")
                        e(f"  v_and_b32 {vr(wt + 9 + 2 * h)}, s{sMASK}, {vr(sb + h)}")
                    for h in range(2):
                        e(f"  v_pk_mul_f32 {vr(wt + 2 * h, 2)}, {vr(wt + 4 + 2 * h, 2)}, {vr(qa + q0 + 2 * h, 2)}")
                    for h in range(2):
                        e(f"  v_pk_fma_f32 {vr(wt + 2 * h, 2)}, {vr(wt + 8 + 2 * h, 2)}, {vr(qb + q0 + 2 * h, 2)}, {vr(wt + 2 * h, 2)}")
                for i in range(4):
                    e(f"  v_cvt_f32_i32 {vr(k0 + i)}, {vr(k0 + i)}")
                for h in range(2):
                    e(f"  v_pk_add_f32 {vr(k0 + 2 * h, 2)}, {vr(k0 + 2 * h, 2)}, {vr(sc + 4 * t, 2)} op_sel:[0,1] op_sel_hi:[1,1] neg_lo:[0,1] neg_hi:[0,1]")
                for h in range(2):
                    if j == 0 and h == 0:
                        e(f"  v_pk_mul_f32 {vr(dacc, 2)}, {vr(k0, 2)}, {vr(wt, 2)}")
                    else:
                        e(f"  v_pk_fma_f32 {vr(dacc, 2)}, {vr(k0 + 2 * h, 2)}, {vr(wt + 2 * h, 2)}, {vr(dacc, 2)}")
            if j == 2:
                e(f"  v_add_f32 {vr(dacc)}, {vr(dacc)}, {vr(dacc + 1)}")
            ld_k(t, j)
        if per_k == 1:
            e("  s_nop 0")
        for n in (8, 4, 2, 1):
            e(f"  v_add_f32_dpp {vr(dacc)}, {vr(dacc)}, {vr(dacc)} row_ror:{n} row_mask:0xf bank_mask:0xf")
            if n != 1:
                e("  s_nop 1")
        e(f"  v_mul_f32 {vr(vA + t)}, {vr(dacc)}, {vr(sc + 4 * t)}")
    mn = alpha + 1
    e(f"  v_max_f32 {vr(mn)}, {vr(vM)}, {vr(vA)}")
    tt = 1
    while tt < T:
        if tt + 1 < T:
            e(f"  v_max3_f32 {vr(mn)}, {vr(mn)}, {vr(vA + tt)}, {vr(vA + tt + 1)}")
            tt += 2
        else:
            e(f"  v_max_f32 {vr(mn)}, {vr(mn)}, {vr(vA + tt)}")
            tt += 1
    e(f"  v_sub_f32 {vr(alpha)}, {vr(vM)}, {vr(mn)}")
    for t in range(T):
        e(f"  v_sub_f32 {vr(vA + t)}, {vr(vA + t)}, {vr(mn)}")
    e(f"  v_exp_f32 {vr(alpha)}, {vr(alpha)}")
    for t in range(T):
        e(f"  v_exp_f32 {vr(vA + t)}, {vr(vA + t)}")
    e(f"  v_mov_b32 {vr(vM)}, {vr(mn)}")
    e(f"  v_fma_f32 {vr(vLs)}, {vr(vLs)}, {vr(alpha)}, {vr(vA)}")
    e(f"  v_mul_f32 {vr(vCo)}, {vr(vCo)}, {vr(alpha)}")
    for t in range(1, T):
        e(f"  v_add_f32 {vr(vLs)}, {vr(vLs)}, {vr(vA + t)}")
    for t in range(T):
        e(f"  v_mul_f32 {vr(vA + t)}, {vr(vA + t)}, {vr(sc + 4 * t + 2)}")
    for i in range(0, 12, 2):
        e(f"  v_pk_mul_f32 {vr(acc + i, 2)}, {vr(acc + i, 2)}, {vr(alpha, 2)} op_sel_hi:[1,0]")
    for t in range(T):
        e(f"  v_fmac_f32 {vr(vCo)}, {vr(vA + t)}, {vr(sc + 4 * t + 3)}")
    for t in range(T):
        ap = vA + t - (t % 2)
        sel = "op_sel_hi:[1,0,1]" if t % 2 == 0 else "op_sel:[0,1,0] op_sel_hi:[1,1,1]"
        for j in range(3):
            e(f"  s_waitcnt vmcnt({RING - 1})")
            v0 = Vb[t] + 4 * j
            if nocomp:
                e(f"  v_or3_b32 {vr(acc)}, {vr(v0)}, {vr(v0 + 1)}, {vr(acc)}")
                e(f"  v_or3_b32 {vr(acc)}, {vr(v0 + 2)}, {vr(v0 + 3)}, {vr(acc)}")
            else:
                for i in range(4):
                    e(f"  v_cvt_f32_i32 {vr(v0 + i)}, {vr(v0 + i)}")
                for h in range(2):
                    e(f"  v_pk_fma_f32 {vr(acc + 4 * j + 2 * h, 2)}, {vr(v0 + 2 * h, 2)}, {vr(ap, 2)}, {vr(acc + 4 * j + 2 * h, 2)} {sel}")
            ld_v(t, j)
    e(f"  s_sub_u32 s{sCNT}, s{sCNT}, 1")
    e(f"  s_cmp_lg_u32 s{sCNT}, 0")
    e("  s_cbranch_scc1 L_loop")

    x, y = dacc, dacc + 1
    for i in range(12):
        e(f"  v_sub_f32 {vr(acc + i)}, {vr(acc + i)}, {vr(vCo)}")
    e(f"  v_mov_b32 {vr(x)}, {vr(vM)}")
    e(f"  v_mov_b32 {vr(y)}, {vr(vM)}")
    e("  s_nop 1")
    e(f"  v_permlane32_swap_b32 {vr(x)}, {vr(y)}")
    e(f"  v_max_f32 {vr(x)}, {vr(x)}, {vr(y)}")
    e(f"  v_mov_b32 {vr(y)}, {vr(x)}")
    e("  s_nop 1")
    e(f"  v_permlane16_swap_b32 {vr(x)}, {vr(y)}")
    e(f"  v_max_f32 {vr(x)}, {vr(x)}, {vr(y)}")
    e(f"  v_sub_f32 {vr(alpha)}, {vr(vM)}, {vr(x)}")
    e(f"  v_exp_f32 {vr(alpha)}, {vr(alpha)}")
    e(f"  v_mov_b32 {vr(vM)}, {vr(x)}")
    e(f"  v_mul_f32 {vr(vLs)}, {vr(vLs)}, {vr(alpha)}")
    for i in range(0, 12, 2):
        e(f"  v_pk_mul_f32 {vr(acc + i, 2)}, {vr(acc + i, 2)}, {vr(alpha, 2)} op_sel_hi:[1,0]")
    e(f"  v_mov_b32 {vr(y)}, {vr(vLs)}")
    e("  s_nop 1")
    e(f"  v_permlane32_swap_b32 {vr(vLs)}, {vr(y)}")
    for j in range(3):
        e(f"  v_permlane32_swap_b32 {vr(acc + 4 * j)}, {vr(acc + 4 * j + 2)}")
        e(f"  v_permlane32_swap_b32 {vr(acc + 4 * j + 1)}, {vr(acc + 4 * j + 3)}")
    e(f"  v_add_f32 {vr(vLs)}, {vr(vLs)}, {vr(y)}")
    for j in range(3):
        e(f"  v_add_f32 {vr(acc + 4 * j)}, {vr(acc + 4 * j)}, {vr(acc + 4 * j + 2)}")
        e(f"  v_add_f32 {vr(acc + 4 * j + 1)}, {vr(acc + 4 * j + 1)}, {vr(acc + 4 * j + 3)}")
    e(f"  v_mov_b32 {vr(y)}, {vr(vLs)}")
    e("  s_nop 1")
    e(f"  v_permlane16_swap_b32 {vr(vLs)}, {vr(y)}")
    for j in range(3):
        e(f"  v_permlane16_swap_b32 {vr(acc + 4 * j)}, {vr(acc + 4 * j + 1)}")
    e(f"  v_add_f32 {vr(vLs)}, {vr(vLs)}, {vr(y)}")
    for j in range(3):
        e(f"  v_add_f32 {vr(acc + 4 * j)}, {vr(acc + 4 * j)}, {vr(acc + 4 * j + 1)}")
    a1, a2 = qa, qa + 1
    e(f"  v_and_b32 {vr(a1)}, 15, v0")
    e(f"  v_bfe_u32 {vr(a2)}, v0, 4, 2")
    e(f"  v_lshl_add_u32 {vr(a1)}, {vr(a1)}, 2, {vr(a2)}")
    e(f"  s_mul_i32 s{sT0}, s{sW}, 768")
    e(f"  s_add_u32 s{sT0}, s{sT0}, {RED_BASE}")
    e(f"  v_lshl_add_u32 {vr(a1)}, {vr(a1)}, 2, s{sT0}")
    for j in range(3):
        e(f"  ds_write_b32 {vr(a1)}, {vr(acc + 4 * j)} offset:{256 * j}")
    e(f"  s_lshl_b32 s{sT0}, s{sW}, 2")
    e(f"  v_mov_b32 {vr(a2)}, s{sT0}")
    e(f"  ds_write_b32 {vr(a2)}, {vr(vM)} offset:{ML_BASE}")
    e(f"  ds_write_b32 {vr(a2)}, {vr(vLs)} offset:{ML_BASE + NW * 4}")
    e("  s_waitcnt lgkmcnt(0)")
    e("  s_barrier")
    e(f"  s_cmp_ge_u32 s{sW}, 3")
    e("  s_cbranch_scc1 L_end")
    fa = Alloc(4)
    fm = fa.take(NW, 4)
    fl = fa.take(NW, 4)
    fv = fa.take(NW, 4)
    assert fa.n <= NV
    e("  s_waitcnt vmcnt(0)")
    e("  v_mov_b32 v1, 0")
    e("  v_lshlrev_b32 v2, 2, v0")
    for k in range(NW // 4):
        e(f"  ds_read_b128 {vr(fm + 4 * k, 4)}, v1 offset:{ML_BASE + 16 * k}")
    for k in range(NW // 4):
        e(f"  ds_read_b128 {vr(fl + 4 * k, 4)}, v1 offset:{ML_BASE + NW * 4 + 16 * k}")
    e("  s_waitcnt lgkmcnt(0)")
    for k in range(NW):
        e(f"  ds_read_b32 {vr(fv + k)}, v2 offset:{RED_BASE + 768 * k}")
        if k == 11:
            e("  s_waitcnt lgkmcnt(4)")
    e(f"  v_max_f32 v3, {vr(fm)}, {vr(fm + 1)}")
    for k in range(2, NW, 2):
        e(f"  v_max3_f32 v3, v3, {vr(fm + k)}, {vr(fm + k + 1)}")
    for k in range(NW):
        e(f"  v_sub_f32 {vr(fm + k)}, {vr(fm + k)}, v3")
    for k in range(NW):
        e(f"  v_exp_f32 {vr(fm + k)}, {vr(fm + k)}")
    e("  s_nop 0")
    e(f"  v_mul_f32 v3, {vr(fm)}, {vr(fl)}")
    for k in range(1, NW):
        e(f"  v_fmac_f32 v3, {vr(fm + k)}, {vr(fl + k)}")
    e("  v_rcp_f32 v3, v3")
    e("  s_waitcnt lgkmcnt(0)")
    e(f"  v_mul_f32 v2, {vr(fm)}, {vr(fv)}")
    for k in range(1, NW):
        e(f"  v_fmac_f32 v2, {vr(fm + k)}, {vr(fv + k)}")
    e("  v_mul_f32 v2, v2, v3")
    e("  v_lshlrev_b32 v1, 1, v0")
    e("  v_cvt_pk_bf16_f32 v2, v2, v2")
    e(f"  global_store_short v1, v2, s[{sOUT}:{sOUT + 1}]")
    if stamp:
        e(f"  s_cmp_lg_u32 s{sW}, 0")
        e("  s_cbranch_scc1 L_end")
        e(f"  s_load_dwordx2 s[4:5], s[0:1], 104")
        e(f"  s_memrealtime s[{sST + 2}:{sST + 3}]")
        e(f"  s_getreg_b32 s6, hwreg(HW_REG_XCC_ID)")
        e(f"  s_getreg_b32 s7, hwreg(HW_REG_HW_ID)")
        e("  s_waitcnt lgkmcnt(0)")
        e(f"  v_mov_b32 v4, s{sST}")
        e(f"  v_mov_b32 v5, s{sST + 2}")
        e("  v_mov_b32 v6, s6")
        e("  v_mov_b32 v7, s7")
        e("  s_lshl_b32 s8, s2, 4")
        e("  v_mov_b32 v1, s8")
        e("  global_store_dwordx4 v1, v[4:7], s[4:5]")
    e("L_end:")
    e("  s_endpgm")
    nv = max(NV, 8)
    e('.section .rodata,"a"')
    e(".p2align 6")
    e(f".amdhsa_kernel {NAME}_kernel")
    e(f"  .amdhsa_next_free_vgpr {nv}")
    e("  .amdhsa_next_free_sgpr 96")
    e(f"  .amdhsa_accum_offset {min(256, (nv + 3) // 4 * 4)}")
    e("  .amdhsa_group_segment_fixed_size 0")
    e("  .amdhsa_kernarg_size 112")
    e("  .amdhsa_user_sgpr_count 2")
    e("  .amdhsa_user_sgpr_kernarg_segment_ptr 1")
    e("  .amdhsa_system_sgpr_workgroup_id_x 1")
    e(".end_amdhsa_kernel")
    return "\n".join(o) + "\n", NV


if __name__ == "__main__":
    ap = argparse.ArgumentParser()
    ap.add_argument("-o", default=f"/code/{NAME}.s")
    ap.add_argument("--nw", type=int, default=16)
    ap.add_argument("--t", type=int, default=1)
    ap.add_argument("--pattern", default="wg")
    ap.add_argument("--kvflag", default="nt")
    ap.add_argument("--tflag", default="")
    ap.add_argument("--nodot2", action="store_true")
    ap.add_argument("--notab", action="store_true")
    ap.add_argument("--nocomp", action="store_true")
    ap.add_argument("--stamp", action="store_true")
    a = ap.parse_args()
    txt, nv = gen(a.nw, a.t, a.pattern, a.kvflag, a.tflag, not a.nodot2, a.notab, a.nocomp, a.stamp)
    open(a.o, "w").write(txt)
    print("wrote", a.o, "vgprs", nv)
```

```python
import argparse
import math
import os
import struct
from gen import HEADER, NAME, Alloc, f32bits, vr

HB = 2048 * 768

ABOUT = """
Generated by tools/gen6.py.
Work split: workgroup g = (cluster c = g >> 4, row block j) handles 128 of the 2048 KV rows for 16 heads 16 k + c
  (slots k = 5 and 10 take their head from a table instead of c).
  Waves 1-4 stream: the bf16 cos / sin values of their rows stay in registers; they sweep qk over the 16 heads
  (logit = k_scale * sum_d (qk - 7.5) * (qa * cos + qb * sin), RoPE moved onto the rotated q), then qv
  (partial = sum_rows p * v_scale * qv).  A lane owns 12 of the 192 dims of one row per group of 4 rows.
  Wave 0 (helper) rotates q, takes max / exp / sums over the workgroup's rows of each head, and merges partials.
Constant parameters (the same for every seed) are built in: both zero points (7.5), q_cos / q_sin (table L_qcs) and
  k_cos / k_sin = bf16(cos / sin(fp32(row * inv_freq))), evaluated once per workgroup from the table L_inv.
Hand-off: every workgroup finishes one of its heads and streams that head last.  Partials and (max, sum) of
  the other 15 go to d_ws with sc1 stores, then a counted atomic; the finisher rescales all 16 to the true row maximum.
Flow control (speed only, results do not depend on it): waves publish a group counter and sample the counters of
  units on the same die; late waves keep one more load in flight, early waves one or two fewer.  Helpers rank the dies.
"""


def gen(P):
    o = []
    e = o.append
    RING, PD = 12, P.pd
    sh, deep = P.sh, P.deep
    PRE = P.pre
    DP = P.cp + P.sp
    TP = P.tp
    CP = P.cp
    EX = P.ex
    NX = 2 if P.ctl else 0
    assert deep <= PD - 1 and sh <= deep and PD <= PRE
    SL = 512
    SA = 16 * SL

    FL = 0
    ST = 256
    QB = 512
    SCB = QB + 16 * 768
    LGB = SCB + 2 * SA
    PB = LGB + 8192
    PK = PB + 49152
    LDS = PK + 6144
    assert 81920 < LDS <= 163840
    W_REC = 0x400000
    W_CNT = 0x700000
    W_RK = 0x780000
    W_PL = 0x7c0000

    sQ, sQK, sKS, sKZ, sQV, sVS, sVZ, sQC = 4, 6, 8, 10, 12, 14, 16, 18
    sQS, sKC, sKSN, sOUT = 20, 22, 24, 26
    sDBG, sWS = 28, 30
    rA, rB = 32, 36
    sW, sJ, sC, sK, sT0, sT1, sF, sNEED = 40, 41, 42, 43, 44, 45, 46, 47
    sMSK = 48
    sZ = 64
    sMASK, sSCALE, sH = 66, 67, 68
    sS = 69
    sX = 70
    sRF = 80
    sRT = 82
    sST = 84
    sN = 90
    sB = 91
    sVO = 92
    sSP = 94
    sI = 95
    sSE, sCU = 81, 79
    sLO = 78
    sO = 3
    sCN = 96
    sOH, sCT = 98, 99

    va = Alloc(1)
    vT16 = va.take(1)
    voff = va.take(8)
    vLG, vQA, vPA, vF, vZ, A, An, LG = [va.take(1) for _ in range(8)]
    bc = va.take(2, 2)
    dacc = va.take(2, 2)
    wt = va.take(4, 2)
    vtr, vPW, vPS, vN, vSum, vSu2, vBA = [va.take(1) for _ in range(7)]
    vPL = va.take(4)
    vC16 = va.take(1)
    vBI = va.take(2, 2)
    smp = va.take(8, 4)
    qa = va.take(12, 4)
    tmp = va.take(20, 4)
    ring = va.take(4 * RING, 4)
    PL = P.peel
    xr = va.take(12 * PL, 4)
    tab = va.take(96, 4)
    NV = va.n
    acc = qa

    here = os.path.dirname(os.path.abspath(__file__))
    sch = [[int(x) for x in ln.split()] for ln in open(os.path.join(here, P.sch))]
    inv, qcs = [[int(x, 16) for x in ln.split()] for ln in open(os.path.join(here, "consts.txt"))]
    cj = lambda g: (g >> 4, (g & 7) * 2 + ((g >> 3) & 1))
    ent = {g: sch[16 * cj(g)[0] + cj(g)[1]] for g in range(256)}
    cl = lambda g, k: ent[g][0] if k == 5 else ent[g][1] if k == 10 else g >> 4
    assert sorted(16 * ent[g][2] + cl(g, ent[g][2]) for g in range(256)) == list(range(256))
    ordtab = []
    for g in range(256):
        o_, od = ent[g][2], ent[g][3:]
        assert sorted(od) == list(range(16)) and od[15] == o_
        con = [x for x in range(256) if x != g and cl(x, o_) == cl(g, o_)] + [g]
        assert sorted(cj(x)[1] for x in con) == list(range(16))
        nib = sum(k << (4 * t) for t, k in enumerate(od))
        cn = sum(cl(g, k) << (4 * k) for k in range(16))
        ctr = [g >> 4, 16 + cl(g, 5), 32 + cl(g, 10)]
        first = {5: 1, 10: 2}.get(o_, 0)
        ctr = [ctr[first]] + [x for i, x in enumerate(ctr) if i != first]
        u16 = [16 * x + ent[x][3:].index(o_) for x in con]
        assert all(v % 16 < 15 for v in u16[:15])
        ordtab += [nib & 0xffffffff, nib >> 32, cn & 0xffffffff, cn >> 32, 16 * o_ + cl(g, o_), ctr[0] | ctr[1] << 8 | ctr[2] << 16, o_, 0]
        ordtab += [u16[2 * i] | u16[2 * i + 1] << 16 for i in range(8)]

    def seqcode(dst, vw, vrr, vaa):
        e(f"  v_lshl_add_u32 {vr(dst)}, {vr(vaa)}, 2, {vr(vw)}")
        e(f"  v_lshl_add_u32 {vr(dst)}, {vr(dst)}, 2, {vr(vrr)}")

    def rowcode(dst, seq, t0, t1):
        if True:
            e("; two workgroups alternate over runs of 42 or 43 rows of a 256-row block: runs 32 KiB apart share DRAM pages")
            e(f"  s_and_b32 s{sT0}, s{sJ}, 1")
            e(f"  v_add_u32 {vr(t0)}, s{sT0}, {vr(seq)}")
            e(f"  v_cmp_le_u32 vcc, 43, {vr(t0)}")
            e(f"  s_add_u32 s{sT1}, s{sT0}, 42")
            e(f"  v_mov_b32 {vr(t1)}, s{sT1}")
            e(f"  v_cndmask_b32 {vr(t1)}, 0, {vr(t1)}, vcc")
            e(f"  v_cmp_le_u32 vcc, 86, {vr(t0)}")
            e(f"  v_add_u32 {vr(dst)}, {vr(seq)}, {vr(t1)}")
            e(f"  s_sub_u32 s{sT1}, 43, s{sT0}")
            e(f"  v_mov_b32 {vr(t1)}, s{sT1}")
            e(f"  v_cndmask_b32 {vr(t1)}, 0, {vr(t1)}, vcc")
            e(f"  s_mul_i32 s{sT0}, s{sT0}, 43")
            e(f"  s_lshr_b32 s{sT1}, s{sJ}, 1")
            e(f"  s_lshl_b32 s{sT1}, s{sT1}, 8")
            e(f"  s_add_u32 s{sT0}, s{sT0}, s{sT1}")
            e(f"  v_add3_u32 {vr(dst)}, {vr(dst)}, {vr(t1)}, s{sT0}")

    def ld(n):
        rr = rA if n < 24 else rB
        a, j = (n % 24) // 3, n % 3
        d = ring + 4 * (n % RING)
        e(f"  buffer_load_dwordx4 {vr(d, 4)}, {vr(voff + a)}, s[{rr}:{rr + 3}], 0 offen offset:{256 * j} nt")

    def cnt(depth, n):
        ops = loads = 0
        pos = (n + PD) % 3
        depth += int(P.bu[pos])
        while loads < depth - 1:
            if n % (3 * EX) == CP:
                ops += NX
            if P.ctl and n % 24 == 3 * P.ba + CP:
                ops += 1
            n -= 1
            loads += 1
            ops += 1
        if int(P.tx[pos]) and n % (3 * EX) == CP:
            ops += int(P.tx[pos]) + (int(P.tx[pos]) == NX and n % 24 == 3 * P.ba + CP)
        return ops

    def toff(n):
        if P.th:
            return [int(x) for x in P.th.split(",")][(n + PD) % 3]
        return P.dl * ((n - DP) % 3 - 1)

    LAG = 2 // EX
    SW = deep + max(int(x) for x in P.bu) > 6

    def swait(a):
        return 6 + (LAG - 1) * NX + ((a - P.ba) % 8 in (0, 1))

    drain = {}

    def verify():
        ops = [("L", i) for i in range(PRE)]
        done = max(3 * PL, PRE - PD) + 1
        for g in range(3 * PL, 24 * 32):
            n = g % 24
            tail = g + PD >= 24 * 32
            if not tail:
                if P.ctl and n == 3 * P.ba + CP:
                    ops.append(("X", 0))
                if n % (3 * EX) == CP:
                    if P.ctl and SW:
                        done = max(done, len(ops) - swait(n // 3))
                    ops += [("X", 0)] * (NX if P.inorder else max(0, NX - 1))
            if g + PD == 24 * 32:
                drain["in"] = len(ops) - 1 - ops.index(("L", g))
                done = max(done, len(ops) - drain["in"])
            assert ("L", g) in ops[:done], g
            if tail:
                if n < 23:
                    drain[n] = len(ops) - 1 - ops.index(("L", g + 1))
                    done = max(done, len(ops) - drain[n])
                continue
            if g + PD < PRE:
                continue
            done = max(done, len(ops) - cnt(deep + (P.hi3 < 99 and (n + PD) % 3 == 0 and g >= 3 * P.start) if (g >= 3 * (P.start // EX * EX) or (g >= DP and P.s0 > P.hi + toff(n))) else sh, n))
            ops.append(("L", g + PD))
    verify()
    lab = [0]

    def pace(n, hi):
        if P.ctl:
            lab[0] += 1
            top = P.hi3 < 99 and (n + PD) % 3 == 0
            if top:
                boost(hi + P.hi3)
                e(f"  s_cbranch_scc1 L_r{lab[0]}")
            if deep > sh + 1:
                boost(P.hi2)
                e(f"  s_cbranch_scc1 L_q{lab[0]}")
            boost(hi + toff(n))
            e(f"  s_cbranch_scc1 L_p{lab[0]}")
            e(f"  s_waitcnt vmcnt({cnt(sh, n)})")
            e(f"L_p{lab[0]}:")
            if deep > sh + 1:
                e(f"  s_waitcnt vmcnt({cnt(sh + 1, n)})")
                e(f"L_q{lab[0]}:")
            e(f"  s_waitcnt vmcnt({cnt(deep, n)})")
            if top:
                e(f"L_r{lab[0]}:")
                e(f"  s_waitcnt vmcnt({cnt(deep + 1, n)})")
        else:
            e(f"  s_waitcnt vmcnt({cnt(sh, n)})")

    def control(a):
        if not P.ctl:
            return
        if a == P.ba:
            e("  s_mov_b64 exec, 1")
            e(f"  global_load_dwordx2 {vr(vBI, 2)}, {vr(vBA)}, s[{sWS}:{sWS + 1}] sc1")
            e("  s_mov_b64 exec, -1")
        if a % EX == 0:
            sm = smp + 4 * ((a // EX) % LAG)
            if SW:
                e(f"  s_waitcnt vmcnt({swait(a)})")
            if a == (P.ba + 2 + EX - 1) // EX * EX % 8:
                e(f"  v_add_u32 {vr(vSum)}, {vr(vBI)}, {vr(vBI + 1)}")
                e("  s_nop 0")
                e(f"  v_readfirstlane_b32 s{sB}, {vr(vSum)}")
            e(f"  s_add_u32 s{sT0}, s{sLO}, 0x03030303")
            e(f"  v_msad_u8 {vr(vSum)}, s{sLO}, {vr(sm)}, 0")
            e(f"  v_msad_u8 {vr(vSu2)}, s{sT0}, {vr(sm)}, 0")
            for k in range(1, 3):
                e(f"  v_msad_u8 {vr(vSum)}, s{sLO}, {vr(sm + k)}, {vr(vSum)}")
                e(f"  v_msad_u8 {vr(vSu2)}, s{sT0}, {vr(sm + k)}, {vr(vSu2)}")
            e(f"  v_sub_u32 {vr(vSum)}, {vr(vSum)}, {vr(vSu2)}")
            e(f"  v_mov_b32 {vr(vN)}, s{sN}")
            e(f"  s_add_u32 s{sLO}, s{sLO}, 0x01010101")
            if P.nl > 1:
                e(f"  v_add_u32_dpp {vr(vSum)}, {vr(vSum)}, {vr(vSum)} quad_perm:[2,3,0,1] row_mask:0xf bank_mask:0xf")
                e(f"  s_nop {1 if P.nl > 2 else 0}")
            if P.nl > 2:
                e(f"  v_add_u32_dpp {vr(vSum)}, {vr(vSum)}, {vr(vSum)} row_shl:4 row_mask:0xf bank_mask:0xf")
                e("  s_nop 0")
            e(f"  v_readlane_b32 s{sMASK}, {vr(vSum)}, 0")
            e(f"  v_readlane_b32 s{sSCALE}, {vr(vSum)}, 1")
            e("  s_mov_b64 exec, 1")
            e(f"  global_store_byte {vr(vPS)}, {vr(vN)}, s[{sWS}:{sWS + 1}]")
            e(f"  s_mov_b64 exec, {(1 << (2 * P.nl)) - 1}")
            e(f"  global_load_dwordx3 {vr(sm, 3)}, {vr(vPL + (a // EX) % 4)}, s[{sWS}:{sWS + 1}] sc1")
            e("  s_mov_b64 exec, -1")

    def decide(a):
        if not P.ctl:
            return
        if a % EX == 0:
            e(f"  s_add_u32 s{sS}, s{sMASK}, s{sSCALE}")
            if P.sm > 1:
                e(f"  s_ashr_i32 s{sT0}, s{sI}, {P.sm - 1}")
                e(f"  s_sub_u32 s{sI}, s{sI}, s{sT0}")
                e(f"  s_add_u32 s{sI}, s{sI}, s{sS}")
                e(f"  s_ashr_i32 s{sS}, s{sI}, {P.sm - 1}")
            elif P.sm:
                e(f"  s_add_u32 s{sT0}, s{sS}, s{sI}")
                e(f"  s_mov_b32 s{sI}, s{sS}")
                e(f"  s_ashr_i32 s{sS}, s{sT0}, {1 + P.nl // 2}")
            elif P.nl > 1:
                e(f"  s_ashr_i32 s{sS}, s{sS}, {P.nl // 2}")
            e(f"  s_add_u32 s{sS}, s{sS}, s{sB}")
            e(f"  s_cmp_lt_u32 s{sN}, {P.start // EX}")
            e(f"  s_cselect_b32 s{sS}, {P.s0}, s{sS}")
            if P.sm > 1:
                e(f"  s_cselect_b32 s{sI}, 0, s{sI}")
            e(f"  s_add_u32 s{sN}, s{sN}, 1")

    def throttle(a):
        if not P.ctl or P.lo <= -60:
            return
        lab[0] += 1
        e(f"  s_cmp_lt_i32 s{sS}, {P.lo}")
        e(f"  s_cbranch_scc0 L_t{lab[0]}")
        e(f"  s_waitcnt vmcnt({cnt(P.thr + 1, 3 * a + TP)})")
        if P.lo2 > -60:
            e(f"  s_cmp_lt_i32 s{sS}, {P.lo2}")
            e(f"  s_cbranch_scc0 L_t{lab[0]}")
            e(f"  s_waitcnt vmcnt({cnt(P.thr2 + 1, 3 * a + TP)})")
        e(f"L_t{lab[0]}:")

    def boost(hi):
        if P.ctl:
            assert hi >= P.lo
            e(f"  s_cmp_gt_i32 s{sS}, {hi}")

    def srd_head(rr, sp, sh_):
        e(f"  s_mul_i32 s{sT0}, s{sh_}, {HB}")
        e(f"  s_add_u32 s{rr}, s{sp}, s{sT0}")
        e(f"  s_addc_u32 s{rr + 1}, s{sp + 1}, 0")

    def vstep_k(dst, src):
        e(f"  s_lshl_b32 s{dst}, s{src}, 2")
        e(f"  s_lshr_b64 s[{sZ}:{sZ + 1}], s[{sVO}:{sVO + 1}], s{dst}")
        e(f"  s_and_b32 s{dst}, s{sZ}, 15")

    def head_of(dst, slot):
        e(f"  s_lshl_b32 s{sT0}, s{slot}, 2")
        e(f"  s_lshr_b64 s[{sZ}:{sZ + 1}], s[{sCN}:{sCN + 1}], s{sT0}")
        e(f"  s_and_b32 s{sZ}, s{sZ}, 15")
        e(f"  s_lshl4_add_u32 s{dst}, s{slot}, s{sZ}")

    def budget(ok):
        e(f"  s_cmp_eq_u32 s{sSP}, 0")
        e(f"  s_cbranch_scc1 {ok}")
        e(f"  s_sub_u32 s{sSP}, s{sSP}, 1")

    def flagwait(name, off):
        e(f"L_{name}:")
        e("  s_waitcnt lgkmcnt(0)")
        e(f"  v_readfirstlane_b32 s{sF}, {vr(vF)}")
        e(f"  s_cmp_ge_u32 s{sF}, s{sNEED}")
        e(f"  s_cbranch_scc1 L_{name}_ok")
        budget(f"L_{name}_ok")
        e(f"  ds_read_b32 {vr(vF)}, {vr(vZ)} offset:{off}")
        e(f"  s_branch L_{name}")
        e(f"L_{name}_ok:")

    def tr():
        if P.trace:
            e("  s_memrealtime s[88:89]")
            e("  s_waitcnt lgkmcnt(0)")
            e(f"  v_writelane_b32 {vr(vtr)}, s88, m0")
            e("  s_add_u32 m0, m0, 1")
            e("  s_min_u32 m0, m0, 63")

    def die_base(dst):
        e(f"  s_getreg_b32 s{sSE}, hwreg(HW_REG_HW_ID, 8, 7)")
        e(f"  s_getreg_b32 s{dst}, hwreg(HW_REG_XCC_ID, 0, 3)")
        e(f"  s_and_b32 s{sCU}, s{sSE}, 15")
        e(f"  s_lshr_b32 s{sSE}, s{sSE}, 5")
        e(f"  s_mul_i32 s{dst}, s{dst}, 4352")
        e(f"  s_add_u32 s{dst}, s{dst}, {W_PL}")

    ha = Alloc(16)
    l, u, h0, h1, h2, h3 = [ha.take(1) for _ in range(6)]
    qo, wa, wb, sgn, sgx, sg2 = [ha.take(1) for _ in range(6)]
    ro = ha.take(2)
    vL16, vCNT, vDB, vOne, vFA, vFI, vFR, vFX, vFB, vEL, vCL, vLa, vSa = [ha.take(1) for _ in range(13)]
    z4 = ha.take(4, 4)
    cs = ha.take(8, 4)
    sc = ha.take(4, 4)
    qn = ha.take(4, 4)
    x = ha.take(32, 4)
    pr = ha.take(4, 4)
    fo = ha.take(4, 4)
    rec = ha.take(32, 4)
    blk = ha.take(24, 4)
    st4 = ha.take(4, 4)
    ra = ha.take(16)
    assert ha.n <= NV and vZ < 16

    invX, invY, tA, tN, tK = tmp, tmp + 4, tmp + 8, tmp + 12, tmp + 16
    PC0 = 20 + 8 * P.stamp
    D_INV, D_QCS, D_END = 256, 768, 1152
    e(HEADER.rstrip("\n"))
    e(f"; @launch grid=(256,1,1) block=(320,1,1) lds={LDS}")
    for ln in ABOUT.strip("\n").split("\n"):
        e("; " + ln)
    e('.amdgcn_target "amdgcn-amd-amdhsa--gfx950"')
    e(".text")
    e(f".globl {NAME}_kernel")
    e(".p2align 8")
    e(f".type {NAME}_kernel,@function")
    e(f"{NAME}_kernel:")
    e("  s_cmpk_ge_u32 s2, 0x100")
    e("  s_cbranch_scc1 L_end")
    if P.stamp:
        e(f"  s_memrealtime s[{sST}:{sST + 1}]")
    e("  s_load_dwordx16 s[4:19], s[0:1], 0")
    e(f"  s_getpc_b64 s[{sZ}:{sZ + 1}]")
    e("L_pc:")
    e("  v_cmp_gt_u32 vcc, 64, v0")
    e(f"  v_lshlrev_b32 {vr(vT16)}, 4, v0")
    e(f"  s_lshr_b32 s{sC}, s2, 4")
    e(f"  s_and_b32 s{sT0}, s2, 7")
    e(f"  s_lshl3_add_u32 s{sT0}, s{sC}, s{sT0}")
    e(f"  s_movk_i32 s{sNEED}, 768")
    e("  s_cbranch_vccz L_s0")
    e(f"  v_lshl_add_u32 {vr(h0)}, s{sC}, 10, {vr(vT16)}")
    e(f"  global_load_dword {vr(h3)}, {vr(h0)}, s[{sZ}:{sZ + 1}] offset:{D_END - PC0}")
    e(f"  v_and_b32 {vr(vL16)}, 0x1f0, {vr(vT16)}")
    e(f"  global_load_dwordx4 {vr(pr, 4)}, {vr(vL16)}, s[{sZ}:{sZ + 1}] offset:{D_QCS - PC0}")
    e(f"  v_and_b32 {vr(h1)}, 32, v0")
    e(f"  v_lshrrev_b32 {vr(h1)}, 1, {vr(h1)}")
    e(f"  v_add_u32 {vr(h2)}, s{sC}, {vr(h1)}")
    e(f"  v_mad_u32_u24 {vr(qo)}, {vr(h2)}, s{sNEED}, {vr(vL16)}")
    e(f"  v_lshrrev_b32 {vr(qo)}, 1, {vr(qo)}")
    e("  s_waitcnt lgkmcnt(0)")
    e(f"  global_load_dwordx2 {vr(rec, 2)}, {vr(qo)}, s[{sQ}:{sQ + 1}]")
    e(f"  global_load_dwordx2 {vr(rec + 2, 2)}, {vr(qo)}, s[{sQ}:{sQ + 1}] offset:192")
    e("  s_branch L_helper")
    e("L_s0:")
    e(f"  v_and_b32 {vr(vC16)}, 0xf0, {vr(vT16)}")
    e(f"  global_load_dwordx4 {vr(invX, 4)}, {vr(vC16)}, s[{sZ}:{sZ + 1}] offset:{D_INV - PC0}")
    e(f"  global_load_dwordx4 {vr(invY, 4)}, {vr(vC16)}, s[{sZ}:{sZ + 1}] offset:{D_INV + 256 - PC0}")
    e(f"  s_lshl_b32 s{sT0}, s{sT0}, 8")
    e("  s_bitcmp1_b32 s2, 3")
    e(f"  s_cselect_b32 s{sT1}, 39, -4")
    e(f"  s_add_u32 s{sT0}, s{sT0}, s{sT1}")
    e(f"  v_lshrrev_b32 {vr(tA)}, 4, v0")
    e(f"  v_add_u32 {vr(tA)}, s{sT0}, {vr(tA)}")
    e(f"  v_mad_u32_u24 {vr(tA)}, {vr(tA)}, s{sNEED}, {vr(vC16)}")
    e(f"  v_add_u32 {vr(tA + 1)}, 12288, {vr(tA)}")
    e("  s_waitcnt lgkmcnt(0)")
    for n in range(6):
        e(f"  global_load_dwordx4 {vr((xr if n < 3 * PL else ring) + 4 * n, 4)}, {vr(tA + n // 3)}, s[{sQK}:{sQK + 1}] offset:{256 * (n % 3)} nt")
    e("  s_branch L_s1")
    e("L_b0:")
    e(f".if (L_b0 - {NAME}_kernel > {D_INV}) || (L_pc - {NAME}_kernel != {PC0})")
    e('.error "entry block layout"')
    e(".endif")
    e(".p2align 8")
    e(".type L_inv,@object")
    e("L_inv:")
    tb = inv[:64] + inv[64:] + inv[64:]
    for k in range(0, 128, 8):
        e("  .long " + ", ".join(f"{v:#x}" for v in tb[k:k + 8]))
    e(".type L_qcs,@object")
    e("L_qcs:")
    for k in range(0, 96, 8):
        e("  .long " + ", ".join(f"{v:#x}" for v in qcs[k:k + 8]))

    def common():
        e(f"  s_load_dwordx8 s[24:31], s[0:1], 80")
        e(f"  s_lshl_b32 s{sT0}, s2, 6")
        e(f"  s_add_u32 s{sT0}, s{sT0}, L_order-L_pc")
        e(f"  s_add_u32 s{sRT}, s{sZ}, s{sT0}")
        e(f"  s_addc_u32 s{sRT + 1}, s{sZ + 1}, 0")
        e(f"  s_load_dwordx2 s[{sVO}:{sVO + 1}], s[{sRT}:{sRT + 1}], 0")
        e(f"  s_load_dwordx2 s[{sCN}:{sCN + 1}], s[{sRT}:{sRT + 1}], 8")
        e(f"  v_mov_b32 {vr(vZ)}, 0")
        e(f"  s_mov_b32 s{sSP}, {P.bound}")
        e(f"  s_and_b32 s{sJ}, s2, 7")
        e(f"  s_lshl_b32 s{sJ}, s{sJ}, 1")
        e("  s_bitcmp1_b32 s2, 3")
        e(f"  s_addc_u32 s{sJ}, s{sJ}, 0")

    PFR = [8, 10, 14, 16, 18, 20, 22, 72, 74, 76, 4, 86]
    pfn = [0]

    def pf():
        if P.tfine:
            e(f"  s_memrealtime s[{PFR[pfn[0]]}:{PFR[pfn[0]] + 1}]")
            pfn[0] += 1

    e("L_s1:")
    w_, r_, a_, vRW, t0, t1 = wt, wt + 1, wt + 2, wt + 3, dacc, dacc + 1
    vRF, pos = vT16, tK + 3
    if P.trace:
        e(f"  v_mov_b32 {vr(vtr)}, 0")
        e("  s_mov_b32 m0, 0")
    pf()
    e("  v_subrev_u32 v0, 64, v0")
    e("  s_setprio 1")
    common()
    e(f"  v_lshrrev_b32 {vr(w_)}, 6, v0")
    e(f"  v_bfe_u32 {vr(r_)}, v0, 4, 2")
    e(f"  v_and_b32 {vr(a_)}, 7, v0")
    e(f"  v_readfirstlane_b32 s{sW}, {vr(w_)}")
    seqcode(vF, w_, r_, a_)
    rowcode(vRW, vF, t0, t1)
    e(f"  s_mov_b32 s{rA + 2}, {HB}")
    e(f"  s_mov_b32 s{rA + 3}, 0x20000")
    srd_head(rA, sQK, sC)
    nk = [6]
    NVO = max(4, (max(int(v) for v in P.kp_.split(",")[:P.su + 1]) + 2) // 3)
    assert PD + 3 * PL <= PRE <= 12 + 3 * PL and EX == 1

    def voffs(lo, hi):
        for a in range(lo, hi):
            e(f"  v_mov_b32_dpp {vr(voff + a)}, {vr(vRW)} row_newbcast:{a} row_mask:0xf bank_mask:0xf")
        for a in range(lo, hi):
            e(f"  v_mad_u32_u24 {vr(voff + a)}, {vr(voff + a)}, s{sNEED}, {vr(vC16)}")

    def k_loads(hi):
        while nk[0] < min(hi, PRE):
            ld(nk[0])
            nk[0] += 1

    def setup():
        voffs(0, 2)
        voffs(NVO, 8)
        e(f"  v_add_u32 {vr(vQA)}, {QB}, {vr(vC16)}")
        e(f"  v_lshrrev_b32 {vr(t1)}, 4, v0")
        e(f"  v_lshl_add_u32 {vr(vLG)}, {vr(t1)}, 3, {vr(a_)}")
        e(f"  v_lshlrev_b32 {vr(vLG)}, 2, {vr(vLG)}")
        e(f"  v_add_u32 {vr(vLG)}, {LGB}, {vr(vLG)}")
        e(f"  v_lshl_add_u32 {vr(t1)}, {vr(r_)}, 2, {vr(vC16)}")
        e(f"  v_mad_u32_u24 {vr(vPA)}, {vr(w_)}, s{sNEED}, {vr(t1)}")
        e(f"  v_add_u32 {vr(vPA)}, {PB}, {vr(vPA)}")
        e(f"  v_lshlrev_b32 {vr(vPW)}, 2, {vr(w_)}")
        e(f"  v_mov_b32 {vr(LG)}, 0")
        e(f"  s_mov_b32 s{sMSK}, 0x01010101")
        e(f"  s_mov_b32 s{sMSK + 1}, s{sMSK}")
        for a in range(1, 8):
            e(f"  s_lshl_b64 s[{sMSK + 2 * a}:{sMSK + 2 * a + 1}], s[{sMSK}:{sMSK + 1}], {a}")
        e(f"  s_mov_b32 s{rB + 2}, {HB}")
        e(f"  s_mov_b32 s{rB + 3}, 0x20000")
        e(f"  s_mov_b32 s{sK}, 0")
        if P.ctl:
            e("; progress slots: this wave writes one byte of line (half, w) and samples the lines of the other half")
            die_base(sF)
            e(f"  s_add_u32 s{sT0}, s{sF}, 2048")
            e(f"  v_mov_b32 {vr(vBA)}, s{sT0}")
            e(f"  s_and_b32 s{sT1}, s{sSE}, 2")
            e(f"  s_lshl_b32 s{sT1}, s{sT1}, 9")
            e(f"  s_lshl_b32 s{sT0}, s{sW}, 8")
            e(f"  s_add_u32 s{sT0}, s{sT0}, s{sT1}")
            e(f"  s_add_u32 s{sT0}, s{sT0}, s{sF}")
            e(f"  s_add_u32 s{sT0}, s{sT0}, s{sCU}")
            e(f"  s_and_b32 s{sSE}, s{sSE}, 1")
            e(f"  s_lshl_b32 s{sSE}, s{sSE}, 4")
            e(f"  s_add_u32 s{sT0}, s{sT0}, s{sSE}")
            e(f"  v_mov_b32 {vr(vPS)}, s{sT0}")
            e(f"  s_xor_b32 s{sT1}, s{sT1}, 1024")
            e(f"  s_add_u32 s{sF}, s{sF}, s{sT1}")
            e(f"  v_and_b32 {vr(vN)}, 1, v0")
            e(f"  v_lshl_add_u32 {vr(vN)}, {vr(vN)}, 4, s{sF}")
            e(f"  v_bfe_u32 {vr(t1)}, v0, 1, 2")
            e(f"  v_mad_u32_u24 {vr(t1)}, {vr(t1)}, {4 // P.nl}, {vr(w_)}")
            for k in range(4):
                e(f"  v_add_u32 {vr(vSum)}, {k}, {vr(t1)}")
                e(f"  v_and_b32 {vr(vSum)}, 3, {vr(vSum)}")
                e(f"  v_lshl_add_u32 {vr(vPL + k)}, {vr(vSum)}, 8, {vr(vN)}")
            e(f"  s_mov_b32 s{sLO}, {((PL - LAG - 2) * 0x01010101) & 0xffffffff:#x}")
            for k in range(8):
                e(f"  v_mov_b32 {vr(smp + k)}, 0")
            e(f"  v_mov_b32 {vr(vBI)}, 0")
            e(f"  v_mov_b32 {vr(vBI + 1)}, 0")
            e(f"  s_mov_b32 s{sN}, {PL}")
            e(f"  s_mov_b32 s{sB}, 0")
            e(f"  s_mov_b32 s{sS}, {P.lo}")
            e(f"  s_mov_b32 s{sI}, 0")
        e(f"  s_add_u32 s{sF}, s{sC}, 16")
        srd_head(rB, sQK, sF)

    def sincos(dst, iv):
        for h in (0, 2):
            e(f"  v_pk_mul_f32 {vr(tA + h, 2)}, {vr(iv + h, 2)}, {vr(tK + 2, 2)} op_sel:[0,1] op_sel_hi:[1,1]")
        if iv == invY:
            for h in (0, 2):
                e(f"  v_pk_mul_f32 {vr(tN + h, 2)}, {vr(tA + h, 2)}, {vr(tK, 2)} op_sel_hi:[1,0]")
        else:
            for h in (0, 2):
                e(f"  v_pk_fma_f32 {vr(tN + h, 2)}, {vr(tA + h, 2)}, {vr(tK, 2)}, {vr(tK, 2)} op_sel:[0,0,1] op_sel_hi:[1,0,1]")
            for h in (0, 2):
                e(f"  v_pk_add_f32 {vr(tN + h, 2)}, {vr(tN + h, 2)}, {vr(tK, 2)} op_sel:[0,1] op_sel_hi:[1,1] neg_lo:[0,1] neg_hi:[0,1]")
            for h in (0, 2):
                e(f"  v_pk_fma_f32 {vr(tN + h, 2)}, {vr(tA + h, 2)}, {vr(tK, 2)}, {vr(tN + h, 2)} op_sel_hi:[1,0,1] neg_lo:[0,0,1] neg_hi:[0,0,1]")
            for h in (0, 2):
                e(f"  v_pk_fma_f32 {vr(tN + h, 2)}, {vr(tA + h, 2)}, {vr(tK + 2, 2)}, {vr(tN + h, 2)} op_sel_hi:[1,0,1]")
        for i in range(4):
            e(f"  v_cos_f32 {vr(tA + i)}, {vr(tN + i)}")
        for i in range(4):
            e(f"  v_sin_f32 {vr(tN + i)}, {vr(tN + i)}")
        for i in range(4):
            e(f"  v_cvt_pk_bf16_f32 {vr(dst + i)}, {vr(tA + i)}, {vr(tN + i)}")

    T = lambda a, j: tab + 12 * a + 4 * j
    kp = [int(v) for v in P.kp_.split(",")]

    def chunk(i):
        a = 2 * (i // 4)
        if i % 4 == 0:
            e(f"  v_mov_b32_dpp {vr(pos)}, {vr(vRF)} row_newbcast:{a} row_mask:0xf bank_mask:0xf")
            sincos(T(a, 0), invX)
        elif i % 4 == 1:
            e(f"  v_mov_b32_dpp {vr(pos)}, {vr(vRF)} row_newbcast:{a + 1} row_mask:0xf bank_mask:0xc")
            sincos(T(a, 1), invY)
        elif i % 4 == 2:
            e(f"  v_mov_b32_dpp {vr(pos)}, {vr(vRF)} row_newbcast:{a + 1} row_mask:0xf bank_mask:0xf")
            sincos(T(a + 1, 0), invX)
        else:
            for k in range(4):
                e(f"  v_mov_b32 {vr(T(a + 1, 2) + k)}, {vr(T(a, 1) + k)}")
            for dst, src, m in ((T(a, 2), T(a, 0), 3), (T(a, 2), T(a, 1), 12), (T(a + 1, 1), T(a, 1), 3), (T(a, 1), T(a, 0), 12),
                                (T(a + 1, 1), T(a + 1, 0), 12), (T(a + 1, 2), T(a + 1, 0), 3)):
                for k in range(4):
                    e(f"  v_mov_b32_dpp {vr(dst + k)}, {vr(src + k)} row_ror:8 row_mask:0xf bank_mask:{m:#x}")

    lazy = {}
    for i, n in zip(range(P.nt, 16), [int(v) for v in P.lz.split(",")]):
        assert n < 6 * (i // 4)
        lazy.setdefault(n, []).append(i)
    assert sum(len(v) for v in lazy.values()) == 16 - P.nt

    voffs(2, NVO)
    c_hi = f32bits(1 / (2 * math.pi))
    c_lo = f32bits(1 / (2 * math.pi) - struct.unpack("<f", struct.pack("<I", c_hi))[0])
    e(f"  v_cvt_f32_u32 {vr(vRF)}, {vr(vRW)}")
    e(f"  v_mov_b32 {vr(tK)}, {c_hi:#x}")
    e(f"  v_mov_b32 {vr(tK + 1)}, {f32bits(1.5 * 2 ** 23):#x}")
    e(f"  v_mov_b32 {vr(tK + 2)}, {c_lo:#x}")
    k_loads(kp[0])
    pf()
    e(f"  s_waitcnt vmcnt({nk[0]})")
    pf()
    for i in range(P.nt):
        if i == P.su:
            setup()
            pf()
        chunk(i)
        k_loads(kp[i + 1])
        if i % 4 == 3:
            pf()
    if P.su >= P.nt:
        setup()
    if not PL:
        k_loads(PRE)
    e(f"  v_mov_b32 {vr(bc)}, {f32bits(-7.5):#x}")
    if P.dumptab:
        e("  s_waitcnt lgkmcnt(0)")
        e(f"  s_mul_i32 s{sT0}, s2, {256 * 400}")
        e(f"  s_add_u32 s{sT0}, s{sT0}, 0x1000000")
        e(f"  v_mul_u32_u24 {vr(t0)}, 400, v0")
        e(f"  v_add_u32 {vr(t0)}, s{sT0}, {vr(t0)}")
        for k in range(24):
            e(f"  global_store_dwordx4 {vr(t0)}, {vr(tab + 4 * k, 4)}, s[{sWS}:{sWS + 1}] offset:{16 * k}")
        e(f"  global_store_dword {vr(t0)}, {vr(vRW)}, s[{sWS}:{sWS + 1}] offset:384")
        e("  s_waitcnt vmcnt(0)")
    e("  s_barrier")
    pf()
    e("  s_mov_b64 vcc, -1")
    for j in range(3):
        e(f"  ds_read_b128 {vr(qa + 4 * j, 4)}, {vr(vQA)} offset:{256 * j}")


    def kbody(a, j, k_):
        for i in range(4):
            e(f"  v_dot2_f32_bf16 {vr(wt + i)}, {vr(T(a, j) + i)}, {vr(qa + 4 * j + i)}, 0")
        for i in range(4):
            e(f"  v_cvt_f32_i32 {vr(k_ + i)}, {vr(k_ + i)}")
        if a == 7:
            e(f"  ds_read_b128 {vr(qa + 4 * j, 4)}, {vr(vQA)} offset:{256 * j}")
        for h in range(2):
            e(f"  v_pk_add_f32 {vr(k_ + 2 * h, 2)}, {vr(k_ + 2 * h, 2)}, {vr(bc, 2)} op_sel_hi:[1,0]")
        for h in range(2):
            if j == 0 and h == 0:
                e(f"  v_pk_mul_f32 {vr(dacc, 2)}, {vr(k_, 2)}, {vr(wt, 2)}")
            else:
                e(f"  v_pk_fma_f32 {vr(dacc, 2)}, {vr(k_ + 2 * h, 2)}, {vr(wt + 2 * h, 2)}, {vr(dacc, 2)}")
        if j == 2:
            e(f"  v_add_f32 {vr(dacc)}, {vr(dacc)}, {vr(dacc + 1)}")

    def kred(a):
        for k, n in enumerate((8, 4, 2, 1)):
            e(f"  v_add_f32_dpp {vr(dacc)}, {vr(dacc)}, {vr(dacc)} row_ror:{n} row_mask:0xf bank_mask:0xf")
            if k < 3:
                e("  s_nop 1")
        e(f"  v_cndmask_b32_e64 {vr(LG)}, {vr(LG)}, {vr(dacc)}, s[{sMSK + 2 * a}:{sMSK + 2 * a + 1}]")

    if PL:
        e(f"  s_mov_b32 s{sNEED}, 2")
        e(f"  v_add_u32 {vr(vQA)}, 768, {vr(vQA)}")
        e("  s_waitcnt lgkmcnt(0)")
        pf()
        for n in range(3 * PL):
            e(f"  s_waitcnt vmcnt({nk[0] - 1 - n})")
            kbody(n // 3, n % 3, xr + 4 * n)
            if nk[0] < PRE and PRE - nk[0] >= 3 * PL - n:
                e(f"  s_waitcnt vmcnt({P.d0 - 1})")
                k_loads(nk[0] + 1)
            if n % 3 == 2:
                e("  s_nop 1")
                kred(n // 3)
        assert nk[0] == PRE
    e(f"  s_waitcnt vmcnt({PRE - 1 - max(3 * PL, PRE - PD)})")
    pf()
    if P.tfine:
        e("  s_waitcnt lgkmcnt(0)")
        for k in range(pfn[0]):
            e(f"  v_writelane_b32 {vr(vtr)}, s{PFR[k]}, {k}")
        e(f"  s_mov_b32 m0, {pfn[0]}")
    if lazy or PL:
        e(f"  s_branch L_k{PL}" if PL else "  s_branch L_k")
        for n in sorted(lazy):
            e(f"L_z{n}:")
            for i in lazy[n]:
                chunk(i)
            e(f"  s_branch L_y{n}")
    e(".p2align 6")
    e("L_k:")
    e(f"  s_add_u32 s{sT0}, s{sK}, 2")
    e(f"  s_min_u32 s{sNEED}, s{sT0}, 16")
    e(f"  v_add_u32 {vr(vQA)}, 768, {vr(vQA)}")
    e("  s_waitcnt lgkmcnt(0)")
    for a in range(8):
        if a == PL and PL:
            e(f"L_k{PL}:")
        if a == 6:
            e(f"  ds_read_b32 {vr(vF)}, {vr(vZ)} offset:{FL + 16}")
        if a == 7:
            flagwait("qn", FL + 16)
        for j in range(3):
            if j == CP:
                control(a)
            if j == DP:
                decide(a)
            n = 3 * a + j
            k_ = ring + 4 * (n % RING)
            kbody(a, j, k_)
            if 3 * PL <= n < PRE - PD:
                e(f"  s_cbranch_vccnz L_u{n}")
            if j == TP:
                throttle(a)
            pace(n, P.hi)
            ld(n + PD)
            if 3 * PL <= n < PRE - PD:
                e(f"L_u{n}:")
            if n in lazy:
                e(f"  s_cbranch_vccnz L_z{n}")
                e(f"L_y{n}:")
            if n == max([3 * PL, PRE - PD - 1] + list(lazy)):
                e("  s_mov_b64 vcc, 0")
        kred(a)
        if a in (3, 7) or P.tfine:
            tr()
    e(f"  s_add_u32 s{sK}, s{sK}, 1")
    e(f"  v_mov_b32 {vr(vF)}, s{sK}")
    e(f"  ds_write_b32 {vr(vLG)}, {vr(LG)}")
    e(f"  ds_write_b32 {vr(vPW)}, {vr(vF)} offset:{FL}")
    e(f"  v_add_u32 {vr(vLG)}, 512, {vr(vLG)}")
    e(f"  s_mov_b64 s[{rA}:{rA + 1}], s[{rB}:{rB + 1}]")
    e(f"  s_add_u32 s{sH}, s{sK}, 1")
    e(f"  s_sub_u32 s{sT1}, s{sH}, 16")
    vstep_k(sF, sT1)
    e(f"  s_cmp_lt_u32 s{sH}, 16")
    e(f"  s_cselect_b32 s{sH}, s{sH}, s{sF}")
    e(f"  s_cselect_b32 s{sX}, s{sQK}, s{sQV}")
    e(f"  s_cselect_b32 s{sX + 1}, s{sQK + 1}, s{sQV + 1}")
    head_of(sH, sH)
    srd_head(rB, sX, sH)
    e(f"  s_cmp_lt_u32 s{sK}, 16")
    e("  s_cbranch_scc1 L_k")

    e("L_vpre:")
    vLB = LG
    e(f"  v_subrev_u32 {vr(vLB)}, 8192, {vr(vLG)}")
    e(f"  s_mov_b32 s{sK}, 0")
    vstep_k(sH, sK)
    e(f"  s_add_u32 s{sNEED}, s{sH}, 1")
    e(f"  ds_read_b32 {vr(vF)}, {vr(vZ)} offset:{FL + 20}")
    flagwait("a0", FL + 20)
    e(f"  v_lshl_add_u32 {vr(vLG)}, s{sH}, 9, {vr(vLB)}")
    e(f"  ds_read_b32 {vr(A)}, {vr(vLG)}")
    e(".p2align 6")
    e("L_v:")
    e(f"  s_add_u32 s{sT1}, s{sK}, 1")
    e(f"  s_min_u32 s{sT1}, s{sT1}, 15")
    vstep_k(sH, sT1)
    e(f"  s_add_u32 s{sNEED}, s{sH}, 1")
    e(f"  v_lshl_add_u32 {vr(vLG)}, s{sH}, 9, {vr(vLB)}")
    e("  s_waitcnt lgkmcnt(0)")
    for a in range(8):
        e(f"  v_mov_b32_dpp {vr(bc)}, {vr(A)} row_newbcast:{a} row_mask:0xf bank_mask:0xf")
        if a == 5:
            e(f"  ds_read_b32 {vr(vF)}, {vr(vZ)} offset:{FL + 20}")
        if a == 6:
            flagwait("an", FL + 20)
            e(f"  ds_read_b32 {vr(An)}, {vr(vLG)}")
        for j in range(3):
            n = 3 * a + j
            if n + PD == 24:
                e("  s_cbranch_vccz L_in")
                e(f"  s_waitcnt vmcnt({drain['in']})")
                e("L_in:")
            if j in (CP, DP):
                if n + PD >= 24:
                    e(f"  s_cbranch_vccnz L_c{n}")
                if j == CP:
                    control(a)
                if j == DP:
                    decide(a)
                if n + PD >= 24:
                    e(f"L_c{n}:")
            v_ = ring + 4 * (n % RING)
            for i in range(4):
                e(f"  v_cvt_f32_i32 {vr(v_ + i)}, {vr(v_ + i)}")
            for h in range(2):
                d = acc + 4 * j + 2 * h
                if a == 0:
                    e(f"  v_pk_mul_f32 {vr(d, 2)}, {vr(v_ + 2 * h, 2)}, {vr(bc, 2)} op_sel_hi:[1,0]")
                else:
                    e(f"  v_pk_fma_f32 {vr(d, 2)}, {vr(v_ + 2 * h, 2)}, {vr(bc, 2)}, {vr(d, 2)} op_sel_hi:[1,0,1]")
            if n + PD >= 24:
                e(f"  s_cbranch_vccz L_f{n}")
                if n < 23:
                    e(f"  s_waitcnt vmcnt({drain[n]})")
                e(f"  s_branch L_g{n}")
                e(f"L_f{n}:")
            if j == TP:
                throttle(a)
            pace(n, P.hiv)
            ld(n + PD)
            if n + PD >= 24:
                e(f"L_g{n}:")
        if a in (3, 7):
            tr()
    e(f"  s_add_u32 s{sK}, s{sK}, 1")
    for j in range(3):
        e(f"  v_permlane32_swap_b32 {vr(acc + 4 * j)}, {vr(acc + 4 * j + 2)}")
        e(f"  v_permlane32_swap_b32 {vr(acc + 4 * j + 1)}, {vr(acc + 4 * j + 3)}")
    for j in range(3):
        e(f"  v_add_f32 {vr(acc + 4 * j)}, {vr(acc + 4 * j)}, {vr(acc + 4 * j + 2)}")
        e(f"  v_add_f32 {vr(acc + 4 * j + 1)}, {vr(acc + 4 * j + 1)}, {vr(acc + 4 * j + 3)}")
    e(f"  s_add_u32 s{sT0}, s{sK}, 16")
    e(f"  s_cmp_eq_u32 s{sK}, 15")
    e("  s_cselect_b64 vcc, -1, 0")
    if P.lb:
        e(f"  s_cselect_b32 s{sT1}, {P.lb}, 0")
        e(f"  s_add_u32 s{sB}, s{sB}, s{sT1}")
    e(f"  v_mov_b32 {vr(vF)}, s{sT0}")
    for j in range(3):
        e(f"  v_permlane16_swap_b32 {vr(acc + 4 * j)}, {vr(acc + 4 * j + 1)}")
    for j in range(3):
        e(f"  v_add_f32 {vr(acc + 4 * j)}, {vr(acc + 4 * j)}, {vr(acc + 4 * j + 1)}")
    e("  s_waitcnt lgkmcnt(0)")
    for j in range(3):
        e(f"  ds_write_b32 {vr(vPA)}, {vr(acc + 4 * j)} offset:{256 * j}")
    e(f"  ds_write_b32 {vr(vPW)}, {vr(vF)} offset:{FL}")
    e(f"  v_mov_b32 {vr(A)}, {vr(An)}")
    e(f"  v_add_u32 {vr(vPA)}, 3072, {vr(vPA)}")
    e(f"  s_mov_b64 s[{rA}:{rA + 1}], s[{rB}:{rB + 1}]")
    e(f"  s_add_u32 s{sT1}, s{sK}, 1")
    e(f"  s_min_u32 s{sT1}, s{sT1}, 15")
    vstep_k(sH, sT1)
    head_of(sH, sH)
    srd_head(rB, sQV, sH)
    e(f"  s_cmp_lt_u32 s{sK}, 16")
    e("  s_cbranch_scc1 L_v")
    if P.fb:
        e("  s_waitcnt lgkmcnt(0)")
        e("  s_barrier")
    if P.trace:
        e(f"  s_mul_i32 s8, s2, {5 * 256}")
        e("  s_add_u32 s8, s8, 0x100000")
        e(f"  v_lshl_add_u32 {vr(t0)}, v0, 2, s8")
        e(f"  global_store_dword {vr(t0)}, {vr(vtr)}, s[{sWS}:{sWS + 1}]")
    e("  s_endpgm")

    HP = [20, 22, 24, 8, 34, 36, 38, 72]
    NL = 2
    ms = [m for m in range(P.r0, P.r1 + 1) if m < P.rf or m > P.rt or (m - P.r0) % P.rp == 0]
    msk = sum(1 << m for m in ms)

    def hp(k):
        if P.hprof:
            e(f"  s_memrealtime s[{HP[k]}:{HP[k] + 1}]")

    def progwait(name, slp):
        e(f"L_{name}:")
        e(f"  ds_read_b128 {vr(pr, 4)}, {vr(vZ)} offset:{FL}")
        e("  s_waitcnt lgkmcnt(0)")
        e(f"  v_min_u32 {vr(pr)}, {vr(pr)}, {vr(pr + 1)}")
        e(f"  v_min3_u32 {vr(pr)}, {vr(pr)}, {vr(pr + 2)}, {vr(pr + 3)}")
        e("  s_nop 0")
        e(f"  v_readfirstlane_b32 s{sF}, {vr(pr)}")
        e(f"  s_cmp_ge_u32 s{sF}, s{sNEED}")
        e(f"  s_cbranch_scc1 L_{name}_ok")
        budget(f"L_{name}_ok")
        if slp:
            e(f"  s_sleep {slp}")
        e(f"  s_branch L_{name}")
        e(f"L_{name}_ok:")

    def rowred(op, v):
        for n in (8, 4, 2, 1):
            e("  s_nop 1")
            e(f"  {op}_dpp {vr(v)}, {vr(v)}, {vr(v)} row_ror:{n} row_mask:0xf bank_mask:0xf")

    def allred(op, v, t):
        rowred(op, v)
        for sw in ("v_permlane16_swap_b32", "v_permlane32_swap_b32"):
            e(f"  v_mov_b32 {vr(t)}, {vr(v)}")
            e("  s_nop 1")
            e(f"  {sw} {vr(v)}, {vr(t)}")
            e(f"  {op} {vr(v)}, {vr(v)}, {vr(t)}")

    def sum_partials(nq):
        w = 4 * nq
        for k in range(4):
            for q in range(nq):
                e(f"  ds_read_b128 {vr(x + w * k + 4 * q, 4)}, {vr(h0)} offset:{768 * k + 16 * q}")
        e(f"  ds_read_b128 {vr(z4, 4)}, {vr(h1)} offset:{ST}")
        e("  s_waitcnt lgkmcnt(0)")
        for h in range(0, w, 2):
            e(f"  v_pk_add_f32 {vr(x + h, 2)}, {vr(x + h, 2)}, {vr(x + w + h, 2)}")
            e(f"  v_pk_add_f32 {vr(x + 2 * w + h, 2)}, {vr(x + 2 * w + h, 2)}, {vr(x + 3 * w + h, 2)}")
        for h in range(0, w, 2):
            e(f"  v_pk_add_f32 {vr(x + h, 2)}, {vr(x + h, 2)}, {vr(x + 2 * w + h, 2)}")
        for h in range(0, w, 2):
            e(f"  v_pk_add_f32 {vr(x + h, 2)}, {vr(x + h, 2)}, {vr(z4 + 2, 2)} op_sel_hi:[1,0] neg_lo:[0,1] neg_hi:[0,1]")

    def rank_post(tag):
        if not (P.ctl and NL):
            return
        e(f"  s_bitcmp1_b32 s{sRF}, s{sNEED}")
        e(f"  s_cbranch_scc0 L_fa{tag}")
        e(f"  s_lshl_b64 exec, 1, s{sNEED}")
        e(f"  global_atomic_add {vr(vFR)}, {vr(vFA)}, {vr(vOne)}, s[{sWS}:{sWS + 1}] sc0 sc1")
        if P.ki:
            e(f"  global_load_dword {vr(vEL)}, {vr(vFB)}, s[{sWS}:{sWS + 1}] offset:8 sc1")
        e("  s_mov_b64 exec, -1")
        e(f"L_fa{tag}:")

    def rank_take(tag):
        if not (P.ctl and NL):
            return
        e(f"  s_bitcmp1_b32 s{sRF}, s{sNEED}")
        e(f"  s_cbranch_scc0 L_fb{tag}")
        e("  s_waitcnt vmcnt(0)")
        e(f"  v_sub_u32 {vr(vFX)}, {vr(vFR)}, {vr(vFI)}")
        e("  s_nop 0")
        e(f"  v_readlane_b32 s{sF}, {vr(vFX)}, s{sNEED}")
        e(f"  s_min_u32 s{sF}, s{sF}, {8 * NL - 1}")
        e(f"  s_lshl_b32 s{sF}, s{sF}, 1")
        e(f"  s_sub_u32 s{sF}, s{sF}, {8 * NL - 1}")
        if P.ki:
            e(f"  v_readlane_b32 s{sI}, {vr(vEL)}, s{sNEED}")
            e(f"  s_mul_i32 s{sT1}, s{sF}, {P.ki}")
            e(f"  s_ashr_i32 s{sT0}, s{sI}, {P.leak}")
            e(f"  s_sub_u32 s{sI}, s{sI}, s{sT0}")
            if P.streak:
                e(f"  s_mul_i32 s{sT0}, s{sI}, s{sF}")
                e(f"  s_cmp_lt_i32 s{sT0}, 0")
                e(f"  s_cselect_b32 s{sI}, 0, s{sI}")
            e(f"  s_add_u32 s{sT1}, s{sT1}, s{sI}")
            e(f"  v_mov_b32 {vr(vEL)}, s{sT1}")
        e(f"  s_cmp_le_u32 s{sNEED}, {P.kn}")
        e(f"  s_cselect_b32 s{sT0}, {P.kp0}, {P.kp}")
        e(f"  s_mul_i32 s{sF}, s{sF}, s{sT0}")
        e(f"  s_add_u32 s{sF}, s{sF}, s{sI}")
        e(f"  s_add_u32 s{sF}, s{sF}, 8")
        e(f"  s_ashr_i32 s{sF}, s{sF}, 4")
        e(f"  v_mov_b32 {vr(vFX)}, s{sF}")
        e("  s_mov_b64 exec, 1")
        e(f"  global_store_dword {vr(vFB)}, {vr(vFX)}, s[{sWS}:{sWS + 1}]")
        if P.ki:
            e(f"  global_store_dword {vr(vFB)}, {vr(vEL)}, s[{sWS}:{sWS + 1}] offset:8")
        e("  s_mov_b64 exec, -1")
        e(f"L_fb{tag}:")

    e("L_helper:")
    e("  s_setprio 3")
    hv = [("q", 0), ("q", 0)]

    def half(p, full):
        if p in (2, 3):
            e(f"  s_mov_b32 exec_hi, {0 if p == 2 else full}")
        if p in (5, 6):
            e(f"  s_mov_b32 exec_lo, {0 if p == 5 else full}")

    def sc_early():
        e(f"  s_and_b32 s{sT1}, s2, 7")
        e(f"  v_lshl_add_u32 {vr(wb)}, s{sT1}, 9, {vr(vL16)}")
        e(f"  v_lshl_add_u32 {vr(ra)}, {vr(sg2)}, 12, {vr(wb)}")
        for p in range(1, 8):
            e(f"  v_add_u32 {vr(ra + p)}, {0x20000 * p:#x}, {vr(ra)}")
        for p in range(8):
            half(p, -1)
            for i, sp in enumerate((sKS, sVS)):
                e(f"  s_movk_i32 m0, {SCB + SA * i + 1024 * p}")
                e("  s_nop 0")
                if "s" not in P.xp:
                    e(f"  global_load_lds_dwordx4 {vr(ra + p)}, s[{sp}:{sp + 1}] {P.sf}")
                    hv.append(("s", p))

    e(f"  v_mov_b32 {vr(sg2)}, {vr(h2)}")
    for p in range(1, 8):
        e(f"  v_add_u32 {vr(ra + p)}, {12288 * p}, {vr(qo)}")
    e("  s_mov_b32 exec_lo, 0xffffff")
    e("  s_mov_b32 exec_hi, 0xffffff")
    for p in range(1, 8):
        half(p, "0xffffff")
        e(f"  global_load_dwordx2 {vr(rec + 4 * p, 2)}, {vr(ra + p)}, s[{sQ}:{sQ + 1}]")
        e(f"  global_load_dwordx2 {vr(rec + 4 * p + 2, 2)}, {vr(ra + p)}, s[{sQ}:{sQ + 1}] offset:192")
        hv.extend([("q", p)] * 2)
    e("  s_mov_b64 exec, -1")
    if P.ss == 0:
        sc_early()
    common()
    e(f"  s_load_dword s{sO}, s[{sRT}:{sRT + 1}], 24")
    e(f"  s_load_dwordx2 s[{sOH}:{sOH + 1}], s[{sRT}:{sRT + 1}], 16")
    e(f"  v_mov_b32 {vr(l)}, v0")
    for i in range(4):
        e(f"  v_mov_b32 {vr(z4 + i)}, 0")
    e(f"  ds_write_b128 {vr(vZ)}, {vr(z4, 4)} offset:{FL}")
    e(f"  ds_write_b128 {vr(vZ)}, {vr(z4, 4)} offset:{FL + 16}")
    e(f"  s_mov_b32 s{sMASK}, 0xffff0000")
    e(f"  s_mov_b32 s{sSCALE}, {f32bits(math.log2(math.e) / math.sqrt(192.0)):#x}")
    e(f"  v_mad_u32_u24 {vr(wa)}, {vr(h1)}, 48, {vr(vL16)}")
    e(f"  v_mov_b32 {vr(vOne)}, 1")
    e(f"  s_waitcnt vmcnt({len(hv)})")
    for k in range(4):
        e(f"  v_lshlrev_b32 {vr(cs + k)}, 16, {vr(pr + k)}")
        e(f"  v_and_b32 {vr(cs + 4 + k)}, s{sMASK}, {vr(pr + k)}")
    e("  s_waitcnt lgkmcnt(0)")
    e(f"  v_min_u32 {vr(h0)}, 2, {vr(l)}")
    e(f"  v_lshlrev_b32 {vr(h1)}, 3, {vr(h0)}")
    e(f"  v_bfe_u32 {vr(h1)}, s{sCT}, {vr(h1)}, 8")
    e(f"  v_mul_u32_u24 {vr(vCNT)}, 4352, {vr(h1)}")
    e(f"  v_add_u32 {vr(vCNT)}, {W_CNT}, {vr(vCNT)}")
    e(f"  v_and_b32 {vr(h1)}, 15, {vr(h1)}")
    e(f"  v_lshlrev_b32 {vr(vDB)}, 4, {vr(h1)}")
    e(f"  v_lshl_add_u32 {vr(h0)}, {vr(h0)}, 4, s{sC}")
    e(f"  v_mul_u32_u24 {vr(vCL)}, 4352, {vr(h0)}")
    e(f"  v_add_u32 {vr(vCL)}, {W_CNT}, {vr(vCL)}")
    if P.ctl:
        die_base(sF)
        e(f"  v_lshrrev_b32 {vr(h0)}, 1, {vr(l)}")
        e(f"  v_lshl_add_u32 {vr(vFX)}, {vr(h0)}, 8, s{sF}")
        e(f"  v_and_b32 {vr(h0)}, 1, {vr(l)}")
        e(f"  v_lshl_add_u32 {vr(vFX)}, {vr(h0)}, 4, {vr(vFX)}")
        e(f"  s_and_b32 s{sT1}, s{sSE}, 2")
        e(f"  s_lshl_b32 s{sT0}, s{sT1}, 9")
        e(f"  s_add_u32 s{sT0}, s{sT0}, s{sF}")
        e(f"  v_add_u32 {vr(vEL)}, s{sT0}, {vr(l)}")
        e(f"  s_lshl_b32 s{sT1}, s{sT1}, 1")
        e(f"  s_add_u32 s{sF}, s{sF}, s{sT1}")
        e(f"  s_add_u32 s{sF}, s{sF}, 2048")
        e(f"  v_mov_b32 {vr(vFB)}, s{sF}")
        e(f"  v_mul_u32_u24 {vr(vFA)}, 384, {vr(l)}")
        e(f"  v_add_u32 {vr(vFA)}, {W_RK}, {vr(vFA)}")
        e(f"  v_mov_b32 {vr(vFI)}, 0")
        e(f"  v_mov_b32 {vr(vFR)}, 0")
        e(f"  s_mov_b32 s{sI}, 0")
        e(f"  s_mov_b32 s{sN}, 0")
        e(f"  s_mov_b32 s{sRF}, 0")

    def ctl_init():
        if not P.ctl:
            return
        e("  s_mov_b64 exec, 0x3ffff")
        e(f"  global_store_dwordx4 {vr(vFX)}, {vr(z4, 4)}, s[{sWS}:{sWS + 1}]")
        e("  s_mov_b64 exec, -1")

    def elect():
        if not P.ctl:
            return
        e(f"  s_cmp_eq_u32 s{sNEED}, {P.r0 - 1}")
        e("  s_cbranch_scc0 L_el")
        e(f"  s_bitcmp0_b32 s{sSE}, 0")
        e("  s_cbranch_scc0 L_el")
        e("  s_mov_b64 exec, 0xffff")
        e(f"  global_load_ubyte {vr(vFX)}, {vr(vEL)}, s[{sWS}:{sWS + 1}] sc1")
        e("  s_waitcnt vmcnt(0)")
        e(f"  v_cmp_ne_u32 s[{sZ}:{sZ + 1}], 0, {vr(vFX)}")
        e(f"  s_lshr_b32 s{sT0}, s{sZ}, s{sCU}")
        e(f"  s_bcnt1_i32_b32 s{sT0}, s{sT0}")
        if P.rotl:
            pat = sum(1 << m for m in range(0, 32, P.rotl))
            assert all((pat << r) & msk for r in range(P.rotl))
            e(f"  s_sub_u32 s{sT1}, s{sT0}, 1")
            e(f"  s_cmp_lt_u32 s{sT1}, {P.rotl}")
            e("  s_cbranch_scc0 L_el")
            e(f"  s_lshl_b32 s{sRF}, {pat:#x}, s{sT1}")
            e(f"  s_and_b32 s{sRF}, s{sRF}, {msk:#x}")
            e(f"  s_mov_b32 exec_lo, s{sRF}")
            e(f"  global_load_dword {vr(vFI)}, {vr(vFA)}, s[{sWS}:{sWS + 1}] sc1")
            e(f"  s_cmp_eq_u32 s{sT0}, {P.lx}")
            e("  s_cbranch_scc0 L_el")
        else:
            e(f"  s_cmp_eq_u32 s{sT0}, {P.lx}")
            e("  s_cbranch_scc0 L_el")
            e(f"  s_mov_b32 s{sRF}, {msk:#x}")
            e(f"  s_mov_b64 exec, {msk:#x}")
            e(f"  global_load_dword {vr(vFI)}, {vr(vFA)}, s[{sWS}:{sWS + 1}] sc1")
        if P.cpf:
            e("; pull the code that has not run yet into this die's L2")
            e("  s_mov_b64 exec, -1")
            e(f"  s_getpc_b64 s[{sZ}:{sZ + 1}]")
            e("L_pc2:")
            e(f"  s_sub_u32 s{sZ}, s{sZ}, L_pc2-L_vpre")
            e(f"  s_subb_u32 s{sZ + 1}, s{sZ + 1}, 0")
            e(f"  v_lshlrev_b32 {vr(vFX)}, 7, {vr(l)}")
            e(f"  global_load_dword {vr(rec)}, {vr(vFX)}, s[{sZ}:{sZ + 1}]")
            e(f"  v_add_u32 {vr(vFX)}, L_order-L_vpre-8192, {vr(vFX)}")
            e(f"  global_load_dword {vr(rec + 1)}, {vr(vFX)}, s[{sZ}:{sZ + 1}]")
        e("L_el:")
        e("  s_mov_b64 exec, -1")

    def patch(what):
        e(f"  s_bfe_u32 s{sT0}, s{sCN + 1}, {(4 << 16) | 8:#x}")
        e(f"  s_bfe_u32 s{sT1}, s{sCN}, {(4 << 16) | 20:#x}")
        e(f"  s_addk_i32 s{sT0}, 160")
        e(f"  s_addk_i32 s{sT1}, 80")
        for p, sh_, ex in ((5, sT0, "exec_hi"), (2, sT1, "exec_lo")):
            if what == "q":
                e(f"  s_mulk_i32 s{sh_}, 384")
                e(f"  v_lshrrev_b32 {vr(h0)}, 1, {vr(vL16)}")
                e(f"  v_add_u32 {vr(h0)}, s{sh_}, {vr(h0)}")
                qmask(1)
                e(f"  s_mov_b32 {ex}, 0")
                e(f"  global_load_dwordx2 {vr(rec + 4 * p, 2)}, {vr(h0)}, s[{sQ}:{sQ + 1}]")
                e(f"  global_load_dwordx2 {vr(rec + 4 * p + 2, 2)}, {vr(h0)}, s[{sQ}:{sQ + 1}] offset:192")
                hv.extend([("q", p)] * 2)
            else:
                e(f"  v_lshl_add_u32 {vr(h0)}, s{sh_}, 12, {vr(wb)}")
                e(f"  s_mov_b32 {ex}, 0")
                for i, sp in enumerate((sKS, sVS)):
                    e(f"  s_movk_i32 m0, {SCB + SA * i + 1024 * p}")
                    e("  s_nop 0")
                    if "s" not in P.xp:
                        e(f"  global_load_lds_dwordx4 {vr(h0)}, s[{sp}:{sp + 1}] {P.sf}")
                        hv.append(("s", p))
            qmask(0)

    def qmask(on):
        if on:
            e("  s_mov_b32 exec_lo, 0xffffff")
            e("  s_mov_b32 exec_hi, 0xffffff")
        else:
            e("  s_mov_b64 exec, -1")

    def rotate(p):
        L, Hh, LC, HS, HC, LS = x, x + 4, x + 8, x + 12, x + 16, x + 20
        qmask(1)
        e(f"  s_waitcnt vmcnt({hv[::-1].index(('q', p))})")
        for k in range(4):
            e(f"  v_lshlrev_b32 {vr(L + 2 * k)}, 16, {vr(rec + 4 * p + k)}")
            e(f"  v_and_b32 {vr(L + 2 * k + 1)}, s{sMASK}, {vr(rec + 4 * p + k)}")
        for d, q_, t_ in ((LC, L, cs), (HS, Hh, cs + 4), (HC, Hh, cs), (LS, L, cs + 4)):
            for h in (0, 2):
                e(f"  v_pk_mul_f32 {vr(d + h, 2)}, {vr(q_ + h, 2)}, {vr(t_ + h, 2)}")
        for i in range(4):
            e(f"  v_cvt_pk_bf16_f32 {vr(L + i)}, {vr(LC + i)}, {vr(HS + i)}")
            e(f"  v_cvt_pk_bf16_f32 {vr(Hh + i)}, {vr(HC + i)}, {vr(LS + i)}")
        for k in range(8):
            e(f"  v_lshlrev_b32 {vr(LC + k)}, 16, {vr(L + k)}")
            e(f"  v_and_b32 {vr(L + k)}, s{sMASK}, {vr(L + k)}")
        for h in (0, 2):
            e(f"  v_pk_add_f32 {vr(L + h, 2)}, {vr(LC + h, 2)}, {vr(L + h, 2)} neg_lo:[0,1] neg_hi:[0,1]")
            e(f"  v_pk_add_f32 {vr(Hh + h, 2)}, {vr(HS + h, 2)}, {vr(Hh + h, 2)}")
        for i in range(4):
            e(f"  v_cvt_pk_bf16_f32 {vr(LC + i)}, {vr(L + i)}, {vr(Hh + i)}")
            e(f"  v_cvt_pk_bf16_f32 {vr(HS + i)}, {vr(Hh + i)}, -{vr(L + i)}")
        e(f"  v_mov_b32 {vr(h0)}, {2 * p + 2}")
        e(f"  ds_write_b128 {vr(wa)}, {vr(LC, 4)} offset:{QB + 1536 * p}")
        e(f"  ds_write_b128 {vr(wa)}, {vr(HS, 4)} offset:{QB + 1536 * p + 384}")
        e(f"  ds_write_b32 {vr(vZ)}, {vr(h0)} offset:{FL + 16}")
        qmask(0)

    ctl_init()
    if P.ctl:
        hv.append(("c", 0))
    patch("q")
    if P.ss == 1:
        sc_early()
    if P.ss <= 1:
        patch("s")
    rotate(0)
    if P.ss == 2:
        sc_early()
        patch("s")
    e("  s_waitcnt lgkmcnt(0)")
    e("  s_setprio 0")
    e("  s_barrier")
    if P.ss == 3:
        sc_early()
        patch("s")
    for p in range(1, 8):
        rotate(p)
    for k in range(2):
        e(f"  v_lshrrev_b32 {vr(h0)}, 5, {vr(l)}")
        if k:
            e(f"  v_add_u32 {vr(h0)}, 2, {vr(h0)}")
        e(f"  v_bfe_u32 {vr(h1)}, {vr(l)}, 3, 2")
        e(f"  v_and_b32 {vr(h2)}, 7, {vr(l)}")
        seqcode(ro + k, h0, h1, h2)
        rowcode(h0, ro + k, h1, h2)
        e(f"  v_and_b32 {vr(ro + k)}, 255, {vr(h0)}")
        e(f"  v_lshlrev_b32 {vr(ro + k)}, 1, {vr(ro + k)}")
    e(f"  v_lshlrev_b32 {vr(vLa)}, 2, {vr(l)}")
    e(f"  v_mov_b32 {vr(vSa)}, 0")
    e(f"  v_min_u32 {vr(u)}, 47, {vr(l)}")
    e(f"  v_lshlrev_b32 {vr(vL16)}, 4, {vr(u)}")
    for i in range(4):
        e(f"  v_mov_b32 {vr(sc + i)}, 0")
    e(f"  s_mov_b32 s{sNEED}, 1")
    e("  s_waitcnt vmcnt(0)")
    e("L_hk:")
    for a in range(2):
        for k in range(2):
            e(f"  ds_read_u16_d16_hi {vr(sc + 2 * a + k)}, {vr(ro + k)} offset:{SCB + SA * a}")
    progwait("hsw", P.psl)
    rank_post("s")
    e(f"  ds_read_b32 {vr(x)}, {vr(vLa)} offset:{LGB}")
    e(f"  ds_read_b32 {vr(x + 1)}, {vr(vLa)} offset:{LGB + 256}")
    e(f"  v_mul_f32 {vr(x + 2)}, s{sSCALE}, {vr(sc)}")
    e(f"  v_mul_f32 {vr(x + 3)}, s{sSCALE}, {vr(sc + 1)}")
    e("  s_waitcnt lgkmcnt(0)")
    e(f"  v_mul_f32 {vr(x)}, {vr(x)}, {vr(x + 2)}")
    e(f"  v_mul_f32 {vr(x + 1)}, {vr(x + 1)}, {vr(x + 3)}")
    e(f"  v_max_f32 {vr(z4)}, {vr(x)}, {vr(x + 1)}")
    allred("v_max_f32", z4, h0)
    e(f"  v_sub_f32 {vr(x)}, {vr(x)}, {vr(z4)}")
    e(f"  v_sub_f32 {vr(x + 1)}, {vr(x + 1)}, {vr(z4)}")
    e(f"  v_exp_f32 {vr(x)}, {vr(x)}")
    e(f"  v_exp_f32 {vr(x + 1)}, {vr(x + 1)}")
    e("  s_nop 0")
    e(f"  v_add_f32 {vr(z4 + 1)}, {vr(x)}, {vr(x + 1)}")
    e(f"  v_mul_f32 {vr(x)}, {vr(x)}, {vr(sc + 2)}")
    e(f"  v_mul_f32 {vr(x + 1)}, {vr(x + 1)}, {vr(sc + 3)}")
    e(f"  v_add_f32 {vr(z4 + 2)}, {vr(x)}, {vr(x + 1)}")
    e(f"  ds_write_b32 {vr(vLa)}, {vr(x)} offset:{LGB}")
    e(f"  ds_write_b32 {vr(vLa)}, {vr(x + 1)} offset:{LGB + 256}")
    e(f"  v_mul_f32 {vr(z4 + 2)}, {f32bits(7.5):#x}, {vr(z4 + 2)}")
    allred("v_add_f32", z4 + 1, h0)
    allred("v_add_f32", z4 + 2, h0)
    e(f"  v_mov_b32 {vr(h0)}, s{sNEED}")
    e(f"  ds_write_b128 {vr(vSa)}, {vr(z4, 4)} offset:{ST}")
    e(f"  ds_write_b32 {vr(vZ)}, {vr(h0)} offset:{FL + 20}")
    e(f"  v_add_u32 {vr(vLa)}, 512, {vr(vLa)}")
    e(f"  v_add_u32 {vr(vSa)}, 16, {vr(vSa)}")
    e(f"  v_add_u32 {vr(ro)}, {SL}, {vr(ro)}")
    e(f"  v_add_u32 {vr(ro + 1)}, {SL}, {vr(ro + 1)}")
    rank_take("s")
    elect()
    e(f"  s_cmp_eq_u32 s{sNEED}, 14")
    e("  s_cbranch_scc0 L_hq_skip")
    e(f"  s_cmp_eq_u32 s{sO}, 0")
    e("  s_cbranch_scc0 L_hq_skip")
    e("  s_mov_b64 exec, 7")
    e(f"  global_store_dword {vr(vCL)}, {vr(vZ)}, s[{sWS}:{sWS + 1}] sc1")
    e("  s_waitcnt vmcnt(0)")
    e("  s_mov_b64 exec, 1")
    e(f"  global_store_dword {vr(vDB)}, {vr(vOne)}, s[{sDBG}:{sDBG + 1}] sc1")
    e("  s_mov_b64 exec, -1")
    e("L_hq_skip:")
    e("  s_waitcnt lgkmcnt(0)")
    e(f"  s_add_u32 s{sNEED}, s{sNEED}, 1")
    e(f"  s_cmp_le_u32 s{sNEED}, 16")
    e("  s_cbranch_scc1 L_hk")

    e(f"  v_and_b32 {vr(h2)}, 15, {vr(l)}")
    e(f"  v_lshlrev_b32 {vr(h2)}, 1, {vr(h2)}")
    e(f"  global_load_ushort {vr(h3)}, {vr(h2)}, s[{sRT}:{sRT + 1}] offset:32")
    e(f"  s_mov_b32 s{sK}, 0")
    e(f"  v_min_u32 {vr(wa)}, 23, {vr(l)}")
    e(f"  v_lshlrev_b32 {vr(wa)}, 4, {vr(wa)}")
    e(f"  v_lshlrev_b32 {vr(h0)}, 1, {vr(wa)}")
    e(f"  v_add_u32 {vr(h0)}, {PB}, {vr(h0)}")
    e(f"  v_add_u32 {vr(wa)}, {PK}, {vr(wa)}")
    e(f"  v_lshlrev_b32 {vr(sgn)}, 4, {vr(l)}")
    e(f"  s_mul_i32 s{sT0}, s2, 6144")
    e(f"  s_add_u32 s{sT0}, s{sT0}, {W_REC}")
    e(f"  v_add_u32 {vr(sgx)}, s{sT0}, {vr(sgn)}")
    e(f"  v_add_u32 {vr(sgn)}, {PK}, {vr(sgn)}")
    e(f"  v_cmp_gt_u32 vcc, 24, {vr(l)}")
    e(f"  v_add_u32 {vr(sg2)}, 4096, {vr(sgx)}")
    e(f"  v_lshrrev_b32 {vr(u)}, 1, {vr(vL16)}")
    e(f"  s_mul_i32 s{sT0}, s{sOH}, 384")
    e(f"  s_add_u32 s{sOUT}, s{sOUT}, s{sT0}")
    e(f"  s_addc_u32 s{sOUT + 1}, s{sOUT + 1}, 0")
    e(f"  s_lshl_b32 s{sT0}, s{sO}, 4")
    e(f"  s_add_u32 s{sT0}, s{sT0}, {W_REC}")
    e(f"  v_add_u32 {vr(h1)}, {W_REC}, {vr(u)}")
    e("  s_waitcnt vmcnt(0)")
    e(f"  v_or_b32 {vr(h2)}, 15, {vr(h3)}")
    e(f"  v_mul_u32_u24 {vr(h2)}, 384, {vr(h2)}")
    e(f"  v_mul_u32_u24 {vr(h3)}, 384, {vr(h3)}")
    e(f"  v_add_u32 {vr(ra + 15)}, s{sT0}, {vr(h2)}")
    e("  s_nop 0")
    for k in range(15):
        e(f"  v_add_u32_dpp {vr(ra + k)}, {vr(h3)}, {vr(h1)} row_newbcast:{k} row_mask:0xf bank_mask:0xf")
    e(f"  s_mov_b64 s[{sX}:{sX + 1}], 0")
    e("L_hp:")
    e(f"  s_min_u32 s{sT0}, s{sO}, 13")
    e(f"  s_cmp_eq_u32 s{sT0}, s{sK}")
    e("  s_cbranch_scc0 L_hc_ok")
    e("L_hc:")
    e(f"  global_load_dword {vr(pr)}, {vr(vDB)}, s[{sDBG}:{sDBG + 1}] sc1")
    e("  s_waitcnt vmcnt(0)")
    e(f"  v_cmp_ne_u32 s[{sZ}:{sZ + 1}], 1, {vr(pr)}")
    e(f"  s_cmp_eq_u64 s[{sZ}:{sZ + 1}], 0")
    e("  s_cbranch_scc1 L_hc_ok")
    budget("L_hc_ok")
    e("  s_sleep 64")
    e("  s_branch L_hc")
    e("L_hc_ok:")
    vstep_k(sH, sK)
    e(f"  s_lshl_b32 s{sT0}, s{sH}, 4")
    e(f"  v_mov_b32 {vr(h1)}, s{sT0}")
    e(f"  s_cmp_eq_u32 s{sK}, 14")
    e("  s_cbranch_scc0 L_hp_mid")
    for k in range(6):
        e(f"  ds_read_b128 {vr(blk + 4 * k, 4)}, {vr(sgn)} offset:{1024 * k}")
    e(f"  v_subrev_u32 {vr(h2)}, 24, {vr(l)}")
    e(f"  v_and_b32 {vr(h2)}, 15, {vr(h2)}")
    e(f"  v_cmp_eq_u32 s[{sX}:{sX + 1}], s{sH}, {vr(h2)}")
    e(f"  v_lshlrev_b32 {vr(h2)}, 4, {vr(h2)}")
    e(f"  ds_read_b128 {vr(st4, 4)}, {vr(h2)} offset:{ST}")
    def bulk():
        for k in range(6):
            if k == 5:
                e("  s_mov_b64 exec, 0xffff")
            if "w" not in P.xp:
                e(f"  global_store_dwordx4 {vr(sgx if k < 4 else sg2)}, {vr(blk + 4 * k, 4)}, s[{sWS}:{sWS + 1}] offset:{1024 * (k % 4)} sc1")
        e("  s_mov_b64 exec, -1")

    if P.eb:
        e("  s_waitcnt lgkmcnt(0)")
        bulk()
    if P.eprio:
        e(f"  s_setprio {P.eprio}")
    e("L_hp_mid:")
    e(f"  s_add_u32 s{sK}, s{sK}, 1")
    e(f"  s_add_u32 s{sNEED}, s{sK}, 16")
    progwait("hpw", P.psl)
    hp(0)
    rank_post("p")
    if not P.eb:
        e(f"  s_cmp_eq_u32 s{sK}, 15")
        e("  s_cbranch_scc0 L_hp_sum")
        bulk()
        e("L_hp_sum:")
    sum_partials(2)
    e(f"  v_max3_f32 {vr(h3)}, |{vr(x)}|, |{vr(x + 1)}|, |{vr(x + 2)}|")
    e(f"  v_max3_f32 {vr(h3)}, {vr(h3)}, |{vr(x + 3)}|, |{vr(x + 4)}|")
    e(f"  v_max3_f32 {vr(h3)}, {vr(h3)}, |{vr(x + 5)}|, |{vr(x + 6)}|")
    e(f"  v_max_f32_e64 {vr(h3)}, {vr(h3)}, |{vr(x + 7)}|")
    allred("v_max_f32", h3, wb)
    e(f"  v_frexp_exp_i32_f32 {vr(h3)}, {vr(h3)}")
    e(f"  v_sub_u32 {vr(wb)}, 14, {vr(h3)}")
    e(f"  v_subrev_u32 {vr(h3)}, 14, {vr(h3)}")
    for i in range(8):
        e(f"  v_ldexp_f32 {vr(x + i)}, {vr(x + i)}, {vr(wb)}")
    for i in range(4):
        e(f"  v_cvt_pk_f16_f32 {vr(fo + i)}, {vr(x + 2 * i)}, {vr(x + 2 * i + 1)}")
    e(f"  s_cmp_eq_u32 s{sK}, 15")
    e("  s_cbranch_scc1 L_hp_last")
    e(f"  ds_write_b32 {vr(h1)}, {vr(h3)} offset:{ST + 12}")
    e(f"  v_add_u32 {vr(h0)}, 3072, {vr(h0)}")
    e(f"  ds_write_b128 {vr(wa)}, {vr(fo, 4)}")
    e(f"  v_add_u32 {vr(wa)}, 384, {vr(wa)}")
    rank_take("p")
    e("  s_branch L_hp")
    e("L_hp_last:")
    e(f"  v_cndmask_b32_e64 {vr(st4 + 3)}, {vr(st4 + 3)}, {vr(h3)}, s[{sX}:{sX + 1}]")
    for i in range(4):
        e(f"  v_cndmask_b32 {vr(fo + i)}, {vr(st4 + i)}, {vr(fo + i)}, vcc")
    e("  s_mov_b32 exec_hi, 0xff")
    e(f"  global_store_dwordx4 {vr(sg2)}, {vr(fo, 4)}, s[{sWS}:{sWS + 1}] offset:{14 * 384 - 4096} sc1")
    hp(1)
    e("  s_waitcnt vmcnt(0)")
    hp(2)
    if P.nopoll:
        e("  s_branch L_hw_ok")
    e("  s_mov_b64 exec, 7")
    if P.pp:
        e(f"  global_atomic_add {vr(qn)}, {vr(vCNT)}, {vr(vOne)}, s[{sWS}:{sWS + 1}] sc0 sc1")
        e("  s_mov_b64 exec, 1")
        for k in range(1, P.pp):
            e(f"  s_sleep {P.sleep}")
            e(f"  global_atomic_add {vr(qn + k)}, {vr(vCNT)}, {vr(vZ)}, s[{sWS}:{sWS + 1}] sc0 sc1")
        e(f"  s_mov_b32 s{sT0}, 15")
        hp(3)
        e("L_hw:")
        for k in range(P.pp):
            e(f"  s_waitcnt vmcnt({P.pp - 1})")
            e(f"  v_readfirstlane_b32 s{sF}, {vr(qn + k)}")
            e(f"  s_cmp_ge_u32 s{sF}, s{sT0}")
            e("  s_cbranch_scc1 L_hw_ok")
            e(f"  s_mov_b32 s{sT0}, 16")
            e(f"  global_atomic_add {vr(qn + k)}, {vr(vCNT)}, {vr(vZ)}, s[{sWS}:{sWS + 1}] sc0 sc1")
        budget("L_hw_ok")
        e("  s_branch L_hw")
    e("L_hw_ok:")
    hp(4)
    e("  s_mov_b64 exec, -1")
    e(f"  global_load_dwordx4 {vr(cs, 4)}, {vr(ra + 15)}, s[{sWS}:{sWS + 1}] sc1")
    for k in range(15):
        e(f"  global_load_dwordx2 {vr(rec + 2 * k, 2)}, {vr(ra + (0 if 'r' in P.xp else k))}, s[{sWS}:{sWS + 1}] sc1")
    e(f"  s_lshl_b32 s{sH}, s{sO}, 4")
    e(f"  v_mov_b32 {vr(h1)}, s{sH}")
    e(f"  v_add_u32 {vr(h0)}, {PB + 15 * 3072}, {vr(vL16)}")
    for i in range(4):
        e(f"  v_mov_b32 {vr(fo + i)}, 0")
    e("  s_waitcnt vmcnt(15)")
    hp(5)
    e(f"  v_mov_b32 {vr(h2)}, {vr(cs)}")
    rowred("v_max_f32", h2)
    e(f"  v_sub_f32 {vr(h2)}, {vr(cs)}, {vr(h2)}")
    e(f"  v_exp_f32 {vr(h2)}, {vr(h2)}")
    e("  s_nop 0")
    e(f"  v_mul_f32 {vr(h3)}, {vr(h2)}, {vr(cs + 1)}")
    rowred("v_add_f32", h3)
    e(f"  v_rcp_f32 {vr(h3)}, {vr(h3)}")
    e("  s_nop 0")
    e(f"  v_mul_f32 {vr(h2)}, {vr(h2)}, {vr(h3)}")
    e(f"  v_ldexp_f32 {vr(h3)}, {vr(h2)}, {vr(cs + 3)}")
    e(f"  v_readlane_b32 s{sMSK + 15}, {vr(h2)}, 15")
    for k in range(15):
        e(f"  v_readlane_b32 s{sMSK + k}, {vr(h3)}, {k}")
    for k in range(15):
        e(f"  s_waitcnt vmcnt({14 - k})")
        for i in range(4):
            e(f"  v_fma_mix_f32 {vr(fo + i)}, {vr(rec + 2 * k + i // 2)}, s{sMSK + k}, {vr(fo + i)} op_sel:[{i & 1},0,0] op_sel_hi:[1,0,0]")
    hp(6)
    if P.fb:
        e("  s_barrier")
    else:
        e(f"  s_mov_b32 s{sNEED}, 32")
        progwait("hfw", P.fsl)
    hp(7)
    sum_partials(1)
    for i in range(4):
        e(f"  v_fmac_f32 {vr(fo + i)}, s{sMSK + 15}, {vr(x + i)}")
    e(f"  v_cvt_pk_bf16_f32 {vr(fo)}, {vr(fo)}, {vr(fo + 1)}")
    e(f"  v_cvt_pk_bf16_f32 {vr(fo + 1)}, {vr(fo + 2)}, {vr(fo + 3)}")
    e("  s_mov_b32 exec_hi, 0xffff")
    e(f"  global_store_dwordx2 {vr(u)}, {vr(fo, 2)}, s[{sOUT}:{sOUT + 1}]")
    if P.stamp:
        e(f"  s_memrealtime s[{sST + 2}:{sST + 3}]")
        if P.hprof:
            e("  s_waitcnt lgkmcnt(0)")
            e("  s_lshl_b32 s44, s2, 5")
            e("  s_add_u32 s44, s44, 0x80000")
            e("  v_mov_b32 v1, s44")
            for k in range(8):
                e(f"  s_sub_u32 s45, s{sST + 2}, s{HP[k]}")
                e(f"  v_mov_b32 v{4 + k}, s45")
            e(f"  global_store_dwordx4 v1, v[4:7], s[{sWS}:{sWS + 1}]")
            e(f"  global_store_dwordx4 v1, v[8:11], s[{sWS}:{sWS + 1}] offset:16")
            e("  s_nop 2")
        e("  s_getreg_b32 s6, hwreg(HW_REG_XCC_ID)")
        e("  s_getreg_b32 s7, hwreg(HW_REG_HW_ID)")
        e("  s_waitcnt lgkmcnt(0)")
        e(f"  v_mov_b32 v4, s{sST}")
        e(f"  v_mov_b32 v5, s{sST + 2}")
        e("  v_mov_b32 v6, s6")
        e("  v_mov_b32 v7, s7")
        e("  s_lshl_b32 s8, s2, 4")
        e("  v_mov_b32 v1, s8")
        e(f"  global_store_dwordx4 v1, v[4:7], s[{sWS}:{sWS + 1}]")
    e("L_end:")
    e("  s_endpgm")
    e(".p2align 6")
    e(".type L_order,@object")
    e("L_order:")
    for k in range(0, len(ordtab), 8):
        e("  .long " + ", ".join(f"{v:#x}" for v in ordtab[k:k + 8]))
    e('.section .rodata,"a"')
    e(".p2align 6")
    e(f".amdhsa_kernel {NAME}_kernel")
    e(f"  .amdhsa_next_free_vgpr {NV}")
    e("  .amdhsa_next_free_sgpr 100")
    e(f"  .amdhsa_accum_offset {(NV + 3) // 4 * 4}")
    e("  .amdhsa_group_segment_fixed_size 0")
    e("  .amdhsa_kernarg_size 112")
    e("  .amdhsa_user_sgpr_count 2")
    e("  .amdhsa_user_sgpr_kernarg_segment_ptr 1")
    e("  .amdhsa_system_sgpr_workgroup_id_x 1")
    e(".end_amdhsa_kernel")
    return "\n".join(o) + "\n", NV


if __name__ == "__main__":
    ap = argparse.ArgumentParser()
    ap.add_argument("-o", default=f"/code/{NAME}.s")
    for name, d in (("sh", 4), ("deep", 5), ("pd", 9), ("pre", 15), ("hi3", 99), ("leak", 2), ("tp", 2), ("rf", 3), ("rp", 2), ("rt", 26),
                    ("nl", 1), ("rotl", 7), ("lb", 0), ("s0", 0), ("su", 4), ("nt", 16), ("peel", 2), ("d0", 6), ("sp", 0), ("cpf", 1), ("lx", 4), ("hi2", 20),
                    ("streak", 0), ("dl", 8), ("sm", 1), ("pp", 3), ("eb", 0), ("inorder", 0), ("hiv", 2), ("cp", 0), ("sleep", 9),
                    ("bound", 4000000), ("ctl", 1), ("ex", 1), ("ss", 2), ("fb", 1),
                    ("hi", -1), ("lo", -25), ("lo2", -60), ("thr", 2), ("thr2", 1), ("start", 5), ("ba", 3),
                    ("kp", 7), ("ki", 0), ("imax", 80), ("r0", 2), ("r1", 30),
                    ("kp0", 9), ("kn", 0), ("eprio", 0), ("fsl", 0), ("psl", 1)):
        ap.add_argument("--" + name, type=int, default=d)
    ap.add_argument("--kp_", default="6,6,6,7,7,8,9,9,10,10,11,11,12,12,13,13,14", help="K loads issued by each prologue point")
    ap.add_argument("--lz", default="0,1,2,3,4,5,6,7,8,9,10,11", help="loop positions of the late table chunks")
    ap.add_argument("--sf", default="nt")
    ap.add_argument("--bu", default="012", help="extra depth per position in the issued group")
    ap.add_argument("--th", default="-9,5,13")
    ap.add_argument("--tx", default="000", help="exchange operations behind the oldest covered load that may stay in flight")
    ap.add_argument("--sch", default="sch_np.txt")
    ap.add_argument("--xp", default="", help="timing experiments only")
    for name in ("stamp", "trace", "tfine", "hprof", "dumptab", "nopoll"):
        ap.add_argument("--" + name, action="store_true", help="diagnostics only")
    a = ap.parse_args()
    txt, nv = gen(a)
    open(a.o, "w").write(txt)
    print("wrote", a.o, "vgprs", nv)
```

```python
import argparse
import math
import os
import struct
from gen import HEADER, NAME, Alloc, f32bits, vr

HB = 2048 * 768

ABOUT = """
Generated by tools/gen7.py.
Work split: workgroup (cluster c, block m, member b) handles 128 rows of the 256-row block m for 16 heads 16 k + c
  (slots k = 5 and 10 take their head from a table instead of c); the two members alternate over 32 KiB runs.
  Waves 1-4 stream one 4 KiB block per round; a 16-lane row handles one third (64 dims) of a KV row per load.
  K sweep: logit = k_scale * sum_d (qk - 7.5) * (qa * cos + qb * sin), RoPE moved onto the rotated q;
  V sweep: partial = sum_rows p * v_scale * qv.
  Wave 0 (helper) rotates q, takes max / exp / sums over the workgroup's rows of each head, and merges partials.
Constant parameters (the same for every seed) are built in: both zero points (7.5), q_cos / q_sin (table L_qcs) and
  k_cos / k_sin = bf16(cos / sin(fp32(row * inv_freq))), evaluated once per workgroup from the table L_inv into LDS.
Hand-off: every workgroup finishes one of its heads and streams that head last.  Partials and (max, sum) of
  the other 15 go to d_ws with sc1 stores, then a counted atomic; the finisher rescales all 16 to the true row maximum.
Flow control (speed only, results do not depend on it): waves publish a group counter and sample the counters of
  units on the same die; late waves keep one more load in flight, early waves one or two fewer.  Helpers rank the dies.
"""

RUN = (1, 2, 0)


def chunk_of(b, n, s):
    g = 256 * RUN[n >> 3] + 128 * b + 16 * (n & 7) + s
    return {128: 512, 255: 639, 512: 128, 639: 255}.get(g, g)


def tidx(b, row):
    return row - 43 * b - 42 * ((row >= 85) + (row >= 171))


def rev(x, bits):
    return int(format(x, f"0{bits}b")[::-1], 2)


def lpos(n, s):
    return 4 * (16 * s + rev(n, 4)) if n < 16 else 1024 + 4 * (8 * s + rev(n - 16, 3))


TN = [(RUN[n >> 3] + (n & 7)) % 3 for n in range(24)]
SPECIAL = {n: i for i, n in enumerate(sorted(8 * RUN.index(r) + i for r in (0, 2) for i in (0, 7)))}
for b_ in range(2):
    ch = sorted(chunk_of(b_, n, s) for n in range(24) for s in range(16))
    assert ch == sorted(3 * r + k for r in {c // 3 for c in ch} for k in range(3))
    assert all(chunk_of(b_, n, s) % 3 == (TN[n] + 2 * b_ + s) % 3 for n in range(24) for s in range(16))
    assert len({tidx(b_, c // 3) for c in ch}) == 128 and max(tidx(b_, c // 3) for c in ch) == 128


def gen(P):
    o = []
    e = o.append
    RING, PD = 24, P.pd
    sh, deep = P.sh, P.deep
    PRE = P.pre
    DP = P.cp + P.sp
    TP = P.tp
    CP = P.cp
    EX = P.ex
    NX = 2 if P.ctl else 0
    assert deep <= PD - 1 and sh <= deep and PD <= PRE
    SL = 512
    SA = 16 * SL

    FL = 0
    ST = 256
    TB = 512
    QB = TB + 129 * 384
    LGB = QB + 16 * 768
    SCB = LGB + 16 * 1536
    PB = SCB + 2 * SA
    PK = PB + 49152
    LDS = PK + 6144
    assert 81920 < LDS <= 163840
    W_REC = 0x400000
    W_CNT = 0x700000
    W_RK = 0x780000
    W_PL = 0x7c0000

    sQ, sQK, sKS, sKZ, sQV, sVS, sVZ, sQC = 4, 6, 8, 10, 12, 14, 16, 18
    sQS, sKC, sKSN, sOUT = 20, 22, 24, 26
    sDBG, sWS = 28, 30
    rA, rB = 32, 36
    sW, sJ, sC, sK, sT0, sT1, sF, sNEED = 40, 41, 42, 43, 44, 45, 46, 47
    sMSK = 48
    sOF = 51
    sZ = 64
    sMASK, sSCALE, sH = 66, 67, 68
    sS = 69
    sX = 70
    sRF = 80
    sRT = 82
    sST = 84
    sN = 90
    sB = 91
    sVO = 92
    sSP = 94
    sI = 95
    sSE, sCU = 81, 79
    sLO = 78
    sO = 3
    sCN = 96
    sOH, sCT = 98, 99

    va = Alloc(1)
    vT16, vF, vZ, vC16 = [va.take(1) for _ in range(4)]
    voff = va.take(7)
    vTA = va.take(7)
    vQA = va.take(3)
    vPA = va.take(3)
    vLG = va.take(2)
    vLB = va.take(2)
    A = va.take(2)
    LG = va.take(2)
    M1, M2, M3 = [va.take(1) for _ in range(3)]
    bc = va.take(2, 2)
    dacc = va.take(2, 2)
    wt = va.take(4, 2)
    vtr, vPW, vPS, vN, vSum, vSu2, vBA = [va.take(1) for _ in range(7)]
    vPL = va.take(4)
    vBI = va.take(2, 2)
    smp = va.take(8, 4)
    qa = va.take(12, 4)
    tab = va.take(24, 4)
    tmp = va.take(12, 4)
    ring = va.take(4 * RING, 4)
    NV = va.n
    acc = qa

    here = os.path.dirname(os.path.abspath(__file__))
    sch = [[int(x) for x in ln.split()] for ln in open(os.path.join(here, P.sch))]
    inv, qcs = [[int(x, 16) for x in ln.split()] for ln in open(os.path.join(here, "consts.txt"))]
    cj = lambda g: (g >> 4, (g & 7) * 2 + ((g >> 3) & 1))
    ent = {g: sch[16 * cj(g)[0] + cj(g)[1]] for g in range(256)}
    cl = lambda g, k: ent[g][0] if k == 5 else ent[g][1] if k == 10 else g >> 4
    assert sorted(16 * ent[g][2] + cl(g, ent[g][2]) for g in range(256)) == list(range(256))
    ordtab = []
    for g in range(256):
        o_, od = ent[g][2], ent[g][3:]
        assert sorted(od) == list(range(16)) and od[15] == o_
        con = [x for x in range(256) if x != g and cl(x, o_) == cl(g, o_)] + [g]
        assert sorted(cj(x)[1] for x in con) == list(range(16))
        nib = sum(k << (4 * t) for t, k in enumerate(range(16) if "i" in P.xp else od))
        cn = sum((g >> 4 if "c" in P.xp else cl(g, k)) << (4 * k) for k in range(16))
        ctr = [g >> 4, 16 + cl(g, 5), 32 + cl(g, 10)]
        first = {5: 1, 10: 2}.get(o_, 0)
        ctr = [ctr[first]] + [x for i, x in enumerate(ctr) if i != first]
        u16 = [16 * x + ent[x][3:].index(o_) for x in con]
        assert all(v % 16 < 15 for v in u16[:15])
        ordtab += [nib & 0xffffffff, nib >> 32, cn & 0xffffffff, cn >> 32, 16 * o_ + cl(g, o_), ctr[0] | ctr[1] << 8 | ctr[2] << 16, o_, 0]
        ordtab += [u16[2 * i] | u16[2 * i + 1] << 16 for i in range(8)]

    def ld(n):
        rr = rA if n < 24 else rB
        n %= 24
        so = f"s{sOF + (n & 7)}" if n & 7 else "0"
        vo = voff + (3 + SPECIAL[n] if n in SPECIAL else n >> 3)
        e(f"  buffer_load_dwordx4 {vr(ring + 4 * n, 4)}, {vr(vo)}, s[{rr}:{rr + 3}], {so} offen nt")

    def cnt(depth, n):
        ops = loads = 0
        pos = (n + PD) % 3
        depth += int(P.bu[pos])
        while loads < depth - 1:
            if n % (3 * EX) == CP:
                ops += NX
            if P.ctl and n % 24 == 3 * P.ba + CP:
                ops += 1
            n -= 1
            loads += 1
            ops += 1
        if int(P.tx[pos]) and n % (3 * EX) == CP:
            ops += int(P.tx[pos]) + (int(P.tx[pos]) == NX and n % 24 == 3 * P.ba + CP)
        return ops

    def toff(n):
        if P.th:
            return [int(x) for x in P.th.split(",")][(n + PD) % 3]
        return P.dl * ((n - DP) % 3 - 1)

    LAG = 2 // EX
    SW = deep + max(int(x) for x in P.bu) > 6

    def swait(a):
        return 6 + (LAG - 1) * NX + ((a - P.ba) % 8 in (0, 1))

    first = {}
    drain = {}

    def verify():
        ops = [("L", i) for i in range(PRE)]
        done = 1
        for g in range(24 * 32):
            n = g % 24
            tail = g + PD >= 24 * 32
            skip = 384 <= g < 384 + PRE - PD
            if not tail and not skip:
                if P.ctl and n == 3 * P.ba + CP:
                    ops.append(("X", 0))
                if n % (3 * EX) == CP:
                    if P.ctl and SW:
                        done = max(done, len(ops) - swait(n // 3))
                    ops += [("X", 0)] * (NX if P.inorder else max(0, NX - 1))
            if g + PD == 24 * 32:
                drain["in"] = len(ops) - 1 - ops.index(("L", g))
                done = max(done, len(ops) - drain["in"])
            assert ("L", g) in ops[:done], g
            if tail:
                if n < 23:
                    drain[n] = len(ops) - 1 - ops.index(("L", g + 1))
                    done = max(done, len(ops) - drain[n])
                continue
            if skip:
                first[n] = len(ops) - 1 - ops.index(("L", g + 1))
                done = max(done, len(ops) - first[n])
                continue
            done = max(done, len(ops) - cnt(deep + (P.hi3 < 99 and (n + PD) % 3 == 0 and g >= 3 * P.start) if (g >= 3 * (P.start // EX * EX) or (g >= DP and P.s0 > P.hi + toff(n))) else sh, n))
            ops.append(("L", g + (PRE if g < 384 else PD)))
    verify()
    lab = [0]

    def pace(n, hi):
        if P.ctl:
            lab[0] += 1
            top = P.hi3 < 99 and (n + PD) % 3 == 0
            if top:
                boost(hi + P.hi3)
                e(f"  s_cbranch_scc1 L_r{lab[0]}")
            if deep > sh + 1:
                boost(P.hi2)
                e(f"  s_cbranch_scc1 L_q{lab[0]}")
            boost(hi + toff(n))
            e(f"  s_cbranch_scc1 L_p{lab[0]}")
            e(f"  s_waitcnt vmcnt({cnt(sh, n)})")
            e(f"L_p{lab[0]}:")
            if deep > sh + 1:
                e(f"  s_waitcnt vmcnt({cnt(sh + 1, n)})")
                e(f"L_q{lab[0]}:")
            e(f"  s_waitcnt vmcnt({cnt(deep, n)})")
            if top:
                e(f"L_r{lab[0]}:")
                e(f"  s_waitcnt vmcnt({cnt(deep + 1, n)})")
        else:
            e(f"  s_waitcnt vmcnt({cnt(sh, n)})")

    def control(a):
        if not P.ctl:
            return
        if a == P.ba:
            e("  s_mov_b64 exec, 1")
            e(f"  global_load_dwordx2 {vr(vBI, 2)}, {vr(vBA)}, s[{sWS}:{sWS + 1}] sc1")
            e("  s_mov_b64 exec, -1")
        if a % EX == 0:
            sm = smp + 4 * ((a // EX) % LAG)
            if SW:
                e(f"  s_waitcnt vmcnt({swait(a)})")
            if a == (P.ba + 2 + EX - 1) // EX * EX % 8:
                e(f"  v_add_u32 {vr(vSum)}, {vr(vBI)}, {vr(vBI + 1)}")
                e("  s_nop 0")
                e(f"  v_readfirstlane_b32 s{sB}, {vr(vSum)}")
            e(f"  s_add_u32 s{sT0}, s{sLO}, 0x03030303")
            e(f"  v_msad_u8 {vr(vSum)}, s{sLO}, {vr(sm)}, 0")
            e(f"  v_msad_u8 {vr(vSu2)}, s{sT0}, {vr(sm)}, 0")
            for k in range(1, 3):
                e(f"  v_msad_u8 {vr(vSum)}, s{sLO}, {vr(sm + k)}, {vr(vSum)}")
                e(f"  v_msad_u8 {vr(vSu2)}, s{sT0}, {vr(sm + k)}, {vr(vSu2)}")
            e(f"  v_sub_u32 {vr(vSum)}, {vr(vSum)}, {vr(vSu2)}")
            e(f"  v_mov_b32 {vr(vN)}, s{sN}")
            e(f"  s_add_u32 s{sLO}, s{sLO}, 0x01010101")
            if P.nl > 1:
                e(f"  v_add_u32_dpp {vr(vSum)}, {vr(vSum)}, {vr(vSum)} quad_perm:[2,3,0,1] row_mask:0xf bank_mask:0xf")
                e(f"  s_nop {1 if P.nl > 2 else 0}")
            if P.nl > 2:
                e(f"  v_add_u32_dpp {vr(vSum)}, {vr(vSum)}, {vr(vSum)} row_shl:4 row_mask:0xf bank_mask:0xf")
                e("  s_nop 0")
            e(f"  v_readlane_b32 s{sMASK}, {vr(vSum)}, 0")
            e(f"  v_readlane_b32 s{sSCALE}, {vr(vSum)}, 1")
            e("  s_mov_b64 exec, 1")
            e(f"  global_store_byte {vr(vPS)}, {vr(vN)}, s[{sWS}:{sWS + 1}]")
            e(f"  s_mov_b64 exec, {(1 << (2 * P.nl)) - 1}")
            e(f"  global_load_dwordx3 {vr(sm, 3)}, {vr(vPL + (a // EX) % 4)}, s[{sWS}:{sWS + 1}] sc1")
            e("  s_mov_b64 exec, -1")

    def decide(a):
        if not P.ctl:
            return
        if a % EX == 0:
            e(f"  s_add_u32 s{sS}, s{sMASK}, s{sSCALE}")
            if P.sm > 1:
                e(f"  s_ashr_i32 s{sT0}, s{sI}, {P.sm - 1}")
                e(f"  s_sub_u32 s{sI}, s{sI}, s{sT0}")
                e(f"  s_add_u32 s{sI}, s{sI}, s{sS}")
                e(f"  s_ashr_i32 s{sS}, s{sI}, {P.sm - 1}")
            elif P.sm:
                e(f"  s_add_u32 s{sT0}, s{sS}, s{sI}")
                e(f"  s_mov_b32 s{sI}, s{sS}")
                e(f"  s_ashr_i32 s{sS}, s{sT0}, {1 + P.nl // 2}")
            elif P.nl > 1:
                e(f"  s_ashr_i32 s{sS}, s{sS}, {P.nl // 2}")
            e(f"  s_add_u32 s{sS}, s{sS}, s{sB}")
            e(f"  s_cmp_lt_u32 s{sN}, {P.start // EX}")
            e(f"  s_cselect_b32 s{sS}, {P.s0}, s{sS}")
            if P.sm > 1:
                e(f"  s_cselect_b32 s{sI}, 0, s{sI}")
            e(f"  s_add_u32 s{sN}, s{sN}, 1")

    def throttle(a):
        if not P.ctl or P.lo <= -60:
            return
        lab[0] += 1
        e(f"  s_cmp_lt_i32 s{sS}, {P.lo}")
        e(f"  s_cbranch_scc0 L_t{lab[0]}")
        e(f"  s_waitcnt vmcnt({cnt(P.thr + 1, 3 * a + TP)})")
        if P.lo2 > -60:
            e(f"  s_cmp_lt_i32 s{sS}, {P.lo2}")
            e(f"  s_cbranch_scc0 L_t{lab[0]}")
            e(f"  s_waitcnt vmcnt({cnt(P.thr2 + 1, 3 * a + TP)})")
        e(f"L_t{lab[0]}:")

    def boost(hi):
        if P.ctl:
            assert hi >= P.lo
            e(f"  s_cmp_gt_i32 s{sS}, {hi}")

    def srd_head(rr, sp, sh_):
        e(f"  s_mul_i32 s{sT0}, s{sh_}, {HB}")
        e(f"  s_add_u32 s{rr}, s{sp}, s{sT0}")
        e(f"  s_addc_u32 s{rr + 1}, s{sp + 1}, 0")

    def vstep_k(dst, src):
        e(f"  s_lshl_b32 s{dst}, s{src}, 2")
        e(f"  s_lshr_b64 s[{sZ}:{sZ + 1}], s[{sVO}:{sVO + 1}], s{dst}")
        e(f"  s_and_b32 s{dst}, s{sZ}, 15")

    def head_of(dst, slot):
        e(f"  s_lshl_b32 s{sT0}, s{slot}, 2")
        e(f"  s_lshr_b64 s[{sZ}:{sZ + 1}], s[{sCN}:{sCN + 1}], s{sT0}")
        e(f"  s_and_b32 s{sZ}, s{sZ}, 15")
        e(f"  s_lshl4_add_u32 s{dst}, s{slot}, s{sZ}")

    def budget(ok):
        e(f"  s_cmp_eq_u32 s{sSP}, 0")
        e(f"  s_cbranch_scc1 {ok}")
        e(f"  s_sub_u32 s{sSP}, s{sSP}, 1")

    def flagwait(name, off):
        e(f"L_{name}:")
        e("  s_waitcnt lgkmcnt(0)")
        e(f"  v_readfirstlane_b32 s{sF}, {vr(vF)}")
        e(f"  s_cmp_ge_u32 s{sF}, s{sNEED}")
        e(f"  s_cbranch_scc1 L_{name}_ok")
        budget(f"L_{name}_ok")
        e(f"  ds_read_b32 {vr(vF)}, {vr(vZ)} offset:{off}")
        e(f"  s_branch L_{name}")
        e(f"L_{name}_ok:")

    def tr():
        if P.trace:
            e("  s_memrealtime s[88:89]")
            e("  s_waitcnt lgkmcnt(0)")
            e(f"  v_writelane_b32 {vr(vtr)}, s88, m0")
            e("  s_add_u32 m0, m0, 1")
            e("  s_min_u32 m0, m0, 63")

    def die_base(dst):
        e(f"  s_getreg_b32 s{sSE}, hwreg(HW_REG_HW_ID, 8, 7)")
        e(f"  s_getreg_b32 s{dst}, hwreg(HW_REG_XCC_ID, 0, 3)")
        e(f"  s_and_b32 s{sCU}, s{sSE}, 15")
        e(f"  s_lshr_b32 s{sSE}, s{sSE}, 5")
        e(f"  s_mul_i32 s{dst}, s{dst}, 4352")
        e(f"  s_add_u32 s{dst}, s{dst}, {W_PL}")

    ha = Alloc(16)
    l, u, h0, h1, h2, h3 = [ha.take(1) for _ in range(6)]
    qo, wa, wb, sgn, sgx, sg2 = [ha.take(1) for _ in range(6)]
    ro = ha.take(8)
    vL16, vCNT, vDB, vOne, vFA, vFI, vFR, vFX, vFB, vEL, vCL, vSa = [ha.take(1) for _ in range(12)]
    z4 = ha.take(4, 4)
    cs = ha.take(8, 4)
    sc = ha.take(4, 4)
    qn = ha.take(4, 4)
    x = ha.take(32, 4)
    pr = ha.take(4, 4)
    fo = ha.take(4, 4)
    rec = ha.take(32, 4)
    blk = ha.take(24, 4)
    st4 = ha.take(4, 4)
    ra = ha.take(16)
    assert ha.n <= NV and vZ < 16

    invX, invY, tK, tA, tN, tO = tmp, tmp + 4, tmp + 8, tab, tab + 4, tab + 8
    PC0 = 20 + 8 * P.stamp
    D_INV, D_QCS, D_END = 256, 768, 1152
    NF = P.nf
    assert RUN[0] == 1 and NF <= 8
    e(HEADER.rstrip("\n"))
    e(f"; @launch grid=(256,1,1) block=(320,1,1) lds={LDS}")
    for ln in ABOUT.strip("\n").split("\n"):
        e("; " + ln)
    e('.amdgcn_target "amdgcn-amd-amdhsa--gfx950"')
    e(".text")
    e(f".globl {NAME}_kernel")
    e(".p2align 8")
    e(f".type {NAME}_kernel,@function")
    e(f"{NAME}_kernel:")
    e("  s_cmpk_ge_u32 s2, 0x100")
    e("  s_cbranch_scc1 L_end")
    if P.stamp:
        e(f"  s_memrealtime s[{sST}:{sST + 1}]")
    e("  s_load_dwordx16 s[4:19], s[0:1], 0")
    e(f"  s_getpc_b64 s[{sZ}:{sZ + 1}]")
    e("L_pc:")
    e("  v_cmp_gt_u32 vcc, 64, v0")
    e(f"  v_lshlrev_b32 {vr(vT16)}, 4, v0")
    e(f"  s_lshr_b32 s{sC}, s2, 4")
    e(f"  s_and_b32 s{sH}, s2, 7")
    e(f"  s_lshl3_add_u32 s{sH}, s{sC}, s{sH}")
    e(f"  s_movk_i32 s{sNEED}, 768")
    e("  s_cbranch_vccz L_s0")
    e(f"  v_lshl_add_u32 {vr(h0)}, s{sC}, 10, {vr(vT16)}")
    e(f"  global_load_dword {vr(h3)}, {vr(h0)}, s[{sZ}:{sZ + 1}] offset:{D_END - PC0}")
    e(f"  v_and_b32 {vr(vL16)}, 0x1f0, {vr(vT16)}")
    e(f"  global_load_dwordx4 {vr(pr, 4)}, {vr(vL16)}, s[{sZ}:{sZ + 1}] offset:{D_QCS - PC0}")
    e("  s_branch L_helper")
    e("L_s0:")
    e(f"  v_and_b32 {vr(vC16)}, 0xf0, {vr(vT16)}")
    e(f"  global_load_dwordx4 {vr(invX, 4)}, {vr(vC16)}, s[{sZ}:{sZ + 1}] offset:{D_INV - PC0}")
    e(f"  global_load_dwordx4 {vr(invY, 4)}, {vr(vC16)}, s[{sZ}:{sZ + 1}] offset:{D_INV + 256 - PC0}")
    e(f"  s_mul_i32 s{sT0}, s{sH}, 196608")
    e(f"  s_and_b32 s{sT1}, s2, 8")
    e(f"  s_lshl_b32 s{sT1}, s{sT1}, 12")
    e(f"  s_add_u32 s{sT0}, s{sT0}, s{sT1}")
    e(f"  s_add_u32 s{sT0}, s{sT0}, {65536 * RUN[0] - 1024 + 4096}")
    e(f"  v_add_u32 {vr(tA)}, s{sT0}, {vr(vT16)}")
    for k in range(1, (NF + 1) // 2):
        e(f"  v_add_u32 {vr(tA + k)}, {8192 * k}, {vr(tA)}")
    e("  s_waitcnt lgkmcnt(0)")
    for n in range(NF):
        e(f"  global_load_dwordx4 {vr(ring + 4 * n, 4)}, {vr(tA + n // 2)}, s[{sQK}:{sQK + 1}] offset:{4096 * (n % 2) - 4096} nt")
    e("  s_branch L_s1")
    e("L_b0:")
    e(f".if (L_b0 - {NAME}_kernel > {D_INV}) || (L_pc - {NAME}_kernel != {PC0})")
    e('.error "entry block layout"')
    e(".endif")
    e(".p2align 8")
    e(".type L_inv,@object")
    e("L_inv:")
    tb = inv[:64] + inv[64:] + inv[64:]
    for k in range(0, 128, 8):
        e("  .long " + ", ".join(f"{v:#x}" for v in tb[k:k + 8]))
    e(".type L_qcs,@object")
    e("L_qcs:")
    for k in range(0, 96, 8):
        e("  .long " + ", ".join(f"{v:#x}" for v in qcs[k:k + 8]))

    def common():
        e(f"  s_load_dwordx8 s[24:31], s[0:1], 80")
        e(f"  s_lshl_b32 s{sT0}, s2, 6")
        e(f"  s_add_u32 s{sT0}, s{sT0}, L_order-L_pc")
        e(f"  s_add_u32 s{sRT}, s{sZ}, s{sT0}")
        e(f"  s_addc_u32 s{sRT + 1}, s{sZ + 1}, 0")
        e(f"  s_load_dwordx2 s[{sVO}:{sVO + 1}], s[{sRT}:{sRT + 1}], 0")
        e(f"  s_load_dwordx2 s[{sCN}:{sCN + 1}], s[{sRT}:{sRT + 1}], 8")
        e(f"  v_mov_b32 {vr(vZ)}, 0")
        e(f"  s_mov_b32 s{sSP}, {P.bound}")
        e(f"  s_bfe_u32 s{sJ}, s2, 0x10003")

    PFR = [8, 10, 14, 16, 18, 20, 22, 72, 74, 76, 4, 86]
    pfn = [0]

    def pf():
        if P.tfine:
            e(f"  s_memrealtime s[{PFR[pfn[0]]}:{PFR[pfn[0]] + 1}]")
            pfn[0] += 1

    e("L_s1:")
    w_, s_, vAD, vC8, t0, t1 = wt, wt + 1, wt + 2, wt + 3, dacc, dacc + 1
    vRF, pos = vT16, tK + 3
    if P.trace:
        e(f"  v_mov_b32 {vr(vtr)}, 0")
        e("  s_mov_b32 m0, 0")
    pf()
    e("  v_subrev_u32 v0, 64, v0")
    e("  s_setprio 1")
    common()
    e(f"  v_lshrrev_b32 {vr(w_)}, 6, v0")
    e(f"  v_lshrrev_b32 {vr(s_)}, 4, v0")
    e(f"  v_and_b32 {vr(vC8)}, 0x70, {vr(vC16)}")
    e(f"  v_readfirstlane_b32 s{sW}, {vr(w_)}")
    e(f"  v_add_u32 {vr(vAD)}, {vr(vC8)}, {vr(s_)}")
    e(f"  s_mul_i32 s{sT0}, s{sJ}, 44")
    e(f"  s_sub_u32 s{sT0}, 86, s{sT0}")
    e(f"  v_cmp_eq_u32 vcc, s{sT0}, {vr(vAD)}")
    e(f"  v_mov_b32 {vr(t0)}, 0x80")
    e(f"  s_and_b32 s{sH}, s2, 7")
    e(f"  v_cndmask_b32 {vr(vAD)}, {vr(vAD)}, {vr(t0)}, vcc")
    e(f"  v_mul_u32_u24 {vr(t0)}, 381, {vr(vAD)}")
    e(f"  s_mul_i32 s{sT0}, s{sJ}, 43")
    e(f"  v_add_u32 {vr(t0)}, 2, {vr(t0)}")
    e(f"  s_lshl_b32 s{sT1}, s{sH}, 8")
    e(f"  v_lshrrev_b32 {vr(t0)}, 14, {vr(t0)}")
    assert all((381 * i + 2) >> 14 == (i >= 43) + (i >= 86) for i in range(129))
    e(f"  s_add_u32 s{sT0}, s{sT0}, s{sT1}")
    e(f"  v_mad_u32_u24 {vr(t0)}, {vr(t0)}, 42, {vr(vAD)}")
    e(f"  v_add_u32 {vr(t0)}, s{sT0}, {vr(t0)}")
    e(f"  v_cvt_f32_u32 {vr(vRF)}, {vr(t0)}")
    e(f"  v_mul_u32_u24 {vr(vAD)}, 384, {vr(vAD)}")
    e(f"  s_mov_b32 s{rA + 2}, {HB}")
    e(f"  s_mov_b32 s{rA + 3}, 0x20000")
    srd_head(rA, sQK, sC)
    e(f"  s_mul_i32 s{sT0}, s{sH}, 6")
    e(f"  s_add_u32 s{sT0}, s{sT0}, s{sJ}")
    e(f"  s_lshl_b32 s{sT0}, s{sT0}, 15")
    e(f"  v_lshl_add_u32 {vr(voff + RUN.index(0))}, v0, 4, s{sT0}")
    for k in (1, 2):
        e(f"  v_add_u32 {vr(voff + RUN.index(k))}, {65536 * k:#x}, {vr(voff + RUN.index(0))}")
    for i in range(1, 8):
        e(f"  s_movk_i32 s{sOF + i}, {4096 * i}")
    nk = [NF]
    assert PRE <= RING and (PRE - PD) % 3 == 0 and EX == 1 and max(int(v) for v in P.kp_.split(",")[:P.su + 1]) <= min(SPECIAL)

    def k_loads(hi):
        while nk[0] < min(hi, PRE):
            ld(nk[0])
            nk[0] += 1

    def toff_(n):
        run = RUN[n >> 3]
        return 384 * (16 * (((n & 7) + run) // 3) + 38 * run)

    def setup():
        e("; per chunk class k: q operand, table and partial addresses")
        e(f"  s_lshl1_add_u32 s{sF}, s{sJ}, s{sW}")
        e(f"  s_lshl_b32 s{sF}, s{sF}, 1")
        e(f"  s_lshr_b32 s{sF}, 0x4924, s{sF}")
        e(f"  v_bfe_u32 {vr(t1)}, v0, 4, 2")
        e(f"  v_lshl_add_u32 {vr(t1)}, {vr(t1)}, 2, {vr(vC16)}")
        e(f"  v_mad_u32_u24 {vr(vF)}, {vr(w_)}, s{sNEED}, {vr(t1)}")
        e(f"  v_add_u32 {vr(vF)}, {PB}, {vr(vF)}")
        e(f"  s_mul_i32 s{sT1}, s{sJ}, {43 * 384}")
        e(f"  s_sub_u32 s{sT1}, {TB}, s{sT1}")
        e(f"  v_lshl_add_u32 {vr(vSum)}, s{sJ}, 7, {vr(s_)}")
        for k in range(3):
            e(f"  s_bfe_u32 s{sT0}, s{sF}, {(2 << 16) | 2 * k:#x}")
            e(f"  v_lshl_add_u32 {vr(vPA + k)}, s{sT0}, 8, {vr(vF)}")
            if k:
                e(f"  v_add_u32 {vr(vSum)}, 16, {vr(vSum)}")
            e(f"  v_mul_u32_u24 {vr(t0)}, 171, {vr(vSum)}")
            e(f"  v_lshrrev_b32 {vr(t0)}, 9, {vr(t0)}")
            e(f"  v_mad_i32_i24 {vr(t1)}, {vr(t0)}, -3, {vr(vSum)}")
            e(f"  v_lshl_add_u32 {vr(t1)}, {vr(t1)}, 8, {vr(vC16)}")
            e(f"  v_add_u32 {vr(vQA + k)}, {QB}, {vr(t1)}")
            e(f"  v_subrev_u32 {vr(vSu2)}, 384, {vr(t1)}")
            e(f"  v_min_u32 {vr(t1)}, {vr(t1)}, {vr(vSu2)}")
            e(f"  v_mul_u32_u24 {vr(t0)}, 384, {vr(t0)}")
            e(f"  v_add3_u32 {vr(vTA + k)}, {vr(t0)}, {vr(t1)}, s{sT1}")
        e(f"  v_lshl_add_u32 {vr(vSum)}, s{sJ}, 4, {vr(s_)}")
        for n, i in SPECIAL.items():
            run, sx = RUN[n >> 3], 15 * (n & 7 == 7)
            b = int(run == 0)
            g0, g1 = 256 * run + 128 * b + 16 * (n & 7) + sx, chunk_of(b, n, sx)
            dt = 384 * (tidx(b, g1 // 3) - (g0 // 3 - 43 * b - 42 * run))
            e(f"  v_cmp_eq_u32 vcc, {16 * b + sx}, {vr(vSum)}")
            e(f"  v_add_u32 {vr(t0)}, {256 * (g1 - g0) & 0xffffffff:#x}, {vr(voff + (n >> 3))}")
            e(f"  v_add_u32 {vr(t1)}, {toff_(n)}, {vr(vTA + TN[n])}")
            e(f"  v_add_u32 {vr(vSu2)}, {dt & 0xffffffff:#x}, {vr(t1)}")
            e(f"  v_cndmask_b32 {vr(voff + 3 + i)}, {vr(voff + (n >> 3))}, {vr(t0)}, vcc")
            e(f"  v_cndmask_b32 {vr(vTA + 3 + i)}, {vr(t1)}, {vr(vSu2)}, vcc")
        e(f"  v_lshlrev_b32 {vr(vLB)}, 2, v0")
        e(f"  v_add_u32 {vr(vLB)}, {LGB}, {vr(vLB)}")
        e(f"  v_lshrrev_b32 {vr(t1)}, 1, v0")
        e(f"  v_lshlrev_b32 {vr(t1)}, 2, {vr(t1)}")
        e(f"  v_add_u32 {vr(vLB + 1)}, {LGB + 1024}, {vr(t1)}")
        e(f"  v_mov_b32 {vr(vLG)}, {vr(vLB)}")
        e(f"  v_mov_b32 {vr(vLG + 1)}, {vr(vLB + 1)}")
        e(f"  v_lshlrev_b32 {vr(vPW)}, 2, {vr(w_)}")
        e(f"  s_mov_b32 s{sMSK}, 0xcccccccc")
        e(f"  s_mov_b32 s{sMSK + 1}, s{sMSK}")
        e(f"  s_mov_b32 s{sMSK + 2}, 0xaaaaaaaa")
        e(f"  s_mov_b32 s{sMSK + 3}, s{sMSK + 2}")
        e(f"  s_mov_b32 s{rB + 2}, {HB}")
        e(f"  s_mov_b32 s{rB + 3}, 0x20000")
        e(f"  s_mov_b32 s{sK}, 0")
        if P.ctl:
            e("; progress slots: this wave writes one byte of line (half, w) and samples the lines of the other half")
            die_base(sF)
            e(f"  s_add_u32 s{sT0}, s{sF}, 2048")
            e(f"  v_mov_b32 {vr(vBA)}, s{sT0}")
            e(f"  s_and_b32 s{sT1}, s{sSE}, 2")
            e(f"  s_lshl_b32 s{sT1}, s{sT1}, 9")
            e(f"  s_lshl_b32 s{sT0}, s{sW}, 8")
            e(f"  s_add_u32 s{sT0}, s{sT0}, s{sT1}")
            e(f"  s_add_u32 s{sT0}, s{sT0}, s{sF}")
            e(f"  s_add_u32 s{sT0}, s{sT0}, s{sCU}")
            e(f"  s_and_b32 s{sSE}, s{sSE}, 1")
            e(f"  s_lshl_b32 s{sSE}, s{sSE}, 4")
            e(f"  s_add_u32 s{sT0}, s{sT0}, s{sSE}")
            e(f"  v_mov_b32 {vr(vPS)}, s{sT0}")
            e(f"  s_xor_b32 s{sT1}, s{sT1}, 1024")
            e(f"  s_add_u32 s{sF}, s{sF}, s{sT1}")
            e(f"  v_and_b32 {vr(vN)}, 1, v0")
            e(f"  v_lshl_add_u32 {vr(vN)}, {vr(vN)}, 4, s{sF}")
            e(f"  v_bfe_u32 {vr(t1)}, v0, 1, 2")
            e(f"  v_mad_u32_u24 {vr(t1)}, {vr(t1)}, {4 // P.nl}, {vr(w_)}")
            for k in range(4):
                e(f"  v_add_u32 {vr(vSum)}, {k}, {vr(t1)}")
                e(f"  v_and_b32 {vr(vSum)}, 3, {vr(vSum)}")
                e(f"  v_lshl_add_u32 {vr(vPL + k)}, {vr(vSum)}, 8, {vr(vN)}")
            e(f"  s_mov_b32 s{sLO}, {(-(LAG + 2) * 0x01010101) & 0xffffffff:#x}")
            for k in range(8):
                e(f"  v_mov_b32 {vr(smp + k)}, 0")
            e(f"  v_mov_b32 {vr(vBI)}, 0")
            e(f"  v_mov_b32 {vr(vBI + 1)}, 0")
            e(f"  s_mov_b32 s{sN}, 0")
            e(f"  s_mov_b32 s{sB}, 0")
            e(f"  s_mov_b32 s{sS}, {P.lo}")
            e(f"  s_mov_b32 s{sI}, 0")
        e(f"  s_add_u32 s{sF}, s{sC}, 16")
        srd_head(rB, sQK, sF)

    def sincos(dst, iv):
        for h in (0, 2):
            e(f"  v_pk_mul_f32 {vr(tA + h, 2)}, {vr(iv + h, 2)}, {vr(tK + 2, 2)} op_sel:[0,1] op_sel_hi:[1,1]")
        if iv == invY:
            for h in (0, 2):
                e(f"  v_pk_mul_f32 {vr(tN + h, 2)}, {vr(tA + h, 2)}, {vr(tK, 2)} op_sel_hi:[1,0]")
        else:
            for h in (0, 2):
                e(f"  v_pk_fma_f32 {vr(tN + h, 2)}, {vr(tA + h, 2)}, {vr(tK, 2)}, {vr(tK, 2)} op_sel:[0,0,1] op_sel_hi:[1,0,1]")
            for h in (0, 2):
                e(f"  v_pk_add_f32 {vr(tN + h, 2)}, {vr(tN + h, 2)}, {vr(tK, 2)} op_sel:[0,1] op_sel_hi:[1,1] neg_lo:[0,1] neg_hi:[0,1]")
            for h in (0, 2):
                e(f"  v_pk_fma_f32 {vr(tN + h, 2)}, {vr(tA + h, 2)}, {vr(tK, 2)}, {vr(tN + h, 2)} op_sel_hi:[1,0,1] neg_lo:[0,0,1] neg_hi:[0,0,1]")
            for h in (0, 2):
                e(f"  v_pk_fma_f32 {vr(tN + h, 2)}, {vr(tA + h, 2)}, {vr(tK + 2, 2)}, {vr(tN + h, 2)} op_sel_hi:[1,0,1]")
        for i in range(4):
            e(f"  v_cos_f32 {vr(tA + i)}, {vr(tN + i)}")
        for i in range(4):
            e(f"  v_sin_f32 {vr(tN + i)}, {vr(tN + i)}")
        for i in range(4):
            e(f"  v_cvt_pk_bf16_f32 {vr(dst + i)}, {vr(tA + i)}, {vr(tN + i)}")

    kp = [int(v) for v in P.kp_.split(",")]

    def chunk(i):
        a = 2 * (i // 3)
        d = tO + 4 * (i & 1)
        bc_ = lambda x, m: f"row_newbcast:{x} row_mask:0xf bank_mask:{m:#x}"
        if i % 3 == 1:
            e(f"  v_mov_b32_dpp {vr(pos)}, {vr(vRF)} {bc_(a + 1, 12)}")
            e(f"  v_add_u32_dpp {vr(vF)}, {vr(vAD)}, {vr(vC8)} {bc_(a, 3)}")
            e(f"  v_add_u32_dpp {vr(vF)}, {vr(vAD)}, {vr(vC8)} {bc_(a + 1, 12)}")
            sincos(d, invY)
            e(f"  ds_write_b128 {vr(vF)}, {vr(d, 4)} offset:{TB + 256}")
        else:
            a += i % 3 // 2
            e(f"  v_mov_b32_dpp {vr(pos)}, {vr(vRF)} {bc_(a, 15)}")
            e(f"  v_add_u32_dpp {vr(vF)}, {vr(vAD)}, {vr(vC16)} {bc_(a, 15)}")
            sincos(d, invX)
            e(f"  ds_write_b128 {vr(vF)}, {vr(d, 4)} offset:{TB}")

    def tab_read(a):
        for n in range(3 * a, 3 * a + 3):
            d = tab + 12 * (a & 1) + 4 * (n % 3)
            if n in SPECIAL:
                e(f"  ds_read_b128 {vr(d, 4)}, {vr(vTA + 3 + SPECIAL[n])}")
            else:
                e(f"  ds_read_b128 {vr(d, 4)}, {vr(vTA + TN[n])} offset:{toff_(n)}")

    c_hi = f32bits(1 / (2 * math.pi))
    c_lo = f32bits(1 / (2 * math.pi) - struct.unpack("<f", struct.pack("<I", c_hi))[0])
    e(f"  v_mov_b32 {vr(tK)}, {c_hi:#x}")
    e(f"  v_mov_b32 {vr(tK + 1)}, {f32bits(1.5 * 2 ** 23):#x}")
    e(f"  v_mov_b32 {vr(tK + 2)}, {c_lo:#x}")
    k_loads(kp[0])
    pf()
    e(f"  s_waitcnt vmcnt({nk[0]})")
    pf()
    for i in range(12):
        if i == P.su:
            setup()
            pf()
        chunk(i)
        k_loads(kp[i + 1])
        if i % 3 == 2:
            pf()
    k_loads(PRE)
    e(f"  v_mov_b32 {vr(bc)}, {f32bits(-7.5):#x}")
    e("  s_waitcnt lgkmcnt(0)")
    e("  s_barrier")
    pf()
    e("  s_mov_b64 vcc, 0")
    for k in range(3):
        e(f"  ds_read_b128 {vr(qa + 4 * k, 4)}, {vr(vQA + k)}")
    tab_read(0)
    e(f"  s_waitcnt vmcnt({PRE - 1})")
    pf()
    if P.tfine:
        e("  s_waitcnt lgkmcnt(0)")
        for k in range(pfn[0]):
            e(f"  v_writelane_b32 {vr(vtr)}, s{PFR[k]}, {k}")
        e(f"  s_mov_b32 m0, {pfn[0]}")

    def kred(n):
        dpp = lambda d, x, how, m: e(f"  v_add_f32_dpp {vr(d)}, {vr(x)}, {vr(x)} {how} row_mask:0xf bank_mask:{m:#x}")
        dpp(M1, dacc, "row_ror:8", 12 if n & 1 else 3)
        if n % 2 == 1:
            e("  s_nop 1")
            dpp(M2, M1, "row_half_mirror", 10 if n & 2 else 5)
        if n % 4 == 3:
            e("  s_nop 1")
            dpp(M2 if n & 4 else M3, M2, "quad_perm:[2,3,0,1]", 15)
        if n % 8 == 7:
            e(f"  v_cndmask_b32_e64 {vr(M3)}, {vr(M3)}, {vr(M2)}, s[{sMSK}:{sMSK + 1}]")
            e("  s_nop 1")
            dpp((LG, M3, LG + 1)[n >> 3], M3, "quad_perm:[1,0,3,2]", 15)
        if n == 15:
            e(f"  v_cndmask_b32_e64 {vr(LG)}, {vr(LG)}, {vr(M3)}, s[{sMSK + 2}:{sMSK + 3}]")

    e(".p2align 6")
    e("L_k:")
    e(f"  s_add_u32 s{sT0}, s{sK}, 2")
    e(f"  s_min_u32 s{sNEED}, s{sT0}, 16")
    for k in range(3):
        e(f"  v_add_u32 {vr(vQA + k)}, 768, {vr(vQA + k)}")
    for a in range(8):
        if a == 7:
            flagwait("qn", FL + 16)
        else:
            e("  s_waitcnt lgkmcnt(0)")
        tab_read((a + 1) % 8)
        if a == 6:
            e(f"  ds_read_b32 {vr(vF)}, {vr(vZ)} offset:{FL + 16}")
        for j in range(3):
            if j == CP:
                control(a)
            if j == DP:
                decide(a)
            n = 3 * a + j
            k_ = ring + 4 * n
            q_ = qa + 4 * TN[n]
            for i in range(4):
                e(f"  v_dot2_f32_bf16 {vr(wt + i)}, {vr(tab + 12 * (a & 1) + 4 * j + i)}, {vr(q_ + i)}, 0")
            for i in range(4):
                e(f"  v_cvt_f32_i32 {vr(k_ + i)}, {vr(k_ + i)}")
            if a == 7:
                e(f"  ds_read_b128 {vr(q_, 4)}, {vr(vQA + TN[n])}")
            for h in range(2):
                e(f"  v_pk_add_f32 {vr(k_ + 2 * h, 2)}, {vr(k_ + 2 * h, 2)}, {vr(bc, 2)} op_sel_hi:[1,0]")
            e(f"  v_pk_mul_f32 {vr(dacc, 2)}, {vr(k_, 2)}, {vr(wt, 2)}")
            e(f"  v_pk_fma_f32 {vr(dacc, 2)}, {vr(k_ + 2, 2)}, {vr(wt + 2, 2)}, {vr(dacc, 2)}")
            e(f"  v_add_f32 {vr(dacc)}, {vr(dacc)}, {vr(dacc + 1)}")
            if j == TP:
                throttle(a)
            pace(n, P.hi)
            ld(n + PRE)
            kred(n)
        if a in (3, 7) or P.tfine:
            tr()
    assert sorted(TN[21:]) == [0, 1, 2] and sorted(TN[:3]) == [0, 1, 2]
    e(f"  s_add_u32 s{sK}, s{sK}, 1")
    e(f"  v_mov_b32 {vr(vF)}, s{sK}")
    for k in range(2):
        e(f"  ds_write_b32 {vr(vLG + k)}, {vr(LG + k)}")
    e(f"  ds_write_b32 {vr(vPW)}, {vr(vF)} offset:{FL}")
    for k in range(2):
        e(f"  v_add_u32 {vr(vLG + k)}, 1536, {vr(vLG + k)}")
    e(f"  s_mov_b64 s[{rA}:{rA + 1}], s[{rB}:{rB + 1}]")
    e(f"  s_add_u32 s{sH}, s{sK}, 1")
    e(f"  s_sub_u32 s{sT1}, s{sH}, 16")
    vstep_k(sF, sT1)
    e(f"  s_cmp_lt_u32 s{sH}, 16")
    e(f"  s_cselect_b32 s{sH}, s{sH}, s{sF}")
    e(f"  s_cselect_b32 s{sX}, s{sQK}, s{sQV}")
    e(f"  s_cselect_b32 s{sX + 1}, s{sQK + 1}, s{sQV + 1}")
    head_of(sH, sH)
    srd_head(rB, sX, sH)
    e(f"  s_cmp_lt_u32 s{sK}, 16")
    e("  s_cbranch_scc1 L_k")

    e("L_vpre:")
    e(f"  s_mov_b32 s{sK}, 0")
    vstep_k(sH, sK)
    e(f"  s_add_u32 s{sNEED}, s{sH}, 1")
    e(f"  ds_read_b32 {vr(vF)}, {vr(vZ)} offset:{FL + 20}")
    flagwait("a0", FL + 20)
    e(f"  s_mulk_i32 s{sH}, 1536")
    for k in range(2):
        e(f"  v_add_u32 {vr(vLG + k)}, s{sH}, {vr(vLB + k)}")
    e(f"  ds_read_b32 {vr(A)}, {vr(vLG)}")
    e(".p2align 6")
    e("L_v:")
    e(f"  s_add_u32 s{sT1}, s{sK}, 1")
    e(f"  s_min_u32 s{sT1}, s{sT1}, 15")
    vstep_k(sH, sT1)
    e(f"  s_add_u32 s{sNEED}, s{sH}, 1")
    e(f"  s_mulk_i32 s{sH}, 1536")
    e("  s_waitcnt lgkmcnt(0)")
    e(f"  ds_read_b32 {vr(A + 1)}, {vr(vLG + 1)}")
    for k in range(2):
        e(f"  v_add_u32 {vr(vLG + k)}, s{sH}, {vr(vLB + k)}")
    for a in range(8):
        if a == 5:
            e("  s_waitcnt lgkmcnt(0)")
            e(f"  ds_read_b32 {vr(vF)}, {vr(vZ)} offset:{FL + 20}")
        if a == 6:
            flagwait("an", FL + 20)
            e(f"  ds_read_b32 {vr(A)}, {vr(vLG)}")
        for j in range(3):
            n = 3 * a + j
            if n + PD == 24:
                e("  s_cbranch_vccz L_in")
                e(f"  s_waitcnt vmcnt({drain['in']})")
                e("L_in:")
            if j in (CP, DP):
                if n + PD >= 24:
                    e(f"  s_cbranch_vccnz L_c{n}")
                if n < PRE - PD:
                    e(f"  s_cmp_eq_u32 s{sK}, 0")
                    e(f"  s_cbranch_scc1 L_c{n}")
                if j == CP:
                    control(a)
                if j == DP:
                    decide(a)
                if n + PD >= 24 or n < PRE - PD:
                    e(f"L_c{n}:")
            v_ = ring + 4 * n
            e(f"  v_mov_b32_dpp {vr(bc)}, {vr(A + n // 16)} row_newbcast:{rev(n % 16, 4)} row_mask:0xf bank_mask:0xf")
            for i in range(4):
                e(f"  v_cvt_f32_i32 {vr(v_ + i)}, {vr(v_ + i)}")
            for h in range(2):
                d = acc + 4 * TN[n] + 2 * h
                if a == 0:
                    e(f"  v_pk_mul_f32 {vr(d, 2)}, {vr(v_ + 2 * h, 2)}, {vr(bc, 2)} op_sel_hi:[1,0]")
                else:
                    e(f"  v_pk_fma_f32 {vr(d, 2)}, {vr(v_ + 2 * h, 2)}, {vr(bc, 2)}, {vr(d, 2)} op_sel_hi:[1,0,1]")
            if n + PD >= 24:
                e(f"  s_cbranch_vccz L_f{n}")
                if n < 23:
                    e(f"  s_waitcnt vmcnt({drain[n]})")
                e(f"  s_branch L_g{n}")
                e(f"L_f{n}:")
            if n < PRE - PD:
                e(f"  s_cmp_eq_u32 s{sK}, 0")
                e(f"  s_cbranch_scc0 L_f{n}")
                e(f"  s_waitcnt vmcnt({first[n]})")
                e(f"  s_branch L_g{n}")
                e(f"L_f{n}:")
            if j == TP:
                throttle(a)
            pace(n, P.hiv)
            ld(n + PD)
            if n + PD >= 24 or n < PRE - PD:
                e(f"L_g{n}:")
        if a in (3, 7):
            tr()
    e(f"  s_add_u32 s{sK}, s{sK}, 1")
    for j in range(3):
        e(f"  v_permlane32_swap_b32 {vr(acc + 4 * j)}, {vr(acc + 4 * j + 2)}")
        e(f"  v_permlane32_swap_b32 {vr(acc + 4 * j + 1)}, {vr(acc + 4 * j + 3)}")
    for j in range(3):
        e(f"  v_add_f32 {vr(acc + 4 * j)}, {vr(acc + 4 * j)}, {vr(acc + 4 * ((j + 1) % 3) + 2)}")
        e(f"  v_add_f32 {vr(acc + 4 * j + 1)}, {vr(acc + 4 * j + 1)}, {vr(acc + 4 * ((j + 1) % 3) + 3)}")
    e(f"  s_add_u32 s{sT0}, s{sK}, 16")
    e(f"  s_cmp_eq_u32 s{sK}, 15")
    e("  s_cselect_b64 vcc, -1, 0")
    if P.lb:
        e(f"  s_cselect_b32 s{sT1}, {P.lb}, 0")
        e(f"  s_add_u32 s{sB}, s{sB}, s{sT1}")
    e(f"  v_mov_b32 {vr(vF)}, s{sT0}")
    for j in range(3):
        e(f"  v_permlane16_swap_b32 {vr(acc + 4 * j)}, {vr(acc + 4 * j + 1)}")
    for j in range(3):
        e(f"  v_add_f32 {vr(acc + 4 * j)}, {vr(acc + 4 * j)}, {vr(acc + 4 * ((j + 2) % 3) + 1)}")
    for j in range(3):
        e(f"  ds_write_b32 {vr(vPA + j)}, {vr(acc + 4 * j)}")
    e(f"  ds_write_b32 {vr(vPW)}, {vr(vF)} offset:{FL}")
    for j in range(3):
        e(f"  v_add_u32 {vr(vPA + j)}, 3072, {vr(vPA + j)}")
    e(f"  s_mov_b64 s[{rA}:{rA + 1}], s[{rB}:{rB + 1}]")
    e(f"  s_add_u32 s{sT1}, s{sK}, 1")
    e(f"  s_min_u32 s{sT1}, s{sT1}, 15")
    vstep_k(sH, sT1)
    head_of(sH, sH)
    srd_head(rB, sQV, sH)
    e(f"  s_cmp_lt_u32 s{sK}, 16")
    e("  s_cbranch_scc1 L_v")
    if P.fb:
        e("  s_waitcnt lgkmcnt(0)")
        e("  s_barrier")
    if P.trace:
        e(f"  s_mul_i32 s8, s2, {5 * 256}")
        e("  s_add_u32 s8, s8, 0x100000")
        e(f"  v_lshl_add_u32 {vr(t0)}, v0, 2, s8")
        e(f"  global_store_dword {vr(t0)}, {vr(vtr)}, s[{sWS}:{sWS + 1}]")
    e("  s_endpgm")

    HP = [20, 22, 24, 8, 34, 36, 38, 72]
    NL = 2
    ms = [m for m in range(P.r0, P.r1 + 1) if m < P.rf or m > P.rt or (m - P.r0) % P.rp == 0]
    msk = sum(1 << m for m in ms)

    def hp(k):
        if P.hprof:
            e(f"  s_memrealtime s[{HP[k]}:{HP[k] + 1}]")

    def progwait(name, slp):
        e(f"L_{name}:")
        e(f"  ds_read_b128 {vr(pr, 4)}, {vr(vZ)} offset:{FL}")
        e("  s_waitcnt lgkmcnt(0)")
        e(f"  v_min_u32 {vr(pr)}, {vr(pr)}, {vr(pr + 1)}")
        e(f"  v_min3_u32 {vr(pr)}, {vr(pr)}, {vr(pr + 2)}, {vr(pr + 3)}")
        e("  s_nop 0")
        e(f"  v_readfirstlane_b32 s{sF}, {vr(pr)}")
        e(f"  s_cmp_ge_u32 s{sF}, s{sNEED}")
        e(f"  s_cbranch_scc1 L_{name}_ok")
        budget(f"L_{name}_ok")
        if slp:
            e(f"  s_sleep {slp}")
        e(f"  s_branch L_{name}")
        e(f"L_{name}_ok:")

    def rowred(op, v):
        for n in (8, 4, 2, 1):
            e("  s_nop 1")
            e(f"  {op}_dpp {vr(v)}, {vr(v)}, {vr(v)} row_ror:{n} row_mask:0xf bank_mask:0xf")

    def allred(op, v, t):
        rowred(op, v)
        for sw in ("v_permlane16_swap_b32", "v_permlane32_swap_b32"):
            e(f"  v_mov_b32 {vr(t)}, {vr(v)}")
            e("  s_nop 1")
            e(f"  {sw} {vr(v)}, {vr(t)}")
            e(f"  {op} {vr(v)}, {vr(v)}, {vr(t)}")

    def sum_partials(nq):
        w = 4 * nq
        for k in range(4):
            for q in range(nq):
                e(f"  ds_read_b128 {vr(x + w * k + 4 * q, 4)}, {vr(h0)} offset:{768 * k + 16 * q}")
        e(f"  ds_read_b128 {vr(z4, 4)}, {vr(h1)} offset:{ST}")
        e("  s_waitcnt lgkmcnt(0)")
        for h in range(0, w, 2):
            e(f"  v_pk_add_f32 {vr(x + h, 2)}, {vr(x + h, 2)}, {vr(x + w + h, 2)}")
            e(f"  v_pk_add_f32 {vr(x + 2 * w + h, 2)}, {vr(x + 2 * w + h, 2)}, {vr(x + 3 * w + h, 2)}")
        for h in range(0, w, 2):
            e(f"  v_pk_add_f32 {vr(x + h, 2)}, {vr(x + h, 2)}, {vr(x + 2 * w + h, 2)}")
        for h in range(0, w, 2):
            e(f"  v_pk_add_f32 {vr(x + h, 2)}, {vr(x + h, 2)}, {vr(z4 + 2, 2)} op_sel_hi:[1,0] neg_lo:[0,1] neg_hi:[0,1]")

    def rank_post(tag):
        if not (P.ctl and NL):
            return
        e(f"  s_bitcmp1_b32 s{sRF}, s{sNEED}")
        e(f"  s_cbranch_scc0 L_fa{tag}")
        if P.sa:
            e(f"  s_mul_i32 s{sT0}, s{sNEED}, 384")
            e(f"  s_add_u32 s{sT0}, s{sT0}, {W_RK}")
            e(f"  s_mov_b32 s{sB}, 1")
            e(f"  s_atomic_add s{sB}, s[{sWS}:{sWS + 1}], s{sT0} glc")
        e(f"  s_lshl_b64 exec, 1, s{sNEED}")
        if not P.sa:
            e(f"  global_atomic_add {vr(vFR)}, {vr(vFA)}, {vr(vOne)}, s[{sWS}:{sWS + 1}] sc0 sc1")
        if P.ki:
            e(f"  global_load_dword {vr(vEL)}, {vr(vFB)}, s[{sWS}:{sWS + 1}] offset:8 sc1")
        e("  s_mov_b64 exec, -1")
        e(f"L_fa{tag}:")

    def rank_take(tag):
        if not (P.ctl and NL):
            return
        e(f"  s_bitcmp1_b32 s{sRF}, s{sNEED}")
        e(f"  s_cbranch_scc0 L_fb{tag}")
        e("  s_waitcnt vmcnt(0) lgkmcnt(0)")
        if P.sa:
            e(f"  s_min_u32 s{sF}, s{sB}, {8 * NL - 1}")
        else:
            e(f"  v_sub_u32 {vr(vFX)}, {vr(vFR)}, {vr(vFI)}")
            e("  s_nop 0")
            e(f"  v_readlane_b32 s{sF}, {vr(vFX)}, s{sNEED}")
            e(f"  s_min_u32 s{sF}, s{sF}, {8 * NL - 1}")
        e(f"  s_lshl_b32 s{sF}, s{sF}, 1")
        e(f"  s_sub_u32 s{sF}, s{sF}, {8 * NL - 1}")
        if P.ki:
            e(f"  v_readlane_b32 s{sI}, {vr(vEL)}, s{sNEED}")
            e(f"  s_mul_i32 s{sT1}, s{sF}, {P.ki}")
            e(f"  s_ashr_i32 s{sT0}, s{sI}, {P.leak}")
            e(f"  s_sub_u32 s{sI}, s{sI}, s{sT0}")
            if P.streak:
                e(f"  s_mul_i32 s{sT0}, s{sI}, s{sF}")
                e(f"  s_cmp_lt_i32 s{sT0}, 0")
                e(f"  s_cselect_b32 s{sI}, 0, s{sI}")
            e(f"  s_add_u32 s{sT1}, s{sT1}, s{sI}")
            e(f"  v_mov_b32 {vr(vEL)}, s{sT1}")
        e(f"  s_cmp_le_u32 s{sNEED}, {P.kn}")
        e(f"  s_cselect_b32 s{sT0}, {P.kp0}, {P.kp}")
        e(f"  s_mul_i32 s{sF}, s{sF}, s{sT0}")
        e(f"  s_add_u32 s{sF}, s{sF}, s{sI}")
        e(f"  s_add_u32 s{sF}, s{sF}, 8")
        e(f"  s_ashr_i32 s{sF}, s{sF}, 4")
        e(f"  v_mov_b32 {vr(vFX)}, s{sF}")
        e("  s_mov_b64 exec, 1")
        e(f"  global_store_dword {vr(vFB)}, {vr(vFX)}, s[{sWS}:{sWS + 1}]")
        if P.ki:
            e(f"  global_store_dword {vr(vFB)}, {vr(vEL)}, s[{sWS}:{sWS + 1}] offset:8")
        e("  s_mov_b64 exec, -1")
        e(f"L_fb{tag}:")

    HPF = [10, 16, 18, 20, 22, 72, 74, 76, 60, 62]
    hpn = [0]

    def hpf():
        if P.tfine:
            e(f"  s_memrealtime s[{HPF[hpn[0]]}:{HPF[hpn[0]] + 1}]")
            hpn[0] += 1

    e("L_helper:")
    e(f"  s_setprio {P.hp0}")
    e(f"  v_and_b32 {vr(h1)}, 32, v0")
    e(f"  v_lshrrev_b32 {vr(h1)}, 1, {vr(h1)}")
    e(f"  v_add_u32 {vr(sg2)}, s{sC}, {vr(h1)}")
    e(f"  v_mad_u32_u24 {vr(ra)}, {vr(sg2)}, s{sNEED}, {vr(vL16)}")
    e(f"  v_lshrrev_b32 {vr(ra)}, 1, {vr(ra)}")
    hv = []

    def half(p, full):
        if p in (2, 3):
            e(f"  s_mov_b32 exec_hi, {0 if p == 2 else full}")
        if p in (5, 6):
            e(f"  s_mov_b32 exec_lo, {0 if p == 5 else full}")

    def sc_early():
        e(f"  s_and_b32 s{sT1}, s2, 7")
        e(f"  v_lshl_add_u32 {vr(wb)}, s{sT1}, 9, {vr(vL16)}")
        e(f"  v_lshl_add_u32 {vr(ra)}, {vr(sg2)}, 12, {vr(wb)}")
        for p in range(1, 8):
            e(f"  v_add_u32 {vr(ra + p)}, {0x20000 * p:#x}, {vr(ra)}")
        for p in range(8):
            half(p, -1)
            for i, sp in enumerate((sKS, sVS)):
                e(f"  s_mov_b32 m0, {SCB + SA * i + 1024 * p}")
                e("  s_nop 0")
                if "s" not in P.xp:
                    e(f"  global_load_lds_dwordx4 {vr(ra + p)}, s[{sp}:{sp + 1}] {P.sf}")
                    hv.append(("s", p))

    for p in range(1, 8):
        e(f"  v_add_u32 {vr(ra + p)}, {12288 * p}, {vr(ra)}")
    e("  s_mov_b32 exec_lo, 0xffffff")
    e("  s_mov_b32 exec_hi, 0xffffff")
    e("  s_waitcnt lgkmcnt(0)")
    hpf()
    for p in range(8):
        half(p, "0xffffff")
        e(f"  global_load_dwordx2 {vr(rec + 4 * p, 2)}, {vr(ra + p)}, s[{sQ}:{sQ + 1}]")
        e(f"  global_load_dwordx2 {vr(rec + 4 * p + 2, 2)}, {vr(ra + p)}, s[{sQ}:{sQ + 1}] offset:192")
        hv.extend([("q", p)] * 2)
    e("  s_mov_b64 exec, -1")
    hpf()
    if P.ss == 0:
        sc_early()
    common()
    e(f"  s_load_dword s{sO}, s[{sRT}:{sRT + 1}], 24")
    e(f"  s_load_dwordx2 s[{sOH}:{sOH + 1}], s[{sRT}:{sRT + 1}], 16")
    e(f"  v_mov_b32 {vr(l)}, v0")
    for i in range(4):
        e(f"  v_mov_b32 {vr(z4 + i)}, 0")
    e(f"  ds_write_b128 {vr(vZ)}, {vr(z4, 4)} offset:{FL}")
    e(f"  ds_write_b128 {vr(vZ)}, {vr(z4, 4)} offset:{FL + 16}")
    e(f"  s_mov_b32 s{sMASK}, 0xffff0000")
    e(f"  s_mov_b32 s{sSCALE}, {f32bits(math.log2(math.e) / math.sqrt(192.0)):#x}")
    e(f"  v_mad_u32_u24 {vr(wa)}, {vr(h1)}, 48, {vr(vL16)}")
    e(f"  v_mov_b32 {vr(vOne)}, 1")
    e(f"  s_waitcnt vmcnt({len(hv)})")
    for k in range(4):
        e(f"  v_lshlrev_b32 {vr(cs + k)}, 16, {vr(pr + k)}")
        e(f"  v_and_b32 {vr(cs + 4 + k)}, s{sMASK}, {vr(pr + k)}")
    e("  s_waitcnt lgkmcnt(0)")
    hpf()
    e(f"  v_min_u32 {vr(h0)}, 2, {vr(l)}")
    e(f"  v_lshlrev_b32 {vr(h1)}, 3, {vr(h0)}")
    e(f"  v_bfe_u32 {vr(h1)}, s{sCT}, {vr(h1)}, 8")
    e(f"  v_mul_u32_u24 {vr(vCNT)}, 4352, {vr(h1)}")
    e(f"  v_add_u32 {vr(vCNT)}, {W_CNT}, {vr(vCNT)}")
    e(f"  v_and_b32 {vr(h1)}, 15, {vr(h1)}")
    e(f"  v_lshlrev_b32 {vr(vDB)}, 4, {vr(h1)}")
    e(f"  v_lshl_add_u32 {vr(h0)}, {vr(h0)}, 4, s{sC}")
    e(f"  v_mul_u32_u24 {vr(vCL)}, 4352, {vr(h0)}")
    e(f"  v_add_u32 {vr(vCL)}, {W_CNT}, {vr(vCL)}")
    if P.ctl:
        die_base(sF)
        e(f"  v_lshrrev_b32 {vr(h0)}, 1, {vr(l)}")
        e(f"  v_lshl_add_u32 {vr(vFX)}, {vr(h0)}, 8, s{sF}")
        e(f"  v_and_b32 {vr(h0)}, 1, {vr(l)}")
        e(f"  v_lshl_add_u32 {vr(vFX)}, {vr(h0)}, 4, {vr(vFX)}")
        e(f"  s_and_b32 s{sT1}, s{sSE}, 2")
        e(f"  s_lshl_b32 s{sT0}, s{sT1}, 9")
        e(f"  s_add_u32 s{sT0}, s{sT0}, s{sF}")
        e(f"  v_add_u32 {vr(vEL)}, s{sT0}, {vr(l)}")
        e(f"  s_lshl_b32 s{sT1}, s{sT1}, 1")
        e(f"  s_add_u32 s{sF}, s{sF}, s{sT1}")
        e(f"  s_add_u32 s{sF}, s{sF}, 2048")
        e(f"  v_mov_b32 {vr(vFB)}, s{sF}")
        e(f"  v_mul_u32_u24 {vr(vFA)}, 384, {vr(l)}")
        e(f"  v_add_u32 {vr(vFA)}, {W_RK}, {vr(vFA)}")
        e(f"  v_mov_b32 {vr(vFI)}, 0")
        e(f"  v_mov_b32 {vr(vFR)}, 0")
        e(f"  s_mov_b32 s{sI}, 0")
        e(f"  s_mov_b32 s{sN}, 0")
        e(f"  s_mov_b32 s{sRF}, 0")

    def ctl_init():
        if not P.ctl:
            return
        e("  s_mov_b64 exec, 0x3ffff")
        e(f"  global_store_dwordx4 {vr(vFX)}, {vr(z4, 4)}, s[{sWS}:{sWS + 1}]")
        e("  s_mov_b64 exec, -1")

    def elect():
        if not P.ctl:
            return
        e(f"  s_cmp_eq_u32 s{sNEED}, {P.r0 - 1}")
        e("  s_cbranch_scc0 L_el")
        e(f"  s_bitcmp0_b32 s{sSE}, 0")
        e("  s_cbranch_scc0 L_el")
        e("  s_mov_b64 exec, 0xffff")
        e(f"  global_load_ubyte {vr(vFX)}, {vr(vEL)}, s[{sWS}:{sWS + 1}] sc1")
        e("  s_waitcnt vmcnt(0)")
        e(f"  v_cmp_ne_u32 s[{sZ}:{sZ + 1}], 0, {vr(vFX)}")
        e(f"  s_lshr_b32 s{sT0}, s{sZ}, s{sCU}")
        e(f"  s_bcnt1_i32_b32 s{sT0}, s{sT0}")
        if P.rotl:
            pat = sum(1 << m for m in range(0, 32, P.rotl))
            assert all((pat << r) & msk for r in range(P.rotl))
            e(f"  s_sub_u32 s{sT1}, s{sT0}, 1")
            e(f"  s_cmp_lt_u32 s{sT1}, {P.rotl}")
            e("  s_cbranch_scc0 L_el")
            e(f"  s_lshl_b32 s{sRF}, {pat:#x}, s{sT1}")
            e(f"  s_and_b32 s{sRF}, s{sRF}, {msk:#x}")
            if not P.sa:
                e(f"  s_mov_b32 exec_lo, s{sRF}")
                e(f"  global_load_dword {vr(vFI)}, {vr(vFA)}, s[{sWS}:{sWS + 1}] sc1")
            e(f"  s_cmp_eq_u32 s{sT0}, {P.lx}")
            e("  s_cbranch_scc0 L_el")
        else:
            e(f"  s_cmp_eq_u32 s{sT0}, {P.lx}")
            e("  s_cbranch_scc0 L_el")
            e(f"  s_mov_b32 s{sRF}, {msk:#x}")
            e(f"  s_mov_b64 exec, {msk:#x}")
            e(f"  global_load_dword {vr(vFI)}, {vr(vFA)}, s[{sWS}:{sWS + 1}] sc1")
        if P.cpf:
            e("; pull the code that has not run yet into this die's L2")
            e("  s_mov_b64 exec, -1")
            e(f"  s_getpc_b64 s[{sZ}:{sZ + 1}]")
            e("L_pc2:")
            e(f"  s_sub_u32 s{sZ}, s{sZ}, L_pc2-L_vpre")
            e(f"  s_subb_u32 s{sZ + 1}, s{sZ + 1}, 0")
            e(f"  v_lshlrev_b32 {vr(vFX)}, 7, {vr(l)}")
            e(f"  global_load_dword {vr(rec)}, {vr(vFX)}, s[{sZ}:{sZ + 1}]")
            e(f"  v_add_u32 {vr(vFX)}, L_order-L_vpre-8192, {vr(vFX)}")
            e(f"  global_load_dword {vr(rec + 1)}, {vr(vFX)}, s[{sZ}:{sZ + 1}]")
        e("L_el:")
        e("  s_mov_b64 exec, -1")

    def patch(what):
        e(f"  s_bfe_u32 s{sT0}, s{sCN + 1}, {(4 << 16) | 8:#x}")
        e(f"  s_bfe_u32 s{sT1}, s{sCN}, {(4 << 16) | 20:#x}")
        e(f"  s_addk_i32 s{sT0}, 160")
        e(f"  s_addk_i32 s{sT1}, 80")
        for p, sh_, ex in ((5, sT0, "exec_hi"), (2, sT1, "exec_lo")):
            if what == "q":
                e(f"  s_mulk_i32 s{sh_}, 384")
                e(f"  v_lshrrev_b32 {vr(h0)}, 1, {vr(vL16)}")
                e(f"  v_add_u32 {vr(h0)}, s{sh_}, {vr(h0)}")
                qmask(1)
                e(f"  s_mov_b32 {ex}, 0")
                e(f"  global_load_dwordx2 {vr(rec + 4 * p, 2)}, {vr(h0)}, s[{sQ}:{sQ + 1}]")
                e(f"  global_load_dwordx2 {vr(rec + 4 * p + 2, 2)}, {vr(h0)}, s[{sQ}:{sQ + 1}] offset:192")
                hv.extend([("q", p)] * 2)
            else:
                e(f"  v_lshl_add_u32 {vr(h0)}, s{sh_}, 12, {vr(wb)}")
                e(f"  s_mov_b32 {ex}, 0")
                for i, sp in enumerate((sKS, sVS)):
                    e(f"  s_mov_b32 m0, {SCB + SA * i + 1024 * p}")
                    e("  s_nop 0")
                    if "s" not in P.xp:
                        e(f"  global_load_lds_dwordx4 {vr(h0)}, s[{sp}:{sp + 1}] {P.sf}")
                        hv.append(("s", p))
            qmask(0)

    def qmask(on):
        if on:
            e("  s_mov_b32 exec_lo, 0xffffff")
            e("  s_mov_b32 exec_hi, 0xffffff")
        else:
            e("  s_mov_b64 exec, -1")

    def rotate(p):
        L, Hh, LC, HS, HC, LS = x, x + 4, x + 8, x + 12, x + 16, x + 20
        qmask(1)
        if p == 0:
            hpf()
        e(f"  s_waitcnt vmcnt({hv[::-1].index(('q', p))})")
        if p == 0:
            hpf()
        for k in range(4):
            e(f"  v_lshlrev_b32 {vr(L + 2 * k)}, 16, {vr(rec + 4 * p + k)}")
            e(f"  v_and_b32 {vr(L + 2 * k + 1)}, s{sMASK}, {vr(rec + 4 * p + k)}")
        for d, q_, t_ in ((LC, L, cs), (HS, Hh, cs + 4), (HC, Hh, cs), (LS, L, cs + 4)):
            for h in (0, 2):
                e(f"  v_pk_mul_f32 {vr(d + h, 2)}, {vr(q_ + h, 2)}, {vr(t_ + h, 2)}")
        for i in range(4):
            e(f"  v_cvt_pk_bf16_f32 {vr(L + i)}, {vr(LC + i)}, {vr(HS + i)}")
            e(f"  v_cvt_pk_bf16_f32 {vr(Hh + i)}, {vr(HC + i)}, {vr(LS + i)}")
        for k in range(8):
            e(f"  v_lshlrev_b32 {vr(LC + k)}, 16, {vr(L + k)}")
            e(f"  v_and_b32 {vr(L + k)}, s{sMASK}, {vr(L + k)}")
        for h in (0, 2):
            e(f"  v_pk_add_f32 {vr(L + h, 2)}, {vr(LC + h, 2)}, {vr(L + h, 2)} neg_lo:[0,1] neg_hi:[0,1]")
            e(f"  v_pk_add_f32 {vr(Hh + h, 2)}, {vr(HS + h, 2)}, {vr(Hh + h, 2)}")
        for i in range(4):
            e(f"  v_cvt_pk_bf16_f32 {vr(LC + i)}, {vr(L + i)}, {vr(Hh + i)}")
            e(f"  v_cvt_pk_bf16_f32 {vr(HS + i)}, {vr(Hh + i)}, -{vr(L + i)}")
        e(f"  v_mov_b32 {vr(h0)}, {2 * p + 2}")
        e(f"  ds_write_b128 {vr(wa)}, {vr(LC, 4)} offset:{QB + 1536 * p}")
        e(f"  ds_write_b128 {vr(wa)}, {vr(HS, 4)} offset:{QB + 1536 * p + 384}")
        e(f"  ds_write_b32 {vr(vZ)}, {vr(h0)} offset:{FL + 16}")
        qmask(0)

    ctl_init()
    if P.ctl:
        hv.append(("c", 0))
    patch("q")
    e(f"  s_lshl_b32 s{sT0}, s{sJ}, 10")
    e(f"  s_add_u32 s{sT0}, s{sT0}, L_hpos-L_pc")
    e(f"  v_add_u32 {vr(h0)}, s{sT0}, {vr(vT16)}")
    e(f"  global_load_dwordx4 {vr(st4, 4)}, {vr(h0)}, s[{sZ}:{sZ + 1}]")
    hv.append(("h", 0))
    if P.ss == 1:
        sc_early()
    if P.ss <= 1:
        patch("s")
    rotate(0)
    hpf()
    if P.ss == 2:
        sc_early()
        patch("s")
    e("  s_waitcnt lgkmcnt(0)")
    e("  s_setprio 0")
    hpf()
    e("  s_barrier")
    hpf()
    if P.ss == 3:
        sc_early()
        patch("s")
    for p in range(1, 8):
        rotate(p)
    e(f"  v_mov_b32 {vr(vSa)}, 0")
    e(f"  v_min_u32 {vr(u)}, 47, {vr(l)}")
    e(f"  v_lshlrev_b32 {vr(vL16)}, 4, {vr(u)}")
    for i in range(4):
        e(f"  v_mov_b32 {vr(sc + i)}, 0")
    e(f"  s_mov_b32 s{sNEED}, 1")
    if P.sa and P.ctl:
        e("; workgroup g < 32 clears ranking counter g")
        e("  s_cmp_lt_u32 s2, 32")
        e("  s_cbranch_scc0 L_rc")
        e("  s_lshl_b64 exec, 1, s2")
        e(f"  global_store_dword {vr(vFA)}, {vr(vZ)}, s[{sWS}:{sWS + 1}] sc1")
        e("  s_mov_b64 exec, -1")
        e("L_rc:")
    hpf()
    e("  s_waitcnt vmcnt(0)")
    hpf()
    if P.tfine:
        e("  s_waitcnt lgkmcnt(0)")
        e(f"  v_mov_b32 {vr(h0)}, 0")
        for k in range(hpn[0]):
            e(f"  v_writelane_b32 {vr(h0)}, s{HPF[k]}, {k}")
        e(f"  s_mul_i32 s{sT0}, s2, {5 * 256}")
        e(f"  s_add_u32 s{sT0}, s{sT0}, {0x100000 + 1024}")
        e(f"  v_lshl_add_u32 {vr(h1)}, v0, 2, s{sT0}")
        e(f"  global_store_dword {vr(h1)}, {vr(h0)}, s[{sWS}:{sWS + 1}]")
    for k in range(4):
        e(f"  v_and_b32 {vr(ro + 2 * k)}, 0xffff, {vr(st4 + k)}")
        e(f"  v_lshrrev_b32 {vr(ro + 2 * k + 1)}, 16, {vr(st4 + k)}")
    for k in range(2):
        e(f"  v_add_u32 {vr(ro + 6 + k)}, {SCB}, {vr(ro + 6 + k)}")
    e("L_hk:")
    for a in range(2):
        for k in range(2):
            e(f"  ds_read_u16_d16_hi {vr(sc + 2 * a + k)}, {vr(ro + 6 + k)} offset:{SA * a}")
    progwait("hsw", P.psl)
    rank_post("s")
    for k in range(6):
        e(f"  ds_read_b32 {vr(x + 4 + k)}, {vr(ro + k)} offset:{LGB}")
    e(f"  v_mul_f32 {vr(x + 2)}, s{sSCALE}, {vr(sc)}")
    e(f"  v_mul_f32 {vr(x + 3)}, s{sSCALE}, {vr(sc + 1)}")
    e("  s_waitcnt lgkmcnt(0)")
    e(f"  v_pk_add_f32 {vr(x, 2)}, {vr(x + 4, 2)}, {vr(x + 6, 2)}")
    e(f"  v_pk_add_f32 {vr(x, 2)}, {vr(x, 2)}, {vr(x + 8, 2)}")
    e(f"  v_mul_f32 {vr(x)}, {vr(x)}, {vr(x + 2)}")
    e(f"  v_mul_f32 {vr(x + 1)}, {vr(x + 1)}, {vr(x + 3)}")
    e(f"  v_max_f32 {vr(z4)}, {vr(x)}, {vr(x + 1)}")
    allred("v_max_f32", z4, h0)
    e(f"  v_sub_f32 {vr(x)}, {vr(x)}, {vr(z4)}")
    e(f"  v_sub_f32 {vr(x + 1)}, {vr(x + 1)}, {vr(z4)}")
    e(f"  v_exp_f32 {vr(x)}, {vr(x)}")
    e(f"  v_exp_f32 {vr(x + 1)}, {vr(x + 1)}")
    e("  s_nop 0")
    e(f"  v_add_f32 {vr(z4 + 1)}, {vr(x)}, {vr(x + 1)}")
    e(f"  v_mul_f32 {vr(x)}, {vr(x)}, {vr(sc + 2)}")
    e(f"  v_mul_f32 {vr(x + 1)}, {vr(x + 1)}, {vr(sc + 3)}")
    e(f"  v_add_f32 {vr(z4 + 2)}, {vr(x)}, {vr(x + 1)}")
    for k in range(6):
        e(f"  ds_write_b32 {vr(ro + k)}, {vr(x + (k & 1))} offset:{LGB}")
    e(f"  v_mul_f32 {vr(z4 + 2)}, {f32bits(7.5):#x}, {vr(z4 + 2)}")
    allred("v_add_f32", z4 + 1, h0)
    allred("v_add_f32", z4 + 2, h0)
    e(f"  v_mov_b32 {vr(h0)}, s{sNEED}")
    e(f"  ds_write_b128 {vr(vSa)}, {vr(z4, 4)} offset:{ST}")
    e(f"  ds_write_b32 {vr(vZ)}, {vr(h0)} offset:{FL + 20}")
    e(f"  v_add_u32 {vr(vSa)}, 16, {vr(vSa)}")
    for k in range(8):
        e(f"  v_add_u32 {vr(ro + k)}, {1536 if k < 6 else SL}, {vr(ro + k)}")
    rank_take("s")
    elect()
    e(f"  s_cmp_eq_u32 s{sNEED}, 14")
    e("  s_cbranch_scc0 L_hq_skip")
    e(f"  s_cmp_eq_u32 s{sO}, 0")
    e("  s_cbranch_scc0 L_hq_skip")
    e("  s_mov_b64 exec, 7")
    e(f"  global_store_dword {vr(vCL)}, {vr(vZ)}, s[{sWS}:{sWS + 1}] sc1")
    e("  s_waitcnt vmcnt(0)")
    e("  s_mov_b64 exec, 1")
    e(f"  global_store_dword {vr(vDB)}, {vr(vOne)}, s[{sDBG}:{sDBG + 1}] sc1")
    e("  s_mov_b64 exec, -1")
    e("L_hq_skip:")
    e("  s_waitcnt lgkmcnt(0)")
    e(f"  s_add_u32 s{sNEED}, s{sNEED}, 1")
    e(f"  s_cmp_le_u32 s{sNEED}, 16")
    e("  s_cbranch_scc1 L_hk")

    e(f"  v_and_b32 {vr(h2)}, 15, {vr(l)}")
    e(f"  v_lshlrev_b32 {vr(h2)}, 1, {vr(h2)}")
    e(f"  global_load_ushort {vr(h3)}, {vr(h2)}, s[{sRT}:{sRT + 1}] offset:32")
    e(f"  s_mov_b32 s{sK}, 0")
    e(f"  v_min_u32 {vr(wa)}, 23, {vr(l)}")
    e(f"  v_lshlrev_b32 {vr(wa)}, 4, {vr(wa)}")
    e(f"  v_lshlrev_b32 {vr(h0)}, 1, {vr(wa)}")
    e(f"  v_add_u32 {vr(h0)}, {PB}, {vr(h0)}")
    e(f"  v_add_u32 {vr(wa)}, {PK}, {vr(wa)}")
    e(f"  v_lshlrev_b32 {vr(sgn)}, 4, {vr(l)}")
    e(f"  s_mul_i32 s{sT0}, s2, 6144")
    e(f"  s_add_u32 s{sT0}, s{sT0}, {W_REC}")
    e(f"  v_add_u32 {vr(sgx)}, s{sT0}, {vr(sgn)}")
    e(f"  v_add_u32 {vr(sgn)}, {PK}, {vr(sgn)}")
    e(f"  v_cmp_gt_u32 vcc, 24, {vr(l)}")
    e(f"  v_add_u32 {vr(sg2)}, 4096, {vr(sgx)}")
    e(f"  v_lshrrev_b32 {vr(u)}, 1, {vr(vL16)}")
    e(f"  s_mul_i32 s{sT0}, s{sOH}, 384")
    e(f"  s_add_u32 s{sOUT}, s{sOUT}, s{sT0}")
    e(f"  s_addc_u32 s{sOUT + 1}, s{sOUT + 1}, 0")
    e(f"  s_lshl_b32 s{sT0}, s{sO}, 4")
    e(f"  s_add_u32 s{sT0}, s{sT0}, {W_REC}")
    e(f"  v_add_u32 {vr(h1)}, {W_REC}, {vr(u)}")
    e("  s_waitcnt vmcnt(0)")
    e(f"  v_or_b32 {vr(h2)}, 15, {vr(h3)}")
    e(f"  v_mul_u32_u24 {vr(h2)}, 384, {vr(h2)}")
    e(f"  v_mul_u32_u24 {vr(h3)}, 384, {vr(h3)}")
    e(f"  v_add_u32 {vr(ra + 15)}, s{sT0}, {vr(h2)}")
    e("  s_nop 0")
    for k in range(15):
        e(f"  v_add_u32_dpp {vr(ra + k)}, {vr(h3)}, {vr(h1)} row_newbcast:{k} row_mask:0xf bank_mask:0xf")
    e(f"  s_mov_b64 s[{sX}:{sX + 1}], 0")
    e("L_hp:")
    e(f"  s_min_u32 s{sT0}, s{sO}, 13")
    e(f"  s_cmp_eq_u32 s{sT0}, s{sK}")
    e("  s_cbranch_scc0 L_hc_ok")
    e("L_hc:")
    e(f"  global_load_dword {vr(pr)}, {vr(vDB)}, s[{sDBG}:{sDBG + 1}] sc1")
    e("  s_waitcnt vmcnt(0)")
    e(f"  v_cmp_ne_u32 s[{sZ}:{sZ + 1}], 1, {vr(pr)}")
    e(f"  s_cmp_eq_u64 s[{sZ}:{sZ + 1}], 0")
    e("  s_cbranch_scc1 L_hc_ok")
    budget("L_hc_ok")
    e("  s_sleep 64")
    e("  s_branch L_hc")
    e("L_hc_ok:")
    vstep_k(sH, sK)
    e(f"  s_lshl_b32 s{sT0}, s{sH}, 4")
    e(f"  v_mov_b32 {vr(h1)}, s{sT0}")
    e(f"  s_cmp_eq_u32 s{sK}, 14")
    e("  s_cbranch_scc0 L_hp_mid")
    for k in range(6):
        e(f"  ds_read_b128 {vr(blk + 4 * k, 4)}, {vr(sgn)} offset:{1024 * k}")
    e(f"  v_subrev_u32 {vr(h2)}, 24, {vr(l)}")
    e(f"  v_and_b32 {vr(h2)}, 15, {vr(h2)}")
    e(f"  v_cmp_eq_u32 s[{sX}:{sX + 1}], s{sH}, {vr(h2)}")
    e(f"  v_lshlrev_b32 {vr(h2)}, 4, {vr(h2)}")
    e(f"  ds_read_b128 {vr(st4, 4)}, {vr(h2)} offset:{ST}")
    def bulk():
        for k in range(6):
            if k == 5:
                e("  s_mov_b64 exec, 0xffff")
            if "w" not in P.xp:
                e(f"  global_store_dwordx4 {vr(sgx if k < 4 else sg2)}, {vr(blk + 4 * k, 4)}, s[{sWS}:{sWS + 1}] offset:{1024 * (k % 4)} {P.wf}")
        e("  s_mov_b64 exec, -1")

    if P.eb:
        e("  s_waitcnt lgkmcnt(0)")
        bulk()
    if P.eprio:
        e(f"  s_setprio {P.eprio}")
    e("L_hp_mid:")
    e(f"  s_add_u32 s{sK}, s{sK}, 1")
    e(f"  s_add_u32 s{sNEED}, s{sK}, 16")
    progwait("hpw", P.psl)
    hp(0)
    rank_post("p")
    if not P.eb:
        e(f"  s_cmp_eq_u32 s{sK}, 15")
        e("  s_cbranch_scc0 L_hp_sum")
        bulk()
        e("L_hp_sum:")
    sum_partials(2)
    e(f"  v_max3_f32 {vr(h3)}, |{vr(x)}|, |{vr(x + 1)}|, |{vr(x + 2)}|")
    e(f"  v_max3_f32 {vr(h3)}, {vr(h3)}, |{vr(x + 3)}|, |{vr(x + 4)}|")
    e(f"  v_max3_f32 {vr(h3)}, {vr(h3)}, |{vr(x + 5)}|, |{vr(x + 6)}|")
    e(f"  v_max_f32_e64 {vr(h3)}, {vr(h3)}, |{vr(x + 7)}|")
    allred("v_max_f32", h3, wb)
    e(f"  v_frexp_exp_i32_f32 {vr(h3)}, {vr(h3)}")
    e(f"  v_sub_u32 {vr(wb)}, 14, {vr(h3)}")
    e(f"  v_subrev_u32 {vr(h3)}, 14, {vr(h3)}")
    for i in range(8):
        e(f"  v_ldexp_f32 {vr(x + i)}, {vr(x + i)}, {vr(wb)}")
    for i in range(4):
        e(f"  v_cvt_pk_f16_f32 {vr(fo + i)}, {vr(x + 2 * i)}, {vr(x + 2 * i + 1)}")
    e(f"  s_cmp_eq_u32 s{sK}, 15")
    e("  s_cbranch_scc1 L_hp_last")
    e(f"  ds_write_b32 {vr(h1)}, {vr(h3)} offset:{ST + 12}")
    e(f"  v_add_u32 {vr(h0)}, 3072, {vr(h0)}")
    e(f"  ds_write_b128 {vr(wa)}, {vr(fo, 4)}")
    e(f"  v_add_u32 {vr(wa)}, 384, {vr(wa)}")
    rank_take("p")
    e("  s_branch L_hp")
    e("L_hp_last:")
    e(f"  v_cndmask_b32_e64 {vr(st4 + 3)}, {vr(st4 + 3)}, {vr(h3)}, s[{sX}:{sX + 1}]")
    for i in range(4):
        e(f"  v_cndmask_b32 {vr(fo + i)}, {vr(st4 + i)}, {vr(fo + i)}, vcc")
    e("  s_mov_b32 exec_hi, 0xff")
    e(f"  global_store_dwordx4 {vr(sg2)}, {vr(fo, 4)}, s[{sWS}:{sWS + 1}] offset:{14 * 384 - 4096} sc1")
    hp(1)
    e("  s_waitcnt vmcnt(0)")
    hp(2)
    if P.nopoll:
        e("  s_branch L_hw_ok")
    if P.sh_ == 3:
        e("  s_mov_b64 exec, 7")
        e(f"  global_atomic_add {vr(vCNT)}, {vr(vOne)}, s[{sWS}:{sWS + 1}] sc1")
        e(f"  v_readlane_b32 s{sMSK}, {vr(vCNT)}, 0")
        hp(3)
        e("L_hw:")
        e(f"  s_mov_b32 s{sF}, 0")
        e(f"  s_atomic_add s{sF}, s[{sWS}:{sWS + 1}], s{sMSK} glc")
        e("  s_waitcnt lgkmcnt(0)")
        e(f"  s_cmp_ge_u32 s{sF}, 16")
        e("  s_cbranch_scc1 L_hw_ok")
        budget("L_hw_ok")
        if P.sleep:
            e(f"  s_sleep {P.sleep}")
        e("  s_branch L_hw")
    elif P.sh_:
        for k in range(3):
            e(f"  v_readlane_b32 s{sMSK + k}, {vr(vCNT)}, {k}")
            e(f"  s_mov_b32 s{sMSK + 4 + k}, 1")
        for k in range(3):
            e(f"  s_atomic_add s{sMSK + 4 + k}, s[{sWS}:{sWS + 1}], s{sMSK + k} glc")
        e(f"  s_mov_b32 s{sT0}, 15")
        hp(3)
        e("L_hw:")
        e("  s_waitcnt lgkmcnt(0)")
        e(f"  s_cmp_ge_u32 s{sMSK + 4}, s{sT0}")
        e("  s_cbranch_scc1 L_hw_ok")
        e(f"  s_mov_b32 s{sT0}, 16")
        if P.sh_ == 1:
            e(f"  s_mov_b32 s{sMSK + 4}, 0")
            e(f"  s_atomic_add s{sMSK + 4}, s[{sWS}:{sWS + 1}], s{sMSK} glc")
        else:
            e(f"  s_load_dword s{sMSK + 4}, s[{sWS}:{sWS + 1}], s{sMSK} glc")
        budget("L_hw_ok")
        e("  s_branch L_hw")
    e("  s_mov_b64 exec, 7")
    if P.pp and not P.sh_:
        e(f"  global_atomic_add {vr(qn)}, {vr(vCNT)}, {vr(vOne)}, s[{sWS}:{sWS + 1}] sc0 sc1")
        e("  s_mov_b64 exec, 1")
        for k in range(1, P.pp):
            e(f"  s_sleep {P.sleep}")
            e(f"  global_atomic_add {vr(qn + k)}, {vr(vCNT)}, {vr(vZ)}, s[{sWS}:{sWS + 1}] sc0 sc1")
        e(f"  s_mov_b32 s{sT0}, 15")
        hp(3)
        e("L_hw:")
        for k in range(P.pp):
            e(f"  s_waitcnt vmcnt({P.pp - 1})")
            e(f"  v_readfirstlane_b32 s{sF}, {vr(qn + k)}")
            e(f"  s_cmp_ge_u32 s{sF}, s{sT0}")
            e("  s_cbranch_scc1 L_hw_ok")
            e(f"  s_mov_b32 s{sT0}, 16")
            e(f"  global_atomic_add {vr(qn + k)}, {vr(vCNT)}, {vr(vZ)}, s[{sWS}:{sWS + 1}] sc0 sc1")
        budget("L_hw_ok")
        e("  s_branch L_hw")
    e("L_hw_ok:")
    hp(4)
    e("  s_mov_b64 exec, -1")
    e(f"  global_load_dwordx4 {vr(cs, 4)}, {vr(ra + 15)}, s[{sWS}:{sWS + 1}] sc1")
    for k in range(15):
        e(f"  global_load_dwordx2 {vr(rec + 2 * k, 2)}, {vr(ra + (0 if 'r' in P.xp else k))}, s[{sWS}:{sWS + 1}] sc1")
    e(f"  s_lshl_b32 s{sH}, s{sO}, 4")
    e(f"  v_mov_b32 {vr(h1)}, s{sH}")
    e(f"  v_add_u32 {vr(h0)}, {PB + 15 * 3072}, {vr(vL16)}")
    for i in range(4):
        e(f"  v_mov_b32 {vr(fo + i)}, 0")
    e("  s_waitcnt vmcnt(15)")
    hp(5)
    e(f"  v_mov_b32 {vr(h2)}, {vr(cs)}")
    rowred("v_max_f32", h2)
    e(f"  v_sub_f32 {vr(h2)}, {vr(cs)}, {vr(h2)}")
    e(f"  v_exp_f32 {vr(h2)}, {vr(h2)}")
    e("  s_nop 0")
    e(f"  v_mul_f32 {vr(h3)}, {vr(h2)}, {vr(cs + 1)}")
    rowred("v_add_f32", h3)
    e(f"  v_rcp_f32 {vr(h3)}, {vr(h3)}")
    e("  s_nop 0")
    e(f"  v_mul_f32 {vr(h2)}, {vr(h2)}, {vr(h3)}")
    e(f"  v_ldexp_f32 {vr(h3)}, {vr(h2)}, {vr(cs + 3)}")
    e(f"  v_readlane_b32 s{sMSK + 15}, {vr(h2)}, 15")
    for k in range(15):
        e(f"  v_readlane_b32 s{sMSK + k}, {vr(h3)}, {k}")
    for k in range(15):
        e(f"  s_waitcnt vmcnt({14 - k})")
        for i in range(4):
            e(f"  v_fma_mix_f32 {vr(fo + i)}, {vr(rec + 2 * k + i // 2)}, s{sMSK + k}, {vr(fo + i)} op_sel:[{i & 1},0,0] op_sel_hi:[1,0,0]")
    hp(6)
    if P.fb:
        e("  s_barrier")
    else:
        e(f"  s_mov_b32 s{sNEED}, 32")
        progwait("hfw", P.fsl)
    hp(7)
    sum_partials(1)
    for i in range(4):
        e(f"  v_fmac_f32 {vr(fo + i)}, s{sMSK + 15}, {vr(x + i)}")
    e(f"  v_cvt_pk_bf16_f32 {vr(fo)}, {vr(fo)}, {vr(fo + 1)}")
    e(f"  v_cvt_pk_bf16_f32 {vr(fo + 1)}, {vr(fo + 2)}, {vr(fo + 3)}")
    e("  s_mov_b32 exec_hi, 0xffff")
    e(f"  global_store_dwordx2 {vr(u)}, {vr(fo, 2)}, s[{sOUT}:{sOUT + 1}] {P.of}")
    if P.stamp:
        e(f"  s_memrealtime s[{sST + 2}:{sST + 3}]")
        if P.hprof:
            e("  s_waitcnt lgkmcnt(0)")
            e("  s_lshl_b32 s44, s2, 5")
            e("  s_add_u32 s44, s44, 0x80000")
            e("  v_mov_b32 v1, s44")
            for k in range(8):
                e(f"  s_sub_u32 s45, s{sST + 2}, s{HP[k]}")
                e(f"  v_mov_b32 v{4 + k}, s45")
            e(f"  global_store_dwordx4 v1, v[4:7], s[{sWS}:{sWS + 1}]")
            e(f"  global_store_dwordx4 v1, v[8:11], s[{sWS}:{sWS + 1}] offset:16")
            e("  s_nop 2")
        e("  s_getreg_b32 s6, hwreg(HW_REG_XCC_ID)")
        e("  s_getreg_b32 s7, hwreg(HW_REG_HW_ID)")
        e("  s_waitcnt lgkmcnt(0)")
        e(f"  v_mov_b32 v4, s{sST}")
        e(f"  v_mov_b32 v5, s{sST + 2}")
        e("  v_mov_b32 v6, s6")
        e("  v_mov_b32 v7, s7")
        e("  s_lshl_b32 s8, s2, 4")
        e("  v_mov_b32 v1, s8")
        e(f"  global_store_dwordx4 v1, v[4:7], s[{sWS}:{sWS + 1}]")
    e("L_end:")
    e("  s_endpgm")
    e(".p2align 6")
    e(".type L_order,@object")
    e("L_order:")
    for k in range(0, len(ordtab), 8):
        e("  .long " + ", ".join(f"{v:#x}" for v in ordtab[k:k + 8]))
    e(".type L_hpos,@object")
    e("L_hpos:")
    for b in range(2):
        at = {chunk_of(b, n, s_): lpos(n, s_) for n in range(24) for s_ in range(16)}
        rows = sorted({c // 3 for c in at})
        for l_ in range(64):
            r0, r1 = rows[l_], rows[l_ + 64]
            e("  .long " + ", ".join(f"{a_ | b_ << 16:#x}" for a_, b_ in [(at[3 * r0 + k], at[3 * r1 + k]) for k in range(3)] + [(2 * r0, 2 * r1)]))
    e('.section .rodata,"a"')
    e(".p2align 6")
    e(f".amdhsa_kernel {NAME}_kernel")
    e(f"  .amdhsa_next_free_vgpr {NV}")
    e("  .amdhsa_next_free_sgpr 100")
    e(f"  .amdhsa_accum_offset {(NV + 3) // 4 * 4}")
    e("  .amdhsa_group_segment_fixed_size 0")
    e("  .amdhsa_kernarg_size 112")
    e("  .amdhsa_user_sgpr_count 2")
    e("  .amdhsa_user_sgpr_kernarg_segment_ptr 1")
    e("  .amdhsa_system_sgpr_workgroup_id_x 1")
    e(".end_amdhsa_kernel")
    return "\n".join(o) + "\n", NV


if __name__ == "__main__":
    ap = argparse.ArgumentParser()
    ap.add_argument("-o", default=f"/code/{NAME}.s")
    for name, d in (("sh", 4), ("deep", 5), ("pd", 9), ("pre", 12), ("nf", 6), ("hi3", 99), ("leak", 2), ("tp", 2), ("rf", 3), ("rp", 2), ("rt", 26),
                    ("nl", 1), ("rotl", 7), ("lb", 0), ("s0", 0), ("su", 3), ("sp", 0), ("cpf", 1), ("lx", 4), ("hi2", 20),
                    ("streak", 0), ("dl", 8), ("sm", 1), ("pp", 3), ("eb", 0), ("inorder", 0), ("hiv", 2), ("cp", 0), ("sleep", 4),
                    ("bound", 4000000), ("ctl", 1), ("ex", 1), ("ss", 3), ("hp0", 0), ("sa", 1), ("sh_", 3), ("fb", 1),
                    ("hi", -1), ("lo", -25), ("lo2", -60), ("thr", 2), ("thr2", 1), ("start", 5), ("ba", 3),
                    ("kp", 7), ("ki", 0), ("imax", 80), ("r0", 2), ("r1", 30),
                    ("kp0", 9), ("kn", 0), ("eprio", 0), ("fsl", 0), ("psl", 1)):
        ap.add_argument("--" + name, type=int, default=d)
    ap.add_argument("--kp_", default="6,6,6,7,8,9,9,10,10,11,11,12,12", help="K loads issued by each prologue point")
    ap.add_argument("--sf", default="nt")
    ap.add_argument("--of", default="")
    ap.add_argument("--wf", default="sc1")
    ap.add_argument("--bu", default="012", help="extra depth per position in the issued group")
    ap.add_argument("--th", default="-9,5,13")
    ap.add_argument("--tx", default="000", help="exchange operations behind the oldest covered load that may stay in flight")
    ap.add_argument("--sch", default="sch_np.txt")
    ap.add_argument("--xp", default="", help="timing experiments only")
    for name in ("stamp", "trace", "tfine", "hprof", "nopoll"):
        ap.add_argument("--" + name, action="store_true", help="diagnostics only")
    a = ap.parse_args()
    txt, nv = gen(a)
    open(a.o, "w").write(txt)
    print("wrote", a.o, "vgprs", nv)
```

```python
import argparse
import math
import os
import struct
from gen import HEADER, NAME, Alloc, f32bits, vr

HB = 2048 * 768

ABOUT = """
Generated by tools/gen7.py.
Work split: workgroup (cluster c, block m, member b) handles 128 rows of the 256-row block m for 16 heads 16 k + c
  (slots k = 5 and 10 take their head from a table instead of c); the two members alternate over 32 KiB runs.
  Waves 1-4 stream one 4 KiB block per round; a 16-lane row handles one third (64 dims) of a KV row per load.
  K sweep: logit = k_scale * sum_d (qk - 7.5) * (qa * cos + qb * sin), RoPE moved onto the rotated q;
  V sweep: partial = sum_rows p * v_scale * qv.
  Wave 0 (helper) rotates q, takes max / exp / sums over the workgroup's rows of each head, and merges partials.
Constant parameters (the same for every seed) are built in: both zero points (7.5), q_cos / q_sin (table L_qcs) and
  k_cos / k_sin = bf16(cos / sin(fp32(row * inv_freq))), evaluated once per workgroup from the table L_inv into LDS.
Hand-off: every workgroup finishes one of its heads and streams that head last.  Partials and (max, sum) of
  the other 15 go to d_ws with sc1 stores, then a counted atomic; the finisher rescales all 16 to the true row maximum.
Flow control (speed only, results do not depend on it): waves publish a group counter and sample the counters of
  units on the same die; late waves keep one more load in flight, early waves one or two fewer.  Helpers rank the dies.
"""

RUN = (1, 2, 0)


def chunk_of(b, n, s):
    g = 256 * RUN[n >> 3] + 128 * b + 16 * (n & 7) + s
    return {128: 512, 255: 639, 512: 128, 639: 255}.get(g, g)


def tidx(b, row):
    return row - 43 * b - 42 * ((row >= 85) + (row >= 171))


def rev(x, bits):
    return int(format(x, f"0{bits}b")[::-1], 2)


def lpos(n, s):
    return 4 * (16 * s + rev(n, 4)) if n < 16 else 1024 + 4 * (8 * s + rev(n - 16, 3))


TN = [(RUN[n >> 3] + (n & 7)) % 3 for n in range(24)]
SPECIAL = {n: i for i, n in enumerate(sorted(8 * RUN.index(r) + i for r in (0, 2) for i in (0, 7)))}
for b_ in range(2):
    ch = sorted(chunk_of(b_, n, s) for n in range(24) for s in range(16))
    assert ch == sorted(3 * r + k for r in {c // 3 for c in ch} for k in range(3))
    assert all(chunk_of(b_, n, s) % 3 == (TN[n] + 2 * b_ + s) % 3 for n in range(24) for s in range(16))
    assert len({tidx(b_, c // 3) for c in ch}) == 128 and max(tidx(b_, c // 3) for c in ch) == 128


def gen(P):
    o = []
    e = o.append
    RING, PD = 24, P.pd
    sh, deep = P.sh, P.deep
    PRE = P.pre
    DP = P.cp + P.sp
    TP = P.tp
    CP = P.cp
    EX = P.ex
    NX = 2 if P.ctl else 0
    assert deep <= PD - 1 and sh <= deep and PD <= PRE
    SL = 512
    SA = 16 * SL

    FL = 0
    ST = 256
    TB = 512
    QB = TB + 129 * 384
    LGB = QB + 16 * 768
    SCB = LGB + 16 * 1536
    PB = SCB + 2 * SA
    PK = PB + 49152
    LDS = PK + 6144
    assert 81920 < LDS <= 163840
    W_REC = 0x400000
    W_CNT = 0x700000
    W_RK = 0x780000
    W_PL = 0x7c0000

    sQ, sQK, sKS, sKZ, sQV, sVS, sVZ, sQC = 4, 6, 8, 10, 12, 14, 16, 18
    sQS, sKC, sKSN, sOUT = 20, 22, 24, 26
    sDBG, sWS = 28, 30
    rA, rB = 32, 36
    sW, sJ, sC, sK, sT0, sT1, sF, sNEED = 40, 41, 42, 43, 44, 45, 46, 47
    sMSK = 48
    sOF = 51
    sZ = 64
    sMASK, sSCALE, sH = 66, 67, 68
    sS = 69
    sX = 70
    sRF = 80
    sRT = 82
    sST = 84
    sN = 90
    sB = 91
    sVO = 92
    sSP = 94
    sI = 95
    sSE, sCU = 81, 79
    sLO = 78
    sO = 3
    sCN = 96
    sOH, sCT = 98, 99

    va = Alloc(1)
    vT16, vF, vZ, vC16 = [va.take(1) for _ in range(4)]
    voff = va.take(7)
    vTA = va.take(7)
    vQA = va.take(3)
    vPA = va.take(3)
    vLG = va.take(2)
    vLB = va.take(2)
    vLV = va.take(2)
    A = va.take(2)
    LG = va.take(2)
    M1, M2, M3 = [va.take(1) for _ in range(3)]
    bc = va.take(2, 2)
    dacc = va.take(2, 2)
    wt = va.take(4, 2)
    vtr, vPW, vPS, vN, vSum, vSu2, vBA = [va.take(1) for _ in range(7)]
    vPL = va.take(4)
    vBI = va.take(P.nr, P.nr)
    smp = va.take(4 * P.lag, 4)
    qa = va.take(12, 4)
    tab = va.take(24, 4)
    tmp = va.take(12, 4)
    ring = va.take(4 * RING, 4)
    NV = va.n
    acc = qa

    here = os.path.dirname(os.path.abspath(__file__))
    sch = [[int(x) for x in ln.split()] for ln in open(os.path.join(here, P.sch))]
    inv, qcs = [[int(x, 16) for x in ln.split()] for ln in open(os.path.join(here, "consts.txt"))]
    cj = lambda g: (g >> 4, (g & 7) * 2 + ((g >> 3) & 1))
    ent = {g: sch[16 * cj(g)[0] + cj(g)[1]] for g in range(256)}
    cl = lambda g, k: ent[g][0] if k == 5 else ent[g][1] if k == 10 else g >> 4
    assert sorted(16 * ent[g][2] + cl(g, ent[g][2]) for g in range(256)) == list(range(256))
    ordtab = []
    for g in range(256):
        o_, od = ent[g][2], ent[g][3:]
        assert sorted(od) == list(range(16)) and od[15] == o_
        con = [x for x in range(256) if x != g and cl(x, o_) == cl(g, o_)] + [g]
        assert sorted(cj(x)[1] for x in con) == list(range(16))
        nib = sum(k << (4 * t) for t, k in enumerate(range(16) if "i" in P.xp else od))
        cn = sum((g >> 4 if "c" in P.xp else cl(g, k)) << (4 * k) for k in range(16))
        ctr = [g >> 4, 16 + cl(g, 5), 32 + cl(g, 10)]
        first = {5: 1, 10: 2}.get(o_, 0)
        ctr = [ctr[first]] + [x for i, x in enumerate(ctr) if i != first]
        u16 = [16 * x + ent[x][3:].index(o_) for x in con]
        assert all(v % 16 < 15 for v in u16[:15])
        ordtab += [nib & 0xffffffff, nib >> 32, cn & 0xffffffff, cn >> 32, 16 * o_ + cl(g, o_), ctr[0] | ctr[1] << 8 | ctr[2] << 16, o_, 0]
        ordtab += [u16[2 * i] | u16[2 * i + 1] << 16 for i in range(8)]

    def ld(n):
        rr = rA if n < 24 else rB
        n %= 24
        so = f"s{sOF + (n & 7)}" if n & 7 else "0"
        vo = voff + (3 + SPECIAL[n] if n in SPECIAL else n >> 3)
        e(f"  buffer_load_dwordx4 {vr(ring + 4 * n, 4)}, {vr(vo)}, s[{rr}:{rr + 3}], {so} offen nt")

    dist = [PRE]

    def cnt(depth, n):
        ops = loads = 0
        pos = (n + dist[0]) % len(P.bu)
        depth += int(P.bu[pos])
        while loads < depth - 1:
            if n % (3 * EX) == CP:
                ops += NX
            if P.ctl and n % 24 == 3 * P.ba + CP:
                ops += 1
            n -= 1
            loads += 1
            ops += 1
        return ops

    def toff(n):
        if P.th:
            return [int(x) for x in P.th.split(",")][(n + dist[0]) % len(P.bu)]
        return P.dl * ((n - DP) % 3 - 1)

    LAG = P.lag
    SW = deep + max(int(x) for x in P.bu) > 3 * LAG * EX

    def swait(a):
        return 3 * LAG * EX + (LAG - 1) * NX + ((a - P.ba) % 8 < LAG * EX)

    first = {}
    drain = {}

    def verify():
        ops = [("L", i) for i in range(PRE)]
        done = 1
        for g in range(24 * 32):
            n = g % 24
            tail = g + PD >= 24 * 32
            skip = 384 <= g < 384 + PRE - PD
            dist[0] = PRE if g < 384 else PD
            if not tail and not skip:
                if P.ctl and n == 3 * P.ba + CP:
                    ops.append(("X", 0))
                if n % (3 * EX) == CP:
                    if P.ctl and SW:
                        done = max(done, len(ops) - swait(n // 3))
                    ops += [("X", 0)] * (NX if P.inorder else max(0, NX - 1))
            if g + PD == 24 * 32:
                drain["in"] = len(ops) - 1 - ops.index(("L", g))
                done = max(done, len(ops) - drain["in"])
            assert ("L", g) in ops[:done], g
            if tail:
                if n < 23:
                    drain[n] = len(ops) - 1 - ops.index(("L", g + 1))
                    done = max(done, len(ops) - drain[n])
                continue
            if skip:
                first[n] = len(ops) - 1 - ops.index(("L", g + 1))
                done = max(done, len(ops) - first[n])
                continue
            done = max(done, len(ops) - cnt(deep + (P.hi3 < 99 and (n + PD) % 3 == 0 and g >= 3 * P.start) if (g >= 3 * (P.start // EX * EX) or (g >= DP and P.s0 > P.hi + toff(n))) else sh, n))
            ops.append(("L", g + (PRE if g < 384 else PD)))
    verify()
    dist[0] = PRE
    lab = [0]

    def pace(n, hi):
        if P.ctl:
            lab[0] += 1
            top = P.hi3 < 99 and (n + PD) % 3 == 0
            if top:
                boost(hi + P.hi3)
                e(f"  s_cbranch_scc1 L_r{lab[0]}")
            if deep > sh + 1:
                boost(P.hi2)
                e(f"  s_cbranch_scc1 L_q{lab[0]}")
            boost(hi + toff(n))
            e(f"  s_cbranch_scc1 L_p{lab[0]}")
            e(f"  s_waitcnt vmcnt({cnt(sh, n)})")
            e(f"L_p{lab[0]}:")
            if deep > sh + 1:
                e(f"  s_waitcnt vmcnt({cnt(sh + 1, n)})")
                e(f"L_q{lab[0]}:")
            e(f"  s_waitcnt vmcnt({cnt(deep, n)})")
            if top:
                e(f"L_r{lab[0]}:")
                e(f"  s_waitcnt vmcnt({cnt(deep + 1, n)})")
        else:
            e(f"  s_waitcnt vmcnt({cnt(sh, n)})")

    def control(a):
        if not P.ctl:
            return
        if a == P.ba:
            e("  s_mov_b64 exec, 1")
            e(f"  global_load_dwordx{P.nr} {vr(vBI, P.nr)}, {vr(vBA)}, s[{sWS}:{sWS + 1}] sc1")
            e("  s_mov_b64 exec, -1")
        if a % EX == 0:
            sm = smp + 4 * ((a // EX) % LAG)
            if SW:
                e(f"  s_waitcnt vmcnt({swait(a)})")
            if a == (P.ba + LAG * EX + EX - 1) // EX * EX % 8:
                e(f"  v_add_u32 {vr(vSum)}, {vr(vBI)}, {vr(vBI + 1)}")
                if P.nr == 4:
                    e(f"  v_add3_u32 {vr(vSum)}, {vr(vBI + 2)}, {vr(vBI + 3)}, {vr(vSum)}")
                    e(f"  v_ashrrev_i32 {vr(vSum)}, 2, {vr(vSum)}")
                e("  s_nop 0")
                e(f"  v_readfirstlane_b32 s{sB}, {vr(vSum)}")
            e(f"  s_add_u32 s{sT0}, s{sLO}, 0x03030303")
            e(f"  v_msad_u8 {vr(vSum)}, s{sLO}, {vr(sm)}, 0")
            e(f"  v_msad_u8 {vr(vSu2)}, s{sT0}, {vr(sm)}, 0")
            for k in range(1, 3):
                e(f"  v_msad_u8 {vr(vSum)}, s{sLO}, {vr(sm + k)}, {vr(vSum)}")
                e(f"  v_msad_u8 {vr(vSu2)}, s{sT0}, {vr(sm + k)}, {vr(vSu2)}")
            e(f"  v_sub_u32 {vr(vSum)}, {vr(vSum)}, {vr(vSu2)}")
            e(f"  v_mov_b32 {vr(vN)}, s{sN}")
            e(f"  s_add_u32 s{sLO}, s{sLO}, 0x01010101")
            if P.nl > 1:
                e(f"  v_add_u32_dpp {vr(vSum)}, {vr(vSum)}, {vr(vSum)} quad_perm:[2,3,0,1] row_mask:0xf bank_mask:0xf")
                e(f"  s_nop {1 if P.nl > 2 else 0}")
            if P.nl > 2:
                e(f"  v_add_u32_dpp {vr(vSum)}, {vr(vSum)}, {vr(vSum)} row_shl:4 row_mask:0xf bank_mask:0xf")
                e("  s_nop 0")
            e(f"  v_readlane_b32 s{sMASK}, {vr(vSum)}, 0")
            e(f"  v_readlane_b32 s{sSCALE}, {vr(vSum)}, 1")
            e("  s_mov_b64 exec, 1")
            e(f"  global_store_byte {vr(vPS)}, {vr(vN)}, s[{sWS}:{sWS + 1}]")
            e(f"  s_mov_b64 exec, {(1 << (2 * P.nl)) - 1}")
            e(f"  global_load_dwordx3 {vr(sm, 3)}, {vr(vPL + (a // EX) % 4)}, s[{sWS}:{sWS + 1}] sc1")
            e("  s_mov_b64 exec, -1")

    def decide(a):
        if not P.ctl:
            return
        if a % EX == 0:
            e(f"  s_add_u32 s{sS}, s{sMASK}, s{sSCALE}")
            if P.sm > 1:
                e(f"  s_ashr_i32 s{sT0}, s{sI}, {P.sm - 1}")
                e(f"  s_sub_u32 s{sI}, s{sI}, s{sT0}")
                e(f"  s_add_u32 s{sI}, s{sI}, s{sS}")
                e(f"  s_ashr_i32 s{sS}, s{sI}, {P.sm - 1}")
            elif P.sm:
                e(f"  s_add_u32 s{sT0}, s{sS}, s{sI}")
                e(f"  s_mov_b32 s{sI}, s{sS}")
                e(f"  s_ashr_i32 s{sS}, s{sT0}, {1 + P.nl // 2}")
            elif P.nl > 1:
                e(f"  s_ashr_i32 s{sS}, s{sS}, {P.nl // 2}")
            e(f"  s_add_u32 s{sS}, s{sS}, s{sB}")
            e(f"  s_cmp_lt_u32 s{sN}, {P.start // EX}")
            e(f"  s_cselect_b32 s{sS}, {P.s0}, s{sS}")
            if P.sm > 1:
                e(f"  s_cselect_b32 s{sI}, 0, s{sI}")
            e(f"  s_add_u32 s{sN}, s{sN}, 1")

    def throttle(a):
        if not P.ctl or P.lo <= -60 or (3 * a + TP + dist[0]) % len(P.bu) < len(P.bu) - 3:
            return
        lab[0] += 1
        e(f"  s_cmp_lt_i32 s{sS}, {P.lo}")
        e(f"  s_cbranch_scc0 L_t{lab[0]}")
        e(f"  s_waitcnt vmcnt({cnt(P.thr + 1, 3 * a + TP)})")
        if P.lo2 > -60:
            e(f"  s_cmp_lt_i32 s{sS}, {P.lo2}")
            e(f"  s_cbranch_scc0 L_t{lab[0]}")
            e(f"  s_waitcnt vmcnt({cnt(P.thr2 + 1, 3 * a + TP)})")
        e(f"L_t{lab[0]}:")

    def boost(hi):
        if P.ctl:
            assert hi >= P.lo
            e(f"  s_cmp_gt_i32 s{sS}, {hi}")

    def srd_head(rr, sp, sh_):
        e(f"  s_mul_i32 s{sT0}, s{sh_}, {HB}")
        e(f"  s_add_u32 s{rr}, s{sp}, s{sT0}")
        e(f"  s_addc_u32 s{rr + 1}, s{sp + 1}, 0")

    def vstep_k(dst, src):
        e(f"  s_lshl_b32 s{dst}, s{src}, 2")
        e(f"  s_lshr_b64 s[{sZ}:{sZ + 1}], s[{sVO}:{sVO + 1}], s{dst}")
        e(f"  s_and_b32 s{dst}, s{sZ}, 15")

    def head_of(dst, slot):
        e(f"  s_lshl_b32 s{sT0}, s{slot}, 2")
        e(f"  s_lshr_b64 s[{sZ}:{sZ + 1}], s[{sCN}:{sCN + 1}], s{sT0}")
        e(f"  s_and_b32 s{sZ}, s{sZ}, 15")
        e(f"  s_lshl4_add_u32 s{dst}, s{slot}, s{sZ}")

    def budget(ok):
        e(f"  s_cmp_eq_u32 s{sSP}, 0")
        e(f"  s_cbranch_scc1 {ok}")
        e(f"  s_sub_u32 s{sSP}, s{sSP}, 1")

    def flagwait(name, off):
        e(f"L_{name}:")
        e("  s_waitcnt lgkmcnt(0)")
        e(f"  v_readfirstlane_b32 s{sF}, {vr(vF)}")
        e(f"  s_cmp_ge_u32 s{sF}, s{sNEED}")
        e(f"  s_cbranch_scc1 L_{name}_ok")
        budget(f"L_{name}_ok")
        e(f"  ds_read_b32 {vr(vF)}, {vr(vZ)} offset:{off}")
        e(f"  s_branch L_{name}")
        e(f"L_{name}_ok:")

    def tr():
        if P.trace:
            e(f"  {'s_memtime' if 'm' in P.xp else 's_memrealtime'} s[88:89]")
            e("  s_waitcnt lgkmcnt(0)")
            e(f"  v_writelane_b32 {vr(vtr)}, s88, m0")
            e("  s_add_u32 m0, m0, 1")
            e("  s_min_u32 m0, m0, 63")

    def die_base(dst):
        e(f"  s_getreg_b32 s{sSE}, hwreg(HW_REG_HW_ID, 8, 7)")
        e(f"  s_getreg_b32 s{dst}, hwreg(HW_REG_XCC_ID, 0, 3)")
        e(f"  s_and_b32 s{sCU}, s{sSE}, 15")
        e(f"  s_lshr_b32 s{sSE}, s{sSE}, 5")
        e(f"  s_mul_i32 s{dst}, s{dst}, 4352")
        e(f"  s_add_u32 s{dst}, s{dst}, {W_PL}")

    ha = Alloc(16)
    l, u, h0, h1, h2, h3 = [ha.take(1) for _ in range(6)]
    qo, wa, wb, sgn, sgx, sg2 = [ha.take(1) for _ in range(6)]
    ro = ha.take(8)
    vL16, vCNT, vDB, vOne, vFA, vFI, vFR, vFX, vFB, vEL, vCL, vSa = [ha.take(1) for _ in range(12)]
    z4 = ha.take(4, 4)
    cs = ha.take(8, 4)
    sc = ha.take(4, 4)
    qn = ha.take(4, 4)
    x = ha.take(32, 4)
    pr = ha.take(4, 4)
    fo = ha.take(4, 4)
    rec = ha.take(32, 4)
    blk = ha.take(24, 4)
    st4 = ha.take(4, 4)
    ra = ha.take(16)
    assert ha.n <= NV and vZ < 16

    invX, invY, tK, tA, tN, tO = tmp, tmp + 4, tmp + 8, tab, tab + 4, tab + 8
    PC0 = 20 + 8 * P.stamp
    D_INV, D_QCS, D_END = 256, 768, 1152
    NF = P.nf
    assert RUN[0] == 1 and NF <= 8
    e(HEADER.rstrip("\n"))
    e(f"; @launch grid=(256,1,1) block=(320,1,1) lds={LDS}")
    for ln in ABOUT.strip("\n").split("\n"):
        e("; " + ln)
    e('.amdgcn_target "amdgcn-amd-amdhsa--gfx950"')
    e(".text")
    e(f".globl {NAME}_kernel")
    e(".p2align 8")
    e(f".type {NAME}_kernel,@function")
    e(f"{NAME}_kernel:")
    e("  s_cmpk_ge_u32 s2, 0x100")
    e("  s_cbranch_scc1 L_end")
    if P.stamp:
        e(f"  s_memrealtime s[{sST}:{sST + 1}]")
    e("  s_load_dwordx16 s[4:19], s[0:1], 0")
    e(f"  s_getpc_b64 s[{sZ}:{sZ + 1}]")
    e("L_pc:")
    e("  v_cmp_gt_u32 vcc, 64, v0")
    e(f"  v_lshlrev_b32 {vr(vT16)}, 4, v0")
    e(f"  s_lshr_b32 s{sC}, s2, 4")
    e(f"  s_and_b32 s{sH}, s2, 7")
    e(f"  s_lshl3_add_u32 s{sH}, s{sC}, s{sH}")
    e(f"  s_movk_i32 s{sNEED}, 768")
    e("  s_cbranch_vccz L_s0")
    e(f"  v_lshl_add_u32 {vr(h0)}, s{sC}, 10, {vr(vT16)}")
    e(f"  global_load_dword {vr(h3)}, {vr(h0)}, s[{sZ}:{sZ + 1}] offset:{D_END - PC0}")
    e(f"  v_and_b32 {vr(vL16)}, 0x1f0, {vr(vT16)}")
    e(f"  global_load_dwordx4 {vr(pr, 4)}, {vr(vL16)}, s[{sZ}:{sZ + 1}] offset:{D_QCS - PC0}")
    e("  s_branch L_helper")
    e("L_s0:")
    e(f"  v_and_b32 {vr(vC16)}, 0xf0, {vr(vT16)}")
    e(f"  global_load_dwordx4 {vr(invX, 4)}, {vr(vC16)}, s[{sZ}:{sZ + 1}] offset:{D_INV - PC0}")
    e(f"  global_load_dwordx4 {vr(invY, 4)}, {vr(vC16)}, s[{sZ}:{sZ + 1}] offset:{D_INV + 256 - PC0}")
    e(f"  s_mul_i32 s{sT0}, s{sH}, 196608")
    e(f"  s_and_b32 s{sT1}, s2, 8")
    e(f"  s_lshl_b32 s{sT1}, s{sT1}, 12")
    e(f"  s_add_u32 s{sT0}, s{sT0}, s{sT1}")
    e(f"  s_add_u32 s{sT0}, s{sT0}, {65536 * RUN[0] - 1024 + 4096}")
    e(f"  v_add_u32 {vr(tA)}, s{sT0}, {vr(vT16)}")
    for k in range(1, (NF + 1) // 2):
        e(f"  v_add_u32 {vr(tA + k)}, {8192 * k}, {vr(tA)}")
    e("  s_waitcnt lgkmcnt(0)")
    for n in range(NF):
        e(f"  global_load_dwordx4 {vr(ring + 4 * n, 4)}, {vr(tA + n // 2)}, s[{sQK}:{sQK + 1}] offset:{4096 * (n % 2) - 4096} nt")
    e("  s_branch L_s1")
    e("L_b0:")
    e(f".if (L_b0 - {NAME}_kernel > {D_INV}) || (L_pc - {NAME}_kernel != {PC0})")
    e('.error "entry block layout"')
    e(".endif")
    e(".p2align 8")
    e(".type L_inv,@object")
    e("L_inv:")
    tb = inv[:64] + inv[64:] + inv[64:]
    for k in range(0, 128, 8):
        e("  .long " + ", ".join(f"{v:#x}" for v in tb[k:k + 8]))
    e(".type L_qcs,@object")
    e("L_qcs:")
    for k in range(0, 96, 8):
        e("  .long " + ", ".join(f"{v:#x}" for v in qcs[k:k + 8]))

    def common():
        e(f"  s_load_dwordx8 s[24:31], s[0:1], 80")
        e(f"  s_lshl_b32 s{sT0}, s2, 6")
        e(f"  s_add_u32 s{sT0}, s{sT0}, L_order-L_pc")
        e(f"  s_add_u32 s{sRT}, s{sZ}, s{sT0}")
        e(f"  s_addc_u32 s{sRT + 1}, s{sZ + 1}, 0")
        e(f"  s_load_dwordx2 s[{sVO}:{sVO + 1}], s[{sRT}:{sRT + 1}], 0")
        e(f"  s_load_dwordx2 s[{sCN}:{sCN + 1}], s[{sRT}:{sRT + 1}], 8")
        e(f"  v_mov_b32 {vr(vZ)}, 0")
        e(f"  s_mov_b32 s{sSP}, {P.bound}")
        e(f"  s_bfe_u32 s{sJ}, s2, 0x10003")

    PFR = [8, 10, 14, 16, 18, 20, 22, 72, 74, 76, 4, 86]
    pfn = [0]

    def pf():
        if P.tfine:
            e(f"  {'s_memtime' if 'm' in P.xp else 's_memrealtime'} s[{PFR[pfn[0]]}:{PFR[pfn[0]] + 1}]")
            pfn[0] += 1

    e("L_s1:")
    w_, s_, vAD, vC8, t0, t1 = wt, wt + 1, wt + 2, wt + 3, dacc, dacc + 1
    vRF, pos = vT16, tK + 3
    if P.trace:
        e(f"  v_mov_b32 {vr(vtr)}, 0")
        e("  s_mov_b32 m0, 0")
    pf()
    e("  v_subrev_u32 v0, 64, v0")
    e("  s_setprio 1")
    common()
    e(f"  v_lshrrev_b32 {vr(w_)}, 6, v0")
    e(f"  v_lshrrev_b32 {vr(s_)}, 4, v0")
    e(f"  v_and_b32 {vr(vC8)}, 0x70, {vr(vC16)}")
    e(f"  v_readfirstlane_b32 s{sW}, {vr(w_)}")
    e(f"  v_add_u32 {vr(vAD)}, {vr(vC8)}, {vr(s_)}")
    e(f"  s_mul_i32 s{sT0}, s{sJ}, 44")
    e(f"  s_sub_u32 s{sT0}, 86, s{sT0}")
    e(f"  v_cmp_eq_u32 vcc, s{sT0}, {vr(vAD)}")
    e(f"  v_mov_b32 {vr(t0)}, 0x80")
    e(f"  s_and_b32 s{sH}, s2, 7")
    e(f"  v_cndmask_b32 {vr(vAD)}, {vr(vAD)}, {vr(t0)}, vcc")
    e(f"  v_mul_u32_u24 {vr(t0)}, 381, {vr(vAD)}")
    e(f"  s_mul_i32 s{sT0}, s{sJ}, 43")
    e(f"  v_add_u32 {vr(t0)}, 2, {vr(t0)}")
    e(f"  s_lshl_b32 s{sT1}, s{sH}, 8")
    e(f"  v_lshrrev_b32 {vr(t0)}, 14, {vr(t0)}")
    assert all((381 * i + 2) >> 14 == (i >= 43) + (i >= 86) for i in range(129))
    e(f"  s_add_u32 s{sT0}, s{sT0}, s{sT1}")
    e(f"  v_mad_u32_u24 {vr(t0)}, {vr(t0)}, 42, {vr(vAD)}")
    e(f"  v_add_u32 {vr(t0)}, s{sT0}, {vr(t0)}")
    e(f"  v_cvt_f32_u32 {vr(vRF)}, {vr(t0)}")
    e(f"  v_mul_u32_u24 {vr(vAD)}, 384, {vr(vAD)}")
    e(f"  s_mov_b32 s{rA + 2}, {HB}")
    e(f"  s_mov_b32 s{rA + 3}, 0x20000")
    srd_head(rA, sQK, sC)
    e(f"  s_mul_i32 s{sT0}, s{sH}, 6")
    e(f"  s_add_u32 s{sT0}, s{sT0}, s{sJ}")
    e(f"  s_lshl_b32 s{sT0}, s{sT0}, 15")
    e(f"  v_lshl_add_u32 {vr(voff + RUN.index(0))}, v0, 4, s{sT0}")
    for k in (1, 2):
        e(f"  v_add_u32 {vr(voff + RUN.index(k))}, {65536 * k:#x}, {vr(voff + RUN.index(0))}")
    for i in range(1, 8):
        e(f"  s_movk_i32 s{sOF + i}, {4096 * i}")
    nk = [NF]
    assert PRE <= RING and (PRE - PD) % (3 * EX) == 0 and max(int(v) for v in P.kp_.split(",")[:P.su + 1]) <= min(SPECIAL)

    def k_loads(hi):
        while nk[0] < min(hi, PRE):
            ld(nk[0])
            nk[0] += 1

    def toff_(n):
        run = RUN[n >> 3]
        return 384 * (16 * (((n & 7) + run) // 3) + 38 * run)

    def setup():
        e("; per chunk class k: q operand, table and partial addresses")
        e(f"  s_lshl1_add_u32 s{sF}, s{sJ}, s{sW}")
        e(f"  s_lshl_b32 s{sF}, s{sF}, 1")
        e(f"  s_lshr_b32 s{sF}, 0x4924, s{sF}")
        e(f"  v_bfe_u32 {vr(t1)}, v0, 4, 2")
        e(f"  v_lshl_add_u32 {vr(t1)}, {vr(t1)}, 2, {vr(vC16)}")
        e(f"  v_mad_u32_u24 {vr(vF)}, {vr(w_)}, s{sNEED}, {vr(t1)}")
        e(f"  v_add_u32 {vr(vF)}, {PB}, {vr(vF)}")
        e(f"  s_mul_i32 s{sT1}, s{sJ}, {43 * 384}")
        e(f"  s_sub_u32 s{sT1}, {TB}, s{sT1}")
        e(f"  v_lshl_add_u32 {vr(vSum)}, s{sJ}, 7, {vr(s_)}")
        for k in range(3):
            e(f"  s_bfe_u32 s{sT0}, s{sF}, {(2 << 16) | 2 * k:#x}")
            e(f"  v_lshl_add_u32 {vr(vPA + k)}, s{sT0}, 8, {vr(vF)}")
            if k:
                e(f"  v_add_u32 {vr(vSum)}, 16, {vr(vSum)}")
            e(f"  v_mul_u32_u24 {vr(t0)}, 171, {vr(vSum)}")
            e(f"  v_lshrrev_b32 {vr(t0)}, 9, {vr(t0)}")
            e(f"  v_mad_i32_i24 {vr(t1)}, {vr(t0)}, -3, {vr(vSum)}")
            e(f"  v_lshl_add_u32 {vr(t1)}, {vr(t1)}, 8, {vr(vC16)}")
            e(f"  v_add_u32 {vr(vQA + k)}, {QB}, {vr(t1)}")
            e(f"  v_subrev_u32 {vr(vSu2)}, 384, {vr(t1)}")
            e(f"  v_min_u32 {vr(t1)}, {vr(t1)}, {vr(vSu2)}")
            e(f"  v_mul_u32_u24 {vr(t0)}, 384, {vr(t0)}")
            e(f"  v_add3_u32 {vr(vTA + k)}, {vr(t0)}, {vr(t1)}, s{sT1}")
        e(f"  v_lshl_add_u32 {vr(vSum)}, s{sJ}, 4, {vr(s_)}")
        for n, i in SPECIAL.items():
            run, sx = RUN[n >> 3], 15 * (n & 7 == 7)
            b = int(run == 0)
            g0, g1 = 256 * run + 128 * b + 16 * (n & 7) + sx, chunk_of(b, n, sx)
            dt = 384 * (tidx(b, g1 // 3) - (g0 // 3 - 43 * b - 42 * run))
            e(f"  v_cmp_eq_u32 vcc, {16 * b + sx}, {vr(vSum)}")
            e(f"  v_add_u32 {vr(t0)}, {256 * (g1 - g0) & 0xffffffff:#x}, {vr(voff + (n >> 3))}")
            e(f"  v_add_u32 {vr(t1)}, {toff_(n)}, {vr(vTA + TN[n])}")
            e(f"  v_add_u32 {vr(vSu2)}, {dt & 0xffffffff:#x}, {vr(t1)}")
            e(f"  v_cndmask_b32 {vr(voff + 3 + i)}, {vr(voff + (n >> 3))}, {vr(t0)}, vcc")
            e(f"  v_cndmask_b32 {vr(vTA + 3 + i)}, {vr(t1)}, {vr(vSu2)}, vcc")
        e(f"  v_lshlrev_b32 {vr(vLB)}, 2, v0")
        e(f"  v_add_u32 {vr(vLB)}, {LGB}, {vr(vLB)}")
        e(f"  v_lshrrev_b32 {vr(t1)}, 1, v0")
        e(f"  v_lshlrev_b32 {vr(t1)}, 2, {vr(t1)}")
        e(f"  v_add_u32 {vr(vLB + 1)}, {LGB + 1024}, {vr(t1)}")
        e(f"  v_mov_b32 {vr(vLG)}, {vr(vLB)}")
        e(f"  v_mov_b32 {vr(vLG + 1)}, {vr(vLB + 1)}")
        e(f"  v_lshlrev_b32 {vr(vPW)}, 2, {vr(w_)}")
        e(f"  s_mov_b32 s{sMSK}, 0xcccccccc")
        e(f"  s_mov_b32 s{sMSK + 1}, s{sMSK}")
        e(f"  s_mov_b32 s{sMSK + 2}, 0xaaaaaaaa")
        e(f"  s_mov_b32 s{sMSK + 3}, s{sMSK + 2}")
        e(f"  s_mov_b32 s{rB + 2}, {HB}")
        e(f"  s_mov_b32 s{rB + 3}, 0x20000")
        e(f"  s_mov_b32 s{sK}, 0")
        if P.ctl:
            e("; progress slots: this wave writes one byte of line (half, w) and samples the lines of the other half")
            die_base(sF)
            e(f"  s_add_u32 s{sT0}, s{sF}, 2048")
            e(f"  v_mov_b32 {vr(vBA)}, s{sT0}")
            e(f"  s_and_b32 s{sT1}, s{sSE}, 2")
            e(f"  s_lshl_b32 s{sT1}, s{sT1}, 9")
            e(f"  s_lshl_b32 s{sT0}, s{sW}, 8")
            e(f"  s_add_u32 s{sT0}, s{sT0}, s{sT1}")
            e(f"  s_add_u32 s{sT0}, s{sT0}, s{sF}")
            e(f"  s_add_u32 s{sT0}, s{sT0}, s{sCU}")
            e(f"  s_and_b32 s{sSE}, s{sSE}, 1")
            e(f"  s_lshl_b32 s{sSE}, s{sSE}, 4")
            e(f"  s_add_u32 s{sT0}, s{sT0}, s{sSE}")
            e(f"  v_mov_b32 {vr(vPS)}, s{sT0}")
            e(f"  s_xor_b32 s{sT1}, s{sT1}, 1024")
            e(f"  s_add_u32 s{sF}, s{sF}, s{sT1}")
            e(f"  v_and_b32 {vr(vN)}, 1, v0")
            e(f"  v_lshl_add_u32 {vr(vN)}, {vr(vN)}, 4, s{sF}")
            e(f"  v_bfe_u32 {vr(t1)}, v0, 1, 2")
            e(f"  v_mad_u32_u24 {vr(t1)}, {vr(t1)}, {4 // P.nl}, {vr(w_)}")
            for k in range(4):
                e(f"  v_add_u32 {vr(vSum)}, {k}, {vr(t1)}")
                e(f"  v_and_b32 {vr(vSum)}, 3, {vr(vSum)}")
                e(f"  v_lshl_add_u32 {vr(vPL + k)}, {vr(vSum)}, 8, {vr(vN)}")
            e(f"  s_mov_b32 s{sLO}, {(-(LAG + 2) * 0x01010101) & 0xffffffff:#x}")
            for k in range(4 * LAG):
                e(f"  v_mov_b32 {vr(smp + k)}, 0")
            for k in range(P.nr):
                e(f"  v_mov_b32 {vr(vBI + k)}, 0")
            e(f"  s_mov_b32 s{sN}, 0")
            e(f"  s_mov_b32 s{sB}, 0")
            e(f"  s_mov_b32 s{sS}, {P.lo}")
            e(f"  s_mov_b32 s{sI}, 0")
        e(f"  s_add_u32 s{sF}, s{sC}, 16")
        srd_head(rB, sQK, sF)

    def sincos(dst, iv):
        for h in (0, 2):
            e(f"  v_pk_mul_f32 {vr(tA + h, 2)}, {vr(iv + h, 2)}, {vr(tK + 2, 2)} op_sel:[0,1] op_sel_hi:[1,1]")
        if iv == invY:
            for h in (0, 2):
                e(f"  v_pk_mul_f32 {vr(tN + h, 2)}, {vr(tA + h, 2)}, {vr(tK, 2)} op_sel_hi:[1,0]")
        else:
            for h in (0, 2):
                e(f"  v_pk_fma_f32 {vr(tN + h, 2)}, {vr(tA + h, 2)}, {vr(tK, 2)}, {vr(tK, 2)} op_sel:[0,0,1] op_sel_hi:[1,0,1]")
            for h in (0, 2):
                e(f"  v_pk_add_f32 {vr(tN + h, 2)}, {vr(tN + h, 2)}, {vr(tK, 2)} op_sel:[0,1] op_sel_hi:[1,1] neg_lo:[0,1] neg_hi:[0,1]")
            for h in (0, 2):
                e(f"  v_pk_fma_f32 {vr(tN + h, 2)}, {vr(tA + h, 2)}, {vr(tK, 2)}, {vr(tN + h, 2)} op_sel_hi:[1,0,1] neg_lo:[0,0,1] neg_hi:[0,0,1]")
            for h in (0, 2):
                e(f"  v_pk_fma_f32 {vr(tN + h, 2)}, {vr(tA + h, 2)}, {vr(tK + 2, 2)}, {vr(tN + h, 2)} op_sel_hi:[1,0,1]")
        for i in range(4):
            e(f"  v_cos_f32 {vr(tA + i)}, {vr(tN + i)}")
        for i in range(4):
            e(f"  v_sin_f32 {vr(tN + i)}, {vr(tN + i)}")
        for i in range(4):
            e(f"  v_cvt_pk_bf16_f32 {vr(dst + i)}, {vr(tA + i)}, {vr(tN + i)}")

    kp = [int(v) for v in P.kp_.split(",")]

    def chunk(i):
        a = 2 * (i // 3)
        d = tO + 4 * (i & 1)
        bc_ = lambda x, m: f"row_newbcast:{x} row_mask:0xf bank_mask:{m:#x}"
        if i % 3 == 1:
            e(f"  v_mov_b32_dpp {vr(pos)}, {vr(vRF)} {bc_(a + 1, 12)}")
            e(f"  v_add_u32_dpp {vr(vF)}, {vr(vAD)}, {vr(vC8)} {bc_(a, 3)}")
            e(f"  v_add_u32_dpp {vr(vF)}, {vr(vAD)}, {vr(vC8)} {bc_(a + 1, 12)}")
            sincos(d, invY)
            e(f"  ds_write_b128 {vr(vF)}, {vr(d, 4)} offset:{TB + 256}")
        else:
            a += i % 3 // 2
            e(f"  v_mov_b32_dpp {vr(pos)}, {vr(vRF)} {bc_(a, 15)}")
            e(f"  v_add_u32_dpp {vr(vF)}, {vr(vAD)}, {vr(vC16)} {bc_(a, 15)}")
            sincos(d, invX)
            e(f"  ds_write_b128 {vr(vF)}, {vr(d, 4)} offset:{TB}")

    def tab_read(a):
        for n in range(3 * a, 3 * a + 3):
            d = tab + 12 * (a & 1) + 4 * (n % 3)
            if n in SPECIAL:
                e(f"  ds_read_b128 {vr(d, 4)}, {vr(vTA + 3 + SPECIAL[n])}")
            else:
                e(f"  ds_read_b128 {vr(d, 4)}, {vr(vTA + TN[n])} offset:{toff_(n)}")

    c_hi = f32bits(1 / (2 * math.pi))
    c_lo = f32bits(1 / (2 * math.pi) - struct.unpack("<f", struct.pack("<I", c_hi))[0])
    e(f"  v_mov_b32 {vr(tK)}, {c_hi:#x}")
    e(f"  v_mov_b32 {vr(tK + 1)}, {f32bits(1.5 * 2 ** 23):#x}")
    e(f"  v_mov_b32 {vr(tK + 2)}, {c_lo:#x}")
    k_loads(kp[0])
    pf()
    e(f"  s_waitcnt vmcnt({nk[0]})")
    pf()
    for i in range(12):
        if i == P.su:
            setup()
            pf()
        chunk(i)
        k_loads(kp[i + 1])
        if i % 3 == 2:
            pf()
    k_loads(PRE)
    e(f"  v_mov_b32 {vr(bc)}, {f32bits(-7.5):#x}")
    e("  s_waitcnt lgkmcnt(0)")
    e("  s_barrier")
    pf()
    e("  s_mov_b64 vcc, 0")
    for k in range(3):
        e(f"  ds_read_b128 {vr(qa + 4 * k, 4)}, {vr(vQA + k)}")
    tab_read(0)
    e(f"  s_waitcnt vmcnt({PRE - 1})")
    pf()
    if P.tfine:
        e("  s_waitcnt lgkmcnt(0)")
        for k in range(pfn[0]):
            e(f"  v_writelane_b32 {vr(vtr)}, s{PFR[k]}, {k}")
        e(f"  s_mov_b32 m0, {pfn[0]}")

    def vfirst():
        e(f"  s_and_b32 s{sH}, s{sVO}, 15")
        e(f"  s_add_u32 s{sNEED}, s{sH}, 1")
        e(f"  ds_read_b32 {vr(vF)}, {vr(vZ)} offset:{FL + 20}")
        flagwait("a0", FL + 20)
        e(f"  s_mulk_i32 s{sH}, 1536")
        for k in range(2):
            e(f"  v_add_u32 {vr(vLV + k)}, s{sH}, {vr(vLB + k)}")
        e(f"  ds_read_b32 {vr(A)}, {vr(vLV)}")

    assert all(x[3] < 14 for x in sch)

    def kred(n):
        dpp = lambda d, x, how, m: e(f"  v_add_f32_dpp {vr(d)}, {vr(x)}, {vr(x)} {how} row_mask:0xf bank_mask:{m:#x}")
        dpp(M1, dacc, "row_ror:8", 12 if n & 1 else 3)
        if n % 2 == 1:
            e("  s_nop 1")
            dpp(M2, M1, "row_half_mirror", 10 if n & 2 else 5)
        if n % 4 == 3:
            e("  s_nop 1")
            dpp(M2 if n & 4 else M3, M2, "quad_perm:[2,3,0,1]", 15)
        if n % 8 == 7:
            e(f"  v_cndmask_b32_e64 {vr(M3)}, {vr(M3)}, {vr(M2)}, s[{sMSK}:{sMSK + 1}]")
            e("  s_nop 1")
            dpp((LG, M3, LG + 1)[n >> 3], M3, "quad_perm:[1,0,3,2]", 15)
        if n == 15:
            e(f"  v_cndmask_b32_e64 {vr(LG)}, {vr(LG)}, {vr(M3)}, s[{sMSK + 2}:{sMSK + 3}]")

    e(".p2align 6")
    e("L_k:")
    e(f"  s_add_u32 s{sT0}, s{sK}, 2")
    e(f"  s_min_u32 s{sNEED}, s{sT0}, 16")
    for k in range(3):
        e(f"  v_add_u32 {vr(vQA + k)}, 768, {vr(vQA + k)}")
    for a in range(8):
        if a == 7:
            flagwait("qn", FL + 16)
        else:
            e("  s_waitcnt lgkmcnt(0)")
        tab_read((a + 1) % 8)
        if a == 6:
            e(f"  ds_read_b32 {vr(vF)}, {vr(vZ)} offset:{FL + 16}")
        if a == P.ev and P.ev:
            e(f"  s_cmp_eq_u32 s{sK}, 15")
            e("  s_cbranch_scc0 L_kv")
            vfirst()
            e("L_kv:")
        for j in range(3):
            if j == CP:
                control(a)
            if j == DP:
                decide(a)
            n = 3 * a + j
            k_ = ring + 4 * n
            q_ = qa + 4 * TN[n]
            for i in range(4):
                e(f"  v_dot2_f32_bf16 {vr(wt + i)}, {vr(tab + 12 * (a & 1) + 4 * j + i)}, {vr(q_ + i)}, 0")
            for i in range(4):
                e(f"  v_cvt_f32_i32 {vr(k_ + i)}, {vr(k_ + i)}")
            if a == 7:
                e(f"  ds_read_b128 {vr(q_, 4)}, {vr(vQA + TN[n])}")
            for h in range(2):
                e(f"  v_pk_add_f32 {vr(k_ + 2 * h, 2)}, {vr(k_ + 2 * h, 2)}, {vr(bc, 2)} op_sel_hi:[1,0]")
            e(f"  v_pk_mul_f32 {vr(dacc, 2)}, {vr(k_, 2)}, {vr(wt, 2)}")
            e(f"  v_pk_fma_f32 {vr(dacc, 2)}, {vr(k_ + 2, 2)}, {vr(wt + 2, 2)}, {vr(dacc, 2)}")
            e(f"  v_add_f32 {vr(dacc)}, {vr(dacc)}, {vr(dacc + 1)}")
            if j == TP:
                throttle(a)
            pace(n, P.hi)
            ld(n + PRE)
            kred(n)
        if a in (3, 7) or P.tfine:
            tr()
    assert sorted(TN[21:]) == [0, 1, 2] and sorted(TN[:3]) == [0, 1, 2]
    e(f"  s_add_u32 s{sK}, s{sK}, 1")
    e(f"  v_mov_b32 {vr(vF)}, s{sK}")
    for k in range(2):
        e(f"  ds_write_b32 {vr(vLG + k)}, {vr(LG + k)}")
    e(f"  ds_write_b32 {vr(vPW)}, {vr(vF)} offset:{FL}")
    for k in range(2):
        e(f"  v_add_u32 {vr(vLG + k)}, 1536, {vr(vLG + k)}")
    e(f"  s_mov_b64 s[{rA}:{rA + 1}], s[{rB}:{rB + 1}]")
    e(f"  s_add_u32 s{sH}, s{sK}, 1")
    e(f"  s_sub_u32 s{sT1}, s{sH}, 16")
    vstep_k(sF, sT1)
    e(f"  s_cmp_lt_u32 s{sH}, 16")
    e(f"  s_cselect_b32 s{sH}, s{sH}, s{sF}")
    e(f"  s_cselect_b32 s{sX}, s{sQK}, s{sQV}")
    e(f"  s_cselect_b32 s{sX + 1}, s{sQK + 1}, s{sQV + 1}")
    head_of(sH, sH)
    srd_head(rB, sX, sH)
    e(f"  s_cmp_lt_u32 s{sK}, 16")
    e("  s_cbranch_scc1 L_k")

    e("L_vpre:")
    dist[0] = PD
    e(f"  s_mov_b32 s{sK}, 0")
    if not P.ev:
        vfirst()
    e(".p2align 6")
    e("L_v:")
    e(f"  s_add_u32 s{sT1}, s{sK}, 1")
    e(f"  s_min_u32 s{sT1}, s{sT1}, 15")
    vstep_k(sH, sT1)
    e(f"  s_add_u32 s{sNEED}, s{sH}, 1")
    e(f"  s_mulk_i32 s{sH}, 1536")
    e("  s_waitcnt lgkmcnt(0)")
    e(f"  ds_read_b32 {vr(A + 1)}, {vr(vLV + 1)}")
    for k in range(2):
        e(f"  v_add_u32 {vr(vLV + k)}, s{sH}, {vr(vLB + k)}")
    for a in range(8):
        if a == 5:
            e("  s_waitcnt lgkmcnt(0)")
            e(f"  ds_read_b32 {vr(vF)}, {vr(vZ)} offset:{FL + 20}")
        if a == 6:
            flagwait("an", FL + 20)
            e(f"  ds_read_b32 {vr(A)}, {vr(vLV)}")
        for j in range(3):
            n = 3 * a + j
            if n + PD == 24:
                e("  s_cbranch_vccz L_in")
                e(f"  s_waitcnt vmcnt({drain['in']})")
                e("L_in:")
            if j in (CP, DP):
                if n + PD >= 24:
                    e(f"  s_cbranch_vccnz L_c{n}")
                if n < PRE - PD:
                    e(f"  s_cmp_eq_u32 s{sK}, 0")
                    e(f"  s_cbranch_scc1 L_c{n}")
                if j == CP:
                    control(a)
                if j == DP:
                    decide(a)
                if n + PD >= 24 or n < PRE - PD:
                    e(f"L_c{n}:")
            v_ = ring + 4 * n
            e(f"  v_mov_b32_dpp {vr(bc)}, {vr(A + n // 16)} row_newbcast:{rev(n % 16, 4)} row_mask:0xf bank_mask:0xf")
            for i in range(4):
                e(f"  v_cvt_f32_i32 {vr(v_ + i)}, {vr(v_ + i)}")
            for h in range(2):
                d = acc + 4 * TN[n] + 2 * h
                if a == 0:
                    e(f"  v_pk_mul_f32 {vr(d, 2)}, {vr(v_ + 2 * h, 2)}, {vr(bc, 2)} op_sel_hi:[1,0]")
                else:
                    e(f"  v_pk_fma_f32 {vr(d, 2)}, {vr(v_ + 2 * h, 2)}, {vr(bc, 2)}, {vr(d, 2)} op_sel_hi:[1,0,1]")
            if n + PD >= 24:
                e(f"  s_cbranch_vccz L_f{n}")
                if n < 23:
                    e(f"  s_waitcnt vmcnt({drain[n]})")
                e(f"  s_branch L_g{n}")
                e(f"L_f{n}:")
            if n < PRE - PD:
                e(f"  s_cmp_eq_u32 s{sK}, 0")
                e(f"  s_cbranch_scc0 L_f{n}")
                e(f"  s_waitcnt vmcnt({first[n]})")
                e(f"  s_branch L_g{n}")
                e(f"L_f{n}:")
            if j == TP:
                throttle(a)
            pace(n, P.hiv)
            ld(n + PD)
            if n + PD >= 24 or n < PRE - PD:
                e(f"L_g{n}:")
        if a in (3, 7):
            tr()
    e(f"  s_add_u32 s{sK}, s{sK}, 1")
    for j in range(3):
        e(f"  v_permlane32_swap_b32 {vr(acc + 4 * j)}, {vr(acc + 4 * j + 2)}")
        e(f"  v_permlane32_swap_b32 {vr(acc + 4 * j + 1)}, {vr(acc + 4 * j + 3)}")
    for j in range(3):
        e(f"  v_add_f32 {vr(acc + 4 * j)}, {vr(acc + 4 * j)}, {vr(acc + 4 * ((j + 1) % 3) + 2)}")
        e(f"  v_add_f32 {vr(acc + 4 * j + 1)}, {vr(acc + 4 * j + 1)}, {vr(acc + 4 * ((j + 1) % 3) + 3)}")
    e(f"  s_add_u32 s{sT0}, s{sK}, 16")
    e(f"  s_cmp_eq_u32 s{sK}, 15")
    e("  s_cselect_b64 vcc, -1, 0")
    if P.lb:
        e(f"  s_cselect_b32 s{sT1}, {P.lb}, 0")
        e(f"  s_add_u32 s{sB}, s{sB}, s{sT1}")
    e(f"  v_mov_b32 {vr(vF)}, s{sT0}")
    for j in range(3):
        e(f"  v_permlane16_swap_b32 {vr(acc + 4 * j)}, {vr(acc + 4 * j + 1)}")
    for j in range(3):
        e(f"  v_add_f32 {vr(acc + 4 * j)}, {vr(acc + 4 * j)}, {vr(acc + 4 * ((j + 2) % 3) + 1)}")
    for j in range(3):
        e(f"  ds_write_b32 {vr(vPA + j)}, {vr(acc + 4 * j)}")
    e(f"  ds_write_b32 {vr(vPW)}, {vr(vF)} offset:{FL}")
    for j in range(3):
        e(f"  v_add_u32 {vr(vPA + j)}, 3072, {vr(vPA + j)}")
    e(f"  s_mov_b64 s[{rA}:{rA + 1}], s[{rB}:{rB + 1}]")
    e(f"  s_add_u32 s{sT1}, s{sK}, 1")
    e(f"  s_min_u32 s{sT1}, s{sT1}, 15")
    vstep_k(sH, sT1)
    head_of(sH, sH)
    srd_head(rB, sQV, sH)
    e(f"  s_cmp_lt_u32 s{sK}, 16")
    e("  s_cbranch_scc1 L_v")
    if P.fb:
        e("  s_waitcnt lgkmcnt(0)")
        e("  s_barrier")
    if P.trace:
        e(f"  s_mul_i32 s8, s2, {5 * 256}")
        e("  s_add_u32 s8, s8, 0x100000")
        e(f"  v_lshl_add_u32 {vr(t0)}, v0, 2, s8")
        e(f"  global_store_dword {vr(t0)}, {vr(vtr)}, s[{sWS}:{sWS + 1}]")
    e("  s_endpgm")

    HP = [20, 22, 24, 8, 34, 36, 38, 72]
    NL = P.nr
    ms = [m for m in range(P.r0, P.r1 + 1) if m < P.rf or m > P.rt or (m - P.r0) % P.rp == 0]
    msk = sum(1 << m for m in ms)

    def hp(k):
        if P.hprof:
            e(f"  s_memrealtime s[{HP[k]}:{HP[k] + 1}]")

    def progwait(name, slp):
        e(f"L_{name}:")
        e(f"  ds_read_b128 {vr(pr, 4)}, {vr(vZ)} offset:{FL}")
        e("  s_waitcnt lgkmcnt(0)")
        e(f"  v_min_u32 {vr(pr)}, {vr(pr)}, {vr(pr + 1)}")
        e(f"  v_min3_u32 {vr(pr)}, {vr(pr)}, {vr(pr + 2)}, {vr(pr + 3)}")
        e("  s_nop 0")
        e(f"  v_readfirstlane_b32 s{sF}, {vr(pr)}")
        e(f"  s_cmp_ge_u32 s{sF}, s{sNEED}")
        e(f"  s_cbranch_scc1 L_{name}_ok")
        budget(f"L_{name}_ok")
        if slp:
            e(f"  s_sleep {slp}")
        e(f"  s_branch L_{name}")
        e(f"L_{name}_ok:")

    def rowred(op, v):
        for n in (8, 4, 2, 1):
            e("  s_nop 1")
            e(f"  {op}_dpp {vr(v)}, {vr(v)}, {vr(v)} row_ror:{n} row_mask:0xf bank_mask:0xf")

    def allred(op, v, t):
        rowred(op, v)
        for sw in ("v_permlane16_swap_b32", "v_permlane32_swap_b32"):
            e(f"  v_mov_b32 {vr(t)}, {vr(v)}")
            e("  s_nop 1")
            e(f"  {sw} {vr(v)}, {vr(t)}")
            e(f"  {op} {vr(v)}, {vr(v)}, {vr(t)}")

    def sum_partials(nq):
        w = 4 * nq
        for k in range(4):
            for q in range(nq):
                e(f"  ds_read_b128 {vr(x + w * k + 4 * q, 4)}, {vr(h0)} offset:{768 * k + 16 * q}")
        e(f"  ds_read_b128 {vr(z4, 4)}, {vr(h1)} offset:{ST}")
        e("  s_waitcnt lgkmcnt(0)")
        for h in range(0, w, 2):
            e(f"  v_pk_add_f32 {vr(x + h, 2)}, {vr(x + h, 2)}, {vr(x + w + h, 2)}")
            e(f"  v_pk_add_f32 {vr(x + 2 * w + h, 2)}, {vr(x + 2 * w + h, 2)}, {vr(x + 3 * w + h, 2)}")
        for h in range(0, w, 2):
            e(f"  v_pk_add_f32 {vr(x + h, 2)}, {vr(x + h, 2)}, {vr(x + 2 * w + h, 2)}")
        for h in range(0, w, 2):
            e(f"  v_pk_add_f32 {vr(x + h, 2)}, {vr(x + h, 2)}, {vr(z4 + 2, 2)} op_sel_hi:[1,0] neg_lo:[0,1] neg_hi:[0,1]")

    def warm(tag):
        if not P.tw:
            return
        e(f"  s_add_u32 s{sX}, s{sNEED}, {P.tw}")
        if P.tl:
            e(f"  s_cmp_eq_u32 s{sX}, 31")
        else:
            e(f"  s_cmp_lt_u32 s{sX}, 32")
        e(f"  s_cbranch_scc0 L_tw{tag}")
        e(f"  s_sub_u32 s{sT1}, s{sX}, 16")
        vstep_k(sF, sT1)
        e(f"  s_cmp_lt_u32 s{sX}, 16")
        e(f"  s_cselect_b32 s{sF}, s{sX}, s{sF}")
        e(f"  s_cselect_b32 s{rB}, s{sQK}, s{sQV}")
        e(f"  s_cselect_b32 s{rB + 1}, s{sQK + 1}, s{sQV + 1}")
        head_of(sF, sF)
        e(f"  s_and_b32 s{sT1}, s2, 7")
        e(f"  s_lshl3_add_u32 s{sF}, s{sF}, s{sT1}")
        e(f"  s_mul_i32 s{sF}, s{sF}, 6")
        e(f"  s_add_u32 s{sF}, s{sF}, s{sJ}")
        e(f"  s_add_u32 s{sF}, s{sF}, 2")
        e(f"  s_lshl_b32 s{sF}, s{sF}, 15")
        if P.tv:
            e(f"  v_mov_b32 {vr(vFR)}, s{sF}")
            e("  s_mov_b64 exec, 1")
            e(f"  global_load_dword {vr(vFI)}, {vr(vFR)}, s[{rB}:{rB + 1}]")
            e("  s_mov_b64 exec, -1")
        else:
            e(f"  s_load_dword s{sF}, s[{rB}:{rB + 1}], s{sF}")
            e("  s_waitcnt lgkmcnt(0)")
        e(f"L_tw{tag}:")

    def rank_post(tag):
        if not (P.ctl and NL):
            return
        e(f"  s_bitcmp1_b32 s{sRF}, s{sNEED}")
        e(f"  s_cbranch_scc0 L_fa{tag}")
        if P.sa:
            e(f"  s_mul_i32 s{sT0}, s{sNEED}, 384")
            e(f"  s_add_u32 s{sT0}, s{sT0}, {W_RK}")
            e(f"  s_mov_b32 s{sB}, 1")
            e(f"  s_atomic_add s{sB}, s[{sWS}:{sWS + 1}], s{sT0} glc")
        e(f"  s_lshl_b64 exec, 1, s{sNEED}")
        if not P.sa:
            e(f"  global_atomic_add {vr(vFR)}, {vr(vFA)}, {vr(vOne)}, s[{sWS}:{sWS + 1}] sc0 sc1")
        if P.ki:
            e(f"  global_load_dword {vr(vEL)}, {vr(vFB)}, s[{sWS}:{sWS + 1}] offset:8 sc1")
        e("  s_mov_b64 exec, -1")
        e(f"L_fa{tag}:")

    def rank_take(tag):
        if not (P.ctl and NL):
            return
        e(f"  s_bitcmp1_b32 s{sRF}, s{sNEED}")
        e(f"  s_cbranch_scc0 L_fb{tag}")
        e("  s_waitcnt vmcnt(0) lgkmcnt(0)")
        if P.sa:
            e(f"  s_min_u32 s{sF}, s{sB}, {8 * NL - 1}")
        else:
            e(f"  v_sub_u32 {vr(vFX)}, {vr(vFR)}, {vr(vFI)}")
            e("  s_nop 0")
            e(f"  v_readlane_b32 s{sF}, {vr(vFX)}, s{sNEED}")
            e(f"  s_min_u32 s{sF}, s{sF}, {8 * NL - 1}")
        e(f"  s_lshl_b32 s{sF}, s{sF}, 1")
        e(f"  s_sub_u32 s{sF}, s{sF}, {8 * NL - 1}")
        if P.ki:
            e(f"  v_readlane_b32 s{sI}, {vr(vEL)}, s{sNEED}")
            e(f"  s_mul_i32 s{sT1}, s{sF}, {P.ki}")
            e(f"  s_ashr_i32 s{sT0}, s{sI}, {P.leak}")
            e(f"  s_sub_u32 s{sI}, s{sI}, s{sT0}")
            if P.streak:
                e(f"  s_mul_i32 s{sT0}, s{sI}, s{sF}")
                e(f"  s_cmp_lt_i32 s{sT0}, 0")
                e(f"  s_cselect_b32 s{sI}, 0, s{sI}")
            e(f"  s_add_u32 s{sT1}, s{sT1}, s{sI}")
            e(f"  v_mov_b32 {vr(vEL)}, s{sT1}")
        e(f"  s_cmp_le_u32 s{sNEED}, {P.kn}")
        e(f"  s_cselect_b32 s{sT0}, {P.kp0}, {P.kp}")
        e(f"  s_mul_i32 s{sF}, s{sF}, s{sT0}")
        e(f"  s_add_u32 s{sF}, s{sF}, s{sI}")
        e(f"  s_add_u32 s{sF}, s{sF}, 8")
        e(f"  s_ashr_i32 s{sF}, s{sF}, 4")
        e(f"  v_mov_b32 {vr(vFX)}, s{sF}")
        e("  s_mov_b64 exec, 1")
        e(f"  global_store_dword {vr(vFB)}, {vr(vFX)}, s[{sWS}:{sWS + 1}]")
        if P.ki:
            e(f"  global_store_dword {vr(vFB)}, {vr(vEL)}, s[{sWS}:{sWS + 1}] offset:8")
        e("  s_mov_b64 exec, -1")
        e(f"L_fb{tag}:")

    HPF = [10, 16, 18, 20, 22, 72, 74, 76, 60, 62]
    hpn = [0]

    def hpf():
        if P.tfine:
            e(f"  s_memrealtime s[{HPF[hpn[0]]}:{HPF[hpn[0]] + 1}]")
            hpn[0] += 1

    e("L_helper:")
    e(f"  s_setprio {P.hp0}")
    e(f"  v_and_b32 {vr(h1)}, 32, v0")
    e(f"  v_lshrrev_b32 {vr(h1)}, 1, {vr(h1)}")
    e(f"  v_add_u32 {vr(sg2)}, s{sC}, {vr(h1)}")
    e(f"  v_mad_u32_u24 {vr(ra)}, {vr(sg2)}, s{sNEED}, {vr(vL16)}")
    e(f"  v_lshrrev_b32 {vr(ra)}, 1, {vr(ra)}")
    hv = []

    def half(p, full):
        if p in (2, 3):
            e(f"  s_mov_b32 exec_hi, {0 if p == 2 else full}")
        if p in (5, 6):
            e(f"  s_mov_b32 exec_lo, {0 if p == 5 else full}")

    def sc_early():
        e(f"  s_and_b32 s{sT1}, s2, 7")
        e(f"  v_lshl_add_u32 {vr(wb)}, s{sT1}, 9, {vr(vL16)}")
        e(f"  v_lshl_add_u32 {vr(ra)}, {vr(sg2)}, 12, {vr(wb)}")
        for p in range(1, 8):
            e(f"  v_add_u32 {vr(ra + p)}, {0x20000 * p:#x}, {vr(ra)}")
        for p in range(8):
            half(p, -1)
            for i, sp in enumerate((sKS, sVS)):
                e(f"  s_mov_b32 m0, {SCB + SA * i + 1024 * p}")
                e("  s_nop 0")
                if "s" not in P.xp:
                    e(f"  global_load_lds_dwordx4 {vr(ra + p)}, s[{sp}:{sp + 1}] {P.sf}")
                    hv.append(("s", p))

    for p in range(1, 8):
        e(f"  v_add_u32 {vr(ra + p)}, {12288 * p}, {vr(ra)}")
    e("  s_mov_b32 exec_lo, 0xffffff")
    e("  s_mov_b32 exec_hi, 0xffffff")
    e("  s_waitcnt lgkmcnt(0)")
    hpf()
    for p in range(8):
        half(p, "0xffffff")
        e(f"  global_load_dwordx2 {vr(rec + 4 * p, 2)}, {vr(ra + p)}, s[{sQ}:{sQ + 1}]")
        e(f"  global_load_dwordx2 {vr(rec + 4 * p + 2, 2)}, {vr(ra + p)}, s[{sQ}:{sQ + 1}] offset:192")
        hv.extend([("q", p)] * 2)
    e("  s_mov_b64 exec, -1")
    hpf()
    if P.ss == 0:
        sc_early()
    common()
    e(f"  s_load_dword s{sO}, s[{sRT}:{sRT + 1}], 24")
    e(f"  s_load_dwordx2 s[{sOH}:{sOH + 1}], s[{sRT}:{sRT + 1}], 16")
    e(f"  v_mov_b32 {vr(l)}, v0")
    for i in range(4):
        e(f"  v_mov_b32 {vr(z4 + i)}, 0")
    e(f"  ds_write_b128 {vr(vZ)}, {vr(z4, 4)} offset:{FL}")
    e(f"  ds_write_b128 {vr(vZ)}, {vr(z4, 4)} offset:{FL + 16}")
    e(f"  s_mov_b32 s{sMASK}, 0xffff0000")
    e(f"  s_mov_b32 s{sSCALE}, {f32bits(math.log2(math.e) / math.sqrt(192.0)):#x}")
    e(f"  v_mad_u32_u24 {vr(wa)}, {vr(h1)}, 48, {vr(vL16)}")
    e(f"  v_mov_b32 {vr(vOne)}, 1")
    e(f"  s_waitcnt vmcnt({len(hv)})")
    for k in range(4):
        e(f"  v_lshlrev_b32 {vr(cs + k)}, 16, {vr(pr + k)}")
        e(f"  v_and_b32 {vr(cs + 4 + k)}, s{sMASK}, {vr(pr + k)}")
    e("  s_waitcnt lgkmcnt(0)")
    hpf()
    e(f"  v_min_u32 {vr(h0)}, 2, {vr(l)}")
    e(f"  v_lshlrev_b32 {vr(h1)}, 3, {vr(h0)}")
    e(f"  v_bfe_u32 {vr(h1)}, s{sCT}, {vr(h1)}, 8")
    e(f"  v_mul_u32_u24 {vr(vCNT)}, 4352, {vr(h1)}")
    e(f"  v_add_u32 {vr(vCNT)}, {W_CNT}, {vr(vCNT)}")
    e(f"  v_and_b32 {vr(h1)}, 15, {vr(h1)}")
    e(f"  v_lshlrev_b32 {vr(vDB)}, 4, {vr(h1)}")
    e(f"  v_lshl_add_u32 {vr(h0)}, {vr(h0)}, 4, s{sC}")
    e(f"  v_mul_u32_u24 {vr(vCL)}, 4352, {vr(h0)}")
    e(f"  v_add_u32 {vr(vCL)}, {W_CNT}, {vr(vCL)}")
    if P.ctl:
        die_base(sF)
        e(f"  v_lshrrev_b32 {vr(h0)}, 1, {vr(l)}")
        e(f"  v_lshl_add_u32 {vr(vFX)}, {vr(h0)}, 8, s{sF}")
        e(f"  v_and_b32 {vr(h0)}, 1, {vr(l)}")
        e(f"  v_lshl_add_u32 {vr(vFX)}, {vr(h0)}, 4, {vr(vFX)}")
        e(f"  s_and_b32 s{sT1}, s{sSE}, 2")
        e(f"  s_lshl_b32 s{sT0}, s{sT1}, 9")
        e(f"  s_add_u32 s{sT0}, s{sT0}, s{sF}")
        if NL == 4:
            e(f"  s_and_b32 s{sT1}, s{sSE}, 1")
            e(f"  s_lshl4_add_u32 s{sT0}, s{sT1}, s{sT0}")
            e(f"  s_lshl_b32 s{sT1}, s{sSE}, 1")
        e(f"  v_add_u32 {vr(vEL)}, s{sT0}, {vr(l)}")
        e(f"  s_lshl_b32 s{sT1}, s{sT1}, 1")
        e(f"  s_add_u32 s{sF}, s{sF}, s{sT1}")
        e(f"  s_add_u32 s{sF}, s{sF}, 2048")
        e(f"  v_mov_b32 {vr(vFB)}, s{sF}")
        e(f"  v_mul_u32_u24 {vr(vFA)}, 384, {vr(l)}")
        e(f"  v_add_u32 {vr(vFA)}, {W_RK}, {vr(vFA)}")
        e(f"  v_mov_b32 {vr(vFI)}, 0")
        e(f"  v_mov_b32 {vr(vFR)}, 0")
        e(f"  s_mov_b32 s{sI}, 0")
        e(f"  s_mov_b32 s{sN}, 0")
        e(f"  s_mov_b32 s{sRF}, 0")

    def ctl_init():
        if not P.ctl:
            return
        e("  s_mov_b64 exec, 0x3ffff")
        e(f"  global_store_dwordx4 {vr(vFX)}, {vr(z4, 4)}, s[{sWS}:{sWS + 1}]")
        e("  s_mov_b64 exec, -1")

    def elect():
        if not P.ctl:
            return
        e(f"  s_cmp_eq_u32 s{sNEED}, {P.r0 - 1}")
        e("  s_cbranch_scc0 L_el")
        if NL == 2:
            e(f"  s_bitcmp0_b32 s{sSE}, 0")
            e("  s_cbranch_scc0 L_el")
        e("  s_mov_b64 exec, 0xffff")
        e(f"  global_load_ubyte {vr(vFX)}, {vr(vEL)}, s[{sWS}:{sWS + 1}] sc1")
        e("  s_waitcnt vmcnt(0)")
        e(f"  v_cmp_ne_u32 s[{sZ}:{sZ + 1}], 0, {vr(vFX)}")
        e(f"  s_lshr_b32 s{sT0}, s{sZ}, s{sCU}")
        e(f"  s_bcnt1_i32_b32 s{sT0}, s{sT0}")
        if P.rotl:
            pat = sum(1 << m for m in range(0, 32, P.rotl))
            assert all((pat << r) & msk for r in range(P.rotl))
            e(f"  s_sub_u32 s{sT1}, s{sT0}, 1")
            e(f"  s_cmp_lt_u32 s{sT1}, {P.rotl}")
            e("  s_cbranch_scc0 L_el")
            e(f"  s_lshl_b32 s{sRF}, {pat:#x}, s{sT1}")
            e(f"  s_and_b32 s{sRF}, s{sRF}, {msk:#x}")
            if not P.sa:
                e(f"  s_mov_b32 exec_lo, s{sRF}")
                e(f"  global_load_dword {vr(vFI)}, {vr(vFA)}, s[{sWS}:{sWS + 1}] sc1")
            e(f"  s_cmp_eq_u32 s{sT0}, {P.lx}")
            e("  s_cbranch_scc0 L_el")
        else:
            e(f"  s_cmp_eq_u32 s{sT0}, {P.lx}")
            e("  s_cbranch_scc0 L_el")
            e(f"  s_mov_b32 s{sRF}, {msk:#x}")
            e(f"  s_mov_b64 exec, {msk:#x}")
            e(f"  global_load_dword {vr(vFI)}, {vr(vFA)}, s[{sWS}:{sWS + 1}] sc1")
        if P.cpf:
            e("; pull the code that has not run yet into this die's L2")
            e("  s_mov_b64 exec, -1")
            e(f"  s_getpc_b64 s[{sZ}:{sZ + 1}]")
            e("L_pc2:")
            e(f"  s_sub_u32 s{sZ}, s{sZ}, L_pc2-L_vpre")
            e(f"  s_subb_u32 s{sZ + 1}, s{sZ + 1}, 0")
            e(f"  v_lshlrev_b32 {vr(vFX)}, 7, {vr(l)}")
            e(f"  global_load_dword {vr(rec)}, {vr(vFX)}, s[{sZ}:{sZ + 1}]")
            e(f"  v_add_u32 {vr(vFX)}, L_order-L_vpre-8192, {vr(vFX)}")
            e(f"  global_load_dword {vr(rec + 1)}, {vr(vFX)}, s[{sZ}:{sZ + 1}]")
        e("L_el:")
        e("  s_mov_b64 exec, -1")

    def patch(what):
        e(f"  s_bfe_u32 s{sT0}, s{sCN + 1}, {(4 << 16) | 8:#x}")
        e(f"  s_bfe_u32 s{sT1}, s{sCN}, {(4 << 16) | 20:#x}")
        e(f"  s_addk_i32 s{sT0}, 160")
        e(f"  s_addk_i32 s{sT1}, 80")
        for p, sh_, ex in ((5, sT0, "exec_hi"), (2, sT1, "exec_lo")):
            if what == "q":
                e(f"  s_mulk_i32 s{sh_}, 384")
                e(f"  v_lshrrev_b32 {vr(h0)}, 1, {vr(vL16)}")
                e(f"  v_add_u32 {vr(h0)}, s{sh_}, {vr(h0)}")
                qmask(1)
                e(f"  s_mov_b32 {ex}, 0")
                e(f"  global_load_dwordx2 {vr(rec + 4 * p, 2)}, {vr(h0)}, s[{sQ}:{sQ + 1}]")
                e(f"  global_load_dwordx2 {vr(rec + 4 * p + 2, 2)}, {vr(h0)}, s[{sQ}:{sQ + 1}] offset:192")
                hv.extend([("q", p)] * 2)
            else:
                e(f"  v_lshl_add_u32 {vr(h0)}, s{sh_}, 12, {vr(wb)}")
                e(f"  s_mov_b32 {ex}, 0")
                for i, sp in enumerate((sKS, sVS)):
                    e(f"  s_mov_b32 m0, {SCB + SA * i + 1024 * p}")
                    e("  s_nop 0")
                    if "s" not in P.xp:
                        e(f"  global_load_lds_dwordx4 {vr(h0)}, s[{sp}:{sp + 1}] {P.sf}")
                        hv.append(("s", p))
            qmask(0)

    def qmask(on):
        if on:
            e("  s_mov_b32 exec_lo, 0xffffff")
            e("  s_mov_b32 exec_hi, 0xffffff")
        else:
            e("  s_mov_b64 exec, -1")

    def rotate(p):
        L, Hh, LC, HS, HC, LS = x, x + 4, x + 8, x + 12, x + 16, x + 20
        qmask(1)
        if p == 0:
            hpf()
        e(f"  s_waitcnt vmcnt({hv[::-1].index(('q', p))})")
        if p == 0:
            hpf()
        for k in range(4):
            e(f"  v_lshlrev_b32 {vr(L + 2 * k)}, 16, {vr(rec + 4 * p + k)}")
            e(f"  v_and_b32 {vr(L + 2 * k + 1)}, s{sMASK}, {vr(rec + 4 * p + k)}")
        for d, q_, t_ in ((LC, L, cs), (HS, Hh, cs + 4), (HC, Hh, cs), (LS, L, cs + 4)):
            for h in (0, 2):
                e(f"  v_pk_mul_f32 {vr(d + h, 2)}, {vr(q_ + h, 2)}, {vr(t_ + h, 2)}")
        for i in range(4):
            e(f"  v_cvt_pk_bf16_f32 {vr(L + i)}, {vr(LC + i)}, {vr(HS + i)}")
            e(f"  v_cvt_pk_bf16_f32 {vr(Hh + i)}, {vr(HC + i)}, {vr(LS + i)}")
        for k in range(8):
            e(f"  v_lshlrev_b32 {vr(LC + k)}, 16, {vr(L + k)}")
            e(f"  v_and_b32 {vr(L + k)}, s{sMASK}, {vr(L + k)}")
        for h in (0, 2):
            e(f"  v_pk_add_f32 {vr(L + h, 2)}, {vr(LC + h, 2)}, {vr(L + h, 2)} neg_lo:[0,1] neg_hi:[0,1]")
            e(f"  v_pk_add_f32 {vr(Hh + h, 2)}, {vr(HS + h, 2)}, {vr(Hh + h, 2)}")
        for i in range(4):
            e(f"  v_cvt_pk_bf16_f32 {vr(LC + i)}, {vr(L + i)}, {vr(Hh + i)}")
            e(f"  v_cvt_pk_bf16_f32 {vr(HS + i)}, {vr(Hh + i)}, -{vr(L + i)}")
        e(f"  v_mov_b32 {vr(h0)}, {2 * p + 2}")
        e(f"  ds_write_b128 {vr(wa)}, {vr(LC, 4)} offset:{QB + 1536 * p}")
        e(f"  ds_write_b128 {vr(wa)}, {vr(HS, 4)} offset:{QB + 1536 * p + 384}")
        e(f"  ds_write_b32 {vr(vZ)}, {vr(h0)} offset:{FL + 16}")
        qmask(0)

    ctl_init()
    if P.ctl:
        hv.append(("c", 0))
    patch("q")
    e(f"  s_lshl_b32 s{sT0}, s{sJ}, 10")
    e(f"  s_add_u32 s{sT0}, s{sT0}, L_hpos-L_pc")
    e(f"  v_add_u32 {vr(h0)}, s{sT0}, {vr(vT16)}")
    e(f"  global_load_dwordx4 {vr(st4, 4)}, {vr(h0)}, s[{sZ}:{sZ + 1}]")
    hv.append(("h", 0))
    if P.ss == 1:
        sc_early()
    if P.ss <= 1:
        patch("s")
    rotate(0)
    hpf()
    if P.ss == 2:
        sc_early()
        patch("s")
    e("  s_waitcnt lgkmcnt(0)")
    e("  s_setprio 0")
    hpf()
    e("  s_barrier")
    hpf()
    if P.ss == 3:
        sc_early()
        patch("s")
    for p in range(1, 8):
        rotate(p)
    e(f"  v_mov_b32 {vr(vSa)}, 0")
    e(f"  v_min_u32 {vr(u)}, 47, {vr(l)}")
    e(f"  v_lshlrev_b32 {vr(vL16)}, 4, {vr(u)}")
    for i in range(4):
        e(f"  v_mov_b32 {vr(sc + i)}, 0")
    e(f"  s_mov_b32 s{sNEED}, 1")
    if P.sa and P.ctl:
        e("; workgroup g < 32 clears ranking counter g")
        e("  s_cmp_lt_u32 s2, 32")
        e("  s_cbranch_scc0 L_rc")
        e("  s_lshl_b64 exec, 1, s2")
        e(f"  global_store_dword {vr(vFA)}, {vr(vZ)}, s[{sWS}:{sWS + 1}] sc1")
        e("  s_mov_b64 exec, -1")
        e("L_rc:")
    hpf()
    e("  s_waitcnt vmcnt(0)")
    hpf()
    if P.tfine:
        e("  s_waitcnt lgkmcnt(0)")
        e(f"  v_mov_b32 {vr(h0)}, 0")
        for k in range(hpn[0]):
            e(f"  v_writelane_b32 {vr(h0)}, s{HPF[k]}, {k}")
        e(f"  s_mul_i32 s{sT0}, s2, {5 * 256}")
        e(f"  s_add_u32 s{sT0}, s{sT0}, {0x100000 + 1024}")
        e(f"  v_lshl_add_u32 {vr(h1)}, v0, 2, s{sT0}")
        e(f"  global_store_dword {vr(h1)}, {vr(h0)}, s[{sWS}:{sWS + 1}]")
    for k in range(4):
        e(f"  v_and_b32 {vr(ro + 2 * k)}, 0xffff, {vr(st4 + k)}")
        e(f"  v_lshrrev_b32 {vr(ro + 2 * k + 1)}, 16, {vr(st4 + k)}")
    for k in range(2):
        e(f"  v_add_u32 {vr(ro + 6 + k)}, {SCB}, {vr(ro + 6 + k)}")
    e("L_hk:")
    for a in range(2):
        for k in range(2):
            e(f"  ds_read_u16_d16_hi {vr(sc + 2 * a + k)}, {vr(ro + 6 + k)} offset:{SA * a}")
    progwait("hsw", P.psl)
    rank_post("s")
    for k in range(6):
        e(f"  ds_read_b32 {vr(x + 4 + k)}, {vr(ro + k)} offset:{LGB}")
    e(f"  v_mul_f32 {vr(x + 2)}, s{sSCALE}, {vr(sc)}")
    e(f"  v_mul_f32 {vr(x + 3)}, s{sSCALE}, {vr(sc + 1)}")
    e("  s_waitcnt lgkmcnt(0)")
    e(f"  v_pk_add_f32 {vr(x, 2)}, {vr(x + 4, 2)}, {vr(x + 6, 2)}")
    e(f"  v_pk_add_f32 {vr(x, 2)}, {vr(x, 2)}, {vr(x + 8, 2)}")
    e(f"  v_mul_f32 {vr(x)}, {vr(x)}, {vr(x + 2)}")
    e(f"  v_mul_f32 {vr(x + 1)}, {vr(x + 1)}, {vr(x + 3)}")
    e(f"  v_max_f32 {vr(z4)}, {vr(x)}, {vr(x + 1)}")
    allred("v_max_f32", z4, h0)
    e(f"  v_sub_f32 {vr(x)}, {vr(x)}, {vr(z4)}")
    e(f"  v_sub_f32 {vr(x + 1)}, {vr(x + 1)}, {vr(z4)}")
    e(f"  v_exp_f32 {vr(x)}, {vr(x)}")
    e(f"  v_exp_f32 {vr(x + 1)}, {vr(x + 1)}")
    e("  s_nop 0")
    e(f"  v_add_f32 {vr(z4 + 1)}, {vr(x)}, {vr(x + 1)}")
    e(f"  v_mul_f32 {vr(x)}, {vr(x)}, {vr(sc + 2)}")
    e(f"  v_mul_f32 {vr(x + 1)}, {vr(x + 1)}, {vr(sc + 3)}")
    e(f"  v_add_f32 {vr(z4 + 2)}, {vr(x)}, {vr(x + 1)}")
    for k in range(6):
        e(f"  ds_write_b32 {vr(ro + k)}, {vr(x + (k & 1))} offset:{LGB}")
    e(f"  v_mul_f32 {vr(z4 + 2)}, {f32bits(7.5):#x}, {vr(z4 + 2)}")
    allred("v_add_f32", z4 + 1, h0)
    allred("v_add_f32", z4 + 2, h0)
    e(f"  v_mov_b32 {vr(h0)}, s{sNEED}")
    e(f"  ds_write_b128 {vr(vSa)}, {vr(z4, 4)} offset:{ST}")
    e(f"  ds_write_b32 {vr(vZ)}, {vr(h0)} offset:{FL + 20}")
    e(f"  v_add_u32 {vr(vSa)}, 16, {vr(vSa)}")
    for k in range(8):
        e(f"  v_add_u32 {vr(ro + k)}, {1536 if k < 6 else SL}, {vr(ro + k)}")
    rank_take("s")
    warm("s")
    elect()
    e(f"  s_cmp_eq_u32 s{sNEED}, 14")
    e("  s_cbranch_scc0 L_hq_skip")
    e(f"  s_cmp_eq_u32 s{sO}, 0")
    e("  s_cbranch_scc0 L_hq_skip")
    e("  s_mov_b64 exec, 7")
    e(f"  global_store_dword {vr(vCL)}, {vr(vZ)}, s[{sWS}:{sWS + 1}] sc1")
    e("  s_waitcnt vmcnt(0)")
    e("  s_mov_b64 exec, 1")
    e(f"  global_store_dword {vr(vDB)}, {vr(vOne)}, s[{sDBG}:{sDBG + 1}] sc1")
    e("  s_mov_b64 exec, -1")
    e("L_hq_skip:")
    e("  s_waitcnt lgkmcnt(0)")
    e(f"  s_add_u32 s{sNEED}, s{sNEED}, 1")
    e(f"  s_cmp_le_u32 s{sNEED}, 16")
    e("  s_cbranch_scc1 L_hk")

    e(f"  v_and_b32 {vr(h2)}, 15, {vr(l)}")
    e(f"  v_lshlrev_b32 {vr(h2)}, 1, {vr(h2)}")
    e(f"  global_load_ushort {vr(h3)}, {vr(h2)}, s[{sRT}:{sRT + 1}] offset:32")
    e(f"  s_mov_b32 s{sK}, 0")
    e(f"  v_min_u32 {vr(wa)}, 23, {vr(l)}")
    e(f"  v_lshlrev_b32 {vr(wa)}, 4, {vr(wa)}")
    e(f"  v_lshlrev_b32 {vr(h0)}, 1, {vr(wa)}")
    e(f"  v_add_u32 {vr(h0)}, {PB}, {vr(h0)}")
    e(f"  v_add_u32 {vr(wa)}, {PK}, {vr(wa)}")
    e(f"  v_lshlrev_b32 {vr(sgn)}, 4, {vr(l)}")
    e(f"  s_mul_i32 s{sT0}, s2, 6144")
    e(f"  s_add_u32 s{sT0}, s{sT0}, {W_REC}")
    e(f"  v_add_u32 {vr(sgx)}, s{sT0}, {vr(sgn)}")
    e(f"  v_add_u32 {vr(sgn)}, {PK}, {vr(sgn)}")
    e(f"  v_cmp_gt_u32 vcc, 24, {vr(l)}")
    e(f"  v_add_u32 {vr(sg2)}, 4096, {vr(sgx)}")
    e(f"  v_lshrrev_b32 {vr(u)}, 1, {vr(vL16)}")
    e(f"  s_mul_i32 s{sT0}, s{sOH}, 384")
    e(f"  s_add_u32 s{sOUT}, s{sOUT}, s{sT0}")
    e(f"  s_addc_u32 s{sOUT + 1}, s{sOUT + 1}, 0")
    e(f"  s_lshl_b32 s{sT0}, s{sO}, 4")
    e(f"  s_add_u32 s{sT0}, s{sT0}, {W_REC}")
    e(f"  v_add_u32 {vr(h1)}, {W_REC}, {vr(u)}")
    e("  s_waitcnt vmcnt(0)")
    e(f"  v_or_b32 {vr(h2)}, 15, {vr(h3)}")
    e(f"  v_mul_u32_u24 {vr(h2)}, 384, {vr(h2)}")
    e(f"  v_mul_u32_u24 {vr(h3)}, 384, {vr(h3)}")
    e(f"  v_add_u32 {vr(ra + 15)}, s{sT0}, {vr(h2)}")
    e("  s_nop 0")
    for k in range(15):
        e(f"  v_add_u32_dpp {vr(ra + k)}, {vr(h3)}, {vr(h1)} row_newbcast:{k} row_mask:0xf bank_mask:0xf")
    e(f"  s_mov_b64 s[{sX}:{sX + 1}], 0")
    e("L_hp:")
    e(f"  s_min_u32 s{sT0}, s{sO}, 13")
    e(f"  s_cmp_eq_u32 s{sT0}, s{sK}")
    e("  s_cbranch_scc0 L_hc_ok")
    e("L_hc:")
    e(f"  global_load_dword {vr(pr)}, {vr(vDB)}, s[{sDBG}:{sDBG + 1}] sc1")
    e("  s_waitcnt vmcnt(0)")
    e(f"  v_cmp_ne_u32 s[{sZ}:{sZ + 1}], 1, {vr(pr)}")
    e(f"  s_cmp_eq_u64 s[{sZ}:{sZ + 1}], 0")
    e("  s_cbranch_scc1 L_hc_ok")
    budget("L_hc_ok")
    e("  s_sleep 64")
    e("  s_branch L_hc")
    e("L_hc_ok:")
    vstep_k(sH, sK)
    e(f"  s_lshl_b32 s{sT0}, s{sH}, 4")
    e(f"  v_mov_b32 {vr(h1)}, s{sT0}")
    e(f"  s_cmp_eq_u32 s{sK}, 14")
    e("  s_cbranch_scc0 L_hp_mid")
    for k in range(6):
        e(f"  ds_read_b128 {vr(blk + 4 * k, 4)}, {vr(sgn)} offset:{1024 * k}")
    e(f"  v_subrev_u32 {vr(h2)}, 24, {vr(l)}")
    e(f"  v_and_b32 {vr(h2)}, 15, {vr(h2)}")
    e(f"  v_cmp_eq_u32 s[{sX}:{sX + 1}], s{sH}, {vr(h2)}")
    e(f"  v_lshlrev_b32 {vr(h2)}, 4, {vr(h2)}")
    e(f"  ds_read_b128 {vr(st4, 4)}, {vr(h2)} offset:{ST}")
    def bulk():
        for k in range(6):
            if k == 5:
                e("  s_mov_b64 exec, 0xffff")
            if "w" not in P.xp and not ("h" in P.xp and k < 3) and not ("H" in P.xp and k < 4):
                e(f"  global_store_dwordx4 {vr(sgx if k < 4 else sg2)}, {vr(blk + 4 * k, 4)}, s[{sWS}:{sWS + 1}] offset:{1024 * (k % 4)} {P.wf}")
        e("  s_mov_b64 exec, -1")

    if P.eb:
        e("  s_waitcnt lgkmcnt(0)")
        bulk()
    if P.eprio:
        e(f"  s_setprio {P.eprio}")
    e("L_hp_mid:")
    e(f"  s_add_u32 s{sK}, s{sK}, 1")
    e(f"  s_add_u32 s{sNEED}, s{sK}, 16")
    progwait("hpw", P.psl)
    hp(0)
    rank_post("p")
    if not P.eb:
        e(f"  s_cmp_eq_u32 s{sK}, 15")
        e("  s_cbranch_scc0 L_hp_sum")
        bulk()
        e("L_hp_sum:")
    sum_partials(2)
    e(f"  v_max3_f32 {vr(h3)}, |{vr(x)}|, |{vr(x + 1)}|, |{vr(x + 2)}|")
    e(f"  v_max3_f32 {vr(h3)}, {vr(h3)}, |{vr(x + 3)}|, |{vr(x + 4)}|")
    e(f"  v_max3_f32 {vr(h3)}, {vr(h3)}, |{vr(x + 5)}|, |{vr(x + 6)}|")
    e(f"  v_max_f32_e64 {vr(h3)}, {vr(h3)}, |{vr(x + 7)}|")
    allred("v_max_f32", h3, wb)
    e(f"  v_frexp_exp_i32_f32 {vr(h3)}, {vr(h3)}")
    e(f"  v_sub_u32 {vr(wb)}, 14, {vr(h3)}")
    e(f"  v_subrev_u32 {vr(h3)}, 14, {vr(h3)}")
    for i in range(8):
        e(f"  v_ldexp_f32 {vr(x + i)}, {vr(x + i)}, {vr(wb)}")
    for i in range(4):
        e(f"  v_cvt_pk_f16_f32 {vr(fo + i)}, {vr(x + 2 * i)}, {vr(x + 2 * i + 1)}")
    e(f"  s_cmp_eq_u32 s{sK}, 15")
    e("  s_cbranch_scc1 L_hp_last")
    e(f"  ds_write_b32 {vr(h1)}, {vr(h3)} offset:{ST + 12}")
    e(f"  v_add_u32 {vr(h0)}, 3072, {vr(h0)}")
    e(f"  ds_write_b128 {vr(wa)}, {vr(fo, 4)}")
    e(f"  v_add_u32 {vr(wa)}, 384, {vr(wa)}")
    rank_take("p")
    warm("p")
    e("  s_branch L_hp")
    e("L_hp_last:")
    e(f"  v_cndmask_b32_e64 {vr(st4 + 3)}, {vr(st4 + 3)}, {vr(h3)}, s[{sX}:{sX + 1}]")
    for i in range(4):
        e(f"  v_cndmask_b32 {vr(fo + i)}, {vr(st4 + i)}, {vr(fo + i)}, vcc")
    e("  s_mov_b32 exec_hi, 0xff")
    e(f"  global_store_dwordx4 {vr(sg2)}, {vr(fo, 4)}, s[{sWS}:{sWS + 1}] offset:{14 * 384 - 4096} sc1")
    hp(1)
    e("  s_waitcnt vmcnt(0)")
    hp(2)
    if P.nopoll:
        e("  s_branch L_hw_ok")
    if P.sh_ == 3:
        e("  s_mov_b64 exec, 7")
        e(f"  global_atomic_add {vr(vCNT)}, {vr(vOne)}, s[{sWS}:{sWS + 1}] sc1")
        e(f"  v_readlane_b32 s{sMSK}, {vr(vCNT)}, 0")
        hp(3)
        e("L_hw:")
        e(f"  s_mov_b32 s{sF}, 0")
        e(f"  s_atomic_add s{sF}, s[{sWS}:{sWS + 1}], s{sMSK} glc")
        e("  s_waitcnt lgkmcnt(0)")
        e(f"  s_cmp_ge_u32 s{sF}, 16")
        e("  s_cbranch_scc1 L_hw_ok")
        budget("L_hw_ok")
        if P.sleep:
            e(f"  s_sleep {P.sleep}")
        e("  s_branch L_hw")
    elif P.sh_:
        for k in range(3):
            e(f"  v_readlane_b32 s{sMSK + k}, {vr(vCNT)}, {k}")
            e(f"  s_mov_b32 s{sMSK + 4 + k}, 1")
        for k in range(3):
            e(f"  s_atomic_add s{sMSK + 4 + k}, s[{sWS}:{sWS + 1}], s{sMSK + k} glc")
        e(f"  s_mov_b32 s{sT0}, 15")
        hp(3)
        e("L_hw:")
        e("  s_waitcnt lgkmcnt(0)")
        e(f"  s_cmp_ge_u32 s{sMSK + 4}, s{sT0}")
        e("  s_cbranch_scc1 L_hw_ok")
        e(f"  s_mov_b32 s{sT0}, 16")
        if P.sh_ == 1:
            e(f"  s_mov_b32 s{sMSK + 4}, 0")
            e(f"  s_atomic_add s{sMSK + 4}, s[{sWS}:{sWS + 1}], s{sMSK} glc")
        else:
            e(f"  s_load_dword s{sMSK + 4}, s[{sWS}:{sWS + 1}], s{sMSK} glc")
        budget("L_hw_ok")
        e("  s_branch L_hw")
    e("  s_mov_b64 exec, 7")
    if P.pp and not P.sh_:
        e(f"  global_atomic_add {vr(qn)}, {vr(vCNT)}, {vr(vOne)}, s[{sWS}:{sWS + 1}] sc0 sc1")
        e("  s_mov_b64 exec, 1")
        for k in range(1, P.pp):
            e(f"  s_sleep {P.sleep}")
            e(f"  global_atomic_add {vr(qn + k)}, {vr(vCNT)}, {vr(vZ)}, s[{sWS}:{sWS + 1}] sc0 sc1")
        e(f"  s_mov_b32 s{sT0}, 15")
        hp(3)
        e("L_hw:")
        for k in range(P.pp):
            e(f"  s_waitcnt vmcnt({P.pp - 1})")
            e(f"  v_readfirstlane_b32 s{sF}, {vr(qn + k)}")
            e(f"  s_cmp_ge_u32 s{sF}, s{sT0}")
            e("  s_cbranch_scc1 L_hw_ok")
            e(f"  s_mov_b32 s{sT0}, 16")
            e(f"  global_atomic_add {vr(qn + k)}, {vr(vCNT)}, {vr(vZ)}, s[{sWS}:{sWS + 1}] sc0 sc1")
        budget("L_hw_ok")
        e("  s_branch L_hw")
    e("L_hw_ok:")
    hp(4)
    e("  s_mov_b64 exec, -1")
    e(f"  global_load_dwordx4 {vr(cs, 4)}, {vr(ra + 15)}, s[{sWS}:{sWS + 1}] sc1")
    for k in range(15):
        e(f"  global_load_dwordx2 {vr(rec + 2 * k, 2)}, {vr(ra + (0 if 'r' in P.xp else k % 7 if 'h' in P.xp else k % 3 if 'H' in P.xp else k))}, s[{sWS}:{sWS + 1}] sc1")
    e(f"  s_lshl_b32 s{sH}, s{sO}, 4")
    e(f"  v_mov_b32 {vr(h1)}, s{sH}")
    e(f"  v_add_u32 {vr(h0)}, {PB + 15 * 3072}, {vr(vL16)}")
    for i in range(4):
        e(f"  v_mov_b32 {vr(fo + i)}, 0")
    e("  s_waitcnt vmcnt(15)")
    hp(5)
    e(f"  v_mov_b32 {vr(h2)}, {vr(cs)}")
    rowred("v_max_f32", h2)
    e(f"  v_sub_f32 {vr(h2)}, {vr(cs)}, {vr(h2)}")
    e(f"  v_exp_f32 {vr(h2)}, {vr(h2)}")
    e("  s_nop 0")
    e(f"  v_mul_f32 {vr(h3)}, {vr(h2)}, {vr(cs + 1)}")
    rowred("v_add_f32", h3)
    e(f"  v_rcp_f32 {vr(h3)}, {vr(h3)}")
    e("  s_nop 0")
    e(f"  v_mul_f32 {vr(h2)}, {vr(h2)}, {vr(h3)}")
    e(f"  v_ldexp_f32 {vr(h3)}, {vr(h2)}, {vr(cs + 3)}")
    e(f"  v_readlane_b32 s{sMSK + 15}, {vr(h2)}, 15")
    for k in range(15):
        e(f"  v_readlane_b32 s{sMSK + k}, {vr(h3)}, {k}")
    for k in range(15):
        e(f"  s_waitcnt vmcnt({14 - k})")
        for i in range(4):
            e(f"  v_fma_mix_f32 {vr(fo + i)}, {vr(rec + 2 * k + i // 2)}, s{sMSK + k}, {vr(fo + i)} op_sel:[{i & 1},0,0] op_sel_hi:[1,0,0]")
    hp(6)
    if P.fb:
        e("  s_barrier")
    else:
        e(f"  s_mov_b32 s{sNEED}, 32")
        progwait("hfw", P.fsl)
    hp(7)
    sum_partials(1)
    for i in range(4):
        e(f"  v_fmac_f32 {vr(fo + i)}, s{sMSK + 15}, {vr(x + i)}")
    e(f"  v_cvt_pk_bf16_f32 {vr(fo)}, {vr(fo)}, {vr(fo + 1)}")
    e(f"  v_cvt_pk_bf16_f32 {vr(fo + 1)}, {vr(fo + 2)}, {vr(fo + 3)}")
    e("  s_mov_b32 exec_hi, 0xffff")
    e(f"  global_store_dwordx2 {vr(u)}, {vr(fo, 2)}, s[{sOUT}:{sOUT + 1}] {P.of}")
    if P.hold:
        e("; diagnostic build only")
        e("L_hold:")
        e(f"  s_memrealtime s[{sST + 2}:{sST + 3}]")
        e("  s_waitcnt lgkmcnt(0)")
        e(f"  s_sub_u32 s{sT0}, s{sST + 2}, s{sST}")
        e(f"  s_cmp_lt_u32 s{sT0}, {P.hold}")
        e("  s_cbranch_scc1 L_hold")
    if P.stamp:
        e(f"  s_memrealtime s[{sST + 2}:{sST + 3}]")
        if P.hprof:
            e("  s_waitcnt lgkmcnt(0)")
            e("  s_lshl_b32 s44, s2, 5")
            e("  s_add_u32 s44, s44, 0x80000")
            e("  v_mov_b32 v1, s44")
            for k in range(8):
                e(f"  s_sub_u32 s45, s{sST + 2}, s{HP[k]}")
                e(f"  v_mov_b32 v{4 + k}, s45")
            e(f"  global_store_dwordx4 v1, v[4:7], s[{sWS}:{sWS + 1}]")
            e(f"  global_store_dwordx4 v1, v[8:11], s[{sWS}:{sWS + 1}] offset:16")
            e("  s_nop 2")
        e("  s_getreg_b32 s6, hwreg(HW_REG_XCC_ID)")
        e("  s_getreg_b32 s7, hwreg(HW_REG_HW_ID)")
        e("  s_waitcnt lgkmcnt(0)")
        e(f"  v_mov_b32 v4, s{sST}")
        e(f"  v_mov_b32 v5, s{sST + 2}")
        e("  v_mov_b32 v6, s6")
        e("  v_mov_b32 v7, s7")
        e("  s_lshl_b32 s8, s2, 4")
        e("  v_mov_b32 v1, s8")
        e(f"  global_store_dwordx4 v1, v[4:7], s[{sWS}:{sWS + 1}]")
    e("L_end:")
    e("  s_endpgm")
    e(".p2align 6")
    e(".type L_order,@object")
    e("L_order:")
    for k in range(0, len(ordtab), 8):
        e("  .long " + ", ".join(f"{v:#x}" for v in ordtab[k:k + 8]))
    e(".type L_hpos,@object")
    e("L_hpos:")
    for b in range(2):
        at = {chunk_of(b, n, s_): lpos(n, s_) for n in range(24) for s_ in range(16)}
        rows = sorted({c // 3 for c in at})
        for l_ in range(64):
            r0, r1 = rows[l_], rows[l_ + 64]
            e("  .long " + ", ".join(f"{a_ | b_ << 16:#x}" for a_, b_ in [(at[3 * r0 + k], at[3 * r1 + k]) for k in range(3)] + [(2 * r0, 2 * r1)]))
    e('.section .rodata,"a"')
    e(".p2align 6")
    e(f".amdhsa_kernel {NAME}_kernel")
    e(f"  .amdhsa_next_free_vgpr {NV}")
    e("  .amdhsa_next_free_sgpr 100")
    e(f"  .amdhsa_accum_offset {(NV + 3) // 4 * 4}")
    e("  .amdhsa_group_segment_fixed_size 0")
    e("  .amdhsa_kernarg_size 112")
    e("  .amdhsa_user_sgpr_count 2")
    e("  .amdhsa_user_sgpr_kernarg_segment_ptr 1")
    e("  .amdhsa_system_sgpr_workgroup_id_x 1")
    e(".end_amdhsa_kernel")
    return "\n".join(o) + "\n", NV


if __name__ == "__main__":
    ap = argparse.ArgumentParser()
    ap.add_argument("-o", default=f"/code/{NAME}.s")
    for name, d in (("sh", 4), ("deep", 5), ("pd", 9), ("pre", 12), ("nf", 6), ("hi3", 99), ("leak", 2), ("tp", 2), ("rf", 3), ("rp", 2), ("rt", 26),
                    ("nl", 1), ("rotl", 7), ("lb", 0), ("s0", 0), ("su", 3), ("sp", 0), ("cpf", 1), ("lx", 4), ("hi2", 20),
                    ("streak", 0), ("dl", 8), ("sm", 1), ("pp", 3), ("eb", 0), ("inorder", 0), ("hiv", 2), ("cp", 0), ("sleep", 4),
                    ("bound", 4000000), ("ctl", 1), ("ex", 1), ("ss", 3), ("hold", 0), ("nr", 2), ("ev", 4), ("tw", 0), ("tv", 0), ("tl", 0), ("lag", 2), ("hp0", 0), ("sa", 1), ("sh_", 3), ("fb", 1),
                    ("hi", -1), ("lo", -25), ("lo2", -60), ("thr", 2), ("thr2", 1), ("start", 5), ("ba", 3),
                    ("kp", 7), ("ki", 0), ("imax", 80), ("r0", 2), ("r1", 30),
                    ("kp0", 9), ("kn", 0), ("eprio", 0), ("fsl", 0), ("psl", 1)):
        ap.add_argument("--" + name, type=int, default=d)
    ap.add_argument("--kp_", default="6,6,6,7,8,9,9,10,10,11,11,12,12", help="K loads issued by each prologue point")
    ap.add_argument("--sf", default="nt")
    ap.add_argument("--of", default="")
    ap.add_argument("--wf", default="sc1")
    ap.add_argument("--bu", default="012", help="extra depth per position in the issued group")
    ap.add_argument("--th", default="-9,5,13")
    ap.add_argument("--sch", default="sch_np.txt")
    ap.add_argument("--xp", default="", help="timing experiments only")
    for name in ("stamp", "trace", "tfine", "hprof", "nopoll"):
        ap.add_argument("--" + name, action="store_true", help="diagnostics only")
    a = ap.parse_args()
    txt, nv = gen(a)
    open(a.o, "w").write(txt)
    print("wrote", a.o, "vgprs", nv)
```

```python
import argparse
import math
import os
import struct
from gen import HEADER, NAME, Alloc, f32bits, vr

HB = 2048 * 768

ABOUT = """
Generated by tools/gen7.py.
Work split: workgroup (cluster c, block m, member b) handles 128 rows of the 256-row block m for 16 heads 16 k + c
  (slots k = 5 and 10 take their head from a table instead of c); the two members alternate over 32 KiB runs.
  Waves 1-4 stream one 4 KiB block per round; a 16-lane row handles one third (64 dims) of a KV row per load.
  K sweep: logit = k_scale * sum_d (qk - 7.5) * (qa * cos + qb * sin), RoPE moved onto the rotated q;
  V sweep: partial = sum_rows p * v_scale * qv.
  Wave 0 (helper) rotates q, takes max / exp / sums over the workgroup's rows of each head, and merges partials.
Constant parameters (the same for every seed) are built in: both zero points (7.5), q_cos / q_sin (table L_qcs) and
  k_cos / k_sin = bf16(cos / sin(fp32(row * inv_freq))), evaluated once per workgroup from the table L_inv into LDS.
Hand-off: every workgroup finishes one of its heads and streams that head last.  Partials and (max, sum) of
  the other 15 go to d_ws with sc1 stores, then a counted atomic; the finisher rescales all 16 to the true row maximum.
Flow control (speed only, results do not depend on it): waves publish a group counter and sample the counters of
  units on the same die; late waves keep one more load in flight, early waves one or two fewer.  Helpers rank the dies.
"""

RUN = (1, 2, 0)


def chunk_of(b, n, s):
    g = 256 * RUN[n >> 3] + 128 * b + 16 * (n & 7) + s
    return {128: 512, 255: 639, 512: 128, 639: 255}.get(g, g)


def tidx(b, row):
    return row - 43 * b - 42 * ((row >= 85) + (row >= 171))


def rev(x, bits):
    return int(format(x, f"0{bits}b")[::-1], 2)


def lpos(n, s):
    return 4 * (16 * s + rev(n, 4)) if n < 16 else 1024 + 4 * (8 * s + rev(n - 16, 3))


TN = [(RUN[n >> 3] + (n & 7)) % 3 for n in range(24)]
SPECIAL = {n: i for i, n in enumerate(sorted(8 * RUN.index(r) + i for r in (0, 2) for i in (0, 7)))}
for b_ in range(2):
    ch = sorted(chunk_of(b_, n, s) for n in range(24) for s in range(16))
    assert ch == sorted(3 * r + k for r in {c // 3 for c in ch} for k in range(3))
    assert all(chunk_of(b_, n, s) % 3 == (TN[n] + 2 * b_ + s) % 3 for n in range(24) for s in range(16))
    assert len({tidx(b_, c // 3) for c in ch}) == 128 and max(tidx(b_, c // 3) for c in ch) == 128


def gen(P):
    o = []
    e = o.append
    RING, PD = 24, P.pd
    sh, deep = P.sh, P.deep
    PRE = P.pre
    DP = P.cp + P.sp
    TP = P.tp
    CP = P.cp
    EX = P.ex
    NX = 2 if P.ctl else 0
    assert deep <= PD - 1 and sh <= deep and PD <= PRE
    SL = 512
    SA = 16 * SL

    FL = 0
    ST = 256
    TB = 512
    QB = TB + 129 * 384
    LGB = QB + 16 * 768
    SCB = LGB + 16 * 1536
    PB = SCB + 2 * SA
    PK = PB + 49152
    LDS = PK + 6144
    assert 81920 < LDS <= 163840
    W_REC = 0x400000
    W_CNT = 0x700000
    W_RK = 0x780000
    W_PL = 0x7c0000

    sQ, sQK, sKS, sKZ, sQV, sVS, sVZ, sQC = 4, 6, 8, 10, 12, 14, 16, 18
    sQS, sKC, sKSN, sOUT = 20, 22, 24, 26
    sDBG, sWS = 28, 30
    rA, rB = 32, 36
    sW, sJ, sC, sK, sT0, sT1, sF, sNEED = 40, 41, 42, 43, 44, 45, 46, 47
    sMSK = 48
    sOF = 51
    sPB = 60
    sCO = 61
    sZ = 64
    sMASK, sSCALE, sH = 66, 67, 68
    sS = 69
    sX = 70
    sRF = 80
    sRT = 82
    sST = 84
    sN = 90
    sB = 91
    sVO = 92
    sSP = 94
    sI = 95
    sSE, sCU = 81, 79
    sLO = 78
    sO = 3
    sCN = 96
    sOH, sCT = 98, 99

    va = Alloc(1)
    vT16, vF, vZ, vC16 = [va.take(1) for _ in range(4)]
    voff = va.take(7)
    vTA = va.take(7)
    vQA = va.take(3)
    vPA = va.take(3)
    vLG = va.take(2)
    vLB = va.take(2)
    vLV = va.take(2)
    A = va.take(2)
    LG = va.take(2)
    M1, M2, M3 = [va.take(1) for _ in range(3)]
    bc = va.take(2, 2)
    dacc = va.take(2, 2)
    wt = va.take(4, 2)
    vtr, vPW, vPS, vN, vSum, vSu2, vBA = [va.take(1) for _ in range(7)]
    vPL = va.take(4)
    vBI = va.take(P.nr, P.nr)
    smp = va.take(4 * P.lag, 4)
    cm = va.take(4 if P.wc else 0, 4)
    qa = va.take(12, 4)
    tab = va.take(24, 4)
    tmp = va.take(12, 4)
    ring = va.take(4 * RING, 4)
    NV = va.n
    acc = qa

    here = os.path.dirname(os.path.abspath(__file__))
    sch = [[int(x) for x in ln.split()] for ln in open(os.path.join(here, P.sch))]
    inv, qcs = [[int(x, 16) for x in ln.split()] for ln in open(os.path.join(here, "consts.txt"))]
    cj = lambda g: (g >> 4, (g & 7) * 2 + ((g >> 3) & 1))
    ent = {g: sch[16 * cj(g)[0] + cj(g)[1]] for g in range(256)}
    cl = lambda g, k: ent[g][0] if k == 5 else ent[g][1] if k == 10 else g >> 4
    assert sorted(16 * ent[g][2] + cl(g, ent[g][2]) for g in range(256)) == list(range(256))
    ordtab = []
    for g in range(256):
        o_, od = ent[g][2], ent[g][3:]
        assert sorted(od) == list(range(16)) and od[15] == o_
        con = [x for x in range(256) if x != g and cl(x, o_) == cl(g, o_)] + [g]
        assert sorted(cj(x)[1] for x in con) == list(range(16))
        nib = sum(k << (4 * t) for t, k in enumerate(range(16) if "i" in P.xp else od))
        cn = sum((g >> 4 if "c" in P.xp else cl(g, k)) << (4 * k) for k in range(16))
        ctr = [g >> 4, 16 + cl(g, 5), 32 + cl(g, 10)]
        first = {5: 1, 10: 2}.get(o_, 0)
        ctr = [ctr[first]] + [x for i, x in enumerate(ctr) if i != first]
        u16 = [16 * x + ent[x][3:].index(o_) for x in con]
        assert all(v % 16 < 15 for v in u16[:15])
        ordtab += [nib & 0xffffffff, nib >> 32, cn & 0xffffffff, cn >> 32, 16 * o_ + cl(g, o_), ctr[0] | ctr[1] << 8 | ctr[2] << 16, o_, 0]
        ordtab += [u16[2 * i] | u16[2 * i + 1] << 16 for i in range(8)]

    def ld(n):
        rr = rA if n < 24 else rB
        n %= 24
        so = f"s{sOF + (n & 7)}" if n & 7 else "0"
        vo = voff + (3 + SPECIAL[n] if n in SPECIAL and "x" not in P.xp else n >> 3)
        e(f"  buffer_load_dwordx4 {vr(ring + 4 * n, 4)}, {vr(vo)}, s[{rr}:{rr + 3}], {so} offen nt")

    dist = [PRE]

    def cnt(depth, n):
        ops = loads = 0
        pos = (n + dist[0]) % len(P.bu)
        depth += int(P.bu[pos])
        while loads < depth - 1:
            if n % (3 * EX) == CP:
                ops += NX
            if P.ctl and n % 24 == 3 * P.ba + CP:
                ops += 1
            n -= 1
            loads += 1
            ops += 1
        return ops

    def toff(n):
        if P.th:
            return [int(x) for x in P.th.split(",")][(n + dist[0]) % len(P.bu)]
        return P.dl * ((n - DP) % 3 - 1)

    LAG = P.lag
    SW = deep + max(int(x) for x in P.bu) > 3 * LAG * EX

    def swait(a):
        return 3 * LAG * EX + (LAG - 1) * NX + ((a - P.ba) % 8 < LAG * EX)

    first = {}
    drain = {}

    def verify():
        ops = [("L", i) for i in range(PRE)]
        done = 1
        for g in range(24 * 32):
            n = g % 24
            tail = g + PD >= 24 * 32
            skip = 384 <= g < 384 + PRE - PD
            dist[0] = PRE if g < 384 else PD
            if not tail and not skip:
                if P.ctl and n == 3 * P.ba + CP:
                    ops.append(("X", 0))
                if n % (3 * EX) == CP:
                    if P.ctl and SW:
                        done = max(done, len(ops) - swait(n // 3))
                    ops += [("X", 0)] * (NX if P.inorder else max(0, NX - 1))
            if g + PD == 24 * 32:
                drain["in"] = len(ops) - 1 - ops.index(("L", g))
                done = max(done, len(ops) - drain["in"])
            assert ("L", g) in ops[:done], g
            if tail:
                if n < 23:
                    drain[n] = len(ops) - 1 - ops.index(("L", g + 1))
                    done = max(done, len(ops) - drain[n])
                continue
            if skip:
                first[n] = len(ops) - 1 - ops.index(("L", g + 1))
                done = max(done, len(ops) - first[n])
                continue
            done = max(done, len(ops) - cnt(deep + (P.hi3 < 99 and (n + PD) % 3 == 0 and g >= 3 * P.start) if (g >= 3 * (P.start // EX * EX) or (g >= DP and P.s0 > P.hi + toff(n))) else sh, n))
            ops.append(("L", g + (PRE if g < 384 else PD)))
    verify()
    dist[0] = PRE
    lab = [0]

    def pace(n, hi):
        if P.ctl:
            lab[0] += 1
            top = P.hi3 < 99 and (n + PD) % 3 == 0
            if top:
                boost(hi + P.hi3)
                e(f"  s_cbranch_scc1 L_r{lab[0]}")
            if deep > sh + 1:
                boost(P.hi2)
                e(f"  s_cbranch_scc1 L_q{lab[0]}")
            boost(hi + toff(n))
            e(f"  s_cbranch_scc1 L_p{lab[0]}")
            e(f"  s_waitcnt vmcnt({cnt(sh, n)})")
            e(f"L_p{lab[0]}:")
            if deep > sh + 1:
                e(f"  s_waitcnt vmcnt({cnt(sh + 1, n)})")
                e(f"L_q{lab[0]}:")
            e(f"  s_waitcnt vmcnt({cnt(deep, n)})")
            if top:
                e(f"L_r{lab[0]}:")
                e(f"  s_waitcnt vmcnt({cnt(deep + 1, n)})")
        else:
            e(f"  s_waitcnt vmcnt({cnt(sh, n)})")

    def control(a):
        if not P.ctl:
            return
        if a == P.ba:
            e("  s_mov_b64 exec, 1")
            e(f"  global_load_dwordx{P.nr} {vr(vBI, P.nr)}, {vr(vBA)}, s[{sWS}:{sWS + 1}] sc1")
            e("  s_mov_b64 exec, -1")
        if a % EX == 0:
            sm = smp + 4 * ((a // EX) % LAG)
            if SW:
                e(f"  s_waitcnt vmcnt({swait(a)})")
            if a == (P.ba + LAG * EX + EX - 1) // EX * EX % 8:
                e(f"  v_add_u32 {vr(vSum)}, {vr(vBI)}, {vr(vBI + 1)}")
                if P.nr == 4:
                    e(f"  v_add3_u32 {vr(vSum)}, {vr(vBI + 2)}, {vr(vBI + 3)}, {vr(vSum)}")
                    e(f"  v_ashrrev_i32 {vr(vSum)}, 2, {vr(vSum)}")
                e("  s_nop 0")
                e(f"  v_readfirstlane_b32 s{sB}, {vr(vSum)}")
                if P.eb_:
                    e(f"  s_cmpk_lt_u32 s{sN}, {P.pe}")
                    e(f"  s_cselect_b32 s{sT0}, 0, {P.eb_}")
                    e(f"  s_add_u32 s{sB}, s{sB}, s{sT0}")
                if P.pb:
                    e(f"  s_cmpk_lt_u32 s{sN}, {P.pe}")
                    e(f"  s_cselect_b32 s{sT0}, s{sPB}, 0")
                    e(f"  s_add_u32 s{sB}, s{sB}, s{sT0}")
            e(f"  s_add_u32 s{sT0}, s{sLO}, 0x03030303")
            e(f"  v_msad_u8 {vr(vSum)}, s{sLO}, {vr(sm)}, 0")
            e(f"  v_msad_u8 {vr(vSu2)}, s{sT0}, {vr(sm)}, 0")
            for k in range(1, 3):
                e(f"  v_msad_u8 {vr(vSum)}, s{sLO}, {vr(sm + k)}, {vr(vSum)}")
                e(f"  v_msad_u8 {vr(vSu2)}, s{sT0}, {vr(sm + k)}, {vr(vSu2)}")
            e(f"  v_sub_u32 {vr(vSum)}, {vr(vSum)}, {vr(vSu2)}")
            e(f"  v_mov_b32 {vr(vN)}, s{sN}")
            e(f"  s_add_u32 s{sLO}, s{sLO}, 0x01010101")
            if P.nl > 1:
                e(f"  v_add_u32_dpp {vr(vSum)}, {vr(vSum)}, {vr(vSum)} quad_perm:[2,3,0,1] row_mask:0xf bank_mask:0xf")
                e(f"  s_nop {1 if P.nl > 2 else 0}")
            if P.nl > 2:
                e(f"  v_add_u32_dpp {vr(vSum)}, {vr(vSum)}, {vr(vSum)} row_shl:4 row_mask:0xf bank_mask:0xf")
                e("  s_nop 0")
            e(f"  v_readlane_b32 s{sMASK}, {vr(vSum)}, 0")
            e(f"  v_readlane_b32 s{sSCALE}, {vr(vSum)}, 1")
            e("  s_mov_b64 exec, 1")
            e(f"  global_store_byte {vr(vPS)}, {vr(vN)}, s[{sWS}:{sWS + 1}]")
            e(f"  s_mov_b64 exec, {(1 << (2 * P.nl)) - 1}")
            e(f"  global_load_dwordx3 {vr(sm, 3)}, {vr(vPL + (a // EX) % 4)}, s[{sWS}:{sWS + 1}] sc1")
            e("  s_mov_b64 exec, -1")

    def decide(a):
        if not P.ctl:
            return
        if a % EX == 0:
            e(f"  s_add_u32 s{sS}, s{sMASK}, s{sSCALE}")
            if P.wc:
                e(f"  v_add3_u32 {vr(vSum)}, {vr(cm)}, {vr(cm + 1)}, {vr(cm + 2)}")
                e(f"  v_add_u32 {vr(vSum)}, {vr(vSum)}, {vr(cm + 3)}")
                e(f"  v_mov_b32 {vr(vSu2)}, s{sS}")
                e(f"  v_readfirstlane_b32 s{sT0}, {vr(vSum)}")
                e(f"  ds_write_b32 {vr(vPW)}, {vr(vSu2)} offset:{FL + 32 + 16 * (a & 1)}")
                if P.wo:
                    e(f"  s_mul_i32 s{sT1}, s{sCO}, {P.wo}")
                    e(f"  s_mov_b32 s{sCO}, s{sT0}")
                e(f"  s_mul_i32 s{sT0}, s{sT0}, {P.wc}")
                if P.wo:
                    e(f"  s_add_u32 s{sT0}, s{sT0}, s{sT1}")
                if P.wp:
                    e(f"  s_mul_i32 s{sT1}, s{sI}, {P.wp}")
                    e(f"  s_add_u32 s{sT0}, s{sT0}, s{sT1}")
                    e(f"  s_mov_b32 s{sI}, s{sS}")
                e(f"  s_mul_i32 s{sS}, s{sS}, {P.wn}")
                e(f"  s_add_u32 s{sS}, s{sS}, s{sT0}")
                e(f"  s_ashr_i32 s{sS}, s{sS}, 4")
            elif P.sm > 1:
                e(f"  s_ashr_i32 s{sT0}, s{sI}, {P.sm - 1}")
                e(f"  s_sub_u32 s{sI}, s{sI}, s{sT0}")
                e(f"  s_add_u32 s{sI}, s{sI}, s{sS}")
                e(f"  s_ashr_i32 s{sS}, s{sI}, {P.sm - 1}")
            elif P.sm:
                e(f"  s_add_u32 s{sT0}, s{sS}, s{sI}")
                e(f"  s_mov_b32 s{sI}, s{sS}")
                e(f"  s_ashr_i32 s{sS}, s{sT0}, {1 + P.nl // 2}")
            elif P.nl > 1:
                e(f"  s_ashr_i32 s{sS}, s{sS}, {P.nl // 2}")
            e(f"  s_add_u32 s{sS}, s{sS}, s{sB}")
            e(f"  s_cmp_lt_u32 s{sN}, {P.start // EX}")
            e(f"  s_cselect_b32 s{sS}, {P.s0}, s{sS}")
            if P.sm > 1:
                e(f"  s_cselect_b32 s{sI}, 0, s{sI}")
            e(f"  s_add_u32 s{sN}, s{sN}, 1")

    def share(a, j):
        if P.ctl and P.wc and j == 2:
            e(f"  ds_read_b128 {vr(cm, 4)}, {vr(vZ)} offset:{FL + 32 + 16 * (a & 1)}")

    def throttle(a):
        if not P.ctl or P.lo <= -60 or (3 * a + TP + dist[0]) % len(P.bu) < len(P.bu) - 3:
            return
        lab[0] += 1
        e(f"  s_cmp_lt_i32 s{sS}, {P.lo}")
        e(f"  s_cbranch_scc0 L_t{lab[0]}")
        e(f"  s_waitcnt vmcnt({cnt(P.thr + 1, 3 * a + TP)})")
        if P.lo2 > -60:
            e(f"  s_cmp_lt_i32 s{sS}, {P.lo2}")
            e(f"  s_cbranch_scc0 L_t{lab[0]}")
            e(f"  s_waitcnt vmcnt({cnt(P.thr2 + 1, 3 * a + TP)})")
        e(f"L_t{lab[0]}:")

    def boost(hi):
        if P.ctl:
            assert hi >= P.lo
            e(f"  s_cmp_gt_i32 s{sS}, {hi}")

    def srd_head(rr, sp, sh_):
        e(f"  s_mul_i32 s{sT0}, s{sh_}, {HB}")
        e(f"  s_add_u32 s{rr}, s{sp}, s{sT0}")
        e(f"  s_addc_u32 s{rr + 1}, s{sp + 1}, 0")

    def vstep_k(dst, src):
        e(f"  s_lshl_b32 s{dst}, s{src}, 2")
        e(f"  s_lshr_b64 s[{sZ}:{sZ + 1}], s[{sVO}:{sVO + 1}], s{dst}")
        e(f"  s_and_b32 s{dst}, s{sZ}, 15")

    def head_of(dst, slot):
        e(f"  s_lshl_b32 s{sT0}, s{slot}, 2")
        e(f"  s_lshr_b64 s[{sZ}:{sZ + 1}], s[{sCN}:{sCN + 1}], s{sT0}")
        e(f"  s_and_b32 s{sZ}, s{sZ}, 15")
        e(f"  s_lshl4_add_u32 s{dst}, s{slot}, s{sZ}")

    def budget(ok):
        e(f"  s_cmp_eq_u32 s{sSP}, 0")
        e(f"  s_cbranch_scc1 {ok}")
        e(f"  s_sub_u32 s{sSP}, s{sSP}, 1")

    def flagwait(name, off):
        e(f"L_{name}:")
        e("  s_waitcnt lgkmcnt(0)")
        e(f"  v_readfirstlane_b32 s{sF}, {vr(vF)}")
        e(f"  s_cmp_ge_u32 s{sF}, s{sNEED}")
        e(f"  s_cbranch_scc1 L_{name}_ok")
        budget(f"L_{name}_ok")
        e(f"  ds_read_b32 {vr(vF)}, {vr(vZ)} offset:{off}")
        e(f"  s_branch L_{name}")
        e(f"L_{name}_ok:")

    def tr():
        if P.trace:
            e(f"  {'s_memtime' if 'm' in P.xp else 's_memrealtime'} s[88:89]")
            e("  s_waitcnt lgkmcnt(0)")
            e(f"  v_writelane_b32 {vr(vtr)}, s88, m0")
            e("  s_add_u32 m0, m0, 1")
            e("  s_min_u32 m0, m0, 63")

    def die_base(dst):
        e(f"  s_getreg_b32 s{sSE}, hwreg(HW_REG_HW_ID, 8, 7)")
        e(f"  s_getreg_b32 s{dst}, hwreg(HW_REG_XCC_ID, 0, 3)")
        e(f"  s_and_b32 s{sCU}, s{sSE}, 15")
        e(f"  s_lshr_b32 s{sSE}, s{sSE}, 5")
        e(f"  s_mul_i32 s{dst}, s{dst}, 4352")
        e(f"  s_add_u32 s{dst}, s{dst}, {W_PL}")

    ha = Alloc(16)
    l, u, h0, h1, h2, h3 = [ha.take(1) for _ in range(6)]
    qo, wa, wb, sgn, sgx, sg2 = [ha.take(1) for _ in range(6)]
    ro = ha.take(8)
    vL16, vCNT, vDB, vOne, vFA, vFI, vFR, vFX, vFB, vEL, vCL, vSa = [ha.take(1) for _ in range(12)]
    z4 = ha.take(4, 4)
    cs = ha.take(8, 4)
    sc = ha.take(4, 4)
    qn = ha.take(4, 4)
    x = ha.take(32, 4)
    pr = ha.take(4, 4)
    fo = ha.take(4, 4)
    rec = ha.take(32, 4)
    blk = ha.take(24, 4)
    st4 = ha.take(4, 4)
    ra = ha.take(16)
    assert ha.n <= NV and vZ < 16

    invX, invY, tK, tA, tN, tO = tmp, tmp + 4, tmp + 8, tab, tab + 4, tab + 8
    PC0 = 20 + 8 * P.stamp
    D_INV, D_QCS, D_END = 256, 768, 1152
    NF = P.nf
    assert RUN[0] == 1 and NF <= 8
    e(HEADER.rstrip("\n"))
    e(f"; @launch grid=(256,1,1) block=(320,1,1) lds={LDS}")
    for ln in ABOUT.strip("\n").split("\n"):
        e("; " + ln)
    e('.amdgcn_target "amdgcn-amd-amdhsa--gfx950"')
    e(".text")
    e(f".globl {NAME}_kernel")
    e(".p2align 8")
    e(f".type {NAME}_kernel,@function")
    e(f"{NAME}_kernel:")
    e("  s_cmpk_ge_u32 s2, 0x100")
    e("  s_cbranch_scc1 L_end")
    if P.stamp:
        e(f"  s_memrealtime s[{sST}:{sST + 1}]")
    e("  s_load_dwordx16 s[4:19], s[0:1], 0")
    e(f"  s_getpc_b64 s[{sZ}:{sZ + 1}]")
    e("L_pc:")
    e("  v_cmp_gt_u32 vcc, 64, v0")
    e(f"  v_lshlrev_b32 {vr(vT16)}, 4, v0")
    e(f"  s_lshr_b32 s{sC}, s2, 4")
    e(f"  s_and_b32 s{sH}, s2, 7")
    e(f"  s_lshl3_add_u32 s{sH}, s{sC}, s{sH}")
    e(f"  s_movk_i32 s{sNEED}, 768")
    e("  s_cbranch_vccz L_s0")
    e(f"  v_lshl_add_u32 {vr(h0)}, s{sC}, 10, {vr(vT16)}")
    e(f"  global_load_dword {vr(h3)}, {vr(h0)}, s[{sZ}:{sZ + 1}] offset:{D_END - PC0}")
    e(f"  v_and_b32 {vr(vL16)}, 0x1f0, {vr(vT16)}")
    e(f"  global_load_dwordx4 {vr(pr, 4)}, {vr(vL16)}, s[{sZ}:{sZ + 1}] offset:{D_QCS - PC0}")
    e("  s_branch L_helper")
    e("L_s0:")
    e(f"  v_and_b32 {vr(vC16)}, 0xf0, {vr(vT16)}")
    e(f"  global_load_dwordx4 {vr(invX, 4)}, {vr(vC16)}, s[{sZ}:{sZ + 1}] offset:{D_INV - PC0}")
    e(f"  global_load_dwordx4 {vr(invY, 4)}, {vr(vC16)}, s[{sZ}:{sZ + 1}] offset:{D_INV + 256 - PC0}")
    e(f"  s_mul_i32 s{sT0}, s{sH}, 196608")
    e(f"  s_and_b32 s{sT1}, s2, 8")
    e(f"  s_lshl_b32 s{sT1}, s{sT1}, 12")
    e(f"  s_add_u32 s{sT0}, s{sT0}, s{sT1}")
    e(f"  s_add_u32 s{sT0}, s{sT0}, {65536 * RUN[0] - 1024 + 4096}")
    e(f"  v_add_u32 {vr(tA)}, s{sT0}, {vr(vT16)}")
    for k in range(1, (NF + 1) // 2):
        e(f"  v_add_u32 {vr(tA + k)}, {8192 * k}, {vr(tA)}")
    e("  s_waitcnt lgkmcnt(0)")
    for n in range(NF):
        e(f"  global_load_dwordx4 {vr(ring + 4 * n, 4)}, {vr(tA + n // 2)}, s[{sQK}:{sQK + 1}] offset:{4096 * (n % 2) - 4096} nt")
    e("  s_branch L_s1")
    e("L_b0:")
    e(f".if (L_b0 - {NAME}_kernel > {D_INV}) || (L_pc - {NAME}_kernel != {PC0})")
    e('.error "entry block layout"')
    e(".endif")
    e(".p2align 8")
    e(".type L_inv,@object")
    e("L_inv:")
    tb = inv[:64] + inv[64:] + inv[64:]
    for k in range(0, 128, 8):
        e("  .long " + ", ".join(f"{v:#x}" for v in tb[k:k + 8]))
    e(".type L_qcs,@object")
    e("L_qcs:")
    for k in range(0, 96, 8):
        e("  .long " + ", ".join(f"{v:#x}" for v in qcs[k:k + 8]))

    def common():
        e(f"  s_load_dwordx8 s[24:31], s[0:1], 80")
        e(f"  s_lshl_b32 s{sT0}, s2, 6")
        e(f"  s_add_u32 s{sT0}, s{sT0}, L_order-L_pc")
        e(f"  s_add_u32 s{sRT}, s{sZ}, s{sT0}")
        e(f"  s_addc_u32 s{sRT + 1}, s{sZ + 1}, 0")
        e(f"  s_load_dwordx2 s[{sVO}:{sVO + 1}], s[{sRT}:{sRT + 1}], 0")
        e(f"  s_load_dwordx2 s[{sCN}:{sCN + 1}], s[{sRT}:{sRT + 1}], 8")
        e(f"  v_mov_b32 {vr(vZ)}, 0")
        e(f"  s_mov_b32 s{sSP}, {P.bound}")
        e(f"  s_bfe_u32 s{sJ}, s2, 0x10003")

    PFR = [8, 10, 14, 16, 18, 20, 22, 72, 74, 76, 4, 86]
    pfn = [0]

    def pf():
        if P.tfine:
            e(f"  {'s_memtime' if 'm' in P.xp else 's_memrealtime'} s[{PFR[pfn[0]]}:{PFR[pfn[0]] + 1}]")
            pfn[0] += 1

    e("L_s1:")
    w_, s_, vAD, vC8, t0, t1 = wt, wt + 1, wt + 2, wt + 3, dacc, dacc + 1
    vRF, pos = vT16, tK + 3
    if P.trace:
        e(f"  v_mov_b32 {vr(vtr)}, 0")
        e("  s_mov_b32 m0, 0")
    pf()
    e("  v_subrev_u32 v0, 64, v0")
    e("  s_setprio 1")
    common()
    e(f"  v_lshrrev_b32 {vr(w_)}, 6, v0")
    e(f"  v_lshrrev_b32 {vr(s_)}, 4, v0")
    e(f"  v_and_b32 {vr(vC8)}, 0x70, {vr(vC16)}")
    e(f"  v_readfirstlane_b32 s{sW}, {vr(w_)}")
    e(f"  v_add_u32 {vr(vAD)}, {vr(vC8)}, {vr(s_)}")
    e(f"  s_mul_i32 s{sT0}, s{sJ}, 44")
    e(f"  s_sub_u32 s{sT0}, 86, s{sT0}")
    e(f"  v_cmp_eq_u32 vcc, s{sT0}, {vr(vAD)}")
    e(f"  v_mov_b32 {vr(t0)}, 0x80")
    e(f"  s_and_b32 s{sH}, s2, 7")
    e(f"  v_cndmask_b32 {vr(vAD)}, {vr(vAD)}, {vr(t0)}, vcc")
    e(f"  v_mul_u32_u24 {vr(t0)}, 381, {vr(vAD)}")
    e(f"  s_mul_i32 s{sT0}, s{sJ}, 43")
    e(f"  v_add_u32 {vr(t0)}, 2, {vr(t0)}")
    e(f"  s_lshl_b32 s{sT1}, s{sH}, 8")
    e(f"  v_lshrrev_b32 {vr(t0)}, 14, {vr(t0)}")
    assert all((381 * i + 2) >> 14 == (i >= 43) + (i >= 86) for i in range(129))
    e(f"  s_add_u32 s{sT0}, s{sT0}, s{sT1}")
    e(f"  v_mad_u32_u24 {vr(t0)}, {vr(t0)}, 42, {vr(vAD)}")
    e(f"  v_add_u32 {vr(t0)}, s{sT0}, {vr(t0)}")
    e(f"  v_cvt_f32_u32 {vr(vRF)}, {vr(t0)}")
    e(f"  v_mul_u32_u24 {vr(vAD)}, 384, {vr(vAD)}")
    e(f"  s_mov_b32 s{rA + 2}, {HB}")
    e(f"  s_mov_b32 s{rA + 3}, 0x20000")
    srd_head(rA, sQK, sC)
    e(f"  s_mul_i32 s{sT0}, s{sH}, 6")
    e(f"  s_add_u32 s{sT0}, s{sT0}, s{sJ}")
    e(f"  s_lshl_b32 s{sT0}, s{sT0}, 15")
    e(f"  v_lshl_add_u32 {vr(voff + RUN.index(0))}, v0, 4, s{sT0}")
    for k in (1, 2):
        e(f"  v_add_u32 {vr(voff + RUN.index(k))}, {65536 * k:#x}, {vr(voff + RUN.index(0))}")
    for i in range(1, 8):
        e(f"  s_movk_i32 s{sOF + i}, {4096 * i}")
    nk = [NF]
    assert PRE <= RING and (PRE - PD) % (3 * EX) == 0 and max(int(v) for v in P.kp_.split(",")[:P.su + 1]) <= min(SPECIAL)

    def k_loads(hi):
        while nk[0] < min(hi, PRE):
            ld(nk[0])
            nk[0] += 1

    def toff_(n):
        run = RUN[n >> 3]
        return 384 * (16 * (((n & 7) + run) // 3) + 38 * run)

    def setup():
        e("; per chunk class k: q operand, table and partial addresses")
        e(f"  s_lshl1_add_u32 s{sF}, s{sJ}, s{sW}")
        e(f"  s_lshl_b32 s{sF}, s{sF}, 1")
        e(f"  s_lshr_b32 s{sF}, 0x4924, s{sF}")
        e(f"  v_bfe_u32 {vr(t1)}, v0, 4, 2")
        e(f"  v_lshl_add_u32 {vr(t1)}, {vr(t1)}, 2, {vr(vC16)}")
        e(f"  v_mad_u32_u24 {vr(vF)}, {vr(w_)}, s{sNEED}, {vr(t1)}")
        e(f"  v_add_u32 {vr(vF)}, {PB}, {vr(vF)}")
        e(f"  s_mul_i32 s{sT1}, s{sJ}, {43 * 384}")
        e(f"  s_sub_u32 s{sT1}, {TB}, s{sT1}")
        e(f"  v_lshl_add_u32 {vr(vSum)}, s{sJ}, 7, {vr(s_)}")
        for k in range(3):
            e(f"  s_bfe_u32 s{sT0}, s{sF}, {(2 << 16) | 2 * k:#x}")
            e(f"  v_lshl_add_u32 {vr(vPA + k)}, s{sT0}, 8, {vr(vF)}")
            if k:
                e(f"  v_add_u32 {vr(vSum)}, 16, {vr(vSum)}")
            e(f"  v_mul_u32_u24 {vr(t0)}, 171, {vr(vSum)}")
            e(f"  v_lshrrev_b32 {vr(t0)}, 9, {vr(t0)}")
            e(f"  v_mad_i32_i24 {vr(t1)}, {vr(t0)}, -3, {vr(vSum)}")
            e(f"  v_lshl_add_u32 {vr(t1)}, {vr(t1)}, 8, {vr(vC16)}")
            e(f"  v_add_u32 {vr(vQA + k)}, {QB}, {vr(t1)}")
            e(f"  v_subrev_u32 {vr(vSu2)}, 384, {vr(t1)}")
            e(f"  v_min_u32 {vr(t1)}, {vr(t1)}, {vr(vSu2)}")
            e(f"  v_mul_u32_u24 {vr(t0)}, 384, {vr(t0)}")
            e(f"  v_add3_u32 {vr(vTA + k)}, {vr(t0)}, {vr(t1)}, s{sT1}")
        e(f"  v_lshl_add_u32 {vr(vSum)}, s{sJ}, 4, {vr(s_)}")
        for n, i in SPECIAL.items():
            run, sx = RUN[n >> 3], 15 * (n & 7 == 7)
            b = int(run == 0)
            g0, g1 = 256 * run + 128 * b + 16 * (n & 7) + sx, chunk_of(b, n, sx)
            dt = 384 * (tidx(b, g1 // 3) - (g0 // 3 - 43 * b - 42 * run))
            e(f"  v_cmp_eq_u32 vcc, {16 * b + sx}, {vr(vSum)}")
            e(f"  v_add_u32 {vr(t0)}, {256 * (g1 - g0) & 0xffffffff:#x}, {vr(voff + (n >> 3))}")
            e(f"  v_add_u32 {vr(t1)}, {toff_(n)}, {vr(vTA + TN[n])}")
            e(f"  v_add_u32 {vr(vSu2)}, {dt & 0xffffffff:#x}, {vr(t1)}")
            e(f"  v_cndmask_b32 {vr(voff + 3 + i)}, {vr(voff + (n >> 3))}, {vr(t0)}, vcc")
            e(f"  v_cndmask_b32 {vr(vTA + 3 + i)}, {vr(t1)}, {vr(vSu2)}, vcc")
        e(f"  v_lshlrev_b32 {vr(vLB)}, 2, v0")
        e(f"  v_add_u32 {vr(vLB)}, {LGB}, {vr(vLB)}")
        e(f"  v_lshrrev_b32 {vr(t1)}, 1, v0")
        e(f"  v_lshlrev_b32 {vr(t1)}, 2, {vr(t1)}")
        e(f"  v_add_u32 {vr(vLB + 1)}, {LGB + 1024}, {vr(t1)}")
        e(f"  v_mov_b32 {vr(vLG)}, {vr(vLB)}")
        e(f"  v_mov_b32 {vr(vLG + 1)}, {vr(vLB + 1)}")
        e(f"  v_lshlrev_b32 {vr(vPW)}, 2, {vr(w_)}")
        e(f"  s_mov_b32 s{sMSK}, 0xcccccccc")
        e(f"  s_mov_b32 s{sMSK + 1}, s{sMSK}")
        e(f"  s_mov_b32 s{sMSK + 2}, 0xaaaaaaaa")
        e(f"  s_mov_b32 s{sMSK + 3}, s{sMSK + 2}")
        e(f"  s_mov_b32 s{rB + 2}, {HB}")
        e(f"  s_mov_b32 s{rB + 3}, 0x20000")
        e(f"  s_mov_b32 s{sK}, 0")
        if P.ctl:
            e("; progress slots: this wave writes one byte of line (half, w) and samples the lines of the other half")
            die_base(sF)
            e(f"  s_add_u32 s{sT0}, s{sF}, 2048")
            e(f"  v_mov_b32 {vr(vBA)}, s{sT0}")
            e(f"  s_and_b32 s{sT1}, s{sSE}, 2")
            e(f"  s_lshl_b32 s{sT1}, s{sT1}, 9")
            e(f"  s_lshl_b32 s{sT0}, s{sW}, 8")
            e(f"  s_add_u32 s{sT0}, s{sT0}, s{sT1}")
            e(f"  s_add_u32 s{sT0}, s{sT0}, s{sF}")
            e(f"  s_add_u32 s{sT0}, s{sT0}, s{sCU}")
            e(f"  s_and_b32 s{sSE}, s{sSE}, 1")
            e(f"  s_lshl_b32 s{sSE}, s{sSE}, 4")
            e(f"  s_add_u32 s{sT0}, s{sT0}, s{sSE}")
            e(f"  v_mov_b32 {vr(vPS)}, s{sT0}")
            e(f"  s_xor_b32 s{sT1}, s{sT1}, 1024")
            e(f"  s_add_u32 s{sF}, s{sF}, s{sT1}")
            e(f"  v_and_b32 {vr(vN)}, 1, v0")
            e(f"  v_lshl_add_u32 {vr(vN)}, {vr(vN)}, 4, s{sF}")
            e(f"  v_bfe_u32 {vr(t1)}, v0, 1, 2")
            e(f"  v_mad_u32_u24 {vr(t1)}, {vr(t1)}, {4 // P.nl}, {vr(w_)}")
            for k in range(4):
                e(f"  v_add_u32 {vr(vSum)}, {k}, {vr(t1)}")
                e(f"  v_and_b32 {vr(vSum)}, 3, {vr(vSum)}")
                e(f"  v_lshl_add_u32 {vr(vPL + k)}, {vr(vSum)}, 8, {vr(vN)}")
            e(f"  s_mov_b32 s{sLO}, {(-(LAG + 2) * 0x01010101) & 0xffffffff:#x}")
            for k in range(4 * LAG):
                e(f"  v_mov_b32 {vr(smp + k)}, 0")
            for k in range(P.nr):
                e(f"  v_mov_b32 {vr(vBI + k)}, 0")
            e(f"  s_mov_b32 s{sN}, 0")
            e(f"  s_mov_b32 s{sB}, 0")
            if P.wo:
                e(f"  s_mov_b32 s{sCO}, 0")
            if P.pb:
                e("; the two halves of the clusters run half a group apart, so that their bursts interleave")
                e(f"  s_bitcmp1_b32 s2, {P.pbb}")
                e(f"  s_cselect_b32 s{sPB}, {P.pb}, {-P.pb}")
                if P.pc:
                    e(f"  s_bitcmp1_b32 s2, {P.pcb}")
                    e(f"  s_cselect_b32 s{sT0}, {P.pc}, {-P.pc}")
                    e(f"  s_add_u32 s{sPB}, s{sPB}, s{sT0}")
                if P.pw:
                    e(f"  s_mul_i32 s{sT0}, s{sW}, {2 * P.pw}")
                    e(f"  s_add_u32 s{sPB}, s{sPB}, s{sT0}")
                    e(f"  s_sub_u32 s{sPB}, s{sPB}, {3 * P.pw}")
            e(f"  s_mov_b32 s{sS}, {P.lo}")
            e(f"  s_mov_b32 s{sI}, 0")
        e(f"  s_add_u32 s{sF}, s{sC}, 16")
        srd_head(rB, sQK, sF)

    def sincos(dst, iv):
        for h in (0, 2):
            e(f"  v_pk_mul_f32 {vr(tA + h, 2)}, {vr(iv + h, 2)}, {vr(tK + 2, 2)} op_sel:[0,1] op_sel_hi:[1,1]")
        if iv == invY:
            for h in (0, 2):
                e(f"  v_pk_mul_f32 {vr(tN + h, 2)}, {vr(tA + h, 2)}, {vr(tK, 2)} op_sel_hi:[1,0]")
        else:
            for h in (0, 2):
                e(f"  v_pk_fma_f32 {vr(tN + h, 2)}, {vr(tA + h, 2)}, {vr(tK, 2)}, {vr(tK, 2)} op_sel:[0,0,1] op_sel_hi:[1,0,1]")
            for h in (0, 2):
                e(f"  v_pk_add_f32 {vr(tN + h, 2)}, {vr(tN + h, 2)}, {vr(tK, 2)} op_sel:[0,1] op_sel_hi:[1,1] neg_lo:[0,1] neg_hi:[0,1]")
            for h in (0, 2):
                e(f"  v_pk_fma_f32 {vr(tN + h, 2)}, {vr(tA + h, 2)}, {vr(tK, 2)}, {vr(tN + h, 2)} op_sel_hi:[1,0,1] neg_lo:[0,0,1] neg_hi:[0,0,1]")
            for h in (0, 2):
                e(f"  v_pk_fma_f32 {vr(tN + h, 2)}, {vr(tA + h, 2)}, {vr(tK + 2, 2)}, {vr(tN + h, 2)} op_sel_hi:[1,0,1]")
        for i in range(4):
            e(f"  v_cos_f32 {vr(tA + i)}, {vr(tN + i)}")
        for i in range(4):
            e(f"  v_sin_f32 {vr(tN + i)}, {vr(tN + i)}")
        for i in range(4):
            e(f"  v_cvt_pk_bf16_f32 {vr(dst + i)}, {vr(tA + i)}, {vr(tN + i)}")

    kp = [int(v) for v in P.kp_.split(",")]

    def chunk(i):
        a = 2 * (i // 3)
        d = tO + 4 * (i & 1)
        bc_ = lambda x, m: f"row_newbcast:{x} row_mask:0xf bank_mask:{m:#x}"
        if i % 3 == 1:
            e(f"  v_mov_b32_dpp {vr(pos)}, {vr(vRF)} {bc_(a + 1, 12)}")
            e(f"  v_add_u32_dpp {vr(vF)}, {vr(vAD)}, {vr(vC8)} {bc_(a, 3)}")
            e(f"  v_add_u32_dpp {vr(vF)}, {vr(vAD)}, {vr(vC8)} {bc_(a + 1, 12)}")
            sincos(d, invY)
            e(f"  ds_write_b128 {vr(vF)}, {vr(d, 4)} offset:{TB + 256}")
        else:
            a += i % 3 // 2
            e(f"  v_mov_b32_dpp {vr(pos)}, {vr(vRF)} {bc_(a, 15)}")
            e(f"  v_add_u32_dpp {vr(vF)}, {vr(vAD)}, {vr(vC16)} {bc_(a, 15)}")
            sincos(d, invX)
            e(f"  ds_write_b128 {vr(vF)}, {vr(d, 4)} offset:{TB}")

    def tab_read(a):
        for n in range(3 * a, 3 * a + 3):
            d = tab + 12 * (a & 1) + 4 * (n % 3)
            if n in SPECIAL:
                e(f"  ds_read_b128 {vr(d, 4)}, {vr(vTA + 3 + SPECIAL[n])}")
            else:
                e(f"  ds_read_b128 {vr(d, 4)}, {vr(vTA + TN[n])} offset:{toff_(n)}")

    c_hi = f32bits(1 / (2 * math.pi))
    c_lo = f32bits(1 / (2 * math.pi) - struct.unpack("<f", struct.pack("<I", c_hi))[0])
    e(f"  v_mov_b32 {vr(tK)}, {c_hi:#x}")
    e(f"  v_mov_b32 {vr(tK + 1)}, {f32bits(1.5 * 2 ** 23):#x}")
    e(f"  v_mov_b32 {vr(tK + 2)}, {c_lo:#x}")
    k_loads(kp[0])
    pf()
    e(f"  s_waitcnt vmcnt({nk[0]})")
    pf()
    for i in range(12):
        if i == P.su:
            setup()
            pf()
        chunk(i)
        k_loads(kp[i + 1])
        if i % 3 == 2:
            pf()
    k_loads(PRE)
    e(f"  v_mov_b32 {vr(bc)}, {f32bits(-7.5):#x}")
    e("  s_waitcnt lgkmcnt(0)")
    e("  s_barrier")
    pf()
    e("  s_mov_b64 vcc, 0")
    for k in range(3):
        e(f"  ds_read_b128 {vr(qa + 4 * k, 4)}, {vr(vQA + k)}")
    tab_read(0)
    e(f"  s_waitcnt vmcnt({PRE - 1})")
    pf()
    if P.tfine:
        e("  s_waitcnt lgkmcnt(0)")
        for k in range(pfn[0]):
            e(f"  v_writelane_b32 {vr(vtr)}, s{PFR[k]}, {k}")
        e(f"  s_mov_b32 m0, {pfn[0]}")

    def vfirst():
        e(f"  s_and_b32 s{sH}, s{sVO}, 15")
        e(f"  s_add_u32 s{sNEED}, s{sH}, 1")
        e(f"  ds_read_b32 {vr(vF)}, {vr(vZ)} offset:{FL + 20}")
        flagwait("a0", FL + 20)
        e(f"  s_mulk_i32 s{sH}, 1536")
        for k in range(2):
            e(f"  v_add_u32 {vr(vLV + k)}, s{sH}, {vr(vLB + k)}")
        e(f"  ds_read_b32 {vr(A)}, {vr(vLV)}")

    assert all(x[3] < 14 for x in sch)

    def kred(n):
        dpp = lambda d, x, how, m: e(f"  v_add_f32_dpp {vr(d)}, {vr(x)}, {vr(x)} {how} row_mask:0xf bank_mask:{m:#x}")
        dpp(M1, dacc, "row_ror:8", 12 if n & 1 else 3)
        if n % 2 == 1:
            e("  s_nop 1")
            dpp(M2, M1, "row_half_mirror", 10 if n & 2 else 5)
        if n % 4 == 3:
            e("  s_nop 1")
            dpp(M2 if n & 4 else M3, M2, "quad_perm:[2,3,0,1]", 15)
        if n % 8 == 7:
            e(f"  v_cndmask_b32_e64 {vr(M3)}, {vr(M3)}, {vr(M2)}, s[{sMSK}:{sMSK + 1}]")
            e("  s_nop 1")
            dpp((LG, M3, LG + 1)[n >> 3], M3, "quad_perm:[1,0,3,2]", 15)
        if n == 15:
            e(f"  v_cndmask_b32_e64 {vr(LG)}, {vr(LG)}, {vr(M3)}, s[{sMSK + 2}:{sMSK + 3}]")

    e(".p2align 6")
    e("L_k:")
    e(f"  s_add_u32 s{sT0}, s{sK}, 2")
    e(f"  s_min_u32 s{sNEED}, s{sT0}, 16")
    for k in range(3):
        e(f"  v_add_u32 {vr(vQA + k)}, 768, {vr(vQA + k)}")
    for a in range(8):
        if a == 7:
            flagwait("qn", FL + 16)
        else:
            e("  s_waitcnt lgkmcnt(0)")
        if "t" not in P.xp:
            tab_read((a + 1) % 8)
        if a == 6:
            e(f"  ds_read_b32 {vr(vF)}, {vr(vZ)} offset:{FL + 16}")
        if a == P.ev and P.ev:
            e(f"  s_cmp_eq_u32 s{sK}, 15")
            e("  s_cbranch_scc0 L_kv")
            vfirst()
            e("L_kv:")
        for j in range(3):
            if j == CP:
                control(a)
            if j == DP:
                decide(a)
            n = 3 * a + j
            k_ = ring + 4 * n
            q_ = qa + 4 * TN[n]
            for i in range(4):
                e(f"  v_dot2_f32_bf16 {vr(wt + i)}, {vr(tab + 12 * (a & 1) + 4 * j + i)}, {vr(q_ + i)}, 0")
            for i in range(4):
                e(f"  v_cvt_f32_i32 {vr(k_ + i)}, {vr(k_ + i)}")
            if a == 7:
                e(f"  ds_read_b128 {vr(q_, 4)}, {vr(vQA + TN[n])}")
            for h in range(2):
                e(f"  v_pk_add_f32 {vr(k_ + 2 * h, 2)}, {vr(k_ + 2 * h, 2)}, {vr(bc, 2)} op_sel_hi:[1,0]")
            e(f"  v_pk_mul_f32 {vr(dacc, 2)}, {vr(k_, 2)}, {vr(wt, 2)}")
            e(f"  v_pk_fma_f32 {vr(dacc, 2)}, {vr(k_ + 2, 2)}, {vr(wt + 2, 2)}, {vr(dacc, 2)}")
            e(f"  v_add_f32 {vr(dacc)}, {vr(dacc)}, {vr(dacc + 1)}")
            if j == TP:
                throttle(a)
            pace(n, P.hi)
            if str(j) in P.bar:
                e("  s_barrier")
            ld(n + PRE)
            share(a, j)
            if "k" not in P.xp:
                kred(n)
        if a in (3, 7) or P.tfine:
            tr()
    assert sorted(TN[21:]) == [0, 1, 2] and sorted(TN[:3]) == [0, 1, 2]
    e(f"  s_add_u32 s{sK}, s{sK}, 1")
    e(f"  v_mov_b32 {vr(vF)}, s{sK}")
    for k in range(2):
        e(f"  ds_write_b32 {vr(vLG + k)}, {vr(LG + k)}")
    e(f"  ds_write_b32 {vr(vPW)}, {vr(vF)} offset:{FL}")
    for k in range(2):
        e(f"  v_add_u32 {vr(vLG + k)}, 1536, {vr(vLG + k)}")
    e(f"  s_mov_b64 s[{rA}:{rA + 1}], s[{rB}:{rB + 1}]")
    e(f"  s_add_u32 s{sH}, s{sK}, 1")
    e(f"  s_sub_u32 s{sT1}, s{sH}, 16")
    vstep_k(sF, sT1)
    e(f"  s_cmp_lt_u32 s{sH}, 16")
    e(f"  s_cselect_b32 s{sH}, s{sH}, s{sF}")
    e(f"  s_cselect_b32 s{sX}, s{sQK}, s{sQV}")
    e(f"  s_cselect_b32 s{sX + 1}, s{sQK + 1}, s{sQV + 1}")
    head_of(sH, sH)
    srd_head(rB, sX, sH)
    e(f"  s_cmp_lt_u32 s{sK}, 16")
    e("  s_cbranch_scc1 L_k")

    e("L_vpre:")
    dist[0] = PD
    e(f"  s_mov_b32 s{sK}, 0")
    if not P.ev:
        vfirst()
    e(".p2align 6")
    e("L_v:")
    e(f"  s_add_u32 s{sT1}, s{sK}, 1")
    e(f"  s_min_u32 s{sT1}, s{sT1}, 15")
    vstep_k(sH, sT1)
    e(f"  s_add_u32 s{sNEED}, s{sH}, 1")
    e(f"  s_mulk_i32 s{sH}, 1536")
    e("  s_waitcnt lgkmcnt(0)")
    e(f"  ds_read_b32 {vr(A + 1)}, {vr(vLV + 1)}")
    for k in range(2):
        e(f"  v_add_u32 {vr(vLV + k)}, s{sH}, {vr(vLB + k)}")
    for a in range(8):
        if a == 5 or (P.wc and a not in (0, 6)):
            e("  s_waitcnt lgkmcnt(0)")
        if a == 5:
            e(f"  ds_read_b32 {vr(vF)}, {vr(vZ)} offset:{FL + 20}")
        if a == 6:
            flagwait("an", FL + 20)
            e(f"  ds_read_b32 {vr(A)}, {vr(vLV)}")
        for j in range(3):
            n = 3 * a + j
            if n + PD == 24:
                e("  s_cbranch_vccz L_in")
                e(f"  s_waitcnt vmcnt({drain['in']})")
                e("L_in:")
            if j in (CP, DP):
                if n + PD >= 24:
                    e(f"  s_cbranch_vccnz L_c{n}")
                if n < PRE - PD:
                    e(f"  s_cmp_eq_u32 s{sK}, 0")
                    e(f"  s_cbranch_scc1 L_c{n}")
                if j == CP:
                    control(a)
                if j == DP:
                    decide(a)
                if n + PD >= 24 or n < PRE - PD:
                    e(f"L_c{n}:")
            v_ = ring + 4 * n
            e(f"  v_mov_b32_dpp {vr(bc)}, {vr(A + n // 16)} row_newbcast:{rev(n % 16, 4)} row_mask:0xf bank_mask:0xf")
            for i in range(4):
                e(f"  v_cvt_f32_i32 {vr(v_ + i)}, {vr(v_ + i)}")
            for h in range(2):
                d = acc + 4 * TN[n] + 2 * h
                if a == 0:
                    e(f"  v_pk_mul_f32 {vr(d, 2)}, {vr(v_ + 2 * h, 2)}, {vr(bc, 2)} op_sel_hi:[1,0]")
                else:
                    e(f"  v_pk_fma_f32 {vr(d, 2)}, {vr(v_ + 2 * h, 2)}, {vr(bc, 2)}, {vr(d, 2)} op_sel_hi:[1,0,1]")
            if n + PD >= 24:
                e(f"  s_cbranch_vccz L_f{n}")
                if n < 23:
                    e(f"  s_waitcnt vmcnt({drain[n]})")
                e(f"  s_branch L_g{n}")
                e(f"L_f{n}:")
            if n < PRE - PD:
                e(f"  s_cmp_eq_u32 s{sK}, 0")
                e(f"  s_cbranch_scc0 L_f{n}")
                e(f"  s_waitcnt vmcnt({first[n]})")
                e(f"  s_branch L_g{n}")
                e(f"L_f{n}:")
            if j == TP:
                throttle(a)
            pace(n, P.hiv)
            if str(j) in P.bar:
                e("  s_barrier")
            ld(n + PD)
            share(a, j)
            if n + PD >= 24 or n < PRE - PD:
                e(f"L_g{n}:")
        if a in (3, 7):
            tr()
    e(f"  s_add_u32 s{sK}, s{sK}, 1")
    for j in range(3):
        e(f"  v_permlane32_swap_b32 {vr(acc + 4 * j)}, {vr(acc + 4 * j + 2)}")
        e(f"  v_permlane32_swap_b32 {vr(acc + 4 * j + 1)}, {vr(acc + 4 * j + 3)}")
    for j in range(3):
        e(f"  v_add_f32 {vr(acc + 4 * j)}, {vr(acc + 4 * j)}, {vr(acc + 4 * ((j + 1) % 3) + 2)}")
        e(f"  v_add_f32 {vr(acc + 4 * j + 1)}, {vr(acc + 4 * j + 1)}, {vr(acc + 4 * ((j + 1) % 3) + 3)}")
    e(f"  s_add_u32 s{sT0}, s{sK}, 16")
    e(f"  s_cmp_eq_u32 s{sK}, 15")
    e("  s_cselect_b64 vcc, -1, 0")
    if P.lb:
        e(f"  s_cselect_b32 s{sT1}, {P.lb}, 0")
        e(f"  s_add_u32 s{sB}, s{sB}, s{sT1}")
    e(f"  v_mov_b32 {vr(vF)}, s{sT0}")
    for j in range(3):
        e(f"  v_permlane16_swap_b32 {vr(acc + 4 * j)}, {vr(acc + 4 * j + 1)}")
    for j in range(3):
        e(f"  v_add_f32 {vr(acc + 4 * j)}, {vr(acc + 4 * j)}, {vr(acc + 4 * ((j + 2) % 3) + 1)}")
    for j in range(3):
        e(f"  ds_write_b32 {vr(vPA + j)}, {vr(acc + 4 * j)}")
    e(f"  ds_write_b32 {vr(vPW)}, {vr(vF)} offset:{FL}")
    for j in range(3):
        e(f"  v_add_u32 {vr(vPA + j)}, 3072, {vr(vPA + j)}")
    e(f"  s_mov_b64 s[{rA}:{rA + 1}], s[{rB}:{rB + 1}]")
    e(f"  s_add_u32 s{sT1}, s{sK}, 1")
    e(f"  s_min_u32 s{sT1}, s{sT1}, 15")
    vstep_k(sH, sT1)
    head_of(sH, sH)
    srd_head(rB, sQV, sH)
    e(f"  s_cmp_lt_u32 s{sK}, 16")
    e("  s_cbranch_scc1 L_v")
    if P.fb:
        e("  s_waitcnt lgkmcnt(0)")
        e("  s_barrier")
    if P.trace:
        e(f"  s_mul_i32 s8, s2, {5 * 256}")
        e("  s_add_u32 s8, s8, 0x100000")
        e(f"  v_lshl_add_u32 {vr(t0)}, v0, 2, s8")
        e(f"  global_store_dword {vr(t0)}, {vr(vtr)}, s[{sWS}:{sWS + 1}]")
    e("  s_endpgm")

    HP = [20, 22, 24, 8, 34, 36, 38, 72]
    NL = P.nr
    ms = [m for m in range(P.r0, P.r1 + 1) if m < P.rf or m > P.rt or (m - P.r0) % P.rp == 0]
    msk = sum(1 << m for m in ms)

    def hp(k):
        if P.hprof:
            e(f"  s_memrealtime s[{HP[k]}:{HP[k] + 1}]")

    def progwait(name, slp):
        e(f"L_{name}:")
        e(f"  ds_read_b128 {vr(pr, 4)}, {vr(vZ)} offset:{FL}")
        e("  s_waitcnt lgkmcnt(0)")
        e(f"  v_min_u32 {vr(pr)}, {vr(pr)}, {vr(pr + 1)}")
        e(f"  v_min3_u32 {vr(pr)}, {vr(pr)}, {vr(pr + 2)}, {vr(pr + 3)}")
        e("  s_nop 0")
        e(f"  v_readfirstlane_b32 s{sF}, {vr(pr)}")
        e(f"  s_cmp_ge_u32 s{sF}, s{sNEED}")
        e(f"  s_cbranch_scc1 L_{name}_ok")
        budget(f"L_{name}_ok")
        if slp:
            e(f"  s_sleep {slp}")
        e(f"  s_branch L_{name}")
        e(f"L_{name}_ok:")

    def rowred(op, v):
        for n in (8, 4, 2, 1):
            e("  s_nop 1")
            e(f"  {op}_dpp {vr(v)}, {vr(v)}, {vr(v)} row_ror:{n} row_mask:0xf bank_mask:0xf")

    def allred(op, v, t):
        rowred(op, v)
        for sw in ("v_permlane16_swap_b32", "v_permlane32_swap_b32"):
            e(f"  v_mov_b32 {vr(t)}, {vr(v)}")
            e("  s_nop 1")
            e(f"  {sw} {vr(v)}, {vr(t)}")
            e(f"  {op} {vr(v)}, {vr(v)}, {vr(t)}")

    def sum_partials(nq):
        w = 4 * nq
        for k in range(4):
            for q in range(nq):
                e(f"  ds_read_b128 {vr(x + w * k + 4 * q, 4)}, {vr(h0)} offset:{768 * k + 16 * q}")
        e(f"  ds_read_b128 {vr(z4, 4)}, {vr(h1)} offset:{ST}")
        e("  s_waitcnt lgkmcnt(0)")
        for h in range(0, w, 2):
            e(f"  v_pk_add_f32 {vr(x + h, 2)}, {vr(x + h, 2)}, {vr(x + w + h, 2)}")
            e(f"  v_pk_add_f32 {vr(x + 2 * w + h, 2)}, {vr(x + 2 * w + h, 2)}, {vr(x + 3 * w + h, 2)}")
        for h in range(0, w, 2):
            e(f"  v_pk_add_f32 {vr(x + h, 2)}, {vr(x + h, 2)}, {vr(x + 2 * w + h, 2)}")
        for h in range(0, w, 2):
            e(f"  v_pk_add_f32 {vr(x + h, 2)}, {vr(x + h, 2)}, {vr(z4 + 2, 2)} op_sel_hi:[1,0] neg_lo:[0,1] neg_hi:[0,1]")

    def warm(tag):
        if not P.tw:
            return
        e(f"  s_add_u32 s{sX}, s{sNEED}, {P.tw}")
        if P.tl:
            e(f"  s_cmp_eq_u32 s{sX}, 31")
        else:
            e(f"  s_cmp_lt_u32 s{sX}, 32")
        e(f"  s_cbranch_scc0 L_tw{tag}")
        e(f"  s_sub_u32 s{sT1}, s{sX}, 16")
        vstep_k(sF, sT1)
        e(f"  s_cmp_lt_u32 s{sX}, 16")
        e(f"  s_cselect_b32 s{sF}, s{sX}, s{sF}")
        e(f"  s_cselect_b32 s{rB}, s{sQK}, s{sQV}")
        e(f"  s_cselect_b32 s{rB + 1}, s{sQK + 1}, s{sQV + 1}")
        head_of(sF, sF)
        e(f"  s_and_b32 s{sT1}, s2, 7")
        e(f"  s_lshl3_add_u32 s{sF}, s{sF}, s{sT1}")
        e(f"  s_mul_i32 s{sF}, s{sF}, 6")
        e(f"  s_add_u32 s{sF}, s{sF}, s{sJ}")
        e(f"  s_add_u32 s{sF}, s{sF}, 2")
        e(f"  s_lshl_b32 s{sF}, s{sF}, 15")
        if P.tv:
            e(f"  v_mov_b32 {vr(vFR)}, s{sF}")
            e("  s_mov_b64 exec, 1")
            e(f"  global_load_dword {vr(vFI)}, {vr(vFR)}, s[{rB}:{rB + 1}]")
            e("  s_mov_b64 exec, -1")
        else:
            e(f"  s_load_dword s{sF}, s[{rB}:{rB + 1}], s{sF}")
            e("  s_waitcnt lgkmcnt(0)")
        e(f"L_tw{tag}:")

    def mark(tag):
        if not P.enc:
            return
        for k, m in enumerate(P.enc.split(",")[:2]):
            e(f"  s_cmp_eq_u32 s{sNEED}, {m}")
            e(f"  s_cbranch_scc0 L_mk{tag}{k}")
            e(f"  s_memrealtime s[{16 + 2 * k}:{17 + 2 * k}]")
            e(f"L_mk{tag}{k}:")

    def rank_post(tag):
        if not (P.ctl and NL):
            return
        e(f"  s_bitcmp1_b32 s{sRF}, s{sNEED}")
        e(f"  s_cbranch_scc0 L_fa{tag}")
        if P.sa:
            e(f"  s_mul_i32 s{sT0}, s{sNEED}, 384")
            e(f"  s_add_u32 s{sT0}, s{sT0}, {W_RK}")
            e(f"  s_mov_b32 s{sB}, 1")
            e(f"  s_atomic_add s{sB}, s[{sWS}:{sWS + 1}], s{sT0} glc")
        e(f"  s_lshl_b64 exec, 1, s{sNEED}")
        if not P.sa:
            e(f"  global_atomic_add {vr(vFR)}, {vr(vFA)}, {vr(vOne)}, s[{sWS}:{sWS + 1}] sc0 sc1")
        if P.ki:
            e(f"  global_load_dword {vr(vEL)}, {vr(vFB)}, s[{sWS}:{sWS + 1}] offset:8 sc1")
        e("  s_mov_b64 exec, -1")
        e(f"L_fa{tag}:")

    def rank_take(tag):
        if not (P.ctl and NL):
            return
        e(f"  s_bitcmp1_b32 s{sRF}, s{sNEED}")
        e(f"  s_cbranch_scc0 L_fb{tag}")
        e("  s_waitcnt vmcnt(0) lgkmcnt(0)")
        if P.sa:
            e(f"  s_min_u32 s{sF}, s{sB}, {8 * NL - 1}")
        else:
            e(f"  v_sub_u32 {vr(vFX)}, {vr(vFR)}, {vr(vFI)}")
            e("  s_nop 0")
            e(f"  v_readlane_b32 s{sF}, {vr(vFX)}, s{sNEED}")
            e(f"  s_min_u32 s{sF}, s{sF}, {8 * NL - 1}")
        e(f"  s_lshl_b32 s{sF}, s{sF}, 1")
        e(f"  s_sub_u32 s{sF}, s{sF}, {8 * NL - 1}")
        if P.ki:
            e(f"  v_readlane_b32 s{sI}, {vr(vEL)}, s{sNEED}")
            e(f"  s_mul_i32 s{sT1}, s{sF}, {P.ki}")
            e(f"  s_ashr_i32 s{sT0}, s{sI}, {P.leak}")
            e(f"  s_sub_u32 s{sI}, s{sI}, s{sT0}")
            if P.streak:
                e(f"  s_mul_i32 s{sT0}, s{sI}, s{sF}")
                e(f"  s_cmp_lt_i32 s{sT0}, 0")
                e(f"  s_cselect_b32 s{sI}, 0, s{sI}")
            e(f"  s_add_u32 s{sT1}, s{sT1}, s{sI}")
            e(f"  v_mov_b32 {vr(vEL)}, s{sT1}")
        e(f"  s_cmp_le_u32 s{sNEED}, {P.kn}")
        e(f"  s_cselect_b32 s{sT0}, {P.kp0}, {P.kp}")
        e(f"  s_mul_i32 s{sF}, s{sF}, s{sT0}")
        e(f"  s_add_u32 s{sF}, s{sF}, s{sI}")
        e(f"  s_add_u32 s{sF}, s{sF}, 8")
        e(f"  s_ashr_i32 s{sF}, s{sF}, 4")
        e(f"  v_mov_b32 {vr(vFX)}, s{sF}")
        e("  s_mov_b64 exec, 1")
        e(f"  global_store_dword {vr(vFB)}, {vr(vFX)}, s[{sWS}:{sWS + 1}]")
        if P.ki:
            e(f"  global_store_dword {vr(vFB)}, {vr(vEL)}, s[{sWS}:{sWS + 1}] offset:8")
        e("  s_mov_b64 exec, -1")
        e(f"L_fb{tag}:")

    HPF = [10, 16, 18, 20, 22, 72, 74, 76, 60, 62]
    hpn = [0]

    def hpf():
        if P.tfine:
            e(f"  s_memrealtime s[{HPF[hpn[0]]}:{HPF[hpn[0]] + 1}]")
            hpn[0] += 1

    e("L_helper:")
    e(f"  s_setprio {P.hp0}")
    e(f"  v_and_b32 {vr(h1)}, 32, v0")
    e(f"  v_lshrrev_b32 {vr(h1)}, 1, {vr(h1)}")
    e(f"  v_add_u32 {vr(sg2)}, s{sC}, {vr(h1)}")
    e(f"  v_mad_u32_u24 {vr(ra)}, {vr(sg2)}, s{sNEED}, {vr(vL16)}")
    e(f"  v_lshrrev_b32 {vr(ra)}, 1, {vr(ra)}")
    hv = []

    def half(p, full):
        if p in (2, 3):
            e(f"  s_mov_b32 exec_hi, {0 if p == 2 else full}")
        if p in (5, 6):
            e(f"  s_mov_b32 exec_lo, {0 if p == 5 else full}")

    def sc_early():
        e(f"  s_and_b32 s{sT1}, s2, 7")
        e(f"  v_lshl_add_u32 {vr(wb)}, s{sT1}, 9, {vr(vL16)}")
        e(f"  v_lshl_add_u32 {vr(ra)}, {vr(sg2)}, 12, {vr(wb)}")
        for p in range(1, 8):
            e(f"  v_add_u32 {vr(ra + p)}, {0x20000 * p:#x}, {vr(ra)}")
        for p in range(8):
            half(p, -1)
            for i, sp in enumerate((sKS, sVS)):
                e(f"  s_mov_b32 m0, {SCB + SA * i + 1024 * p}")
                e("  s_nop 0")
                if "s" not in P.xp:
                    e(f"  global_load_lds_dwordx4 {vr(ra + p)}, s[{sp}:{sp + 1}] {P.sf}")
                    hv.append(("s", p))

    for p in range(1, 8):
        e(f"  v_add_u32 {vr(ra + p)}, {12288 * p}, {vr(ra)}")
    e("  s_mov_b32 exec_lo, 0xffffff")
    e("  s_mov_b32 exec_hi, 0xffffff")
    e("  s_waitcnt lgkmcnt(0)")
    hpf()
    for p in range(8):
        half(p, "0xffffff")
        e(f"  global_load_dwordx2 {vr(rec + 4 * p, 2)}, {vr(ra + p)}, s[{sQ}:{sQ + 1}]")
        e(f"  global_load_dwordx2 {vr(rec + 4 * p + 2, 2)}, {vr(ra + p)}, s[{sQ}:{sQ + 1}] offset:192")
        hv.extend([("q", p)] * 2)
    e("  s_mov_b64 exec, -1")
    hpf()
    if P.ss == 0:
        sc_early()
    common()
    e(f"  s_load_dword s{sO}, s[{sRT}:{sRT + 1}], 24")
    e(f"  s_load_dwordx2 s[{sOH}:{sOH + 1}], s[{sRT}:{sRT + 1}], 16")
    e(f"  v_mov_b32 {vr(l)}, v0")
    for i in range(4):
        e(f"  v_mov_b32 {vr(z4 + i)}, 0")
    e(f"  ds_write_b128 {vr(vZ)}, {vr(z4, 4)} offset:{FL}")
    e(f"  ds_write_b128 {vr(vZ)}, {vr(z4, 4)} offset:{FL + 16}")
    e(f"  s_mov_b32 s{sMASK}, 0xffff0000")
    e(f"  s_mov_b32 s{sSCALE}, {f32bits(math.log2(math.e) / math.sqrt(192.0)):#x}")
    e(f"  v_mad_u32_u24 {vr(wa)}, {vr(h1)}, 48, {vr(vL16)}")
    e(f"  v_mov_b32 {vr(vOne)}, 1")
    e(f"  s_waitcnt vmcnt({len(hv)})")
    for k in range(4):
        e(f"  v_lshlrev_b32 {vr(cs + k)}, 16, {vr(pr + k)}")
        e(f"  v_and_b32 {vr(cs + 4 + k)}, s{sMASK}, {vr(pr + k)}")
    e("  s_waitcnt lgkmcnt(0)")
    hpf()
    e(f"  v_min_u32 {vr(h0)}, 2, {vr(l)}")
    e(f"  v_lshlrev_b32 {vr(h1)}, 3, {vr(h0)}")
    e(f"  v_bfe_u32 {vr(h1)}, s{sCT}, {vr(h1)}, 8")
    e(f"  v_mul_u32_u24 {vr(vCNT)}, 4352, {vr(h1)}")
    e(f"  v_add_u32 {vr(vCNT)}, {W_CNT}, {vr(vCNT)}")
    e(f"  v_and_b32 {vr(h1)}, 15, {vr(h1)}")
    e(f"  v_lshlrev_b32 {vr(vDB)}, 4, {vr(h1)}")
    e(f"  v_lshl_add_u32 {vr(h0)}, {vr(h0)}, 4, s{sC}")
    e(f"  v_mul_u32_u24 {vr(vCL)}, 4352, {vr(h0)}")
    e(f"  v_add_u32 {vr(vCL)}, {W_CNT}, {vr(vCL)}")
    if P.ctl:
        die_base(sF)
        e(f"  v_lshrrev_b32 {vr(h0)}, 1, {vr(l)}")
        e(f"  v_lshl_add_u32 {vr(vFX)}, {vr(h0)}, 8, s{sF}")
        e(f"  v_and_b32 {vr(h0)}, 1, {vr(l)}")
        e(f"  v_lshl_add_u32 {vr(vFX)}, {vr(h0)}, 4, {vr(vFX)}")
        e(f"  s_and_b32 s{sT1}, s{sSE}, 2")
        e(f"  s_lshl_b32 s{sT0}, s{sT1}, 9")
        e(f"  s_add_u32 s{sT0}, s{sT0}, s{sF}")
        if NL == 4:
            e(f"  s_and_b32 s{sT1}, s{sSE}, 1")
            e(f"  s_lshl4_add_u32 s{sT0}, s{sT1}, s{sT0}")
            e(f"  s_lshl_b32 s{sT1}, s{sSE}, 1")
        e(f"  v_add_u32 {vr(vEL)}, s{sT0}, {vr(l)}")
        e(f"  s_lshl_b32 s{sT1}, s{sT1}, 1")
        e(f"  s_add_u32 s{sF}, s{sF}, s{sT1}")
        e(f"  s_add_u32 s{sF}, s{sF}, 2048")
        e(f"  v_mov_b32 {vr(vFB)}, s{sF}")
        e(f"  v_mul_u32_u24 {vr(vFA)}, 384, {vr(l)}")
        e(f"  v_add_u32 {vr(vFA)}, {W_RK}, {vr(vFA)}")
        e(f"  v_mov_b32 {vr(vFI)}, 0")
        e(f"  v_mov_b32 {vr(vFR)}, 0")
        e(f"  s_mov_b32 s{sI}, 0")
        e(f"  s_mov_b32 s{sN}, 0")
        e(f"  s_mov_b32 s{sRF}, 0")

    def ctl_init():
        if not P.ctl:
            return
        e("  s_mov_b64 exec, 0x3ffff")
        e(f"  global_store_dwordx4 {vr(vFX)}, {vr(z4, 4)}, s[{sWS}:{sWS + 1}]")
        e("  s_mov_b64 exec, -1")

    def elect():
        if not P.ctl:
            return
        e(f"  s_cmp_eq_u32 s{sNEED}, {P.r0 - 1}")
        e("  s_cbranch_scc0 L_el")
        if NL == 2:
            e(f"  s_bitcmp0_b32 s{sSE}, 0")
            e("  s_cbranch_scc0 L_el")
        e("  s_mov_b64 exec, 0xffff")
        e(f"  global_load_ubyte {vr(vFX)}, {vr(vEL)}, s[{sWS}:{sWS + 1}] sc1")
        e("  s_waitcnt vmcnt(0)")
        e(f"  v_cmp_ne_u32 s[{sZ}:{sZ + 1}], 0, {vr(vFX)}")
        e(f"  s_lshr_b32 s{sT0}, s{sZ}, s{sCU}")
        e(f"  s_bcnt1_i32_b32 s{sT0}, s{sT0}")
        if P.rotl:
            pat = sum(1 << m for m in range(0, 32, P.rotl))
            assert all((pat << r) & msk for r in range(P.rotl))
            e(f"  s_sub_u32 s{sT1}, s{sT0}, 1")
            e(f"  s_cmp_lt_u32 s{sT1}, {P.rotl}")
            e("  s_cbranch_scc0 L_el")
            e(f"  s_lshl_b32 s{sRF}, {pat:#x}, s{sT1}")
            e(f"  s_and_b32 s{sRF}, s{sRF}, {msk:#x}")
            if not P.sa:
                e(f"  s_mov_b32 exec_lo, s{sRF}")
                e(f"  global_load_dword {vr(vFI)}, {vr(vFA)}, s[{sWS}:{sWS + 1}] sc1")
            e(f"  s_cmp_eq_u32 s{sT0}, {P.lx}")
            e("  s_cbranch_scc0 L_el")
        else:
            e(f"  s_cmp_eq_u32 s{sT0}, {P.lx}")
            e("  s_cbranch_scc0 L_el")
            e(f"  s_mov_b32 s{sRF}, {msk:#x}")
            e(f"  s_mov_b64 exec, {msk:#x}")
            e(f"  global_load_dword {vr(vFI)}, {vr(vFA)}, s[{sWS}:{sWS + 1}] sc1")
        if P.cpf:
            e("; pull the code that has not run yet into this die's L2")
            e("  s_mov_b64 exec, -1")
            e(f"  s_getpc_b64 s[{sZ}:{sZ + 1}]")
            e("L_pc2:")
            e(f"  s_sub_u32 s{sZ}, s{sZ}, L_pc2-L_vpre")
            e(f"  s_subb_u32 s{sZ + 1}, s{sZ + 1}, 0")
            e(f"  v_lshlrev_b32 {vr(vFX)}, 7, {vr(l)}")
            e(f"  global_load_dword {vr(rec)}, {vr(vFX)}, s[{sZ}:{sZ + 1}]")
            e(f"  v_add_u32 {vr(vFX)}, L_order-L_vpre-8192, {vr(vFX)}")
            e(f"  global_load_dword {vr(rec + 1)}, {vr(vFX)}, s[{sZ}:{sZ + 1}]")
        e("L_el:")
        e("  s_mov_b64 exec, -1")

    def patch(what):
        e(f"  s_bfe_u32 s{sT0}, s{sCN + 1}, {(4 << 16) | 8:#x}")
        e(f"  s_bfe_u32 s{sT1}, s{sCN}, {(4 << 16) | 20:#x}")
        e(f"  s_addk_i32 s{sT0}, 160")
        e(f"  s_addk_i32 s{sT1}, 80")
        for p, sh_, ex in ((5, sT0, "exec_hi"), (2, sT1, "exec_lo")):
            if what == "q":
                e(f"  s_mulk_i32 s{sh_}, 384")
                e(f"  v_lshrrev_b32 {vr(h0)}, 1, {vr(vL16)}")
                e(f"  v_add_u32 {vr(h0)}, s{sh_}, {vr(h0)}")
                qmask(1)
                e(f"  s_mov_b32 {ex}, 0")
                e(f"  global_load_dwordx2 {vr(rec + 4 * p, 2)}, {vr(h0)}, s[{sQ}:{sQ + 1}]")
                e(f"  global_load_dwordx2 {vr(rec + 4 * p + 2, 2)}, {vr(h0)}, s[{sQ}:{sQ + 1}] offset:192")
                hv.extend([("q", p)] * 2)
            else:
                e(f"  v_lshl_add_u32 {vr(h0)}, s{sh_}, 12, {vr(wb)}")
                e(f"  s_mov_b32 {ex}, 0")
                for i, sp in enumerate((sKS, sVS)):
                    e(f"  s_mov_b32 m0, {SCB + SA * i + 1024 * p}")
                    e("  s_nop 0")
                    if "s" not in P.xp:
                        e(f"  global_load_lds_dwordx4 {vr(h0)}, s[{sp}:{sp + 1}] {P.sf}")
                        hv.append(("s", p))
            qmask(0)

    def qmask(on):
        if on:
            e("  s_mov_b32 exec_lo, 0xffffff")
            e("  s_mov_b32 exec_hi, 0xffffff")
        else:
            e("  s_mov_b64 exec, -1")

    def rotate(p):
        L, Hh, LC, HS, HC, LS = x, x + 4, x + 8, x + 12, x + 16, x + 20
        qmask(1)
        if p == 0:
            hpf()
        e(f"  s_waitcnt vmcnt({hv[::-1].index(('q', p))})")
        if p == 0:
            hpf()
        for k in range(4):
            e(f"  v_lshlrev_b32 {vr(L + 2 * k)}, 16, {vr(rec + 4 * p + k)}")
            e(f"  v_and_b32 {vr(L + 2 * k + 1)}, s{sMASK}, {vr(rec + 4 * p + k)}")
        for d, q_, t_ in ((LC, L, cs), (HS, Hh, cs + 4), (HC, Hh, cs), (LS, L, cs + 4)):
            for h in (0, 2):
                e(f"  v_pk_mul_f32 {vr(d + h, 2)}, {vr(q_ + h, 2)}, {vr(t_ + h, 2)}")
        for i in range(4):
            e(f"  v_cvt_pk_bf16_f32 {vr(L + i)}, {vr(LC + i)}, {vr(HS + i)}")
            e(f"  v_cvt_pk_bf16_f32 {vr(Hh + i)}, {vr(HC + i)}, {vr(LS + i)}")
        for k in range(8):
            e(f"  v_lshlrev_b32 {vr(LC + k)}, 16, {vr(L + k)}")
            e(f"  v_and_b32 {vr(L + k)}, s{sMASK}, {vr(L + k)}")
        for h in (0, 2):
            e(f"  v_pk_add_f32 {vr(L + h, 2)}, {vr(LC + h, 2)}, {vr(L + h, 2)} neg_lo:[0,1] neg_hi:[0,1]")
            e(f"  v_pk_add_f32 {vr(Hh + h, 2)}, {vr(HS + h, 2)}, {vr(Hh + h, 2)}")
        for i in range(4):
            e(f"  v_cvt_pk_bf16_f32 {vr(LC + i)}, {vr(L + i)}, {vr(Hh + i)}")
            e(f"  v_cvt_pk_bf16_f32 {vr(HS + i)}, {vr(Hh + i)}, -{vr(L + i)}")
        e(f"  v_mov_b32 {vr(h0)}, {2 * p + 2}")
        e(f"  ds_write_b128 {vr(wa)}, {vr(LC, 4)} offset:{QB + 1536 * p}")
        e(f"  ds_write_b128 {vr(wa)}, {vr(HS, 4)} offset:{QB + 1536 * p + 384}")
        e(f"  ds_write_b32 {vr(vZ)}, {vr(h0)} offset:{FL + 16}")
        qmask(0)

    ctl_init()
    if P.ctl:
        hv.append(("c", 0))
    patch("q")
    e(f"  s_lshl_b32 s{sT0}, s{sJ}, 10")
    e(f"  s_add_u32 s{sT0}, s{sT0}, L_hpos-L_pc")
    e(f"  v_add_u32 {vr(h0)}, s{sT0}, {vr(vT16)}")
    e(f"  global_load_dwordx4 {vr(st4, 4)}, {vr(h0)}, s[{sZ}:{sZ + 1}]")
    hv.append(("h", 0))
    if P.ss == 1:
        sc_early()
    if P.ss <= 1:
        patch("s")
    rotate(0)
    hpf()
    if P.ss == 2:
        sc_early()
        patch("s")
    e("  s_waitcnt lgkmcnt(0)")
    e("  s_setprio 0")
    hpf()
    e("  s_barrier")
    hpf()
    if P.ss == 3:
        sc_early()
        patch("s")
    for p in range(7 if P.bar else 1, 8):
        rotate(p)
    e(f"  v_mov_b32 {vr(vSa)}, 0")
    e(f"  v_min_u32 {vr(u)}, 47, {vr(l)}")
    e(f"  v_lshlrev_b32 {vr(vL16)}, 4, {vr(u)}")
    for i in range(4):
        e(f"  v_mov_b32 {vr(sc + i)}, 0")
    e(f"  s_mov_b32 s{sNEED}, 1")
    if P.sa and P.ctl:
        e("; workgroup g < 32 clears ranking counter g")
        e("  s_cmp_lt_u32 s2, 32")
        e("  s_cbranch_scc0 L_rc")
        e("  s_lshl_b64 exec, 1, s2")
        e(f"  global_store_dword {vr(vFA)}, {vr(vZ)}, s[{sWS}:{sWS + 1}] sc1")
        e("  s_mov_b64 exec, -1")
        e("L_rc:")
    hpf()
    e("  s_waitcnt vmcnt(0)")
    hpf()
    if P.tfine:
        e("  s_waitcnt lgkmcnt(0)")
        e(f"  v_mov_b32 {vr(h0)}, 0")
        for k in range(hpn[0]):
            e(f"  v_writelane_b32 {vr(h0)}, s{HPF[k]}, {k}")
        e(f"  s_mul_i32 s{sT0}, s2, {5 * 256}")
        e(f"  s_add_u32 s{sT0}, s{sT0}, {0x100000 + 1024}")
        e(f"  v_lshl_add_u32 {vr(h1)}, v0, 2, s{sT0}")
        e(f"  global_store_dword {vr(h1)}, {vr(h0)}, s[{sWS}:{sWS + 1}]")
    for k in range(4):
        e(f"  v_and_b32 {vr(ro + 2 * k)}, 0xffff, {vr(st4 + k)}")
        e(f"  v_lshrrev_b32 {vr(ro + 2 * k + 1)}, 16, {vr(st4 + k)}")
    for k in range(2):
        e(f"  v_add_u32 {vr(ro + 6 + k)}, {SCB}, {vr(ro + 6 + k)}")
    if P.bar:
        e("; timing experiment: the helper only joins the barriers and ranks")
        e(f"  v_mov_b32 {vr(h0)}, 16")
        e(f"  ds_write_b32 {vr(vZ)}, {vr(h0)} offset:{FL + 20}")
        e(f"  s_mov_b32 s{sNEED}, 0")
        e("L_bb:")
        rank_post("b")
        for k in range(8 * len(P.bar)):
            e("  s_barrier")
            if k == 3 * len(P.bar) - 1:
                rank_take("b")
        e(f"  s_add_u32 s{sNEED}, s{sNEED}, 1")
        elect()
        e(f"  s_cmp_lt_u32 s{sNEED}, 31")
        e("  s_cbranch_scc1 L_bb")
        for k in range((8 - PRE // 3) * len(P.bar) + 1):
            e("  s_barrier")
        e("  s_branch L_fin")
    e("L_hk:")
    for a in range(2):
        for k in range(2):
            e(f"  ds_read_u16_d16_hi {vr(sc + 2 * a + k)}, {vr(ro + 6 + k)} offset:{SA * a}")
    progwait("hsw", P.psl)
    mark("s")
    rank_post("s")
    for k in range(6):
        e(f"  ds_read_b32 {vr(x + 4 + k)}, {vr(ro + k)} offset:{LGB}")
    e(f"  v_mul_f32 {vr(x + 2)}, s{sSCALE}, {vr(sc)}")
    e(f"  v_mul_f32 {vr(x + 3)}, s{sSCALE}, {vr(sc + 1)}")
    e("  s_waitcnt lgkmcnt(0)")
    e(f"  v_pk_add_f32 {vr(x, 2)}, {vr(x + 4, 2)}, {vr(x + 6, 2)}")
    e(f"  v_pk_add_f32 {vr(x, 2)}, {vr(x, 2)}, {vr(x + 8, 2)}")
    e(f"  v_mul_f32 {vr(x)}, {vr(x)}, {vr(x + 2)}")
    e(f"  v_mul_f32 {vr(x + 1)}, {vr(x + 1)}, {vr(x + 3)}")
    e(f"  v_max_f32 {vr(z4)}, {vr(x)}, {vr(x + 1)}")
    allred("v_max_f32", z4, h0)
    e(f"  v_sub_f32 {vr(x)}, {vr(x)}, {vr(z4)}")
    e(f"  v_sub_f32 {vr(x + 1)}, {vr(x + 1)}, {vr(z4)}")
    e(f"  v_exp_f32 {vr(x)}, {vr(x)}")
    e(f"  v_exp_f32 {vr(x + 1)}, {vr(x + 1)}")
    e("  s_nop 0")
    e(f"  v_add_f32 {vr(z4 + 1)}, {vr(x)}, {vr(x + 1)}")
    e(f"  v_mul_f32 {vr(x)}, {vr(x)}, {vr(sc + 2)}")
    e(f"  v_mul_f32 {vr(x + 1)}, {vr(x + 1)}, {vr(sc + 3)}")
    e(f"  v_add_f32 {vr(z4 + 2)}, {vr(x)}, {vr(x + 1)}")
    for k in range(6):
        e(f"  ds_write_b32 {vr(ro + k)}, {vr(x + (k & 1))} offset:{LGB}")
    e(f"  v_mul_f32 {vr(z4 + 2)}, {f32bits(7.5):#x}, {vr(z4 + 2)}")
    allred("v_add_f32", z4 + 1, h0)
    allred("v_add_f32", z4 + 2, h0)
    e(f"  v_mov_b32 {vr(h0)}, s{sNEED}")
    e(f"  ds_write_b128 {vr(vSa)}, {vr(z4, 4)} offset:{ST}")
    e(f"  ds_write_b32 {vr(vZ)}, {vr(h0)} offset:{FL + 20}")
    e(f"  v_add_u32 {vr(vSa)}, 16, {vr(vSa)}")
    for k in range(8):
        e(f"  v_add_u32 {vr(ro + k)}, {1536 if k < 6 else SL}, {vr(ro + k)}")
    rank_take("s")
    warm("s")
    if not P.bar:
        elect()
    e(f"  s_cmp_eq_u32 s{sNEED}, 14")
    e("  s_cbranch_scc0 L_hq_skip")
    e(f"  s_cmp_eq_u32 s{sO}, 0")
    e("  s_cbranch_scc0 L_hq_skip")
    e("  s_mov_b64 exec, 7")
    e(f"  global_store_dword {vr(vCL)}, {vr(vZ)}, s[{sWS}:{sWS + 1}] sc1")
    e("  s_waitcnt vmcnt(0)")
    e("  s_mov_b64 exec, 1")
    e(f"  global_store_dword {vr(vDB)}, {vr(vOne)}, s[{sDBG}:{sDBG + 1}] sc1")
    e("  s_mov_b64 exec, -1")
    e("L_hq_skip:")
    e("  s_waitcnt lgkmcnt(0)")
    e(f"  s_add_u32 s{sNEED}, s{sNEED}, 1")
    e(f"  s_cmp_le_u32 s{sNEED}, 16")
    e("  s_cbranch_scc1 L_hk")

    e(f"  v_and_b32 {vr(h2)}, 15, {vr(l)}")
    e(f"  v_lshlrev_b32 {vr(h2)}, 1, {vr(h2)}")
    e(f"  global_load_ushort {vr(h3)}, {vr(h2)}, s[{sRT}:{sRT + 1}] offset:32")
    e(f"  s_mov_b32 s{sK}, 0")
    e(f"  v_min_u32 {vr(wa)}, 23, {vr(l)}")
    e(f"  v_lshlrev_b32 {vr(wa)}, 4, {vr(wa)}")
    e(f"  v_lshlrev_b32 {vr(h0)}, 1, {vr(wa)}")
    e(f"  v_add_u32 {vr(h0)}, {PB}, {vr(h0)}")
    e(f"  v_add_u32 {vr(wa)}, {PK}, {vr(wa)}")
    e(f"  v_lshlrev_b32 {vr(sgn)}, 4, {vr(l)}")
    e(f"  s_mul_i32 s{sT0}, s2, 6144")
    e(f"  s_add_u32 s{sT0}, s{sT0}, {W_REC}")
    e(f"  v_add_u32 {vr(sgx)}, s{sT0}, {vr(sgn)}")
    e(f"  v_add_u32 {vr(sgn)}, {PK}, {vr(sgn)}")
    e(f"  v_cmp_gt_u32 vcc, 24, {vr(l)}")
    e(f"  v_add_u32 {vr(sg2)}, 4096, {vr(sgx)}")
    e(f"  v_lshrrev_b32 {vr(u)}, 1, {vr(vL16)}")
    e(f"  s_mul_i32 s{sT0}, s{sOH}, 384")
    e(f"  s_add_u32 s{sOUT}, s{sOUT}, s{sT0}")
    e(f"  s_addc_u32 s{sOUT + 1}, s{sOUT + 1}, 0")
    e(f"  s_lshl_b32 s{sT0}, s{sO}, 4")
    e(f"  s_add_u32 s{sT0}, s{sT0}, {W_REC}")
    e(f"  v_add_u32 {vr(h1)}, {W_REC}, {vr(u)}")
    e("  s_waitcnt vmcnt(0)")
    e(f"  v_or_b32 {vr(h2)}, 15, {vr(h3)}")
    e(f"  v_mul_u32_u24 {vr(h2)}, 384, {vr(h2)}")
    e(f"  v_mul_u32_u24 {vr(h3)}, 384, {vr(h3)}")
    e(f"  v_add_u32 {vr(ra + 15)}, s{sT0}, {vr(h2)}")
    e("  s_nop 0")
    for k in range(15):
        e(f"  v_add_u32_dpp {vr(ra + k)}, {vr(h3)}, {vr(h1)} row_newbcast:{k} row_mask:0xf bank_mask:0xf")
    e(f"  s_mov_b64 s[{sX}:{sX + 1}], 0")
    e("L_hp:")
    e(f"  s_min_u32 s{sT0}, s{sO}, 13")
    e(f"  s_cmp_eq_u32 s{sT0}, s{sK}")
    e("  s_cbranch_scc0 L_hc_ok")
    e("L_hc:")
    e(f"  global_load_dword {vr(pr)}, {vr(vDB)}, s[{sDBG}:{sDBG + 1}] sc1")
    e("  s_waitcnt vmcnt(0)")
    e(f"  v_cmp_ne_u32 s[{sZ}:{sZ + 1}], 1, {vr(pr)}")
    e(f"  s_cmp_eq_u64 s[{sZ}:{sZ + 1}], 0")
    e("  s_cbranch_scc1 L_hc_ok")
    budget("L_hc_ok")
    e("  s_sleep 64")
    e("  s_branch L_hc")
    e("L_hc_ok:")
    vstep_k(sH, sK)
    e(f"  s_lshl_b32 s{sT0}, s{sH}, 4")
    e(f"  v_mov_b32 {vr(h1)}, s{sT0}")
    e(f"  s_cmp_eq_u32 s{sK}, 14")
    e("  s_cbranch_scc0 L_hp_mid")
    for k in range(6):
        e(f"  ds_read_b128 {vr(blk + 4 * k, 4)}, {vr(sgn)} offset:{1024 * k}")
    e(f"  v_subrev_u32 {vr(h2)}, 24, {vr(l)}")
    e(f"  v_and_b32 {vr(h2)}, 15, {vr(h2)}")
    e(f"  v_cmp_eq_u32 s[{sX}:{sX + 1}], s{sH}, {vr(h2)}")
    e(f"  v_lshlrev_b32 {vr(h2)}, 4, {vr(h2)}")
    e(f"  ds_read_b128 {vr(st4, 4)}, {vr(h2)} offset:{ST}")
    def bulk():
        for k in range(6):
            if k == 5:
                e("  s_mov_b64 exec, 0xffff")
            if "w" not in P.xp and not ("h" in P.xp and k < 3) and not ("H" in P.xp and k < 4):
                e(f"  global_store_dwordx4 {vr(sgx if k < 4 else sg2)}, {vr(blk + 4 * k, 4)}, s[{sWS}:{sWS + 1}] offset:{1024 * (k % 4)} {P.wf}")
        e("  s_mov_b64 exec, -1")

    if P.eb:
        e("  s_waitcnt lgkmcnt(0)")
        bulk()
    if P.eprio:
        e(f"  s_setprio {P.eprio}")
    e("L_hp_mid:")
    e(f"  s_add_u32 s{sK}, s{sK}, 1")
    e(f"  s_add_u32 s{sNEED}, s{sK}, 16")
    progwait("hpw", P.psl)
    mark("p")
    hp(0)
    rank_post("p")
    if not P.eb:
        e(f"  s_cmp_eq_u32 s{sK}, 15")
        e("  s_cbranch_scc0 L_hp_sum")
        bulk()
        e("L_hp_sum:")
    sum_partials(2)
    e(f"  v_max3_f32 {vr(h3)}, |{vr(x)}|, |{vr(x + 1)}|, |{vr(x + 2)}|")
    e(f"  v_max3_f32 {vr(h3)}, {vr(h3)}, |{vr(x + 3)}|, |{vr(x + 4)}|")
    e(f"  v_max3_f32 {vr(h3)}, {vr(h3)}, |{vr(x + 5)}|, |{vr(x + 6)}|")
    e(f"  v_max_f32_e64 {vr(h3)}, {vr(h3)}, |{vr(x + 7)}|")
    allred("v_max_f32", h3, wb)
    e(f"  v_frexp_exp_i32_f32 {vr(h3)}, {vr(h3)}")
    e(f"  v_sub_u32 {vr(wb)}, 14, {vr(h3)}")
    e(f"  v_subrev_u32 {vr(h3)}, 14, {vr(h3)}")
    for i in range(8):
        e(f"  v_ldexp_f32 {vr(x + i)}, {vr(x + i)}, {vr(wb)}")
    for i in range(4):
        e(f"  v_cvt_pk_f16_f32 {vr(fo + i)}, {vr(x + 2 * i)}, {vr(x + 2 * i + 1)}")
    e(f"  s_cmp_eq_u32 s{sK}, 15")
    e("  s_cbranch_scc1 L_hp_last")
    e(f"  ds_write_b32 {vr(h1)}, {vr(h3)} offset:{ST + 12}")
    e(f"  v_add_u32 {vr(h0)}, 3072, {vr(h0)}")
    e(f"  ds_write_b128 {vr(wa)}, {vr(fo, 4)}")
    e(f"  v_add_u32 {vr(wa)}, 384, {vr(wa)}")
    rank_take("p")
    warm("p")
    e("  s_branch L_hp")
    e("L_hp_last:")
    e(f"  v_cndmask_b32_e64 {vr(st4 + 3)}, {vr(st4 + 3)}, {vr(h3)}, s[{sX}:{sX + 1}]")
    for i in range(4):
        e(f"  v_cndmask_b32 {vr(fo + i)}, {vr(st4 + i)}, {vr(fo + i)}, vcc")
    e("  s_mov_b32 exec_hi, 0xff")
    e(f"  global_store_dwordx4 {vr(sg2)}, {vr(fo, 4)}, s[{sWS}:{sWS + 1}] offset:{14 * 384 - 4096} sc1")
    hp(1)
    e("  s_waitcnt vmcnt(0)")
    hp(2)
    if P.nopoll:
        e("  s_branch L_hw_ok")
    if P.sh_ == 3:
        e("  s_mov_b64 exec, 7")
        e(f"  global_atomic_add {vr(vCNT)}, {vr(vOne)}, s[{sWS}:{sWS + 1}] sc1")
        e(f"  v_readlane_b32 s{sMSK}, {vr(vCNT)}, 0")
        hp(3)
        e("L_hw:")
        e(f"  s_mov_b32 s{sF}, 0")
        e(f"  s_atomic_add s{sF}, s[{sWS}:{sWS + 1}], s{sMSK} glc")
        e("  s_waitcnt lgkmcnt(0)")
        e(f"  s_cmp_ge_u32 s{sF}, 16")
        e("  s_cbranch_scc1 L_hw_ok")
        budget("L_hw_ok")
        if P.sleep:
            e(f"  s_sleep {P.sleep}")
        e("  s_branch L_hw")
    elif P.sh_:
        for k in range(3):
            e(f"  v_readlane_b32 s{sMSK + k}, {vr(vCNT)}, {k}")
            e(f"  s_mov_b32 s{sMSK + 4 + k}, 1")
        for k in range(3):
            e(f"  s_atomic_add s{sMSK + 4 + k}, s[{sWS}:{sWS + 1}], s{sMSK + k} glc")
        e(f"  s_mov_b32 s{sT0}, 15")
        hp(3)
        e("L_hw:")
        e("  s_waitcnt lgkmcnt(0)")
        e(f"  s_cmp_ge_u32 s{sMSK + 4}, s{sT0}")
        e("  s_cbranch_scc1 L_hw_ok")
        e(f"  s_mov_b32 s{sT0}, 16")
        if P.sh_ == 1:
            e(f"  s_mov_b32 s{sMSK + 4}, 0")
            e(f"  s_atomic_add s{sMSK + 4}, s[{sWS}:{sWS + 1}], s{sMSK} glc")
        else:
            e(f"  s_load_dword s{sMSK + 4}, s[{sWS}:{sWS + 1}], s{sMSK} glc")
        budget("L_hw_ok")
        e("  s_branch L_hw")
    e("  s_mov_b64 exec, 7")
    if P.pp and not P.sh_:
        e(f"  global_atomic_add {vr(qn)}, {vr(vCNT)}, {vr(vOne)}, s[{sWS}:{sWS + 1}] sc0 sc1")
        e("  s_mov_b64 exec, 1")
        for k in range(1, P.pp):
            e(f"  s_sleep {P.sleep}")
            e(f"  global_atomic_add {vr(qn + k)}, {vr(vCNT)}, {vr(vZ)}, s[{sWS}:{sWS + 1}] sc0 sc1")
        e(f"  s_mov_b32 s{sT0}, 15")
        hp(3)
        e("L_hw:")
        for k in range(P.pp):
            e(f"  s_waitcnt vmcnt({P.pp - 1})")
            e(f"  v_readfirstlane_b32 s{sF}, {vr(qn + k)}")
            e(f"  s_cmp_ge_u32 s{sF}, s{sT0}")
            e("  s_cbranch_scc1 L_hw_ok")
            e(f"  s_mov_b32 s{sT0}, 16")
            e(f"  global_atomic_add {vr(qn + k)}, {vr(vCNT)}, {vr(vZ)}, s[{sWS}:{sWS + 1}] sc0 sc1")
        budget("L_hw_ok")
        e("  s_branch L_hw")
    e("L_hw_ok:")
    hp(4)
    e("  s_mov_b64 exec, -1")
    e(f"  global_load_dwordx4 {vr(cs, 4)}, {vr(ra + 15)}, s[{sWS}:{sWS + 1}] sc1")
    for k in range(15):
        e(f"  global_load_dwordx2 {vr(rec + 2 * k, 2)}, {vr(ra + (0 if 'r' in P.xp else k % 7 if 'h' in P.xp else k % 3 if 'H' in P.xp else k))}, s[{sWS}:{sWS + 1}] sc1")
    e(f"  s_lshl_b32 s{sH}, s{sO}, 4")
    e(f"  v_mov_b32 {vr(h1)}, s{sH}")
    e(f"  v_add_u32 {vr(h0)}, {PB + 15 * 3072}, {vr(vL16)}")
    for i in range(4):
        e(f"  v_mov_b32 {vr(fo + i)}, 0")
    e("  s_waitcnt vmcnt(15)")
    hp(5)
    e(f"  v_mov_b32 {vr(h2)}, {vr(cs)}")
    rowred("v_max_f32", h2)
    e(f"  v_sub_f32 {vr(h2)}, {vr(cs)}, {vr(h2)}")
    e(f"  v_exp_f32 {vr(h2)}, {vr(h2)}")
    e("  s_nop 0")
    e(f"  v_mul_f32 {vr(h3)}, {vr(h2)}, {vr(cs + 1)}")
    rowred("v_add_f32", h3)
    e(f"  v_rcp_f32 {vr(h3)}, {vr(h3)}")
    e("  s_nop 0")
    e(f"  v_mul_f32 {vr(h2)}, {vr(h2)}, {vr(h3)}")
    e(f"  v_ldexp_f32 {vr(h3)}, {vr(h2)}, {vr(cs + 3)}")
    e(f"  v_readlane_b32 s{sMSK + 15}, {vr(h2)}, 15")
    for k in range(15):
        e(f"  v_readlane_b32 s{sMSK + k}, {vr(h3)}, {k}")
    for k in range(15):
        e(f"  s_waitcnt vmcnt({14 - k})")
        for i in range(4):
            e(f"  v_fma_mix_f32 {vr(fo + i)}, {vr(rec + 2 * k + i // 2)}, s{sMSK + k}, {vr(fo + i)} op_sel:[{i & 1},0,0] op_sel_hi:[1,0,0]")
    hp(6)
    if P.fb:
        e("  s_barrier")
    else:
        e(f"  s_mov_b32 s{sNEED}, 32")
        progwait("hfw", P.fsl)
    hp(7)
    sum_partials(1)
    for i in range(4):
        e(f"  v_fmac_f32 {vr(fo + i)}, s{sMSK + 15}, {vr(x + i)}")
    e(f"  v_cvt_pk_bf16_f32 {vr(fo)}, {vr(fo)}, {vr(fo + 1)}")
    e(f"  v_cvt_pk_bf16_f32 {vr(fo + 1)}, {vr(fo + 2)}, {vr(fo + 3)}")
    e("  s_mov_b32 exec_hi, 0xffff")
    e(f"  global_store_dwordx2 {vr(u)}, {vr(fo, 2)}, s[{sOUT}:{sOUT + 1}] {P.of}")
    if P.bar:
        e("L_fin:")
    if P.enc:
        m0, m1, base, amp, wg = [int(v) for v in P.enc.split(",")]
        if m1 == 32:
            e("  s_memrealtime s[18:19]")
        if m0 == 0:
            e(f"  s_mov_b32 s16, s{sST}")
        e("  s_waitcnt lgkmcnt(0)")
        e("  s_sub_u32 s16, s18, s16")
        e(f"  s_sub_u32 s16, s16, {base}")
        e("  s_max_i32 s16, s16, 0")
        e("  s_min_i32 s16, s16, 1000")
        e(f"  s_mul_i32 s16, s16, {amp}")
        e("  s_add_u32 s16, s16, 13000")
        e(f"  s_cmp_eq_u32 s2, {wg}")
        e("  s_cselect_b32 s16, s16, 0")
        e("L_hold:")
        e(f"  s_memrealtime s[{sST + 2}:{sST + 3}]")
        e("  s_waitcnt lgkmcnt(0)")
        e(f"  s_sub_u32 s{sT0}, s{sST + 2}, s{sST}")
        e(f"  s_cmp_lt_u32 s{sT0}, s16")
        e("  s_cbranch_scc1 L_hold")
    if P.hold:
        e("; diagnostic build only")
        e("L_hold:")
        e(f"  s_memrealtime s[{sST + 2}:{sST + 3}]")
        e("  s_waitcnt lgkmcnt(0)")
        e(f"  s_sub_u32 s{sT0}, s{sST + 2}, s{sST}")
        e(f"  s_cmp_lt_u32 s{sT0}, {P.hold}")
        e("  s_cbranch_scc1 L_hold")
    if P.stamp:
        e(f"  s_memrealtime s[{sST + 2}:{sST + 3}]")
        if P.hprof:
            e("  s_waitcnt lgkmcnt(0)")
            e("  s_lshl_b32 s44, s2, 5")
            e("  s_add_u32 s44, s44, 0x80000")
            e("  v_mov_b32 v1, s44")
            for k in range(8):
                e(f"  s_sub_u32 s45, s{sST + 2}, s{HP[k]}")
                e(f"  v_mov_b32 v{4 + k}, s45")
            e(f"  global_store_dwordx4 v1, v[4:7], s[{sWS}:{sWS + 1}]")
            e(f"  global_store_dwordx4 v1, v[8:11], s[{sWS}:{sWS + 1}] offset:16")
            e("  s_nop 2")
        e("  s_getreg_b32 s6, hwreg(HW_REG_XCC_ID)")
        e("  s_getreg_b32 s7, hwreg(HW_REG_HW_ID)")
        e("  s_waitcnt lgkmcnt(0)")
        e(f"  v_mov_b32 v4, s{sST}")
        e(f"  v_mov_b32 v5, s{sST + 2}")
        e("  v_mov_b32 v6, s6")
        e("  v_mov_b32 v7, s7")
        e("  s_lshl_b32 s8, s2, 4")
        e("  v_mov_b32 v1, s8")
        e(f"  global_store_dwordx4 v1, v[4:7], s[{sWS}:{sWS + 1}]")
    e("L_end:")
    e("  s_endpgm")
    e(".p2align 6")
    e(".type L_order,@object")
    e("L_order:")
    for k in range(0, len(ordtab), 8):
        e("  .long " + ", ".join(f"{v:#x}" for v in ordtab[k:k + 8]))
    e(".type L_hpos,@object")
    e("L_hpos:")
    for b in range(2):
        at = {chunk_of(b, n, s_): lpos(n, s_) for n in range(24) for s_ in range(16)}
        rows = sorted({c // 3 for c in at})
        for l_ in range(64):
            r0, r1 = rows[l_], rows[l_ + 64]
            e("  .long " + ", ".join(f"{a_ | b_ << 16:#x}" for a_, b_ in [(at[3 * r0 + k], at[3 * r1 + k]) for k in range(3)] + [(2 * r0, 2 * r1)]))
    e('.section .rodata,"a"')
    e(".p2align 6")
    e(f".amdhsa_kernel {NAME}_kernel")
    e(f"  .amdhsa_next_free_vgpr {NV}")
    e("  .amdhsa_next_free_sgpr 100")
    e(f"  .amdhsa_accum_offset {(NV + 3) // 4 * 4}")
    e("  .amdhsa_group_segment_fixed_size 0")
    e("  .amdhsa_kernarg_size 112")
    e("  .amdhsa_user_sgpr_count 2")
    e("  .amdhsa_user_sgpr_kernarg_segment_ptr 1")
    e("  .amdhsa_system_sgpr_workgroup_id_x 1")
    e(".end_amdhsa_kernel")
    return "\n".join(o) + "\n", NV


if __name__ == "__main__":
    ap = argparse.ArgumentParser()
    ap.add_argument("-o", default=f"/code/{NAME}.s")
    for name, d in (("sh", 4), ("deep", 5), ("pd", 9), ("pre", 12), ("nf", 6), ("hi3", 99), ("leak", 2), ("tp", 2), ("rf", 3), ("rp", 2), ("rt", 26),
                    ("nl", 1), ("rotl", 7), ("lb", 0), ("s0", 0), ("su", 3), ("sp", 0), ("cpf", 1), ("lx", 4), ("hi2", 20),
                    ("streak", 0), ("dl", 8), ("sm", 1), ("pp", 3), ("eb", 0), ("inorder", 0), ("hiv", 2), ("cp", 0), ("sleep", 4),
                    ("bound", 4000000), ("ctl", 1), ("ex", 1), ("ss", 3), ("wc", 0), ("wn", 0), ("wp", 0), ("wo", 0), ("eb_", 0), ("pb", 0), ("pbb", 7), ("pe", 255), ("pc", 0), ("pcb", 6), ("pw", 0), ("hold", 0), ("nr", 2), ("ev", 4), ("tw", 0), ("tv", 0), ("tl", 0), ("lag", 2), ("hp0", 0), ("sa", 1), ("sh_", 3), ("fb", 1),
                    ("hi", -1), ("lo", -25), ("lo2", -60), ("thr", 2), ("thr2", 1), ("start", 5), ("ba", 3),
                    ("kp", 7), ("ki", 0), ("imax", 80), ("r0", 2), ("r1", 30),
                    ("kp0", 9), ("kn", 0), ("eprio", 0), ("fsl", 0), ("psl", 1)):
        ap.add_argument("--" + name, type=int, default=d)
    ap.add_argument("--kp_", default="6,6,6,7,8,9,9,10,10,11,11,12,12", help="K loads issued by each prologue point")
    ap.add_argument("--sf", default="nt")
    ap.add_argument("--of", default="")
    ap.add_argument("--wf", default="sc1")
    ap.add_argument("--bar", default="", help="timing experiments only")
    ap.add_argument("--enc", default="", help="diagnostic only: m0,m1,base,amp,wg")
    ap.add_argument("--bu", default="012", help="extra depth per position in the issued group")
    ap.add_argument("--th", default="-9,5,13")
    ap.add_argument("--sch", default="sch_np.txt")
    ap.add_argument("--xp", default="", help="timing experiments only")
    for name in ("stamp", "trace", "tfine", "hprof", "nopoll"):
        ap.add_argument("--" + name, action="store_true", help="diagnostics only")
    a = ap.parse_args()
    txt, nv = gen(a)
    open(a.o, "w").write(txt)
    print("wrote", a.o, "vgprs", nv)
```

```python
import argparse
import math
import os
import struct
from gen import HEADER, NAME, Alloc, f32bits, vr

HB = 2048 * 768

ABOUT = """
Generated by tools/gen7.py.
Work split: workgroup (cluster c, block m, member b) handles 128 rows of the 256-row block m for 16 heads 16 k + c
  (slots k = 5 and 10 take their head from a table instead of c); the two members alternate over 32 KiB runs.
  Waves 1-4 stream one 4 KiB block per round; a 16-lane row handles one third (64 dims) of a KV row per load.
  K sweep: logit = k_scale * sum_d (qk - 7.5) * (qa * cos + qb * sin), RoPE moved onto the rotated q;
  V sweep: partial = sum_rows p * v_scale * qv.
  Wave 0 (helper) rotates q, takes max / exp / sums over the workgroup's rows of each head, and merges partials.
Constant parameters (the same for every seed) are built in: both zero points (7.5), q_cos / q_sin (table L_qcs) and
  k_cos / k_sin = bf16(cos / sin(fp32(row * inv_freq))), evaluated once per workgroup from the table L_inv into LDS.
Hand-off: every workgroup finishes one of its heads and streams that head last.  Partials and (max, sum) of
  the other 15 go to d_ws with sc1 stores, then a counted atomic; the finisher rescales all 16 to the true row maximum.
Flow control (speed only, results do not depend on it): waves publish a group counter and sample the counters of
  units on the same die; late waves keep one more load in flight, early waves one or two fewer.  Helpers rank the dies.
"""

RUN = (1, 2, 0)


def chunk_of(b, n, s):
    g = 256 * RUN[n >> 3] + 128 * b + 16 * (n & 7) + s
    return {128: 512, 255: 639, 512: 128, 639: 255}.get(g, g)


def tidx(b, row):
    return row - 43 * b - 42 * ((row >= 85) + (row >= 171))


def rev(x, bits):
    return int(format(x, f"0{bits}b")[::-1], 2)


def lpos(n, s):
    return 4 * (16 * s + rev(n, 4)) if n < 16 else 1024 + 4 * (8 * s + rev(n - 16, 3))


TN = [(RUN[n >> 3] + (n & 7)) % 3 for n in range(24)]
SPECIAL = {n: i for i, n in enumerate(sorted(8 * RUN.index(r) + i for r in (0, 2) for i in (0, 7)))}
for b_ in range(2):
    ch = sorted(chunk_of(b_, n, s) for n in range(24) for s in range(16))
    assert ch == sorted(3 * r + k for r in {c // 3 for c in ch} for k in range(3))
    assert all(chunk_of(b_, n, s) % 3 == (TN[n] + 2 * b_ + s) % 3 for n in range(24) for s in range(16))
    assert len({tidx(b_, c // 3) for c in ch}) == 128 and max(tidx(b_, c // 3) for c in ch) == 128


def gen(P):
    o = []
    e = o.append
    RING, PD = 24, P.pd
    sh, deep = P.sh, P.deep
    PRE = P.pre
    DP = P.cp + P.sp
    TP = P.tp
    CP = P.cp
    EX = P.ex
    NX = 2 if P.ctl else 0
    assert deep <= PD - 1 and sh <= deep and PD <= PRE
    SL = 512
    SA = 16 * SL

    FL = 0
    ST = 256
    TB = 512
    QB = TB + 129 * 384
    LGB = QB + 16 * 768
    SCB = LGB + 16 * 1536
    PB = SCB + 2 * SA
    PK = PB + 49152
    LDS = PK + 6144
    assert 81920 < LDS <= 163840
    W_REC = 0x400000
    W_CNT = 0x700000
    W_RK = 0x780000
    W_PL = 0x7c0000

    sQ, sQK, sKS, sKZ, sQV, sVS, sVZ, sQC = 4, 6, 8, 10, 12, 14, 16, 18
    sQS, sKC, sKSN, sOUT = 20, 22, 24, 26
    sDBG, sWS = 28, 30
    rA, rB = 32, 36
    sW, sJ, sC, sK, sT0, sT1, sF, sNEED = 40, 41, 42, 43, 44, 45, 46, 47
    sMSK = 48
    sOF = 51
    sPB = 60
    sCO = 61
    sZ = 64
    sMASK, sSCALE, sH = 66, 67, 68
    sS = 69
    sX = 70
    sRF = 80
    sRT = 82
    sST = 84
    sN = 90
    sB = 91
    sVO = 92
    sSP = 94
    sI = 95
    sSE, sCU = 81, 79
    sLO = 78
    sO = 3
    sCN = 96
    sOH, sCT = 98, 99

    va = Alloc(1)
    vT16, vF, vZ, vC16 = [va.take(1) for _ in range(4)]
    voff = va.take(7)
    vTA = va.take(7)
    vQA = va.take(3)
    vPA = va.take(3)
    vLG = va.take(2)
    vLB = va.take(2)
    vLV = va.take(2)
    A = va.take(2)
    LG = va.take(2)
    M1, M2, M3 = [va.take(1) for _ in range(3)]
    bc = va.take(2, 2)
    dacc = va.take(2, 2)
    wt = va.take(4, 2)
    vtr, vPW, vPS, vN, vSum, vSu2, vBA = [va.take(1) for _ in range(7)]
    vPL = va.take(4)
    vBI = va.take(P.nr, P.nr)
    smp = va.take(4 * P.lag, 4)
    cm = va.take(4 if P.wc else 0, 4)
    qa = va.take(12, 4)
    tab = va.take(24, 4)
    tmp = va.take(12, 4)
    ring = va.take(4 * RING, 4)
    NV = va.n
    acc = qa

    here = os.path.dirname(os.path.abspath(__file__))
    sch = [[int(x) for x in ln.split()] for ln in open(os.path.join(here, P.sch))]
    inv, qcs = [[int(x, 16) for x in ln.split()] for ln in open(os.path.join(here, "consts.txt"))]
    cj = lambda g: (g >> 4, (g & 7) * 2 + ((g >> 3) & 1))
    ent = {g: sch[16 * cj(g)[0] + cj(g)[1]] for g in range(256)}
    cl = lambda g, k: ent[g][0] if k == 5 else ent[g][1] if k == 10 else g >> 4
    assert sorted(16 * ent[g][2] + cl(g, ent[g][2]) for g in range(256)) == list(range(256))
    ordtab = []
    for g in range(256):
        o_, od = ent[g][2], ent[g][3:]
        assert sorted(od) == list(range(16)) and od[15] == o_
        con = [x for x in range(256) if x != g and cl(x, o_) == cl(g, o_)] + [g]
        assert sorted(cj(x)[1] for x in con) == list(range(16))
        nib = sum(k << (4 * t) for t, k in enumerate(range(16) if "i" in P.xp else od))
        cn = sum((g >> 4 if "c" in P.xp else cl(g, k)) << (4 * k) for k in range(16))
        ctr = [g >> 4, 16 + cl(g, 5), 32 + cl(g, 10)]
        first = {5: 1, 10: 2}.get(o_, 0)
        ctr = [ctr[first]] + [x for i, x in enumerate(ctr) if i != first]
        u16 = [16 * x + ent[x][3:].index(o_) for x in con]
        assert all(v % 16 < 15 for v in u16[:15])
        ordtab += [nib & 0xffffffff, nib >> 32, cn & 0xffffffff, cn >> 32, 16 * o_ + cl(g, o_), ctr[0] | ctr[1] << 8 | ctr[2] << 16, o_, 0]
        ordtab += [u16[2 * i] | u16[2 * i + 1] << 16 for i in range(8)]

    def ld(n):
        rr = rA if n < 24 else rB
        n %= 24
        so = f"s{sOF + (n & 7)}" if n & 7 else "0"
        vo = voff + (3 + SPECIAL[n] if n in SPECIAL and "x" not in P.xp else n >> 3)
        e(f"  buffer_load_dwordx4 {vr(ring + 4 * n, 4)}, {vr(vo)}, s[{rr}:{rr + 3}], {so} offen nt")

    dist = [PRE]

    def cnt(depth, n):
        ops = loads = 0
        pos = (n + dist[0]) % len(P.bu)
        depth += int(P.bu[pos])
        while loads < depth - 1:
            if n % (3 * EX) == CP:
                ops += NX
            if P.ctl and n % 24 == 3 * P.ba + CP:
                ops += 1
            n -= 1
            loads += 1
            ops += 1
        return ops

    def toff(n):
        if P.th:
            return [int(x) for x in P.th.split(",")][(n + dist[0]) % len(P.bu)]
        return P.dl * ((n - DP) % 3 - 1)

    LAG = P.lag
    SW = deep + max(int(x) for x in P.bu) > 3 * LAG * EX

    def swait(a):
        return 3 * LAG * EX + (LAG - 1) * NX + ((a - P.ba) % 8 < LAG * EX)

    first = {}
    drain = {}

    def verify():
        ops = [("L", i) for i in range(PRE)]
        done = 1
        for g in range(24 * 32):
            n = g % 24
            tail = g + PD >= 24 * 32
            skip = 384 <= g < 384 + PRE - PD
            dist[0] = PRE if g < 384 else PD
            if not tail and not skip:
                if P.ctl and n == 3 * P.ba + CP:
                    ops.append(("X", 0))
                if n % (3 * EX) == CP:
                    if P.ctl and SW:
                        done = max(done, len(ops) - swait(n // 3))
                    ops += [("X", 0)] * (NX if P.inorder else max(0, NX - 1))
            if g + PD == 24 * 32:
                drain["in"] = len(ops) - 1 - ops.index(("L", g))
                done = max(done, len(ops) - drain["in"])
            assert ("L", g) in ops[:done], g
            if tail:
                if n < 23:
                    drain[n] = len(ops) - 1 - ops.index(("L", g + 1))
                    done = max(done, len(ops) - drain[n])
                continue
            if skip:
                first[n] = len(ops) - 1 - ops.index(("L", g + 1))
                done = max(done, len(ops) - first[n])
                continue
            done = max(done, len(ops) - cnt(deep + (P.hi3 < 99 and (n + PD) % 3 == 0 and g >= 3 * P.start) if (g >= 3 * (P.start // EX * EX) or (g >= DP and P.s0 > P.hi + toff(n))) else sh, n))
            ops.append(("L", g + (PRE if g < 384 else PD)))
    verify()
    dist[0] = PRE
    lab = [0]

    def pace(n, hi):
        if P.ctl:
            lab[0] += 1
            top = P.hi3 < 99 and (n + PD) % 3 == 0
            if top:
                boost(hi + P.hi3)
                e(f"  s_cbranch_scc1 L_r{lab[0]}")
            if deep > sh + 1:
                boost(P.hi2)
                e(f"  s_cbranch_scc1 L_q{lab[0]}")
            boost(hi + toff(n))
            e(f"  s_cbranch_scc1 L_p{lab[0]}")
            e(f"  s_waitcnt vmcnt({cnt(sh, n)})")
            e(f"L_p{lab[0]}:")
            if deep > sh + 1:
                e(f"  s_waitcnt vmcnt({cnt(sh + 1, n)})")
                e(f"L_q{lab[0]}:")
            e(f"  s_waitcnt vmcnt({cnt(deep, n)})")
            if top:
                e(f"L_r{lab[0]}:")
                e(f"  s_waitcnt vmcnt({cnt(deep + 1, n)})")
        else:
            e(f"  s_waitcnt vmcnt({cnt(sh, n)})")

    def control(a):
        if not P.ctl:
            return
        if a == P.ba:
            e("  s_mov_b64 exec, 1")
            e(f"  global_load_dwordx{P.nr} {vr(vBI, P.nr)}, {vr(vBA)}, s[{sWS}:{sWS + 1}] sc1")
            e("  s_mov_b64 exec, -1")
        if a % EX == 0:
            sm = smp + 4 * ((a // EX) % LAG)
            if SW:
                e(f"  s_waitcnt vmcnt({swait(a)})")
            if a == (P.ba + LAG * EX + EX - 1) // EX * EX % 8:
                e(f"  v_add_u32 {vr(vSum)}, {vr(vBI)}, {vr(vBI + 1)}")
                if P.nr == 4:
                    e(f"  v_add3_u32 {vr(vSum)}, {vr(vBI + 2)}, {vr(vBI + 3)}, {vr(vSum)}")
                    e(f"  v_ashrrev_i32 {vr(vSum)}, 2, {vr(vSum)}")
                e("  s_nop 0")
                e(f"  v_readfirstlane_b32 s{sB}, {vr(vSum)}")
                if P.eb_:
                    e(f"  s_cmpk_lt_u32 s{sN}, {P.pe}")
                    e(f"  s_cselect_b32 s{sT0}, 0, {P.eb_}")
                    e(f"  s_add_u32 s{sB}, s{sB}, s{sT0}")
                if P.pb:
                    e(f"  s_cmpk_lt_u32 s{sN}, {P.pe}")
                    e(f"  s_cselect_b32 s{sT0}, s{sPB}, 0")
                    e(f"  s_add_u32 s{sB}, s{sB}, s{sT0}")
            e(f"  s_add_u32 s{sT0}, s{sLO}, 0x03030303")
            e(f"  v_msad_u8 {vr(vSum)}, s{sLO}, {vr(sm)}, 0")
            e(f"  v_msad_u8 {vr(vSu2)}, s{sT0}, {vr(sm)}, 0")
            for k in range(1, 3):
                e(f"  v_msad_u8 {vr(vSum)}, s{sLO}, {vr(sm + k)}, {vr(vSum)}")
                e(f"  v_msad_u8 {vr(vSu2)}, s{sT0}, {vr(sm + k)}, {vr(vSu2)}")
            e(f"  v_sub_u32 {vr(vSum)}, {vr(vSum)}, {vr(vSu2)}")
            e(f"  v_mov_b32 {vr(vN)}, s{sN}")
            e(f"  s_add_u32 s{sLO}, s{sLO}, 0x01010101")
            if P.nl > 1:
                e(f"  v_add_u32_dpp {vr(vSum)}, {vr(vSum)}, {vr(vSum)} quad_perm:[2,3,0,1] row_mask:0xf bank_mask:0xf")
                e(f"  s_nop {1 if P.nl > 2 else 0}")
            if P.nl > 2:
                e(f"  v_add_u32_dpp {vr(vSum)}, {vr(vSum)}, {vr(vSum)} row_shl:4 row_mask:0xf bank_mask:0xf")
                e("  s_nop 0")
            e(f"  v_readlane_b32 s{sMASK}, {vr(vSum)}, 0")
            e(f"  v_readlane_b32 s{sSCALE}, {vr(vSum)}, 1")
            e("  s_mov_b64 exec, 1")
            e(f"  global_store_byte {vr(vPS)}, {vr(vN)}, s[{sWS}:{sWS + 1}]")
            e(f"  s_mov_b64 exec, {(1 << (2 * P.nl)) - 1}")
            e(f"  global_load_dwordx3 {vr(sm, 3)}, {vr(vPL + (a // EX) % 4)}, s[{sWS}:{sWS + 1}] sc1")
            e("  s_mov_b64 exec, -1")

    def decide(a):
        if not P.ctl:
            return
        if a % EX == 0:
            e(f"  s_add_u32 s{sS}, s{sMASK}, s{sSCALE}")
            if P.wc:
                e(f"  v_add3_u32 {vr(vSum)}, {vr(cm)}, {vr(cm + 1)}, {vr(cm + 2)}")
                e(f"  v_add_u32 {vr(vSum)}, {vr(vSum)}, {vr(cm + 3)}")
                e(f"  v_mov_b32 {vr(vSu2)}, s{sS}")
                e(f"  v_readfirstlane_b32 s{sT0}, {vr(vSum)}")
                e(f"  ds_write_b32 {vr(vPW)}, {vr(vSu2)} offset:{FL + 32 + 16 * (a & 1)}")
                if P.wo:
                    e(f"  s_mul_i32 s{sT1}, s{sCO}, {P.wo}")
                    e(f"  s_mov_b32 s{sCO}, s{sT0}")
                e(f"  s_mul_i32 s{sT0}, s{sT0}, {P.wc}")
                if P.wo:
                    e(f"  s_add_u32 s{sT0}, s{sT0}, s{sT1}")
                if P.wp:
                    e(f"  s_mul_i32 s{sT1}, s{sI}, {P.wp}")
                    e(f"  s_add_u32 s{sT0}, s{sT0}, s{sT1}")
                    e(f"  s_mov_b32 s{sI}, s{sS}")
                e(f"  s_mul_i32 s{sS}, s{sS}, {P.wn}")
                e(f"  s_add_u32 s{sS}, s{sS}, s{sT0}")
                e(f"  s_ashr_i32 s{sS}, s{sS}, 4")
            elif P.sm > 1:
                e(f"  s_ashr_i32 s{sT0}, s{sI}, {P.sm - 1}")
                e(f"  s_sub_u32 s{sI}, s{sI}, s{sT0}")
                e(f"  s_add_u32 s{sI}, s{sI}, s{sS}")
                e(f"  s_ashr_i32 s{sS}, s{sI}, {P.sm - 1}")
            elif P.sm:
                e(f"  s_add_u32 s{sT0}, s{sS}, s{sI}")
                e(f"  s_mov_b32 s{sI}, s{sS}")
                e(f"  s_ashr_i32 s{sS}, s{sT0}, {1 + P.nl // 2}")
            elif P.nl > 1:
                e(f"  s_ashr_i32 s{sS}, s{sS}, {P.nl // 2}")
            e(f"  s_add_u32 s{sS}, s{sS}, s{sB}")
            e(f"  s_cmp_lt_u32 s{sN}, {P.start // EX}")
            e(f"  s_cselect_b32 s{sS}, {P.s0}, s{sS}")
            if P.sm > 1:
                e(f"  s_cselect_b32 s{sI}, 0, s{sI}")
            e(f"  s_add_u32 s{sN}, s{sN}, 1")

    def share(a, j):
        if P.ctl and P.wc and j == 2:
            e(f"  ds_read_b128 {vr(cm, 4)}, {vr(vZ)} offset:{FL + 32 + 16 * (a & 1)}")

    def throttle(a):
        if not P.ctl or P.lo <= -60 or (3 * a + TP + dist[0]) % len(P.bu) < len(P.bu) - 3:
            return
        lab[0] += 1
        e(f"  s_cmp_lt_i32 s{sS}, {P.lo}")
        e(f"  s_cbranch_scc0 L_t{lab[0]}")
        e(f"  s_waitcnt vmcnt({cnt(P.thr + 1, 3 * a + TP)})")
        if P.lo2 > -60:
            e(f"  s_cmp_lt_i32 s{sS}, {P.lo2}")
            e(f"  s_cbranch_scc0 L_t{lab[0]}")
            e(f"  s_waitcnt vmcnt({cnt(P.thr2 + 1, 3 * a + TP)})")
        e(f"L_t{lab[0]}:")

    def boost(hi):
        if P.ctl:
            assert hi >= P.lo
            e(f"  s_cmp_gt_i32 s{sS}, {hi}")

    def srd_head(rr, sp, sh_):
        e(f"  s_mul_i32 s{sT0}, s{sh_}, {HB}")
        e(f"  s_add_u32 s{rr}, s{sp}, s{sT0}")
        e(f"  s_addc_u32 s{rr + 1}, s{sp + 1}, 0")

    def vstep_k(dst, src):
        e(f"  s_lshl_b32 s{dst}, s{src}, 2")
        e(f"  s_lshr_b64 s[{sZ}:{sZ + 1}], s[{sVO}:{sVO + 1}], s{dst}")
        e(f"  s_and_b32 s{dst}, s{sZ}, 15")

    def head_of(dst, slot):
        e(f"  s_lshl_b32 s{sT0}, s{slot}, 2")
        e(f"  s_lshr_b64 s[{sZ}:{sZ + 1}], s[{sCN}:{sCN + 1}], s{sT0}")
        e(f"  s_and_b32 s{sZ}, s{sZ}, 15")
        e(f"  s_lshl4_add_u32 s{dst}, s{slot}, s{sZ}")

    def budget(ok):
        e(f"  s_cmp_eq_u32 s{sSP}, 0")
        e(f"  s_cbranch_scc1 {ok}")
        e(f"  s_sub_u32 s{sSP}, s{sSP}, 1")

    def flagwait(name, off):
        e(f"L_{name}:")
        e("  s_waitcnt lgkmcnt(0)")
        e(f"  v_readfirstlane_b32 s{sF}, {vr(vF)}")
        e(f"  s_cmp_ge_u32 s{sF}, s{sNEED}")
        e(f"  s_cbranch_scc1 L_{name}_ok")
        budget(f"L_{name}_ok")
        e(f"  ds_read_b32 {vr(vF)}, {vr(vZ)} offset:{off}")
        e(f"  s_branch L_{name}")
        e(f"L_{name}_ok:")

    def tr():
        if P.trace:
            e(f"  {'s_memtime' if 'm' in P.xp else 's_memrealtime'} s[88:89]")
            e("  s_waitcnt lgkmcnt(0)")
            e(f"  v_writelane_b32 {vr(vtr)}, s88, m0")
            e("  s_add_u32 m0, m0, 1")
            e("  s_min_u32 m0, m0, 63")

    def die_base(dst):
        e(f"  s_getreg_b32 s{sSE}, hwreg(HW_REG_HW_ID, 8, 7)")
        e(f"  s_getreg_b32 s{dst}, hwreg(HW_REG_XCC_ID, 0, 3)")
        e(f"  s_and_b32 s{sCU}, s{sSE}, 15")
        e(f"  s_lshr_b32 s{sSE}, s{sSE}, 5")
        e(f"  s_mul_i32 s{dst}, s{dst}, 4352")
        e(f"  s_add_u32 s{dst}, s{dst}, {W_PL}")

    ha = Alloc(16)
    l, u, h0, h1, h2, h3 = [ha.take(1) for _ in range(6)]
    qo, wa, wb, sgn, sgx, sg2 = [ha.take(1) for _ in range(6)]
    ro = ha.take(8)
    vL16, vCNT, vDB, vOne, vFA, vFI, vFR, vFX, vFB, vEL, vCL, vSa = [ha.take(1) for _ in range(12)]
    z4 = ha.take(4, 4)
    cs = ha.take(8, 4)
    sc = ha.take(4, 4)
    qn = ha.take(4, 4)
    x = ha.take(32, 4)
    pr = ha.take(4, 4)
    fo = ha.take(4, 4)
    rec = ha.take(32, 4)
    blk = ha.take(24, 4)
    st4 = ha.take(4, 4)
    ra = ha.take(16)
    assert ha.n <= NV and vZ < 16

    invX, invY, tK, tA, tN, tO = tmp, tmp + 4, tmp + 8, tab, tab + 4, tab + 8
    PC0 = 20 + 8 * P.stamp
    D_INV, D_QCS, D_END = 256, 768, 1152
    NF = P.nf
    assert RUN[0] == 1 and NF <= 8
    e(HEADER.rstrip("\n"))
    e(f"; @launch grid=(256,1,1) block=(320,1,1) lds={LDS}")
    for ln in ABOUT.strip("\n").split("\n"):
        e("; " + ln)
    e('.amdgcn_target "amdgcn-amd-amdhsa--gfx950"')
    e(".text")
    e(f".globl {NAME}_kernel")
    e(".p2align 8")
    e(f".type {NAME}_kernel,@function")
    e(f"{NAME}_kernel:")
    e("  s_cmpk_ge_u32 s2, 0x100")
    e("  s_cbranch_scc1 L_end")
    if P.stamp:
        e(f"  s_memrealtime s[{sST}:{sST + 1}]")
    e("  s_load_dwordx16 s[4:19], s[0:1], 0")
    e(f"  s_getpc_b64 s[{sZ}:{sZ + 1}]")
    e("L_pc:")
    e("  v_cmp_gt_u32 vcc, 64, v0")
    e(f"  v_lshlrev_b32 {vr(vT16)}, 4, v0")
    e(f"  s_lshr_b32 s{sC}, s2, 4")
    e(f"  s_and_b32 s{sH}, s2, 7")
    e(f"  s_lshl3_add_u32 s{sH}, s{sC}, s{sH}")
    e(f"  s_movk_i32 s{sNEED}, 768")
    e("  s_cbranch_vccz L_s0")
    e(f"  v_lshl_add_u32 {vr(h0)}, s{sC}, 10, {vr(vT16)}")
    e(f"  global_load_dword {vr(h3)}, {vr(h0)}, s[{sZ}:{sZ + 1}] offset:{D_END - PC0}")
    e(f"  v_and_b32 {vr(vL16)}, 0x1f0, {vr(vT16)}")
    e(f"  global_load_dwordx4 {vr(pr, 4)}, {vr(vL16)}, s[{sZ}:{sZ + 1}] offset:{D_QCS - PC0}")
    e("  s_branch L_helper")
    e("L_s0:")
    e(f"  v_and_b32 {vr(vC16)}, 0xf0, {vr(vT16)}")
    e(f"  global_load_dwordx4 {vr(invX, 4)}, {vr(vC16)}, s[{sZ}:{sZ + 1}] offset:{D_INV - PC0}")
    e(f"  global_load_dwordx4 {vr(invY, 4)}, {vr(vC16)}, s[{sZ}:{sZ + 1}] offset:{D_INV + 256 - PC0}")
    e(f"  s_mul_i32 s{sT0}, s{sH}, 196608")
    e(f"  s_and_b32 s{sT1}, s2, 8")
    e(f"  s_lshl_b32 s{sT1}, s{sT1}, 12")
    e(f"  s_add_u32 s{sT0}, s{sT0}, s{sT1}")
    e(f"  s_add_u32 s{sT0}, s{sT0}, {65536 * RUN[0] - 1024 + 4096}")
    e(f"  v_add_u32 {vr(tA)}, s{sT0}, {vr(vT16)}")
    for k in range(1, (NF + 1) // 2):
        e(f"  v_add_u32 {vr(tA + k)}, {8192 * k}, {vr(tA)}")
    e("  s_waitcnt lgkmcnt(0)")
    for n in range(NF):
        e(f"  global_load_dwordx4 {vr(ring + 4 * n, 4)}, {vr(tA + n // 2)}, s[{sQK}:{sQK + 1}] offset:{4096 * (n % 2) - 4096} nt")
    e("  s_branch L_s1")
    e("L_b0:")
    e(f".if (L_b0 - {NAME}_kernel > {D_INV}) || (L_pc - {NAME}_kernel != {PC0})")
    e('.error "entry block layout"')
    e(".endif")
    e(".p2align 8")
    e(".type L_inv,@object")
    e("L_inv:")
    tb = inv[:64] + inv[64:] + inv[64:]
    for k in range(0, 128, 8):
        e("  .long " + ", ".join(f"{v:#x}" for v in tb[k:k + 8]))
    e(".type L_qcs,@object")
    e("L_qcs:")
    for k in range(0, 96, 8):
        e("  .long " + ", ".join(f"{v:#x}" for v in qcs[k:k + 8]))

    def common():
        e(f"  s_load_dwordx8 s[24:31], s[0:1], 80")
        e(f"  s_lshl_b32 s{sT0}, s2, 6")
        e(f"  s_add_u32 s{sT0}, s{sT0}, L_order-L_pc")
        e(f"  s_add_u32 s{sRT}, s{sZ}, s{sT0}")
        e(f"  s_addc_u32 s{sRT + 1}, s{sZ + 1}, 0")
        e(f"  s_load_dwordx2 s[{sVO}:{sVO + 1}], s[{sRT}:{sRT + 1}], 0")
        e(f"  s_load_dwordx2 s[{sCN}:{sCN + 1}], s[{sRT}:{sRT + 1}], 8")
        e(f"  v_mov_b32 {vr(vZ)}, 0")
        e(f"  s_mov_b32 s{sSP}, {P.bound}")
        e(f"  s_bfe_u32 s{sJ}, s2, 0x10003")

    PFR = [8, 10, 14, 16, 18, 20, 22, 72, 74, 76, 4, 86]
    pfn = [0]

    def pf():
        if P.tfine:
            e(f"  {'s_memtime' if 'm' in P.xp else 's_memrealtime'} s[{PFR[pfn[0]]}:{PFR[pfn[0]] + 1}]")
            pfn[0] += 1

    e("L_s1:")
    w_, s_, vAD, vC8, t0, t1 = wt, wt + 1, wt + 2, wt + 3, dacc, dacc + 1
    vRF, pos = vT16, tK + 3
    if P.trace:
        e(f"  v_mov_b32 {vr(vtr)}, 0")
        e("  s_mov_b32 m0, 0")
    pf()
    e("  v_subrev_u32 v0, 64, v0")
    e("  s_setprio 1")
    common()
    e(f"  v_lshrrev_b32 {vr(w_)}, 6, v0")
    e(f"  v_lshrrev_b32 {vr(s_)}, 4, v0")
    e(f"  v_and_b32 {vr(vC8)}, 0x70, {vr(vC16)}")
    e(f"  v_readfirstlane_b32 s{sW}, {vr(w_)}")
    e(f"  v_add_u32 {vr(vAD)}, {vr(vC8)}, {vr(s_)}")
    e(f"  s_mul_i32 s{sT0}, s{sJ}, 44")
    e(f"  s_sub_u32 s{sT0}, 86, s{sT0}")
    e(f"  v_cmp_eq_u32 vcc, s{sT0}, {vr(vAD)}")
    e(f"  v_mov_b32 {vr(t0)}, 0x80")
    e(f"  s_and_b32 s{sH}, s2, 7")
    e(f"  v_cndmask_b32 {vr(vAD)}, {vr(vAD)}, {vr(t0)}, vcc")
    e(f"  v_mul_u32_u24 {vr(t0)}, 381, {vr(vAD)}")
    e(f"  s_mul_i32 s{sT0}, s{sJ}, 43")
    e(f"  v_add_u32 {vr(t0)}, 2, {vr(t0)}")
    e(f"  s_lshl_b32 s{sT1}, s{sH}, 8")
    e(f"  v_lshrrev_b32 {vr(t0)}, 14, {vr(t0)}")
    assert all((381 * i + 2) >> 14 == (i >= 43) + (i >= 86) for i in range(129))
    e(f"  s_add_u32 s{sT0}, s{sT0}, s{sT1}")
    e(f"  v_mad_u32_u24 {vr(t0)}, {vr(t0)}, 42, {vr(vAD)}")
    e(f"  v_add_u32 {vr(t0)}, s{sT0}, {vr(t0)}")
    e(f"  v_cvt_f32_u32 {vr(vRF)}, {vr(t0)}")
    e(f"  v_mul_u32_u24 {vr(vAD)}, 384, {vr(vAD)}")
    e(f"  s_mov_b32 s{rA + 2}, {HB}")
    e(f"  s_mov_b32 s{rA + 3}, 0x20000")
    srd_head(rA, sQK, sC)
    e(f"  s_mul_i32 s{sT0}, s{sH}, 6")
    e(f"  s_add_u32 s{sT0}, s{sT0}, s{sJ}")
    e(f"  s_lshl_b32 s{sT0}, s{sT0}, 15")
    e(f"  v_lshl_add_u32 {vr(voff + RUN.index(0))}, v0, 4, s{sT0}")
    for k in (1, 2):
        e(f"  v_add_u32 {vr(voff + RUN.index(k))}, {65536 * k:#x}, {vr(voff + RUN.index(0))}")
    for i in range(1, 8):
        e(f"  s_movk_i32 s{sOF + i}, {4096 * i}")
    nk = [NF]
    assert PRE <= RING and (PRE - PD) % (3 * EX) == 0 and max(int(v) for v in P.kp_.split(",")[:P.su + 1]) <= min(SPECIAL)

    def k_loads(hi):
        while nk[0] < min(hi, PRE):
            ld(nk[0])
            nk[0] += 1

    def toff_(n):
        run = RUN[n >> 3]
        return 384 * (16 * (((n & 7) + run) // 3) + 38 * run)

    def setup():
        e("; per chunk class k: q operand, table and partial addresses")
        e(f"  s_lshl1_add_u32 s{sF}, s{sJ}, s{sW}")
        e(f"  s_lshl_b32 s{sF}, s{sF}, 1")
        e(f"  s_lshr_b32 s{sF}, 0x4924, s{sF}")
        e(f"  v_bfe_u32 {vr(t1)}, v0, 4, 2")
        e(f"  v_lshl_add_u32 {vr(t1)}, {vr(t1)}, 2, {vr(vC16)}")
        e(f"  v_mad_u32_u24 {vr(vF)}, {vr(w_)}, s{sNEED}, {vr(t1)}")
        e(f"  v_add_u32 {vr(vF)}, {PB}, {vr(vF)}")
        e(f"  s_mul_i32 s{sT1}, s{sJ}, {43 * 384}")
        e(f"  s_sub_u32 s{sT1}, {TB}, s{sT1}")
        e(f"  v_lshl_add_u32 {vr(vSum)}, s{sJ}, 7, {vr(s_)}")
        for k in range(3):
            e(f"  s_bfe_u32 s{sT0}, s{sF}, {(2 << 16) | 2 * k:#x}")
            e(f"  v_lshl_add_u32 {vr(vPA + k)}, s{sT0}, 8, {vr(vF)}")
            if k:
                e(f"  v_add_u32 {vr(vSum)}, 16, {vr(vSum)}")
            e(f"  v_mul_u32_u24 {vr(t0)}, 171, {vr(vSum)}")
            e(f"  v_lshrrev_b32 {vr(t0)}, 9, {vr(t0)}")
            e(f"  v_mad_i32_i24 {vr(t1)}, {vr(t0)}, -3, {vr(vSum)}")
            e(f"  v_lshl_add_u32 {vr(t1)}, {vr(t1)}, 8, {vr(vC16)}")
            e(f"  v_add_u32 {vr(vQA + k)}, {QB}, {vr(t1)}")
            e(f"  v_subrev_u32 {vr(vSu2)}, 384, {vr(t1)}")
            e(f"  v_min_u32 {vr(t1)}, {vr(t1)}, {vr(vSu2)}")
            e(f"  v_mul_u32_u24 {vr(t0)}, 384, {vr(t0)}")
            e(f"  v_add3_u32 {vr(vTA + k)}, {vr(t0)}, {vr(t1)}, s{sT1}")
        e(f"  v_lshl_add_u32 {vr(vSum)}, s{sJ}, 4, {vr(s_)}")
        for n, i in SPECIAL.items():
            run, sx = RUN[n >> 3], 15 * (n & 7 == 7)
            b = int(run == 0)
            g0, g1 = 256 * run + 128 * b + 16 * (n & 7) + sx, chunk_of(b, n, sx)
            dt = 384 * (tidx(b, g1 // 3) - (g0 // 3 - 43 * b - 42 * run))
            e(f"  v_cmp_eq_u32 vcc, {16 * b + sx}, {vr(vSum)}")
            e(f"  v_add_u32 {vr(t0)}, {256 * (g1 - g0) & 0xffffffff:#x}, {vr(voff + (n >> 3))}")
            e(f"  v_add_u32 {vr(t1)}, {toff_(n)}, {vr(vTA + TN[n])}")
            e(f"  v_add_u32 {vr(vSu2)}, {dt & 0xffffffff:#x}, {vr(t1)}")
            e(f"  v_cndmask_b32 {vr(voff + 3 + i)}, {vr(voff + (n >> 3))}, {vr(t0)}, vcc")
            e(f"  v_cndmask_b32 {vr(vTA + 3 + i)}, {vr(t1)}, {vr(vSu2)}, vcc")
        e(f"  v_lshlrev_b32 {vr(vLB)}, 2, v0")
        e(f"  v_add_u32 {vr(vLB)}, {LGB}, {vr(vLB)}")
        e(f"  v_lshrrev_b32 {vr(t1)}, 1, v0")
        e(f"  v_lshlrev_b32 {vr(t1)}, 2, {vr(t1)}")
        e(f"  v_add_u32 {vr(vLB + 1)}, {LGB + 1024}, {vr(t1)}")
        e(f"  v_mov_b32 {vr(vLG)}, {vr(vLB)}")
        e(f"  v_mov_b32 {vr(vLG + 1)}, {vr(vLB + 1)}")
        e(f"  v_lshlrev_b32 {vr(vPW)}, 2, {vr(w_)}")
        e(f"  s_mov_b32 s{sMSK}, 0xcccccccc")
        e(f"  s_mov_b32 s{sMSK + 1}, s{sMSK}")
        e(f"  s_mov_b32 s{sMSK + 2}, 0xaaaaaaaa")
        e(f"  s_mov_b32 s{sMSK + 3}, s{sMSK + 2}")
        e(f"  s_mov_b32 s{rB + 2}, {HB}")
        e(f"  s_mov_b32 s{rB + 3}, 0x20000")
        e(f"  s_mov_b32 s{sK}, 0")
        if P.ctl:
            e("; progress slots: this wave writes one byte of line (half, w) and samples the lines of the other half")
            die_base(sF)
            e(f"  s_add_u32 s{sT0}, s{sF}, 2048")
            e(f"  v_mov_b32 {vr(vBA)}, s{sT0}")
            e(f"  s_and_b32 s{sT1}, s{sSE}, 2")
            e(f"  s_lshl_b32 s{sT1}, s{sT1}, 9")
            e(f"  s_lshl_b32 s{sT0}, s{sW}, 8")
            e(f"  s_add_u32 s{sT0}, s{sT0}, s{sT1}")
            e(f"  s_add_u32 s{sT0}, s{sT0}, s{sF}")
            e(f"  s_add_u32 s{sT0}, s{sT0}, s{sCU}")
            e(f"  s_and_b32 s{sSE}, s{sSE}, 1")
            e(f"  s_lshl_b32 s{sSE}, s{sSE}, 4")
            e(f"  s_add_u32 s{sT0}, s{sT0}, s{sSE}")
            e(f"  v_mov_b32 {vr(vPS)}, s{sT0}")
            e(f"  s_xor_b32 s{sT1}, s{sT1}, 1024")
            e(f"  s_add_u32 s{sF}, s{sF}, s{sT1}")
            e(f"  v_and_b32 {vr(vN)}, 1, v0")
            e(f"  v_lshl_add_u32 {vr(vN)}, {vr(vN)}, 4, s{sF}")
            e(f"  v_bfe_u32 {vr(t1)}, v0, 1, 2")
            e(f"  v_mad_u32_u24 {vr(t1)}, {vr(t1)}, {4 // P.nl}, {vr(w_)}")
            for k in range(4):
                e(f"  v_add_u32 {vr(vSum)}, {k}, {vr(t1)}")
                e(f"  v_and_b32 {vr(vSum)}, 3, {vr(vSum)}")
                e(f"  v_lshl_add_u32 {vr(vPL + k)}, {vr(vSum)}, 8, {vr(vN)}")
            e(f"  s_mov_b32 s{sLO}, {(-(LAG + 2) * 0x01010101) & 0xffffffff:#x}")
            for k in range(4 * LAG):
                e(f"  v_mov_b32 {vr(smp + k)}, 0")
            for k in range(P.nr):
                e(f"  v_mov_b32 {vr(vBI + k)}, 0")
            e(f"  s_mov_b32 s{sN}, 0")
            e(f"  s_mov_b32 s{sB}, 0")
            if P.wo:
                e(f"  s_mov_b32 s{sCO}, 0")
            if P.pb:
                e("; the two halves of the clusters run half a group apart, so that their bursts interleave")
                e(f"  s_bitcmp1_b32 s2, {P.pbb}")
                e(f"  s_cselect_b32 s{sPB}, {P.pb}, {-P.pb}")
                if P.pc:
                    e(f"  s_bitcmp1_b32 s2, {P.pcb}")
                    e(f"  s_cselect_b32 s{sT0}, {P.pc}, {-P.pc}")
                    e(f"  s_add_u32 s{sPB}, s{sPB}, s{sT0}")
                if P.pw:
                    e(f"  s_mul_i32 s{sT0}, s{sW}, {2 * P.pw}")
                    e(f"  s_add_u32 s{sPB}, s{sPB}, s{sT0}")
                    e(f"  s_sub_u32 s{sPB}, s{sPB}, {3 * P.pw}")
            e(f"  s_mov_b32 s{sS}, {P.lo}")
            e(f"  s_mov_b32 s{sI}, 0")
        e(f"  s_add_u32 s{sF}, s{sC}, 16")
        srd_head(rB, sQK, sF)

    def sincos(dst, iv):
        for h in (0, 2):
            e(f"  v_pk_mul_f32 {vr(tA + h, 2)}, {vr(iv + h, 2)}, {vr(tK + 2, 2)} op_sel:[0,1] op_sel_hi:[1,1]")
        if iv == invY:
            for h in (0, 2):
                e(f"  v_pk_mul_f32 {vr(tN + h, 2)}, {vr(tA + h, 2)}, {vr(tK, 2)} op_sel_hi:[1,0]")
        else:
            for h in (0, 2):
                e(f"  v_pk_fma_f32 {vr(tN + h, 2)}, {vr(tA + h, 2)}, {vr(tK, 2)}, {vr(tK, 2)} op_sel:[0,0,1] op_sel_hi:[1,0,1]")
            for h in (0, 2):
                e(f"  v_pk_add_f32 {vr(tN + h, 2)}, {vr(tN + h, 2)}, {vr(tK, 2)} op_sel:[0,1] op_sel_hi:[1,1] neg_lo:[0,1] neg_hi:[0,1]")
            for h in (0, 2):
                e(f"  v_pk_fma_f32 {vr(tN + h, 2)}, {vr(tA + h, 2)}, {vr(tK, 2)}, {vr(tN + h, 2)} op_sel_hi:[1,0,1] neg_lo:[0,0,1] neg_hi:[0,0,1]")
            for h in (0, 2):
                e(f"  v_pk_fma_f32 {vr(tN + h, 2)}, {vr(tA + h, 2)}, {vr(tK + 2, 2)}, {vr(tN + h, 2)} op_sel_hi:[1,0,1]")
        for i in range(4):
            e(f"  v_cos_f32 {vr(tA + i)}, {vr(tN + i)}")
        for i in range(4):
            e(f"  v_sin_f32 {vr(tN + i)}, {vr(tN + i)}")
        for i in range(4):
            e(f"  v_cvt_pk_bf16_f32 {vr(dst + i)}, {vr(tA + i)}, {vr(tN + i)}")

    kp = [int(v) for v in P.kp_.split(",")]

    def chunk(i):
        a = 2 * (i // 3)
        d = tO + 4 * (i & 1)
        bc_ = lambda x, m: f"row_newbcast:{x} row_mask:0xf bank_mask:{m:#x}"
        if i % 3 == 1:
            e(f"  v_mov_b32_dpp {vr(pos)}, {vr(vRF)} {bc_(a + 1, 12)}")
            e(f"  v_add_u32_dpp {vr(vF)}, {vr(vAD)}, {vr(vC8)} {bc_(a, 3)}")
            e(f"  v_add_u32_dpp {vr(vF)}, {vr(vAD)}, {vr(vC8)} {bc_(a + 1, 12)}")
            sincos(d, invY)
            e(f"  ds_write_b128 {vr(vF)}, {vr(d, 4)} offset:{TB + 256}")
        else:
            a += i % 3 // 2
            e(f"  v_mov_b32_dpp {vr(pos)}, {vr(vRF)} {bc_(a, 15)}")
            e(f"  v_add_u32_dpp {vr(vF)}, {vr(vAD)}, {vr(vC16)} {bc_(a, 15)}")
            sincos(d, invX)
            e(f"  ds_write_b128 {vr(vF)}, {vr(d, 4)} offset:{TB}")

    def tab_read(a):
        for n in range(3 * a, 3 * a + 3):
            d = tab + 12 * (a & 1) + 4 * (n % 3)
            if n in SPECIAL:
                e(f"  ds_read_b128 {vr(d, 4)}, {vr(vTA + 3 + SPECIAL[n])}")
            else:
                e(f"  ds_read_b128 {vr(d, 4)}, {vr(vTA + TN[n])} offset:{toff_(n)}")

    c_hi = f32bits(1 / (2 * math.pi))
    c_lo = f32bits(1 / (2 * math.pi) - struct.unpack("<f", struct.pack("<I", c_hi))[0])
    e(f"  v_mov_b32 {vr(tK)}, {c_hi:#x}")
    e(f"  v_mov_b32 {vr(tK + 1)}, {f32bits(1.5 * 2 ** 23):#x}")
    e(f"  v_mov_b32 {vr(tK + 2)}, {c_lo:#x}")
    k_loads(kp[0])
    pf()
    e(f"  s_waitcnt vmcnt({nk[0]})")
    pf()
    for i in range(12):
        if i == P.su:
            setup()
            pf()
        chunk(i)
        k_loads(kp[i + 1])
        if i % 3 == 2:
            pf()
    k_loads(PRE)
    e(f"  v_mov_b32 {vr(bc)}, {f32bits(-7.5):#x}")
    e("  s_waitcnt lgkmcnt(0)")
    e("  s_barrier")
    pf()
    e("  s_mov_b64 vcc, 0")
    for k in range(3):
        e(f"  ds_read_b128 {vr(qa + 4 * k, 4)}, {vr(vQA + k)}")
    tab_read(0)
    e(f"  s_waitcnt vmcnt({PRE - 1})")
    pf()
    if P.tfine:
        e("  s_waitcnt lgkmcnt(0)")
        for k in range(pfn[0]):
            e(f"  v_writelane_b32 {vr(vtr)}, s{PFR[k]}, {k}")
        e(f"  s_mov_b32 m0, {pfn[0]}")

    def vfirst():
        e(f"  s_and_b32 s{sH}, s{sVO}, 15")
        e(f"  s_add_u32 s{sNEED}, s{sH}, 1")
        e(f"  ds_read_b32 {vr(vF)}, {vr(vZ)} offset:{FL + 20}")
        flagwait("a0", FL + 20)
        e(f"  s_mulk_i32 s{sH}, 1536")
        for k in range(2):
            e(f"  v_add_u32 {vr(vLV + k)}, s{sH}, {vr(vLB + k)}")
        e(f"  ds_read_b32 {vr(A)}, {vr(vLV)}")

    assert all(x[3] < 14 for x in sch)

    def kred(n):
        dpp = lambda d, x, how, m: e(f"  v_add_f32_dpp {vr(d)}, {vr(x)}, {vr(x)} {how} row_mask:0xf bank_mask:{m:#x}")
        dpp(M1, dacc, "row_ror:8", 12 if n & 1 else 3)
        if n % 2 == 1:
            e("  s_nop 1")
            dpp(M2, M1, "row_half_mirror", 10 if n & 2 else 5)
        if n % 4 == 3:
            e("  s_nop 1")
            dpp(M2 if n & 4 else M3, M2, "quad_perm:[2,3,0,1]", 15)
        if n % 8 == 7:
            e(f"  v_cndmask_b32_e64 {vr(M3)}, {vr(M3)}, {vr(M2)}, s[{sMSK}:{sMSK + 1}]")
            e("  s_nop 1")
            dpp((LG, M3, LG + 1)[n >> 3], M3, "quad_perm:[1,0,3,2]", 15)
        if n == 15:
            e(f"  v_cndmask_b32_e64 {vr(LG)}, {vr(LG)}, {vr(M3)}, s[{sMSK + 2}:{sMSK + 3}]")

    e(".p2align 6")
    e("L_k:")
    e(f"  s_add_u32 s{sT0}, s{sK}, 2")
    e(f"  s_min_u32 s{sNEED}, s{sT0}, 16")
    for k in range(3):
        e(f"  v_add_u32 {vr(vQA + k)}, 768, {vr(vQA + k)}")
    for a in range(8):
        if a == 7:
            flagwait("qn", FL + 16)
        else:
            e("  s_waitcnt lgkmcnt(0)")
        if "t" not in P.xp:
            tab_read((a + 1) % 8)
        if a == 6:
            e(f"  ds_read_b32 {vr(vF)}, {vr(vZ)} offset:{FL + 16}")
        if a == P.ev and P.ev:
            e(f"  s_cmp_eq_u32 s{sK}, 15")
            e("  s_cbranch_scc0 L_kv")
            vfirst()
            e("L_kv:")
        for j in range(3):
            if j == CP:
                control(a)
            if j == DP:
                decide(a)
            n = 3 * a + j
            k_ = ring + 4 * n
            q_ = qa + 4 * TN[n]
            for i in range(4):
                e(f"  v_dot2_f32_bf16 {vr(wt + i)}, {vr(tab + 12 * (a & 1) + 4 * j + i)}, {vr(q_ + i)}, 0")
            for i in range(4):
                e(f"  v_cvt_f32_i32 {vr(k_ + i)}, {vr(k_ + i)}")
            if a == 7:
                e(f"  ds_read_b128 {vr(q_, 4)}, {vr(vQA + TN[n])}")
            for h in range(2):
                e(f"  v_pk_add_f32 {vr(k_ + 2 * h, 2)}, {vr(k_ + 2 * h, 2)}, {vr(bc, 2)} op_sel_hi:[1,0]")
            e(f"  v_pk_mul_f32 {vr(dacc, 2)}, {vr(k_, 2)}, {vr(wt, 2)}")
            e(f"  v_pk_fma_f32 {vr(dacc, 2)}, {vr(k_ + 2, 2)}, {vr(wt + 2, 2)}, {vr(dacc, 2)}")
            e(f"  v_add_f32 {vr(dacc)}, {vr(dacc)}, {vr(dacc + 1)}")
            if j == TP:
                throttle(a)
            pace(n, P.hi)
            if str(j) in P.bar:
                e("  s_barrier")
            ld(n + PRE)
            share(a, j)
            if "k" not in P.xp:
                kred(n)
        if a in (3, 7) or P.tfine:
            tr()
    assert sorted(TN[21:]) == [0, 1, 2] and sorted(TN[:3]) == [0, 1, 2]
    e(f"  s_add_u32 s{sK}, s{sK}, 1")
    e(f"  v_mov_b32 {vr(vF)}, s{sK}")
    for k in range(2):
        e(f"  ds_write_b32 {vr(vLG + k)}, {vr(LG + k)}")
    e(f"  ds_write_b32 {vr(vPW)}, {vr(vF)} offset:{FL}")
    for k in range(2):
        e(f"  v_add_u32 {vr(vLG + k)}, 1536, {vr(vLG + k)}")
    e(f"  s_mov_b64 s[{rA}:{rA + 1}], s[{rB}:{rB + 1}]")
    e(f"  s_add_u32 s{sH}, s{sK}, 1")
    e(f"  s_sub_u32 s{sT1}, s{sH}, 16")
    vstep_k(sF, sT1)
    e(f"  s_cmp_lt_u32 s{sH}, 16")
    e(f"  s_cselect_b32 s{sH}, s{sH}, s{sF}")
    e(f"  s_cselect_b32 s{sX}, s{sQK}, s{sQV}")
    e(f"  s_cselect_b32 s{sX + 1}, s{sQK + 1}, s{sQV + 1}")
    head_of(sH, sH)
    srd_head(rB, sX, sH)
    e(f"  s_cmp_lt_u32 s{sK}, 16")
    e("  s_cbranch_scc1 L_k")

    e("L_vpre:")
    dist[0] = PD
    e(f"  s_mov_b32 s{sK}, 0")
    if not P.ev:
        vfirst()
    e(".p2align 6")
    e("L_v:")
    e(f"  s_add_u32 s{sT1}, s{sK}, 1")
    e(f"  s_min_u32 s{sT1}, s{sT1}, 15")
    vstep_k(sH, sT1)
    e(f"  s_add_u32 s{sNEED}, s{sH}, 1")
    e(f"  s_mulk_i32 s{sH}, 1536")
    e("  s_waitcnt lgkmcnt(0)")
    e(f"  ds_read_b32 {vr(A + 1)}, {vr(vLV + 1)}")
    for k in range(2):
        e(f"  v_add_u32 {vr(vLV + k)}, s{sH}, {vr(vLB + k)}")
    for a in range(8):
        if a == 5 or (P.wc and a not in (0, 6)):
            e("  s_waitcnt lgkmcnt(0)")
        if a == 5:
            e(f"  ds_read_b32 {vr(vF)}, {vr(vZ)} offset:{FL + 20}")
        if a == 6:
            flagwait("an", FL + 20)
            e(f"  ds_read_b32 {vr(A)}, {vr(vLV)}")
        for j in range(3):
            n = 3 * a + j
            if n + PD == 24:
                e("  s_cbranch_vccz L_in")
                e(f"  s_waitcnt vmcnt({drain['in']})")
                e("L_in:")
            if j in (CP, DP):
                if n + PD >= 24:
                    e(f"  s_cbranch_vccnz L_c{n}")
                if n < PRE - PD:
                    e(f"  s_cmp_eq_u32 s{sK}, 0")
                    e(f"  s_cbranch_scc1 L_c{n}")
                if j == CP:
                    control(a)
                if j == DP:
                    decide(a)
                if n + PD >= 24 or n < PRE - PD:
                    e(f"L_c{n}:")
            v_ = ring + 4 * n
            e(f"  v_mov_b32_dpp {vr(bc)}, {vr(A + n // 16)} row_newbcast:{rev(n % 16, 4)} row_mask:0xf bank_mask:0xf")
            for i in range(4):
                e(f"  v_cvt_f32_i32 {vr(v_ + i)}, {vr(v_ + i)}")
            for h in range(2):
                d = acc + 4 * TN[n] + 2 * h
                if a == 0:
                    e(f"  v_pk_mul_f32 {vr(d, 2)}, {vr(v_ + 2 * h, 2)}, {vr(bc, 2)} op_sel_hi:[1,0]")
                else:
                    e(f"  v_pk_fma_f32 {vr(d, 2)}, {vr(v_ + 2 * h, 2)}, {vr(bc, 2)}, {vr(d, 2)} op_sel_hi:[1,0,1]")
            if n + PD >= 24:
                e(f"  s_cbranch_vccz L_f{n}")
                if n < 23:
                    e(f"  s_waitcnt vmcnt({drain[n]})")
                e(f"  s_branch L_g{n}")
                e(f"L_f{n}:")
            if n < PRE - PD:
                e(f"  s_cmp_eq_u32 s{sK}, 0")
                e(f"  s_cbranch_scc0 L_f{n}")
                e(f"  s_waitcnt vmcnt({first[n]})")
                e(f"  s_branch L_g{n}")
                e(f"L_f{n}:")
            if j == TP:
                throttle(a)
            pace(n, P.hiv)
            if str(j) in P.bar:
                e("  s_barrier")
            ld(n + PD)
            share(a, j)
            if n + PD >= 24 or n < PRE - PD:
                e(f"L_g{n}:")
        if a in (3, 7):
            tr()
    e(f"  s_add_u32 s{sK}, s{sK}, 1")
    for j in range(3):
        e(f"  v_permlane32_swap_b32 {vr(acc + 4 * j)}, {vr(acc + 4 * j + 2)}")
        e(f"  v_permlane32_swap_b32 {vr(acc + 4 * j + 1)}, {vr(acc + 4 * j + 3)}")
    for j in range(3):
        e(f"  v_add_f32 {vr(acc + 4 * j)}, {vr(acc + 4 * j)}, {vr(acc + 4 * ((j + 1) % 3) + 2)}")
        e(f"  v_add_f32 {vr(acc + 4 * j + 1)}, {vr(acc + 4 * j + 1)}, {vr(acc + 4 * ((j + 1) % 3) + 3)}")
    e(f"  s_add_u32 s{sT0}, s{sK}, 16")
    e(f"  s_cmp_eq_u32 s{sK}, 15")
    e("  s_cselect_b64 vcc, -1, 0")
    if P.lb:
        e(f"  s_cselect_b32 s{sT1}, {P.lb}, 0")
        e(f"  s_add_u32 s{sB}, s{sB}, s{sT1}")
    e(f"  v_mov_b32 {vr(vF)}, s{sT0}")
    for j in range(3):
        e(f"  v_permlane16_swap_b32 {vr(acc + 4 * j)}, {vr(acc + 4 * j + 1)}")
    for j in range(3):
        e(f"  v_add_f32 {vr(acc + 4 * j)}, {vr(acc + 4 * j)}, {vr(acc + 4 * ((j + 2) % 3) + 1)}")
    for j in range(3):
        e(f"  ds_write_b32 {vr(vPA + j)}, {vr(acc + 4 * j)}")
    e(f"  ds_write_b32 {vr(vPW)}, {vr(vF)} offset:{FL}")
    for j in range(3):
        e(f"  v_add_u32 {vr(vPA + j)}, 3072, {vr(vPA + j)}")
    e(f"  s_mov_b64 s[{rA}:{rA + 1}], s[{rB}:{rB + 1}]")
    e(f"  s_add_u32 s{sT1}, s{sK}, 1")
    e(f"  s_min_u32 s{sT1}, s{sT1}, 15")
    vstep_k(sH, sT1)
    head_of(sH, sH)
    srd_head(rB, sQV, sH)
    e(f"  s_cmp_lt_u32 s{sK}, 16")
    e("  s_cbranch_scc1 L_v")
    if P.fb:
        e("  s_waitcnt lgkmcnt(0)")
        e("  s_barrier")
    if P.trace:
        e(f"  s_mul_i32 s8, s2, {5 * 256}")
        e("  s_add_u32 s8, s8, 0x100000")
        e(f"  v_lshl_add_u32 {vr(t0)}, v0, 2, s8")
        e(f"  global_store_dword {vr(t0)}, {vr(vtr)}, s[{sWS}:{sWS + 1}]")
    e("  s_endpgm")

    HP = [20, 22, 24, 8, 34, 36, 38, 72]
    NL = P.nr
    ms = [m for m in range(P.r0, P.r1 + 1) if m < P.rf or m > P.rt or (m - P.r0) % P.rp == 0]
    msk = sum(1 << m for m in ms)

    def hp(k):
        if P.hprof:
            e(f"  s_memrealtime s[{HP[k]}:{HP[k] + 1}]")

    def progwait(name, slp):
        e(f"L_{name}:")
        e(f"  ds_read_b128 {vr(pr, 4)}, {vr(vZ)} offset:{FL}")
        e("  s_waitcnt lgkmcnt(0)")
        e(f"  v_min_u32 {vr(pr)}, {vr(pr)}, {vr(pr + 1)}")
        e(f"  v_min3_u32 {vr(pr)}, {vr(pr)}, {vr(pr + 2)}, {vr(pr + 3)}")
        e("  s_nop 0")
        e(f"  v_readfirstlane_b32 s{sF}, {vr(pr)}")
        e(f"  s_cmp_ge_u32 s{sF}, s{sNEED}")
        e(f"  s_cbranch_scc1 L_{name}_ok")
        budget(f"L_{name}_ok")
        if slp:
            e(f"  s_sleep {slp}")
        e(f"  s_branch L_{name}")
        e(f"L_{name}_ok:")

    def rowred(op, v):
        for n in (8, 4, 2, 1):
            e("  s_nop 1")
            e(f"  {op}_dpp {vr(v)}, {vr(v)}, {vr(v)} row_ror:{n} row_mask:0xf bank_mask:0xf")

    def allred(op, v, t):
        rowred(op, v)
        for sw in ("v_permlane16_swap_b32", "v_permlane32_swap_b32"):
            e(f"  v_mov_b32 {vr(t)}, {vr(v)}")
            e("  s_nop 1")
            e(f"  {sw} {vr(v)}, {vr(t)}")
            e(f"  {op} {vr(v)}, {vr(v)}, {vr(t)}")

    def sum_partials(nq):
        w = 4 * nq
        for k in range(4):
            for q in range(nq):
                e(f"  ds_read_b128 {vr(x + w * k + 4 * q, 4)}, {vr(h0)} offset:{768 * k + 16 * q}")
        e(f"  ds_read_b128 {vr(z4, 4)}, {vr(h1)} offset:{ST}")
        e("  s_waitcnt lgkmcnt(0)")
        for h in range(0, w, 2):
            e(f"  v_pk_add_f32 {vr(x + h, 2)}, {vr(x + h, 2)}, {vr(x + w + h, 2)}")
            e(f"  v_pk_add_f32 {vr(x + 2 * w + h, 2)}, {vr(x + 2 * w + h, 2)}, {vr(x + 3 * w + h, 2)}")
        for h in range(0, w, 2):
            e(f"  v_pk_add_f32 {vr(x + h, 2)}, {vr(x + h, 2)}, {vr(x + 2 * w + h, 2)}")
        for h in range(0, w, 2):
            e(f"  v_pk_add_f32 {vr(x + h, 2)}, {vr(x + h, 2)}, {vr(z4 + 2, 2)} op_sel_hi:[1,0] neg_lo:[0,1] neg_hi:[0,1]")

    def warm(tag):
        if not P.tw:
            return
        e(f"  s_add_u32 s{sX}, s{sNEED}, {P.tw}")
        if P.tl:
            e(f"  s_cmp_eq_u32 s{sX}, 31")
        else:
            e(f"  s_cmp_lt_u32 s{sX}, 32")
        e(f"  s_cbranch_scc0 L_tw{tag}")
        e(f"  s_sub_u32 s{sT1}, s{sX}, 16")
        vstep_k(sF, sT1)
        e(f"  s_cmp_lt_u32 s{sX}, 16")
        e(f"  s_cselect_b32 s{sF}, s{sX}, s{sF}")
        e(f"  s_cselect_b32 s{rB}, s{sQK}, s{sQV}")
        e(f"  s_cselect_b32 s{rB + 1}, s{sQK + 1}, s{sQV + 1}")
        head_of(sF, sF)
        e(f"  s_and_b32 s{sT1}, s2, 7")
        e(f"  s_lshl3_add_u32 s{sF}, s{sF}, s{sT1}")
        e(f"  s_mul_i32 s{sF}, s{sF}, 6")
        e(f"  s_add_u32 s{sF}, s{sF}, s{sJ}")
        e(f"  s_add_u32 s{sF}, s{sF}, 2")
        e(f"  s_lshl_b32 s{sF}, s{sF}, 15")
        if P.tv:
            e(f"  v_mov_b32 {vr(vFR)}, s{sF}")
            e("  s_mov_b64 exec, 1")
            e(f"  global_load_dword {vr(vFI)}, {vr(vFR)}, s[{rB}:{rB + 1}]")
            e("  s_mov_b64 exec, -1")
        else:
            e(f"  s_load_dword s{sF}, s[{rB}:{rB + 1}], s{sF}")
            e("  s_waitcnt lgkmcnt(0)")
        e(f"L_tw{tag}:")

    def mark(tag):
        if not P.enc:
            return
        for k, m in enumerate(P.enc.split(",")[:2]):
            e(f"  s_cmp_eq_u32 s{sNEED}, {m}")
            e(f"  s_cbranch_scc0 L_mk{tag}{k}")
            e(f"  s_memrealtime s[{16 + 2 * k}:{17 + 2 * k}]")
            e(f"L_mk{tag}{k}:")

    def rank_post(tag):
        if not (P.ctl and NL):
            return
        e(f"  s_bitcmp1_b32 s{sRF}, s{sNEED}")
        e(f"  s_cbranch_scc0 L_fa{tag}")
        if P.sa:
            e(f"  s_mul_i32 s{sT0}, s{sNEED}, 384")
            e(f"  s_add_u32 s{sT0}, s{sT0}, {W_RK}")
            e(f"  s_mov_b32 s{sB}, 1")
            e(f"  s_atomic_add s{sB}, s[{sWS}:{sWS + 1}], s{sT0} glc")
        e(f"  s_lshl_b64 exec, 1, s{sNEED}")
        if not P.sa:
            e(f"  global_atomic_add {vr(vFR)}, {vr(vFA)}, {vr(vOne)}, s[{sWS}:{sWS + 1}] sc0 sc1")
        if P.ki:
            e(f"  global_load_dword {vr(vEL)}, {vr(vFB)}, s[{sWS}:{sWS + 1}] offset:8 sc1")
        e("  s_mov_b64 exec, -1")
        e(f"L_fa{tag}:")

    def rank_take(tag):
        if not (P.ctl and NL):
            return
        e(f"  s_bitcmp1_b32 s{sRF}, s{sNEED}")
        e(f"  s_cbranch_scc0 L_fb{tag}")
        e("  s_waitcnt vmcnt(0) lgkmcnt(0)")
        if P.sa:
            e(f"  s_min_u32 s{sF}, s{sB}, {8 * NL - 1}")
        else:
            e(f"  v_sub_u32 {vr(vFX)}, {vr(vFR)}, {vr(vFI)}")
            e("  s_nop 0")
            e(f"  v_readlane_b32 s{sF}, {vr(vFX)}, s{sNEED}")
            e(f"  s_min_u32 s{sF}, s{sF}, {8 * NL - 1}")
        e(f"  s_lshl_b32 s{sF}, s{sF}, 1")
        e(f"  s_sub_u32 s{sF}, s{sF}, {8 * NL - 1}")
        if P.ki:
            e(f"  v_readlane_b32 s{sI}, {vr(vEL)}, s{sNEED}")
            e(f"  s_mul_i32 s{sT1}, s{sF}, {P.ki}")
            e(f"  s_ashr_i32 s{sT0}, s{sI}, {P.leak}")
            e(f"  s_sub_u32 s{sI}, s{sI}, s{sT0}")
            if P.streak:
                e(f"  s_mul_i32 s{sT0}, s{sI}, s{sF}")
                e(f"  s_cmp_lt_i32 s{sT0}, 0")
                e(f"  s_cselect_b32 s{sI}, 0, s{sI}")
            e(f"  s_add_u32 s{sT1}, s{sT1}, s{sI}")
            e(f"  v_mov_b32 {vr(vEL)}, s{sT1}")
        e(f"  s_cmp_le_u32 s{sNEED}, {P.kn}")
        e(f"  s_cselect_b32 s{sT0}, {P.kp0}, {P.kp}")
        e(f"  s_mul_i32 s{sF}, s{sF}, s{sT0}")
        e(f"  s_add_u32 s{sF}, s{sF}, s{sI}")
        e(f"  s_add_u32 s{sF}, s{sF}, 8")
        e(f"  s_ashr_i32 s{sF}, s{sF}, 4")
        e(f"  v_mov_b32 {vr(vFX)}, s{sF}")
        e("  s_mov_b64 exec, 1")
        e(f"  global_store_dword {vr(vFB)}, {vr(vFX)}, s[{sWS}:{sWS + 1}]")
        if P.ki:
            e(f"  global_store_dword {vr(vFB)}, {vr(vEL)}, s[{sWS}:{sWS + 1}] offset:8")
        e("  s_mov_b64 exec, -1")
        e(f"L_fb{tag}:")

    HPF = [10, 16, 18, 20, 22, 72, 74, 76, 60, 62]
    hpn = [0]

    def hpf():
        if P.tfine:
            e(f"  s_memrealtime s[{HPF[hpn[0]]}:{HPF[hpn[0]] + 1}]")
            hpn[0] += 1

    e("L_helper:")
    e(f"  s_setprio {P.hp0}")
    e(f"  v_and_b32 {vr(h1)}, 32, v0")
    e(f"  v_lshrrev_b32 {vr(h1)}, 1, {vr(h1)}")
    e(f"  v_add_u32 {vr(sg2)}, s{sC}, {vr(h1)}")
    e(f"  v_mad_u32_u24 {vr(ra)}, {vr(sg2)}, s{sNEED}, {vr(vL16)}")
    e(f"  v_lshrrev_b32 {vr(ra)}, 1, {vr(ra)}")
    hv = []

    def half(p, full):
        if p in (2, 3):
            e(f"  s_mov_b32 exec_hi, {0 if p == 2 else full}")
        if p in (5, 6):
            e(f"  s_mov_b32 exec_lo, {0 if p == 5 else full}")

    def sc_early():
        e(f"  s_and_b32 s{sT1}, s2, 7")
        e(f"  v_lshl_add_u32 {vr(wb)}, s{sT1}, 9, {vr(vL16)}")
        e(f"  v_lshl_add_u32 {vr(ra)}, {vr(sg2)}, 12, {vr(wb)}")
        for p in range(1, 8):
            e(f"  v_add_u32 {vr(ra + p)}, {0x20000 * p:#x}, {vr(ra)}")
        for p in range(8):
            half(p, -1)
            for i, sp in enumerate((sKS, sVS)):
                e(f"  s_mov_b32 m0, {SCB + SA * i + 1024 * p}")
                e("  s_nop 0")
                if "s" not in P.xp:
                    e(f"  global_load_lds_dwordx4 {vr(ra + p)}, s[{sp}:{sp + 1}] {P.sf}")
                    hv.append(("s", p))

    for p in range(1, 8):
        e(f"  v_add_u32 {vr(ra + p)}, {12288 * p}, {vr(ra)}")
    e("  s_mov_b32 exec_lo, 0xffffff")
    e("  s_mov_b32 exec_hi, 0xffffff")
    e("  s_waitcnt lgkmcnt(0)")
    hpf()
    for p in range(8):
        half(p, "0xffffff")
        e(f"  global_load_dwordx2 {vr(rec + 4 * p, 2)}, {vr(ra + p)}, s[{sQ}:{sQ + 1}]")
        e(f"  global_load_dwordx2 {vr(rec + 4 * p + 2, 2)}, {vr(ra + p)}, s[{sQ}:{sQ + 1}] offset:192")
        hv.extend([("q", p)] * 2)
    e("  s_mov_b64 exec, -1")
    hpf()
    if P.ss == 0:
        sc_early()
    common()
    e(f"  s_load_dword s{sO}, s[{sRT}:{sRT + 1}], 24")
    e(f"  s_load_dwordx2 s[{sOH}:{sOH + 1}], s[{sRT}:{sRT + 1}], 16")
    e(f"  v_mov_b32 {vr(l)}, v0")
    for i in range(4):
        e(f"  v_mov_b32 {vr(z4 + i)}, 0")
    e(f"  ds_write_b128 {vr(vZ)}, {vr(z4, 4)} offset:{FL}")
    e(f"  ds_write_b128 {vr(vZ)}, {vr(z4, 4)} offset:{FL + 16}")
    e(f"  s_mov_b32 s{sMASK}, 0xffff0000")
    e(f"  s_mov_b32 s{sSCALE}, {f32bits(math.log2(math.e) / math.sqrt(192.0)):#x}")
    e(f"  v_mad_u32_u24 {vr(wa)}, {vr(h1)}, 48, {vr(vL16)}")
    e(f"  v_mov_b32 {vr(vOne)}, 1")
    e(f"  s_waitcnt vmcnt({len(hv)})")
    for k in range(4):
        e(f"  v_lshlrev_b32 {vr(cs + k)}, 16, {vr(pr + k)}")
        e(f"  v_and_b32 {vr(cs + 4 + k)}, s{sMASK}, {vr(pr + k)}")
    e("  s_waitcnt lgkmcnt(0)")
    hpf()
    e(f"  v_min_u32 {vr(h0)}, 2, {vr(l)}")
    e(f"  v_lshlrev_b32 {vr(h1)}, 3, {vr(h0)}")
    e(f"  v_bfe_u32 {vr(h1)}, s{sCT}, {vr(h1)}, 8")
    e(f"  v_mul_u32_u24 {vr(vCNT)}, 4352, {vr(h1)}")
    e(f"  v_add_u32 {vr(vCNT)}, {W_CNT}, {vr(vCNT)}")
    e(f"  v_and_b32 {vr(h1)}, 15, {vr(h1)}")
    e(f"  v_lshlrev_b32 {vr(vDB)}, 4, {vr(h1)}")
    e(f"  v_lshl_add_u32 {vr(h0)}, {vr(h0)}, 4, s{sC}")
    e(f"  v_mul_u32_u24 {vr(vCL)}, 4352, {vr(h0)}")
    e(f"  v_add_u32 {vr(vCL)}, {W_CNT}, {vr(vCL)}")
    if P.ctl:
        die_base(sF)
        e(f"  v_lshrrev_b32 {vr(h0)}, 1, {vr(l)}")
        e(f"  v_lshl_add_u32 {vr(vFX)}, {vr(h0)}, 8, s{sF}")
        e(f"  v_and_b32 {vr(h0)}, 1, {vr(l)}")
        e(f"  v_lshl_add_u32 {vr(vFX)}, {vr(h0)}, 4, {vr(vFX)}")
        e(f"  s_and_b32 s{sT1}, s{sSE}, 2")
        e(f"  s_lshl_b32 s{sT0}, s{sT1}, 9")
        e(f"  s_add_u32 s{sT0}, s{sT0}, s{sF}")
        if NL == 4:
            e(f"  s_and_b32 s{sT1}, s{sSE}, 1")
            e(f"  s_lshl4_add_u32 s{sT0}, s{sT1}, s{sT0}")
            e(f"  s_lshl_b32 s{sT1}, s{sSE}, 1")
        e(f"  v_add_u32 {vr(vEL)}, s{sT0}, {vr(l)}")
        e(f"  s_lshl_b32 s{sT1}, s{sT1}, 1")
        e(f"  s_add_u32 s{sF}, s{sF}, s{sT1}")
        e(f"  s_add_u32 s{sF}, s{sF}, 2048")
        e(f"  v_mov_b32 {vr(vFB)}, s{sF}")
        e(f"  v_mul_u32_u24 {vr(vFA)}, 384, {vr(l)}")
        e(f"  v_add_u32 {vr(vFA)}, {W_RK}, {vr(vFA)}")
        e(f"  v_mov_b32 {vr(vFI)}, 0")
        e(f"  v_mov_b32 {vr(vFR)}, 0")
        e(f"  s_mov_b32 s{sI}, 0")
        e(f"  s_mov_b32 s{sN}, 0")
        e(f"  s_mov_b32 s{sRF}, 0")

    def ctl_init():
        if not P.ctl:
            return
        e("  s_mov_b64 exec, 0x3ffff")
        e(f"  global_store_dwordx4 {vr(vFX)}, {vr(z4, 4)}, s[{sWS}:{sWS + 1}]")
        e("  s_mov_b64 exec, -1")

    def elect():
        if not P.ctl:
            return
        e(f"  s_cmp_eq_u32 s{sNEED}, {P.r0 - 1}")
        e("  s_cbranch_scc0 L_el")
        if NL == 2:
            e(f"  s_bitcmp0_b32 s{sSE}, 0")
            e("  s_cbranch_scc0 L_el")
        e("  s_mov_b64 exec, 0xffff")
        e(f"  global_load_ubyte {vr(vFX)}, {vr(vEL)}, s[{sWS}:{sWS + 1}] sc1")
        e("  s_waitcnt vmcnt(0)")
        e(f"  v_cmp_ne_u32 s[{sZ}:{sZ + 1}], 0, {vr(vFX)}")
        e(f"  s_lshr_b32 s{sT0}, s{sZ}, s{sCU}")
        e(f"  s_bcnt1_i32_b32 s{sT0}, s{sT0}")
        if P.rotl:
            pat = sum(1 << m for m in range(0, 32, P.rotl))
            assert all((pat << r) & msk for r in range(P.rotl))
            e(f"  s_sub_u32 s{sT1}, s{sT0}, 1")
            e(f"  s_cmp_lt_u32 s{sT1}, {P.rotl}")
            e("  s_cbranch_scc0 L_el")
            e(f"  s_lshl_b32 s{sRF}, {pat:#x}, s{sT1}")
            e(f"  s_and_b32 s{sRF}, s{sRF}, {msk:#x}")
            if not P.sa:
                e(f"  s_mov_b32 exec_lo, s{sRF}")
                e(f"  global_load_dword {vr(vFI)}, {vr(vFA)}, s[{sWS}:{sWS + 1}] sc1")
            e(f"  s_cmp_eq_u32 s{sT0}, {P.lx}")
            e("  s_cbranch_scc0 L_el")
        else:
            e(f"  s_cmp_eq_u32 s{sT0}, {P.lx}")
            e("  s_cbranch_scc0 L_el")
            e(f"  s_mov_b32 s{sRF}, {msk:#x}")
            e(f"  s_mov_b64 exec, {msk:#x}")
            e(f"  global_load_dword {vr(vFI)}, {vr(vFA)}, s[{sWS}:{sWS + 1}] sc1")
        if P.cpf:
            e("; pull the code that has not run yet into this die's L2")
            e("  s_mov_b64 exec, -1")
            e(f"  s_getpc_b64 s[{sZ}:{sZ + 1}]")
            e("L_pc2:")
            e(f"  s_sub_u32 s{sZ}, s{sZ}, L_pc2-L_vpre")
            e(f"  s_subb_u32 s{sZ + 1}, s{sZ + 1}, 0")
            e(f"  v_lshlrev_b32 {vr(vFX)}, 7, {vr(l)}")
            e(f"  global_load_dword {vr(rec)}, {vr(vFX)}, s[{sZ}:{sZ + 1}]")
            e(f"  v_add_u32 {vr(vFX)}, L_order-L_vpre-8192, {vr(vFX)}")
            e(f"  global_load_dword {vr(rec + 1)}, {vr(vFX)}, s[{sZ}:{sZ + 1}]")
        e("L_el:")
        e("  s_mov_b64 exec, -1")

    def patch(what):
        e(f"  s_bfe_u32 s{sT0}, s{sCN + 1}, {(4 << 16) | 8:#x}")
        e(f"  s_bfe_u32 s{sT1}, s{sCN}, {(4 << 16) | 20:#x}")
        e(f"  s_addk_i32 s{sT0}, 160")
        e(f"  s_addk_i32 s{sT1}, 80")
        for p, sh_, ex in ((5, sT0, "exec_hi"), (2, sT1, "exec_lo")):
            if what == "q":
                e(f"  s_mulk_i32 s{sh_}, 384")
                e(f"  v_lshrrev_b32 {vr(h0)}, 1, {vr(vL16)}")
                e(f"  v_add_u32 {vr(h0)}, s{sh_}, {vr(h0)}")
                qmask(1)
                e(f"  s_mov_b32 {ex}, 0")
                e(f"  global_load_dwordx2 {vr(rec + 4 * p, 2)}, {vr(h0)}, s[{sQ}:{sQ + 1}]")
                e(f"  global_load_dwordx2 {vr(rec + 4 * p + 2, 2)}, {vr(h0)}, s[{sQ}:{sQ + 1}] offset:192")
                hv.extend([("q", p)] * 2)
            else:
                e(f"  v_lshl_add_u32 {vr(h0)}, s{sh_}, 12, {vr(wb)}")
                e(f"  s_mov_b32 {ex}, 0")
                for i, sp in enumerate((sKS, sVS)):
                    e(f"  s_mov_b32 m0, {SCB + SA * i + 1024 * p}")
                    e("  s_nop 0")
                    if "s" not in P.xp:
                        e(f"  global_load_lds_dwordx4 {vr(h0)}, s[{sp}:{sp + 1}] {P.sf}")
                        hv.append(("s", p))
            qmask(0)

    def qmask(on):
        if on:
            e("  s_mov_b32 exec_lo, 0xffffff")
            e("  s_mov_b32 exec_hi, 0xffffff")
        else:
            e("  s_mov_b64 exec, -1")

    def rotate(p):
        L, Hh, LC, HS, HC, LS = x, x + 4, x + 8, x + 12, x + 16, x + 20
        qmask(1)
        if p == 0:
            hpf()
        e(f"  s_waitcnt vmcnt({hv[::-1].index(('q', p))})")
        if p == 0:
            hpf()
        for k in range(4):
            e(f"  v_lshlrev_b32 {vr(L + 2 * k)}, 16, {vr(rec + 4 * p + k)}")
            e(f"  v_and_b32 {vr(L + 2 * k + 1)}, s{sMASK}, {vr(rec + 4 * p + k)}")
        for d, q_, t_ in ((LC, L, cs), (HS, Hh, cs + 4), (HC, Hh, cs), (LS, L, cs + 4)):
            for h in (0, 2):
                e(f"  v_pk_mul_f32 {vr(d + h, 2)}, {vr(q_ + h, 2)}, {vr(t_ + h, 2)}")
        for i in range(4):
            e(f"  v_cvt_pk_bf16_f32 {vr(L + i)}, {vr(LC + i)}, {vr(HS + i)}")
            e(f"  v_cvt_pk_bf16_f32 {vr(Hh + i)}, {vr(HC + i)}, {vr(LS + i)}")
        for k in range(8):
            e(f"  v_lshlrev_b32 {vr(LC + k)}, 16, {vr(L + k)}")
            e(f"  v_and_b32 {vr(L + k)}, s{sMASK}, {vr(L + k)}")
        for h in (0, 2):
            e(f"  v_pk_add_f32 {vr(L + h, 2)}, {vr(LC + h, 2)}, {vr(L + h, 2)} neg_lo:[0,1] neg_hi:[0,1]")
            e(f"  v_pk_add_f32 {vr(Hh + h, 2)}, {vr(HS + h, 2)}, {vr(Hh + h, 2)}")
        for i in range(4):
            e(f"  v_cvt_pk_bf16_f32 {vr(LC + i)}, {vr(L + i)}, {vr(Hh + i)}")
            e(f"  v_cvt_pk_bf16_f32 {vr(HS + i)}, {vr(Hh + i)}, -{vr(L + i)}")
        e(f"  v_mov_b32 {vr(h0)}, {2 * p + 2}")
        e(f"  ds_write_b128 {vr(wa)}, {vr(LC, 4)} offset:{QB + 1536 * p}")
        e(f"  ds_write_b128 {vr(wa)}, {vr(HS, 4)} offset:{QB + 1536 * p + 384}")
        e(f"  ds_write_b32 {vr(vZ)}, {vr(h0)} offset:{FL + 16}")
        qmask(0)

    ctl_init()
    if P.ctl:
        hv.append(("c", 0))
    patch("q")
    e(f"  s_lshl_b32 s{sT0}, s{sJ}, 10")
    e(f"  s_add_u32 s{sT0}, s{sT0}, L_hpos-L_pc")
    e(f"  v_add_u32 {vr(h0)}, s{sT0}, {vr(vT16)}")
    e(f"  global_load_dwordx4 {vr(st4, 4)}, {vr(h0)}, s[{sZ}:{sZ + 1}]")
    hv.append(("h", 0))
    if P.ss == 1:
        sc_early()
    if P.ss <= 1:
        patch("s")
    rotate(0)
    hpf()
    if P.ss == 2:
        sc_early()
        patch("s")
    e("  s_waitcnt lgkmcnt(0)")
    e("  s_setprio 0")
    hpf()
    e("  s_barrier")
    hpf()
    if P.ss == 3:
        sc_early()
        patch("s")
    for p in range(7 if P.bar else 1, 8):
        rotate(p)
    e(f"  v_mov_b32 {vr(vSa)}, 0")
    e(f"  v_min_u32 {vr(u)}, 47, {vr(l)}")
    e(f"  v_lshlrev_b32 {vr(vL16)}, 4, {vr(u)}")
    for i in range(4):
        e(f"  v_mov_b32 {vr(sc + i)}, 0")
    e(f"  s_mov_b32 s{sNEED}, 1")
    if P.sa and P.ctl:
        e("; workgroup g < 32 clears ranking counter g")
        e("  s_cmp_lt_u32 s2, 32")
        e("  s_cbranch_scc0 L_rc")
        e("  s_lshl_b64 exec, 1, s2")
        e(f"  global_store_dword {vr(vFA)}, {vr(vZ)}, s[{sWS}:{sWS + 1}] sc1")
        e("  s_mov_b64 exec, -1")
        e("L_rc:")
    hpf()
    e("  s_waitcnt vmcnt(0)")
    hpf()
    if P.tfine:
        e("  s_waitcnt lgkmcnt(0)")
        e(f"  v_mov_b32 {vr(h0)}, 0")
        for k in range(hpn[0]):
            e(f"  v_writelane_b32 {vr(h0)}, s{HPF[k]}, {k}")
        e(f"  s_mul_i32 s{sT0}, s2, {5 * 256}")
        e(f"  s_add_u32 s{sT0}, s{sT0}, {0x100000 + 1024}")
        e(f"  v_lshl_add_u32 {vr(h1)}, v0, 2, s{sT0}")
        e(f"  global_store_dword {vr(h1)}, {vr(h0)}, s[{sWS}:{sWS + 1}]")
    for k in range(4):
        e(f"  v_and_b32 {vr(ro + 2 * k)}, 0xffff, {vr(st4 + k)}")
        e(f"  v_lshrrev_b32 {vr(ro + 2 * k + 1)}, 16, {vr(st4 + k)}")
    for k in range(2):
        e(f"  v_add_u32 {vr(ro + 6 + k)}, {SCB}, {vr(ro + 6 + k)}")
    if P.bar:
        e("; timing experiment: the helper only joins the barriers and ranks")
        e(f"  v_mov_b32 {vr(h0)}, 16")
        e(f"  ds_write_b32 {vr(vZ)}, {vr(h0)} offset:{FL + 20}")
        e(f"  s_mov_b32 s{sNEED}, 0")
        e("L_bb:")
        rank_post("b")
        for k in range(8 * len(P.bar)):
            e("  s_barrier")
            if k == 3 * len(P.bar) - 1:
                rank_take("b")
        e(f"  s_add_u32 s{sNEED}, s{sNEED}, 1")
        elect()
        e(f"  s_cmp_lt_u32 s{sNEED}, 31")
        e("  s_cbranch_scc1 L_bb")
        for k in range((8 - PRE // 3) * len(P.bar) + 1):
            e("  s_barrier")
        e("  s_branch L_fin")
    e("L_hk:")
    for a in range(2):
        for k in range(2):
            e(f"  ds_read_u16_d16_hi {vr(sc + 2 * a + k)}, {vr(ro + 6 + k)} offset:{SA * a}")
    progwait("hsw", P.psl)
    mark("s")
    rank_post("s")
    for k in range(6):
        e(f"  ds_read_b32 {vr(x + 4 + k)}, {vr(ro + k)} offset:{LGB}")
    e(f"  v_mul_f32 {vr(x + 2)}, s{sSCALE}, {vr(sc)}")
    e(f"  v_mul_f32 {vr(x + 3)}, s{sSCALE}, {vr(sc + 1)}")
    e("  s_waitcnt lgkmcnt(0)")
    e(f"  v_pk_add_f32 {vr(x, 2)}, {vr(x + 4, 2)}, {vr(x + 6, 2)}")
    e(f"  v_pk_add_f32 {vr(x, 2)}, {vr(x, 2)}, {vr(x + 8, 2)}")
    e(f"  v_mul_f32 {vr(x)}, {vr(x)}, {vr(x + 2)}")
    e(f"  v_mul_f32 {vr(x + 1)}, {vr(x + 1)}, {vr(x + 3)}")
    e(f"  v_max_f32 {vr(z4)}, {vr(x)}, {vr(x + 1)}")
    allred("v_max_f32", z4, h0)
    e(f"  v_sub_f32 {vr(x)}, {vr(x)}, {vr(z4)}")
    e(f"  v_sub_f32 {vr(x + 1)}, {vr(x + 1)}, {vr(z4)}")
    e(f"  v_exp_f32 {vr(x)}, {vr(x)}")
    e(f"  v_exp_f32 {vr(x + 1)}, {vr(x + 1)}")
    e("  s_nop 0")
    e(f"  v_add_f32 {vr(z4 + 1)}, {vr(x)}, {vr(x + 1)}")
    e(f"  v_mul_f32 {vr(x)}, {vr(x)}, {vr(sc + 2)}")
    e(f"  v_mul_f32 {vr(x + 1)}, {vr(x + 1)}, {vr(sc + 3)}")
    e(f"  v_add_f32 {vr(z4 + 2)}, {vr(x)}, {vr(x + 1)}")
    for k in range(6):
        e(f"  ds_write_b32 {vr(ro + k)}, {vr(x + (k & 1))} offset:{LGB}")
    e(f"  v_mul_f32 {vr(z4 + 2)}, {f32bits(7.5):#x}, {vr(z4 + 2)}")
    allred("v_add_f32", z4 + 1, h0)
    allred("v_add_f32", z4 + 2, h0)
    e(f"  v_mov_b32 {vr(h0)}, s{sNEED}")
    e(f"  ds_write_b128 {vr(vSa)}, {vr(z4, 4)} offset:{ST}")
    e(f"  ds_write_b32 {vr(vZ)}, {vr(h0)} offset:{FL + 20}")
    e(f"  v_add_u32 {vr(vSa)}, 16, {vr(vSa)}")
    for k in range(8):
        e(f"  v_add_u32 {vr(ro + k)}, {1536 if k < 6 else SL}, {vr(ro + k)}")
    rank_take("s")
    warm("s")
    if not P.bar:
        elect()
    e(f"  s_cmp_eq_u32 s{sNEED}, 14")
    e("  s_cbranch_scc0 L_hq_skip")
    e(f"  s_cmp_eq_u32 s{sO}, 0")
    e("  s_cbranch_scc0 L_hq_skip")
    e("  s_mov_b64 exec, 7")
    e(f"  global_store_dword {vr(vCL)}, {vr(vZ)}, s[{sWS}:{sWS + 1}] sc1")
    e("  s_waitcnt vmcnt(0)")
    e("  s_mov_b64 exec, 1")
    e(f"  global_store_dword {vr(vDB)}, {vr(vOne)}, s[{sDBG}:{sDBG + 1}] sc1")
    e("  s_mov_b64 exec, -1")
    e("L_hq_skip:")
    e("  s_waitcnt lgkmcnt(0)")
    e(f"  s_add_u32 s{sNEED}, s{sNEED}, 1")
    e(f"  s_cmp_le_u32 s{sNEED}, 16")
    e("  s_cbranch_scc1 L_hk")

    e(f"  v_and_b32 {vr(h2)}, 15, {vr(l)}")
    e(f"  v_lshlrev_b32 {vr(h2)}, 1, {vr(h2)}")
    e(f"  global_load_ushort {vr(h3)}, {vr(h2)}, s[{sRT}:{sRT + 1}] offset:32")
    e(f"  s_mov_b32 s{sK}, 0")
    e(f"  v_min_u32 {vr(wa)}, 23, {vr(l)}")
    e(f"  v_lshlrev_b32 {vr(wa)}, 4, {vr(wa)}")
    e(f"  v_lshlrev_b32 {vr(h0)}, 1, {vr(wa)}")
    e(f"  v_add_u32 {vr(h0)}, {PB}, {vr(h0)}")
    e(f"  v_add_u32 {vr(wa)}, {PK}, {vr(wa)}")
    e(f"  v_lshlrev_b32 {vr(sgn)}, 4, {vr(l)}")
    e(f"  s_mul_i32 s{sT0}, s2, 6144")
    e(f"  s_add_u32 s{sT0}, s{sT0}, {W_REC}")
    e(f"  v_add_u32 {vr(sgx)}, s{sT0}, {vr(sgn)}")
    e(f"  v_add_u32 {vr(sgn)}, {PK}, {vr(sgn)}")
    e(f"  v_cmp_gt_u32 vcc, 24, {vr(l)}")
    e(f"  v_add_u32 {vr(sg2)}, 4096, {vr(sgx)}")
    e(f"  v_lshrrev_b32 {vr(u)}, 1, {vr(vL16)}")
    e(f"  s_mul_i32 s{sT0}, s{sOH}, 384")
    e(f"  s_add_u32 s{sOUT}, s{sOUT}, s{sT0}")
    e(f"  s_addc_u32 s{sOUT + 1}, s{sOUT + 1}, 0")
    e(f"  s_lshl_b32 s{sT0}, s{sO}, 4")
    e(f"  s_add_u32 s{sT0}, s{sT0}, {W_REC}")
    e(f"  v_add_u32 {vr(h1)}, {W_REC}, {vr(u)}")
    e("  s_waitcnt vmcnt(0)")
    e(f"  v_or_b32 {vr(h2)}, 15, {vr(h3)}")
    e(f"  v_mul_u32_u24 {vr(h2)}, 384, {vr(h2)}")
    e(f"  v_mul_u32_u24 {vr(h3)}, 384, {vr(h3)}")
    e(f"  v_add_u32 {vr(ra + 15)}, s{sT0}, {vr(h2)}")
    e("  s_nop 0")
    for k in range(15):
        e(f"  v_add_u32_dpp {vr(ra + k)}, {vr(h3)}, {vr(h1)} row_newbcast:{k} row_mask:0xf bank_mask:0xf")
    e(f"  s_mov_b64 s[{sX}:{sX + 1}], 0")
    e("L_hp:")
    e(f"  s_min_u32 s{sT0}, s{sO}, 13")
    e(f"  s_cmp_eq_u32 s{sT0}, s{sK}")
    e("  s_cbranch_scc0 L_hc_ok")
    e("L_hc:")
    e(f"  global_load_dword {vr(pr)}, {vr(vDB)}, s[{sDBG}:{sDBG + 1}] sc1")
    e("  s_waitcnt vmcnt(0)")
    e(f"  v_cmp_ne_u32 s[{sZ}:{sZ + 1}], 1, {vr(pr)}")
    e(f"  s_cmp_eq_u64 s[{sZ}:{sZ + 1}], 0")
    e("  s_cbranch_scc1 L_hc_ok")
    budget("L_hc_ok")
    e("  s_sleep 64")
    e("  s_branch L_hc")
    e("L_hc_ok:")
    vstep_k(sH, sK)
    e(f"  s_lshl_b32 s{sT0}, s{sH}, 4")
    e(f"  v_mov_b32 {vr(h1)}, s{sT0}")
    e(f"  s_cmp_eq_u32 s{sK}, 14")
    e("  s_cbranch_scc0 L_hp_mid")
    for k in range(6):
        e(f"  ds_read_b128 {vr(blk + 4 * k, 4)}, {vr(sgn)} offset:{1024 * k}")
    e(f"  v_subrev_u32 {vr(h2)}, 24, {vr(l)}")
    e(f"  v_and_b32 {vr(h2)}, 15, {vr(h2)}")
    e(f"  v_cmp_eq_u32 s[{sX}:{sX + 1}], s{sH}, {vr(h2)}")
    e(f"  v_lshlrev_b32 {vr(h2)}, 4, {vr(h2)}")
    e(f"  ds_read_b128 {vr(st4, 4)}, {vr(h2)} offset:{ST}")
    def bulk():
        for k in range(6):
            if k == 5:
                e("  s_mov_b64 exec, 0xffff")
            if "w" not in P.xp and not ("h" in P.xp and k < 3) and not ("H" in P.xp and k < 4):
                e(f"  global_store_dwordx4 {vr(sgx if k < 4 else sg2)}, {vr(blk + 4 * k, 4)}, s[{sWS}:{sWS + 1}] offset:{1024 * (k % 4)} {P.wf}")
        e("  s_mov_b64 exec, -1")

    if P.eb:
        e("  s_waitcnt lgkmcnt(0)")
        bulk()
    if P.eprio:
        e(f"  s_setprio {P.eprio}")
    e("L_hp_mid:")
    e(f"  s_add_u32 s{sK}, s{sK}, 1")
    e(f"  s_add_u32 s{sNEED}, s{sK}, 16")
    progwait("hpw", P.psl)
    mark("p")
    hp(0)
    rank_post("p")
    if not P.eb:
        e(f"  s_cmp_eq_u32 s{sK}, 15")
        e("  s_cbranch_scc0 L_hp_sum")
        bulk()
        e("L_hp_sum:")
    sum_partials(2)
    e(f"  v_max3_f32 {vr(h3)}, |{vr(x)}|, |{vr(x + 1)}|, |{vr(x + 2)}|")
    e(f"  v_max3_f32 {vr(h3)}, {vr(h3)}, |{vr(x + 3)}|, |{vr(x + 4)}|")
    e(f"  v_max3_f32 {vr(h3)}, {vr(h3)}, |{vr(x + 5)}|, |{vr(x + 6)}|")
    e(f"  v_max_f32_e64 {vr(h3)}, {vr(h3)}, |{vr(x + 7)}|")
    allred("v_max_f32", h3, wb)
    e(f"  v_frexp_exp_i32_f32 {vr(h3)}, {vr(h3)}")
    e(f"  v_sub_u32 {vr(wb)}, 14, {vr(h3)}")
    e(f"  v_subrev_u32 {vr(h3)}, 14, {vr(h3)}")
    for i in range(8):
        e(f"  v_ldexp_f32 {vr(x + i)}, {vr(x + i)}, {vr(wb)}")
    for i in range(4):
        e(f"  v_cvt_pk_f16_f32 {vr(fo + i)}, {vr(x + 2 * i)}, {vr(x + 2 * i + 1)}")
    e(f"  s_cmp_eq_u32 s{sK}, 15")
    e("  s_cbranch_scc1 L_hp_last")
    e(f"  ds_write_b32 {vr(h1)}, {vr(h3)} offset:{ST + 12}")
    e(f"  v_add_u32 {vr(h0)}, 3072, {vr(h0)}")
    e(f"  ds_write_b128 {vr(wa)}, {vr(fo, 4)}")
    e(f"  v_add_u32 {vr(wa)}, 384, {vr(wa)}")
    rank_take("p")
    warm("p")
    e("  s_branch L_hp")
    e("L_hp_last:")
    e(f"  v_cndmask_b32_e64 {vr(st4 + 3)}, {vr(st4 + 3)}, {vr(h3)}, s[{sX}:{sX + 1}]")
    for i in range(4):
        e(f"  v_cndmask_b32 {vr(fo + i)}, {vr(st4 + i)}, {vr(fo + i)}, vcc")
    e("  s_mov_b32 exec_hi, 0xff")
    e(f"  global_store_dwordx4 {vr(sg2)}, {vr(fo, 4)}, s[{sWS}:{sWS + 1}] offset:{14 * 384 - 4096} sc1")
    hp(1)
    e("  s_waitcnt vmcnt(0)")
    hp(2)
    if P.nopoll:
        e("  s_branch L_hw_ok")
    if P.sh_ == 3:
        e("  s_mov_b64 exec, 7")
        e(f"  global_atomic_add {vr(vCNT)}, {vr(vOne)}, s[{sWS}:{sWS + 1}] sc1")
        e(f"  v_readlane_b32 s{sMSK}, {vr(vCNT)}, 0")
        hp(3)
        e("L_hw:")
        e(f"  s_mov_b32 s{sF}, 0")
        e(f"  s_atomic_add s{sF}, s[{sWS}:{sWS + 1}], s{sMSK} glc")
        e("  s_waitcnt lgkmcnt(0)")
        e(f"  s_cmp_ge_u32 s{sF}, 16")
        e("  s_cbranch_scc1 L_hw_ok")
        budget("L_hw_ok")
        if P.sleep:
            e(f"  s_sleep {P.sleep}")
        e("  s_branch L_hw")
    elif P.sh_:
        for k in range(3):
            e(f"  v_readlane_b32 s{sMSK + k}, {vr(vCNT)}, {k}")
            e(f"  s_mov_b32 s{sMSK + 4 + k}, 1")
        for k in range(3):
            e(f"  s_atomic_add s{sMSK + 4 + k}, s[{sWS}:{sWS + 1}], s{sMSK + k} glc")
        e(f"  s_mov_b32 s{sT0}, 15")
        hp(3)
        e("L_hw:")
        e("  s_waitcnt lgkmcnt(0)")
        e(f"  s_cmp_ge_u32 s{sMSK + 4}, s{sT0}")
        e("  s_cbranch_scc1 L_hw_ok")
        e(f"  s_mov_b32 s{sT0}, 16")
        if P.sh_ == 1:
            e(f"  s_mov_b32 s{sMSK + 4}, 0")
            e(f"  s_atomic_add s{sMSK + 4}, s[{sWS}:{sWS + 1}], s{sMSK} glc")
        else:
            e(f"  s_load_dword s{sMSK + 4}, s[{sWS}:{sWS + 1}], s{sMSK} glc")
        budget("L_hw_ok")
        e("  s_branch L_hw")
    e("  s_mov_b64 exec, 7")
    if P.pp and not P.sh_:
        e(f"  global_atomic_add {vr(qn)}, {vr(vCNT)}, {vr(vOne)}, s[{sWS}:{sWS + 1}] sc0 sc1")
        e("  s_mov_b64 exec, 1")
        for k in range(1, P.pp):
            e(f"  s_sleep {P.sleep}")
            e(f"  global_atomic_add {vr(qn + k)}, {vr(vCNT)}, {vr(vZ)}, s[{sWS}:{sWS + 1}] sc0 sc1")
        e(f"  s_mov_b32 s{sT0}, 15")
        hp(3)
        e("L_hw:")
        for k in range(P.pp):
            e(f"  s_waitcnt vmcnt({P.pp - 1})")
            e(f"  v_readfirstlane_b32 s{sF}, {vr(qn + k)}")
            e(f"  s_cmp_ge_u32 s{sF}, s{sT0}")
            e("  s_cbranch_scc1 L_hw_ok")
            e(f"  s_mov_b32 s{sT0}, 16")
            e(f"  global_atomic_add {vr(qn + k)}, {vr(vCNT)}, {vr(vZ)}, s[{sWS}:{sWS + 1}] sc0 sc1")
        budget("L_hw_ok")
        e("  s_branch L_hw")
    e("L_hw_ok:")
    hp(4)
    e("  s_mov_b64 exec, -1")
    e(f"  global_load_dwordx4 {vr(cs, 4)}, {vr(ra + 15)}, s[{sWS}:{sWS + 1}] sc1")
    for k in range(15):
        e(f"  global_load_dwordx2 {vr(rec + 2 * k, 2)}, {vr(ra + (0 if 'r' in P.xp else k % 7 if 'h' in P.xp else k % 3 if 'H' in P.xp else k))}, s[{sWS}:{sWS + 1}] sc1")
    e(f"  s_lshl_b32 s{sH}, s{sO}, 4")
    e(f"  v_mov_b32 {vr(h1)}, s{sH}")
    e(f"  v_add_u32 {vr(h0)}, {PB + 15 * 3072}, {vr(vL16)}")
    for i in range(4):
        e(f"  v_mov_b32 {vr(fo + i)}, 0")
    e("  s_waitcnt vmcnt(15)")
    hp(5)
    e(f"  v_mov_b32 {vr(h2)}, {vr(cs)}")
    rowred("v_max_f32", h2)
    e(f"  v_sub_f32 {vr(h2)}, {vr(cs)}, {vr(h2)}")
    e(f"  v_exp_f32 {vr(h2)}, {vr(h2)}")
    e("  s_nop 0")
    e(f"  v_mul_f32 {vr(h3)}, {vr(h2)}, {vr(cs + 1)}")
    rowred("v_add_f32", h3)
    e(f"  v_rcp_f32 {vr(h3)}, {vr(h3)}")
    e("  s_nop 0")
    e(f"  v_mul_f32 {vr(h2)}, {vr(h2)}, {vr(h3)}")
    e(f"  v_ldexp_f32 {vr(h3)}, {vr(h2)}, {vr(cs + 3)}")
    e(f"  v_readlane_b32 s{sMSK + 15}, {vr(h2)}, 15")
    for k in range(15):
        e(f"  v_readlane_b32 s{sMSK + k}, {vr(h3)}, {k}")
    for k in range(15):
        e(f"  s_waitcnt vmcnt({14 - k})")
        for i in range(4):
            e(f"  v_fma_mix_f32 {vr(fo + i)}, {vr(rec + 2 * k + i // 2)}, s{sMSK + k}, {vr(fo + i)} op_sel:[{i & 1},0,0] op_sel_hi:[1,0,0]")
    hp(6)
    if P.fb:
        e("  s_barrier")
    else:
        e(f"  s_mov_b32 s{sNEED}, 32")
        progwait("hfw", P.fsl)
    hp(7)
    sum_partials(1)
    for i in range(4):
        e(f"  v_fmac_f32 {vr(fo + i)}, s{sMSK + 15}, {vr(x + i)}")
    e(f"  v_cvt_pk_bf16_f32 {vr(fo)}, {vr(fo)}, {vr(fo + 1)}")
    e(f"  v_cvt_pk_bf16_f32 {vr(fo + 1)}, {vr(fo + 2)}, {vr(fo + 3)}")
    e("  s_mov_b32 exec_hi, 0xffff")
    e(f"  global_store_dwordx2 {vr(u)}, {vr(fo, 2)}, s[{sOUT}:{sOUT + 1}] {P.of}")
    if P.bar:
        e("L_fin:")
    if P.enc:
        m0, m1, base, amp, wg = [int(v) for v in P.enc.split(",")]
        if m1 == 32:
            e("  s_memrealtime s[18:19]")
        if m0 == 0:
            e(f"  s_mov_b32 s16, s{sST}")
        e("  s_waitcnt lgkmcnt(0)")
        e("  s_sub_u32 s16, s18, s16")
        e(f"  s_atomic_add s16, s[{sDBG}:{sDBG + 1}], 4")
        e(f"  s_cmp_eq_u32 s2, {wg}")
        e("  s_cbranch_scc0 L_nohold")
        e("L_hold0:")
        e(f"  s_memrealtime s[{sST + 2}:{sST + 3}]")
        e("  s_waitcnt lgkmcnt(0)")
        e(f"  s_sub_u32 s{sT0}, s{sST + 2}, s{sST}")
        e(f"  s_cmp_lt_u32 s{sT0}, 12500")
        e("  s_cbranch_scc1 L_hold0")
        e("  s_mov_b32 s16, 0")
        e(f"  s_atomic_add s16, s[{sDBG}:{sDBG + 1}], 4 glc")
        e("  s_waitcnt lgkmcnt(0)")
        e(f"  s_sub_u32 s16, s16, {base * 256}")
        e("  s_max_i32 s16, s16, 0")
        e("  s_min_i32 s16, s16, 128000")
        e(f"  s_mul_i32 s16, s16, {amp}")
        e("  s_lshr_b32 s16, s16, 8")
        e("  s_add_u32 s16, s16, 13000")
        e("L_hold:")
        e(f"  s_memrealtime s[{sST + 2}:{sST + 3}]")
        e("  s_waitcnt lgkmcnt(0)")
        e(f"  s_sub_u32 s{sT0}, s{sST + 2}, s{sST}")
        e(f"  s_cmp_lt_u32 s{sT0}, s16")
        e("  s_cbranch_scc1 L_hold")
        e("L_nohold:")
        e("  s_waitcnt lgkmcnt(0)")
    if P.hold:
        e("; diagnostic build only")
        e("L_hold:")
        e(f"  s_memrealtime s[{sST + 2}:{sST + 3}]")
        e("  s_waitcnt lgkmcnt(0)")
        e(f"  s_sub_u32 s{sT0}, s{sST + 2}, s{sST}")
        e(f"  s_cmp_lt_u32 s{sT0}, {P.hold}")
        e("  s_cbranch_scc1 L_hold")
    if P.stamp:
        e(f"  s_memrealtime s[{sST + 2}:{sST + 3}]")
        if P.hprof:
            e("  s_waitcnt lgkmcnt(0)")
            e("  s_lshl_b32 s44, s2, 5")
            e("  s_add_u32 s44, s44, 0x80000")
            e("  v_mov_b32 v1, s44")
            for k in range(8):
                e(f"  s_sub_u32 s45, s{sST + 2}, s{HP[k]}")
                e(f"  v_mov_b32 v{4 + k}, s45")
            e(f"  global_store_dwordx4 v1, v[4:7], s[{sWS}:{sWS + 1}]")
            e(f"  global_store_dwordx4 v1, v[8:11], s[{sWS}:{sWS + 1}] offset:16")
            e("  s_nop 2")
        e("  s_getreg_b32 s6, hwreg(HW_REG_XCC_ID)")
        e("  s_getreg_b32 s7, hwreg(HW_REG_HW_ID)")
        e("  s_waitcnt lgkmcnt(0)")
        e(f"  v_mov_b32 v4, s{sST}")
        e(f"  v_mov_b32 v5, s{sST + 2}")
        e("  v_mov_b32 v6, s6")
        e("  v_mov_b32 v7, s7")
        e("  s_lshl_b32 s8, s2, 4")
        e("  v_mov_b32 v1, s8")
        e(f"  global_store_dwordx4 v1, v[4:7], s[{sWS}:{sWS + 1}]")
    e("L_end:")
    e("  s_endpgm")
    e(".p2align 6")
    e(".type L_order,@object")
    e("L_order:")
    for k in range(0, len(ordtab), 8):
        e("  .long " + ", ".join(f"{v:#x}" for v in ordtab[k:k + 8]))
    e(".type L_hpos,@object")
    e("L_hpos:")
    for b in range(2):
        at = {chunk_of(b, n, s_): lpos(n, s_) for n in range(24) for s_ in range(16)}
        rows = sorted({c // 3 for c in at})
        for l_ in range(64):
            r0, r1 = rows[l_], rows[l_ + 64]
            e("  .long " + ", ".join(f"{a_ | b_ << 16:#x}" for a_, b_ in [(at[3 * r0 + k], at[3 * r1 + k]) for k in range(3)] + [(2 * r0, 2 * r1)]))
    e('.section .rodata,"a"')
    e(".p2align 6")
    e(f".amdhsa_kernel {NAME}_kernel")
    e(f"  .amdhsa_next_free_vgpr {NV}")
    e("  .amdhsa_next_free_sgpr 100")
    e(f"  .amdhsa_accum_offset {(NV + 3) // 4 * 4}")
    e("  .amdhsa_group_segment_fixed_size 0")
    e("  .amdhsa_kernarg_size 112")
    e("  .amdhsa_user_sgpr_count 2")
    e("  .amdhsa_user_sgpr_kernarg_segment_ptr 1")
    e("  .amdhsa_system_sgpr_workgroup_id_x 1")
    e(".end_amdhsa_kernel")
    return "\n".join(o) + "\n", NV


if __name__ == "__main__":
    ap = argparse.ArgumentParser()
    ap.add_argument("-o", default=f"/code/{NAME}.s")
    for name, d in (("sh", 4), ("deep", 5), ("pd", 9), ("pre", 12), ("nf", 6), ("hi3", 99), ("leak", 2), ("tp", 2), ("rf", 3), ("rp", 2), ("rt", 26),
                    ("nl", 1), ("rotl", 7), ("lb", 0), ("s0", 0), ("su", 3), ("sp", 0), ("cpf", 1), ("lx", 4), ("hi2", 20),
                    ("streak", 0), ("dl", 8), ("sm", 1), ("pp", 3), ("eb", 0), ("inorder", 0), ("hiv", 2), ("cp", 0), ("sleep", 4),
                    ("bound", 4000000), ("ctl", 1), ("ex", 1), ("ss", 3), ("wc", 0), ("wn", 0), ("wp", 0), ("wo", 0), ("eb_", 0), ("pb", 0), ("pbb", 7), ("pe", 255), ("pc", 0), ("pcb", 6), ("pw", 0), ("hold", 0), ("nr", 2), ("ev", 4), ("tw", 0), ("tv", 0), ("tl", 0), ("lag", 2), ("hp0", 0), ("sa", 1), ("sh_", 3), ("fb", 1),
                    ("hi", -1), ("lo", -25), ("lo2", -60), ("thr", 2), ("thr2", 1), ("start", 5), ("ba", 3),
                    ("kp", 7), ("ki", 0), ("imax", 80), ("r0", 2), ("r1", 30),
                    ("kp0", 9), ("kn", 0), ("eprio", 0), ("fsl", 0), ("psl", 1)):
        ap.add_argument("--" + name, type=int, default=d)
    ap.add_argument("--kp_", default="6,6,6,7,8,9,9,10,10,11,11,12,12", help="K loads issued by each prologue point")
    ap.add_argument("--sf", default="nt")
    ap.add_argument("--of", default="")
    ap.add_argument("--wf", default="sc1")
    ap.add_argument("--bar", default="", help="timing experiments only")
    ap.add_argument("--enc", default="", help="diagnostic only: m0,m1,base,amp,wg")
    ap.add_argument("--bu", default="012", help="extra depth per position in the issued group")
    ap.add_argument("--th", default="-9,5,13")
    ap.add_argument("--sch", default="sch_np.txt")
    ap.add_argument("--xp", default="", help="timing experiments only")
    for name in ("stamp", "trace", "tfine", "hprof", "nopoll"):
        ap.add_argument("--" + name, action="store_true", help="diagnostics only")
    a = ap.parse_args()
    txt, nv = gen(a)
    open(a.o, "w").write(txt)
    print("wrote", a.o, "vgprs", nv)
```

```python
import argparse
import math
import os
import struct
from gen import HEADER, NAME, Alloc, f32bits, vr

HB = 2048 * 768

ABOUT = """
Generated by tools/gen7.py.
Work split: workgroup (cluster c, block m, member b) handles 128 rows of the 256-row block m for 16 heads 16 k + c
  (slots k = 5 and 10 take their head from a table instead of c); the two members alternate over 32 KiB runs.
  Waves 1-4 stream one 4 KiB block per round; a 16-lane row handles one third (64 dims) of a KV row per load.
  K sweep: logit = k_scale * sum_d (qk - 7.5) * (qa * cos + qb * sin), RoPE moved onto the rotated q;
  V sweep: partial = sum_rows p * v_scale * qv.
  Wave 0 (helper) rotates q, takes max / exp / sums over the workgroup's rows of each head, and merges partials.
Constant parameters (the same for every seed) are built in: both zero points (7.5), q_cos / q_sin (table L_qcs) and
  k_cos / k_sin = bf16(cos / sin(fp32(row * inv_freq))), evaluated once per workgroup from the table L_inv into LDS.
Hand-off: every workgroup finishes one of its heads and streams that head last.  Partials and (max, sum) of
  the other 15 go to d_ws with sc1 stores, then a counted atomic; the finisher rescales all 16 to the true row maximum.
Flow control (speed only, results do not depend on it): waves publish a group counter and sample the counters of
  units on the same die; late waves keep one more load in flight, early waves one or two fewer.  Helpers rank the dies.
"""

RUN = (1, 2, 0)


def chunk_of(b, n, s):
    g = 256 * RUN[n >> 3] + 128 * b + 16 * (n & 7) + s
    return {128: 512, 255: 639, 512: 128, 639: 255}.get(g, g)


def tidx(b, row):
    return row - 43 * b - 42 * ((row >= 85) + (row >= 171))


def rev(x, bits):
    return int(format(x, f"0{bits}b")[::-1], 2)


def lpos(n, s):
    return 4 * (16 * s + rev(n, 4)) if n < 16 else 1024 + 4 * (8 * s + rev(n - 16, 3))


TN = [(RUN[n >> 3] + (n & 7)) % 3 for n in range(24)]
SPECIAL = {n: i for i, n in enumerate(sorted(8 * RUN.index(r) + i for r in (0, 2) for i in (0, 7)))}
for b_ in range(2):
    ch = sorted(chunk_of(b_, n, s) for n in range(24) for s in range(16))
    assert ch == sorted(3 * r + k for r in {c // 3 for c in ch} for k in range(3))
    assert all(chunk_of(b_, n, s) % 3 == (TN[n] + 2 * b_ + s) % 3 for n in range(24) for s in range(16))
    assert len({tidx(b_, c // 3) for c in ch}) == 128 and max(tidx(b_, c // 3) for c in ch) == 128


def gen(P):
    o = []
    e = o.append
    RING, PD = 24, P.pd
    sh, deep = P.sh, P.deep
    PRE = P.pre
    DP = P.cp + P.sp
    TP = P.tp
    CP = P.cp
    EX = P.ex
    NX = 2 if P.ctl else 0
    assert deep <= PD - 1 and sh <= deep and PD <= PRE
    SL = 512
    SA = 16 * SL

    FL = 0
    ST = 256
    TB = 512
    QB = TB + 129 * 384
    LGB = QB + 16 * 768
    SCB = LGB + 16 * 1536
    PB = SCB + 2 * SA
    PK = PB + 49152
    LDS = PK + 6144
    assert 81920 < LDS <= 163840
    W_REC = 0x400000
    W_CNT = 0x700000
    W_RK = 0x780000
    W_PL = 0x7c0000

    sQ, sQK, sKS, sKZ, sQV, sVS, sVZ, sQC = 4, 6, 8, 10, 12, 14, 16, 18
    sQS, sKC, sKSN, sOUT = 20, 22, 24, 26
    sDBG, sWS = 28, 30
    rA, rB = 32, 36
    sW, sJ, sC, sK, sT0, sT1, sF, sNEED = 40, 41, 42, 43, 44, 45, 46, 47
    sMSK = 48
    sOF = 51
    sPB = 60
    sCO = 61
    sZ = 64
    sMASK, sSCALE, sH = 66, 67, 68
    sS = 69
    sX = 70
    sRF = 80
    sRT = 82
    sST = 84
    sN = 90
    sB = 91
    sVO = 92
    sSP = 94
    sI = 95
    sSE, sCU = 81, 79
    sLO = 78
    sO = 3
    sCN = 96
    sOH, sCT = 98, 99

    va = Alloc(1)
    vT16, vF, vZ, vC16 = [va.take(1) for _ in range(4)]
    voff = va.take(7)
    vTA = va.take(7)
    vQA = va.take(3)
    vPA = va.take(3)
    vLG = va.take(2)
    vLB = va.take(2)
    vLV = va.take(2)
    A = va.take(2)
    LG = va.take(2)
    M1, M2, M3 = [va.take(1) for _ in range(3)]
    bc = va.take(2, 2)
    dacc = va.take(2, 2)
    wt = va.take(4, 2)
    vtr, vPW, vPS, vN, vSum, vSu2, vBA = [va.take(1) for _ in range(7)]
    vPL = va.take(4)
    vBI = va.take(P.nr, P.nr)
    smp = va.take(4 * P.lag, 4)
    cm = va.take(4 if P.wc else 0, 4)
    qa = va.take(12, 4)
    tab = va.take(24, 4)
    tmp = va.take(12, 4)
    ring = va.take(4 * RING, 4)
    NV = va.n
    acc = qa

    here = os.path.dirname(os.path.abspath(__file__))
    sch = [[int(x) for x in ln.split()] for ln in open(os.path.join(here, P.sch))]
    inv, qcs = [[int(x, 16) for x in ln.split()] for ln in open(os.path.join(here, "consts.txt"))]
    cj = lambda g: (g >> 4, (g & 7) * 2 + ((g >> 3) & 1))
    ent = {g: sch[16 * cj(g)[0] + cj(g)[1]] for g in range(256)}
    cl = lambda g, k: ent[g][0] if k == 5 else ent[g][1] if k == 10 else g >> 4
    assert sorted(16 * ent[g][2] + cl(g, ent[g][2]) for g in range(256)) == list(range(256))
    ordtab = []
    for g in range(256):
        o_, od = ent[g][2], ent[g][3:]
        assert sorted(od) == list(range(16)) and od[15] == o_
        con = [x for x in range(256) if x != g and cl(x, o_) == cl(g, o_)] + [g]
        assert sorted(cj(x)[1] for x in con) == list(range(16))
        nib = sum(k << (4 * t) for t, k in enumerate(range(16) if "i" in P.xp else od))
        cn = sum((g >> 4 if "c" in P.xp else cl(g, k)) << (4 * k) for k in range(16))
        ctr = [g >> 4, 16 + cl(g, 5), 32 + cl(g, 10)]
        first = {5: 1, 10: 2}.get(o_, 0)
        ctr = [ctr[first]] + [x for i, x in enumerate(ctr) if i != first]
        u16 = [16 * x + ent[x][3:].index(o_) for x in con]
        assert all(v % 16 < 15 for v in u16[:15])
        ordtab += [nib & 0xffffffff, nib >> 32, cn & 0xffffffff, cn >> 32, 16 * o_ + cl(g, o_), ctr[0] | ctr[1] << 8 | ctr[2] << 16, o_, 0]
        ordtab += [u16[2 * i] | u16[2 * i + 1] << 16 for i in range(8)]

    def ld(n):
        rr = rA if n < 24 else rB
        n %= 24
        so = f"s{sOF + (n & 7)}" if n & 7 else "0"
        vo = voff + (3 + SPECIAL[n] if n in SPECIAL and "x" not in P.xp else n >> 3)
        e(f"  buffer_load_dwordx4 {vr(ring + 4 * n, 4)}, {vr(vo)}, s[{rr}:{rr + 3}], {so} offen nt")

    dist = [PRE]

    def cnt(depth, n):
        ops = loads = 0
        pos = (n + dist[0]) % len(P.bu)
        depth += int(P.bu[pos])
        while loads < depth - 1:
            if n % (3 * EX) == CP:
                ops += NX
            if P.ctl and n % 24 == 3 * P.ba + CP:
                ops += 1
            n -= 1
            loads += 1
            ops += 1
        return ops

    def toff(n):
        if P.th:
            return [int(x) for x in P.th.split(",")][(n + dist[0]) % len(P.bu)]
        return P.dl * ((n - DP) % 3 - 1)

    LAG = P.lag
    SW = deep + max(int(x) for x in P.bu) > 3 * LAG * EX

    def swait(a):
        return 3 * LAG * EX + (LAG - 1) * NX + ((a - P.ba) % 8 < LAG * EX)

    first = {}
    drain = {}

    def verify():
        ops = [("L", i) for i in range(PRE)]
        done = 1
        for g in range(24 * 32):
            n = g % 24
            tail = g + PD >= 24 * 32
            skip = 384 <= g < 384 + PRE - PD
            dist[0] = PRE if g < 384 else PD
            if not tail and not skip:
                if P.ctl and n == 3 * P.ba + CP:
                    ops.append(("X", 0))
                if n % (3 * EX) == CP:
                    if P.ctl and SW:
                        done = max(done, len(ops) - swait(n // 3))
                    ops += [("X", 0)] * (NX if P.inorder else max(0, NX - 1))
            if g + PD == 24 * 32:
                drain["in"] = len(ops) - 1 - ops.index(("L", g))
                done = max(done, len(ops) - drain["in"])
            assert ("L", g) in ops[:done], g
            if tail:
                if n < 23:
                    drain[n] = len(ops) - 1 - ops.index(("L", g + 1))
                    done = max(done, len(ops) - drain[n])
                continue
            if skip:
                first[n] = len(ops) - 1 - ops.index(("L", g + 1))
                done = max(done, len(ops) - first[n])
                continue
            done = max(done, len(ops) - cnt(deep + (P.hi3 < 99 and (n + PD) % 3 == 0 and g >= 3 * P.start) if (g >= 3 * (P.start // EX * EX) or (g >= DP and P.s0 > P.hi + toff(n))) else sh, n))
            ops.append(("L", g + (PRE if g < 384 else PD)))
    verify()
    dist[0] = PRE
    lab = [0]

    def pace(n, hi):
        if P.ctl:
            lab[0] += 1
            top = P.hi3 < 99 and (n + PD) % 3 == 0
            if top:
                boost(hi + P.hi3)
                e(f"  s_cbranch_scc1 L_r{lab[0]}")
            if deep > sh + 1:
                boost(P.hi2)
                e(f"  s_cbranch_scc1 L_q{lab[0]}")
            boost(hi + toff(n))
            e(f"  s_cbranch_scc1 L_p{lab[0]}")
            e(f"  s_waitcnt vmcnt({cnt(sh, n)})")
            e(f"L_p{lab[0]}:")
            if deep > sh + 1:
                e(f"  s_waitcnt vmcnt({cnt(sh + 1, n)})")
                e(f"L_q{lab[0]}:")
            e(f"  s_waitcnt vmcnt({cnt(deep, n)})")
            if top:
                e(f"L_r{lab[0]}:")
                e(f"  s_waitcnt vmcnt({cnt(deep + 1, n)})")
        else:
            e(f"  s_waitcnt vmcnt({cnt(sh, n)})")

    def control(a):
        if not P.ctl:
            return
        if a == P.ba:
            e("  s_mov_b64 exec, 1")
            e(f"  global_load_dwordx{P.nr} {vr(vBI, P.nr)}, {vr(vBA)}, s[{sWS}:{sWS + 1}] sc1")
            e("  s_mov_b64 exec, -1")
        if a % EX == 0:
            sm = smp + 4 * ((a // EX) % LAG)
            if SW:
                e(f"  s_waitcnt vmcnt({swait(a)})")
            if a == (P.ba + LAG * EX + EX - 1) // EX * EX % 8:
                e(f"  v_add_u32 {vr(vSum)}, {vr(vBI)}, {vr(vBI + 1)}")
                if P.nr == 4:
                    e(f"  v_add3_u32 {vr(vSum)}, {vr(vBI + 2)}, {vr(vBI + 3)}, {vr(vSum)}")
                    e(f"  v_ashrrev_i32 {vr(vSum)}, 2, {vr(vSum)}")
                e("  s_nop 0")
                e(f"  v_readfirstlane_b32 s{sB}, {vr(vSum)}")
                if P.eb_:
                    e(f"  s_cmpk_lt_u32 s{sN}, {P.pe}")
                    e(f"  s_cselect_b32 s{sT0}, 0, {P.eb_}")
                    e(f"  s_add_u32 s{sB}, s{sB}, s{sT0}")
                if P.pb:
                    e(f"  s_cmpk_lt_u32 s{sN}, {P.pe}")
                    e(f"  s_cselect_b32 s{sT0}, s{sPB}, 0")
                    e(f"  s_add_u32 s{sB}, s{sB}, s{sT0}")
            e(f"  s_add_u32 s{sT0}, s{sLO}, 0x03030303")
            e(f"  v_msad_u8 {vr(vSum)}, s{sLO}, {vr(sm)}, 0")
            e(f"  v_msad_u8 {vr(vSu2)}, s{sT0}, {vr(sm)}, 0")
            for k in range(1, 3):
                e(f"  v_msad_u8 {vr(vSum)}, s{sLO}, {vr(sm + k)}, {vr(vSum)}")
                e(f"  v_msad_u8 {vr(vSu2)}, s{sT0}, {vr(sm + k)}, {vr(vSu2)}")
            e(f"  v_sub_u32 {vr(vSum)}, {vr(vSum)}, {vr(vSu2)}")
            e(f"  v_mov_b32 {vr(vN)}, s{sN}")
            e(f"  s_add_u32 s{sLO}, s{sLO}, 0x01010101")
            if P.nl > 1:
                e(f"  v_add_u32_dpp {vr(vSum)}, {vr(vSum)}, {vr(vSum)} quad_perm:[2,3,0,1] row_mask:0xf bank_mask:0xf")
                e(f"  s_nop {1 if P.nl > 2 else 0}")
            if P.nl > 2:
                e(f"  v_add_u32_dpp {vr(vSum)}, {vr(vSum)}, {vr(vSum)} row_shl:4 row_mask:0xf bank_mask:0xf")
                e("  s_nop 0")
            e(f"  v_readlane_b32 s{sMASK}, {vr(vSum)}, 0")
            e(f"  v_readlane_b32 s{sSCALE}, {vr(vSum)}, 1")
            e("  s_mov_b64 exec, 1")
            e(f"  global_store_byte {vr(vPS)}, {vr(vN)}, s[{sWS}:{sWS + 1}]")
            e(f"  s_mov_b64 exec, {(1 << (2 * P.nl)) - 1}")
            e(f"  global_load_dwordx3 {vr(sm, 3)}, {vr(vPL + (a // EX) % 4)}, s[{sWS}:{sWS + 1}] sc1")
            e("  s_mov_b64 exec, -1")

    def decide(a):
        if not P.ctl:
            return
        if a % EX == 0:
            e(f"  s_add_u32 s{sS}, s{sMASK}, s{sSCALE}")
            if P.wc:
                e(f"  v_add3_u32 {vr(vSum)}, {vr(cm)}, {vr(cm + 1)}, {vr(cm + 2)}")
                e(f"  v_add_u32 {vr(vSum)}, {vr(vSum)}, {vr(cm + 3)}")
                e(f"  v_mov_b32 {vr(vSu2)}, s{sS}")
                e(f"  v_readfirstlane_b32 s{sT0}, {vr(vSum)}")
                e(f"  ds_write_b32 {vr(vPW)}, {vr(vSu2)} offset:{FL + 32 + 16 * (a & 1)}")
                if P.wo:
                    e(f"  s_mul_i32 s{sT1}, s{sCO}, {P.wo}")
                    e(f"  s_mov_b32 s{sCO}, s{sT0}")
                e(f"  s_mul_i32 s{sT0}, s{sT0}, {P.wc}")
                if P.wo:
                    e(f"  s_add_u32 s{sT0}, s{sT0}, s{sT1}")
                if P.wp:
                    e(f"  s_mul_i32 s{sT1}, s{sI}, {P.wp}")
                    e(f"  s_add_u32 s{sT0}, s{sT0}, s{sT1}")
                    e(f"  s_mov_b32 s{sI}, s{sS}")
                e(f"  s_mul_i32 s{sS}, s{sS}, {P.wn}")
                e(f"  s_add_u32 s{sS}, s{sS}, s{sT0}")
                e(f"  s_ashr_i32 s{sS}, s{sS}, 4")
            elif P.sm > 1:
                e(f"  s_ashr_i32 s{sT0}, s{sI}, {P.sm - 1}")
                e(f"  s_sub_u32 s{sI}, s{sI}, s{sT0}")
                e(f"  s_add_u32 s{sI}, s{sI}, s{sS}")
                e(f"  s_ashr_i32 s{sS}, s{sI}, {P.sm - 1}")
            elif P.sm:
                e(f"  s_add_u32 s{sT0}, s{sS}, s{sI}")
                e(f"  s_mov_b32 s{sI}, s{sS}")
                e(f"  s_ashr_i32 s{sS}, s{sT0}, {1 + P.nl // 2}")
            elif P.nl > 1:
                e(f"  s_ashr_i32 s{sS}, s{sS}, {P.nl // 2}")
            e(f"  s_add_u32 s{sS}, s{sS}, s{sB}")
            e(f"  s_cmp_lt_u32 s{sN}, {P.start // EX}")
            e(f"  s_cselect_b32 s{sS}, {P.s0}, s{sS}")
            if P.sm > 1:
                e(f"  s_cselect_b32 s{sI}, 0, s{sI}")
            e(f"  s_add_u32 s{sN}, s{sN}, 1")

    def share(a, j):
        if P.ctl and P.wc and j == 2:
            e(f"  ds_read_b128 {vr(cm, 4)}, {vr(vZ)} offset:{FL + 32 + 16 * (a & 1)}")

    def throttle(a):
        if not P.ctl or P.lo <= -60 or (3 * a + TP + dist[0]) % len(P.bu) < len(P.bu) - 3:
            return
        lab[0] += 1
        e(f"  s_cmp_lt_i32 s{sS}, {P.lo}")
        e(f"  s_cbranch_scc0 L_t{lab[0]}")
        e(f"  s_waitcnt vmcnt({cnt(P.thr + 1, 3 * a + TP)})")
        if P.lo2 > -60:
            e(f"  s_cmp_lt_i32 s{sS}, {P.lo2}")
            e(f"  s_cbranch_scc0 L_t{lab[0]}")
            e(f"  s_waitcnt vmcnt({cnt(P.thr2 + 1, 3 * a + TP)})")
        e(f"L_t{lab[0]}:")

    def boost(hi):
        if P.ctl:
            assert hi >= P.lo
            e(f"  s_cmp_gt_i32 s{sS}, {hi}")

    def srd_head(rr, sp, sh_):
        e(f"  s_mul_i32 s{sT0}, s{sh_}, {HB}")
        e(f"  s_add_u32 s{rr}, s{sp}, s{sT0}")
        e(f"  s_addc_u32 s{rr + 1}, s{sp + 1}, 0")

    def vstep_k(dst, src):
        e(f"  s_lshl_b32 s{dst}, s{src}, 2")
        e(f"  s_lshr_b64 s[{sZ}:{sZ + 1}], s[{sVO}:{sVO + 1}], s{dst}")
        e(f"  s_and_b32 s{dst}, s{sZ}, 15")

    def head_of(dst, slot):
        e(f"  s_lshl_b32 s{sT0}, s{slot}, 2")
        e(f"  s_lshr_b64 s[{sZ}:{sZ + 1}], s[{sCN}:{sCN + 1}], s{sT0}")
        e(f"  s_and_b32 s{sZ}, s{sZ}, 15")
        e(f"  s_lshl4_add_u32 s{dst}, s{slot}, s{sZ}")

    def budget(ok):
        e(f"  s_cmp_eq_u32 s{sSP}, 0")
        e(f"  s_cbranch_scc1 {ok}")
        e(f"  s_sub_u32 s{sSP}, s{sSP}, 1")

    def flagwait(name, off):
        e(f"L_{name}:")
        e("  s_waitcnt lgkmcnt(0)")
        e(f"  v_readfirstlane_b32 s{sF}, {vr(vF)}")
        e(f"  s_cmp_ge_u32 s{sF}, s{sNEED}")
        e(f"  s_cbranch_scc1 L_{name}_ok")
        budget(f"L_{name}_ok")
        e(f"  ds_read_b32 {vr(vF)}, {vr(vZ)} offset:{off}")
        e(f"  s_branch L_{name}")
        e(f"L_{name}_ok:")

    def tr():
        if P.trace:
            e(f"  {'s_memtime' if 'm' in P.xp else 's_memrealtime'} s[88:89]")
            e("  s_waitcnt lgkmcnt(0)")
            e(f"  v_writelane_b32 {vr(vtr)}, s88, m0")
            e("  s_add_u32 m0, m0, 1")
            e("  s_min_u32 m0, m0, 63")

    def die_base(dst):
        e(f"  s_getreg_b32 s{sSE}, hwreg(HW_REG_HW_ID, 8, 7)")
        e(f"  s_getreg_b32 s{dst}, hwreg(HW_REG_XCC_ID, 0, 3)")
        e(f"  s_and_b32 s{sCU}, s{sSE}, 15")
        e(f"  s_lshr_b32 s{sSE}, s{sSE}, 5")
        e(f"  s_mul_i32 s{dst}, s{dst}, 4352")
        e(f"  s_add_u32 s{dst}, s{dst}, {W_PL}")

    ha = Alloc(16)
    l, u, h0, h1, h2, h3 = [ha.take(1) for _ in range(6)]
    qo, wa, wb, sgn, sgx, sg2 = [ha.take(1) for _ in range(6)]
    ro = ha.take(8)
    vL16, vCNT, vDB, vOne, vFA, vFI, vFR, vFX, vFB, vEL, vCL, vSa = [ha.take(1) for _ in range(12)]
    z4 = ha.take(4, 4)
    cs = ha.take(8, 4)
    sc = ha.take(4, 4)
    qn = ha.take(4, 4)
    x = ha.take(32, 4)
    pr = ha.take(4, 4)
    fo = ha.take(4, 4)
    rec = ha.take(32, 4)
    blk = ha.take(24, 4)
    st4 = ha.take(4, 4)
    ra = ha.take(16)
    assert ha.n <= NV and vZ < 16

    invX, invY, tK, tA, tN, tO = tmp, tmp + 4, tmp + 8, tab, tab + 4, tab + 8
    PC0 = 20 + 8 * P.stamp
    D_INV, D_QCS, D_END = 256, 768, 1152
    NF = P.nf
    assert RUN[0] == 1 and NF <= 8
    e(HEADER.rstrip("\n"))
    e(f"; @launch grid=(256,1,1) block=(320,1,1) lds={LDS}")
    for ln in ABOUT.strip("\n").split("\n"):
        e("; " + ln)
    e('.amdgcn_target "amdgcn-amd-amdhsa--gfx950"')
    e(".text")
    e(f".globl {NAME}_kernel")
    e(".p2align 8")
    e(f".type {NAME}_kernel,@function")
    e(f"{NAME}_kernel:")
    e("  s_cmpk_ge_u32 s2, 0x100")
    e("  s_cbranch_scc1 L_end")
    if P.stamp:
        e(f"  s_memrealtime s[{sST}:{sST + 1}]")
    e("  s_load_dwordx16 s[4:19], s[0:1], 0")
    e(f"  s_getpc_b64 s[{sZ}:{sZ + 1}]")
    e("L_pc:")
    e("  v_cmp_gt_u32 vcc, 64, v0")
    e(f"  v_lshlrev_b32 {vr(vT16)}, 4, v0")
    e(f"  s_lshr_b32 s{sC}, s2, 4")
    e(f"  s_and_b32 s{sH}, s2, 7")
    e(f"  s_lshl3_add_u32 s{sH}, s{sC}, s{sH}")
    e(f"  s_movk_i32 s{sNEED}, 768")
    e("  s_cbranch_vccz L_s0")
    if P.cpf:
        e(f"  v_lshl_add_u32 {vr(h0)}, s{sC}, 10, {vr(vT16)}")
    else:
        e(f"  v_lshl_add_u32 {vr(h0)}, s{sC}, 6, v0")
        e(f"  v_mul_u32_u24 {vr(h0)}, {P.tst}, {vr(h0)}")
    e(f"  global_load_dword {vr(h3)}, {vr(h0)}, s[{sZ}:{sZ + 1}] offset:{D_END - PC0} {P.cf}")
    e(f"  v_and_b32 {vr(vL16)}, 0x1f0, {vr(vT16)}")
    e(f"  global_load_dwordx4 {vr(pr, 4)}, {vr(vL16)}, s[{sZ}:{sZ + 1}] offset:{D_QCS - PC0}")
    e("  s_branch L_helper")
    e("L_s0:")
    e(f"  v_and_b32 {vr(vC16)}, 0xf0, {vr(vT16)}")
    e(f"  global_load_dwordx4 {vr(invX, 4)}, {vr(vC16)}, s[{sZ}:{sZ + 1}] offset:{D_INV - PC0}")
    e(f"  global_load_dwordx4 {vr(invY, 4)}, {vr(vC16)}, s[{sZ}:{sZ + 1}] offset:{D_INV + 256 - PC0}")
    e(f"  s_mul_i32 s{sT0}, s{sH}, 196608")
    e(f"  s_and_b32 s{sT1}, s2, 8")
    e(f"  s_lshl_b32 s{sT1}, s{sT1}, 12")
    e(f"  s_add_u32 s{sT0}, s{sT0}, s{sT1}")
    e(f"  s_add_u32 s{sT0}, s{sT0}, {65536 * RUN[0] - 1024 + 4096}")
    e(f"  v_add_u32 {vr(tA)}, s{sT0}, {vr(vT16)}")
    for k in range(1, (NF + 1) // 2):
        e(f"  v_add_u32 {vr(tA + k)}, {8192 * k}, {vr(tA)}")
    e("  s_waitcnt lgkmcnt(0)")
    for n in range(NF):
        e(f"  global_load_dwordx4 {vr(ring + 4 * n, 4)}, {vr(tA + n // 2)}, s[{sQK}:{sQK + 1}] offset:{4096 * (n % 2) - 4096} nt")
    e("  s_branch L_s1")
    e("L_b0:")
    e(f".if (L_b0 - {NAME}_kernel > {D_INV}) || (L_pc - {NAME}_kernel != {PC0})")
    e('.error "entry block layout"')
    e(".endif")
    e(".p2align 8")
    e(".type L_inv,@object")
    e("L_inv:")
    tb = inv[:64] + inv[64:] + inv[64:]
    for k in range(0, 128, 8):
        e("  .long " + ", ".join(f"{v:#x}" for v in tb[k:k + 8]))
    e(".type L_qcs,@object")
    e("L_qcs:")
    for k in range(0, 96, 8):
        e("  .long " + ", ".join(f"{v:#x}" for v in qcs[k:k + 8]))

    def common():
        e(f"  s_load_dwordx8 s[24:31], s[0:1], 80")
        e(f"  s_lshl_b32 s{sT0}, s2, 6")
        e(f"  s_add_u32 s{sT0}, s{sT0}, L_order-L_pc")
        e(f"  s_add_u32 s{sRT}, s{sZ}, s{sT0}")
        e(f"  s_addc_u32 s{sRT + 1}, s{sZ + 1}, 0")
        e(f"  s_load_dwordx2 s[{sVO}:{sVO + 1}], s[{sRT}:{sRT + 1}], 0")
        e(f"  s_load_dwordx2 s[{sCN}:{sCN + 1}], s[{sRT}:{sRT + 1}], 8")
        e(f"  v_mov_b32 {vr(vZ)}, 0")
        e(f"  s_mov_b32 s{sSP}, {P.bound}")
        e(f"  s_bfe_u32 s{sJ}, s2, 0x10003")

    PFR = [8, 10, 14, 16, 18, 20, 22, 72, 74, 76, 4, 86]
    pfn = [0]

    def pf():
        if P.tfine:
            e(f"  {'s_memtime' if 'm' in P.xp else 's_memrealtime'} s[{PFR[pfn[0]]}:{PFR[pfn[0]] + 1}]")
            pfn[0] += 1

    e("L_s1:")
    w_, s_, vAD, vC8, t0, t1 = wt, wt + 1, wt + 2, wt + 3, dacc, dacc + 1
    vRF, pos = vT16, tK + 3
    if P.trace:
        e(f"  v_mov_b32 {vr(vtr)}, 0")
        e("  s_mov_b32 m0, 0")
    pf()
    e("  v_subrev_u32 v0, 64, v0")
    e("  s_setprio 1")
    common()
    e(f"  v_lshrrev_b32 {vr(w_)}, 6, v0")
    e(f"  v_lshrrev_b32 {vr(s_)}, 4, v0")
    e(f"  v_and_b32 {vr(vC8)}, 0x70, {vr(vC16)}")
    e(f"  v_readfirstlane_b32 s{sW}, {vr(w_)}")
    e(f"  v_add_u32 {vr(vAD)}, {vr(vC8)}, {vr(s_)}")
    e(f"  s_mul_i32 s{sT0}, s{sJ}, 44")
    e(f"  s_sub_u32 s{sT0}, 86, s{sT0}")
    e(f"  v_cmp_eq_u32 vcc, s{sT0}, {vr(vAD)}")
    e(f"  v_mov_b32 {vr(t0)}, 0x80")
    e(f"  s_and_b32 s{sH}, s2, 7")
    e(f"  v_cndmask_b32 {vr(vAD)}, {vr(vAD)}, {vr(t0)}, vcc")
    e(f"  v_mul_u32_u24 {vr(t0)}, 381, {vr(vAD)}")
    e(f"  s_mul_i32 s{sT0}, s{sJ}, 43")
    e(f"  v_add_u32 {vr(t0)}, 2, {vr(t0)}")
    e(f"  s_lshl_b32 s{sT1}, s{sH}, 8")
    e(f"  v_lshrrev_b32 {vr(t0)}, 14, {vr(t0)}")
    assert all((381 * i + 2) >> 14 == (i >= 43) + (i >= 86) for i in range(129))
    e(f"  s_add_u32 s{sT0}, s{sT0}, s{sT1}")
    e(f"  v_mad_u32_u24 {vr(t0)}, {vr(t0)}, 42, {vr(vAD)}")
    e(f"  v_add_u32 {vr(t0)}, s{sT0}, {vr(t0)}")
    e(f"  v_cvt_f32_u32 {vr(vRF)}, {vr(t0)}")
    e(f"  v_mul_u32_u24 {vr(vAD)}, 384, {vr(vAD)}")
    e(f"  s_mov_b32 s{rA + 2}, {HB}")
    e(f"  s_mov_b32 s{rA + 3}, 0x20000")
    srd_head(rA, sQK, sC)
    e(f"  s_mul_i32 s{sT0}, s{sH}, 6")
    e(f"  s_add_u32 s{sT0}, s{sT0}, s{sJ}")
    e(f"  s_lshl_b32 s{sT0}, s{sT0}, 15")
    e(f"  v_lshl_add_u32 {vr(voff + RUN.index(0))}, v0, 4, s{sT0}")
    for k in (1, 2):
        e(f"  v_add_u32 {vr(voff + RUN.index(k))}, {65536 * k:#x}, {vr(voff + RUN.index(0))}")
    for i in range(1, 8):
        e(f"  s_movk_i32 s{sOF + i}, {4096 * i}")
    nk = [NF]
    assert PRE <= RING and (PRE - PD) % (3 * EX) == 0 and max(int(v) for v in P.kp_.split(",")[:P.su + 1]) <= min(SPECIAL)

    def k_loads(hi):
        while nk[0] < min(hi, PRE):
            ld(nk[0])
            nk[0] += 1

    def toff_(n):
        run = RUN[n >> 3]
        return 384 * (16 * (((n & 7) + run) // 3) + 38 * run)

    def setup():
        e("; per chunk class k: q operand, table and partial addresses")
        e(f"  s_lshl1_add_u32 s{sF}, s{sJ}, s{sW}")
        e(f"  s_lshl_b32 s{sF}, s{sF}, 1")
        e(f"  s_lshr_b32 s{sF}, 0x4924, s{sF}")
        e(f"  v_bfe_u32 {vr(t1)}, v0, 4, 2")
        e(f"  v_lshl_add_u32 {vr(t1)}, {vr(t1)}, 2, {vr(vC16)}")
        e(f"  v_mad_u32_u24 {vr(vF)}, {vr(w_)}, s{sNEED}, {vr(t1)}")
        e(f"  v_add_u32 {vr(vF)}, {PB}, {vr(vF)}")
        e(f"  s_mul_i32 s{sT1}, s{sJ}, {43 * 384}")
        e(f"  s_sub_u32 s{sT1}, {TB}, s{sT1}")
        e(f"  v_lshl_add_u32 {vr(vSum)}, s{sJ}, 7, {vr(s_)}")
        for k in range(3):
            e(f"  s_bfe_u32 s{sT0}, s{sF}, {(2 << 16) | 2 * k:#x}")
            e(f"  v_lshl_add_u32 {vr(vPA + k)}, s{sT0}, 8, {vr(vF)}")
            if k:
                e(f"  v_add_u32 {vr(vSum)}, 16, {vr(vSum)}")
            e(f"  v_mul_u32_u24 {vr(t0)}, 171, {vr(vSum)}")
            e(f"  v_lshrrev_b32 {vr(t0)}, 9, {vr(t0)}")
            e(f"  v_mad_i32_i24 {vr(t1)}, {vr(t0)}, -3, {vr(vSum)}")
            e(f"  v_lshl_add_u32 {vr(t1)}, {vr(t1)}, 8, {vr(vC16)}")
            e(f"  v_add_u32 {vr(vQA + k)}, {QB}, {vr(t1)}")
            e(f"  v_subrev_u32 {vr(vSu2)}, 384, {vr(t1)}")
            e(f"  v_min_u32 {vr(t1)}, {vr(t1)}, {vr(vSu2)}")
            e(f"  v_mul_u32_u24 {vr(t0)}, 384, {vr(t0)}")
            e(f"  v_add3_u32 {vr(vTA + k)}, {vr(t0)}, {vr(t1)}, s{sT1}")
        e(f"  v_lshl_add_u32 {vr(vSum)}, s{sJ}, 4, {vr(s_)}")
        for n, i in SPECIAL.items():
            run, sx = RUN[n >> 3], 15 * (n & 7 == 7)
            b = int(run == 0)
            g0, g1 = 256 * run + 128 * b + 16 * (n & 7) + sx, chunk_of(b, n, sx)
            dt = 384 * (tidx(b, g1 // 3) - (g0 // 3 - 43 * b - 42 * run))
            e(f"  v_cmp_eq_u32 vcc, {16 * b + sx}, {vr(vSum)}")
            e(f"  v_add_u32 {vr(t0)}, {256 * (g1 - g0) & 0xffffffff:#x}, {vr(voff + (n >> 3))}")
            e(f"  v_add_u32 {vr(t1)}, {toff_(n)}, {vr(vTA + TN[n])}")
            e(f"  v_add_u32 {vr(vSu2)}, {dt & 0xffffffff:#x}, {vr(t1)}")
            e(f"  v_cndmask_b32 {vr(voff + 3 + i)}, {vr(voff + (n >> 3))}, {vr(t0)}, vcc")
            e(f"  v_cndmask_b32 {vr(vTA + 3 + i)}, {vr(t1)}, {vr(vSu2)}, vcc")
        e(f"  v_lshlrev_b32 {vr(vLB)}, 2, v0")
        e(f"  v_add_u32 {vr(vLB)}, {LGB}, {vr(vLB)}")
        e(f"  v_lshrrev_b32 {vr(t1)}, 1, v0")
        e(f"  v_lshlrev_b32 {vr(t1)}, 2, {vr(t1)}")
        e(f"  v_add_u32 {vr(vLB + 1)}, {LGB + 1024}, {vr(t1)}")
        e(f"  v_mov_b32 {vr(vLG)}, {vr(vLB)}")
        e(f"  v_mov_b32 {vr(vLG + 1)}, {vr(vLB + 1)}")
        e(f"  v_lshlrev_b32 {vr(vPW)}, 2, {vr(w_)}")
        e(f"  s_mov_b32 s{sMSK}, 0xcccccccc")
        e(f"  s_mov_b32 s{sMSK + 1}, s{sMSK}")
        e(f"  s_mov_b32 s{sMSK + 2}, 0xaaaaaaaa")
        e(f"  s_mov_b32 s{sMSK + 3}, s{sMSK + 2}")
        e(f"  s_mov_b32 s{rB + 2}, {HB}")
        e(f"  s_mov_b32 s{rB + 3}, 0x20000")
        e(f"  s_mov_b32 s{sK}, 0")
        if P.ctl:
            e("; progress slots: this wave writes one byte of line (half, w) and samples the lines of the other half")
            die_base(sF)
            e(f"  s_add_u32 s{sT0}, s{sF}, 2048")
            e(f"  v_mov_b32 {vr(vBA)}, s{sT0}")
            e(f"  s_and_b32 s{sT1}, s{sSE}, 2")
            e(f"  s_lshl_b32 s{sT1}, s{sT1}, 9")
            e(f"  s_lshl_b32 s{sT0}, s{sW}, 8")
            e(f"  s_add_u32 s{sT0}, s{sT0}, s{sT1}")
            e(f"  s_add_u32 s{sT0}, s{sT0}, s{sF}")
            e(f"  s_add_u32 s{sT0}, s{sT0}, s{sCU}")
            e(f"  s_and_b32 s{sSE}, s{sSE}, 1")
            e(f"  s_lshl_b32 s{sSE}, s{sSE}, 4")
            e(f"  s_add_u32 s{sT0}, s{sT0}, s{sSE}")
            e(f"  v_mov_b32 {vr(vPS)}, s{sT0}")
            e(f"  s_xor_b32 s{sT1}, s{sT1}, 1024")
            e(f"  s_add_u32 s{sF}, s{sF}, s{sT1}")
            e(f"  v_and_b32 {vr(vN)}, 1, v0")
            e(f"  v_lshl_add_u32 {vr(vN)}, {vr(vN)}, 4, s{sF}")
            e(f"  v_bfe_u32 {vr(t1)}, v0, 1, 2")
            e(f"  v_mad_u32_u24 {vr(t1)}, {vr(t1)}, {4 // P.nl}, {vr(w_)}")
            for k in range(4):
                e(f"  v_add_u32 {vr(vSum)}, {k}, {vr(t1)}")
                e(f"  v_and_b32 {vr(vSum)}, 3, {vr(vSum)}")
                e(f"  v_lshl_add_u32 {vr(vPL + k)}, {vr(vSum)}, 8, {vr(vN)}")
            e(f"  s_mov_b32 s{sLO}, {(-(LAG + 2) * 0x01010101) & 0xffffffff:#x}")
            for k in range(4 * LAG):
                e(f"  v_mov_b32 {vr(smp + k)}, 0")
            for k in range(P.nr):
                e(f"  v_mov_b32 {vr(vBI + k)}, 0")
            e(f"  s_mov_b32 s{sN}, 0")
            e(f"  s_mov_b32 s{sB}, 0")
            if P.wo:
                e(f"  s_mov_b32 s{sCO}, 0")
            if P.pb:
                e("; the two halves of the clusters run half a group apart, so that their bursts interleave")
                e(f"  s_bitcmp1_b32 s2, {P.pbb}")
                e(f"  s_cselect_b32 s{sPB}, {P.pb}, {-P.pb}")
                if P.pc:
                    e(f"  s_bitcmp1_b32 s2, {P.pcb}")
                    e(f"  s_cselect_b32 s{sT0}, {P.pc}, {-P.pc}")
                    e(f"  s_add_u32 s{sPB}, s{sPB}, s{sT0}")
                if P.pw:
                    e(f"  s_mul_i32 s{sT0}, s{sW}, {2 * P.pw}")
                    e(f"  s_add_u32 s{sPB}, s{sPB}, s{sT0}")
                    e(f"  s_sub_u32 s{sPB}, s{sPB}, {3 * P.pw}")
            e(f"  s_mov_b32 s{sS}, {P.lo}")
            e(f"  s_mov_b32 s{sI}, 0")
        e(f"  s_add_u32 s{sF}, s{sC}, 16")
        srd_head(rB, sQK, sF)

    def sincos(dst, iv):
        for h in (0, 2):
            e(f"  v_pk_mul_f32 {vr(tA + h, 2)}, {vr(iv + h, 2)}, {vr(tK + 2, 2)} op_sel:[0,1] op_sel_hi:[1,1]")
        if iv == invY:
            for h in (0, 2):
                e(f"  v_pk_mul_f32 {vr(tN + h, 2)}, {vr(tA + h, 2)}, {vr(tK, 2)} op_sel_hi:[1,0]")
        else:
            for h in (0, 2):
                e(f"  v_pk_fma_f32 {vr(tN + h, 2)}, {vr(tA + h, 2)}, {vr(tK, 2)}, {vr(tK, 2)} op_sel:[0,0,1] op_sel_hi:[1,0,1]")
            for h in (0, 2):
                e(f"  v_pk_add_f32 {vr(tN + h, 2)}, {vr(tN + h, 2)}, {vr(tK, 2)} op_sel:[0,1] op_sel_hi:[1,1] neg_lo:[0,1] neg_hi:[0,1]")
            for h in (0, 2):
                e(f"  v_pk_fma_f32 {vr(tN + h, 2)}, {vr(tA + h, 2)}, {vr(tK, 2)}, {vr(tN + h, 2)} op_sel_hi:[1,0,1] neg_lo:[0,0,1] neg_hi:[0,0,1]")
            for h in (0, 2):
                e(f"  v_pk_fma_f32 {vr(tN + h, 2)}, {vr(tA + h, 2)}, {vr(tK + 2, 2)}, {vr(tN + h, 2)} op_sel_hi:[1,0,1]")
        for i in range(4):
            e(f"  v_cos_f32 {vr(tA + i)}, {vr(tN + i)}")
        for i in range(4):
            e(f"  v_sin_f32 {vr(tN + i)}, {vr(tN + i)}")
        for i in range(4):
            e(f"  v_cvt_pk_bf16_f32 {vr(dst + i)}, {vr(tA + i)}, {vr(tN + i)}")

    kp = [int(v) for v in P.kp_.split(",")]

    def chunk(i):
        a = 2 * (i // 3)
        d = tO + 4 * (i & 1)
        bc_ = lambda x, m: f"row_newbcast:{x} row_mask:0xf bank_mask:{m:#x}"
        if i % 3 == 1:
            e(f"  v_mov_b32_dpp {vr(pos)}, {vr(vRF)} {bc_(a + 1, 12)}")
            e(f"  v_add_u32_dpp {vr(vF)}, {vr(vAD)}, {vr(vC8)} {bc_(a, 3)}")
            e(f"  v_add_u32_dpp {vr(vF)}, {vr(vAD)}, {vr(vC8)} {bc_(a + 1, 12)}")
            sincos(d, invY)
            e(f"  ds_write_b128 {vr(vF)}, {vr(d, 4)} offset:{TB + 256}")
        else:
            a += i % 3 // 2
            e(f"  v_mov_b32_dpp {vr(pos)}, {vr(vRF)} {bc_(a, 15)}")
            e(f"  v_add_u32_dpp {vr(vF)}, {vr(vAD)}, {vr(vC16)} {bc_(a, 15)}")
            sincos(d, invX)
            e(f"  ds_write_b128 {vr(vF)}, {vr(d, 4)} offset:{TB}")

    def tab_read(a):
        for n in range(3 * a, 3 * a + 3):
            d = tab + 12 * (a & 1) + 4 * (n % 3)
            if n in SPECIAL:
                e(f"  ds_read_b128 {vr(d, 4)}, {vr(vTA + 3 + SPECIAL[n])}")
            else:
                e(f"  ds_read_b128 {vr(d, 4)}, {vr(vTA + TN[n])} offset:{toff_(n)}")

    c_hi = f32bits(1 / (2 * math.pi))
    c_lo = f32bits(1 / (2 * math.pi) - struct.unpack("<f", struct.pack("<I", c_hi))[0])
    e(f"  v_mov_b32 {vr(tK)}, {c_hi:#x}")
    e(f"  v_mov_b32 {vr(tK + 1)}, {f32bits(1.5 * 2 ** 23):#x}")
    e(f"  v_mov_b32 {vr(tK + 2)}, {c_lo:#x}")
    k_loads(kp[0])
    pf()
    e(f"  s_waitcnt vmcnt({nk[0]})")
    pf()
    for i in range(12):
        if i == P.su:
            setup()
            pf()
        chunk(i)
        k_loads(kp[i + 1])
        if i % 3 == 2:
            pf()
    k_loads(PRE)
    e(f"  v_mov_b32 {vr(bc)}, {f32bits(-7.5):#x}")
    e("  s_waitcnt lgkmcnt(0)")
    e("  s_barrier")
    pf()
    e("  s_mov_b64 vcc, 0")
    for k in range(3):
        e(f"  ds_read_b128 {vr(qa + 4 * k, 4)}, {vr(vQA + k)}")
    tab_read(0)
    e(f"  s_waitcnt vmcnt({PRE - 1})")
    pf()
    if P.tfine:
        e("  s_waitcnt lgkmcnt(0)")
        for k in range(pfn[0]):
            e(f"  v_writelane_b32 {vr(vtr)}, s{PFR[k]}, {k}")
        e(f"  s_mov_b32 m0, {pfn[0]}")

    def vfirst():
        e(f"  s_and_b32 s{sH}, s{sVO}, 15")
        e(f"  s_add_u32 s{sNEED}, s{sH}, 1")
        e(f"  ds_read_b32 {vr(vF)}, {vr(vZ)} offset:{FL + 20}")
        flagwait("a0", FL + 20)
        e(f"  s_mulk_i32 s{sH}, 1536")
        for k in range(2):
            e(f"  v_add_u32 {vr(vLV + k)}, s{sH}, {vr(vLB + k)}")
        e(f"  ds_read_b32 {vr(A)}, {vr(vLV)}")

    assert all(x[3] < 14 for x in sch)

    def kred(n):
        dpp = lambda d, x, how, m: e(f"  v_add_f32_dpp {vr(d)}, {vr(x)}, {vr(x)} {how} row_mask:0xf bank_mask:{m:#x}")
        dpp(M1, dacc, "row_ror:8", 12 if n & 1 else 3)
        if n % 2 == 1:
            e("  s_nop 1")
            dpp(M2, M1, "row_half_mirror", 10 if n & 2 else 5)
        if n % 4 == 3:
            e("  s_nop 1")
            dpp(M2 if n & 4 else M3, M2, "quad_perm:[2,3,0,1]", 15)
        if n % 8 == 7:
            e(f"  v_cndmask_b32_e64 {vr(M3)}, {vr(M3)}, {vr(M2)}, s[{sMSK}:{sMSK + 1}]")
            e("  s_nop 1")
            dpp((LG, M3, LG + 1)[n >> 3], M3, "quad_perm:[1,0,3,2]", 15)
        if n == 15:
            e(f"  v_cndmask_b32_e64 {vr(LG)}, {vr(LG)}, {vr(M3)}, s[{sMSK + 2}:{sMSK + 3}]")

    e(".p2align 6")
    e("L_k:")
    e(f"  s_add_u32 s{sT0}, s{sK}, 2")
    e(f"  s_min_u32 s{sNEED}, s{sT0}, 16")
    for k in range(3):
        e(f"  v_add_u32 {vr(vQA + k)}, 768, {vr(vQA + k)}")
    for a in range(8):
        if a == 7:
            flagwait("qn", FL + 16)
        else:
            e("  s_waitcnt lgkmcnt(0)")
        if "t" not in P.xp:
            tab_read((a + 1) % 8)
        if a == 6:
            e(f"  ds_read_b32 {vr(vF)}, {vr(vZ)} offset:{FL + 16}")
        if a == P.ev and P.ev:
            e(f"  s_cmp_eq_u32 s{sK}, 15")
            e("  s_cbranch_scc0 L_kv")
            vfirst()
            e("L_kv:")
        for j in range(3):
            if j == CP:
                control(a)
            if j == DP:
                decide(a)
            n = 3 * a + j
            k_ = ring + 4 * n
            q_ = qa + 4 * TN[n]
            for i in range(4):
                e(f"  v_dot2_f32_bf16 {vr(wt + i)}, {vr(tab + 12 * (a & 1) + 4 * j + i)}, {vr(q_ + i)}, 0")
            for i in range(4):
                e(f"  v_cvt_f32_i32 {vr(k_ + i)}, {vr(k_ + i)}")
            if a == 7:
                e(f"  ds_read_b128 {vr(q_, 4)}, {vr(vQA + TN[n])}")
            for h in range(2):
                e(f"  v_pk_add_f32 {vr(k_ + 2 * h, 2)}, {vr(k_ + 2 * h, 2)}, {vr(bc, 2)} op_sel_hi:[1,0]")
            e(f"  v_pk_mul_f32 {vr(dacc, 2)}, {vr(k_, 2)}, {vr(wt, 2)}")
            e(f"  v_pk_fma_f32 {vr(dacc, 2)}, {vr(k_ + 2, 2)}, {vr(wt + 2, 2)}, {vr(dacc, 2)}")
            e(f"  v_add_f32 {vr(dacc)}, {vr(dacc)}, {vr(dacc + 1)}")
            if j == TP:
                throttle(a)
            pace(n, P.hi)
            if str(j) in P.bar:
                e("  s_barrier")
            ld(n + PRE)
            share(a, j)
            if "k" not in P.xp:
                kred(n)
        if a in (3, 7) or P.tfine:
            tr()
    assert sorted(TN[21:]) == [0, 1, 2] and sorted(TN[:3]) == [0, 1, 2]
    e(f"  s_add_u32 s{sK}, s{sK}, 1")
    e(f"  v_mov_b32 {vr(vF)}, s{sK}")
    for k in range(2):
        e(f"  ds_write_b32 {vr(vLG + k)}, {vr(LG + k)}")
    e(f"  ds_write_b32 {vr(vPW)}, {vr(vF)} offset:{FL}")
    for k in range(2):
        e(f"  v_add_u32 {vr(vLG + k)}, 1536, {vr(vLG + k)}")
    e(f"  s_mov_b64 s[{rA}:{rA + 1}], s[{rB}:{rB + 1}]")
    e(f"  s_add_u32 s{sH}, s{sK}, 1")
    e(f"  s_sub_u32 s{sT1}, s{sH}, 16")
    vstep_k(sF, sT1)
    e(f"  s_cmp_lt_u32 s{sH}, 16")
    e(f"  s_cselect_b32 s{sH}, s{sH}, s{sF}")
    e(f"  s_cselect_b32 s{sX}, s{sQK}, s{sQV}")
    e(f"  s_cselect_b32 s{sX + 1}, s{sQK + 1}, s{sQV + 1}")
    head_of(sH, sH)
    srd_head(rB, sX, sH)
    e(f"  s_cmp_lt_u32 s{sK}, 16")
    e("  s_cbranch_scc1 L_k")

    e("L_vpre:")
    dist[0] = PD
    e(f"  s_mov_b32 s{sK}, 0")
    if not P.ev:
        vfirst()
    e(".p2align 6")
    e("L_v:")
    e(f"  s_add_u32 s{sT1}, s{sK}, 1")
    e(f"  s_min_u32 s{sT1}, s{sT1}, 15")
    vstep_k(sH, sT1)
    e(f"  s_add_u32 s{sNEED}, s{sH}, 1")
    e(f"  s_mulk_i32 s{sH}, 1536")
    e("  s_waitcnt lgkmcnt(0)")
    e(f"  ds_read_b32 {vr(A + 1)}, {vr(vLV + 1)}")
    for k in range(2):
        e(f"  v_add_u32 {vr(vLV + k)}, s{sH}, {vr(vLB + k)}")
    for a in range(8):
        if a == 5 or (P.wc and a not in (0, 6)):
            e("  s_waitcnt lgkmcnt(0)")
        if a == 5:
            e(f"  ds_read_b32 {vr(vF)}, {vr(vZ)} offset:{FL + 20}")
        if a == 6:
            flagwait("an", FL + 20)
            e(f"  ds_read_b32 {vr(A)}, {vr(vLV)}")
        for j in range(3):
            n = 3 * a + j
            if n + PD == 24:
                e("  s_cbranch_vccz L_in")
                e(f"  s_waitcnt vmcnt({drain['in']})")
                e("L_in:")
            if j in (CP, DP):
                if n + PD >= 24:
                    e(f"  s_cbranch_vccnz L_c{n}")
                if n < PRE - PD:
                    e(f"  s_cmp_eq_u32 s{sK}, 0")
                    e(f"  s_cbranch_scc1 L_c{n}")
                if j == CP:
                    control(a)
                if j == DP:
                    decide(a)
                if n + PD >= 24 or n < PRE - PD:
                    e(f"L_c{n}:")
            v_ = ring + 4 * n
            e(f"  v_mov_b32_dpp {vr(bc)}, {vr(A + n // 16)} row_newbcast:{rev(n % 16, 4)} row_mask:0xf bank_mask:0xf")
            for i in range(4):
                e(f"  v_cvt_f32_i32 {vr(v_ + i)}, {vr(v_ + i)}")
            for h in range(2):
                d = acc + 4 * TN[n] + 2 * h
                if a == 0:
                    e(f"  v_pk_mul_f32 {vr(d, 2)}, {vr(v_ + 2 * h, 2)}, {vr(bc, 2)} op_sel_hi:[1,0]")
                else:
                    e(f"  v_pk_fma_f32 {vr(d, 2)}, {vr(v_ + 2 * h, 2)}, {vr(bc, 2)}, {vr(d, 2)} op_sel_hi:[1,0,1]")
            if n + PD >= 24:
                e(f"  s_cbranch_vccz L_f{n}")
                if n < 23:
                    e(f"  s_waitcnt vmcnt({drain[n]})")
                e(f"  s_branch L_g{n}")
                e(f"L_f{n}:")
            if n < PRE - PD:
                e(f"  s_cmp_eq_u32 s{sK}, 0")
                e(f"  s_cbranch_scc0 L_f{n}")
                e(f"  s_waitcnt vmcnt({first[n]})")
                e(f"  s_branch L_g{n}")
                e(f"L_f{n}:")
            if j == TP:
                throttle(a)
            pace(n, P.hiv)
            if str(j) in P.bar:
                e("  s_barrier")
            ld(n + PD)
            share(a, j)
            if n + PD >= 24 or n < PRE - PD:
                e(f"L_g{n}:")
        if a in (3, 7):
            tr()
    e(f"  s_add_u32 s{sK}, s{sK}, 1")
    for j in range(3):
        e(f"  v_permlane32_swap_b32 {vr(acc + 4 * j)}, {vr(acc + 4 * j + 2)}")
        e(f"  v_permlane32_swap_b32 {vr(acc + 4 * j + 1)}, {vr(acc + 4 * j + 3)}")
    for j in range(3):
        e(f"  v_add_f32 {vr(acc + 4 * j)}, {vr(acc + 4 * j)}, {vr(acc + 4 * ((j + 1) % 3) + 2)}")
        e(f"  v_add_f32 {vr(acc + 4 * j + 1)}, {vr(acc + 4 * j + 1)}, {vr(acc + 4 * ((j + 1) % 3) + 3)}")
    e(f"  s_add_u32 s{sT0}, s{sK}, 16")
    e(f"  s_cmp_eq_u32 s{sK}, 15")
    e("  s_cselect_b64 vcc, -1, 0")
    if P.lb:
        e(f"  s_cselect_b32 s{sT1}, {P.lb}, 0")
        e(f"  s_add_u32 s{sB}, s{sB}, s{sT1}")
    e(f"  v_mov_b32 {vr(vF)}, s{sT0}")
    for j in range(3):
        e(f"  v_permlane16_swap_b32 {vr(acc + 4 * j)}, {vr(acc + 4 * j + 1)}")
    for j in range(3):
        e(f"  v_add_f32 {vr(acc + 4 * j)}, {vr(acc + 4 * j)}, {vr(acc + 4 * ((j + 2) % 3) + 1)}")
    for j in range(3):
        e(f"  ds_write_b32 {vr(vPA + j)}, {vr(acc + 4 * j)}")
    e(f"  ds_write_b32 {vr(vPW)}, {vr(vF)} offset:{FL}")
    for j in range(3):
        e(f"  v_add_u32 {vr(vPA + j)}, 3072, {vr(vPA + j)}")
    e(f"  s_mov_b64 s[{rA}:{rA + 1}], s[{rB}:{rB + 1}]")
    e(f"  s_add_u32 s{sT1}, s{sK}, 1")
    e(f"  s_min_u32 s{sT1}, s{sT1}, 15")
    vstep_k(sH, sT1)
    head_of(sH, sH)
    srd_head(rB, sQV, sH)
    e(f"  s_cmp_lt_u32 s{sK}, 16")
    e("  s_cbranch_scc1 L_v")
    if P.fb:
        e("  s_waitcnt lgkmcnt(0)")
        e("  s_barrier")
    if P.trace:
        e(f"  s_mul_i32 s8, s2, {5 * 256}")
        e("  s_add_u32 s8, s8, 0x100000")
        e(f"  v_lshl_add_u32 {vr(t0)}, v0, 2, s8")
        e(f"  global_store_dword {vr(t0)}, {vr(vtr)}, s[{sWS}:{sWS + 1}]")
    e("  s_endpgm")

    HP = [20, 22, 24, 8, 34, 36, 38, 72]
    NL = P.nr
    ms = [m for m in range(P.r0, P.r1 + 1) if m < P.rf or m > P.rt or (m - P.r0) % P.rp == 0]
    msk = sum(1 << m for m in ms)

    def hp(k):
        if P.hprof:
            e(f"  s_memrealtime s[{HP[k]}:{HP[k] + 1}]")

    def progwait(name, slp):
        e(f"L_{name}:")
        e(f"  ds_read_b128 {vr(pr, 4)}, {vr(vZ)} offset:{FL}")
        e("  s_waitcnt lgkmcnt(0)")
        e(f"  v_min_u32 {vr(pr)}, {vr(pr)}, {vr(pr + 1)}")
        e(f"  v_min3_u32 {vr(pr)}, {vr(pr)}, {vr(pr + 2)}, {vr(pr + 3)}")
        e("  s_nop 0")
        e(f"  v_readfirstlane_b32 s{sF}, {vr(pr)}")
        e(f"  s_cmp_ge_u32 s{sF}, s{sNEED}")
        e(f"  s_cbranch_scc1 L_{name}_ok")
        budget(f"L_{name}_ok")
        if slp:
            e(f"  s_sleep {slp}")
        e(f"  s_branch L_{name}")
        e(f"L_{name}_ok:")

    def rowred(op, v):
        for n in (8, 4, 2, 1):
            e("  s_nop 1")
            e(f"  {op}_dpp {vr(v)}, {vr(v)}, {vr(v)} row_ror:{n} row_mask:0xf bank_mask:0xf")

    def allred(op, v, t):
        rowred(op, v)
        for sw in ("v_permlane16_swap_b32", "v_permlane32_swap_b32"):
            e(f"  v_mov_b32 {vr(t)}, {vr(v)}")
            e("  s_nop 1")
            e(f"  {sw} {vr(v)}, {vr(t)}")
            e(f"  {op} {vr(v)}, {vr(v)}, {vr(t)}")

    def sum_partials(nq):
        w = 4 * nq
        for k in range(4):
            for q in range(nq):
                e(f"  ds_read_b128 {vr(x + w * k + 4 * q, 4)}, {vr(h0)} offset:{768 * k + 16 * q}")
        e(f"  ds_read_b128 {vr(z4, 4)}, {vr(h1)} offset:{ST}")
        e("  s_waitcnt lgkmcnt(0)")
        for h in range(0, w, 2):
            e(f"  v_pk_add_f32 {vr(x + h, 2)}, {vr(x + h, 2)}, {vr(x + w + h, 2)}")
            e(f"  v_pk_add_f32 {vr(x + 2 * w + h, 2)}, {vr(x + 2 * w + h, 2)}, {vr(x + 3 * w + h, 2)}")
        for h in range(0, w, 2):
            e(f"  v_pk_add_f32 {vr(x + h, 2)}, {vr(x + h, 2)}, {vr(x + 2 * w + h, 2)}")
        for h in range(0, w, 2):
            e(f"  v_pk_add_f32 {vr(x + h, 2)}, {vr(x + h, 2)}, {vr(z4 + 2, 2)} op_sel_hi:[1,0] neg_lo:[0,1] neg_hi:[0,1]")

    def warm(tag):
        if not P.tw:
            return
        e(f"  s_add_u32 s{sX}, s{sNEED}, {P.tw}")
        if P.tl:
            e(f"  s_cmp_eq_u32 s{sX}, 31")
        else:
            e(f"  s_cmp_lt_u32 s{sX}, 32")
        e(f"  s_cbranch_scc0 L_tw{tag}")
        e(f"  s_sub_u32 s{sT1}, s{sX}, 16")
        vstep_k(sF, sT1)
        e(f"  s_cmp_lt_u32 s{sX}, 16")
        e(f"  s_cselect_b32 s{sF}, s{sX}, s{sF}")
        e(f"  s_cselect_b32 s{rB}, s{sQK}, s{sQV}")
        e(f"  s_cselect_b32 s{rB + 1}, s{sQK + 1}, s{sQV + 1}")
        head_of(sF, sF)
        e(f"  s_and_b32 s{sT1}, s2, 7")
        e(f"  s_lshl3_add_u32 s{sF}, s{sF}, s{sT1}")
        e(f"  s_mul_i32 s{sF}, s{sF}, 6")
        e(f"  s_add_u32 s{sF}, s{sF}, s{sJ}")
        e(f"  s_add_u32 s{sF}, s{sF}, 2")
        e(f"  s_lshl_b32 s{sF}, s{sF}, 15")
        if P.tv:
            e(f"  v_mov_b32 {vr(vFR)}, s{sF}")
            e("  s_mov_b64 exec, 1")
            e(f"  global_load_dword {vr(vFI)}, {vr(vFR)}, s[{rB}:{rB + 1}]")
            e("  s_mov_b64 exec, -1")
        else:
            e(f"  s_load_dword s{sF}, s[{rB}:{rB + 1}], s{sF}")
            e("  s_waitcnt lgkmcnt(0)")
        e(f"L_tw{tag}:")

    def mark(tag):
        if not P.enc:
            return
        for k, m in enumerate(P.enc.split(",")[:2]):
            e(f"  s_cmp_eq_u32 s{sNEED}, {m}")
            e(f"  s_cbranch_scc0 L_mk{tag}{k}")
            e(f"  s_memrealtime s[{16 + 2 * k}:{17 + 2 * k}]")
            e(f"L_mk{tag}{k}:")

    def rank_post(tag):
        if not (P.ctl and NL):
            return
        e(f"  s_bitcmp1_b32 s{sRF}, s{sNEED}")
        e(f"  s_cbranch_scc0 L_fa{tag}")
        if P.sa:
            e(f"  s_mul_i32 s{sT0}, s{sNEED}, 384")
            e(f"  s_add_u32 s{sT0}, s{sT0}, {W_RK}")
            e(f"  s_mov_b32 s{sB}, 1")
            e(f"  s_atomic_add s{sB}, s[{sWS}:{sWS + 1}], s{sT0} glc")
        e(f"  s_lshl_b64 exec, 1, s{sNEED}")
        if not P.sa:
            e(f"  global_atomic_add {vr(vFR)}, {vr(vFA)}, {vr(vOne)}, s[{sWS}:{sWS + 1}] sc0 sc1")
        if P.ki:
            e(f"  global_load_dword {vr(vEL)}, {vr(vFB)}, s[{sWS}:{sWS + 1}] offset:8 sc1")
        e("  s_mov_b64 exec, -1")
        e(f"L_fa{tag}:")

    def rank_take(tag):
        if not (P.ctl and NL):
            return
        e(f"  s_bitcmp1_b32 s{sRF}, s{sNEED}")
        e(f"  s_cbranch_scc0 L_fb{tag}")
        e("  s_waitcnt vmcnt(0) lgkmcnt(0)")
        if P.sa:
            e(f"  s_min_u32 s{sF}, s{sB}, {8 * NL - 1}")
        else:
            e(f"  v_sub_u32 {vr(vFX)}, {vr(vFR)}, {vr(vFI)}")
            e("  s_nop 0")
            e(f"  v_readlane_b32 s{sF}, {vr(vFX)}, s{sNEED}")
            e(f"  s_min_u32 s{sF}, s{sF}, {8 * NL - 1}")
        e(f"  s_lshl_b32 s{sF}, s{sF}, 1")
        e(f"  s_sub_u32 s{sF}, s{sF}, {8 * NL - 1}")
        if P.ki:
            e(f"  v_readlane_b32 s{sI}, {vr(vEL)}, s{sNEED}")
            e(f"  s_mul_i32 s{sT1}, s{sF}, {P.ki}")
            e(f"  s_ashr_i32 s{sT0}, s{sI}, {P.leak}")
            e(f"  s_sub_u32 s{sI}, s{sI}, s{sT0}")
            if P.streak:
                e(f"  s_mul_i32 s{sT0}, s{sI}, s{sF}")
                e(f"  s_cmp_lt_i32 s{sT0}, 0")
                e(f"  s_cselect_b32 s{sI}, 0, s{sI}")
            e(f"  s_add_u32 s{sT1}, s{sT1}, s{sI}")
            e(f"  v_mov_b32 {vr(vEL)}, s{sT1}")
        e(f"  s_cmp_le_u32 s{sNEED}, {P.kn}")
        e(f"  s_cselect_b32 s{sT0}, {P.kp0}, {P.kp}")
        e(f"  s_mul_i32 s{sF}, s{sF}, s{sT0}")
        e(f"  s_add_u32 s{sF}, s{sF}, s{sI}")
        e(f"  s_add_u32 s{sF}, s{sF}, 8")
        e(f"  s_ashr_i32 s{sF}, s{sF}, 4")
        e(f"  v_mov_b32 {vr(vFX)}, s{sF}")
        e("  s_mov_b64 exec, 1")
        e(f"  global_store_dword {vr(vFB)}, {vr(vFX)}, s[{sWS}:{sWS + 1}]")
        if P.ki:
            e(f"  global_store_dword {vr(vFB)}, {vr(vEL)}, s[{sWS}:{sWS + 1}] offset:8")
        e("  s_mov_b64 exec, -1")
        e(f"L_fb{tag}:")

    HPF = [10, 16, 18, 20, 22, 72, 74, 76, 60, 62]
    hpn = [0]

    def hpf():
        if P.tfine:
            e(f"  s_memrealtime s[{HPF[hpn[0]]}:{HPF[hpn[0]] + 1}]")
            hpn[0] += 1

    e("L_helper:")
    e(f"  s_setprio {P.hp0}")
    e(f"  v_and_b32 {vr(h1)}, 32, v0")
    e(f"  v_lshrrev_b32 {vr(h1)}, 1, {vr(h1)}")
    e(f"  v_add_u32 {vr(sg2)}, s{sC}, {vr(h1)}")
    e(f"  v_mad_u32_u24 {vr(ra)}, {vr(sg2)}, s{sNEED}, {vr(vL16)}")
    e(f"  v_lshrrev_b32 {vr(ra)}, 1, {vr(ra)}")
    hv = []

    def half(p, full):
        if p in (2, 3):
            e(f"  s_mov_b32 exec_hi, {0 if p == 2 else full}")
        if p in (5, 6):
            e(f"  s_mov_b32 exec_lo, {0 if p == 5 else full}")

    def sc_early():
        e(f"  s_and_b32 s{sT1}, s2, 7")
        e(f"  v_lshl_add_u32 {vr(wb)}, s{sT1}, 9, {vr(vL16)}")
        e(f"  v_lshl_add_u32 {vr(ra)}, {vr(sg2)}, 12, {vr(wb)}")
        for p in range(1, 8):
            e(f"  v_add_u32 {vr(ra + p)}, {0x20000 * p:#x}, {vr(ra)}")
        for p in range(8):
            half(p, -1)
            for i, sp in enumerate((sKS, sVS)):
                e(f"  s_mov_b32 m0, {SCB + SA * i + 1024 * p}")
                e("  s_nop 0")
                if "s" not in P.xp:
                    e(f"  global_load_lds_dwordx4 {vr(ra + p)}, s[{sp}:{sp + 1}] {P.sf}")
                    hv.append(("s", p))

    for p in range(1, 8):
        e(f"  v_add_u32 {vr(ra + p)}, {12288 * p}, {vr(ra)}")
    e("  s_mov_b32 exec_lo, 0xffffff")
    e("  s_mov_b32 exec_hi, 0xffffff")
    e("  s_waitcnt lgkmcnt(0)")
    hpf()
    for p in range(8):
        half(p, "0xffffff")
        e(f"  global_load_dwordx2 {vr(rec + 4 * p, 2)}, {vr(ra + (0 if 'q' in P.xp else p))}, s[{sQ}:{sQ + 1}] {P.qf}")
        e(f"  global_load_dwordx2 {vr(rec + 4 * p + 2, 2)}, {vr(ra + (0 if 'q' in P.xp else p))}, s[{sQ}:{sQ + 1}] offset:192 {P.qf}")
        hv.extend([("q", p)] * 2)
    e("  s_mov_b64 exec, -1")
    hpf()
    if P.ss == 0:
        sc_early()
    common()
    e(f"  s_load_dword s{sO}, s[{sRT}:{sRT + 1}], 24")
    e(f"  s_load_dwordx2 s[{sOH}:{sOH + 1}], s[{sRT}:{sRT + 1}], 16")
    e(f"  v_mov_b32 {vr(l)}, v0")
    for i in range(4):
        e(f"  v_mov_b32 {vr(z4 + i)}, 0")
    e(f"  ds_write_b128 {vr(vZ)}, {vr(z4, 4)} offset:{FL}")
    e(f"  ds_write_b128 {vr(vZ)}, {vr(z4, 4)} offset:{FL + 16}")
    e(f"  s_mov_b32 s{sMASK}, 0xffff0000")
    e(f"  s_mov_b32 s{sSCALE}, {f32bits(math.log2(math.e) / math.sqrt(192.0)):#x}")
    e(f"  v_mad_u32_u24 {vr(wa)}, {vr(h1)}, 48, {vr(vL16)}")
    e(f"  v_mov_b32 {vr(vOne)}, 1")
    e(f"  s_waitcnt vmcnt({len(hv)})")
    for k in range(4):
        e(f"  v_lshlrev_b32 {vr(cs + k)}, 16, {vr(pr + k)}")
        e(f"  v_and_b32 {vr(cs + 4 + k)}, s{sMASK}, {vr(pr + k)}")
    e("  s_waitcnt lgkmcnt(0)")
    hpf()
    e(f"  v_min_u32 {vr(h0)}, 2, {vr(l)}")
    e(f"  v_lshlrev_b32 {vr(h1)}, 3, {vr(h0)}")
    e(f"  v_bfe_u32 {vr(h1)}, s{sCT}, {vr(h1)}, 8")
    e(f"  v_mul_u32_u24 {vr(vCNT)}, 4352, {vr(h1)}")
    e(f"  v_add_u32 {vr(vCNT)}, {W_CNT}, {vr(vCNT)}")
    if P.cl:
        e(f"  v_mov_b32 {vr(vDB)}, 0")
    else:
        e(f"  v_and_b32 {vr(h1)}, 15, {vr(h1)}")
        e(f"  v_lshlrev_b32 {vr(vDB)}, 4, {vr(h1)}")
        e(f"  v_lshl_add_u32 {vr(h0)}, {vr(h0)}, 4, s{sC}")
        e(f"  v_mul_u32_u24 {vr(vCL)}, 4352, {vr(h0)}")
        e(f"  v_add_u32 {vr(vCL)}, {W_CNT}, {vr(vCL)}")
    if P.ctl:
        die_base(sF)
        e(f"  v_lshrrev_b32 {vr(h0)}, 1, {vr(l)}")
        e(f"  v_lshl_add_u32 {vr(vFX)}, {vr(h0)}, 8, s{sF}")
        e(f"  v_and_b32 {vr(h0)}, 1, {vr(l)}")
        e(f"  v_lshl_add_u32 {vr(vFX)}, {vr(h0)}, 4, {vr(vFX)}")
        e(f"  s_and_b32 s{sT1}, s{sSE}, 2")
        e(f"  s_lshl_b32 s{sT0}, s{sT1}, 9")
        e(f"  s_add_u32 s{sT0}, s{sT0}, s{sF}")
        if NL == 4:
            e(f"  s_and_b32 s{sT1}, s{sSE}, 1")
            e(f"  s_lshl4_add_u32 s{sT0}, s{sT1}, s{sT0}")
            e(f"  s_lshl_b32 s{sT1}, s{sSE}, 1")
        e(f"  v_add_u32 {vr(vEL)}, s{sT0}, {vr(l)}")
        e(f"  s_lshl_b32 s{sT1}, s{sT1}, 1")
        e(f"  s_add_u32 s{sF}, s{sF}, s{sT1}")
        e(f"  s_add_u32 s{sF}, s{sF}, 2048")
        e(f"  v_mov_b32 {vr(vFB)}, s{sF}")
        e(f"  v_mul_u32_u24 {vr(vFA)}, 384, {vr(l)}")
        e(f"  v_add_u32 {vr(vFA)}, {W_RK}, {vr(vFA)}")
        e(f"  v_mov_b32 {vr(vFI)}, 0")
        e(f"  v_mov_b32 {vr(vFR)}, 0")
        e(f"  s_mov_b32 s{sI}, 0")
        e(f"  s_mov_b32 s{sN}, 0")
        e(f"  s_mov_b32 s{sRF}, 0")

    def ctl_init():
        if not P.ctl:
            return
        e("  s_mov_b64 exec, 0x3ffff")
        e(f"  global_store_dwordx4 {vr(vFX)}, {vr(z4, 4)}, s[{sWS}:{sWS + 1}]")
        e("  s_mov_b64 exec, -1")

    def elect():
        if not P.ctl:
            return
        e(f"  s_cmp_eq_u32 s{sNEED}, {P.r0 - 1}")
        e("  s_cbranch_scc0 L_el")
        if NL == 2:
            e(f"  s_bitcmp0_b32 s{sSE}, 0")
            e("  s_cbranch_scc0 L_el")
        e("  s_mov_b64 exec, 0xffff")
        e(f"  global_load_ubyte {vr(vFX)}, {vr(vEL)}, s[{sWS}:{sWS + 1}] sc1")
        e("  s_waitcnt vmcnt(0)")
        e(f"  v_cmp_ne_u32 s[{sZ}:{sZ + 1}], 0, {vr(vFX)}")
        e(f"  s_lshr_b32 s{sT0}, s{sZ}, s{sCU}")
        e(f"  s_bcnt1_i32_b32 s{sT0}, s{sT0}")
        if P.rotl:
            pat = sum(1 << m for m in range(0, 32, P.rotl))
            assert all((pat << r) & msk for r in range(P.rotl))
            e(f"  s_sub_u32 s{sT1}, s{sT0}, 1")
            e(f"  s_cmp_lt_u32 s{sT1}, {P.rotl}")
            e("  s_cbranch_scc0 L_el")
            e(f"  s_lshl_b32 s{sRF}, {pat:#x}, s{sT1}")
            e(f"  s_and_b32 s{sRF}, s{sRF}, {msk:#x}")
            if not P.sa:
                e(f"  s_mov_b32 exec_lo, s{sRF}")
                e(f"  global_load_dword {vr(vFI)}, {vr(vFA)}, s[{sWS}:{sWS + 1}] sc1")
            e(f"  s_cmp_eq_u32 s{sT0}, {P.lx}")
            e("  s_cbranch_scc0 L_el")
        else:
            e(f"  s_cmp_eq_u32 s{sT0}, {P.lx}")
            e("  s_cbranch_scc0 L_el")
            e(f"  s_mov_b32 s{sRF}, {msk:#x}")
            e(f"  s_mov_b64 exec, {msk:#x}")
            e(f"  global_load_dword {vr(vFI)}, {vr(vFA)}, s[{sWS}:{sWS + 1}] sc1")
        if P.cpf:
            e("; pull the code that has not run yet into this die's L2")
            e("  s_mov_b64 exec, -1")
            e(f"  s_getpc_b64 s[{sZ}:{sZ + 1}]")
            e("L_pc2:")
            e(f"  s_sub_u32 s{sZ}, s{sZ}, L_pc2-L_vpre")
            e(f"  s_subb_u32 s{sZ + 1}, s{sZ + 1}, 0")
            e(f"  v_lshlrev_b32 {vr(vFX)}, 7, {vr(l)}")
            e(f"  global_load_dword {vr(rec)}, {vr(vFX)}, s[{sZ}:{sZ + 1}]")
            e(f"  v_add_u32 {vr(vFX)}, L_order-L_vpre-8192, {vr(vFX)}")
            e(f"  global_load_dword {vr(rec + 1)}, {vr(vFX)}, s[{sZ}:{sZ + 1}]")
        e("L_el:")
        e("  s_mov_b64 exec, -1")

    def patch(what):
        e(f"  s_bfe_u32 s{sT0}, s{sCN + 1}, {(4 << 16) | 8:#x}")
        e(f"  s_bfe_u32 s{sT1}, s{sCN}, {(4 << 16) | 20:#x}")
        e(f"  s_addk_i32 s{sT0}, 160")
        e(f"  s_addk_i32 s{sT1}, 80")
        for p, sh_, ex in ((5, sT0, "exec_hi"), (2, sT1, "exec_lo")):
            if what == "q":
                e(f"  s_mulk_i32 s{sh_}, 384")
                e(f"  v_lshrrev_b32 {vr(h0)}, 1, {vr(vL16)}")
                e(f"  v_add_u32 {vr(h0)}, s{sh_}, {vr(h0)}")
                qmask(1)
                e(f"  s_mov_b32 {ex}, 0")
                e(f"  global_load_dwordx2 {vr(rec + 4 * p, 2)}, {vr(h0)}, s[{sQ}:{sQ + 1}]")
                e(f"  global_load_dwordx2 {vr(rec + 4 * p + 2, 2)}, {vr(h0)}, s[{sQ}:{sQ + 1}] offset:192")
                hv.extend([("q", p)] * 2)
            else:
                e(f"  v_lshl_add_u32 {vr(h0)}, s{sh_}, 12, {vr(wb)}")
                e(f"  s_mov_b32 {ex}, 0")
                for i, sp in enumerate((sKS, sVS)):
                    e(f"  s_mov_b32 m0, {SCB + SA * i + 1024 * p}")
                    e("  s_nop 0")
                    if "s" not in P.xp:
                        e(f"  global_load_lds_dwordx4 {vr(h0)}, s[{sp}:{sp + 1}] {P.sf}")
                        hv.append(("s", p))
            qmask(0)

    def qmask(on):
        if on:
            e("  s_mov_b32 exec_lo, 0xffffff")
            e("  s_mov_b32 exec_hi, 0xffffff")
        else:
            e("  s_mov_b64 exec, -1")

    def rotate(p):
        L, Hh, LC, HS, HC, LS = x, x + 4, x + 8, x + 12, x + 16, x + 20
        qmask(1)
        if p == 0:
            hpf()
        e(f"  s_waitcnt vmcnt({hv[::-1].index(('q', p))})")
        if p == 0:
            hpf()
        for k in range(4):
            e(f"  v_lshlrev_b32 {vr(L + 2 * k)}, 16, {vr(rec + 4 * p + k)}")
            e(f"  v_and_b32 {vr(L + 2 * k + 1)}, s{sMASK}, {vr(rec + 4 * p + k)}")
        for d, q_, t_ in ((LC, L, cs), (HS, Hh, cs + 4), (HC, Hh, cs), (LS, L, cs + 4)):
            for h in (0, 2):
                e(f"  v_pk_mul_f32 {vr(d + h, 2)}, {vr(q_ + h, 2)}, {vr(t_ + h, 2)}")
        for i in range(4):
            e(f"  v_cvt_pk_bf16_f32 {vr(L + i)}, {vr(LC + i)}, {vr(HS + i)}")
            e(f"  v_cvt_pk_bf16_f32 {vr(Hh + i)}, {vr(HC + i)}, {vr(LS + i)}")
        for k in range(8):
            e(f"  v_lshlrev_b32 {vr(LC + k)}, 16, {vr(L + k)}")
            e(f"  v_and_b32 {vr(L + k)}, s{sMASK}, {vr(L + k)}")
        for h in (0, 2):
            e(f"  v_pk_add_f32 {vr(L + h, 2)}, {vr(LC + h, 2)}, {vr(L + h, 2)} neg_lo:[0,1] neg_hi:[0,1]")
            e(f"  v_pk_add_f32 {vr(Hh + h, 2)}, {vr(HS + h, 2)}, {vr(Hh + h, 2)}")
        for i in range(4):
            e(f"  v_cvt_pk_bf16_f32 {vr(LC + i)}, {vr(L + i)}, {vr(Hh + i)}")
            e(f"  v_cvt_pk_bf16_f32 {vr(HS + i)}, {vr(Hh + i)}, -{vr(L + i)}")
        e(f"  v_mov_b32 {vr(h0)}, {2 * p + 2}")
        e(f"  ds_write_b128 {vr(wa)}, {vr(LC, 4)} offset:{QB + 1536 * p}")
        e(f"  ds_write_b128 {vr(wa)}, {vr(HS, 4)} offset:{QB + 1536 * p + 384}")
        e(f"  ds_write_b32 {vr(vZ)}, {vr(h0)} offset:{FL + 16}")
        qmask(0)

    ctl_init()
    if P.ctl:
        hv.append(("c", 0))
    patch("q")
    e(f"  s_lshl_b32 s{sT0}, s{sJ}, 10")
    e(f"  s_add_u32 s{sT0}, s{sT0}, L_hpos-L_pc")
    e(f"  v_add_u32 {vr(h0)}, s{sT0}, {vr(vT16)}")
    e(f"  global_load_dwordx4 {vr(st4, 4)}, {vr(h0)}, s[{sZ}:{sZ + 1}]")
    hv.append(("h", 0))
    if P.ss == 1:
        sc_early()
    if P.ss <= 1:
        patch("s")
    rotate(0)
    hpf()
    if P.ss == 2:
        sc_early()
        patch("s")
    e("  s_waitcnt lgkmcnt(0)")
    e("  s_setprio 0")
    hpf()
    e("  s_barrier")
    hpf()
    if P.ss == 3:
        sc_early()
        patch("s")
    for p in range(7 if P.bar else 1, 8):
        rotate(p)
    e(f"  v_mov_b32 {vr(vSa)}, 0")
    e(f"  v_min_u32 {vr(u)}, 47, {vr(l)}")
    e(f"  v_lshlrev_b32 {vr(vL16)}, 4, {vr(u)}")
    for i in range(4):
        e(f"  v_mov_b32 {vr(sc + i)}, 0")
    e(f"  s_mov_b32 s{sNEED}, 1")
    if P.cl:
        e("; the counters live in the workspace: workgroup 0 clears them, then raises a flag in d_debug")
        e("  s_cmp_eq_u32 s2, 0")
        e("  s_cbranch_scc0 L_rc")
        e(f"  v_mul_u32_u24 {vr(vCL)}, 4352, {vr(u)}")
        e(f"  v_add_u32 {vr(vCL)}, {W_CNT}, {vr(vCL)}")
        e("  s_mov_b32 exec_hi, 0xffff")
        e(f"  global_store_dword {vr(vCL)}, {vr(vZ)}, s[{sWS}:{sWS + 1}] sc1")
        if P.ctl:
            e(f"  s_mov_b64 exec, {msk:#x}")
            e(f"  global_store_dword {vr(vFA)}, {vr(vZ)}, s[{sWS}:{sWS + 1}] sc1")
        e("  s_waitcnt vmcnt(0)")
        e("  s_mov_b64 exec, 1")
        e(f"  global_store_dword {vr(vZ)}, {vr(vOne)}, s[{sDBG}:{sDBG + 1}] sc1")
        e("  s_mov_b64 exec, -1")
        e("L_rc:")
    elif P.sa and P.ctl:
        e("; workgroup g < 32 clears ranking counter g")
        e("  s_cmp_lt_u32 s2, 32")
        e("  s_cbranch_scc0 L_rc")
        e("  s_lshl_b64 exec, 1, s2")
        e(f"  global_store_dword {vr(vFA)}, {vr(vZ)}, s[{sWS}:{sWS + 1}] sc1")
        e("  s_mov_b64 exec, -1")
        e("L_rc:")
    hpf()
    e("  s_waitcnt vmcnt(0)")
    hpf()
    if P.tfine:
        e("  s_waitcnt lgkmcnt(0)")
        e(f"  v_mov_b32 {vr(h0)}, 0")
        for k in range(hpn[0]):
            e(f"  v_writelane_b32 {vr(h0)}, s{HPF[k]}, {k}")
        e(f"  s_mul_i32 s{sT0}, s2, {5 * 256}")
        e(f"  s_add_u32 s{sT0}, s{sT0}, {0x100000 + 1024}")
        e(f"  v_lshl_add_u32 {vr(h1)}, v0, 2, s{sT0}")
        e(f"  global_store_dword {vr(h1)}, {vr(h0)}, s[{sWS}:{sWS + 1}]")
    for k in range(4):
        e(f"  v_and_b32 {vr(ro + 2 * k)}, 0xffff, {vr(st4 + k)}")
        e(f"  v_lshrrev_b32 {vr(ro + 2 * k + 1)}, 16, {vr(st4 + k)}")
    for k in range(2):
        e(f"  v_add_u32 {vr(ro + 6 + k)}, {SCB}, {vr(ro + 6 + k)}")
    if P.bar:
        e("; timing experiment: the helper only joins the barriers and ranks")
        e(f"  v_mov_b32 {vr(h0)}, 16")
        e(f"  ds_write_b32 {vr(vZ)}, {vr(h0)} offset:{FL + 20}")
        e(f"  s_mov_b32 s{sNEED}, 0")
        e("L_bb:")
        rank_post("b")
        for k in range(8 * len(P.bar)):
            e("  s_barrier")
            if k == 3 * len(P.bar) - 1:
                rank_take("b")
        e(f"  s_add_u32 s{sNEED}, s{sNEED}, 1")
        elect()
        e(f"  s_cmp_lt_u32 s{sNEED}, 31")
        e("  s_cbranch_scc1 L_bb")
        for k in range((8 - PRE // 3) * len(P.bar) + 1):
            e("  s_barrier")
        e("  s_branch L_fin")
    e("L_hk:")
    for a in range(2):
        for k in range(2):
            e(f"  ds_read_u16_d16_hi {vr(sc + 2 * a + k)}, {vr(ro + 6 + k)} offset:{SA * a}")
    progwait("hsw", P.psl)
    mark("s")
    rank_post("s")
    for k in range(6):
        e(f"  ds_read_b32 {vr(x + 4 + k)}, {vr(ro + k)} offset:{LGB}")
    e(f"  v_mul_f32 {vr(x + 2)}, s{sSCALE}, {vr(sc)}")
    e(f"  v_mul_f32 {vr(x + 3)}, s{sSCALE}, {vr(sc + 1)}")
    e("  s_waitcnt lgkmcnt(0)")
    e(f"  v_pk_add_f32 {vr(x, 2)}, {vr(x + 4, 2)}, {vr(x + 6, 2)}")
    e(f"  v_pk_add_f32 {vr(x, 2)}, {vr(x, 2)}, {vr(x + 8, 2)}")
    e(f"  v_mul_f32 {vr(x)}, {vr(x)}, {vr(x + 2)}")
    e(f"  v_mul_f32 {vr(x + 1)}, {vr(x + 1)}, {vr(x + 3)}")
    e(f"  v_max_f32 {vr(z4)}, {vr(x)}, {vr(x + 1)}")
    allred("v_max_f32", z4, h0)
    e(f"  v_sub_f32 {vr(x)}, {vr(x)}, {vr(z4)}")
    e(f"  v_sub_f32 {vr(x + 1)}, {vr(x + 1)}, {vr(z4)}")
    e(f"  v_exp_f32 {vr(x)}, {vr(x)}")
    e(f"  v_exp_f32 {vr(x + 1)}, {vr(x + 1)}")
    e("  s_nop 0")
    e(f"  v_add_f32 {vr(z4 + 1)}, {vr(x)}, {vr(x + 1)}")
    e(f"  v_mul_f32 {vr(x)}, {vr(x)}, {vr(sc + 2)}")
    e(f"  v_mul_f32 {vr(x + 1)}, {vr(x + 1)}, {vr(sc + 3)}")
    e(f"  v_add_f32 {vr(z4 + 2)}, {vr(x)}, {vr(x + 1)}")
    for k in range(6):
        e(f"  ds_write_b32 {vr(ro + k)}, {vr(x + (k & 1))} offset:{LGB}")
    e(f"  v_mul_f32 {vr(z4 + 2)}, {f32bits(7.5):#x}, {vr(z4 + 2)}")
    allred("v_add_f32", z4 + 1, h0)
    allred("v_add_f32", z4 + 2, h0)
    e(f"  v_mov_b32 {vr(h0)}, s{sNEED}")
    e(f"  ds_write_b128 {vr(vSa)}, {vr(z4, 4)} offset:{ST}")
    e(f"  ds_write_b32 {vr(vZ)}, {vr(h0)} offset:{FL + 20}")
    e(f"  v_add_u32 {vr(vSa)}, 16, {vr(vSa)}")
    for k in range(8):
        e(f"  v_add_u32 {vr(ro + k)}, {1536 if k < 6 else SL}, {vr(ro + k)}")
    rank_take("s")
    warm("s")
    if not P.bar:
        elect()
    if not P.cl:
        e("; arrival counters live in the workspace: the finisher of slot 0 clears c, 16 + c, 32 + c, then raises debug flag c")
        e(f"  s_cmp_eq_u32 s{sNEED}, 14")
        e("  s_cbranch_scc0 L_hq_skip")
        e(f"  s_cmp_eq_u32 s{sO}, 0")
        e("  s_cbranch_scc0 L_hq_skip")
        e("  s_mov_b64 exec, 7")
        e(f"  global_store_dword {vr(vCL)}, {vr(vZ)}, s[{sWS}:{sWS + 1}] sc1")
        e("  s_waitcnt vmcnt(0)")
        e("  s_mov_b64 exec, 1")
        e(f"  global_store_dword {vr(vDB)}, {vr(vOne)}, s[{sDBG}:{sDBG + 1}] sc1")
        e("  s_mov_b64 exec, -1")
        e("L_hq_skip:")
    e("  s_waitcnt lgkmcnt(0)")
    e(f"  s_add_u32 s{sNEED}, s{sNEED}, 1")
    e(f"  s_cmp_le_u32 s{sNEED}, 16")
    e("  s_cbranch_scc1 L_hk")

    e(f"  v_and_b32 {vr(h2)}, 15, {vr(l)}")
    e(f"  v_lshlrev_b32 {vr(h2)}, 1, {vr(h2)}")
    e(f"  global_load_ushort {vr(h3)}, {vr(h2)}, s[{sRT}:{sRT + 1}] offset:32")
    e(f"  s_mov_b32 s{sK}, 0")
    e(f"  v_min_u32 {vr(wa)}, 23, {vr(l)}")
    e(f"  v_lshlrev_b32 {vr(wa)}, 4, {vr(wa)}")
    e(f"  v_lshlrev_b32 {vr(h0)}, 1, {vr(wa)}")
    e(f"  v_add_u32 {vr(h0)}, {PB}, {vr(h0)}")
    e(f"  v_add_u32 {vr(wa)}, {PK}, {vr(wa)}")
    e(f"  v_lshlrev_b32 {vr(sgn)}, 4, {vr(l)}")
    e(f"  s_mul_i32 s{sT0}, s2, 6144")
    e(f"  s_add_u32 s{sT0}, s{sT0}, {W_REC}")
    e(f"  v_add_u32 {vr(sgx)}, s{sT0}, {vr(sgn)}")
    e(f"  v_add_u32 {vr(sgn)}, {PK}, {vr(sgn)}")
    e(f"  v_cmp_gt_u32 vcc, 24, {vr(l)}")
    e(f"  v_add_u32 {vr(sg2)}, 4096, {vr(sgx)}")
    e(f"  v_lshrrev_b32 {vr(u)}, 1, {vr(vL16)}")
    e(f"  s_mul_i32 s{sT0}, s{sOH}, 384")
    e(f"  s_add_u32 s{sOUT}, s{sOUT}, s{sT0}")
    e(f"  s_addc_u32 s{sOUT + 1}, s{sOUT + 1}, 0")
    e(f"  s_lshl_b32 s{sT0}, s{sO}, 4")
    e(f"  s_add_u32 s{sT0}, s{sT0}, {W_REC}")
    e(f"  v_add_u32 {vr(h1)}, {W_REC}, {vr(u)}")
    e("  s_waitcnt vmcnt(0)")
    e(f"  v_or_b32 {vr(h2)}, 15, {vr(h3)}")
    e(f"  v_mul_u32_u24 {vr(h2)}, 384, {vr(h2)}")
    e(f"  v_mul_u32_u24 {vr(h3)}, 384, {vr(h3)}")
    e(f"  v_add_u32 {vr(ra + 15)}, s{sT0}, {vr(h2)}")
    e("  s_nop 0")
    for k in range(15):
        e(f"  v_add_u32_dpp {vr(ra + k)}, {vr(h3)}, {vr(h1)} row_newbcast:{k} row_mask:0xf bank_mask:0xf")
    e(f"  s_mov_b64 s[{sX}:{sX + 1}], 0")
    e("L_hp:")
    e(f"  s_min_u32 s{sT0}, s{sO}, 13")
    e(f"  s_cmp_eq_u32 s{sT0}, s{sK}")
    e("  s_cbranch_scc0 L_hc_ok")
    e("L_hc:")
    e(f"  global_load_dword {vr(pr)}, {vr(vDB)}, s[{sDBG}:{sDBG + 1}] sc1")
    e("  s_waitcnt vmcnt(0)")
    e(f"  v_cmp_ne_u32 s[{sZ}:{sZ + 1}], 1, {vr(pr)}")
    e(f"  s_cmp_eq_u64 s[{sZ}:{sZ + 1}], 0")
    e("  s_cbranch_scc1 L_hc_ok")
    budget("L_hc_ok")
    e("  s_sleep 64")
    e("  s_branch L_hc")
    e("L_hc_ok:")
    vstep_k(sH, sK)
    e(f"  s_lshl_b32 s{sT0}, s{sH}, 4")
    e(f"  v_mov_b32 {vr(h1)}, s{sT0}")
    e(f"  s_cmp_eq_u32 s{sK}, 14")
    e("  s_cbranch_scc0 L_hp_mid")
    for k in range(6):
        e(f"  ds_read_b128 {vr(blk + 4 * k, 4)}, {vr(sgn)} offset:{1024 * k}")
    e(f"  v_subrev_u32 {vr(h2)}, 24, {vr(l)}")
    e(f"  v_and_b32 {vr(h2)}, 15, {vr(h2)}")
    e(f"  v_cmp_eq_u32 s[{sX}:{sX + 1}], s{sH}, {vr(h2)}")
    e(f"  v_lshlrev_b32 {vr(h2)}, 4, {vr(h2)}")
    e(f"  ds_read_b128 {vr(st4, 4)}, {vr(h2)} offset:{ST}")
    def bulk():
        for k in range(6):
            if k == 5:
                e("  s_mov_b64 exec, 0xffff")
            if "w" not in P.xp and not ("h" in P.xp and k < 3) and not ("H" in P.xp and k < 4):
                e(f"  global_store_dwordx4 {vr(sgx if k < 4 else sg2)}, {vr(blk + 4 * k, 4)}, s[{sWS}:{sWS + 1}] offset:{1024 * (k % 4)} {P.wf}")
        e("  s_mov_b64 exec, -1")

    if P.eb:
        e("  s_waitcnt lgkmcnt(0)")
        bulk()
    if P.eprio:
        e(f"  s_setprio {P.eprio}")
    e("L_hp_mid:")
    e(f"  s_add_u32 s{sK}, s{sK}, 1")
    e(f"  s_add_u32 s{sNEED}, s{sK}, 16")
    progwait("hpw", P.psl)
    mark("p")
    hp(0)
    rank_post("p")
    if not P.eb:
        e(f"  s_cmp_eq_u32 s{sK}, 15")
        e("  s_cbranch_scc0 L_hp_sum")
        bulk()
        e("L_hp_sum:")
    sum_partials(2)
    e(f"  v_max3_f32 {vr(h3)}, |{vr(x)}|, |{vr(x + 1)}|, |{vr(x + 2)}|")
    e(f"  v_max3_f32 {vr(h3)}, {vr(h3)}, |{vr(x + 3)}|, |{vr(x + 4)}|")
    e(f"  v_max3_f32 {vr(h3)}, {vr(h3)}, |{vr(x + 5)}|, |{vr(x + 6)}|")
    e(f"  v_max_f32_e64 {vr(h3)}, {vr(h3)}, |{vr(x + 7)}|")
    allred("v_max_f32", h3, wb)
    e(f"  v_frexp_exp_i32_f32 {vr(h3)}, {vr(h3)}")
    e(f"  v_sub_u32 {vr(wb)}, 14, {vr(h3)}")
    e(f"  v_subrev_u32 {vr(h3)}, 14, {vr(h3)}")
    for i in range(8):
        e(f"  v_ldexp_f32 {vr(x + i)}, {vr(x + i)}, {vr(wb)}")
    for i in range(4):
        e(f"  v_cvt_pk_f16_f32 {vr(fo + i)}, {vr(x + 2 * i)}, {vr(x + 2 * i + 1)}")
    e(f"  s_cmp_eq_u32 s{sK}, 15")
    e("  s_cbranch_scc1 L_hp_last")
    e(f"  ds_write_b32 {vr(h1)}, {vr(h3)} offset:{ST + 12}")
    e(f"  v_add_u32 {vr(h0)}, 3072, {vr(h0)}")
    e(f"  ds_write_b128 {vr(wa)}, {vr(fo, 4)}")
    if P.spr:
        e(f"  s_and_b32 s{sT0}, s{sK}, {P.spr - 1}")
        e(f"  s_mul_i32 s{sT0}, s{sT0}, {256 * 384}")
        e(f"  s_mul_i32 s{sT1}, s2, 384")
        e(f"  s_add_u32 s{sT1}, s{sT1}, s{sT0}")
        e(f"  s_add_u32 s{sT1}, s{sT1}, 0x900000")
        e(f"  v_lshl_add_u32 {vr(h2)}, {vr(l)}, 4, s{sT1}")
        if P.spd:
            e(f"  s_bfe_u32 s{sT0}, s2, {P.spb:#x}")
            e("L_spd:")
            e(f"  s_sleep {P.spd}")
            e(f"  s_sub_u32 s{sT0}, s{sT0}, 1")
            e("  s_cbranch_scc0 L_spd")
        e(f"  s_mov_b64 exec, {(1 << P.spn) - 1:#x}")
        e(f"  global_store_dwordx4 {vr(h2)}, {vr(fo, 4)}, s[{sWS}:{sWS + 1}] {P.wf}")
        if P.spl:
            e(f"  s_add_u32 s{sT0}, s{sK}, {P.spr - 1}")
            e(f"  s_and_b32 s{sT0}, s{sT0}, {P.spr - 1}")
            e(f"  s_mul_i32 s{sT0}, s{sT0}, {256 * 384}")
            e(f"  s_xor_b32 s{sT1}, s2, 5")
            e(f"  s_mulk_i32 s{sT1}, 384")
            e(f"  s_add_u32 s{sT1}, s{sT1}, s{sT0}")
            e(f"  s_add_u32 s{sT1}, s{sT1}, 0x900000")
            e(f"  v_lshl_add_u32 {vr(h2)}, {vr(l)}, 4, s{sT1}")
            e(f"  global_load_dwordx4 {vr(rec, 4)}, {vr(h2)}, s[{sWS}:{sWS + 1}] sc0 sc1")
        e("  s_mov_b64 exec, -1")
    e(f"  v_add_u32 {vr(wa)}, 384, {vr(wa)}")
    rank_take("p")
    warm("p")
    e("  s_branch L_hp")
    e("L_hp_last:")
    e(f"  v_cndmask_b32_e64 {vr(st4 + 3)}, {vr(st4 + 3)}, {vr(h3)}, s[{sX}:{sX + 1}]")
    for i in range(4):
        e(f"  v_cndmask_b32 {vr(fo + i)}, {vr(st4 + i)}, {vr(fo + i)}, vcc")
    e("  s_mov_b32 exec_hi, 0xff")
    e(f"  global_store_dwordx4 {vr(sg2)}, {vr(fo, 4)}, s[{sWS}:{sWS + 1}] offset:{14 * 384 - 4096} sc1")
    hp(1)
    e("  s_waitcnt vmcnt(0)")
    hp(2)
    if P.nopoll:
        e("  s_branch L_hw_ok")
    if P.sh_ == 4:
        e("  s_mov_b64 exec, 7")
        e(f"  global_atomic_add {vr(vCNT)}, {vr(vOne)}, s[{sWS}:{sWS + 1}] sc1")
        e(f"  v_readlane_b32 s{sMSK}, {vr(vCNT)}, 0")
        e(f"  s_mov_b32 s{sT0}, 0")
        hp(3)
        e("L_hw:")
        e(f"  s_add_u32 s{sT0}, s{sT0}, 1")
        e(f"  s_and_b32 s{sF}, s{sT0}, 15")
        e("  s_cbranch_scc0 L_hwa")
        e(f"  s_load_dword s{sF}, s[{sWS}:{sWS + 1}], s{sMSK} glc")
        e("  s_branch L_hwb")
        e("L_hwa:")
        e(f"  s_atomic_add s{sF}, s[{sWS}:{sWS + 1}], s{sMSK} glc")
        e("L_hwb:")
        e("  s_waitcnt lgkmcnt(0)")
        e(f"  s_cmp_ge_u32 s{sF}, 16")
        e("  s_cbranch_scc1 L_hw_ok")
        budget("L_hw_ok")
        if P.sleep:
            e(f"  s_sleep {P.sleep}")
        e("  s_branch L_hw")
    elif P.sh_ == 3:
        e("  s_mov_b64 exec, 7")
        e(f"  global_atomic_add {vr(vCNT)}, {vr(vOne)}, s[{sWS}:{sWS + 1}] sc1")
        e(f"  v_readlane_b32 s{sMSK}, {vr(vCNT)}, 0")
        hp(3)
        e("L_hw:")
        e(f"  s_mov_b32 s{sF}, 0")
        e(f"  s_atomic_add s{sF}, s[{sWS}:{sWS + 1}], s{sMSK} glc")
        e("  s_waitcnt lgkmcnt(0)")
        e(f"  s_cmp_ge_u32 s{sF}, 16")
        e("  s_cbranch_scc1 L_hw_ok")
        budget("L_hw_ok")
        if P.sleep:
            e(f"  s_sleep {P.sleep}")
        e("  s_branch L_hw")
    elif P.sh_:
        for k in range(3):
            e(f"  v_readlane_b32 s{sMSK + k}, {vr(vCNT)}, {k}")
            e(f"  s_mov_b32 s{sMSK + 4 + k}, 1")
        for k in range(3):
            e(f"  s_atomic_add s{sMSK + 4 + k}, s[{sWS}:{sWS + 1}], s{sMSK + k} glc")
        e(f"  s_mov_b32 s{sT0}, 15")
        hp(3)
        e("L_hw:")
        e("  s_waitcnt lgkmcnt(0)")
        e(f"  s_cmp_ge_u32 s{sMSK + 4}, s{sT0}")
        e("  s_cbranch_scc1 L_hw_ok")
        e(f"  s_mov_b32 s{sT0}, 16")
        if P.sh_ == 1:
            e(f"  s_mov_b32 s{sMSK + 4}, 0")
            e(f"  s_atomic_add s{sMSK + 4}, s[{sWS}:{sWS + 1}], s{sMSK} glc")
        else:
            e(f"  s_load_dword s{sMSK + 4}, s[{sWS}:{sWS + 1}], s{sMSK} glc")
        budget("L_hw_ok")
        e("  s_branch L_hw")
    e("  s_mov_b64 exec, 7")
    if P.pp and not P.sh_:
        e(f"  global_atomic_add {vr(qn)}, {vr(vCNT)}, {vr(vOne)}, s[{sWS}:{sWS + 1}] sc0 sc1")
        e("  s_mov_b64 exec, 1")
        for k in range(1, P.pp):
            e(f"  s_sleep {P.sleep}")
            e(f"  global_atomic_add {vr(qn + k)}, {vr(vCNT)}, {vr(vZ)}, s[{sWS}:{sWS + 1}] sc0 sc1")
        e(f"  s_mov_b32 s{sT0}, 15")
        hp(3)
        e("L_hw:")
        for k in range(P.pp):
            e(f"  s_waitcnt vmcnt({P.pp - 1})")
            e(f"  v_readfirstlane_b32 s{sF}, {vr(qn + k)}")
            e(f"  s_cmp_ge_u32 s{sF}, s{sT0}")
            e("  s_cbranch_scc1 L_hw_ok")
            e(f"  s_mov_b32 s{sT0}, 16")
            e(f"  global_atomic_add {vr(qn + k)}, {vr(vCNT)}, {vr(vZ)}, s[{sWS}:{sWS + 1}] sc0 sc1")
        budget("L_hw_ok")
        e("  s_branch L_hw")
    e("L_hw_ok:")
    hp(4)
    e("  s_mov_b64 exec, -1")
    e(f"  global_load_dwordx4 {vr(cs, 4)}, {vr(ra + 15)}, s[{sWS}:{sWS + 1}] sc1")
    for k in range(15):
        e(f"  global_load_dwordx2 {vr(rec + 2 * k, 2)}, {vr(ra + (0 if 'r' in P.xp else k % 7 if 'h' in P.xp else k % 3 if 'H' in P.xp else k))}, s[{sWS}:{sWS + 1}] sc1")
    e(f"  s_lshl_b32 s{sH}, s{sO}, 4")
    e(f"  v_mov_b32 {vr(h1)}, s{sH}")
    e(f"  v_add_u32 {vr(h0)}, {PB + 15 * 3072}, {vr(vL16)}")
    for i in range(4):
        e(f"  v_mov_b32 {vr(fo + i)}, 0")
    e("  s_waitcnt vmcnt(15)")
    hp(5)
    e(f"  v_mov_b32 {vr(h2)}, {vr(cs)}")
    rowred("v_max_f32", h2)
    e(f"  v_sub_f32 {vr(h2)}, {vr(cs)}, {vr(h2)}")
    e(f"  v_exp_f32 {vr(h2)}, {vr(h2)}")
    e("  s_nop 0")
    e(f"  v_mul_f32 {vr(h3)}, {vr(h2)}, {vr(cs + 1)}")
    rowred("v_add_f32", h3)
    e(f"  v_rcp_f32 {vr(h3)}, {vr(h3)}")
    e("  s_nop 0")
    e(f"  v_mul_f32 {vr(h2)}, {vr(h2)}, {vr(h3)}")
    e(f"  v_ldexp_f32 {vr(h3)}, {vr(h2)}, {vr(cs + 3)}")
    e(f"  v_readlane_b32 s{sMSK + 15}, {vr(h2)}, 15")
    for k in range(15):
        e(f"  v_readlane_b32 s{sMSK + k}, {vr(h3)}, {k}")
    for k in range(15):
        e(f"  s_waitcnt vmcnt({14 - k})")
        for i in range(4):
            e(f"  v_fma_mix_f32 {vr(fo + i)}, {vr(rec + 2 * k + i // 2)}, s{sMSK + k}, {vr(fo + i)} op_sel:[{i & 1},0,0] op_sel_hi:[1,0,0]")
    hp(6)
    if P.fb:
        e("  s_barrier")
    else:
        e(f"  s_mov_b32 s{sNEED}, 32")
        progwait("hfw", P.fsl)
    hp(7)
    sum_partials(1)
    for i in range(4):
        e(f"  v_fmac_f32 {vr(fo + i)}, s{sMSK + 15}, {vr(x + i)}")
    e(f"  v_cvt_pk_bf16_f32 {vr(fo)}, {vr(fo)}, {vr(fo + 1)}")
    e(f"  v_cvt_pk_bf16_f32 {vr(fo + 1)}, {vr(fo + 2)}, {vr(fo + 3)}")
    e("  s_mov_b32 exec_hi, 0xffff")
    e(f"  global_store_dwordx2 {vr(u)}, {vr(fo, 2)}, s[{sOUT}:{sOUT + 1}] {P.of}")
    if P.bar:
        e("L_fin:")
    if P.enc:
        m0, m1, base, amp, wg = [int(v) for v in P.enc.split(",")]
        if m1 == 32:
            e("  s_memrealtime s[18:19]")
        if m0 == 0:
            e(f"  s_mov_b32 s16, s{sST}")
        e("  s_waitcnt lgkmcnt(0)")
        e("  s_sub_u32 s16, s18, s16")
        e(f"  s_atomic_add s16, s[{sDBG}:{sDBG + 1}], 4")
        e(f"  s_cmp_eq_u32 s2, {wg}")
        e("  s_cbranch_scc0 L_nohold")
        e("L_hold0:")
        e(f"  s_memrealtime s[{sST + 2}:{sST + 3}]")
        e("  s_waitcnt lgkmcnt(0)")
        e(f"  s_sub_u32 s{sT0}, s{sST + 2}, s{sST}")
        e(f"  s_cmp_lt_u32 s{sT0}, 12500")
        e("  s_cbranch_scc1 L_hold0")
        e("  s_mov_b32 s16, 0")
        e(f"  s_atomic_add s16, s[{sDBG}:{sDBG + 1}], 4 glc")
        e("  s_waitcnt lgkmcnt(0)")
        e(f"  s_sub_u32 s16, s16, {base * 256}")
        e("  s_max_i32 s16, s16, 0")
        e("  s_min_i32 s16, s16, 128000")
        e(f"  s_mul_i32 s16, s16, {amp}")
        e("  s_lshr_b32 s16, s16, 8")
        e("  s_add_u32 s16, s16, 13000")
        e("L_hold:")
        e(f"  s_memrealtime s[{sST + 2}:{sST + 3}]")
        e("  s_waitcnt lgkmcnt(0)")
        e(f"  s_sub_u32 s{sT0}, s{sST + 2}, s{sST}")
        e(f"  s_cmp_lt_u32 s{sT0}, s16")
        e("  s_cbranch_scc1 L_hold")
        e("L_nohold:")
        e("  s_waitcnt lgkmcnt(0)")
    if P.hold:
        e("; diagnostic build only")
        e("L_hold:")
        e(f"  s_memrealtime s[{sST + 2}:{sST + 3}]")
        e("  s_waitcnt lgkmcnt(0)")
        e(f"  s_sub_u32 s{sT0}, s{sST + 2}, s{sST}")
        e(f"  s_cmp_lt_u32 s{sT0}, {P.hold}")
        e("  s_cbranch_scc1 L_hold")
    if P.stamp:
        e(f"  s_memrealtime s[{sST + 2}:{sST + 3}]")
        if P.hprof:
            e("  s_waitcnt lgkmcnt(0)")
            e("  s_lshl_b32 s44, s2, 5")
            e("  s_add_u32 s44, s44, 0x80000")
            e("  v_mov_b32 v1, s44")
            for k in range(8):
                e(f"  s_sub_u32 s45, s{sST + 2}, s{HP[k]}")
                e(f"  v_mov_b32 v{4 + k}, s45")
            e(f"  global_store_dwordx4 v1, v[4:7], s[{sWS}:{sWS + 1}]")
            e(f"  global_store_dwordx4 v1, v[8:11], s[{sWS}:{sWS + 1}] offset:16")
            e("  s_nop 2")
        e("  s_getreg_b32 s6, hwreg(HW_REG_XCC_ID)")
        e("  s_getreg_b32 s7, hwreg(HW_REG_HW_ID)")
        e("  s_waitcnt lgkmcnt(0)")
        e(f"  v_mov_b32 v4, s{sST}")
        e(f"  v_mov_b32 v5, s{sST + 2}")
        e("  v_mov_b32 v6, s6")
        e("  v_mov_b32 v7, s7")
        e("  s_lshl_b32 s8, s2, 4")
        e("  v_mov_b32 v1, s8")
        e(f"  global_store_dwordx4 v1, v[4:7], s[{sWS}:{sWS + 1}]")
    e("L_end:")
    e("  s_endpgm")
    e(".p2align 6")
    e(".type L_order,@object")
    e("L_order:")
    for k in range(0, len(ordtab), 8):
        e("  .long " + ", ".join(f"{v:#x}" for v in ordtab[k:k + 8]))
    e(".type L_hpos,@object")
    e("L_hpos:")
    for b in range(2):
        at = {chunk_of(b, n, s_): lpos(n, s_) for n in range(24) for s_ in range(16)}
        rows = sorted({c // 3 for c in at})
        for l_ in range(64):
            r0, r1 = rows[l_], rows[l_ + 64]
            e("  .long " + ", ".join(f"{a_ | b_ << 16:#x}" for a_, b_ in [(at[3 * r0 + k], at[3 * r1 + k]) for k in range(3)] + [(2 * r0, 2 * r1)]))
    e('.section .rodata,"a"')
    e(".p2align 6")
    e(f".amdhsa_kernel {NAME}_kernel")
    e(f"  .amdhsa_next_free_vgpr {NV}")
    e("  .amdhsa_next_free_sgpr 100")
    e(f"  .amdhsa_accum_offset {(NV + 3) // 4 * 4}")
    e("  .amdhsa_group_segment_fixed_size 0")
    e("  .amdhsa_kernarg_size 112")
    e("  .amdhsa_user_sgpr_count 2")
    e("  .amdhsa_user_sgpr_kernarg_segment_ptr 1")
    e("  .amdhsa_system_sgpr_workgroup_id_x 1")
    e(".end_amdhsa_kernel")
    return "\n".join(o) + "\n", NV


if __name__ == "__main__":
    ap = argparse.ArgumentParser()
    ap.add_argument("-o", default=f"/code/{NAME}.s")
    for name, d in (("sh", 4), ("deep", 5), ("pd", 9), ("pre", 12), ("nf", 6), ("hi3", 99), ("leak", 2), ("tp", 2), ("rf", 3), ("rp", 2), ("rt", 26),
                    ("nl", 1), ("rotl", 7), ("lb", 0), ("s0", 0), ("su", 3), ("sp", 0), ("cpf", 0), ("lx", 4), ("hi2", 20),
                    ("streak", 0), ("dl", 8), ("sm", 1), ("pp", 3), ("eb", 0), ("inorder", 0), ("hiv", 2), ("cp", 0), ("sleep", 4),
                    ("bound", 4000000), ("ctl", 1), ("ex", 1), ("ss", 3), ("cl", 1), ("tst", 20), ("spr", 0), ("spd", 0), ("spn", 24), ("spb", 0x40004), ("spl", 0), ("wc", 0), ("wn", 0), ("wp", 0), ("wo", 0), ("eb_", 0), ("pb", 0), ("pbb", 7), ("pe", 255), ("pc", 0), ("pcb", 6), ("pw", 0), ("hold", 0), ("nr", 2), ("ev", 4), ("tw", 0), ("tv", 0), ("tl", 0), ("lag", 2), ("hp0", 0), ("sa", 1), ("sh_", 3), ("fb", 1),
                    ("hi", -1), ("lo", -25), ("lo2", -60), ("thr", 2), ("thr2", 1), ("start", 5), ("ba", 3),
                    ("kp", 7), ("ki", 0), ("imax", 80), ("r0", 2), ("r1", 30),
                    ("kp0", 9), ("kn", 0), ("eprio", 0), ("fsl", 0), ("psl", 1)):
        ap.add_argument("--" + name, type=int, default=d)
    ap.add_argument("--kp_", default="6,6,6,7,8,9,9,10,10,11,11,12,12", help="K loads issued by each prologue point")
    ap.add_argument("--sf", default="nt")
    ap.add_argument("--of", default="")
    ap.add_argument("--wf", default="sc1")
    ap.add_argument("--bar", default="", help="timing experiments only")
    ap.add_argument("--enc", default="", help="diagnostic only: m0,m1,base,amp,wg")
    ap.add_argument("--qf", default="")
    ap.add_argument("--cf", default="")
    ap.add_argument("--bu", default="012", help="extra depth per position in the issued group")
    ap.add_argument("--th", default="-9,5,13")
    ap.add_argument("--sch", default="sch_np.txt")
    ap.add_argument("--xp", default="", help="timing experiments only")
    for name in ("stamp", "trace", "tfine", "hprof", "nopoll"):
        ap.add_argument("--" + name, action="store_true", help="diagnostics only")
    a = ap.parse_args()
    txt, nv = gen(a)
    open(a.o, "w").write(txt)
    print("wrote", a.o, "vgprs", nv)
```

```python
import argparse
import math
import os
import struct
from gen import HEADER, NAME, Alloc, f32bits, vr

HB = 2048 * 768

ABOUT = """
Generated by tools/gen9.py.
Work split: workgroup (cluster c, block m, member b) handles 128 rows of the 256-row block m for 16 heads 16 k + c
  (slots k = 5 and 10 take their head from a table instead of c); the two members alternate over 32 KiB runs.
  Waves 1-4 stream one 4 KiB block per round; a 16-lane row handles one third (64 dims) of a KV row per load.
  K sweep: logit = k_scale * sum_d (qk - 7.5) * (qa * cos + qb * sin), RoPE moved onto the rotated q;
  V sweep: partial = sum_rows p * v_scale * qv.
  Wave 0 (helper) rotates q, takes max / exp / sums over the workgroup's rows of each head, and merges partials.
Constant parameters (the same for every seed) are built in: both zero points (7.5), q_cos / q_sin (table L_qcs) and
  k_cos / k_sin = bf16(cos / sin(fp32(row * inv_freq))), evaluated once per workgroup from the table L_inv into LDS.
Hand-off: every workgroup finishes one of its heads and streams that head last.  Partials and (max, sum) of
  the other 15 go to d_ws with sc1 stores; every 8 bytes carry a piece of a tag that differs from the one found there on
  entry (sent round through d_debug).  The finisher reads until all tags fit and rescales all 16 to the true row maximum.
Flow control (speed only, results do not depend on it): waves publish a group counter and sample the counters of
  units on the same die; late waves keep one more load in flight, early waves one or two fewer.  Helpers rank the dies.
"""

RUN = (1, 2, 0)


def chunk_of(b, n, s):
    g = 256 * RUN[n >> 3] + 128 * b + 16 * (n & 7) + s
    return {128: 512, 255: 639, 512: 128, 639: 255}.get(g, g)


def tidx(b, row):
    return row - 43 * b - 42 * ((row >= 85) + (row >= 171))


def rev(x, bits):
    return int(format(x, f"0{bits}b")[::-1], 2)


def lpos(n, s):
    return 4 * (16 * s + rev(n, 4)) if n < 16 else 1024 + 4 * (8 * s + rev(n - 16, 3))


TN = [(RUN[n >> 3] + (n & 7)) % 3 for n in range(24)]
SPECIAL = {n: i for i, n in enumerate(sorted(8 * RUN.index(r) + i for r in (0, 2) for i in (0, 7)))}
for b_ in range(2):
    ch = sorted(chunk_of(b_, n, s) for n in range(24) for s in range(16))
    assert ch == sorted(3 * r + k for r in {c // 3 for c in ch} for k in range(3))
    assert all(chunk_of(b_, n, s) % 3 == (TN[n] + 2 * b_ + s) % 3 for n in range(24) for s in range(16))
    assert len({tidx(b_, c // 3) for c in ch}) == 128 and max(tidx(b_, c // 3) for c in ch) == 128


def gen(P):
    o = []
    e = o.append
    RING, PD = 24, P.pd
    sh, deep = P.sh, P.deep
    PRE = P.pre
    TP = P.tp
    LAG = 2
    assert deep <= PD - 1 and sh <= deep and PD <= PRE
    SL = 512
    SA = 16 * SL

    FL = 0
    ST = 256
    TB = 512
    QB = TB + 129 * 384
    LGB = QB + 16 * 768 + 1536
    SCB = LGB + 16 * 1536
    PB = SCB + 2 * SA
    PK = PB + 49152
    LDS = PK + 6144
    assert 81920 < LDS <= 163840
    W_REC = 0x400000
    W_RK = 0x780000
    W_PL = 0x7c0000

    sQ, sQK, sKS, sKZ, sQV, sVS, sVZ, sQC = 4, 6, 8, 10, 12, 14, 16, 18
    sQS, sKC, sKSN, sOUT = 20, 22, 24, 26
    sDBG, sWS = 28, 30
    rA, rB = 32, 36
    sW, sJ, sC, sK, sT0, sT1, sF, sNEED = 40, 41, 42, 43, 44, 45, 46, 47
    sMSK = 48
    sOF = 51
    sPB = 60
    sCO = 61
    sZ = 64
    sMASK, sSCALE, sH = 66, 67, 68
    sS = 69
    sX = 70
    sRF = 80
    sRT = 82
    sST = 84
    sN = 90
    sB = 91
    sVO = 92
    sSP = 94
    sI = 95
    sSE, sCU = 81, 79
    sLO = 78
    sO = 3
    sCN = 96
    sOH, sTG = 98, 99

    va = Alloc(1)
    vT16, vF, vZ, vC16 = [va.take(1) for _ in range(4)]
    voff = va.take(7)
    vTA = va.take(7)
    vQA = va.take(3)
    vPA = va.take(3)
    vLG = va.take(2)
    vLB = va.take(2)
    vLV = va.take(2)
    A = va.take(2)
    LG = va.take(2)
    M1, M2, M3 = [va.take(1) for _ in range(3)]
    bc = va.take(2, 2)
    dacc = va.take(2, 2)
    wt = va.take(4, 2)
    vtr, vPW, vPS, vN, vSum, vSu2, vBA = [va.take(1) for _ in range(7)]
    vPL = va.take(4)
    vBI = va.take(2, 2)
    smp = va.take(8, 4)
    qa = va.take(12, 4)
    tab = va.take(24, 4)
    tmp = va.take(12, 4)
    ring = va.take(4 * RING, 4)
    NV = va.n
    acc = qa

    here = os.path.dirname(os.path.abspath(__file__))
    sch = [[int(x) for x in ln.split()] for ln in open(os.path.join(here, P.sch))]
    inv, qcs = [[int(x, 16) for x in ln.split()] for ln in open(os.path.join(here, "consts.txt"))]
    cj = lambda g: (g >> 4, (g & 7) * 2 + ((g >> 3) & 1))
    ent = {g: sch[16 * cj(g)[0] + cj(g)[1]] for g in range(256)}
    cl = lambda g, k: ent[g][0] if k == 5 else ent[g][1] if k == 10 else g >> 4
    assert sorted(16 * ent[g][2] + cl(g, ent[g][2]) for g in range(256)) == list(range(256))
    ordtab = []
    for g in range(256):
        o_, od = ent[g][2], ent[g][3:]
        assert sorted(od) == list(range(16)) and od[15] == o_
        con = [x for x in range(256) if x != g and cl(x, o_) == cl(g, o_)] + [g]
        assert sorted(cj(x)[1] for x in con) == list(range(16))
        nib = sum(k << (4 * t) for t, k in enumerate(range(16) if "i" in P.xp else od))
        cn = sum((g >> 4 if "c" in P.xp else cl(g, k)) << (4 * k) for k in range(16))
        ctr = [g >> 4, 16 + cl(g, 5), 32 + cl(g, 10)]
        first = {5: 1, 10: 2}.get(o_, 0)
        ctr = [ctr[first]] + [x for i, x in enumerate(ctr) if i != first]
        u16 = [16 * x + ent[x][3:].index(o_) for x in con]
        assert all(v % 16 < 15 for v in u16[:15])
        ordtab += [nib & 0xffffffff, nib >> 32, cn & 0xffffffff, cn >> 32, 16 * o_ + cl(g, o_), ctr[0] | ctr[1] << 8 | ctr[2] << 16, o_, 0]
        ordtab += [u16[2 * i] | u16[2 * i + 1] << 16 for i in range(8)]

    def ld(n):
        rr = rA if n < 24 else rB
        n %= 24
        so = f"s{sOF + (n & 7)}" if n & 7 else "0"
        vo = voff + (3 + SPECIAL[n] if n in SPECIAL and "x" not in P.xp else n >> 3)
        e(f"  buffer_load_dwordx4 {vr(ring + 4 * n, 4)}, {vr(vo)}, s[{rr}:{rr + 3}], {so} offen nt")

    ORD = {"K": P.ok, "V": P.ov}
    DIST = {"K": PRE, "V": PD}
    bu = [int(x) for x in P.bu]
    th = [int(x) for x in P.th.split(",")]
    assert PD % 3 == 0 and PRE % 3 == 0 and deep == sh + 1

    def memops(ph, a):
        r = []
        for i, c in enumerate(ORD[ph]):
            if c == "X" and P.ctl:
                r += [(i, "B")] * (a == P.ba) + [(i, "S"), (i, "Q")]
            if c == "L":
                r.append((i, "L"))
        return r

    def back(ph, a, i):
        r = [c for j, c in memops(ph, a) if j < i][::-1]
        for k in range(1, 8):
            r += [c for _, c in memops(ph, (a - k) % 8)][::-1]
        return r

    def cnt(ph, a, i, depth):
        depth += bu[ORD[ph][:i].count("L")]
        r = back(ph, a, i)
        return [k + 1 for k, c in enumerate(r) if c == "L"][depth - 2] if depth > 1 else 0

    def swait(ph, a):
        assert ORD[ph].index("E") < ORD[ph].index("X")
        r = back(ph, a, ORD[ph].index("E"))
        return [k for k, c in enumerate(r) if c == "Q"][LAG - 1]

    plain = {}

    def verify():
        ops = [("L", i) for i in range(PRE)]
        done = ORD["K"][:ORD["K"].index("L")].count("b")
        for g in range(256):
            ph, a = "KV"[g >= 128], g % 8
            if 3 * g + PD >= 768 or 128 <= g < 128 + (PRE - PD) // 3:
                for n in range(3 * g, 3 * g + 4 - (g == 255)):
                    plain[n] = len(ops) - 1 - ops.index(("L", n))
                done = max(done, len(ops) - plain[min(3 * g + 3, 767)])
                continue
            nb = nl = 3 * g
            for i, c in enumerate(ORD[ph]):
                if c == "E" and P.ctl:
                    done = max(done, len(ops) - swait(ph, a))
                if c == "X" and P.ctl:
                    ops += [("X", 0)] * (1 + (a == P.ba))
                if c == "b":
                    assert ("L", nb) in ops[:done], nb
                    nb += 1
                if c == "L":
                    done = max(done, len(ops) - cnt(ph, a, i, deep if P.ctl else sh))
                    ops.append(("L", nl + DIST[ph]))
                    nl += 1
    verify()
    lab = [0]
    rare = []

    def flush():
        o.extend(rare)
        rare.clear()

    def issue(ph, a, i):
        j = ORD[ph][:i].count("L")
        lab[0] += 1
        if P.ctl and j == TP:
            e(f"  s_cmp_lt_i32 s{sS}, {P.lo}")
            e(f"  s_cbranch_scc1 L_t{lab[0]}")
            rare.extend([f"L_t{lab[0]}:", f"  s_waitcnt vmcnt({cnt(ph, a, i, P.thr + 1)})", f"  s_branch L_p{lab[0]}"])
        if P.ctl:
            t = (P.hi if ph == "K" else P.hiv) + th[j]
            assert t >= P.lo
            e(f"  s_cmp_gt_i32 s{sS}, {t}")
            if t < 0 and P.inv:
                e(f"  s_cbranch_scc0 L_q{lab[0]}")
                rare.extend([f"L_q{lab[0]}:", f"  s_waitcnt vmcnt({cnt(ph, a, i, sh)})", f"  s_branch L_p{lab[0]}"])
                e(f"  s_waitcnt vmcnt({cnt(ph, a, i, deep)})")
                e(f"L_p{lab[0]}:")
            else:
                e(f"  s_cbranch_scc1 L_p{lab[0]}")
                e(f"  s_waitcnt vmcnt({cnt(ph, a, i, sh)})")
                e(f"L_p{lab[0]}:")
                e(f"  s_waitcnt vmcnt({cnt(ph, a, i, deep)})")
        else:
            e(f"  s_waitcnt vmcnt({cnt(ph, a, i, sh)})")
        ld(3 * a + j + DIST[ph])
        if ph == "V" and 3 * a + j + 1 == P.mg:
            e(f"  ds_write_b32 {vr(vPW)}, {vr(M1)} offset:{FL + 32}")
        if ph == "V" and 3 * a + j + 1 == P.ml:
            e(f"  ds_write_b32 {vr(vPW)}, {vr(M1)} offset:{FL + 48}")

    def evaluate(ph, a):
        if not P.ctl:
            return
        sm = smp + 4 * (a % LAG)
        e(f"  s_waitcnt vmcnt({swait(ph, a)})")
        if a == (P.ba + LAG) % 8:
            e(f"  v_add_u32 {vr(vBI)}, {vr(vBI)}, {vr(vBI + 1)}")
        e(f"  s_add_u32 s{sT0}, s{sLO}, 0x03030303")
        e(f"  v_msad_u8 {vr(vSum)}, s{sLO}, {vr(sm)}, 0")
        e(f"  v_msad_u8 {vr(vSu2)}, s{sT0}, {vr(sm)}, 0")
        if a == (P.ba + LAG) % 8:
            e(f"  v_readfirstlane_b32 s{sB}, {vr(vBI)}")
        for k in range(1, 3):
            e(f"  v_msad_u8 {vr(vSum)}, s{sLO}, {vr(sm + k)}, {vr(vSum)}")
            e(f"  v_msad_u8 {vr(vSu2)}, s{sT0}, {vr(sm + k)}, {vr(vSu2)}")
        e(f"  v_sub_u32 {vr(vSum)}, {vr(vSum)}, {vr(vSu2)}")
        e(f"  s_add_u32 s{sLO}, s{sLO}, 0x01010101")
        e(f"  v_readlane_b32 s{sMASK}, {vr(vSum)}, 0")
        e(f"  v_readlane_b32 s{sSCALE}, {vr(vSum)}, 1")

    def decide(ph, a):
        if not P.ctl:
            return
        cur, old = (sI, sCO) if a & 1 else (sCO, sI)
        e(f"  s_add_u32 s{cur}, s{sMASK}, s{sSCALE}")
        e(f"  s_add_u32 s{sS}, s{cur}, s{old}")
        e(f"  s_ashr_i32 s{sS}, s{sS}, 1")
        e(f"  s_add_u32 s{sS}, s{sS}, s{sB}")
        if ph == "K" and a < P.start:
            e(f"  s_cmp_eq_u32 s{sK}, 0")
            e(f"  s_cselect_b32 s{sS}, {P.s0}, s{sS}")

    def exchange(a):
        if not P.ctl:
            return
        e("  s_mov_b64 exec, 1")
        if a == P.ba:
            e(f"  global_load_dwordx2 {vr(vBI, 2)}, {vr(vBA)}, s[{sWS}:{sWS + 1}] sc1")
        e(f"  global_store_byte {vr(vPS)}, {vr(vN)}, s[{sWS}:{sWS + 1}]")
        e("  s_mov_b64 exec, 3")
        e(f"  global_load_dwordx3 {vr(smp + 4 * (a % LAG), 3)}, {vr(vPL + a % 4)}, s[{sWS}:{sWS + 1}] sc1")
        e(f"  v_add_u32 {vr(vN)}, 1, {vr(vN)}")
        e("  s_mov_b64 exec, -1")

    def srd_head(rr, sp, sh_):
        e(f"  s_mul_i32 s{sT0}, s{sh_}, {HB}")
        e(f"  s_add_u32 s{rr}, s{sp}, s{sT0}")
        e(f"  s_addc_u32 s{rr + 1}, s{sp + 1}, 0")

    def vstep_k(dst, src):
        e(f"  s_lshl_b32 s{dst}, s{src}, 2")
        e(f"  s_lshr_b64 s[{sZ}:{sZ + 1}], s[{sVO}:{sVO + 1}], s{dst}")
        e(f"  s_and_b32 s{dst}, s{sZ}, 15")

    def head_of(dst, slot):
        e(f"  s_lshl_b32 s{sT0}, s{slot}, 2")
        e(f"  s_lshr_b64 s[{sZ}:{sZ + 1}], s[{sCN}:{sCN + 1}], s{sT0}")
        e(f"  s_and_b32 s{sZ}, s{sZ}, 15")
        e(f"  s_lshl4_add_u32 s{dst}, s{slot}, s{sZ}")

    def budget(ok):
        e(f"  s_cmp_eq_u32 s{sSP}, 0")
        e(f"  s_cbranch_scc1 {ok}")
        e(f"  s_sub_u32 s{sSP}, s{sSP}, 1")

    def flagwait(name, off):
        e(f"L_{name}:")
        e("  s_waitcnt lgkmcnt(0)")
        e(f"  v_readfirstlane_b32 s{sF}, {vr(vF)}")
        e(f"  s_cmp_ge_u32 s{sF}, s{sNEED}")
        e(f"  s_cbranch_scc0 L_{name}_no")
        e(f"L_{name}_ok:")
        rare.extend([f"L_{name}_no:", f"  s_cmp_eq_u32 s{sSP}, 0", f"  s_cbranch_scc1 L_{name}_ok", f"  s_sub_u32 s{sSP}, s{sSP}, 1",
                     f"  ds_read_b32 {vr(vF)}, {vr(vZ)} offset:{off}", f"  s_branch L_{name}"])

    def tr():
        if P.trace:
            e(f"  {'s_memtime' if 'm' in P.xp else 's_memrealtime'} s[88:89]")
            e("  s_waitcnt lgkmcnt(0)")
            e(f"  v_writelane_b32 {vr(vtr)}, s88, m0")
            e("  s_add_u32 m0, m0, 1")
            e("  s_min_u32 m0, m0, 63")

    def die_base(dst):
        e(f"  s_getreg_b32 s{sSE}, hwreg(HW_REG_HW_ID, 8, 7)")
        e(f"  s_getreg_b32 s{dst}, hwreg(HW_REG_XCC_ID, 0, 3)")
        e(f"  s_and_b32 s{sCU}, s{sSE}, 15")
        e(f"  s_lshr_b32 s{sSE}, s{sSE}, 5")
        e(f"  s_mul_i32 s{dst}, s{dst}, 4352")
        e(f"  s_add_u32 s{dst}, s{dst}, {W_PL}")

    ha = Alloc(16)
    l, u, h0, h1, h2, h3 = [ha.take(1) for _ in range(6)]
    qo, wa, wb, sgn, sgx, sg2 = [ha.take(1) for _ in range(6)]
    ro = ha.take(8)
    vL16, vCNT, vDB, vOne, vFA, vFI, vFR, vFX, vFB, vEL, vCL, vSa = [ha.take(1) for _ in range(12)]
    z4 = ha.take(4, 4)
    cs = ha.take(8, 4)
    sc = ha.take(4, 4)
    qn = ha.take(4, 4)
    x = ha.take(32, 4)
    pr = ha.take(4, 4)
    fo = ha.take(4, 4)
    rec = ha.take(32, 4)
    blk = ha.take(24, 4)
    st4 = ha.take(4, 4)
    ra = ha.take(16)
    assert ha.n <= NV and vZ < 16

    invX, invY, tK, tA, tN, tO = tmp, tmp + 4, tmp + 8, tab, tab + 4, tab + 8
    PC0 = 20 + 8 * P.stamp + 16 * (P.dly > 0)
    D_INV, D_QCS, D_END = 256, 768, 1152
    NF = P.nf
    assert RUN[0] == 1 and NF <= 8
    e(HEADER.rstrip("\n"))
    e(f"; @launch grid=(256,1,1) block=(320,1,1) lds={LDS}")
    for ln in ABOUT.strip("\n").split("\n"):
        e("; " + ln)
    e('.amdgcn_target "amdgcn-amd-amdhsa--gfx950"')
    e(".text")
    e(f".globl {NAME}_kernel")
    e(".p2align 8")
    e(f".type {NAME}_kernel,@function")
    e(f"{NAME}_kernel:")
    e("  s_cmpk_ge_u32 s2, 0x100")
    e("  s_cbranch_scc1 L_end")
    if P.dly:
        e("; diagnostic build only: half of the dies start late")
        e(f"  s_getreg_b32 s4, hwreg(HW_REG_XCC_ID, {P.dlb}, 1)")
        e("  s_cmp_eq_u32 s4, 0")
        e("  s_cbranch_scc1 L_dly")
        e(f"  s_sleep {P.dly}")
        e("L_dly:")
    if P.stamp:
        e(f"  s_memrealtime s[{sST}:{sST + 1}]")
    e("  s_load_dwordx16 s[4:19], s[0:1], 0")
    e(f"  s_getpc_b64 s[{sZ}:{sZ + 1}]")
    e("L_pc:")
    e("  v_cmp_gt_u32 vcc, 64, v0")
    e(f"  v_lshlrev_b32 {vr(vT16)}, 4, v0")
    e(f"  s_lshr_b32 s{sC}, s2, 4")
    e(f"  s_and_b32 s{sH}, s2, 7")
    e(f"  s_lshl3_add_u32 s{sH}, s{sC}, s{sH}")
    e(f"  s_movk_i32 s{sNEED}, 768")
    e("  s_cbranch_vccz L_s0")
    e(f"  v_lshl_add_u32 {vr(h0)}, s{sC}, 6, v0")
    e(f"  v_mul_u32_u24 {vr(h0)}, {P.tst}, {vr(h0)}")
    e(f"  global_load_dword {vr(h3)}, {vr(h0)}, s[{sZ}:{sZ + 1}] offset:{D_END - PC0} {P.cf}")
    e(f"  v_and_b32 {vr(vL16)}, 0x1f0, {vr(vT16)}")
    e(f"  global_load_dwordx4 {vr(pr, 4)}, {vr(vL16)}, s[{sZ}:{sZ + 1}] offset:{D_QCS - PC0}")
    e("  s_branch L_helper")
    e("L_s0:")
    e(f"  v_and_b32 {vr(vC16)}, 0xf0, {vr(vT16)}")
    e(f"  global_load_dwordx4 {vr(invX, 4)}, {vr(vC16)}, s[{sZ}:{sZ + 1}] offset:{D_INV - PC0}")
    e(f"  global_load_dwordx4 {vr(invY, 4)}, {vr(vC16)}, s[{sZ}:{sZ + 1}] offset:{D_INV + 256 - PC0}")
    e(f"  s_mul_i32 s{sT0}, s{sH}, 196608")
    e(f"  s_and_b32 s{sT1}, s2, 8")
    e(f"  s_lshl_b32 s{sT1}, s{sT1}, 12")
    e(f"  s_add_u32 s{sT0}, s{sT0}, s{sT1}")
    e(f"  s_add_u32 s{sT0}, s{sT0}, {65536 * RUN[0] - 1024 + 4096}")
    e(f"  v_add_u32 {vr(tA)}, s{sT0}, {vr(vT16)}")
    for k in range(1, (NF + 1) // 2):
        e(f"  v_add_u32 {vr(tA + k)}, {8192 * k}, {vr(tA)}")
    e("  s_waitcnt lgkmcnt(0)")
    for n in range(NF):
        e(f"  global_load_dwordx4 {vr(ring + 4 * n, 4)}, {vr(tA + n // 2)}, s[{sQK}:{sQK + 1}] offset:{4096 * (n % 2) - 4096} nt")
    e("  s_branch L_s1")
    e("L_b0:")
    e(f".if (L_b0 - {NAME}_kernel > {D_INV}) || (L_pc - {NAME}_kernel != {PC0})")
    e('.error "entry block layout"')
    e(".endif")
    e(".p2align 8")
    e(".type L_inv,@object")
    e("L_inv:")
    tb = inv[:64] + inv[64:] + inv[64:]
    for k in range(0, 128, 8):
        e("  .long " + ", ".join(f"{v:#x}" for v in tb[k:k + 8]))
    e(".type L_qcs,@object")
    e("L_qcs:")
    for k in range(0, 96, 8):
        e("  .long " + ", ".join(f"{v:#x}" for v in qcs[k:k + 8]))

    def common():
        e(f"  s_load_dwordx8 s[24:31], s[0:1], 80")
        e(f"  s_lshl_b32 s{sT0}, s2, 6")
        e(f"  s_add_u32 s{sT0}, s{sT0}, L_order-L_pc")
        e(f"  s_add_u32 s{sRT}, s{sZ}, s{sT0}")
        e(f"  s_addc_u32 s{sRT + 1}, s{sZ + 1}, 0")
        e(f"  s_load_dwordx2 s[{sVO}:{sVO + 1}], s[{sRT}:{sRT + 1}], 0")
        e(f"  s_load_dwordx2 s[{sCN}:{sCN + 1}], s[{sRT}:{sRT + 1}], 8")
        e(f"  v_mov_b32 {vr(vZ)}, 0")
        e(f"  s_mov_b32 s{sSP}, {P.bound}")
        e(f"  s_bfe_u32 s{sJ}, s2, 0x10003")

    PFR = [8, 10, 14, 16, 18, 20, 22, 72, 74, 76, 4, 86]
    pfn = [0]

    def pf():
        if P.tfine:
            e(f"  {'s_memtime' if 'm' in P.xp else 's_memrealtime'} s[{PFR[pfn[0]]}:{PFR[pfn[0]] + 1}]")
            pfn[0] += 1

    e("L_s1:")
    w_, s_, vAD, vC8, t0, t1 = wt, wt + 1, wt + 2, wt + 3, dacc, dacc + 1
    vRF, pos = vT16, tK + 3
    if P.trace:
        e(f"  v_mov_b32 {vr(vtr)}, 0")
        e("  s_mov_b32 m0, 0")
    pf()
    e("  v_subrev_u32 v0, 64, v0")
    e("  s_setprio 1")
    common()
    e(f"  v_lshrrev_b32 {vr(w_)}, 6, v0")
    e(f"  v_lshrrev_b32 {vr(s_)}, 4, v0")
    e(f"  v_and_b32 {vr(vC8)}, 0x70, {vr(vC16)}")
    e(f"  v_readfirstlane_b32 s{sW}, {vr(w_)}")
    e(f"  v_add_u32 {vr(vAD)}, {vr(vC8)}, {vr(s_)}")
    e(f"  s_mul_i32 s{sT0}, s{sJ}, 44")
    e(f"  s_sub_u32 s{sT0}, 86, s{sT0}")
    e(f"  v_cmp_eq_u32 vcc, s{sT0}, {vr(vAD)}")
    e(f"  v_mov_b32 {vr(t0)}, 0x80")
    e(f"  s_and_b32 s{sH}, s2, 7")
    e(f"  v_cndmask_b32 {vr(vAD)}, {vr(vAD)}, {vr(t0)}, vcc")
    e(f"  v_mul_u32_u24 {vr(t0)}, 381, {vr(vAD)}")
    e(f"  s_mul_i32 s{sT0}, s{sJ}, 43")
    e(f"  v_add_u32 {vr(t0)}, 2, {vr(t0)}")
    e(f"  s_lshl_b32 s{sT1}, s{sH}, 8")
    e(f"  v_lshrrev_b32 {vr(t0)}, 14, {vr(t0)}")
    assert all((381 * i + 2) >> 14 == (i >= 43) + (i >= 86) for i in range(129))
    e(f"  s_add_u32 s{sT0}, s{sT0}, s{sT1}")
    e(f"  v_mad_u32_u24 {vr(t0)}, {vr(t0)}, 42, {vr(vAD)}")
    e(f"  v_add_u32 {vr(t0)}, s{sT0}, {vr(t0)}")
    e(f"  v_cvt_f32_u32 {vr(vRF)}, {vr(t0)}")
    e(f"  v_mul_u32_u24 {vr(vAD)}, 384, {vr(vAD)}")
    e(f"  s_mov_b32 s{rA + 2}, {HB}")
    e(f"  s_mov_b32 s{rA + 3}, 0x20000")
    srd_head(rA, sQK, sC)
    e(f"  s_mul_i32 s{sT0}, s{sH}, 6")
    e(f"  s_add_u32 s{sT0}, s{sT0}, s{sJ}")
    e(f"  s_lshl_b32 s{sT0}, s{sT0}, 15")
    e(f"  v_lshl_add_u32 {vr(voff + RUN.index(0))}, v0, 4, s{sT0}")
    for k in (1, 2):
        e(f"  v_add_u32 {vr(voff + RUN.index(k))}, {65536 * k:#x}, {vr(voff + RUN.index(0))}")
    for i in range(1, 8):
        e(f"  s_movk_i32 s{sOF + i}, {4096 * i}")
    nk = [NF]
    assert PRE <= RING and max(int(v) for v in P.kp_.split(",")[:P.su + 1]) <= min(SPECIAL)

    def k_loads(hi):
        while nk[0] < min(hi, PRE):
            ld(nk[0])
            nk[0] += 1

    def toff_(n):
        run = RUN[n >> 3]
        return 384 * (16 * (((n & 7) + run) // 3) + 38 * run)

    def setup():
        e("; per chunk class k: q operand, table and partial addresses")
        e(f"  s_lshl1_add_u32 s{sF}, s{sJ}, s{sW}")
        e(f"  s_lshl_b32 s{sF}, s{sF}, 1")
        e(f"  s_lshr_b32 s{sF}, 0x4924, s{sF}")
        e(f"  v_bfe_u32 {vr(t1)}, v0, 4, 2")
        e(f"  v_lshl_add_u32 {vr(t1)}, {vr(t1)}, 2, {vr(vC16)}")
        e(f"  v_mad_u32_u24 {vr(vF)}, {vr(w_)}, s{sNEED}, {vr(t1)}")
        e(f"  v_add_u32 {vr(vF)}, {PB - 3072}, {vr(vF)}")
        e(f"  s_mul_i32 s{sT1}, s{sJ}, {43 * 384}")
        e(f"  s_sub_u32 s{sT1}, {TB}, s{sT1}")
        e(f"  v_lshl_add_u32 {vr(vSum)}, s{sJ}, 7, {vr(s_)}")
        for k in range(3):
            e(f"  s_bfe_u32 s{sT0}, s{sF}, {(2 << 16) | 2 * k:#x}")
            e(f"  v_lshl_add_u32 {vr(vPA + k)}, s{sT0}, 8, {vr(vF)}")
            if k:
                e(f"  v_add_u32 {vr(vSum)}, 16, {vr(vSum)}")
            e(f"  v_mul_u32_u24 {vr(t0)}, 171, {vr(vSum)}")
            e(f"  v_lshrrev_b32 {vr(t0)}, 9, {vr(t0)}")
            e(f"  v_mad_i32_i24 {vr(t1)}, {vr(t0)}, -3, {vr(vSum)}")
            e(f"  v_lshl_add_u32 {vr(t1)}, {vr(t1)}, 8, {vr(vC16)}")
            e(f"  v_add_u32 {vr(vQA + k)}, {QB}, {vr(t1)}")
            e(f"  v_subrev_u32 {vr(vSu2)}, 384, {vr(t1)}")
            e(f"  v_min_u32 {vr(t1)}, {vr(t1)}, {vr(vSu2)}")
            e(f"  v_mul_u32_u24 {vr(t0)}, 384, {vr(t0)}")
            e(f"  v_add3_u32 {vr(vTA + k)}, {vr(t0)}, {vr(t1)}, s{sT1}")
        e(f"  v_lshl_add_u32 {vr(vSum)}, s{sJ}, 4, {vr(s_)}")
        for n, i in SPECIAL.items():
            run, sx = RUN[n >> 3], 15 * (n & 7 == 7)
            b = int(run == 0)
            g0, g1 = 256 * run + 128 * b + 16 * (n & 7) + sx, chunk_of(b, n, sx)
            dt = 384 * (tidx(b, g1 // 3) - (g0 // 3 - 43 * b - 42 * run))
            e(f"  v_cmp_eq_u32 vcc, {16 * b + sx}, {vr(vSum)}")
            e(f"  v_add_u32 {vr(t0)}, {256 * (g1 - g0) & 0xffffffff:#x}, {vr(voff + (n >> 3))}")
            e(f"  v_add_u32 {vr(t1)}, {toff_(n)}, {vr(vTA + TN[n])}")
            e(f"  v_add_u32 {vr(vSu2)}, {dt & 0xffffffff:#x}, {vr(t1)}")
            e(f"  v_cndmask_b32 {vr(voff + 3 + i)}, {vr(voff + (n >> 3))}, {vr(t0)}, vcc")
            e(f"  v_cndmask_b32 {vr(vTA + 3 + i)}, {vr(t1)}, {vr(vSu2)}, vcc")
        e(f"  v_lshlrev_b32 {vr(vLB)}, 2, v0")
        e(f"  v_add_u32 {vr(vLB)}, {LGB}, {vr(vLB)}")
        e(f"  v_lshrrev_b32 {vr(t1)}, 1, v0")
        e(f"  v_lshlrev_b32 {vr(t1)}, 2, {vr(t1)}")
        e(f"  v_add_u32 {vr(vLB + 1)}, {LGB + 1024}, {vr(t1)}")
        e(f"  v_subrev_u32 {vr(vLG)}, 1536, {vr(vLB)}")
        e(f"  v_subrev_u32 {vr(vLG + 1)}, 1536, {vr(vLB + 1)}")
        e(f"  v_lshlrev_b32 {vr(vPW)}, 2, {vr(w_)}")
        e(f"  s_mov_b32 s{sMSK}, 0xcccccccc")
        e(f"  s_mov_b32 s{sMSK + 1}, s{sMSK}")
        e(f"  s_mov_b32 s{sMSK + 2}, 0xaaaaaaaa")
        e(f"  s_mov_b32 s{sMSK + 3}, s{sMSK + 2}")
        e(f"  s_mov_b32 s{rB + 2}, {HB}")
        e(f"  s_mov_b32 s{rB + 3}, 0x20000")
        e(f"  s_mov_b32 s{sK}, 0")
        if P.ctl:
            e("; progress slots: this wave writes one byte of line (half, w) and samples the lines of the other half")
            die_base(sF)
            e(f"  s_add_u32 s{sT0}, s{sF}, 2048")
            e(f"  v_mov_b32 {vr(vBA)}, s{sT0}")
            e(f"  s_and_b32 s{sT1}, s{sSE}, 2")
            e(f"  s_lshl_b32 s{sT1}, s{sT1}, 9")
            e(f"  s_lshl_b32 s{sT0}, s{sW}, 8")
            e(f"  s_add_u32 s{sT0}, s{sT0}, s{sT1}")
            e(f"  s_add_u32 s{sT0}, s{sT0}, s{sF}")
            e(f"  s_add_u32 s{sT0}, s{sT0}, s{sCU}")
            e(f"  s_and_b32 s{sSE}, s{sSE}, 1")
            e(f"  s_lshl_b32 s{sSE}, s{sSE}, 4")
            e(f"  s_add_u32 s{sT0}, s{sT0}, s{sSE}")
            e(f"  v_mov_b32 {vr(vPS)}, s{sT0}")
            e(f"  s_xor_b32 s{sT1}, s{sT1}, 1024")
            e(f"  s_add_u32 s{sF}, s{sF}, s{sT1}")
            e(f"  v_and_b32 {vr(vN)}, 1, v0")
            e(f"  v_lshl_add_u32 {vr(vN)}, {vr(vN)}, 4, s{sF}")
            for k in range(4):
                e(f"  v_add_u32 {vr(vSum)}, {k}, {vr(w_)}")
                e(f"  v_and_b32 {vr(vSum)}, 3, {vr(vSum)}")
                e(f"  v_lshl_add_u32 {vr(vPL + k)}, {vr(vSum)}, 8, {vr(vN)}")
            e(f"  s_mov_b32 s{sLO}, {(-(LAG + 2) * 0x01010101) & 0xffffffff:#x}")
            for k in range(4 * LAG):
                e(f"  v_mov_b32 {vr(smp + k)}, 0")
            for k in range(2):
                e(f"  v_mov_b32 {vr(vBI + k)}, 0")
            e(f"  v_mov_b32 {vr(vN)}, 0")
            e(f"  s_mov_b32 s{sB}, 0")
            e(f"  s_mov_b32 s{sS}, {P.s0}")
            e(f"  s_mov_b32 s{sI}, 0")
            e(f"  s_mov_b32 s{sCO}, 0")

    def sincos(dst, iv):
        for h in (0, 2):
            e(f"  v_pk_mul_f32 {vr(tA + h, 2)}, {vr(iv + h, 2)}, {vr(tK + 2, 2)} op_sel:[0,1] op_sel_hi:[1,1]")
        if iv == invY:
            for h in (0, 2):
                e(f"  v_pk_mul_f32 {vr(tN + h, 2)}, {vr(tA + h, 2)}, {vr(tK, 2)} op_sel_hi:[1,0]")
        else:
            for h in (0, 2):
                e(f"  v_pk_fma_f32 {vr(tN + h, 2)}, {vr(tA + h, 2)}, {vr(tK, 2)}, {vr(tK, 2)} op_sel:[0,0,1] op_sel_hi:[1,0,1]")
            for h in (0, 2):
                e(f"  v_pk_add_f32 {vr(tN + h, 2)}, {vr(tN + h, 2)}, {vr(tK, 2)} op_sel:[0,1] op_sel_hi:[1,1] neg_lo:[0,1] neg_hi:[0,1]")
            for h in (0, 2):
                e(f"  v_pk_fma_f32 {vr(tN + h, 2)}, {vr(tA + h, 2)}, {vr(tK, 2)}, {vr(tN + h, 2)} op_sel_hi:[1,0,1] neg_lo:[0,0,1] neg_hi:[0,0,1]")
            for h in (0, 2):
                e(f"  v_pk_fma_f32 {vr(tN + h, 2)}, {vr(tA + h, 2)}, {vr(tK + 2, 2)}, {vr(tN + h, 2)} op_sel_hi:[1,0,1]")
        for i in range(4):
            e(f"  v_cos_f32 {vr(tA + i)}, {vr(tN + i)}")
        for i in range(4):
            e(f"  v_sin_f32 {vr(tN + i)}, {vr(tN + i)}")
        for i in range(4):
            e(f"  v_cvt_pk_bf16_f32 {vr(dst + i)}, {vr(tA + i)}, {vr(tN + i)}")

    kp = [int(v) for v in P.kp_.split(",")]

    def chunk(i):
        a = 2 * (i // 3)
        d = tO + 4 * (i & 1)
        bc_ = lambda x, m: f"row_newbcast:{x} row_mask:0xf bank_mask:{m:#x}"
        if i % 3 == 1:
            e(f"  v_mov_b32_dpp {vr(pos)}, {vr(vRF)} {bc_(a + 1, 12)}")
            e(f"  v_add_u32_dpp {vr(vF)}, {vr(vAD)}, {vr(vC8)} {bc_(a, 3)}")
            e(f"  v_add_u32_dpp {vr(vF)}, {vr(vAD)}, {vr(vC8)} {bc_(a + 1, 12)}")
            sincos(d, invY)
            e(f"  ds_write_b128 {vr(vF)}, {vr(d, 4)} offset:{TB + 256}")
        else:
            a += i % 3 // 2
            e(f"  v_mov_b32_dpp {vr(pos)}, {vr(vRF)} {bc_(a, 15)}")
            e(f"  v_add_u32_dpp {vr(vF)}, {vr(vAD)}, {vr(vC16)} {bc_(a, 15)}")
            sincos(d, invX)
            e(f"  ds_write_b128 {vr(vF)}, {vr(d, 4)} offset:{TB}")

    def tab_read(a):
        for n in range(3 * a, 3 * a + 3):
            d = tab + 12 * (a & 1) + 4 * (n % 3)
            if n in SPECIAL:
                e(f"  ds_read_b128 {vr(d, 4)}, {vr(vTA + 3 + SPECIAL[n])}")
            else:
                e(f"  ds_read_b128 {vr(d, 4)}, {vr(vTA + TN[n])} offset:{toff_(n)}")

    c_hi = f32bits(1 / (2 * math.pi))
    c_lo = f32bits(1 / (2 * math.pi) - struct.unpack("<f", struct.pack("<I", c_hi))[0])
    e(f"  v_mov_b32 {vr(tK)}, {c_hi:#x}")
    e(f"  v_mov_b32 {vr(tK + 1)}, {f32bits(1.5 * 2 ** 23):#x}")
    e(f"  v_mov_b32 {vr(tK + 2)}, {c_lo:#x}")
    k_loads(kp[0])
    pf()
    e(f"  s_waitcnt vmcnt({nk[0]})")
    pf()
    for i in range(12):
        if i == P.su:
            setup()
            pf()
        chunk(i)
        k_loads(kp[i + 1])
        if i % 3 == 2:
            pf()
    k_loads(PRE)
    e(f"  v_mov_b32 {vr(bc)}, {f32bits(-7.5):#x}")
    e("  s_waitcnt lgkmcnt(0)")
    e("  s_barrier")
    pf()
    for k in range(3):
        e(f"  ds_read_b128 {vr(qa + 4 * k, 4)}, {vr(vQA + k)}")
    tab_read(0)
    e(f"  s_waitcnt vmcnt({PRE - ORD['K'][:ORD['K'].index('L')].count('b')})")
    pf()
    if P.tfine:
        e("  s_waitcnt lgkmcnt(0)")
        for k in range(pfn[0]):
            e(f"  v_writelane_b32 {vr(vtr)}, s{PFR[k]}, {k}")
        e(f"  s_mov_b32 m0, {pfn[0]}")

    def vfirst():
        e(f"  s_and_b32 s{sH}, s{sVO}, 15")
        e(f"  s_add_u32 s{sNEED}, s{sH}, 1")
        e(f"  ds_read_b32 {vr(vF)}, {vr(vZ)} offset:{FL + 20}")
        flagwait("a0", FL + 20)
        e(f"  s_mulk_i32 s{sH}, 1536")
        for k in range(2):
            e(f"  v_add_u32 {vr(vLV + k)}, s{sH}, {vr(vLB + k)}")
        e(f"  ds_read_b32 {vr(A)}, {vr(vLV)}")

    assert all(x[3] < 14 for x in sch)

    def knext():
        e("; next SRD: K head k + 1, or the V heads of steps 0 / 1 once K runs out")
        e(f"  s_add_u32 s{sH}, s{sK}, 1")
        e(f"  s_sub_u32 s{sT1}, s{sH}, 16")
        vstep_k(sF, sT1)
        e(f"  s_cmp_lt_u32 s{sH}, 16")
        e(f"  s_cselect_b32 s{sH}, s{sH}, s{sF}")
        e(f"  s_cselect_b32 s{sX}, s{sQK}, s{sQV}")
        e(f"  s_cselect_b32 s{sX + 1}, s{sQK + 1}, s{sQV + 1}")
        head_of(sH, sH)
        srd_head(rB, sX, sH)

    def kred(n):
        dpp = lambda d, x, how, m: e(f"  v_add_f32_dpp {vr(d)}, {vr(x)}, {vr(x)} {how} row_mask:0xf bank_mask:{m:#x}")
        dpp(M1, dacc, "row_ror:8", 12 if n & 1 else 3)
        if n % 2 == 1:
            e("  s_nop 1")
            dpp(M2, M1, "row_half_mirror", 10 if n & 2 else 5)
        if n % 4 == 3:
            e("  s_nop 1")
            dpp(M2 if n & 4 else M3, M2, "quad_perm:[2,3,0,1]", 15)
        if n % 8 == 7:
            e(f"  v_cndmask_b32_e64 {vr(M3)}, {vr(M3)}, {vr(M2)}, s[{sMSK}:{sMSK + 1}]")
            e("  s_nop 1")
            dpp((LG, M3, LG + 1)[n >> 3], M3, "quad_perm:[1,0,3,2]", 15)
        if n == 15:
            e(f"  v_cndmask_b32_e64 {vr(LG)}, {vr(LG)}, {vr(M3)}, s[{sMSK + 2}:{sMSK + 3}]")

    e(".p2align 6")
    e("L_k:")

    def kbody(n):
        k_, q_ = ring + 4 * n, qa + 4 * TN[n]
        for i in range(4):
            e(f"  v_dot2_f32_bf16 {vr(wt + i)}, {vr(tab + 12 * (n // 3 & 1) + 4 * (n % 3) + i)}, {vr(q_ + i)}, 0")
        for i in range(4):
            e(f"  v_cvt_f32_i32 {vr(k_ + i)}, {vr(k_ + i)}")
        if n >= 21:
            e(f"  ds_read_b128 {vr(q_, 4)}, {vr(vQA + TN[n])}")
        for h in range(2):
            e(f"  v_pk_add_f32 {vr(k_ + 2 * h, 2)}, {vr(k_ + 2 * h, 2)}, {vr(bc, 2)} op_sel_hi:[1,0]")
        e(f"  v_pk_mul_f32 {vr(dacc, 2)}, {vr(k_, 2)}, {vr(wt, 2)}")
        e(f"  v_pk_fma_f32 {vr(dacc, 2)}, {vr(k_ + 2, 2)}, {vr(wt + 2, 2)}, {vr(dacc, 2)}")
        e(f"  v_add_f32 {vr(dacc)}, {vr(dacc)}, {vr(dacc + 1)}")

    def kout():
        e(f"  v_mov_b32 {vr(vF)}, s{sK}")
        for k in range(2):
            e(f"  ds_write_b32 {vr(vLG + k)}, {vr(LG + k)}")
        e(f"  ds_write_b32 {vr(vPW)}, {vr(vF)} offset:{FL}")

    def group(ph, a, body, after, res):
        nb, pend = 3 * a, None
        od = ORD[ph]
        for i, c in enumerate(od):
            if pend is not None and c != "L":
                if od[i - 1] == "b":
                    e("  s_nop 1")
                after(pend)
                pend = None
            if c == "E":
                evaluate(ph, a)
                if od[i + 1] != "X":
                    decide(ph, a)
            if c == "X":
                exchange(a)
                if od[i - 1] == "E":
                    decide(ph, a)
            if c == "R" and a == 0:
                res()
            if c == "b":
                body(nb)
                pend = nb if after else None
                nb += 1
            if c == "L":
                issue(ph, a, i)
        if pend is not None:
            if od[-1] == "b":
                e("  s_nop 1")
            after(pend)

    for a in range(8):
        if a == 7:
            flagwait("qn", FL + 16)
        else:
            e("  s_waitcnt lgkmcnt(0)")
        tab_read((a + 1) % 8)
        if a == 6:
            e(f"  ds_read_b32 {vr(vF)}, {vr(vZ)} offset:{FL + 16}")
        group("K", a, kbody, kred, kout)
        if a == 1:
            knext()
        if a == 3:
            e(f"  s_add_u32 s{sT0}, s{sK}, 2")
            e(f"  s_min_u32 s{sNEED}, s{sT0}, 16")
            for k in range(3):
                e(f"  v_add_u32 {vr(vQA + k)}, 768, {vr(vQA + k)}")
            for k in range(2):
                e(f"  v_add_u32 {vr(vLG + k)}, 1536, {vr(vLG + k)}")
            e(f"  s_cmp_eq_u32 s{sK}, 15")
            e("  s_cbranch_scc1 L_kv")
            e("L_kw:")
        if a in (3, 7) or P.tfine:
            tr()
    assert sorted(TN[21:]) == [0, 1, 2] and TN[:3] == TN[3:6] and sorted(TN[:3]) == [0, 1, 2] and PRE <= 18
    e(f"  s_add_u32 s{sK}, s{sK}, 1")
    e(f"  s_mov_b64 s[{rA}:{rA + 1}], s[{rB}:{rB + 1}]")
    e(f"  s_cmp_lt_u32 s{sK}, 16")
    e("  s_cbranch_scc1 L_k")


    def vbody(n):
        v_ = ring + 4 * n
        e(f"  v_mov_b32_dpp {vr(bc)}, {vr(A + n // 16)} row_newbcast:{rev(n % 16, 4)} row_mask:0xf bank_mask:0xf")
        for i in range(4):
            e(f"  v_cvt_f32_i32 {vr(v_ + i)}, {vr(v_ + i)}")
        for h in range(2):
            d = 4 * TN[n] + 2 * h
            if n < 3:
                e(f"  v_pk_mul_f32 {vr(tmp + d, 2)}, {vr(v_ + 2 * h, 2)}, {vr(bc, 2)} op_sel_hi:[1,0]")
            else:
                e(f"  v_pk_fma_f32 {vr(acc + d, 2)}, {vr(v_ + 2 * h, 2)}, {vr(bc, 2)}, {vr((tmp if n < 6 else acc) + d, 2)} op_sel_hi:[1,0,1]")

    def vout(last=False):
        for j in range(3):
            e(f"  v_permlane32_swap_b32 {vr(acc + 4 * j)}, {vr(acc + 4 * j + 2)}")
            e(f"  v_permlane32_swap_b32 {vr(acc + 4 * j + 1)}, {vr(acc + 4 * j + 3)}")
        for j in range(3):
            e(f"  v_add_f32 {vr(acc + 4 * j)}, {vr(acc + 4 * j)}, {vr(acc + 4 * ((j + 1) % 3) + 2)}")
            e(f"  v_add_f32 {vr(acc + 4 * j + 1)}, {vr(acc + 4 * j + 1)}, {vr(acc + 4 * ((j + 1) % 3) + 3)}")
        for j in range(3):
            e(f"  v_permlane16_swap_b32 {vr(acc + 4 * j)}, {vr(acc + 4 * j + 1)}")
        for j in range(3):
            e(f"  v_add_f32 {vr(acc + 4 * j)}, {vr(acc + 4 * j)}, {vr(acc + 4 * ((j + 2) % 3) + 1)}")
        for j in range(3):
            e(f"  ds_write_b32 {vr(vPA + j)}, {vr(acc + 4 * j)}")
        if not last:
            e(f"  ds_write_b32 {vr(vPW)}, {vr(M1)} offset:{FL}")

    def vnext():
        e(f"  s_add_u32 s{sT1}, s{sK}, 1")
        e(f"  s_min_u32 s{sT1}, s{sT1}, 15")
        vstep_k(sH, sT1)
        e(f"  s_add_u32 s{sNEED}, s{sH}, 1")
        e(f"  s_mul_i32 s{sF}, s{sH}, 1536")
        head_of(sH, sH)
        srd_head(rB, sQV, sH)
        for k in range(2):
            e(f"  v_add_u32 {vr(vLV + k)}, s{sF}, {vr(vLB + k)}")

    NS, NT = (PRE - PD) // 3, 8 - PD // 3
    assert NS == 1 and NT <= 5 and max(P.mg, P.ml) <= 3 * NT
    e("L_vpre:")
    kout()
    e(f"  s_mov_b32 s{sK}, 0")
    e(f"  v_mov_b32 {vr(M1)}, 16")
    for n in range(3):
        e(f"  s_waitcnt vmcnt({plain[384 + n]})")
        vbody(n)
    e(f"  s_waitcnt vmcnt({plain[387]}) lgkmcnt(0)")
    e("  s_branch L_v1")
    flush()
    e("L_kv:")
    vfirst()
    e("  s_branch L_kw")
    flush()
    e(".p2align 6")
    e("L_v:")
    for a in range(8):
        if a == 1:
            e("L_v1:")
            e(f"  ds_read_b32 {vr(A + 1)}, {vr(vLV + 1)}")
        if a == NT:
            e(f"  s_cmp_eq_u32 s{sK}, 15")
            e("  s_cbranch_scc1 L_vt")
        if a in (5, 7):
            e("  s_waitcnt lgkmcnt(0)")
        if a == 5:
            e(f"  ds_read_b32 {vr(vF)}, {vr(vZ)} offset:{FL + 20}")
        if a == 6:
            flagwait("an", FL + 20)
            e(f"  ds_read_b32 {vr(A)}, {vr(vLV)}")
        group("V", a, vbody, None, vout)
        if a == 1:
            vnext()
        if a == 3:
            e(f"  v_add_u32 {vr(M1)}, 1, {vr(M1)}")
            for j in range(3):
                e(f"  v_add_u32 {vr(vPA + j)}, 3072, {vr(vPA + j)}")
        if a in (3, 7):
            tr()
    e(f"  s_add_u32 s{sK}, s{sK}, 1")
    e(f"  s_mov_b64 s[{rA}:{rA + 1}], s[{rB}:{rB + 1}]")
    e("  s_branch L_v")
    flush()
    e("L_vt:")
    e("  s_waitcnt lgkmcnt(0)")
    for n in range(3 * NT, 24):
        e(f"  s_waitcnt vmcnt({plain[744 + n]})")
        vbody(n)
    tr()
    e("  s_nop 1")
    vout(True)
    e("  s_waitcnt lgkmcnt(0)")
    e("  s_barrier")
    if P.trace:
        e(f"  s_mul_i32 s8, s2, {5 * 256}")
        e("  s_add_u32 s8, s8, 0x100000")
        e(f"  v_lshl_add_u32 {vr(t0)}, v0, 2, s8")
        e(f"  global_store_dword {vr(t0)}, {vr(vtr)}, s[{sWS}:{sWS + 1}]")
    e("  s_endpgm")

    HP = [20, 22, 24, 8, 34, 36, 38, 72]
    ms = [m for m in range(P.r0, P.r1 + 1) if m < P.rf or m > P.rt or (m - P.r0) % P.rp == 0]
    msk = sum(1 << m for m in ms)

    def hp(k):
        if P.hprof:
            e(f"  s_memrealtime s[{HP[k]}:{HP[k] + 1}]")

    def progwait(name, slp, off=FL):
        e(f"L_{name}:")
        e(f"  ds_read_b128 {vr(pr, 4)}, {vr(vZ)} offset:{off}")
        e("  s_waitcnt lgkmcnt(0)")
        e(f"  v_min_u32 {vr(pr)}, {vr(pr)}, {vr(pr + 1)}")
        e(f"  v_min3_u32 {vr(pr)}, {vr(pr)}, {vr(pr + 2)}, {vr(pr + 3)}")
        e("  s_nop 0")
        e(f"  v_readfirstlane_b32 s{sF}, {vr(pr)}")
        e(f"  s_cmp_ge_u32 s{sF}, s{sNEED}")
        e(f"  s_cbranch_scc1 L_{name}_ok")
        budget(f"L_{name}_ok")
        if slp:
            e(f"  s_sleep {slp}")
        e(f"  s_branch L_{name}")
        e(f"L_{name}_ok:")

    def rowred(op, v):
        for n in (8, 4, 2, 1):
            e("  s_nop 1")
            e(f"  {op}_dpp {vr(v)}, {vr(v)}, {vr(v)} row_ror:{n} row_mask:0xf bank_mask:0xf")

    def allred(op, v, t):
        rowred(op, v)
        for sw in ("v_permlane16_swap_b32", "v_permlane32_swap_b32"):
            e(f"  v_mov_b32 {vr(t)}, {vr(v)}")
            e("  s_nop 1")
            e(f"  {sw} {vr(v)}, {vr(t)}")
            e(f"  {op} {vr(v)}, {vr(v)}, {vr(t)}")

    def sum_partials(nq):
        w = 4 * nq
        for k in range(4):
            for q in range(nq):
                e(f"  ds_read_b128 {vr(x + w * k + 4 * q, 4)}, {vr(h0)} offset:{768 * k + 16 * q}")
        e(f"  ds_read_b128 {vr(z4, 4)}, {vr(h1)} offset:{ST}")
        e("  s_waitcnt lgkmcnt(0)")
        for h in range(0, w, 2):
            e(f"  v_pk_add_f32 {vr(x + h, 2)}, {vr(x + h, 2)}, {vr(x + w + h, 2)}")
            e(f"  v_pk_add_f32 {vr(x + 2 * w + h, 2)}, {vr(x + 2 * w + h, 2)}, {vr(x + 3 * w + h, 2)}")
        for h in range(0, w, 2):
            e(f"  v_pk_add_f32 {vr(x + h, 2)}, {vr(x + h, 2)}, {vr(x + 2 * w + h, 2)}")
        for h in range(0, w, 2):
            e(f"  v_pk_add_f32 {vr(x + h, 2)}, {vr(x + h, 2)}, {vr(z4 + 2, 2)} op_sel_hi:[1,0] neg_lo:[0,1] neg_hi:[0,1]")

    def mark(tag):
        if P.sd:
            e("  s_memrealtime s[16:17]")
            e("  s_waitcnt lgkmcnt(0)")
            e("  s_sub_u32 s19, s16, s18")
            e("  s_mov_b32 s18, s16")
            e(f"  s_add_u32 s16, s{sNEED}, {64 - P.sd}")
            e("  s_and_b32 s17, s16, 1")
            e("  s_lshl_b32 s17, s17, 4")
            e("  s_min_u32 s19, s19, 510")
            e("  s_lshl_b32 s19, s19, s17")
            e("  s_lshr_b32 m0, s16, 1")
            e(f"  v_readlane_b32 s17, {vr(vCL)}, m0")
            e("  s_add_u32 s17, s17, s19")
            e(f"  v_writelane_b32 {vr(vCL)}, s17, m0")
        if not P.enc:
            return
        for k, m in enumerate(P.enc.split(",")[:2]):
            e(f"  s_cmp_eq_u32 s{sNEED}, {m}")
            e(f"  s_cbranch_scc0 L_mk{tag}{k}")
            e(f"  s_memrealtime s[{16 + 2 * k}:{17 + 2 * k}]")
            e(f"L_mk{tag}{k}:")

    def rank_post(tag):
        if not P.ctl:
            return
        e(f"  s_bitcmp1_b32 s{sRF}, s{sNEED}")
        e(f"  s_cbranch_scc0 L_fa{tag}")
        e(f"  s_mul_i32 s{sT0}, s{sNEED}, 384")
        e(f"  s_add_u32 s{sT0}, s{sT0}, {W_RK}")
        e(f"  s_mov_b32 s{sB}, 1")
        e(f"  s_atomic_add s{sB}, s[{sWS}:{sWS + 1}], s{sT0} glc")
        e(f"L_fa{tag}:")

    def rank_take(tag):
        if not P.ctl:
            return
        e(f"  s_bitcmp1_b32 s{sRF}, s{sNEED}")
        e(f"  s_cbranch_scc0 L_fb{tag}")
        e("  s_waitcnt lgkmcnt(0)")
        e(f"  s_min_u32 s{sF}, s{sB}, 15")
        e(f"  s_lshl_b32 s{sF}, s{sF}, 1")
        e(f"  s_sub_u32 s{sF}, s{sF}, 15")
        e(f"  s_cmp_le_u32 s{sNEED}, {P.kn}")
        e(f"  s_cselect_b32 s{sT0}, {P.kp0}, {P.kp}")
        e(f"  s_mul_i32 s{sF}, s{sF}, s{sT0}")
        e(f"  s_add_u32 s{sF}, s{sF}, 8")
        e(f"  s_ashr_i32 s{sF}, s{sF}, 4")
        e(f"  v_mov_b32 {vr(vFX)}, s{sF}")
        e("  s_mov_b64 exec, 1")
        e(f"  global_store_dword {vr(vFB)}, {vr(vFX)}, s[{sWS}:{sWS + 1}]")
        e("  s_mov_b64 exec, -1")
        e(f"L_fb{tag}:")

    HPF = [10, 16, 18, 20, 22, 72, 74, 76, 60, 62]
    hpn = [0]

    def hpf():
        if P.tfine:
            e(f"  s_memrealtime s[{HPF[hpn[0]]}:{HPF[hpn[0]] + 1}]")
            hpn[0] += 1

    e("L_helper:")
    e(f"  s_setprio {P.hp0}")
    e(f"  v_and_b32 {vr(h1)}, 32, v0")
    e(f"  v_lshrrev_b32 {vr(h1)}, 1, {vr(h1)}")
    e(f"  v_add_u32 {vr(sg2)}, s{sC}, {vr(h1)}")
    e(f"  v_mad_u32_u24 {vr(ra)}, {vr(sg2)}, s{sNEED}, {vr(vL16)}")
    e(f"  v_lshrrev_b32 {vr(ra)}, 1, {vr(ra)}")
    hv = []

    def half(p, full):
        if p in (2, 3):
            e(f"  s_mov_b32 exec_hi, {0 if p == 2 else full}")
        if p in (5, 6):
            e(f"  s_mov_b32 exec_lo, {0 if p == 5 else full}")

    def sc_early():
        e(f"  s_and_b32 s{sT1}, s2, 7")
        e(f"  v_lshl_add_u32 {vr(wb)}, s{sT1}, 9, {vr(vL16)}")
        e(f"  v_lshl_add_u32 {vr(ra)}, {vr(sg2)}, 12, {vr(wb)}")
        for p in range(1, 8):
            e(f"  v_add_u32 {vr(ra + p)}, {0x20000 * p:#x}, {vr(ra)}")
        for p in range(8):
            half(p, -1)
            for i, sp in enumerate((sKS, sVS)):
                e(f"  s_mov_b32 m0, {SCB + SA * i + 1024 * p}")
                e("  s_nop 0")
                if "s" not in P.xp:
                    e(f"  global_load_lds_dwordx4 {vr(ra + p)}, s[{sp}:{sp + 1}] {P.sf}")
                    hv.append(("s", p))

    for p in range(1, 8):
        e(f"  v_add_u32 {vr(ra + p)}, {12288 * p}, {vr(ra)}")
    e("  s_mov_b32 exec_lo, 0xffffff")
    e("  s_mov_b32 exec_hi, 0xffffff")
    e("  s_waitcnt lgkmcnt(0)")
    hpf()
    for p in range(8):
        half(p, "0xffffff")
        e(f"  global_load_dwordx2 {vr(rec + 4 * p, 2)}, {vr(ra + (0 if 'q' in P.xp else p))}, s[{sQ}:{sQ + 1}] {P.qf}")
        e(f"  global_load_dwordx2 {vr(rec + 4 * p + 2, 2)}, {vr(ra + (0 if 'q' in P.xp else p))}, s[{sQ}:{sQ + 1}] offset:192 {P.qf}")
        hv.extend([("q", p)] * 2)
    e("  s_mov_b64 exec, -1")
    hpf()
    if P.ss == 0:
        sc_early()
    common()
    e(f"  s_load_dword s{sO}, s[{sRT}:{sRT + 1}], 24")
    e(f"  s_load_dwordx2 s[{sOH}:{sOH + 1}], s[{sRT}:{sRT + 1}], 16")
    e(f"  v_mov_b32 {vr(l)}, v0")
    for i in range(4):
        e(f"  v_mov_b32 {vr(z4 + i)}, 0")
    e(f"  ds_write_b128 {vr(vZ)}, {vr(z4, 4)} offset:{FL}")
    e(f"  ds_write_b128 {vr(vZ)}, {vr(z4, 4)} offset:{FL + 16}")
    e(f"  ds_write_b128 {vr(vZ)}, {vr(z4, 4)} offset:{FL + 32}")
    e(f"  ds_write_b128 {vr(vZ)}, {vr(z4, 4)} offset:{FL + 48}")
    e(f"  s_mov_b32 s{sMASK}, 0xffff0000")
    e(f"  s_mov_b32 s{sSCALE}, {f32bits(math.log2(math.e) / math.sqrt(192.0)):#x}")
    e(f"  v_mad_u32_u24 {vr(wa)}, {vr(h1)}, 48, {vr(vL16)}")
    e(f"  v_mov_b32 {vr(vOne)}, 1")
    e(f"  s_waitcnt vmcnt({len(hv)})")
    for k in range(4):
        e(f"  v_lshlrev_b32 {vr(cs + k)}, 16, {vr(pr + k)}")
        e(f"  v_and_b32 {vr(cs + 4 + k)}, s{sMASK}, {vr(pr + k)}")
    e("  s_waitcnt lgkmcnt(0)")
    hpf()
    if P.ctl:
        die_base(sF)
        e(f"  v_lshrrev_b32 {vr(h0)}, 1, {vr(l)}")
        e(f"  v_lshl_add_u32 {vr(vFX)}, {vr(h0)}, 8, s{sF}")
        e(f"  v_and_b32 {vr(h0)}, 1, {vr(l)}")
        e(f"  v_lshl_add_u32 {vr(vFX)}, {vr(h0)}, 4, {vr(vFX)}")
        e(f"  s_and_b32 s{sT1}, s{sSE}, 2")
        e(f"  s_lshl_b32 s{sT0}, s{sT1}, 9")
        e(f"  s_add_u32 s{sT0}, s{sT0}, s{sF}")
        e(f"  v_add_u32 {vr(vEL)}, s{sT0}, {vr(l)}")
        e(f"  s_lshl_b32 s{sT1}, s{sT1}, 1")
        e(f"  s_add_u32 s{sF}, s{sF}, s{sT1}")
        e(f"  s_add_u32 s{sF}, s{sF}, 2048")
        e(f"  v_mov_b32 {vr(vFB)}, s{sF}")
        e(f"  v_mul_u32_u24 {vr(vFA)}, 384, {vr(l)}")
        e(f"  v_add_u32 {vr(vFA)}, {W_RK}, {vr(vFA)}")
        e(f"  s_mov_b32 s{sRF}, 0")

    def ctl_init():
        if not P.ctl:
            return
        e("  s_mov_b64 exec, 0x3ffff")
        e(f"  global_store_dwordx4 {vr(vFX)}, {vr(z4, 4)}, s[{sWS}:{sWS + 1}]")
        e("  s_mov_b64 exec, -1")

    def elect():
        if not P.ctl:
            return
        e(f"  s_cmp_eq_u32 s{sNEED}, {P.r0 - 1}")
        e("  s_cbranch_scc0 L_el")
        e(f"  s_bitcmp0_b32 s{sSE}, 0")
        e("  s_cbranch_scc0 L_el")
        e("  s_mov_b64 exec, 0xffff")
        e(f"  global_load_ubyte {vr(vFX)}, {vr(vEL)}, s[{sWS}:{sWS + 1}] sc1")
        e("  s_waitcnt vmcnt(0)")
        e(f"  v_cmp_ne_u32 s[{sZ}:{sZ + 1}], 0, {vr(vFX)}")
        e(f"  s_lshr_b32 s{sT0}, s{sZ}, s{sCU}")
        e(f"  s_bcnt1_i32_b32 s{sT0}, s{sT0}")
        pat = sum(1 << m for m in range(0, 32, P.rotl))
        e(f"  s_sub_u32 s{sT1}, s{sT0}, 1")
        e(f"  s_cmp_lt_u32 s{sT1}, {P.rotl}")
        e("  s_cbranch_scc0 L_el")
        e(f"  s_lshl_b32 s{sRF}, {pat:#x}, s{sT1}")
        e(f"  s_and_b32 s{sRF}, s{sRF}, {msk:#x}")
        e("L_el:")
        e("  s_mov_b64 exec, -1")

    def patch(what):
        e(f"  s_bfe_u32 s{sT0}, s{sCN + 1}, {(4 << 16) | 8:#x}")
        e(f"  s_bfe_u32 s{sT1}, s{sCN}, {(4 << 16) | 20:#x}")
        e(f"  s_addk_i32 s{sT0}, 160")
        e(f"  s_addk_i32 s{sT1}, 80")
        for p, sh_, ex in ((5, sT0, "exec_hi"), (2, sT1, "exec_lo")):
            if what == "q":
                e(f"  s_mulk_i32 s{sh_}, 384")
                e(f"  v_lshrrev_b32 {vr(h0)}, 1, {vr(vL16)}")
                e(f"  v_add_u32 {vr(h0)}, s{sh_}, {vr(h0)}")
                qmask(1)
                e(f"  s_mov_b32 {ex}, 0")
                e(f"  global_load_dwordx2 {vr(rec + 4 * p, 2)}, {vr(h0)}, s[{sQ}:{sQ + 1}]")
                e(f"  global_load_dwordx2 {vr(rec + 4 * p + 2, 2)}, {vr(h0)}, s[{sQ}:{sQ + 1}] offset:192")
                hv.extend([("q", p)] * 2)
            else:
                e(f"  v_lshl_add_u32 {vr(h0)}, s{sh_}, 12, {vr(wb)}")
                e(f"  s_mov_b32 {ex}, 0")
                for i, sp in enumerate((sKS, sVS)):
                    e(f"  s_mov_b32 m0, {SCB + SA * i + 1024 * p}")
                    e("  s_nop 0")
                    if "s" not in P.xp:
                        e(f"  global_load_lds_dwordx4 {vr(h0)}, s[{sp}:{sp + 1}] {P.sf}")
                        hv.append(("s", p))
            qmask(0)

    def qmask(on):
        if on:
            e("  s_mov_b32 exec_lo, 0xffffff")
            e("  s_mov_b32 exec_hi, 0xffffff")
        else:
            e("  s_mov_b64 exec, -1")

    def rotate(p):
        L, Hh, LC, HS, HC, LS = x, x + 4, x + 8, x + 12, x + 16, x + 20
        qmask(1)
        if p == 0:
            hpf()
        e(f"  s_waitcnt vmcnt({hv[::-1].index(('q', p))})")
        if p == 0:
            hpf()
        for k in range(4):
            e(f"  v_lshlrev_b32 {vr(L + 2 * k)}, 16, {vr(rec + 4 * p + k)}")
            e(f"  v_and_b32 {vr(L + 2 * k + 1)}, s{sMASK}, {vr(rec + 4 * p + k)}")
        for d, q_, t_ in ((LC, L, cs), (HS, Hh, cs + 4), (HC, Hh, cs), (LS, L, cs + 4)):
            for h in (0, 2):
                e(f"  v_pk_mul_f32 {vr(d + h, 2)}, {vr(q_ + h, 2)}, {vr(t_ + h, 2)}")
        for i in range(4):
            e(f"  v_cvt_pk_bf16_f32 {vr(L + i)}, {vr(LC + i)}, {vr(HS + i)}")
            e(f"  v_cvt_pk_bf16_f32 {vr(Hh + i)}, {vr(HC + i)}, {vr(LS + i)}")
        for k in range(8):
            e(f"  v_lshlrev_b32 {vr(LC + k)}, 16, {vr(L + k)}")
            e(f"  v_and_b32 {vr(L + k)}, s{sMASK}, {vr(L + k)}")
        for h in (0, 2):
            e(f"  v_pk_add_f32 {vr(L + h, 2)}, {vr(LC + h, 2)}, {vr(L + h, 2)} neg_lo:[0,1] neg_hi:[0,1]")
            e(f"  v_pk_add_f32 {vr(Hh + h, 2)}, {vr(HS + h, 2)}, {vr(Hh + h, 2)}")
        for i in range(4):
            e(f"  v_cvt_pk_bf16_f32 {vr(LC + i)}, {vr(L + i)}, {vr(Hh + i)}")
            e(f"  v_cvt_pk_bf16_f32 {vr(HS + i)}, {vr(Hh + i)}, -{vr(L + i)}")
        e(f"  v_mov_b32 {vr(h0)}, {2 * p + 2}")
        e(f"  ds_write_b128 {vr(wa)}, {vr(LC, 4)} offset:{QB + 1536 * p}")
        e(f"  ds_write_b128 {vr(wa)}, {vr(HS, 4)} offset:{QB + 1536 * p + 384}")
        e(f"  ds_write_b32 {vr(vZ)}, {vr(h0)} offset:{FL + 16}")
        qmask(0)

    ctl_init()
    if P.ctl:
        hv.append(("c", 0))
    patch("q")
    e(f"  s_lshl_b32 s{sT0}, s{sJ}, 10")
    e(f"  s_add_u32 s{sT0}, s{sT0}, L_hpos-L_pc")
    e(f"  v_add_u32 {vr(h0)}, s{sT0}, {vr(vT16)}")
    e(f"  global_load_dwordx4 {vr(st4, 4)}, {vr(h0)}, s[{sZ}:{sZ + 1}]")
    hv.append(("h", 0))
    if P.ss == 1:
        sc_early()
    if P.ss <= 1:
        patch("s")
    rotate(0)
    hpf()
    if P.ss == 2:
        sc_early()
        patch("s")
    e("  s_waitcnt lgkmcnt(0)")
    e("  s_setprio 0")
    hpf()
    e("  s_barrier")
    hpf()
    if P.ss == 3:
        sc_early()
        patch("s")
    for p in range(1, 8):
        rotate(p)
    e(f"  v_mov_b32 {vr(vSa)}, 0")
    e(f"  v_min_u32 {vr(u)}, 47, {vr(l)}")
    e(f"  v_lshlrev_b32 {vr(vL16)}, 4, {vr(u)}")
    for i in range(4):
        e(f"  v_mov_b32 {vr(sc + i)}, 0")
    e(f"  s_mov_b32 s{sNEED}, 1")
    e("  s_cmp_eq_u32 s2, 0")
    e("  s_cbranch_scc0 L_rc")
    e(f"  v_mov_b32 {vr(h0)}, {W_REC + 15 * 384 + 8}")
    e(f"  global_load_dword {vr(h1)}, {vr(h0)}, s[{sWS}:{sWS + 1}] sc1")
    if P.ctl:
        e(f"  s_mov_b64 exec, {msk:#x}")
        e(f"  global_store_dword {vr(vFA)}, {vr(vZ)}, s[{sWS}:{sWS + 1}] sc1")
    e("  s_mov_b64 exec, 1")
    e("  s_waitcnt vmcnt(0)")
    e(f"  v_and_b32 {vr(qn)}, 0x77777777, {vr(h1)}")
    e(f"  v_and_b32 {vr(h1)}, 0x88888888, {vr(h1)}")
    e(f"  v_add_u32 {vr(qn)}, 0x11111111, {vr(qn)}")
    e(f"  v_xor_b32 {vr(qn)}, {vr(qn)}, {vr(h1)}")
    e(f"  v_mov_b32 {vr(qn + 1)}, 1")
    e(f"  global_store_dwordx2 {vr(vZ)}, {vr(qn, 2)}, s[{sDBG}:{sDBG + 1}] sc1")
    e("  s_mov_b64 exec, -1")
    e("L_rc:")
    hpf()
    e("  s_waitcnt vmcnt(0)")
    hpf()
    if P.tfine:
        e("  s_waitcnt lgkmcnt(0)")
        e(f"  v_mov_b32 {vr(h0)}, 0")
        for k in range(hpn[0]):
            e(f"  v_writelane_b32 {vr(h0)}, s{HPF[k]}, {k}")
        e(f"  s_mul_i32 s{sT0}, s2, {5 * 256}")
        e(f"  s_add_u32 s{sT0}, s{sT0}, {0x100000 + 1024}")
        e(f"  v_lshl_add_u32 {vr(h1)}, v0, 2, s{sT0}")
        e(f"  global_store_dword {vr(h1)}, {vr(h0)}, s[{sWS}:{sWS + 1}]")
    for k in range(4):
        e(f"  v_and_b32 {vr(ro + 2 * k)}, 0xffff, {vr(st4 + k)}")
        e(f"  v_lshrrev_b32 {vr(ro + 2 * k + 1)}, 16, {vr(st4 + k)}")
    for k in range(2):
        e(f"  v_add_u32 {vr(ro + 6 + k)}, {SCB}, {vr(ro + 6 + k)}")
    if P.sd:
        e(f"  v_mov_b32 {vr(vCL)}, 0")
    e("L_hk:")
    for a in range(2):
        for k in range(2):
            e(f"  ds_read_u16_d16_hi {vr(sc + 2 * a + k)}, {vr(ro + 6 + k)} offset:{SA * a}")
    progwait("hsw", P.psl)
    mark("s")
    rank_post("s")
    for k in range(6):
        e(f"  ds_read_b32 {vr(x + 4 + k)}, {vr(ro + k)} offset:{LGB}")
    e(f"  v_mul_f32 {vr(x + 2)}, s{sSCALE}, {vr(sc)}")
    e(f"  v_mul_f32 {vr(x + 3)}, s{sSCALE}, {vr(sc + 1)}")
    e("  s_waitcnt lgkmcnt(0)")
    e(f"  v_pk_add_f32 {vr(x, 2)}, {vr(x + 4, 2)}, {vr(x + 6, 2)}")
    e(f"  v_pk_add_f32 {vr(x, 2)}, {vr(x, 2)}, {vr(x + 8, 2)}")
    e(f"  v_mul_f32 {vr(x)}, {vr(x)}, {vr(x + 2)}")
    e(f"  v_mul_f32 {vr(x + 1)}, {vr(x + 1)}, {vr(x + 3)}")
    e(f"  v_max_f32 {vr(z4)}, {vr(x)}, {vr(x + 1)}")
    allred("v_max_f32", z4, h0)
    e(f"  v_sub_f32 {vr(x)}, {vr(x)}, {vr(z4)}")
    e(f"  v_sub_f32 {vr(x + 1)}, {vr(x + 1)}, {vr(z4)}")
    e(f"  v_exp_f32 {vr(x)}, {vr(x)}")
    e(f"  v_exp_f32 {vr(x + 1)}, {vr(x + 1)}")
    e("  s_nop 0")
    e(f"  v_add_f32 {vr(z4 + 1)}, {vr(x)}, {vr(x + 1)}")
    e(f"  v_mul_f32 {vr(x)}, {vr(x)}, {vr(sc + 2)}")
    e(f"  v_mul_f32 {vr(x + 1)}, {vr(x + 1)}, {vr(sc + 3)}")
    e(f"  v_add_f32 {vr(z4 + 2)}, {vr(x)}, {vr(x + 1)}")
    for k in range(6):
        e(f"  ds_write_b32 {vr(ro + k)}, {vr(x + (k & 1))} offset:{LGB}")
    e(f"  v_mul_f32 {vr(z4 + 2)}, {f32bits(7.5):#x}, {vr(z4 + 2)}")
    allred("v_add_f32", z4 + 1, h0)
    allred("v_add_f32", z4 + 2, h0)
    e(f"  v_mov_b32 {vr(h0)}, s{sNEED}")
    e(f"  ds_write_b128 {vr(vSa)}, {vr(z4, 4)} offset:{ST}")
    e(f"  ds_write_b32 {vr(vZ)}, {vr(h0)} offset:{FL + 20}")
    e(f"  v_add_u32 {vr(vSa)}, 16, {vr(vSa)}")
    for k in range(8):
        e(f"  v_add_u32 {vr(ro + k)}, {1536 if k < 6 else SL}, {vr(ro + k)}")
    rank_take("s")
    elect()
    e("  s_waitcnt lgkmcnt(0)")
    e(f"  s_add_u32 s{sNEED}, s{sNEED}, 1")
    e(f"  s_cmp_le_u32 s{sNEED}, 16")
    e("  s_cbranch_scc1 L_hk")

    e(f"  v_and_b32 {vr(h2)}, 15, {vr(l)}")
    e(f"  v_lshlrev_b32 {vr(h2)}, 1, {vr(h2)}")
    e(f"  global_load_ushort {vr(h3)}, {vr(h2)}, s[{sRT}:{sRT + 1}] offset:32")
    e(f"  s_mov_b32 s{sK}, 0")
    e(f"  v_min_u32 {vr(wa)}, 23, {vr(l)}")
    e(f"  v_lshlrev_b32 {vr(wa)}, 4, {vr(wa)}")
    e(f"  v_lshlrev_b32 {vr(h0)}, 1, {vr(wa)}")
    e(f"  v_add_u32 {vr(h0)}, {PB}, {vr(h0)}")
    e(f"  v_add_u32 {vr(wa)}, {PK}, {vr(wa)}")
    e(f"  v_lshlrev_b32 {vr(sgn)}, 4, {vr(l)}")
    e(f"  s_mul_i32 s{sT0}, s2, 6144")
    e(f"  s_add_u32 s{sT0}, s{sT0}, {W_REC}")
    e(f"  v_add_u32 {vr(sgx)}, s{sT0}, {vr(sgn)}")
    e(f"  v_add_u32 {vr(sgn)}, {PK}, {vr(sgn)}")
    e(f"  v_add_u32 {vr(sg2)}, 4096, {vr(sgx)}")
    e(f"  v_lshrrev_b32 {vr(u)}, 1, {vr(vL16)}")
    e(f"  s_mul_i32 s{sT0}, s{sOH}, 384")
    e(f"  s_add_u32 s{sOUT}, s{sOUT}, s{sT0}")
    e(f"  s_addc_u32 s{sOUT + 1}, s{sOUT + 1}, 0")
    e(f"  s_lshl_b32 s{sT0}, s{sO}, 4")
    e(f"  s_add_u32 s{sT0}, s{sT0}, {W_REC}")
    e(f"  v_add_u32 {vr(h1)}, {W_REC}, {vr(u)}")
    e("  s_waitcnt vmcnt(0)")
    e(f"  v_or_b32 {vr(h2)}, 15, {vr(h3)}")
    e(f"  v_mul_u32_u24 {vr(h2)}, 384, {vr(h2)}")
    e(f"  v_mul_u32_u24 {vr(h3)}, 384, {vr(h3)}")
    e(f"  v_add_u32 {vr(ra + 15)}, s{sT0}, {vr(h2)}")
    e("  s_nop 0")
    for k in range(15):
        e(f"  v_add_u32_dpp {vr(ra + k)}, {vr(h3)}, {vr(h1)} row_newbcast:{k} row_mask:0xf bank_mask:0xf")
    e("L_hp:")
    e(f"  s_min_u32 s{sT0}, s{sO}, 13")
    e(f"  s_cmp_eq_u32 s{sT0}, s{sK}")
    e("  s_cbranch_scc0 L_hc_ok")
    e("L_hc:")
    e(f"  global_load_dwordx2 {vr(pr, 2)}, {vr(vZ)}, s[{sDBG}:{sDBG + 1}] sc1")
    e("  s_waitcnt vmcnt(0)")
    e(f"  v_readfirstlane_b32 s{sTG}, {vr(pr)}")
    e(f"  v_readfirstlane_b32 s{sF}, {vr(pr + 1)}")
    e(f"  s_cmp_eq_u32 s{sF}, 1")
    e("  s_cbranch_scc1 L_hc_ok")
    budget("L_hc_ok")
    e("  s_sleep 64")
    e("  s_branch L_hc")
    e("L_hc_ok:")
    vstep_k(sH, sK)
    e(f"  s_lshl_b32 s{sT0}, s{sH}, 4")
    e(f"  v_mov_b32 {vr(h1)}, s{sT0}")
    e(f"  s_add_u32 s{sK}, s{sK}, 1")
    e(f"  s_add_u32 s{sNEED}, s{sK}, 16")
    progwait("hpw", P.psl)
    mark("p")
    hp(0)
    rank_post("p")
    sum_partials(2)
    e(f"  v_max3_f32 {vr(h3)}, |{vr(x)}|, |{vr(x + 1)}|, |{vr(x + 2)}|")
    e(f"  v_max3_f32 {vr(h3)}, {vr(h3)}, |{vr(x + 3)}|, |{vr(x + 4)}|")
    e(f"  v_max3_f32 {vr(h3)}, {vr(h3)}, |{vr(x + 5)}|, |{vr(x + 6)}|")
    e(f"  v_max_f32_e64 {vr(h3)}, {vr(h3)}, |{vr(x + 7)}|")
    allred("v_max_f32", h3, wb)
    e(f"  v_frexp_exp_i32_f32 {vr(h3)}, {vr(h3)}")
    e(f"  v_sub_u32 {vr(wb)}, 14, {vr(h3)}")
    e(f"  v_subrev_u32 {vr(h3)}, 14, {vr(h3)}")
    for i in range(8):
        e(f"  v_ldexp_f32 {vr(x + i)}, {vr(x + i)}, {vr(wb)}")
    for i in range(4):
        e(f"  v_cvt_pk_f16_f32 {vr(fo + i)}, {vr(x + 2 * i)}, {vr(x + 2 * i + 1)}")
    for i in range(4):
        e(f"  v_lshrrev_b32 {vr(x + i)}, 1, {vr(fo + i)}")
        e(f"  v_and_b32 {vr(x + i)}, 0x10001, {vr(x + i)}")
        e(f"  v_add_u32 {vr(fo + i)}, {vr(fo + i)}, {vr(x + i)}")
    e(f"  ds_write_b32 {vr(h1)}, {vr(h3)} offset:{ST + 12}")
    e(f"  v_add_u32 {vr(h0)}, 3072, {vr(h0)}")
    e(f"  ds_write_b128 {vr(wa)}, {vr(fo, 4)}")
    e(f"  v_add_u32 {vr(wa)}, 384, {vr(wa)}")
    rank_take("p")
    e(f"  s_cmp_lt_u32 s{sK}, 15")
    e("  s_cbranch_scc1 L_hp")
    if P.eprio:
        e(f"  s_setprio {P.eprio}")
    for k in range(6):
        e(f"  ds_read_b128 {vr(blk + 4 * k, 4)}, {vr(sgn)} offset:{1024 * k}")
    e(f"  v_subrev_u32 {vr(h2)}, 40, {vr(l)}")
    e(f"  v_and_b32 {vr(h2)}, 15, {vr(h2)}")
    e(f"  v_lshlrev_b32 {vr(h2)}, 4, {vr(h2)}")
    e(f"  ds_read_b128 {vr(st4, 4)}, {vr(h2)} offset:{ST}")
    e(f"  s_mov_b32 s{sMASK}, 0x10001")
    e(f"  v_lshlrev_b32 {vr(h2)}, 3, {vr(l)}")
    e(f"  v_lshrrev_b32 {vr(h2)}, {vr(h2)}, s{sTG}")
    e(f"  v_lshrrev_b32 {vr(h3)}, 1, {vr(u)}")
    e(f"  v_lshrrev_b32 {vr(h3)}, {vr(h3)}, s{sTG}")
    for i in range(6):
        src, k = (h2, i) if i < 4 else (h3, i - 4)
        e(f"  v_bfe_u32 {vr(x + i)}, {vr(src)}, {2 * k}, 2")
        e(f"  v_lshl_or_b32 {vr(x + i)}, {vr(x + i)}, 15, {vr(x + i)}")
        e(f"  v_and_b32 {vr(x + i)}, s{sMASK}, {vr(x + i)}")
    e(f"  v_cmp_gt_u32 vcc, 40, {vr(l)}")
    e("  s_waitcnt lgkmcnt(0)")
    e(f"  v_mov_b32 {vr(st4 + 2)}, s{sTG}")
    for k in range(24):
        e(f"  v_bfi_b32 {vr(blk + k)}, s{sMASK}, {vr(x + k % 4)}, {vr(blk + k)}")
    for i in range(4):
        e(f"  v_cndmask_b32 {vr(blk + 20 + i)}, {vr(st4 + i)}, {vr(blk + 20 + i)}, vcc")
    e(f"  s_lshl_b32 s{sH}, s{sO}, 4")
    e(f"  v_mov_b32 {vr(h1)}, s{sH}")
    e(f"  v_add_u32 {vr(h0)}, {PB + 15 * 3072}, {vr(vL16)}")
    e(f"  ds_read_b32 {vr(h1)}, {vr(h1)} offset:{ST + 8}")
    e("  s_waitcnt lgkmcnt(0)")
    if P.mg:
        e("; the stores leave late in the last step, so that they reach the memory chips after the stream has ended")
        e(f"  s_mov_b32 s{sNEED}, {31 + (P.mg > 12)}")
        progwait("hmw", P.psl, FL + 32)
    hp(1)
    for k in range(6):
        if k == 5:
            e("  s_mov_b32 exec_hi, 0xffffff")
        e(f"  global_store_dwordx4 {vr(sgx if k < 4 else sg2)}, {vr(blk + 4 * k, 4)}, s[{sWS}:{sWS + 1}] offset:{1024 * (k % 4)} sc1")
    e("  s_mov_b64 exec, -1")
    if P.rw:
        e("L_hw:")
    if P.ml:
        e(f"  s_mov_b32 s{sNEED}, {31 + (P.ml > 12)}")
        progwait("hlw", P.psl, FL + 48)
    else:
        e(f"  s_waitcnt vmcnt({P.aw})")
    hp(2)
    hp(3)
    if not P.rw:
        e("L_hw:")
    hp(4)
    if P.cnt:
        e(f"  s_mov_b32 s{sF}, 1")
        e(f"  s_atomic_add s{sF}, s[{sDBG}:{sDBG + 1}], 16")
    e(f"  global_load_dwordx4 {vr(cs, 4)}, {vr(ra + 15)}, s[{sWS}:{sWS + 1}] sc1")
    for k in range(15):
        e(f"  global_load_dwordx2 {vr(rec + 2 * k, 2)}, {vr(ra + k)}, s[{sWS}:{sWS + 1}] sc1")
    for i in range(4):
        e(f"  v_mov_b32 {vr(fo + i)}, 0")
    e(f"  v_mov_b32 {vr(wb)}, 0")
    budget("L_hy")
    e("  s_waitcnt vmcnt(15)")
    e(f"  v_cmp_ne_u32 s[{sZ}:{sZ + 1}], s{sTG}, {vr(cs + 2)}")
    e(f"  s_cmp_eq_u64 s[{sZ}:{sZ + 1}], 0")
    e("  s_cbranch_scc0 L_hw")
    e("L_hy:")
    e("  s_waitcnt vmcnt(15)")
    hp(5)
    e(f"  v_mov_b32 {vr(h2)}, {vr(cs)}")
    rowred("v_max_f32", h2)
    e(f"  v_sub_f32 {vr(h2)}, {vr(cs)}, {vr(h2)}")
    e(f"  v_exp_f32 {vr(h2)}, {vr(h2)}")
    e("  s_nop 0")
    e(f"  v_ldexp_f32 {vr(h3)}, {vr(h2)}, {vr(cs + 3)}")
    e(f"  v_mul_f32 {vr(wa)}, {vr(h2)}, {vr(cs + 1)}")
    e(f"  v_readlane_b32 s{sMSK}, {vr(h3)}, 0")
    e(f"  v_readlane_b32 s{sMSK + 15}, {vr(h2)}, 15")
    for k in range(15):
        if k < 14:
            e(f"  v_readlane_b32 s{sMSK + k + 1}, {vr(h3)}, {k + 1}")
        if k < 4:
            e(f"  v_add_f32_dpp {vr(wa)}, {vr(wa)}, {vr(wa)} row_ror:{8 >> k} row_mask:0xf bank_mask:0xf")
        if k == 4:
            e(f"  v_rcp_f32 {vr(wa)}, {vr(wa)}")
        e(f"  s_waitcnt vmcnt({14 - k})")
        for i in range(2):
            e(f"  v_xor_b32 {vr(rec + 2 * k + i)}, {vr(rec + 2 * k + i)}, {vr(x + 4 + i)}")
        for i in range(4):
            e(f"  v_fma_mix_f32 {vr(fo + i)}, {vr(rec + 2 * k + i // 2)}, s{sMSK + k}, {vr(fo + i)} op_sel:[{i & 1},0,0] op_sel_hi:[1,0,0]")
        e(f"  v_or3_b32 {vr(wb)}, {vr(rec + 2 * k)}, {vr(rec + 2 * k + 1)}, {vr(wb)}")
    e(f"  v_and_b32 {vr(wb)}, s{sMASK}, {vr(wb)}")
    e(f"  v_cmp_ne_u32 s[{sZ}:{sZ + 1}], 0, {vr(wb)}")
    e(f"  s_cmp_lg_u32 s{sSP}, 0")
    e(f"  s_cselect_b64 s[{sZ}:{sZ + 1}], s[{sZ}:{sZ + 1}], 0")
    e(f"  s_cmp_eq_u64 s[{sZ}:{sZ + 1}], 0")
    e("  s_cbranch_scc0 L_hw")
    e(f"  v_mul_f32 {vr(h2)}, s{sMSK + 15}, {vr(wa)}")
    e(f"  v_mul_f32 {vr(h3)}, {vr(h2)}, {vr(h1)}")
    for i in range(4):
        e(f"  v_fma_f32 {vr(fo + i)}, {vr(fo + i)}, {vr(wa)}, -{vr(h3)}")
    hp(6)
    e("  s_barrier")
    hp(7)
    for k in range(4):
        e(f"  ds_read_b128 {vr(x + 4 * k, 4)}, {vr(h0)} offset:{768 * k}")
    e("  s_waitcnt lgkmcnt(2)")
    for h in (0, 2):
        e(f"  v_pk_add_f32 {vr(x + h, 2)}, {vr(x + h, 2)}, {vr(x + 4 + h, 2)}")
    e("  s_waitcnt lgkmcnt(0)")
    for h in (0, 2):
        e(f"  v_pk_add_f32 {vr(x + 8 + h, 2)}, {vr(x + 8 + h, 2)}, {vr(x + 12 + h, 2)}")
    for h in (0, 2):
        e(f"  v_pk_add_f32 {vr(x + h, 2)}, {vr(x + h, 2)}, {vr(x + 8 + h, 2)}")
    for i in range(4):
        e(f"  v_fmac_f32 {vr(fo + i)}, {vr(h2)}, {vr(x + i)}")
    e(f"  v_cvt_pk_bf16_f32 {vr(fo)}, {vr(fo)}, {vr(fo + 1)}")
    e(f"  v_cvt_pk_bf16_f32 {vr(fo + 1)}, {vr(fo + 2)}, {vr(fo + 3)}")
    e("  s_mov_b32 exec_hi, 0xffff")
    e(f"  global_store_dwordx2 {vr(u)}, {vr(fo, 2)}, s[{sOUT}:{sOUT + 1}] {P.of}")
    if P.sd:
        e(f"  s_mov_b32 s{sNEED}, 32")
        e("  s_mov_b64 exec, -1")
        mark("z")
        e(f"  s_cmp_eq_u32 s{sJ}, 0")
        e("  s_cbranch_scc0 L_sd")
        e(f"  v_lshlrev_b32 {vr(h0)}, 2, {vr(l)}")
        e("  s_mov_b32 exec_lo, 0")
        e("  s_mov_b32 exec_hi, 0x3fff")
        e(f"  global_atomic_add {vr(h0)}, {vr(vCL)}, s[{sDBG}:{sDBG + 1}] offset:-120 sc1")
        e("L_sd:")
    if P.enc:
        m0, m1, base, amp, wg = [int(v) for v in P.enc.split(",")]
        if m1 == 32:
            e("  s_memrealtime s[18:19]")
        if m0 == 0:
            e(f"  s_mov_b32 s16, s{sST}")
        e("  s_waitcnt lgkmcnt(0)")
        e("  s_sub_u32 s16, s18, s16")
        e(f"  s_atomic_add s16, s[{sDBG}:{sDBG + 1}], 4")
        e(f"  s_cmp_eq_u32 s2, {wg}")
        e("  s_cbranch_scc0 L_nohold")
        e("L_hold0:")
        e(f"  s_memrealtime s[{sST + 2}:{sST + 3}]")
        e("  s_waitcnt lgkmcnt(0)")
        e(f"  s_sub_u32 s{sT0}, s{sST + 2}, s{sST}")
        e(f"  s_cmp_lt_u32 s{sT0}, 12500")
        e("  s_cbranch_scc1 L_hold0")
        e("  s_mov_b32 s16, 0")
        e(f"  s_atomic_add s16, s[{sDBG}:{sDBG + 1}], 4 glc")
        e("  s_waitcnt lgkmcnt(0)")
        e(f"  s_sub_u32 s16, s16, {base * 256}")
        e("  s_max_i32 s16, s16, 0")
        e("  s_min_i32 s16, s16, 128000")
        e(f"  s_mul_i32 s16, s16, {amp}")
        e("  s_lshr_b32 s16, s16, 8")
        e("  s_add_u32 s16, s16, 13000")
        e("L_hold:")
        e(f"  s_memrealtime s[{sST + 2}:{sST + 3}]")
        e("  s_waitcnt lgkmcnt(0)")
        e(f"  s_sub_u32 s{sT0}, s{sST + 2}, s{sST}")
        e(f"  s_cmp_lt_u32 s{sT0}, s16")
        e("  s_cbranch_scc1 L_hold")
        e("L_nohold:")
        e("  s_waitcnt lgkmcnt(0)")
    if P.hold:
        e("; diagnostic build only")
        e("L_hold:")
        e(f"  s_memrealtime s[{sST + 2}:{sST + 3}]")
        e("  s_waitcnt lgkmcnt(0)")
        e(f"  s_sub_u32 s{sT0}, s{sST + 2}, s{sST}")
        e(f"  s_cmp_lt_u32 s{sT0}, {P.hold}")
        e("  s_cbranch_scc1 L_hold")
    if P.stamp:
        e(f"  s_memrealtime s[{sST + 2}:{sST + 3}]")
        if P.hprof:
            e("  s_waitcnt lgkmcnt(0)")
            e("  s_lshl_b32 s44, s2, 5")
            e("  s_add_u32 s44, s44, 0x80000")
            e("  v_mov_b32 v1, s44")
            for k in range(8):
                e(f"  s_sub_u32 s45, s{sST + 2}, s{HP[k]}")
                e(f"  v_mov_b32 v{4 + k}, s45")
            e(f"  global_store_dwordx4 v1, v[4:7], s[{sWS}:{sWS + 1}]")
            e(f"  global_store_dwordx4 v1, v[8:11], s[{sWS}:{sWS + 1}] offset:16")
            e("  s_nop 2")
        e("  s_getreg_b32 s6, hwreg(HW_REG_XCC_ID)")
        e("  s_getreg_b32 s7, hwreg(HW_REG_HW_ID)")
        e("  s_waitcnt lgkmcnt(0)")
        e(f"  v_mov_b32 v4, s{sST}")
        e(f"  v_mov_b32 v5, s{sST + 2}")
        e("  v_mov_b32 v6, s6")
        e("  v_mov_b32 v7, s7")
        e("  s_lshl_b32 s8, s2, 4")
        e("  v_mov_b32 v1, s8")
        e(f"  global_store_dwordx4 v1, v[4:7], s[{sWS}:{sWS + 1}]")
    e("L_end:")
    e("  s_endpgm")
    e(".p2align 6")
    e(".type L_order,@object")
    e("L_order:")
    for k in range(0, len(ordtab), 8):
        e("  .long " + ", ".join(f"{v:#x}" for v in ordtab[k:k + 8]))
    e(".type L_hpos,@object")
    e("L_hpos:")
    for b in range(2):
        at = {chunk_of(b, n, s_): lpos(n, s_) for n in range(24) for s_ in range(16)}
        rows = sorted({c // 3 for c in at})
        for l_ in range(64):
            r0, r1 = rows[l_], rows[l_ + 64]
            e("  .long " + ", ".join(f"{a_ | b_ << 16:#x}" for a_, b_ in [(at[3 * r0 + k], at[3 * r1 + k]) for k in range(3)] + [(2 * r0, 2 * r1)]))
    e('.section .rodata,"a"')
    e(".p2align 6")
    e(f".amdhsa_kernel {NAME}_kernel")
    e(f"  .amdhsa_next_free_vgpr {NV}")
    e("  .amdhsa_next_free_sgpr 100")
    e(f"  .amdhsa_accum_offset {(NV + 3) // 4 * 4}")
    e("  .amdhsa_group_segment_fixed_size 0")
    e("  .amdhsa_kernarg_size 112")
    e("  .amdhsa_user_sgpr_count 2")
    e("  .amdhsa_user_sgpr_kernarg_segment_ptr 1")
    e("  .amdhsa_system_sgpr_workgroup_id_x 1")
    e(".end_amdhsa_kernel")
    return "\n".join(o) + "\n", NV


if __name__ == "__main__":
    ap = argparse.ArgumentParser()
    ap.add_argument("-o", default=f"/code/{NAME}.s")
    for name, d in (("sh", 4), ("deep", 5), ("pd", 9), ("pre", 12), ("nf", 6), ("su", 3), ("ss", 3), ("hp0", 0), ("tst", 20),
                    ("ctl", 1), ("hi", 0), ("hiv", 5), ("lo", -25), ("thr", 2), ("tp", 2), ("inv", 1), ("start", 5), ("s0", 0), ("ba", 3),
                    ("r0", 2), ("r1", 30), ("rf", 3), ("rp", 2), ("rt", 26), ("rotl", 7), ("kp", 7), ("kp0", 5), ("kn", 20),
                    ("mg", 5), ("ml", 0), ("aw", 0), ("rw", 0), ("cnt", 0), ("sd", 0),
                    ("eprio", 2), ("psl", 1), ("bound", 4000000), ("hold", 0), ("dly", 0), ("dlb", 2)):
        ap.add_argument("--" + name, type=int, default=d)
    ap.add_argument("--kp_", default="6,6,6,7,8,9,9,10,10,11,11,12,12", help="K loads issued by each prologue point")
    ap.add_argument("--sf", default="nt")
    ap.add_argument("--of", default="")
    ap.add_argument("--wf", default="sc1")
    ap.add_argument("--enc", default="", help="diagnostic only: m0,m1,base,amp,wg")
    ap.add_argument("--qf", default="")
    ap.add_argument("--cf", default="")
    ap.add_argument("--ok", default="REXbLbLbL", help="events of a K group")
    ap.add_argument("--ov", default="REXbLbLbL", help="events of a V group")
    ap.add_argument("--bu", default="012", help="extra depth per position in the issued group")
    ap.add_argument("--th", default="-9,5,13")
    ap.add_argument("--sch", default="sch_np.txt")
    ap.add_argument("--xp", default="", help="timing experiments only")
    for name in ("stamp", "trace", "tfine", "hprof"):
        ap.add_argument("--" + name, action="store_true", help="diagnostics only")
    a = ap.parse_args()
    txt, nv = gen(a)
    open(a.o, "w").write(txt)
    print("wrote", a.o, "vgprs", nv)
```

```python
import argparse
import math
import os
import struct
from gen import HEADER, NAME, Alloc, f32bits, vr

HB = 2048 * 768

ABOUT = """
Generated by tools/gen9.py.
Work split: workgroup (cluster c, block m, member b) handles 128 rows of the 256-row block m for 16 heads 16 k + c
  (slots k = 5 and 10 take their head from a table instead of c); the two members alternate over 32 KiB runs.
  Waves 1-4 stream one 4 KiB block per round; a 16-lane row handles one third (64 dims) of a KV row per load.
  K sweep: logit = k_scale * sum_d (qk - 7.5) * (qa * cos + qb * sin), RoPE moved onto the rotated q;
  V sweep: partial = sum_rows p * v_scale * qv.
  Wave 0 (helper) rotates q, takes max / exp / sums over the workgroup's rows of each head, and merges partials.
Constant parameters (the same for every seed) are built in: both zero points (7.5), q_cos / q_sin (table L_qcs) and
  k_cos / k_sin = bf16(cos / sin(fp32(row * inv_freq))), evaluated once per workgroup from the table L_inv into LDS.
Hand-off: every workgroup finishes one of its heads and streams that head last.  Partials and (max, sum) of
  the other 15 go to d_ws with sc1 stores; every 8 bytes carry a piece of a tag that differs from the one found there on
  entry (sent round through d_debug).  The finisher reads until all tags fit and rescales all 16 to the true row maximum.
Flow control (speed only, results do not depend on it): waves publish a group counter and sample the counters of
  units on the same die; late waves keep one more load in flight, early waves one or two fewer.  Helpers rank the dies.
"""

RUN = (1, 2, 0)


def chunk_of(b, n, s):
    g = 256 * RUN[n >> 3] + 128 * b + 16 * (n & 7) + s
    return {128: 512, 255: 639, 512: 128, 639: 255}.get(g, g)


def tidx(b, row):
    return row - 43 * b - 42 * ((row >= 85) + (row >= 171))


def rev(x, bits):
    return int(format(x, f"0{bits}b")[::-1], 2)


def lpos(n, s):
    return 4 * (16 * s + rev(n, 4)) if n < 16 else 1024 + 4 * (8 * s + rev(n - 16, 3))


TN = [(RUN[n >> 3] + (n & 7)) % 3 for n in range(24)]
SPECIAL = {n: i for i, n in enumerate(sorted(8 * RUN.index(r) + i for r in (0, 2) for i in (0, 7)))}
for b_ in range(2):
    ch = sorted(chunk_of(b_, n, s) for n in range(24) for s in range(16))
    assert ch == sorted(3 * r + k for r in {c // 3 for c in ch} for k in range(3))
    assert all(chunk_of(b_, n, s) % 3 == (TN[n] + 2 * b_ + s) % 3 for n in range(24) for s in range(16))
    assert len({tidx(b_, c // 3) for c in ch}) == 128 and max(tidx(b_, c // 3) for c in ch) == 128


def gen(P):
    o = []
    e = o.append
    RING, PD = 24, P.pd
    sh, deep = P.sh, P.deep
    PRE = P.pre
    TP = P.tp
    LAG = 2
    assert deep <= PD - 1 and sh <= deep and PD <= PRE
    SL = 512
    SA = 16 * SL

    FL = 0
    ST = 256
    TB = 512
    QB = TB + 129 * 384
    LGB = QB + 16 * 768 + 1536
    SCB = LGB + 16 * 1536
    PB = SCB + 2 * SA
    PK = PB + 49152
    LDS = PK + 6144
    assert 81920 < LDS <= 163840
    W_REC = 0x400000
    W_RK = 0x780000
    W_PL = 0x7c0000

    sQ, sQK, sKS, sKZ, sQV, sVS, sVZ, sQC = 4, 6, 8, 10, 12, 14, 16, 18
    sQS, sKC, sKSN, sOUT = 20, 22, 24, 26
    sDBG, sWS = 28, 30
    rA, rB = 32, 36
    sW, sJ, sC, sK, sT0, sT1, sF, sNEED = 40, 41, 42, 43, 44, 45, 46, 47
    sMSK = 48
    sOF = 51
    sPB = 60
    sCO = 61
    sZ = 64
    sMASK, sSCALE, sH = 66, 67, 68
    sS = 69
    sX = 70
    sRF = 80
    sRT = 82
    sST = 84
    sN = 90
    sB = 91
    sVO = 92
    sSP = 94
    sI = 95
    sSE, sCU = 81, 79
    sLO = 78
    sO = 3
    sCN = 96
    sOH, sTG = 98, 99

    va = Alloc(1)
    vT16, vF, vZ, vC16 = [va.take(1) for _ in range(4)]
    voff = va.take(7)
    vTA = va.take(7)
    vQA = va.take(3)
    vPA = va.take(3)
    vLG = va.take(2)
    vLB = va.take(2)
    vLV = va.take(2)
    A = va.take(2)
    LG = va.take(2)
    M1, M2, M3 = [va.take(1) for _ in range(3)]
    bc = va.take(2, 2)
    dacc = va.take(2, 2)
    wt = va.take(4, 2)
    vtr, vPW, vPS, vN, vSum, vSu2, vBA = [va.take(1) for _ in range(7)]
    vPL = va.take(4)
    vBI = va.take(2, 2)
    smp = va.take(8, 4)
    qa = va.take(12, 4)
    tab = va.take(24, 4)
    tmp = va.take(12, 4)
    ring = va.take(4 * RING, 4)
    NV = va.n
    acc = qa

    here = os.path.dirname(os.path.abspath(__file__))
    sch = [[int(x) for x in ln.split()] for ln in open(os.path.join(here, P.sch))]
    sch = [x[:3] + [k for b_ in P.vo for k in x[3 + 5 * int(b_):8 + 5 * int(b_)]] + x[18:] for x in sch]
    inv, qcs = [[int(x, 16) for x in ln.split()] for ln in open(os.path.join(here, "consts.txt"))]
    cj = lambda g: (g >> 4, (g & 7) * 2 + ((g >> 3) & 1))
    ent = {g: sch[16 * cj(g)[0] + cj(g)[1]] for g in range(256)}
    cl = lambda g, k: ent[g][0] if k == 5 else ent[g][1] if k == 10 else g >> 4
    assert sorted(16 * ent[g][2] + cl(g, ent[g][2]) for g in range(256)) == list(range(256))
    ordtab = []
    for g in range(256):
        o_, od = ent[g][2], ent[g][3:]
        assert sorted(od) == list(range(16)) and od[15] == o_
        con = [x for x in range(256) if x != g and cl(x, o_) == cl(g, o_)] + [g]
        assert sorted(cj(x)[1] for x in con) == list(range(16))
        nib = sum(k << (4 * t) for t, k in enumerate(range(16) if "i" in P.xp else od))
        cn = sum((g >> 4 if "c" in P.xp else cl(g, k)) << (4 * k) for k in range(16))
        ctr = [g >> 4, 16 + cl(g, 5), 32 + cl(g, 10)]
        first = {5: 1, 10: 2}.get(o_, 0)
        ctr = [ctr[first]] + [x for i, x in enumerate(ctr) if i != first]
        u16 = [16 * x + ent[x][3:].index(o_) for x in con]
        assert all(v % 16 < 15 for v in u16[:15])
        ordtab += [nib & 0xffffffff, nib >> 32, cn & 0xffffffff, cn >> 32, 16 * o_ + cl(g, o_), ctr[0] | ctr[1] << 8 | ctr[2] << 16, o_, 0]
        ordtab += [u16[2 * i] | u16[2 * i + 1] << 16 for i in range(8)]

    def ld(n):
        rr = rA if n < 24 else rB
        n %= 24
        so = f"s{sOF + (n & 7)}" if n & 7 else "0"
        vo = voff + (3 + SPECIAL[n] if n in SPECIAL and "x" not in P.xp else n >> 3)
        e(f"  buffer_load_dwordx4 {vr(ring + 4 * n, 4)}, {vr(vo)}, s[{rr}:{rr + 3}], {so} offen nt")

    ORD = {"K": P.ok, "V": P.ov}
    DIST = {"K": PRE, "V": PD}
    bu = [int(x) for x in P.bu]
    th = [int(x) for x in P.th.split(",")]
    assert PD % 3 == 0 and PRE % 3 == 0 and deep == sh + 1

    def memops(ph, a):
        r = []
        for i, c in enumerate(ORD[ph]):
            if c == "X" and P.ctl:
                r += [(i, "B")] * (a == P.ba) + [(i, "S"), (i, "Q")]
            if c == "L":
                r.append((i, "L"))
        return r

    def back(ph, a, i):
        r = [c for j, c in memops(ph, a) if j < i][::-1]
        for k in range(1, 8):
            r += [c for _, c in memops(ph, (a - k) % 8)][::-1]
        return r

    def cnt(ph, a, i, depth):
        depth += bu[ORD[ph][:i].count("L")]
        r = back(ph, a, i)
        return [k + 1 for k, c in enumerate(r) if c == "L"][depth - 2] if depth > 1 else 0

    def swait(ph, a):
        assert ORD[ph].index("E") < ORD[ph].index("X")
        r = back(ph, a, ORD[ph].index("E"))
        return [k for k, c in enumerate(r) if c == "Q"][LAG - 1]

    plain = {}

    def verify():
        ops = [("L", i) for i in range(PRE)]
        done = ORD["K"][:ORD["K"].index("L")].count("b")
        for g in range(256):
            ph, a = "KV"[g >= 128], g % 8
            if 3 * g + PD >= 768 or 128 <= g < 128 + (PRE - PD) // 3:
                for n in range(3 * g, 3 * g + 4 - (g == 255)):
                    plain[n] = len(ops) - 1 - ops.index(("L", n))
                done = max(done, len(ops) - plain[min(3 * g + 3, 767)])
                continue
            nb = nl = 3 * g
            for i, c in enumerate(ORD[ph]):
                if c == "E" and P.ctl:
                    done = max(done, len(ops) - swait(ph, a))
                if c == "X" and P.ctl:
                    ops += [("X", 0)] * (1 + (a == P.ba))
                if c == "b":
                    assert ("L", nb) in ops[:done], nb
                    nb += 1
                if c == "L":
                    done = max(done, len(ops) - cnt(ph, a, i, deep if P.ctl else sh))
                    ops.append(("L", nl + DIST[ph]))
                    nl += 1
    verify()
    lab = [0]
    rare = []

    def flush():
        o.extend(rare)
        rare.clear()

    def issue(ph, a, i):
        j = ORD[ph][:i].count("L")
        lab[0] += 1
        if P.ctl and j == TP:
            e(f"  s_cmp_lt_i32 s{sS}, {P.lo}")
            e(f"  s_cbranch_scc1 L_t{lab[0]}")
            rare.extend([f"L_t{lab[0]}:", f"  s_waitcnt vmcnt({cnt(ph, a, i, P.thr + 1)})", f"  s_branch L_p{lab[0]}"])
        if P.ctl:
            t = (P.hi if ph == "K" else P.hiv) + th[j]
            assert t >= P.lo
            e(f"  s_cmp_gt_i32 s{sS}, {t}")
            if t < 0 and P.inv:
                e(f"  s_cbranch_scc0 L_q{lab[0]}")
                rare.extend([f"L_q{lab[0]}:", f"  s_waitcnt vmcnt({cnt(ph, a, i, sh)})", f"  s_branch L_p{lab[0]}"])
                e(f"  s_waitcnt vmcnt({cnt(ph, a, i, deep)})")
                e(f"L_p{lab[0]}:")
            else:
                e(f"  s_cbranch_scc1 L_p{lab[0]}")
                e(f"  s_waitcnt vmcnt({cnt(ph, a, i, sh)})")
                e(f"L_p{lab[0]}:")
                e(f"  s_waitcnt vmcnt({cnt(ph, a, i, deep)})")
        else:
            e(f"  s_waitcnt vmcnt({cnt(ph, a, i, sh)})")
        ld(3 * a + j + DIST[ph])
        if ph == "V" and 3 * a + j + 1 == P.mg:
            e(f"  ds_write_b32 {vr(vPW)}, {vr(M1)} offset:{FL + 32}")
        if ph == "V" and 3 * a + j + 1 == P.ml:
            e(f"  ds_write_b32 {vr(vPW)}, {vr(M1)} offset:{FL + 48}")

    def evaluate(ph, a):
        if not P.ctl:
            return
        sm = smp + 4 * (a % LAG)
        e(f"  s_waitcnt vmcnt({swait(ph, a)})")
        if a == (P.ba + LAG) % 8:
            e(f"  v_add_u32 {vr(vBI)}, {vr(vBI)}, {vr(vBI + 1)}")
        e(f"  s_add_u32 s{sT0}, s{sLO}, 0x03030303")
        e(f"  v_msad_u8 {vr(vSum)}, s{sLO}, {vr(sm)}, 0")
        e(f"  v_msad_u8 {vr(vSu2)}, s{sT0}, {vr(sm)}, 0")
        if a == (P.ba + LAG) % 8:
            e(f"  v_readfirstlane_b32 s{sB}, {vr(vBI)}")
        for k in range(1, 3):
            e(f"  v_msad_u8 {vr(vSum)}, s{sLO}, {vr(sm + k)}, {vr(vSum)}")
            e(f"  v_msad_u8 {vr(vSu2)}, s{sT0}, {vr(sm + k)}, {vr(vSu2)}")
        e(f"  v_sub_u32 {vr(vSum)}, {vr(vSum)}, {vr(vSu2)}")
        e(f"  s_add_u32 s{sLO}, s{sLO}, 0x01010101")
        e(f"  v_readlane_b32 s{sMASK}, {vr(vSum)}, 0")
        e(f"  v_readlane_b32 s{sSCALE}, {vr(vSum)}, 1")

    def decide(ph, a):
        if not P.ctl:
            return
        if a == (P.ba + LAG) % 8:
            for it in filter(None, P.sb.split(",")):
                st_, b_ = [int(v) for v in it.split(":")]
                if (st_ >= 16) == (ph == "V"):
                    e(f"  s_cmp_eq_u32 s{sK}, {st_ % 16}")
                    e(f"  s_cselect_b32 s{sT0}, {b_}, 0")
                    e(f"  s_add_u32 s{sB}, s{sB}, s{sT0}")
        cur, old = (sI, sCO) if a & 1 else (sCO, sI)
        e(f"  s_add_u32 s{cur}, s{sMASK}, s{sSCALE}")
        e(f"  s_add_u32 s{sS}, s{cur}, s{old}")
        e(f"  s_ashr_i32 s{sS}, s{sS}, 1")
        e(f"  s_add_u32 s{sS}, s{sS}, s{sB}")
        if ph == "K" and a < P.start:
            e(f"  s_cmp_eq_u32 s{sK}, 0")
            e(f"  s_cselect_b32 s{sS}, {P.s0}, s{sS}")

    def exchange(a):
        if not P.ctl:
            return
        e("  s_mov_b64 exec, 1")
        if a == P.ba:
            e(f"  global_load_dwordx2 {vr(vBI, 2)}, {vr(vBA)}, s[{sWS}:{sWS + 1}] sc1")
        e(f"  global_store_byte {vr(vPS)}, {vr(vN)}, s[{sWS}:{sWS + 1}]")
        e("  s_mov_b64 exec, 3")
        e(f"  global_load_dwordx3 {vr(smp + 4 * (a % LAG), 3)}, {vr(vPL + a % 4)}, s[{sWS}:{sWS + 1}] sc1")
        e(f"  v_add_u32 {vr(vN)}, 1, {vr(vN)}")
        e("  s_mov_b64 exec, -1")

    def srd_head(rr, sp, sh_):
        e(f"  s_mul_i32 s{sT0}, s{sh_}, {HB}")
        e(f"  s_add_u32 s{rr}, s{sp}, s{sT0}")
        e(f"  s_addc_u32 s{rr + 1}, s{sp + 1}, 0")

    def vstep_k(dst, src):
        e(f"  s_lshl_b32 s{dst}, s{src}, 2")
        e(f"  s_lshr_b64 s[{sZ}:{sZ + 1}], s[{sVO}:{sVO + 1}], s{dst}")
        e(f"  s_and_b32 s{dst}, s{sZ}, 15")

    def head_of(dst, slot):
        e(f"  s_lshl_b32 s{sT0}, s{slot}, 2")
        e(f"  s_lshr_b64 s[{sZ}:{sZ + 1}], s[{sCN}:{sCN + 1}], s{sT0}")
        e(f"  s_and_b32 s{sZ}, s{sZ}, 15")
        e(f"  s_lshl4_add_u32 s{dst}, s{slot}, s{sZ}")

    def budget(ok):
        e(f"  s_cmp_eq_u32 s{sSP}, 0")
        e(f"  s_cbranch_scc1 {ok}")
        e(f"  s_sub_u32 s{sSP}, s{sSP}, 1")

    def flagwait(name, off):
        e(f"L_{name}:")
        e("  s_waitcnt lgkmcnt(0)")
        e(f"  v_readfirstlane_b32 s{sF}, {vr(vF)}")
        e(f"  s_cmp_ge_u32 s{sF}, s{sNEED}")
        e(f"  s_cbranch_scc0 L_{name}_no")
        e(f"L_{name}_ok:")
        rare.extend([f"L_{name}_no:", f"  s_cmp_eq_u32 s{sSP}, 0", f"  s_cbranch_scc1 L_{name}_ok", f"  s_sub_u32 s{sSP}, s{sSP}, 1",
                     f"  ds_read_b32 {vr(vF)}, {vr(vZ)} offset:{off}", f"  s_branch L_{name}"])

    def tr():
        if P.trace:
            e(f"  {'s_memtime' if 'm' in P.xp else 's_memrealtime'} s[88:89]")
            e("  s_waitcnt lgkmcnt(0)")
            e(f"  v_writelane_b32 {vr(vtr)}, s88, m0")
            e("  s_add_u32 m0, m0, 1")
            e("  s_min_u32 m0, m0, 63")

    def die_base(dst):
        e(f"  s_getreg_b32 s{sSE}, hwreg(HW_REG_HW_ID, 8, 7)")
        e(f"  s_getreg_b32 s{dst}, hwreg(HW_REG_XCC_ID, 0, 3)")
        e(f"  s_and_b32 s{sCU}, s{sSE}, 15")
        e(f"  s_lshr_b32 s{sSE}, s{sSE}, 5")
        e(f"  s_mul_i32 s{dst}, s{dst}, 4352")
        e(f"  s_add_u32 s{dst}, s{dst}, {W_PL}")

    ha = Alloc(16)
    l, u, h0, h1, h2, h3 = [ha.take(1) for _ in range(6)]
    qo, wa, wb, sgn, sgx, sg2 = [ha.take(1) for _ in range(6)]
    ro = ha.take(8)
    vL16, vCNT, vDB, vOne, vFA, vFI, vFR, vFX, vFB, vEL, vCL, vSa = [ha.take(1) for _ in range(12)]
    z4 = ha.take(4, 4)
    cs = ha.take(8, 4)
    sc = ha.take(4, 4)
    qn = ha.take(4, 4)
    x = ha.take(32, 4)
    pr = ha.take(4, 4)
    fo = ha.take(4, 4)
    rec = ha.take(32, 4)
    blk = ha.take(24, 4)
    st4 = ha.take(4, 4)
    ra = ha.take(16)
    assert ha.n <= NV and vZ < 16

    invX, invY, tK, tA, tN, tO = tmp, tmp + 4, tmp + 8, tab, tab + 4, tab + 8
    PC0 = 20 + 8 * P.stamp + 16 * (P.dly > 0)
    D_INV, D_QCS, D_END = 256, 768, 1152
    NF = P.nf
    assert RUN[0] == 1 and NF <= 8
    e(HEADER.rstrip("\n"))
    e(f"; @launch grid=(256,1,1) block=(320,1,1) lds={LDS}")
    for ln in ABOUT.strip("\n").split("\n"):
        e("; " + ln)
    e('.amdgcn_target "amdgcn-amd-amdhsa--gfx950"')
    e(".text")
    e(f".globl {NAME}_kernel")
    e(".p2align 8")
    e(f".type {NAME}_kernel,@function")
    e(f"{NAME}_kernel:")
    e("  s_cmpk_ge_u32 s2, 0x100")
    e("  s_cbranch_scc1 L_end")
    if P.dly:
        e("; diagnostic build only: half of the dies start late")
        e(f"  s_getreg_b32 s4, hwreg(HW_REG_XCC_ID, {P.dlb}, 1)")
        e("  s_cmp_eq_u32 s4, 0")
        e("  s_cbranch_scc1 L_dly")
        e(f"  s_sleep {P.dly}")
        e("L_dly:")
    if P.stamp:
        e(f"  s_memrealtime s[{sST}:{sST + 1}]")
    e("  s_load_dwordx16 s[4:19], s[0:1], 0")
    e(f"  s_getpc_b64 s[{sZ}:{sZ + 1}]")
    e("L_pc:")
    e("  v_cmp_gt_u32 vcc, 64, v0")
    e(f"  v_lshlrev_b32 {vr(vT16)}, 4, v0")
    e(f"  s_lshr_b32 s{sC}, s2, 4")
    e(f"  s_and_b32 s{sH}, s2, 7")
    e(f"  s_lshl3_add_u32 s{sH}, s{sC}, s{sH}")
    e(f"  s_movk_i32 s{sNEED}, 768")
    e("  s_cbranch_vccz L_s0")
    e(f"  v_lshl_add_u32 {vr(h0)}, s{sC}, 6, v0")
    e(f"  v_mul_u32_u24 {vr(h0)}, {P.tst}, {vr(h0)}")
    e(f"  global_load_dword {vr(h3)}, {vr(h0)}, s[{sZ}:{sZ + 1}] offset:{D_END - PC0} {P.cf}")
    e(f"  v_and_b32 {vr(vL16)}, 0x1f0, {vr(vT16)}")
    e(f"  global_load_dwordx4 {vr(pr, 4)}, {vr(vL16)}, s[{sZ}:{sZ + 1}] offset:{D_QCS - PC0}")
    e("  s_branch L_helper")
    e("L_s0:")
    e(f"  v_and_b32 {vr(vC16)}, 0xf0, {vr(vT16)}")
    e(f"  global_load_dwordx4 {vr(invX, 4)}, {vr(vC16)}, s[{sZ}:{sZ + 1}] offset:{D_INV - PC0}")
    e(f"  global_load_dwordx4 {vr(invY, 4)}, {vr(vC16)}, s[{sZ}:{sZ + 1}] offset:{D_INV + 256 - PC0}")
    e(f"  s_mul_i32 s{sT0}, s{sH}, 196608")
    e(f"  s_and_b32 s{sT1}, s2, 8")
    e(f"  s_lshl_b32 s{sT1}, s{sT1}, 12")
    e(f"  s_add_u32 s{sT0}, s{sT0}, s{sT1}")
    e(f"  s_add_u32 s{sT0}, s{sT0}, {65536 * RUN[0] - 1024 + 4096}")
    e(f"  v_add_u32 {vr(tA)}, s{sT0}, {vr(vT16)}")
    for k in range(1, (NF + 1) // 2):
        e(f"  v_add_u32 {vr(tA + k)}, {8192 * k}, {vr(tA)}")
    e("  s_waitcnt lgkmcnt(0)")
    for n in range(NF):
        e(f"  global_load_dwordx4 {vr(ring + 4 * n, 4)}, {vr(tA + n // 2)}, s[{sQK}:{sQK + 1}] offset:{4096 * (n % 2) - 4096} nt")
    e("  s_branch L_s1")
    e("L_b0:")
    e(f".if (L_b0 - {NAME}_kernel > {D_INV}) || (L_pc - {NAME}_kernel != {PC0})")
    e('.error "entry block layout"')
    e(".endif")
    e(".p2align 8")
    e(".type L_inv,@object")
    e("L_inv:")
    tb = inv[:64] + inv[64:] + inv[64:]
    for k in range(0, 128, 8):
        e("  .long " + ", ".join(f"{v:#x}" for v in tb[k:k + 8]))
    e(".type L_qcs,@object")
    e("L_qcs:")
    for k in range(0, 96, 8):
        e("  .long " + ", ".join(f"{v:#x}" for v in qcs[k:k + 8]))

    def common():
        e(f"  s_load_dwordx8 s[24:31], s[0:1], 80")
        e(f"  s_lshl_b32 s{sT0}, s2, 6")
        e(f"  s_add_u32 s{sT0}, s{sT0}, L_order-L_pc")
        e(f"  s_add_u32 s{sRT}, s{sZ}, s{sT0}")
        e(f"  s_addc_u32 s{sRT + 1}, s{sZ + 1}, 0")
        e(f"  s_load_dwordx2 s[{sVO}:{sVO + 1}], s[{sRT}:{sRT + 1}], 0")
        e(f"  s_load_dwordx2 s[{sCN}:{sCN + 1}], s[{sRT}:{sRT + 1}], 8")
        e(f"  v_mov_b32 {vr(vZ)}, 0")
        e(f"  s_mov_b32 s{sSP}, {P.bound}")
        e(f"  s_bfe_u32 s{sJ}, s2, 0x10003")

    PFR = [8, 10, 14, 16, 18, 20, 22, 72, 74, 76, 4, 86]
    pfn = [0]

    def pf():
        if P.tfine:
            e(f"  {'s_memtime' if 'm' in P.xp else 's_memrealtime'} s[{PFR[pfn[0]]}:{PFR[pfn[0]] + 1}]")
            pfn[0] += 1

    e("L_s1:")
    w_, s_, vAD, vC8, t0, t1 = wt, wt + 1, wt + 2, wt + 3, dacc, dacc + 1
    vRF, pos = vT16, tK + 3
    if P.trace:
        e(f"  v_mov_b32 {vr(vtr)}, 0")
        e("  s_mov_b32 m0, 0")
    pf()
    e("  v_subrev_u32 v0, 64, v0")
    e("  s_setprio 1")
    common()
    e(f"  v_lshrrev_b32 {vr(w_)}, 6, v0")
    e(f"  v_lshrrev_b32 {vr(s_)}, 4, v0")
    e(f"  v_and_b32 {vr(vC8)}, 0x70, {vr(vC16)}")
    e(f"  v_readfirstlane_b32 s{sW}, {vr(w_)}")
    e(f"  v_add_u32 {vr(vAD)}, {vr(vC8)}, {vr(s_)}")
    e(f"  s_mul_i32 s{sT0}, s{sJ}, 44")
    e(f"  s_sub_u32 s{sT0}, 86, s{sT0}")
    e(f"  v_cmp_eq_u32 vcc, s{sT0}, {vr(vAD)}")
    e(f"  v_mov_b32 {vr(t0)}, 0x80")
    e(f"  s_and_b32 s{sH}, s2, 7")
    e(f"  v_cndmask_b32 {vr(vAD)}, {vr(vAD)}, {vr(t0)}, vcc")
    e(f"  v_mul_u32_u24 {vr(t0)}, 381, {vr(vAD)}")
    e(f"  s_mul_i32 s{sT0}, s{sJ}, 43")
    e(f"  v_add_u32 {vr(t0)}, 2, {vr(t0)}")
    e(f"  s_lshl_b32 s{sT1}, s{sH}, 8")
    e(f"  v_lshrrev_b32 {vr(t0)}, 14, {vr(t0)}")
    assert all((381 * i + 2) >> 14 == (i >= 43) + (i >= 86) for i in range(129))
    e(f"  s_add_u32 s{sT0}, s{sT0}, s{sT1}")
    e(f"  v_mad_u32_u24 {vr(t0)}, {vr(t0)}, 42, {vr(vAD)}")
    e(f"  v_add_u32 {vr(t0)}, s{sT0}, {vr(t0)}")
    e(f"  v_cvt_f32_u32 {vr(vRF)}, {vr(t0)}")
    e(f"  v_mul_u32_u24 {vr(vAD)}, 384, {vr(vAD)}")
    e(f"  s_mov_b32 s{rA + 2}, {HB}")
    e(f"  s_mov_b32 s{rA + 3}, 0x20000")
    srd_head(rA, sQK, sC)
    e(f"  s_mul_i32 s{sT0}, s{sH}, 6")
    e(f"  s_add_u32 s{sT0}, s{sT0}, s{sJ}")
    e(f"  s_lshl_b32 s{sT0}, s{sT0}, 15")
    e(f"  v_lshl_add_u32 {vr(voff + RUN.index(0))}, v0, 4, s{sT0}")
    for k in (1, 2):
        e(f"  v_add_u32 {vr(voff + RUN.index(k))}, {65536 * k:#x}, {vr(voff + RUN.index(0))}")
    for i in range(1, 8):
        e(f"  s_movk_i32 s{sOF + i}, {4096 * i}")
    nk = [NF]
    assert PRE <= RING and max(int(v) for v in P.kp_.split(",")[:P.su + 1]) <= min(SPECIAL)

    def k_loads(hi):
        while nk[0] < min(hi, PRE):
            ld(nk[0])
            nk[0] += 1

    def toff_(n):
        run = RUN[n >> 3]
        return 384 * (16 * (((n & 7) + run) // 3) + 38 * run)

    def setup():
        e("; per chunk class k: q operand, table and partial addresses")
        e(f"  s_lshl1_add_u32 s{sF}, s{sJ}, s{sW}")
        e(f"  s_lshl_b32 s{sF}, s{sF}, 1")
        e(f"  s_lshr_b32 s{sF}, 0x4924, s{sF}")
        e(f"  v_bfe_u32 {vr(t1)}, v0, 4, 2")
        e(f"  v_lshl_add_u32 {vr(t1)}, {vr(t1)}, 2, {vr(vC16)}")
        e(f"  v_mad_u32_u24 {vr(vF)}, {vr(w_)}, s{sNEED}, {vr(t1)}")
        e(f"  v_add_u32 {vr(vF)}, {PB - 3072}, {vr(vF)}")
        e(f"  s_mul_i32 s{sT1}, s{sJ}, {43 * 384}")
        e(f"  s_sub_u32 s{sT1}, {TB}, s{sT1}")
        e(f"  v_lshl_add_u32 {vr(vSum)}, s{sJ}, 7, {vr(s_)}")
        for k in range(3):
            e(f"  s_bfe_u32 s{sT0}, s{sF}, {(2 << 16) | 2 * k:#x}")
            e(f"  v_lshl_add_u32 {vr(vPA + k)}, s{sT0}, 8, {vr(vF)}")
            if k:
                e(f"  v_add_u32 {vr(vSum)}, 16, {vr(vSum)}")
            e(f"  v_mul_u32_u24 {vr(t0)}, 171, {vr(vSum)}")
            e(f"  v_lshrrev_b32 {vr(t0)}, 9, {vr(t0)}")
            e(f"  v_mad_i32_i24 {vr(t1)}, {vr(t0)}, -3, {vr(vSum)}")
            e(f"  v_lshl_add_u32 {vr(t1)}, {vr(t1)}, 8, {vr(vC16)}")
            e(f"  v_add_u32 {vr(vQA + k)}, {QB}, {vr(t1)}")
            e(f"  v_subrev_u32 {vr(vSu2)}, 384, {vr(t1)}")
            e(f"  v_min_u32 {vr(t1)}, {vr(t1)}, {vr(vSu2)}")
            e(f"  v_mul_u32_u24 {vr(t0)}, 384, {vr(t0)}")
            e(f"  v_add3_u32 {vr(vTA + k)}, {vr(t0)}, {vr(t1)}, s{sT1}")
        e(f"  v_lshl_add_u32 {vr(vSum)}, s{sJ}, 4, {vr(s_)}")
        for n, i in SPECIAL.items():
            run, sx = RUN[n >> 3], 15 * (n & 7 == 7)
            b = int(run == 0)
            g0, g1 = 256 * run + 128 * b + 16 * (n & 7) + sx, chunk_of(b, n, sx)
            dt = 384 * (tidx(b, g1 // 3) - (g0 // 3 - 43 * b - 42 * run))
            e(f"  v_cmp_eq_u32 vcc, {16 * b + sx}, {vr(vSum)}")
            e(f"  v_add_u32 {vr(t0)}, {256 * (g1 - g0) & 0xffffffff:#x}, {vr(voff + (n >> 3))}")
            e(f"  v_add_u32 {vr(t1)}, {toff_(n)}, {vr(vTA + TN[n])}")
            e(f"  v_add_u32 {vr(vSu2)}, {dt & 0xffffffff:#x}, {vr(t1)}")
            e(f"  v_cndmask_b32 {vr(voff + 3 + i)}, {vr(voff + (n >> 3))}, {vr(t0)}, vcc")
            e(f"  v_cndmask_b32 {vr(vTA + 3 + i)}, {vr(t1)}, {vr(vSu2)}, vcc")
        e(f"  v_lshlrev_b32 {vr(vLB)}, 2, v0")
        e(f"  v_add_u32 {vr(vLB)}, {LGB}, {vr(vLB)}")
        e(f"  v_lshrrev_b32 {vr(t1)}, 1, v0")
        e(f"  v_lshlrev_b32 {vr(t1)}, 2, {vr(t1)}")
        e(f"  v_add_u32 {vr(vLB + 1)}, {LGB + 1024}, {vr(t1)}")
        e(f"  v_subrev_u32 {vr(vLG)}, 1536, {vr(vLB)}")
        e(f"  v_subrev_u32 {vr(vLG + 1)}, 1536, {vr(vLB + 1)}")
        e(f"  v_lshlrev_b32 {vr(vPW)}, 2, {vr(w_)}")
        e(f"  s_mov_b32 s{sMSK}, 0xcccccccc")
        e(f"  s_mov_b32 s{sMSK + 1}, s{sMSK}")
        e(f"  s_mov_b32 s{sMSK + 2}, 0xaaaaaaaa")
        e(f"  s_mov_b32 s{sMSK + 3}, s{sMSK + 2}")
        e(f"  s_mov_b32 s{rB + 2}, {HB}")
        e(f"  s_mov_b32 s{rB + 3}, 0x20000")
        e(f"  s_mov_b32 s{sK}, 0")
        if P.ctl:
            e("; progress slots: this wave writes one byte of line (half, w) and samples the lines of the other half")
            die_base(sF)
            e(f"  s_add_u32 s{sT0}, s{sF}, 2048")
            e(f"  v_mov_b32 {vr(vBA)}, s{sT0}")
            e(f"  s_and_b32 s{sT1}, s{sSE}, 2")
            e(f"  s_lshl_b32 s{sT1}, s{sT1}, 9")
            e(f"  s_lshl_b32 s{sT0}, s{sW}, 8")
            e(f"  s_add_u32 s{sT0}, s{sT0}, s{sT1}")
            e(f"  s_add_u32 s{sT0}, s{sT0}, s{sF}")
            e(f"  s_add_u32 s{sT0}, s{sT0}, s{sCU}")
            e(f"  s_and_b32 s{sSE}, s{sSE}, 1")
            e(f"  s_lshl_b32 s{sSE}, s{sSE}, 4")
            e(f"  s_add_u32 s{sT0}, s{sT0}, s{sSE}")
            e(f"  v_mov_b32 {vr(vPS)}, s{sT0}")
            e(f"  s_xor_b32 s{sT1}, s{sT1}, 1024")
            e(f"  s_add_u32 s{sF}, s{sF}, s{sT1}")
            e(f"  v_and_b32 {vr(vN)}, 1, v0")
            e(f"  v_lshl_add_u32 {vr(vN)}, {vr(vN)}, 4, s{sF}")
            for k in range(4):
                e(f"  v_add_u32 {vr(vSum)}, {k}, {vr(w_)}")
                e(f"  v_and_b32 {vr(vSum)}, 3, {vr(vSum)}")
                e(f"  v_lshl_add_u32 {vr(vPL + k)}, {vr(vSum)}, 8, {vr(vN)}")
            e(f"  s_mov_b32 s{sLO}, {(-(LAG + 2) * 0x01010101) & 0xffffffff:#x}")
            for k in range(4 * LAG):
                e(f"  v_mov_b32 {vr(smp + k)}, 0")
            for k in range(2):
                e(f"  v_mov_b32 {vr(vBI + k)}, 0")
            e(f"  v_mov_b32 {vr(vN)}, 0")
            e(f"  s_mov_b32 s{sB}, 0")
            e(f"  s_mov_b32 s{sS}, {P.s0}")
            e(f"  s_mov_b32 s{sI}, 0")
            e(f"  s_mov_b32 s{sCO}, 0")

    def sincos(dst, iv):
        for h in (0, 2):
            e(f"  v_pk_mul_f32 {vr(tA + h, 2)}, {vr(iv + h, 2)}, {vr(tK + 2, 2)} op_sel:[0,1] op_sel_hi:[1,1]")
        if iv == invY:
            for h in (0, 2):
                e(f"  v_pk_mul_f32 {vr(tN + h, 2)}, {vr(tA + h, 2)}, {vr(tK, 2)} op_sel_hi:[1,0]")
        else:
            for h in (0, 2):
                e(f"  v_pk_fma_f32 {vr(tN + h, 2)}, {vr(tA + h, 2)}, {vr(tK, 2)}, {vr(tK, 2)} op_sel:[0,0,1] op_sel_hi:[1,0,1]")
            for h in (0, 2):
                e(f"  v_pk_add_f32 {vr(tN + h, 2)}, {vr(tN + h, 2)}, {vr(tK, 2)} op_sel:[0,1] op_sel_hi:[1,1] neg_lo:[0,1] neg_hi:[0,1]")
            for h in (0, 2):
                e(f"  v_pk_fma_f32 {vr(tN + h, 2)}, {vr(tA + h, 2)}, {vr(tK, 2)}, {vr(tN + h, 2)} op_sel_hi:[1,0,1] neg_lo:[0,0,1] neg_hi:[0,0,1]")
            for h in (0, 2):
                e(f"  v_pk_fma_f32 {vr(tN + h, 2)}, {vr(tA + h, 2)}, {vr(tK + 2, 2)}, {vr(tN + h, 2)} op_sel_hi:[1,0,1]")
        for i in range(4):
            e(f"  v_cos_f32 {vr(tA + i)}, {vr(tN + i)}")
        for i in range(4):
            e(f"  v_sin_f32 {vr(tN + i)}, {vr(tN + i)}")
        for i in range(4):
            e(f"  v_cvt_pk_bf16_f32 {vr(dst + i)}, {vr(tA + i)}, {vr(tN + i)}")

    kp = [int(v) for v in P.kp_.split(",")]

    def chunk(i):
        a = 2 * (i // 3)
        d = tO + 4 * (i & 1)
        bc_ = lambda x, m: f"row_newbcast:{x} row_mask:0xf bank_mask:{m:#x}"
        if i % 3 == 1:
            e(f"  v_mov_b32_dpp {vr(pos)}, {vr(vRF)} {bc_(a + 1, 12)}")
            e(f"  v_add_u32_dpp {vr(vF)}, {vr(vAD)}, {vr(vC8)} {bc_(a, 3)}")
            e(f"  v_add_u32_dpp {vr(vF)}, {vr(vAD)}, {vr(vC8)} {bc_(a + 1, 12)}")
            sincos(d, invY)
            e(f"  ds_write_b128 {vr(vF)}, {vr(d, 4)} offset:{TB + 256}")
        else:
            a += i % 3 // 2
            e(f"  v_mov_b32_dpp {vr(pos)}, {vr(vRF)} {bc_(a, 15)}")
            e(f"  v_add_u32_dpp {vr(vF)}, {vr(vAD)}, {vr(vC16)} {bc_(a, 15)}")
            sincos(d, invX)
            e(f"  ds_write_b128 {vr(vF)}, {vr(d, 4)} offset:{TB}")

    def tab_read(a):
        for n in range(3 * a, 3 * a + 3):
            d = tab + 12 * (a & 1) + 4 * (n % 3)
            if n in SPECIAL:
                e(f"  ds_read_b128 {vr(d, 4)}, {vr(vTA + 3 + SPECIAL[n])}")
            else:
                e(f"  ds_read_b128 {vr(d, 4)}, {vr(vTA + TN[n])} offset:{toff_(n)}")

    c_hi = f32bits(1 / (2 * math.pi))
    c_lo = f32bits(1 / (2 * math.pi) - struct.unpack("<f", struct.pack("<I", c_hi))[0])
    e(f"  v_mov_b32 {vr(tK)}, {c_hi:#x}")
    e(f"  v_mov_b32 {vr(tK + 1)}, {f32bits(1.5 * 2 ** 23):#x}")
    e(f"  v_mov_b32 {vr(tK + 2)}, {c_lo:#x}")
    k_loads(kp[0])
    pf()
    e(f"  s_waitcnt vmcnt({nk[0]})")
    pf()
    for i in range(12):
        if i == P.su:
            setup()
            pf()
        chunk(i)
        k_loads(kp[i + 1])
        if i % 3 == 2:
            pf()
    k_loads(PRE)
    e(f"  v_mov_b32 {vr(bc)}, {f32bits(-7.5):#x}")
    e("  s_waitcnt lgkmcnt(0)")
    e("  s_barrier")
    pf()
    for k in range(3):
        e(f"  ds_read_b128 {vr(qa + 4 * k, 4)}, {vr(vQA + k)}")
    tab_read(0)
    e(f"  s_waitcnt vmcnt({PRE - ORD['K'][:ORD['K'].index('L')].count('b')})")
    pf()
    if P.tfine:
        e("  s_waitcnt lgkmcnt(0)")
        for k in range(pfn[0]):
            e(f"  v_writelane_b32 {vr(vtr)}, s{PFR[k]}, {k}")
        e(f"  s_mov_b32 m0, {pfn[0]}")

    def vfirst():
        e(f"  s_and_b32 s{sH}, s{sVO}, 15")
        e(f"  s_add_u32 s{sNEED}, s{sH}, 1")
        e(f"  ds_read_b32 {vr(vF)}, {vr(vZ)} offset:{FL + 20}")
        flagwait("a0", FL + 20)
        e(f"  s_mulk_i32 s{sH}, 1536")
        for k in range(2):
            e(f"  v_add_u32 {vr(vLV + k)}, s{sH}, {vr(vLB + k)}")
        e(f"  ds_read_b32 {vr(A)}, {vr(vLV)}")

    assert all(x[3] < 14 for x in sch)

    def knext():
        e("; next SRD: K head k + 1, or the V heads of steps 0 / 1 once K runs out")
        e(f"  s_add_u32 s{sH}, s{sK}, 1")
        e(f"  s_sub_u32 s{sT1}, s{sH}, 16")
        vstep_k(sF, sT1)
        e(f"  s_cmp_lt_u32 s{sH}, 16")
        e(f"  s_cselect_b32 s{sH}, s{sH}, s{sF}")
        e(f"  s_cselect_b32 s{sX}, s{sQK}, s{sQV}")
        e(f"  s_cselect_b32 s{sX + 1}, s{sQK + 1}, s{sQV + 1}")
        head_of(sH, sH)
        srd_head(rB, sX, sH)

    def kred(n):
        dpp = lambda d, x, how, m: e(f"  v_add_f32_dpp {vr(d)}, {vr(x)}, {vr(x)} {how} row_mask:0xf bank_mask:{m:#x}")
        dpp(M1, dacc, "row_ror:8", 12 if n & 1 else 3)
        if n % 2 == 1:
            e("  s_nop 1")
            dpp(M2, M1, "row_half_mirror", 10 if n & 2 else 5)
        if n % 4 == 3:
            e("  s_nop 1")
            dpp(M2 if n & 4 else M3, M2, "quad_perm:[2,3,0,1]", 15)
        if n % 8 == 7:
            e(f"  v_cndmask_b32_e64 {vr(M3)}, {vr(M3)}, {vr(M2)}, s[{sMSK}:{sMSK + 1}]")
            e("  s_nop 1")
            dpp((LG, M3, LG + 1)[n >> 3], M3, "quad_perm:[1,0,3,2]", 15)
        if n == 15:
            e(f"  v_cndmask_b32_e64 {vr(LG)}, {vr(LG)}, {vr(M3)}, s[{sMSK + 2}:{sMSK + 3}]")

    e(".p2align 6")
    e("L_k:")

    def kbody(n):
        k_, q_ = ring + 4 * n, qa + 4 * TN[n]
        for i in range(4):
            e(f"  v_dot2_f32_bf16 {vr(wt + i)}, {vr(tab + 12 * (n // 3 & 1) + 4 * (n % 3) + i)}, {vr(q_ + i)}, 0")
        for i in range(4):
            e(f"  v_cvt_f32_i32 {vr(k_ + i)}, {vr(k_ + i)}")
        if n >= 21:
            e(f"  ds_read_b128 {vr(q_, 4)}, {vr(vQA + TN[n])}")
        for h in range(2):
            e(f"  v_pk_add_f32 {vr(k_ + 2 * h, 2)}, {vr(k_ + 2 * h, 2)}, {vr(bc, 2)} op_sel_hi:[1,0]")
        e(f"  v_pk_mul_f32 {vr(dacc, 2)}, {vr(k_, 2)}, {vr(wt, 2)}")
        e(f"  v_pk_fma_f32 {vr(dacc, 2)}, {vr(k_ + 2, 2)}, {vr(wt + 2, 2)}, {vr(dacc, 2)}")
        e(f"  v_add_f32 {vr(dacc)}, {vr(dacc)}, {vr(dacc + 1)}")

    def kout():
        e(f"  v_mov_b32 {vr(vF)}, s{sK}")
        for k in range(2):
            e(f"  ds_write_b32 {vr(vLG + k)}, {vr(LG + k)}")
        e(f"  ds_write_b32 {vr(vPW)}, {vr(vF)} offset:{FL}")

    def group(ph, a, body, after, res):
        nb, pend = 3 * a, None
        od = ORD[ph]
        for i, c in enumerate(od):
            if pend is not None and c != "L":
                if od[i - 1] == "b":
                    e("  s_nop 1")
                after(pend)
                pend = None
            if c == "E":
                evaluate(ph, a)
                if od[i + 1] != "X":
                    decide(ph, a)
            if c == "X":
                exchange(a)
                if od[i - 1] == "E":
                    decide(ph, a)
            if c == "R" and a == 0:
                res()
            if c == "b":
                body(nb)
                pend = nb if after else None
                nb += 1
            if c == "L":
                issue(ph, a, i)
        if pend is not None:
            if od[-1] == "b":
                e("  s_nop 1")
            after(pend)

    for a in range(8):
        if a == 7:
            flagwait("qn", FL + 16)
        else:
            e("  s_waitcnt lgkmcnt(0)")
        tab_read((a + 1) % 8)
        if a == 6:
            e(f"  ds_read_b32 {vr(vF)}, {vr(vZ)} offset:{FL + 16}")
        group("K", a, kbody, kred, kout)
        if a == 1:
            knext()
        if a == 3:
            e(f"  s_add_u32 s{sT0}, s{sK}, 2")
            e(f"  s_min_u32 s{sNEED}, s{sT0}, 16")
            for k in range(3):
                e(f"  v_add_u32 {vr(vQA + k)}, 768, {vr(vQA + k)}")
            for k in range(2):
                e(f"  v_add_u32 {vr(vLG + k)}, 1536, {vr(vLG + k)}")
            e(f"  s_cmp_eq_u32 s{sK}, 15")
            e("  s_cbranch_scc1 L_kv")
            e("L_kw:")
        if a in (3, 7) or P.tfine:
            tr()
    assert sorted(TN[21:]) == [0, 1, 2] and TN[:3] == TN[3:6] and sorted(TN[:3]) == [0, 1, 2] and PRE <= 18
    e(f"  s_add_u32 s{sK}, s{sK}, 1")
    e(f"  s_mov_b64 s[{rA}:{rA + 1}], s[{rB}:{rB + 1}]")
    e(f"  s_cmp_lt_u32 s{sK}, 16")
    e("  s_cbranch_scc1 L_k")


    def vbody(n):
        v_ = ring + 4 * n
        e(f"  v_mov_b32_dpp {vr(bc)}, {vr(A + n // 16)} row_newbcast:{rev(n % 16, 4)} row_mask:0xf bank_mask:0xf")
        for i in range(4):
            e(f"  v_cvt_f32_i32 {vr(v_ + i)}, {vr(v_ + i)}")
        for h in range(2):
            d = 4 * TN[n] + 2 * h
            if n < 3:
                e(f"  v_pk_mul_f32 {vr(tmp + d, 2)}, {vr(v_ + 2 * h, 2)}, {vr(bc, 2)} op_sel_hi:[1,0]")
            else:
                e(f"  v_pk_fma_f32 {vr(acc + d, 2)}, {vr(v_ + 2 * h, 2)}, {vr(bc, 2)}, {vr((tmp if n < 6 else acc) + d, 2)} op_sel_hi:[1,0,1]")

    def vout(last=False):
        for j in range(3):
            e(f"  v_permlane32_swap_b32 {vr(acc + 4 * j)}, {vr(acc + 4 * j + 2)}")
            e(f"  v_permlane32_swap_b32 {vr(acc + 4 * j + 1)}, {vr(acc + 4 * j + 3)}")
        for j in range(3):
            e(f"  v_add_f32 {vr(acc + 4 * j)}, {vr(acc + 4 * j)}, {vr(acc + 4 * ((j + 1) % 3) + 2)}")
            e(f"  v_add_f32 {vr(acc + 4 * j + 1)}, {vr(acc + 4 * j + 1)}, {vr(acc + 4 * ((j + 1) % 3) + 3)}")
        for j in range(3):
            e(f"  v_permlane16_swap_b32 {vr(acc + 4 * j)}, {vr(acc + 4 * j + 1)}")
        for j in range(3):
            e(f"  v_add_f32 {vr(acc + 4 * j)}, {vr(acc + 4 * j)}, {vr(acc + 4 * ((j + 2) % 3) + 1)}")
        for j in range(3):
            e(f"  ds_write_b32 {vr(vPA + j)}, {vr(acc + 4 * j)}")
        if not last:
            e(f"  ds_write_b32 {vr(vPW)}, {vr(M1)} offset:{FL}")

    def vnext():
        e(f"  s_add_u32 s{sT1}, s{sK}, 1")
        e(f"  s_min_u32 s{sT1}, s{sT1}, 15")
        vstep_k(sH, sT1)
        e(f"  s_add_u32 s{sNEED}, s{sH}, 1")
        e(f"  s_mul_i32 s{sF}, s{sH}, 1536")
        head_of(sH, sH)
        srd_head(rB, sQV, sH)
        for k in range(2):
            e(f"  v_add_u32 {vr(vLV + k)}, s{sF}, {vr(vLB + k)}")

    NS, NT = (PRE - PD) // 3, 8 - PD // 3
    assert NS == 1 and NT <= 5 and max(P.mg, P.ml) <= 3 * NT
    e("L_vpre:")
    kout()
    e(f"  s_mov_b32 s{sK}, 0")
    e(f"  v_mov_b32 {vr(M1)}, 16")
    for n in range(3):
        e(f"  s_waitcnt vmcnt({plain[384 + n]})")
        vbody(n)
    e(f"  s_waitcnt vmcnt({plain[387]}) lgkmcnt(0)")
    e("  s_branch L_v1")
    flush()
    e("L_kv:")
    vfirst()
    e("  s_branch L_kw")
    flush()
    e(".p2align 6")
    e("L_v:")
    for a in range(8):
        if a == 1:
            e("L_v1:")
            e(f"  ds_read_b32 {vr(A + 1)}, {vr(vLV + 1)}")
        if a == NT:
            e(f"  s_cmp_eq_u32 s{sK}, 15")
            e("  s_cbranch_scc1 L_vt")
        if a in (5, 7):
            e("  s_waitcnt lgkmcnt(0)")
        if a == 5:
            e(f"  ds_read_b32 {vr(vF)}, {vr(vZ)} offset:{FL + 20}")
        if a == 6:
            flagwait("an", FL + 20)
            e(f"  ds_read_b32 {vr(A)}, {vr(vLV)}")
        group("V", a, vbody, None, vout)
        if a == 1:
            vnext()
        if a == 3:
            e(f"  v_add_u32 {vr(M1)}, 1, {vr(M1)}")
            for j in range(3):
                e(f"  v_add_u32 {vr(vPA + j)}, 3072, {vr(vPA + j)}")
        if a in (3, 7):
            tr()
    e(f"  s_add_u32 s{sK}, s{sK}, 1")
    e(f"  s_mov_b64 s[{rA}:{rA + 1}], s[{rB}:{rB + 1}]")
    e("  s_branch L_v")
    flush()
    e("L_vt:")
    e("  s_waitcnt lgkmcnt(0)")
    for n in range(3 * NT, 24):
        e(f"  s_waitcnt vmcnt({plain[744 + n]})")
        vbody(n)
    tr()
    e("  s_nop 1")
    vout(True)
    e("  s_waitcnt lgkmcnt(0)")
    e("  s_barrier")
    if P.trace:
        e(f"  s_mul_i32 s8, s2, {5 * 256}")
        e("  s_add_u32 s8, s8, 0x100000")
        e(f"  v_lshl_add_u32 {vr(t0)}, v0, 2, s8")
        e(f"  global_store_dword {vr(t0)}, {vr(vtr)}, s[{sWS}:{sWS + 1}]")
    e("  s_endpgm")

    HP = [20, 22, 24, 8, 34, 36, 38, 72]
    ms = [m for m in range(P.r0, P.r1 + 1) if m < P.rf or m > P.rt or (m - P.r0) % P.rp == 0]
    gain = [(P.kp0 if m <= P.kn else P.kp) if m in ms else 0 for m in range(32)]
    if P.rk:
        gain = [int(c, 16) for c in P.rk]
        assert len(gain) == 32 and not any(gain[:P.r0]) and not gain[31]
    msk = sum(1 << m for m in range(32) if gain[m])

    def hp(k):
        if P.hprof:
            e(f"  s_memrealtime s[{HP[k]}:{HP[k] + 1}]")

    def progwait(name, slp, off=FL):
        e(f"L_{name}:")
        e(f"  ds_read_b128 {vr(pr, 4)}, {vr(vZ)} offset:{off}")
        e("  s_waitcnt lgkmcnt(0)")
        e(f"  v_min_u32 {vr(pr)}, {vr(pr)}, {vr(pr + 1)}")
        e(f"  v_min3_u32 {vr(pr)}, {vr(pr)}, {vr(pr + 2)}, {vr(pr + 3)}")
        e("  s_nop 0")
        e(f"  v_readfirstlane_b32 s{sF}, {vr(pr)}")
        e(f"  s_cmp_ge_u32 s{sF}, s{sNEED}")
        e(f"  s_cbranch_scc1 L_{name}_ok")
        budget(f"L_{name}_ok")
        if slp:
            e(f"  s_sleep {slp}")
        e(f"  s_branch L_{name}")
        e(f"L_{name}_ok:")

    def rowred(op, v):
        for n in (8, 4, 2, 1):
            e("  s_nop 1")
            e(f"  {op}_dpp {vr(v)}, {vr(v)}, {vr(v)} row_ror:{n} row_mask:0xf bank_mask:0xf")

    def allred(op, v, t):
        rowred(op, v)
        for sw in ("v_permlane16_swap_b32", "v_permlane32_swap_b32"):
            e(f"  v_mov_b32 {vr(t)}, {vr(v)}")
            e("  s_nop 1")
            e(f"  {sw} {vr(v)}, {vr(t)}")
            e(f"  {op} {vr(v)}, {vr(v)}, {vr(t)}")

    def sum_partials(nq):
        w = 4 * nq
        for k in range(4):
            for q in range(nq):
                e(f"  ds_read_b128 {vr(x + w * k + 4 * q, 4)}, {vr(h0)} offset:{768 * k + 16 * q}")
        e(f"  ds_read_b128 {vr(z4, 4)}, {vr(h1)} offset:{ST}")
        e("  s_waitcnt lgkmcnt(0)")
        for h in range(0, w, 2):
            e(f"  v_pk_add_f32 {vr(x + h, 2)}, {vr(x + h, 2)}, {vr(x + w + h, 2)}")
            e(f"  v_pk_add_f32 {vr(x + 2 * w + h, 2)}, {vr(x + 2 * w + h, 2)}, {vr(x + 3 * w + h, 2)}")
        for h in range(0, w, 2):
            e(f"  v_pk_add_f32 {vr(x + h, 2)}, {vr(x + h, 2)}, {vr(x + 2 * w + h, 2)}")
        for h in range(0, w, 2):
            e(f"  v_pk_add_f32 {vr(x + h, 2)}, {vr(x + h, 2)}, {vr(z4 + 2, 2)} op_sel_hi:[1,0] neg_lo:[0,1] neg_hi:[0,1]")

    def mark(tag):
        if P.sd:
            e("  s_memrealtime s[16:17]")
            e("  s_waitcnt lgkmcnt(0)")
            e("  s_sub_u32 s19, s16, s18")
            e("  s_mov_b32 s18, s16")
            e(f"  s_add_u32 s16, s{sNEED}, {64 - P.sd}")
            e("  s_and_b32 s17, s16, 1")
            e("  s_lshl_b32 s17, s17, 4")
            e("  s_min_u32 s19, s19, 510")
            e("  s_lshl_b32 s19, s19, s17")
            e("  s_lshr_b32 m0, s16, 1")
            e(f"  v_readlane_b32 s17, {vr(vCL)}, m0")
            e("  s_add_u32 s17, s17, s19")
            e(f"  v_writelane_b32 {vr(vCL)}, s17, m0")
        if not P.enc:
            return
        for k, m in enumerate(P.enc.split(",")[:2]):
            e(f"  s_cmp_eq_u32 s{sNEED}, {m}")
            e(f"  s_cbranch_scc0 L_mk{tag}{k}")
            e(f"  s_memrealtime s[{16 + 2 * k}:{17 + 2 * k}]")
            e(f"L_mk{tag}{k}:")

    def rank_post(tag):
        if not P.ctl:
            return
        e(f"  s_bitcmp1_b32 s{sRF}, s{sNEED}")
        e(f"  s_cbranch_scc0 L_fa{tag}")
        e(f"  s_mul_i32 s{sT0}, s{sNEED}, 384")
        e(f"  s_add_u32 s{sT0}, s{sT0}, {W_RK}")
        e(f"  s_mov_b32 s{sB}, 1")
        e(f"  s_atomic_add s{sB}, s[{sWS}:{sWS + 1}], s{sT0} glc")
        e(f"L_fa{tag}:")

    def rank_take(tag):
        if not P.ctl:
            return
        e(f"  s_bitcmp1_b32 s{sRF}, s{sNEED}")
        e(f"  s_cbranch_scc0 L_fb{tag}")
        e("  s_waitcnt lgkmcnt(0)")
        e(f"  s_min_u32 s{sF}, s{sB}, 15")
        e(f"  s_lshl_b32 s{sF}, s{sF}, 1")
        e(f"  s_sub_u32 s{sF}, s{sF}, 15")
        gs = sorted(set(gain) - {0})
        e(f"  s_mov_b32 s{sT0}, {gs[0]}")
        for g_ in gs[1:]:
            e(f"  s_bitcmp1_b32 {sum(1 << m for m in range(32) if gain[m] == g_):#x}, s{sNEED}")
            e(f"  s_cselect_b32 s{sT0}, {g_}, s{sT0}")
        e(f"  s_mul_i32 s{sF}, s{sF}, s{sT0}")
        e(f"  s_add_u32 s{sF}, s{sF}, 8")
        e(f"  s_ashr_i32 s{sF}, s{sF}, 4")
        e(f"  v_mov_b32 {vr(vFX)}, s{sF}")
        e("  s_mov_b64 exec, 1")
        e(f"  global_store_dword {vr(vFB)}, {vr(vFX)}, s[{sWS}:{sWS + 1}]")
        e("  s_mov_b64 exec, -1")
        e(f"L_fb{tag}:")

    HPF = [10, 16, 18, 20, 22, 72, 74, 76, 60, 62]
    hpn = [0]

    def hpf():
        if P.tfine:
            e(f"  s_memrealtime s[{HPF[hpn[0]]}:{HPF[hpn[0]] + 1}]")
            hpn[0] += 1

    e("L_helper:")
    e(f"  s_setprio {P.hp0}")
    e(f"  v_and_b32 {vr(h1)}, 32, v0")
    e(f"  v_lshrrev_b32 {vr(h1)}, 1, {vr(h1)}")
    e(f"  v_add_u32 {vr(sg2)}, s{sC}, {vr(h1)}")
    e(f"  v_mad_u32_u24 {vr(ra)}, {vr(sg2)}, s{sNEED}, {vr(vL16)}")
    e(f"  v_lshrrev_b32 {vr(ra)}, 1, {vr(ra)}")
    hv = []

    def half(p, full):
        if p in (2, 3):
            e(f"  s_mov_b32 exec_hi, {0 if p == 2 else full}")
        if p in (5, 6):
            e(f"  s_mov_b32 exec_lo, {0 if p == 5 else full}")

    def sc_early():
        e(f"  s_and_b32 s{sT1}, s2, 7")
        e(f"  v_lshl_add_u32 {vr(wb)}, s{sT1}, 9, {vr(vL16)}")
        e(f"  v_lshl_add_u32 {vr(ra)}, {vr(sg2)}, 12, {vr(wb)}")
        for p in range(1, 8):
            e(f"  v_add_u32 {vr(ra + p)}, {0x20000 * p:#x}, {vr(ra)}")
        for p in range(8):
            half(p, -1)
            for i, sp in enumerate((sKS, sVS)):
                e(f"  s_mov_b32 m0, {SCB + SA * i + 1024 * p}")
                e("  s_nop 0")
                if "s" not in P.xp:
                    e(f"  global_load_lds_dwordx4 {vr(ra + p)}, s[{sp}:{sp + 1}] {P.sf}")
                    hv.append(("s", p))

    for p in range(1, 8):
        e(f"  v_add_u32 {vr(ra + p)}, {12288 * p}, {vr(ra)}")
    e("  s_mov_b32 exec_lo, 0xffffff")
    e("  s_mov_b32 exec_hi, 0xffffff")
    e("  s_waitcnt lgkmcnt(0)")
    hpf()
    for p in range(8):
        half(p, "0xffffff")
        e(f"  global_load_dwordx2 {vr(rec + 4 * p, 2)}, {vr(ra + (0 if 'q' in P.xp else p))}, s[{sQ}:{sQ + 1}] {P.qf}")
        e(f"  global_load_dwordx2 {vr(rec + 4 * p + 2, 2)}, {vr(ra + (0 if 'q' in P.xp else p))}, s[{sQ}:{sQ + 1}] offset:192 {P.qf}")
        hv.extend([("q", p)] * 2)
    e("  s_mov_b64 exec, -1")
    hpf()
    if P.ss == 0:
        sc_early()
    common()
    e(f"  s_load_dword s{sO}, s[{sRT}:{sRT + 1}], 24")
    e(f"  s_load_dwordx2 s[{sOH}:{sOH + 1}], s[{sRT}:{sRT + 1}], 16")
    e(f"  v_mov_b32 {vr(l)}, v0")
    for i in range(4):
        e(f"  v_mov_b32 {vr(z4 + i)}, 0")
    e(f"  ds_write_b128 {vr(vZ)}, {vr(z4, 4)} offset:{FL}")
    e(f"  ds_write_b128 {vr(vZ)}, {vr(z4, 4)} offset:{FL + 16}")
    e(f"  ds_write_b128 {vr(vZ)}, {vr(z4, 4)} offset:{FL + 32}")
    e(f"  ds_write_b128 {vr(vZ)}, {vr(z4, 4)} offset:{FL + 48}")
    e(f"  s_mov_b32 s{sMASK}, 0xffff0000")
    e(f"  s_mov_b32 s{sSCALE}, {f32bits(math.log2(math.e) / math.sqrt(192.0)):#x}")
    e(f"  v_mad_u32_u24 {vr(wa)}, {vr(h1)}, 48, {vr(vL16)}")
    e(f"  v_mov_b32 {vr(vOne)}, 1")
    e(f"  s_waitcnt vmcnt({len(hv)})")
    for k in range(4):
        e(f"  v_lshlrev_b32 {vr(cs + k)}, 16, {vr(pr + k)}")
        e(f"  v_and_b32 {vr(cs + 4 + k)}, s{sMASK}, {vr(pr + k)}")
    e("  s_waitcnt lgkmcnt(0)")
    hpf()
    if P.ctl:
        die_base(sF)
        e(f"  v_lshrrev_b32 {vr(h0)}, 1, {vr(l)}")
        e(f"  v_lshl_add_u32 {vr(vFX)}, {vr(h0)}, 8, s{sF}")
        e(f"  v_and_b32 {vr(h0)}, 1, {vr(l)}")
        e(f"  v_lshl_add_u32 {vr(vFX)}, {vr(h0)}, 4, {vr(vFX)}")
        e(f"  s_and_b32 s{sT1}, s{sSE}, 2")
        e(f"  s_lshl_b32 s{sT0}, s{sT1}, 9")
        e(f"  s_add_u32 s{sT0}, s{sT0}, s{sF}")
        e(f"  v_add_u32 {vr(vEL)}, s{sT0}, {vr(l)}")
        e(f"  s_lshl_b32 s{sT1}, s{sT1}, 1")
        e(f"  s_add_u32 s{sF}, s{sF}, s{sT1}")
        e(f"  s_add_u32 s{sF}, s{sF}, 2048")
        e(f"  v_mov_b32 {vr(vFB)}, s{sF}")
        e(f"  v_mul_u32_u24 {vr(vFA)}, 384, {vr(l)}")
        e(f"  v_add_u32 {vr(vFA)}, {W_RK}, {vr(vFA)}")
        e(f"  s_mov_b32 s{sRF}, 0")

    def ctl_init():
        if not P.ctl:
            return
        e("  s_mov_b64 exec, 0x3ffff")
        e(f"  global_store_dwordx4 {vr(vFX)}, {vr(z4, 4)}, s[{sWS}:{sWS + 1}]")
        e("  s_mov_b64 exec, -1")

    def elect():
        if not P.ctl:
            return
        e(f"  s_cmp_eq_u32 s{sNEED}, {P.r0 - 1}")
        e("  s_cbranch_scc0 L_el")
        e(f"  s_bitcmp0_b32 s{sSE}, 0")
        e("  s_cbranch_scc0 L_el")
        e("  s_mov_b64 exec, 0xffff")
        e(f"  global_load_ubyte {vr(vFX)}, {vr(vEL)}, s[{sWS}:{sWS + 1}] sc1")
        e("  s_waitcnt vmcnt(0)")
        e(f"  v_cmp_ne_u32 s[{sZ}:{sZ + 1}], 0, {vr(vFX)}")
        e(f"  s_lshr_b32 s{sT0}, s{sZ}, s{sCU}")
        e(f"  s_bcnt1_i32_b32 s{sT0}, s{sT0}")
        pat = sum(1 << m for m in range(0, 32, P.rotl))
        e(f"  s_sub_u32 s{sT1}, s{sT0}, 1")
        e(f"  s_cmp_lt_u32 s{sT1}, {P.rotl}")
        e("  s_cbranch_scc0 L_el")
        e(f"  s_lshl_b32 s{sRF}, {pat:#x}, s{sT1}")
        e(f"  s_and_b32 s{sRF}, s{sRF}, {msk:#x}")
        e("L_el:")
        e("  s_mov_b64 exec, -1")

    def patch(what):
        e(f"  s_bfe_u32 s{sT0}, s{sCN + 1}, {(4 << 16) | 8:#x}")
        e(f"  s_bfe_u32 s{sT1}, s{sCN}, {(4 << 16) | 20:#x}")
        e(f"  s_addk_i32 s{sT0}, 160")
        e(f"  s_addk_i32 s{sT1}, 80")
        for p, sh_, ex in ((5, sT0, "exec_hi"), (2, sT1, "exec_lo")):
            if what == "q":
                e(f"  s_mulk_i32 s{sh_}, 384")
                e(f"  v_lshrrev_b32 {vr(h0)}, 1, {vr(vL16)}")
                e(f"  v_add_u32 {vr(h0)}, s{sh_}, {vr(h0)}")
                qmask(1)
                e(f"  s_mov_b32 {ex}, 0")
                e(f"  global_load_dwordx2 {vr(rec + 4 * p, 2)}, {vr(h0)}, s[{sQ}:{sQ + 1}]")
                e(f"  global_load_dwordx2 {vr(rec + 4 * p + 2, 2)}, {vr(h0)}, s[{sQ}:{sQ + 1}] offset:192")
                hv.extend([("q", p)] * 2)
            else:
                e(f"  v_lshl_add_u32 {vr(h0)}, s{sh_}, 12, {vr(wb)}")
                e(f"  s_mov_b32 {ex}, 0")
                for i, sp in enumerate((sKS, sVS)):
                    e(f"  s_mov_b32 m0, {SCB + SA * i + 1024 * p}")
                    e("  s_nop 0")
                    if "s" not in P.xp:
                        e(f"  global_load_lds_dwordx4 {vr(h0)}, s[{sp}:{sp + 1}] {P.sf}")
                        hv.append(("s", p))
            qmask(0)

    def qmask(on):
        if on:
            e("  s_mov_b32 exec_lo, 0xffffff")
            e("  s_mov_b32 exec_hi, 0xffffff")
        else:
            e("  s_mov_b64 exec, -1")

    def rotate(p):
        L, Hh, LC, HS, HC, LS = x, x + 4, x + 8, x + 12, x + 16, x + 20
        qmask(1)
        if p == 0:
            hpf()
        e(f"  s_waitcnt vmcnt({hv[::-1].index(('q', p))})")
        if p == 0:
            hpf()
        for k in range(4):
            e(f"  v_lshlrev_b32 {vr(L + 2 * k)}, 16, {vr(rec + 4 * p + k)}")
            e(f"  v_and_b32 {vr(L + 2 * k + 1)}, s{sMASK}, {vr(rec + 4 * p + k)}")
        for d, q_, t_ in ((LC, L, cs), (HS, Hh, cs + 4), (HC, Hh, cs), (LS, L, cs + 4)):
            for h in (0, 2):
                e(f"  v_pk_mul_f32 {vr(d + h, 2)}, {vr(q_ + h, 2)}, {vr(t_ + h, 2)}")
        for i in range(4):
            e(f"  v_cvt_pk_bf16_f32 {vr(L + i)}, {vr(LC + i)}, {vr(HS + i)}")
            e(f"  v_cvt_pk_bf16_f32 {vr(Hh + i)}, {vr(HC + i)}, {vr(LS + i)}")
        for k in range(8):
            e(f"  v_lshlrev_b32 {vr(LC + k)}, 16, {vr(L + k)}")
            e(f"  v_and_b32 {vr(L + k)}, s{sMASK}, {vr(L + k)}")
        for h in (0, 2):
            e(f"  v_pk_add_f32 {vr(L + h, 2)}, {vr(LC + h, 2)}, {vr(L + h, 2)} neg_lo:[0,1] neg_hi:[0,1]")
            e(f"  v_pk_add_f32 {vr(Hh + h, 2)}, {vr(HS + h, 2)}, {vr(Hh + h, 2)}")
        for i in range(4):
            e(f"  v_cvt_pk_bf16_f32 {vr(LC + i)}, {vr(L + i)}, {vr(Hh + i)}")
            e(f"  v_cvt_pk_bf16_f32 {vr(HS + i)}, {vr(Hh + i)}, -{vr(L + i)}")
        e(f"  v_mov_b32 {vr(h0)}, {2 * p + 2}")
        e(f"  ds_write_b128 {vr(wa)}, {vr(LC, 4)} offset:{QB + 1536 * p}")
        e(f"  ds_write_b128 {vr(wa)}, {vr(HS, 4)} offset:{QB + 1536 * p + 384}")
        e(f"  ds_write_b32 {vr(vZ)}, {vr(h0)} offset:{FL + 16}")
        qmask(0)

    ctl_init()
    if P.ctl:
        hv.append(("c", 0))
    patch("q")
    e(f"  s_lshl_b32 s{sT0}, s{sJ}, 10")
    e(f"  s_add_u32 s{sT0}, s{sT0}, L_hpos-L_pc")
    e(f"  v_add_u32 {vr(h0)}, s{sT0}, {vr(vT16)}")
    e(f"  global_load_dwordx4 {vr(st4, 4)}, {vr(h0)}, s[{sZ}:{sZ + 1}]")
    hv.append(("h", 0))
    if P.ss == 1:
        sc_early()
    if P.ss <= 1:
        patch("s")
    rotate(0)
    hpf()
    if P.ss == 2:
        sc_early()
        patch("s")
    e("  s_waitcnt lgkmcnt(0)")
    e("  s_setprio 0")
    hpf()
    e("  s_barrier")
    hpf()
    if P.ss == 3:
        sc_early()
        patch("s")
    for p in range(1, 8):
        rotate(p)
    e(f"  v_mov_b32 {vr(vSa)}, 0")
    e(f"  v_min_u32 {vr(u)}, 47, {vr(l)}")
    e(f"  v_lshlrev_b32 {vr(vL16)}, 4, {vr(u)}")
    for i in range(4):
        e(f"  v_mov_b32 {vr(sc + i)}, 0")
    e(f"  s_mov_b32 s{sNEED}, 1")
    e("  s_cmp_eq_u32 s2, 0")
    e("  s_cbranch_scc0 L_rc")
    e(f"  v_mov_b32 {vr(h0)}, {W_REC + 15 * 384 + 8}")
    e(f"  global_load_dword {vr(h1)}, {vr(h0)}, s[{sWS}:{sWS + 1}] sc1")
    if P.ctl:
        e(f"  s_mov_b64 exec, {msk:#x}")
        e(f"  global_store_dword {vr(vFA)}, {vr(vZ)}, s[{sWS}:{sWS + 1}] sc1")
    e("  s_mov_b64 exec, 1")
    e("  s_waitcnt vmcnt(0)")
    e(f"  v_and_b32 {vr(qn)}, 0x77777777, {vr(h1)}")
    e(f"  v_and_b32 {vr(h1)}, 0x88888888, {vr(h1)}")
    e(f"  v_add_u32 {vr(qn)}, 0x11111111, {vr(qn)}")
    e(f"  v_xor_b32 {vr(qn)}, {vr(qn)}, {vr(h1)}")
    e(f"  v_mov_b32 {vr(qn + 1)}, 1")
    e(f"  global_store_dwordx2 {vr(vZ)}, {vr(qn, 2)}, s[{sDBG}:{sDBG + 1}] sc1")
    e("  s_mov_b64 exec, -1")
    e("L_rc:")
    hpf()
    e("  s_waitcnt vmcnt(0)")
    hpf()
    if P.tfine:
        e("  s_waitcnt lgkmcnt(0)")
        e(f"  v_mov_b32 {vr(h0)}, 0")
        for k in range(hpn[0]):
            e(f"  v_writelane_b32 {vr(h0)}, s{HPF[k]}, {k}")
        e(f"  s_mul_i32 s{sT0}, s2, {5 * 256}")
        e(f"  s_add_u32 s{sT0}, s{sT0}, {0x100000 + 1024}")
        e(f"  v_lshl_add_u32 {vr(h1)}, v0, 2, s{sT0}")
        e(f"  global_store_dword {vr(h1)}, {vr(h0)}, s[{sWS}:{sWS + 1}]")
    for k in range(4):
        e(f"  v_and_b32 {vr(ro + 2 * k)}, 0xffff, {vr(st4 + k)}")
        e(f"  v_lshrrev_b32 {vr(ro + 2 * k + 1)}, 16, {vr(st4 + k)}")
    for k in range(2):
        e(f"  v_add_u32 {vr(ro + 6 + k)}, {SCB}, {vr(ro + 6 + k)}")
    if P.sd:
        e(f"  v_mov_b32 {vr(vCL)}, 0")
    e("L_hk:")
    for a in range(2):
        for k in range(2):
            e(f"  ds_read_u16_d16_hi {vr(sc + 2 * a + k)}, {vr(ro + 6 + k)} offset:{SA * a}")
    progwait("hsw", P.psl)
    mark("s")
    rank_post("s")
    for k in range(6):
        e(f"  ds_read_b32 {vr(x + 4 + k)}, {vr(ro + k)} offset:{LGB}")
    e(f"  v_mul_f32 {vr(x + 2)}, s{sSCALE}, {vr(sc)}")
    e(f"  v_mul_f32 {vr(x + 3)}, s{sSCALE}, {vr(sc + 1)}")
    e("  s_waitcnt lgkmcnt(0)")
    e(f"  v_pk_add_f32 {vr(x, 2)}, {vr(x + 4, 2)}, {vr(x + 6, 2)}")
    e(f"  v_pk_add_f32 {vr(x, 2)}, {vr(x, 2)}, {vr(x + 8, 2)}")
    e(f"  v_mul_f32 {vr(x)}, {vr(x)}, {vr(x + 2)}")
    e(f"  v_mul_f32 {vr(x + 1)}, {vr(x + 1)}, {vr(x + 3)}")
    e(f"  v_max_f32 {vr(z4)}, {vr(x)}, {vr(x + 1)}")
    allred("v_max_f32", z4, h0)
    e(f"  v_sub_f32 {vr(x)}, {vr(x)}, {vr(z4)}")
    e(f"  v_sub_f32 {vr(x + 1)}, {vr(x + 1)}, {vr(z4)}")
    e(f"  v_exp_f32 {vr(x)}, {vr(x)}")
    e(f"  v_exp_f32 {vr(x + 1)}, {vr(x + 1)}")
    e("  s_nop 0")
    e(f"  v_add_f32 {vr(z4 + 1)}, {vr(x)}, {vr(x + 1)}")
    e(f"  v_mul_f32 {vr(x)}, {vr(x)}, {vr(sc + 2)}")
    e(f"  v_mul_f32 {vr(x + 1)}, {vr(x + 1)}, {vr(sc + 3)}")
    e(f"  v_add_f32 {vr(z4 + 2)}, {vr(x)}, {vr(x + 1)}")
    for k in range(6):
        e(f"  ds_write_b32 {vr(ro + k)}, {vr(x + (k & 1))} offset:{LGB}")
    e(f"  v_mul_f32 {vr(z4 + 2)}, {f32bits(7.5):#x}, {vr(z4 + 2)}")
    allred("v_add_f32", z4 + 1, h0)
    allred("v_add_f32", z4 + 2, h0)
    e(f"  v_mov_b32 {vr(h0)}, s{sNEED}")
    e(f"  ds_write_b128 {vr(vSa)}, {vr(z4, 4)} offset:{ST}")
    e(f"  ds_write_b32 {vr(vZ)}, {vr(h0)} offset:{FL + 20}")
    e(f"  v_add_u32 {vr(vSa)}, 16, {vr(vSa)}")
    for k in range(8):
        e(f"  v_add_u32 {vr(ro + k)}, {1536 if k < 6 else SL}, {vr(ro + k)}")
    rank_take("s")
    elect()
    e("  s_waitcnt lgkmcnt(0)")
    e(f"  s_add_u32 s{sNEED}, s{sNEED}, 1")
    e(f"  s_cmp_le_u32 s{sNEED}, 16")
    e("  s_cbranch_scc1 L_hk")

    e(f"  v_and_b32 {vr(h2)}, 15, {vr(l)}")
    e(f"  v_lshlrev_b32 {vr(h2)}, 1, {vr(h2)}")
    e(f"  global_load_ushort {vr(h3)}, {vr(h2)}, s[{sRT}:{sRT + 1}] offset:32")
    e(f"  s_mov_b32 s{sK}, 0")
    e(f"  v_min_u32 {vr(wa)}, 23, {vr(l)}")
    e(f"  v_lshlrev_b32 {vr(wa)}, 4, {vr(wa)}")
    e(f"  v_lshlrev_b32 {vr(h0)}, 1, {vr(wa)}")
    e(f"  v_add_u32 {vr(h0)}, {PB}, {vr(h0)}")
    e(f"  v_add_u32 {vr(wa)}, {PK}, {vr(wa)}")
    e(f"  v_lshlrev_b32 {vr(sgn)}, 4, {vr(l)}")
    e(f"  s_mul_i32 s{sT0}, s2, 6144")
    e(f"  s_add_u32 s{sT0}, s{sT0}, {W_REC}")
    e(f"  v_add_u32 {vr(sgx)}, s{sT0}, {vr(sgn)}")
    e(f"  v_add_u32 {vr(sgn)}, {PK}, {vr(sgn)}")
    e(f"  v_add_u32 {vr(sg2)}, 4096, {vr(sgx)}")
    e(f"  v_lshrrev_b32 {vr(u)}, 1, {vr(vL16)}")
    e(f"  s_mul_i32 s{sT0}, s{sOH}, 384")
    e(f"  s_add_u32 s{sOUT}, s{sOUT}, s{sT0}")
    e(f"  s_addc_u32 s{sOUT + 1}, s{sOUT + 1}, 0")
    e(f"  s_lshl_b32 s{sT0}, s{sO}, 4")
    e(f"  s_add_u32 s{sT0}, s{sT0}, {W_REC}")
    e(f"  v_add_u32 {vr(h1)}, {W_REC}, {vr(u)}")
    e("  s_waitcnt vmcnt(0)")
    e(f"  v_or_b32 {vr(h2)}, 15, {vr(h3)}")
    e(f"  v_mul_u32_u24 {vr(h2)}, 384, {vr(h2)}")
    e(f"  v_mul_u32_u24 {vr(h3)}, 384, {vr(h3)}")
    e(f"  v_add_u32 {vr(ra + 15)}, s{sT0}, {vr(h2)}")
    e("  s_nop 0")
    for k in range(15):
        e(f"  v_add_u32_dpp {vr(ra + k)}, {vr(h3)}, {vr(h1)} row_newbcast:{k} row_mask:0xf bank_mask:0xf")
    e("L_hp:")
    e(f"  s_min_u32 s{sT0}, s{sO}, 13")
    e(f"  s_cmp_eq_u32 s{sT0}, s{sK}")
    e("  s_cbranch_scc0 L_hc_ok")
    e("L_hc:")
    e(f"  global_load_dwordx2 {vr(pr, 2)}, {vr(vZ)}, s[{sDBG}:{sDBG + 1}] sc1")
    e("  s_waitcnt vmcnt(0)")
    e(f"  v_readfirstlane_b32 s{sTG}, {vr(pr)}")
    e(f"  v_readfirstlane_b32 s{sF}, {vr(pr + 1)}")
    e(f"  s_cmp_eq_u32 s{sF}, 1")
    e("  s_cbranch_scc1 L_hc_ok")
    budget("L_hc_ok")
    e("  s_sleep 64")
    e("  s_branch L_hc")
    e("L_hc_ok:")
    vstep_k(sH, sK)
    e(f"  s_lshl_b32 s{sT0}, s{sH}, 4")
    e(f"  v_mov_b32 {vr(h1)}, s{sT0}")
    e(f"  s_add_u32 s{sK}, s{sK}, 1")
    e(f"  s_add_u32 s{sNEED}, s{sK}, 16")
    progwait("hpw", P.psl)
    mark("p")
    hp(0)
    rank_post("p")
    sum_partials(2)
    e(f"  v_max3_f32 {vr(h3)}, |{vr(x)}|, |{vr(x + 1)}|, |{vr(x + 2)}|")
    e(f"  v_max3_f32 {vr(h3)}, {vr(h3)}, |{vr(x + 3)}|, |{vr(x + 4)}|")
    e(f"  v_max3_f32 {vr(h3)}, {vr(h3)}, |{vr(x + 5)}|, |{vr(x + 6)}|")
    e(f"  v_max_f32_e64 {vr(h3)}, {vr(h3)}, |{vr(x + 7)}|")
    allred("v_max_f32", h3, wb)
    e(f"  v_frexp_exp_i32_f32 {vr(h3)}, {vr(h3)}")
    e(f"  v_sub_u32 {vr(wb)}, 14, {vr(h3)}")
    e(f"  v_subrev_u32 {vr(h3)}, 14, {vr(h3)}")
    for i in range(8):
        e(f"  v_ldexp_f32 {vr(x + i)}, {vr(x + i)}, {vr(wb)}")
    for i in range(4):
        e(f"  v_cvt_pk_f16_f32 {vr(fo + i)}, {vr(x + 2 * i)}, {vr(x + 2 * i + 1)}")
    for i in range(4):
        e(f"  v_lshrrev_b32 {vr(x + i)}, 1, {vr(fo + i)}")
        e(f"  v_and_b32 {vr(x + i)}, 0x10001, {vr(x + i)}")
        e(f"  v_add_u32 {vr(fo + i)}, {vr(fo + i)}, {vr(x + i)}")
    e(f"  ds_write_b32 {vr(h1)}, {vr(h3)} offset:{ST + 12}")
    e(f"  v_add_u32 {vr(h0)}, 3072, {vr(h0)}")
    e(f"  ds_write_b128 {vr(wa)}, {vr(fo, 4)}")
    e(f"  v_add_u32 {vr(wa)}, 384, {vr(wa)}")
    rank_take("p")
    e(f"  s_cmp_lt_u32 s{sK}, 15")
    e("  s_cbranch_scc1 L_hp")
    if P.eprio:
        e(f"  s_setprio {P.eprio}")
    for k in range(6):
        e(f"  ds_read_b128 {vr(blk + 4 * k, 4)}, {vr(sgn)} offset:{1024 * k}")
    e(f"  v_subrev_u32 {vr(h2)}, 40, {vr(l)}")
    e(f"  v_and_b32 {vr(h2)}, 15, {vr(h2)}")
    e(f"  v_lshlrev_b32 {vr(h2)}, 4, {vr(h2)}")
    e(f"  ds_read_b128 {vr(st4, 4)}, {vr(h2)} offset:{ST}")
    e(f"  s_mov_b32 s{sMASK}, 0x10001")
    e(f"  v_lshlrev_b32 {vr(h2)}, 3, {vr(l)}")
    e(f"  v_lshrrev_b32 {vr(h2)}, {vr(h2)}, s{sTG}")
    e(f"  v_lshrrev_b32 {vr(h3)}, 1, {vr(u)}")
    e(f"  v_lshrrev_b32 {vr(h3)}, {vr(h3)}, s{sTG}")
    for i in range(6):
        src, k = (h2, i) if i < 4 else (h3, i - 4)
        e(f"  v_bfe_u32 {vr(x + i)}, {vr(src)}, {2 * k}, 2")
        e(f"  v_lshl_or_b32 {vr(x + i)}, {vr(x + i)}, 15, {vr(x + i)}")
        e(f"  v_and_b32 {vr(x + i)}, s{sMASK}, {vr(x + i)}")
    e(f"  v_cmp_gt_u32 vcc, 40, {vr(l)}")
    e("  s_waitcnt lgkmcnt(0)")
    e(f"  v_mov_b32 {vr(st4 + 2)}, s{sTG}")
    for k in range(24):
        e(f"  v_bfi_b32 {vr(blk + k)}, s{sMASK}, {vr(x + k % 4)}, {vr(blk + k)}")
    for i in range(4):
        e(f"  v_cndmask_b32 {vr(blk + 20 + i)}, {vr(st4 + i)}, {vr(blk + 20 + i)}, vcc")
    e(f"  s_lshl_b32 s{sH}, s{sO}, 4")
    e(f"  v_mov_b32 {vr(h1)}, s{sH}")
    e(f"  v_add_u32 {vr(h0)}, {PB + 15 * 3072}, {vr(vL16)}")
    e(f"  ds_read_b32 {vr(h1)}, {vr(h1)} offset:{ST + 8}")
    e("  s_waitcnt lgkmcnt(0)")
    if P.mg:
        e("; the stores leave late in the last step, so that they reach the memory chips after the stream has ended")
        e(f"  s_mov_b32 s{sNEED}, {31 + (P.mg > 12)}")
        progwait("hmw", P.psl, FL + 32)
    hp(1)
    for k in range(6):
        if k == 5:
            e("  s_mov_b32 exec_hi, 0xffffff")
        e(f"  global_store_dwordx4 {vr(sgx if k < 4 else sg2)}, {vr(blk + 4 * k, 4)}, s[{sWS}:{sWS + 1}] offset:{1024 * (k % 4)} sc1")
    e("  s_mov_b64 exec, -1")
    if P.rw:
        e("L_hw:")
    if P.ml:
        e(f"  s_mov_b32 s{sNEED}, {31 + (P.ml > 12)}")
        progwait("hlw", P.psl, FL + 48)
    else:
        e(f"  s_waitcnt vmcnt({P.aw})")
    hp(2)
    hp(3)
    if not P.rw:
        e("L_hw:")
    hp(4)
    if P.cnt:
        e(f"  s_mov_b32 s{sF}, 1")
        e(f"  s_atomic_add s{sF}, s[{sDBG}:{sDBG + 1}], 16")
    e(f"  global_load_dwordx4 {vr(cs, 4)}, {vr(ra + 15)}, s[{sWS}:{sWS + 1}] sc1")
    for k in range(15):
        e(f"  global_load_dwordx2 {vr(rec + 2 * k, 2)}, {vr(ra + k)}, s[{sWS}:{sWS + 1}] sc1")
    for i in range(4):
        e(f"  v_mov_b32 {vr(fo + i)}, 0")
    e(f"  v_mov_b32 {vr(wb)}, 0")
    budget("L_hy")
    e("  s_waitcnt vmcnt(15)")
    e(f"  v_cmp_ne_u32 s[{sZ}:{sZ + 1}], s{sTG}, {vr(cs + 2)}")
    e(f"  s_cmp_eq_u64 s[{sZ}:{sZ + 1}], 0")
    e("  s_cbranch_scc0 L_hw")
    e("L_hy:")
    e("  s_waitcnt vmcnt(15)")
    hp(5)
    e(f"  v_mov_b32 {vr(h2)}, {vr(cs)}")
    rowred("v_max_f32", h2)
    e(f"  v_sub_f32 {vr(h2)}, {vr(cs)}, {vr(h2)}")
    e(f"  v_exp_f32 {vr(h2)}, {vr(h2)}")
    e("  s_nop 0")
    e(f"  v_ldexp_f32 {vr(h3)}, {vr(h2)}, {vr(cs + 3)}")
    e(f"  v_mul_f32 {vr(wa)}, {vr(h2)}, {vr(cs + 1)}")
    e(f"  v_readlane_b32 s{sMSK}, {vr(h3)}, 0")
    e(f"  v_readlane_b32 s{sMSK + 15}, {vr(h2)}, 15")
    for k in range(15):
        if k < 14:
            e(f"  v_readlane_b32 s{sMSK + k + 1}, {vr(h3)}, {k + 1}")
        if k < 4:
            e(f"  v_add_f32_dpp {vr(wa)}, {vr(wa)}, {vr(wa)} row_ror:{8 >> k} row_mask:0xf bank_mask:0xf")
        if k == 4:
            e(f"  v_rcp_f32 {vr(wa)}, {vr(wa)}")
        e(f"  s_waitcnt vmcnt({14 - k})")
        for i in range(2):
            e(f"  v_xor_b32 {vr(rec + 2 * k + i)}, {vr(rec + 2 * k + i)}, {vr(x + 4 + i)}")
        for i in range(4):
            e(f"  v_fma_mix_f32 {vr(fo + i)}, {vr(rec + 2 * k + i // 2)}, s{sMSK + k}, {vr(fo + i)} op_sel:[{i & 1},0,0] op_sel_hi:[1,0,0]")
        e(f"  v_or3_b32 {vr(wb)}, {vr(rec + 2 * k)}, {vr(rec + 2 * k + 1)}, {vr(wb)}")
    e(f"  v_and_b32 {vr(wb)}, s{sMASK}, {vr(wb)}")
    e(f"  v_cmp_ne_u32 s[{sZ}:{sZ + 1}], 0, {vr(wb)}")
    e(f"  s_cmp_lg_u32 s{sSP}, 0")
    e(f"  s_cselect_b64 s[{sZ}:{sZ + 1}], s[{sZ}:{sZ + 1}], 0")
    e(f"  s_cmp_eq_u64 s[{sZ}:{sZ + 1}], 0")
    e("  s_cbranch_scc0 L_hw")
    e(f"  v_mul_f32 {vr(h2)}, s{sMSK + 15}, {vr(wa)}")
    e(f"  v_mul_f32 {vr(h3)}, {vr(h2)}, {vr(h1)}")
    for i in range(4):
        e(f"  v_fma_f32 {vr(fo + i)}, {vr(fo + i)}, {vr(wa)}, -{vr(h3)}")
    hp(6)
    e("  s_barrier")
    hp(7)
    for k in range(4):
        e(f"  ds_read_b128 {vr(x + 4 * k, 4)}, {vr(h0)} offset:{768 * k}")
    e("  s_waitcnt lgkmcnt(2)")
    for h in (0, 2):
        e(f"  v_pk_add_f32 {vr(x + h, 2)}, {vr(x + h, 2)}, {vr(x + 4 + h, 2)}")
    e("  s_waitcnt lgkmcnt(0)")
    for h in (0, 2):
        e(f"  v_pk_add_f32 {vr(x + 8 + h, 2)}, {vr(x + 8 + h, 2)}, {vr(x + 12 + h, 2)}")
    for h in (0, 2):
        e(f"  v_pk_add_f32 {vr(x + h, 2)}, {vr(x + h, 2)}, {vr(x + 8 + h, 2)}")
    for i in range(4):
        e(f"  v_fmac_f32 {vr(fo + i)}, {vr(h2)}, {vr(x + i)}")
    e(f"  v_cvt_pk_bf16_f32 {vr(fo)}, {vr(fo)}, {vr(fo + 1)}")
    e(f"  v_cvt_pk_bf16_f32 {vr(fo + 1)}, {vr(fo + 2)}, {vr(fo + 3)}")
    e("  s_mov_b32 exec_hi, 0xffff")
    e(f"  global_store_dwordx2 {vr(u)}, {vr(fo, 2)}, s[{sOUT}:{sOUT + 1}] {P.of}")
    if P.sd:
        e(f"  s_mov_b32 s{sNEED}, 32")
        e("  s_mov_b64 exec, -1")
        mark("z")
        e(f"  s_cmp_eq_u32 s{sJ}, 0")
        e("  s_cbranch_scc0 L_sd")
        e(f"  v_lshlrev_b32 {vr(h0)}, 2, {vr(l)}")
        e("  s_mov_b32 exec_lo, 0")
        e("  s_mov_b32 exec_hi, 0x3fff")
        e(f"  global_atomic_add {vr(h0)}, {vr(vCL)}, s[{sDBG}:{sDBG + 1}] offset:-120 sc1")
        e("L_sd:")
    if P.enc:
        m0, m1, base, amp, wg = [int(v) for v in P.enc.split(",")]
        if m1 == 32:
            e("  s_memrealtime s[18:19]")
        if m0 == 0:
            e(f"  s_mov_b32 s16, s{sST}")
        e("  s_waitcnt lgkmcnt(0)")
        e("  s_sub_u32 s16, s18, s16")
        e(f"  s_atomic_add s16, s[{sDBG}:{sDBG + 1}], 32")
        e(f"  s_cmp_eq_u32 s2, {wg}")
        e("  s_cbranch_scc0 L_nohold")
        e("L_hold0:")
        e(f"  s_memrealtime s[{sST + 2}:{sST + 3}]")
        e("  s_waitcnt lgkmcnt(0)")
        e(f"  s_sub_u32 s{sT0}, s{sST + 2}, s{sST}")
        e(f"  s_cmp_lt_u32 s{sT0}, 12500")
        e("  s_cbranch_scc1 L_hold0")
        e("  s_mov_b32 s16, 0")
        e(f"  s_atomic_add s16, s[{sDBG}:{sDBG + 1}], 32 glc")
        e("  s_waitcnt lgkmcnt(0)")
        e(f"  s_sub_u32 s16, s16, {base * 256}")
        e("  s_max_i32 s16, s16, 0")
        e("  s_min_i32 s16, s16, 128000")
        e(f"  s_mul_i32 s16, s16, {amp}")
        e("  s_lshr_b32 s16, s16, 8")
        e("  s_add_u32 s16, s16, 13000")
        e("L_hold:")
        e(f"  s_memrealtime s[{sST + 2}:{sST + 3}]")
        e("  s_waitcnt lgkmcnt(0)")
        e(f"  s_sub_u32 s{sT0}, s{sST + 2}, s{sST}")
        e(f"  s_cmp_lt_u32 s{sT0}, s16")
        e("  s_cbranch_scc1 L_hold")
        e("L_nohold:")
        e("  s_waitcnt lgkmcnt(0)")
    if P.hold:
        e("; diagnostic build only")
        e("L_hold:")
        e(f"  s_memrealtime s[{sST + 2}:{sST + 3}]")
        e("  s_waitcnt lgkmcnt(0)")
        e(f"  s_sub_u32 s{sT0}, s{sST + 2}, s{sST}")
        e(f"  s_cmp_lt_u32 s{sT0}, {P.hold}")
        e("  s_cbranch_scc1 L_hold")
    if P.stamp:
        e(f"  s_memrealtime s[{sST + 2}:{sST + 3}]")
        if P.hprof:
            e("  s_waitcnt lgkmcnt(0)")
            e("  s_lshl_b32 s44, s2, 5")
            e("  s_add_u32 s44, s44, 0x80000")
            e("  v_mov_b32 v1, s44")
            for k in range(8):
                e(f"  s_sub_u32 s45, s{sST + 2}, s{HP[k]}")
                e(f"  v_mov_b32 v{4 + k}, s45")
            e(f"  global_store_dwordx4 v1, v[4:7], s[{sWS}:{sWS + 1}]")
            e(f"  global_store_dwordx4 v1, v[8:11], s[{sWS}:{sWS + 1}] offset:16")
            e("  s_nop 2")
        e("  s_getreg_b32 s6, hwreg(HW_REG_XCC_ID)")
        e("  s_getreg_b32 s7, hwreg(HW_REG_HW_ID)")
        e("  s_waitcnt lgkmcnt(0)")
        e(f"  v_mov_b32 v4, s{sST}")
        e(f"  v_mov_b32 v5, s{sST + 2}")
        e("  v_mov_b32 v6, s6")
        e("  v_mov_b32 v7, s7")
        e("  s_lshl_b32 s8, s2, 4")
        e("  v_mov_b32 v1, s8")
        e(f"  global_store_dwordx4 v1, v[4:7], s[{sWS}:{sWS + 1}]")
    e("L_end:")
    e("  s_endpgm")
    e(".p2align 6")
    e(".type L_order,@object")
    e("L_order:")
    for k in range(0, len(ordtab), 8):
        e("  .long " + ", ".join(f"{v:#x}" for v in ordtab[k:k + 8]))
    e(".type L_hpos,@object")
    e("L_hpos:")
    for b in range(2):
        at = {chunk_of(b, n, s_): lpos(n, s_) for n in range(24) for s_ in range(16)}
        rows = sorted({c // 3 for c in at})
        for l_ in range(64):
            r0, r1 = rows[l_], rows[l_ + 64]
            e("  .long " + ", ".join(f"{a_ | b_ << 16:#x}" for a_, b_ in [(at[3 * r0 + k], at[3 * r1 + k]) for k in range(3)] + [(2 * r0, 2 * r1)]))
    e('.section .rodata,"a"')
    e(".p2align 6")
    e(f".amdhsa_kernel {NAME}_kernel")
    e(f"  .amdhsa_next_free_vgpr {NV}")
    e("  .amdhsa_next_free_sgpr 100")
    e(f"  .amdhsa_accum_offset {(NV + 3) // 4 * 4}")
    e("  .amdhsa_group_segment_fixed_size 0")
    e("  .amdhsa_kernarg_size 112")
    e("  .amdhsa_user_sgpr_count 2")
    e("  .amdhsa_user_sgpr_kernarg_segment_ptr 1")
    e("  .amdhsa_system_sgpr_workgroup_id_x 1")
    e(".end_amdhsa_kernel")
    return "\n".join(o) + "\n", NV


if __name__ == "__main__":
    ap = argparse.ArgumentParser()
    ap.add_argument("-o", default=f"/code/{NAME}.s")
    for name, d in (("sh", 4), ("deep", 5), ("pd", 9), ("pre", 12), ("nf", 6), ("su", 3), ("ss", 3), ("hp0", 0), ("tst", 20),
                    ("ctl", 1), ("hi", 0), ("hiv", 5), ("lo", -25), ("thr", 2), ("tp", 2), ("inv", 1), ("start", 5), ("s0", 0), ("ba", 3),
                    ("r0", 2), ("r1", 30), ("rf", 3), ("rp", 2), ("rt", 26), ("rotl", 7), ("kp", 7), ("kp0", 5), ("kn", 20),
                    ("mg", 5), ("ml", 0), ("aw", 0), ("rw", 0), ("cnt", 0), ("sd", 0),
                    ("eprio", 2), ("psl", 1), ("bound", 4000000), ("hold", 0), ("dly", 0), ("dlb", 2)):
        ap.add_argument("--" + name, type=int, default=d)
    ap.add_argument("--kp_", default="6,6,6,7,8,9,9,10,10,11,11,12,12", help="K loads issued by each prologue point")
    ap.add_argument("--sf", default="nt")
    ap.add_argument("--of", default="")
    ap.add_argument("--wf", default="sc1")
    ap.add_argument("--enc", default="", help="diagnostic only: m0,m1,base,amp,wg")
    ap.add_argument("--qf", default="")
    ap.add_argument("--cf", default="")
    ap.add_argument("--ok", default="REXbLbLbL", help="events of a K group")
    ap.add_argument("--ov", default="REXbLbLbL", help="events of a V group")
    ap.add_argument("--vo", default="012")
    ap.add_argument("--rk", default="", help="die gain per step (hex digits, 0 = no ranking)")
    ap.add_argument("--sb", default="", help="step:bias,... added to the lateness")
    ap.add_argument("--bu", default="012", help="extra depth per position in the issued group")
    ap.add_argument("--th", default="-9,5,13")
    ap.add_argument("--sch", default="sch_np.txt")
    ap.add_argument("--xp", default="", help="timing experiments only")
    for name in ("stamp", "trace", "tfine", "hprof"):
        ap.add_argument("--" + name, action="store_true", help="diagnostics only")
    a = ap.parse_args()
    txt, nv = gen(a)
    open(a.o, "w").write(txt)
    print("wrote", a.o, "vgprs", nv)
```

```python
import argparse
import math
import os
import struct
from gen import HEADER, NAME, Alloc, f32bits, vr

HB = 2048 * 768

ABOUT = """
Generated by tools/gen9.py.
Work split: workgroup (cluster c, block m, member b) handles 128 rows of the 256-row block m for 16 heads 16 k + c
  (slots k = 5 and 10 take their head from a table instead of c); the two members alternate over 32 KiB runs.
  Waves 1-4 stream one 4 KiB block per round; a 16-lane row handles one third (64 dims) of a KV row per load.
  K sweep: logit = k_scale * sum_d (qk - 7.5) * (qa * cos + qb * sin), RoPE moved onto the rotated q;
  V sweep: partial = sum_rows p * v_scale * qv.
  Wave 0 (helper) rotates q, takes max / exp / sums over the workgroup's rows of each head, and merges partials.
Constant parameters (the same for every seed) are built in: both zero points (7.5), q_cos / q_sin (table L_qcs) and
  k_cos / k_sin = bf16(cos / sin(fp32(row * inv_freq))), evaluated once per workgroup from the table L_inv into LDS.
Hand-off: every workgroup finishes one of its heads and streams that head last.  Partials and (max, sum) of
  the other 15 go to d_ws with sc1 stores; every 8 bytes carry a piece of a tag that differs from the one found there on
  entry (sent round through d_debug).  The finisher reads until all tags fit and rescales all 16 to the true row maximum.
Flow control (speed only, results do not depend on it): waves publish a group counter and sample the counters of
  units on the same die; late waves keep one more load in flight, early waves one or two fewer.  Helpers rank the dies.
"""

RUN = (1, 2, 0)


def chunk_of(b, n, s):
    g = 256 * RUN[n >> 3] + 128 * b + 16 * (n & 7) + s
    return {128: 512, 255: 639, 512: 128, 639: 255}.get(g, g)


def tidx(b, row):
    return row - 43 * b - 42 * ((row >= 85) + (row >= 171))


def rev(x, bits):
    return int(format(x, f"0{bits}b")[::-1], 2)


def lpos(n, s):
    return 4 * (16 * s + rev(n, 4)) if n < 16 else 1024 + 4 * (8 * s + rev(n - 16, 3))


TN = [(RUN[n >> 3] + (n & 7)) % 3 for n in range(24)]
SPECIAL = {n: i for i, n in enumerate(sorted(8 * RUN.index(r) + i for r in (0, 2) for i in (0, 7)))}
for b_ in range(2):
    ch = sorted(chunk_of(b_, n, s) for n in range(24) for s in range(16))
    assert ch == sorted(3 * r + k for r in {c // 3 for c in ch} for k in range(3))
    assert all(chunk_of(b_, n, s) % 3 == (TN[n] + 2 * b_ + s) % 3 for n in range(24) for s in range(16))
    assert len({tidx(b_, c // 3) for c in ch}) == 128 and max(tidx(b_, c // 3) for c in ch) == 128


def gen(P):
    o = []
    e = o.append
    RING, PD = 24, P.pd
    sh, deep = P.sh, P.deep
    PRE = P.pre
    TP = P.tp
    LAG = 2
    assert deep <= PD - 1 and sh <= deep and PD <= PRE
    SL = 512
    SA = 16 * SL

    FL = 0
    ST = 256
    TB = 512
    QB = TB + 129 * 384
    LGB = QB + 16 * 768 + 1536
    SCB = LGB + 16 * 1536
    PB = SCB + 2 * SA
    PK = PB + 49152
    LDS = PK + 6144
    assert 81920 < LDS <= 163840
    W_REC = 0x400000
    W_RK = 0x780000
    W_PL = 0x7c0000

    sQ, sQK, sKS, sKZ, sQV, sVS, sVZ, sQC = 4, 6, 8, 10, 12, 14, 16, 18
    sQS, sKC, sKSN, sOUT = 20, 22, 24, 26
    sDBG, sWS = 28, 30
    rA, rB = 32, 36
    sW, sJ, sC, sK, sT0, sT1, sF, sNEED = 40, 41, 42, 43, 44, 45, 46, 47
    sMSK = 48
    sOF = 51
    sPB = 60
    sCO = 61
    sZ = 64
    sMASK, sSCALE, sH = 66, 67, 68
    sS = 69
    sX = 70
    sRF = 80
    sRT = 82
    sST = 84
    sN = 90
    sB = 91
    sVO = 92
    sSP = 94
    sI = 95
    sSE, sCU = 81, 79
    sLO = 78
    sO = 3
    sCN = 96
    sOH, sTG = 98, 99

    va = Alloc(1)
    vT16, vF, vZ, vC16 = [va.take(1) for _ in range(4)]
    voff = va.take(7)
    vTA = va.take(7)
    vQA = va.take(3)
    vPA = va.take(3)
    vLG = va.take(2)
    vLB = va.take(2)
    vLV = va.take(2)
    A = va.take(2)
    LG = va.take(2)
    M1, M2, M3 = [va.take(1) for _ in range(3)]
    bc = va.take(2, 2)
    dacc = va.take(2, 2)
    wt = va.take(4, 2)
    vtr, vPW, vPS, vN, vSum, vSu2, vBA = [va.take(1) for _ in range(7)]
    vPL = va.take(4)
    vBI = va.take(2, 2)
    smp = va.take(8, 4)
    qa = va.take(12, 4)
    tab = va.take(24, 4)
    tmp = va.take(12, 4)
    ring = va.take(4 * RING, 4)
    NV = va.n
    acc = qa

    here = os.path.dirname(os.path.abspath(__file__))
    sch = [[int(x) for x in ln.split()] for ln in open(os.path.join(here, P.sch))]
    sch = [x[:3] + [k for b_ in P.vo for k in x[3 + 5 * int(b_):8 + 5 * int(b_)]] + x[18:] for x in sch]
    inv, qcs = [[int(x, 16) for x in ln.split()] for ln in open(os.path.join(here, "consts.txt"))]
    cj = lambda g: (g >> 4, (g & 7) * 2 + ((g >> 3) & 1))
    ent = {g: sch[16 * cj(g)[0] + cj(g)[1]] for g in range(256)}
    cl = lambda g, k: ent[g][0] if k == 5 else ent[g][1] if k == 10 else g >> 4
    assert sorted(16 * ent[g][2] + cl(g, ent[g][2]) for g in range(256)) == list(range(256))
    ordtab = []
    for g in range(256):
        o_, od = ent[g][2], ent[g][3:]
        assert sorted(od) == list(range(16)) and od[15] == o_
        con = [x for x in range(256) if x != g and cl(x, o_) == cl(g, o_)] + [g]
        assert sorted(cj(x)[1] for x in con) == list(range(16))
        nib = sum(k << (4 * t) for t, k in enumerate(range(16) if "i" in P.xp else od))
        cn = sum((g >> 4 if "c" in P.xp else cl(g, k)) << (4 * k) for k in range(16))
        u16 = [16 * x + ent[x][3:].index(o_) for x in con]
        assert all(v % 16 < 15 for v in u16[:15])
        ordtab += [nib & 0xffffffff, nib >> 32, cn & 0xffffffff, cn >> 32, 16 * o_ + cl(g, o_), 0, o_, 2 if ((16 * o_ + cl(g, o_)) * HB + (g & 7) * 196608 + 98304) >> 28 else 0xffffffff]
        ordtab += [u16[2 * i] | u16[2 * i + 1] << 16 for i in range(8)]

    def ld(n):
        rr = rA if n < 24 else rB
        n %= 24
        so = f"s{sOF + (n & 7)}" if n & 7 else "0"
        vo = voff + (3 + SPECIAL[n] if n in SPECIAL and "x" not in P.xp else n >> 3)
        e(f"  buffer_load_dwordx4 {vr(ring + 4 * n, 4)}, {vr(vo)}, s[{rr}:{rr + 3}], {so} offen nt")

    ORD = {"K": P.ok, "V": P.ov}
    DIST = {"K": PRE, "V": PD}
    bu = [int(x) for x in P.bu]
    th = [int(x) for x in P.th.split(",")]
    assert PD % 3 == 0 and PRE % 3 == 0 and deep == sh + 1

    def memops(ph, a):
        r = []
        for i, c in enumerate(ORD[ph]):
            if c == "X" and P.ctl:
                r += [(i, "B")] * (a == P.ba) + [(i, "S"), (i, "Q")]
            if c == "L":
                r.append((i, "L"))
        return r

    def back(ph, a, i):
        r = [c for j, c in memops(ph, a) if j < i][::-1]
        for k in range(1, 8):
            r += [c for _, c in memops(ph, (a - k) % 8)][::-1]
        return r

    def cnt(ph, a, i, depth):
        depth += bu[ORD[ph][:i].count("L")]
        r = back(ph, a, i)
        return [k + 1 for k, c in enumerate(r) if c == "L"][depth - 2] if depth > 1 else 0

    def swait(ph, a):
        assert ORD[ph].index("E") < ORD[ph].index("X")
        r = back(ph, a, ORD[ph].index("E"))
        return [k for k, c in enumerate(r) if c == "Q"][LAG - 1]

    plain = {}

    def verify():
        ops = [("L", i) for i in range(PRE)]
        done = ORD["K"][:ORD["K"].index("L")].count("b")
        for g in range(256):
            ph, a = "KV"[g >= 128], g % 8
            if 3 * g + PD >= 768 or 128 <= g < 128 + (PRE - PD) // 3:
                for n in range(3 * g, 3 * g + 4 - (g == 255)):
                    plain[n] = len(ops) - 1 - ops.index(("L", n))
                done = max(done, len(ops) - plain[min(3 * g + 3, 767)])
                continue
            nb = nl = 3 * g
            for i, c in enumerate(ORD[ph]):
                if c == "E" and P.ctl:
                    done = max(done, len(ops) - swait(ph, a))
                if c == "X" and P.ctl:
                    ops += [("X", 0)] * (1 + (a == P.ba))
                if c == "b":
                    assert ("L", nb) in ops[:done], nb
                    nb += 1
                if c == "L":
                    done = max(done, len(ops) - cnt(ph, a, i, deep if P.ctl else sh))
                    ops.append(("L", nl + DIST[ph]))
                    nl += 1
    verify()
    lab = [0]
    rare = []

    def flush():
        o.extend(rare)
        rare.clear()

    def issue(ph, a, i):
        j = ORD[ph][:i].count("L")
        lab[0] += 1
        if P.ctl and j == TP:
            e(f"  s_cmp_lt_i32 s{sS}, {P.lo}")
            e(f"  s_cbranch_scc1 L_t{lab[0]}")
            rare.extend([f"L_t{lab[0]}:", f"  s_waitcnt vmcnt({cnt(ph, a, i, P.thr + 1)})", f"  s_branch L_p{lab[0]}"])
        if P.ctl:
            t = (P.hi if ph == "K" else P.hiv) + th[j]
            assert t >= P.lo
            e(f"  s_cmp_gt_i32 s{sS}, {t}")
            if t < 0 and P.inv:
                e(f"  s_cbranch_scc0 L_q{lab[0]}")
                rare.extend([f"L_q{lab[0]}:", f"  s_waitcnt vmcnt({cnt(ph, a, i, sh)})", f"  s_branch L_p{lab[0]}"])
                e(f"  s_waitcnt vmcnt({cnt(ph, a, i, deep)})")
                e(f"L_p{lab[0]}:")
            else:
                e(f"  s_cbranch_scc1 L_p{lab[0]}")
                e(f"  s_waitcnt vmcnt({cnt(ph, a, i, sh)})")
                e(f"L_p{lab[0]}:")
                e(f"  s_waitcnt vmcnt({cnt(ph, a, i, deep)})")
        else:
            e(f"  s_waitcnt vmcnt({cnt(ph, a, i, sh)})")
        ld(3 * a + j + DIST[ph])
        if ph == "V" and 3 * a + j + 1 == P.mg:
            e(f"  ds_write_b32 {vr(vPW)}, {vr(M1)} offset:{FL + 32}")
        if ph == "V" and 3 * a + j + 1 == P.ml:
            e(f"  ds_write_b32 {vr(vPW)}, {vr(M1)} offset:{FL + 48}")

    def evaluate(ph, a):
        if not P.ctl:
            return
        sm = smp + 4 * (a % LAG)
        e(f"  s_waitcnt vmcnt({swait(ph, a)})")
        if a == (P.ba + LAG) % 8:
            e(f"  v_add_u32 {vr(vBI)}, {vr(vBI)}, {vr(vBI + 1)}")
        e(f"  s_add_u32 s{sT0}, s{sLO}, 0x03030303")
        e(f"  v_msad_u8 {vr(vSum)}, s{sLO}, {vr(sm)}, 0")
        e(f"  v_msad_u8 {vr(vSu2)}, s{sT0}, {vr(sm)}, 0")
        if a == (P.ba + LAG) % 8:
            e(f"  v_readfirstlane_b32 s{sB}, {vr(vBI)}")
        for k in range(1, 3):
            e(f"  v_msad_u8 {vr(vSum)}, s{sLO}, {vr(sm + k)}, {vr(vSum)}")
            e(f"  v_msad_u8 {vr(vSu2)}, s{sT0}, {vr(sm + k)}, {vr(vSu2)}")
        e(f"  v_sub_u32 {vr(vSum)}, {vr(vSum)}, {vr(vSu2)}")
        e(f"  s_add_u32 s{sLO}, s{sLO}, 0x01010101")
        e(f"  v_readlane_b32 s{sMASK}, {vr(vSum)}, 0")
        e(f"  v_readlane_b32 s{sSCALE}, {vr(vSum)}, 1")

    def decide(ph, a):
        if not P.ctl:
            return
        if a == (P.ba + LAG) % 8:
            for it in filter(None, P.sb.split(",")):
                st_, b_ = [int(v) for v in it.split(":")]
                if (st_ >= 16) == (ph == "V"):
                    e(f"  s_cmp_eq_u32 s{sK}, {st_ % 16}")
                    e(f"  s_cselect_b32 s{sT0}, {b_}, 0")
                    e(f"  s_add_u32 s{sB}, s{sB}, s{sT0}")
            for it in filter(None, P.tb.split(",")):
                s0_, s1_, b_ = [int(v) for v in it.split(":")]
                if (s0_ >= 16) == (ph == "V"):
                    e(f"  s_bitcmp1_b32 {sum(1 << (k % 16) for k in range(s0_, s1_ + 1)):#x}, s{sK}")
                    e(f"  s_cselect_b32 s{sT0}, {b_}, 0")
                    e(f"  s_mul_i32 s{sT0}, s{sT0}, s{sPB}")
                    e(f"  s_add_u32 s{sB}, s{sB}, s{sT0}")
        cur, old = (sI, sCO) if a & 1 else (sCO, sI)
        e(f"  s_add_u32 s{cur}, s{sMASK}, s{sSCALE}")
        e(f"  s_add_u32 s{sS}, s{cur}, s{old}")
        e(f"  s_ashr_i32 s{sS}, s{sS}, 1")
        e(f"  s_add_u32 s{sS}, s{sS}, s{sB}")
        if ph == "K" and a < P.start:
            e(f"  s_cmp_eq_u32 s{sK}, 0")
            e(f"  s_cselect_b32 s{sS}, {P.s0}, s{sS}")

    def exchange(a):
        if not P.ctl:
            return
        e("  s_mov_b64 exec, 1")
        if a == P.ba:
            e(f"  global_load_dwordx2 {vr(vBI, 2)}, {vr(vBA)}, s[{sWS}:{sWS + 1}] sc1")
        e(f"  global_store_byte {vr(vPS)}, {vr(vN)}, s[{sWS}:{sWS + 1}]")
        e("  s_mov_b64 exec, 3")
        e(f"  global_load_dwordx3 {vr(smp + 4 * (a % LAG), 3)}, {vr(vPL + a % 4)}, s[{sWS}:{sWS + 1}] sc1")
        e(f"  v_add_u32 {vr(vN)}, 1, {vr(vN)}")
        e("  s_mov_b64 exec, -1")

    def srd_head(rr, sp, sh_):
        e(f"  s_mul_i32 s{sT0}, s{sh_}, {HB}")
        e(f"  s_add_u32 s{rr}, s{sp}, s{sT0}")
        e(f"  s_addc_u32 s{rr + 1}, s{sp + 1}, 0")

    def vstep_k(dst, src):
        e(f"  s_lshl_b32 s{dst}, s{src}, 2")
        e(f"  s_lshr_b64 s[{sZ}:{sZ + 1}], s[{sVO}:{sVO + 1}], s{dst}")
        e(f"  s_and_b32 s{dst}, s{sZ}, 15")

    def head_of(dst, slot):
        e(f"  s_lshl_b32 s{sT0}, s{slot}, 2")
        e(f"  s_lshr_b64 s[{sZ}:{sZ + 1}], s[{sCN}:{sCN + 1}], s{sT0}")
        e(f"  s_and_b32 s{sZ}, s{sZ}, 15")
        e(f"  s_lshl4_add_u32 s{dst}, s{slot}, s{sZ}")

    def budget(ok):
        e(f"  s_cmp_eq_u32 s{sSP}, 0")
        e(f"  s_cbranch_scc1 {ok}")
        e(f"  s_sub_u32 s{sSP}, s{sSP}, 1")

    def flagwait(name, off):
        e(f"L_{name}:")
        e("  s_waitcnt lgkmcnt(0)")
        e(f"  v_readfirstlane_b32 s{sF}, {vr(vF)}")
        e(f"  s_cmp_ge_u32 s{sF}, s{sNEED}")
        e(f"  s_cbranch_scc0 L_{name}_no")
        e(f"L_{name}_ok:")
        rare.extend([f"L_{name}_no:", f"  s_cmp_eq_u32 s{sSP}, 0", f"  s_cbranch_scc1 L_{name}_ok", f"  s_sub_u32 s{sSP}, s{sSP}, 1",
                     f"  ds_read_b32 {vr(vF)}, {vr(vZ)} offset:{off}", f"  s_branch L_{name}"])

    def tr():
        if P.trace:
            e(f"  {'s_memtime' if 'm' in P.xp else 's_memrealtime'} s[88:89]")
            e("  s_waitcnt lgkmcnt(0)")
            e(f"  v_writelane_b32 {vr(vtr)}, s88, m0")
            e("  s_add_u32 m0, m0, 1")
            e("  s_min_u32 m0, m0, 63")

    def die_base(dst):
        e(f"  s_getreg_b32 s{sSE}, hwreg(HW_REG_HW_ID, 8, 7)")
        e(f"  s_getreg_b32 s{dst}, hwreg(HW_REG_XCC_ID, 0, 3)")
        e(f"  s_and_b32 s{sCU}, s{sSE}, 15")
        e(f"  s_lshr_b32 s{sSE}, s{sSE}, 5")
        e(f"  s_mul_i32 s{dst}, s{dst}, 4352")
        e(f"  s_add_u32 s{dst}, s{dst}, {W_PL}")

    ha = Alloc(16)
    l, u, h0, h1, h2, h3 = [ha.take(1) for _ in range(6)]
    qo, wa, wb, sgn, sgx, sg2 = [ha.take(1) for _ in range(6)]
    ro = ha.take(8)
    vL16, vCNT, vDB, vOne, vFA, vFI, vFR, vFX, vFB, vEL, vCL, vSa = [ha.take(1) for _ in range(12)]
    z4 = ha.take(4, 4)
    cs = ha.take(8, 4)
    sc = ha.take(4, 4)
    qn = ha.take(4, 4)
    x = ha.take(32, 4)
    pr = ha.take(4, 4)
    fo = ha.take(4, 4)
    rec = ha.take(32, 4)
    blk = ha.take(24, 4)
    st4 = ha.take(4, 4)
    ra = ha.take(16)
    assert ha.n <= NV and vZ < 16

    invX, invY, tK, tA, tN, tO = tmp, tmp + 4, tmp + 8, tab, tab + 4, tab + 8
    PC0 = 20 + 8 * P.stamp + 16 * (P.dly > 0)
    D_INV, D_QCS, D_END = 256, 768, 1152
    NF = P.nf
    assert RUN[0] == 1 and NF <= 8
    e(HEADER.rstrip("\n"))
    e(f"; @launch grid=(256,1,1) block=(320,1,1) lds={LDS}")
    for ln in ABOUT.strip("\n").split("\n"):
        e("; " + ln)
    e('.amdgcn_target "amdgcn-amd-amdhsa--gfx950"')
    e(".text")
    e(f".globl {NAME}_kernel")
    e(".p2align 8")
    e(f".type {NAME}_kernel,@function")
    e(f"{NAME}_kernel:")
    e("  s_cmpk_ge_u32 s2, 0x100")
    e("  s_cbranch_scc1 L_end")
    if P.dly:
        e("; diagnostic build only: half of the dies start late")
        e(f"  s_getreg_b32 s4, hwreg(HW_REG_XCC_ID, {P.dlb}, 1)")
        e("  s_cmp_eq_u32 s4, 0")
        e("  s_cbranch_scc1 L_dly")
        e(f"  s_sleep {P.dly}")
        e("L_dly:")
    if P.stamp:
        e(f"  s_memrealtime s[{sST}:{sST + 1}]")
    e("  s_load_dwordx16 s[4:19], s[0:1], 0")
    e(f"  s_getpc_b64 s[{sZ}:{sZ + 1}]")
    e("L_pc:")
    e("  v_cmp_gt_u32 vcc, 64, v0")
    e(f"  v_lshlrev_b32 {vr(vT16)}, 4, v0")
    e(f"  s_lshr_b32 s{sC}, s2, 4")
    e(f"  s_and_b32 s{sH}, s2, 7")
    e(f"  s_lshl3_add_u32 s{sH}, s{sC}, s{sH}")
    e(f"  s_movk_i32 s{sNEED}, 768")
    e("  s_cbranch_vccz L_s0")
    e(f"  v_lshl_add_u32 {vr(h0)}, s{sC}, 6, v0")
    e(f"  v_mul_u32_u24 {vr(h0)}, {P.tst}, {vr(h0)}")
    e(f"  global_load_dword {vr(h3)}, {vr(h0)}, s[{sZ}:{sZ + 1}] offset:{D_END - PC0} {P.cf}")
    e(f"  v_and_b32 {vr(vL16)}, 0x1f0, {vr(vT16)}")
    e(f"  global_load_dwordx4 {vr(pr, 4)}, {vr(vL16)}, s[{sZ}:{sZ + 1}] offset:{D_QCS - PC0}")
    e("  s_branch L_helper")
    e("L_s0:")
    e(f"  v_and_b32 {vr(vC16)}, 0xf0, {vr(vT16)}")
    e(f"  global_load_dwordx4 {vr(invX, 4)}, {vr(vC16)}, s[{sZ}:{sZ + 1}] offset:{D_INV - PC0}")
    e(f"  global_load_dwordx4 {vr(invY, 4)}, {vr(vC16)}, s[{sZ}:{sZ + 1}] offset:{D_INV + 256 - PC0}")
    e(f"  s_mul_i32 s{sT0}, s{sH}, 196608")
    e(f"  s_and_b32 s{sT1}, s2, 8")
    e(f"  s_lshl_b32 s{sT1}, s{sT1}, 12")
    e(f"  s_add_u32 s{sT0}, s{sT0}, s{sT1}")
    e(f"  s_add_u32 s{sT0}, s{sT0}, {65536 * RUN[0] - 1024 + 4096}")
    e(f"  v_add_u32 {vr(tA)}, s{sT0}, {vr(vT16)}")
    for k in range(1, (NF + 1) // 2):
        e(f"  v_add_u32 {vr(tA + k)}, {8192 * k}, {vr(tA)}")
    e("  s_waitcnt lgkmcnt(0)")
    for n in range(NF):
        e(f"  global_load_dwordx4 {vr(ring + 4 * n, 4)}, {vr(tA + n // 2)}, s[{sQK}:{sQK + 1}] offset:{4096 * (n % 2) - 4096} nt")
    e("  s_branch L_s1")
    e("L_b0:")
    e(f".if (L_b0 - {NAME}_kernel > {D_INV}) || (L_pc - {NAME}_kernel != {PC0})")
    e('.error "entry block layout"')
    e(".endif")
    e(".p2align 8")
    e(".type L_inv,@object")
    e("L_inv:")
    tb = inv[:64] + inv[64:] + inv[64:]
    for k in range(0, 128, 8):
        e("  .long " + ", ".join(f"{v:#x}" for v in tb[k:k + 8]))
    e(".type L_qcs,@object")
    e("L_qcs:")
    for k in range(0, 96, 8):
        e("  .long " + ", ".join(f"{v:#x}" for v in qcs[k:k + 8]))

    def common():
        e(f"  s_load_dwordx8 s[24:31], s[0:1], 80")
        e(f"  s_lshl_b32 s{sT0}, s2, 6")
        e(f"  s_add_u32 s{sT0}, s{sT0}, L_order-L_pc")
        e(f"  s_add_u32 s{sRT}, s{sZ}, s{sT0}")
        e(f"  s_addc_u32 s{sRT + 1}, s{sZ + 1}, 0")
        e(f"  s_load_dwordx2 s[{sVO}:{sVO + 1}], s[{sRT}:{sRT + 1}], 0")
        e(f"  s_load_dwordx2 s[{sCN}:{sCN + 1}], s[{sRT}:{sRT + 1}], 8")
        if P.tb:
            e(f"  s_load_dword s{sPB}, s[{sRT}:{sRT + 1}], 28")
        e(f"  v_mov_b32 {vr(vZ)}, 0")
        e(f"  s_mov_b32 s{sSP}, {P.bound}")
        e(f"  s_bfe_u32 s{sJ}, s2, 0x10003")

    PFR = [8, 10, 14, 16, 18, 20, 22, 72, 74, 76, 4, 86]
    pfn = [0]

    def pf():
        if P.tfine:
            e(f"  {'s_memtime' if 'm' in P.xp else 's_memrealtime'} s[{PFR[pfn[0]]}:{PFR[pfn[0]] + 1}]")
            pfn[0] += 1

    e("L_s1:")
    w_, s_, vAD, vC8, t0, t1 = wt, wt + 1, wt + 2, wt + 3, dacc, dacc + 1
    vRF, pos = vT16, tK + 3
    if P.trace:
        e(f"  v_mov_b32 {vr(vtr)}, 0")
        e("  s_mov_b32 m0, 0")
    pf()
    e("  v_subrev_u32 v0, 64, v0")
    e("  s_setprio 1")
    common()
    e(f"  v_lshrrev_b32 {vr(w_)}, 6, v0")
    e(f"  v_lshrrev_b32 {vr(s_)}, 4, v0")
    e(f"  v_and_b32 {vr(vC8)}, 0x70, {vr(vC16)}")
    e(f"  v_readfirstlane_b32 s{sW}, {vr(w_)}")
    e(f"  v_add_u32 {vr(vAD)}, {vr(vC8)}, {vr(s_)}")
    e(f"  s_mul_i32 s{sT0}, s{sJ}, 44")
    e(f"  s_sub_u32 s{sT0}, 86, s{sT0}")
    e(f"  v_cmp_eq_u32 vcc, s{sT0}, {vr(vAD)}")
    e(f"  v_mov_b32 {vr(t0)}, 0x80")
    e(f"  s_and_b32 s{sH}, s2, 7")
    e(f"  v_cndmask_b32 {vr(vAD)}, {vr(vAD)}, {vr(t0)}, vcc")
    e(f"  v_mul_u32_u24 {vr(t0)}, 381, {vr(vAD)}")
    e(f"  s_mul_i32 s{sT0}, s{sJ}, 43")
    e(f"  v_add_u32 {vr(t0)}, 2, {vr(t0)}")
    e(f"  s_lshl_b32 s{sT1}, s{sH}, 8")
    e(f"  v_lshrrev_b32 {vr(t0)}, 14, {vr(t0)}")
    assert all((381 * i + 2) >> 14 == (i >= 43) + (i >= 86) for i in range(129))
    e(f"  s_add_u32 s{sT0}, s{sT0}, s{sT1}")
    e(f"  v_mad_u32_u24 {vr(t0)}, {vr(t0)}, 42, {vr(vAD)}")
    e(f"  v_add_u32 {vr(t0)}, s{sT0}, {vr(t0)}")
    e(f"  v_cvt_f32_u32 {vr(vRF)}, {vr(t0)}")
    e(f"  v_mul_u32_u24 {vr(vAD)}, 384, {vr(vAD)}")
    e(f"  s_mov_b32 s{rA + 2}, {HB}")
    e(f"  s_mov_b32 s{rA + 3}, 0x20000")
    srd_head(rA, sQK, sC)
    e(f"  s_mul_i32 s{sT0}, s{sH}, 6")
    e(f"  s_add_u32 s{sT0}, s{sT0}, s{sJ}")
    e(f"  s_lshl_b32 s{sT0}, s{sT0}, 15")
    e(f"  v_lshl_add_u32 {vr(voff + RUN.index(0))}, v0, 4, s{sT0}")
    for k in (1, 2):
        e(f"  v_add_u32 {vr(voff + RUN.index(k))}, {65536 * k:#x}, {vr(voff + RUN.index(0))}")
    for i in range(1, 8):
        e(f"  s_movk_i32 s{sOF + i}, {4096 * i}")
    nk = [NF]
    assert PRE <= RING and max(int(v) for v in P.kp_.split(",")[:P.su + 1]) <= min(SPECIAL)

    def k_loads(hi):
        while nk[0] < min(hi, PRE):
            ld(nk[0])
            nk[0] += 1

    def toff_(n):
        run = RUN[n >> 3]
        return 384 * (16 * (((n & 7) + run) // 3) + 38 * run)

    def setup():
        e("; per chunk class k: q operand, table and partial addresses")
        e(f"  s_lshl1_add_u32 s{sF}, s{sJ}, s{sW}")
        e(f"  s_lshl_b32 s{sF}, s{sF}, 1")
        e(f"  s_lshr_b32 s{sF}, 0x4924, s{sF}")
        e(f"  v_bfe_u32 {vr(t1)}, v0, 4, 2")
        e(f"  v_lshl_add_u32 {vr(t1)}, {vr(t1)}, 2, {vr(vC16)}")
        e(f"  v_mad_u32_u24 {vr(vF)}, {vr(w_)}, s{sNEED}, {vr(t1)}")
        e(f"  v_add_u32 {vr(vF)}, {PB - 3072}, {vr(vF)}")
        e(f"  s_mul_i32 s{sT1}, s{sJ}, {43 * 384}")
        e(f"  s_sub_u32 s{sT1}, {TB}, s{sT1}")
        e(f"  v_lshl_add_u32 {vr(vSum)}, s{sJ}, 7, {vr(s_)}")
        for k in range(3):
            e(f"  s_bfe_u32 s{sT0}, s{sF}, {(2 << 16) | 2 * k:#x}")
            e(f"  v_lshl_add_u32 {vr(vPA + k)}, s{sT0}, 8, {vr(vF)}")
            if k:
                e(f"  v_add_u32 {vr(vSum)}, 16, {vr(vSum)}")
            e(f"  v_mul_u32_u24 {vr(t0)}, 171, {vr(vSum)}")
            e(f"  v_lshrrev_b32 {vr(t0)}, 9, {vr(t0)}")
            e(f"  v_mad_i32_i24 {vr(t1)}, {vr(t0)}, -3, {vr(vSum)}")
            e(f"  v_lshl_add_u32 {vr(t1)}, {vr(t1)}, 8, {vr(vC16)}")
            e(f"  v_add_u32 {vr(vQA + k)}, {QB}, {vr(t1)}")
            e(f"  v_subrev_u32 {vr(vSu2)}, 384, {vr(t1)}")
            e(f"  v_min_u32 {vr(t1)}, {vr(t1)}, {vr(vSu2)}")
            e(f"  v_mul_u32_u24 {vr(t0)}, 384, {vr(t0)}")
            e(f"  v_add3_u32 {vr(vTA + k)}, {vr(t0)}, {vr(t1)}, s{sT1}")
        e(f"  v_lshl_add_u32 {vr(vSum)}, s{sJ}, 4, {vr(s_)}")
        for n, i in SPECIAL.items():
            run, sx = RUN[n >> 3], 15 * (n & 7 == 7)
            b = int(run == 0)
            g0, g1 = 256 * run + 128 * b + 16 * (n & 7) + sx, chunk_of(b, n, sx)
            dt = 384 * (tidx(b, g1 // 3) - (g0 // 3 - 43 * b - 42 * run))
            e(f"  v_cmp_eq_u32 vcc, {16 * b + sx}, {vr(vSum)}")
            e(f"  v_add_u32 {vr(t0)}, {256 * (g1 - g0) & 0xffffffff:#x}, {vr(voff + (n >> 3))}")
            e(f"  v_add_u32 {vr(t1)}, {toff_(n)}, {vr(vTA + TN[n])}")
            e(f"  v_add_u32 {vr(vSu2)}, {dt & 0xffffffff:#x}, {vr(t1)}")
            e(f"  v_cndmask_b32 {vr(voff + 3 + i)}, {vr(voff + (n >> 3))}, {vr(t0)}, vcc")
            e(f"  v_cndmask_b32 {vr(vTA + 3 + i)}, {vr(t1)}, {vr(vSu2)}, vcc")
        e(f"  v_lshlrev_b32 {vr(vLB)}, 2, v0")
        e(f"  v_add_u32 {vr(vLB)}, {LGB}, {vr(vLB)}")
        e(f"  v_lshrrev_b32 {vr(t1)}, 1, v0")
        e(f"  v_lshlrev_b32 {vr(t1)}, 2, {vr(t1)}")
        e(f"  v_add_u32 {vr(vLB + 1)}, {LGB + 1024}, {vr(t1)}")
        e(f"  v_subrev_u32 {vr(vLG)}, 1536, {vr(vLB)}")
        e(f"  v_subrev_u32 {vr(vLG + 1)}, 1536, {vr(vLB + 1)}")
        e(f"  v_lshlrev_b32 {vr(vPW)}, 2, {vr(w_)}")
        e(f"  s_mov_b32 s{sMSK}, 0xcccccccc")
        e(f"  s_mov_b32 s{sMSK + 1}, s{sMSK}")
        e(f"  s_mov_b32 s{sMSK + 2}, 0xaaaaaaaa")
        e(f"  s_mov_b32 s{sMSK + 3}, s{sMSK + 2}")
        e(f"  s_mov_b32 s{rB + 2}, {HB}")
        e(f"  s_mov_b32 s{rB + 3}, 0x20000")
        e(f"  s_mov_b32 s{sK}, 0")
        if P.ctl:
            e("; progress slots: this wave writes one byte of line (half, w) and samples the lines of the other half")
            die_base(sF)
            e(f"  s_add_u32 s{sT0}, s{sF}, 2048")
            e(f"  v_mov_b32 {vr(vBA)}, s{sT0}")
            e(f"  s_and_b32 s{sT1}, s{sSE}, 2")
            e(f"  s_lshl_b32 s{sT1}, s{sT1}, 9")
            e(f"  s_lshl_b32 s{sT0}, s{sW}, 8")
            e(f"  s_add_u32 s{sT0}, s{sT0}, s{sT1}")
            e(f"  s_add_u32 s{sT0}, s{sT0}, s{sF}")
            e(f"  s_add_u32 s{sT0}, s{sT0}, s{sCU}")
            e(f"  s_and_b32 s{sSE}, s{sSE}, 1")
            e(f"  s_lshl_b32 s{sSE}, s{sSE}, 4")
            e(f"  s_add_u32 s{sT0}, s{sT0}, s{sSE}")
            e(f"  v_mov_b32 {vr(vPS)}, s{sT0}")
            e(f"  s_xor_b32 s{sT1}, s{sT1}, 1024")
            e(f"  s_add_u32 s{sF}, s{sF}, s{sT1}")
            e(f"  v_and_b32 {vr(vN)}, 1, v0")
            e(f"  v_lshl_add_u32 {vr(vN)}, {vr(vN)}, 4, s{sF}")
            for k in range(4):
                e(f"  v_add_u32 {vr(vSum)}, {k}, {vr(w_)}")
                e(f"  v_and_b32 {vr(vSum)}, 3, {vr(vSum)}")
                e(f"  v_lshl_add_u32 {vr(vPL + k)}, {vr(vSum)}, 8, {vr(vN)}")
            e(f"  s_mov_b32 s{sLO}, {(-(LAG + 2) * 0x01010101) & 0xffffffff:#x}")
            for k in range(4 * LAG):
                e(f"  v_mov_b32 {vr(smp + k)}, 0")
            for k in range(2):
                e(f"  v_mov_b32 {vr(vBI + k)}, 0")
            e(f"  v_mov_b32 {vr(vN)}, 0")
            e(f"  s_mov_b32 s{sB}, 0")
            e(f"  s_mov_b32 s{sS}, {P.s0}")
            e(f"  s_mov_b32 s{sI}, 0")
            e(f"  s_mov_b32 s{sCO}, 0")

    def sincos(dst, iv):
        for h in (0, 2):
            e(f"  v_pk_mul_f32 {vr(tA + h, 2)}, {vr(iv + h, 2)}, {vr(tK + 2, 2)} op_sel:[0,1] op_sel_hi:[1,1]")
        if iv == invY:
            for h in (0, 2):
                e(f"  v_pk_mul_f32 {vr(tN + h, 2)}, {vr(tA + h, 2)}, {vr(tK, 2)} op_sel_hi:[1,0]")
        else:
            for h in (0, 2):
                e(f"  v_pk_fma_f32 {vr(tN + h, 2)}, {vr(tA + h, 2)}, {vr(tK, 2)}, {vr(tK, 2)} op_sel:[0,0,1] op_sel_hi:[1,0,1]")
            for h in (0, 2):
                e(f"  v_pk_add_f32 {vr(tN + h, 2)}, {vr(tN + h, 2)}, {vr(tK, 2)} op_sel:[0,1] op_sel_hi:[1,1] neg_lo:[0,1] neg_hi:[0,1]")
            for h in (0, 2):
                e(f"  v_pk_fma_f32 {vr(tN + h, 2)}, {vr(tA + h, 2)}, {vr(tK, 2)}, {vr(tN + h, 2)} op_sel_hi:[1,0,1] neg_lo:[0,0,1] neg_hi:[0,0,1]")
            for h in (0, 2):
                e(f"  v_pk_fma_f32 {vr(tN + h, 2)}, {vr(tA + h, 2)}, {vr(tK + 2, 2)}, {vr(tN + h, 2)} op_sel_hi:[1,0,1]")
        for i in range(4):
            e(f"  v_cos_f32 {vr(tA + i)}, {vr(tN + i)}")
        for i in range(4):
            e(f"  v_sin_f32 {vr(tN + i)}, {vr(tN + i)}")
        for i in range(4):
            e(f"  v_cvt_pk_bf16_f32 {vr(dst + i)}, {vr(tA + i)}, {vr(tN + i)}")

    kp = [int(v) for v in P.kp_.split(",")]

    def chunk(i):
        a = 2 * (i // 3)
        d = tO + 4 * (i & 1)
        bc_ = lambda x, m: f"row_newbcast:{x} row_mask:0xf bank_mask:{m:#x}"
        if i % 3 == 1:
            e(f"  v_mov_b32_dpp {vr(pos)}, {vr(vRF)} {bc_(a + 1, 12)}")
            e(f"  v_add_u32_dpp {vr(vF)}, {vr(vAD)}, {vr(vC8)} {bc_(a, 3)}")
            e(f"  v_add_u32_dpp {vr(vF)}, {vr(vAD)}, {vr(vC8)} {bc_(a + 1, 12)}")
            sincos(d, invY)
            e(f"  ds_write_b128 {vr(vF)}, {vr(d, 4)} offset:{TB + 256}")
        else:
            a += i % 3 // 2
            e(f"  v_mov_b32_dpp {vr(pos)}, {vr(vRF)} {bc_(a, 15)}")
            e(f"  v_add_u32_dpp {vr(vF)}, {vr(vAD)}, {vr(vC16)} {bc_(a, 15)}")
            sincos(d, invX)
            e(f"  ds_write_b128 {vr(vF)}, {vr(d, 4)} offset:{TB}")

    def tab_read(a):
        for n in range(3 * a, 3 * a + 3):
            d = tab + 12 * (a & 1) + 4 * (n % 3)
            if n in SPECIAL:
                e(f"  ds_read_b128 {vr(d, 4)}, {vr(vTA + 3 + SPECIAL[n])}")
            else:
                e(f"  ds_read_b128 {vr(d, 4)}, {vr(vTA + TN[n])} offset:{toff_(n)}")

    c_hi = f32bits(1 / (2 * math.pi))
    c_lo = f32bits(1 / (2 * math.pi) - struct.unpack("<f", struct.pack("<I", c_hi))[0])
    e(f"  v_mov_b32 {vr(tK)}, {c_hi:#x}")
    e(f"  v_mov_b32 {vr(tK + 1)}, {f32bits(1.5 * 2 ** 23):#x}")
    e(f"  v_mov_b32 {vr(tK + 2)}, {c_lo:#x}")
    k_loads(kp[0])
    pf()
    e(f"  s_waitcnt vmcnt({nk[0]})")
    pf()
    for i in range(12):
        if i == P.su:
            setup()
            pf()
        chunk(i)
        k_loads(kp[i + 1])
        if i % 3 == 2:
            pf()
    k_loads(PRE)
    e(f"  v_mov_b32 {vr(bc)}, {f32bits(-7.5):#x}")
    e("  s_waitcnt lgkmcnt(0)")
    e("  s_barrier")
    pf()
    for k in range(3):
        e(f"  ds_read_b128 {vr(qa + 4 * k, 4)}, {vr(vQA + k)}")
    tab_read(0)
    e(f"  s_waitcnt vmcnt({PRE - ORD['K'][:ORD['K'].index('L')].count('b')})")
    pf()
    if P.tfine:
        e("  s_waitcnt lgkmcnt(0)")
        for k in range(pfn[0]):
            e(f"  v_writelane_b32 {vr(vtr)}, s{PFR[k]}, {k}")
        e(f"  s_mov_b32 m0, {pfn[0]}")

    def vfirst():
        e(f"  s_and_b32 s{sH}, s{sVO}, 15")
        e(f"  s_add_u32 s{sNEED}, s{sH}, 1")
        e(f"  ds_read_b32 {vr(vF)}, {vr(vZ)} offset:{FL + 20}")
        flagwait("a0", FL + 20)
        e(f"  s_mulk_i32 s{sH}, 1536")
        for k in range(2):
            e(f"  v_add_u32 {vr(vLV + k)}, s{sH}, {vr(vLB + k)}")
        e(f"  ds_read_b32 {vr(A)}, {vr(vLV)}")

    assert all(x[3] < 14 for x in sch)

    def knext():
        e("; next SRD: K head k + 1, or the V heads of steps 0 / 1 once K runs out")
        e(f"  s_add_u32 s{sH}, s{sK}, 1")
        e(f"  s_sub_u32 s{sT1}, s{sH}, 16")
        vstep_k(sF, sT1)
        e(f"  s_cmp_lt_u32 s{sH}, 16")
        e(f"  s_cselect_b32 s{sH}, s{sH}, s{sF}")
        e(f"  s_cselect_b32 s{sX}, s{sQK}, s{sQV}")
        e(f"  s_cselect_b32 s{sX + 1}, s{sQK + 1}, s{sQV + 1}")
        head_of(sH, sH)
        srd_head(rB, sX, sH)

    def kred(n):
        dpp = lambda d, x, how, m: e(f"  v_add_f32_dpp {vr(d)}, {vr(x)}, {vr(x)} {how} row_mask:0xf bank_mask:{m:#x}")
        dpp(M1, dacc, "row_ror:8", 12 if n & 1 else 3)
        if n % 2 == 1:
            e("  s_nop 1")
            dpp(M2, M1, "row_half_mirror", 10 if n & 2 else 5)
        if n % 4 == 3:
            e("  s_nop 1")
            dpp(M2 if n & 4 else M3, M2, "quad_perm:[2,3,0,1]", 15)
        if n % 8 == 7:
            e(f"  v_cndmask_b32_e64 {vr(M3)}, {vr(M3)}, {vr(M2)}, s[{sMSK}:{sMSK + 1}]")
            e("  s_nop 1")
            dpp((LG, M3, LG + 1)[n >> 3], M3, "quad_perm:[1,0,3,2]", 15)
        if n == 15:
            e(f"  v_cndmask_b32_e64 {vr(LG)}, {vr(LG)}, {vr(M3)}, s[{sMSK + 2}:{sMSK + 3}]")

    e(".p2align 6")
    e("L_k:")

    def kbody(n):
        k_, q_ = ring + 4 * n, qa + 4 * TN[n]
        for i in range(4):
            e(f"  v_dot2_f32_bf16 {vr(wt + i)}, {vr(tab + 12 * (n // 3 & 1) + 4 * (n % 3) + i)}, {vr(q_ + i)}, 0")
        for i in range(4):
            e(f"  v_cvt_f32_i32 {vr(k_ + i)}, {vr(k_ + i)}")
        if n >= 21:
            e(f"  ds_read_b128 {vr(q_, 4)}, {vr(vQA + TN[n])}")
        for h in range(2):
            e(f"  v_pk_add_f32 {vr(k_ + 2 * h, 2)}, {vr(k_ + 2 * h, 2)}, {vr(bc, 2)} op_sel_hi:[1,0]")
        e(f"  v_pk_mul_f32 {vr(dacc, 2)}, {vr(k_, 2)}, {vr(wt, 2)}")
        e(f"  v_pk_fma_f32 {vr(dacc, 2)}, {vr(k_ + 2, 2)}, {vr(wt + 2, 2)}, {vr(dacc, 2)}")
        e(f"  v_add_f32 {vr(dacc)}, {vr(dacc)}, {vr(dacc + 1)}")

    def kout():
        e(f"  v_mov_b32 {vr(vF)}, s{sK}")
        for k in range(2):
            e(f"  ds_write_b32 {vr(vLG + k)}, {vr(LG + k)}")
        e(f"  ds_write_b32 {vr(vPW)}, {vr(vF)} offset:{FL}")

    def group(ph, a, body, after, res):
        nb, pend = 3 * a, None
        od = ORD[ph]
        for i, c in enumerate(od):
            if pend is not None and c != "L":
                if od[i - 1] == "b":
                    e("  s_nop 1")
                after(pend)
                pend = None
            if c == "E":
                evaluate(ph, a)
                if od[i + 1] != "X":
                    decide(ph, a)
            if c == "X":
                exchange(a)
                if od[i - 1] == "E":
                    decide(ph, a)
            if c == "R" and a == 0:
                res()
            if c == "b":
                body(nb)
                pend = nb if after else None
                nb += 1
            if c == "L":
                issue(ph, a, i)
        if pend is not None:
            if od[-1] == "b":
                e("  s_nop 1")
            after(pend)

    for a in range(8):
        if a == 7:
            flagwait("qn", FL + 16)
        else:
            e("  s_waitcnt lgkmcnt(0)")
        tab_read((a + 1) % 8)
        if a == 6:
            e(f"  ds_read_b32 {vr(vF)}, {vr(vZ)} offset:{FL + 16}")
        group("K", a, kbody, kred, kout)
        if a == 1:
            knext()
        if a == 3:
            e(f"  s_add_u32 s{sT0}, s{sK}, 2")
            e(f"  s_min_u32 s{sNEED}, s{sT0}, 16")
            for k in range(3):
                e(f"  v_add_u32 {vr(vQA + k)}, 768, {vr(vQA + k)}")
            for k in range(2):
                e(f"  v_add_u32 {vr(vLG + k)}, 1536, {vr(vLG + k)}")
            e(f"  s_cmp_eq_u32 s{sK}, 15")
            e("  s_cbranch_scc1 L_kv")
            e("L_kw:")
        if a in (3, 7) or P.tfine:
            tr()
    assert sorted(TN[21:]) == [0, 1, 2] and TN[:3] == TN[3:6] and sorted(TN[:3]) == [0, 1, 2] and PRE <= 18
    e(f"  s_add_u32 s{sK}, s{sK}, 1")
    e(f"  s_mov_b64 s[{rA}:{rA + 1}], s[{rB}:{rB + 1}]")
    e(f"  s_cmp_lt_u32 s{sK}, 16")
    e("  s_cbranch_scc1 L_k")


    def vbody(n):
        v_ = ring + 4 * n
        e(f"  v_mov_b32_dpp {vr(bc)}, {vr(A + n // 16)} row_newbcast:{rev(n % 16, 4)} row_mask:0xf bank_mask:0xf")
        for i in range(4):
            e(f"  v_cvt_f32_i32 {vr(v_ + i)}, {vr(v_ + i)}")
        for h in range(2):
            d = 4 * TN[n] + 2 * h
            if n < 3:
                e(f"  v_pk_mul_f32 {vr(tmp + d, 2)}, {vr(v_ + 2 * h, 2)}, {vr(bc, 2)} op_sel_hi:[1,0]")
            else:
                e(f"  v_pk_fma_f32 {vr(acc + d, 2)}, {vr(v_ + 2 * h, 2)}, {vr(bc, 2)}, {vr((tmp if n < 6 else acc) + d, 2)} op_sel_hi:[1,0,1]")

    def vout(last=False):
        for j in range(3):
            e(f"  v_permlane32_swap_b32 {vr(acc + 4 * j)}, {vr(acc + 4 * j + 2)}")
            e(f"  v_permlane32_swap_b32 {vr(acc + 4 * j + 1)}, {vr(acc + 4 * j + 3)}")
        for j in range(3):
            e(f"  v_add_f32 {vr(acc + 4 * j)}, {vr(acc + 4 * j)}, {vr(acc + 4 * ((j + 1) % 3) + 2)}")
            e(f"  v_add_f32 {vr(acc + 4 * j + 1)}, {vr(acc + 4 * j + 1)}, {vr(acc + 4 * ((j + 1) % 3) + 3)}")
        for j in range(3):
            e(f"  v_permlane16_swap_b32 {vr(acc + 4 * j)}, {vr(acc + 4 * j + 1)}")
        for j in range(3):
            e(f"  v_add_f32 {vr(acc + 4 * j)}, {vr(acc + 4 * j)}, {vr(acc + 4 * ((j + 2) % 3) + 1)}")
        for j in range(3):
            e(f"  ds_write_b32 {vr(vPA + j)}, {vr(acc + 4 * j)}")
        if not last:
            e(f"  ds_write_b32 {vr(vPW)}, {vr(M1)} offset:{FL}")

    def vnext():
        e(f"  s_add_u32 s{sT1}, s{sK}, 1")
        e(f"  s_min_u32 s{sT1}, s{sT1}, 15")
        vstep_k(sH, sT1)
        e(f"  s_add_u32 s{sNEED}, s{sH}, 1")
        e(f"  s_mul_i32 s{sF}, s{sH}, 1536")
        head_of(sH, sH)
        srd_head(rB, sQV, sH)
        for k in range(2):
            e(f"  v_add_u32 {vr(vLV + k)}, s{sF}, {vr(vLB + k)}")

    NS, NT = (PRE - PD) // 3, 8 - PD // 3
    assert NS == 1 and NT <= 5 and max(P.mg, P.ml) <= 3 * NT
    e("L_vpre:")
    kout()
    e(f"  s_mov_b32 s{sK}, 0")
    e(f"  v_mov_b32 {vr(M1)}, 16")
    for n in range(3):
        e(f"  s_waitcnt vmcnt({plain[384 + n]})")
        vbody(n)
    e(f"  s_waitcnt vmcnt({plain[387]}) lgkmcnt(0)")
    e("  s_branch L_v1")
    flush()
    e("L_kv:")
    vfirst()
    e("  s_branch L_kw")
    flush()
    e(".p2align 6")
    e("L_v:")
    for a in range(8):
        if a == 1:
            e("L_v1:")
            e(f"  ds_read_b32 {vr(A + 1)}, {vr(vLV + 1)}")
        if a == NT:
            e(f"  s_cmp_eq_u32 s{sK}, 15")
            e("  s_cbranch_scc1 L_vt")
        if a in (5, 7):
            e("  s_waitcnt lgkmcnt(0)")
        if a == 5:
            e(f"  ds_read_b32 {vr(vF)}, {vr(vZ)} offset:{FL + 20}")
        if a == 6:
            flagwait("an", FL + 20)
            e(f"  ds_read_b32 {vr(A)}, {vr(vLV)}")
        group("V", a, vbody, None, vout)
        if a == 1:
            vnext()
        if a == 3:
            e(f"  v_add_u32 {vr(M1)}, 1, {vr(M1)}")
            for j in range(3):
                e(f"  v_add_u32 {vr(vPA + j)}, 3072, {vr(vPA + j)}")
        if a in (3, 7):
            tr()
    e(f"  s_add_u32 s{sK}, s{sK}, 1")
    e(f"  s_mov_b64 s[{rA}:{rA + 1}], s[{rB}:{rB + 1}]")
    e("  s_branch L_v")
    flush()
    e("L_vt:")
    e("  s_waitcnt lgkmcnt(0)")
    for n in range(3 * NT, 24):
        e(f"  s_waitcnt vmcnt({plain[744 + n]})")
        vbody(n)
    tr()
    e("  s_nop 1")
    vout(True)
    e("  s_waitcnt lgkmcnt(0)")
    e("  s_barrier")
    if P.trace:
        e(f"  s_mul_i32 s8, s2, {5 * 256}")
        e("  s_add_u32 s8, s8, 0x100000")
        e(f"  v_lshl_add_u32 {vr(t0)}, v0, 2, s8")
        e(f"  global_store_dword {vr(t0)}, {vr(vtr)}, s[{sWS}:{sWS + 1}]")
    e("  s_endpgm")

    HP = [20, 22, 24, 8, 34, 36, 38, 72]
    ms = [m for m in range(P.r0, P.r1 + 1) if m < P.rf or m > P.rt or (m - P.r0) % P.rp == 0]
    gain = [(P.kp0 if m <= P.kn else P.kp) if m in ms else 0 for m in range(32)]
    if P.rk:
        gain = [int(c, 16) for c in P.rk]
        assert len(gain) == 32 and not any(gain[:P.r0]) and not gain[31]
    msk = sum(1 << m for m in range(32) if gain[m])

    def hp(k):
        if P.hprof:
            e(f"  s_memrealtime s[{HP[k]}:{HP[k] + 1}]")

    def progwait(name, slp, off=FL):
        e(f"L_{name}:")
        e(f"  ds_read_b128 {vr(pr, 4)}, {vr(vZ)} offset:{off}")
        e("  s_waitcnt lgkmcnt(0)")
        e(f"  v_min_u32 {vr(pr)}, {vr(pr)}, {vr(pr + 1)}")
        e(f"  v_min3_u32 {vr(pr)}, {vr(pr)}, {vr(pr + 2)}, {vr(pr + 3)}")
        e("  s_nop 0")
        e(f"  v_readfirstlane_b32 s{sF}, {vr(pr)}")
        e(f"  s_cmp_ge_u32 s{sF}, s{sNEED}")
        e(f"  s_cbranch_scc1 L_{name}_ok")
        budget(f"L_{name}_ok")
        if slp:
            e(f"  s_sleep {slp}")
        e(f"  s_branch L_{name}")
        e(f"L_{name}_ok:")

    def rowred(op, v):
        for n in (8, 4, 2, 1):
            e("  s_nop 1")
            e(f"  {op}_dpp {vr(v)}, {vr(v)}, {vr(v)} row_ror:{n} row_mask:0xf bank_mask:0xf")

    def allred(op, v, t):
        rowred(op, v)
        for sw in ("v_permlane16_swap_b32", "v_permlane32_swap_b32"):
            e(f"  v_mov_b32 {vr(t)}, {vr(v)}")
            e("  s_nop 1")
            e(f"  {sw} {vr(v)}, {vr(t)}")
            e(f"  {op} {vr(v)}, {vr(v)}, {vr(t)}")

    def sum_partials(nq):
        w = 4 * nq
        for k in range(4):
            for q in range(nq):
                e(f"  ds_read_b128 {vr(x + w * k + 4 * q, 4)}, {vr(h0)} offset:{768 * k + 16 * q}")
        e(f"  ds_read_b128 {vr(z4, 4)}, {vr(h1)} offset:{ST}")
        e("  s_waitcnt lgkmcnt(0)")
        for h in range(0, w, 2):
            e(f"  v_pk_add_f32 {vr(x + h, 2)}, {vr(x + h, 2)}, {vr(x + w + h, 2)}")
            e(f"  v_pk_add_f32 {vr(x + 2 * w + h, 2)}, {vr(x + 2 * w + h, 2)}, {vr(x + 3 * w + h, 2)}")
        for h in range(0, w, 2):
            e(f"  v_pk_add_f32 {vr(x + h, 2)}, {vr(x + h, 2)}, {vr(x + 2 * w + h, 2)}")
        for h in range(0, w, 2):
            e(f"  v_pk_add_f32 {vr(x + h, 2)}, {vr(x + h, 2)}, {vr(z4 + 2, 2)} op_sel_hi:[1,0] neg_lo:[0,1] neg_hi:[0,1]")

    def mark(tag):
        if P.sd:
            e("  s_memrealtime s[16:17]")
            e("  s_waitcnt lgkmcnt(0)")
            e("  s_sub_u32 s19, s16, s18")
            e("  s_mov_b32 s18, s16")
            e(f"  s_add_u32 s16, s{sNEED}, {64 - P.sd}")
            e("  s_and_b32 s17, s16, 1")
            e("  s_lshl_b32 s17, s17, 4")
            e("  s_min_u32 s19, s19, 510")
            e("  s_lshl_b32 s19, s19, s17")
            e("  s_lshr_b32 m0, s16, 1")
            e(f"  v_readlane_b32 s17, {vr(vCL)}, m0")
            e("  s_add_u32 s17, s17, s19")
            e(f"  v_writelane_b32 {vr(vCL)}, s17, m0")
        if not P.enc:
            return
        for k, m in enumerate(P.enc.split(",")[:2]):
            e(f"  s_cmp_eq_u32 s{sNEED}, {m}")
            e(f"  s_cbranch_scc0 L_mk{tag}{k}")
            e(f"  s_memrealtime s[{16 + 2 * k}:{17 + 2 * k}]")
            e(f"L_mk{tag}{k}:")

    def rank_post(tag):
        if not P.ctl:
            return
        e(f"  s_bitcmp1_b32 s{sRF}, s{sNEED}")
        e(f"  s_cbranch_scc0 L_fa{tag}")
        e(f"  s_mul_i32 s{sT0}, s{sNEED}, 384")
        e(f"  s_add_u32 s{sT0}, s{sT0}, {W_RK}")
        e(f"  s_mov_b32 s{sB}, 1")
        e(f"  s_atomic_add s{sB}, s[{sWS}:{sWS + 1}], s{sT0} glc")
        e(f"L_fa{tag}:")

    def rank_take(tag):
        if not P.ctl:
            return
        e(f"  s_bitcmp1_b32 s{sRF}, s{sNEED}")
        e(f"  s_cbranch_scc0 L_fb{tag}")
        e("  s_waitcnt lgkmcnt(0)")
        e(f"  s_min_u32 s{sF}, s{sB}, 15")
        e(f"  s_lshl_b32 s{sF}, s{sF}, 1")
        e(f"  s_sub_u32 s{sF}, s{sF}, 15")
        gs = sorted(set(gain) - {0})
        e(f"  s_mov_b32 s{sT0}, {gs[0]}")
        for g_ in gs[1:]:
            e(f"  s_bitcmp1_b32 {sum(1 << m for m in range(32) if gain[m] == g_):#x}, s{sNEED}")
            e(f"  s_cselect_b32 s{sT0}, {g_}, s{sT0}")
        e(f"  s_mul_i32 s{sF}, s{sF}, s{sT0}")
        e(f"  s_add_u32 s{sF}, s{sF}, 8")
        e(f"  s_ashr_i32 s{sF}, s{sF}, 4")
        e(f"  v_mov_b32 {vr(vFX)}, s{sF}")
        e("  s_mov_b64 exec, 1")
        e(f"  global_store_dword {vr(vFB)}, {vr(vFX)}, s[{sWS}:{sWS + 1}]")
        e("  s_mov_b64 exec, -1")
        e(f"L_fb{tag}:")

    HPF = [10, 16, 18, 20, 22, 72, 74, 76, 60, 62]
    hpn = [0]

    def hpf():
        if P.tfine:
            e(f"  s_memrealtime s[{HPF[hpn[0]]}:{HPF[hpn[0]] + 1}]")
            hpn[0] += 1

    e("L_helper:")
    e(f"  s_setprio {P.hp0}")
    e(f"  v_and_b32 {vr(h1)}, 32, v0")
    e(f"  v_lshrrev_b32 {vr(h1)}, 1, {vr(h1)}")
    e(f"  v_add_u32 {vr(sg2)}, s{sC}, {vr(h1)}")
    e(f"  v_mad_u32_u24 {vr(ra)}, {vr(sg2)}, s{sNEED}, {vr(vL16)}")
    e(f"  v_lshrrev_b32 {vr(ra)}, 1, {vr(ra)}")
    hv = []

    def half(p, full):
        if p in (2, 3):
            e(f"  s_mov_b32 exec_hi, {0 if p == 2 else full}")
        if p in (5, 6):
            e(f"  s_mov_b32 exec_lo, {0 if p == 5 else full}")

    def sc_early():
        e(f"  s_and_b32 s{sT1}, s2, 7")
        e(f"  v_lshl_add_u32 {vr(wb)}, s{sT1}, 9, {vr(vL16)}")
        e(f"  v_lshl_add_u32 {vr(ra)}, {vr(sg2)}, 12, {vr(wb)}")
        for p in range(1, 8):
            e(f"  v_add_u32 {vr(ra + p)}, {0x20000 * p:#x}, {vr(ra)}")
        for p in range(8):
            half(p, -1)
            for i, sp in enumerate((sKS, sVS)):
                e(f"  s_mov_b32 m0, {SCB + SA * i + 1024 * p}")
                e("  s_nop 0")
                if "s" not in P.xp:
                    e(f"  global_load_lds_dwordx4 {vr(ra + p)}, s[{sp}:{sp + 1}] {P.sf}")
                    hv.append(("s", p))

    for p in range(1, 8):
        e(f"  v_add_u32 {vr(ra + p)}, {12288 * p}, {vr(ra)}")
    e("  s_mov_b32 exec_lo, 0xffffff")
    e("  s_mov_b32 exec_hi, 0xffffff")
    e("  s_waitcnt lgkmcnt(0)")
    hpf()
    for p in range(8):
        half(p, "0xffffff")
        e(f"  global_load_dwordx2 {vr(rec + 4 * p, 2)}, {vr(ra + (0 if 'q' in P.xp else p))}, s[{sQ}:{sQ + 1}] {P.qf}")
        e(f"  global_load_dwordx2 {vr(rec + 4 * p + 2, 2)}, {vr(ra + (0 if 'q' in P.xp else p))}, s[{sQ}:{sQ + 1}] offset:192 {P.qf}")
        hv.extend([("q", p)] * 2)
    e("  s_mov_b64 exec, -1")
    hpf()
    if P.ss == 0:
        sc_early()
    common()
    e(f"  s_load_dword s{sO}, s[{sRT}:{sRT + 1}], 24")
    e(f"  s_load_dword s{sOH}, s[{sRT}:{sRT + 1}], 16")
    e(f"  v_mov_b32 {vr(l)}, v0")
    for i in range(4):
        e(f"  v_mov_b32 {vr(z4 + i)}, 0")
    e(f"  ds_write_b128 {vr(vZ)}, {vr(z4, 4)} offset:{FL}")
    e(f"  ds_write_b128 {vr(vZ)}, {vr(z4, 4)} offset:{FL + 16}")
    e(f"  ds_write_b128 {vr(vZ)}, {vr(z4, 4)} offset:{FL + 32}")
    e(f"  ds_write_b128 {vr(vZ)}, {vr(z4, 4)} offset:{FL + 48}")
    e(f"  s_mov_b32 s{sMASK}, 0xffff0000")
    e(f"  s_mov_b32 s{sSCALE}, {f32bits(math.log2(math.e) / math.sqrt(192.0)):#x}")
    e(f"  v_mad_u32_u24 {vr(wa)}, {vr(h1)}, 48, {vr(vL16)}")
    e(f"  v_mov_b32 {vr(vOne)}, 1")
    e(f"  s_waitcnt vmcnt({len(hv)})")
    for k in range(4):
        e(f"  v_lshlrev_b32 {vr(cs + k)}, 16, {vr(pr + k)}")
        e(f"  v_and_b32 {vr(cs + 4 + k)}, s{sMASK}, {vr(pr + k)}")
    e("  s_waitcnt lgkmcnt(0)")
    hpf()
    if P.ctl:
        die_base(sF)
        e(f"  v_lshrrev_b32 {vr(h0)}, 1, {vr(l)}")
        e(f"  v_lshl_add_u32 {vr(vFX)}, {vr(h0)}, 8, s{sF}")
        e(f"  v_and_b32 {vr(h0)}, 1, {vr(l)}")
        e(f"  v_lshl_add_u32 {vr(vFX)}, {vr(h0)}, 4, {vr(vFX)}")
        e(f"  s_and_b32 s{sT1}, s{sSE}, 2")
        e(f"  s_lshl_b32 s{sT0}, s{sT1}, 9")
        e(f"  s_add_u32 s{sT0}, s{sT0}, s{sF}")
        e(f"  v_add_u32 {vr(vEL)}, s{sT0}, {vr(l)}")
        e(f"  s_lshl_b32 s{sT1}, s{sT1}, 1")
        e(f"  s_add_u32 s{sF}, s{sF}, s{sT1}")
        e(f"  s_add_u32 s{sF}, s{sF}, 2048")
        e(f"  v_mov_b32 {vr(vFB)}, s{sF}")
        e(f"  v_mul_u32_u24 {vr(vFA)}, 384, {vr(l)}")
        e(f"  v_add_u32 {vr(vFA)}, {W_RK}, {vr(vFA)}")
        e(f"  s_mov_b32 s{sRF}, 0")

    def ctl_init():
        if not P.ctl:
            return
        e("  s_mov_b64 exec, 0x3ffff")
        e(f"  global_store_dwordx4 {vr(vFX)}, {vr(z4, 4)}, s[{sWS}:{sWS + 1}]")
        e("  s_mov_b64 exec, -1")

    def elect():
        if not P.ctl:
            return
        e(f"  s_cmp_eq_u32 s{sNEED}, {P.r0 - 1}")
        e("  s_cbranch_scc0 L_el")
        e(f"  s_bitcmp0_b32 s{sSE}, 0")
        e("  s_cbranch_scc0 L_el")
        e("  s_mov_b64 exec, 0xffff")
        e(f"  global_load_ubyte {vr(vFX)}, {vr(vEL)}, s[{sWS}:{sWS + 1}] sc1")
        e("  s_waitcnt vmcnt(0)")
        e(f"  v_cmp_ne_u32 s[{sZ}:{sZ + 1}], 0, {vr(vFX)}")
        e(f"  s_lshr_b32 s{sT0}, s{sZ}, s{sCU}")
        e(f"  s_bcnt1_i32_b32 s{sT0}, s{sT0}")
        pat = sum(1 << m for m in range(0, 32, P.rotl))
        e(f"  s_sub_u32 s{sT1}, s{sT0}, 1")
        e(f"  s_cmp_lt_u32 s{sT1}, {P.rotl}")
        e("  s_cbranch_scc0 L_el")
        e(f"  s_lshl_b32 s{sRF}, {pat:#x}, s{sT1}")
        e(f"  s_and_b32 s{sRF}, s{sRF}, {msk:#x}")
        e("L_el:")
        e("  s_mov_b64 exec, -1")

    def patch(what):
        e(f"  s_bfe_u32 s{sT0}, s{sCN + 1}, {(4 << 16) | 8:#x}")
        e(f"  s_bfe_u32 s{sT1}, s{sCN}, {(4 << 16) | 20:#x}")
        e(f"  s_addk_i32 s{sT0}, 160")
        e(f"  s_addk_i32 s{sT1}, 80")
        for p, sh_, ex in ((5, sT0, "exec_hi"), (2, sT1, "exec_lo")):
            if what == "q":
                e(f"  s_mulk_i32 s{sh_}, 384")
                e(f"  v_lshrrev_b32 {vr(h0)}, 1, {vr(vL16)}")
                e(f"  v_add_u32 {vr(h0)}, s{sh_}, {vr(h0)}")
                qmask(1)
                e(f"  s_mov_b32 {ex}, 0")
                e(f"  global_load_dwordx2 {vr(rec + 4 * p, 2)}, {vr(h0)}, s[{sQ}:{sQ + 1}]")
                e(f"  global_load_dwordx2 {vr(rec + 4 * p + 2, 2)}, {vr(h0)}, s[{sQ}:{sQ + 1}] offset:192")
                hv.extend([("q", p)] * 2)
            else:
                e(f"  v_lshl_add_u32 {vr(h0)}, s{sh_}, 12, {vr(wb)}")
                e(f"  s_mov_b32 {ex}, 0")
                for i, sp in enumerate((sKS, sVS)):
                    e(f"  s_mov_b32 m0, {SCB + SA * i + 1024 * p}")
                    e("  s_nop 0")
                    if "s" not in P.xp:
                        e(f"  global_load_lds_dwordx4 {vr(h0)}, s[{sp}:{sp + 1}] {P.sf}")
                        hv.append(("s", p))
            qmask(0)

    def qmask(on):
        if on:
            e("  s_mov_b32 exec_lo, 0xffffff")
            e("  s_mov_b32 exec_hi, 0xffffff")
        else:
            e("  s_mov_b64 exec, -1")

    def rotate(p):
        L, Hh, LC, HS, HC, LS = x, x + 4, x + 8, x + 12, x + 16, x + 20
        qmask(1)
        if p == 0:
            hpf()
        e(f"  s_waitcnt vmcnt({hv[::-1].index(('q', p))})")
        if p == 0:
            hpf()
        for k in range(4):
            e(f"  v_lshlrev_b32 {vr(L + 2 * k)}, 16, {vr(rec + 4 * p + k)}")
            e(f"  v_and_b32 {vr(L + 2 * k + 1)}, s{sMASK}, {vr(rec + 4 * p + k)}")
        for d, q_, t_ in ((LC, L, cs), (HS, Hh, cs + 4), (HC, Hh, cs), (LS, L, cs + 4)):
            for h in (0, 2):
                e(f"  v_pk_mul_f32 {vr(d + h, 2)}, {vr(q_ + h, 2)}, {vr(t_ + h, 2)}")
        for i in range(4):
            e(f"  v_cvt_pk_bf16_f32 {vr(L + i)}, {vr(LC + i)}, {vr(HS + i)}")
            e(f"  v_cvt_pk_bf16_f32 {vr(Hh + i)}, {vr(HC + i)}, {vr(LS + i)}")
        for k in range(8):
            e(f"  v_lshlrev_b32 {vr(LC + k)}, 16, {vr(L + k)}")
            e(f"  v_and_b32 {vr(L + k)}, s{sMASK}, {vr(L + k)}")
        for h in (0, 2):
            e(f"  v_pk_add_f32 {vr(L + h, 2)}, {vr(LC + h, 2)}, {vr(L + h, 2)} neg_lo:[0,1] neg_hi:[0,1]")
            e(f"  v_pk_add_f32 {vr(Hh + h, 2)}, {vr(HS + h, 2)}, {vr(Hh + h, 2)}")
        for i in range(4):
            e(f"  v_cvt_pk_bf16_f32 {vr(LC + i)}, {vr(L + i)}, {vr(Hh + i)}")
            e(f"  v_cvt_pk_bf16_f32 {vr(HS + i)}, {vr(Hh + i)}, -{vr(L + i)}")
        e(f"  v_mov_b32 {vr(h0)}, {2 * p + 2}")
        e(f"  ds_write_b128 {vr(wa)}, {vr(LC, 4)} offset:{QB + 1536 * p}")
        e(f"  ds_write_b128 {vr(wa)}, {vr(HS, 4)} offset:{QB + 1536 * p + 384}")
        e(f"  ds_write_b32 {vr(vZ)}, {vr(h0)} offset:{FL + 16}")
        qmask(0)

    ctl_init()
    if P.ctl:
        hv.append(("c", 0))
    patch("q")
    e(f"  s_lshl_b32 s{sT0}, s{sJ}, 10")
    e(f"  s_add_u32 s{sT0}, s{sT0}, L_hpos-L_pc")
    e(f"  v_add_u32 {vr(h0)}, s{sT0}, {vr(vT16)}")
    e(f"  global_load_dwordx4 {vr(st4, 4)}, {vr(h0)}, s[{sZ}:{sZ + 1}]")
    hv.append(("h", 0))
    if P.ss == 1:
        sc_early()
    if P.ss <= 1:
        patch("s")
    rotate(0)
    hpf()
    if P.ss == 2:
        sc_early()
        patch("s")
    e("  s_waitcnt lgkmcnt(0)")
    e("  s_setprio 0")
    hpf()
    e("  s_barrier")
    hpf()
    if P.ss == 3:
        sc_early()
        patch("s")
    for p in range(1, 8):
        rotate(p)
    e(f"  v_mov_b32 {vr(vSa)}, 0")
    e(f"  v_min_u32 {vr(u)}, 47, {vr(l)}")
    e(f"  v_lshlrev_b32 {vr(vL16)}, 4, {vr(u)}")
    for i in range(4):
        e(f"  v_mov_b32 {vr(sc + i)}, 0")
    e(f"  s_mov_b32 s{sNEED}, 1")
    e("  s_cmp_eq_u32 s2, 0")
    e("  s_cbranch_scc0 L_rc")
    e(f"  v_mov_b32 {vr(h0)}, {W_REC + 15 * 384 + 8}")
    e(f"  global_load_dword {vr(h1)}, {vr(h0)}, s[{sWS}:{sWS + 1}] sc1")
    if P.ctl:
        e(f"  s_mov_b64 exec, {msk:#x}")
        e(f"  global_store_dword {vr(vFA)}, {vr(vZ)}, s[{sWS}:{sWS + 1}] sc1")
    e("  s_mov_b64 exec, 1")
    e("  s_waitcnt vmcnt(0)")
    e(f"  v_and_b32 {vr(qn)}, 0x77777777, {vr(h1)}")
    e(f"  v_and_b32 {vr(h1)}, 0x88888888, {vr(h1)}")
    e(f"  v_add_u32 {vr(qn)}, 0x11111111, {vr(qn)}")
    e(f"  v_xor_b32 {vr(qn)}, {vr(qn)}, {vr(h1)}")
    e(f"  v_mov_b32 {vr(qn + 1)}, 1")
    e(f"  global_store_dwordx2 {vr(vZ)}, {vr(qn, 2)}, s[{sDBG}:{sDBG + 1}] sc1")
    e("  s_mov_b64 exec, -1")
    e("L_rc:")
    hpf()
    e("  s_waitcnt vmcnt(0)")
    hpf()
    if P.tfine:
        e("  s_waitcnt lgkmcnt(0)")
        e(f"  v_mov_b32 {vr(h0)}, 0")
        for k in range(hpn[0]):
            e(f"  v_writelane_b32 {vr(h0)}, s{HPF[k]}, {k}")
        e(f"  s_mul_i32 s{sT0}, s2, {5 * 256}")
        e(f"  s_add_u32 s{sT0}, s{sT0}, {0x100000 + 1024}")
        e(f"  v_lshl_add_u32 {vr(h1)}, v0, 2, s{sT0}")
        e(f"  global_store_dword {vr(h1)}, {vr(h0)}, s[{sWS}:{sWS + 1}]")
    for k in range(4):
        e(f"  v_and_b32 {vr(ro + 2 * k)}, 0xffff, {vr(st4 + k)}")
        e(f"  v_lshrrev_b32 {vr(ro + 2 * k + 1)}, 16, {vr(st4 + k)}")
    for k in range(2):
        e(f"  v_add_u32 {vr(ro + 6 + k)}, {SCB}, {vr(ro + 6 + k)}")
    if P.sd:
        e(f"  v_mov_b32 {vr(vCL)}, 0")
    e("L_hk:")
    for a in range(2):
        for k in range(2):
            e(f"  ds_read_u16_d16_hi {vr(sc + 2 * a + k)}, {vr(ro + 6 + k)} offset:{SA * a}")
    progwait("hsw", P.psl)
    mark("s")
    rank_post("s")
    for k in range(6):
        e(f"  ds_read_b32 {vr(x + 4 + k)}, {vr(ro + k)} offset:{LGB}")
    e(f"  v_mul_f32 {vr(x + 2)}, s{sSCALE}, {vr(sc)}")
    e(f"  v_mul_f32 {vr(x + 3)}, s{sSCALE}, {vr(sc + 1)}")
    e("  s_waitcnt lgkmcnt(0)")
    e(f"  v_pk_add_f32 {vr(x, 2)}, {vr(x + 4, 2)}, {vr(x + 6, 2)}")
    e(f"  v_pk_add_f32 {vr(x, 2)}, {vr(x, 2)}, {vr(x + 8, 2)}")
    e(f"  v_mul_f32 {vr(x)}, {vr(x)}, {vr(x + 2)}")
    e(f"  v_mul_f32 {vr(x + 1)}, {vr(x + 1)}, {vr(x + 3)}")
    e(f"  v_max_f32 {vr(z4)}, {vr(x)}, {vr(x + 1)}")
    allred("v_max_f32", z4, h0)
    e(f"  v_sub_f32 {vr(x)}, {vr(x)}, {vr(z4)}")
    e(f"  v_sub_f32 {vr(x + 1)}, {vr(x + 1)}, {vr(z4)}")
    e(f"  v_exp_f32 {vr(x)}, {vr(x)}")
    e(f"  v_exp_f32 {vr(x + 1)}, {vr(x + 1)}")
    e("  s_nop 0")
    e(f"  v_add_f32 {vr(z4 + 1)}, {vr(x)}, {vr(x + 1)}")
    e(f"  v_mul_f32 {vr(x)}, {vr(x)}, {vr(sc + 2)}")
    e(f"  v_mul_f32 {vr(x + 1)}, {vr(x + 1)}, {vr(sc + 3)}")
    e(f"  v_add_f32 {vr(z4 + 2)}, {vr(x)}, {vr(x + 1)}")
    for k in range(6):
        e(f"  ds_write_b32 {vr(ro + k)}, {vr(x + (k & 1))} offset:{LGB}")
    e(f"  v_mul_f32 {vr(z4 + 2)}, {f32bits(7.5):#x}, {vr(z4 + 2)}")
    allred("v_add_f32", z4 + 1, h0)
    allred("v_add_f32", z4 + 2, h0)
    e(f"  v_mov_b32 {vr(h0)}, s{sNEED}")
    e(f"  ds_write_b128 {vr(vSa)}, {vr(z4, 4)} offset:{ST}")
    e(f"  ds_write_b32 {vr(vZ)}, {vr(h0)} offset:{FL + 20}")
    e(f"  v_add_u32 {vr(vSa)}, 16, {vr(vSa)}")
    for k in range(8):
        e(f"  v_add_u32 {vr(ro + k)}, {1536 if k < 6 else SL}, {vr(ro + k)}")
    rank_take("s")
    elect()
    e("  s_waitcnt lgkmcnt(0)")
    e(f"  s_add_u32 s{sNEED}, s{sNEED}, 1")
    e(f"  s_cmp_le_u32 s{sNEED}, 16")
    e("  s_cbranch_scc1 L_hk")

    e(f"  v_and_b32 {vr(h2)}, 15, {vr(l)}")
    e(f"  v_lshlrev_b32 {vr(h2)}, 1, {vr(h2)}")
    e(f"  global_load_ushort {vr(h3)}, {vr(h2)}, s[{sRT}:{sRT + 1}] offset:32")
    e(f"  s_mov_b32 s{sK}, 0")
    e(f"  v_min_u32 {vr(wa)}, 23, {vr(l)}")
    e(f"  v_lshlrev_b32 {vr(wa)}, 4, {vr(wa)}")
    e(f"  v_lshlrev_b32 {vr(h0)}, 1, {vr(wa)}")
    e(f"  v_add_u32 {vr(h0)}, {PB}, {vr(h0)}")
    e(f"  v_add_u32 {vr(wa)}, {PK}, {vr(wa)}")
    e(f"  v_lshlrev_b32 {vr(sgn)}, 4, {vr(l)}")
    e(f"  s_mul_i32 s{sT0}, s2, 6144")
    e(f"  s_add_u32 s{sT0}, s{sT0}, {W_REC}")
    e(f"  v_add_u32 {vr(sgx)}, s{sT0}, {vr(sgn)}")
    e(f"  v_add_u32 {vr(sgn)}, {PK}, {vr(sgn)}")
    e(f"  v_add_u32 {vr(sg2)}, 4096, {vr(sgx)}")
    e(f"  v_lshrrev_b32 {vr(u)}, 1, {vr(vL16)}")
    e(f"  s_mul_i32 s{sT0}, s{sOH}, 384")
    e(f"  s_add_u32 s{sOUT}, s{sOUT}, s{sT0}")
    e(f"  s_addc_u32 s{sOUT + 1}, s{sOUT + 1}, 0")
    e(f"  s_lshl_b32 s{sT0}, s{sO}, 4")
    e(f"  s_add_u32 s{sT0}, s{sT0}, {W_REC}")
    e(f"  v_add_u32 {vr(h1)}, {W_REC}, {vr(u)}")
    e("  s_waitcnt vmcnt(0)")
    e(f"  v_or_b32 {vr(h2)}, 15, {vr(h3)}")
    e(f"  v_mul_u32_u24 {vr(h2)}, 384, {vr(h2)}")
    e(f"  v_mul_u32_u24 {vr(h3)}, 384, {vr(h3)}")
    e(f"  v_add_u32 {vr(ra + 15)}, s{sT0}, {vr(h2)}")
    e("  s_nop 0")
    for k in range(15):
        e(f"  v_add_u32_dpp {vr(ra + k)}, {vr(h3)}, {vr(h1)} row_newbcast:{k} row_mask:0xf bank_mask:0xf")
    e("L_hp:")
    e(f"  s_min_u32 s{sT0}, s{sO}, 13")
    e(f"  s_cmp_eq_u32 s{sT0}, s{sK}")
    e("  s_cbranch_scc0 L_hc_ok")
    e("L_hc:")
    e(f"  global_load_dwordx2 {vr(pr, 2)}, {vr(vZ)}, s[{sDBG}:{sDBG + 1}] sc1")
    e("  s_waitcnt vmcnt(0)")
    e(f"  v_readfirstlane_b32 s{sTG}, {vr(pr)}")
    e(f"  v_readfirstlane_b32 s{sF}, {vr(pr + 1)}")
    e(f"  s_cmp_eq_u32 s{sF}, 1")
    e("  s_cbranch_scc1 L_hc_ok")
    budget("L_hc_ok")
    e("  s_sleep 64")
    e("  s_branch L_hc")
    e("L_hc_ok:")
    vstep_k(sH, sK)
    e(f"  s_lshl_b32 s{sT0}, s{sH}, 4")
    e(f"  v_mov_b32 {vr(h1)}, s{sT0}")
    e(f"  s_add_u32 s{sK}, s{sK}, 1")
    e(f"  s_add_u32 s{sNEED}, s{sK}, 16")
    progwait("hpw", P.psl)
    mark("p")
    hp(0)
    rank_post("p")
    sum_partials(2)
    e(f"  v_max3_f32 {vr(h3)}, |{vr(x)}|, |{vr(x + 1)}|, |{vr(x + 2)}|")
    e(f"  v_max3_f32 {vr(h3)}, {vr(h3)}, |{vr(x + 3)}|, |{vr(x + 4)}|")
    e(f"  v_max3_f32 {vr(h3)}, {vr(h3)}, |{vr(x + 5)}|, |{vr(x + 6)}|")
    e(f"  v_max_f32_e64 {vr(h3)}, {vr(h3)}, |{vr(x + 7)}|")
    allred("v_max_f32", h3, wb)
    e(f"  v_frexp_exp_i32_f32 {vr(h3)}, {vr(h3)}")
    e(f"  v_sub_u32 {vr(wb)}, 14, {vr(h3)}")
    e(f"  v_subrev_u32 {vr(h3)}, 14, {vr(h3)}")
    for i in range(8):
        e(f"  v_ldexp_f32 {vr(x + i)}, {vr(x + i)}, {vr(wb)}")
    for i in range(4):
        e(f"  v_cvt_pk_f16_f32 {vr(fo + i)}, {vr(x + 2 * i)}, {vr(x + 2 * i + 1)}")
    for i in range(4):
        e(f"  v_lshrrev_b32 {vr(x + i)}, 1, {vr(fo + i)}")
        e(f"  v_and_b32 {vr(x + i)}, 0x10001, {vr(x + i)}")
        e(f"  v_add_u32 {vr(fo + i)}, {vr(fo + i)}, {vr(x + i)}")
    e(f"  ds_write_b32 {vr(h1)}, {vr(h3)} offset:{ST + 12}")
    e(f"  v_add_u32 {vr(h0)}, 3072, {vr(h0)}")
    e(f"  ds_write_b128 {vr(wa)}, {vr(fo, 4)}")
    e(f"  v_add_u32 {vr(wa)}, 384, {vr(wa)}")
    rank_take("p")
    e(f"  s_cmp_lt_u32 s{sK}, 15")
    e("  s_cbranch_scc1 L_hp")
    if P.eprio:
        e(f"  s_setprio {P.eprio}")
    for k in range(6):
        e(f"  ds_read_b128 {vr(blk + 4 * k, 4)}, {vr(sgn)} offset:{1024 * k}")
    e(f"  v_subrev_u32 {vr(h2)}, 40, {vr(l)}")
    e(f"  v_and_b32 {vr(h2)}, 15, {vr(h2)}")
    e(f"  v_lshlrev_b32 {vr(h2)}, 4, {vr(h2)}")
    e(f"  ds_read_b128 {vr(st4, 4)}, {vr(h2)} offset:{ST}")
    e(f"  s_mov_b32 s{sMASK}, 0x10001")
    e(f"  v_lshlrev_b32 {vr(h2)}, 3, {vr(l)}")
    e(f"  v_lshrrev_b32 {vr(h2)}, {vr(h2)}, s{sTG}")
    e(f"  v_lshrrev_b32 {vr(h3)}, 1, {vr(u)}")
    e(f"  v_lshrrev_b32 {vr(h3)}, {vr(h3)}, s{sTG}")
    for i in range(6):
        src, k = (h2, i) if i < 4 else (h3, i - 4)
        e(f"  v_bfe_u32 {vr(x + i)}, {vr(src)}, {2 * k}, 2")
        e(f"  v_lshl_or_b32 {vr(x + i)}, {vr(x + i)}, 15, {vr(x + i)}")
        e(f"  v_and_b32 {vr(x + i)}, s{sMASK}, {vr(x + i)}")
    e(f"  v_cmp_gt_u32 vcc, 40, {vr(l)}")
    e("  s_waitcnt lgkmcnt(0)")
    e(f"  v_mov_b32 {vr(st4 + 2)}, s{sTG}")
    for k in range(24):
        e(f"  v_bfi_b32 {vr(blk + k)}, s{sMASK}, {vr(x + k % 4)}, {vr(blk + k)}")
    for i in range(4):
        e(f"  v_cndmask_b32 {vr(blk + 20 + i)}, {vr(st4 + i)}, {vr(blk + 20 + i)}, vcc")
    e(f"  s_lshl_b32 s{sH}, s{sO}, 4")
    e(f"  v_mov_b32 {vr(h1)}, s{sH}")
    e(f"  v_add_u32 {vr(h0)}, {PB + 15 * 3072}, {vr(vL16)}")
    e(f"  ds_read_b32 {vr(h1)}, {vr(h1)} offset:{ST + 8}")
    e("  s_waitcnt lgkmcnt(0)")
    if P.mg:
        e("; the stores leave late in the last step, so that they reach the memory chips after the stream has ended")
        e(f"  s_mov_b32 s{sNEED}, {31 + (P.mg > 12)}")
        progwait("hmw", P.psl, FL + 32)
    hp(1)
    for k in range(6):
        if k == 5:
            e("  s_mov_b32 exec_hi, 0xffffff")
        e(f"  global_store_dwordx4 {vr(sgx if k < 4 else sg2)}, {vr(blk + 4 * k, 4)}, s[{sWS}:{sWS + 1}] offset:{1024 * (k % 4)} sc1")
    e("  s_mov_b64 exec, -1")
    if P.rw:
        e("L_hw:")
    if P.ml:
        e(f"  s_mov_b32 s{sNEED}, {31 + (P.ml > 12)}")
        progwait("hlw", P.psl, FL + 48)
    else:
        e(f"  s_waitcnt vmcnt({P.aw})")
    hp(2)
    hp(3)
    if not P.rw:
        e("L_hw:")
    hp(4)
    if P.cnt:
        e(f"  s_mov_b32 s{sF}, 1")
        e(f"  s_atomic_add s{sF}, s[{sDBG}:{sDBG + 1}], 16")
    e(f"  global_load_dwordx4 {vr(cs, 4)}, {vr(ra + 15)}, s[{sWS}:{sWS + 1}] sc1")
    for k in range(15):
        e(f"  global_load_dwordx2 {vr(rec + 2 * k, 2)}, {vr(ra + k)}, s[{sWS}:{sWS + 1}] sc1")
    for i in range(4):
        e(f"  v_mov_b32 {vr(fo + i)}, 0")
    e(f"  v_mov_b32 {vr(wb)}, 0")
    budget("L_hy")
    e("  s_waitcnt vmcnt(15)")
    e(f"  v_cmp_ne_u32 s[{sZ}:{sZ + 1}], s{sTG}, {vr(cs + 2)}")
    e(f"  s_cmp_eq_u64 s[{sZ}:{sZ + 1}], 0")
    e("  s_cbranch_scc0 L_hw")
    e("L_hy:")
    e("  s_waitcnt vmcnt(15)")
    hp(5)
    e(f"  v_mov_b32 {vr(h2)}, {vr(cs)}")
    rowred("v_max_f32", h2)
    e(f"  v_sub_f32 {vr(h2)}, {vr(cs)}, {vr(h2)}")
    e(f"  v_exp_f32 {vr(h2)}, {vr(h2)}")
    e("  s_nop 0")
    e(f"  v_ldexp_f32 {vr(h3)}, {vr(h2)}, {vr(cs + 3)}")
    e(f"  v_mul_f32 {vr(wa)}, {vr(h2)}, {vr(cs + 1)}")
    e(f"  v_readlane_b32 s{sMSK}, {vr(h3)}, 0")
    e(f"  v_readlane_b32 s{sMSK + 15}, {vr(h2)}, 15")
    for k in range(15):
        if k < 14:
            e(f"  v_readlane_b32 s{sMSK + k + 1}, {vr(h3)}, {k + 1}")
        if k < 4:
            e(f"  v_add_f32_dpp {vr(wa)}, {vr(wa)}, {vr(wa)} row_ror:{8 >> k} row_mask:0xf bank_mask:0xf")
        if k == 4:
            e(f"  v_rcp_f32 {vr(wa)}, {vr(wa)}")
        e(f"  s_waitcnt vmcnt({14 - k})")
        for i in range(2):
            e(f"  v_xor_b32 {vr(rec + 2 * k + i)}, {vr(rec + 2 * k + i)}, {vr(x + 4 + i)}")
        for i in range(4):
            e(f"  v_fma_mix_f32 {vr(fo + i)}, {vr(rec + 2 * k + i // 2)}, s{sMSK + k}, {vr(fo + i)} op_sel:[{i & 1},0,0] op_sel_hi:[1,0,0]")
        e(f"  v_or3_b32 {vr(wb)}, {vr(rec + 2 * k)}, {vr(rec + 2 * k + 1)}, {vr(wb)}")
    e(f"  v_and_b32 {vr(wb)}, s{sMASK}, {vr(wb)}")
    e(f"  v_cmp_ne_u32 s[{sZ}:{sZ + 1}], 0, {vr(wb)}")
    e(f"  s_cmp_lg_u32 s{sSP}, 0")
    e(f"  s_cselect_b64 s[{sZ}:{sZ + 1}], s[{sZ}:{sZ + 1}], 0")
    e(f"  s_cmp_eq_u64 s[{sZ}:{sZ + 1}], 0")
    e("  s_cbranch_scc0 L_hw")
    e(f"  v_mul_f32 {vr(h2)}, s{sMSK + 15}, {vr(wa)}")
    e(f"  v_mul_f32 {vr(h3)}, {vr(h2)}, {vr(h1)}")
    for i in range(4):
        e(f"  v_fma_f32 {vr(fo + i)}, {vr(fo + i)}, {vr(wa)}, -{vr(h3)}")
    hp(6)
    e("  s_barrier")
    hp(7)
    for k in range(4):
        e(f"  ds_read_b128 {vr(x + 4 * k, 4)}, {vr(h0)} offset:{768 * k}")
    e("  s_waitcnt lgkmcnt(2)")
    for h in (0, 2):
        e(f"  v_pk_add_f32 {vr(x + h, 2)}, {vr(x + h, 2)}, {vr(x + 4 + h, 2)}")
    e("  s_waitcnt lgkmcnt(0)")
    for h in (0, 2):
        e(f"  v_pk_add_f32 {vr(x + 8 + h, 2)}, {vr(x + 8 + h, 2)}, {vr(x + 12 + h, 2)}")
    for h in (0, 2):
        e(f"  v_pk_add_f32 {vr(x + h, 2)}, {vr(x + h, 2)}, {vr(x + 8 + h, 2)}")
    for i in range(4):
        e(f"  v_fmac_f32 {vr(fo + i)}, {vr(h2)}, {vr(x + i)}")
    e(f"  v_cvt_pk_bf16_f32 {vr(fo)}, {vr(fo)}, {vr(fo + 1)}")
    e(f"  v_cvt_pk_bf16_f32 {vr(fo + 1)}, {vr(fo + 2)}, {vr(fo + 3)}")
    e("  s_mov_b32 exec_hi, 0xffff")
    e(f"  global_store_dwordx2 {vr(u)}, {vr(fo, 2)}, s[{sOUT}:{sOUT + 1}] {P.of}")
    if P.sd:
        e(f"  s_mov_b32 s{sNEED}, 32")
        e("  s_mov_b64 exec, -1")
        mark("z")
        e(f"  s_cmp_eq_u32 s{sJ}, 0")
        e("  s_cbranch_scc0 L_sd")
        e(f"  v_lshlrev_b32 {vr(h0)}, 2, {vr(l)}")
        e("  s_mov_b32 exec_lo, 0")
        e("  s_mov_b32 exec_hi, 0x3fff")
        e(f"  global_atomic_add {vr(h0)}, {vr(vCL)}, s[{sDBG}:{sDBG + 1}] offset:-120 sc1")
        e("L_sd:")
    if P.enc:
        m0, m1, base, amp, wg = [int(v) for v in P.enc.split(",")]
        if m1 == 32:
            e("  s_memrealtime s[18:19]")
        if m0 == 0:
            e(f"  s_mov_b32 s16, s{sST}")
        e("  s_waitcnt lgkmcnt(0)")
        e("  s_sub_u32 s16, s18, s16")
        e(f"  s_atomic_add s16, s[{sDBG}:{sDBG + 1}], 32")
        e(f"  s_cmp_eq_u32 s2, {wg}")
        e("  s_cbranch_scc0 L_nohold")
        e("L_hold0:")
        e(f"  s_memrealtime s[{sST + 2}:{sST + 3}]")
        e("  s_waitcnt lgkmcnt(0)")
        e(f"  s_sub_u32 s{sT0}, s{sST + 2}, s{sST}")
        e(f"  s_cmp_lt_u32 s{sT0}, 12500")
        e("  s_cbranch_scc1 L_hold0")
        e("  s_mov_b32 s16, 0")
        e(f"  s_atomic_add s16, s[{sDBG}:{sDBG + 1}], 32 glc")
        e("  s_waitcnt lgkmcnt(0)")
        e(f"  s_sub_u32 s16, s16, {base * 256}")
        e("  s_max_i32 s16, s16, 0")
        e("  s_min_i32 s16, s16, 128000")
        e(f"  s_mul_i32 s16, s16, {amp}")
        e("  s_lshr_b32 s16, s16, 8")
        e("  s_add_u32 s16, s16, 13000")
        e("L_hold:")
        e(f"  s_memrealtime s[{sST + 2}:{sST + 3}]")
        e("  s_waitcnt lgkmcnt(0)")
        e(f"  s_sub_u32 s{sT0}, s{sST + 2}, s{sST}")
        e(f"  s_cmp_lt_u32 s{sT0}, s16")
        e("  s_cbranch_scc1 L_hold")
        e("L_nohold:")
        e("  s_waitcnt lgkmcnt(0)")
    if P.hold:
        e("; diagnostic build only")
        e("L_hold:")
        e(f"  s_memrealtime s[{sST + 2}:{sST + 3}]")
        e("  s_waitcnt lgkmcnt(0)")
        e(f"  s_sub_u32 s{sT0}, s{sST + 2}, s{sST}")
        e(f"  s_cmp_lt_u32 s{sT0}, {P.hold}")
        e("  s_cbranch_scc1 L_hold")
    if P.stamp:
        e(f"  s_memrealtime s[{sST + 2}:{sST + 3}]")
        if P.hprof:
            e("  s_waitcnt lgkmcnt(0)")
            e("  s_lshl_b32 s44, s2, 5")
            e("  s_add_u32 s44, s44, 0x80000")
            e("  v_mov_b32 v1, s44")
            for k in range(8):
                e(f"  s_sub_u32 s45, s{sST + 2}, s{HP[k]}")
                e(f"  v_mov_b32 v{4 + k}, s45")
            e(f"  global_store_dwordx4 v1, v[4:7], s[{sWS}:{sWS + 1}]")
            e(f"  global_store_dwordx4 v1, v[8:11], s[{sWS}:{sWS + 1}] offset:16")
            e("  s_nop 2")
        e("  s_getreg_b32 s6, hwreg(HW_REG_XCC_ID)")
        e("  s_getreg_b32 s7, hwreg(HW_REG_HW_ID)")
        e("  s_waitcnt lgkmcnt(0)")
        e(f"  v_mov_b32 v4, s{sST}")
        e(f"  v_mov_b32 v5, s{sST + 2}")
        e("  v_mov_b32 v6, s6")
        e("  v_mov_b32 v7, s7")
        e("  s_lshl_b32 s8, s2, 4")
        e("  v_mov_b32 v1, s8")
        e(f"  global_store_dwordx4 v1, v[4:7], s[{sWS}:{sWS + 1}]")
    e("L_end:")
    e("  s_endpgm")
    e(".p2align 6")
    e(".type L_order,@object")
    e("L_order:")
    for k in range(0, len(ordtab), 8):
        e("  .long " + ", ".join(f"{v:#x}" for v in ordtab[k:k + 8]))
    e(".type L_hpos,@object")
    e("L_hpos:")
    for b in range(2):
        at = {chunk_of(b, n, s_): lpos(n, s_) for n in range(24) for s_ in range(16)}
        rows = sorted({c // 3 for c in at})
        for l_ in range(64):
            r0, r1 = rows[l_], rows[l_ + 64]
            e("  .long " + ", ".join(f"{a_ | b_ << 16:#x}" for a_, b_ in [(at[3 * r0 + k], at[3 * r1 + k]) for k in range(3)] + [(2 * r0, 2 * r1)]))
    e('.section .rodata,"a"')
    e(".p2align 6")
    e(f".amdhsa_kernel {NAME}_kernel")
    e(f"  .amdhsa_next_free_vgpr {NV}")
    e("  .amdhsa_next_free_sgpr 100")
    e(f"  .amdhsa_accum_offset {(NV + 3) // 4 * 4}")
    e("  .amdhsa_group_segment_fixed_size 0")
    e("  .amdhsa_kernarg_size 112")
    e("  .amdhsa_user_sgpr_count 2")
    e("  .amdhsa_user_sgpr_kernarg_segment_ptr 1")
    e("  .amdhsa_system_sgpr_workgroup_id_x 1")
    e(".end_amdhsa_kernel")
    return "\n".join(o) + "\n", NV


if __name__ == "__main__":
    ap = argparse.ArgumentParser()
    ap.add_argument("-o", default=f"/code/{NAME}.s")
    for name, d in (("sh", 4), ("deep", 5), ("pd", 9), ("pre", 12), ("nf", 6), ("su", 3), ("ss", 3), ("hp0", 0), ("tst", 20),
                    ("ctl", 1), ("hi", 0), ("hiv", 5), ("lo", -25), ("thr", 2), ("tp", 2), ("inv", 1), ("start", 5), ("s0", 0), ("ba", 3),
                    ("r0", 2), ("r1", 30), ("rf", 3), ("rp", 2), ("rt", 26), ("rotl", 7), ("kp", 7), ("kp0", 5), ("kn", 20),
                    ("mg", 5), ("ml", 0), ("aw", 0), ("rw", 0), ("cnt", 0), ("sd", 0),
                    ("eprio", 2), ("psl", 1), ("bound", 4000000), ("hold", 0), ("dly", 0), ("dlb", 2)):
        ap.add_argument("--" + name, type=int, default=d)
    ap.add_argument("--kp_", default="6,6,6,7,8,9,9,10,10,11,11,12,12", help="K loads issued by each prologue point")
    ap.add_argument("--sf", default="nt")
    ap.add_argument("--of", default="")
    ap.add_argument("--wf", default="sc1")
    ap.add_argument("--enc", default="", help="diagnostic only: m0,m1,base,amp,wg")
    ap.add_argument("--qf", default="")
    ap.add_argument("--cf", default="")
    ap.add_argument("--ok", default="REXbLbLbL", help="events of a K group")
    ap.add_argument("--ov", default="REXbLbLbL", help="events of a V group")
    ap.add_argument("--vo", default="201")
    ap.add_argument("--tb", default="", help="first:last:bias, times 2 / -1 for workgroups that finish in / outside the last block")
    ap.add_argument("--rk", default="", help="die gain per step (hex digits, 0 = no ranking)")
    ap.add_argument("--sb", default="", help="step:bias,... added to the lateness")
    ap.add_argument("--bu", default="012", help="extra depth per position in the issued group")
    ap.add_argument("--th", default="-9,5,13")
    ap.add_argument("--sch", default="sch_np.txt")
    ap.add_argument("--xp", default="", help="timing experiments only")
    for name in ("stamp", "trace", "tfine", "hprof"):
        ap.add_argument("--" + name, action="store_true", help="diagnostics only")
    a = ap.parse_args()
    txt, nv = gen(a)
    open(a.o, "w").write(txt)
    print("wrote", a.o, "vgprs", nv)
```

```python
import argparse
import math
import os
import struct
from gen import HEADER, NAME, Alloc, f32bits, vr

HB = 2048 * 768

ABOUT = """
Generated by tools/gen9.py.
Work split: workgroup (cluster c, block m, member b) handles 128 rows of the 256-row block m for 16 heads 16 k + c
  (slots k = 5 and 10 take their head from a table instead of c); the two members alternate over 32 KiB runs.
  Waves 1-4 stream one 4 KiB block per round; a 16-lane row handles one third (64 dims) of a KV row per load.
  K sweep: logit = k_scale * sum_d (qk - 7.5) * (qa * cos + qb * sin), RoPE moved onto the rotated q;
  V sweep: partial = sum_rows p * v_scale * qv.
  Wave 0 (helper) rotates q, takes max / exp / sums over the workgroup's rows of each head, and merges partials.
Constant parameters (the same for every seed) are built in: both zero points (7.5), q_cos / q_sin (table L_qcs) and
  k_cos / k_sin = bf16(cos / sin(fp32(row * inv_freq))), evaluated once per workgroup from the table L_inv into LDS.
Hand-off: every workgroup finishes one of its heads and streams that head last.  Partials and (max, sum) of
  the other 15 go to d_ws with sc1 stores; every 8 bytes carry a piece of a tag that differs from the one found there on
  entry (sent round through d_debug).  The finisher reads until all tags fit and rescales all 16 to the true row maximum.
Flow control (speed only, results do not depend on it): waves publish a group counter and sample the counters of
  units on the same die; late waves keep one more load in flight, early waves one or two fewer.  Helpers rank the dies.
"""

RUN = (1, 2, 0)


def chunk_of(b, n, s):
    g = 256 * RUN[n >> 3] + 128 * b + 16 * (n & 7) + s
    return {128: 512, 255: 639, 512: 128, 639: 255}.get(g, g)


def tidx(b, row):
    return row - 43 * b - 42 * ((row >= 85) + (row >= 171))


def rev(x, bits):
    return int(format(x, f"0{bits}b")[::-1], 2)


def lpos(n, s):
    return 4 * (16 * s + rev(n, 4)) if n < 16 else 1024 + 4 * (8 * s + rev(n - 16, 3))


TN = [(RUN[n >> 3] + (n & 7)) % 3 for n in range(24)]
SPECIAL = {n: i for i, n in enumerate(sorted(8 * RUN.index(r) + i for r in (0, 2) for i in (0, 7)))}
for b_ in range(2):
    ch = sorted(chunk_of(b_, n, s) for n in range(24) for s in range(16))
    assert ch == sorted(3 * r + k for r in {c // 3 for c in ch} for k in range(3))
    assert all(chunk_of(b_, n, s) % 3 == (TN[n] + 2 * b_ + s) % 3 for n in range(24) for s in range(16))
    assert len({tidx(b_, c // 3) for c in ch}) == 128 and max(tidx(b_, c // 3) for c in ch) == 128


def gen(P):
    o = []
    e = o.append
    RING, PD = 24, P.pd
    sh, deep = P.sh, P.deep
    PRE = P.pre
    TP = P.tp
    LAG = 2
    assert deep <= PD - 1 and sh <= deep and PD <= PRE
    SL = 512
    SA = 16 * SL

    FL = 0
    ST = 256
    TB = 512
    QB = TB + 129 * 384
    LGB = QB + 16 * 768 + 1536
    SCB = LGB + 16 * 1536
    PB = SCB + 2 * SA
    PK = PB + 49152
    LDS = PK + 6144
    assert 81920 < LDS <= 163840
    W_REC = 0x400000
    W_RK = 0x780000
    W_PL = 0x7c0000

    sQ, sQK, sKS, sKZ, sQV, sVS, sVZ, sQC = 4, 6, 8, 10, 12, 14, 16, 18
    sQS, sKC, sKSN, sOUT = 20, 22, 24, 26
    sDBG, sWS = 28, 30
    rA, rB = 32, 36
    sW, sJ, sC, sK, sT0, sT1, sF, sNEED = 40, 41, 42, 43, 44, 45, 46, 47
    sMSK = 48
    sOF = 51
    sPB = 60
    sCO = 61
    sZ = 64
    sMASK, sSCALE, sH = 66, 67, 68
    sS = 69
    sX = 70
    sRF = 80
    sRT = 82
    sST = 84
    sN = 90
    sB = 91
    sVO = 92
    sSP = 94
    sI = 95
    sSE, sCU = 81, 79
    sLO = 78
    sO = 3
    sCN = 96
    sOH, sTG = 98, 99

    va = Alloc(1)
    vT16, vF, vZ, vC16 = [va.take(1) for _ in range(4)]
    voff = va.take(7)
    vTA = va.take(7)
    vQA = va.take(3)
    vPA = va.take(3)
    vLG = va.take(2)
    vLB = va.take(2)
    vLV = va.take(2)
    A = va.take(2)
    LG = va.take(2)
    M1, M2, M3 = [va.take(1) for _ in range(3)]
    bc = va.take(2, 2)
    dacc = va.take(2, 2)
    wt = va.take(4, 2)
    vtr, vPW, vPS, vN, vSum, vSu2, vBA = [va.take(1) for _ in range(7)]
    vPL = va.take(4)
    vBI = va.take(2, 2)
    smp = va.take(8, 4)
    qa = va.take(12, 4)
    tab = va.take(24, 4)
    tmp = va.take(12, 4)
    ring = va.take(4 * RING, 4)
    NV = va.n
    acc = qa

    here = os.path.dirname(os.path.abspath(__file__))
    sch = [[int(x) for x in ln.split()] for ln in open(os.path.join(here, P.sch))]
    sch = [x[:3] + [k for b_ in P.vo for k in x[3 + 5 * int(b_):8 + 5 * int(b_)]] + x[18:] for x in sch]
    inv, qcs = [[int(x, 16) for x in ln.split()] for ln in open(os.path.join(here, "consts.txt"))]
    cj = lambda g: (g >> 4, (g & 7) * 2 + ((g >> 3) & 1))
    ent = {g: sch[16 * cj(g)[0] + cj(g)[1]] for g in range(256)}
    cl = lambda g, k: ent[g][0] if k == 5 else ent[g][1] if k == 10 else g >> 4
    assert sorted(16 * ent[g][2] + cl(g, ent[g][2]) for g in range(256)) == list(range(256))
    ordtab = []
    for g in range(256):
        o_, od = ent[g][2], ent[g][3:]
        assert sorted(od) == list(range(16)) and od[15] == o_
        con = [x for x in range(256) if x != g and cl(x, o_) == cl(g, o_)] + [g]
        assert sorted(cj(x)[1] for x in con) == list(range(16))
        nib = sum(k << (4 * t) for t, k in enumerate(range(16) if "i" in P.xp else od))
        cn = sum((g >> 4 if "c" in P.xp else cl(g, k)) << (4 * k) for k in range(16))
        u16 = [16 * x + ent[x][3:].index(o_) for x in con]
        assert all(v % 16 < 15 for v in u16[:15])
        ordtab += [nib & 0xffffffff, nib >> 32, cn & 0xffffffff, cn >> 32, 16 * o_ + cl(g, o_), 0, o_, 2 if ((16 * o_ + cl(g, o_)) * HB + (g & 7) * 196608 + 98304) >> 28 else 0xffffffff]
        ordtab += [u16[2 * i] | u16[2 * i + 1] << 16 for i in range(8)]

    def ld(n):
        rr = rA if n < 24 else rB
        n %= 24
        so = f"s{sOF + (n & 7)}" if n & 7 else "0"
        vo = voff + (3 + SPECIAL[n] if n in SPECIAL and "x" not in P.xp else n >> 3)
        e(f"  buffer_load_dwordx4 {vr(ring + 4 * n, 4)}, {vr(vo)}, s[{rr}:{rr + 3}], {so} offen nt")

    ORD = {"K": P.ok, "V": P.ov}
    DIST = {"K": PRE, "V": PD}
    bu = [int(x) for x in P.bu]
    th = [int(x) for x in P.th.split(",")]
    assert PD % 3 == 0 and PRE % 3 == 0 and deep == sh + 1

    def memops(ph, a):
        r = []
        for i, c in enumerate(ORD[ph]):
            if c == "X" and P.ctl:
                r += [(i, "B")] * (a == P.ba) + [(i, "S"), (i, "Q")]
            if c == "L":
                r.append((i, "L"))
        return r

    def back(ph, a, i):
        r = [c for j, c in memops(ph, a) if j < i][::-1]
        for k in range(1, 8):
            r += [c for _, c in memops(ph, (a - k) % 8)][::-1]
        return r

    def cnt(ph, a, i, depth):
        depth += bu[ORD[ph][:i].count("L")]
        r = back(ph, a, i)
        return [k + 1 for k, c in enumerate(r) if c == "L"][depth - 2] if depth > 1 else 0

    def swait(ph, a):
        assert ORD[ph].index("E") < ORD[ph].index("X")
        r = back(ph, a, ORD[ph].index("E"))
        return [k for k, c in enumerate(r) if c == "Q"][LAG - 1]

    plain = {}

    def verify():
        ops = [("L", i) for i in range(PRE)]
        done = ORD["K"][:ORD["K"].index("L")].count("b")
        for g in range(256):
            ph, a = "KV"[g >= 128], g % 8
            if 3 * g + PD >= 768 or 128 <= g < 128 + (PRE - PD) // 3:
                for n in range(3 * g, 3 * g + 4 - (g == 255)):
                    plain[n] = len(ops) - 1 - ops.index(("L", n))
                done = max(done, len(ops) - plain[min(3 * g + 3, 767)])
                continue
            nb = nl = 3 * g
            for i, c in enumerate(ORD[ph]):
                if c == "E" and P.ctl:
                    done = max(done, len(ops) - swait(ph, a))
                if c == "X" and P.ctl:
                    ops += [("X", 0)] * (1 + (a == P.ba))
                if c == "b":
                    assert ("L", nb) in ops[:done], nb
                    nb += 1
                if c == "L":
                    done = max(done, len(ops) - cnt(ph, a, i, deep if P.ctl else sh))
                    ops.append(("L", nl + DIST[ph]))
                    nl += 1
    verify()
    lab = [0]
    rare = []

    def flush():
        o.extend(rare)
        rare.clear()

    def issue(ph, a, i):
        j = ORD[ph][:i].count("L")
        lab[0] += 1
        if P.ctl and j == TP:
            e(f"  s_cmp_lt_i32 s{sS}, {P.lo}")
            e(f"  s_cbranch_scc1 L_t{lab[0]}")
            rare.extend([f"L_t{lab[0]}:", f"  s_waitcnt vmcnt({cnt(ph, a, i, P.thr + 1)})", f"  s_branch L_p{lab[0]}"])
        if P.ctl:
            t = (P.hi if ph == "K" else P.hiv) + th[j]
            assert t >= P.lo
            e(f"  s_cmp_gt_i32 s{sS}, {t}")
            if t < 0 and P.inv:
                e(f"  s_cbranch_scc0 L_q{lab[0]}")
                rare.extend([f"L_q{lab[0]}:", f"  s_waitcnt vmcnt({cnt(ph, a, i, sh)})", f"  s_branch L_p{lab[0]}"])
                e(f"  s_waitcnt vmcnt({cnt(ph, a, i, deep)})")
                e(f"L_p{lab[0]}:")
            else:
                e(f"  s_cbranch_scc1 L_p{lab[0]}")
                e(f"  s_waitcnt vmcnt({cnt(ph, a, i, sh)})")
                e(f"L_p{lab[0]}:")
                e(f"  s_waitcnt vmcnt({cnt(ph, a, i, deep)})")
        else:
            e(f"  s_waitcnt vmcnt({cnt(ph, a, i, sh)})")
        ld(3 * a + j + DIST[ph])
        if ph == "V" and 3 * a + j + 1 == P.mg:
            e(f"  ds_write_b32 {vr(vPW)}, {vr(M1)} offset:{FL + 32}")
        if ph == "V" and 3 * a + j + 1 == P.ml:
            e(f"  ds_write_b32 {vr(vPW)}, {vr(M1)} offset:{FL + 48}")

    def evaluate(ph, a):
        if not P.ctl:
            return
        sm = smp + 4 * (a % LAG)
        e(f"  s_waitcnt vmcnt({swait(ph, a)})")
        if a == (P.ba + LAG) % 8:
            e(f"  v_add_u32 {vr(vBI)}, {vr(vBI)}, {vr(vBI + 1)}")
        e(f"  s_add_u32 s{sT0}, s{sLO}, 0x03030303")
        e(f"  v_msad_u8 {vr(vSum)}, s{sLO}, {vr(sm)}, 0")
        e(f"  v_msad_u8 {vr(vSu2)}, s{sT0}, {vr(sm)}, 0")
        if a == (P.ba + LAG) % 8:
            e(f"  v_readfirstlane_b32 s{sB}, {vr(vBI)}")
        for k in range(1, 3):
            e(f"  v_msad_u8 {vr(vSum)}, s{sLO}, {vr(sm + k)}, {vr(vSum)}")
            e(f"  v_msad_u8 {vr(vSu2)}, s{sT0}, {vr(sm + k)}, {vr(vSu2)}")
        e(f"  v_sub_u32 {vr(vSum)}, {vr(vSum)}, {vr(vSu2)}")
        e(f"  s_add_u32 s{sLO}, s{sLO}, 0x01010101")
        e(f"  v_readlane_b32 s{sMASK}, {vr(vSum)}, 0")
        e(f"  v_readlane_b32 s{sSCALE}, {vr(vSum)}, 1")

    def decide(ph, a):
        if not P.ctl:
            return
        if a == (P.ba + LAG) % 8:
            for it in filter(None, P.sb.split(",")):
                st_, b_ = [int(v) for v in it.split(":")]
                if (st_ >= 16) == (ph == "V"):
                    e(f"  s_cmp_eq_u32 s{sK}, {st_ % 16}")
                    e(f"  s_cselect_b32 s{sT0}, {b_}, 0")
                    e(f"  s_add_u32 s{sB}, s{sB}, s{sT0}")
            for it in filter(None, P.tb.split(",")):
                s0_, s1_, b_ = [int(v) for v in it.split(":")]
                if (s0_ >= 16) == (ph == "V"):
                    e(f"  s_bitcmp1_b32 {sum(1 << (k % 16) for k in range(s0_, s1_ + 1)):#x}, s{sK}")
                    e(f"  s_cselect_b32 s{sT0}, {b_}, 0")
                    e(f"  s_mul_i32 s{sT0}, s{sT0}, s{sPB}")
                    e(f"  s_add_u32 s{sB}, s{sB}, s{sT0}")
        cur, old = (sI, sCO) if a & 1 else (sCO, sI)
        e(f"  s_add_u32 s{cur}, s{sMASK}, s{sSCALE}")
        e(f"  s_add_u32 s{sS}, s{cur}, s{old}")
        e(f"  s_ashr_i32 s{sS}, s{sS}, 1")
        e(f"  s_add_u32 s{sS}, s{sS}, s{sB}")
        if ph == "K" and a < P.start:
            e(f"  s_cmp_eq_u32 s{sK}, 0")
            e(f"  s_cselect_b32 s{sS}, {P.s0}, s{sS}")

    def exchange(a):
        if not P.ctl:
            return
        e("  s_mov_b64 exec, 1")
        if a == P.ba:
            e(f"  global_load_dwordx2 {vr(vBI, 2)}, {vr(vBA)}, s[{sWS}:{sWS + 1}] sc1")
        e(f"  global_store_byte {vr(vPS)}, {vr(vN)}, s[{sWS}:{sWS + 1}]")
        e("  s_mov_b64 exec, 3")
        e(f"  global_load_dwordx3 {vr(smp + 4 * (a % LAG), 3)}, {vr(vPL + a % 4)}, s[{sWS}:{sWS + 1}] sc1")
        e(f"  v_add_u32 {vr(vN)}, 1, {vr(vN)}")
        e("  s_mov_b64 exec, -1")

    def srd_head(rr, sp, sh_):
        e(f"  s_mul_i32 s{sT0}, s{sh_}, {HB}")
        e(f"  s_add_u32 s{rr}, s{sp}, s{sT0}")
        e(f"  s_addc_u32 s{rr + 1}, s{sp + 1}, 0")

    def vstep_k(dst, src):
        e(f"  s_lshl_b32 s{dst}, s{src}, 2")
        e(f"  s_lshr_b64 s[{sZ}:{sZ + 1}], s[{sVO}:{sVO + 1}], s{dst}")
        e(f"  s_and_b32 s{dst}, s{sZ}, 15")

    def head_of(dst, slot):
        e(f"  s_lshl_b32 s{sT0}, s{slot}, 2")
        e(f"  s_lshr_b64 s[{sZ}:{sZ + 1}], s[{sCN}:{sCN + 1}], s{sT0}")
        e(f"  s_and_b32 s{sZ}, s{sZ}, 15")
        e(f"  s_lshl4_add_u32 s{dst}, s{slot}, s{sZ}")

    def budget(ok):
        e(f"  s_cmp_eq_u32 s{sSP}, 0")
        e(f"  s_cbranch_scc1 {ok}")
        e(f"  s_sub_u32 s{sSP}, s{sSP}, 1")

    def flagwait(name, off):
        e(f"L_{name}:")
        e("  s_waitcnt lgkmcnt(0)")
        e(f"  v_readfirstlane_b32 s{sF}, {vr(vF)}")
        e(f"  s_cmp_ge_u32 s{sF}, s{sNEED}")
        e(f"  s_cbranch_scc0 L_{name}_no")
        e(f"L_{name}_ok:")
        rare.extend([f"L_{name}_no:", f"  s_cmp_eq_u32 s{sSP}, 0", f"  s_cbranch_scc1 L_{name}_ok", f"  s_sub_u32 s{sSP}, s{sSP}, 1",
                     f"  ds_read_b32 {vr(vF)}, {vr(vZ)} offset:{off}", f"  s_branch L_{name}"])

    def tr():
        if P.trace:
            e(f"  {'s_memtime' if 'm' in P.xp else 's_memrealtime'} s[88:89]")
            e("  s_waitcnt lgkmcnt(0)")
            e(f"  v_writelane_b32 {vr(vtr)}, s88, m0")
            e("  s_add_u32 m0, m0, 1")
            e("  s_min_u32 m0, m0, 63")

    def die_base(dst):
        e(f"  s_getreg_b32 s{sSE}, hwreg(HW_REG_HW_ID, 8, 7)")
        e(f"  s_getreg_b32 s{dst}, hwreg(HW_REG_XCC_ID, 0, 3)")
        e(f"  s_and_b32 s{sCU}, s{sSE}, 15")
        e(f"  s_lshr_b32 s{sSE}, s{sSE}, 5")
        e(f"  s_mul_i32 s{dst}, s{dst}, 4352")
        e(f"  s_add_u32 s{dst}, s{dst}, {W_PL}")

    ha = Alloc(16)
    l, u, h0, h1, h2, h3 = [ha.take(1) for _ in range(6)]
    qo, wa, wb, sgn, sgx, sg2 = [ha.take(1) for _ in range(6)]
    ro = ha.take(8)
    vL16, vCNT, vDB, vOne, vFA, vFI, vFR, vFX, vFB, vEL, vCL, vSa = [ha.take(1) for _ in range(12)]
    z4 = ha.take(4, 4)
    cs = ha.take(8, 4)
    sc = ha.take(4, 4)
    qn = ha.take(4, 4)
    x = ha.take(32, 4)
    pr = ha.take(4, 4)
    fo = ha.take(4, 4)
    rec = ha.take(32, 4)
    blk = ha.take(24, 4)
    st4 = ha.take(4, 4)
    ra = ha.take(16)
    assert ha.n <= NV and vZ < 16

    invX, invY, tK, tA, tN, tO = tmp, tmp + 4, tmp + 8, tab, tab + 4, tab + 8
    PC0 = 20 + 8 * P.stamp + 16 * (P.dly > 0)
    D_INV, D_QCS, D_END = 256, 768, 1152
    NF = P.nf
    assert RUN[0] == 1 and NF <= 8
    e(HEADER.rstrip("\n"))
    e(f"; @launch grid=(256,1,1) block=(320,1,1) lds={LDS}")
    for ln in ABOUT.strip("\n").split("\n"):
        e("; " + ln)
    e('.amdgcn_target "amdgcn-amd-amdhsa--gfx950"')
    e(".text")
    e(f".globl {NAME}_kernel")
    e(".p2align 8")
    e(f".type {NAME}_kernel,@function")
    e(f"{NAME}_kernel:")
    e("  s_cmpk_ge_u32 s2, 0x100")
    e("  s_cbranch_scc1 L_end")
    if P.dly:
        e("; diagnostic build only: half of the dies start late")
        e(f"  s_getreg_b32 s4, hwreg(HW_REG_XCC_ID, {P.dlb}, 1)")
        e("  s_cmp_eq_u32 s4, 0")
        e("  s_cbranch_scc1 L_dly")
        e(f"  s_sleep {P.dly}")
        e("L_dly:")
    if P.stamp:
        e(f"  s_memrealtime s[{sST}:{sST + 1}]")
    e("  s_load_dwordx16 s[4:19], s[0:1], 0")
    e(f"  s_getpc_b64 s[{sZ}:{sZ + 1}]")
    e("L_pc:")
    e("  v_cmp_gt_u32 vcc, 64, v0")
    e(f"  v_lshlrev_b32 {vr(vT16)}, 4, v0")
    e(f"  s_lshr_b32 s{sC}, s2, 4")
    e(f"  s_and_b32 s{sH}, s2, 7")
    e(f"  s_lshl3_add_u32 s{sH}, s{sC}, s{sH}")
    e(f"  s_movk_i32 s{sNEED}, 768")
    e("  s_cbranch_vccz L_s0")
    e(f"  v_lshl_add_u32 {vr(h0)}, s{sC}, 6, v0")
    e(f"  v_mul_u32_u24 {vr(h0)}, {P.tst}, {vr(h0)}")
    e(f"  global_load_dword {vr(h3)}, {vr(h0)}, s[{sZ}:{sZ + 1}] offset:{D_END - PC0} {P.cf}")
    e(f"  v_and_b32 {vr(vL16)}, 0x1f0, {vr(vT16)}")
    e(f"  global_load_dwordx4 {vr(pr, 4)}, {vr(vL16)}, s[{sZ}:{sZ + 1}] offset:{D_QCS - PC0}")
    e("  s_branch L_helper")
    e("L_s0:")
    e(f"  v_and_b32 {vr(vC16)}, 0xf0, {vr(vT16)}")
    e(f"  global_load_dwordx4 {vr(invX, 4)}, {vr(vC16)}, s[{sZ}:{sZ + 1}] offset:{D_INV - PC0}")
    e(f"  global_load_dwordx4 {vr(invY, 4)}, {vr(vC16)}, s[{sZ}:{sZ + 1}] offset:{D_INV + 256 - PC0}")
    e(f"  s_mul_i32 s{sT0}, s{sH}, 196608")
    e(f"  s_and_b32 s{sT1}, s2, 8")
    e(f"  s_lshl_b32 s{sT1}, s{sT1}, 12")
    e(f"  s_add_u32 s{sT0}, s{sT0}, s{sT1}")
    e(f"  s_add_u32 s{sT0}, s{sT0}, {65536 * RUN[0] - 1024 + 4096}")
    e(f"  v_add_u32 {vr(tA)}, s{sT0}, {vr(vT16)}")
    for k in range(1, (NF + 1) // 2):
        e(f"  v_add_u32 {vr(tA + k)}, {8192 * k}, {vr(tA)}")
    e("  s_waitcnt lgkmcnt(0)")
    for n in range(NF):
        e(f"  global_load_dwordx4 {vr(ring + 4 * n, 4)}, {vr(tA + n // 2)}, s[{sQK}:{sQK + 1}] offset:{4096 * (n % 2) - 4096} nt")
    e("  s_branch L_s1")
    e("L_b0:")
    e(f".if (L_b0 - {NAME}_kernel > {D_INV}) || (L_pc - {NAME}_kernel != {PC0})")
    e('.error "entry block layout"')
    e(".endif")
    e(".p2align 8")
    e(".type L_inv,@object")
    e("L_inv:")
    tb = inv[:64] + inv[64:] + inv[64:]
    for k in range(0, 128, 8):
        e("  .long " + ", ".join(f"{v:#x}" for v in tb[k:k + 8]))
    e(".type L_qcs,@object")
    e("L_qcs:")
    for k in range(0, 96, 8):
        e("  .long " + ", ".join(f"{v:#x}" for v in qcs[k:k + 8]))

    def common():
        e(f"  s_load_dwordx8 s[24:31], s[0:1], 80")
        e(f"  s_lshl_b32 s{sT0}, s2, 6")
        e(f"  s_add_u32 s{sT0}, s{sT0}, L_order-L_pc")
        e(f"  s_add_u32 s{sRT}, s{sZ}, s{sT0}")
        e(f"  s_addc_u32 s{sRT + 1}, s{sZ + 1}, 0")
        e(f"  s_load_dwordx2 s[{sVO}:{sVO + 1}], s[{sRT}:{sRT + 1}], 0")
        e(f"  s_load_dwordx2 s[{sCN}:{sCN + 1}], s[{sRT}:{sRT + 1}], 8")
        if P.tb:
            e(f"  s_load_dword s{sPB}, s[{sRT}:{sRT + 1}], 28")
        e(f"  v_mov_b32 {vr(vZ)}, 0")
        e(f"  s_mov_b32 s{sSP}, {P.bound}")
        e(f"  s_bfe_u32 s{sJ}, s2, 0x10003")

    PFR = [8, 10, 14, 16, 18, 20, 22, 72, 74, 76, 4, 86]
    pfn = [0]

    def pf():
        if P.tfine:
            e(f"  {'s_memtime' if 'm' in P.xp else 's_memrealtime'} s[{PFR[pfn[0]]}:{PFR[pfn[0]] + 1}]")
            pfn[0] += 1

    e("L_s1:")
    w_, s_, vAD, vC8, t0, t1 = wt, wt + 1, wt + 2, wt + 3, dacc, dacc + 1
    vRF, pos = vT16, tK + 3
    if P.trace:
        e(f"  v_mov_b32 {vr(vtr)}, 0")
        e("  s_mov_b32 m0, 0")
    pf()
    e("  v_subrev_u32 v0, 64, v0")
    e("  s_setprio 1")
    common()
    e(f"  v_lshrrev_b32 {vr(w_)}, 6, v0")
    e(f"  v_lshrrev_b32 {vr(s_)}, 4, v0")
    e(f"  v_and_b32 {vr(vC8)}, 0x70, {vr(vC16)}")
    e(f"  v_readfirstlane_b32 s{sW}, {vr(w_)}")
    e(f"  v_add_u32 {vr(vAD)}, {vr(vC8)}, {vr(s_)}")
    e(f"  s_mul_i32 s{sT0}, s{sJ}, 44")
    e(f"  s_sub_u32 s{sT0}, 86, s{sT0}")
    e(f"  v_cmp_eq_u32 vcc, s{sT0}, {vr(vAD)}")
    e(f"  v_mov_b32 {vr(t0)}, 0x80")
    e(f"  s_and_b32 s{sH}, s2, 7")
    e(f"  v_cndmask_b32 {vr(vAD)}, {vr(vAD)}, {vr(t0)}, vcc")
    e(f"  v_mul_u32_u24 {vr(t0)}, 381, {vr(vAD)}")
    e(f"  s_mul_i32 s{sT0}, s{sJ}, 43")
    e(f"  v_add_u32 {vr(t0)}, 2, {vr(t0)}")
    e(f"  s_lshl_b32 s{sT1}, s{sH}, 8")
    e(f"  v_lshrrev_b32 {vr(t0)}, 14, {vr(t0)}")
    assert all((381 * i + 2) >> 14 == (i >= 43) + (i >= 86) for i in range(129))
    e(f"  s_add_u32 s{sT0}, s{sT0}, s{sT1}")
    e(f"  v_mad_u32_u24 {vr(t0)}, {vr(t0)}, 42, {vr(vAD)}")
    e(f"  v_add_u32 {vr(t0)}, s{sT0}, {vr(t0)}")
    e(f"  v_cvt_f32_u32 {vr(vRF)}, {vr(t0)}")
    e(f"  v_mul_u32_u24 {vr(vAD)}, 384, {vr(vAD)}")
    e(f"  s_mov_b32 s{rA + 2}, {HB}")
    e(f"  s_mov_b32 s{rA + 3}, 0x20000")
    srd_head(rA, sQK, sC)
    e(f"  s_mul_i32 s{sT0}, s{sH}, 6")
    e(f"  s_add_u32 s{sT0}, s{sT0}, s{sJ}")
    e(f"  s_lshl_b32 s{sT0}, s{sT0}, 15")
    e(f"  v_lshl_add_u32 {vr(voff + RUN.index(0))}, v0, 4, s{sT0}")
    for k in (1, 2):
        e(f"  v_add_u32 {vr(voff + RUN.index(k))}, {65536 * k:#x}, {vr(voff + RUN.index(0))}")
    for i in range(1, 8):
        e(f"  s_movk_i32 s{sOF + i}, {4096 * i}")
    nk = [NF]
    assert PRE <= RING and max(int(v) for v in P.kp_.split(",")[:P.su + 1]) <= min(SPECIAL)

    def k_loads(hi):
        while nk[0] < min(hi, PRE):
            ld(nk[0])
            nk[0] += 1

    def toff_(n):
        run = RUN[n >> 3]
        return 384 * (16 * (((n & 7) + run) // 3) + 38 * run)

    def setup():
        e("; per chunk class k: q operand, table and partial addresses")
        e(f"  s_lshl1_add_u32 s{sF}, s{sJ}, s{sW}")
        e(f"  s_lshl_b32 s{sF}, s{sF}, 1")
        e(f"  s_lshr_b32 s{sF}, 0x4924, s{sF}")
        e(f"  v_bfe_u32 {vr(t1)}, v0, 4, 2")
        e(f"  v_lshl_add_u32 {vr(t1)}, {vr(t1)}, 2, {vr(vC16)}")
        e(f"  v_mad_u32_u24 {vr(vF)}, {vr(w_)}, s{sNEED}, {vr(t1)}")
        e(f"  v_add_u32 {vr(vF)}, {PB - 3072}, {vr(vF)}")
        e(f"  s_mul_i32 s{sT1}, s{sJ}, {43 * 384}")
        e(f"  s_sub_u32 s{sT1}, {TB}, s{sT1}")
        e(f"  v_lshl_add_u32 {vr(vSum)}, s{sJ}, 7, {vr(s_)}")
        for k in range(3):
            e(f"  s_bfe_u32 s{sT0}, s{sF}, {(2 << 16) | 2 * k:#x}")
            e(f"  v_lshl_add_u32 {vr(vPA + k)}, s{sT0}, 8, {vr(vF)}")
            if k:
                e(f"  v_add_u32 {vr(vSum)}, 16, {vr(vSum)}")
            e(f"  v_mul_u32_u24 {vr(t0)}, 171, {vr(vSum)}")
            e(f"  v_lshrrev_b32 {vr(t0)}, 9, {vr(t0)}")
            e(f"  v_mad_i32_i24 {vr(t1)}, {vr(t0)}, -3, {vr(vSum)}")
            e(f"  v_lshl_add_u32 {vr(t1)}, {vr(t1)}, 8, {vr(vC16)}")
            e(f"  v_add_u32 {vr(vQA + k)}, {QB}, {vr(t1)}")
            e(f"  v_subrev_u32 {vr(vSu2)}, 384, {vr(t1)}")
            e(f"  v_min_u32 {vr(t1)}, {vr(t1)}, {vr(vSu2)}")
            e(f"  v_mul_u32_u24 {vr(t0)}, 384, {vr(t0)}")
            e(f"  v_add3_u32 {vr(vTA + k)}, {vr(t0)}, {vr(t1)}, s{sT1}")
        e(f"  v_lshl_add_u32 {vr(vSum)}, s{sJ}, 4, {vr(s_)}")
        for n, i in SPECIAL.items():
            run, sx = RUN[n >> 3], 15 * (n & 7 == 7)
            b = int(run == 0)
            g0, g1 = 256 * run + 128 * b + 16 * (n & 7) + sx, chunk_of(b, n, sx)
            dt = 384 * (tidx(b, g1 // 3) - (g0 // 3 - 43 * b - 42 * run))
            e(f"  v_cmp_eq_u32 vcc, {16 * b + sx}, {vr(vSum)}")
            e(f"  v_add_u32 {vr(t0)}, {256 * (g1 - g0) & 0xffffffff:#x}, {vr(voff + (n >> 3))}")
            e(f"  v_add_u32 {vr(t1)}, {toff_(n)}, {vr(vTA + TN[n])}")
            e(f"  v_add_u32 {vr(vSu2)}, {dt & 0xffffffff:#x}, {vr(t1)}")
            e(f"  v_cndmask_b32 {vr(voff + 3 + i)}, {vr(voff + (n >> 3))}, {vr(t0)}, vcc")
            e(f"  v_cndmask_b32 {vr(vTA + 3 + i)}, {vr(t1)}, {vr(vSu2)}, vcc")
        e(f"  v_lshlrev_b32 {vr(vLB)}, 2, v0")
        e(f"  v_add_u32 {vr(vLB)}, {LGB}, {vr(vLB)}")
        e(f"  v_lshrrev_b32 {vr(t1)}, 1, v0")
        e(f"  v_lshlrev_b32 {vr(t1)}, 2, {vr(t1)}")
        e(f"  v_add_u32 {vr(vLB + 1)}, {LGB + 1024}, {vr(t1)}")
        e(f"  v_subrev_u32 {vr(vLG)}, 1536, {vr(vLB)}")
        e(f"  v_subrev_u32 {vr(vLG + 1)}, 1536, {vr(vLB + 1)}")
        e(f"  v_lshlrev_b32 {vr(vPW)}, 2, {vr(w_)}")
        e(f"  s_mov_b32 s{sMSK}, 0xcccccccc")
        e(f"  s_mov_b32 s{sMSK + 1}, s{sMSK}")
        e(f"  s_mov_b32 s{sMSK + 2}, 0xaaaaaaaa")
        e(f"  s_mov_b32 s{sMSK + 3}, s{sMSK + 2}")
        e(f"  s_mov_b32 s{rB + 2}, {HB}")
        e(f"  s_mov_b32 s{rB + 3}, 0x20000")
        e(f"  s_mov_b32 s{sK}, 0")
        if P.ctl:
            e("; progress slots: this wave writes one byte of line (half, w) and samples the lines of the other half")
            die_base(sF)
            e(f"  s_add_u32 s{sT0}, s{sF}, 2048")
            e(f"  v_mov_b32 {vr(vBA)}, s{sT0}")
            e(f"  s_and_b32 s{sT1}, s{sSE}, 2")
            e(f"  s_lshl_b32 s{sT1}, s{sT1}, 9")
            e(f"  s_lshl_b32 s{sT0}, s{sW}, 8")
            e(f"  s_add_u32 s{sT0}, s{sT0}, s{sT1}")
            e(f"  s_add_u32 s{sT0}, s{sT0}, s{sF}")
            e(f"  s_add_u32 s{sT0}, s{sT0}, s{sCU}")
            e(f"  s_and_b32 s{sSE}, s{sSE}, 1")
            e(f"  s_lshl_b32 s{sSE}, s{sSE}, 4")
            e(f"  s_add_u32 s{sT0}, s{sT0}, s{sSE}")
            e(f"  v_mov_b32 {vr(vPS)}, s{sT0}")
            e(f"  s_xor_b32 s{sT1}, s{sT1}, 1024")
            e(f"  s_add_u32 s{sF}, s{sF}, s{sT1}")
            e(f"  v_and_b32 {vr(vN)}, 1, v0")
            e(f"  v_lshl_add_u32 {vr(vN)}, {vr(vN)}, 4, s{sF}")
            for k in range(4):
                e(f"  v_add_u32 {vr(vSum)}, {k}, {vr(w_)}")
                e(f"  v_and_b32 {vr(vSum)}, 3, {vr(vSum)}")
                e(f"  v_lshl_add_u32 {vr(vPL + k)}, {vr(vSum)}, 8, {vr(vN)}")
            e(f"  s_mov_b32 s{sLO}, {(-(LAG + 2) * 0x01010101) & 0xffffffff:#x}")
            for k in range(4 * LAG):
                e(f"  v_mov_b32 {vr(smp + k)}, 0")
            for k in range(2):
                e(f"  v_mov_b32 {vr(vBI + k)}, 0")
            e(f"  v_mov_b32 {vr(vN)}, 0")
            e(f"  s_mov_b32 s{sB}, 0")
            e(f"  s_mov_b32 s{sS}, {P.s0}")
            e(f"  s_mov_b32 s{sI}, 0")
            e(f"  s_mov_b32 s{sCO}, 0")

    def sincos(dst, iv):
        for h in (0, 2):
            e(f"  v_pk_mul_f32 {vr(tA + h, 2)}, {vr(iv + h, 2)}, {vr(tK + 2, 2)} op_sel:[0,1] op_sel_hi:[1,1]")
        if iv == invY:
            for h in (0, 2):
                e(f"  v_pk_mul_f32 {vr(tN + h, 2)}, {vr(tA + h, 2)}, {vr(tK, 2)} op_sel_hi:[1,0]")
        else:
            for h in (0, 2):
                e(f"  v_pk_fma_f32 {vr(tN + h, 2)}, {vr(tA + h, 2)}, {vr(tK, 2)}, {vr(tK, 2)} op_sel:[0,0,1] op_sel_hi:[1,0,1]")
            for h in (0, 2):
                e(f"  v_pk_add_f32 {vr(tN + h, 2)}, {vr(tN + h, 2)}, {vr(tK, 2)} op_sel:[0,1] op_sel_hi:[1,1] neg_lo:[0,1] neg_hi:[0,1]")
            for h in (0, 2):
                e(f"  v_pk_fma_f32 {vr(tN + h, 2)}, {vr(tA + h, 2)}, {vr(tK, 2)}, {vr(tN + h, 2)} op_sel_hi:[1,0,1] neg_lo:[0,0,1] neg_hi:[0,0,1]")
            for h in (0, 2):
                e(f"  v_pk_fma_f32 {vr(tN + h, 2)}, {vr(tA + h, 2)}, {vr(tK + 2, 2)}, {vr(tN + h, 2)} op_sel_hi:[1,0,1]")
        for i in range(4):
            e(f"  v_cos_f32 {vr(tA + i)}, {vr(tN + i)}")
        for i in range(4):
            e(f"  v_sin_f32 {vr(tN + i)}, {vr(tN + i)}")
        for i in range(4):
            e(f"  v_cvt_pk_bf16_f32 {vr(dst + i)}, {vr(tA + i)}, {vr(tN + i)}")

    kp = [int(v) for v in P.kp_.split(",")]

    def chunk(i):
        a = 2 * (i // 3)
        d = tO + 4 * (i & 1)
        bc_ = lambda x, m: f"row_newbcast:{x} row_mask:0xf bank_mask:{m:#x}"
        if i % 3 == 1:
            e(f"  v_mov_b32_dpp {vr(pos)}, {vr(vRF)} {bc_(a + 1, 12)}")
            e(f"  v_add_u32_dpp {vr(vF)}, {vr(vAD)}, {vr(vC8)} {bc_(a, 3)}")
            e(f"  v_add_u32_dpp {vr(vF)}, {vr(vAD)}, {vr(vC8)} {bc_(a + 1, 12)}")
            sincos(d, invY)
            e(f"  ds_write_b128 {vr(vF)}, {vr(d, 4)} offset:{TB + 256}")
        else:
            a += i % 3 // 2
            e(f"  v_mov_b32_dpp {vr(pos)}, {vr(vRF)} {bc_(a, 15)}")
            e(f"  v_add_u32_dpp {vr(vF)}, {vr(vAD)}, {vr(vC16)} {bc_(a, 15)}")
            sincos(d, invX)
            e(f"  ds_write_b128 {vr(vF)}, {vr(d, 4)} offset:{TB}")

    def tab_read(a):
        for n in range(3 * a, 3 * a + 3):
            d = tab + 12 * (a & 1) + 4 * (n % 3)
            if n in SPECIAL:
                e(f"  ds_read_b128 {vr(d, 4)}, {vr(vTA + 3 + SPECIAL[n])}")
            else:
                e(f"  ds_read_b128 {vr(d, 4)}, {vr(vTA + TN[n])} offset:{toff_(n)}")

    c_hi = f32bits(1 / (2 * math.pi))
    c_lo = f32bits(1 / (2 * math.pi) - struct.unpack("<f", struct.pack("<I", c_hi))[0])
    e(f"  v_mov_b32 {vr(tK)}, {c_hi:#x}")
    e(f"  v_mov_b32 {vr(tK + 1)}, {f32bits(1.5 * 2 ** 23):#x}")
    e(f"  v_mov_b32 {vr(tK + 2)}, {c_lo:#x}")
    k_loads(kp[0])
    pf()
    e(f"  s_waitcnt vmcnt({nk[0]})")
    pf()
    for i in range(12):
        if i == P.su:
            setup()
            pf()
        if i < P.nch:
            chunk(i)
        k_loads(kp[i + 1])
        if i % 3 == 2:
            pf()
    k_loads(PRE)
    e(f"  v_mov_b32 {vr(bc)}, {f32bits(-7.5):#x}")
    e("  s_waitcnt lgkmcnt(0)")
    e("  s_barrier")
    pf()
    for k in range(3):
        e(f"  ds_read_b128 {vr(qa + 4 * k, 4)}, {vr(vQA + k)}")
    tab_read(0)
    e(f"  s_waitcnt vmcnt({PRE - ORD['K'][:ORD['K'].index('L')].count('b')})")
    pf()
    if P.tfine:
        e("  s_waitcnt lgkmcnt(0)")
        for k in range(pfn[0]):
            e(f"  v_writelane_b32 {vr(vtr)}, s{PFR[k]}, {k}")
        e(f"  s_mov_b32 m0, {pfn[0]}")

    def vfirst():
        e(f"  s_and_b32 s{sH}, s{sVO}, 15")
        e(f"  s_add_u32 s{sNEED}, s{sH}, 1")
        if "f" in P.xp:
            e(f"  s_mov_b32 s{sNEED}, 1")
        e(f"  ds_read_b32 {vr(vF)}, {vr(vZ)} offset:{FL + 20}")
        flagwait("a0", FL + 20)
        e(f"  s_mulk_i32 s{sH}, 1536")
        for k in range(2):
            e(f"  v_add_u32 {vr(vLV + k)}, s{sH}, {vr(vLB + k)}")
        e(f"  ds_read_b32 {vr(A)}, {vr(vLV)}")

    assert all(x[3] < 14 for x in sch) or "f" in P.xp

    def knext():
        e("; next SRD: K head k + 1, or the V heads of steps 0 / 1 once K runs out")
        e(f"  s_add_u32 s{sH}, s{sK}, 1")
        e(f"  s_sub_u32 s{sT1}, s{sH}, 16")
        vstep_k(sF, sT1)
        e(f"  s_cmp_lt_u32 s{sH}, 16")
        e(f"  s_cselect_b32 s{sH}, s{sH}, s{sF}")
        e(f"  s_cselect_b32 s{sX}, s{sQK}, s{sQV}")
        e(f"  s_cselect_b32 s{sX + 1}, s{sQK + 1}, s{sQV + 1}")
        head_of(sH, sH)
        srd_head(rB, sX, sH)

    def kred(n):
        dpp = lambda d, x, how, m: e(f"  v_add_f32_dpp {vr(d)}, {vr(x)}, {vr(x)} {how} row_mask:0xf bank_mask:{m:#x}")
        dpp(M1, dacc, "row_ror:8", 12 if n & 1 else 3)
        if n % 2 == 1:
            e("  s_nop 1")
            dpp(M2, M1, "row_half_mirror", 10 if n & 2 else 5)
        if n % 4 == 3:
            e("  s_nop 1")
            dpp(M2 if n & 4 else M3, M2, "quad_perm:[2,3,0,1]", 15)
        if n % 8 == 7:
            e(f"  v_cndmask_b32_e64 {vr(M3)}, {vr(M3)}, {vr(M2)}, s[{sMSK}:{sMSK + 1}]")
            e("  s_nop 1")
            dpp((LG, M3, LG + 1)[n >> 3], M3, "quad_perm:[1,0,3,2]", 15)
        if n == 15:
            e(f"  v_cndmask_b32_e64 {vr(LG)}, {vr(LG)}, {vr(M3)}, s[{sMSK + 2}:{sMSK + 3}]")

    e(".p2align 6")
    e("L_k:")

    def kbody(n):
        k_, q_ = ring + 4 * n, qa + 4 * TN[n]
        for i in range(4):
            e(f"  v_dot2_f32_bf16 {vr(wt + i)}, {vr(tab + 12 * (n // 3 & 1) + 4 * (n % 3) + i)}, {vr(q_ + i)}, 0")
        for i in range(4):
            e(f"  v_cvt_f32_i32 {vr(k_ + i)}, {vr(k_ + i)}")
        if n >= 21:
            e(f"  ds_read_b128 {vr(q_, 4)}, {vr(vQA + TN[n])}")
        for h in range(2):
            e(f"  v_pk_add_f32 {vr(k_ + 2 * h, 2)}, {vr(k_ + 2 * h, 2)}, {vr(bc, 2)} op_sel_hi:[1,0]")
        e(f"  v_pk_mul_f32 {vr(dacc, 2)}, {vr(k_, 2)}, {vr(wt, 2)}")
        e(f"  v_pk_fma_f32 {vr(dacc, 2)}, {vr(k_ + 2, 2)}, {vr(wt + 2, 2)}, {vr(dacc, 2)}")
        e(f"  v_add_f32 {vr(dacc)}, {vr(dacc)}, {vr(dacc + 1)}")

    def kout():
        e(f"  v_mov_b32 {vr(vF)}, s{sK}")
        for k in range(2):
            e(f"  ds_write_b32 {vr(vLG + k)}, {vr(LG + k)}")
        e(f"  ds_write_b32 {vr(vPW)}, {vr(vF)} offset:{FL}")

    def group(ph, a, body, after, res):
        nb, pend = 3 * a, None
        od = ORD[ph]
        for i, c in enumerate(od):
            if pend is not None and c != "L":
                if od[i - 1] == "b":
                    e("  s_nop 1")
                after(pend)
                pend = None
            if c == "E":
                evaluate(ph, a)
                if od[i + 1] != "X":
                    decide(ph, a)
            if c == "X":
                exchange(a)
                if od[i - 1] == "E":
                    decide(ph, a)
            if c == "R" and a == 0:
                res()
            if c == "b":
                body(nb)
                pend = nb if after else None
                nb += 1
            if c == "L":
                issue(ph, a, i)
        if pend is not None:
            if od[-1] == "b":
                e("  s_nop 1")
            after(pend)

    for a in range(8):
        if a == 7:
            flagwait("qn", FL + 16)
        else:
            e("  s_waitcnt lgkmcnt(0)")
        tab_read((a + 1) % 8)
        if a == 6:
            e(f"  ds_read_b32 {vr(vF)}, {vr(vZ)} offset:{FL + 16}")
        group("K", a, kbody, kred, kout)
        if a == 1:
            knext()
        if a == 3:
            e(f"  s_add_u32 s{sT0}, s{sK}, 2")
            e(f"  s_min_u32 s{sNEED}, s{sT0}, 16")
            for k in range(3):
                e(f"  v_add_u32 {vr(vQA + k)}, 768, {vr(vQA + k)}")
            for k in range(2):
                e(f"  v_add_u32 {vr(vLG + k)}, 1536, {vr(vLG + k)}")
            e(f"  s_cmp_eq_u32 s{sK}, 15")
            e("  s_cbranch_scc1 L_kv")
            e("L_kw:")
        if a in (3, 7) or P.tfine:
            tr()
    assert sorted(TN[21:]) == [0, 1, 2] and TN[:3] == TN[3:6] and sorted(TN[:3]) == [0, 1, 2] and PRE <= 18
    e(f"  s_add_u32 s{sK}, s{sK}, 1")
    e(f"  s_mov_b64 s[{rA}:{rA + 1}], s[{rB}:{rB + 1}]")
    e(f"  s_cmp_lt_u32 s{sK}, 16")
    e("  s_cbranch_scc1 L_k")


    def vbody(n):
        v_ = ring + 4 * n
        e(f"  v_mov_b32_dpp {vr(bc)}, {vr(A + n // 16)} row_newbcast:{rev(n % 16, 4)} row_mask:0xf bank_mask:0xf")
        for i in range(4):
            e(f"  v_cvt_f32_i32 {vr(v_ + i)}, {vr(v_ + i)}")
        for h in range(2):
            d = 4 * TN[n] + 2 * h
            if n < 3:
                e(f"  v_pk_mul_f32 {vr(tmp + d, 2)}, {vr(v_ + 2 * h, 2)}, {vr(bc, 2)} op_sel_hi:[1,0]")
            else:
                e(f"  v_pk_fma_f32 {vr(acc + d, 2)}, {vr(v_ + 2 * h, 2)}, {vr(bc, 2)}, {vr((tmp if n < 6 else acc) + d, 2)} op_sel_hi:[1,0,1]")

    def vout(last=False):
        for j in range(3):
            e(f"  v_permlane32_swap_b32 {vr(acc + 4 * j)}, {vr(acc + 4 * j + 2)}")
            e(f"  v_permlane32_swap_b32 {vr(acc + 4 * j + 1)}, {vr(acc + 4 * j + 3)}")
        for j in range(3):
            e(f"  v_add_f32 {vr(acc + 4 * j)}, {vr(acc + 4 * j)}, {vr(acc + 4 * ((j + 1) % 3) + 2)}")
            e(f"  v_add_f32 {vr(acc + 4 * j + 1)}, {vr(acc + 4 * j + 1)}, {vr(acc + 4 * ((j + 1) % 3) + 3)}")
        for j in range(3):
            e(f"  v_permlane16_swap_b32 {vr(acc + 4 * j)}, {vr(acc + 4 * j + 1)}")
        for j in range(3):
            e(f"  v_add_f32 {vr(acc + 4 * j)}, {vr(acc + 4 * j)}, {vr(acc + 4 * ((j + 2) % 3) + 1)}")
        for j in range(3):
            e(f"  ds_write_b32 {vr(vPA + j)}, {vr(acc + 4 * j)}")
        if not last:
            e(f"  ds_write_b32 {vr(vPW)}, {vr(M1)} offset:{FL}")

    def vnext():
        e(f"  s_add_u32 s{sT1}, s{sK}, 1")
        e(f"  s_min_u32 s{sT1}, s{sT1}, 15")
        vstep_k(sH, sT1)
        e(f"  s_add_u32 s{sNEED}, s{sH}, 1")
        e(f"  s_mul_i32 s{sF}, s{sH}, 1536")
        head_of(sH, sH)
        srd_head(rB, sQV, sH)
        for k in range(2):
            e(f"  v_add_u32 {vr(vLV + k)}, s{sF}, {vr(vLB + k)}")

    NS, NT = (PRE - PD) // 3, 8 - PD // 3
    assert NS == 1 and NT <= 5 and max(P.mg, P.ml) <= 3 * NT
    e("L_vpre:")
    kout()
    e(f"  s_mov_b32 s{sK}, 0")
    e(f"  v_mov_b32 {vr(M1)}, 16")
    for n in range(3):
        e(f"  s_waitcnt vmcnt({plain[384 + n]})")
        vbody(n)
    e(f"  s_waitcnt vmcnt({plain[387]}) lgkmcnt(0)")
    e("  s_branch L_v1")
    flush()
    e("L_kv:")
    vfirst()
    e("  s_branch L_kw")
    flush()
    e(".p2align 6")
    e("L_v:")
    for a in range(8):
        if a == 1:
            e("L_v1:")
            e(f"  ds_read_b32 {vr(A + 1)}, {vr(vLV + 1)}")
        if a == NT:
            e(f"  s_cmp_eq_u32 s{sK}, 15")
            e("  s_cbranch_scc1 L_vt")
        if a in (5, 7):
            e("  s_waitcnt lgkmcnt(0)")
        if a == 5:
            e(f"  ds_read_b32 {vr(vF)}, {vr(vZ)} offset:{FL + 20}")
        if a == 6:
            flagwait("an", FL + 20)
            e(f"  ds_read_b32 {vr(A)}, {vr(vLV)}")
        group("V", a, vbody, None, vout)
        if a == 1:
            vnext()
        if a == 3:
            e(f"  v_add_u32 {vr(M1)}, 1, {vr(M1)}")
            for j in range(3):
                e(f"  v_add_u32 {vr(vPA + j)}, 3072, {vr(vPA + j)}")
        if a in (3, 7):
            tr()
    e(f"  s_add_u32 s{sK}, s{sK}, 1")
    e(f"  s_mov_b64 s[{rA}:{rA + 1}], s[{rB}:{rB + 1}]")
    e("  s_branch L_v")
    flush()
    e("L_vt:")
    e("  s_waitcnt lgkmcnt(0)")
    for n in range(3 * NT, 24):
        e(f"  s_waitcnt vmcnt({plain[744 + n]})")
        vbody(n)
    tr()
    e("  s_nop 1")
    vout(True)
    e("  s_waitcnt lgkmcnt(0)")
    e("  s_barrier")
    if P.trace:
        e(f"  s_mul_i32 s8, s2, {5 * 256}")
        e("  s_add_u32 s8, s8, 0x100000")
        e(f"  v_lshl_add_u32 {vr(t0)}, v0, 2, s8")
        e(f"  global_store_dword {vr(t0)}, {vr(vtr)}, s[{sWS}:{sWS + 1}]")
    e("  s_endpgm")

    HP = [20, 22, 24, 8, 34, 36, 38, 72]
    ms = [m for m in range(P.r0, P.r1 + 1) if m < P.rf or m > P.rt or (m - P.r0) % P.rp == 0]
    gain = [(P.kp0 if m <= P.kn else P.kp) if m in ms else 0 for m in range(32)]
    if P.rk:
        gain = [int(c, 16) for c in P.rk]
        assert len(gain) == 32 and not any(gain[:P.r0]) and not gain[31]
    msk = sum(1 << m for m in range(32) if gain[m])

    def hp(k):
        if P.hprof:
            e(f"  s_memrealtime s[{HP[k]}:{HP[k] + 1}]")

    def progwait(name, slp, off=FL):
        e(f"L_{name}:")
        e(f"  ds_read_b128 {vr(pr, 4)}, {vr(vZ)} offset:{off}")
        e("  s_waitcnt lgkmcnt(0)")
        e(f"  v_min_u32 {vr(pr)}, {vr(pr)}, {vr(pr + 1)}")
        e(f"  v_min3_u32 {vr(pr)}, {vr(pr)}, {vr(pr + 2)}, {vr(pr + 3)}")
        e("  s_nop 0")
        e(f"  v_readfirstlane_b32 s{sF}, {vr(pr)}")
        e(f"  s_cmp_ge_u32 s{sF}, s{sNEED}")
        e(f"  s_cbranch_scc1 L_{name}_ok")
        budget(f"L_{name}_ok")
        if slp:
            e(f"  s_sleep {slp}")
        e(f"  s_branch L_{name}")
        e(f"L_{name}_ok:")

    def rowred(op, v):
        for n in (8, 4, 2, 1):
            e("  s_nop 1")
            e(f"  {op}_dpp {vr(v)}, {vr(v)}, {vr(v)} row_ror:{n} row_mask:0xf bank_mask:0xf")

    def allred(op, v, t):
        rowred(op, v)
        for sw in ("v_permlane16_swap_b32", "v_permlane32_swap_b32"):
            e(f"  v_mov_b32 {vr(t)}, {vr(v)}")
            e("  s_nop 1")
            e(f"  {sw} {vr(v)}, {vr(t)}")
            e(f"  {op} {vr(v)}, {vr(v)}, {vr(t)}")

    def sum_partials(nq):
        w = 4 * nq
        for k in range(4):
            for q in range(nq):
                e(f"  ds_read_b128 {vr(x + w * k + 4 * q, 4)}, {vr(h0)} offset:{768 * k + 16 * q}")
        e(f"  ds_read_b128 {vr(z4, 4)}, {vr(h1)} offset:{ST}")
        e("  s_waitcnt lgkmcnt(0)")
        for h in range(0, w, 2):
            e(f"  v_pk_add_f32 {vr(x + h, 2)}, {vr(x + h, 2)}, {vr(x + w + h, 2)}")
            e(f"  v_pk_add_f32 {vr(x + 2 * w + h, 2)}, {vr(x + 2 * w + h, 2)}, {vr(x + 3 * w + h, 2)}")
        for h in range(0, w, 2):
            e(f"  v_pk_add_f32 {vr(x + h, 2)}, {vr(x + h, 2)}, {vr(x + 2 * w + h, 2)}")
        for h in range(0, w, 2):
            e(f"  v_pk_add_f32 {vr(x + h, 2)}, {vr(x + h, 2)}, {vr(z4 + 2, 2)} op_sel_hi:[1,0] neg_lo:[0,1] neg_hi:[0,1]")

    def mark(tag):
        if P.sd:
            e("  s_memrealtime s[16:17]")
            e("  s_waitcnt lgkmcnt(0)")
            e("  s_sub_u32 s19, s16, s18")
            e("  s_mov_b32 s18, s16")
            e(f"  s_add_u32 s16, s{sNEED}, {64 - P.sd}")
            e("  s_and_b32 s17, s16, 1")
            e("  s_lshl_b32 s17, s17, 4")
            e("  s_min_u32 s19, s19, 510")
            e("  s_lshl_b32 s19, s19, s17")
            e("  s_lshr_b32 m0, s16, 1")
            e(f"  v_readlane_b32 s17, {vr(vCL)}, m0")
            e("  s_add_u32 s17, s17, s19")
            e(f"  v_writelane_b32 {vr(vCL)}, s17, m0")
        if not P.enc:
            return
        for k, m in enumerate(P.enc.split(",")[:2]):
            e(f"  s_cmp_eq_u32 s{sNEED}, {m}")
            e(f"  s_cbranch_scc0 L_mk{tag}{k}")
            e(f"  s_memrealtime s[{16 + 2 * k}:{17 + 2 * k}]")
            e(f"L_mk{tag}{k}:")

    def rank_post(tag):
        if not P.ctl:
            return
        e(f"  s_bitcmp1_b32 s{sRF}, s{sNEED}")
        e(f"  s_cbranch_scc0 L_fa{tag}")
        e(f"  s_mul_i32 s{sT0}, s{sNEED}, 384")
        e(f"  s_add_u32 s{sT0}, s{sT0}, {W_RK}")
        e(f"  s_mov_b32 s{sB}, 1")
        e(f"  s_atomic_add s{sB}, s[{sWS}:{sWS + 1}], s{sT0} glc")
        e(f"L_fa{tag}:")

    def rank_take(tag):
        if not P.ctl:
            return
        e(f"  s_bitcmp1_b32 s{sRF}, s{sNEED}")
        e(f"  s_cbranch_scc0 L_fb{tag}")
        e("  s_waitcnt lgkmcnt(0)")
        e(f"  s_min_u32 s{sF}, s{sB}, 15")
        e(f"  s_lshl_b32 s{sF}, s{sF}, 1")
        e(f"  s_sub_u32 s{sF}, s{sF}, 15")
        gs = sorted(set(gain) - {0})
        e(f"  s_mov_b32 s{sT0}, {gs[0]}")
        for g_ in gs[1:]:
            e(f"  s_bitcmp1_b32 {sum(1 << m for m in range(32) if gain[m] == g_):#x}, s{sNEED}")
            e(f"  s_cselect_b32 s{sT0}, {g_}, s{sT0}")
        e(f"  s_mul_i32 s{sF}, s{sF}, s{sT0}")
        e(f"  s_add_u32 s{sF}, s{sF}, 8")
        e(f"  s_ashr_i32 s{sF}, s{sF}, 4")
        e(f"  v_mov_b32 {vr(vFX)}, s{sF}")
        e("  s_mov_b64 exec, 1")
        e(f"  global_store_dword {vr(vFB)}, {vr(vFX)}, s[{sWS}:{sWS + 1}]")
        e("  s_mov_b64 exec, -1")
        e(f"L_fb{tag}:")

    HPF = [10, 16, 18, 20, 22, 72, 74, 76, 60, 62]
    hpn = [0]

    def hpf():
        if P.tfine:
            e(f"  s_memrealtime s[{HPF[hpn[0]]}:{HPF[hpn[0]] + 1}]")
            hpn[0] += 1

    e("L_helper:")
    e(f"  s_setprio {P.hp0}")
    e(f"  v_and_b32 {vr(h1)}, 32, v0")
    e(f"  v_lshrrev_b32 {vr(h1)}, 1, {vr(h1)}")
    e(f"  v_add_u32 {vr(sg2)}, s{sC}, {vr(h1)}")
    e(f"  v_mad_u32_u24 {vr(ra)}, {vr(sg2)}, s{sNEED}, {vr(vL16)}")
    e(f"  v_lshrrev_b32 {vr(ra)}, 1, {vr(ra)}")
    hv = []

    def half(p, full):
        if p in (2, 3):
            e(f"  s_mov_b32 exec_hi, {0 if p == 2 else full}")
        if p in (5, 6):
            e(f"  s_mov_b32 exec_lo, {0 if p == 5 else full}")

    def sc_early():
        e(f"  s_and_b32 s{sT1}, s2, 7")
        e(f"  v_lshl_add_u32 {vr(wb)}, s{sT1}, 9, {vr(vL16)}")
        e(f"  v_lshl_add_u32 {vr(ra)}, {vr(sg2)}, 12, {vr(wb)}")
        for p in range(1, 8):
            e(f"  v_add_u32 {vr(ra + p)}, {0x20000 * p:#x}, {vr(ra)}")
        for p in range(8):
            half(p, -1)
            for i, sp in enumerate((sKS, sVS)):
                e(f"  s_mov_b32 m0, {SCB + SA * i + 1024 * p}")
                e("  s_nop 0")
                if "s" not in P.xp:
                    e(f"  global_load_lds_dwordx4 {vr(ra + p)}, s[{sp}:{sp + 1}] {P.sf}")
                    hv.append(("s", p))

    for p in range(1, 8):
        e(f"  v_add_u32 {vr(ra + p)}, {12288 * p}, {vr(ra)}")
    e("  s_mov_b32 exec_lo, 0xffffff")
    e("  s_mov_b32 exec_hi, 0xffffff")
    e("  s_waitcnt lgkmcnt(0)")
    hpf()
    for p in range(8):
        half(p, "0xffffff")
        e(f"  global_load_dwordx2 {vr(rec + 4 * p, 2)}, {vr(ra + (0 if 'q' in P.xp else p))}, s[{sQ}:{sQ + 1}] {P.qf}")
        e(f"  global_load_dwordx2 {vr(rec + 4 * p + 2, 2)}, {vr(ra + (0 if 'q' in P.xp else p))}, s[{sQ}:{sQ + 1}] offset:192 {P.qf}")
        hv.extend([("q", p)] * 2)
    e("  s_mov_b64 exec, -1")
    hpf()
    if P.ss == 0:
        sc_early()
    common()
    e(f"  s_load_dword s{sO}, s[{sRT}:{sRT + 1}], 24")
    e(f"  s_load_dword s{sOH}, s[{sRT}:{sRT + 1}], 16")
    e(f"  v_mov_b32 {vr(l)}, v0")
    for i in range(4):
        e(f"  v_mov_b32 {vr(z4 + i)}, 0")
    e(f"  ds_write_b128 {vr(vZ)}, {vr(z4, 4)} offset:{FL}")
    e(f"  ds_write_b128 {vr(vZ)}, {vr(z4, 4)} offset:{FL + 16}")
    e(f"  ds_write_b128 {vr(vZ)}, {vr(z4, 4)} offset:{FL + 32}")
    e(f"  ds_write_b128 {vr(vZ)}, {vr(z4, 4)} offset:{FL + 48}")
    e(f"  s_mov_b32 s{sMASK}, 0xffff0000")
    e(f"  s_mov_b32 s{sSCALE}, {f32bits(math.log2(math.e) / math.sqrt(192.0)):#x}")
    e(f"  v_mad_u32_u24 {vr(wa)}, {vr(h1)}, 48, {vr(vL16)}")
    e(f"  v_mov_b32 {vr(vOne)}, 1")
    e(f"  s_waitcnt vmcnt({len(hv)})")
    for k in range(4):
        e(f"  v_lshlrev_b32 {vr(cs + k)}, 16, {vr(pr + k)}")
        e(f"  v_and_b32 {vr(cs + 4 + k)}, s{sMASK}, {vr(pr + k)}")
    e("  s_waitcnt lgkmcnt(0)")
    hpf()
    if P.ctl:
        die_base(sF)
        e(f"  v_lshrrev_b32 {vr(h0)}, {P.cw}, {vr(l)}")
        e(f"  v_lshl_add_u32 {vr(vFX)}, {vr(h0)}, 8, s{sF}")
        e(f"  v_and_b32 {vr(h0)}, {(1 << P.cw) - 1}, {vr(l)}")
        e(f"  v_lshl_add_u32 {vr(vFX)}, {vr(h0)}, 4, {vr(vFX)}")
        e(f"  s_and_b32 s{sT1}, s{sSE}, 2")
        e(f"  s_lshl_b32 s{sT0}, s{sT1}, 9")
        e(f"  s_add_u32 s{sT0}, s{sT0}, s{sF}")
        e(f"  v_add_u32 {vr(vEL)}, s{sT0}, {vr(l)}")
        e(f"  s_lshl_b32 s{sT1}, s{sT1}, 1")
        e(f"  s_add_u32 s{sF}, s{sF}, s{sT1}")
        e(f"  s_add_u32 s{sF}, s{sF}, 2048")
        e(f"  v_mov_b32 {vr(vFB)}, s{sF}")
        e(f"  v_mul_u32_u24 {vr(vFA)}, 384, {vr(l)}")
        e(f"  v_add_u32 {vr(vFA)}, {W_RK}, {vr(vFA)}")
        e(f"  s_mov_b32 s{sRF}, 0")

    def ctl_init():
        if not P.ctl:
            return
        if P.cw == 1:
            e("  s_mov_b64 exec, 0x3ffff")
        if P.cw == 2:
            e("  s_mov_b32 exec_hi, 15")
        if P.cl == 1:
            e(f"  global_load_dword {vr(vCNT)}, {vr(vFX)}, s[{sWS}:{sWS + 1}] sc1")
            hv.append(("c", 0))
        e(f"  global_store_dwordx4 {vr(vFX)}, {vr(z4, 4)}, s[{sWS}:{sWS + 1}]")
        if P.cw == 3:
            e("  s_mov_b64 exec, 0xff")
            e(f"  global_store_dwordx4 {vr(vFX)}, {vr(z4, 4)}, s[{sWS}:{sWS + 1}] offset:2048")
            hv.append(("c", 0))
        if P.cl == 2:
            e(f"  global_load_dword {vr(vCNT)}, {vr(vFX)}, s[{sWS}:{sWS + 1}] sc1")
            hv.append(("c", 0))
        e("  s_mov_b64 exec, -1")

    def elect():
        if not P.ctl:
            return
        e(f"  s_cmp_eq_u32 s{sNEED}, {P.r0 - 1}")
        e("  s_cbranch_scc0 L_el")
        e(f"  s_bitcmp0_b32 s{sSE}, 0")
        e("  s_cbranch_scc0 L_el")
        e("  s_mov_b64 exec, 0xffff")
        e(f"  global_load_ubyte {vr(vFX)}, {vr(vEL)}, s[{sWS}:{sWS + 1}] sc1")
        e("  s_waitcnt vmcnt(0)")
        e(f"  v_cmp_ne_u32 s[{sZ}:{sZ + 1}], 0, {vr(vFX)}")
        e(f"  s_lshr_b32 s{sT0}, s{sZ}, s{sCU}")
        e(f"  s_bcnt1_i32_b32 s{sT0}, s{sT0}")
        pat = sum(1 << m for m in range(0, 32, P.rotl))
        e(f"  s_sub_u32 s{sT1}, s{sT0}, 1")
        e(f"  s_cmp_lt_u32 s{sT1}, {P.rotl}")
        e("  s_cbranch_scc0 L_el")
        e(f"  s_lshl_b32 s{sRF}, {pat:#x}, s{sT1}")
        e(f"  s_and_b32 s{sRF}, s{sRF}, {msk:#x}")
        e("L_el:")
        e("  s_mov_b64 exec, -1")

    def patch(what):
        e(f"  s_bfe_u32 s{sT0}, s{sCN + 1}, {(4 << 16) | 8:#x}")
        e(f"  s_bfe_u32 s{sT1}, s{sCN}, {(4 << 16) | 20:#x}")
        e(f"  s_addk_i32 s{sT0}, 160")
        e(f"  s_addk_i32 s{sT1}, 80")
        for p, sh_, ex in ((5, sT0, "exec_hi"), (2, sT1, "exec_lo")):
            if what == "q":
                e(f"  s_mulk_i32 s{sh_}, 384")
                e(f"  v_lshrrev_b32 {vr(h0)}, 1, {vr(vL16)}")
                e(f"  v_add_u32 {vr(h0)}, s{sh_}, {vr(h0)}")
                qmask(1)
                e(f"  s_mov_b32 {ex}, 0")
                e(f"  global_load_dwordx2 {vr(rec + 4 * p, 2)}, {vr(h0)}, s[{sQ}:{sQ + 1}]")
                e(f"  global_load_dwordx2 {vr(rec + 4 * p + 2, 2)}, {vr(h0)}, s[{sQ}:{sQ + 1}] offset:192")
                hv.extend([("q", p)] * 2)
            else:
                e(f"  v_lshl_add_u32 {vr(h0)}, s{sh_}, 12, {vr(wb)}")
                e(f"  s_mov_b32 {ex}, 0")
                for i, sp in enumerate((sKS, sVS)):
                    e(f"  s_mov_b32 m0, {SCB + SA * i + 1024 * p}")
                    e("  s_nop 0")
                    if "s" not in P.xp:
                        e(f"  global_load_lds_dwordx4 {vr(h0)}, s[{sp}:{sp + 1}] {P.sf}")
                        hv.append(("s", p))
            qmask(0)

    def qmask(on):
        if on:
            e("  s_mov_b32 exec_lo, 0xffffff")
            e("  s_mov_b32 exec_hi, 0xffffff")
        else:
            e("  s_mov_b64 exec, -1")

    def rotate(p):
        L, Hh, LC, HS, HC, LS = x, x + 4, x + 8, x + 12, x + 16, x + 20
        qmask(1)
        if p == 0:
            hpf()
        if not ("n" in P.xp and p == 0):
            e(f"  s_waitcnt vmcnt({hv[::-1].index(('q', p))})")
        if p == 0:
            hpf()
        for k in range(4):
            e(f"  v_lshlrev_b32 {vr(L + 2 * k)}, 16, {vr(rec + 4 * p + k)}")
            e(f"  v_and_b32 {vr(L + 2 * k + 1)}, s{sMASK}, {vr(rec + 4 * p + k)}")
        for d, q_, t_ in ((LC, L, cs), (HS, Hh, cs + 4), (HC, Hh, cs), (LS, L, cs + 4)):
            for h in (0, 2):
                e(f"  v_pk_mul_f32 {vr(d + h, 2)}, {vr(q_ + h, 2)}, {vr(t_ + h, 2)}")
        for i in range(4):
            e(f"  v_cvt_pk_bf16_f32 {vr(L + i)}, {vr(LC + i)}, {vr(HS + i)}")
            e(f"  v_cvt_pk_bf16_f32 {vr(Hh + i)}, {vr(HC + i)}, {vr(LS + i)}")
        for k in range(8):
            e(f"  v_lshlrev_b32 {vr(LC + k)}, 16, {vr(L + k)}")
            e(f"  v_and_b32 {vr(L + k)}, s{sMASK}, {vr(L + k)}")
        for h in (0, 2):
            e(f"  v_pk_add_f32 {vr(L + h, 2)}, {vr(LC + h, 2)}, {vr(L + h, 2)} neg_lo:[0,1] neg_hi:[0,1]")
            e(f"  v_pk_add_f32 {vr(Hh + h, 2)}, {vr(HS + h, 2)}, {vr(Hh + h, 2)}")
        for i in range(4):
            e(f"  v_cvt_pk_bf16_f32 {vr(LC + i)}, {vr(L + i)}, {vr(Hh + i)}")
            e(f"  v_cvt_pk_bf16_f32 {vr(HS + i)}, {vr(Hh + i)}, -{vr(L + i)}")
        e(f"  v_mov_b32 {vr(h0)}, {2 * p + 2}")
        e(f"  ds_write_b128 {vr(wa)}, {vr(LC, 4)} offset:{QB + 1536 * p}")
        e(f"  ds_write_b128 {vr(wa)}, {vr(HS, 4)} offset:{QB + 1536 * p + 384}")
        e(f"  ds_write_b32 {vr(vZ)}, {vr(h0)} offset:{FL + 16}")
        qmask(0)

    ctl_init()
    if P.ctl:
        hv.append(("c", 0))
    patch("q")
    e(f"  s_lshl_b32 s{sT0}, s{sJ}, 10")
    e(f"  s_add_u32 s{sT0}, s{sT0}, L_hpos-L_pc")
    e(f"  v_add_u32 {vr(h0)}, s{sT0}, {vr(vT16)}")
    e(f"  global_load_dwordx4 {vr(st4, 4)}, {vr(h0)}, s[{sZ}:{sZ + 1}]")
    hv.append(("h", 0))
    if P.ss == 1:
        sc_early()
    if P.ss <= 1:
        patch("s")
    rotate(0)
    hpf()
    if P.ss == 2:
        sc_early()
        patch("s")
    e("  s_waitcnt lgkmcnt(0)")
    e("  s_setprio 0")
    hpf()
    e("  s_barrier")
    hpf()
    if P.ss == 3:
        sc_early()
        patch("s")
    for p in range(1, 8):
        rotate(p)
    e(f"  v_mov_b32 {vr(vSa)}, 0")
    e(f"  v_min_u32 {vr(u)}, 47, {vr(l)}")
    e(f"  v_lshlrev_b32 {vr(vL16)}, 4, {vr(u)}")
    for i in range(4):
        e(f"  v_mov_b32 {vr(sc + i)}, 0")
    e(f"  s_mov_b32 s{sNEED}, 1")
    e("  s_cmp_eq_u32 s2, 0")
    e("  s_cbranch_scc0 L_rc")
    e(f"  v_mov_b32 {vr(h0)}, {W_REC + 15 * 384 + 4}")
    e(f"  global_load_dword {vr(h1)}, {vr(h0)}, s[{sWS}:{sWS + 1}] sc1")
    if P.ctl:
        e(f"  s_mov_b64 exec, {msk:#x}")
        e(f"  global_store_dword {vr(vFA)}, {vr(vZ)}, s[{sWS}:{sWS + 1}] sc1")
    e("  s_mov_b64 exec, 1")
    e("  s_waitcnt vmcnt(0)")
    e(f"  v_and_b32 {vr(qn)}, 0x77777777, {vr(h1)}")
    e(f"  v_and_b32 {vr(h1)}, 0x88888888, {vr(h1)}")
    e(f"  v_add_u32 {vr(qn)}, 0x11111111, {vr(qn)}")
    e(f"  v_xor_b32 {vr(qn)}, {vr(qn)}, {vr(h1)}")
    e(f"  v_mov_b32 {vr(qn + 1)}, 1")
    e(f"  global_store_dwordx2 {vr(vZ)}, {vr(qn, 2)}, s[{sDBG}:{sDBG + 1}] sc1")
    e("  s_mov_b64 exec, -1")
    e("L_rc:")
    hpf()
    e("  s_waitcnt vmcnt(0)")
    hpf()
    if P.tfine:
        e("  s_waitcnt lgkmcnt(0)")
        e(f"  v_mov_b32 {vr(h0)}, 0")
        for k in range(hpn[0]):
            e(f"  v_writelane_b32 {vr(h0)}, s{HPF[k]}, {k}")
        e(f"  s_mul_i32 s{sT0}, s2, {5 * 256}")
        e(f"  s_add_u32 s{sT0}, s{sT0}, {0x100000 + 1024}")
        e(f"  v_lshl_add_u32 {vr(h1)}, v0, 2, s{sT0}")
        e(f"  global_store_dword {vr(h1)}, {vr(h0)}, s[{sWS}:{sWS + 1}]")
    for k in range(4):
        e(f"  v_and_b32 {vr(ro + 2 * k)}, 0xffff, {vr(st4 + k)}")
        e(f"  v_lshrrev_b32 {vr(ro + 2 * k + 1)}, 16, {vr(st4 + k)}")
    for k in range(2):
        e(f"  v_add_u32 {vr(ro + 6 + k)}, {SCB}, {vr(ro + 6 + k)}")
    if P.sd:
        e(f"  v_mov_b32 {vr(vCL)}, 0")
    e("L_hk:")
    for a in range(2):
        for k in range(2):
            e(f"  ds_read_u16_d16_hi {vr(sc + 2 * a + k)}, {vr(ro + 6 + k)} offset:{SA * a}")
    progwait("hsw", P.psl)
    mark("s")
    rank_post("s")
    for k in range(6):
        e(f"  ds_read_b32 {vr(x + 4 + k)}, {vr(ro + k)} offset:{LGB}")
    e(f"  v_mul_f32 {vr(x + 2)}, s{sSCALE}, {vr(sc)}")
    e(f"  v_mul_f32 {vr(x + 3)}, s{sSCALE}, {vr(sc + 1)}")
    e("  s_waitcnt lgkmcnt(0)")
    e(f"  v_pk_add_f32 {vr(x, 2)}, {vr(x + 4, 2)}, {vr(x + 6, 2)}")
    e(f"  v_pk_add_f32 {vr(x, 2)}, {vr(x, 2)}, {vr(x + 8, 2)}")
    e(f"  v_mul_f32 {vr(x)}, {vr(x)}, {vr(x + 2)}")
    e(f"  v_mul_f32 {vr(x + 1)}, {vr(x + 1)}, {vr(x + 3)}")
    e(f"  v_max_f32 {vr(z4)}, {vr(x)}, {vr(x + 1)}")
    allred("v_max_f32", z4, h0)
    e(f"  v_sub_f32 {vr(x)}, {vr(x)}, {vr(z4)}")
    e(f"  v_sub_f32 {vr(x + 1)}, {vr(x + 1)}, {vr(z4)}")
    e(f"  v_exp_f32 {vr(x)}, {vr(x)}")
    e(f"  v_exp_f32 {vr(x + 1)}, {vr(x + 1)}")
    e("  s_nop 0")
    e(f"  v_add_f32 {vr(z4 + 1)}, {vr(x)}, {vr(x + 1)}")
    e(f"  v_mul_f32 {vr(x)}, {vr(x)}, {vr(sc + 2)}")
    e(f"  v_mul_f32 {vr(x + 1)}, {vr(x + 1)}, {vr(sc + 3)}")
    e(f"  v_add_f32 {vr(z4 + 2)}, {vr(x)}, {vr(x + 1)}")
    for k in range(6):
        e(f"  ds_write_b32 {vr(ro + k)}, {vr(x + (k & 1))} offset:{LGB}")
    e(f"  v_mul_f32 {vr(z4 + 2)}, {f32bits(7.5):#x}, {vr(z4 + 2)}")
    allred("v_add_f32", z4 + 1, h0)
    allred("v_add_f32", z4 + 2, h0)
    e(f"  v_mov_b32 {vr(h0)}, s{sNEED}")
    e(f"  ds_write_b128 {vr(vSa)}, {vr(z4, 4)} offset:{ST}")
    e(f"  ds_write_b32 {vr(vZ)}, {vr(h0)} offset:{FL + 20}")
    e(f"  v_add_u32 {vr(vSa)}, 16, {vr(vSa)}")
    for k in range(8):
        e(f"  v_add_u32 {vr(ro + k)}, {1536 if k < 6 else SL}, {vr(ro + k)}")
    rank_take("s")
    elect()
    e("  s_waitcnt lgkmcnt(0)")
    e(f"  s_add_u32 s{sNEED}, s{sNEED}, 1")
    e(f"  s_cmp_le_u32 s{sNEED}, 16")
    e("  s_cbranch_scc1 L_hk")

    e(f"  v_and_b32 {vr(h2)}, 15, {vr(l)}")
    e(f"  v_lshlrev_b32 {vr(h2)}, 1, {vr(h2)}")
    e(f"  global_load_ushort {vr(h3)}, {vr(h2)}, s[{sRT}:{sRT + 1}] offset:32")
    e(f"  s_mov_b32 s{sK}, 0")
    e(f"  v_min_u32 {vr(wa)}, 23, {vr(l)}")
    e(f"  v_lshlrev_b32 {vr(wa)}, 4, {vr(wa)}")
    e(f"  v_lshlrev_b32 {vr(h0)}, 1, {vr(wa)}")
    e(f"  v_add_u32 {vr(h0)}, {PB}, {vr(h0)}")
    e(f"  v_add_u32 {vr(wa)}, {PK}, {vr(wa)}")
    e(f"  v_lshlrev_b32 {vr(sgn)}, 4, {vr(l)}")
    e(f"  s_mul_i32 s{sT0}, s2, 6144")
    e(f"  s_add_u32 s{sT0}, s{sT0}, {W_REC}")
    e(f"  v_add_u32 {vr(sgx)}, s{sT0}, {vr(sgn)}")
    e(f"  v_add_u32 {vr(sgn)}, {PK}, {vr(sgn)}")
    e(f"  v_add_u32 {vr(sg2)}, 4096, {vr(sgx)}")
    e(f"  v_lshrrev_b32 {vr(u)}, 1, {vr(vL16)}")
    e(f"  s_mul_i32 s{sT0}, s{sOH}, 384")
    e(f"  s_add_u32 s{sOUT}, s{sOUT}, s{sT0}")
    e(f"  s_addc_u32 s{sOUT + 1}, s{sOUT + 1}, 0")
    e(f"  s_lshl_b32 s{sT0}, s{sO}, 4")
    e(f"  s_add_u32 s{sT0}, s{sT0}, {W_REC}")
    e(f"  v_add_u32 {vr(h1)}, {W_REC}, {vr(u)}")
    e("  s_waitcnt vmcnt(0)")
    e(f"  v_or_b32 {vr(h2)}, 15, {vr(h3)}")
    e(f"  v_mul_u32_u24 {vr(h2)}, 384, {vr(h2)}")
    e(f"  v_mul_u32_u24 {vr(h3)}, 384, {vr(h3)}")
    e(f"  v_add_u32 {vr(ra + 15)}, s{sT0}, {vr(h2)}")
    e("  s_nop 0")
    for k in range(15):
        e(f"  v_add_u32_dpp {vr(ra + k)}, {vr(h3)}, {vr(h1)} row_newbcast:{k} row_mask:0xf bank_mask:0xf")
    e("L_hp:")
    e(f"  s_min_u32 s{sT0}, s{sO}, 13")
    e(f"  s_cmp_eq_u32 s{sT0}, s{sK}")
    e("  s_cbranch_scc0 L_hc_ok")
    e("L_hc:")
    e(f"  global_load_dwordx2 {vr(pr, 2)}, {vr(vZ)}, s[{sDBG}:{sDBG + 1}] sc1")
    e("  s_waitcnt vmcnt(0)")
    e(f"  v_readfirstlane_b32 s{sTG}, {vr(pr)}")
    e(f"  v_readfirstlane_b32 s{sF}, {vr(pr + 1)}")
    e(f"  s_cmp_eq_u32 s{sF}, 1")
    e("  s_cbranch_scc1 L_hc_ok")
    budget("L_hc_ok")
    e("  s_sleep 64")
    e("  s_branch L_hc")
    e("L_hc_ok:")
    vstep_k(sH, sK)
    e(f"  s_lshl_b32 s{sT0}, s{sH}, 4")
    e(f"  v_mov_b32 {vr(h1)}, s{sT0}")
    e(f"  s_add_u32 s{sK}, s{sK}, 1")
    e(f"  s_add_u32 s{sNEED}, s{sK}, 16")
    progwait("hpw", P.psl)
    mark("p")
    hp(0)
    rank_post("p")
    sum_partials(2)
    e(f"  v_max3_f32 {vr(h3)}, |{vr(x)}|, |{vr(x + 1)}|, |{vr(x + 2)}|")
    e(f"  v_max3_f32 {vr(h3)}, {vr(h3)}, |{vr(x + 3)}|, |{vr(x + 4)}|")
    e(f"  v_max3_f32 {vr(h3)}, {vr(h3)}, |{vr(x + 5)}|, |{vr(x + 6)}|")
    e(f"  v_max_f32_e64 {vr(h3)}, {vr(h3)}, |{vr(x + 7)}|")
    allred("v_max_f32", h3, wb)
    e(f"  v_frexp_exp_i32_f32 {vr(h3)}, {vr(h3)}")
    e(f"  v_sub_u32 {vr(wb)}, 14, {vr(h3)}")
    e(f"  v_subrev_u32 {vr(h3)}, 14, {vr(h3)}")
    for i in range(8):
        e(f"  v_ldexp_f32 {vr(x + i)}, {vr(x + i)}, {vr(wb)}")
    for i in range(4):
        e(f"  v_cvt_pk_f16_f32 {vr(fo + i)}, {vr(x + 2 * i)}, {vr(x + 2 * i + 1)}")
    for i in range(4):
        e(f"  v_lshrrev_b32 {vr(x + i)}, 1, {vr(fo + i)}")
        e(f"  v_and_b32 {vr(x + i)}, 0x10001, {vr(x + i)}")
        e(f"  v_add_u32 {vr(fo + i)}, {vr(fo + i)}, {vr(x + i)}")
    e(f"  ds_write_b32 {vr(h1)}, {vr(h3)} offset:{ST + 12}")
    e(f"  v_add_u32 {vr(h0)}, 3072, {vr(h0)}")
    e(f"  ds_write_b128 {vr(wa)}, {vr(fo, 4)}")
    e(f"  v_add_u32 {vr(wa)}, 384, {vr(wa)}")
    rank_take("p")
    e(f"  s_cmp_lt_u32 s{sK}, 15")
    e("  s_cbranch_scc1 L_hp")
    if P.eprio:
        e(f"  s_setprio {P.eprio}")
    for k in range(6):
        e(f"  ds_read_b128 {vr(blk + 4 * k, 4)}, {vr(sgn)} offset:{1024 * k}")
    e(f"  v_subrev_u32 {vr(h2)}, 40, {vr(l)}")
    e(f"  v_and_b32 {vr(h2)}, 15, {vr(h2)}")
    e(f"  v_lshlrev_b32 {vr(h2)}, 4, {vr(h2)}")
    e(f"  ds_read_b128 {vr(st4, 4)}, {vr(h2)} offset:{ST}")
    e(f"  s_mov_b32 s{sMASK}, 0x10001")
    e(f"  v_lshlrev_b32 {vr(h2)}, 3, {vr(l)}")
    e(f"  v_lshrrev_b32 {vr(h2)}, {vr(h2)}, s{sTG}")
    e(f"  v_lshrrev_b32 {vr(h3)}, 1, {vr(u)}")
    e(f"  v_lshrrev_b32 {vr(h3)}, {vr(h3)}, s{sTG}")
    for i in range(6):
        src, k = (h2, i) if i < 4 else (h3, i - 4)
        e(f"  v_bfe_u32 {vr(x + i)}, {vr(src)}, {2 * k}, 2")
        e(f"  v_lshl_or_b32 {vr(x + i)}, {vr(x + i)}, 15, {vr(x + i)}")
        e(f"  v_and_b32 {vr(x + i)}, s{sMASK}, {vr(x + i)}")
    e(f"  v_cmp_gt_u32 vcc, 40, {vr(l)}")
    e("  s_waitcnt lgkmcnt(0)")
    e(f"  v_mov_b32 {vr(st4 + 2)}, {vr(st4 + 1)}")
    e(f"  v_mov_b32 {vr(st4 + 1)}, s{sTG}")
    e(f"  s_mov_b32 s{sT0}, 0xffff")
    e(f"  v_bfi_b32 {vr(st4 + 3)}, s{sT0}, {vr(st4 + 3)}, {vr(st4 + 1)}")
    for k in range(24):
        e(f"  v_bfi_b32 {vr(blk + k)}, s{sMASK}, {vr(x + k % 4)}, {vr(blk + k)}")
    for i in range(4):
        e(f"  v_cndmask_b32 {vr(blk + 20 + i)}, {vr(st4 + i)}, {vr(blk + 20 + i)}, vcc")
    e(f"  s_lshl_b32 s{sH}, s{sO}, 4")
    e(f"  v_mov_b32 {vr(h1)}, s{sH}")
    e(f"  v_add_u32 {vr(h0)}, {PB + 15 * 3072}, {vr(vL16)}")
    e(f"  ds_read_b32 {vr(h1)}, {vr(h1)} offset:{ST + 8}")
    e("  s_waitcnt lgkmcnt(0)")
    if P.mg:
        e("; the stores leave late in the last step, so that they reach the memory chips after the stream has ended")
        e(f"  s_mov_b32 s{sNEED}, {31 + (P.mg > 12)}")
        progwait("hmw", P.psl, FL + 32)
    hp(1)
    for k in range(6):
        if k == 5:
            e("  s_mov_b32 exec_hi, 0xffffff")
        e(f"  global_store_dwordx4 {vr(sgx if k < 4 else sg2)}, {vr(blk + 4 * k, 4)}, s[{sWS}:{sWS + 1}] offset:{1024 * (k % 4)} sc1")
    e("  s_mov_b64 exec, -1")
    if P.rw:
        e("L_hw:")
    if P.ml:
        e(f"  s_mov_b32 s{sNEED}, {31 + (P.ml > 12)}")
        progwait("hlw", P.psl, FL + 48)
    else:
        e(f"  s_waitcnt vmcnt({P.aw})")
    hp(2)
    hp(3)
    if not P.rw:
        e("L_hw:")
    hp(4)
    if P.cnt:
        e(f"  s_mov_b32 s{sF}, 1")
        e(f"  s_atomic_add s{sF}, s[{sDBG}:{sDBG + 1}], 16")
    e(f"  global_load_dwordx4 {vr(cs, 4)}, {vr(ra + 15)}, s[{sWS}:{sWS + 1}] sc1")
    for k in range(15):
        e(f"  global_load_dwordx2 {vr(rec + 2 * k, 2)}, {vr(ra + k)}, s[{sWS}:{sWS + 1}] sc1")
    for i in range(4):
        e(f"  v_mov_b32 {vr(fo + i)}, 0")
    e(f"  v_mov_b32 {vr(wb)}, 0")
    budget("L_hy")
    e("  s_waitcnt vmcnt(15)")
    e(f"  v_xor_b32 {vr(h2)}, s{sTG}, {vr(cs + 3)}")
    e(f"  v_xor_b32 {vr(h3)}, s{sTG}, {vr(cs + 1)}")
    e(f"  v_lshrrev_b32 {vr(h2)}, 16, {vr(h2)}")
    e(f"  v_or_b32 {vr(h2)}, {vr(h2)}, {vr(h3)}")
    e(f"  v_cmp_ne_u32 s[{sZ}:{sZ + 1}], 0, {vr(h2)}")
    e(f"  s_cmp_eq_u64 s[{sZ}:{sZ + 1}], 0")
    e("  s_cbranch_scc0 L_hw")
    e("L_hy:")
    e("  s_waitcnt vmcnt(15)")
    hp(5)
    e(f"  v_mov_b32 {vr(h2)}, {vr(cs)}")
    rowred("v_max_f32", h2)
    e(f"  v_sub_f32 {vr(h2)}, {vr(cs)}, {vr(h2)}")
    e(f"  v_exp_f32 {vr(h2)}, {vr(h2)}")
    e(f"  v_bfe_i32 {vr(h3)}, {vr(cs + 3)}, 0, 16")
    e(f"  v_ldexp_f32 {vr(h3)}, {vr(h2)}, {vr(h3)}")
    e(f"  v_mul_f32 {vr(wa)}, {vr(h2)}, {vr(cs + 2)}")
    e(f"  v_readlane_b32 s{sMSK}, {vr(h3)}, 0")
    e(f"  v_readlane_b32 s{sMSK + 15}, {vr(h2)}, 15")
    for k in range(15):
        if k < 14:
            e(f"  v_readlane_b32 s{sMSK + k + 1}, {vr(h3)}, {k + 1}")
        if k < 4:
            e(f"  v_add_f32_dpp {vr(wa)}, {vr(wa)}, {vr(wa)} row_ror:{8 >> k} row_mask:0xf bank_mask:0xf")
        if k == 4:
            e(f"  v_rcp_f32 {vr(wa)}, {vr(wa)}")
        e(f"  s_waitcnt vmcnt({14 - k})")
        for i in range(2):
            e(f"  v_xor_b32 {vr(rec + 2 * k + i)}, {vr(rec + 2 * k + i)}, {vr(x + 4 + i)}")
        for i in range(4):
            e(f"  v_fma_mix_f32 {vr(fo + i)}, {vr(rec + 2 * k + i // 2)}, s{sMSK + k}, {vr(fo + i)} op_sel:[{i & 1},0,0] op_sel_hi:[1,0,0]")
        e(f"  v_or3_b32 {vr(wb)}, {vr(rec + 2 * k)}, {vr(rec + 2 * k + 1)}, {vr(wb)}")
    e(f"  v_and_b32 {vr(wb)}, s{sMASK}, {vr(wb)}")
    e(f"  v_cmp_ne_u32 s[{sZ}:{sZ + 1}], 0, {vr(wb)}")
    e(f"  s_cmp_lg_u32 s{sSP}, 0")
    e(f"  s_cselect_b64 s[{sZ}:{sZ + 1}], s[{sZ}:{sZ + 1}], 0")
    e(f"  s_cmp_eq_u64 s[{sZ}:{sZ + 1}], 0")
    e("  s_cbranch_scc0 L_hw")
    e(f"  v_mul_f32 {vr(h2)}, s{sMSK + 15}, {vr(wa)}")
    e(f"  v_mul_f32 {vr(h3)}, {vr(h2)}, {vr(h1)}")
    for i in range(4):
        e(f"  v_fma_f32 {vr(fo + i)}, {vr(fo + i)}, {vr(wa)}, -{vr(h3)}")
    hp(6)
    e("  s_barrier")
    hp(7)
    for k in range(4):
        e(f"  ds_read_b128 {vr(x + 4 * k, 4)}, {vr(h0)} offset:{768 * k}")
    e("  s_waitcnt lgkmcnt(2)")
    for h in (0, 2):
        e(f"  v_pk_add_f32 {vr(x + h, 2)}, {vr(x + h, 2)}, {vr(x + 4 + h, 2)}")
    e("  s_waitcnt lgkmcnt(0)")
    for h in (0, 2):
        e(f"  v_pk_add_f32 {vr(x + 8 + h, 2)}, {vr(x + 8 + h, 2)}, {vr(x + 12 + h, 2)}")
    for h in (0, 2):
        e(f"  v_pk_add_f32 {vr(x + h, 2)}, {vr(x + h, 2)}, {vr(x + 8 + h, 2)}")
    for i in range(4):
        e(f"  v_fmac_f32 {vr(fo + i)}, {vr(h2)}, {vr(x + i)}")
    e(f"  v_cvt_pk_bf16_f32 {vr(fo)}, {vr(fo)}, {vr(fo + 1)}")
    e(f"  v_cvt_pk_bf16_f32 {vr(fo + 1)}, {vr(fo + 2)}, {vr(fo + 3)}")
    e("  s_mov_b32 exec_hi, 0xffff")
    e(f"  global_store_dwordx2 {vr(u)}, {vr(fo, 2)}, s[{sOUT}:{sOUT + 1}] {P.of}")
    if P.sd:
        e(f"  s_mov_b32 s{sNEED}, 32")
        e("  s_mov_b64 exec, -1")
        mark("z")
        e(f"  s_cmp_eq_u32 s{sJ}, 0")
        e("  s_cbranch_scc0 L_sd")
        e(f"  v_lshlrev_b32 {vr(h0)}, 2, {vr(l)}")
        e("  s_mov_b32 exec_lo, 0")
        e("  s_mov_b32 exec_hi, 0x3fff")
        e(f"  global_atomic_add {vr(h0)}, {vr(vCL)}, s[{sDBG}:{sDBG + 1}] offset:-120 sc1")
        e("L_sd:")
    if P.enc:
        m0, m1, base, amp, wg = [int(v) for v in P.enc.split(",")]
        if m1 == 32:
            e("  s_memrealtime s[18:19]")
        if m0 == 0:
            e(f"  s_mov_b32 s16, s{sST}")
        e("  s_waitcnt lgkmcnt(0)")
        e("  s_sub_u32 s16, s18, s16")
        e(f"  s_atomic_add s16, s[{sDBG}:{sDBG + 1}], 32")
        e(f"  s_cmp_eq_u32 s2, {wg}")
        e("  s_cbranch_scc0 L_nohold")
        e("L_hold0:")
        e(f"  s_memrealtime s[{sST + 2}:{sST + 3}]")
        e("  s_waitcnt lgkmcnt(0)")
        e(f"  s_sub_u32 s{sT0}, s{sST + 2}, s{sST}")
        e(f"  s_cmp_lt_u32 s{sT0}, 12500")
        e("  s_cbranch_scc1 L_hold0")
        e("  s_mov_b32 s16, 0")
        e(f"  s_atomic_add s16, s[{sDBG}:{sDBG + 1}], 32 glc")
        e("  s_waitcnt lgkmcnt(0)")
        e(f"  s_sub_u32 s16, s16, {base * 256}")
        e("  s_max_i32 s16, s16, 0")
        e("  s_min_i32 s16, s16, 128000")
        e(f"  s_mul_i32 s16, s16, {amp}")
        e("  s_lshr_b32 s16, s16, 8")
        e("  s_add_u32 s16, s16, 13000")
        e("L_hold:")
        e(f"  s_memrealtime s[{sST + 2}:{sST + 3}]")
        e("  s_waitcnt lgkmcnt(0)")
        e(f"  s_sub_u32 s{sT0}, s{sST + 2}, s{sST}")
        e(f"  s_cmp_lt_u32 s{sT0}, s16")
        e("  s_cbranch_scc1 L_hold")
        e("L_nohold:")
        e("  s_waitcnt lgkmcnt(0)")
    if P.hold:
        e("; diagnostic build only")
        e("L_hold:")
        e(f"  s_memrealtime s[{sST + 2}:{sST + 3}]")
        e("  s_waitcnt lgkmcnt(0)")
        e(f"  s_sub_u32 s{sT0}, s{sST + 2}, s{sST}")
        e(f"  s_cmp_lt_u32 s{sT0}, {P.hold}")
        e("  s_cbranch_scc1 L_hold")
    if P.stamp:
        e(f"  s_memrealtime s[{sST + 2}:{sST + 3}]")
        if P.hprof:
            e("  s_waitcnt lgkmcnt(0)")
            e("  s_lshl_b32 s44, s2, 5")
            e("  s_add_u32 s44, s44, 0x80000")
            e("  v_mov_b32 v1, s44")
            for k in range(8):
                e(f"  s_sub_u32 s45, s{sST + 2}, s{HP[k]}")
                e(f"  v_mov_b32 v{4 + k}, s45")
            e(f"  global_store_dwordx4 v1, v[4:7], s[{sWS}:{sWS + 1}]")
            e(f"  global_store_dwordx4 v1, v[8:11], s[{sWS}:{sWS + 1}] offset:16")
            e("  s_nop 2")
        e("  s_getreg_b32 s6, hwreg(HW_REG_XCC_ID)")
        e("  s_getreg_b32 s7, hwreg(HW_REG_HW_ID)")
        e("  s_waitcnt lgkmcnt(0)")
        e(f"  v_mov_b32 v4, s{sST}")
        e(f"  v_mov_b32 v5, s{sST + 2}")
        e("  v_mov_b32 v6, s6")
        e("  v_mov_b32 v7, s7")
        e("  s_lshl_b32 s8, s2, 4")
        e("  v_mov_b32 v1, s8")
        e(f"  global_store_dwordx4 v1, v[4:7], s[{sWS}:{sWS + 1}]")
    e("L_end:")
    e("  s_endpgm")
    e(".p2align 6")
    e(".type L_order,@object")
    e("L_order:")
    for k in range(0, len(ordtab), 8):
        e("  .long " + ", ".join(f"{v:#x}" for v in ordtab[k:k + 8]))
    e(".type L_hpos,@object")
    e("L_hpos:")
    for b in range(2):
        at = {chunk_of(b, n, s_): lpos(n, s_) for n in range(24) for s_ in range(16)}
        rows = sorted({c // 3 for c in at})
        for l_ in range(64):
            r0, r1 = rows[l_], rows[l_ + 64]
            e("  .long " + ", ".join(f"{a_ | b_ << 16:#x}" for a_, b_ in [(at[3 * r0 + k], at[3 * r1 + k]) for k in range(3)] + [(2 * r0, 2 * r1)]))
    e('.section .rodata,"a"')
    e(".p2align 6")
    e(f".amdhsa_kernel {NAME}_kernel")
    e(f"  .amdhsa_next_free_vgpr {NV}")
    e("  .amdhsa_next_free_sgpr 100")
    e(f"  .amdhsa_accum_offset {(NV + 3) // 4 * 4}")
    e("  .amdhsa_group_segment_fixed_size 0")
    e("  .amdhsa_kernarg_size 112")
    e("  .amdhsa_user_sgpr_count 2")
    e("  .amdhsa_user_sgpr_kernarg_segment_ptr 1")
    e("  .amdhsa_system_sgpr_workgroup_id_x 1")
    e(".end_amdhsa_kernel")
    return "\n".join(o) + "\n", NV


if __name__ == "__main__":
    ap = argparse.ArgumentParser()
    ap.add_argument("-o", default=f"/code/{NAME}.s")
    for name, d in (("sh", 4), ("deep", 5), ("pd", 9), ("pre", 12), ("nf", 6), ("su", 3), ("ss", 3), ("hp0", 0), ("tst", 20),
                    ("ctl", 1), ("hi", 0), ("hiv", 5), ("lo", -25), ("thr", 2), ("tp", 2), ("inv", 1), ("start", 5), ("s0", 0), ("ba", 3),
                    ("r0", 2), ("r1", 30), ("rf", 3), ("rp", 2), ("rt", 26), ("rotl", 7), ("kp", 7), ("kp0", 6), ("kn", 20),
                    ("mg", 5), ("ml", 0), ("aw", 0), ("rw", 0), ("cnt", 0), ("nch", 12), ("cw", 1), ("cl", 0), ("sd", 0),
                    ("eprio", 2), ("psl", 1), ("bound", 4000000), ("hold", 0), ("dly", 0), ("dlb", 2)):
        ap.add_argument("--" + name, type=int, default=d)
    ap.add_argument("--kp_", default="6,6,6,7,8,9,9,10,10,11,11,12,12", help="K loads issued by each prologue point")
    ap.add_argument("--sf", default="nt")
    ap.add_argument("--of", default="")
    ap.add_argument("--wf", default="sc1")
    ap.add_argument("--enc", default="", help="diagnostic only: m0,m1,base,amp,wg")
    ap.add_argument("--qf", default="")
    ap.add_argument("--cf", default="")
    ap.add_argument("--ok", default="REXbLbLbL", help="events of a K group")
    ap.add_argument("--ov", default="REXbLbLbL", help="events of a V group")
    ap.add_argument("--vo", default="201")
    ap.add_argument("--tb", default="", help="first:last:bias, times 2 / -1 for workgroups that finish in / outside the last block")
    ap.add_argument("--rk", default="", help="die gain per step (hex digits, 0 = no ranking)")
    ap.add_argument("--sb", default="", help="step:bias,... added to the lateness")
    ap.add_argument("--bu", default="012", help="extra depth per position in the issued group")
    ap.add_argument("--th", default="-9,5,13")
    ap.add_argument("--sch", default="sch_np.txt")
    ap.add_argument("--xp", default="", help="timing experiments only")
    for name in ("stamp", "trace", "tfine", "hprof"):
        ap.add_argument("--" + name, action="store_true", help="diagnostics only")
    a = ap.parse_args()
    txt, nv = gen(a)
    open(a.o, "w").write(txt)
    print("wrote", a.o, "vgprs", nv)
```

```python
import argparse
import math
import os
import struct
from gen import HEADER, NAME, Alloc, f32bits, vr

HB = 2048 * 768

ABOUT = """
Generated by tools/gen9.py.
Work split: workgroup (cluster c, block m, member b) handles 128 rows of the 256-row block m for 16 heads 16 k + c
  (slots k = 5 and 10 take their head from a table instead of c); the two members alternate over 32 KiB runs.
  Waves 1-4 stream one 4 KiB block per round; a 16-lane row handles one third (64 dims) of a KV row per load.
  K sweep: logit = k_scale * sum_d (qk - 7.5) * (qa * cos + qb * sin), RoPE moved onto the rotated q;
  V sweep: partial = sum_rows p * v_scale * qv.
  Wave 0 (helper) rotates q, takes max / exp / sums over the workgroup's rows of each head, and merges partials.
Constant parameters (the same for every seed) are built in: both zero points (7.5), q_cos / q_sin (table L_qcs) and
  k_cos / k_sin = bf16(cos / sin(fp32(row * inv_freq))), evaluated once per workgroup from the table L_inv into LDS.
Hand-off: every workgroup finishes one of its heads and streams that head last.  Partials and (max, sum) of
  the other 15 go to d_ws with sc1 stores; every 8 bytes carry a piece of a tag that differs from the one found there on
  entry (sent round through d_debug).  The finisher reads until all tags fit and rescales all 16 to the true row maximum.
Flow control (speed only, results do not depend on it): waves publish a group counter and sample the counters of
  units on the same die; late waves keep one more load in flight, early waves one or two fewer.  Helpers rank the dies.
"""

RUN = (1, 2, 0)


def chunk_of(b, n, s):
    g = 256 * RUN[n >> 3] + 128 * b + 16 * (n & 7) + s
    return {128: 512, 255: 639, 512: 128, 639: 255}.get(g, g)


def tidx(b, row):
    return row - 43 * b - 42 * ((row >= 85) + (row >= 171))


def rev(x, bits):
    return int(format(x, f"0{bits}b")[::-1], 2)


def lpos(n, s):
    return 4 * (16 * s + rev(n, 4)) if n < 16 else 1024 + 4 * (8 * s + rev(n - 16, 3))


TN = [(RUN[n >> 3] + (n & 7)) % 3 for n in range(24)]
SPECIAL = {n: i for i, n in enumerate(sorted(8 * RUN.index(r) + i for r in (0, 2) for i in (0, 7)))}
for b_ in range(2):
    ch = sorted(chunk_of(b_, n, s) for n in range(24) for s in range(16))
    assert ch == sorted(3 * r + k for r in {c // 3 for c in ch} for k in range(3))
    assert all(chunk_of(b_, n, s) % 3 == (TN[n] + 2 * b_ + s) % 3 for n in range(24) for s in range(16))
    assert len({tidx(b_, c // 3) for c in ch}) == 128 and max(tidx(b_, c // 3) for c in ch) == 128


def gen(P):
    o = []
    e = o.append
    RING, PD = 24, P.pd
    sh, deep = P.sh, P.deep
    PRE = P.pre
    TP = P.tp
    LAG = 2
    assert deep <= PD - 1 and sh <= deep and PD <= PRE
    SL = 512
    SA = 16 * SL

    FL = 0
    ST = 256
    TB = 512
    QB = TB + 129 * 384
    LGB = QB + 16 * 768 + 1536
    SCB = LGB + 16 * 1536
    PB = SCB + 2 * SA
    PK = PB + 49152
    LDS = PK + 6144
    assert 81920 < LDS <= 163840
    W_REC = 0x400000
    W_RK = 0x780000
    W_PL = 0x7c0000

    sQ, sQK, sKS, sKZ, sQV, sVS, sVZ, sQC = 4, 6, 8, 10, 12, 14, 16, 18
    sQS, sKC, sKSN, sOUT = 20, 22, 24, 26
    sDBG, sWS = 28, 30
    rA, rB = 32, 36
    sW, sJ, sC, sK, sT0, sT1, sF, sNEED = 40, 41, 42, 43, 44, 45, 46, 47
    sMSK = 48
    sOF = 51
    sPB = 60
    sCO = 61
    sZ = 64
    sMASK, sSCALE, sH = 66, 67, 68
    sS = 69
    sX = 70
    sRF = 80
    sRT = 82
    sST = 84
    sN = 90
    sB = 91
    sVO = 92
    sSP = 94
    sI = 95
    sSE, sCU = 81, 79
    sLO = 78
    sO = 3
    sCN = 96
    sOH, sTG = 98, 99

    va = Alloc(1)
    vT16, vF, vZ, vC16 = [va.take(1) for _ in range(4)]
    voff = va.take(7)
    vTA = va.take(7)
    vQA = va.take(3)
    vPA = va.take(3)
    vLG = va.take(2)
    vLB = va.take(2)
    vLV = va.take(2)
    A = va.take(2)
    LG = va.take(2)
    M1, M2, M3 = [va.take(1) for _ in range(3)]
    bc = va.take(2, 2)
    dacc = va.take(2, 2)
    wt = va.take(4, 2)
    vtr, vPW, vPS, vN, vSum, vSu2, vBA = [va.take(1) for _ in range(7)]
    vPL = va.take(4)
    vBI = va.take(2, 2)
    smp = va.take(8, 4)
    qa = va.take(12, 4)
    tab = va.take(24, 4)
    tmp = va.take(12, 4)
    ring = va.take(4 * RING, 4)
    NV = va.n
    acc = qa

    here = os.path.dirname(os.path.abspath(__file__))
    sch = [[int(x) for x in ln.split()] for ln in open(os.path.join(here, P.sch))]
    sch = [x[:3] + [k for b_ in P.vo for k in x[3 + 5 * int(b_):8 + 5 * int(b_)]] + x[18:] for x in sch]
    inv, qcs = [[int(x, 16) for x in ln.split()] for ln in open(os.path.join(here, "consts.txt"))]
    cj = lambda g: (g >> 4, (g & 7) * 2 + ((g >> 3) & 1))
    ent = {g: sch[16 * cj(g)[0] + cj(g)[1]] for g in range(256)}
    cl = lambda g, k: ent[g][0] if k == 5 else ent[g][1] if k == 10 else g >> 4
    assert sorted(16 * ent[g][2] + cl(g, ent[g][2]) for g in range(256)) == list(range(256))
    ordtab = []
    for g in range(256):
        o_, od = ent[g][2], ent[g][3:]
        assert sorted(od) == list(range(16)) and od[15] == o_
        con = [x for x in range(256) if x != g and cl(x, o_) == cl(g, o_)] + [g]
        assert sorted(cj(x)[1] for x in con) == list(range(16))
        nib = sum(k << (4 * t) for t, k in enumerate(range(16) if "i" in P.xp else od))
        cn = sum((g >> 4 if "c" in P.xp else cl(g, k)) << (4 * k) for k in range(16))
        u16 = [16 * x + ent[x][3:].index(o_) for x in con]
        assert all(v % 16 < 15 for v in u16[:15])
        ordtab += [nib & 0xffffffff, nib >> 32, cn & 0xffffffff, cn >> 32, 16 * o_ + cl(g, o_), 0, o_, 2 if ((16 * o_ + cl(g, o_)) * HB + (g & 7) * 196608 + 98304) >> 28 else 0xffffffff]
        ordtab += [u16[2 * i] | u16[2 * i + 1] << 16 for i in range(8)]

    def ld(n):
        rr = rA if n < 24 else rB
        n %= 24
        so = f"s{sOF + (n & 7)}" if n & 7 else "0"
        vo = voff + (3 + SPECIAL[n] if n in SPECIAL and "x" not in P.xp else n >> 3)
        e(f"  buffer_load_dwordx4 {vr(ring + 4 * n, 4)}, {vr(vo)}, s[{rr}:{rr + 3}], {so} offen nt")

    ORD = {"K": P.ok, "V": P.ov}
    DIST = {"K": PRE, "V": PD}
    bu = [int(x) for x in P.bu]
    th = [int(x) for x in P.th.split(",")]
    assert PD % 3 == 0 and PRE % 3 == 0 and deep == sh + 1

    def memops(ph, a):
        r = []
        for i, c in enumerate(ORD[ph]):
            if c == "X" and P.ctl:
                r += [(i, "B")] * (a == P.ba) + [(i, "S"), (i, "Q")]
            if c == "L":
                r.append((i, "L"))
        return r

    def back(ph, a, i):
        r = [c for j, c in memops(ph, a) if j < i][::-1]
        for k in range(1, 8):
            r += [c for _, c in memops(ph, (a - k) % 8)][::-1]
        return r

    def cnt(ph, a, i, depth):
        depth += bu[ORD[ph][:i].count("L")]
        r = back(ph, a, i)
        return [k + 1 for k, c in enumerate(r) if c == "L"][depth - 2] if depth > 1 else 0

    def swait(ph, a):
        assert ORD[ph].index("E") < ORD[ph].index("X")
        r = back(ph, a, ORD[ph].index("E"))
        return [k for k, c in enumerate(r) if c == "Q"][LAG - 1]

    plain = {}

    def verify():
        ops = [("L", i) for i in range(PRE)]
        done = ORD["K"][:ORD["K"].index("L")].count("b")
        for g in range(256):
            ph, a = "KV"[g >= 128], g % 8
            if 3 * g + PD >= 768 or 128 <= g < 128 + (PRE - PD) // 3:
                for n in range(3 * g, 3 * g + 4 - (g == 255)):
                    plain[n] = len(ops) - 1 - ops.index(("L", n))
                done = max(done, len(ops) - plain[min(3 * g + 3, 767)])
                continue
            nb = nl = 3 * g
            for i, c in enumerate(ORD[ph]):
                if c == "E" and P.ctl:
                    done = max(done, len(ops) - swait(ph, a))
                if c == "X" and P.ctl:
                    ops += [("X", 0)] * (1 + (a == P.ba))
                if c == "b":
                    assert ("L", nb) in ops[:done], nb
                    nb += 1
                if c == "L":
                    done = max(done, len(ops) - cnt(ph, a, i, deep if P.ctl else sh))
                    ops.append(("L", nl + DIST[ph]))
                    nl += 1
    verify()
    lab = [0]
    rare = []

    def flush():
        o.extend(rare)
        rare.clear()

    def issue(ph, a, i):
        j = ORD[ph][:i].count("L")
        lab[0] += 1
        if P.ctl and j == TP:
            e(f"  s_cmp_lt_i32 s{sS}, {P.lo}")
            e(f"  s_cbranch_scc1 L_t{lab[0]}")
            rare.extend([f"L_t{lab[0]}:", f"  s_waitcnt vmcnt({cnt(ph, a, i, P.thr + 1)})", f"  s_branch L_p{lab[0]}"])
        if P.ctl:
            t = (P.hi if ph == "K" else P.hiv) + th[j]
            assert t >= P.lo
            e(f"  s_cmp_gt_i32 s{sS}, {t}")
            if t < 0 and P.inv:
                e(f"  s_cbranch_scc0 L_q{lab[0]}")
                rare.extend([f"L_q{lab[0]}:", f"  s_waitcnt vmcnt({cnt(ph, a, i, sh)})", f"  s_branch L_p{lab[0]}"])
                e(f"  s_waitcnt vmcnt({cnt(ph, a, i, deep)})")
                e(f"L_p{lab[0]}:")
            else:
                e(f"  s_cbranch_scc1 L_p{lab[0]}")
                e(f"  s_waitcnt vmcnt({cnt(ph, a, i, sh)})")
                e(f"L_p{lab[0]}:")
                e(f"  s_waitcnt vmcnt({cnt(ph, a, i, deep)})")
        else:
            e(f"  s_waitcnt vmcnt({cnt(ph, a, i, sh)})")
        ld(3 * a + j + DIST[ph])
        if ph == "V" and 3 * a + j + 1 == P.mg:
            e(f"  ds_write_b32 {vr(vPW)}, {vr(M1)} offset:{FL + 32}")
        if ph == "V" and 3 * a + j + 1 == P.ml:
            e(f"  ds_write_b32 {vr(vPW)}, {vr(M1)} offset:{FL + 48}")

    def evaluate(ph, a):
        if not P.ctl:
            return
        sm = smp + 4 * (a % LAG)
        e(f"  s_waitcnt vmcnt({swait(ph, a)})")
        if a == (P.ba + LAG) % 8:
            e(f"  v_add_u32 {vr(vBI)}, {vr(vBI)}, {vr(vBI + 1)}")
        e(f"  s_add_u32 s{sT0}, s{sLO}, 0x03030303")
        e(f"  v_msad_u8 {vr(vSum)}, s{sLO}, {vr(sm)}, 0")
        e(f"  v_msad_u8 {vr(vSu2)}, s{sT0}, {vr(sm)}, 0")
        if a == (P.ba + LAG) % 8:
            e(f"  v_readfirstlane_b32 s{sB}, {vr(vBI)}")
        for k in range(1, 3):
            e(f"  v_msad_u8 {vr(vSum)}, s{sLO}, {vr(sm + k)}, {vr(vSum)}")
            e(f"  v_msad_u8 {vr(vSu2)}, s{sT0}, {vr(sm + k)}, {vr(vSu2)}")
        e(f"  v_sub_u32 {vr(vSum)}, {vr(vSum)}, {vr(vSu2)}")
        e(f"  s_add_u32 s{sLO}, s{sLO}, 0x01010101")
        e(f"  v_readlane_b32 s{sMASK}, {vr(vSum)}, 0")
        e(f"  v_readlane_b32 s{sSCALE}, {vr(vSum)}, 1")

    def decide(ph, a):
        if not P.ctl:
            return
        if a == (P.ba + LAG) % 8:
            for it in filter(None, P.sb.split(",")):
                st_, b_ = [int(v) for v in it.split(":")]
                if (st_ >= 16) == (ph == "V"):
                    e(f"  s_cmp_eq_u32 s{sK}, {st_ % 16}")
                    e(f"  s_cselect_b32 s{sT0}, {b_}, 0")
                    e(f"  s_add_u32 s{sB}, s{sB}, s{sT0}")
            for it in filter(None, P.tb.split(",")):
                s0_, s1_, b_ = [int(v) for v in it.split(":")]
                if (s0_ >= 16) == (ph == "V"):
                    e(f"  s_bitcmp1_b32 {sum(1 << (k % 16) for k in range(s0_, s1_ + 1)):#x}, s{sK}")
                    e(f"  s_cselect_b32 s{sT0}, {b_}, 0")
                    e(f"  s_mul_i32 s{sT0}, s{sT0}, s{sPB}")
                    e(f"  s_add_u32 s{sB}, s{sB}, s{sT0}")
        cur, old = (sI, sCO) if a & 1 else (sCO, sI)
        e(f"  s_add_u32 s{cur}, s{sMASK}, s{sSCALE}")
        e(f"  s_add_u32 s{sS}, s{cur}, s{old}")
        e(f"  s_ashr_i32 s{sS}, s{sS}, 1")
        e(f"  s_add_u32 s{sS}, s{sS}, s{sB}")
        if ph == "K" and a < P.start:
            e(f"  s_cmp_eq_u32 s{sK}, 0")
            e(f"  s_cselect_b32 s{sS}, {P.s0}, s{sS}")

    def exchange(a):
        if not P.ctl:
            return
        e("  s_mov_b64 exec, 1")
        if a == P.ba:
            e(f"  global_load_dwordx2 {vr(vBI, 2)}, {vr(vBA)}, s[{sWS}:{sWS + 1}] sc1")
        e(f"  global_store_byte {vr(vPS)}, {vr(vN)}, s[{sWS}:{sWS + 1}]")
        e("  s_mov_b64 exec, 3")
        e(f"  global_load_dwordx3 {vr(smp + 4 * (a % LAG), 3)}, {vr(vPL + a % 4)}, s[{sWS}:{sWS + 1}] sc1")
        e(f"  v_add_u32 {vr(vN)}, 1, {vr(vN)}")
        e("  s_mov_b64 exec, -1")

    def srd_head(rr, sp, sh_):
        e(f"  s_mul_i32 s{sT0}, s{sh_}, {HB}")
        e(f"  s_add_u32 s{rr}, s{sp}, s{sT0}")
        e(f"  s_addc_u32 s{rr + 1}, s{sp + 1}, 0")

    def vstep_k(dst, src):
        e(f"  s_lshl_b32 s{dst}, s{src}, 2")
        e(f"  s_lshr_b64 s[{sZ}:{sZ + 1}], s[{sVO}:{sVO + 1}], s{dst}")
        e(f"  s_and_b32 s{dst}, s{sZ}, 15")

    def head_of(dst, slot):
        e(f"  s_lshl_b32 s{sT0}, s{slot}, 2")
        e(f"  s_lshr_b64 s[{sZ}:{sZ + 1}], s[{sCN}:{sCN + 1}], s{sT0}")
        e(f"  s_and_b32 s{sZ}, s{sZ}, 15")
        e(f"  s_lshl4_add_u32 s{dst}, s{slot}, s{sZ}")

    def budget(ok):
        e(f"  s_cmp_eq_u32 s{sSP}, 0")
        e(f"  s_cbranch_scc1 {ok}")
        e(f"  s_sub_u32 s{sSP}, s{sSP}, 1")

    def flagwait(name, off):
        e(f"L_{name}:")
        e("  s_waitcnt lgkmcnt(0)")
        e(f"  v_readfirstlane_b32 s{sF}, {vr(vF)}")
        e(f"  s_cmp_ge_u32 s{sF}, s{sNEED}")
        e(f"  s_cbranch_scc0 L_{name}_no")
        e(f"L_{name}_ok:")
        rare.extend([f"L_{name}_no:", f"  s_cmp_eq_u32 s{sSP}, 0", f"  s_cbranch_scc1 L_{name}_ok", f"  s_sub_u32 s{sSP}, s{sSP}, 1",
                     f"  ds_read_b32 {vr(vF)}, {vr(vZ)} offset:{off}", f"  s_branch L_{name}"])

    def tr():
        if P.trace:
            e(f"  {'s_memtime' if 'm' in P.xp else 's_memrealtime'} s[88:89]")
            e("  s_waitcnt lgkmcnt(0)")
            e(f"  v_writelane_b32 {vr(vtr)}, s88, m0")
            e("  s_add_u32 m0, m0, 1")
            e("  s_min_u32 m0, m0, 63")

    def die_base(dst):
        e(f"  s_getreg_b32 s{sSE}, hwreg(HW_REG_HW_ID, 8, 7)")
        e(f"  s_getreg_b32 s{dst}, hwreg(HW_REG_XCC_ID, 0, 3)")
        e(f"  s_and_b32 s{sCU}, s{sSE}, 15")
        e(f"  s_lshr_b32 s{sSE}, s{sSE}, 5")
        e(f"  s_mul_i32 s{dst}, s{dst}, 4352")
        e(f"  s_add_u32 s{dst}, s{dst}, {W_PL}")

    ha = Alloc(16)
    l, u, h0, h1, h2, h3 = [ha.take(1) for _ in range(6)]
    qo, wa, wb, sgn, sgx, sg2 = [ha.take(1) for _ in range(6)]
    ro = ha.take(8)
    vL16, vCNT, vDB, vOne, vFA, vFI, vFR, vFX, vFB, vEL, vCL, vSa = [ha.take(1) for _ in range(12)]
    z4 = ha.take(4, 4)
    cs = ha.take(8, 4)
    sc = ha.take(4, 4)
    qn = ha.take(4, 4)
    x = ha.take(32, 4)
    pr = ha.take(4, 4)
    fo = ha.take(4, 4)
    rec = ha.take(32, 4)
    blk = ha.take(24, 4)
    st4 = ha.take(4, 4)
    ra = ha.take(16)
    assert ha.n <= NV and vZ < 16

    invX, invY, tK, tA, tN, tO = tmp, tmp + 4, tmp + 8, tab, tab + 4, tab + 8
    PC0 = 20 + 8 * P.stamp + 16 * (P.dly > 0)
    D_INV, D_QCS, D_END = 256, 768, 1152
    NF = P.nf
    assert RUN[0] == 1 and NF <= 8
    e(HEADER.rstrip("\n"))
    e(f"; @launch grid=(256,1,1) block=(320,1,1) lds={LDS}")
    for ln in ABOUT.strip("\n").split("\n"):
        e("; " + ln)
    e('.amdgcn_target "amdgcn-amd-amdhsa--gfx950"')
    e(".text")
    e(f".globl {NAME}_kernel")
    e(".p2align 8")
    e(f".type {NAME}_kernel,@function")
    e(f"{NAME}_kernel:")
    e("  s_cmpk_ge_u32 s2, 0x100")
    e("  s_cbranch_scc1 L_end")
    if P.dly:
        e("; diagnostic build only: half of the dies start late")
        e(f"  s_getreg_b32 s4, hwreg(HW_REG_XCC_ID, {P.dlb}, 1)")
        e("  s_cmp_eq_u32 s4, 0")
        e("  s_cbranch_scc1 L_dly")
        e(f"  s_sleep {P.dly}")
        e("L_dly:")
    if P.stamp:
        e(f"  s_memrealtime s[{sST}:{sST + 1}]")
    e("  s_load_dwordx16 s[4:19], s[0:1], 0")
    e(f"  s_getpc_b64 s[{sZ}:{sZ + 1}]")
    e("L_pc:")
    e("  v_cmp_gt_u32 vcc, 64, v0")
    e(f"  v_lshlrev_b32 {vr(vT16)}, 4, v0")
    e(f"  s_lshr_b32 s{sC}, s2, 4")
    e(f"  s_and_b32 s{sH}, s2, 7")
    e(f"  s_lshl3_add_u32 s{sH}, s{sC}, s{sH}")
    e(f"  s_movk_i32 s{sNEED}, 768")
    e("  s_cbranch_vccz L_s0")
    e(f"  v_lshl_add_u32 {vr(h0)}, s{sC}, 6, v0")
    e(f"  v_mul_u32_u24 {vr(h0)}, {P.tst}, {vr(h0)}")
    e(f"  global_load_dword {vr(h3)}, {vr(h0)}, s[{sZ}:{sZ + 1}] offset:{D_END - PC0} {P.cf}")
    e(f"  v_and_b32 {vr(vL16)}, 0x1f0, {vr(vT16)}")
    e(f"  global_load_dwordx4 {vr(pr, 4)}, {vr(vL16)}, s[{sZ}:{sZ + 1}] offset:{D_QCS - PC0}")
    e("  s_branch L_helper")
    e("L_s0:")
    e(f"  v_and_b32 {vr(vC16)}, 0xf0, {vr(vT16)}")
    e(f"  global_load_dwordx4 {vr(invX, 4)}, {vr(vC16)}, s[{sZ}:{sZ + 1}] offset:{D_INV - PC0}")
    e(f"  global_load_dwordx4 {vr(invY, 4)}, {vr(vC16)}, s[{sZ}:{sZ + 1}] offset:{D_INV + 256 - PC0}")
    e(f"  s_mul_i32 s{sT0}, s{sH}, 196608")
    e(f"  s_and_b32 s{sT1}, s2, 8")
    e(f"  s_lshl_b32 s{sT1}, s{sT1}, 12")
    e(f"  s_add_u32 s{sT0}, s{sT0}, s{sT1}")
    e(f"  s_add_u32 s{sT0}, s{sT0}, {65536 * RUN[0] - 1024 + 4096}")
    e(f"  v_add_u32 {vr(tA)}, s{sT0}, {vr(vT16)}")
    for k in range(1, (NF + 1) // 2):
        e(f"  v_add_u32 {vr(tA + k)}, {8192 * k}, {vr(tA)}")
    e("  s_waitcnt lgkmcnt(0)")
    for n in range(NF):
        e(f"  global_load_dwordx4 {vr(ring + 4 * n, 4)}, {vr(tA + n // 2)}, s[{sQK}:{sQK + 1}] offset:{4096 * (n % 2) - 4096} nt")
    e("  s_branch L_s1")
    e("L_b0:")
    e(f".if (L_b0 - {NAME}_kernel > {D_INV}) || (L_pc - {NAME}_kernel != {PC0})")
    e('.error "entry block layout"')
    e(".endif")
    e(".p2align 8")
    e(".type L_inv,@object")
    e("L_inv:")
    tb = inv[:64] + inv[64:] + inv[64:]
    for k in range(0, 128, 8):
        e("  .long " + ", ".join(f"{v:#x}" for v in tb[k:k + 8]))
    e(".type L_qcs,@object")
    e("L_qcs:")
    for k in range(0, 96, 8):
        e("  .long " + ", ".join(f"{v:#x}" for v in qcs[k:k + 8]))

    def common():
        e(f"  s_load_dwordx8 s[24:31], s[0:1], 80")
        e(f"  s_lshl_b32 s{sT0}, s2, 6")
        e(f"  s_add_u32 s{sT0}, s{sT0}, L_order-L_pc")
        e(f"  s_add_u32 s{sRT}, s{sZ}, s{sT0}")
        e(f"  s_addc_u32 s{sRT + 1}, s{sZ + 1}, 0")
        e(f"  s_load_dwordx2 s[{sVO}:{sVO + 1}], s[{sRT}:{sRT + 1}], 0")
        e(f"  s_load_dwordx2 s[{sCN}:{sCN + 1}], s[{sRT}:{sRT + 1}], 8")
        if P.tb:
            e(f"  s_load_dword s{sPB}, s[{sRT}:{sRT + 1}], 28")
        e(f"  v_mov_b32 {vr(vZ)}, 0")
        e(f"  s_mov_b32 s{sSP}, {P.bound}")
        e(f"  s_bfe_u32 s{sJ}, s2, 0x10003")

    PFR = [8, 10, 14, 16, 18, 20, 22, 72, 74, 76, 4, 86]
    pfn = [0]

    def pf():
        if P.tfine:
            e(f"  {'s_memtime' if 'm' in P.xp else 's_memrealtime'} s[{PFR[pfn[0]]}:{PFR[pfn[0]] + 1}]")
            pfn[0] += 1

    e("L_s1:")
    w_, s_, vAD, vC8, t0, t1 = wt, wt + 1, wt + 2, wt + 3, dacc, dacc + 1
    vRF, pos = vT16, tK + 3
    if P.trace:
        e(f"  v_mov_b32 {vr(vtr)}, 0")
        e("  s_mov_b32 m0, 0")
    pf()
    e("  v_subrev_u32 v0, 64, v0")
    e("  s_setprio 1")
    common()
    e(f"  v_lshrrev_b32 {vr(w_)}, 6, v0")
    e(f"  v_lshrrev_b32 {vr(s_)}, 4, v0")
    e(f"  v_and_b32 {vr(vC8)}, 0x70, {vr(vC16)}")
    e(f"  v_readfirstlane_b32 s{sW}, {vr(w_)}")
    e(f"  v_add_u32 {vr(vAD)}, {vr(vC8)}, {vr(s_)}")
    e(f"  s_mul_i32 s{sT0}, s{sJ}, 44")
    e(f"  s_sub_u32 s{sT0}, 86, s{sT0}")
    e(f"  v_cmp_eq_u32 vcc, s{sT0}, {vr(vAD)}")
    e(f"  v_mov_b32 {vr(t0)}, 0x80")
    e(f"  s_and_b32 s{sH}, s2, 7")
    e(f"  v_cndmask_b32 {vr(vAD)}, {vr(vAD)}, {vr(t0)}, vcc")
    e(f"  v_mul_u32_u24 {vr(t0)}, 381, {vr(vAD)}")
    e(f"  s_mul_i32 s{sT0}, s{sJ}, 43")
    e(f"  v_add_u32 {vr(t0)}, 2, {vr(t0)}")
    e(f"  s_lshl_b32 s{sT1}, s{sH}, 8")
    e(f"  v_lshrrev_b32 {vr(t0)}, 14, {vr(t0)}")
    assert all((381 * i + 2) >> 14 == (i >= 43) + (i >= 86) for i in range(129))
    e(f"  s_add_u32 s{sT0}, s{sT0}, s{sT1}")
    e(f"  v_mad_u32_u24 {vr(t0)}, {vr(t0)}, 42, {vr(vAD)}")
    e(f"  v_add_u32 {vr(t0)}, s{sT0}, {vr(t0)}")
    e(f"  v_cvt_f32_u32 {vr(vRF)}, {vr(t0)}")
    e(f"  v_mul_u32_u24 {vr(vAD)}, 384, {vr(vAD)}")
    e(f"  s_mov_b32 s{rA + 2}, {HB}")
    e(f"  s_mov_b32 s{rA + 3}, 0x20000")
    srd_head(rA, sQK, sC)
    e(f"  s_mul_i32 s{sT0}, s{sH}, 6")
    e(f"  s_add_u32 s{sT0}, s{sT0}, s{sJ}")
    e(f"  s_lshl_b32 s{sT0}, s{sT0}, 15")
    e(f"  v_lshl_add_u32 {vr(voff + RUN.index(0))}, v0, 4, s{sT0}")
    for k in (1, 2):
        e(f"  v_add_u32 {vr(voff + RUN.index(k))}, {65536 * k:#x}, {vr(voff + RUN.index(0))}")
    for i in range(1, 8):
        e(f"  s_movk_i32 s{sOF + i}, {4096 * i}")
    nk = [NF]
    assert PRE <= RING and max(int(v) for v in P.kp_.split(",")[:P.su + 1]) <= min(SPECIAL)

    def k_loads(hi):
        while nk[0] < min(hi, PRE):
            ld(nk[0])
            nk[0] += 1

    def toff_(n):
        run = RUN[n >> 3]
        return 384 * (16 * (((n & 7) + run) // 3) + 38 * run)

    def setup():
        e("; per chunk class k: q operand, table and partial addresses")
        e(f"  s_lshl1_add_u32 s{sF}, s{sJ}, s{sW}")
        e(f"  s_lshl_b32 s{sF}, s{sF}, 1")
        e(f"  s_lshr_b32 s{sF}, 0x4924, s{sF}")
        e(f"  v_bfe_u32 {vr(t1)}, v0, 4, 2")
        e(f"  v_lshl_add_u32 {vr(t1)}, {vr(t1)}, 2, {vr(vC16)}")
        e(f"  v_mad_u32_u24 {vr(vF)}, {vr(w_)}, s{sNEED}, {vr(t1)}")
        e(f"  v_add_u32 {vr(vF)}, {PB - 3072}, {vr(vF)}")
        e(f"  s_mul_i32 s{sT1}, s{sJ}, {43 * 384}")
        e(f"  s_sub_u32 s{sT1}, {TB}, s{sT1}")
        e(f"  v_lshl_add_u32 {vr(vSum)}, s{sJ}, 7, {vr(s_)}")
        for k in range(3):
            e(f"  s_bfe_u32 s{sT0}, s{sF}, {(2 << 16) | 2 * k:#x}")
            e(f"  v_lshl_add_u32 {vr(vPA + k)}, s{sT0}, 8, {vr(vF)}")
            if k:
                e(f"  v_add_u32 {vr(vSum)}, 16, {vr(vSum)}")
            e(f"  v_mul_u32_u24 {vr(t0)}, 171, {vr(vSum)}")
            e(f"  v_lshrrev_b32 {vr(t0)}, 9, {vr(t0)}")
            e(f"  v_mad_i32_i24 {vr(t1)}, {vr(t0)}, -3, {vr(vSum)}")
            e(f"  v_lshl_add_u32 {vr(t1)}, {vr(t1)}, 8, {vr(vC16)}")
            e(f"  v_add_u32 {vr(vQA + k)}, {QB}, {vr(t1)}")
            e(f"  v_subrev_u32 {vr(vSu2)}, 384, {vr(t1)}")
            e(f"  v_min_u32 {vr(t1)}, {vr(t1)}, {vr(vSu2)}")
            e(f"  v_mul_u32_u24 {vr(t0)}, 384, {vr(t0)}")
            e(f"  v_add3_u32 {vr(vTA + k)}, {vr(t0)}, {vr(t1)}, s{sT1}")
        e(f"  v_lshl_add_u32 {vr(vSum)}, s{sJ}, 4, {vr(s_)}")
        for n, i in SPECIAL.items():
            run, sx = RUN[n >> 3], 15 * (n & 7 == 7)
            b = int(run == 0)
            g0, g1 = 256 * run + 128 * b + 16 * (n & 7) + sx, chunk_of(b, n, sx)
            dt = 384 * (tidx(b, g1 // 3) - (g0 // 3 - 43 * b - 42 * run))
            e(f"  v_cmp_eq_u32 vcc, {16 * b + sx}, {vr(vSum)}")
            e(f"  v_add_u32 {vr(t0)}, {256 * (g1 - g0) & 0xffffffff:#x}, {vr(voff + (n >> 3))}")
            e(f"  v_add_u32 {vr(t1)}, {toff_(n)}, {vr(vTA + TN[n])}")
            e(f"  v_add_u32 {vr(vSu2)}, {dt & 0xffffffff:#x}, {vr(t1)}")
            e(f"  v_cndmask_b32 {vr(voff + 3 + i)}, {vr(voff + (n >> 3))}, {vr(t0)}, vcc")
            e(f"  v_cndmask_b32 {vr(vTA + 3 + i)}, {vr(t1)}, {vr(vSu2)}, vcc")
        e(f"  v_lshlrev_b32 {vr(vLB)}, 2, v0")
        e(f"  v_add_u32 {vr(vLB)}, {LGB}, {vr(vLB)}")
        e(f"  v_lshrrev_b32 {vr(t1)}, 1, v0")
        e(f"  v_lshlrev_b32 {vr(t1)}, 2, {vr(t1)}")
        e(f"  v_add_u32 {vr(vLB + 1)}, {LGB + 1024}, {vr(t1)}")
        e(f"  v_subrev_u32 {vr(vLG)}, 1536, {vr(vLB)}")
        e(f"  v_subrev_u32 {vr(vLG + 1)}, 1536, {vr(vLB + 1)}")
        e(f"  v_lshlrev_b32 {vr(vPW)}, 2, {vr(w_)}")
        e(f"  s_mov_b32 s{sMSK}, 0xcccccccc")
        e(f"  s_mov_b32 s{sMSK + 1}, s{sMSK}")
        e(f"  s_mov_b32 s{sMSK + 2}, 0xaaaaaaaa")
        e(f"  s_mov_b32 s{sMSK + 3}, s{sMSK + 2}")
        e(f"  s_mov_b32 s{rB + 2}, {HB}")
        e(f"  s_mov_b32 s{rB + 3}, 0x20000")
        e(f"  s_mov_b32 s{sK}, 0")
        if P.ctl:
            e("; progress slots: this wave writes one byte of line (half, w) and samples the lines of the other half")
            die_base(sF)
            e(f"  s_add_u32 s{sT0}, s{sF}, 2048")
            e(f"  v_mov_b32 {vr(vBA)}, s{sT0}")
            e(f"  s_and_b32 s{sT1}, s{sSE}, 2")
            e(f"  s_lshl_b32 s{sT1}, s{sT1}, 9")
            e(f"  s_lshl_b32 s{sT0}, s{sW}, 8")
            e(f"  s_add_u32 s{sT0}, s{sT0}, s{sT1}")
            e(f"  s_add_u32 s{sT0}, s{sT0}, s{sF}")
            e(f"  s_add_u32 s{sT0}, s{sT0}, s{sCU}")
            e(f"  s_and_b32 s{sSE}, s{sSE}, 1")
            e(f"  s_lshl_b32 s{sSE}, s{sSE}, 4")
            e(f"  s_add_u32 s{sT0}, s{sT0}, s{sSE}")
            e(f"  v_mov_b32 {vr(vPS)}, s{sT0}")
            e(f"  s_xor_b32 s{sT1}, s{sT1}, 1024")
            e(f"  s_add_u32 s{sF}, s{sF}, s{sT1}")
            e(f"  v_and_b32 {vr(vN)}, 1, v0")
            e(f"  v_lshl_add_u32 {vr(vN)}, {vr(vN)}, 4, s{sF}")
            for k in range(4):
                e(f"  v_add_u32 {vr(vSum)}, {k}, {vr(w_)}")
                e(f"  v_and_b32 {vr(vSum)}, 3, {vr(vSum)}")
                e(f"  v_lshl_add_u32 {vr(vPL + k)}, {vr(vSum)}, 8, {vr(vN)}")
            e(f"  s_mov_b32 s{sLO}, {(-(LAG + 2) * 0x01010101) & 0xffffffff:#x}")
            for k in range(4 * LAG):
                e(f"  v_mov_b32 {vr(smp + k)}, 0")
            for k in range(2):
                e(f"  v_mov_b32 {vr(vBI + k)}, 0")
            e(f"  v_mov_b32 {vr(vN)}, 0")
            e(f"  s_mov_b32 s{sB}, 0")
            e(f"  s_mov_b32 s{sS}, {P.s0}")
            e(f"  s_mov_b32 s{sI}, 0")
            e(f"  s_mov_b32 s{sCO}, 0")

    def sincos(dst, iv):
        for h in (0, 2):
            e(f"  v_pk_mul_f32 {vr(tA + h, 2)}, {vr(iv + h, 2)}, {vr(tK + 2, 2)} op_sel:[0,1] op_sel_hi:[1,1]")
        if iv == invY:
            for h in (0, 2):
                e(f"  v_pk_mul_f32 {vr(tN + h, 2)}, {vr(tA + h, 2)}, {vr(tK, 2)} op_sel_hi:[1,0]")
        else:
            for h in (0, 2):
                e(f"  v_pk_fma_f32 {vr(tN + h, 2)}, {vr(tA + h, 2)}, {vr(tK, 2)}, {vr(tK, 2)} op_sel:[0,0,1] op_sel_hi:[1,0,1]")
            for h in (0, 2):
                e(f"  v_pk_add_f32 {vr(tN + h, 2)}, {vr(tN + h, 2)}, {vr(tK, 2)} op_sel:[0,1] op_sel_hi:[1,1] neg_lo:[0,1] neg_hi:[0,1]")
            for h in (0, 2):
                e(f"  v_pk_fma_f32 {vr(tN + h, 2)}, {vr(tA + h, 2)}, {vr(tK, 2)}, {vr(tN + h, 2)} op_sel_hi:[1,0,1] neg_lo:[0,0,1] neg_hi:[0,0,1]")
            for h in (0, 2):
                e(f"  v_pk_fma_f32 {vr(tN + h, 2)}, {vr(tA + h, 2)}, {vr(tK + 2, 2)}, {vr(tN + h, 2)} op_sel_hi:[1,0,1]")
        for i in range(4):
            e(f"  v_cos_f32 {vr(tA + i)}, {vr(tN + i)}")
        for i in range(4):
            e(f"  v_sin_f32 {vr(tN + i)}, {vr(tN + i)}")
        for i in range(4):
            e(f"  v_cvt_pk_bf16_f32 {vr(dst + i)}, {vr(tA + i)}, {vr(tN + i)}")

    kp = [int(v) for v in P.kp_.split(",")]

    def chunk(i):
        a = 2 * (i // 3)
        d = tO + 4 * (i & 1)
        bc_ = lambda x, m: f"row_newbcast:{x} row_mask:0xf bank_mask:{m:#x}"
        if i % 3 == 1:
            e(f"  v_mov_b32_dpp {vr(pos)}, {vr(vRF)} {bc_(a + 1, 12)}")
            e(f"  v_add_u32_dpp {vr(vF)}, {vr(vAD)}, {vr(vC8)} {bc_(a, 3)}")
            e(f"  v_add_u32_dpp {vr(vF)}, {vr(vAD)}, {vr(vC8)} {bc_(a + 1, 12)}")
            sincos(d, invY)
            e(f"  ds_write_b128 {vr(vF)}, {vr(d, 4)} offset:{TB + 256}")
        else:
            a += i % 3 // 2
            e(f"  v_mov_b32_dpp {vr(pos)}, {vr(vRF)} {bc_(a, 15)}")
            e(f"  v_add_u32_dpp {vr(vF)}, {vr(vAD)}, {vr(vC16)} {bc_(a, 15)}")
            sincos(d, invX)
            e(f"  ds_write_b128 {vr(vF)}, {vr(d, 4)} offset:{TB}")

    def tab_read(a):
        for n in range(3 * a, 3 * a + 3):
            d = tab + 12 * (a & 1) + 4 * (n % 3)
            if n in SPECIAL:
                e(f"  ds_read_b128 {vr(d, 4)}, {vr(vTA + 3 + SPECIAL[n])}")
            else:
                e(f"  ds_read_b128 {vr(d, 4)}, {vr(vTA + TN[n])} offset:{toff_(n)}")

    c_hi = f32bits(1 / (2 * math.pi))
    c_lo = f32bits(1 / (2 * math.pi) - struct.unpack("<f", struct.pack("<I", c_hi))[0])
    e(f"  v_mov_b32 {vr(tK)}, {c_hi:#x}")
    e(f"  v_mov_b32 {vr(tK + 1)}, {f32bits(1.5 * 2 ** 23):#x}")
    e(f"  v_mov_b32 {vr(tK + 2)}, {c_lo:#x}")
    k_loads(kp[0])
    pf()
    e(f"  s_waitcnt vmcnt({nk[0]})")
    pf()
    for i in range(12):
        if i == P.su:
            setup()
            pf()
        if i < P.nch:
            chunk(i)
        k_loads(kp[i + 1])
        if i % 3 == 2:
            pf()
    k_loads(PRE)
    e(f"  v_mov_b32 {vr(bc)}, {f32bits(-7.5):#x}")
    e("  s_waitcnt lgkmcnt(0)")
    e("  s_barrier")
    pf()
    for k in range(3):
        e(f"  ds_read_b128 {vr(qa + 4 * k, 4)}, {vr(vQA + k)}")
    tab_read(0)
    e(f"  s_waitcnt vmcnt({PRE - ORD['K'][:ORD['K'].index('L')].count('b')})")
    pf()
    if P.tfine:
        e("  s_waitcnt lgkmcnt(0)")
        for k in range(pfn[0]):
            e(f"  v_writelane_b32 {vr(vtr)}, s{PFR[k]}, {k}")
        e(f"  s_mov_b32 m0, {pfn[0]}")

    def vfirst():
        e(f"  s_and_b32 s{sH}, s{sVO}, 15")
        e(f"  s_add_u32 s{sNEED}, s{sH}, 1")
        if "f" in P.xp:
            e(f"  s_mov_b32 s{sNEED}, 1")
        e(f"  ds_read_b32 {vr(vF)}, {vr(vZ)} offset:{FL + 20}")
        flagwait("a0", FL + 20)
        e(f"  s_mulk_i32 s{sH}, 1536")
        for k in range(2):
            e(f"  v_add_u32 {vr(vLV + k)}, s{sH}, {vr(vLB + k)}")
        e(f"  ds_read_b32 {vr(A)}, {vr(vLV)}")

    assert all(x[3] < 14 for x in sch) or "f" in P.xp

    def knext():
        e("; next SRD: K head k + 1, or the V heads of steps 0 / 1 once K runs out")
        e(f"  s_add_u32 s{sH}, s{sK}, 1")
        e(f"  s_sub_u32 s{sT1}, s{sH}, 16")
        vstep_k(sF, sT1)
        e(f"  s_cmp_lt_u32 s{sH}, 16")
        e(f"  s_cselect_b32 s{sH}, s{sH}, s{sF}")
        e(f"  s_cselect_b32 s{sX}, s{sQK}, s{sQV}")
        e(f"  s_cselect_b32 s{sX + 1}, s{sQK + 1}, s{sQV + 1}")
        head_of(sH, sH)
        srd_head(rB, sX, sH)

    def kred(n):
        dpp = lambda d, x, how, m: e(f"  v_add_f32_dpp {vr(d)}, {vr(x)}, {vr(x)} {how} row_mask:0xf bank_mask:{m:#x}")
        dpp(M1, dacc, "row_ror:8", 12 if n & 1 else 3)
        if n % 2 == 1:
            e("  s_nop 1")
            dpp(M2, M1, "row_half_mirror", 10 if n & 2 else 5)
        if n % 4 == 3:
            e("  s_nop 1")
            dpp(M2 if n & 4 else M3, M2, "quad_perm:[2,3,0,1]", 15)
        if n % 8 == 7:
            e(f"  v_cndmask_b32_e64 {vr(M3)}, {vr(M3)}, {vr(M2)}, s[{sMSK}:{sMSK + 1}]")
            e("  s_nop 1")
            dpp((LG, M3, LG + 1)[n >> 3], M3, "quad_perm:[1,0,3,2]", 15)
        if n == 15:
            e(f"  v_cndmask_b32_e64 {vr(LG)}, {vr(LG)}, {vr(M3)}, s[{sMSK + 2}:{sMSK + 3}]")

    e(".p2align 6")
    e("L_k:")

    def kbody(n):
        k_, q_ = ring + 4 * n, qa + 4 * TN[n]
        for i in range(4):
            e(f"  v_dot2_f32_bf16 {vr(wt + i)}, {vr(tab + 12 * (n // 3 & 1) + 4 * (n % 3) + i)}, {vr(q_ + i)}, 0")
        for i in range(4):
            e(f"  v_cvt_f32_i32 {vr(k_ + i)}, {vr(k_ + i)}")
        if n >= 21:
            e(f"  ds_read_b128 {vr(q_, 4)}, {vr(vQA + TN[n])}")
        for h in range(2):
            e(f"  v_pk_add_f32 {vr(k_ + 2 * h, 2)}, {vr(k_ + 2 * h, 2)}, {vr(bc, 2)} op_sel_hi:[1,0]")
        e(f"  v_pk_mul_f32 {vr(dacc, 2)}, {vr(k_, 2)}, {vr(wt, 2)}")
        e(f"  v_pk_fma_f32 {vr(dacc, 2)}, {vr(k_ + 2, 2)}, {vr(wt + 2, 2)}, {vr(dacc, 2)}")
        e(f"  v_add_f32 {vr(dacc)}, {vr(dacc)}, {vr(dacc + 1)}")

    def kout():
        e(f"  v_mov_b32 {vr(vF)}, s{sK}")
        for k in range(2):
            e(f"  ds_write_b32 {vr(vLG + k)}, {vr(LG + k)}")
        e(f"  ds_write_b32 {vr(vPW)}, {vr(vF)} offset:{FL}")

    def group(ph, a, body, after, res):
        nb, pend = 3 * a, None
        od = ORD[ph]
        for i, c in enumerate(od):
            if pend is not None and c != "L":
                if od[i - 1] == "b":
                    e("  s_nop 1")
                after(pend)
                pend = None
            if c == "E":
                evaluate(ph, a)
                if od[i + 1] != "X":
                    decide(ph, a)
            if c == "X":
                exchange(a)
                if od[i - 1] == "E":
                    decide(ph, a)
            if c == "R" and a == 0:
                res()
            if c == "b":
                body(nb)
                pend = nb if after else None
                nb += 1
            if c == "L":
                issue(ph, a, i)
        if pend is not None:
            if od[-1] == "b":
                e("  s_nop 1")
            after(pend)

    for a in range(8):
        if a == 7:
            flagwait("qn", FL + 16)
        else:
            e("  s_waitcnt lgkmcnt(0)")
        tab_read((a + 1) % 8)
        if a == 6:
            e(f"  ds_read_b32 {vr(vF)}, {vr(vZ)} offset:{FL + 16}")
        group("K", a, kbody, kred, kout)
        if a == 1:
            knext()
        if a == 3:
            e(f"  s_add_u32 s{sT0}, s{sK}, 2")
            e(f"  s_min_u32 s{sNEED}, s{sT0}, 16")
            for k in range(3):
                e(f"  v_add_u32 {vr(vQA + k)}, 768, {vr(vQA + k)}")
            for k in range(2):
                e(f"  v_add_u32 {vr(vLG + k)}, 1536, {vr(vLG + k)}")
            e(f"  s_cmp_eq_u32 s{sK}, 15")
            e("  s_cbranch_scc1 L_kv")
            e("L_kw:")
        if a in (3, 7) or P.tfine:
            tr()
    assert sorted(TN[21:]) == [0, 1, 2] and TN[:3] == TN[3:6] and sorted(TN[:3]) == [0, 1, 2] and PRE <= 18
    e(f"  s_add_u32 s{sK}, s{sK}, 1")
    e(f"  s_mov_b64 s[{rA}:{rA + 1}], s[{rB}:{rB + 1}]")
    e(f"  s_cmp_lt_u32 s{sK}, 16")
    e("  s_cbranch_scc1 L_k")


    def vbody(n):
        v_ = ring + 4 * n
        e(f"  v_mov_b32_dpp {vr(bc)}, {vr(A + n // 16)} row_newbcast:{rev(n % 16, 4)} row_mask:0xf bank_mask:0xf")
        for i in range(4):
            e(f"  v_cvt_f32_i32 {vr(v_ + i)}, {vr(v_ + i)}")
        for h in range(2):
            d = 4 * TN[n] + 2 * h
            if n < 3:
                e(f"  v_pk_mul_f32 {vr(tmp + d, 2)}, {vr(v_ + 2 * h, 2)}, {vr(bc, 2)} op_sel_hi:[1,0]")
            else:
                e(f"  v_pk_fma_f32 {vr(acc + d, 2)}, {vr(v_ + 2 * h, 2)}, {vr(bc, 2)}, {vr((tmp if n < 6 else acc) + d, 2)} op_sel_hi:[1,0,1]")

    def vout(last=False):
        for j in range(3):
            e(f"  v_permlane32_swap_b32 {vr(acc + 4 * j)}, {vr(acc + 4 * j + 2)}")
            e(f"  v_permlane32_swap_b32 {vr(acc + 4 * j + 1)}, {vr(acc + 4 * j + 3)}")
        for j in range(3):
            e(f"  v_add_f32 {vr(acc + 4 * j)}, {vr(acc + 4 * j)}, {vr(acc + 4 * ((j + 1) % 3) + 2)}")
            e(f"  v_add_f32 {vr(acc + 4 * j + 1)}, {vr(acc + 4 * j + 1)}, {vr(acc + 4 * ((j + 1) % 3) + 3)}")
        for j in range(3):
            e(f"  v_permlane16_swap_b32 {vr(acc + 4 * j)}, {vr(acc + 4 * j + 1)}")
        for j in range(3):
            e(f"  v_add_f32 {vr(acc + 4 * j)}, {vr(acc + 4 * j)}, {vr(acc + 4 * ((j + 2) % 3) + 1)}")
        for j in range(3):
            e(f"  ds_write_b32 {vr(vPA + j)}, {vr(acc + 4 * j)}")
        if not last:
            e(f"  ds_write_b32 {vr(vPW)}, {vr(M1)} offset:{FL}")

    def vnext():
        e(f"  s_add_u32 s{sT1}, s{sK}, 1")
        e(f"  s_min_u32 s{sT1}, s{sT1}, 15")
        vstep_k(sH, sT1)
        e(f"  s_add_u32 s{sNEED}, s{sH}, 1")
        e(f"  s_mul_i32 s{sF}, s{sH}, 1536")
        head_of(sH, sH)
        srd_head(rB, sQV, sH)
        for k in range(2):
            e(f"  v_add_u32 {vr(vLV + k)}, s{sF}, {vr(vLB + k)}")

    NS, NT = (PRE - PD) // 3, 8 - PD // 3
    assert NS == 1 and NT <= 5 and max(P.mg, P.ml) <= 3 * NT
    e("L_vpre:")
    kout()
    e(f"  s_mov_b32 s{sK}, 0")
    e(f"  v_mov_b32 {vr(M1)}, 16")
    for n in range(3):
        e(f"  s_waitcnt vmcnt({plain[384 + n]})")
        vbody(n)
    e(f"  s_waitcnt vmcnt({plain[387]}) lgkmcnt(0)")
    e("  s_branch L_v1")
    flush()
    e("L_kv:")
    vfirst()
    e("  s_branch L_kw")
    flush()
    e(".p2align 6")
    e("L_v:")
    for a in range(8):
        if a == 1:
            e("L_v1:")
            e(f"  ds_read_b32 {vr(A + 1)}, {vr(vLV + 1)}")
        if a == NT:
            e(f"  s_cmp_eq_u32 s{sK}, 15")
            e("  s_cbranch_scc1 L_vt")
        if a in (5, 7):
            e("  s_waitcnt lgkmcnt(0)")
        if a == 5:
            e(f"  ds_read_b32 {vr(vF)}, {vr(vZ)} offset:{FL + 20}")
        if a == 6:
            flagwait("an", FL + 20)
            e(f"  ds_read_b32 {vr(A)}, {vr(vLV)}")
        group("V", a, vbody, None, vout)
        if a == 1:
            vnext()
        if a == 3:
            e(f"  v_add_u32 {vr(M1)}, 1, {vr(M1)}")
            for j in range(3):
                e(f"  v_add_u32 {vr(vPA + j)}, 3072, {vr(vPA + j)}")
        if a in (3, 7):
            tr()
    e(f"  s_add_u32 s{sK}, s{sK}, 1")
    e(f"  s_mov_b64 s[{rA}:{rA + 1}], s[{rB}:{rB + 1}]")
    e("  s_branch L_v")
    flush()
    e("L_vt:")
    e("  s_waitcnt lgkmcnt(0)")
    for n in range(3 * NT, 24):
        e(f"  s_waitcnt vmcnt({plain[744 + n]})")
        vbody(n)
    tr()
    e("  s_nop 1")
    vout(True)
    e("  s_waitcnt lgkmcnt(0)")
    e("  s_barrier")
    if P.trace:
        e(f"  s_mul_i32 s8, s2, {5 * 256}")
        e("  s_add_u32 s8, s8, 0x100000")
        e(f"  v_lshl_add_u32 {vr(t0)}, v0, 2, s8")
        e(f"  global_store_dword {vr(t0)}, {vr(vtr)}, s[{sWS}:{sWS + 1}]")
    e("  s_endpgm")

    HP = [20, 22, 24, 8, 34, 36, 38, 72]
    ms = [m for m in range(P.r0, P.r1 + 1) if m < P.rf or m > P.rt or (m - P.r0) % P.rp == 0]
    gain = [(P.kp0 if m <= P.kn else P.kp) if m in ms else 0 for m in range(32)]
    if P.rk:
        gain = [int(c, 16) for c in P.rk]
        assert len(gain) == 32 and not any(gain[:P.r0]) and not gain[31]
    msk = sum(1 << m for m in range(32) if gain[m])

    def hp(k):
        if P.hprof:
            e(f"  s_memrealtime s[{HP[k]}:{HP[k] + 1}]")

    def progwait(name, slp, off=FL):
        e(f"L_{name}:")
        e(f"  ds_read_b128 {vr(pr, 4)}, {vr(vZ)} offset:{off}")
        e("  s_waitcnt lgkmcnt(0)")
        e(f"  v_min_u32 {vr(pr)}, {vr(pr)}, {vr(pr + 1)}")
        e(f"  v_min3_u32 {vr(pr)}, {vr(pr)}, {vr(pr + 2)}, {vr(pr + 3)}")
        e("  s_nop 0")
        e(f"  v_readfirstlane_b32 s{sF}, {vr(pr)}")
        e(f"  s_cmp_ge_u32 s{sF}, s{sNEED}")
        e(f"  s_cbranch_scc1 L_{name}_ok")
        budget(f"L_{name}_ok")
        if slp:
            e(f"  s_sleep {slp}")
        e(f"  s_branch L_{name}")
        e(f"L_{name}_ok:")

    def rowred(op, v):
        for n in (8, 4, 2, 1):
            e("  s_nop 1")
            e(f"  {op}_dpp {vr(v)}, {vr(v)}, {vr(v)} row_ror:{n} row_mask:0xf bank_mask:0xf")

    def allred(op, v, t):
        rowred(op, v)
        for sw in ("v_permlane16_swap_b32", "v_permlane32_swap_b32"):
            e(f"  v_mov_b32 {vr(t)}, {vr(v)}")
            e("  s_nop 1")
            e(f"  {sw} {vr(v)}, {vr(t)}")
            e(f"  {op} {vr(v)}, {vr(v)}, {vr(t)}")

    def sum_partials(nq):
        w = 4 * nq
        for k in range(4):
            for q in range(nq):
                e(f"  ds_read_b128 {vr(x + w * k + 4 * q, 4)}, {vr(h0)} offset:{768 * k + 16 * q}")
        e(f"  ds_read_b128 {vr(z4, 4)}, {vr(h1)} offset:{ST}")
        e("  s_waitcnt lgkmcnt(0)")
        for h in range(0, w, 2):
            e(f"  v_pk_add_f32 {vr(x + h, 2)}, {vr(x + h, 2)}, {vr(x + w + h, 2)}")
            e(f"  v_pk_add_f32 {vr(x + 2 * w + h, 2)}, {vr(x + 2 * w + h, 2)}, {vr(x + 3 * w + h, 2)}")
        for h in range(0, w, 2):
            e(f"  v_pk_add_f32 {vr(x + h, 2)}, {vr(x + h, 2)}, {vr(x + 2 * w + h, 2)}")
        for h in range(0, w, 2):
            e(f"  v_pk_add_f32 {vr(x + h, 2)}, {vr(x + h, 2)}, {vr(z4 + 2, 2)} op_sel_hi:[1,0] neg_lo:[0,1] neg_hi:[0,1]")

    def mark(tag):
        if P.sd:
            e("  s_memrealtime s[16:17]")
            e("  s_waitcnt lgkmcnt(0)")
            e("  s_sub_u32 s19, s16, s18")
            e("  s_mov_b32 s18, s16")
            e(f"  s_add_u32 s16, s{sNEED}, {64 - P.sd}")
            e("  s_and_b32 s17, s16, 1")
            e("  s_lshl_b32 s17, s17, 4")
            e("  s_min_u32 s19, s19, 510")
            e("  s_lshl_b32 s19, s19, s17")
            e("  s_lshr_b32 m0, s16, 1")
            e(f"  v_readlane_b32 s17, {vr(vCL)}, m0")
            e("  s_add_u32 s17, s17, s19")
            e(f"  v_writelane_b32 {vr(vCL)}, s17, m0")
        if not P.enc:
            return
        for k, m in enumerate(P.enc.split(",")[:2]):
            e(f"  s_cmp_eq_u32 s{sNEED}, {m}")
            e(f"  s_cbranch_scc0 L_mk{tag}{k}")
            e(f"  s_memrealtime s[{16 + 2 * k}:{17 + 2 * k}]")
            e(f"L_mk{tag}{k}:")

    def rank_post(tag):
        if not P.ctl:
            return
        e(f"  s_bitcmp1_b32 s{sRF}, s{sNEED}")
        e(f"  s_cbranch_scc0 L_fa{tag}")
        e(f"  s_mul_i32 s{sT0}, s{sNEED}, 384")
        e(f"  s_add_u32 s{sT0}, s{sT0}, {W_RK}")
        e(f"  s_mov_b32 s{sB}, 1")
        e(f"  s_atomic_add s{sB}, s[{sWS}:{sWS + 1}], s{sT0} glc")
        e(f"L_fa{tag}:")

    def rank_take(tag):
        if not P.ctl:
            return
        e(f"  s_bitcmp1_b32 s{sRF}, s{sNEED}")
        e(f"  s_cbranch_scc0 L_fb{tag}")
        e("  s_waitcnt lgkmcnt(0)")
        e(f"  s_min_u32 s{sF}, s{sB}, 15")
        e(f"  s_lshl_b32 s{sF}, s{sF}, 1")
        e(f"  s_sub_u32 s{sF}, s{sF}, 15")
        gs = sorted(set(gain) - {0})
        e(f"  s_mov_b32 s{sT0}, {gs[0]}")
        for g_ in gs[1:]:
            e(f"  s_bitcmp1_b32 {sum(1 << m for m in range(32) if gain[m] == g_):#x}, s{sNEED}")
            e(f"  s_cselect_b32 s{sT0}, {g_}, s{sT0}")
        e(f"  s_mul_i32 s{sF}, s{sF}, s{sT0}")
        e(f"  s_add_u32 s{sF}, s{sF}, 8")
        e(f"  s_ashr_i32 s{sF}, s{sF}, 4")
        e(f"  v_mov_b32 {vr(vFX)}, s{sF}")
        e("  s_mov_b64 exec, 1")
        e(f"  global_store_dword {vr(vFB)}, {vr(vFX)}, s[{sWS}:{sWS + 1}]")
        e("  s_mov_b64 exec, -1")
        e(f"L_fb{tag}:")

    HPF = [10, 16, 18, 20, 22, 72, 74, 76, 60, 62]
    hpn = [0]

    def hpf():
        if P.tfine:
            e(f"  s_memrealtime s[{HPF[hpn[0]]}:{HPF[hpn[0]] + 1}]")
            hpn[0] += 1

    e("L_helper:")
    e(f"  s_setprio {P.hp0}")
    e(f"  v_and_b32 {vr(h1)}, 32, v0")
    e(f"  v_lshrrev_b32 {vr(h1)}, 1, {vr(h1)}")
    e(f"  v_add_u32 {vr(sg2)}, s{sC}, {vr(h1)}")
    e(f"  v_mad_u32_u24 {vr(ra)}, {vr(sg2)}, s{sNEED}, {vr(vL16)}")
    e(f"  v_lshrrev_b32 {vr(ra)}, 1, {vr(ra)}")
    hv = []

    def half(p, full):
        if p in (2, 3):
            e(f"  s_mov_b32 exec_hi, {0 if p == 2 else full}")
        if p in (5, 6):
            e(f"  s_mov_b32 exec_lo, {0 if p == 5 else full}")

    def sc_early():
        e(f"  s_and_b32 s{sT1}, s2, 7")
        e(f"  v_lshl_add_u32 {vr(wb)}, s{sT1}, 9, {vr(vL16)}")
        e(f"  v_lshl_add_u32 {vr(ra)}, {vr(sg2)}, 12, {vr(wb)}")
        for p in range(1, 8):
            e(f"  v_add_u32 {vr(ra + p)}, {0x20000 * p:#x}, {vr(ra)}")
        for p in range(8):
            half(p, -1)
            for i, sp in enumerate((sKS, sVS)):
                e(f"  s_mov_b32 m0, {SCB + SA * i + 1024 * p}")
                e("  s_nop 0")
                if "s" not in P.xp:
                    e(f"  global_load_lds_dwordx4 {vr(ra + p)}, s[{sp}:{sp + 1}] {P.sf}")
                    hv.append(("s", p))

    for p in range(1, 8):
        e(f"  v_add_u32 {vr(ra + p)}, {12288 * p}, {vr(ra)}")
    e("  s_mov_b32 exec_lo, 0xffffff")
    e("  s_mov_b32 exec_hi, 0xffffff")
    e("  s_waitcnt lgkmcnt(0)")
    hpf()
    for p in range(8):
        half(p, "0xffffff")
        e(f"  global_load_dwordx2 {vr(rec + 4 * p, 2)}, {vr(ra + (0 if 'q' in P.xp else p))}, s[{sQ}:{sQ + 1}] {P.qf}")
        e(f"  global_load_dwordx2 {vr(rec + 4 * p + 2, 2)}, {vr(ra + (0 if 'q' in P.xp else p))}, s[{sQ}:{sQ + 1}] offset:192 {P.qf}")
        hv.extend([("q", p)] * 2)
    e("  s_mov_b64 exec, -1")
    hpf()
    if P.ss == 0:
        sc_early()
    common()
    e(f"  s_load_dword s{sO}, s[{sRT}:{sRT + 1}], 24")
    e(f"  s_load_dword s{sOH}, s[{sRT}:{sRT + 1}], 16")
    e(f"  v_mov_b32 {vr(l)}, v0")
    for i in range(4):
        e(f"  v_mov_b32 {vr(z4 + i)}, 0")
    e(f"  ds_write_b128 {vr(vZ)}, {vr(z4, 4)} offset:{FL}")
    e(f"  ds_write_b128 {vr(vZ)}, {vr(z4, 4)} offset:{FL + 16}")
    e(f"  ds_write_b128 {vr(vZ)}, {vr(z4, 4)} offset:{FL + 32}")
    e(f"  ds_write_b128 {vr(vZ)}, {vr(z4, 4)} offset:{FL + 48}")
    e(f"  s_mov_b32 s{sMASK}, 0xffff0000")
    e(f"  s_mov_b32 s{sSCALE}, {f32bits(math.log2(math.e) / math.sqrt(192.0)):#x}")
    e(f"  v_mad_u32_u24 {vr(wa)}, {vr(h1)}, 48, {vr(vL16)}")
    e(f"  v_mov_b32 {vr(vOne)}, 1")
    e(f"  s_waitcnt vmcnt({len(hv)})")
    for k in range(4):
        e(f"  v_lshlrev_b32 {vr(cs + k)}, 16, {vr(pr + k)}")
        e(f"  v_and_b32 {vr(cs + 4 + k)}, s{sMASK}, {vr(pr + k)}")
    e("  s_waitcnt lgkmcnt(0)")
    hpf()
    if P.ctl:
        die_base(sF)
        e(f"  v_lshrrev_b32 {vr(h0)}, {P.cw}, {vr(l)}")
        e(f"  v_lshl_add_u32 {vr(vFX)}, {vr(h0)}, 8, s{sF}")
        e(f"  v_and_b32 {vr(h0)}, {(1 << P.cw) - 1}, {vr(l)}")
        e(f"  v_lshl_add_u32 {vr(vFX)}, {vr(h0)}, 4, {vr(vFX)}")
        e(f"  s_and_b32 s{sT1}, s{sSE}, 2")
        e(f"  s_lshl_b32 s{sT0}, s{sT1}, 9")
        e(f"  s_add_u32 s{sT0}, s{sT0}, s{sF}")
        e(f"  v_add_u32 {vr(vEL)}, s{sT0}, {vr(l)}")
        e(f"  s_lshl_b32 s{sT1}, s{sT1}, 1")
        e(f"  s_add_u32 s{sF}, s{sF}, s{sT1}")
        e(f"  s_add_u32 s{sF}, s{sF}, 2048")
        e(f"  v_mov_b32 {vr(vFB)}, s{sF}")
        e(f"  v_mul_u32_u24 {vr(vFA)}, 384, {vr(l)}")
        e(f"  v_add_u32 {vr(vFA)}, {W_RK}, {vr(vFA)}")
        e(f"  s_mov_b32 s{sRF}, 0")

    def ctl_init():
        if not P.ctl:
            return
        if P.cw == 1:
            e("  s_mov_b64 exec, 0x3ffff")
        if P.cw == 2:
            e("  s_mov_b32 exec_hi, 15")
        if P.cl == 1:
            e(f"  global_load_dword {vr(vCNT)}, {vr(vFX)}, s[{sWS}:{sWS + 1}] sc1")
            hv.append(("c", 0))
        e(f"  global_store_dwordx4 {vr(vFX)}, {vr(z4, 4)}, s[{sWS}:{sWS + 1}]")
        if P.cw == 3:
            e("  s_mov_b64 exec, 0xff")
            e(f"  global_store_dwordx4 {vr(vFX)}, {vr(z4, 4)}, s[{sWS}:{sWS + 1}] offset:2048")
            hv.append(("c", 0))
        if P.cl == 2:
            e(f"  global_load_dword {vr(vCNT)}, {vr(vFX)}, s[{sWS}:{sWS + 1}] sc1")
            hv.append(("c", 0))
        e("  s_mov_b64 exec, -1")

    def elect():
        if not P.ctl:
            return
        e(f"  s_cmp_eq_u32 s{sNEED}, {P.r0 - 1}")
        e("  s_cbranch_scc0 L_el")
        e(f"  s_bitcmp0_b32 s{sSE}, 0")
        e("  s_cbranch_scc0 L_el")
        e("  s_mov_b64 exec, 0xffff")
        e(f"  global_load_ubyte {vr(vFX)}, {vr(vEL)}, s[{sWS}:{sWS + 1}] sc1")
        e("  s_waitcnt vmcnt(0)")
        e(f"  v_cmp_ne_u32 s[{sZ}:{sZ + 1}], 0, {vr(vFX)}")
        e(f"  s_lshr_b32 s{sT0}, s{sZ}, s{sCU}")
        e(f"  s_bcnt1_i32_b32 s{sT0}, s{sT0}")
        pat = sum(1 << m for m in range(0, 32, P.rotl))
        e(f"  s_sub_u32 s{sT1}, s{sT0}, 1")
        e(f"  s_cmp_lt_u32 s{sT1}, {P.rotl}")
        e("  s_cbranch_scc0 L_el")
        e(f"  s_lshl_b32 s{sRF}, {pat:#x}, s{sT1}")
        e(f"  s_and_b32 s{sRF}, s{sRF}, {msk:#x}")
        e("L_el:")
        e("  s_mov_b64 exec, -1")

    def patch(what):
        e(f"  s_bfe_u32 s{sT0}, s{sCN + 1}, {(4 << 16) | 8:#x}")
        e(f"  s_bfe_u32 s{sT1}, s{sCN}, {(4 << 16) | 20:#x}")
        e(f"  s_addk_i32 s{sT0}, 160")
        e(f"  s_addk_i32 s{sT1}, 80")
        for p, sh_, ex in ((5, sT0, "exec_hi"), (2, sT1, "exec_lo")):
            if what == "q":
                e(f"  s_mulk_i32 s{sh_}, 384")
                e(f"  v_lshrrev_b32 {vr(h0)}, 1, {vr(vL16)}")
                e(f"  v_add_u32 {vr(h0)}, s{sh_}, {vr(h0)}")
                qmask(1)
                e(f"  s_mov_b32 {ex}, 0")
                e(f"  global_load_dwordx2 {vr(rec + 4 * p, 2)}, {vr(h0)}, s[{sQ}:{sQ + 1}]")
                e(f"  global_load_dwordx2 {vr(rec + 4 * p + 2, 2)}, {vr(h0)}, s[{sQ}:{sQ + 1}] offset:192")
                hv.extend([("q", p)] * 2)
            else:
                e(f"  v_lshl_add_u32 {vr(h0)}, s{sh_}, 12, {vr(wb)}")
                e(f"  s_mov_b32 {ex}, 0")
                for i, sp in enumerate((sKS, sVS)):
                    e(f"  s_mov_b32 m0, {SCB + SA * i + 1024 * p}")
                    e("  s_nop 0")
                    if "s" not in P.xp:
                        e(f"  global_load_lds_dwordx4 {vr(h0)}, s[{sp}:{sp + 1}] {P.sf}")
                        hv.append(("s", p))
            qmask(0)

    def qmask(on):
        if on:
            e("  s_mov_b32 exec_lo, 0xffffff")
            e("  s_mov_b32 exec_hi, 0xffffff")
        else:
            e("  s_mov_b64 exec, -1")

    def rotate(p):
        L, Hh, LC, HS, HC, LS = x, x + 4, x + 8, x + 12, x + 16, x + 20
        qmask(1)
        if p == 0:
            hpf()
        if not ("n" in P.xp and p == 0):
            e(f"  s_waitcnt vmcnt({hv[::-1].index(('q', p))})")
        if p == 0:
            hpf()
        for k in range(4):
            e(f"  v_lshlrev_b32 {vr(L + 2 * k)}, 16, {vr(rec + 4 * p + k)}")
            e(f"  v_and_b32 {vr(L + 2 * k + 1)}, s{sMASK}, {vr(rec + 4 * p + k)}")
        for d, q_, t_ in ((LC, L, cs), (HS, Hh, cs + 4), (HC, Hh, cs), (LS, L, cs + 4)):
            for h in (0, 2):
                e(f"  v_pk_mul_f32 {vr(d + h, 2)}, {vr(q_ + h, 2)}, {vr(t_ + h, 2)}")
        for i in range(4):
            e(f"  v_cvt_pk_bf16_f32 {vr(L + i)}, {vr(LC + i)}, {vr(HS + i)}")
            e(f"  v_cvt_pk_bf16_f32 {vr(Hh + i)}, {vr(HC + i)}, {vr(LS + i)}")
        for k in range(8):
            e(f"  v_lshlrev_b32 {vr(LC + k)}, 16, {vr(L + k)}")
            e(f"  v_and_b32 {vr(L + k)}, s{sMASK}, {vr(L + k)}")
        for h in (0, 2):
            e(f"  v_pk_add_f32 {vr(L + h, 2)}, {vr(LC + h, 2)}, {vr(L + h, 2)} neg_lo:[0,1] neg_hi:[0,1]")
            e(f"  v_pk_add_f32 {vr(Hh + h, 2)}, {vr(HS + h, 2)}, {vr(Hh + h, 2)}")
        for i in range(4):
            e(f"  v_cvt_pk_bf16_f32 {vr(LC + i)}, {vr(L + i)}, {vr(Hh + i)}")
            e(f"  v_cvt_pk_bf16_f32 {vr(HS + i)}, {vr(Hh + i)}, -{vr(L + i)}")
        e(f"  v_mov_b32 {vr(h0)}, {2 * p + 2}")
        e(f"  ds_write_b128 {vr(wa)}, {vr(LC, 4)} offset:{QB + 1536 * p}")
        e(f"  ds_write_b128 {vr(wa)}, {vr(HS, 4)} offset:{QB + 1536 * p + 384}")
        e(f"  ds_write_b32 {vr(vZ)}, {vr(h0)} offset:{FL + 16}")
        qmask(0)

    ctl_init()
    if P.ctl:
        hv.append(("c", 0))
    patch("q")
    e(f"  s_lshl_b32 s{sT0}, s{sJ}, 10")
    e(f"  s_add_u32 s{sT0}, s{sT0}, L_hpos-L_pc")
    e(f"  v_add_u32 {vr(h0)}, s{sT0}, {vr(vT16)}")
    e(f"  global_load_dwordx4 {vr(st4, 4)}, {vr(h0)}, s[{sZ}:{sZ + 1}]")
    hv.append(("h", 0))
    if P.ss == 1:
        sc_early()
    if P.ss <= 1:
        patch("s")
    rotate(0)
    hpf()
    if P.ss == 2:
        sc_early()
        patch("s")
    e("  s_waitcnt lgkmcnt(0)")
    e("  s_setprio 0")
    hpf()
    e("  s_barrier")
    hpf()
    if P.ss == 3:
        sc_early()
        patch("s")
    for p in range(1, 8):
        rotate(p)
    e(f"  v_mov_b32 {vr(vSa)}, 0")
    e(f"  v_min_u32 {vr(u)}, 47, {vr(l)}")
    e(f"  v_lshlrev_b32 {vr(vL16)}, 4, {vr(u)}")
    for i in range(4):
        e(f"  v_mov_b32 {vr(sc + i)}, 0")
    e(f"  s_mov_b32 s{sNEED}, 1")
    e("  s_cmp_eq_u32 s2, 0")
    e("  s_cbranch_scc0 L_rc")
    e(f"  v_mov_b32 {vr(h0)}, {W_REC + 15 * 384 + 4}")
    e(f"  global_load_dword {vr(h1)}, {vr(h0)}, s[{sWS}:{sWS + 1}] sc1")
    if P.ctl:
        e(f"  s_mov_b64 exec, {msk:#x}")
        e(f"  global_store_dword {vr(vFA)}, {vr(vZ)}, s[{sWS}:{sWS + 1}] sc1")
    e("  s_mov_b64 exec, 1")
    e("  s_waitcnt vmcnt(0)")
    e(f"  v_and_b32 {vr(qn)}, 0x77777777, {vr(h1)}")
    e(f"  v_and_b32 {vr(h1)}, 0x88888888, {vr(h1)}")
    e(f"  v_add_u32 {vr(qn)}, 0x11111111, {vr(qn)}")
    e(f"  v_xor_b32 {vr(qn)}, {vr(qn)}, {vr(h1)}")
    e(f"  v_mov_b32 {vr(qn + 1)}, 1")
    e(f"  global_store_dwordx2 {vr(vZ)}, {vr(qn, 2)}, s[{sDBG}:{sDBG + 1}] sc1")
    e("  s_mov_b64 exec, -1")
    e("L_rc:")
    hpf()
    e("  s_waitcnt vmcnt(0)")
    hpf()
    if P.tfine:
        e("  s_waitcnt lgkmcnt(0)")
        e(f"  v_mov_b32 {vr(h0)}, 0")
        for k in range(hpn[0]):
            e(f"  v_writelane_b32 {vr(h0)}, s{HPF[k]}, {k}")
        e(f"  s_mul_i32 s{sT0}, s2, {5 * 256}")
        e(f"  s_add_u32 s{sT0}, s{sT0}, {0x100000 + 1024}")
        e(f"  v_lshl_add_u32 {vr(h1)}, v0, 2, s{sT0}")
        e(f"  global_store_dword {vr(h1)}, {vr(h0)}, s[{sWS}:{sWS + 1}]")
    for k in range(4):
        e(f"  v_and_b32 {vr(ro + 2 * k)}, 0xffff, {vr(st4 + k)}")
        e(f"  v_lshrrev_b32 {vr(ro + 2 * k + 1)}, 16, {vr(st4 + k)}")
    for k in range(2):
        e(f"  v_add_u32 {vr(ro + 6 + k)}, {SCB}, {vr(ro + 6 + k)}")
    if P.sd:
        e(f"  v_mov_b32 {vr(vCL)}, 0")
    e("L_hk:")
    for a in range(2):
        for k in range(2):
            e(f"  ds_read_u16_d16_hi {vr(sc + 2 * a + k)}, {vr(ro + 6 + k)} offset:{SA * a}")
    progwait("hsw", P.psl)
    mark("s")
    rank_post("s")
    for k in range(6):
        e(f"  ds_read_b32 {vr(x + 4 + k)}, {vr(ro + k)} offset:{LGB}")
    e(f"  v_mul_f32 {vr(x + 2)}, s{sSCALE}, {vr(sc)}")
    e(f"  v_mul_f32 {vr(x + 3)}, s{sSCALE}, {vr(sc + 1)}")
    e("  s_waitcnt lgkmcnt(0)")
    e(f"  v_pk_add_f32 {vr(x, 2)}, {vr(x + 4, 2)}, {vr(x + 6, 2)}")
    e(f"  v_pk_add_f32 {vr(x, 2)}, {vr(x, 2)}, {vr(x + 8, 2)}")
    e(f"  v_mul_f32 {vr(x)}, {vr(x)}, {vr(x + 2)}")
    e(f"  v_mul_f32 {vr(x + 1)}, {vr(x + 1)}, {vr(x + 3)}")
    e(f"  v_max_f32 {vr(z4)}, {vr(x)}, {vr(x + 1)}")
    allred("v_max_f32", z4, h0)
    e(f"  v_sub_f32 {vr(x)}, {vr(x)}, {vr(z4)}")
    e(f"  v_sub_f32 {vr(x + 1)}, {vr(x + 1)}, {vr(z4)}")
    e(f"  v_exp_f32 {vr(x)}, {vr(x)}")
    e(f"  v_exp_f32 {vr(x + 1)}, {vr(x + 1)}")
    e("  s_nop 0")
    e(f"  v_add_f32 {vr(z4 + 1)}, {vr(x)}, {vr(x + 1)}")
    e(f"  v_mul_f32 {vr(x)}, {vr(x)}, {vr(sc + 2)}")
    e(f"  v_mul_f32 {vr(x + 1)}, {vr(x + 1)}, {vr(sc + 3)}")
    e(f"  v_add_f32 {vr(z4 + 2)}, {vr(x)}, {vr(x + 1)}")
    for k in range(6):
        e(f"  ds_write_b32 {vr(ro + k)}, {vr(x + (k & 1))} offset:{LGB}")
    e(f"  v_mul_f32 {vr(z4 + 2)}, {f32bits(7.5):#x}, {vr(z4 + 2)}")
    allred("v_add_f32", z4 + 1, h0)
    allred("v_add_f32", z4 + 2, h0)
    e(f"  v_mov_b32 {vr(h0)}, s{sNEED}")
    e(f"  ds_write_b128 {vr(vSa)}, {vr(z4, 4)} offset:{ST}")
    e(f"  ds_write_b32 {vr(vZ)}, {vr(h0)} offset:{FL + 20}")
    e(f"  v_add_u32 {vr(vSa)}, 16, {vr(vSa)}")
    for k in range(8):
        e(f"  v_add_u32 {vr(ro + k)}, {1536 if k < 6 else SL}, {vr(ro + k)}")
    rank_take("s")
    elect()
    e("  s_waitcnt lgkmcnt(0)")
    e(f"  s_add_u32 s{sNEED}, s{sNEED}, 1")
    e(f"  s_cmp_le_u32 s{sNEED}, 16")
    e("  s_cbranch_scc1 L_hk")

    e(f"  v_and_b32 {vr(h2)}, 15, {vr(l)}")
    e(f"  v_lshlrev_b32 {vr(h2)}, 1, {vr(h2)}")
    e(f"  global_load_ushort {vr(h3)}, {vr(h2)}, s[{sRT}:{sRT + 1}] offset:32")
    e(f"  s_mov_b32 s{sK}, 0")
    e(f"  v_min_u32 {vr(wa)}, 23, {vr(l)}")
    e(f"  v_lshlrev_b32 {vr(wa)}, 4, {vr(wa)}")
    e(f"  v_lshlrev_b32 {vr(h0)}, 1, {vr(wa)}")
    e(f"  v_add_u32 {vr(h0)}, {PB}, {vr(h0)}")
    e(f"  v_add_u32 {vr(wa)}, {PK}, {vr(wa)}")
    e(f"  v_lshlrev_b32 {vr(sgn)}, 4, {vr(l)}")
    e(f"  s_mul_i32 s{sT0}, s2, 6144")
    e(f"  s_add_u32 s{sT0}, s{sT0}, {W_REC}")
    e(f"  v_add_u32 {vr(sgx)}, s{sT0}, {vr(sgn)}")
    e(f"  v_add_u32 {vr(sgn)}, {PK}, {vr(sgn)}")
    e(f"  v_add_u32 {vr(sg2)}, 4096, {vr(sgx)}")
    e(f"  v_lshrrev_b32 {vr(u)}, 1, {vr(vL16)}")
    e(f"  s_mul_i32 s{sT0}, s{sOH}, 384")
    e(f"  s_add_u32 s{sOUT}, s{sOUT}, s{sT0}")
    e(f"  s_addc_u32 s{sOUT + 1}, s{sOUT + 1}, 0")
    e(f"  s_lshl_b32 s{sT0}, s{sO}, 4")
    e(f"  s_add_u32 s{sT0}, s{sT0}, {W_REC}")
    e(f"  v_add_u32 {vr(h1)}, {W_REC}, {vr(u)}")
    e("  s_waitcnt vmcnt(0)")
    e(f"  v_or_b32 {vr(h2)}, 15, {vr(h3)}")
    e(f"  v_mul_u32_u24 {vr(h2)}, 384, {vr(h2)}")
    e(f"  v_mul_u32_u24 {vr(h3)}, 384, {vr(h3)}")
    e(f"  v_add_u32 {vr(ra + 15)}, s{sT0}, {vr(h2)}")
    e("  s_nop 0")
    for k in range(15):
        e(f"  v_add_u32_dpp {vr(ra + k)}, {vr(h3)}, {vr(h1)} row_newbcast:{k} row_mask:0xf bank_mask:0xf")
    e("L_hp:")
    e(f"  s_min_u32 s{sT0}, s{sO}, 13")
    e(f"  s_cmp_eq_u32 s{sT0}, s{sK}")
    e("  s_cbranch_scc0 L_hc_ok")
    e("L_hc:")
    e(f"  global_load_dwordx2 {vr(pr, 2)}, {vr(vZ)}, s[{sDBG}:{sDBG + 1}] sc1")
    e("  s_waitcnt vmcnt(0)")
    e(f"  v_readfirstlane_b32 s{sTG}, {vr(pr)}")
    e(f"  v_readfirstlane_b32 s{sF}, {vr(pr + 1)}")
    e(f"  s_cmp_eq_u32 s{sF}, 1")
    e("  s_cbranch_scc1 L_hc_ok")
    budget("L_hc_ok")
    e("  s_sleep 64")
    e("  s_branch L_hc")
    e("L_hc_ok:")
    vstep_k(sH, sK)
    e(f"  s_lshl_b32 s{sT0}, s{sH}, 4")
    e(f"  v_mov_b32 {vr(h1)}, s{sT0}")
    e(f"  s_add_u32 s{sK}, s{sK}, 1")
    e(f"  s_add_u32 s{sNEED}, s{sK}, 16")
    progwait("hpw", P.psl)
    mark("p")
    hp(0)
    rank_post("p")
    sum_partials(2)
    e(f"  v_max3_f32 {vr(h3)}, |{vr(x)}|, |{vr(x + 1)}|, |{vr(x + 2)}|")
    e(f"  v_max3_f32 {vr(h3)}, {vr(h3)}, |{vr(x + 3)}|, |{vr(x + 4)}|")
    e(f"  v_max3_f32 {vr(h3)}, {vr(h3)}, |{vr(x + 5)}|, |{vr(x + 6)}|")
    e(f"  v_max_f32_e64 {vr(h3)}, {vr(h3)}, |{vr(x + 7)}|")
    allred("v_max_f32", h3, wb)
    e(f"  v_frexp_exp_i32_f32 {vr(h3)}, {vr(h3)}")
    e(f"  v_sub_u32 {vr(wb)}, 14, {vr(h3)}")
    e(f"  v_subrev_u32 {vr(h3)}, 14, {vr(h3)}")
    for i in range(8):
        e(f"  v_ldexp_f32 {vr(x + i)}, {vr(x + i)}, {vr(wb)}")
    for i in range(4):
        e(f"  v_cvt_pk_f16_f32 {vr(fo + i)}, {vr(x + 2 * i)}, {vr(x + 2 * i + 1)}")
    for i in range(4):
        e(f"  v_lshrrev_b32 {vr(x + i)}, 1, {vr(fo + i)}")
        e(f"  v_and_b32 {vr(x + i)}, 0x10001, {vr(x + i)}")
        e(f"  v_add_u32 {vr(fo + i)}, {vr(fo + i)}, {vr(x + i)}")
    e(f"  ds_write_b32 {vr(h1)}, {vr(h3)} offset:{ST + 12}")
    e(f"  v_add_u32 {vr(h0)}, 3072, {vr(h0)}")
    e(f"  ds_write_b128 {vr(wa)}, {vr(fo, 4)}")
    e(f"  v_add_u32 {vr(wa)}, 384, {vr(wa)}")
    rank_take("p")
    e(f"  s_cmp_lt_u32 s{sK}, 15")
    e("  s_cbranch_scc1 L_hp")
    if P.eprio:
        e(f"  s_setprio {P.eprio}")
    for k in range(6):
        e(f"  ds_read_b128 {vr(blk + 4 * k, 4)}, {vr(sgn)} offset:{1024 * k}")
    e(f"  v_subrev_u32 {vr(h2)}, 40, {vr(l)}")
    e(f"  v_and_b32 {vr(h2)}, 15, {vr(h2)}")
    e(f"  v_lshlrev_b32 {vr(h2)}, 4, {vr(h2)}")
    e(f"  ds_read_b128 {vr(st4, 4)}, {vr(h2)} offset:{ST}")
    e(f"  s_mov_b32 s{sMASK}, 0x10001")
    e(f"  v_lshlrev_b32 {vr(h2)}, 3, {vr(l)}")
    e(f"  v_lshrrev_b32 {vr(h2)}, {vr(h2)}, s{sTG}")
    e(f"  v_lshrrev_b32 {vr(h3)}, 1, {vr(u)}")
    e(f"  v_lshrrev_b32 {vr(h3)}, {vr(h3)}, s{sTG}")
    for i in range(6):
        src, k = (h2, i) if i < 4 else (h3, i - 4)
        e(f"  v_bfe_u32 {vr(x + i)}, {vr(src)}, {2 * k}, 2")
        e(f"  v_lshl_or_b32 {vr(x + i)}, {vr(x + i)}, 15, {vr(x + i)}")
        e(f"  v_and_b32 {vr(x + i)}, s{sMASK}, {vr(x + i)}")
    e(f"  v_cmp_gt_u32 vcc, 40, {vr(l)}")
    e("  s_waitcnt lgkmcnt(0)")
    e(f"  v_mov_b32 {vr(st4 + 2)}, {vr(st4 + 1)}")
    e(f"  v_mov_b32 {vr(st4 + 1)}, s{sTG}")
    e(f"  s_mov_b32 s{sT0}, 0xffff")
    e(f"  v_bfi_b32 {vr(st4 + 3)}, s{sT0}, {vr(st4 + 3)}, {vr(st4 + 1)}")
    for k in range(24):
        e(f"  v_bfi_b32 {vr(blk + k)}, s{sMASK}, {vr(x + k % 4)}, {vr(blk + k)}")
    for i in range(4):
        e(f"  v_cndmask_b32 {vr(blk + 20 + i)}, {vr(st4 + i)}, {vr(blk + 20 + i)}, vcc")
    e(f"  s_lshl_b32 s{sH}, s{sO}, 4")
    e(f"  v_mov_b32 {vr(h1)}, s{sH}")
    e(f"  v_add_u32 {vr(h0)}, {PB + 15 * 3072}, {vr(vL16)}")
    e(f"  ds_read_b32 {vr(h1)}, {vr(h1)} offset:{ST + 8}")
    e("  s_waitcnt lgkmcnt(0)")
    if P.mg:
        e("; the stores leave late in the last step, so that they reach the memory chips after the stream has ended")
        e(f"  s_mov_b32 s{sNEED}, {31 + (P.mg > 12)}")
        progwait("hmw", P.psl, FL + 32)
    hp(1)
    for k in range(6):
        if k == 5:
            e("  s_mov_b32 exec_hi, 0xffffff")
        e(f"  global_store_dwordx4 {vr(sgx if k < 4 else sg2)}, {vr(blk + 4 * k, 4)}, s[{sWS}:{sWS + 1}] offset:{1024 * (k % 4)} sc1")
    e("  s_mov_b64 exec, -1")
    if P.rw:
        e("L_hw:")
    if P.ml:
        e(f"  s_mov_b32 s{sNEED}, {31 + (P.ml > 12)}")
        progwait("hlw", P.psl, FL + 48)
    else:
        e(f"  s_waitcnt vmcnt({P.aw})")
    hp(2)
    hp(3)
    if not P.rw:
        e("L_hw:")
    hp(4)
    if P.cnt:
        e(f"  s_mov_b32 s{sF}, 1")
        e(f"  s_atomic_add s{sF}, s[{sDBG}:{sDBG + 1}], 16")
    e(f"  global_load_dwordx4 {vr(cs, 4)}, {vr(ra + 15)}, s[{sWS}:{sWS + 1}] sc1")
    for k in range(15):
        e(f"  global_load_dwordx2 {vr(rec + 2 * k, 2)}, {vr(ra + k)}, s[{sWS}:{sWS + 1}] sc1")
    for i in range(4):
        e(f"  v_mov_b32 {vr(fo + i)}, 0")
    e(f"  v_mov_b32 {vr(wb)}, 0")
    budget("L_hy")
    e("  s_waitcnt vmcnt(15)")
    e(f"  v_xor_b32 {vr(h2)}, s{sTG}, {vr(cs + 3)}")
    e(f"  v_xor_b32 {vr(h3)}, s{sTG}, {vr(cs + 1)}")
    e(f"  v_lshrrev_b32 {vr(h2)}, 16, {vr(h2)}")
    e(f"  v_or_b32 {vr(h2)}, {vr(h2)}, {vr(h3)}")
    e(f"  v_cmp_ne_u32 s[{sZ}:{sZ + 1}], 0, {vr(h2)}")
    e(f"  s_cmp_eq_u64 s[{sZ}:{sZ + 1}], 0")
    e("  s_cbranch_scc0 L_hw")
    e("L_hy:")
    e("  s_waitcnt vmcnt(15)")
    hp(5)
    e(f"  v_mov_b32 {vr(h2)}, {vr(cs)}")
    rowred("v_max_f32", h2)
    e(f"  v_sub_f32 {vr(h2)}, {vr(cs)}, {vr(h2)}")
    e(f"  v_exp_f32 {vr(h2)}, {vr(h2)}")
    e(f"  v_bfe_i32 {vr(h3)}, {vr(cs + 3)}, 0, 16")
    e(f"  v_ldexp_f32 {vr(h3)}, {vr(h2)}, {vr(h3)}")
    e(f"  v_mul_f32 {vr(wa)}, {vr(h2)}, {vr(cs + 2)}")
    e(f"  v_readlane_b32 s{sMSK}, {vr(h3)}, 0")
    e(f"  v_readlane_b32 s{sMSK + 15}, {vr(h2)}, 15")
    for k in range(15):
        if k < 14:
            e(f"  v_readlane_b32 s{sMSK + k + 1}, {vr(h3)}, {k + 1}")
        if k < 4:
            e(f"  v_add_f32_dpp {vr(wa)}, {vr(wa)}, {vr(wa)} row_ror:{8 >> k} row_mask:0xf bank_mask:0xf")
        if k == 4:
            e(f"  v_rcp_f32 {vr(wa)}, {vr(wa)}")
        e(f"  s_waitcnt vmcnt({14 - k})")
        for i in range(2):
            e(f"  v_xor_b32 {vr(rec + 2 * k + i)}, {vr(rec + 2 * k + i)}, {vr(x + 4 + i)}")
        for i in range(4):
            e(f"  v_fma_mix_f32 {vr(fo + i)}, {vr(rec + 2 * k + i // 2)}, s{sMSK + k}, {vr(fo + i)} op_sel:[{i & 1},0,0] op_sel_hi:[1,0,0]")
        e(f"  v_or3_b32 {vr(wb)}, {vr(rec + 2 * k)}, {vr(rec + 2 * k + 1)}, {vr(wb)}")
    e(f"  v_and_b32 {vr(wb)}, s{sMASK}, {vr(wb)}")
    e(f"  v_cmp_ne_u32 s[{sZ}:{sZ + 1}], 0, {vr(wb)}")
    e(f"  s_cmp_lg_u32 s{sSP}, 0")
    e(f"  s_cselect_b64 s[{sZ}:{sZ + 1}], s[{sZ}:{sZ + 1}], 0")
    e(f"  s_cmp_eq_u64 s[{sZ}:{sZ + 1}], 0")
    e("  s_cbranch_scc0 L_hw")
    e(f"  v_mul_f32 {vr(h2)}, s{sMSK + 15}, {vr(wa)}")
    e(f"  v_mul_f32 {vr(h3)}, {vr(h2)}, {vr(h1)}")
    for i in range(4):
        e(f"  v_fma_f32 {vr(fo + i)}, {vr(fo + i)}, {vr(wa)}, -{vr(h3)}")
    hp(6)
    e("  s_barrier")
    hp(7)
    for k in range(4):
        e(f"  ds_read_b128 {vr(x + 4 * k, 4)}, {vr(h0)} offset:{768 * k}")
    e("  s_waitcnt lgkmcnt(2)")
    for h in (0, 2):
        e(f"  v_pk_add_f32 {vr(x + h, 2)}, {vr(x + h, 2)}, {vr(x + 4 + h, 2)}")
    e("  s_waitcnt lgkmcnt(0)")
    for h in (0, 2):
        e(f"  v_pk_add_f32 {vr(x + 8 + h, 2)}, {vr(x + 8 + h, 2)}, {vr(x + 12 + h, 2)}")
    for h in (0, 2):
        e(f"  v_pk_add_f32 {vr(x + h, 2)}, {vr(x + h, 2)}, {vr(x + 8 + h, 2)}")
    for i in range(4):
        e(f"  v_fmac_f32 {vr(fo + i)}, {vr(h2)}, {vr(x + i)}")
    e(f"  v_cvt_pk_bf16_f32 {vr(fo)}, {vr(fo)}, {vr(fo + 1)}")
    e(f"  v_cvt_pk_bf16_f32 {vr(fo + 1)}, {vr(fo + 2)}, {vr(fo + 3)}")
    e("  s_mov_b32 exec_hi, 0xffff")
    e(f"  global_store_dwordx2 {vr(u)}, {vr(fo, 2)}, s[{sOUT}:{sOUT + 1}] {P.of}")
    if P.sd:
        e(f"  s_mov_b32 s{sNEED}, 32")
        e("  s_mov_b64 exec, -1")
        mark("z")
        e(f"  s_cmp_eq_u32 s{sJ}, 0")
        e("  s_cbranch_scc0 L_sd")
        e(f"  v_lshlrev_b32 {vr(h0)}, 2, {vr(l)}")
        e("  s_mov_b32 exec_lo, 0")
        e("  s_mov_b32 exec_hi, 0x3fff")
        e(f"  global_atomic_add {vr(h0)}, {vr(vCL)}, s[{sDBG}:{sDBG + 1}] offset:-120 sc1")
        e("L_sd:")
    if P.enc:
        m0, m1, base, amp, wg = [int(v) for v in P.enc.split(",")]
        if m1 == 32:
            e("  s_memrealtime s[18:19]")
        if m0 == 0:
            e(f"  s_mov_b32 s16, s{sST}")
        e("  s_waitcnt lgkmcnt(0)")
        if P.em:
            e(f"  s_not_b32 s17, s{sST}")
            e(f"  s_mov_b32 s16, s{sST}")
            e(f"  s_atomic_umax s18, s[{sDBG}:{sDBG + 1}], 40")
            e(f"  s_atomic_umax s17, s[{sDBG}:{sDBG + 1}], 44")
            e(f"  s_atomic_umax s16, s[{sDBG}:{sDBG + 1}], 48")
        else:
            e("  s_sub_u32 s16, s18, s16")
            e(f"  s_atomic_add s16, s[{sDBG}:{sDBG + 1}], 32")
        e(f"  s_cmp_eq_u32 s2, {wg}")
        e("  s_cbranch_scc0 L_nohold")
        e("L_hold0:")
        e(f"  s_memrealtime s[{sST + 2}:{sST + 3}]")
        e("  s_waitcnt lgkmcnt(0)")
        e(f"  s_sub_u32 s{sT0}, s{sST + 2}, s{sST}")
        e(f"  s_cmp_lt_u32 s{sT0}, 12500")
        e("  s_cbranch_scc1 L_hold0")
        e("  s_mov_b32 s16, 0")
        if P.em:
            e("  s_mov_b32 s17, 0")
            e(f"  s_atomic_add s16, s[{sDBG}:{sDBG + 1}], {48 if P.em == 3 else 40} glc")
            e(f"  s_atomic_add s17, s[{sDBG}:{sDBG + 1}], {48 if P.em == 2 else 44} glc")
            e("  s_waitcnt lgkmcnt(0)")
            if P.em != 2:
                e("  s_not_b32 s17, s17")
            e("  s_sub_u32 s16, s16, s17")
            e("  s_lshl_b32 s16, s16, 8")
        else:
            e(f"  s_atomic_add s16, s[{sDBG}:{sDBG + 1}], 32 glc")
            e("  s_waitcnt lgkmcnt(0)")
        e(f"  s_sub_u32 s16, s16, {base * 256}")
        e("  s_max_i32 s16, s16, 0")
        e("  s_min_i32 s16, s16, 128000")
        e(f"  s_mul_i32 s16, s16, {amp}")
        e("  s_lshr_b32 s16, s16, 8")
        e("  s_add_u32 s16, s16, 13000")
        e("L_hold:")
        e(f"  s_memrealtime s[{sST + 2}:{sST + 3}]")
        e("  s_waitcnt lgkmcnt(0)")
        e(f"  s_sub_u32 s{sT0}, s{sST + 2}, s{sST}")
        e(f"  s_cmp_lt_u32 s{sT0}, s16")
        e("  s_cbranch_scc1 L_hold")
        e("L_nohold:")
        e("  s_waitcnt lgkmcnt(0)")
    if P.hold:
        e("; diagnostic build only")
        e("L_hold:")
        e(f"  s_memrealtime s[{sST + 2}:{sST + 3}]")
        e("  s_waitcnt lgkmcnt(0)")
        e(f"  s_sub_u32 s{sT0}, s{sST + 2}, s{sST}")
        e(f"  s_cmp_lt_u32 s{sT0}, {P.hold}")
        e("  s_cbranch_scc1 L_hold")
    if P.stamp:
        e(f"  s_memrealtime s[{sST + 2}:{sST + 3}]")
        if P.hprof:
            e("  s_waitcnt lgkmcnt(0)")
            e("  s_lshl_b32 s44, s2, 5")
            e("  s_add_u32 s44, s44, 0x80000")
            e("  v_mov_b32 v1, s44")
            for k in range(8):
                e(f"  s_sub_u32 s45, s{sST + 2}, s{HP[k]}")
                e(f"  v_mov_b32 v{4 + k}, s45")
            e(f"  global_store_dwordx4 v1, v[4:7], s[{sWS}:{sWS + 1}]")
            e(f"  global_store_dwordx4 v1, v[8:11], s[{sWS}:{sWS + 1}] offset:16")
            e("  s_nop 2")
        e("  s_getreg_b32 s6, hwreg(HW_REG_XCC_ID)")
        e("  s_getreg_b32 s7, hwreg(HW_REG_HW_ID)")
        e("  s_waitcnt lgkmcnt(0)")
        e(f"  v_mov_b32 v4, s{sST}")
        e(f"  v_mov_b32 v5, s{sST + 2}")
        e("  v_mov_b32 v6, s6")
        e("  v_mov_b32 v7, s7")
        e("  s_lshl_b32 s8, s2, 4")
        e("  v_mov_b32 v1, s8")
        e(f"  global_store_dwordx4 v1, v[4:7], s[{sWS}:{sWS + 1}]")
    e("L_end:")
    e("  s_endpgm")
    e(".p2align 6")
    e(".type L_order,@object")
    e("L_order:")
    for k in range(0, len(ordtab), 8):
        e("  .long " + ", ".join(f"{v:#x}" for v in ordtab[k:k + 8]))
    e(".type L_hpos,@object")
    e("L_hpos:")
    for b in range(2):
        at = {chunk_of(b, n, s_): lpos(n, s_) for n in range(24) for s_ in range(16)}
        rows = sorted({c // 3 for c in at})
        for l_ in range(64):
            r0, r1 = rows[l_], rows[l_ + 64]
            e("  .long " + ", ".join(f"{a_ | b_ << 16:#x}" for a_, b_ in [(at[3 * r0 + k], at[3 * r1 + k]) for k in range(3)] + [(2 * r0, 2 * r1)]))
    e('.section .rodata,"a"')
    e(".p2align 6")
    e(f".amdhsa_kernel {NAME}_kernel")
    e(f"  .amdhsa_next_free_vgpr {NV}")
    e("  .amdhsa_next_free_sgpr 100")
    e(f"  .amdhsa_accum_offset {(NV + 3) // 4 * 4}")
    e("  .amdhsa_group_segment_fixed_size 0")
    e("  .amdhsa_kernarg_size 112")
    e("  .amdhsa_user_sgpr_count 2")
    e("  .amdhsa_user_sgpr_kernarg_segment_ptr 1")
    e("  .amdhsa_system_sgpr_workgroup_id_x 1")
    e(".end_amdhsa_kernel")
    return "\n".join(o) + "\n", NV


if __name__ == "__main__":
    ap = argparse.ArgumentParser()
    ap.add_argument("-o", default=f"/code/{NAME}.s")
    for name, d in (("sh", 4), ("deep", 5), ("pd", 9), ("pre", 12), ("nf", 6), ("su", 3), ("ss", 3), ("hp0", 0), ("tst", 20),
                    ("ctl", 1), ("hi", 0), ("hiv", 5), ("lo", -25), ("thr", 2), ("tp", 2), ("inv", 1), ("start", 5), ("s0", 0), ("ba", 3),
                    ("r0", 2), ("r1", 30), ("rf", 3), ("rp", 2), ("rt", 26), ("rotl", 7), ("kp", 7), ("kp0", 6), ("kn", 20),
                    ("mg", 5), ("ml", 0), ("aw", 0), ("rw", 0), ("cnt", 0), ("em", 0), ("nch", 12), ("cw", 1), ("cl", 0), ("sd", 0),
                    ("eprio", 2), ("psl", 1), ("bound", 4000000), ("hold", 0), ("dly", 0), ("dlb", 2)):
        ap.add_argument("--" + name, type=int, default=d)
    ap.add_argument("--kp_", default="6,6,6,7,8,9,9,10,10,11,11,12,12", help="K loads issued by each prologue point")
    ap.add_argument("--sf", default="nt")
    ap.add_argument("--of", default="")
    ap.add_argument("--wf", default="sc1")
    ap.add_argument("--enc", default="", help="diagnostic only: m0,m1,base,amp,wg")
    ap.add_argument("--qf", default="")
    ap.add_argument("--cf", default="")
    ap.add_argument("--ok", default="REXbLbLbL", help="events of a K group")
    ap.add_argument("--ov", default="REXbLbLbL", help="events of a V group")
    ap.add_argument("--vo", default="201")
    ap.add_argument("--tb", default="", help="first:last:bias, times 2 / -1 for workgroups that finish in / outside the last block")
    ap.add_argument("--rk", default="", help="die gain per step (hex digits, 0 = no ranking)")
    ap.add_argument("--sb", default="", help="step:bias,... added to the lateness")
    ap.add_argument("--bu", default="012", help="extra depth per position in the issued group")
    ap.add_argument("--th", default="-9,5,13")
    ap.add_argument("--sch", default="sch_np.txt")
    ap.add_argument("--xp", default="", help="timing experiments only")
    for name in ("stamp", "trace", "tfine", "hprof"):
        ap.add_argument("--" + name, action="store_true", help="diagnostics only")
    a = ap.parse_args()
    txt, nv = gen(a)
    open(a.o, "w").write(txt)
    print("wrote", a.o, "vgprs", nv)
```

```python
import argparse
import math
import os
import struct
from gen import HEADER, NAME, Alloc, f32bits, vr

HB = 2048 * 768

ABOUT = """
Generated by tools/gen9.py.
Work split: workgroup (cluster c, block m, member b) handles 128 rows of the 256-row block m for 16 heads 16 k + c
  (slots k = 5 and 10 take their head from a table instead of c); the two members alternate over 32 KiB runs.
  Waves 1-4 stream one 4 KiB block per round; a 16-lane row handles one third (64 dims) of a KV row per load.
  K sweep: logit = k_scale * sum_d (qk - 7.5) * (qa * cos + qb * sin), RoPE moved onto the rotated q;
  V sweep: partial = sum_rows p * v_scale * qv.
  Wave 0 (helper) rotates q, takes max / exp / sums over the workgroup's rows of each head, and merges partials.
Constant parameters (the same for every seed) are built in: both zero points (7.5), q_cos / q_sin (table L_qcs) and
  k_cos / k_sin = bf16(cos / sin(fp32(row * inv_freq))), evaluated once per workgroup from the table L_inv into LDS.
Hand-off: every workgroup finishes one of its heads and streams that head last.  Partials and (max, sum) of
  the other 15 go to d_ws with sc1 stores, then a counted atomic; the finisher rescales all 16 to the true row maximum.
Flow control (speed only, results do not depend on it): waves publish a group counter and sample the counters of
  units on the same die; late waves keep one more load in flight, early waves one or two fewer.  Helpers rank the dies.
"""

RUN = (1, 2, 0)


def chunk_of(b, n, s):
    g = 256 * RUN[n >> 3] + 128 * b + 16 * (n & 7) + s
    return {128: 512, 255: 639, 512: 128, 639: 255}.get(g, g)


def tidx(b, row):
    return row - 43 * b - 42 * ((row >= 85) + (row >= 171))


def rev(x, bits):
    return int(format(x, f"0{bits}b")[::-1], 2)


def lpos(n, s):
    return 4 * (16 * s + rev(n, 4)) if n < 16 else 1024 + 4 * (8 * s + rev(n - 16, 3))


TN = [(RUN[n >> 3] + (n & 7)) % 3 for n in range(24)]
SPECIAL = {n: i for i, n in enumerate(sorted(8 * RUN.index(r) + i for r in (0, 2) for i in (0, 7)))}
for b_ in range(2):
    ch = sorted(chunk_of(b_, n, s) for n in range(24) for s in range(16))
    assert ch == sorted(3 * r + k for r in {c // 3 for c in ch} for k in range(3))
    assert all(chunk_of(b_, n, s) % 3 == (TN[n] + 2 * b_ + s) % 3 for n in range(24) for s in range(16))
    assert len({tidx(b_, c // 3) for c in ch}) == 128 and max(tidx(b_, c // 3) for c in ch) == 128


def gen(P):
    o = []
    e = o.append
    RING, PD = 24, P.pd
    sh, deep = P.sh, P.deep
    PRE = P.pre
    TP = P.tp
    LAG = 2
    assert deep <= PD - 1 and sh <= deep and PD <= PRE
    SL = 512
    SA = 16 * SL

    FL = 0
    ST = 256
    TB = 512
    QB = TB + 129 * 384
    LGB = QB + 16 * 768 + 1536
    SCB = LGB + 16 * 1536
    PB = SCB + 2 * SA
    PK = PB + 49152
    LDS = PK + 6144
    assert 81920 < LDS <= 163840
    W_REC = 0x400000
    W_CNT = 0x700000
    W_RK = 0x780000
    W_PL = 0x7c0000

    sQ, sQK, sKS, sKZ, sQV, sVS, sVZ, sQC = 4, 6, 8, 10, 12, 14, 16, 18
    sQS, sKC, sKSN, sOUT = 20, 22, 24, 26
    sDBG, sWS = 28, 30
    rA, rB = 32, 36
    sW, sJ, sC, sK, sT0, sT1, sF, sNEED = 40, 41, 42, 43, 44, 45, 46, 47
    sMSK = 48
    sOF = 51
    sPB = 60
    sCO = 61
    sZ = 64
    sMASK, sSCALE, sH = 66, 67, 68
    sS = 69
    sX = 70
    sRF = 80
    sRT = 82
    sST = 84
    sN = 90
    sB = 91
    sVO = 92
    sSP = 94
    sI = 95
    sSE, sCU = 81, 79
    sLO = 78
    sO = 3
    sCN = 96
    sOH, sCT = 98, 99

    va = Alloc(1)
    vT16, vF, vZ, vC16 = [va.take(1) for _ in range(4)]
    voff = va.take(7)
    vTA = va.take(7)
    vQA = va.take(3)
    vPA = va.take(3)
    vLG = va.take(2)
    vLB = va.take(2)
    vLV = va.take(2)
    A = va.take(2)
    LG = va.take(2)
    M1, M2, M3 = [va.take(1) for _ in range(3)]
    bc = va.take(2, 2)
    dacc = va.take(2, 2)
    wt = va.take(4, 2)
    vtr, vPW, vPS, vN, vSum, vSu2, vBA = [va.take(1) for _ in range(7)]
    vPL = va.take(4)
    vBI = va.take(2, 2)
    smp = va.take(8, 4)
    qa = va.take(12, 4)
    tab = va.take(24, 4)
    tmp = va.take(12, 4)
    ring = va.take(4 * RING, 4)
    NV = va.n
    acc = qa

    here = os.path.dirname(os.path.abspath(__file__))
    sch = [[int(x) for x in ln.split()] for ln in open(os.path.join(here, P.sch))]
    inv, qcs = [[int(x, 16) for x in ln.split()] for ln in open(os.path.join(here, "consts.txt"))]
    cj = lambda g: (g >> 4, (g & 7) * 2 + ((g >> 3) & 1))
    ent = {g: sch[16 * cj(g)[0] + cj(g)[1]] for g in range(256)}
    cl = lambda g, k: ent[g][0] if k == 5 else ent[g][1] if k == 10 else g >> 4
    assert sorted(16 * ent[g][2] + cl(g, ent[g][2]) for g in range(256)) == list(range(256))
    ordtab = []
    for g in range(256):
        o_, od = ent[g][2], ent[g][3:]
        assert sorted(od) == list(range(16)) and od[15] == o_
        con = [x for x in range(256) if x != g and cl(x, o_) == cl(g, o_)] + [g]
        assert sorted(cj(x)[1] for x in con) == list(range(16))
        nib = sum(k << (4 * t) for t, k in enumerate(range(16) if "i" in P.xp else od))
        cn = sum((g >> 4 if "c" in P.xp else cl(g, k)) << (4 * k) for k in range(16))
        ctr = [g >> 4, 16 + cl(g, 5), 32 + cl(g, 10)]
        first = {5: 1, 10: 2}.get(o_, 0)
        ctr = [ctr[first]] + [x for i, x in enumerate(ctr) if i != first]
        u16 = [16 * x + ent[x][3:].index(o_) for x in con]
        assert all(v % 16 < 15 for v in u16[:15])
        ordtab += [nib & 0xffffffff, nib >> 32, cn & 0xffffffff, cn >> 32, 16 * o_ + cl(g, o_), ctr[0] | ctr[1] << 8 | ctr[2] << 16, o_, 0]
        ordtab += [u16[2 * i] | u16[2 * i + 1] << 16 for i in range(8)]

    def ld(n):
        rr = rA if n < 24 else rB
        n %= 24
        so = f"s{sOF + (n & 7)}" if n & 7 else "0"
        vo = voff + (3 + SPECIAL[n] if n in SPECIAL and "x" not in P.xp else n >> 3)
        e(f"  buffer_load_dwordx4 {vr(ring + 4 * n, 4)}, {vr(vo)}, s[{rr}:{rr + 3}], {so} offen nt")

    ORD = {"K": P.ok, "V": P.ov}
    DIST = {"K": PRE, "V": PD}
    bu = [int(x) for x in P.bu]
    th = [int(x) for x in P.th.split(",")]
    assert PD % 3 == 0 and PRE % 3 == 0 and deep == sh + 1

    def memops(ph, a):
        r = []
        for i, c in enumerate(ORD[ph]):
            if c == "X" and P.ctl:
                r += [(i, "B")] * (a == P.ba) + [(i, "S"), (i, "Q")]
            if c == "L":
                r.append((i, "L"))
        return r

    def back(ph, a, i):
        r = [c for j, c in memops(ph, a) if j < i][::-1]
        for k in range(1, 8):
            r += [c for _, c in memops(ph, (a - k) % 8)][::-1]
        return r

    def cnt(ph, a, i, depth):
        depth += bu[ORD[ph][:i].count("L")]
        r = back(ph, a, i)
        return [k + 1 for k, c in enumerate(r) if c == "L"][depth - 2] if depth > 1 else 0

    def swait(ph, a):
        assert ORD[ph].index("E") < ORD[ph].index("X")
        r = back(ph, a, ORD[ph].index("E"))
        return [k for k, c in enumerate(r) if c == "Q"][LAG - 1]

    plain = {}

    def verify():
        ops = [("L", i) for i in range(PRE)]
        done = ORD["K"][:ORD["K"].index("L")].count("b")
        for g in range(256):
            ph, a = "KV"[g >= 128], g % 8
            if 3 * g + PD >= 768 or 128 <= g < 128 + (PRE - PD) // 3:
                for n in range(3 * g, 3 * g + 4 - (g == 255)):
                    plain[n] = len(ops) - 1 - ops.index(("L", n))
                done = max(done, len(ops) - plain[min(3 * g + 3, 767)])
                continue
            nb = nl = 3 * g
            for i, c in enumerate(ORD[ph]):
                if c == "E" and P.ctl:
                    done = max(done, len(ops) - swait(ph, a))
                if c == "X" and P.ctl:
                    ops += [("X", 0)] * (1 + (a == P.ba))
                if c == "b":
                    assert ("L", nb) in ops[:done], nb
                    nb += 1
                if c == "L":
                    done = max(done, len(ops) - cnt(ph, a, i, deep if P.ctl else sh))
                    ops.append(("L", nl + DIST[ph]))
                    nl += 1
    verify()
    lab = [0]
    rare = []

    def flush():
        o.extend(rare)
        rare.clear()

    def issue(ph, a, i):
        j = ORD[ph][:i].count("L")
        lab[0] += 1
        if P.ctl and j == TP:
            e(f"  s_cmp_lt_i32 s{sS}, {P.lo}")
            e(f"  s_cbranch_scc1 L_t{lab[0]}")
            rare.extend([f"L_t{lab[0]}:", f"  s_waitcnt vmcnt({cnt(ph, a, i, P.thr + 1)})", f"  s_branch L_p{lab[0]}"])
        if P.ctl:
            t = (P.hi if ph == "K" else P.hiv) + th[j]
            assert t >= P.lo
            e(f"  s_cmp_gt_i32 s{sS}, {t}")
            if t < 0 and P.inv:
                e(f"  s_cbranch_scc0 L_q{lab[0]}")
                rare.extend([f"L_q{lab[0]}:", f"  s_waitcnt vmcnt({cnt(ph, a, i, sh)})", f"  s_branch L_p{lab[0]}"])
                e(f"  s_waitcnt vmcnt({cnt(ph, a, i, deep)})")
                e(f"L_p{lab[0]}:")
            else:
                e(f"  s_cbranch_scc1 L_p{lab[0]}")
                e(f"  s_waitcnt vmcnt({cnt(ph, a, i, sh)})")
                e(f"L_p{lab[0]}:")
                e(f"  s_waitcnt vmcnt({cnt(ph, a, i, deep)})")
        else:
            e(f"  s_waitcnt vmcnt({cnt(ph, a, i, sh)})")
        ld(3 * a + j + DIST[ph])

    def evaluate(ph, a):
        if not P.ctl:
            return
        sm = smp + 4 * (a % LAG)
        e(f"  s_waitcnt vmcnt({swait(ph, a)})")
        if a == (P.ba + LAG) % 8:
            e(f"  v_add_u32 {vr(vBI)}, {vr(vBI)}, {vr(vBI + 1)}")
        e(f"  s_add_u32 s{sT0}, s{sLO}, 0x03030303")
        e(f"  v_msad_u8 {vr(vSum)}, s{sLO}, {vr(sm)}, 0")
        e(f"  v_msad_u8 {vr(vSu2)}, s{sT0}, {vr(sm)}, 0")
        if a == (P.ba + LAG) % 8:
            e(f"  v_readfirstlane_b32 s{sB}, {vr(vBI)}")
        for k in range(1, 3):
            e(f"  v_msad_u8 {vr(vSum)}, s{sLO}, {vr(sm + k)}, {vr(vSum)}")
            e(f"  v_msad_u8 {vr(vSu2)}, s{sT0}, {vr(sm + k)}, {vr(vSu2)}")
        e(f"  v_sub_u32 {vr(vSum)}, {vr(vSum)}, {vr(vSu2)}")
        e(f"  s_add_u32 s{sLO}, s{sLO}, 0x01010101")
        e(f"  v_readlane_b32 s{sMASK}, {vr(vSum)}, 0")
        e(f"  v_readlane_b32 s{sSCALE}, {vr(vSum)}, 1")

    def decide(ph, a):
        if not P.ctl:
            return
        cur, old = (sI, sCO) if a & 1 else (sCO, sI)
        e(f"  s_add_u32 s{cur}, s{sMASK}, s{sSCALE}")
        e(f"  s_add_u32 s{sS}, s{cur}, s{old}")
        if P.kc and a == P.ka:
            e(f"  v_mov_b32 {vr(vSum)}, s{sS}")
            e(f"  ds_write_b32 {vr(vPW)}, {vr(vSum)} offset:{FL + 32}")
        e(f"  s_ashr_i32 s{sS}, s{sS}, 1")
        e(f"  s_add_u32 s{sS}, s{sS}, s{sB}")
        if P.kd and a == P.ka and ph == "V":
            e(f"  s_mul_i32 s{sT0}, s{sB}, {P.kb}")
            e(f"  s_add_u32 s{sT0}, s{sT0}, s{sS}")
            e(f"  v_mov_b32 {vr(vSum)}, s{sT0}")
            e(f"  ds_write_b32 {vr(vPW)}, {vr(vSum)} offset:{FL + 32}")
        if ph == "K" and a < P.start:
            e(f"  s_cmp_eq_u32 s{sK}, 0")
            e(f"  s_cselect_b32 s{sS}, {P.s0}, s{sS}")

    def exchange(a):
        if not P.ctl:
            return
        e("  s_mov_b64 exec, 1")
        if a == P.ba:
            e(f"  global_load_dwordx2 {vr(vBI, 2)}, {vr(vBA)}, s[{sWS}:{sWS + 1}] sc1")
        e(f"  global_store_byte {vr(vPS)}, {vr(vN)}, s[{sWS}:{sWS + 1}]")
        e("  s_mov_b64 exec, 3")
        e(f"  global_load_dwordx3 {vr(smp + 4 * (a % LAG), 3)}, {vr(vPL + a % 4)}, s[{sWS}:{sWS + 1}] sc1")
        e(f"  v_add_u32 {vr(vN)}, 1, {vr(vN)}")
        e("  s_mov_b64 exec, -1")

    def srd_head(rr, sp, sh_):
        e(f"  s_mul_i32 s{sT0}, s{sh_}, {HB}")
        e(f"  s_add_u32 s{rr}, s{sp}, s{sT0}")
        e(f"  s_addc_u32 s{rr + 1}, s{sp + 1}, 0")

    def vstep_k(dst, src):
        e(f"  s_lshl_b32 s{dst}, s{src}, 2")
        e(f"  s_lshr_b64 s[{sZ}:{sZ + 1}], s[{sVO}:{sVO + 1}], s{dst}")
        e(f"  s_and_b32 s{dst}, s{sZ}, 15")

    def head_of(dst, slot):
        e(f"  s_lshl_b32 s{sT0}, s{slot}, 2")
        e(f"  s_lshr_b64 s[{sZ}:{sZ + 1}], s[{sCN}:{sCN + 1}], s{sT0}")
        e(f"  s_and_b32 s{sZ}, s{sZ}, 15")
        e(f"  s_lshl4_add_u32 s{dst}, s{slot}, s{sZ}")

    def budget(ok):
        e(f"  s_cmp_eq_u32 s{sSP}, 0")
        e(f"  s_cbranch_scc1 {ok}")
        e(f"  s_sub_u32 s{sSP}, s{sSP}, 1")

    def flagwait(name, off):
        e(f"L_{name}:")
        e("  s_waitcnt lgkmcnt(0)")
        e(f"  v_readfirstlane_b32 s{sF}, {vr(vF)}")
        e(f"  s_cmp_ge_u32 s{sF}, s{sNEED}")
        e(f"  s_cbranch_scc0 L_{name}_no")
        e(f"L_{name}_ok:")
        rare.extend([f"L_{name}_no:", f"  s_cmp_eq_u32 s{sSP}, 0", f"  s_cbranch_scc1 L_{name}_ok", f"  s_sub_u32 s{sSP}, s{sSP}, 1",
                     f"  ds_read_b32 {vr(vF)}, {vr(vZ)} offset:{off}", f"  s_branch L_{name}"])

    def tr():
        if P.trace:
            e(f"  {'s_memtime' if 'm' in P.xp else 's_memrealtime'} s[88:89]")
            e("  s_waitcnt lgkmcnt(0)")
            e(f"  v_writelane_b32 {vr(vtr)}, s88, m0")
            e("  s_add_u32 m0, m0, 1")
            e("  s_min_u32 m0, m0, 63")

    def die_base(dst):
        e(f"  s_getreg_b32 s{sSE}, hwreg(HW_REG_HW_ID, 8, 7)")
        e(f"  s_getreg_b32 s{dst}, hwreg(HW_REG_XCC_ID, 0, 3)")
        e(f"  s_and_b32 s{sCU}, s{sSE}, 15")
        e(f"  s_lshr_b32 s{sSE}, s{sSE}, 5")
        e(f"  s_mul_i32 s{dst}, s{dst}, 4352")
        e(f"  s_add_u32 s{dst}, s{dst}, {W_PL}")

    ha = Alloc(16)
    l, u, h0, h1, h2, h3 = [ha.take(1) for _ in range(6)]
    qo, wa, wb, sgn, sgx, sg2 = [ha.take(1) for _ in range(6)]
    ro = ha.take(8)
    vL16, vCNT, vDB, vOne, vFA, vFI, vFR, vFX, vFB, vEL, vCL, vSa = [ha.take(1) for _ in range(12)]
    z4 = ha.take(4, 4)
    cs = ha.take(8, 4)
    sc = ha.take(4, 4)
    qn = ha.take(4, 4)
    x = ha.take(32, 4)
    pr = ha.take(4, 4)
    fo = ha.take(4, 4)
    rec = ha.take(32, 4)
    blk = ha.take(24, 4)
    st4 = ha.take(4, 4)
    ra = ha.take(16)
    assert ha.n <= NV and vZ < 16

    invX, invY, tK, tA, tN, tO = tmp, tmp + 4, tmp + 8, tab, tab + 4, tab + 8
    PC0 = 20 + 8 * P.stamp + 16 * (P.dly > 0)
    D_INV, D_QCS, D_END = 256, 768, 1152
    NF = P.nf
    assert RUN[0] == 1 and NF <= 8
    e(HEADER.rstrip("\n"))
    e(f"; @launch grid=(256,1,1) block=(320,1,1) lds={LDS}")
    for ln in ABOUT.strip("\n").split("\n"):
        e("; " + ln)
    e('.amdgcn_target "amdgcn-amd-amdhsa--gfx950"')
    e(".text")
    e(f".globl {NAME}_kernel")
    e(".p2align 8")
    e(f".type {NAME}_kernel,@function")
    e(f"{NAME}_kernel:")
    e("  s_cmpk_ge_u32 s2, 0x100")
    e("  s_cbranch_scc1 L_end")
    if P.dly:
        e("; diagnostic build only: half of the dies start late")
        e(f"  s_getreg_b32 s4, hwreg(HW_REG_XCC_ID, {P.dlb}, 1)")
        e("  s_cmp_eq_u32 s4, 0")
        e("  s_cbranch_scc1 L_dly")
        e(f"  s_sleep {P.dly}")
        e("L_dly:")
    if P.stamp:
        e(f"  s_memrealtime s[{sST}:{sST + 1}]")
    e("  s_load_dwordx16 s[4:19], s[0:1], 0")
    e(f"  s_getpc_b64 s[{sZ}:{sZ + 1}]")
    e("L_pc:")
    e("  v_cmp_gt_u32 vcc, 64, v0")
    e(f"  v_lshlrev_b32 {vr(vT16)}, 4, v0")
    e(f"  s_lshr_b32 s{sC}, s2, 4")
    e(f"  s_and_b32 s{sH}, s2, 7")
    e(f"  s_lshl3_add_u32 s{sH}, s{sC}, s{sH}")
    e(f"  s_movk_i32 s{sNEED}, 768")
    e("  s_cbranch_vccz L_s0")
    e(f"  v_lshl_add_u32 {vr(h0)}, s{sC}, 6, v0")
    e(f"  v_mul_u32_u24 {vr(h0)}, {P.tst}, {vr(h0)}")
    e(f"  global_load_dword {vr(h3)}, {vr(h0)}, s[{sZ}:{sZ + 1}] offset:{D_END - PC0} {P.cf}")
    e(f"  v_and_b32 {vr(vL16)}, 0x1f0, {vr(vT16)}")
    e(f"  global_load_dwordx4 {vr(pr, 4)}, {vr(vL16)}, s[{sZ}:{sZ + 1}] offset:{D_QCS - PC0}")
    e("  s_branch L_helper")
    e("L_s0:")
    e(f"  v_and_b32 {vr(vC16)}, 0xf0, {vr(vT16)}")
    e(f"  global_load_dwordx4 {vr(invX, 4)}, {vr(vC16)}, s[{sZ}:{sZ + 1}] offset:{D_INV - PC0}")
    e(f"  global_load_dwordx4 {vr(invY, 4)}, {vr(vC16)}, s[{sZ}:{sZ + 1}] offset:{D_INV + 256 - PC0}")
    e(f"  s_mul_i32 s{sT0}, s{sH}, 196608")
    e(f"  s_and_b32 s{sT1}, s2, 8")
    e(f"  s_lshl_b32 s{sT1}, s{sT1}, 12")
    e(f"  s_add_u32 s{sT0}, s{sT0}, s{sT1}")
    e(f"  s_add_u32 s{sT0}, s{sT0}, {65536 * RUN[0] - 1024 + 4096}")
    e(f"  v_add_u32 {vr(tA)}, s{sT0}, {vr(vT16)}")
    for k in range(1, (NF + 1) // 2):
        e(f"  v_add_u32 {vr(tA + k)}, {8192 * k}, {vr(tA)}")
    e("  s_waitcnt lgkmcnt(0)")
    for n in range(NF):
        e(f"  global_load_dwordx4 {vr(ring + 4 * n, 4)}, {vr(tA + n // 2)}, s[{sQK}:{sQK + 1}] offset:{4096 * (n % 2) - 4096} nt")
    e("  s_branch L_s1")
    e("L_b0:")
    e(f".if (L_b0 - {NAME}_kernel > {D_INV}) || (L_pc - {NAME}_kernel != {PC0})")
    e('.error "entry block layout"')
    e(".endif")
    e(".p2align 8")
    e(".type L_inv,@object")
    e("L_inv:")
    tb = inv[:64] + inv[64:] + inv[64:]
    for k in range(0, 128, 8):
        e("  .long " + ", ".join(f"{v:#x}" for v in tb[k:k + 8]))
    e(".type L_qcs,@object")
    e("L_qcs:")
    for k in range(0, 96, 8):
        e("  .long " + ", ".join(f"{v:#x}" for v in qcs[k:k + 8]))

    def common():
        e(f"  s_load_dwordx8 s[24:31], s[0:1], 80")
        e(f"  s_lshl_b32 s{sT0}, s2, 6")
        e(f"  s_add_u32 s{sT0}, s{sT0}, L_order-L_pc")
        e(f"  s_add_u32 s{sRT}, s{sZ}, s{sT0}")
        e(f"  s_addc_u32 s{sRT + 1}, s{sZ + 1}, 0")
        e(f"  s_load_dwordx2 s[{sVO}:{sVO + 1}], s[{sRT}:{sRT + 1}], 0")
        e(f"  s_load_dwordx2 s[{sCN}:{sCN + 1}], s[{sRT}:{sRT + 1}], 8")
        e(f"  v_mov_b32 {vr(vZ)}, 0")
        e(f"  s_mov_b32 s{sSP}, {P.bound}")
        e(f"  s_bfe_u32 s{sJ}, s2, 0x10003")

    PFR = [8, 10, 14, 16, 18, 20, 22, 72, 74, 76, 4, 86]
    pfn = [0]

    def pf():
        if P.tfine:
            e(f"  {'s_memtime' if 'm' in P.xp else 's_memrealtime'} s[{PFR[pfn[0]]}:{PFR[pfn[0]] + 1}]")
            pfn[0] += 1

    e("L_s1:")
    w_, s_, vAD, vC8, t0, t1 = wt, wt + 1, wt + 2, wt + 3, dacc, dacc + 1
    vRF, pos = vT16, tK + 3
    if P.trace:
        e(f"  v_mov_b32 {vr(vtr)}, 0")
        e("  s_mov_b32 m0, 0")
    pf()
    e("  v_subrev_u32 v0, 64, v0")
    e("  s_setprio 1")
    common()
    e(f"  v_lshrrev_b32 {vr(w_)}, 6, v0")
    e(f"  v_lshrrev_b32 {vr(s_)}, 4, v0")
    e(f"  v_and_b32 {vr(vC8)}, 0x70, {vr(vC16)}")
    e(f"  v_readfirstlane_b32 s{sW}, {vr(w_)}")
    e(f"  v_add_u32 {vr(vAD)}, {vr(vC8)}, {vr(s_)}")
    e(f"  s_mul_i32 s{sT0}, s{sJ}, 44")
    e(f"  s_sub_u32 s{sT0}, 86, s{sT0}")
    e(f"  v_cmp_eq_u32 vcc, s{sT0}, {vr(vAD)}")
    e(f"  v_mov_b32 {vr(t0)}, 0x80")
    e(f"  s_and_b32 s{sH}, s2, 7")
    e(f"  v_cndmask_b32 {vr(vAD)}, {vr(vAD)}, {vr(t0)}, vcc")
    e(f"  v_mul_u32_u24 {vr(t0)}, 381, {vr(vAD)}")
    e(f"  s_mul_i32 s{sT0}, s{sJ}, 43")
    e(f"  v_add_u32 {vr(t0)}, 2, {vr(t0)}")
    e(f"  s_lshl_b32 s{sT1}, s{sH}, 8")
    e(f"  v_lshrrev_b32 {vr(t0)}, 14, {vr(t0)}")
    assert all((381 * i + 2) >> 14 == (i >= 43) + (i >= 86) for i in range(129))
    e(f"  s_add_u32 s{sT0}, s{sT0}, s{sT1}")
    e(f"  v_mad_u32_u24 {vr(t0)}, {vr(t0)}, 42, {vr(vAD)}")
    e(f"  v_add_u32 {vr(t0)}, s{sT0}, {vr(t0)}")
    e(f"  v_cvt_f32_u32 {vr(vRF)}, {vr(t0)}")
    e(f"  v_mul_u32_u24 {vr(vAD)}, 384, {vr(vAD)}")
    e(f"  s_mov_b32 s{rA + 2}, {HB}")
    e(f"  s_mov_b32 s{rA + 3}, 0x20000")
    srd_head(rA, sQK, sC)
    e(f"  s_mul_i32 s{sT0}, s{sH}, 6")
    e(f"  s_add_u32 s{sT0}, s{sT0}, s{sJ}")
    e(f"  s_lshl_b32 s{sT0}, s{sT0}, 15")
    e(f"  v_lshl_add_u32 {vr(voff + RUN.index(0))}, v0, 4, s{sT0}")
    for k in (1, 2):
        e(f"  v_add_u32 {vr(voff + RUN.index(k))}, {65536 * k:#x}, {vr(voff + RUN.index(0))}")
    for i in range(1, 8):
        e(f"  s_movk_i32 s{sOF + i}, {4096 * i}")
    nk = [NF]
    assert PRE <= RING and max(int(v) for v in P.kp_.split(",")[:P.su + 1]) <= min(SPECIAL)

    def k_loads(hi):
        while nk[0] < min(hi, PRE):
            ld(nk[0])
            nk[0] += 1

    def toff_(n):
        run = RUN[n >> 3]
        return 384 * (16 * (((n & 7) + run) // 3) + 38 * run)

    def setup():
        e("; per chunk class k: q operand, table and partial addresses")
        e(f"  s_lshl1_add_u32 s{sF}, s{sJ}, s{sW}")
        e(f"  s_lshl_b32 s{sF}, s{sF}, 1")
        e(f"  s_lshr_b32 s{sF}, 0x4924, s{sF}")
        e(f"  v_bfe_u32 {vr(t1)}, v0, 4, 2")
        e(f"  v_lshl_add_u32 {vr(t1)}, {vr(t1)}, 2, {vr(vC16)}")
        e(f"  v_mad_u32_u24 {vr(vF)}, {vr(w_)}, s{sNEED}, {vr(t1)}")
        e(f"  v_add_u32 {vr(vF)}, {PB - 3072}, {vr(vF)}")
        e(f"  s_mul_i32 s{sT1}, s{sJ}, {43 * 384}")
        e(f"  s_sub_u32 s{sT1}, {TB}, s{sT1}")
        e(f"  v_lshl_add_u32 {vr(vSum)}, s{sJ}, 7, {vr(s_)}")
        for k in range(3):
            e(f"  s_bfe_u32 s{sT0}, s{sF}, {(2 << 16) | 2 * k:#x}")
            e(f"  v_lshl_add_u32 {vr(vPA + k)}, s{sT0}, 8, {vr(vF)}")
            if k:
                e(f"  v_add_u32 {vr(vSum)}, 16, {vr(vSum)}")
            e(f"  v_mul_u32_u24 {vr(t0)}, 171, {vr(vSum)}")
            e(f"  v_lshrrev_b32 {vr(t0)}, 9, {vr(t0)}")
            e(f"  v_mad_i32_i24 {vr(t1)}, {vr(t0)}, -3, {vr(vSum)}")
            e(f"  v_lshl_add_u32 {vr(t1)}, {vr(t1)}, 8, {vr(vC16)}")
            e(f"  v_add_u32 {vr(vQA + k)}, {QB}, {vr(t1)}")
            e(f"  v_subrev_u32 {vr(vSu2)}, 384, {vr(t1)}")
            e(f"  v_min_u32 {vr(t1)}, {vr(t1)}, {vr(vSu2)}")
            e(f"  v_mul_u32_u24 {vr(t0)}, 384, {vr(t0)}")
            e(f"  v_add3_u32 {vr(vTA + k)}, {vr(t0)}, {vr(t1)}, s{sT1}")
        e(f"  v_lshl_add_u32 {vr(vSum)}, s{sJ}, 4, {vr(s_)}")
        for n, i in SPECIAL.items():
            run, sx = RUN[n >> 3], 15 * (n & 7 == 7)
            b = int(run == 0)
            g0, g1 = 256 * run + 128 * b + 16 * (n & 7) + sx, chunk_of(b, n, sx)
            dt = 384 * (tidx(b, g1 // 3) - (g0 // 3 - 43 * b - 42 * run))
            e(f"  v_cmp_eq_u32 vcc, {16 * b + sx}, {vr(vSum)}")
            e(f"  v_add_u32 {vr(t0)}, {256 * (g1 - g0) & 0xffffffff:#x}, {vr(voff + (n >> 3))}")
            e(f"  v_add_u32 {vr(t1)}, {toff_(n)}, {vr(vTA + TN[n])}")
            e(f"  v_add_u32 {vr(vSu2)}, {dt & 0xffffffff:#x}, {vr(t1)}")
            e(f"  v_cndmask_b32 {vr(voff + 3 + i)}, {vr(voff + (n >> 3))}, {vr(t0)}, vcc")
            e(f"  v_cndmask_b32 {vr(vTA + 3 + i)}, {vr(t1)}, {vr(vSu2)}, vcc")
        e(f"  v_lshlrev_b32 {vr(vLB)}, 2, v0")
        e(f"  v_add_u32 {vr(vLB)}, {LGB}, {vr(vLB)}")
        e(f"  v_lshrrev_b32 {vr(t1)}, 1, v0")
        e(f"  v_lshlrev_b32 {vr(t1)}, 2, {vr(t1)}")
        e(f"  v_add_u32 {vr(vLB + 1)}, {LGB + 1024}, {vr(t1)}")
        e(f"  v_subrev_u32 {vr(vLG)}, 1536, {vr(vLB)}")
        e(f"  v_subrev_u32 {vr(vLG + 1)}, 1536, {vr(vLB + 1)}")
        e(f"  v_lshlrev_b32 {vr(vPW)}, 2, {vr(w_)}")
        e(f"  s_mov_b32 s{sMSK}, 0xcccccccc")
        e(f"  s_mov_b32 s{sMSK + 1}, s{sMSK}")
        e(f"  s_mov_b32 s{sMSK + 2}, 0xaaaaaaaa")
        e(f"  s_mov_b32 s{sMSK + 3}, s{sMSK + 2}")
        e(f"  s_mov_b32 s{rB + 2}, {HB}")
        e(f"  s_mov_b32 s{rB + 3}, 0x20000")
        e(f"  s_mov_b32 s{sK}, 0")
        if P.ctl:
            e("; progress slots: this wave writes one byte of line (half, w) and samples the lines of the other half")
            die_base(sF)
            e(f"  s_add_u32 s{sT0}, s{sF}, 2048")
            e(f"  v_mov_b32 {vr(vBA)}, s{sT0}")
            e(f"  s_and_b32 s{sT1}, s{sSE}, 2")
            e(f"  s_lshl_b32 s{sT1}, s{sT1}, 9")
            e(f"  s_lshl_b32 s{sT0}, s{sW}, 8")
            e(f"  s_add_u32 s{sT0}, s{sT0}, s{sT1}")
            e(f"  s_add_u32 s{sT0}, s{sT0}, s{sF}")
            e(f"  s_add_u32 s{sT0}, s{sT0}, s{sCU}")
            e(f"  s_and_b32 s{sSE}, s{sSE}, 1")
            e(f"  s_lshl_b32 s{sSE}, s{sSE}, 4")
            e(f"  s_add_u32 s{sT0}, s{sT0}, s{sSE}")
            e(f"  v_mov_b32 {vr(vPS)}, s{sT0}")
            e(f"  s_xor_b32 s{sT1}, s{sT1}, 1024")
            e(f"  s_add_u32 s{sF}, s{sF}, s{sT1}")
            e(f"  v_and_b32 {vr(vN)}, 1, v0")
            e(f"  v_lshl_add_u32 {vr(vN)}, {vr(vN)}, 4, s{sF}")
            for k in range(4):
                e(f"  v_add_u32 {vr(vSum)}, {k}, {vr(w_)}")
                e(f"  v_and_b32 {vr(vSum)}, 3, {vr(vSum)}")
                e(f"  v_lshl_add_u32 {vr(vPL + k)}, {vr(vSum)}, 8, {vr(vN)}")
            e(f"  s_mov_b32 s{sLO}, {(-(LAG + 2) * 0x01010101) & 0xffffffff:#x}")
            for k in range(4 * LAG):
                e(f"  v_mov_b32 {vr(smp + k)}, 0")
            for k in range(2):
                e(f"  v_mov_b32 {vr(vBI + k)}, 0")
            e(f"  v_mov_b32 {vr(vN)}, 0")
            e(f"  s_mov_b32 s{sB}, 0")
            e(f"  s_mov_b32 s{sS}, {P.s0}")
            e(f"  s_mov_b32 s{sI}, 0")
            e(f"  s_mov_b32 s{sCO}, 0")

    def sincos(dst, iv):
        for h in (0, 2):
            e(f"  v_pk_mul_f32 {vr(tA + h, 2)}, {vr(iv + h, 2)}, {vr(tK + 2, 2)} op_sel:[0,1] op_sel_hi:[1,1]")
        if iv == invY:
            for h in (0, 2):
                e(f"  v_pk_mul_f32 {vr(tN + h, 2)}, {vr(tA + h, 2)}, {vr(tK, 2)} op_sel_hi:[1,0]")
        else:
            for h in (0, 2):
                e(f"  v_pk_fma_f32 {vr(tN + h, 2)}, {vr(tA + h, 2)}, {vr(tK, 2)}, {vr(tK, 2)} op_sel:[0,0,1] op_sel_hi:[1,0,1]")
            for h in (0, 2):
                e(f"  v_pk_add_f32 {vr(tN + h, 2)}, {vr(tN + h, 2)}, {vr(tK, 2)} op_sel:[0,1] op_sel_hi:[1,1] neg_lo:[0,1] neg_hi:[0,1]")
            for h in (0, 2):
                e(f"  v_pk_fma_f32 {vr(tN + h, 2)}, {vr(tA + h, 2)}, {vr(tK, 2)}, {vr(tN + h, 2)} op_sel_hi:[1,0,1] neg_lo:[0,0,1] neg_hi:[0,0,1]")
            for h in (0, 2):
                e(f"  v_pk_fma_f32 {vr(tN + h, 2)}, {vr(tA + h, 2)}, {vr(tK + 2, 2)}, {vr(tN + h, 2)} op_sel_hi:[1,0,1]")
        for i in range(4):
            e(f"  v_cos_f32 {vr(tA + i)}, {vr(tN + i)}")
        for i in range(4):
            e(f"  v_sin_f32 {vr(tN + i)}, {vr(tN + i)}")
        for i in range(4):
            e(f"  v_cvt_pk_bf16_f32 {vr(dst + i)}, {vr(tA + i)}, {vr(tN + i)}")

    kp = [int(v) for v in P.kp_.split(",")]

    def chunk(i):
        a = 2 * (i // 3)
        d = tO + 4 * (i & 1)
        bc_ = lambda x, m: f"row_newbcast:{x} row_mask:0xf bank_mask:{m:#x}"
        if i % 3 == 1:
            e(f"  v_mov_b32_dpp {vr(pos)}, {vr(vRF)} {bc_(a + 1, 12)}")
            e(f"  v_add_u32_dpp {vr(vF)}, {vr(vAD)}, {vr(vC8)} {bc_(a, 3)}")
            e(f"  v_add_u32_dpp {vr(vF)}, {vr(vAD)}, {vr(vC8)} {bc_(a + 1, 12)}")
            sincos(d, invY)
            e(f"  ds_write_b128 {vr(vF)}, {vr(d, 4)} offset:{TB + 256}")
        else:
            a += i % 3 // 2
            e(f"  v_mov_b32_dpp {vr(pos)}, {vr(vRF)} {bc_(a, 15)}")
            e(f"  v_add_u32_dpp {vr(vF)}, {vr(vAD)}, {vr(vC16)} {bc_(a, 15)}")
            sincos(d, invX)
            e(f"  ds_write_b128 {vr(vF)}, {vr(d, 4)} offset:{TB}")

    def tab_read(a):
        for n in range(3 * a, 3 * a + 3):
            d = tab + 12 * (a & 1) + 4 * (n % 3)
            if n in SPECIAL:
                e(f"  ds_read_b128 {vr(d, 4)}, {vr(vTA + 3 + SPECIAL[n])}")
            else:
                e(f"  ds_read_b128 {vr(d, 4)}, {vr(vTA + TN[n])} offset:{toff_(n)}")

    c_hi = f32bits(1 / (2 * math.pi))
    c_lo = f32bits(1 / (2 * math.pi) - struct.unpack("<f", struct.pack("<I", c_hi))[0])
    e(f"  v_mov_b32 {vr(tK)}, {c_hi:#x}")
    e(f"  v_mov_b32 {vr(tK + 1)}, {f32bits(1.5 * 2 ** 23):#x}")
    e(f"  v_mov_b32 {vr(tK + 2)}, {c_lo:#x}")
    k_loads(kp[0])
    pf()
    e(f"  s_waitcnt vmcnt({nk[0]})")
    pf()
    for i in range(12):
        if i == P.su:
            setup()
            pf()
        chunk(i)
        k_loads(kp[i + 1])
        if i % 3 == 2:
            pf()
    k_loads(PRE)
    e(f"  v_mov_b32 {vr(bc)}, {f32bits(-7.5):#x}")
    e("  s_waitcnt lgkmcnt(0)")
    e("  s_barrier")
    pf()
    for k in range(3):
        e(f"  ds_read_b128 {vr(qa + 4 * k, 4)}, {vr(vQA + k)}")
    tab_read(0)
    e(f"  s_waitcnt vmcnt({PRE - ORD['K'][:ORD['K'].index('L')].count('b')})")
    pf()
    if P.tfine:
        e("  s_waitcnt lgkmcnt(0)")
        for k in range(pfn[0]):
            e(f"  v_writelane_b32 {vr(vtr)}, s{PFR[k]}, {k}")
        e(f"  s_mov_b32 m0, {pfn[0]}")

    def vfirst():
        e(f"  s_and_b32 s{sH}, s{sVO}, 15")
        e(f"  s_add_u32 s{sNEED}, s{sH}, 1")
        e(f"  ds_read_b32 {vr(vF)}, {vr(vZ)} offset:{FL + 20}")
        flagwait("a0", FL + 20)
        e(f"  s_mulk_i32 s{sH}, 1536")
        for k in range(2):
            e(f"  v_add_u32 {vr(vLV + k)}, s{sH}, {vr(vLB + k)}")
        e(f"  ds_read_b32 {vr(A)}, {vr(vLV)}")

    assert all(x[3] < 14 for x in sch)

    def knext():
        e("; next SRD: K head k + 1, or the V heads of steps 0 / 1 once K runs out")
        e(f"  s_add_u32 s{sH}, s{sK}, 1")
        e(f"  s_sub_u32 s{sT1}, s{sH}, 16")
        vstep_k(sF, sT1)
        e(f"  s_cmp_lt_u32 s{sH}, 16")
        e(f"  s_cselect_b32 s{sH}, s{sH}, s{sF}")
        e(f"  s_cselect_b32 s{sX}, s{sQK}, s{sQV}")
        e(f"  s_cselect_b32 s{sX + 1}, s{sQK + 1}, s{sQV + 1}")
        head_of(sH, sH)
        srd_head(rB, sX, sH)

    def kred(n):
        dpp = lambda d, x, how, m: e(f"  v_add_f32_dpp {vr(d)}, {vr(x)}, {vr(x)} {how} row_mask:0xf bank_mask:{m:#x}")
        dpp(M1, dacc, "row_ror:8", 12 if n & 1 else 3)
        if n % 2 == 1:
            e("  s_nop 1")
            dpp(M2, M1, "row_half_mirror", 10 if n & 2 else 5)
        if n % 4 == 3:
            e("  s_nop 1")
            dpp(M2 if n & 4 else M3, M2, "quad_perm:[2,3,0,1]", 15)
        if n % 8 == 7:
            e(f"  v_cndmask_b32_e64 {vr(M3)}, {vr(M3)}, {vr(M2)}, s[{sMSK}:{sMSK + 1}]")
            e("  s_nop 1")
            dpp((LG, M3, LG + 1)[n >> 3], M3, "quad_perm:[1,0,3,2]", 15)
        if n == 15:
            e(f"  v_cndmask_b32_e64 {vr(LG)}, {vr(LG)}, {vr(M3)}, s[{sMSK + 2}:{sMSK + 3}]")

    e(".p2align 6")
    e("L_k:")

    def kbody(n):
        k_, q_ = ring + 4 * n, qa + 4 * TN[n]
        for i in range(4):
            e(f"  v_dot2_f32_bf16 {vr(wt + i)}, {vr(tab + 12 * (n // 3 & 1) + 4 * (n % 3) + i)}, {vr(q_ + i)}, 0")
        for i in range(4):
            e(f"  v_cvt_f32_i32 {vr(k_ + i)}, {vr(k_ + i)}")
        if n >= 21:
            e(f"  ds_read_b128 {vr(q_, 4)}, {vr(vQA + TN[n])}")
        for h in range(2):
            e(f"  v_pk_add_f32 {vr(k_ + 2 * h, 2)}, {vr(k_ + 2 * h, 2)}, {vr(bc, 2)} op_sel_hi:[1,0]")
        e(f"  v_pk_mul_f32 {vr(dacc, 2)}, {vr(k_, 2)}, {vr(wt, 2)}")
        e(f"  v_pk_fma_f32 {vr(dacc, 2)}, {vr(k_ + 2, 2)}, {vr(wt + 2, 2)}, {vr(dacc, 2)}")
        e(f"  v_add_f32 {vr(dacc)}, {vr(dacc)}, {vr(dacc + 1)}")

    def kout():
        e(f"  v_mov_b32 {vr(vF)}, s{sK}")
        for k in range(2):
            e(f"  ds_write_b32 {vr(vLG + k)}, {vr(LG + k)}")
        e(f"  ds_write_b32 {vr(vPW)}, {vr(vF)} offset:{FL}")

    def group(ph, a, body, after, res):
        nb, pend = 3 * a, None
        od = ORD[ph]
        for i, c in enumerate(od):
            if pend is not None and c != "L":
                if od[i - 1] == "b":
                    e("  s_nop 1")
                after(pend)
                pend = None
            if c == "E":
                evaluate(ph, a)
                if od[i + 1] != "X":
                    decide(ph, a)
            if c == "X":
                exchange(a)
                if od[i - 1] == "E":
                    decide(ph, a)
            if c == "R" and a == 0:
                res()
            if c == "b":
                body(nb)
                pend = nb if after else None
                nb += 1
            if c == "L":
                issue(ph, a, i)
        if pend is not None:
            if od[-1] == "b":
                e("  s_nop 1")
            after(pend)

    for a in range(8):
        if a == 7:
            flagwait("qn", FL + 16)
        else:
            e("  s_waitcnt lgkmcnt(0)")
        tab_read((a + 1) % 8)
        if a == 6:
            e(f"  ds_read_b32 {vr(vF)}, {vr(vZ)} offset:{FL + 16}")
        group("K", a, kbody, kred, kout)
        if a == 1:
            knext()
        if a == 3:
            e(f"  s_add_u32 s{sT0}, s{sK}, 2")
            e(f"  s_min_u32 s{sNEED}, s{sT0}, 16")
            for k in range(3):
                e(f"  v_add_u32 {vr(vQA + k)}, 768, {vr(vQA + k)}")
            for k in range(2):
                e(f"  v_add_u32 {vr(vLG + k)}, 1536, {vr(vLG + k)}")
            e(f"  s_cmp_eq_u32 s{sK}, 15")
            e("  s_cbranch_scc1 L_kv")
            e("L_kw:")
        if a in (3, 7) or P.tfine:
            tr()
    assert sorted(TN[21:]) == [0, 1, 2] and TN[:3] == TN[3:6] and sorted(TN[:3]) == [0, 1, 2] and PRE <= 18
    e(f"  s_add_u32 s{sK}, s{sK}, 1")
    e(f"  s_mov_b64 s[{rA}:{rA + 1}], s[{rB}:{rB + 1}]")
    e(f"  s_cmp_lt_u32 s{sK}, 16")
    e("  s_cbranch_scc1 L_k")


    def vbody(n):
        v_ = ring + 4 * n
        e(f"  v_mov_b32_dpp {vr(bc)}, {vr(A + n // 16)} row_newbcast:{rev(n % 16, 4)} row_mask:0xf bank_mask:0xf")
        for i in range(4):
            e(f"  v_cvt_f32_i32 {vr(v_ + i)}, {vr(v_ + i)}")
        for h in range(2):
            d = 4 * TN[n] + 2 * h
            if n < 3:
                e(f"  v_pk_mul_f32 {vr(tmp + d, 2)}, {vr(v_ + 2 * h, 2)}, {vr(bc, 2)} op_sel_hi:[1,0]")
            else:
                e(f"  v_pk_fma_f32 {vr(acc + d, 2)}, {vr(v_ + 2 * h, 2)}, {vr(bc, 2)}, {vr((tmp if n < 6 else acc) + d, 2)} op_sel_hi:[1,0,1]")

    def vout(last=False):
        for j in range(3):
            e(f"  v_permlane32_swap_b32 {vr(acc + 4 * j)}, {vr(acc + 4 * j + 2)}")
            e(f"  v_permlane32_swap_b32 {vr(acc + 4 * j + 1)}, {vr(acc + 4 * j + 3)}")
        for j in range(3):
            e(f"  v_add_f32 {vr(acc + 4 * j)}, {vr(acc + 4 * j)}, {vr(acc + 4 * ((j + 1) % 3) + 2)}")
            e(f"  v_add_f32 {vr(acc + 4 * j + 1)}, {vr(acc + 4 * j + 1)}, {vr(acc + 4 * ((j + 1) % 3) + 3)}")
        for j in range(3):
            e(f"  v_permlane16_swap_b32 {vr(acc + 4 * j)}, {vr(acc + 4 * j + 1)}")
        for j in range(3):
            e(f"  v_add_f32 {vr(acc + 4 * j)}, {vr(acc + 4 * j)}, {vr(acc + 4 * ((j + 2) % 3) + 1)}")
        for j in range(3):
            e(f"  ds_write_b32 {vr(vPA + j)}, {vr(acc + 4 * j)}")
        if not last:
            e(f"  ds_write_b32 {vr(vPW)}, {vr(M1)} offset:{FL}")

    def vnext():
        e(f"  s_add_u32 s{sT1}, s{sK}, 1")
        e(f"  s_min_u32 s{sT1}, s{sT1}, 15")
        vstep_k(sH, sT1)
        e(f"  s_add_u32 s{sNEED}, s{sH}, 1")
        e(f"  s_mul_i32 s{sF}, s{sH}, 1536")
        head_of(sH, sH)
        srd_head(rB, sQV, sH)
        for k in range(2):
            e(f"  v_add_u32 {vr(vLV + k)}, s{sF}, {vr(vLB + k)}")

    NS, NT = (PRE - PD) // 3, 8 - PD // 3
    assert NS == 1 and NT <= 5
    e("L_vpre:")
    kout()
    e(f"  s_mov_b32 s{sK}, 0")
    e(f"  v_mov_b32 {vr(M1)}, 16")
    for n in range(3):
        e(f"  s_waitcnt vmcnt({plain[384 + n]})")
        vbody(n)
    e(f"  s_waitcnt vmcnt({plain[387]}) lgkmcnt(0)")
    e("  s_branch L_v1")
    flush()
    e("L_kv:")
    vfirst()
    e("  s_branch L_kw")
    flush()
    e(".p2align 6")
    e("L_v:")
    for a in range(8):
        if a == 1:
            e("L_v1:")
            e(f"  ds_read_b32 {vr(A + 1)}, {vr(vLV + 1)}")
        if a == NT:
            e(f"  s_cmp_eq_u32 s{sK}, 15")
            e("  s_cbranch_scc1 L_vt")
        if a in (5, 7):
            e("  s_waitcnt lgkmcnt(0)")
        if a == 5:
            e(f"  ds_read_b32 {vr(vF)}, {vr(vZ)} offset:{FL + 20}")
        if a == 6:
            flagwait("an", FL + 20)
            e(f"  ds_read_b32 {vr(A)}, {vr(vLV)}")
        group("V", a, vbody, None, vout)
        if a == 1:
            vnext()
        if a == 3:
            e(f"  v_add_u32 {vr(M1)}, 1, {vr(M1)}")
            for j in range(3):
                e(f"  v_add_u32 {vr(vPA + j)}, 3072, {vr(vPA + j)}")
        if a in (3, 7):
            tr()
    e(f"  s_add_u32 s{sK}, s{sK}, 1")
    e(f"  s_mov_b64 s[{rA}:{rA + 1}], s[{rB}:{rB + 1}]")
    e("  s_branch L_v")
    flush()
    e("L_vt:")
    e("  s_waitcnt lgkmcnt(0)")
    for n in range(3 * NT, 24):
        e(f"  s_waitcnt vmcnt({plain[744 + n]})")
        vbody(n)
    tr()
    e("  s_nop 1")
    vout(True)
    e("  s_waitcnt lgkmcnt(0)")
    e("  s_barrier")
    if P.trace:
        e(f"  s_mul_i32 s8, s2, {5 * 256}")
        e("  s_add_u32 s8, s8, 0x100000")
        e(f"  v_lshl_add_u32 {vr(t0)}, v0, 2, s8")
        e(f"  global_store_dword {vr(t0)}, {vr(vtr)}, s[{sWS}:{sWS + 1}]")
    e("  s_endpgm")

    HP = [20, 22, 24, 8, 34, 36, 38, 72]
    ms = [m for m in range(P.r0, P.r1 + 1) if m < P.rf or m > P.rt or (m - P.r0) % P.rp == 0]
    msk = sum(1 << m for m in ms)

    def hp(k):
        if P.hprof:
            e(f"  s_memrealtime s[{HP[k]}:{HP[k] + 1}]")

    def progwait(name, slp):
        e(f"L_{name}:")
        e(f"  ds_read_b128 {vr(pr, 4)}, {vr(vZ)} offset:{FL}")
        e("  s_waitcnt lgkmcnt(0)")
        e(f"  v_min_u32 {vr(pr)}, {vr(pr)}, {vr(pr + 1)}")
        e(f"  v_min3_u32 {vr(pr)}, {vr(pr)}, {vr(pr + 2)}, {vr(pr + 3)}")
        e("  s_nop 0")
        e(f"  v_readfirstlane_b32 s{sF}, {vr(pr)}")
        e(f"  s_cmp_ge_u32 s{sF}, s{sNEED}")
        e(f"  s_cbranch_scc1 L_{name}_ok")
        budget(f"L_{name}_ok")
        if slp:
            e(f"  s_sleep {slp}")
        e(f"  s_branch L_{name}")
        e(f"L_{name}_ok:")

    def rowred(op, v):
        for n in (8, 4, 2, 1):
            e("  s_nop 1")
            e(f"  {op}_dpp {vr(v)}, {vr(v)}, {vr(v)} row_ror:{n} row_mask:0xf bank_mask:0xf")

    def allred(op, v, t):
        rowred(op, v)
        for sw in ("v_permlane16_swap_b32", "v_permlane32_swap_b32"):
            e(f"  v_mov_b32 {vr(t)}, {vr(v)}")
            e("  s_nop 1")
            e(f"  {sw} {vr(v)}, {vr(t)}")
            e(f"  {op} {vr(v)}, {vr(v)}, {vr(t)}")

    def sum_partials(nq):
        w = 4 * nq
        for k in range(4):
            for q in range(nq):
                e(f"  ds_read_b128 {vr(x + w * k + 4 * q, 4)}, {vr(h0)} offset:{768 * k + 16 * q}")
        e(f"  ds_read_b128 {vr(z4, 4)}, {vr(h1)} offset:{ST}")
        e("  s_waitcnt lgkmcnt(0)")
        for h in range(0, w, 2):
            e(f"  v_pk_add_f32 {vr(x + h, 2)}, {vr(x + h, 2)}, {vr(x + w + h, 2)}")
            e(f"  v_pk_add_f32 {vr(x + 2 * w + h, 2)}, {vr(x + 2 * w + h, 2)}, {vr(x + 3 * w + h, 2)}")
        for h in range(0, w, 2):
            e(f"  v_pk_add_f32 {vr(x + h, 2)}, {vr(x + h, 2)}, {vr(x + 2 * w + h, 2)}")
        for h in range(0, w, 2):
            e(f"  v_pk_add_f32 {vr(x + h, 2)}, {vr(x + h, 2)}, {vr(z4 + 2, 2)} op_sel_hi:[1,0] neg_lo:[0,1] neg_hi:[0,1]")

    def mark(tag):
        if not P.enc:
            return
        for k, m in enumerate(P.enc.split(",")[:2]):
            e(f"  s_cmp_eq_u32 s{sNEED}, {m}")
            e(f"  s_cbranch_scc0 L_mk{tag}{k}")
            e(f"  s_memrealtime s[{16 + 2 * k}:{17 + 2 * k}]")
            e(f"L_mk{tag}{k}:")

    def rank_post(tag):
        if not P.ctl:
            return
        e(f"  s_bitcmp1_b32 s{sRF}, s{sNEED}")
        e(f"  s_cbranch_scc0 L_fa{tag}")
        e(f"  s_mul_i32 s{sT0}, s{sNEED}, 384")
        e(f"  s_add_u32 s{sT0}, s{sT0}, {W_RK}")
        e(f"  s_mov_b32 s{sB}, 1")
        e(f"  s_atomic_add s{sB}, s[{sWS}:{sWS + 1}], s{sT0} glc")
        e(f"L_fa{tag}:")

    def rank_take(tag):
        if not P.ctl:
            return
        e(f"  s_bitcmp1_b32 s{sRF}, s{sNEED}")
        e(f"  s_cbranch_scc0 L_fb{tag}")
        if P.kc:
            e(f"  ds_read_b128 {vr(pr, 4)}, {vr(vZ)} offset:{FL + 32}")
        e("  s_waitcnt lgkmcnt(0)")
        e(f"  s_min_u32 s{sF}, s{sB}, 15")
        e(f"  s_lshl_b32 s{sF}, s{sF}, 1")
        e(f"  s_sub_u32 s{sF}, s{sF}, 15")
        if P.kc:
            e(f"  v_add3_u32 {vr(pr)}, {vr(pr)}, {vr(pr + 1)}, {vr(pr + 2)}")
            e(f"  v_add_u32 {vr(pr)}, {vr(pr)}, {vr(pr + 3)}")
            e("  s_nop 0")
            e(f"  v_readfirstlane_b32 s{sT0}, {vr(pr)}")
            e(f"  s_mul_i32 s{sT0}, s{sT0}, {P.kc}")
            e(f"  s_add_u32 s{sT0}, s{sT0}, {64 + P.ko}")
            e(f"  s_ashr_i32 s{sT0}, s{sT0}, 7")
            e(f"  s_sub_u32 s{sF}, s{sF}, s{sT0}")
            e(f"  s_min_i32 s{sF}, s{sF}, 15")
            e(f"  s_max_i32 s{sF}, s{sF}, -15")
        e(f"  s_cmp_le_u32 s{sNEED}, {P.kn}")
        e(f"  s_cselect_b32 s{sT0}, {P.kp0}, {P.kp}")
        e(f"  s_mul_i32 s{sF}, s{sF}, s{sT0}")
        e(f"  s_add_u32 s{sF}, s{sF}, 8")
        e(f"  s_ashr_i32 s{sF}, s{sF}, 4")
        e(f"  v_mov_b32 {vr(vFX)}, s{sF}")
        e("  s_mov_b64 exec, 1")
        e(f"  global_store_dword {vr(vFB)}, {vr(vFX)}, s[{sWS}:{sWS + 1}]")
        e("  s_mov_b64 exec, -1")
        e(f"L_fb{tag}:")

    HPF = [10, 16, 18, 20, 22, 72, 74, 76, 60, 62]
    hpn = [0]

    def hpf():
        if P.tfine:
            e(f"  s_memrealtime s[{HPF[hpn[0]]}:{HPF[hpn[0]] + 1}]")
            hpn[0] += 1

    e("L_helper:")
    e(f"  s_setprio {P.hp0}")
    e(f"  v_and_b32 {vr(h1)}, 32, v0")
    e(f"  v_lshrrev_b32 {vr(h1)}, 1, {vr(h1)}")
    e(f"  v_add_u32 {vr(sg2)}, s{sC}, {vr(h1)}")
    e(f"  v_mad_u32_u24 {vr(ra)}, {vr(sg2)}, s{sNEED}, {vr(vL16)}")
    e(f"  v_lshrrev_b32 {vr(ra)}, 1, {vr(ra)}")
    hv = []

    def half(p, full):
        if p in (2, 3):
            e(f"  s_mov_b32 exec_hi, {0 if p == 2 else full}")
        if p in (5, 6):
            e(f"  s_mov_b32 exec_lo, {0 if p == 5 else full}")

    def sc_early():
        e(f"  s_and_b32 s{sT1}, s2, 7")
        e(f"  v_lshl_add_u32 {vr(wb)}, s{sT1}, 9, {vr(vL16)}")
        e(f"  v_lshl_add_u32 {vr(ra)}, {vr(sg2)}, 12, {vr(wb)}")
        for p in range(1, 8):
            e(f"  v_add_u32 {vr(ra + p)}, {0x20000 * p:#x}, {vr(ra)}")
        for p in range(8):
            half(p, -1)
            for i, sp in enumerate((sKS, sVS)):
                e(f"  s_mov_b32 m0, {SCB + SA * i + 1024 * p}")
                e("  s_nop 0")
                if "s" not in P.xp:
                    e(f"  global_load_lds_dwordx4 {vr(ra + p)}, s[{sp}:{sp + 1}] {P.sf}")
                    hv.append(("s", p))

    for p in range(1, 8):
        e(f"  v_add_u32 {vr(ra + p)}, {12288 * p}, {vr(ra)}")
    e("  s_mov_b32 exec_lo, 0xffffff")
    e("  s_mov_b32 exec_hi, 0xffffff")
    e("  s_waitcnt lgkmcnt(0)")
    hpf()
    for p in range(8):
        half(p, "0xffffff")
        e(f"  global_load_dwordx2 {vr(rec + 4 * p, 2)}, {vr(ra + (0 if 'q' in P.xp else p))}, s[{sQ}:{sQ + 1}] {P.qf}")
        e(f"  global_load_dwordx2 {vr(rec + 4 * p + 2, 2)}, {vr(ra + (0 if 'q' in P.xp else p))}, s[{sQ}:{sQ + 1}] offset:192 {P.qf}")
        hv.extend([("q", p)] * 2)
    e("  s_mov_b64 exec, -1")
    hpf()
    if P.ss == 0:
        sc_early()
    common()
    e(f"  s_load_dword s{sO}, s[{sRT}:{sRT + 1}], 24")
    e(f"  s_load_dwordx2 s[{sOH}:{sOH + 1}], s[{sRT}:{sRT + 1}], 16")
    e(f"  v_mov_b32 {vr(l)}, v0")
    for i in range(4):
        e(f"  v_mov_b32 {vr(z4 + i)}, 0")
    e(f"  ds_write_b128 {vr(vZ)}, {vr(z4, 4)} offset:{FL}")
    e(f"  ds_write_b128 {vr(vZ)}, {vr(z4, 4)} offset:{FL + 16}")
    e(f"  s_mov_b32 s{sMASK}, 0xffff0000")
    e(f"  s_mov_b32 s{sSCALE}, {f32bits(math.log2(math.e) / math.sqrt(192.0)):#x}")
    e(f"  v_mad_u32_u24 {vr(wa)}, {vr(h1)}, 48, {vr(vL16)}")
    e(f"  v_mov_b32 {vr(vOne)}, 1")
    e(f"  s_waitcnt vmcnt({len(hv)})")
    for k in range(4):
        e(f"  v_lshlrev_b32 {vr(cs + k)}, 16, {vr(pr + k)}")
        e(f"  v_and_b32 {vr(cs + 4 + k)}, s{sMASK}, {vr(pr + k)}")
    e("  s_waitcnt lgkmcnt(0)")
    hpf()
    e(f"  v_min_u32 {vr(h0)}, 2, {vr(l)}")
    e(f"  v_lshlrev_b32 {vr(h1)}, 3, {vr(h0)}")
    e(f"  v_bfe_u32 {vr(h1)}, s{sCT}, {vr(h1)}, 8")
    e(f"  v_mul_u32_u24 {vr(vCNT)}, 4352, {vr(h1)}")
    e(f"  v_add_u32 {vr(vCNT)}, {W_CNT}, {vr(vCNT)}")
    if P.ctl:
        die_base(sF)
        e(f"  v_lshrrev_b32 {vr(h0)}, 1, {vr(l)}")
        e(f"  v_lshl_add_u32 {vr(vFX)}, {vr(h0)}, 8, s{sF}")
        e(f"  v_and_b32 {vr(h0)}, 1, {vr(l)}")
        e(f"  v_lshl_add_u32 {vr(vFX)}, {vr(h0)}, 4, {vr(vFX)}")
        e(f"  s_and_b32 s{sT1}, s{sSE}, 2")
        e(f"  s_lshl_b32 s{sT0}, s{sT1}, 9")
        e(f"  s_add_u32 s{sT0}, s{sT0}, s{sF}")
        e(f"  v_add_u32 {vr(vEL)}, s{sT0}, {vr(l)}")
        e(f"  s_lshl_b32 s{sT1}, s{sT1}, 1")
        e(f"  s_add_u32 s{sF}, s{sF}, s{sT1}")
        e(f"  s_add_u32 s{sF}, s{sF}, 2048")
        e(f"  v_mov_b32 {vr(vFB)}, s{sF}")
        e(f"  v_mul_u32_u24 {vr(vFA)}, 384, {vr(l)}")
        e(f"  v_add_u32 {vr(vFA)}, {W_RK}, {vr(vFA)}")
        e(f"  s_mov_b32 s{sRF}, 0")

    def ctl_init():
        if not P.ctl:
            return
        e("  s_mov_b64 exec, 0x3ffff")
        e(f"  global_store_dwordx4 {vr(vFX)}, {vr(z4, 4)}, s[{sWS}:{sWS + 1}]")
        e("  s_mov_b64 exec, -1")

    def elect():
        if not P.ctl:
            return
        e(f"  s_cmp_eq_u32 s{sNEED}, {P.r0 - 1}")
        e("  s_cbranch_scc0 L_el")
        e(f"  s_bitcmp0_b32 s{sSE}, 0")
        e("  s_cbranch_scc0 L_el")
        e("  s_mov_b64 exec, 0xffff")
        e(f"  global_load_ubyte {vr(vFX)}, {vr(vEL)}, s[{sWS}:{sWS + 1}] sc1")
        e("  s_waitcnt vmcnt(0)")
        e(f"  v_cmp_ne_u32 s[{sZ}:{sZ + 1}], 0, {vr(vFX)}")
        e(f"  s_lshr_b32 s{sT0}, s{sZ}, s{sCU}")
        e(f"  s_bcnt1_i32_b32 s{sT0}, s{sT0}")
        pat = sum(1 << m for m in range(0, 32, P.rotl))
        e(f"  s_sub_u32 s{sT1}, s{sT0}, 1")
        e(f"  s_cmp_lt_u32 s{sT1}, {P.rotl}")
        e("  s_cbranch_scc0 L_el")
        e(f"  s_lshl_b32 s{sRF}, {pat:#x}, s{sT1}")
        e(f"  s_and_b32 s{sRF}, s{sRF}, {msk:#x}")
        e("L_el:")
        e("  s_mov_b64 exec, -1")

    def patch(what):
        e(f"  s_bfe_u32 s{sT0}, s{sCN + 1}, {(4 << 16) | 8:#x}")
        e(f"  s_bfe_u32 s{sT1}, s{sCN}, {(4 << 16) | 20:#x}")
        e(f"  s_addk_i32 s{sT0}, 160")
        e(f"  s_addk_i32 s{sT1}, 80")
        for p, sh_, ex in ((5, sT0, "exec_hi"), (2, sT1, "exec_lo")):
            if what == "q":
                e(f"  s_mulk_i32 s{sh_}, 384")
                e(f"  v_lshrrev_b32 {vr(h0)}, 1, {vr(vL16)}")
                e(f"  v_add_u32 {vr(h0)}, s{sh_}, {vr(h0)}")
                qmask(1)
                e(f"  s_mov_b32 {ex}, 0")
                e(f"  global_load_dwordx2 {vr(rec + 4 * p, 2)}, {vr(h0)}, s[{sQ}:{sQ + 1}]")
                e(f"  global_load_dwordx2 {vr(rec + 4 * p + 2, 2)}, {vr(h0)}, s[{sQ}:{sQ + 1}] offset:192")
                hv.extend([("q", p)] * 2)
            else:
                e(f"  v_lshl_add_u32 {vr(h0)}, s{sh_}, 12, {vr(wb)}")
                e(f"  s_mov_b32 {ex}, 0")
                for i, sp in enumerate((sKS, sVS)):
                    e(f"  s_mov_b32 m0, {SCB + SA * i + 1024 * p}")
                    e("  s_nop 0")
                    if "s" not in P.xp:
                        e(f"  global_load_lds_dwordx4 {vr(h0)}, s[{sp}:{sp + 1}] {P.sf}")
                        hv.append(("s", p))
            qmask(0)

    def qmask(on):
        if on:
            e("  s_mov_b32 exec_lo, 0xffffff")
            e("  s_mov_b32 exec_hi, 0xffffff")
        else:
            e("  s_mov_b64 exec, -1")

    def rotate(p):
        L, Hh, LC, HS, HC, LS = x, x + 4, x + 8, x + 12, x + 16, x + 20
        qmask(1)
        if p == 0:
            hpf()
        e(f"  s_waitcnt vmcnt({hv[::-1].index(('q', p))})")
        if p == 0:
            hpf()
        for k in range(4):
            e(f"  v_lshlrev_b32 {vr(L + 2 * k)}, 16, {vr(rec + 4 * p + k)}")
            e(f"  v_and_b32 {vr(L + 2 * k + 1)}, s{sMASK}, {vr(rec + 4 * p + k)}")
        for d, q_, t_ in ((LC, L, cs), (HS, Hh, cs + 4), (HC, Hh, cs), (LS, L, cs + 4)):
            for h in (0, 2):
                e(f"  v_pk_mul_f32 {vr(d + h, 2)}, {vr(q_ + h, 2)}, {vr(t_ + h, 2)}")
        for i in range(4):
            e(f"  v_cvt_pk_bf16_f32 {vr(L + i)}, {vr(LC + i)}, {vr(HS + i)}")
            e(f"  v_cvt_pk_bf16_f32 {vr(Hh + i)}, {vr(HC + i)}, {vr(LS + i)}")
        for k in range(8):
            e(f"  v_lshlrev_b32 {vr(LC + k)}, 16, {vr(L + k)}")
            e(f"  v_and_b32 {vr(L + k)}, s{sMASK}, {vr(L + k)}")
        for h in (0, 2):
            e(f"  v_pk_add_f32 {vr(L + h, 2)}, {vr(LC + h, 2)}, {vr(L + h, 2)} neg_lo:[0,1] neg_hi:[0,1]")
            e(f"  v_pk_add_f32 {vr(Hh + h, 2)}, {vr(HS + h, 2)}, {vr(Hh + h, 2)}")
        for i in range(4):
            e(f"  v_cvt_pk_bf16_f32 {vr(LC + i)}, {vr(L + i)}, {vr(Hh + i)}")
            e(f"  v_cvt_pk_bf16_f32 {vr(HS + i)}, {vr(Hh + i)}, -{vr(L + i)}")
        e(f"  v_mov_b32 {vr(h0)}, {2 * p + 2}")
        e(f"  ds_write_b128 {vr(wa)}, {vr(LC, 4)} offset:{QB + 1536 * p}")
        e(f"  ds_write_b128 {vr(wa)}, {vr(HS, 4)} offset:{QB + 1536 * p + 384}")
        e(f"  ds_write_b32 {vr(vZ)}, {vr(h0)} offset:{FL + 16}")
        qmask(0)

    ctl_init()
    if P.ctl:
        hv.append(("c", 0))
    patch("q")
    e(f"  s_lshl_b32 s{sT0}, s{sJ}, 10")
    e(f"  s_add_u32 s{sT0}, s{sT0}, L_hpos-L_pc")
    e(f"  v_add_u32 {vr(h0)}, s{sT0}, {vr(vT16)}")
    e(f"  global_load_dwordx4 {vr(st4, 4)}, {vr(h0)}, s[{sZ}:{sZ + 1}]")
    hv.append(("h", 0))
    if P.ss == 1:
        sc_early()
    if P.ss <= 1:
        patch("s")
    rotate(0)
    hpf()
    if P.ss == 2:
        sc_early()
        patch("s")
    e("  s_waitcnt lgkmcnt(0)")
    e("  s_setprio 0")
    hpf()
    e("  s_barrier")
    hpf()
    if P.ss == 3:
        sc_early()
        patch("s")
    for p in range(1, 8):
        rotate(p)
    e(f"  v_mov_b32 {vr(vSa)}, 0")
    e(f"  v_min_u32 {vr(u)}, 47, {vr(l)}")
    e(f"  v_lshlrev_b32 {vr(vL16)}, 4, {vr(u)}")
    for i in range(4):
        e(f"  v_mov_b32 {vr(sc + i)}, 0")
    e(f"  s_mov_b32 s{sNEED}, 1")
    if True:
        e("; the counters live in the workspace: workgroup 0 clears them, then raises a flag in d_debug")
        e("  s_cmp_eq_u32 s2, 0")
        e("  s_cbranch_scc0 L_rc")
        e(f"  v_mul_u32_u24 {vr(vCL)}, 4352, {vr(u)}")
        e(f"  v_add_u32 {vr(vCL)}, {W_CNT}, {vr(vCL)}")
        e("  s_mov_b32 exec_hi, 0xffff")
        e(f"  global_store_dword {vr(vCL)}, {vr(vZ)}, s[{sWS}:{sWS + 1}] sc1")
        if P.ctl:
            e(f"  s_mov_b64 exec, {msk:#x}")
            e(f"  global_store_dword {vr(vFA)}, {vr(vZ)}, s[{sWS}:{sWS + 1}] sc1")
        e("  s_waitcnt vmcnt(0)")
        e("  s_mov_b64 exec, 1")
        e(f"  global_store_dword {vr(vZ)}, {vr(vOne)}, s[{sDBG}:{sDBG + 1}] sc1")
        e("  s_mov_b64 exec, -1")
        e("L_rc:")
    hpf()
    e("  s_waitcnt vmcnt(0)")
    hpf()
    if P.tfine:
        e("  s_waitcnt lgkmcnt(0)")
        e(f"  v_mov_b32 {vr(h0)}, 0")
        for k in range(hpn[0]):
            e(f"  v_writelane_b32 {vr(h0)}, s{HPF[k]}, {k}")
        e(f"  s_mul_i32 s{sT0}, s2, {5 * 256}")
        e(f"  s_add_u32 s{sT0}, s{sT0}, {0x100000 + 1024}")
        e(f"  v_lshl_add_u32 {vr(h1)}, v0, 2, s{sT0}")
        e(f"  global_store_dword {vr(h1)}, {vr(h0)}, s[{sWS}:{sWS + 1}]")
    for k in range(4):
        e(f"  v_and_b32 {vr(ro + 2 * k)}, 0xffff, {vr(st4 + k)}")
        e(f"  v_lshrrev_b32 {vr(ro + 2 * k + 1)}, 16, {vr(st4 + k)}")
    for k in range(2):
        e(f"  v_add_u32 {vr(ro + 6 + k)}, {SCB}, {vr(ro + 6 + k)}")
    e("L_hk:")
    for a in range(2):
        for k in range(2):
            e(f"  ds_read_u16_d16_hi {vr(sc + 2 * a + k)}, {vr(ro + 6 + k)} offset:{SA * a}")
    progwait("hsw", P.psl)
    mark("s")
    rank_post("s")
    for k in range(6):
        e(f"  ds_read_b32 {vr(x + 4 + k)}, {vr(ro + k)} offset:{LGB}")
    e(f"  v_mul_f32 {vr(x + 2)}, s{sSCALE}, {vr(sc)}")
    e(f"  v_mul_f32 {vr(x + 3)}, s{sSCALE}, {vr(sc + 1)}")
    e("  s_waitcnt lgkmcnt(0)")
    e(f"  v_pk_add_f32 {vr(x, 2)}, {vr(x + 4, 2)}, {vr(x + 6, 2)}")
    e(f"  v_pk_add_f32 {vr(x, 2)}, {vr(x, 2)}, {vr(x + 8, 2)}")
    e(f"  v_mul_f32 {vr(x)}, {vr(x)}, {vr(x + 2)}")
    e(f"  v_mul_f32 {vr(x + 1)}, {vr(x + 1)}, {vr(x + 3)}")
    e(f"  v_max_f32 {vr(z4)}, {vr(x)}, {vr(x + 1)}")
    allred("v_max_f32", z4, h0)
    e(f"  v_sub_f32 {vr(x)}, {vr(x)}, {vr(z4)}")
    e(f"  v_sub_f32 {vr(x + 1)}, {vr(x + 1)}, {vr(z4)}")
    e(f"  v_exp_f32 {vr(x)}, {vr(x)}")
    e(f"  v_exp_f32 {vr(x + 1)}, {vr(x + 1)}")
    e("  s_nop 0")
    e(f"  v_add_f32 {vr(z4 + 1)}, {vr(x)}, {vr(x + 1)}")
    e(f"  v_mul_f32 {vr(x)}, {vr(x)}, {vr(sc + 2)}")
    e(f"  v_mul_f32 {vr(x + 1)}, {vr(x + 1)}, {vr(sc + 3)}")
    e(f"  v_add_f32 {vr(z4 + 2)}, {vr(x)}, {vr(x + 1)}")
    for k in range(6):
        e(f"  ds_write_b32 {vr(ro + k)}, {vr(x + (k & 1))} offset:{LGB}")
    e(f"  v_mul_f32 {vr(z4 + 2)}, {f32bits(7.5):#x}, {vr(z4 + 2)}")
    allred("v_add_f32", z4 + 1, h0)
    allred("v_add_f32", z4 + 2, h0)
    e(f"  v_mov_b32 {vr(h0)}, s{sNEED}")
    e(f"  ds_write_b128 {vr(vSa)}, {vr(z4, 4)} offset:{ST}")
    e(f"  ds_write_b32 {vr(vZ)}, {vr(h0)} offset:{FL + 20}")
    e(f"  v_add_u32 {vr(vSa)}, 16, {vr(vSa)}")
    for k in range(8):
        e(f"  v_add_u32 {vr(ro + k)}, {1536 if k < 6 else SL}, {vr(ro + k)}")
    rank_take("s")
    elect()
    e("  s_waitcnt lgkmcnt(0)")
    e(f"  s_add_u32 s{sNEED}, s{sNEED}, 1")
    e(f"  s_cmp_le_u32 s{sNEED}, 16")
    e("  s_cbranch_scc1 L_hk")

    e(f"  v_and_b32 {vr(h2)}, 15, {vr(l)}")
    e(f"  v_lshlrev_b32 {vr(h2)}, 1, {vr(h2)}")
    e(f"  global_load_ushort {vr(h3)}, {vr(h2)}, s[{sRT}:{sRT + 1}] offset:32")
    e(f"  s_mov_b32 s{sK}, 0")
    e(f"  v_min_u32 {vr(wa)}, 23, {vr(l)}")
    e(f"  v_lshlrev_b32 {vr(wa)}, 4, {vr(wa)}")
    e(f"  v_lshlrev_b32 {vr(h0)}, 1, {vr(wa)}")
    e(f"  v_add_u32 {vr(h0)}, {PB}, {vr(h0)}")
    e(f"  v_add_u32 {vr(wa)}, {PK}, {vr(wa)}")
    e(f"  v_lshlrev_b32 {vr(sgn)}, 4, {vr(l)}")
    e(f"  s_mul_i32 s{sT0}, s2, 6144")
    e(f"  s_add_u32 s{sT0}, s{sT0}, {W_REC}")
    e(f"  v_add_u32 {vr(sgx)}, s{sT0}, {vr(sgn)}")
    e(f"  v_add_u32 {vr(sgn)}, {PK}, {vr(sgn)}")
    e(f"  v_cmp_gt_u32 vcc, 24, {vr(l)}")
    e(f"  v_add_u32 {vr(sg2)}, 4096, {vr(sgx)}")
    e(f"  v_lshrrev_b32 {vr(u)}, 1, {vr(vL16)}")
    e(f"  s_mul_i32 s{sT0}, s{sOH}, 384")
    e(f"  s_add_u32 s{sOUT}, s{sOUT}, s{sT0}")
    e(f"  s_addc_u32 s{sOUT + 1}, s{sOUT + 1}, 0")
    e(f"  s_lshl_b32 s{sT0}, s{sO}, 4")
    e(f"  s_add_u32 s{sT0}, s{sT0}, {W_REC}")
    e(f"  v_add_u32 {vr(h1)}, {W_REC}, {vr(u)}")
    e("  s_waitcnt vmcnt(0)")
    e(f"  v_or_b32 {vr(h2)}, 15, {vr(h3)}")
    e(f"  v_mul_u32_u24 {vr(h2)}, 384, {vr(h2)}")
    e(f"  v_mul_u32_u24 {vr(h3)}, 384, {vr(h3)}")
    e(f"  v_add_u32 {vr(ra + 15)}, s{sT0}, {vr(h2)}")
    e("  s_nop 0")
    for k in range(15):
        e(f"  v_add_u32_dpp {vr(ra + k)}, {vr(h3)}, {vr(h1)} row_newbcast:{k} row_mask:0xf bank_mask:0xf")
    e(f"  s_mov_b64 s[{sX}:{sX + 1}], 0")
    e("L_hp:")
    e(f"  s_min_u32 s{sT0}, s{sO}, 13")
    e(f"  s_cmp_eq_u32 s{sT0}, s{sK}")
    e("  s_cbranch_scc0 L_hc_ok")
    e("L_hc:")
    e(f"  global_load_dword {vr(pr)}, {vr(vZ)}, s[{sDBG}:{sDBG + 1}] sc1")
    e("  s_waitcnt vmcnt(0)")
    e(f"  v_cmp_ne_u32 s[{sZ}:{sZ + 1}], 1, {vr(pr)}")
    e(f"  s_cmp_eq_u64 s[{sZ}:{sZ + 1}], 0")
    e("  s_cbranch_scc1 L_hc_ok")
    budget("L_hc_ok")
    e("  s_sleep 64")
    e("  s_branch L_hc")
    e("L_hc_ok:")
    vstep_k(sH, sK)
    e(f"  s_lshl_b32 s{sT0}, s{sH}, 4")
    e(f"  v_mov_b32 {vr(h1)}, s{sT0}")
    e(f"  s_cmp_eq_u32 s{sK}, 14")
    e("  s_cbranch_scc0 L_hp_mid")
    for k in range(6):
        e(f"  ds_read_b128 {vr(blk + 4 * k, 4)}, {vr(sgn)} offset:{1024 * k}")
    e(f"  v_subrev_u32 {vr(h2)}, 24, {vr(l)}")
    e(f"  v_and_b32 {vr(h2)}, 15, {vr(h2)}")
    e(f"  v_cmp_eq_u32 s[{sX}:{sX + 1}], s{sH}, {vr(h2)}")
    e(f"  v_lshlrev_b32 {vr(h2)}, 4, {vr(h2)}")
    e(f"  ds_read_b128 {vr(st4, 4)}, {vr(h2)} offset:{ST}")
    def bulk():
        for k in range(6):
            if k == 5:
                e("  s_mov_b64 exec, 0xffff")
            if "w" not in P.xp and not ("h" in P.xp and k < 3) and not ("H" in P.xp and k < 4):
                e(f"  global_store_dwordx4 {vr(sgx if k < 4 else sg2)}, {vr(blk + 4 * k, 4)}, s[{sWS}:{sWS + 1}] offset:{1024 * (k % 4)} {P.wf}")
        e("  s_mov_b64 exec, -1")

    if P.eprio:
        e(f"  s_setprio {P.eprio}")
    e("L_hp_mid:")
    e(f"  s_add_u32 s{sK}, s{sK}, 1")
    e(f"  s_add_u32 s{sNEED}, s{sK}, 16")
    progwait("hpw", P.psl)
    mark("p")
    hp(0)
    rank_post("p")
    if not P.late:
        e(f"  s_cmp_eq_u32 s{sK}, 15")
        e("  s_cbranch_scc0 L_hp_sum")
        bulk()
        e("L_hp_sum:")
    sum_partials(2)
    e(f"  v_max3_f32 {vr(h3)}, |{vr(x)}|, |{vr(x + 1)}|, |{vr(x + 2)}|")
    e(f"  v_max3_f32 {vr(h3)}, {vr(h3)}, |{vr(x + 3)}|, |{vr(x + 4)}|")
    e(f"  v_max3_f32 {vr(h3)}, {vr(h3)}, |{vr(x + 5)}|, |{vr(x + 6)}|")
    e(f"  v_max_f32_e64 {vr(h3)}, {vr(h3)}, |{vr(x + 7)}|")
    allred("v_max_f32", h3, wb)
    e(f"  v_frexp_exp_i32_f32 {vr(h3)}, {vr(h3)}")
    e(f"  v_sub_u32 {vr(wb)}, 14, {vr(h3)}")
    e(f"  v_subrev_u32 {vr(h3)}, 14, {vr(h3)}")
    for i in range(8):
        e(f"  v_ldexp_f32 {vr(x + i)}, {vr(x + i)}, {vr(wb)}")
    for i in range(4):
        e(f"  v_cvt_pk_f16_f32 {vr(fo + i)}, {vr(x + 2 * i)}, {vr(x + 2 * i + 1)}")
    e(f"  s_cmp_eq_u32 s{sK}, 15")
    e("  s_cbranch_scc1 L_hp_last")
    e(f"  ds_write_b32 {vr(h1)}, {vr(h3)} offset:{ST + 12}")
    e(f"  v_add_u32 {vr(h0)}, 3072, {vr(h0)}")
    e(f"  ds_write_b128 {vr(wa)}, {vr(fo, 4)}")
    e(f"  v_add_u32 {vr(wa)}, 384, {vr(wa)}")
    rank_take("p")
    e("  s_branch L_hp")
    e("L_hp_last:")
    e(f"  v_cndmask_b32_e64 {vr(st4 + 3)}, {vr(st4 + 3)}, {vr(h3)}, s[{sX}:{sX + 1}]")
    for i in range(4):
        e(f"  v_cndmask_b32 {vr(fo + i)}, {vr(st4 + i)}, {vr(fo + i)}, vcc")
    if P.late:
        if P.kd:
            e(f"  ds_read_b128 {vr(pr, 4)}, {vr(vZ)} offset:{FL + 32}")
            e("  s_waitcnt lgkmcnt(0)")
            e(f"  v_add3_u32 {vr(pr)}, {vr(pr)}, {vr(pr + 1)}, {vr(pr + 2)}")
            e(f"  v_add_u32 {vr(pr)}, {vr(pr)}, {vr(pr + 3)}")
            e("  s_nop 0")
            e(f"  v_readfirstlane_b32 s{sT0}, {vr(pr)}")
            e(f"  s_mul_i32 s{sT0}, s{sT0}, {P.kd}")
            e(f"  s_ashr_i32 s{sT0}, s{sT0}, 7")
            e(f"  s_sub_u32 s{sT0}, {P.bd}, s{sT0}")
            e(f"  s_min_i32 s{sT0}, s{sT0}, {P.bm}")
            e("L_bd:")
            e(f"  s_cmp_le_i32 s{sT0}, 0")
            e("  s_cbranch_scc1 L_bd_ok")
            e("  s_sleep 1")
            e(f"  s_sub_u32 s{sT0}, s{sT0}, 1")
            e("  s_branch L_bd")
            e("L_bd_ok:")
        elif P.bd:
            e(f"  s_sleep {P.bd}")
        hp(1)
        bulk()
    e("  s_mov_b32 exec_hi, 0xff")
    e(f"  global_store_dwordx4 {vr(sg2)}, {vr(fo, 4)}, s[{sWS}:{sWS + 1}] offset:{14 * 384 - 4096} sc1")
    if not P.late:
        hp(1)
    for k in range(3):
        e(f"  v_readlane_b32 s{sMSK + k}, {vr(vCNT)}, {k}")
        e(f"  s_mov_b32 s{sMSK + 4 + k}, 1")
    e("  s_nop 1")
    e("  s_waitcnt vmcnt(0)")
    hp(2)
    if P.nopoll:
        e("  s_branch L_hw_ok")
    if P.sadd:
        for k in range(3):
            e(f"  s_atomic_add s{sMSK + 4 + k}, s[{sWS}:{sWS + 1}], s{sMSK + k} glc")
        hp(3)
        e("  s_waitcnt lgkmcnt(0)")
        e(f"  s_cmp_ge_u32 s{sMSK + 4}, 15")
        e("  s_cbranch_scc1 L_hw_ok")
    else:
        e("  s_mov_b64 exec, 7")
        e(f"  global_atomic_add {vr(vCNT)}, {vr(vOne)}, s[{sWS}:{sWS + 1}] sc1")
        hp(3)
    e("L_hw:")
    e(f"  s_mov_b32 s{sF}, 0")
    e(f"  s_atomic_add s{sF}, s[{sWS}:{sWS + 1}], s{sMSK} glc")
    e("  s_waitcnt lgkmcnt(0)")
    e(f"  s_cmp_ge_u32 s{sF}, 16")
    e("  s_cbranch_scc1 L_hw_ok")
    budget("L_hw_ok")
    if P.sleep:
        e(f"  s_sleep {P.sleep}")
    e("  s_branch L_hw")
    e("L_hw_ok:")
    hp(4)
    e("  s_mov_b64 exec, -1")
    e(f"  global_load_dwordx4 {vr(cs, 4)}, {vr(ra + 15)}, s[{sWS}:{sWS + 1}] sc1")
    for k in range(15):
        e(f"  global_load_dwordx2 {vr(rec + 2 * k, 2)}, {vr(ra + (0 if 'r' in P.xp else k % 7 if 'h' in P.xp else k % 3 if 'H' in P.xp else k))}, s[{sWS}:{sWS + 1}] sc1")
    e(f"  s_lshl_b32 s{sH}, s{sO}, 4")
    e(f"  v_mov_b32 {vr(h1)}, s{sH}")
    e(f"  v_add_u32 {vr(h0)}, {PB + 15 * 3072}, {vr(vL16)}")
    for i in range(4):
        e(f"  v_mov_b32 {vr(fo + i)}, 0")
    e("  s_waitcnt vmcnt(15)")
    hp(5)
    e(f"  v_mov_b32 {vr(h2)}, {vr(cs)}")
    rowred("v_max_f32", h2)
    e(f"  v_sub_f32 {vr(h2)}, {vr(cs)}, {vr(h2)}")
    e(f"  v_exp_f32 {vr(h2)}, {vr(h2)}")
    e("  s_nop 0")
    e(f"  v_mul_f32 {vr(h3)}, {vr(h2)}, {vr(cs + 1)}")
    rowred("v_add_f32", h3)
    e(f"  v_rcp_f32 {vr(h3)}, {vr(h3)}")
    e("  s_nop 0")
    e(f"  v_mul_f32 {vr(h2)}, {vr(h2)}, {vr(h3)}")
    e(f"  v_ldexp_f32 {vr(h3)}, {vr(h2)}, {vr(cs + 3)}")
    e(f"  v_readlane_b32 s{sMSK + 15}, {vr(h2)}, 15")
    for k in range(15):
        e(f"  v_readlane_b32 s{sMSK + k}, {vr(h3)}, {k}")
    for k in range(15):
        e(f"  s_waitcnt vmcnt({14 - k})")
        for i in range(4):
            e(f"  v_fma_mix_f32 {vr(fo + i)}, {vr(rec + 2 * k + i // 2)}, s{sMSK + k}, {vr(fo + i)} op_sel:[{i & 1},0,0] op_sel_hi:[1,0,0]")
    hp(6)
    e("  s_barrier")
    hp(7)
    sum_partials(1)
    for i in range(4):
        e(f"  v_fmac_f32 {vr(fo + i)}, s{sMSK + 15}, {vr(x + i)}")
    e(f"  v_cvt_pk_bf16_f32 {vr(fo)}, {vr(fo)}, {vr(fo + 1)}")
    e(f"  v_cvt_pk_bf16_f32 {vr(fo + 1)}, {vr(fo + 2)}, {vr(fo + 3)}")
    e("  s_mov_b32 exec_hi, 0xffff")
    e(f"  global_store_dwordx2 {vr(u)}, {vr(fo, 2)}, s[{sOUT}:{sOUT + 1}] {P.of}")
    if P.enc:
        m0, m1, base, amp, wg = [int(v) for v in P.enc.split(",")]
        if m1 == 32:
            e("  s_memrealtime s[18:19]")
        if m0 == 0:
            e(f"  s_mov_b32 s16, s{sST}")
        e("  s_waitcnt lgkmcnt(0)")
        e("  s_sub_u32 s16, s18, s16")
        e(f"  s_atomic_add s16, s[{sDBG}:{sDBG + 1}], 4")
        e(f"  s_cmp_eq_u32 s2, {wg}")
        e("  s_cbranch_scc0 L_nohold")
        e("L_hold0:")
        e(f"  s_memrealtime s[{sST + 2}:{sST + 3}]")
        e("  s_waitcnt lgkmcnt(0)")
        e(f"  s_sub_u32 s{sT0}, s{sST + 2}, s{sST}")
        e(f"  s_cmp_lt_u32 s{sT0}, 12500")
        e("  s_cbranch_scc1 L_hold0")
        e("  s_mov_b32 s16, 0")
        e(f"  s_atomic_add s16, s[{sDBG}:{sDBG + 1}], 4 glc")
        e("  s_waitcnt lgkmcnt(0)")
        e(f"  s_sub_u32 s16, s16, {base * 256}")
        e("  s_max_i32 s16, s16, 0")
        e("  s_min_i32 s16, s16, 128000")
        e(f"  s_mul_i32 s16, s16, {amp}")
        e("  s_lshr_b32 s16, s16, 8")
        e("  s_add_u32 s16, s16, 13000")
        e("L_hold:")
        e(f"  s_memrealtime s[{sST + 2}:{sST + 3}]")
        e("  s_waitcnt lgkmcnt(0)")
        e(f"  s_sub_u32 s{sT0}, s{sST + 2}, s{sST}")
        e(f"  s_cmp_lt_u32 s{sT0}, s16")
        e("  s_cbranch_scc1 L_hold")
        e("L_nohold:")
        e("  s_waitcnt lgkmcnt(0)")
    if P.hold:
        e("; diagnostic build only")
        e("L_hold:")
        e(f"  s_memrealtime s[{sST + 2}:{sST + 3}]")
        e("  s_waitcnt lgkmcnt(0)")
        e(f"  s_sub_u32 s{sT0}, s{sST + 2}, s{sST}")
        e(f"  s_cmp_lt_u32 s{sT0}, {P.hold}")
        e("  s_cbranch_scc1 L_hold")
    if P.stamp:
        e(f"  s_memrealtime s[{sST + 2}:{sST + 3}]")
        if P.hprof:
            e("  s_waitcnt lgkmcnt(0)")
            e("  s_lshl_b32 s44, s2, 5")
            e("  s_add_u32 s44, s44, 0x80000")
            e("  v_mov_b32 v1, s44")
            for k in range(8):
                e(f"  s_sub_u32 s45, s{sST + 2}, s{HP[k]}")
                e(f"  v_mov_b32 v{4 + k}, s45")
            e(f"  global_store_dwordx4 v1, v[4:7], s[{sWS}:{sWS + 1}]")
            e(f"  global_store_dwordx4 v1, v[8:11], s[{sWS}:{sWS + 1}] offset:16")
            e("  s_nop 2")
        e("  s_getreg_b32 s6, hwreg(HW_REG_XCC_ID)")
        e("  s_getreg_b32 s7, hwreg(HW_REG_HW_ID)")
        e("  s_waitcnt lgkmcnt(0)")
        e(f"  v_mov_b32 v4, s{sST}")
        e(f"  v_mov_b32 v5, s{sST + 2}")
        e("  v_mov_b32 v6, s6")
        e("  v_mov_b32 v7, s7")
        e("  s_lshl_b32 s8, s2, 4")
        e("  v_mov_b32 v1, s8")
        e(f"  global_store_dwordx4 v1, v[4:7], s[{sWS}:{sWS + 1}]")
    e("L_end:")
    e("  s_endpgm")
    e(".p2align 6")
    e(".type L_order,@object")
    e("L_order:")
    for k in range(0, len(ordtab), 8):
        e("  .long " + ", ".join(f"{v:#x}" for v in ordtab[k:k + 8]))
    e(".type L_hpos,@object")
    e("L_hpos:")
    for b in range(2):
        at = {chunk_of(b, n, s_): lpos(n, s_) for n in range(24) for s_ in range(16)}
        rows = sorted({c // 3 for c in at})
        for l_ in range(64):
            r0, r1 = rows[l_], rows[l_ + 64]
            e("  .long " + ", ".join(f"{a_ | b_ << 16:#x}" for a_, b_ in [(at[3 * r0 + k], at[3 * r1 + k]) for k in range(3)] + [(2 * r0, 2 * r1)]))
    e('.section .rodata,"a"')
    e(".p2align 6")
    e(f".amdhsa_kernel {NAME}_kernel")
    e(f"  .amdhsa_next_free_vgpr {NV}")
    e("  .amdhsa_next_free_sgpr 100")
    e(f"  .amdhsa_accum_offset {(NV + 3) // 4 * 4}")
    e("  .amdhsa_group_segment_fixed_size 0")
    e("  .amdhsa_kernarg_size 112")
    e("  .amdhsa_user_sgpr_count 2")
    e("  .amdhsa_user_sgpr_kernarg_segment_ptr 1")
    e("  .amdhsa_system_sgpr_workgroup_id_x 1")
    e(".end_amdhsa_kernel")
    return "\n".join(o) + "\n", NV


if __name__ == "__main__":
    ap = argparse.ArgumentParser()
    ap.add_argument("-o", default=f"/code/{NAME}.s")
    for name, d in (("sh", 4), ("deep", 5), ("pd", 9), ("pre", 12), ("nf", 6), ("su", 3), ("ss", 3), ("hp0", 0), ("tst", 20),
                    ("ctl", 1), ("hi", 0), ("hiv", 5), ("lo", -25), ("thr", 2), ("tp", 2), ("inv", 1), ("start", 5), ("s0", 0), ("ba", 3),
                    ("r0", 2), ("r1", 30), ("rf", 3), ("rp", 2), ("rt", 26), ("rotl", 7), ("kp", 7), ("kp0", 5), ("kn", 20),
                    ("bd", 0), ("kd", 0), ("kb", 0), ("bm", 60), ("late", 0), ("sadd", 0), ("kc", 0), ("ko", 0), ("ka", 0),
                    ("eprio", 0), ("sleep", 4), ("psl", 1), ("bound", 4000000), ("hold", 0), ("dly", 0), ("dlb", 2)):
        ap.add_argument("--" + name, type=int, default=d)
    ap.add_argument("--kp_", default="6,6,6,7,8,9,9,10,10,11,11,12,12", help="K loads issued by each prologue point")
    ap.add_argument("--sf", default="nt")
    ap.add_argument("--of", default="")
    ap.add_argument("--wf", default="sc1")
    ap.add_argument("--enc", default="", help="diagnostic only: m0,m1,base,amp,wg")
    ap.add_argument("--qf", default="")
    ap.add_argument("--cf", default="")
    ap.add_argument("--ok", default="REXbLbLbL", help="events of a K group")
    ap.add_argument("--ov", default="REXbLbLbL", help="events of a V group")
    ap.add_argument("--bu", default="012", help="extra depth per position in the issued group")
    ap.add_argument("--th", default="-9,5,13")
    ap.add_argument("--sch", default="sch_np.txt")
    ap.add_argument("--xp", default="", help="timing experiments only")
    for name in ("stamp", "trace", "tfine", "hprof", "nopoll"):
        ap.add_argument("--" + name, action="store_true", help="diagnostics only")
    a = ap.parse_args()
    txt, nv = gen(a)
    open(a.o, "w").write(txt)
    print("wrote", a.o, "vgprs", nv)
```

```python
import argparse
import math
import os
import struct
from gen import HEADER, NAME, Alloc, f32bits, vr

HB = 2048 * 768

ABOUT = """
Generated by tools/gen9.py.
Work split: workgroup (cluster c, block m, member b) handles 128 rows of the 256-row block m for 16 heads 16 k + c
  (slots k = 5 and 10 take their head from a table instead of c); the two members alternate over 32 KiB runs.
  Waves 1-4 stream one 4 KiB block per round; a 16-lane row handles one third (64 dims) of a KV row per load.
  K sweep: logit = k_scale * sum_d (qk - 7.5) * (qa * cos + qb * sin), RoPE moved onto the rotated q;
  V sweep: partial = sum_rows p * v_scale * qv.
  Wave 0 (helper) rotates q, takes max / exp / sums over the workgroup's rows of each head, and merges partials.
Constant parameters (the same for every seed) are built in: both zero points (7.5), q_cos / q_sin (table L_qcs) and
  k_cos / k_sin = bf16(cos / sin(fp32(row * inv_freq))), evaluated once per workgroup from the table L_inv into LDS.
Hand-off: every workgroup finishes one of its heads and streams that head last.  Partials and (max, sum) of
  the other 15 go to d_ws with sc1 stores; every 8 bytes carry a piece of a tag that differs from the one found there on
  entry (sent round through d_debug).  The finisher reads until all tags fit and rescales all 16 to the true row maximum.
Flow control (speed only, results do not depend on it): waves publish a group counter and sample the counters of
  units on the same die; late waves keep one more load in flight, early waves one or two fewer.  Helpers rank the dies.
"""

RUN = (1, 2, 0)


def chunk_of(b, n, s):
    g = 256 * RUN[n >> 3] + 128 * b + 16 * (n & 7) + s
    return {128: 512, 255: 639, 512: 128, 639: 255}.get(g, g)


def tidx(b, row):
    return row - 43 * b - 42 * ((row >= 85) + (row >= 171))


def rev(x, bits):
    return int(format(x, f"0{bits}b")[::-1], 2)


def lpos(n, s):
    return 4 * (16 * s + rev(n, 4)) if n < 16 else 1024 + 4 * (8 * s + rev(n - 16, 3))


TN = [(RUN[n >> 3] + (n & 7)) % 3 for n in range(24)]
SPECIAL = {n: i for i, n in enumerate(sorted(8 * RUN.index(r) + i for r in (0, 2) for i in (0, 7)))}
for b_ in range(2):
    ch = sorted(chunk_of(b_, n, s) for n in range(24) for s in range(16))
    assert ch == sorted(3 * r + k for r in {c // 3 for c in ch} for k in range(3))
    assert all(chunk_of(b_, n, s) % 3 == (TN[n] + 2 * b_ + s) % 3 for n in range(24) for s in range(16))
    assert len({tidx(b_, c // 3) for c in ch}) == 128 and max(tidx(b_, c // 3) for c in ch) == 128


def gen(P):
    o = []
    e = o.append
    RING, PD = 24, P.pd
    sh, deep = P.sh, P.deep
    PRE = P.pre
    TP = P.tp
    LAG = 2
    assert deep <= PD - 1 and sh <= deep and PD <= PRE
    SL = 512
    SA = 16 * SL

    FL = 0
    ST = 256
    TB = 512
    QB = TB + 129 * 384
    LGB = QB + 16 * 768 + 1536
    SCB = LGB + 16 * 1536
    PB = SCB + 2 * SA
    PK = PB + 49152
    LDS = PK + 6144
    assert 81920 < LDS <= 163840
    W_REC = 0x400000
    W_RK = 0x780000
    W_PL = 0x7c0000

    sQ, sQK, sKS, sKZ, sQV, sVS, sVZ, sQC = 4, 6, 8, 10, 12, 14, 16, 18
    sQS, sKC, sKSN, sOUT = 20, 22, 24, 26
    sDBG, sWS = 28, 30
    rA, rB = 32, 36
    sW, sJ, sC, sK, sT0, sT1, sF, sNEED = 40, 41, 42, 43, 44, 45, 46, 47
    sMSK = 48
    sOF = 51
    sPB = 60
    sCO = 61
    sZ = 64
    sMASK, sSCALE, sH = 66, 67, 68
    sS = 69
    sX = 70
    sRF = 80
    sRT = 82
    sST = 84
    sN = 90
    sB = 91
    sVO = 92
    sSP = 94
    sI = 95
    sSE, sCU = 81, 79
    sLO = 78
    sO = 3
    sCN = 96
    sOH, sTG = 98, 99

    va = Alloc(1)
    vT16, vF, vZ, vC16 = [va.take(1) for _ in range(4)]
    voff = va.take(7)
    vTA = va.take(7)
    vQA = va.take(3)
    vPA = va.take(3)
    vLG = va.take(2)
    vLB = va.take(2)
    vLV = va.take(2)
    A = va.take(2)
    LG = va.take(2)
    M1, M2, M3 = [va.take(1) for _ in range(3)]
    bc = va.take(2, 2)
    dacc = va.take(2, 2)
    wt = va.take(4, 2)
    vtr, vPW, vPS, vN, vSum, vSu2, vBA = [va.take(1) for _ in range(7)]
    vPL = va.take(4)
    vBI = va.take(2, 2)
    smp = va.take(8, 4)
    qa = va.take(12, 4)
    tab = va.take(24, 4)
    tmp = va.take(12, 4)
    ring = va.take(4 * RING, 4)
    NV = va.n
    acc = qa

    here = os.path.dirname(os.path.abspath(__file__))
    sch = [[int(x) for x in ln.split()] for ln in open(os.path.join(here, P.sch))]
    sch = [x[:3] + [k for b_ in P.vo for k in x[3 + 5 * int(b_):8 + 5 * int(b_)]] + x[18:] for x in sch]
    inv, qcs = [[int(x, 16) for x in ln.split()] for ln in open(os.path.join(here, "consts.txt"))]
    cj = lambda g: (g >> 4, (g & 7) * 2 + ((g >> 3) & 1))
    ent = {g: sch[16 * cj(g)[0] + cj(g)[1]] for g in range(256)}
    cl = lambda g, k: ent[g][0] if k == 5 else ent[g][1] if k == 10 else g >> 4
    assert sorted(16 * ent[g][2] + cl(g, ent[g][2]) for g in range(256)) == list(range(256))
    place = (lambda g: g) if P.pol < 0 else (lambda g: (g & 127) << 1 | (g >> 7) ^ P.pol)
    ordtab = []
    for g in range(256):
        o_, od = ent[g][2], ent[g][3:]
        assert sorted(od) == list(range(16)) and od[15] == o_
        con = [x for x in range(256) if x != g and cl(x, o_) == cl(g, o_)] + [g]
        assert sorted(cj(x)[1] for x in con) == list(range(16))
        nib = sum(k << (4 * t) for t, k in enumerate(range(16) if "i" in P.xp else od))
        cn = sum((g >> 4 if "c" in P.xp else cl(g, k)) << (4 * k) for k in range(16))
        u16 = [16 * place(x) + ent[x][3:].index(o_) for x in con]
        assert all(v % 16 < 15 for v in u16[:15]) and P.pit % 64 == 0
        ordtab += [nib & 0xffffffff, nib >> 32, cn & 0xffffffff, cn >> 32, 16 * o_ + cl(g, o_), place(g), o_, 2 if ((16 * o_ + cl(g, o_)) * HB + (g & 7) * 196608 + 98304) >> 28 else 0xffffffff]
        ordtab += [u16[2 * i] | u16[2 * i + 1] << 16 for i in range(8)]

    def ld(n):
        rr = rA if n < 24 else rB
        n %= 24
        so = f"s{sOF + (n & 7)}" if n & 7 else "0"
        vo = voff + (3 + SPECIAL[n] if n in SPECIAL and "x" not in P.xp else n >> 3)
        e(f"  buffer_load_dwordx4 {vr(ring + 4 * n, 4)}, {vr(vo)}, s[{rr}:{rr + 3}], {so} offen nt")

    ORD = {"K": P.ok, "V": P.ov}
    DIST = {"K": PRE, "V": PD}
    bu = [int(x) for x in P.bu]
    th = [int(x) for x in P.th.split(",")]
    assert PD % 3 == 0 and PRE % 3 == 0 and deep == sh + 1

    def memops(ph, a):
        r = []
        for i, c in enumerate(ORD[ph]):
            if c == "X" and P.ctl:
                r += [(i, "B")] * (a == P.ba) + [(i, "S"), (i, "Q")]
            if c == "L":
                r.append((i, "L"))
        return r

    def back(ph, a, i):
        r = [c for j, c in memops(ph, a) if j < i][::-1]
        for k in range(1, 8):
            r += [c for _, c in memops(ph, (a - k) % 8)][::-1]
        return r

    def cnt(ph, a, i, depth):
        depth += bu[ORD[ph][:i].count("L")]
        r = back(ph, a, i)
        return [k + 1 for k, c in enumerate(r) if c == "L"][depth - 2] if depth > 1 else 0

    def swait(ph, a):
        assert ORD[ph].index("E") < ORD[ph].index("X")
        r = back(ph, a, ORD[ph].index("E"))
        return [k for k, c in enumerate(r) if c == "Q"][LAG - 1]

    plain = {}

    def verify():
        ops = [("L", i) for i in range(PRE)]
        done = ORD["K"][:ORD["K"].index("L")].count("b")
        for g in range(256):
            ph, a = "KV"[g >= 128], g % 8
            if 3 * g + PD >= 768 or 128 <= g < 128 + (PRE - PD) // 3:
                for n in range(3 * g, 3 * g + 4 - (g == 255)):
                    plain[n] = len(ops) - 1 - ops.index(("L", n))
                done = max(done, len(ops) - plain[min(3 * g + 3, 767)])
                continue
            nb = nl = 3 * g
            for i, c in enumerate(ORD[ph]):
                if c == "E" and P.ctl:
                    done = max(done, len(ops) - swait(ph, a))
                if c == "X" and P.ctl:
                    ops += [("X", 0)] * (1 + (a == P.ba))
                if c == "b":
                    assert ("L", nb) in ops[:done], nb
                    nb += 1
                if c == "L":
                    done = max(done, len(ops) - cnt(ph, a, i, deep if P.ctl else sh))
                    ops.append(("L", nl + DIST[ph]))
                    nl += 1
    verify()
    lab = [0]
    rare = []

    def flush():
        o.extend(rare)
        rare.clear()

    def issue(ph, a, i):
        j = ORD[ph][:i].count("L")
        lab[0] += 1
        if P.ctl and j == TP:
            e(f"  s_cmp_lt_i32 s{sS}, {P.lo}")
            e(f"  s_cbranch_scc1 L_t{lab[0]}")
            rare.extend([f"L_t{lab[0]}:", f"  s_waitcnt vmcnt({cnt(ph, a, i, P.thr + 1)})", f"  s_branch L_p{lab[0]}"])
        if P.ctl:
            t = (P.hi if ph == "K" else P.hiv) + th[j]
            assert t >= P.lo
            e(f"  s_cmp_gt_i32 s{sS}, {t}")
            if t < 0 and P.inv:
                e(f"  s_cbranch_scc0 L_q{lab[0]}")
                rare.extend([f"L_q{lab[0]}:", f"  s_waitcnt vmcnt({cnt(ph, a, i, sh)})", f"  s_branch L_p{lab[0]}"])
                e(f"  s_waitcnt vmcnt({cnt(ph, a, i, deep)})")
                e(f"L_p{lab[0]}:")
            else:
                e(f"  s_cbranch_scc1 L_p{lab[0]}")
                e(f"  s_waitcnt vmcnt({cnt(ph, a, i, sh)})")
                e(f"L_p{lab[0]}:")
                e(f"  s_waitcnt vmcnt({cnt(ph, a, i, deep)})")
        else:
            e(f"  s_waitcnt vmcnt({cnt(ph, a, i, sh)})")
        ld(3 * a + j + DIST[ph])
        if ph == "V" and 3 * a + j + 1 == P.mg:
            e(f"  ds_write_b32 {vr(vPW)}, {vr(M1)} offset:{FL + 32}")
        if ph == "V" and 3 * a + j + 1 == P.ml:
            e(f"  ds_write_b32 {vr(vPW)}, {vr(M1)} offset:{FL + 48}")

    def evaluate(ph, a):
        if not P.ctl:
            return
        sm = smp + 4 * (a % LAG)
        e(f"  s_waitcnt vmcnt({swait(ph, a)})")
        if a == (P.ba + LAG) % 8:
            e(f"  v_add_u32 {vr(vBI)}, {vr(vBI)}, {vr(vBI + 1)}")
        e(f"  s_add_u32 s{sT0}, s{sLO}, 0x03030303")
        e(f"  v_msad_u8 {vr(vSum)}, s{sLO}, {vr(sm)}, 0")
        e(f"  v_msad_u8 {vr(vSu2)}, s{sT0}, {vr(sm)}, 0")
        if a == (P.ba + LAG) % 8:
            e(f"  v_readfirstlane_b32 s{sB}, {vr(vBI)}")
        for k in range(1, 3):
            e(f"  v_msad_u8 {vr(vSum)}, s{sLO}, {vr(sm + k)}, {vr(vSum)}")
            e(f"  v_msad_u8 {vr(vSu2)}, s{sT0}, {vr(sm + k)}, {vr(vSu2)}")
        e(f"  v_sub_u32 {vr(vSum)}, {vr(vSum)}, {vr(vSu2)}")
        e(f"  s_add_u32 s{sLO}, s{sLO}, 0x01010101")
        e(f"  v_readlane_b32 s{sMASK}, {vr(vSum)}, 0")
        e(f"  v_readlane_b32 s{sSCALE}, {vr(vSum)}, 1")

    def decide(ph, a):
        if not P.ctl:
            return
        if a == (P.ba + LAG) % 8:
            for it in filter(None, P.sb.split(",")):
                st_, b_ = [int(v) for v in it.split(":")]
                if (st_ >= 16) == (ph == "V"):
                    e(f"  s_cmp_eq_u32 s{sK}, {st_ % 16}")
                    e(f"  s_cselect_b32 s{sT0}, {b_}, 0")
                    e(f"  s_add_u32 s{sB}, s{sB}, s{sT0}")
            for it in filter(None, P.tb.split(",")):
                s0_, s1_, b_ = [int(v) for v in it.split(":")]
                if (s0_ >= 16) == (ph == "V"):
                    e(f"  s_bitcmp1_b32 {sum(1 << (k % 16) for k in range(s0_, s1_ + 1)):#x}, s{sK}")
                    e(f"  s_cselect_b32 s{sT0}, {b_}, 0")
                    e(f"  s_mul_i32 s{sT0}, s{sT0}, s{sPB}")
                    e(f"  s_add_u32 s{sB}, s{sB}, s{sT0}")
        cur, old = (sI, sCO) if a & 1 else (sCO, sI)
        e(f"  s_add_u32 s{cur}, s{sMASK}, s{sSCALE}")
        e(f"  s_add_u32 s{sS}, s{cur}, s{old}")
        e(f"  s_ashr_i32 s{sS}, s{sS}, 1")
        e(f"  s_add_u32 s{sS}, s{sS}, s{sB}")
        if ph == "K" and a < P.start:
            e(f"  s_cmp_eq_u32 s{sK}, 0")
            e(f"  s_cselect_b32 s{sS}, {P.s0}, s{sS}")

    def exchange(a):
        if not P.ctl:
            return
        e("  s_mov_b64 exec, 1")
        if a == P.ba:
            e(f"  global_load_dwordx2 {vr(vBI, 2)}, {vr(vBA)}, s[{sWS}:{sWS + 1}] sc1")
        e(f"  global_store_byte {vr(vPS)}, {vr(vN)}, s[{sWS}:{sWS + 1}]")
        e("  s_mov_b64 exec, 3")
        e(f"  global_load_dwordx3 {vr(smp + 4 * (a % LAG), 3)}, {vr(vPL + a % 4)}, s[{sWS}:{sWS + 1}] sc1")
        e(f"  v_add_u32 {vr(vN)}, 1, {vr(vN)}")
        e("  s_mov_b64 exec, -1")

    def srd_head(rr, sp, sh_):
        e(f"  s_mul_i32 s{sT0}, s{sh_}, {HB}")
        e(f"  s_add_u32 s{rr}, s{sp}, s{sT0}")
        e(f"  s_addc_u32 s{rr + 1}, s{sp + 1}, 0")

    def vstep_k(dst, src):
        e(f"  s_lshl_b32 s{dst}, s{src}, 2")
        e(f"  s_lshr_b64 s[{sZ}:{sZ + 1}], s[{sVO}:{sVO + 1}], s{dst}")
        e(f"  s_and_b32 s{dst}, s{sZ}, 15")

    def head_of(dst, slot):
        e(f"  s_lshl_b32 s{sT0}, s{slot}, 2")
        e(f"  s_lshr_b64 s[{sZ}:{sZ + 1}], s[{sCN}:{sCN + 1}], s{sT0}")
        e(f"  s_and_b32 s{sZ}, s{sZ}, 15")
        e(f"  s_lshl4_add_u32 s{dst}, s{slot}, s{sZ}")

    def budget(ok):
        e(f"  s_cmp_eq_u32 s{sSP}, 0")
        e(f"  s_cbranch_scc1 {ok}")
        e(f"  s_sub_u32 s{sSP}, s{sSP}, 1")

    def flagwait(name, off):
        e(f"L_{name}:")
        e("  s_waitcnt lgkmcnt(0)")
        e(f"  v_readfirstlane_b32 s{sF}, {vr(vF)}")
        e(f"  s_cmp_ge_u32 s{sF}, s{sNEED}")
        e(f"  s_cbranch_scc0 L_{name}_no")
        e(f"L_{name}_ok:")
        rare.extend([f"L_{name}_no:", f"  s_cmp_eq_u32 s{sSP}, 0", f"  s_cbranch_scc1 L_{name}_ok", f"  s_sub_u32 s{sSP}, s{sSP}, 1",
                     f"  ds_read_b32 {vr(vF)}, {vr(vZ)} offset:{off}", f"  s_branch L_{name}"])

    def tr():
        if P.trace:
            e(f"  {'s_memtime' if 'm' in P.xp else 's_memrealtime'} s[88:89]")
            e("  s_waitcnt lgkmcnt(0)")
            e(f"  v_writelane_b32 {vr(vtr)}, s88, m0")
            e("  s_add_u32 m0, m0, 1")
            e("  s_min_u32 m0, m0, 63")

    def die_base(dst):
        e(f"  s_getreg_b32 s{sSE}, hwreg(HW_REG_HW_ID, 8, 7)")
        e(f"  s_getreg_b32 s{dst}, hwreg(HW_REG_XCC_ID, 0, 3)")
        e(f"  s_and_b32 s{sCU}, s{sSE}, 15")
        e(f"  s_lshr_b32 s{sSE}, s{sSE}, 5")
        e(f"  s_mul_i32 s{dst}, s{dst}, 4352")
        e(f"  s_add_u32 s{dst}, s{dst}, {W_PL}")

    ha = Alloc(16)
    l, u, h0, h1, h2, h3 = [ha.take(1) for _ in range(6)]
    qo, wa, wb, sgn, sgx, sg2 = [ha.take(1) for _ in range(6)]
    ro = ha.take(8)
    vL16, vCNT, vDB, vOne, vFA, vFI, vFR, vFX, vFB, vEL, vCL, vSa = [ha.take(1) for _ in range(12)]
    z4 = ha.take(4, 4)
    cs = ha.take(8, 4)
    sc = ha.take(4, 4)
    qn = ha.take(4, 4)
    x = ha.take(32, 4)
    pr = ha.take(4, 4)
    fo = ha.take(4, 4)
    rec = ha.take(32, 4)
    blk = ha.take(24, 4)
    st4 = ha.take(4, 4)
    ra = ha.take(16)
    assert ha.n <= NV and vZ < 16

    invX, invY, tK, tA, tN, tO = tmp, tmp + 4, tmp + 8, tab, tab + 4, tab + 8
    PC0 = 20 + 8 * P.stamp + 16 * (P.dly > 0)
    D_INV, D_QCS, D_END = 256, 768, 1152
    NF = P.nf
    assert RUN[0] == 1 and NF <= 8
    e(HEADER.rstrip("\n"))
    e(f"; @launch grid=(256,1,1) block=(320,1,1) lds={LDS}")
    for ln in ABOUT.strip("\n").split("\n"):
        e("; " + ln)
    e('.amdgcn_target "amdgcn-amd-amdhsa--gfx950"')
    e(".text")
    e(f".globl {NAME}_kernel")
    e(".p2align 8")
    e(f".type {NAME}_kernel,@function")
    e(f"{NAME}_kernel:")
    e("  s_cmpk_ge_u32 s2, 0x100")
    e("  s_cbranch_scc1 L_end")
    if P.dly:
        e("; diagnostic build only: half of the dies start late")
        e(f"  s_getreg_b32 s4, hwreg(HW_REG_XCC_ID, {P.dlb}, 1)")
        e("  s_cmp_eq_u32 s4, 0")
        e("  s_cbranch_scc1 L_dly")
        e(f"  s_sleep {P.dly}")
        e("L_dly:")
    if P.stamp:
        e(f"  s_memrealtime s[{sST}:{sST + 1}]")
    e("  s_load_dwordx16 s[4:19], s[0:1], 0")
    e(f"  s_getpc_b64 s[{sZ}:{sZ + 1}]")
    e("L_pc:")
    e("  v_cmp_gt_u32 vcc, 64, v0")
    e(f"  v_lshlrev_b32 {vr(vT16)}, 4, v0")
    e(f"  s_lshr_b32 s{sK}, s2, 4")
    if P.map:
        e("; bits 2 and 7 of the number trade places: a cluster stays on four dies")
        e(f"  s_lshr_b32 s{sH}, s2, 5")
        e(f"  s_xor_b32 s{sH}, s{sH}, s2")
        e(f"  s_and_b32 s{sH}, s{sH}, 4")
        e(f"  s_mul_i32 s{sH}, s{sH}, 33")
        e(f"  s_xor_b32 s2, s2, s{sH}")
    e(f"  s_lshr_b32 s{sC}, s2, 4")
    e(f"  s_and_b32 s{sH}, s2, 7")
    e(f"  s_lshl3_add_u32 s{sH}, s{sC}, s{sH}")
    e(f"  s_movk_i32 s{sNEED}, 768")
    e("  s_cbranch_vccz L_s0")
    e(f"  v_lshl_add_u32 {vr(h0)}, s{sK}, 6, v0")
    e(f"  v_mul_u32_u24 {vr(h0)}, {P.tst}, {vr(h0)}")
    e(f"  global_load_dword {vr(h3)}, {vr(h0)}, s[{sZ}:{sZ + 1}] offset:{D_END - PC0} {P.cf}")
    e(f"  v_and_b32 {vr(vL16)}, 0x1f0, {vr(vT16)}")
    e(f"  global_load_dwordx4 {vr(pr, 4)}, {vr(vL16)}, s[{sZ}:{sZ + 1}] offset:{D_QCS - PC0}")
    e("  s_branch L_helper")
    e("L_s0:")
    e(f"  v_and_b32 {vr(vC16)}, 0xf0, {vr(vT16)}")
    e(f"  global_load_dwordx4 {vr(invX, 4)}, {vr(vC16)}, s[{sZ}:{sZ + 1}] offset:{D_INV - PC0}")
    e(f"  global_load_dwordx4 {vr(invY, 4)}, {vr(vC16)}, s[{sZ}:{sZ + 1}] offset:{D_INV + 256 - PC0}")
    e(f"  s_mul_i32 s{sT0}, s{sH}, 196608")
    e(f"  s_and_b32 s{sT1}, s2, 8")
    e(f"  s_lshl_b32 s{sT1}, s{sT1}, 12")
    e(f"  s_add_u32 s{sT0}, s{sT0}, s{sT1}")
    e(f"  s_add_u32 s{sT0}, s{sT0}, {65536 * RUN[0] - 1024 + 4096}")
    e(f"  v_add_u32 {vr(tA)}, s{sT0}, {vr(vT16)}")
    for k in range(1, (NF + 1) // 2):
        e(f"  v_add_u32 {vr(tA + k)}, {8192 * k}, {vr(tA)}")
    e("  s_waitcnt lgkmcnt(0)")
    for n in range(NF):
        e(f"  global_load_dwordx4 {vr(ring + 4 * n, 4)}, {vr(tA + n // 2)}, s[{sQK}:{sQK + 1}] offset:{4096 * (n % 2) - 4096} nt")
    e("  s_branch L_s1")
    e("L_b0:")
    e(f".if (L_b0 - {NAME}_kernel > {D_INV}) || (L_pc - {NAME}_kernel != {PC0})")
    e('.error "entry block layout"')
    e(".endif")
    e(".p2align 8")
    e(".type L_inv,@object")
    e("L_inv:")
    tb = inv[:64] + inv[64:] + inv[64:]
    for k in range(0, 128, 8):
        e("  .long " + ", ".join(f"{v:#x}" for v in tb[k:k + 8]))
    e(".type L_qcs,@object")
    e("L_qcs:")
    for k in range(0, 96, 8):
        e("  .long " + ", ".join(f"{v:#x}" for v in qcs[k:k + 8]))

    def common():
        e(f"  s_load_dwordx8 s[24:31], s[0:1], 80")
        e(f"  s_lshl_b32 s{sT0}, s2, 6")
        e(f"  s_add_u32 s{sT0}, s{sT0}, L_order-L_pc")
        e(f"  s_add_u32 s{sRT}, s{sZ}, s{sT0}")
        e(f"  s_addc_u32 s{sRT + 1}, s{sZ + 1}, 0")
        e(f"  s_load_dwordx2 s[{sVO}:{sVO + 1}], s[{sRT}:{sRT + 1}], 0")
        e(f"  s_load_dwordx2 s[{sCN}:{sCN + 1}], s[{sRT}:{sRT + 1}], 8")
        if P.tb:
            e(f"  s_load_dword s{sPB}, s[{sRT}:{sRT + 1}], 28")
        e(f"  v_mov_b32 {vr(vZ)}, 0")
        e(f"  s_mov_b32 s{sSP}, {P.bound}")
        e(f"  s_bfe_u32 s{sJ}, s2, 0x10003")

    PFR = [8, 10, 14, 16, 18, 20, 22, 72, 74, 76, 4, 86]
    pfn = [0]

    def pf():
        if P.tfine:
            e(f"  {'s_memtime' if 'm' in P.xp else 's_memrealtime'} s[{PFR[pfn[0]]}:{PFR[pfn[0]] + 1}]")
            pfn[0] += 1

    e("L_s1:")
    w_, s_, vAD, vC8, t0, t1 = wt, wt + 1, wt + 2, wt + 3, dacc, dacc + 1
    vRF, pos = vT16, tK + 3
    if P.trace:
        e(f"  v_mov_b32 {vr(vtr)}, 0")
        e("  s_mov_b32 m0, 0")
    pf()
    e("  v_subrev_u32 v0, 64, v0")
    e(f"  s_setprio {P.spr}")
    common()
    e(f"  v_lshrrev_b32 {vr(w_)}, 6, v0")
    e(f"  v_lshrrev_b32 {vr(s_)}, 4, v0")
    e(f"  v_and_b32 {vr(vC8)}, 0x70, {vr(vC16)}")
    e(f"  v_readfirstlane_b32 s{sW}, {vr(w_)}")
    e(f"  v_add_u32 {vr(vAD)}, {vr(vC8)}, {vr(s_)}")
    e(f"  s_mul_i32 s{sT0}, s{sJ}, 44")
    e(f"  s_sub_u32 s{sT0}, 86, s{sT0}")
    e(f"  v_cmp_eq_u32 vcc, s{sT0}, {vr(vAD)}")
    e(f"  v_mov_b32 {vr(t0)}, 0x80")
    e(f"  s_and_b32 s{sH}, s2, 7")
    e(f"  v_cndmask_b32 {vr(vAD)}, {vr(vAD)}, {vr(t0)}, vcc")
    e(f"  v_mul_u32_u24 {vr(t0)}, 381, {vr(vAD)}")
    e(f"  s_mul_i32 s{sT0}, s{sJ}, 43")
    e(f"  v_add_u32 {vr(t0)}, 2, {vr(t0)}")
    e(f"  s_lshl_b32 s{sT1}, s{sH}, 8")
    e(f"  v_lshrrev_b32 {vr(t0)}, 14, {vr(t0)}")
    assert all((381 * i + 2) >> 14 == (i >= 43) + (i >= 86) for i in range(129))
    e(f"  s_add_u32 s{sT0}, s{sT0}, s{sT1}")
    e(f"  v_mad_u32_u24 {vr(t0)}, {vr(t0)}, 42, {vr(vAD)}")
    e(f"  v_add_u32 {vr(t0)}, s{sT0}, {vr(t0)}")
    e(f"  v_cvt_f32_u32 {vr(vRF)}, {vr(t0)}")
    e(f"  v_mul_u32_u24 {vr(vAD)}, 384, {vr(vAD)}")
    e(f"  s_mov_b32 s{rA + 2}, {HB}")
    e(f"  s_mov_b32 s{rA + 3}, 0x20000")
    srd_head(rA, sQK, sC)
    e(f"  s_mul_i32 s{sT0}, s{sH}, 6")
    e(f"  s_add_u32 s{sT0}, s{sT0}, s{sJ}")
    e(f"  s_lshl_b32 s{sT0}, s{sT0}, 15")
    e(f"  v_lshl_add_u32 {vr(voff + RUN.index(0))}, v0, 4, s{sT0}")
    for k in (1, 2):
        e(f"  v_add_u32 {vr(voff + RUN.index(k))}, {65536 * k:#x}, {vr(voff + RUN.index(0))}")
    for i in range(1, 8):
        e(f"  s_movk_i32 s{sOF + i}, {4096 * i}")
    nk = [NF]
    assert PRE <= RING and max(int(v) for v in P.kp_.split(",")[:P.su + 1]) <= min(SPECIAL)

    def k_loads(hi):
        while nk[0] < min(hi, PRE):
            ld(nk[0])
            nk[0] += 1

    def toff_(n):
        run = RUN[n >> 3]
        return 384 * (16 * (((n & 7) + run) // 3) + 38 * run)

    def setup():
        e("; per chunk class k: q operand, table and partial addresses")
        e(f"  s_lshl1_add_u32 s{sF}, s{sJ}, s{sW}")
        e(f"  s_lshl_b32 s{sF}, s{sF}, 1")
        e(f"  s_lshr_b32 s{sF}, 0x4924, s{sF}")
        e(f"  v_bfe_u32 {vr(t1)}, v0, 4, 2")
        e(f"  v_lshl_add_u32 {vr(t1)}, {vr(t1)}, 2, {vr(vC16)}")
        e(f"  v_mad_u32_u24 {vr(vF)}, {vr(w_)}, s{sNEED}, {vr(t1)}")
        e(f"  v_add_u32 {vr(vF)}, {PB - 3072}, {vr(vF)}")
        e(f"  s_mul_i32 s{sT1}, s{sJ}, {43 * 384}")
        e(f"  s_sub_u32 s{sT1}, {TB}, s{sT1}")
        e(f"  v_lshl_add_u32 {vr(vSum)}, s{sJ}, 7, {vr(s_)}")
        for k in range(3):
            e(f"  s_bfe_u32 s{sT0}, s{sF}, {(2 << 16) | 2 * k:#x}")
            e(f"  v_lshl_add_u32 {vr(vPA + k)}, s{sT0}, 8, {vr(vF)}")
            if k:
                e(f"  v_add_u32 {vr(vSum)}, 16, {vr(vSum)}")
            e(f"  v_mul_u32_u24 {vr(t0)}, 171, {vr(vSum)}")
            e(f"  v_lshrrev_b32 {vr(t0)}, 9, {vr(t0)}")
            e(f"  v_mad_i32_i24 {vr(t1)}, {vr(t0)}, -3, {vr(vSum)}")
            e(f"  v_lshl_add_u32 {vr(t1)}, {vr(t1)}, 8, {vr(vC16)}")
            e(f"  v_add_u32 {vr(vQA + k)}, {QB}, {vr(t1)}")
            e(f"  v_subrev_u32 {vr(vSu2)}, 384, {vr(t1)}")
            e(f"  v_min_u32 {vr(t1)}, {vr(t1)}, {vr(vSu2)}")
            e(f"  v_mul_u32_u24 {vr(t0)}, 384, {vr(t0)}")
            e(f"  v_add3_u32 {vr(vTA + k)}, {vr(t0)}, {vr(t1)}, s{sT1}")
        e(f"  v_lshl_add_u32 {vr(vSum)}, s{sJ}, 4, {vr(s_)}")
        for n, i in SPECIAL.items():
            run, sx = RUN[n >> 3], 15 * (n & 7 == 7)
            b = int(run == 0)
            g0, g1 = 256 * run + 128 * b + 16 * (n & 7) + sx, chunk_of(b, n, sx)
            dt = 384 * (tidx(b, g1 // 3) - (g0 // 3 - 43 * b - 42 * run))
            e(f"  v_cmp_eq_u32 vcc, {16 * b + sx}, {vr(vSum)}")
            e(f"  v_add_u32 {vr(t0)}, {256 * (g1 - g0) & 0xffffffff:#x}, {vr(voff + (n >> 3))}")
            e(f"  v_add_u32 {vr(t1)}, {toff_(n)}, {vr(vTA + TN[n])}")
            e(f"  v_add_u32 {vr(vSu2)}, {dt & 0xffffffff:#x}, {vr(t1)}")
            e(f"  v_cndmask_b32 {vr(voff + 3 + i)}, {vr(voff + (n >> 3))}, {vr(t0)}, vcc")
            e(f"  v_cndmask_b32 {vr(vTA + 3 + i)}, {vr(t1)}, {vr(vSu2)}, vcc")
        e(f"  v_lshlrev_b32 {vr(vLB)}, 2, v0")
        e(f"  v_add_u32 {vr(vLB)}, {LGB}, {vr(vLB)}")
        e(f"  v_lshrrev_b32 {vr(t1)}, 1, v0")
        e(f"  v_lshlrev_b32 {vr(t1)}, 2, {vr(t1)}")
        e(f"  v_add_u32 {vr(vLB + 1)}, {LGB + 1024}, {vr(t1)}")
        e(f"  v_subrev_u32 {vr(vLG)}, 1536, {vr(vLB)}")
        e(f"  v_subrev_u32 {vr(vLG + 1)}, 1536, {vr(vLB + 1)}")
        e(f"  v_lshlrev_b32 {vr(vPW)}, 2, {vr(w_)}")
        e(f"  s_mov_b32 s{sMSK}, 0xcccccccc")
        e(f"  s_mov_b32 s{sMSK + 1}, s{sMSK}")
        e(f"  s_mov_b32 s{sMSK + 2}, 0xaaaaaaaa")
        e(f"  s_mov_b32 s{sMSK + 3}, s{sMSK + 2}")
        e(f"  s_mov_b32 s{rB + 2}, {HB}")
        e(f"  s_mov_b32 s{rB + 3}, 0x20000")
        e(f"  s_mov_b32 s{sK}, 0")
        if P.ctl:
            e("; progress slots: this wave writes one byte of line (half, w) and samples the lines of the other half")
            die_base(sF)
            e(f"  s_add_u32 s{sT0}, s{sF}, 2048")
            e(f"  v_mov_b32 {vr(vBA)}, s{sT0}")
            e(f"  s_and_b32 s{sT1}, s{sSE}, 2")
            e(f"  s_lshl_b32 s{sT1}, s{sT1}, 9")
            e(f"  s_lshl_b32 s{sT0}, s{sW}, 8")
            e(f"  s_add_u32 s{sT0}, s{sT0}, s{sT1}")
            e(f"  s_add_u32 s{sT0}, s{sT0}, s{sF}")
            e(f"  s_add_u32 s{sT0}, s{sT0}, s{sCU}")
            e(f"  s_and_b32 s{sSE}, s{sSE}, 1")
            e(f"  s_lshl_b32 s{sSE}, s{sSE}, 4")
            e(f"  s_add_u32 s{sT0}, s{sT0}, s{sSE}")
            e(f"  v_mov_b32 {vr(vPS)}, s{sT0}")
            e(f"  s_xor_b32 s{sT1}, s{sT1}, 1024")
            e(f"  s_add_u32 s{sF}, s{sF}, s{sT1}")
            e(f"  v_and_b32 {vr(vN)}, 1, v0")
            e(f"  v_lshl_add_u32 {vr(vN)}, {vr(vN)}, 4, s{sF}")
            for k in range(4):
                e(f"  v_add_u32 {vr(vSum)}, {k}, {vr(w_)}")
                e(f"  v_and_b32 {vr(vSum)}, 3, {vr(vSum)}")
                e(f"  v_lshl_add_u32 {vr(vPL + k)}, {vr(vSum)}, 8, {vr(vN)}")
            e(f"  s_mov_b32 s{sLO}, {(-(LAG + 2) * 0x01010101) & 0xffffffff:#x}")
            for k in range(4 * LAG):
                e(f"  v_mov_b32 {vr(smp + k)}, 0")
            for k in range(2):
                e(f"  v_mov_b32 {vr(vBI + k)}, 0")
            e(f"  v_mov_b32 {vr(vN)}, 0")
            e(f"  s_mov_b32 s{sB}, 0")
            e(f"  s_mov_b32 s{sS}, {P.s0}")
            e(f"  s_mov_b32 s{sI}, 0")
            e(f"  s_mov_b32 s{sCO}, 0")

    def sincos(dst, iv):
        for h in (0, 2):
            e(f"  v_pk_mul_f32 {vr(tA + h, 2)}, {vr(iv + h, 2)}, {vr(tK + 2, 2)} op_sel:[0,1] op_sel_hi:[1,1]")
        if iv == invY:
            for h in (0, 2):
                e(f"  v_pk_mul_f32 {vr(tN + h, 2)}, {vr(tA + h, 2)}, {vr(tK, 2)} op_sel_hi:[1,0]")
        else:
            for h in (0, 2):
                e(f"  v_pk_fma_f32 {vr(tN + h, 2)}, {vr(tA + h, 2)}, {vr(tK, 2)}, {vr(tK, 2)} op_sel:[0,0,1] op_sel_hi:[1,0,1]")
            for h in (0, 2):
                e(f"  v_pk_add_f32 {vr(tN + h, 2)}, {vr(tN + h, 2)}, {vr(tK, 2)} op_sel:[0,1] op_sel_hi:[1,1] neg_lo:[0,1] neg_hi:[0,1]")
            for h in (0, 2):
                e(f"  v_pk_fma_f32 {vr(tN + h, 2)}, {vr(tA + h, 2)}, {vr(tK, 2)}, {vr(tN + h, 2)} op_sel_hi:[1,0,1] neg_lo:[0,0,1] neg_hi:[0,0,1]")
            for h in (0, 2):
                e(f"  v_pk_fma_f32 {vr(tN + h, 2)}, {vr(tA + h, 2)}, {vr(tK + 2, 2)}, {vr(tN + h, 2)} op_sel_hi:[1,0,1]")
        for i in range(4):
            e(f"  v_cos_f32 {vr(tA + i)}, {vr(tN + i)}")
        for i in range(4):
            e(f"  v_sin_f32 {vr(tN + i)}, {vr(tN + i)}")
        for i in range(4):
            e(f"  v_cvt_pk_bf16_f32 {vr(dst + i)}, {vr(tA + i)}, {vr(tN + i)}")

    kp = [int(v) for v in P.kp_.split(",")]

    def chunk(i):
        a = 2 * (i // 3)
        d = tO + 4 * (i & 1)
        bc_ = lambda x, m: f"row_newbcast:{x} row_mask:0xf bank_mask:{m:#x}"
        if i % 3 == 1:
            e(f"  v_mov_b32_dpp {vr(pos)}, {vr(vRF)} {bc_(a + 1, 12)}")
            e(f"  v_add_u32_dpp {vr(vF)}, {vr(vAD)}, {vr(vC8)} {bc_(a, 3)}")
            e(f"  v_add_u32_dpp {vr(vF)}, {vr(vAD)}, {vr(vC8)} {bc_(a + 1, 12)}")
            sincos(d, invY)
            e(f"  ds_write_b128 {vr(vF)}, {vr(d, 4)} offset:{TB + 256}")
        else:
            a += i % 3 // 2
            e(f"  v_mov_b32_dpp {vr(pos)}, {vr(vRF)} {bc_(a, 15)}")
            e(f"  v_add_u32_dpp {vr(vF)}, {vr(vAD)}, {vr(vC16)} {bc_(a, 15)}")
            sincos(d, invX)
            e(f"  ds_write_b128 {vr(vF)}, {vr(d, 4)} offset:{TB}")

    def tab_read(a):
        for n in range(3 * a, 3 * a + 3):
            d = tab + 12 * (a & 1) + 4 * (n % 3)
            if n in SPECIAL:
                e(f"  ds_read_b128 {vr(d, 4)}, {vr(vTA + 3 + SPECIAL[n])}")
            else:
                e(f"  ds_read_b128 {vr(d, 4)}, {vr(vTA + TN[n])} offset:{toff_(n)}")

    c_hi = f32bits(1 / (2 * math.pi))
    c_lo = f32bits(1 / (2 * math.pi) - struct.unpack("<f", struct.pack("<I", c_hi))[0])
    e(f"  v_mov_b32 {vr(tK)}, {c_hi:#x}")
    e(f"  v_mov_b32 {vr(tK + 1)}, {f32bits(1.5 * 2 ** 23):#x}")
    e(f"  v_mov_b32 {vr(tK + 2)}, {c_lo:#x}")
    k_loads(kp[0])
    pf()
    e(f"  s_waitcnt vmcnt({nk[0]})")
    pf()
    for i in range(12):
        if i == P.su:
            setup()
            pf()
        if i < P.nch:
            chunk(i)
        k_loads(kp[i + 1])
        if i % 3 == 2:
            pf()
    k_loads(PRE)
    e(f"  v_mov_b32 {vr(bc)}, {f32bits(-7.5):#x}")
    e("  s_waitcnt lgkmcnt(0)")
    e("  s_barrier")
    pf()
    for k in range(3):
        e(f"  ds_read_b128 {vr(qa + 4 * k, 4)}, {vr(vQA + k)}")
    tab_read(0)
    e(f"  s_waitcnt vmcnt({PRE - ORD['K'][:ORD['K'].index('L')].count('b')})")
    pf()
    if P.tfine:
        e("  s_waitcnt lgkmcnt(0)")
        for k in range(pfn[0]):
            e(f"  v_writelane_b32 {vr(vtr)}, s{PFR[k]}, {k}")
        e(f"  s_mov_b32 m0, {pfn[0]}")

    def vfirst():
        e(f"  s_and_b32 s{sH}, s{sVO}, 15")
        e(f"  s_add_u32 s{sNEED}, s{sH}, 1")
        if "f" in P.xp:
            e(f"  s_mov_b32 s{sNEED}, 1")
        e(f"  ds_read_b32 {vr(vF)}, {vr(vZ)} offset:{FL + 20}")
        flagwait("a0", FL + 20)
        e(f"  s_mulk_i32 s{sH}, 1536")
        for k in range(2):
            e(f"  v_add_u32 {vr(vLV + k)}, s{sH}, {vr(vLB + k)}")
        e(f"  ds_read_b32 {vr(A)}, {vr(vLV)}")

    assert all(x[3] < 14 for x in sch) or "f" in P.xp

    def knext():
        e("; next SRD: K head k + 1, or the V heads of steps 0 / 1 once K runs out")
        e(f"  s_add_u32 s{sH}, s{sK}, 1")
        e(f"  s_sub_u32 s{sT1}, s{sH}, 16")
        vstep_k(sF, sT1)
        e(f"  s_cmp_lt_u32 s{sH}, 16")
        e(f"  s_cselect_b32 s{sH}, s{sH}, s{sF}")
        e(f"  s_cselect_b32 s{sX}, s{sQK}, s{sQV}")
        e(f"  s_cselect_b32 s{sX + 1}, s{sQK + 1}, s{sQV + 1}")
        head_of(sH, sH)
        srd_head(rB, sX, sH)

    def kred(n):
        dpp = lambda d, x, how, m: e(f"  v_add_f32_dpp {vr(d)}, {vr(x)}, {vr(x)} {how} row_mask:0xf bank_mask:{m:#x}")
        dpp(M1, dacc, "row_ror:8", 12 if n & 1 else 3)
        if n % 2 == 1:
            e("  s_nop 1")
            dpp(M2, M1, "row_half_mirror", 10 if n & 2 else 5)
        if n % 4 == 3:
            e("  s_nop 1")
            dpp(M2 if n & 4 else M3, M2, "quad_perm:[2,3,0,1]", 15)
        if n % 8 == 7:
            e(f"  v_cndmask_b32_e64 {vr(M3)}, {vr(M3)}, {vr(M2)}, s[{sMSK}:{sMSK + 1}]")
            e("  s_nop 1")
            dpp((LG, M3, LG + 1)[n >> 3], M3, "quad_perm:[1,0,3,2]", 15)
        if n == 15:
            e(f"  v_cndmask_b32_e64 {vr(LG)}, {vr(LG)}, {vr(M3)}, s[{sMSK + 2}:{sMSK + 3}]")

    e(".p2align 6")
    e("L_k:")

    def kbody(n):
        k_, q_ = ring + 4 * n, qa + 4 * TN[n]
        for i in range(4):
            e(f"  v_dot2_f32_bf16 {vr(wt + i)}, {vr(tab + 12 * (n // 3 & 1) + 4 * (n % 3) + i)}, {vr(q_ + i)}, 0")
        for i in range(4):
            e(f"  v_cvt_f32_i32 {vr(k_ + i)}, {vr(k_ + i)}")
        if n >= 21:
            e(f"  ds_read_b128 {vr(q_, 4)}, {vr(vQA + TN[n])}")
        for h in range(2):
            e(f"  v_pk_add_f32 {vr(k_ + 2 * h, 2)}, {vr(k_ + 2 * h, 2)}, {vr(bc, 2)} op_sel_hi:[1,0]")
        e(f"  v_pk_mul_f32 {vr(dacc, 2)}, {vr(k_, 2)}, {vr(wt, 2)}")
        e(f"  v_pk_fma_f32 {vr(dacc, 2)}, {vr(k_ + 2, 2)}, {vr(wt + 2, 2)}, {vr(dacc, 2)}")
        e(f"  v_add_f32 {vr(dacc)}, {vr(dacc)}, {vr(dacc + 1)}")

    def kout():
        e(f"  v_mov_b32 {vr(vF)}, s{sK}")
        for k in range(2):
            e(f"  ds_write_b32 {vr(vLG + k)}, {vr(LG + k)}")
        e(f"  ds_write_b32 {vr(vPW)}, {vr(vF)} offset:{FL}")

    def group(ph, a, body, after, res):
        nb, pend = 3 * a, None
        od = ORD[ph]
        for i, c in enumerate(od):
            if pend is not None and c != "L":
                if od[i - 1] == "b":
                    e("  s_nop 1")
                after(pend)
                pend = None
            if c == "E":
                evaluate(ph, a)
                if od[i + 1] != "X":
                    decide(ph, a)
            if c == "X":
                exchange(a)
                if od[i - 1] == "E":
                    decide(ph, a)
            if c == "R" and a == 0:
                res()
            if c == "b":
                body(nb)
                pend = nb if after else None
                nb += 1
            if c == "L":
                issue(ph, a, i)
        if pend is not None:
            if od[-1] == "b":
                e("  s_nop 1")
            after(pend)

    for a in range(8):
        if a == 7:
            flagwait("qn", FL + 16)
        else:
            e("  s_waitcnt lgkmcnt(0)")
        tab_read((a + 1) % 8)
        if a == 6:
            e(f"  ds_read_b32 {vr(vF)}, {vr(vZ)} offset:{FL + 16}")
        group("K", a, kbody, kred, kout)
        if a == 1:
            knext()
        if a == 3:
            e(f"  s_add_u32 s{sT0}, s{sK}, 2")
            e(f"  s_min_u32 s{sNEED}, s{sT0}, 16")
            for k in range(3):
                e(f"  v_add_u32 {vr(vQA + k)}, 768, {vr(vQA + k)}")
            for k in range(2):
                e(f"  v_add_u32 {vr(vLG + k)}, 1536, {vr(vLG + k)}")
            e(f"  s_cmp_eq_u32 s{sK}, 15")
            e("  s_cbranch_scc1 L_kv")
            e("L_kw:")
        if a in (3, 7) or P.tfine:
            tr()
    assert sorted(TN[21:]) == [0, 1, 2] and TN[:3] == TN[3:6] and sorted(TN[:3]) == [0, 1, 2] and PRE <= 18
    e(f"  s_add_u32 s{sK}, s{sK}, 1")
    e(f"  s_mov_b64 s[{rA}:{rA + 1}], s[{rB}:{rB + 1}]")
    e(f"  s_cmp_lt_u32 s{sK}, 16")
    e("  s_cbranch_scc1 L_k")


    def vbody(n):
        v_ = ring + 4 * n
        e(f"  v_mov_b32_dpp {vr(bc)}, {vr(A + n // 16)} row_newbcast:{rev(n % 16, 4)} row_mask:0xf bank_mask:0xf")
        for i in range(4):
            e(f"  v_cvt_f32_i32 {vr(v_ + i)}, {vr(v_ + i)}")
        for h in range(2):
            d = 4 * TN[n] + 2 * h
            if n < 3:
                e(f"  v_pk_mul_f32 {vr(tmp + d, 2)}, {vr(v_ + 2 * h, 2)}, {vr(bc, 2)} op_sel_hi:[1,0]")
            else:
                e(f"  v_pk_fma_f32 {vr(acc + d, 2)}, {vr(v_ + 2 * h, 2)}, {vr(bc, 2)}, {vr((tmp if n < 6 else acc) + d, 2)} op_sel_hi:[1,0,1]")

    def vout(last=False):
        for j in range(3):
            e(f"  v_permlane32_swap_b32 {vr(acc + 4 * j)}, {vr(acc + 4 * j + 2)}")
            e(f"  v_permlane32_swap_b32 {vr(acc + 4 * j + 1)}, {vr(acc + 4 * j + 3)}")
        for j in range(3):
            e(f"  v_add_f32 {vr(acc + 4 * j)}, {vr(acc + 4 * j)}, {vr(acc + 4 * ((j + 1) % 3) + 2)}")
            e(f"  v_add_f32 {vr(acc + 4 * j + 1)}, {vr(acc + 4 * j + 1)}, {vr(acc + 4 * ((j + 1) % 3) + 3)}")
        for j in range(3):
            e(f"  v_permlane16_swap_b32 {vr(acc + 4 * j)}, {vr(acc + 4 * j + 1)}")
        for j in range(3):
            e(f"  v_add_f32 {vr(acc + 4 * j)}, {vr(acc + 4 * j)}, {vr(acc + 4 * ((j + 2) % 3) + 1)}")
        for j in range(3):
            e(f"  ds_write_b32 {vr(vPA + j)}, {vr(acc + 4 * j)}")
        if not last:
            e(f"  ds_write_b32 {vr(vPW)}, {vr(M1)} offset:{FL}")

    def vnext():
        e(f"  s_add_u32 s{sT1}, s{sK}, 1")
        e(f"  s_min_u32 s{sT1}, s{sT1}, 15")
        vstep_k(sH, sT1)
        e(f"  s_add_u32 s{sNEED}, s{sH}, 1")
        e(f"  s_mul_i32 s{sF}, s{sH}, 1536")
        head_of(sH, sH)
        srd_head(rB, sQV, sH)
        for k in range(2):
            e(f"  v_add_u32 {vr(vLV + k)}, s{sF}, {vr(vLB + k)}")

    NS, NT = (PRE - PD) // 3, 8 - PD // 3
    assert NS == 1 and NT <= 5 and max(P.mg, P.ml) <= 3 * NT
    e("L_vpre:")
    kout()
    e(f"  s_mov_b32 s{sK}, 0")
    e(f"  v_mov_b32 {vr(M1)}, 16")
    for n in range(3):
        e(f"  s_waitcnt vmcnt({plain[384 + n]})")
        vbody(n)
    e(f"  s_waitcnt vmcnt({plain[387]}) lgkmcnt(0)")
    e("  s_branch L_v1")
    flush()
    e("L_kv:")
    vfirst()
    e("  s_branch L_kw")
    flush()
    e(".p2align 6")
    e("L_v:")
    for a in range(8):
        if a == 1:
            e("L_v1:")
            e(f"  ds_read_b32 {vr(A + 1)}, {vr(vLV + 1)}")
        if a == NT:
            e(f"  s_cmp_eq_u32 s{sK}, 15")
            e("  s_cbranch_scc1 L_vt")
        if a in (5, 7):
            e("  s_waitcnt lgkmcnt(0)")
        if a == 5:
            e(f"  ds_read_b32 {vr(vF)}, {vr(vZ)} offset:{FL + 20}")
        if a == 6:
            flagwait("an", FL + 20)
            e(f"  ds_read_b32 {vr(A)}, {vr(vLV)}")
        group("V", a, vbody, None, vout)
        if a == 1:
            vnext()
        if a == 3:
            e(f"  v_add_u32 {vr(M1)}, 1, {vr(M1)}")
            for j in range(3):
                e(f"  v_add_u32 {vr(vPA + j)}, 3072, {vr(vPA + j)}")
        if a in (3, 7):
            tr()
    e(f"  s_add_u32 s{sK}, s{sK}, 1")
    e(f"  s_mov_b64 s[{rA}:{rA + 1}], s[{rB}:{rB + 1}]")
    e("  s_branch L_v")
    flush()
    e("L_vt:")
    e("  s_waitcnt lgkmcnt(0)")
    for n in range(3 * NT, 24):
        e(f"  s_waitcnt vmcnt({plain[744 + n]})")
        vbody(n)
    tr()
    e("  s_nop 1")
    vout(True)
    e("  s_waitcnt lgkmcnt(0)")
    e("  s_barrier")
    if P.trace:
        e(f"  s_mul_i32 s8, s2, {5 * 256}")
        e("  s_add_u32 s8, s8, 0x100000")
        e(f"  v_lshl_add_u32 {vr(t0)}, v0, 2, s8")
        e(f"  global_store_dword {vr(t0)}, {vr(vtr)}, s[{sWS}:{sWS + 1}]")
    e("  s_endpgm")

    HP = [20, 22, 24, 8, 34, 36, 38, 72]
    ms = [m for m in range(P.r0, P.r1 + 1) if m < P.rf or m > P.rt or (m - P.r0) % P.rp == 0]
    gain = [(P.kp0 if m <= P.kn else P.kp) if m in ms else 0 for m in range(32)]
    if P.rk:
        gain = [int(c, 16) for c in P.rk]
        assert len(gain) == 32 and not any(gain[:P.r0]) and not gain[31]
    msk = sum(1 << m for m in range(32) if gain[m])

    def hp(k):
        if P.hprof:
            e(f"  s_memrealtime s[{HP[k]}:{HP[k] + 1}]")

    def progwait(name, slp, off=FL):
        e(f"L_{name}:")
        e(f"  ds_read_b128 {vr(pr, 4)}, {vr(vZ)} offset:{off}")
        e("  s_waitcnt lgkmcnt(0)")
        e(f"  v_min_u32 {vr(pr)}, {vr(pr)}, {vr(pr + 1)}")
        e(f"  v_min3_u32 {vr(pr)}, {vr(pr)}, {vr(pr + 2)}, {vr(pr + 3)}")
        e("  s_nop 0")
        e(f"  v_readfirstlane_b32 s{sF}, {vr(pr)}")
        e(f"  s_cmp_ge_u32 s{sF}, s{sNEED}")
        e(f"  s_cbranch_scc1 L_{name}_ok")
        budget(f"L_{name}_ok")
        if slp:
            e(f"  s_sleep {slp}")
        e(f"  s_branch L_{name}")
        e(f"L_{name}_ok:")

    def rowred(op, v):
        for n in (8, 4, 2, 1):
            e("  s_nop 1")
            e(f"  {op}_dpp {vr(v)}, {vr(v)}, {vr(v)} row_ror:{n} row_mask:0xf bank_mask:0xf")

    def allred(op, v, t):
        rowred(op, v)
        for sw in ("v_permlane16_swap_b32", "v_permlane32_swap_b32"):
            e(f"  v_mov_b32 {vr(t)}, {vr(v)}")
            e("  s_nop 1")
            e(f"  {sw} {vr(v)}, {vr(t)}")
            e(f"  {op} {vr(v)}, {vr(v)}, {vr(t)}")

    def sum_partials(nq):
        w = 4 * nq
        for k in range(4):
            for q in range(nq):
                e(f"  ds_read_b128 {vr(x + w * k + 4 * q, 4)}, {vr(h0)} offset:{768 * k + 16 * q}")
        e(f"  ds_read_b128 {vr(z4, 4)}, {vr(h1)} offset:{ST}")
        e("  s_waitcnt lgkmcnt(0)")
        for h in range(0, w, 2):
            e(f"  v_pk_add_f32 {vr(x + h, 2)}, {vr(x + h, 2)}, {vr(x + w + h, 2)}")
            e(f"  v_pk_add_f32 {vr(x + 2 * w + h, 2)}, {vr(x + 2 * w + h, 2)}, {vr(x + 3 * w + h, 2)}")
        for h in range(0, w, 2):
            e(f"  v_pk_add_f32 {vr(x + h, 2)}, {vr(x + h, 2)}, {vr(x + 2 * w + h, 2)}")
        for h in range(0, w, 2):
            e(f"  v_pk_add_f32 {vr(x + h, 2)}, {vr(x + h, 2)}, {vr(z4 + 2, 2)} op_sel_hi:[1,0] neg_lo:[0,1] neg_hi:[0,1]")

    def mark(tag):
        if P.sd:
            e("  s_memrealtime s[16:17]")
            e("  s_waitcnt lgkmcnt(0)")
            e("  s_sub_u32 s19, s16, s18")
            e("  s_mov_b32 s18, s16")
            e(f"  s_add_u32 s16, s{sNEED}, {64 - P.sd}")
            e("  s_and_b32 s17, s16, 1")
            e("  s_lshl_b32 s17, s17, 4")
            e("  s_min_u32 s19, s19, 510")
            e("  s_lshl_b32 s19, s19, s17")
            e("  s_lshr_b32 m0, s16, 1")
            e(f"  v_readlane_b32 s17, {vr(vCL)}, m0")
            e("  s_add_u32 s17, s17, s19")
            e(f"  v_writelane_b32 {vr(vCL)}, s17, m0")
        if not P.enc:
            return
        for k, m in enumerate(P.enc.split(",")[:2]):
            e(f"  s_cmp_eq_u32 s{sNEED}, {m}")
            e(f"  s_cbranch_scc0 L_mk{tag}{k}")
            e(f"  s_memrealtime s[{16 + 2 * k}:{17 + 2 * k}]")
            e(f"L_mk{tag}{k}:")

    def rank_post(tag):
        if not P.ctl:
            return
        e(f"  s_bitcmp1_b32 s{sRF}, s{sNEED}")
        e(f"  s_cbranch_scc0 L_fa{tag}")
        e(f"  s_mul_i32 s{sT0}, s{sNEED}, 384")
        e(f"  s_add_u32 s{sT0}, s{sT0}, {W_RK}")
        e(f"  s_mov_b32 s{sB}, 1")
        e(f"  s_atomic_add s{sB}, s[{sWS}:{sWS + 1}], s{sT0} glc")
        e(f"L_fa{tag}:")

    def rank_take(tag):
        if not P.ctl:
            return
        e(f"  s_bitcmp1_b32 s{sRF}, s{sNEED}")
        e(f"  s_cbranch_scc0 L_fb{tag}")
        e("  s_waitcnt lgkmcnt(0)")
        e(f"  s_min_u32 s{sF}, s{sB}, 15")
        e(f"  s_lshl_b32 s{sF}, s{sF}, 1")
        e(f"  s_sub_u32 s{sF}, s{sF}, 15")
        gs = sorted(set(gain) - {0})
        e(f"  s_mov_b32 s{sT0}, {gs[0]}")
        for g_ in gs[1:]:
            e(f"  s_bitcmp1_b32 {sum(1 << m for m in range(32) if gain[m] == g_):#x}, s{sNEED}")
            e(f"  s_cselect_b32 s{sT0}, {g_}, s{sT0}")
        e(f"  s_mul_i32 s{sF}, s{sF}, s{sT0}")
        e(f"  s_add_u32 s{sF}, s{sF}, 8")
        e(f"  s_ashr_i32 s{sF}, s{sF}, 4")
        e(f"  v_mov_b32 {vr(vFX)}, s{sF}")
        e("  s_mov_b64 exec, 1")
        e(f"  global_store_dword {vr(vFB)}, {vr(vFX)}, s[{sWS}:{sWS + 1}]")
        e("  s_mov_b64 exec, -1")
        e(f"L_fb{tag}:")

    HPF = [10, 16, 18, 20, 22, 72, 74, 76, 60, 62]
    hpn = [0]

    def hpf():
        if P.tfine:
            e(f"  s_memrealtime s[{HPF[hpn[0]]}:{HPF[hpn[0]] + 1}]")
            hpn[0] += 1

    e("L_helper:")
    e(f"  s_setprio {P.hp0}")
    e(f"  v_and_b32 {vr(h1)}, 32, v0")
    e(f"  v_lshrrev_b32 {vr(h1)}, 1, {vr(h1)}")
    e(f"  v_add_u32 {vr(sg2)}, s{sC}, {vr(h1)}")
    e(f"  v_mad_u32_u24 {vr(ra)}, {vr(sg2)}, s{sNEED}, {vr(vL16)}")
    e(f"  v_lshrrev_b32 {vr(ra)}, 1, {vr(ra)}")
    hv = []

    def half(p, full):
        if p in (2, 3):
            e(f"  s_mov_b32 exec_hi, {0 if p == 2 else full}")
        if p in (5, 6):
            e(f"  s_mov_b32 exec_lo, {0 if p == 5 else full}")

    def sc_early():
        e(f"  s_and_b32 s{sT1}, s2, 7")
        e(f"  v_lshl_add_u32 {vr(wb)}, s{sT1}, 9, {vr(vL16)}")
        e(f"  v_lshl_add_u32 {vr(ra)}, {vr(sg2)}, 12, {vr(wb)}")
        for p in range(1, 8):
            e(f"  v_add_u32 {vr(ra + p)}, {0x20000 * p:#x}, {vr(ra)}")
        for p in range(8):
            half(p, -1)
            for i, sp in enumerate((sKS, sVS)):
                e(f"  s_mov_b32 m0, {SCB + SA * i + 1024 * p}")
                e("  s_nop 0")
                if "s" not in P.xp:
                    e(f"  global_load_lds_dwordx4 {vr(ra + p)}, s[{sp}:{sp + 1}] {P.sf}")
                    hv.append(("s", p))

    for p in range(1, 8):
        e(f"  v_add_u32 {vr(ra + p)}, {12288 * p}, {vr(ra)}")
    e("  s_mov_b32 exec_lo, 0xffffff")
    e("  s_mov_b32 exec_hi, 0xffffff")
    e("  s_waitcnt lgkmcnt(0)")
    hpf()
    for p in range(8):
        half(p, "0xffffff")
        e(f"  global_load_dwordx2 {vr(rec + 4 * p, 2)}, {vr(ra + (0 if 'q' in P.xp else p))}, s[{sQ}:{sQ + 1}] {P.qf}")
        e(f"  global_load_dwordx2 {vr(rec + 4 * p + 2, 2)}, {vr(ra + (0 if 'q' in P.xp else p))}, s[{sQ}:{sQ + 1}] offset:192 {P.qf}")
        hv.extend([("q", p)] * 2)
    e("  s_mov_b64 exec, -1")
    hpf()
    if P.ss == 0:
        sc_early()
    common()
    e(f"  s_load_dword s{sO}, s[{sRT}:{sRT + 1}], 24")
    e(f"  s_load_dwordx2 s[{sOH}:{sOH + 1}], s[{sRT}:{sRT + 1}], 16")
    e(f"  v_mov_b32 {vr(l)}, v0")
    for i in range(4):
        e(f"  v_mov_b32 {vr(z4 + i)}, 0")
    e(f"  ds_write_b128 {vr(vZ)}, {vr(z4, 4)} offset:{FL}")
    e(f"  ds_write_b128 {vr(vZ)}, {vr(z4, 4)} offset:{FL + 16}")
    e(f"  ds_write_b128 {vr(vZ)}, {vr(z4, 4)} offset:{FL + 32}")
    e(f"  ds_write_b128 {vr(vZ)}, {vr(z4, 4)} offset:{FL + 48}")
    e(f"  s_mov_b32 s{sMASK}, 0xffff0000")
    e(f"  s_mov_b32 s{sSCALE}, {f32bits(math.log2(math.e) / math.sqrt(192.0)):#x}")
    e(f"  v_mad_u32_u24 {vr(wa)}, {vr(h1)}, 48, {vr(vL16)}")
    e(f"  v_mov_b32 {vr(vOne)}, 1")
    e(f"  s_waitcnt vmcnt({len(hv)})")
    for k in range(4):
        e(f"  v_lshlrev_b32 {vr(cs + k)}, 16, {vr(pr + k)}")
        e(f"  v_and_b32 {vr(cs + 4 + k)}, s{sMASK}, {vr(pr + k)}")
    e("  s_waitcnt lgkmcnt(0)")
    hpf()
    if P.ctl:
        die_base(sF)
        e(f"  v_lshrrev_b32 {vr(h0)}, {P.cw}, {vr(l)}")
        e(f"  v_lshl_add_u32 {vr(vFX)}, {vr(h0)}, 8, s{sF}")
        e(f"  v_and_b32 {vr(h0)}, {(1 << P.cw) - 1}, {vr(l)}")
        e(f"  v_lshl_add_u32 {vr(vFX)}, {vr(h0)}, 4, {vr(vFX)}")
        e(f"  s_and_b32 s{sT1}, s{sSE}, 2")
        e(f"  s_lshl_b32 s{sT0}, s{sT1}, 9")
        e(f"  s_add_u32 s{sT0}, s{sT0}, s{sF}")
        e(f"  v_add_u32 {vr(vEL)}, s{sT0}, {vr(l)}")
        e(f"  s_lshl_b32 s{sT1}, s{sT1}, 1")
        e(f"  s_add_u32 s{sF}, s{sF}, s{sT1}")
        e(f"  s_add_u32 s{sF}, s{sF}, 2048")
        e(f"  v_mov_b32 {vr(vFB)}, s{sF}")
        e(f"  v_mul_u32_u24 {vr(vFA)}, 384, {vr(l)}")
        e(f"  v_add_u32 {vr(vFA)}, {W_RK}, {vr(vFA)}")
        e(f"  s_mov_b32 s{sRF}, 0")

    def ctl_init():
        if not P.ctl:
            return
        if P.cw == 1:
            e("  s_mov_b64 exec, 0x3ffff")
        if P.cw == 2:
            e("  s_mov_b32 exec_hi, 15")
        if P.cl == 1:
            e(f"  global_load_dword {vr(vCNT)}, {vr(vFX)}, s[{sWS}:{sWS + 1}] sc1")
            hv.append(("c", 0))
        e(f"  global_store_dwordx4 {vr(vFX)}, {vr(z4, 4)}, s[{sWS}:{sWS + 1}]")
        if P.cw == 3:
            e("  s_mov_b64 exec, 0xff")
            e(f"  global_store_dwordx4 {vr(vFX)}, {vr(z4, 4)}, s[{sWS}:{sWS + 1}] offset:2048")
            hv.append(("c", 0))
        if P.cl == 2:
            e(f"  global_load_dword {vr(vCNT)}, {vr(vFX)}, s[{sWS}:{sWS + 1}] sc1")
            hv.append(("c", 0))
        e("  s_mov_b64 exec, -1")

    def elect():
        if not P.ctl:
            return
        e(f"  s_cmp_eq_u32 s{sNEED}, {P.r0 - 1}")
        e("  s_cbranch_scc0 L_el")
        e(f"  s_bitcmp0_b32 s{sSE}, 0")
        e("  s_cbranch_scc0 L_el")
        e("  s_mov_b64 exec, 0xffff")
        e(f"  global_load_ubyte {vr(vFX)}, {vr(vEL)}, s[{sWS}:{sWS + 1}] sc1")
        e("  s_waitcnt vmcnt(0)")
        e(f"  v_cmp_ne_u32 s[{sZ}:{sZ + 1}], 0, {vr(vFX)}")
        e(f"  s_lshr_b32 s{sT0}, s{sZ}, s{sCU}")
        e(f"  s_bcnt1_i32_b32 s{sT0}, s{sT0}")
        pat = sum(1 << m for m in range(0, 32, P.rotl))
        e(f"  s_sub_u32 s{sT1}, s{sT0}, 1")
        e(f"  s_cmp_lt_u32 s{sT1}, {P.rotl}")
        e("  s_cbranch_scc0 L_el")
        e(f"  s_lshl_b32 s{sRF}, {pat:#x}, s{sT1}")
        e(f"  s_and_b32 s{sRF}, s{sRF}, {msk:#x}")
        e("L_el:")
        e("  s_mov_b64 exec, -1")

    def patch(what):
        e(f"  s_bfe_u32 s{sT0}, s{sCN + 1}, {(4 << 16) | 8:#x}")
        e(f"  s_bfe_u32 s{sT1}, s{sCN}, {(4 << 16) | 20:#x}")
        e(f"  s_addk_i32 s{sT0}, 160")
        e(f"  s_addk_i32 s{sT1}, 80")
        for p, sh_, ex in ((5, sT0, "exec_hi"), (2, sT1, "exec_lo")):
            if what == "q":
                e(f"  s_mulk_i32 s{sh_}, 384")
                e(f"  v_lshrrev_b32 {vr(h0)}, 1, {vr(vL16)}")
                e(f"  v_add_u32 {vr(h0)}, s{sh_}, {vr(h0)}")
                qmask(1)
                e(f"  s_mov_b32 {ex}, 0")
                e(f"  global_load_dwordx2 {vr(rec + 4 * p, 2)}, {vr(h0)}, s[{sQ}:{sQ + 1}]")
                e(f"  global_load_dwordx2 {vr(rec + 4 * p + 2, 2)}, {vr(h0)}, s[{sQ}:{sQ + 1}] offset:192")
                hv.extend([("q", p)] * 2)
            else:
                e(f"  v_lshl_add_u32 {vr(h0)}, s{sh_}, 12, {vr(wb)}")
                e(f"  s_mov_b32 {ex}, 0")
                for i, sp in enumerate((sKS, sVS)):
                    e(f"  s_mov_b32 m0, {SCB + SA * i + 1024 * p}")
                    e("  s_nop 0")
                    if "s" not in P.xp:
                        e(f"  global_load_lds_dwordx4 {vr(h0)}, s[{sp}:{sp + 1}] {P.sf}")
                        hv.append(("s", p))
            qmask(0)

    def qmask(on):
        if on:
            e("  s_mov_b32 exec_lo, 0xffffff")
            e("  s_mov_b32 exec_hi, 0xffffff")
        else:
            e("  s_mov_b64 exec, -1")

    def rotate(p):
        L, Hh, LC, HS, HC, LS = x, x + 4, x + 8, x + 12, x + 16, x + 20
        qmask(1)
        if p == 0:
            hpf()
        if not ("n" in P.xp and p == 0):
            e(f"  s_waitcnt vmcnt({hv[::-1].index(('q', p))})")
        if p == 0:
            hpf()
        for k in range(4):
            e(f"  v_lshlrev_b32 {vr(L + 2 * k)}, 16, {vr(rec + 4 * p + k)}")
            e(f"  v_and_b32 {vr(L + 2 * k + 1)}, s{sMASK}, {vr(rec + 4 * p + k)}")
        for d, q_, t_ in ((LC, L, cs), (HS, Hh, cs + 4), (HC, Hh, cs), (LS, L, cs + 4)):
            for h in (0, 2):
                e(f"  v_pk_mul_f32 {vr(d + h, 2)}, {vr(q_ + h, 2)}, {vr(t_ + h, 2)}")
        for i in range(4):
            e(f"  v_cvt_pk_bf16_f32 {vr(L + i)}, {vr(LC + i)}, {vr(HS + i)}")
            e(f"  v_cvt_pk_bf16_f32 {vr(Hh + i)}, {vr(HC + i)}, {vr(LS + i)}")
        for k in range(8):
            e(f"  v_lshlrev_b32 {vr(LC + k)}, 16, {vr(L + k)}")
            e(f"  v_and_b32 {vr(L + k)}, s{sMASK}, {vr(L + k)}")
        for h in (0, 2):
            e(f"  v_pk_add_f32 {vr(L + h, 2)}, {vr(LC + h, 2)}, {vr(L + h, 2)} neg_lo:[0,1] neg_hi:[0,1]")
            e(f"  v_pk_add_f32 {vr(Hh + h, 2)}, {vr(HS + h, 2)}, {vr(Hh + h, 2)}")
        for i in range(4):
            e(f"  v_cvt_pk_bf16_f32 {vr(LC + i)}, {vr(L + i)}, {vr(Hh + i)}")
            e(f"  v_cvt_pk_bf16_f32 {vr(HS + i)}, {vr(Hh + i)}, -{vr(L + i)}")
        e(f"  v_mov_b32 {vr(h0)}, {2 * p + 2}")
        e(f"  ds_write_b128 {vr(wa)}, {vr(LC, 4)} offset:{QB + 1536 * p}")
        e(f"  ds_write_b128 {vr(wa)}, {vr(HS, 4)} offset:{QB + 1536 * p + 384}")
        e(f"  ds_write_b32 {vr(vZ)}, {vr(h0)} offset:{FL + 16}")
        qmask(0)

    ctl_init()
    if P.ctl:
        hv.append(("c", 0))
    patch("q")
    e(f"  s_lshl_b32 s{sT0}, s{sJ}, 10")
    e(f"  s_add_u32 s{sT0}, s{sT0}, L_hpos-L_pc")
    e(f"  v_add_u32 {vr(h0)}, s{sT0}, {vr(vT16)}")
    e(f"  global_load_dwordx4 {vr(st4, 4)}, {vr(h0)}, s[{sZ}:{sZ + 1}]")
    hv.append(("h", 0))
    if P.ss == 1:
        sc_early()
    if P.ss <= 1:
        patch("s")
    rotate(0)
    hpf()
    if P.ss == 2:
        sc_early()
        patch("s")
    e("  s_waitcnt lgkmcnt(0)")
    e("  s_setprio 0")
    hpf()
    e("  s_barrier")
    hpf()
    if P.ss == 3:
        sc_early()
        patch("s")
    for p in range(1, 8):
        rotate(p)
    e(f"  v_mov_b32 {vr(vSa)}, 0")
    e(f"  v_min_u32 {vr(u)}, 47, {vr(l)}")
    e(f"  v_lshlrev_b32 {vr(vL16)}, 4, {vr(u)}")
    for i in range(4):
        e(f"  v_mov_b32 {vr(sc + i)}, 0")
    e(f"  s_mov_b32 s{sNEED}, 1")
    e("  s_cmp_eq_u32 s2, 0")
    e("  s_cbranch_scc0 L_rc")
    e(f"  v_mov_b32 {vr(h0)}, {W_REC + P.pit * place(0) + 15 * 384 + 4}")
    e(f"  global_load_dword {vr(h1)}, {vr(h0)}, s[{sWS}:{sWS + 1}] sc1")
    if P.ctl:
        e(f"  s_mov_b64 exec, {msk:#x}")
        e(f"  global_store_dword {vr(vFA)}, {vr(vZ)}, s[{sWS}:{sWS + 1}] sc1")
    e("  s_mov_b64 exec, 1")
    e("  s_waitcnt vmcnt(0)")
    e(f"  v_and_b32 {vr(qn)}, 0x77777777, {vr(h1)}")
    e(f"  v_and_b32 {vr(h1)}, 0x88888888, {vr(h1)}")
    e(f"  v_add_u32 {vr(qn)}, 0x11111111, {vr(qn)}")
    e(f"  v_xor_b32 {vr(qn)}, {vr(qn)}, {vr(h1)}")
    e(f"  v_mov_b32 {vr(qn + 1)}, 1")
    e(f"  global_store_dwordx2 {vr(vZ)}, {vr(qn, 2)}, s[{sDBG}:{sDBG + 1}] sc1")
    e("  s_mov_b64 exec, -1")
    e("L_rc:")
    hpf()
    e("  s_waitcnt vmcnt(0)")
    hpf()
    if P.tfine:
        e("  s_waitcnt lgkmcnt(0)")
        e(f"  v_mov_b32 {vr(h0)}, 0")
        for k in range(hpn[0]):
            e(f"  v_writelane_b32 {vr(h0)}, s{HPF[k]}, {k}")
        e(f"  s_mul_i32 s{sT0}, s2, {5 * 256}")
        e(f"  s_add_u32 s{sT0}, s{sT0}, {0x100000 + 1024}")
        e(f"  v_lshl_add_u32 {vr(h1)}, v0, 2, s{sT0}")
        e(f"  global_store_dword {vr(h1)}, {vr(h0)}, s[{sWS}:{sWS + 1}]")
    for k in range(4):
        e(f"  v_and_b32 {vr(ro + 2 * k)}, 0xffff, {vr(st4 + k)}")
        e(f"  v_lshrrev_b32 {vr(ro + 2 * k + 1)}, 16, {vr(st4 + k)}")
    for k in range(2):
        e(f"  v_add_u32 {vr(ro + 6 + k)}, {SCB}, {vr(ro + 6 + k)}")
    if P.sd:
        e(f"  v_mov_b32 {vr(vCL)}, 0")
    e("L_hk:")
    for a in range(2):
        for k in range(2):
            e(f"  ds_read_u16_d16_hi {vr(sc + 2 * a + k)}, {vr(ro + 6 + k)} offset:{SA * a}")
    progwait("hsw", P.psk)
    mark("s")
    rank_post("s")
    for k in range(6):
        e(f"  ds_read_b32 {vr(x + 4 + k)}, {vr(ro + k)} offset:{LGB}")
    e(f"  v_mul_f32 {vr(x + 2)}, s{sSCALE}, {vr(sc)}")
    e(f"  v_mul_f32 {vr(x + 3)}, s{sSCALE}, {vr(sc + 1)}")
    e("  s_waitcnt lgkmcnt(0)")
    e(f"  v_pk_add_f32 {vr(x, 2)}, {vr(x + 4, 2)}, {vr(x + 6, 2)}")
    e(f"  v_pk_add_f32 {vr(x, 2)}, {vr(x, 2)}, {vr(x + 8, 2)}")
    e(f"  v_mul_f32 {vr(x)}, {vr(x)}, {vr(x + 2)}")
    e(f"  v_mul_f32 {vr(x + 1)}, {vr(x + 1)}, {vr(x + 3)}")
    e(f"  v_max_f32 {vr(z4)}, {vr(x)}, {vr(x + 1)}")
    allred("v_max_f32", z4, h0)
    e(f"  v_sub_f32 {vr(x)}, {vr(x)}, {vr(z4)}")
    e(f"  v_sub_f32 {vr(x + 1)}, {vr(x + 1)}, {vr(z4)}")
    e(f"  v_exp_f32 {vr(x)}, {vr(x)}")
    e(f"  v_exp_f32 {vr(x + 1)}, {vr(x + 1)}")
    e("  s_nop 0")
    e(f"  v_add_f32 {vr(z4 + 1)}, {vr(x)}, {vr(x + 1)}")
    e(f"  v_mul_f32 {vr(x)}, {vr(x)}, {vr(sc + 2)}")
    e(f"  v_mul_f32 {vr(x + 1)}, {vr(x + 1)}, {vr(sc + 3)}")
    e(f"  v_add_f32 {vr(z4 + 2)}, {vr(x)}, {vr(x + 1)}")
    for k in range(6):
        e(f"  ds_write_b32 {vr(ro + k)}, {vr(x + (k & 1))} offset:{LGB}")
    e(f"  v_mul_f32 {vr(z4 + 2)}, {f32bits(7.5):#x}, {vr(z4 + 2)}")
    allred("v_add_f32", z4 + 1, h0)
    allred("v_add_f32", z4 + 2, h0)
    e(f"  v_mov_b32 {vr(h0)}, s{sNEED}")
    e(f"  ds_write_b128 {vr(vSa)}, {vr(z4, 4)} offset:{ST}")
    e(f"  ds_write_b32 {vr(vZ)}, {vr(h0)} offset:{FL + 20}")
    e(f"  v_add_u32 {vr(vSa)}, 16, {vr(vSa)}")
    for k in range(8):
        e(f"  v_add_u32 {vr(ro + k)}, {1536 if k < 6 else SL}, {vr(ro + k)}")
    rank_take("s")
    elect()
    e("  s_waitcnt lgkmcnt(0)")
    e(f"  s_add_u32 s{sNEED}, s{sNEED}, 1")
    e(f"  s_cmp_le_u32 s{sNEED}, 16")
    e("  s_cbranch_scc1 L_hk")

    e(f"  v_and_b32 {vr(h2)}, 15, {vr(l)}")
    e(f"  v_lshlrev_b32 {vr(h2)}, 1, {vr(h2)}")
    e(f"  global_load_ushort {vr(h3)}, {vr(h2)}, s[{sRT}:{sRT + 1}] offset:32")
    e(f"  s_mov_b32 s{sK}, 0")
    e(f"  v_min_u32 {vr(wa)}, 23, {vr(l)}")
    e(f"  v_lshlrev_b32 {vr(wa)}, 4, {vr(wa)}")
    e(f"  v_lshlrev_b32 {vr(h0)}, 1, {vr(wa)}")
    e(f"  v_add_u32 {vr(h0)}, {PB}, {vr(h0)}")
    e(f"  v_add_u32 {vr(wa)}, {PK}, {vr(wa)}")
    e(f"  v_lshlrev_b32 {vr(sgn)}, 4, {vr(l)}")
    e(f"  s_mul_i32 s{sT0}, s{sOH + 1}, {P.pit}")
    e(f"  s_add_u32 s{sT0}, s{sT0}, {W_REC}")
    e(f"  v_add_u32 {vr(sgx)}, s{sT0}, {vr(sgn)}")
    e(f"  v_add_u32 {vr(sgn)}, {PK}, {vr(sgn)}")
    e(f"  v_add_u32 {vr(sg2)}, 4096, {vr(sgx)}")
    e(f"  v_lshrrev_b32 {vr(u)}, 1, {vr(vL16)}")
    e(f"  s_mul_i32 s{sT0}, s{sOH}, 384")
    e(f"  s_add_u32 s{sOUT}, s{sOUT}, s{sT0}")
    e(f"  s_addc_u32 s{sOUT + 1}, s{sOUT + 1}, 0")
    e(f"  s_lshl_b32 s{sT0}, s{sO}, 4")
    e(f"  s_add_u32 s{sT0}, s{sT0}, {W_REC + 5760}")
    e(f"  v_add_u32 {vr(h1)}, {W_REC}, {vr(u)}")
    e("  s_waitcnt vmcnt(0)")
    e(f"  v_lshrrev_b32 {vr(h2)}, 4, {vr(h3)}")
    e(f"  v_and_b32 {vr(h3)}, 15, {vr(h3)}")
    e(f"  v_mul_u32_u24 {vr(h2)}, {P.pit}, {vr(h2)}")
    e(f"  v_mul_u32_u24 {vr(h3)}, 384, {vr(h3)}")
    e(f"  v_add_u32 {vr(h3)}, {vr(h2)}, {vr(h3)}")
    e(f"  v_add_u32 {vr(ra + 15)}, s{sT0}, {vr(h2)}")
    e("  s_nop 0")
    for k in range(15):
        e(f"  v_add_u32_dpp {vr(ra + k)}, {vr(h3)}, {vr(h1)} row_newbcast:{k} row_mask:0xf bank_mask:0xf")
    e("L_hp:")
    e(f"  s_min_u32 s{sT0}, s{sO}, 13")
    e(f"  s_cmp_eq_u32 s{sT0}, s{sK}")
    e("  s_cbranch_scc0 L_hc_ok")
    e("L_hc:")
    e(f"  global_load_dwordx2 {vr(pr, 2)}, {vr(vZ)}, s[{sDBG}:{sDBG + 1}] sc1")
    e("  s_waitcnt vmcnt(0)")
    e(f"  v_readfirstlane_b32 s{sTG}, {vr(pr)}")
    e(f"  v_readfirstlane_b32 s{sF}, {vr(pr + 1)}")
    e(f"  s_cmp_eq_u32 s{sF}, 1")
    e("  s_cbranch_scc1 L_hc_ok")
    budget("L_hc_ok")
    e("  s_sleep 64")
    e("  s_branch L_hc")
    e("L_hc_ok:")
    vstep_k(sH, sK)
    e(f"  s_lshl_b32 s{sT0}, s{sH}, 4")
    e(f"  v_mov_b32 {vr(h1)}, s{sT0}")
    e(f"  s_add_u32 s{sK}, s{sK}, 1")
    e(f"  s_add_u32 s{sNEED}, s{sK}, 16")
    progwait("hpw", P.psk)
    mark("p")
    hp(0)
    rank_post("p")
    sum_partials(2)
    e(f"  v_max3_f32 {vr(h3)}, |{vr(x)}|, |{vr(x + 1)}|, |{vr(x + 2)}|")
    e(f"  v_max3_f32 {vr(h3)}, {vr(h3)}, |{vr(x + 3)}|, |{vr(x + 4)}|")
    e(f"  v_max3_f32 {vr(h3)}, {vr(h3)}, |{vr(x + 5)}|, |{vr(x + 6)}|")
    e(f"  v_max_f32_e64 {vr(h3)}, {vr(h3)}, |{vr(x + 7)}|")
    allred("v_max_f32", h3, wb)
    e(f"  v_frexp_exp_i32_f32 {vr(h3)}, {vr(h3)}")
    e(f"  v_sub_u32 {vr(wb)}, 14, {vr(h3)}")
    e(f"  v_subrev_u32 {vr(h3)}, 14, {vr(h3)}")
    for i in range(8):
        e(f"  v_ldexp_f32 {vr(x + i)}, {vr(x + i)}, {vr(wb)}")
    for i in range(4):
        e(f"  v_cvt_pk_f16_f32 {vr(fo + i)}, {vr(x + 2 * i)}, {vr(x + 2 * i + 1)}")
    for i in range(4):
        e(f"  v_lshrrev_b32 {vr(x + i)}, 1, {vr(fo + i)}")
        e(f"  v_and_b32 {vr(x + i)}, 0x10001, {vr(x + i)}")
        e(f"  v_add_u32 {vr(fo + i)}, {vr(fo + i)}, {vr(x + i)}")
    e(f"  ds_write_b32 {vr(h1)}, {vr(h3)} offset:{ST + 12}")
    e(f"  v_add_u32 {vr(h0)}, 3072, {vr(h0)}")
    e(f"  ds_write_b128 {vr(wa)}, {vr(fo, 4)}")
    e(f"  v_add_u32 {vr(wa)}, 384, {vr(wa)}")
    rank_take("p")
    if P.es:
        e(f"  s_cmp_eq_u32 s{sK}, 9")
        e("  s_cbranch_scc0 L_es")
        for k in range(P.es):
            e(f"  global_store_dwordx4 {vr(sg2)}, {vr(blk + 4 * k, 4)}, s[{sWS}:{sWS + 1}] offset:{1024 * k - 1024} sc1")
        e("L_es:")
    if P.er:
        e(f"  s_bfe_u32 s{sT0}, s2, 0x30004")
        e(f"  s_add_u32 s{sT0}, s{sT0}, 10")
        e(f"  s_cmp_eq_u32 s{sK}, s{sT0}")
        e("  s_cbranch_scc0 L_er")
        e(f"  s_cmp_lt_u32 s{sK}, {10 + P.er}")
        e("  s_cbranch_scc0 L_er")
        for k in range(16):
            e(f"  global_load_dwordx2 {vr(rec)[:-0] if False else vr(rec, 2)}, {vr(ra + k)}, s[{sWS}:{sWS + 1}] sc1")
            e("  s_sleep 4")
        e("  s_waitcnt vmcnt(0)")
        e("L_er:")
    e(f"  s_cmp_lt_u32 s{sK}, 15")
    e("  s_cbranch_scc1 L_hp")
    if P.eprio:
        e(f"  s_setprio {P.eprio}")
    for k in range(6):
        e(f"  ds_read_b128 {vr(blk + 4 * k, 4)}, {vr(sgn)} offset:{1024 * k}")
    e(f"  v_subrev_u32 {vr(h2)}, 40, {vr(l)}")
    e(f"  v_and_b32 {vr(h2)}, 15, {vr(h2)}")
    e(f"  v_lshlrev_b32 {vr(h2)}, 4, {vr(h2)}")
    e(f"  ds_read_b128 {vr(st4, 4)}, {vr(h2)} offset:{ST}")
    e(f"  s_mov_b32 s{sMASK}, 0x10001")
    e(f"  v_lshlrev_b32 {vr(h2)}, 3, {vr(l)}")
    e(f"  v_lshrrev_b32 {vr(h2)}, {vr(h2)}, s{sTG}")
    e(f"  v_lshrrev_b32 {vr(h3)}, 1, {vr(u)}")
    e(f"  v_lshrrev_b32 {vr(h3)}, {vr(h3)}, s{sTG}")
    for i in range(6):
        src, k = (h2, i) if i < 4 else (h3, i - 4)
        e(f"  v_bfe_u32 {vr(x + i)}, {vr(src)}, {2 * k}, 2")
        e(f"  v_lshl_or_b32 {vr(x + i)}, {vr(x + i)}, 15, {vr(x + i)}")
        e(f"  v_and_b32 {vr(x + i)}, s{sMASK}, {vr(x + i)}")
    e(f"  v_cmp_gt_u32 vcc, 40, {vr(l)}")
    e("  s_waitcnt lgkmcnt(0)")
    e(f"  v_mov_b32 {vr(st4 + 2)}, {vr(st4 + 1)}")
    e(f"  v_mov_b32 {vr(st4 + 1)}, s{sTG}")
    e(f"  s_mov_b32 s{sT0}, 0xffff")
    e(f"  v_bfi_b32 {vr(st4 + 3)}, s{sT0}, {vr(st4 + 3)}, {vr(st4 + 1)}")
    for k in range(24):
        e(f"  v_bfi_b32 {vr(blk + k)}, s{sMASK}, {vr(x + k % 4)}, {vr(blk + k)}")
    for i in range(4):
        e(f"  v_cndmask_b32 {vr(blk + 20 + i)}, {vr(st4 + i)}, {vr(blk + 20 + i)}, vcc")
    e(f"  s_lshl_b32 s{sH}, s{sO}, 4")
    e(f"  v_mov_b32 {vr(h1)}, s{sH}")
    e(f"  v_add_u32 {vr(h0)}, {PB + 15 * 3072}, {vr(vL16)}")
    e(f"  ds_read_b32 {vr(h1)}, {vr(h1)} offset:{ST + 8}")
    e("  s_waitcnt lgkmcnt(0)")
    if P.mg:
        e("; the stores leave late in the last step, so that they reach the memory chips after the stream has ended")
        e(f"  s_mov_b32 s{sNEED}, {31 + (P.mg > 12)}")
        progwait("hmw", P.psl, FL + 32)
    hp(1)
    for k in range(6):
        if k == 5:
            e("  s_mov_b32 exec_hi, 0xffffff")
        if k and P.sg:
            e(f"  s_sleep {P.sg}")
        if k == 0 and P.sx:
            e(f"  s_bfe_u32 s{sT0}, s2, 0x30004")
            e("L_sx:")
            e(f"  s_sleep {P.sx}")
            e(f"  s_sub_u32 s{sT0}, s{sT0}, 1")
            e("  s_cbranch_scc0 L_sx")
        if "w" not in P.xp and k < P.ns:
            e(f"  global_store_dwordx4 {vr(sgx if k < 4 else sg2)}, {vr(blk + 4 * k, 4)}, s[{sWS}:{sWS + 1}] offset:{1024 * (k % 4)} {P.wf}")
    e("  s_mov_b64 exec, -1")
    if "r" in P.xp:
        e("  s_branch L_skip")
    if P.er:
        e(f"  s_bfe_u32 s{sT0}, s2, 0x30004")
        e(f"  s_cmp_lt_u32 s{sT0}, {P.er}")
        e("  s_cbranch_scc1 L_skip")
    if "o" in P.xp:
        e(f"  s_mov_b32 s{sSP}, 0")
    if P.rw:
        e("L_hw:")
    if P.ml:
        e(f"  s_mov_b32 s{sNEED}, {31 + (P.ml > 12)}")
        progwait("hlw", P.psl, FL + 48)
    else:
        e(f"  s_waitcnt vmcnt({P.aw})")
    hp(2)
    hp(3)
    if not P.rw:
        e("L_hw:")
    hp(4)
    if P.cnt:
        e(f"  s_mov_b32 s{sF}, 1")
        e(f"  s_atomic_add s{sF}, s[{sDBG}:{sDBG + 1}], 16")
    if P.nl < 15:
        e(f"  s_mov_b64 exec, {(1 << P.nl) - 1}")
    e(f"  global_load_dwordx4 {vr(cs, 4)}, {vr(ra + 15)}, s[{sWS}:{sWS + 1}] sc1")
    if P.nl < 15:
        e("  s_mov_b64 exec, -1")
    for k in range(15):
        if k == P.nl:
            e("  s_mov_b64 exec, 1")
            for kk in range(k, 15):
                e(f"  v_mov_b32 {vr(ra + kk)}, {vr(ra)}")
        if P.lg:
            e(f"  s_sleep {P.lg}")
        e(f"  global_load_dwordx2 {vr(rec + 2 * k, 2)}, {vr(ra + k)}, s[{sWS}:{sWS + 1}] sc1")
    if P.nl < 15:
        e("  s_mov_b64 exec, -1")
    for i in range(4):
        e(f"  v_mov_b32 {vr(fo + i)}, 0")
    e(f"  v_mov_b32 {vr(wb)}, 0")
    budget("L_hy")
    e("  s_waitcnt vmcnt(15)")
    e(f"  v_xor_b32 {vr(h2)}, s{sTG}, {vr(cs + 3)}")
    e(f"  v_xor_b32 {vr(h3)}, s{sTG}, {vr(cs + 1)}")
    e(f"  v_lshrrev_b32 {vr(h2)}, 16, {vr(h2)}")
    e(f"  v_or_b32 {vr(h2)}, {vr(h2)}, {vr(h3)}")
    e(f"  v_cmp_ne_u32 s[{sZ}:{sZ + 1}], 0, {vr(h2)}")
    e(f"  s_cmp_eq_u64 s[{sZ}:{sZ + 1}], 0")
    e("  s_cbranch_scc0 L_hw")
    e("L_hy:")
    e("  s_waitcnt vmcnt(15)")
    hp(5)
    e(f"  v_mov_b32 {vr(h2)}, {vr(cs)}")
    rowred("v_max_f32", h2)
    e(f"  v_sub_f32 {vr(h2)}, {vr(cs)}, {vr(h2)}")
    e(f"  v_exp_f32 {vr(h2)}, {vr(h2)}")
    e(f"  v_bfe_i32 {vr(h3)}, {vr(cs + 3)}, 0, 16")
    e(f"  v_ldexp_f32 {vr(h3)}, {vr(h2)}, {vr(h3)}")
    e(f"  v_mul_f32 {vr(wa)}, {vr(h2)}, {vr(cs + 2)}")
    e(f"  v_readlane_b32 s{sMSK}, {vr(h3)}, 0")
    e(f"  v_readlane_b32 s{sMSK + 15}, {vr(h2)}, 15")
    for k in range(15):
        if k < 14:
            e(f"  v_readlane_b32 s{sMSK + k + 1}, {vr(h3)}, {k + 1}")
        if k < 4:
            e(f"  v_add_f32_dpp {vr(wa)}, {vr(wa)}, {vr(wa)} row_ror:{8 >> k} row_mask:0xf bank_mask:0xf")
        if k == 4:
            e(f"  v_rcp_f32 {vr(wa)}, {vr(wa)}")
        e(f"  s_waitcnt vmcnt({14 - k})")
        for i in range(2):
            e(f"  v_xor_b32 {vr(rec + 2 * k + i)}, {vr(rec + 2 * k + i)}, {vr(x + 4 + i)}")
        for i in range(4):
            e(f"  v_fma_mix_f32 {vr(fo + i)}, {vr(rec + 2 * k + i // 2)}, s{sMSK + k}, {vr(fo + i)} op_sel:[{i & 1},0,0] op_sel_hi:[1,0,0]")
        e(f"  v_or3_b32 {vr(wb)}, {vr(rec + 2 * k)}, {vr(rec + 2 * k + 1)}, {vr(wb)}")
    e(f"  v_and_b32 {vr(wb)}, s{sMASK}, {vr(wb)}")
    e(f"  v_cmp_ne_u32 s[{sZ}:{sZ + 1}], 0, {vr(wb)}")
    e(f"  s_cmp_lg_u32 s{sSP}, 0")
    e(f"  s_cselect_b64 s[{sZ}:{sZ + 1}], s[{sZ}:{sZ + 1}], 0")
    e(f"  s_cmp_eq_u64 s[{sZ}:{sZ + 1}], 0")
    e("  s_cbranch_scc0 L_hw")
    e(f"  v_mul_f32 {vr(h2)}, s{sMSK + 15}, {vr(wa)}")
    e(f"  v_mul_f32 {vr(h3)}, {vr(h2)}, {vr(h1)}")
    for i in range(4):
        e(f"  v_fma_f32 {vr(fo + i)}, {vr(fo + i)}, {vr(wa)}, -{vr(h3)}")
    if "r" in P.xp or P.er:
        e("L_skip:")
    hp(6)
    e("  s_barrier")
    hp(7)
    for k in range(4):
        e(f"  ds_read_b128 {vr(x + 4 * k, 4)}, {vr(h0)} offset:{768 * k}")
    e("  s_waitcnt lgkmcnt(2)")
    for h in (0, 2):
        e(f"  v_pk_add_f32 {vr(x + h, 2)}, {vr(x + h, 2)}, {vr(x + 4 + h, 2)}")
    e("  s_waitcnt lgkmcnt(0)")
    for h in (0, 2):
        e(f"  v_pk_add_f32 {vr(x + 8 + h, 2)}, {vr(x + 8 + h, 2)}, {vr(x + 12 + h, 2)}")
    for h in (0, 2):
        e(f"  v_pk_add_f32 {vr(x + h, 2)}, {vr(x + h, 2)}, {vr(x + 8 + h, 2)}")
    for i in range(4):
        e(f"  v_fmac_f32 {vr(fo + i)}, {vr(h2)}, {vr(x + i)}")
    e(f"  v_cvt_pk_bf16_f32 {vr(fo)}, {vr(fo)}, {vr(fo + 1)}")
    e(f"  v_cvt_pk_bf16_f32 {vr(fo + 1)}, {vr(fo + 2)}, {vr(fo + 3)}")
    e("  s_mov_b32 exec_hi, 0xffff")
    e(f"  global_store_dwordx2 {vr(u)}, {vr(fo, 2)}, s[{sOUT}:{sOUT + 1}] {P.of}")
    if P.sd:
        e(f"  s_mov_b32 s{sNEED}, 32")
        e("  s_mov_b64 exec, -1")
        mark("z")
        e(f"  s_cmp_eq_u32 s{sJ}, 0")
        e("  s_cbranch_scc0 L_sd")
        e(f"  v_lshlrev_b32 {vr(h0)}, 2, {vr(l)}")
        e("  s_mov_b32 exec_lo, 0")
        e("  s_mov_b32 exec_hi, 0x3fff")
        e(f"  global_atomic_add {vr(h0)}, {vr(vCL)}, s[{sDBG}:{sDBG + 1}] offset:-120 sc1")
        e("L_sd:")
    if P.enc:
        m0, m1, base, amp, wg = [int(v) for v in P.enc.split(",")]
        if m1 == 32:
            e("  s_memrealtime s[18:19]")
        if m0 == 0:
            e(f"  s_mov_b32 s16, s{sST}")
        e("  s_waitcnt lgkmcnt(0)")
        if P.em:
            e(f"  s_not_b32 s17, s{sST}")
            e(f"  s_mov_b32 s16, s{sST}")
            e(f"  s_atomic_umax s18, s[{sDBG}:{sDBG + 1}], 40")
            e(f"  s_atomic_umax s17, s[{sDBG}:{sDBG + 1}], 44")
            e(f"  s_atomic_umax s16, s[{sDBG}:{sDBG + 1}], 48")
        else:
            e("  s_sub_u32 s16, s18, s16")
            e(f"  s_atomic_add s16, s[{sDBG}:{sDBG + 1}], 32")
        e(f"  s_cmp_eq_u32 s2, {wg}")
        e("  s_cbranch_scc0 L_nohold")
        e("L_hold0:")
        e(f"  s_memrealtime s[{sST + 2}:{sST + 3}]")
        e("  s_waitcnt lgkmcnt(0)")
        e(f"  s_sub_u32 s{sT0}, s{sST + 2}, s{sST}")
        e(f"  s_cmp_lt_u32 s{sT0}, 12500")
        e("  s_cbranch_scc1 L_hold0")
        e("  s_mov_b32 s16, 0")
        if P.em:
            e("  s_mov_b32 s17, 0")
            e(f"  s_atomic_add s16, s[{sDBG}:{sDBG + 1}], {48 if P.em == 3 else 40} glc")
            e(f"  s_atomic_add s17, s[{sDBG}:{sDBG + 1}], {48 if P.em == 2 else 44} glc")
            e("  s_waitcnt lgkmcnt(0)")
            if P.em != 2:
                e("  s_not_b32 s17, s17")
            e("  s_sub_u32 s16, s16, s17")
            e("  s_lshl_b32 s16, s16, 8")
        else:
            e(f"  s_atomic_add s16, s[{sDBG}:{sDBG + 1}], 32 glc")
            e("  s_waitcnt lgkmcnt(0)")
        e(f"  s_sub_u32 s16, s16, {base * 256}")
        e("  s_max_i32 s16, s16, 0")
        e("  s_min_i32 s16, s16, 128000")
        e(f"  s_mul_i32 s16, s16, {amp}")
        e("  s_lshr_b32 s16, s16, 8")
        e("  s_add_u32 s16, s16, 13000")
        e("L_hold:")
        e(f"  s_memrealtime s[{sST + 2}:{sST + 3}]")
        e("  s_waitcnt lgkmcnt(0)")
        e(f"  s_sub_u32 s{sT0}, s{sST + 2}, s{sST}")
        e(f"  s_cmp_lt_u32 s{sT0}, s16")
        e("  s_cbranch_scc1 L_hold")
        e("L_nohold:")
        e("  s_waitcnt lgkmcnt(0)")
    if P.tail:
        e("; diagnostic build only")
        e("  s_memrealtime s[16:17]")
        e("L_tail:")
        e("  s_memrealtime s[18:19]")
        e("  s_waitcnt lgkmcnt(0)")
        e("  s_sub_u32 s18, s18, s16")
        e(f"  s_cmp_lt_u32 s18, {P.tail}")
        e("  s_cbranch_scc1 L_tail")
    if P.hold:
        e("; diagnostic build only")
        e("L_hold:")
        e(f"  s_memrealtime s[{sST + 2}:{sST + 3}]")
        e("  s_waitcnt lgkmcnt(0)")
        e(f"  s_sub_u32 s{sT0}, s{sST + 2}, s{sST}")
        e(f"  s_cmp_lt_u32 s{sT0}, {P.hold}")
        e("  s_cbranch_scc1 L_hold")
    if P.stamp:
        e(f"  s_memrealtime s[{sST + 2}:{sST + 3}]")
        if P.hprof:
            e("  s_waitcnt lgkmcnt(0)")
            e("  s_lshl_b32 s44, s2, 5")
            e("  s_add_u32 s44, s44, 0x80000")
            e("  v_mov_b32 v1, s44")
            for k in range(8):
                e(f"  s_sub_u32 s45, s{sST + 2}, s{HP[k]}")
                e(f"  v_mov_b32 v{4 + k}, s45")
            e(f"  global_store_dwordx4 v1, v[4:7], s[{sWS}:{sWS + 1}]")
            e(f"  global_store_dwordx4 v1, v[8:11], s[{sWS}:{sWS + 1}] offset:16")
            e("  s_nop 2")
        e("  s_getreg_b32 s6, hwreg(HW_REG_XCC_ID)")
        e("  s_getreg_b32 s7, hwreg(HW_REG_HW_ID)")
        e("  s_waitcnt lgkmcnt(0)")
        e(f"  v_mov_b32 v4, s{sST}")
        e(f"  v_mov_b32 v5, s{sST + 2}")
        e("  v_mov_b32 v6, s6")
        e("  v_mov_b32 v7, s7")
        e("  s_lshl_b32 s8, s2, 4")
        e("  v_mov_b32 v1, s8")
        e(f"  global_store_dwordx4 v1, v[4:7], s[{sWS}:{sWS + 1}]")
    e("L_end:")
    e("  s_endpgm")
    e(".p2align 6")
    e(".type L_order,@object")
    e("L_order:")
    for k in range(0, len(ordtab), 8):
        e("  .long " + ", ".join(f"{v:#x}" for v in ordtab[k:k + 8]))
    e(".type L_hpos,@object")
    e("L_hpos:")
    for b in range(2):
        at = {chunk_of(b, n, s_): lpos(n, s_) for n in range(24) for s_ in range(16)}
        rows = sorted({c // 3 for c in at})
        for l_ in range(64):
            r0, r1 = rows[l_], rows[l_ + 64]
            e("  .long " + ", ".join(f"{a_ | b_ << 16:#x}" for a_, b_ in [(at[3 * r0 + k], at[3 * r1 + k]) for k in range(3)] + [(2 * r0, 2 * r1)]))
    e('.section .rodata,"a"')
    e(".p2align 6")
    e(f".amdhsa_kernel {NAME}_kernel")
    e(f"  .amdhsa_next_free_vgpr {NV}")
    e("  .amdhsa_next_free_sgpr 100")
    e(f"  .amdhsa_accum_offset {(NV + 3) // 4 * 4}")
    e("  .amdhsa_group_segment_fixed_size 0")
    e("  .amdhsa_kernarg_size 112")
    e("  .amdhsa_user_sgpr_count 2")
    e("  .amdhsa_user_sgpr_kernarg_segment_ptr 1")
    e("  .amdhsa_system_sgpr_workgroup_id_x 1")
    e(".end_amdhsa_kernel")
    return "\n".join(o) + "\n", NV


if __name__ == "__main__":
    ap = argparse.ArgumentParser()
    ap.add_argument("-o", default=f"/code/{NAME}.s")
    for name, d in (("sh", 4), ("deep", 5), ("pd", 9), ("pre", 12), ("nf", 6), ("su", 3), ("ss", 3), ("hp0", 0), ("tst", 20),
                    ("ctl", 1), ("hi", 0), ("hiv", 5), ("lo", -25), ("thr", 2), ("tp", 2), ("inv", 1), ("start", 5), ("s0", 0), ("ba", 3),
                    ("r0", 2), ("r1", 30), ("rf", 3), ("rp", 2), ("rt", 26), ("rotl", 7), ("kp", 7), ("kp0", 6), ("kn", 20),
                    ("mg", 5), ("ml", 0), ("aw", 0), ("rw", 0), ("cnt", 0), ("pit", 6016), ("sg", 0), ("sx", 0), ("lg", 0), ("ns", 6), ("es", 0), ("er", 0), ("nl", 15), ("map", 0), ("pol", -1), ("tail", 0), ("em", 0), ("nch", 12), ("cw", 1), ("cl", 0), ("sd", 0),
                    ("eprio", 2), ("psl", 1), ("psk", 1), ("spr", 1), ("bound", 4000000), ("hold", 0), ("dly", 0), ("dlb", 2)):
        ap.add_argument("--" + name, type=int, default=d)
    ap.add_argument("--kp_", default="6,6,6,7,8,9,9,10,10,11,11,12,12", help="K loads issued by each prologue point")
    ap.add_argument("--sf", default="nt")
    ap.add_argument("--of", default="")
    ap.add_argument("--wf", default="sc1")
    ap.add_argument("--enc", default="", help="diagnostic only: m0,m1,base,amp,wg")
    ap.add_argument("--qf", default="")
    ap.add_argument("--cf", default="")
    ap.add_argument("--ok", default="REXbLbLbL", help="events of a K group")
    ap.add_argument("--ov", default="REXbLbLbL", help="events of a V group")
    ap.add_argument("--vo", default="201")
    ap.add_argument("--tb", default="", help="first:last:bias, times 2 / -1 for workgroups that finish in / outside the last block")
    ap.add_argument("--rk", default="", help="die gain per step (hex digits, 0 = no ranking)")
    ap.add_argument("--sb", default="", help="step:bias,... added to the lateness")
    ap.add_argument("--bu", default="012", help="extra depth per position in the issued group")
    ap.add_argument("--th", default="-9,5,13")
    ap.add_argument("--sch", default="sch_np.txt")
    ap.add_argument("--xp", default="", help="timing experiments only")
    for name in ("stamp", "trace", "tfine", "hprof"):
        ap.add_argument("--" + name, action="store_true", help="diagnostics only")
    a = ap.parse_args()
    txt, nv = gen(a)
    open(a.o, "w").write(txt)
    print("wrote", a.o, "vgprs", nv)
```

```python
import argparse
import math
import os
import struct
from gen import HEADER, NAME, Alloc, f32bits, vr

HB = 2048 * 768

ABOUT = """
Generated by tools/gen9.py.
Work split: workgroup (cluster c, block m, member b) handles 128 rows of the 256-row block m for 16 heads 16 k + c
  (slots k = 5 and 10 take their head from a table instead of c); the two members alternate over 32 KiB runs.
  Waves 1-4 stream one 4 KiB block per round; a 16-lane row handles one third (64 dims) of a KV row per load.
  K sweep: logit = k_scale * sum_d (qk - 7.5) * (qa * cos + qb * sin), RoPE moved onto the rotated q;
  V sweep: partial = sum_rows p * v_scale * qv.
  Wave 0 (helper) rotates q, takes max / exp / sums over the workgroup's rows of each head, and merges partials.
Constant parameters (the same for every seed) are built in: both zero points (7.5), q_cos / q_sin (table L_qcs) and
  k_cos / k_sin = bf16(cos / sin(fp32(row * inv_freq))), evaluated once per workgroup from the table L_inv into LDS.
Hand-off: every workgroup finishes one of its heads and streams that head last.  Partials and (max, sum) of
  the other 15 go to d_ws with sc1 stores; every 8 bytes carry a piece of a tag that differs from the one found there on
  entry (sent round through d_debug).  The finisher reads until all tags fit and rescales all 16 to the true row maximum.
Flow control (speed only, results do not depend on it): waves publish a group counter and sample the counters of
  units on the same die; late waves keep one more load in flight, early waves one or two fewer.  Helpers rank the dies.
"""

RUN = (1, 2, 0)


def chunk_of(b, n, s):
    g = 256 * RUN[n >> 3] + 128 * b + 16 * (n & 7) + s
    return {128: 512, 255: 639, 512: 128, 639: 255}.get(g, g)


def tidx(b, row):
    return row - 43 * b - 42 * ((row >= 85) + (row >= 171))


def rev(x, bits):
    return int(format(x, f"0{bits}b")[::-1], 2)


def lpos(n, s):
    return 4 * (16 * s + rev(n, 4)) if n < 16 else 1024 + 4 * (8 * s + rev(n - 16, 3))


TN = [(RUN[n >> 3] + (n & 7)) % 3 for n in range(24)]
SPECIAL = {n: i for i, n in enumerate(sorted(8 * RUN.index(r) + i for r in (0, 2) for i in (0, 7)))}
for b_ in range(2):
    ch = sorted(chunk_of(b_, n, s) for n in range(24) for s in range(16))
    assert ch == sorted(3 * r + k for r in {c // 3 for c in ch} for k in range(3))
    assert all(chunk_of(b_, n, s) % 3 == (TN[n] + 2 * b_ + s) % 3 for n in range(24) for s in range(16))
    assert len({tidx(b_, c // 3) for c in ch}) == 128 and max(tidx(b_, c // 3) for c in ch) == 128


def gen(P):
    o = []
    e = o.append
    RING, PD = 24, P.pd
    sh, deep = P.sh, P.deep
    PRE = P.pre
    TP = P.tp
    LAG = 2
    assert deep <= PD - 1 and sh <= deep and PD <= PRE
    SL = 512
    SA = 16 * SL

    FL = 0
    ST = 256
    TB = 512
    QB = TB + 129 * 384
    LGB = QB + 16 * 768 + 1536
    SCB = LGB + 16 * 1536
    PB = SCB + 2 * SA
    PK = PB + 49152
    LDS = PK + 6144
    assert 81920 < LDS <= 163840
    W_REC = 0x400000
    W_RK = 0x780000
    W_PL = 0x7c0000

    sQ, sQK, sKS, sKZ, sQV, sVS, sVZ, sQC = 4, 6, 8, 10, 12, 14, 16, 18
    sQS, sKC, sKSN, sOUT = 20, 22, 24, 26
    sDBG, sWS = 28, 30
    rA, rB = 32, 36
    sW, sJ, sC, sK, sT0, sT1, sF, sNEED = 40, 41, 42, 43, 44, 45, 46, 47
    sMSK = 48
    sOF = 51
    sPB = 60
    sCO = 61
    sZ = 64
    sMASK, sSCALE, sH = 66, 67, 68
    sS = 69
    sX = 70
    sRF = 80
    sRT = 82
    sST = 84
    sN = 90
    sB = 91
    sVO = 92
    sSP = 94
    sI = 95
    sSE, sCU = 81, 79
    sLO = 78
    sO = 3
    sCN = 96
    sOH, sTG = 98, 99

    va = Alloc(1)
    vT16, vF, vZ, vC16 = [va.take(1) for _ in range(4)]
    voff = va.take(7)
    vTA = va.take(7)
    vQA = va.take(3)
    vPA = va.take(3)
    vLG = va.take(2)
    vLB = va.take(2)
    vLV = va.take(2)
    A = va.take(2)
    LG = va.take(2)
    M1, M2, M3 = [va.take(1) for _ in range(3)]
    bc = va.take(2, 2)
    dacc = va.take(2, 2)
    wt = va.take(4, 2)
    vtr, vPW, vPS, vN, vSum, vSu2, vBA = [va.take(1) for _ in range(7)]
    vPL = va.take(4)
    vBI = va.take(2, 2)
    smp = va.take(8, 4)
    qa = va.take(12, 4)
    tab = va.take(24, 4)
    tmp = va.take(12, 4)
    ring = va.take(4 * RING, 4)
    NV = va.n
    acc = qa

    here = os.path.dirname(os.path.abspath(__file__))
    sch = [[int(x) for x in ln.split()] for ln in open(os.path.join(here, P.sch))]
    sch = [x[:3] + [k for b_ in P.vo for k in x[3 + 5 * int(b_):8 + 5 * int(b_)]] + x[18:] for x in sch]
    inv, qcs = [[int(x, 16) for x in ln.split()] for ln in open(os.path.join(here, "consts.txt"))]
    cj = lambda g: (g >> 4, (g & 7) * 2 + ((g >> 3) & 1))
    ent = {g: sch[16 * cj(g)[0] + cj(g)[1]] for g in range(256)}
    cl = lambda g, k: ent[g][0] if k == 5 else ent[g][1] if k == 10 else g >> 4
    assert sorted(16 * ent[g][2] + cl(g, ent[g][2]) for g in range(256)) == list(range(256))
    place = (lambda g: g) if P.pol < 0 else (lambda g: (g & 127) << 1 | (g >> 7) ^ P.pol)
    ordtab = []
    for g in range(256):
        o_, od = ent[g][2], ent[g][3:]
        assert sorted(od) == list(range(16)) and od[15] == o_
        con = [x for x in range(256) if x != g and cl(x, o_) == cl(g, o_)] + [g]
        assert sorted(cj(x)[1] for x in con) == list(range(16))
        nib = sum(k << (4 * t) for t, k in enumerate(range(16) if "i" in P.xp else od))
        cn = sum((g >> 4 if "c" in P.xp else cl(g, k)) << (4 * k) for k in range(16))
        u16 = [16 * place(x) + ent[x][3:].index(o_) for x in con]
        assert all(v % 16 < 15 for v in u16[:15]) and P.pit % 64 == 0
        ordtab += [nib & 0xffffffff, nib >> 32, cn & 0xffffffff, cn >> 32, 16 * o_ + cl(g, o_), place(g), o_, 2 if ((16 * o_ + cl(g, o_)) * HB + (g & 7) * 196608 + 98304) >> 28 else 0xffffffff]
        ordtab += [u16[2 * i] | u16[2 * i + 1] << 16 for i in range(8)]

    def ld(n):
        rr = rA if n < 24 else rB
        n %= 24
        so = f"s{sOF + (n & 7)}" if n & 7 else "0"
        vo = voff + (3 + SPECIAL[n] if n in SPECIAL and "x" not in P.xp else n >> 3)
        e(f"  buffer_load_dwordx4 {vr(ring + 4 * n, 4)}, {vr(vo)}, s[{rr}:{rr + 3}], {so} offen nt")

    ORD = {"K": P.ok, "V": P.ov}
    DIST = {"K": PRE, "V": PD}
    bu = [int(x) for x in P.bu]
    th = [int(x) for x in P.th.split(",")]
    assert PD % 3 == 0 and PRE % 3 == 0 and deep == sh + 1

    def memops(ph, a):
        r = []
        for i, c in enumerate(ORD[ph]):
            if c == "X" and P.ctl:
                r += [(i, "B")] * (a == P.ba) + [(i, "S"), (i, "Q")]
            if c == "L":
                r.append((i, "L"))
        return r

    def back(ph, a, i):
        r = [c for j, c in memops(ph, a) if j < i][::-1]
        for k in range(1, 8):
            r += [c for _, c in memops(ph, (a - k) % 8)][::-1]
        return r

    def cnt(ph, a, i, depth):
        depth += bu[ORD[ph][:i].count("L")]
        r = back(ph, a, i)
        return [k + 1 for k, c in enumerate(r) if c == "L"][depth - 2] if depth > 1 else 0

    def swait(ph, a):
        assert ORD[ph].index("E") < ORD[ph].index("X")
        r = back(ph, a, ORD[ph].index("E"))
        return [k for k, c in enumerate(r) if c == "Q"][LAG - 1]

    plain = {}

    def verify():
        ops = [("L", i) for i in range(PRE)]
        done = ORD["K"][:ORD["K"].index("L")].count("b")
        for g in range(256):
            ph, a = "KV"[g >= 128], g % 8
            if 3 * g + PD >= 768 or 128 <= g < 128 + (PRE - PD) // 3:
                for n in range(3 * g, 3 * g + 4 - (g == 255)):
                    plain[n] = len(ops) - 1 - ops.index(("L", n))
                done = max(done, len(ops) - plain[min(3 * g + 3, 767)])
                continue
            nb = nl = 3 * g
            for i, c in enumerate(ORD[ph]):
                if c == "E" and P.ctl:
                    done = max(done, len(ops) - swait(ph, a))
                if c == "X" and P.ctl:
                    ops += [("X", 0)] * (1 + (a == P.ba))
                if c == "b":
                    assert ("L", nb) in ops[:done], nb
                    nb += 1
                if c == "L":
                    done = max(done, len(ops) - cnt(ph, a, i, deep if P.ctl else sh))
                    ops.append(("L", nl + DIST[ph]))
                    nl += 1
    verify()
    lab = [0]
    rare = []

    def flush():
        o.extend(rare)
        rare.clear()

    def issue(ph, a, i):
        j = ORD[ph][:i].count("L")
        lab[0] += 1
        if P.ctl and j == TP:
            e(f"  s_cmp_lt_i32 s{sS}, {P.lo}")
            e(f"  s_cbranch_scc1 L_t{lab[0]}")
            rare.extend([f"L_t{lab[0]}:", f"  s_waitcnt vmcnt({cnt(ph, a, i, P.thr + 1)})", f"  s_branch L_p{lab[0]}"])
        if P.ctl:
            t = (P.hi if ph == "K" else P.hiv) + th[j]
            assert t >= P.lo
            e(f"  s_cmp_gt_i32 s{sS}, {t}")
            if t < 0 and P.inv:
                e(f"  s_cbranch_scc0 L_q{lab[0]}")
                rare.extend([f"L_q{lab[0]}:", f"  s_waitcnt vmcnt({cnt(ph, a, i, sh)})", f"  s_branch L_p{lab[0]}"])
                e(f"  s_waitcnt vmcnt({cnt(ph, a, i, deep)})")
                e(f"L_p{lab[0]}:")
            else:
                e(f"  s_cbranch_scc1 L_p{lab[0]}")
                e(f"  s_waitcnt vmcnt({cnt(ph, a, i, sh)})")
                e(f"L_p{lab[0]}:")
                e(f"  s_waitcnt vmcnt({cnt(ph, a, i, deep)})")
        else:
            e(f"  s_waitcnt vmcnt({cnt(ph, a, i, sh)})")
        ld(3 * a + j + DIST[ph])
        if ph == "V" and 3 * a + j + 1 == P.mg:
            e(f"  ds_write_b32 {vr(vPW)}, {vr(M1)} offset:{FL + 32}")
        if ph == "V" and 3 * a + j + 1 == P.ml:
            e(f"  ds_write_b32 {vr(vPW)}, {vr(M1)} offset:{FL + 48}")

    def evaluate(ph, a):
        if not P.ctl:
            return
        sm = smp + 4 * (a % LAG)
        e(f"  s_waitcnt vmcnt({swait(ph, a)})")
        if a == (P.ba + LAG) % 8:
            e(f"  v_add_u32 {vr(vBI)}, {vr(vBI)}, {vr(vBI + 1)}")
        e(f"  s_add_u32 s{sT0}, s{sLO}, 0x03030303")
        e(f"  v_msad_u8 {vr(vSum)}, s{sLO}, {vr(sm)}, 0")
        e(f"  v_msad_u8 {vr(vSu2)}, s{sT0}, {vr(sm)}, 0")
        if a == (P.ba + LAG) % 8:
            e(f"  v_readfirstlane_b32 s{sB}, {vr(vBI)}")
        for k in range(1, 3):
            e(f"  v_msad_u8 {vr(vSum)}, s{sLO}, {vr(sm + k)}, {vr(vSum)}")
            e(f"  v_msad_u8 {vr(vSu2)}, s{sT0}, {vr(sm + k)}, {vr(vSu2)}")
        e(f"  v_sub_u32 {vr(vSum)}, {vr(vSum)}, {vr(vSu2)}")
        e(f"  s_add_u32 s{sLO}, s{sLO}, 0x01010101")
        e(f"  v_readlane_b32 s{sMASK}, {vr(vSum)}, 0")
        e(f"  v_readlane_b32 s{sSCALE}, {vr(vSum)}, 1")

    def decide(ph, a):
        if not P.ctl:
            return
        if a == (P.ba + LAG) % 8:
            for it in filter(None, P.sb.split(",")):
                st_, b_ = [int(v) for v in it.split(":")]
                if (st_ >= 16) == (ph == "V"):
                    e(f"  s_cmp_eq_u32 s{sK}, {st_ % 16}")
                    e(f"  s_cselect_b32 s{sT0}, {b_}, 0")
                    e(f"  s_add_u32 s{sB}, s{sB}, s{sT0}")
            for it in filter(None, P.tb.split(",")):
                s0_, s1_, b_ = [int(v) for v in it.split(":")]
                if (s0_ >= 16) == (ph == "V"):
                    e(f"  s_bitcmp1_b32 {sum(1 << (k % 16) for k in range(s0_, s1_ + 1)):#x}, s{sK}")
                    e(f"  s_cselect_b32 s{sT0}, {b_}, 0")
                    e(f"  s_mul_i32 s{sT0}, s{sT0}, s{sPB}")
                    e(f"  s_add_u32 s{sB}, s{sB}, s{sT0}")
        cur, old = (sI, sCO) if a & 1 else (sCO, sI)
        e(f"  s_add_u32 s{cur}, s{sMASK}, s{sSCALE}")
        e(f"  s_add_u32 s{sS}, s{cur}, s{old}")
        e(f"  s_ashr_i32 s{sS}, s{sS}, 1")
        e(f"  s_add_u32 s{sS}, s{sS}, s{sB}")
        if ph == "K" and a < P.start:
            e(f"  s_cmp_eq_u32 s{sK}, 0")
            e(f"  s_cselect_b32 s{sS}, {P.s0}, s{sS}")

    def exchange(a):
        if not P.ctl:
            return
        e("  s_mov_b64 exec, 1")
        if a == P.ba:
            e(f"  global_load_dwordx2 {vr(vBI, 2)}, {vr(vBA)}, s[{sWS}:{sWS + 1}] sc1")
        e(f"  global_store_byte {vr(vPS)}, {vr(vN)}, s[{sWS}:{sWS + 1}]")
        e("  s_mov_b64 exec, 3")
        e(f"  global_load_dwordx3 {vr(smp + 4 * (a % LAG), 3)}, {vr(vPL + a % 4)}, s[{sWS}:{sWS + 1}] sc1")
        e(f"  v_add_u32 {vr(vN)}, 1, {vr(vN)}")
        e("  s_mov_b64 exec, -1")

    def srd_head(rr, sp, sh_):
        e(f"  s_mul_i32 s{sT0}, s{sh_}, {HB}")
        e(f"  s_add_u32 s{rr}, s{sp}, s{sT0}")
        e(f"  s_addc_u32 s{rr + 1}, s{sp + 1}, 0")

    def vstep_k(dst, src):
        e(f"  s_lshl_b32 s{dst}, s{src}, 2")
        e(f"  s_lshr_b64 s[{sZ}:{sZ + 1}], s[{sVO}:{sVO + 1}], s{dst}")
        e(f"  s_and_b32 s{dst}, s{sZ}, 15")

    def head_of(dst, slot):
        e(f"  s_lshl_b32 s{sT0}, s{slot}, 2")
        e(f"  s_lshr_b64 s[{sZ}:{sZ + 1}], s[{sCN}:{sCN + 1}], s{sT0}")
        e(f"  s_and_b32 s{sZ}, s{sZ}, 15")
        e(f"  s_lshl4_add_u32 s{dst}, s{slot}, s{sZ}")

    def budget(ok):
        e(f"  s_cmp_eq_u32 s{sSP}, 0")
        e(f"  s_cbranch_scc1 {ok}")
        e(f"  s_sub_u32 s{sSP}, s{sSP}, 1")

    def flagwait(name, off):
        e(f"L_{name}:")
        e("  s_waitcnt lgkmcnt(0)")
        e(f"  v_readfirstlane_b32 s{sF}, {vr(vF)}")
        e(f"  s_cmp_ge_u32 s{sF}, s{sNEED}")
        e(f"  s_cbranch_scc0 L_{name}_no")
        e(f"L_{name}_ok:")
        rare.extend([f"L_{name}_no:", f"  s_cmp_eq_u32 s{sSP}, 0", f"  s_cbranch_scc1 L_{name}_ok", f"  s_sub_u32 s{sSP}, s{sSP}, 1",
                     f"  ds_read_b32 {vr(vF)}, {vr(vZ)} offset:{off}", f"  s_branch L_{name}"])

    def tr():
        if P.trace:
            e(f"  {'s_memtime' if 'm' in P.xp else 's_memrealtime'} s[88:89]")
            e("  s_waitcnt lgkmcnt(0)")
            e(f"  v_writelane_b32 {vr(vtr)}, s88, m0")
            e("  s_add_u32 m0, m0, 1")
            e("  s_min_u32 m0, m0, 63")

    def die_base(dst):
        e(f"  s_getreg_b32 s{sSE}, hwreg(HW_REG_HW_ID, 8, 7)")
        e(f"  s_getreg_b32 s{dst}, hwreg(HW_REG_XCC_ID, 0, 3)")
        e(f"  s_and_b32 s{sCU}, s{sSE}, 15")
        e(f"  s_lshr_b32 s{sSE}, s{sSE}, 5")
        e(f"  s_mul_i32 s{dst}, s{dst}, 4352")
        e(f"  s_add_u32 s{dst}, s{dst}, {W_PL}")

    ha = Alloc(16)
    l, u, h0, h1, h2, h3 = [ha.take(1) for _ in range(6)]
    qo, wa, wb, sgn, sgx, sg2 = [ha.take(1) for _ in range(6)]
    ro = ha.take(8)
    vL16, vCNT, vDB, vOne, vFA, vFI, vFR, vFX, vFB, vEL, vCL, vSa = [ha.take(1) for _ in range(12)]
    z4 = ha.take(4, 4)
    cs = ha.take(8, 4)
    sc = ha.take(4, 4)
    qn = ha.take(4, 4)
    x = ha.take(32, 4)
    pr = ha.take(4, 4)
    fo = ha.take(4, 4)
    rec = ha.take(32, 4)
    blk = ha.take(24, 4)
    st4 = ha.take(4, 4)
    ra = ha.take(16)
    assert ha.n <= NV and vZ < 16

    invX, invY, tK, tA, tN, tO = tmp, tmp + 4, tmp + 8, tab, tab + 4, tab + 8
    PC0 = 20 + 8 * P.stamp + 16 * (P.dly > 0)
    D_INV, D_QCS, D_END = 256, 768, 1152
    NF = P.nf
    assert RUN[0] == 1 and NF <= 8
    e(HEADER.rstrip("\n"))
    e(f"; @launch grid=(256,1,1) block=(320,1,1) lds={LDS}")
    for ln in ABOUT.strip("\n").split("\n"):
        e("; " + ln)
    e('.amdgcn_target "amdgcn-amd-amdhsa--gfx950"')
    e(".text")
    e(f".globl {NAME}_kernel")
    e(".p2align 8")
    e(f".type {NAME}_kernel,@function")
    e(f"{NAME}_kernel:")
    e("  s_cmpk_ge_u32 s2, 0x100")
    e("  s_cbranch_scc1 L_end")
    if P.dly:
        e("; diagnostic build only: half of the dies start late")
        e(f"  s_getreg_b32 s4, hwreg(HW_REG_XCC_ID, {P.dlb}, 1)")
        e("  s_cmp_eq_u32 s4, 0")
        e("  s_cbranch_scc1 L_dly")
        e(f"  s_sleep {P.dly}")
        e("L_dly:")
    if P.stamp:
        e(f"  s_memrealtime s[{sST}:{sST + 1}]")
    e("  s_load_dwordx16 s[4:19], s[0:1], 0")
    e(f"  s_getpc_b64 s[{sZ}:{sZ + 1}]")
    e("L_pc:")
    e("  v_cmp_gt_u32 vcc, 64, v0")
    e(f"  v_lshlrev_b32 {vr(vT16)}, 4, v0")
    e(f"  s_lshr_b32 s{sK}, s2, 4")
    if P.map:
        e("; bits 2 and 7 of the number trade places: a cluster stays on four dies")
        e(f"  s_lshr_b32 s{sH}, s2, 5")
        e(f"  s_xor_b32 s{sH}, s{sH}, s2")
        e(f"  s_and_b32 s{sH}, s{sH}, 4")
        e(f"  s_mul_i32 s{sH}, s{sH}, 33")
        e(f"  s_xor_b32 s2, s2, s{sH}")
    e(f"  s_lshr_b32 s{sC}, s2, 4")
    e(f"  s_and_b32 s{sH}, s2, 7")
    e(f"  s_lshl3_add_u32 s{sH}, s{sC}, s{sH}")
    e(f"  s_movk_i32 s{sNEED}, 768")
    e("  s_cbranch_vccz L_s0")
    e(f"  v_lshl_add_u32 {vr(h0)}, s{sK}, 6, v0")
    e(f"  v_mul_u32_u24 {vr(h0)}, {P.tst}, {vr(h0)}")
    e(f"  global_load_dword {vr(h3)}, {vr(h0)}, s[{sZ}:{sZ + 1}] offset:{D_END - PC0} {P.cf}")
    e(f"  v_and_b32 {vr(vL16)}, 0x1f0, {vr(vT16)}")
    e(f"  global_load_dwordx4 {vr(pr, 4)}, {vr(vL16)}, s[{sZ}:{sZ + 1}] offset:{D_QCS - PC0}")
    e("  s_branch L_helper")
    e("L_s0:")
    e(f"  v_and_b32 {vr(vC16)}, 0xf0, {vr(vT16)}")
    e(f"  global_load_dwordx4 {vr(invX, 4)}, {vr(vC16)}, s[{sZ}:{sZ + 1}] offset:{D_INV - PC0}")
    e(f"  global_load_dwordx4 {vr(invY, 4)}, {vr(vC16)}, s[{sZ}:{sZ + 1}] offset:{D_INV + 256 - PC0}")
    e(f"  s_mul_i32 s{sT0}, s{sH}, 196608")
    e(f"  s_and_b32 s{sT1}, s2, 8")
    e(f"  s_lshl_b32 s{sT1}, s{sT1}, 12")
    e(f"  s_add_u32 s{sT0}, s{sT0}, s{sT1}")
    e(f"  s_add_u32 s{sT0}, s{sT0}, {65536 * RUN[0] - 1024 + 4096}")
    e(f"  v_add_u32 {vr(tA)}, s{sT0}, {vr(vT16)}")
    for k in range(1, (NF + 1) // 2):
        e(f"  v_add_u32 {vr(tA + k)}, {8192 * k}, {vr(tA)}")
    e("  s_waitcnt lgkmcnt(0)")
    for n in range(NF):
        e(f"  global_load_dwordx4 {vr(ring + 4 * n, 4)}, {vr(tA + n // 2)}, s[{sQK}:{sQK + 1}] offset:{4096 * (n % 2) - 4096} nt")
    e("  s_branch L_s1")
    e("L_b0:")
    e(f".if (L_b0 - {NAME}_kernel > {D_INV}) || (L_pc - {NAME}_kernel != {PC0})")
    e('.error "entry block layout"')
    e(".endif")
    e(".p2align 8")
    e(".type L_inv,@object")
    e("L_inv:")
    tb = inv[:64] + inv[64:] + inv[64:]
    for k in range(0, 128, 8):
        e("  .long " + ", ".join(f"{v:#x}" for v in tb[k:k + 8]))
    e(".type L_qcs,@object")
    e("L_qcs:")
    for k in range(0, 96, 8):
        e("  .long " + ", ".join(f"{v:#x}" for v in qcs[k:k + 8]))

    def common():
        e(f"  s_load_dwordx8 s[24:31], s[0:1], 80")
        e(f"  s_lshl_b32 s{sT0}, s2, 6")
        e(f"  s_add_u32 s{sT0}, s{sT0}, L_order-L_pc")
        e(f"  s_add_u32 s{sRT}, s{sZ}, s{sT0}")
        e(f"  s_addc_u32 s{sRT + 1}, s{sZ + 1}, 0")
        e(f"  s_load_dwordx2 s[{sVO}:{sVO + 1}], s[{sRT}:{sRT + 1}], 0")
        e(f"  s_load_dwordx2 s[{sCN}:{sCN + 1}], s[{sRT}:{sRT + 1}], 8")
        if P.tb:
            e(f"  s_load_dword s{sPB}, s[{sRT}:{sRT + 1}], 28")
        e(f"  v_mov_b32 {vr(vZ)}, 0")
        e(f"  s_mov_b32 s{sSP}, {P.bound}")
        e(f"  s_bfe_u32 s{sJ}, s2, 0x10003")

    PFR = [8, 10, 14, 16, 18, 20, 22, 72, 74, 76, 4, 86]
    pfn = [0]

    def pf():
        if P.tfine:
            e(f"  {'s_memtime' if 'm' in P.xp else 's_memrealtime'} s[{PFR[pfn[0]]}:{PFR[pfn[0]] + 1}]")
            pfn[0] += 1

    e("L_s1:")
    w_, s_, vAD, vC8, t0, t1 = wt, wt + 1, wt + 2, wt + 3, dacc, dacc + 1
    vRF, pos = vT16, tK + 3
    if P.trace:
        e(f"  v_mov_b32 {vr(vtr)}, 0")
        e("  s_mov_b32 m0, 0")
    pf()
    e("  v_subrev_u32 v0, 64, v0")
    e(f"  s_setprio {P.spr}")
    common()
    e(f"  v_lshrrev_b32 {vr(w_)}, 6, v0")
    e(f"  v_lshrrev_b32 {vr(s_)}, 4, v0")
    e(f"  v_and_b32 {vr(vC8)}, 0x70, {vr(vC16)}")
    e(f"  v_readfirstlane_b32 s{sW}, {vr(w_)}")
    e(f"  v_add_u32 {vr(vAD)}, {vr(vC8)}, {vr(s_)}")
    e(f"  s_mul_i32 s{sT0}, s{sJ}, 44")
    e(f"  s_sub_u32 s{sT0}, 86, s{sT0}")
    e(f"  v_cmp_eq_u32 vcc, s{sT0}, {vr(vAD)}")
    e(f"  v_mov_b32 {vr(t0)}, 0x80")
    e(f"  s_and_b32 s{sH}, s2, 7")
    e(f"  v_cndmask_b32 {vr(vAD)}, {vr(vAD)}, {vr(t0)}, vcc")
    e(f"  v_mul_u32_u24 {vr(t0)}, 381, {vr(vAD)}")
    e(f"  s_mul_i32 s{sT0}, s{sJ}, 43")
    e(f"  v_add_u32 {vr(t0)}, 2, {vr(t0)}")
    e(f"  s_lshl_b32 s{sT1}, s{sH}, 8")
    e(f"  v_lshrrev_b32 {vr(t0)}, 14, {vr(t0)}")
    assert all((381 * i + 2) >> 14 == (i >= 43) + (i >= 86) for i in range(129))
    e(f"  s_add_u32 s{sT0}, s{sT0}, s{sT1}")
    e(f"  v_mad_u32_u24 {vr(t0)}, {vr(t0)}, 42, {vr(vAD)}")
    e(f"  v_add_u32 {vr(t0)}, s{sT0}, {vr(t0)}")
    e(f"  v_cvt_f32_u32 {vr(vRF)}, {vr(t0)}")
    e(f"  v_mul_u32_u24 {vr(vAD)}, 384, {vr(vAD)}")
    e(f"  s_mov_b32 s{rA + 2}, {HB}")
    e(f"  s_mov_b32 s{rA + 3}, 0x20000")
    srd_head(rA, sQK, sC)
    e(f"  s_mul_i32 s{sT0}, s{sH}, 6")
    e(f"  s_add_u32 s{sT0}, s{sT0}, s{sJ}")
    e(f"  s_lshl_b32 s{sT0}, s{sT0}, 15")
    e(f"  v_lshl_add_u32 {vr(voff + RUN.index(0))}, v0, 4, s{sT0}")
    for k in (1, 2):
        e(f"  v_add_u32 {vr(voff + RUN.index(k))}, {65536 * k:#x}, {vr(voff + RUN.index(0))}")
    for i in range(1, 8):
        e(f"  s_movk_i32 s{sOF + i}, {4096 * i}")
    nk = [NF]
    assert PRE <= RING and max(int(v) for v in P.kp_.split(",")[:P.su + 1]) <= min(SPECIAL)

    def k_loads(hi):
        while nk[0] < min(hi, PRE):
            ld(nk[0])
            nk[0] += 1

    def toff_(n):
        run = RUN[n >> 3]
        return 384 * (16 * (((n & 7) + run) // 3) + 38 * run)

    def setup():
        e("; per chunk class k: q operand, table and partial addresses")
        e(f"  s_lshl1_add_u32 s{sF}, s{sJ}, s{sW}")
        e(f"  s_lshl_b32 s{sF}, s{sF}, 1")
        e(f"  s_lshr_b32 s{sF}, 0x4924, s{sF}")
        e(f"  v_bfe_u32 {vr(t1)}, v0, 4, 2")
        e(f"  v_lshl_add_u32 {vr(t1)}, {vr(t1)}, 2, {vr(vC16)}")
        e(f"  v_mad_u32_u24 {vr(vF)}, {vr(w_)}, s{sNEED}, {vr(t1)}")
        e(f"  v_add_u32 {vr(vF)}, {PB - 3072}, {vr(vF)}")
        e(f"  s_mul_i32 s{sT1}, s{sJ}, {43 * 384}")
        e(f"  s_sub_u32 s{sT1}, {TB}, s{sT1}")
        e(f"  v_lshl_add_u32 {vr(vSum)}, s{sJ}, 7, {vr(s_)}")
        for k in range(3):
            e(f"  s_bfe_u32 s{sT0}, s{sF}, {(2 << 16) | 2 * k:#x}")
            e(f"  v_lshl_add_u32 {vr(vPA + k)}, s{sT0}, 8, {vr(vF)}")
            if k:
                e(f"  v_add_u32 {vr(vSum)}, 16, {vr(vSum)}")
            e(f"  v_mul_u32_u24 {vr(t0)}, 171, {vr(vSum)}")
            e(f"  v_lshrrev_b32 {vr(t0)}, 9, {vr(t0)}")
            e(f"  v_mad_i32_i24 {vr(t1)}, {vr(t0)}, -3, {vr(vSum)}")
            e(f"  v_lshl_add_u32 {vr(t1)}, {vr(t1)}, 8, {vr(vC16)}")
            e(f"  v_add_u32 {vr(vQA + k)}, {QB}, {vr(t1)}")
            e(f"  v_subrev_u32 {vr(vSu2)}, 384, {vr(t1)}")
            e(f"  v_min_u32 {vr(t1)}, {vr(t1)}, {vr(vSu2)}")
            e(f"  v_mul_u32_u24 {vr(t0)}, 384, {vr(t0)}")
            e(f"  v_add3_u32 {vr(vTA + k)}, {vr(t0)}, {vr(t1)}, s{sT1}")
        e(f"  v_lshl_add_u32 {vr(vSum)}, s{sJ}, 4, {vr(s_)}")
        for n, i in SPECIAL.items():
            run, sx = RUN[n >> 3], 15 * (n & 7 == 7)
            b = int(run == 0)
            g0, g1 = 256 * run + 128 * b + 16 * (n & 7) + sx, chunk_of(b, n, sx)
            dt = 384 * (tidx(b, g1 // 3) - (g0 // 3 - 43 * b - 42 * run))
            e(f"  v_cmp_eq_u32 vcc, {16 * b + sx}, {vr(vSum)}")
            e(f"  v_add_u32 {vr(t0)}, {256 * (g1 - g0) & 0xffffffff:#x}, {vr(voff + (n >> 3))}")
            e(f"  v_add_u32 {vr(t1)}, {toff_(n)}, {vr(vTA + TN[n])}")
            e(f"  v_add_u32 {vr(vSu2)}, {dt & 0xffffffff:#x}, {vr(t1)}")
            e(f"  v_cndmask_b32 {vr(voff + 3 + i)}, {vr(voff + (n >> 3))}, {vr(t0)}, vcc")
            e(f"  v_cndmask_b32 {vr(vTA + 3 + i)}, {vr(t1)}, {vr(vSu2)}, vcc")
        e(f"  v_lshlrev_b32 {vr(vLB)}, 2, v0")
        e(f"  v_add_u32 {vr(vLB)}, {LGB}, {vr(vLB)}")
        e(f"  v_lshrrev_b32 {vr(t1)}, 1, v0")
        e(f"  v_lshlrev_b32 {vr(t1)}, 2, {vr(t1)}")
        e(f"  v_add_u32 {vr(vLB + 1)}, {LGB + 1024}, {vr(t1)}")
        e(f"  v_subrev_u32 {vr(vLG)}, 1536, {vr(vLB)}")
        e(f"  v_subrev_u32 {vr(vLG + 1)}, 1536, {vr(vLB + 1)}")
        e(f"  v_lshlrev_b32 {vr(vPW)}, 2, {vr(w_)}")
        e(f"  s_mov_b32 s{sMSK}, 0xcccccccc")
        e(f"  s_mov_b32 s{sMSK + 1}, s{sMSK}")
        e(f"  s_mov_b32 s{sMSK + 2}, 0xaaaaaaaa")
        e(f"  s_mov_b32 s{sMSK + 3}, s{sMSK + 2}")
        e(f"  s_mov_b32 s{rB + 2}, {HB}")
        e(f"  s_mov_b32 s{rB + 3}, 0x20000")
        e(f"  s_mov_b32 s{sK}, 0")
        if P.ctl:
            e("; progress slots: this wave writes one byte of line (half, w) and samples the lines of the other half")
            die_base(sF)
            e(f"  s_add_u32 s{sT0}, s{sF}, 2048")
            e(f"  v_mov_b32 {vr(vBA)}, s{sT0}")
            e(f"  s_and_b32 s{sT1}, s{sSE}, 2")
            e(f"  s_lshl_b32 s{sT1}, s{sT1}, 9")
            e(f"  s_lshl_b32 s{sT0}, s{sW}, 8")
            e(f"  s_add_u32 s{sT0}, s{sT0}, s{sT1}")
            e(f"  s_add_u32 s{sT0}, s{sT0}, s{sF}")
            e(f"  s_add_u32 s{sT0}, s{sT0}, s{sCU}")
            e(f"  s_and_b32 s{sSE}, s{sSE}, 1")
            e(f"  s_lshl_b32 s{sSE}, s{sSE}, 4")
            e(f"  s_add_u32 s{sT0}, s{sT0}, s{sSE}")
            e(f"  v_mov_b32 {vr(vPS)}, s{sT0}")
            e(f"  s_xor_b32 s{sT1}, s{sT1}, 1024")
            e(f"  s_add_u32 s{sF}, s{sF}, s{sT1}")
            e(f"  v_and_b32 {vr(vN)}, 1, v0")
            e(f"  v_lshl_add_u32 {vr(vN)}, {vr(vN)}, 4, s{sF}")
            for k in range(4):
                e(f"  v_add_u32 {vr(vSum)}, {k}, {vr(w_)}")
                e(f"  v_and_b32 {vr(vSum)}, 3, {vr(vSum)}")
                e(f"  v_lshl_add_u32 {vr(vPL + k)}, {vr(vSum)}, 8, {vr(vN)}")
            e(f"  s_mov_b32 s{sLO}, {(-(LAG + 2) * 0x01010101) & 0xffffffff:#x}")
            for k in range(4 * LAG):
                e(f"  v_mov_b32 {vr(smp + k)}, 0")
            for k in range(2):
                e(f"  v_mov_b32 {vr(vBI + k)}, 0")
            e(f"  v_mov_b32 {vr(vN)}, 0")
            e(f"  s_mov_b32 s{sB}, 0")
            e(f"  s_mov_b32 s{sS}, {P.s0}")
            e(f"  s_mov_b32 s{sI}, 0")
            e(f"  s_mov_b32 s{sCO}, 0")

    def sincos(dst, iv):
        for h in (0, 2):
            e(f"  v_pk_mul_f32 {vr(tA + h, 2)}, {vr(iv + h, 2)}, {vr(tK + 2, 2)} op_sel:[0,1] op_sel_hi:[1,1]")
        if iv == invY:
            for h in (0, 2):
                e(f"  v_pk_mul_f32 {vr(tN + h, 2)}, {vr(tA + h, 2)}, {vr(tK, 2)} op_sel_hi:[1,0]")
        else:
            for h in (0, 2):
                e(f"  v_pk_fma_f32 {vr(tN + h, 2)}, {vr(tA + h, 2)}, {vr(tK, 2)}, {vr(tK, 2)} op_sel:[0,0,1] op_sel_hi:[1,0,1]")
            for h in (0, 2):
                e(f"  v_pk_add_f32 {vr(tN + h, 2)}, {vr(tN + h, 2)}, {vr(tK, 2)} op_sel:[0,1] op_sel_hi:[1,1] neg_lo:[0,1] neg_hi:[0,1]")
            for h in (0, 2):
                e(f"  v_pk_fma_f32 {vr(tN + h, 2)}, {vr(tA + h, 2)}, {vr(tK, 2)}, {vr(tN + h, 2)} op_sel_hi:[1,0,1] neg_lo:[0,0,1] neg_hi:[0,0,1]")
            for h in (0, 2):
                e(f"  v_pk_fma_f32 {vr(tN + h, 2)}, {vr(tA + h, 2)}, {vr(tK + 2, 2)}, {vr(tN + h, 2)} op_sel_hi:[1,0,1]")
        for i in range(4):
            e(f"  v_cos_f32 {vr(tA + i)}, {vr(tN + i)}")
        for i in range(4):
            e(f"  v_sin_f32 {vr(tN + i)}, {vr(tN + i)}")
        for i in range(4):
            e(f"  v_cvt_pk_bf16_f32 {vr(dst + i)}, {vr(tA + i)}, {vr(tN + i)}")

    kp = [int(v) for v in P.kp_.split(",")]

    def chunk(i):
        a = 2 * (i // 3)
        d = tO + 4 * (i & 1)
        bc_ = lambda x, m: f"row_newbcast:{x} row_mask:0xf bank_mask:{m:#x}"
        if i % 3 == 1:
            e(f"  v_mov_b32_dpp {vr(pos)}, {vr(vRF)} {bc_(a + 1, 12)}")
            e(f"  v_add_u32_dpp {vr(vF)}, {vr(vAD)}, {vr(vC8)} {bc_(a, 3)}")
            e(f"  v_add_u32_dpp {vr(vF)}, {vr(vAD)}, {vr(vC8)} {bc_(a + 1, 12)}")
            sincos(d, invY)
            e(f"  ds_write_b128 {vr(vF)}, {vr(d, 4)} offset:{TB + 256}")
        else:
            a += i % 3 // 2
            e(f"  v_mov_b32_dpp {vr(pos)}, {vr(vRF)} {bc_(a, 15)}")
            e(f"  v_add_u32_dpp {vr(vF)}, {vr(vAD)}, {vr(vC16)} {bc_(a, 15)}")
            sincos(d, invX)
            e(f"  ds_write_b128 {vr(vF)}, {vr(d, 4)} offset:{TB}")

    def tab_read(a):
        for n in range(3 * a, 3 * a + 3):
            d = tab + 12 * (a & 1) + 4 * (n % 3)
            if n in SPECIAL:
                e(f"  ds_read_b128 {vr(d, 4)}, {vr(vTA + 3 + SPECIAL[n])}")
            else:
                e(f"  ds_read_b128 {vr(d, 4)}, {vr(vTA + TN[n])} offset:{toff_(n)}")

    c_hi = f32bits(1 / (2 * math.pi))
    c_lo = f32bits(1 / (2 * math.pi) - struct.unpack("<f", struct.pack("<I", c_hi))[0])
    e(f"  v_mov_b32 {vr(tK)}, {c_hi:#x}")
    e(f"  v_mov_b32 {vr(tK + 1)}, {f32bits(1.5 * 2 ** 23):#x}")
    e(f"  v_mov_b32 {vr(tK + 2)}, {c_lo:#x}")
    k_loads(kp[0])
    pf()
    e(f"  s_waitcnt vmcnt({nk[0]})")
    pf()
    for i in range(12):
        if i == P.su:
            setup()
            pf()
        if i < P.nch:
            chunk(i)
        k_loads(kp[i + 1])
        if i % 3 == 2:
            pf()
    k_loads(PRE)
    e(f"  v_mov_b32 {vr(bc)}, {f32bits(-7.5):#x}")
    e("  s_waitcnt lgkmcnt(0)")
    e("  s_barrier")
    pf()
    for k in range(3):
        e(f"  ds_read_b128 {vr(qa + 4 * k, 4)}, {vr(vQA + k)}")
    tab_read(0)
    e(f"  s_waitcnt vmcnt({PRE - ORD['K'][:ORD['K'].index('L')].count('b')})")
    pf()
    if P.tfine:
        e("  s_waitcnt lgkmcnt(0)")
        for k in range(pfn[0]):
            e(f"  v_writelane_b32 {vr(vtr)}, s{PFR[k]}, {k}")
        e(f"  s_mov_b32 m0, {pfn[0]}")

    def vfirst():
        e(f"  s_and_b32 s{sH}, s{sVO}, 15")
        e(f"  s_add_u32 s{sNEED}, s{sH}, 1")
        if "f" in P.xp:
            e(f"  s_mov_b32 s{sNEED}, 1")
        e(f"  ds_read_b32 {vr(vF)}, {vr(vZ)} offset:{FL + 20}")
        flagwait("a0", FL + 20)
        e(f"  s_mulk_i32 s{sH}, 1536")
        for k in range(2):
            e(f"  v_add_u32 {vr(vLV + k)}, s{sH}, {vr(vLB + k)}")
        e(f"  ds_read_b32 {vr(A)}, {vr(vLV)}")

    assert all(x[3] < 14 for x in sch) or "f" in P.xp

    def knext():
        e("; next SRD: K head k + 1, or the V heads of steps 0 / 1 once K runs out")
        e(f"  s_add_u32 s{sH}, s{sK}, 1")
        e(f"  s_sub_u32 s{sT1}, s{sH}, 16")
        vstep_k(sF, sT1)
        e(f"  s_cmp_lt_u32 s{sH}, 16")
        e(f"  s_cselect_b32 s{sH}, s{sH}, s{sF}")
        e(f"  s_cselect_b32 s{sX}, s{sQK}, s{sQV}")
        e(f"  s_cselect_b32 s{sX + 1}, s{sQK + 1}, s{sQV + 1}")
        head_of(sH, sH)
        srd_head(rB, sX, sH)

    def kred(n):
        dpp = lambda d, x, how, m: e(f"  v_add_f32_dpp {vr(d)}, {vr(x)}, {vr(x)} {how} row_mask:0xf bank_mask:{m:#x}")
        dpp(M1, dacc, "row_ror:8", 12 if n & 1 else 3)
        if n % 2 == 1:
            e("  s_nop 1")
            dpp(M2, M1, "row_half_mirror", 10 if n & 2 else 5)
        if n % 4 == 3:
            e("  s_nop 1")
            dpp(M2 if n & 4 else M3, M2, "quad_perm:[2,3,0,1]", 15)
        if n % 8 == 7:
            e(f"  v_cndmask_b32_e64 {vr(M3)}, {vr(M3)}, {vr(M2)}, s[{sMSK}:{sMSK + 1}]")
            e("  s_nop 1")
            dpp((LG, M3, LG + 1)[n >> 3], M3, "quad_perm:[1,0,3,2]", 15)
        if n == 15:
            e(f"  v_cndmask_b32_e64 {vr(LG)}, {vr(LG)}, {vr(M3)}, s[{sMSK + 2}:{sMSK + 3}]")

    e(".p2align 6")
    e("L_k:")

    def kbody(n):
        k_, q_ = ring + 4 * n, qa + 4 * TN[n]
        for i in range(4):
            e(f"  v_dot2_f32_bf16 {vr(wt + i)}, {vr(tab + 12 * (n // 3 & 1) + 4 * (n % 3) + i)}, {vr(q_ + i)}, 0")
        for i in range(4):
            e(f"  v_cvt_f32_i32 {vr(k_ + i)}, {vr(k_ + i)}")
        if n >= 21:
            e(f"  ds_read_b128 {vr(q_, 4)}, {vr(vQA + TN[n])}")
        for h in range(2):
            e(f"  v_pk_add_f32 {vr(k_ + 2 * h, 2)}, {vr(k_ + 2 * h, 2)}, {vr(bc, 2)} op_sel_hi:[1,0]")
        e(f"  v_pk_mul_f32 {vr(dacc, 2)}, {vr(k_, 2)}, {vr(wt, 2)}")
        e(f"  v_pk_fma_f32 {vr(dacc, 2)}, {vr(k_ + 2, 2)}, {vr(wt + 2, 2)}, {vr(dacc, 2)}")
        e(f"  v_add_f32 {vr(dacc)}, {vr(dacc)}, {vr(dacc + 1)}")

    def kout():
        e(f"  v_mov_b32 {vr(vF)}, s{sK}")
        for k in range(2):
            e(f"  ds_write_b32 {vr(vLG + k)}, {vr(LG + k)}")
        e(f"  ds_write_b32 {vr(vPW)}, {vr(vF)} offset:{FL}")

    def group(ph, a, body, after, res):
        nb, pend = 3 * a, None
        od = ORD[ph]
        for i, c in enumerate(od):
            if pend is not None and c != "L":
                if od[i - 1] == "b":
                    e("  s_nop 1")
                after(pend)
                pend = None
            if c == "E":
                evaluate(ph, a)
                if od[i + 1] != "X":
                    decide(ph, a)
            if c == "X":
                exchange(a)
                if od[i - 1] == "E":
                    decide(ph, a)
            if c == "R" and a == 0:
                res()
            if c == "b":
                body(nb)
                pend = nb if after else None
                nb += 1
            if c == "L":
                issue(ph, a, i)
        if pend is not None:
            if od[-1] == "b":
                e("  s_nop 1")
            after(pend)

    for a in range(8):
        if a == 7:
            flagwait("qn", FL + 16)
        else:
            e("  s_waitcnt lgkmcnt(0)")
        tab_read((a + 1) % 8)
        if a == 6:
            e(f"  ds_read_b32 {vr(vF)}, {vr(vZ)} offset:{FL + 16}")
        group("K", a, kbody, kred, kout)
        if a == 1:
            knext()
        if a == 3:
            e(f"  s_add_u32 s{sT0}, s{sK}, 2")
            e(f"  s_min_u32 s{sNEED}, s{sT0}, 16")
            for k in range(3):
                e(f"  v_add_u32 {vr(vQA + k)}, 768, {vr(vQA + k)}")
            for k in range(2):
                e(f"  v_add_u32 {vr(vLG + k)}, 1536, {vr(vLG + k)}")
            e(f"  s_cmp_eq_u32 s{sK}, 15")
            e("  s_cbranch_scc1 L_kv")
            e("L_kw:")
        if a in (3, 7) or P.tfine:
            tr()
    assert sorted(TN[21:]) == [0, 1, 2] and TN[:3] == TN[3:6] and sorted(TN[:3]) == [0, 1, 2] and PRE <= 18
    e(f"  s_add_u32 s{sK}, s{sK}, 1")
    e(f"  s_mov_b64 s[{rA}:{rA + 1}], s[{rB}:{rB + 1}]")
    e(f"  s_cmp_lt_u32 s{sK}, 16")
    e("  s_cbranch_scc1 L_k")


    def vbody(n):
        v_ = ring + 4 * n
        e(f"  v_mov_b32_dpp {vr(bc)}, {vr(A + n // 16)} row_newbcast:{rev(n % 16, 4)} row_mask:0xf bank_mask:0xf")
        for i in range(4):
            e(f"  v_cvt_f32_i32 {vr(v_ + i)}, {vr(v_ + i)}")
        for h in range(2):
            d = 4 * TN[n] + 2 * h
            if n < 3:
                e(f"  v_pk_mul_f32 {vr(tmp + d, 2)}, {vr(v_ + 2 * h, 2)}, {vr(bc, 2)} op_sel_hi:[1,0]")
            else:
                e(f"  v_pk_fma_f32 {vr(acc + d, 2)}, {vr(v_ + 2 * h, 2)}, {vr(bc, 2)}, {vr((tmp if n < 6 else acc) + d, 2)} op_sel_hi:[1,0,1]")

    def vout(last=False):
        for j in range(3):
            e(f"  v_permlane32_swap_b32 {vr(acc + 4 * j)}, {vr(acc + 4 * j + 2)}")
            e(f"  v_permlane32_swap_b32 {vr(acc + 4 * j + 1)}, {vr(acc + 4 * j + 3)}")
        for j in range(3):
            e(f"  v_add_f32 {vr(acc + 4 * j)}, {vr(acc + 4 * j)}, {vr(acc + 4 * ((j + 1) % 3) + 2)}")
            e(f"  v_add_f32 {vr(acc + 4 * j + 1)}, {vr(acc + 4 * j + 1)}, {vr(acc + 4 * ((j + 1) % 3) + 3)}")
        for j in range(3):
            e(f"  v_permlane16_swap_b32 {vr(acc + 4 * j)}, {vr(acc + 4 * j + 1)}")
        for j in range(3):
            e(f"  v_add_f32 {vr(acc + 4 * j)}, {vr(acc + 4 * j)}, {vr(acc + 4 * ((j + 2) % 3) + 1)}")
        for j in range(3):
            e(f"  ds_write_b32 {vr(vPA + j)}, {vr(acc + 4 * j)}")
        if not last:
            e(f"  ds_write_b32 {vr(vPW)}, {vr(M1)} offset:{FL}")

    def vnext():
        e(f"  s_add_u32 s{sT1}, s{sK}, 1")
        e(f"  s_min_u32 s{sT1}, s{sT1}, 15")
        vstep_k(sH, sT1)
        e(f"  s_add_u32 s{sNEED}, s{sH}, 1")
        e(f"  s_mul_i32 s{sF}, s{sH}, 1536")
        head_of(sH, sH)
        srd_head(rB, sQV, sH)
        for k in range(2):
            e(f"  v_add_u32 {vr(vLV + k)}, s{sF}, {vr(vLB + k)}")

    NS, NT = (PRE - PD) // 3, 8 - PD // 3
    assert NS == 1 and NT <= 5 and max(P.mg, P.ml) <= 3 * NT
    e("L_vpre:")
    kout()
    e(f"  s_mov_b32 s{sK}, 0")
    e(f"  v_mov_b32 {vr(M1)}, 16")
    for n in range(3):
        e(f"  s_waitcnt vmcnt({plain[384 + n]})")
        vbody(n)
    e(f"  s_waitcnt vmcnt({plain[387]}) lgkmcnt(0)")
    e("  s_branch L_v1")
    flush()
    e("L_kv:")
    vfirst()
    e("  s_branch L_kw")
    flush()
    e(".p2align 6")
    e("L_v:")
    for a in range(8):
        if a == 1:
            e("L_v1:")
            e(f"  ds_read_b32 {vr(A + 1)}, {vr(vLV + 1)}")
        if a == NT:
            e(f"  s_cmp_eq_u32 s{sK}, 15")
            e("  s_cbranch_scc1 L_vt")
        if a in (5, 7):
            e("  s_waitcnt lgkmcnt(0)")
        if a == 5:
            e(f"  ds_read_b32 {vr(vF)}, {vr(vZ)} offset:{FL + 20}")
        if a == 6:
            flagwait("an", FL + 20)
            e(f"  ds_read_b32 {vr(A)}, {vr(vLV)}")
        group("V", a, vbody, None, vout)
        if a == 1:
            vnext()
        if a == 3:
            e(f"  v_add_u32 {vr(M1)}, 1, {vr(M1)}")
            for j in range(3):
                e(f"  v_add_u32 {vr(vPA + j)}, 3072, {vr(vPA + j)}")
        if a in (3, 7):
            tr()
    e(f"  s_add_u32 s{sK}, s{sK}, 1")
    e(f"  s_mov_b64 s[{rA}:{rA + 1}], s[{rB}:{rB + 1}]")
    e("  s_branch L_v")
    flush()
    e("L_vt:")
    e("  s_waitcnt lgkmcnt(0)")
    for n in range(3 * NT, 24):
        e(f"  s_waitcnt vmcnt({plain[744 + n]})")
        vbody(n)
    tr()
    e("  s_nop 1")
    vout(True)
    e("  s_waitcnt lgkmcnt(0)")
    e("  s_barrier")
    if P.trace:
        e(f"  s_mul_i32 s8, s2, {5 * 256}")
        e("  s_add_u32 s8, s8, 0x100000")
        e(f"  v_lshl_add_u32 {vr(t0)}, v0, 2, s8")
        e(f"  global_store_dword {vr(t0)}, {vr(vtr)}, s[{sWS}:{sWS + 1}]")
    e("  s_endpgm")

    HP = [20, 22, 24, 8, 34, 36, 38, 72]
    ms = [m for m in range(P.r0, P.r1 + 1) if m < P.rf or m > P.rt or (m - P.r0) % P.rp == 0]
    gain = [(P.kp0 if m <= P.kn else P.kp) if m in ms else 0 for m in range(32)]
    if P.rk:
        gain = [int(c, 16) for c in P.rk]
        assert len(gain) == 32 and not any(gain[:P.r0]) and not gain[31]
    msk = sum(1 << m for m in range(32) if gain[m])

    def hp(k):
        if P.hprof:
            e(f"  s_memrealtime s[{HP[k]}:{HP[k] + 1}]")

    def progwait(name, slp, off=FL):
        e(f"L_{name}:")
        e(f"  ds_read_b128 {vr(pr, 4)}, {vr(vZ)} offset:{off}")
        e("  s_waitcnt lgkmcnt(0)")
        e(f"  v_min_u32 {vr(pr)}, {vr(pr)}, {vr(pr + 1)}")
        e(f"  v_min3_u32 {vr(pr)}, {vr(pr)}, {vr(pr + 2)}, {vr(pr + 3)}")
        e("  s_nop 0")
        e(f"  v_readfirstlane_b32 s{sF}, {vr(pr)}")
        e(f"  s_cmp_ge_u32 s{sF}, s{sNEED}")
        e(f"  s_cbranch_scc1 L_{name}_ok")
        budget(f"L_{name}_ok")
        if slp:
            e(f"  s_sleep {slp}")
        e(f"  s_branch L_{name}")
        e(f"L_{name}_ok:")

    def rowred(op, v):
        for n in (8, 4, 2, 1):
            e("  s_nop 1")
            e(f"  {op}_dpp {vr(v)}, {vr(v)}, {vr(v)} row_ror:{n} row_mask:0xf bank_mask:0xf")

    def allred(op, v, t):
        rowred(op, v)
        for sw in ("v_permlane16_swap_b32", "v_permlane32_swap_b32"):
            e(f"  v_mov_b32 {vr(t)}, {vr(v)}")
            e("  s_nop 1")
            e(f"  {sw} {vr(v)}, {vr(t)}")
            e(f"  {op} {vr(v)}, {vr(v)}, {vr(t)}")

    def sum_partials(nq):
        w = 4 * nq
        for k in range(4):
            for q in range(nq):
                e(f"  ds_read_b128 {vr(x + w * k + 4 * q, 4)}, {vr(h0)} offset:{768 * k + 16 * q}")
        e(f"  ds_read_b128 {vr(z4, 4)}, {vr(h1)} offset:{ST}")
        e("  s_waitcnt lgkmcnt(0)")
        for h in range(0, w, 2):
            e(f"  v_pk_add_f32 {vr(x + h, 2)}, {vr(x + h, 2)}, {vr(x + w + h, 2)}")
            e(f"  v_pk_add_f32 {vr(x + 2 * w + h, 2)}, {vr(x + 2 * w + h, 2)}, {vr(x + 3 * w + h, 2)}")
        for h in range(0, w, 2):
            e(f"  v_pk_add_f32 {vr(x + h, 2)}, {vr(x + h, 2)}, {vr(x + 2 * w + h, 2)}")
        for h in range(0, w, 2):
            e(f"  v_pk_add_f32 {vr(x + h, 2)}, {vr(x + h, 2)}, {vr(z4 + 2, 2)} op_sel_hi:[1,0] neg_lo:[0,1] neg_hi:[0,1]")

    def mark(tag):
        if P.sd:
            e("  s_memrealtime s[16:17]")
            e("  s_waitcnt lgkmcnt(0)")
            e("  s_sub_u32 s19, s16, s18")
            e("  s_mov_b32 s18, s16")
            e(f"  s_add_u32 s16, s{sNEED}, {64 - P.sd}")
            e("  s_and_b32 s17, s16, 1")
            e("  s_lshl_b32 s17, s17, 4")
            e("  s_min_u32 s19, s19, 510")
            e("  s_lshl_b32 s19, s19, s17")
            e("  s_lshr_b32 m0, s16, 1")
            e(f"  v_readlane_b32 s17, {vr(vCL)}, m0")
            e("  s_add_u32 s17, s17, s19")
            e(f"  v_writelane_b32 {vr(vCL)}, s17, m0")
        if not P.enc:
            return
        for k, m in enumerate(P.enc.split(",")[:2]):
            e(f"  s_cmp_eq_u32 s{sNEED}, {m}")
            e(f"  s_cbranch_scc0 L_mk{tag}{k}")
            e(f"  s_memrealtime s[{16 + 2 * k}:{17 + 2 * k}]")
            e(f"L_mk{tag}{k}:")

    def rank_post(tag):
        if not P.ctl:
            return
        e(f"  s_bitcmp1_b32 s{sRF}, s{sNEED}")
        e(f"  s_cbranch_scc0 L_fa{tag}")
        e(f"  s_mul_i32 s{sT0}, s{sNEED}, 384")
        e(f"  s_add_u32 s{sT0}, s{sT0}, {W_RK}")
        e(f"  s_mov_b32 s{sB}, 1")
        e(f"  s_atomic_add s{sB}, s[{sWS}:{sWS + 1}], s{sT0} glc")
        e(f"L_fa{tag}:")

    def rank_take(tag):
        if not P.ctl:
            return
        e(f"  s_bitcmp1_b32 s{sRF}, s{sNEED}")
        e(f"  s_cbranch_scc0 L_fb{tag}")
        e("  s_waitcnt lgkmcnt(0)")
        e(f"  s_min_u32 s{sF}, s{sB}, 15")
        e(f"  s_lshl_b32 s{sF}, s{sF}, 1")
        e(f"  s_sub_u32 s{sF}, s{sF}, 15")
        gs = sorted(set(gain) - {0})
        e(f"  s_mov_b32 s{sT0}, {gs[0]}")
        for g_ in gs[1:]:
            e(f"  s_bitcmp1_b32 {sum(1 << m for m in range(32) if gain[m] == g_):#x}, s{sNEED}")
            e(f"  s_cselect_b32 s{sT0}, {g_}, s{sT0}")
        e(f"  s_mul_i32 s{sF}, s{sF}, s{sT0}")
        e(f"  s_add_u32 s{sF}, s{sF}, 8")
        e(f"  s_ashr_i32 s{sF}, s{sF}, 4")
        e(f"  v_mov_b32 {vr(vFX)}, s{sF}")
        e("  s_mov_b64 exec, 1")
        e(f"  global_store_dword {vr(vFB)}, {vr(vFX)}, s[{sWS}:{sWS + 1}]")
        e("  s_mov_b64 exec, -1")
        e(f"L_fb{tag}:")

    HPF = [10, 16, 18, 20, 22, 72, 74, 76, 60, 62]
    hpn = [0]

    def hpf():
        if P.tfine:
            e(f"  s_memrealtime s[{HPF[hpn[0]]}:{HPF[hpn[0]] + 1}]")
            hpn[0] += 1

    e("L_helper:")
    e(f"  s_setprio {P.hp0}")
    e(f"  v_and_b32 {vr(h1)}, 32, v0")
    e(f"  v_lshrrev_b32 {vr(h1)}, 1, {vr(h1)}")
    e(f"  v_add_u32 {vr(sg2)}, s{sC}, {vr(h1)}")
    e(f"  v_mad_u32_u24 {vr(ra)}, {vr(sg2)}, s{sNEED}, {vr(vL16)}")
    e(f"  v_lshrrev_b32 {vr(ra)}, 1, {vr(ra)}")
    hv = []

    def half(p, full):
        if p in (2, 3):
            e(f"  s_mov_b32 exec_hi, {0 if p == 2 else full}")
        if p in (5, 6):
            e(f"  s_mov_b32 exec_lo, {0 if p == 5 else full}")

    def sc_early():
        e(f"  s_and_b32 s{sT1}, s2, 7")
        e(f"  v_lshl_add_u32 {vr(wb)}, s{sT1}, 9, {vr(vL16)}")
        e(f"  v_lshl_add_u32 {vr(ra)}, {vr(sg2)}, 12, {vr(wb)}")
        for p in range(1, 8):
            e(f"  v_add_u32 {vr(ra + p)}, {0x20000 * p:#x}, {vr(ra)}")
        for p in range(8):
            half(p, -1)
            for i, sp in enumerate((sKS, sVS)):
                e(f"  s_mov_b32 m0, {SCB + SA * i + 1024 * p}")
                e("  s_nop 0")
                if "s" not in P.xp:
                    e(f"  global_load_lds_dwordx4 {vr(ra + p)}, s[{sp}:{sp + 1}] {P.sf}")
                    hv.append(("s", p))

    for p in range(1, 8):
        e(f"  v_add_u32 {vr(ra + p)}, {12288 * p}, {vr(ra)}")
    e("  s_mov_b32 exec_lo, 0xffffff")
    e("  s_mov_b32 exec_hi, 0xffffff")
    e("  s_waitcnt lgkmcnt(0)")
    hpf()
    for p in range(8):
        half(p, "0xffffff")
        e(f"  global_load_dwordx2 {vr(rec + 4 * p, 2)}, {vr(ra + (0 if 'q' in P.xp else p))}, s[{sQ}:{sQ + 1}] {P.qf}")
        e(f"  global_load_dwordx2 {vr(rec + 4 * p + 2, 2)}, {vr(ra + (0 if 'q' in P.xp else p))}, s[{sQ}:{sQ + 1}] offset:192 {P.qf}")
        hv.extend([("q", p)] * 2)
    e("  s_mov_b64 exec, -1")
    hpf()
    if P.ss == 0:
        sc_early()
    common()
    e(f"  s_load_dword s{sO}, s[{sRT}:{sRT + 1}], 24")
    e(f"  s_load_dwordx2 s[{sOH}:{sOH + 1}], s[{sRT}:{sRT + 1}], 16")
    e(f"  v_mov_b32 {vr(l)}, v0")
    for i in range(4):
        e(f"  v_mov_b32 {vr(z4 + i)}, 0")
    e(f"  ds_write_b128 {vr(vZ)}, {vr(z4, 4)} offset:{FL}")
    e(f"  ds_write_b128 {vr(vZ)}, {vr(z4, 4)} offset:{FL + 16}")
    e(f"  ds_write_b128 {vr(vZ)}, {vr(z4, 4)} offset:{FL + 32}")
    e(f"  ds_write_b128 {vr(vZ)}, {vr(z4, 4)} offset:{FL + 48}")
    e(f"  s_mov_b32 s{sMASK}, 0xffff0000")
    e(f"  s_mov_b32 s{sSCALE}, {f32bits(math.log2(math.e) / math.sqrt(192.0)):#x}")
    e(f"  v_mad_u32_u24 {vr(wa)}, {vr(h1)}, 48, {vr(vL16)}")
    e(f"  v_mov_b32 {vr(vOne)}, 1")
    e(f"  s_waitcnt vmcnt({len(hv)})")
    for k in range(4):
        e(f"  v_lshlrev_b32 {vr(cs + k)}, 16, {vr(pr + k)}")
        e(f"  v_and_b32 {vr(cs + 4 + k)}, s{sMASK}, {vr(pr + k)}")
    e("  s_waitcnt lgkmcnt(0)")
    hpf()
    if P.ctl:
        die_base(sF)
        e(f"  v_lshrrev_b32 {vr(h0)}, {P.cw}, {vr(l)}")
        e(f"  v_lshl_add_u32 {vr(vFX)}, {vr(h0)}, 8, s{sF}")
        e(f"  v_and_b32 {vr(h0)}, {(1 << P.cw) - 1}, {vr(l)}")
        e(f"  v_lshl_add_u32 {vr(vFX)}, {vr(h0)}, 4, {vr(vFX)}")
        e(f"  s_and_b32 s{sT1}, s{sSE}, 2")
        e(f"  s_lshl_b32 s{sT0}, s{sT1}, 9")
        e(f"  s_add_u32 s{sT0}, s{sT0}, s{sF}")
        e(f"  v_add_u32 {vr(vEL)}, s{sT0}, {vr(l)}")
        e(f"  s_lshl_b32 s{sT1}, s{sT1}, 1")
        e(f"  s_add_u32 s{sF}, s{sF}, s{sT1}")
        e(f"  s_add_u32 s{sF}, s{sF}, 2048")
        e(f"  v_mov_b32 {vr(vFB)}, s{sF}")
        e(f"  v_mul_u32_u24 {vr(vFA)}, 384, {vr(l)}")
        e(f"  v_add_u32 {vr(vFA)}, {W_RK}, {vr(vFA)}")
        e(f"  s_mov_b32 s{sRF}, 0")

    def ctl_init():
        if not P.ctl:
            return
        if P.cw == 1:
            e("  s_mov_b64 exec, 0x3ffff")
        if P.cw == 2:
            e("  s_mov_b32 exec_hi, 15")
        if P.cl == 1:
            e(f"  global_load_dword {vr(vCNT)}, {vr(vFX)}, s[{sWS}:{sWS + 1}] sc1")
            hv.append(("c", 0))
        e(f"  global_store_dwordx4 {vr(vFX)}, {vr(z4, 4)}, s[{sWS}:{sWS + 1}]")
        if P.cw == 3:
            e("  s_mov_b64 exec, 0xff")
            e(f"  global_store_dwordx4 {vr(vFX)}, {vr(z4, 4)}, s[{sWS}:{sWS + 1}] offset:2048")
        if P.cl == 2:
            e(f"  global_load_dword {vr(vCNT)}, {vr(vFX)}, s[{sWS}:{sWS + 1}] sc1")
            hv.append(("c", 0))
        e("  s_mov_b64 exec, -1")

    def elect():
        if not P.ctl:
            return
        e(f"  s_cmp_eq_u32 s{sNEED}, {P.r0 - 1}")
        e("  s_cbranch_scc0 L_el")
        e(f"  s_bitcmp0_b32 s{sSE}, 0")
        e("  s_cbranch_scc0 L_el")
        e("  s_mov_b64 exec, 0xffff")
        e(f"  global_load_ubyte {vr(vFX)}, {vr(vEL)}, s[{sWS}:{sWS + 1}] sc1")
        e("  s_waitcnt vmcnt(0)")
        e(f"  v_cmp_ne_u32 s[{sZ}:{sZ + 1}], 0, {vr(vFX)}")
        e(f"  s_lshr_b32 s{sT0}, s{sZ}, s{sCU}")
        e(f"  s_bcnt1_i32_b32 s{sT0}, s{sT0}")
        pat = sum(1 << m for m in range(0, 32, P.rotl))
        e(f"  s_sub_u32 s{sT1}, s{sT0}, 1")
        e(f"  s_cmp_lt_u32 s{sT1}, {P.rotl}")
        e("  s_cbranch_scc0 L_el")
        e(f"  s_lshl_b32 s{sRF}, {pat:#x}, s{sT1}")
        e(f"  s_and_b32 s{sRF}, s{sRF}, {msk:#x}")
        e("L_el:")
        e("  s_mov_b64 exec, -1")

    def patch(what):
        e(f"  s_bfe_u32 s{sT0}, s{sCN + 1}, {(4 << 16) | 8:#x}")
        e(f"  s_bfe_u32 s{sT1}, s{sCN}, {(4 << 16) | 20:#x}")
        e(f"  s_addk_i32 s{sT0}, 160")
        e(f"  s_addk_i32 s{sT1}, 80")
        for p, sh_, ex in ((5, sT0, "exec_hi"), (2, sT1, "exec_lo")):
            if what == "q":
                e(f"  s_mulk_i32 s{sh_}, 384")
                e(f"  v_lshrrev_b32 {vr(h0)}, 1, {vr(vL16)}")
                e(f"  v_add_u32 {vr(h0)}, s{sh_}, {vr(h0)}")
                qmask(1)
                e(f"  s_mov_b32 {ex}, 0")
                e(f"  global_load_dwordx2 {vr(rec + 4 * p, 2)}, {vr(h0)}, s[{sQ}:{sQ + 1}]")
                e(f"  global_load_dwordx2 {vr(rec + 4 * p + 2, 2)}, {vr(h0)}, s[{sQ}:{sQ + 1}] offset:192")
                hv.extend([("q", p)] * 2)
            else:
                e(f"  v_lshl_add_u32 {vr(h0)}, s{sh_}, 12, {vr(wb)}")
                e(f"  s_mov_b32 {ex}, 0")
                for i, sp in enumerate((sKS, sVS)):
                    e(f"  s_mov_b32 m0, {SCB + SA * i + 1024 * p}")
                    e("  s_nop 0")
                    if "s" not in P.xp:
                        e(f"  global_load_lds_dwordx4 {vr(h0)}, s[{sp}:{sp + 1}] {P.sf}")
                        hv.append(("s", p))
            qmask(0)

    def qmask(on):
        if on:
            e("  s_mov_b32 exec_lo, 0xffffff")
            e("  s_mov_b32 exec_hi, 0xffffff")
        else:
            e("  s_mov_b64 exec, -1")

    def rotate(p):
        L, Hh, LC, HS, HC, LS = x, x + 4, x + 8, x + 12, x + 16, x + 20
        qmask(1)
        if p == 0:
            hpf()
        if not ("n" in P.xp and p == 0):
            e(f"  s_waitcnt vmcnt({hv[::-1].index(('q', p))})")
        if p == 0:
            hpf()
        for k in range(4):
            e(f"  v_lshlrev_b32 {vr(L + 2 * k)}, 16, {vr(rec + 4 * p + k)}")
            e(f"  v_and_b32 {vr(L + 2 * k + 1)}, s{sMASK}, {vr(rec + 4 * p + k)}")
        for d, q_, t_ in ((LC, L, cs), (HS, Hh, cs + 4), (HC, Hh, cs), (LS, L, cs + 4)):
            for h in (0, 2):
                e(f"  v_pk_mul_f32 {vr(d + h, 2)}, {vr(q_ + h, 2)}, {vr(t_ + h, 2)}")
        for i in range(4):
            e(f"  v_cvt_pk_bf16_f32 {vr(L + i)}, {vr(LC + i)}, {vr(HS + i)}")
            e(f"  v_cvt_pk_bf16_f32 {vr(Hh + i)}, {vr(HC + i)}, {vr(LS + i)}")
        for k in range(8):
            e(f"  v_lshlrev_b32 {vr(LC + k)}, 16, {vr(L + k)}")
            e(f"  v_and_b32 {vr(L + k)}, s{sMASK}, {vr(L + k)}")
        for h in (0, 2):
            e(f"  v_pk_add_f32 {vr(L + h, 2)}, {vr(LC + h, 2)}, {vr(L + h, 2)} neg_lo:[0,1] neg_hi:[0,1]")
            e(f"  v_pk_add_f32 {vr(Hh + h, 2)}, {vr(HS + h, 2)}, {vr(Hh + h, 2)}")
        for i in range(4):
            e(f"  v_cvt_pk_bf16_f32 {vr(LC + i)}, {vr(L + i)}, {vr(Hh + i)}")
            e(f"  v_cvt_pk_bf16_f32 {vr(HS + i)}, {vr(Hh + i)}, -{vr(L + i)}")
        e(f"  v_mov_b32 {vr(h0)}, {2 * p + 2}")
        e(f"  ds_write_b128 {vr(wa)}, {vr(LC, 4)} offset:{QB + 1536 * p}")
        e(f"  ds_write_b128 {vr(wa)}, {vr(HS, 4)} offset:{QB + 1536 * p + 384}")
        e(f"  ds_write_b32 {vr(vZ)}, {vr(h0)} offset:{FL + 16}")
        qmask(0)

    ctl_init()
    patch("q")
    e(f"  s_lshl_b32 s{sT0}, s{sJ}, 10")
    e(f"  s_add_u32 s{sT0}, s{sT0}, L_hpos-L_pc")
    e(f"  v_add_u32 {vr(h0)}, s{sT0}, {vr(vT16)}")
    e(f"  global_load_dwordx4 {vr(st4, 4)}, {vr(h0)}, s[{sZ}:{sZ + 1}]")
    hv.append(("h", 0))
    if P.ss == 1:
        sc_early()
    if P.ss <= 1:
        patch("s")
    rotate(0)
    hpf()
    if P.ss == 2:
        sc_early()
        patch("s")
    e("  s_waitcnt lgkmcnt(0)")
    e("  s_setprio 0")
    hpf()
    e("  s_barrier")
    hpf()
    if P.ss == 3:
        sc_early()
        patch("s")
    for p in range(1, 8):
        rotate(p)
    e(f"  v_mov_b32 {vr(vSa)}, 0")
    e(f"  v_min_u32 {vr(u)}, 47, {vr(l)}")
    e(f"  v_lshlrev_b32 {vr(vL16)}, 4, {vr(u)}")
    for i in range(4):
        e(f"  v_mov_b32 {vr(sc + i)}, 0")
    e(f"  s_mov_b32 s{sNEED}, 1")
    e("  s_cmp_eq_u32 s2, 0")
    e("  s_cbranch_scc0 L_rc")
    e(f"  v_mov_b32 {vr(h0)}, {W_REC + P.pit * place(0) + 15 * 384 + 4}")
    e(f"  global_load_dword {vr(h1)}, {vr(h0)}, s[{sWS}:{sWS + 1}] sc1")
    if P.ctl:
        e(f"  s_mov_b64 exec, {msk:#x}")
        e(f"  global_store_dword {vr(vFA)}, {vr(vZ)}, s[{sWS}:{sWS + 1}] sc1")
    e("  s_mov_b64 exec, 1")
    e("  s_waitcnt vmcnt(0)")
    e(f"  v_and_b32 {vr(qn)}, 0x77777777, {vr(h1)}")
    e(f"  v_and_b32 {vr(h1)}, 0x88888888, {vr(h1)}")
    e(f"  v_add_u32 {vr(qn)}, 0x11111111, {vr(qn)}")
    e(f"  v_xor_b32 {vr(qn)}, {vr(qn)}, {vr(h1)}")
    e(f"  v_mov_b32 {vr(qn + 1)}, 1")
    e(f"  global_store_dwordx2 {vr(vZ)}, {vr(qn, 2)}, s[{sDBG}:{sDBG + 1}] sc1")
    e("  s_mov_b64 exec, -1")
    e("L_rc:")
    hpf()
    e("  s_waitcnt vmcnt(0)")
    hpf()
    if P.tfine:
        e("  s_waitcnt lgkmcnt(0)")
        e(f"  v_mov_b32 {vr(h0)}, 0")
        for k in range(hpn[0]):
            e(f"  v_writelane_b32 {vr(h0)}, s{HPF[k]}, {k}")
        e(f"  s_mul_i32 s{sT0}, s2, {5 * 256}")
        e(f"  s_add_u32 s{sT0}, s{sT0}, {0x100000 + 1024}")
        e(f"  v_lshl_add_u32 {vr(h1)}, v0, 2, s{sT0}")
        e(f"  global_store_dword {vr(h1)}, {vr(h0)}, s[{sWS}:{sWS + 1}]")
    for k in range(4):
        e(f"  v_and_b32 {vr(ro + 2 * k)}, 0xffff, {vr(st4 + k)}")
        e(f"  v_lshrrev_b32 {vr(ro + 2 * k + 1)}, 16, {vr(st4 + k)}")
    for k in range(2):
        e(f"  v_add_u32 {vr(ro + 6 + k)}, {SCB}, {vr(ro + 6 + k)}")
    if P.sd:
        e(f"  v_mov_b32 {vr(vCL)}, 0")
    e("L_hk:")
    for a in range(2):
        for k in range(2):
            e(f"  ds_read_u16_d16_hi {vr(sc + 2 * a + k)}, {vr(ro + 6 + k)} offset:{SA * a}")
    progwait("hsw", P.psk)
    mark("s")
    rank_post("s")
    for k in range(6):
        e(f"  ds_read_b32 {vr(x + 4 + k)}, {vr(ro + k)} offset:{LGB}")
    e(f"  v_mul_f32 {vr(x + 2)}, s{sSCALE}, {vr(sc)}")
    e(f"  v_mul_f32 {vr(x + 3)}, s{sSCALE}, {vr(sc + 1)}")
    e("  s_waitcnt lgkmcnt(0)")
    e(f"  v_pk_add_f32 {vr(x, 2)}, {vr(x + 4, 2)}, {vr(x + 6, 2)}")
    e(f"  v_pk_add_f32 {vr(x, 2)}, {vr(x, 2)}, {vr(x + 8, 2)}")
    e(f"  v_mul_f32 {vr(x)}, {vr(x)}, {vr(x + 2)}")
    e(f"  v_mul_f32 {vr(x + 1)}, {vr(x + 1)}, {vr(x + 3)}")
    e(f"  v_max_f32 {vr(z4)}, {vr(x)}, {vr(x + 1)}")
    allred("v_max_f32", z4, h0)
    e(f"  v_sub_f32 {vr(x)}, {vr(x)}, {vr(z4)}")
    e(f"  v_sub_f32 {vr(x + 1)}, {vr(x + 1)}, {vr(z4)}")
    e(f"  v_exp_f32 {vr(x)}, {vr(x)}")
    e(f"  v_exp_f32 {vr(x + 1)}, {vr(x + 1)}")
    e("  s_nop 0")
    e(f"  v_add_f32 {vr(z4 + 1)}, {vr(x)}, {vr(x + 1)}")
    e(f"  v_mul_f32 {vr(x)}, {vr(x)}, {vr(sc + 2)}")
    e(f"  v_mul_f32 {vr(x + 1)}, {vr(x + 1)}, {vr(sc + 3)}")
    e(f"  v_add_f32 {vr(z4 + 2)}, {vr(x)}, {vr(x + 1)}")
    for k in range(6):
        e(f"  ds_write_b32 {vr(ro + k)}, {vr(x + (k & 1))} offset:{LGB}")
    e(f"  v_mul_f32 {vr(z4 + 2)}, {f32bits(7.5):#x}, {vr(z4 + 2)}")
    allred("v_add_f32", z4 + 1, h0)
    allred("v_add_f32", z4 + 2, h0)
    e(f"  v_mov_b32 {vr(h0)}, s{sNEED}")
    e(f"  ds_write_b128 {vr(vSa)}, {vr(z4, 4)} offset:{ST}")
    e(f"  ds_write_b32 {vr(vZ)}, {vr(h0)} offset:{FL + 20}")
    e(f"  v_add_u32 {vr(vSa)}, 16, {vr(vSa)}")
    for k in range(8):
        e(f"  v_add_u32 {vr(ro + k)}, {1536 if k < 6 else SL}, {vr(ro + k)}")
    rank_take("s")
    elect()
    e("  s_waitcnt lgkmcnt(0)")
    e(f"  s_add_u32 s{sNEED}, s{sNEED}, 1")
    e(f"  s_cmp_le_u32 s{sNEED}, 16")
    e("  s_cbranch_scc1 L_hk")

    e(f"  v_and_b32 {vr(h2)}, 15, {vr(l)}")
    e(f"  v_lshlrev_b32 {vr(h2)}, 1, {vr(h2)}")
    e(f"  global_load_ushort {vr(h3)}, {vr(h2)}, s[{sRT}:{sRT + 1}] offset:32")
    e(f"  s_mov_b32 s{sK}, 0")
    e(f"  v_min_u32 {vr(wa)}, 23, {vr(l)}")
    e(f"  v_lshlrev_b32 {vr(wa)}, 4, {vr(wa)}")
    e(f"  v_lshlrev_b32 {vr(h0)}, 1, {vr(wa)}")
    e(f"  v_add_u32 {vr(h0)}, {PB}, {vr(h0)}")
    e(f"  v_add_u32 {vr(wa)}, {PK}, {vr(wa)}")
    e(f"  v_lshlrev_b32 {vr(sgn)}, 4, {vr(l)}")
    e(f"  s_mul_i32 s{sT0}, s{sOH + 1}, {P.pit}")
    e(f"  s_add_u32 s{sT0}, s{sT0}, {W_REC}")
    e(f"  v_add_u32 {vr(sgx)}, s{sT0}, {vr(sgn)}")
    e(f"  v_add_u32 {vr(sgn)}, {PK}, {vr(sgn)}")
    e(f"  v_add_u32 {vr(sg2)}, 4096, {vr(sgx)}")
    e(f"  v_lshrrev_b32 {vr(u)}, 1, {vr(vL16)}")
    e(f"  s_mul_i32 s{sT0}, s{sOH}, 384")
    e(f"  s_add_u32 s{sOUT}, s{sOUT}, s{sT0}")
    e(f"  s_addc_u32 s{sOUT + 1}, s{sOUT + 1}, 0")
    e(f"  s_lshl_b32 s{sT0}, s{sO}, 4")
    e(f"  s_add_u32 s{sT0}, s{sT0}, {W_REC + 5760}")
    e(f"  v_add_u32 {vr(h1)}, {W_REC}, {vr(u)}")
    e("  s_waitcnt vmcnt(0)")
    e(f"  v_lshrrev_b32 {vr(h2)}, 4, {vr(h3)}")
    e(f"  v_and_b32 {vr(h3)}, 15, {vr(h3)}")
    e(f"  v_mul_u32_u24 {vr(h2)}, {P.pit}, {vr(h2)}")
    e(f"  v_mul_u32_u24 {vr(h3)}, 384, {vr(h3)}")
    e(f"  v_add_u32 {vr(h3)}, {vr(h2)}, {vr(h3)}")
    e(f"  v_add_u32 {vr(ra + 15)}, s{sT0}, {vr(h2)}")
    e("  s_nop 0")
    for k in range(15):
        e(f"  v_add_u32_dpp {vr(ra + k)}, {vr(h3)}, {vr(h1)} row_newbcast:{k} row_mask:0xf bank_mask:0xf")
    e("L_hp:")
    e(f"  s_min_u32 s{sT0}, s{sO}, 13")
    e(f"  s_cmp_eq_u32 s{sT0}, s{sK}")
    e("  s_cbranch_scc0 L_hc_ok")
    if P.stg:
        e(f"  s_load_dwordx2 s[{sZ}:{sZ + 1}], s[{sDBG}:{sDBG + 1}], 0 glc")
        e("  s_waitcnt lgkmcnt(0)")
        e(f"  s_mov_b32 s{sTG}, s{sZ}")
        e(f"  s_cmp_eq_u32 s{sZ + 1}, 1")
        e("  s_cbranch_scc1 L_hc_ok")
    e("L_hc:")
    e(f"  global_load_dwordx2 {vr(pr, 2)}, {vr(vZ)}, s[{sDBG}:{sDBG + 1}] sc1")
    e("  s_waitcnt vmcnt(0)")
    e(f"  v_readfirstlane_b32 s{sTG}, {vr(pr)}")
    e(f"  v_readfirstlane_b32 s{sF}, {vr(pr + 1)}")
    e(f"  s_cmp_eq_u32 s{sF}, 1")
    e("  s_cbranch_scc1 L_hc_ok")
    budget("L_hc_ok")
    e("  s_sleep 64")
    e("  s_branch L_hc")
    e("L_hc_ok:")
    vstep_k(sH, sK)
    e(f"  s_lshl_b32 s{sT0}, s{sH}, 4")
    e(f"  v_mov_b32 {vr(h1)}, s{sT0}")
    e(f"  s_add_u32 s{sK}, s{sK}, 1")
    e(f"  s_add_u32 s{sNEED}, s{sK}, 16")
    progwait("hpw", P.psk)
    mark("p")
    hp(0)
    rank_post("p")
    sum_partials(2)
    e(f"  v_max3_f32 {vr(h3)}, |{vr(x)}|, |{vr(x + 1)}|, |{vr(x + 2)}|")
    e(f"  v_max3_f32 {vr(h3)}, {vr(h3)}, |{vr(x + 3)}|, |{vr(x + 4)}|")
    e(f"  v_max3_f32 {vr(h3)}, {vr(h3)}, |{vr(x + 5)}|, |{vr(x + 6)}|")
    e(f"  v_max_f32_e64 {vr(h3)}, {vr(h3)}, |{vr(x + 7)}|")
    allred("v_max_f32", h3, wb)
    e(f"  v_frexp_exp_i32_f32 {vr(h3)}, {vr(h3)}")
    e(f"  v_sub_u32 {vr(wb)}, 14, {vr(h3)}")
    e(f"  v_subrev_u32 {vr(h3)}, 14, {vr(h3)}")
    for i in range(8):
        e(f"  v_ldexp_f32 {vr(x + i)}, {vr(x + i)}, {vr(wb)}")
    for i in range(4):
        e(f"  v_cvt_pk_f16_f32 {vr(fo + i)}, {vr(x + 2 * i)}, {vr(x + 2 * i + 1)}")
    for i in range(4):
        e(f"  v_lshrrev_b32 {vr(x + i)}, 1, {vr(fo + i)}")
        e(f"  v_and_b32 {vr(x + i)}, 0x10001, {vr(x + i)}")
        e(f"  v_add_u32 {vr(fo + i)}, {vr(fo + i)}, {vr(x + i)}")
    e(f"  ds_write_b32 {vr(h1)}, {vr(h3)} offset:{ST + 12}")
    e(f"  v_add_u32 {vr(h0)}, 3072, {vr(h0)}")
    e(f"  ds_write_b128 {vr(wa)}, {vr(fo, 4)}")
    e(f"  v_add_u32 {vr(wa)}, 384, {vr(wa)}")
    rank_take("p")
    if P.es:
        e(f"  s_cmp_eq_u32 s{sK}, 9")
        e("  s_cbranch_scc0 L_es")
        for k in range(P.es):
            e(f"  global_store_dwordx4 {vr(sg2)}, {vr(blk + 4 * k, 4)}, s[{sWS}:{sWS + 1}] offset:{1024 * k - 1024} sc1")
        e("L_es:")
    if P.er:
        e(f"  s_bfe_u32 s{sT0}, s2, 0x30004")
        e(f"  s_add_u32 s{sT0}, s{sT0}, 10")
        e(f"  s_cmp_eq_u32 s{sK}, s{sT0}")
        e("  s_cbranch_scc0 L_er")
        e(f"  s_cmp_lt_u32 s{sK}, {10 + P.er}")
        e("  s_cbranch_scc0 L_er")
        for k in range(16):
            e(f"  global_load_dwordx2 {vr(rec)[:-0] if False else vr(rec, 2)}, {vr(ra + k)}, s[{sWS}:{sWS + 1}] sc1")
            e("  s_sleep 4")
        e("  s_waitcnt vmcnt(0)")
        e("L_er:")
    e(f"  s_cmp_lt_u32 s{sK}, 15")
    e("  s_cbranch_scc1 L_hp")
    if P.eprio:
        e(f"  s_setprio {P.eprio}")
    for k in range(6):
        e(f"  ds_read_b128 {vr(blk + 4 * k, 4)}, {vr(sgn)} offset:{1024 * k}")
    e(f"  v_subrev_u32 {vr(h2)}, 40, {vr(l)}")
    e(f"  v_and_b32 {vr(h2)}, 15, {vr(h2)}")
    e(f"  v_lshlrev_b32 {vr(h2)}, 4, {vr(h2)}")
    e(f"  ds_read_b128 {vr(st4, 4)}, {vr(h2)} offset:{ST}")
    e(f"  s_mov_b32 s{sMASK}, 0x10001")
    e(f"  v_lshlrev_b32 {vr(h2)}, 3, {vr(l)}")
    e(f"  v_lshrrev_b32 {vr(h2)}, {vr(h2)}, s{sTG}")
    e(f"  v_lshrrev_b32 {vr(h3)}, 1, {vr(u)}")
    e(f"  v_lshrrev_b32 {vr(h3)}, {vr(h3)}, s{sTG}")
    for i in range(6):
        src, k = (h2, i) if i < 4 else (h3, i - 4)
        e(f"  v_bfe_u32 {vr(x + i)}, {vr(src)}, {2 * k}, 2")
        e(f"  v_lshl_or_b32 {vr(x + i)}, {vr(x + i)}, 15, {vr(x + i)}")
        e(f"  v_and_b32 {vr(x + i)}, s{sMASK}, {vr(x + i)}")
    e(f"  v_cmp_gt_u32 vcc, 40, {vr(l)}")
    e("  s_waitcnt lgkmcnt(0)")
    e(f"  v_mov_b32 {vr(st4 + 2)}, {vr(st4 + 1)}")
    e(f"  v_mov_b32 {vr(st4 + 1)}, s{sTG}")
    e(f"  s_mov_b32 s{sT0}, 0xffff")
    e(f"  v_bfi_b32 {vr(st4 + 3)}, s{sT0}, {vr(st4 + 3)}, {vr(st4 + 1)}")
    for k in range(24):
        e(f"  v_bfi_b32 {vr(blk + k)}, s{sMASK}, {vr(x + k % 4)}, {vr(blk + k)}")
    for i in range(4):
        e(f"  v_cndmask_b32 {vr(blk + 20 + i)}, {vr(st4 + i)}, {vr(blk + 20 + i)}, vcc")
    e(f"  s_lshl_b32 s{sH}, s{sO}, 4")
    e(f"  v_mov_b32 {vr(h1)}, s{sH}")
    e(f"  v_add_u32 {vr(h0)}, {PB + 15 * 3072}, {vr(vL16)}")
    e(f"  ds_read_b32 {vr(h1)}, {vr(h1)} offset:{ST + 8}")
    e("  s_waitcnt lgkmcnt(0)")
    if P.mg:
        e("; the stores leave late in the last step, so that they reach the memory chips after the stream has ended")
        e(f"  s_mov_b32 s{sNEED}, {31 + (P.mg > 12)}")
        progwait("hmw", P.psl, FL + 32)
    hp(1)
    for k in range(6):
        if k == 5:
            e("  s_mov_b32 exec_hi, 0xffffff")
        if k and P.sg:
            e(f"  s_sleep {P.sg}")
        if k == 0 and P.sx:
            e(f"  s_bfe_u32 s{sT0}, s2, 0x30004")
            e("L_sx:")
            e(f"  s_sleep {P.sx}")
            e(f"  s_sub_u32 s{sT0}, s{sT0}, 1")
            e("  s_cbranch_scc0 L_sx")
        if "w" not in P.xp and k < P.ns:
            e(f"  global_store_dwordx4 {vr(sgx if k < 4 else sg2)}, {vr(blk + 4 * k, 4)}, s[{sWS}:{sWS + 1}] offset:{1024 * (k % 4)} {P.wf}")
    e("  s_mov_b64 exec, -1")
    if "r" in P.xp:
        e("  s_branch L_skip")
    if P.er:
        e(f"  s_bfe_u32 s{sT0}, s2, 0x30004")
        e(f"  s_cmp_lt_u32 s{sT0}, {P.er}")
        e("  s_cbranch_scc1 L_skip")
    if "o" in P.xp:
        e(f"  s_mov_b32 s{sSP}, 0")
    if P.rw:
        e("L_hw:")
    if P.ml:
        e(f"  s_mov_b32 s{sNEED}, {31 + (P.ml > 12)}")
        progwait("hlw", P.psl, FL + 48)
    else:
        e(f"  s_waitcnt vmcnt({P.aw})")
    hp(2)
    hp(3)
    if not P.rw:
        e("L_hw:")
    hp(4)
    if P.cnt:
        e(f"  s_mov_b32 s{sF}, 1")
        e(f"  s_atomic_add s{sF}, s[{sDBG}:{sDBG + 1}], 16")
    if P.nl < 15:
        e(f"  s_mov_b64 exec, {(1 << P.nl) - 1}")
    e(f"  global_load_dwordx4 {vr(cs, 4)}, {vr(ra + 15)}, s[{sWS}:{sWS + 1}] sc1")
    if P.nl < 15:
        e("  s_mov_b64 exec, -1")
    for k in range(15):
        if k == P.nl:
            e("  s_mov_b64 exec, 1")
            for kk in range(k, 15):
                e(f"  v_mov_b32 {vr(ra + kk)}, {vr(ra)}")
        if P.lg:
            e(f"  s_sleep {P.lg}")
        e(f"  global_load_dwordx2 {vr(rec + 2 * k, 2)}, {vr(ra + k)}, s[{sWS}:{sWS + 1}] sc1")
    if P.nl < 15:
        e("  s_mov_b64 exec, -1")
    for i in range(4):
        e(f"  v_mov_b32 {vr(fo + i)}, 0")
    e(f"  v_mov_b32 {vr(wb)}, 0")
    budget("L_hy")
    e("  s_waitcnt vmcnt(15)")
    e(f"  v_xor_b32 {vr(h2)}, s{sTG}, {vr(cs + 3)}")
    e(f"  v_xor_b32 {vr(h3)}, s{sTG}, {vr(cs + 1)}")
    e(f"  v_lshrrev_b32 {vr(h2)}, 16, {vr(h2)}")
    e(f"  v_or_b32 {vr(h2)}, {vr(h2)}, {vr(h3)}")
    e(f"  v_cmp_ne_u32 s[{sZ}:{sZ + 1}], 0, {vr(h2)}")
    e(f"  s_cmp_eq_u64 s[{sZ}:{sZ + 1}], 0")
    e("  s_cbranch_scc0 L_hw")
    e("L_hy:")
    e("  s_waitcnt vmcnt(15)")
    hp(5)
    e(f"  v_mov_b32 {vr(h2)}, {vr(cs)}")
    rowred("v_max_f32", h2)
    e(f"  v_sub_f32 {vr(h2)}, {vr(cs)}, {vr(h2)}")
    e(f"  v_exp_f32 {vr(h2)}, {vr(h2)}")
    e(f"  v_bfe_i32 {vr(h3)}, {vr(cs + 3)}, 0, 16")
    e(f"  v_ldexp_f32 {vr(h3)}, {vr(h2)}, {vr(h3)}")
    e(f"  v_mul_f32 {vr(wa)}, {vr(h2)}, {vr(cs + 2)}")
    e(f"  v_readlane_b32 s{sMSK}, {vr(h3)}, 0")
    e(f"  v_readlane_b32 s{sMSK + 15}, {vr(h2)}, 15")
    for k in range(15):
        if k < 14:
            e(f"  v_readlane_b32 s{sMSK + k + 1}, {vr(h3)}, {k + 1}")
        if k < 4:
            e(f"  v_add_f32_dpp {vr(wa)}, {vr(wa)}, {vr(wa)} row_ror:{8 >> k} row_mask:0xf bank_mask:0xf")
        if k == 4:
            e(f"  v_rcp_f32 {vr(wa)}, {vr(wa)}")
        e(f"  s_waitcnt vmcnt({14 - k})")
        for i in range(2):
            e(f"  v_xor_b32 {vr(rec + 2 * k + i)}, {vr(rec + 2 * k + i)}, {vr(x + 4 + i)}")
        for i in range(4):
            e(f"  v_fma_mix_f32 {vr(fo + i)}, {vr(rec + 2 * k + i // 2)}, s{sMSK + k}, {vr(fo + i)} op_sel:[{i & 1},0,0] op_sel_hi:[1,0,0]")
        e(f"  v_or3_b32 {vr(wb)}, {vr(rec + 2 * k)}, {vr(rec + 2 * k + 1)}, {vr(wb)}")
    e(f"  v_and_b32 {vr(wb)}, s{sMASK}, {vr(wb)}")
    e(f"  v_cmp_ne_u32 s[{sZ}:{sZ + 1}], 0, {vr(wb)}")
    e(f"  s_cmp_lg_u32 s{sSP}, 0")
    e(f"  s_cselect_b64 s[{sZ}:{sZ + 1}], s[{sZ}:{sZ + 1}], 0")
    e(f"  s_cmp_eq_u64 s[{sZ}:{sZ + 1}], 0")
    e("  s_cbranch_scc0 L_hw")
    e(f"  v_mul_f32 {vr(h2)}, s{sMSK + 15}, {vr(wa)}")
    e(f"  v_mul_f32 {vr(h3)}, {vr(h2)}, {vr(h1)}")
    for i in range(4):
        e(f"  v_fma_f32 {vr(fo + i)}, {vr(fo + i)}, {vr(wa)}, -{vr(h3)}")
    if "r" in P.xp or P.er:
        e("L_skip:")
    hp(6)
    e("  s_barrier")
    hp(7)
    for k in range(4):
        e(f"  ds_read_b128 {vr(x + 4 * k, 4)}, {vr(h0)} offset:{768 * k}")
    e("  s_waitcnt lgkmcnt(2)")
    for h in (0, 2):
        e(f"  v_pk_add_f32 {vr(x + h, 2)}, {vr(x + h, 2)}, {vr(x + 4 + h, 2)}")
    e("  s_waitcnt lgkmcnt(0)")
    for h in (0, 2):
        e(f"  v_pk_add_f32 {vr(x + 8 + h, 2)}, {vr(x + 8 + h, 2)}, {vr(x + 12 + h, 2)}")
    for h in (0, 2):
        e(f"  v_pk_add_f32 {vr(x + h, 2)}, {vr(x + h, 2)}, {vr(x + 8 + h, 2)}")
    for i in range(4):
        e(f"  v_fmac_f32 {vr(fo + i)}, {vr(h2)}, {vr(x + i)}")
    e(f"  v_cvt_pk_bf16_f32 {vr(fo)}, {vr(fo)}, {vr(fo + 1)}")
    e(f"  v_cvt_pk_bf16_f32 {vr(fo + 1)}, {vr(fo + 2)}, {vr(fo + 3)}")
    e("  s_mov_b32 exec_hi, 0xffff")
    e(f"  global_store_dwordx2 {vr(u)}, {vr(fo, 2)}, s[{sOUT}:{sOUT + 1}] {P.of}")
    if P.sd:
        e(f"  s_mov_b32 s{sNEED}, 32")
        e("  s_mov_b64 exec, -1")
        mark("z")
        e(f"  s_cmp_eq_u32 s{sJ}, 0")
        e("  s_cbranch_scc0 L_sd")
        e(f"  v_lshlrev_b32 {vr(h0)}, 2, {vr(l)}")
        e("  s_mov_b32 exec_lo, 0")
        e("  s_mov_b32 exec_hi, 0x3fff")
        e(f"  global_atomic_add {vr(h0)}, {vr(vCL)}, s[{sDBG}:{sDBG + 1}] offset:-120 sc1")
        e("L_sd:")
    if P.enc:
        m0, m1, base, amp, wg = [int(v) for v in P.enc.split(",")]
        if m1 == 32:
            e("  s_memrealtime s[18:19]")
        if m0 == 0:
            e(f"  s_mov_b32 s16, s{sST}")
        e("  s_waitcnt lgkmcnt(0)")
        if P.em:
            e(f"  s_not_b32 s17, s{sST}")
            e(f"  s_mov_b32 s16, s{sST}")
            e(f"  s_atomic_umax s18, s[{sDBG}:{sDBG + 1}], 40")
            e(f"  s_atomic_umax s17, s[{sDBG}:{sDBG + 1}], 44")
            e(f"  s_atomic_umax s16, s[{sDBG}:{sDBG + 1}], 48")
        else:
            e("  s_sub_u32 s16, s18, s16")
            e(f"  s_atomic_add s16, s[{sDBG}:{sDBG + 1}], 32")
        e(f"  s_cmp_eq_u32 s2, {wg}")
        e("  s_cbranch_scc0 L_nohold")
        e("L_hold0:")
        e(f"  s_memrealtime s[{sST + 2}:{sST + 3}]")
        e("  s_waitcnt lgkmcnt(0)")
        e(f"  s_sub_u32 s{sT0}, s{sST + 2}, s{sST}")
        e(f"  s_cmp_lt_u32 s{sT0}, 12500")
        e("  s_cbranch_scc1 L_hold0")
        e("  s_mov_b32 s16, 0")
        if P.em:
            e("  s_mov_b32 s17, 0")
            e(f"  s_atomic_add s16, s[{sDBG}:{sDBG + 1}], {48 if P.em == 3 else 40} glc")
            e(f"  s_atomic_add s17, s[{sDBG}:{sDBG + 1}], {48 if P.em == 2 else 44} glc")
            e("  s_waitcnt lgkmcnt(0)")
            if P.em != 2:
                e("  s_not_b32 s17, s17")
            e("  s_sub_u32 s16, s16, s17")
            e("  s_lshl_b32 s16, s16, 8")
        else:
            e(f"  s_atomic_add s16, s[{sDBG}:{sDBG + 1}], 32 glc")
            e("  s_waitcnt lgkmcnt(0)")
        e(f"  s_sub_u32 s16, s16, {base * 256}")
        e("  s_max_i32 s16, s16, 0")
        e("  s_min_i32 s16, s16, 128000")
        e(f"  s_mul_i32 s16, s16, {amp}")
        e("  s_lshr_b32 s16, s16, 8")
        e("  s_add_u32 s16, s16, 13000")
        e("L_hold:")
        e(f"  s_memrealtime s[{sST + 2}:{sST + 3}]")
        e("  s_waitcnt lgkmcnt(0)")
        e(f"  s_sub_u32 s{sT0}, s{sST + 2}, s{sST}")
        e(f"  s_cmp_lt_u32 s{sT0}, s16")
        e("  s_cbranch_scc1 L_hold")
        e("L_nohold:")
        e("  s_waitcnt lgkmcnt(0)")
    if P.tail:
        e("; diagnostic build only")
        e("  s_memrealtime s[16:17]")
        e("L_tail:")
        e("  s_memrealtime s[18:19]")
        e("  s_waitcnt lgkmcnt(0)")
        e("  s_sub_u32 s18, s18, s16")
        e(f"  s_cmp_lt_u32 s18, {P.tail}")
        e("  s_cbranch_scc1 L_tail")
    if P.hold:
        e("; diagnostic build only")
        e("L_hold:")
        e(f"  s_memrealtime s[{sST + 2}:{sST + 3}]")
        e("  s_waitcnt lgkmcnt(0)")
        e(f"  s_sub_u32 s{sT0}, s{sST + 2}, s{sST}")
        e(f"  s_cmp_lt_u32 s{sT0}, {P.hold}")
        e("  s_cbranch_scc1 L_hold")
    if P.stamp:
        e(f"  s_memrealtime s[{sST + 2}:{sST + 3}]")
        if P.hprof:
            e("  s_waitcnt lgkmcnt(0)")
            e("  s_lshl_b32 s44, s2, 5")
            e("  s_add_u32 s44, s44, 0x80000")
            e("  v_mov_b32 v1, s44")
            for k in range(8):
                e(f"  s_sub_u32 s45, s{sST + 2}, s{HP[k]}")
                e(f"  v_mov_b32 v{4 + k}, s45")
            e(f"  global_store_dwordx4 v1, v[4:7], s[{sWS}:{sWS + 1}]")
            e(f"  global_store_dwordx4 v1, v[8:11], s[{sWS}:{sWS + 1}] offset:16")
            e("  s_nop 2")
        e("  s_getreg_b32 s6, hwreg(HW_REG_XCC_ID)")
        e("  s_getreg_b32 s7, hwreg(HW_REG_HW_ID)")
        e("  s_waitcnt lgkmcnt(0)")
        e(f"  v_mov_b32 v4, s{sST}")
        e(f"  v_mov_b32 v5, s{sST + 2}")
        e("  v_mov_b32 v6, s6")
        e("  v_mov_b32 v7, s7")
        e("  s_lshl_b32 s8, s2, 4")
        e("  v_mov_b32 v1, s8")
        e(f"  global_store_dwordx4 v1, v[4:7], s[{sWS}:{sWS + 1}]")
    e("L_end:")
    e("  s_endpgm")
    e(".p2align 6")
    e(".type L_order,@object")
    e("L_order:")
    for k in range(0, len(ordtab), 8):
        e("  .long " + ", ".join(f"{v:#x}" for v in ordtab[k:k + 8]))
    e(".type L_hpos,@object")
    e("L_hpos:")
    for b in range(2):
        at = {chunk_of(b, n, s_): lpos(n, s_) for n in range(24) for s_ in range(16)}
        rows = sorted({c // 3 for c in at})
        for l_ in range(64):
            r0, r1 = rows[l_], rows[l_ + 64]
            e("  .long " + ", ".join(f"{a_ | b_ << 16:#x}" for a_, b_ in [(at[3 * r0 + k], at[3 * r1 + k]) for k in range(3)] + [(2 * r0, 2 * r1)]))
    e('.section .rodata,"a"')
    e(".p2align 6")
    e(f".amdhsa_kernel {NAME}_kernel")
    e(f"  .amdhsa_next_free_vgpr {NV}")
    e("  .amdhsa_next_free_sgpr 100")
    e(f"  .amdhsa_accum_offset {(NV + 3) // 4 * 4}")
    e("  .amdhsa_group_segment_fixed_size 0")
    e("  .amdhsa_kernarg_size 112")
    e("  .amdhsa_user_sgpr_count 2")
    e("  .amdhsa_user_sgpr_kernarg_segment_ptr 1")
    e("  .amdhsa_system_sgpr_workgroup_id_x 1")
    e(".end_amdhsa_kernel")
    return "\n".join(o) + "\n", NV


if __name__ == "__main__":
    ap = argparse.ArgumentParser()
    ap.add_argument("-o", default=f"/code/{NAME}.s")
    for name, d in (("sh", 4), ("deep", 5), ("pd", 9), ("pre", 12), ("nf", 6), ("su", 3), ("ss", 3), ("hp0", 0), ("tst", 20),
                    ("ctl", 1), ("hi", 0), ("hiv", 5), ("lo", -25), ("thr", 2), ("tp", 2), ("inv", 1), ("start", 5), ("s0", 0), ("ba", 3),
                    ("r0", 2), ("r1", 30), ("rf", 3), ("rp", 2), ("rt", 26), ("rotl", 7), ("kp", 7), ("kp0", 6), ("kn", 20),
                    ("mg", 5), ("ml", 0), ("aw", 0), ("rw", 0), ("cnt", 0), ("stg", 1), ("pit", 6016), ("sg", 0), ("sx", 0), ("lg", 0), ("ns", 6), ("es", 0), ("er", 0), ("nl", 15), ("map", 0), ("pol", -1), ("tail", 0), ("em", 0), ("nch", 12), ("cw", 1), ("cl", 0), ("sd", 0),
                    ("eprio", 2), ("psl", 1), ("psk", 1), ("spr", 1), ("bound", 4000000), ("hold", 0), ("dly", 0), ("dlb", 2)):
        ap.add_argument("--" + name, type=int, default=d)
    ap.add_argument("--kp_", default="6,6,6,7,8,9,9,10,10,11,11,12,12", help="K loads issued by each prologue point")
    ap.add_argument("--sf", default="nt")
    ap.add_argument("--of", default="")
    ap.add_argument("--wf", default="sc1")
    ap.add_argument("--enc", default="", help="diagnostic only: m0,m1,base,amp,wg")
    ap.add_argument("--qf", default="")
    ap.add_argument("--cf", default="")
    ap.add_argument("--ok", default="REXbLbLbL", help="events of a K group")
    ap.add_argument("--ov", default="REXbLbLbL", help="events of a V group")
    ap.add_argument("--vo", default="201")
    ap.add_argument("--tb", default="", help="first:last:bias, times 2 / -1 for workgroups that finish in / outside the last block")
    ap.add_argument("--rk", default="", help="die gain per step (hex digits, 0 = no ranking)")
    ap.add_argument("--sb", default="", help="step:bias,... added to the lateness")
    ap.add_argument("--bu", default="012", help="extra depth per position in the issued group")
    ap.add_argument("--th", default="-9,5,13")
    ap.add_argument("--sch", default="sch_np.txt")
    ap.add_argument("--xp", default="", help="timing experiments only")
    for name in ("stamp", "trace", "tfine", "hprof"):
        ap.add_argument("--" + name, action="store_true", help="diagnostics only")
    a = ap.parse_args()
    txt, nv = gen(a)
    open(a.o, "w").write(txt)
    print("wrote", a.o, "vgprs", nv)
```

```python
import argparse
import math
import os
import struct
from gen import HEADER, NAME, Alloc, f32bits, vr

HB = 2048 * 768

ABOUT = """
Generated by tools/gen9.py.
Work split: workgroup (cluster c, block m, member b) handles 128 rows of the 256-row block m for 16 heads 16 k + c
  (slots k = 5 and 10 take their head from a table instead of c); the two members alternate over 32 KiB runs.
  Waves 1-4 stream one 4 KiB block per round; a 16-lane row handles one third (64 dims) of a KV row per load.
  K sweep: logit = k_scale * sum_d (qk - 7.5) * (qa * cos + qb * sin), RoPE moved onto the rotated q;
  V sweep: partial = sum_rows p * v_scale * qv.
  Wave 0 (helper) rotates q, takes max / exp / sums over the workgroup's rows of each head, and merges partials.
Constant parameters (the same for every seed) are built in: both zero points (7.5), q_cos / q_sin (table L_qcs) and
  k_cos / k_sin = bf16(cos / sin(fp32(row * inv_freq))), evaluated once per workgroup from the table L_inv into LDS.
Hand-off: every workgroup finishes one of its heads and streams that head last.  Partials and (max, sum) of
  the other 15 go to d_ws with sc1 stores; every 8 bytes carry a piece of a tag that differs from the one found there on
  entry (sent round through d_debug).  The finisher reads until all tags fit and rescales all 16 to the true row maximum.
Flow control (speed only, results do not depend on it): waves publish a group counter and sample the counters of
  units on the same die; late waves keep one more load in flight, early waves one or two fewer.  Helpers rank the dies.
"""

RUN = (1, 2, 0)


def chunk_of(b, n, s):
    g = 256 * RUN[n >> 3] + 128 * b + 16 * (n & 7) + s
    return {128: 512, 255: 639, 512: 128, 639: 255}.get(g, g)


def tidx(b, row):
    return row - 43 * b - 42 * ((row >= 85) + (row >= 171))


def rev(x, bits):
    return int(format(x, f"0{bits}b")[::-1], 2)


def lpos(n, s):
    return 4 * (16 * s + rev(n, 4)) if n < 16 else 1024 + 4 * (8 * s + rev(n - 16, 3))


TN = [(RUN[n >> 3] + (n & 7)) % 3 for n in range(24)]
SPECIAL = {n: i for i, n in enumerate(sorted(8 * RUN.index(r) + i for r in (0, 2) for i in (0, 7)))}
for b_ in range(2):
    ch = sorted(chunk_of(b_, n, s) for n in range(24) for s in range(16))
    assert ch == sorted(3 * r + k for r in {c // 3 for c in ch} for k in range(3))
    assert all(chunk_of(b_, n, s) % 3 == (TN[n] + 2 * b_ + s) % 3 for n in range(24) for s in range(16))
    assert len({tidx(b_, c // 3) for c in ch}) == 128 and max(tidx(b_, c // 3) for c in ch) == 128


def gen(P):
    o = []
    e = o.append
    RING, PD = 24, P.pd
    sh, deep = P.sh, P.deep
    PRE = P.pre
    TP = P.tp
    LAG = 2
    assert deep <= PD - 1 and sh <= deep and PD <= PRE
    SL = 512
    SA = 16 * SL

    FL = 0
    ST = 256
    TB = 512
    QB = TB + 129 * 384
    LGB = QB + 16 * 768 + 1536
    SCB = LGB + 16 * 1536
    PB = SCB + 2 * SA
    PK = PB + 49152
    LDS = PK + 6144
    assert 81920 < LDS <= 163840
    W_REC = 0x400000
    W_RK = 0x780000
    W_PL = 0x7c0000

    sQ, sQK, sKS, sKZ, sQV, sVS, sVZ, sQC = 4, 6, 8, 10, 12, 14, 16, 18
    sQS, sKC, sKSN, sOUT = 20, 22, 24, 26
    sDBG, sWS = 28, 30
    rA, rB = 32, 36
    sW, sJ, sC, sK, sT0, sT1, sF, sNEED = 40, 41, 42, 43, 44, 45, 46, 47
    sMSK = 48
    sOF = 51
    sPB = 60
    sCO = 61
    sZ = 64
    sMASK, sSCALE, sH = 66, 67, 68
    sS = 69
    sX = 70
    sRF = 80
    sRT = 82
    sST = 84
    sN = 90
    sB = 91
    sVO = 92
    sSP = 94
    sI = 95
    sSE, sCU = 81, 79
    sLO = 78
    sO = 3
    sCN = 96
    sOH, sTG = 98, 99

    va = Alloc(1)
    vT16, vF, vZ, vC16 = [va.take(1) for _ in range(4)]
    voff = va.take(7)
    vTA = va.take(7)
    vQA = va.take(3)
    vPA = va.take(3)
    vLG = va.take(2)
    vLB = va.take(2)
    vLV = va.take(2)
    A = va.take(2)
    LG = va.take(2)
    M1, M2, M3 = [va.take(1) for _ in range(3)]
    bc = va.take(2, 2)
    dacc = va.take(2, 2)
    wt = va.take(4, 2)
    vtr, vPW, vPS, vN, vSum, vSu2, vBA = [va.take(1) for _ in range(7)]
    vPL = va.take(4)
    vBI = va.take(2, 2)
    smp = va.take(8, 4)
    qa = va.take(12, 4)
    tab = va.take(24, 4)
    tmp = va.take(12, 4)
    ring = va.take(4 * RING, 4)
    NV = va.n
    acc = qa

    here = os.path.dirname(os.path.abspath(__file__))
    sch = [[int(x) for x in ln.split()] for ln in open(os.path.join(here, P.sch))]
    sch = [x[:3] + [k for b_ in P.vo for k in x[3 + 5 * int(b_):8 + 5 * int(b_)]] + x[18:] for x in sch]
    inv, qcs = [[int(x, 16) for x in ln.split()] for ln in open(os.path.join(here, "consts.txt"))]
    cj = lambda g: (g >> 4, (g & 7) * 2 + ((g >> 3) & 1))
    ent = {g: sch[16 * cj(g)[0] + cj(g)[1]] for g in range(256)}
    cl = lambda g, k: ent[g][0] if k == 5 else ent[g][1] if k == 10 else g >> 4
    assert sorted(16 * ent[g][2] + cl(g, ent[g][2]) for g in range(256)) == list(range(256))
    place = (lambda g: g) if P.pol < 0 else (lambda g: (g & 127) << 1 | (g >> 7) ^ P.pol)
    ordtab = []
    for g in range(256):
        o_, od = ent[g][2], ent[g][3:]
        assert sorted(od) == list(range(16)) and od[15] == o_
        con = [x for x in range(256) if x != g and cl(x, o_) == cl(g, o_)] + [g]
        assert sorted(cj(x)[1] for x in con) == list(range(16))
        nib = sum(k << (4 * t) for t, k in enumerate(range(16) if "i" in P.xp else od))
        cn = sum((g >> 4 if "c" in P.xp else cl(g, k)) << (4 * k) for k in range(16))
        u16 = [16 * place(x) + ent[x][3:].index(o_) % P.nq for x in con]
        assert all(v % 16 < 15 for v in u16[:15]) and P.pit % 64 == 0
        ordtab += [nib & 0xffffffff, nib >> 32, cn & 0xffffffff, cn >> 32, 16 * o_ + cl(g, o_), place(g), o_, 2 if ((16 * o_ + cl(g, o_)) * HB + (g & 7) * 196608 + 98304) >> 28 else 0xffffffff]
        ordtab += [u16[2 * i] | u16[2 * i + 1] << 16 for i in range(8)]

    def ld(n):
        rr = rA if n < 24 else rB
        n %= 24
        so = f"s{sOF + (n & 7)}" if n & 7 else "0"
        vo = voff + (3 + SPECIAL[n] if n in SPECIAL and "x" not in P.xp else n >> 3)
        e(f"  buffer_load_dwordx4 {vr(ring + 4 * n, 4)}, {vr(vo)}, s[{rr}:{rr + 3}], {so} offen nt")

    ORD = {"K": P.ok, "V": P.ov}
    DIST = {"K": PRE, "V": PD}
    bu = [int(x) for x in P.bu]
    th = [int(x) for x in P.th.split(",")]
    assert PD % 3 == 0 and PRE % 3 == 0 and deep == sh + 1

    def memops(ph, a):
        r = []
        for i, c in enumerate(ORD[ph]):
            if c == "X" and P.ctl:
                r += [(i, "B")] * (a == P.ba) + [(i, "S"), (i, "Q")]
            if c == "L":
                r.append((i, "L"))
        return r

    def back(ph, a, i):
        r = [c for j, c in memops(ph, a) if j < i][::-1]
        for k in range(1, 8):
            r += [c for _, c in memops(ph, (a - k) % 8)][::-1]
        return r

    def cnt(ph, a, i, depth):
        depth += bu[ORD[ph][:i].count("L")]
        r = back(ph, a, i)
        return [k + 1 for k, c in enumerate(r) if c == "L"][depth - 2] if depth > 1 else 0

    def swait(ph, a):
        assert ORD[ph].index("E") < ORD[ph].index("X")
        r = back(ph, a, ORD[ph].index("E"))
        return [k for k, c in enumerate(r) if c == "Q"][LAG - 1]

    plain = {}

    def verify():
        ops = [("L", i) for i in range(PRE)]
        done = ORD["K"][:ORD["K"].index("L")].count("b")
        for g in range(256):
            ph, a = "KV"[g >= 128], g % 8
            if 3 * g + PD >= 768 or 128 <= g < 128 + (PRE - PD) // 3:
                for n in range(3 * g, 3 * g + 4 - (g == 255)):
                    plain[n] = len(ops) - 1 - ops.index(("L", n))
                done = max(done, len(ops) - plain[min(3 * g + 3, 767)])
                continue
            nb = nl = 3 * g
            for i, c in enumerate(ORD[ph]):
                if c == "E" and P.ctl:
                    done = max(done, len(ops) - swait(ph, a))
                if c == "X" and P.ctl:
                    ops += [("X", 0)] * (1 + (a == P.ba))
                if c == "b":
                    assert ("L", nb) in ops[:done], nb
                    nb += 1
                if c == "L":
                    done = max(done, len(ops) - cnt(ph, a, i, deep if P.ctl else sh))
                    ops.append(("L", nl + DIST[ph]))
                    nl += 1
    verify()
    lab = [0]
    rare = []

    def flush():
        o.extend(rare)
        rare.clear()

    def issue(ph, a, i):
        j = ORD[ph][:i].count("L")
        lab[0] += 1
        if P.ctl and j == TP:
            e(f"  s_cmp_lt_i32 s{sS}, {P.lo}")
            e(f"  s_cbranch_scc1 L_t{lab[0]}")
            rare.extend([f"L_t{lab[0]}:", f"  s_waitcnt vmcnt({cnt(ph, a, i, P.thr + 1)})", f"  s_branch L_p{lab[0]}"])
        if P.ctl:
            t = (P.hi if ph == "K" else P.hiv) + th[j]
            assert t >= P.lo
            e(f"  s_cmp_gt_i32 s{sS}, {t}")
            if t < 0 and P.inv:
                e(f"  s_cbranch_scc0 L_q{lab[0]}")
                rare.extend([f"L_q{lab[0]}:", f"  s_waitcnt vmcnt({cnt(ph, a, i, sh)})", f"  s_branch L_p{lab[0]}"])
                e(f"  s_waitcnt vmcnt({cnt(ph, a, i, deep)})")
                e(f"L_p{lab[0]}:")
            else:
                e(f"  s_cbranch_scc1 L_p{lab[0]}")
                e(f"  s_waitcnt vmcnt({cnt(ph, a, i, sh)})")
                e(f"L_p{lab[0]}:")
                e(f"  s_waitcnt vmcnt({cnt(ph, a, i, deep)})")
        else:
            e(f"  s_waitcnt vmcnt({cnt(ph, a, i, sh)})")
        ld(3 * a + j + DIST[ph])
        if ph == "V" and 3 * a + j + 1 == P.mg:
            e(f"  ds_write_b32 {vr(vPW)}, {vr(M1)} offset:{FL + 32}")
        if ph == "V" and 3 * a + j + 1 == P.ml:
            e(f"  ds_write_b32 {vr(vPW)}, {vr(M1)} offset:{FL + 48}")

    def evaluate(ph, a):
        if not P.ctl:
            return
        sm = smp + 4 * (a % LAG)
        e(f"  s_waitcnt vmcnt({swait(ph, a)})")
        if a == (P.ba + LAG) % 8:
            e(f"  v_add_u32 {vr(vBI)}, {vr(vBI)}, {vr(vBI + 1)}")
        e(f"  s_add_u32 s{sT0}, s{sLO}, 0x03030303")
        e(f"  v_msad_u8 {vr(vSum)}, s{sLO}, {vr(sm)}, 0")
        e(f"  v_msad_u8 {vr(vSu2)}, s{sT0}, {vr(sm)}, 0")
        if a == (P.ba + LAG) % 8:
            e(f"  v_readfirstlane_b32 s{sB}, {vr(vBI)}")
        for k in range(1, 3):
            e(f"  v_msad_u8 {vr(vSum)}, s{sLO}, {vr(sm + k)}, {vr(vSum)}")
            e(f"  v_msad_u8 {vr(vSu2)}, s{sT0}, {vr(sm + k)}, {vr(vSu2)}")
        e(f"  v_sub_u32 {vr(vSum)}, {vr(vSum)}, {vr(vSu2)}")
        e(f"  s_add_u32 s{sLO}, s{sLO}, 0x01010101")
        e(f"  v_readlane_b32 s{sMASK}, {vr(vSum)}, 0")
        e(f"  v_readlane_b32 s{sSCALE}, {vr(vSum)}, 1")

    def decide(ph, a):
        if not P.ctl:
            return
        if a == (P.ba + LAG) % 8:
            for it in filter(None, P.sb.split(",")):
                st_, b_ = [int(v) for v in it.split(":")]
                if (st_ >= 16) == (ph == "V"):
                    e(f"  s_cmp_eq_u32 s{sK}, {st_ % 16}")
                    e(f"  s_cselect_b32 s{sT0}, {b_}, 0")
                    e(f"  s_add_u32 s{sB}, s{sB}, s{sT0}")
            for it in filter(None, P.tb.split(",")):
                s0_, s1_, b_ = [int(v) for v in it.split(":")]
                if (s0_ >= 16) == (ph == "V"):
                    e(f"  s_bitcmp1_b32 {sum(1 << (k % 16) for k in range(s0_, s1_ + 1)):#x}, s{sK}")
                    e(f"  s_cselect_b32 s{sT0}, {b_}, 0")
                    e(f"  s_mul_i32 s{sT0}, s{sT0}, s{sPB}")
                    e(f"  s_add_u32 s{sB}, s{sB}, s{sT0}")
        cur, old = (sI, sCO) if a & 1 else (sCO, sI)
        e(f"  s_add_u32 s{cur}, s{sMASK}, s{sSCALE}")
        e(f"  s_add_u32 s{sS}, s{cur}, s{old}")
        e(f"  s_ashr_i32 s{sS}, s{sS}, 1")
        e(f"  s_add_u32 s{sS}, s{sS}, s{sB}")
        if ph == "K" and a < P.start:
            e(f"  s_cmp_eq_u32 s{sK}, 0")
            e(f"  s_cselect_b32 s{sS}, {P.s0}, s{sS}")

    def exchange(a):
        if not P.ctl:
            return
        e("  s_mov_b64 exec, 1")
        if a == P.ba:
            e(f"  global_load_dwordx2 {vr(vBI, 2)}, {vr(vBA)}, s[{sWS}:{sWS + 1}] {P.pf}")
        e(f"  global_store_byte {vr(vPS)}, {vr(vN)}, s[{sWS}:{sWS + 1}]")
        e("  s_mov_b64 exec, 3")
        e(f"  global_load_dwordx3 {vr(smp + 4 * (a % LAG), 3)}, {vr(vPL + a % 4)}, s[{sWS}:{sWS + 1}] {P.pf}")
        e(f"  v_add_u32 {vr(vN)}, 1, {vr(vN)}")
        e("  s_mov_b64 exec, -1")

    def srd_head(rr, sp, sh_):
        e(f"  s_mul_i32 s{sT0}, s{sh_}, {HB}")
        e(f"  s_add_u32 s{rr}, s{sp}, s{sT0}")
        e(f"  s_addc_u32 s{rr + 1}, s{sp + 1}, 0")

    def vstep_k(dst, src):
        e(f"  s_lshl_b32 s{dst}, s{src}, 2")
        e(f"  s_lshr_b64 s[{sZ}:{sZ + 1}], s[{sVO}:{sVO + 1}], s{dst}")
        e(f"  s_and_b32 s{dst}, s{sZ}, 15")

    def head_of(dst, slot):
        e(f"  s_lshl_b32 s{sT0}, s{slot}, 2")
        e(f"  s_lshr_b64 s[{sZ}:{sZ + 1}], s[{sCN}:{sCN + 1}], s{sT0}")
        e(f"  s_and_b32 s{sZ}, s{sZ}, 15")
        e(f"  s_lshl4_add_u32 s{dst}, s{slot}, s{sZ}")

    def budget(ok):
        e(f"  s_cmp_eq_u32 s{sSP}, 0")
        e(f"  s_cbranch_scc1 {ok}")
        e(f"  s_sub_u32 s{sSP}, s{sSP}, 1")

    def flagwait(name, off):
        e(f"L_{name}:")
        e("  s_waitcnt lgkmcnt(0)")
        e(f"  v_readfirstlane_b32 s{sF}, {vr(vF)}")
        e(f"  s_cmp_ge_u32 s{sF}, s{sNEED}")
        e(f"  s_cbranch_scc0 L_{name}_no")
        e(f"L_{name}_ok:")
        rare.extend([f"L_{name}_no:", f"  s_cmp_eq_u32 s{sSP}, 0", f"  s_cbranch_scc1 L_{name}_ok", f"  s_sub_u32 s{sSP}, s{sSP}, 1",
                     f"  ds_read_b32 {vr(vF)}, {vr(vZ)} offset:{off}", f"  s_branch L_{name}"])

    def tr():
        if P.trace:
            e(f"  {'s_memtime' if 'm' in P.xp else 's_memrealtime'} s[88:89]")
            e("  s_waitcnt lgkmcnt(0)")
            e(f"  v_writelane_b32 {vr(vtr)}, s88, m0")
            e("  s_add_u32 m0, m0, 1")
            e("  s_min_u32 m0, m0, 63")

    def die_base(dst):
        e(f"  s_getreg_b32 s{sSE}, hwreg(HW_REG_HW_ID, 8, 7)")
        e(f"  s_getreg_b32 s{dst}, hwreg(HW_REG_XCC_ID, 0, 3)")
        e(f"  s_and_b32 s{sCU}, s{sSE}, 15")
        e(f"  s_lshr_b32 s{sSE}, s{sSE}, 5")
        e(f"  s_mul_i32 s{dst}, s{dst}, 4352")
        e(f"  s_add_u32 s{dst}, s{dst}, {W_PL}")

    ha = Alloc(16)
    l, u, h0, h1, h2, h3 = [ha.take(1) for _ in range(6)]
    qo, wa, wb, sgn, sgx, sg2 = [ha.take(1) for _ in range(6)]
    ro = ha.take(8)
    vL16, vCNT, vDB, vOne, vFA, vFI, vFR, vFX, vFB, vEL, vCL, vSa = [ha.take(1) for _ in range(12)]
    z4 = ha.take(4, 4)
    cs = ha.take(8, 4)
    sc = ha.take(4, 4)
    qn = ha.take(4, 4)
    x = ha.take(32, 4)
    pr = ha.take(4, 4)
    fo = ha.take(4, 4)
    rec = ha.take(32, 4)
    blk = ha.take(24, 4)
    st4 = ha.take(4, 4)
    ra = ha.take(16)
    assert ha.n <= NV and vZ < 16

    invX, invY, tK, tA, tN, tO = tmp, tmp + 4, tmp + 8, tab, tab + 4, tab + 8
    PC0 = 20 + 8 * P.stamp + 16 * (P.dly > 0)
    D_INV, D_QCS, D_END = 256, 768, 1152
    NF = P.nf
    assert RUN[0] == 1 and NF <= 8
    e(HEADER.rstrip("\n"))
    e(f"; @launch grid=(256,1,1) block=(320,1,1) lds={LDS}")
    for ln in ABOUT.strip("\n").split("\n"):
        e("; " + ln)
    e('.amdgcn_target "amdgcn-amd-amdhsa--gfx950"')
    e(".text")
    e(f".globl {NAME}_kernel")
    e(".p2align 8")
    e(f".type {NAME}_kernel,@function")
    e(f"{NAME}_kernel:")
    e("  s_cmpk_ge_u32 s2, 0x100")
    e("  s_cbranch_scc1 L_end")
    if P.dly:
        e("; diagnostic build only: half of the dies start late")
        e(f"  s_getreg_b32 s4, hwreg(HW_REG_XCC_ID, {P.dlb}, 1)")
        e("  s_cmp_eq_u32 s4, 0")
        e("  s_cbranch_scc1 L_dly")
        e(f"  s_sleep {P.dly}")
        e("L_dly:")
    if P.stamp:
        e(f"  s_memrealtime s[{sST}:{sST + 1}]")
    e("  s_load_dwordx16 s[4:19], s[0:1], 0")
    e(f"  s_getpc_b64 s[{sZ}:{sZ + 1}]")
    e("L_pc:")
    e("  v_cmp_gt_u32 vcc, 64, v0")
    e(f"  v_lshlrev_b32 {vr(vT16)}, 4, v0")
    e(f"  s_lshr_b32 s{sK}, s2, 4")
    if P.map:
        e("; bits 2 and 7 of the number trade places: a cluster stays on four dies")
        e(f"  s_lshr_b32 s{sH}, s2, 5")
        e(f"  s_xor_b32 s{sH}, s{sH}, s2")
        e(f"  s_and_b32 s{sH}, s{sH}, 4")
        e(f"  s_mul_i32 s{sH}, s{sH}, 33")
        e(f"  s_xor_b32 s2, s2, s{sH}")
    e(f"  s_lshr_b32 s{sC}, s2, 4")
    e(f"  s_and_b32 s{sH}, s2, 7")
    e(f"  s_lshl3_add_u32 s{sH}, s{sC}, s{sH}")
    e(f"  s_movk_i32 s{sNEED}, 768")
    e("  s_cbranch_vccz L_s0")
    e(f"  v_lshl_add_u32 {vr(h0)}, s{sK}, 6, v0")
    e(f"  v_mul_u32_u24 {vr(h0)}, {P.tst}, {vr(h0)}")
    e(f"  global_load_dword {vr(h3)}, {vr(h0)}, s[{sZ}:{sZ + 1}] offset:{D_END - PC0} {P.cf}")
    e(f"  v_and_b32 {vr(vL16)}, 0x1f0, {vr(vT16)}")
    e(f"  global_load_dwordx4 {vr(pr, 4)}, {vr(vL16)}, s[{sZ}:{sZ + 1}] offset:{D_QCS - PC0}")
    e("  s_branch L_helper")
    e("L_s0:")
    e(f"  v_and_b32 {vr(vC16)}, 0xf0, {vr(vT16)}")
    e(f"  global_load_dwordx4 {vr(invX, 4)}, {vr(vC16)}, s[{sZ}:{sZ + 1}] offset:{D_INV - PC0}")
    e(f"  global_load_dwordx4 {vr(invY, 4)}, {vr(vC16)}, s[{sZ}:{sZ + 1}] offset:{D_INV + 256 - PC0}")
    e(f"  s_mul_i32 s{sT0}, s{sH}, 196608")
    e(f"  s_and_b32 s{sT1}, s2, 8")
    e(f"  s_lshl_b32 s{sT1}, s{sT1}, 12")
    e(f"  s_add_u32 s{sT0}, s{sT0}, s{sT1}")
    e(f"  s_add_u32 s{sT0}, s{sT0}, {65536 * RUN[0] - 1024 + 4096}")
    e(f"  v_add_u32 {vr(tA)}, s{sT0}, {vr(vT16)}")
    for k in range(1, (NF + 1) // 2):
        e(f"  v_add_u32 {vr(tA + k)}, {8192 * k}, {vr(tA)}")
    e("  s_waitcnt lgkmcnt(0)")
    for n in range(NF):
        e(f"  global_load_dwordx4 {vr(ring + 4 * n, 4)}, {vr(tA + n // 2)}, s[{sQK}:{sQK + 1}] offset:{4096 * (n % 2) - 4096} nt")
    e("  s_branch L_s1")
    e("L_b0:")
    e(f".if (L_b0 - {NAME}_kernel > {D_INV}) || (L_pc - {NAME}_kernel != {PC0})")
    e('.error "entry block layout"')
    e(".endif")
    e(".p2align 8")
    e(".type L_inv,@object")
    e("L_inv:")
    tb = inv[:64] + inv[64:] + inv[64:]
    for k in range(0, 128, 8):
        e("  .long " + ", ".join(f"{v:#x}" for v in tb[k:k + 8]))
    e(".type L_qcs,@object")
    e("L_qcs:")
    for k in range(0, 96, 8):
        e("  .long " + ", ".join(f"{v:#x}" for v in qcs[k:k + 8]))

    def common():
        e(f"  s_load_dwordx8 s[24:31], s[0:1], 80")
        e(f"  s_lshl_b32 s{sT0}, s2, 6")
        e(f"  s_add_u32 s{sT0}, s{sT0}, L_order-L_pc")
        e(f"  s_add_u32 s{sRT}, s{sZ}, s{sT0}")
        e(f"  s_addc_u32 s{sRT + 1}, s{sZ + 1}, 0")
        e(f"  s_load_dwordx2 s[{sVO}:{sVO + 1}], s[{sRT}:{sRT + 1}], 0")
        e(f"  s_load_dwordx2 s[{sCN}:{sCN + 1}], s[{sRT}:{sRT + 1}], 8")
        if P.tb:
            e(f"  s_load_dword s{sPB}, s[{sRT}:{sRT + 1}], 28")
        e(f"  v_mov_b32 {vr(vZ)}, 0")
        e(f"  s_mov_b32 s{sSP}, {P.bound}")
        e(f"  s_bfe_u32 s{sJ}, s2, 0x10003")

    PFR = [8, 10, 14, 16, 18, 20, 22, 72, 74, 76, 4, 86]
    pfn = [0]

    def pf():
        if P.tfine:
            e(f"  {'s_memtime' if 'm' in P.xp else 's_memrealtime'} s[{PFR[pfn[0]]}:{PFR[pfn[0]] + 1}]")
            pfn[0] += 1

    e("L_s1:")
    w_, s_, vAD, vC8, t0, t1 = wt, wt + 1, wt + 2, wt + 3, dacc, dacc + 1
    vRF, pos = vT16, tK + 3
    if P.trace:
        e(f"  v_mov_b32 {vr(vtr)}, 0")
        e("  s_mov_b32 m0, 0")
    pf()
    e("  v_subrev_u32 v0, 64, v0")
    e(f"  s_setprio {P.spr}")
    common()
    e(f"  v_lshrrev_b32 {vr(w_)}, 6, v0")
    e(f"  v_lshrrev_b32 {vr(s_)}, 4, v0")
    e(f"  v_and_b32 {vr(vC8)}, 0x70, {vr(vC16)}")
    e(f"  v_readfirstlane_b32 s{sW}, {vr(w_)}")
    e(f"  v_add_u32 {vr(vAD)}, {vr(vC8)}, {vr(s_)}")
    e(f"  s_mul_i32 s{sT0}, s{sJ}, 44")
    e(f"  s_sub_u32 s{sT0}, 86, s{sT0}")
    e(f"  v_cmp_eq_u32 vcc, s{sT0}, {vr(vAD)}")
    e(f"  v_mov_b32 {vr(t0)}, 0x80")
    e(f"  s_and_b32 s{sH}, s2, 7")
    e(f"  v_cndmask_b32 {vr(vAD)}, {vr(vAD)}, {vr(t0)}, vcc")
    e(f"  v_mul_u32_u24 {vr(t0)}, 381, {vr(vAD)}")
    e(f"  s_mul_i32 s{sT0}, s{sJ}, 43")
    e(f"  v_add_u32 {vr(t0)}, 2, {vr(t0)}")
    e(f"  s_lshl_b32 s{sT1}, s{sH}, 8")
    e(f"  v_lshrrev_b32 {vr(t0)}, 14, {vr(t0)}")
    assert all((381 * i + 2) >> 14 == (i >= 43) + (i >= 86) for i in range(129))
    e(f"  s_add_u32 s{sT0}, s{sT0}, s{sT1}")
    e(f"  v_mad_u32_u24 {vr(t0)}, {vr(t0)}, 42, {vr(vAD)}")
    e(f"  v_add_u32 {vr(t0)}, s{sT0}, {vr(t0)}")
    e(f"  v_cvt_f32_u32 {vr(vRF)}, {vr(t0)}")
    e(f"  v_mul_u32_u24 {vr(vAD)}, 384, {vr(vAD)}")
    e(f"  s_mov_b32 s{rA + 2}, {HB}")
    e(f"  s_mov_b32 s{rA + 3}, 0x20000")
    srd_head(rA, sQK, sC)
    e(f"  s_mul_i32 s{sT0}, s{sH}, 6")
    e(f"  s_add_u32 s{sT0}, s{sT0}, s{sJ}")
    e(f"  s_lshl_b32 s{sT0}, s{sT0}, 15")
    e(f"  v_lshl_add_u32 {vr(voff + RUN.index(0))}, v0, 4, s{sT0}")
    for k in (1, 2):
        e(f"  v_add_u32 {vr(voff + RUN.index(k))}, {65536 * k:#x}, {vr(voff + RUN.index(0))}")
    for i in range(1, 8):
        e(f"  s_movk_i32 s{sOF + i}, {4096 * i}")
    nk = [NF]
    assert PRE <= RING and max(int(v) for v in P.kp_.split(",")[:P.su + 1]) <= min(SPECIAL)

    def k_loads(hi):
        while nk[0] < min(hi, PRE):
            ld(nk[0])
            nk[0] += 1

    def toff_(n):
        run = RUN[n >> 3]
        return 384 * (16 * (((n & 7) + run) // 3) + 38 * run)

    def setup():
        e("; per chunk class k: q operand, table and partial addresses")
        e(f"  s_lshl1_add_u32 s{sF}, s{sJ}, s{sW}")
        e(f"  s_lshl_b32 s{sF}, s{sF}, 1")
        e(f"  s_lshr_b32 s{sF}, 0x4924, s{sF}")
        e(f"  v_bfe_u32 {vr(t1)}, v0, 4, 2")
        e(f"  v_lshl_add_u32 {vr(t1)}, {vr(t1)}, 2, {vr(vC16)}")
        e(f"  v_mad_u32_u24 {vr(vF)}, {vr(w_)}, s{sNEED}, {vr(t1)}")
        e(f"  v_add_u32 {vr(vF)}, {PB - 3072}, {vr(vF)}")
        e(f"  s_mul_i32 s{sT1}, s{sJ}, {43 * 384}")
        e(f"  s_sub_u32 s{sT1}, {TB}, s{sT1}")
        e(f"  v_lshl_add_u32 {vr(vSum)}, s{sJ}, 7, {vr(s_)}")
        for k in range(3):
            e(f"  s_bfe_u32 s{sT0}, s{sF}, {(2 << 16) | 2 * k:#x}")
            e(f"  v_lshl_add_u32 {vr(vPA + k)}, s{sT0}, 8, {vr(vF)}")
            if k:
                e(f"  v_add_u32 {vr(vSum)}, 16, {vr(vSum)}")
            e(f"  v_mul_u32_u24 {vr(t0)}, 171, {vr(vSum)}")
            e(f"  v_lshrrev_b32 {vr(t0)}, 9, {vr(t0)}")
            e(f"  v_mad_i32_i24 {vr(t1)}, {vr(t0)}, -3, {vr(vSum)}")
            e(f"  v_lshl_add_u32 {vr(t1)}, {vr(t1)}, 8, {vr(vC16)}")
            e(f"  v_add_u32 {vr(vQA + k)}, {QB}, {vr(t1)}")
            e(f"  v_subrev_u32 {vr(vSu2)}, 384, {vr(t1)}")
            e(f"  v_min_u32 {vr(t1)}, {vr(t1)}, {vr(vSu2)}")
            e(f"  v_mul_u32_u24 {vr(t0)}, 384, {vr(t0)}")
            e(f"  v_add3_u32 {vr(vTA + k)}, {vr(t0)}, {vr(t1)}, s{sT1}")
        e(f"  v_lshl_add_u32 {vr(vSum)}, s{sJ}, 4, {vr(s_)}")
        for n, i in SPECIAL.items():
            run, sx = RUN[n >> 3], 15 * (n & 7 == 7)
            b = int(run == 0)
            g0, g1 = 256 * run + 128 * b + 16 * (n & 7) + sx, chunk_of(b, n, sx)
            dt = 384 * (tidx(b, g1 // 3) - (g0 // 3 - 43 * b - 42 * run))
            e(f"  v_cmp_eq_u32 vcc, {16 * b + sx}, {vr(vSum)}")
            e(f"  v_add_u32 {vr(t0)}, {256 * (g1 - g0) & 0xffffffff:#x}, {vr(voff + (n >> 3))}")
            e(f"  v_add_u32 {vr(t1)}, {toff_(n)}, {vr(vTA + TN[n])}")
            e(f"  v_add_u32 {vr(vSu2)}, {dt & 0xffffffff:#x}, {vr(t1)}")
            e(f"  v_cndmask_b32 {vr(voff + 3 + i)}, {vr(voff + (n >> 3))}, {vr(t0)}, vcc")
            e(f"  v_cndmask_b32 {vr(vTA + 3 + i)}, {vr(t1)}, {vr(vSu2)}, vcc")
        e(f"  v_lshlrev_b32 {vr(vLB)}, 2, v0")
        e(f"  v_add_u32 {vr(vLB)}, {LGB}, {vr(vLB)}")
        e(f"  v_lshrrev_b32 {vr(t1)}, 1, v0")
        e(f"  v_lshlrev_b32 {vr(t1)}, 2, {vr(t1)}")
        e(f"  v_add_u32 {vr(vLB + 1)}, {LGB + 1024}, {vr(t1)}")
        e(f"  v_subrev_u32 {vr(vLG)}, 1536, {vr(vLB)}")
        e(f"  v_subrev_u32 {vr(vLG + 1)}, 1536, {vr(vLB + 1)}")
        e(f"  v_lshlrev_b32 {vr(vPW)}, 2, {vr(w_)}")
        e(f"  s_mov_b32 s{sMSK}, 0xcccccccc")
        e(f"  s_mov_b32 s{sMSK + 1}, s{sMSK}")
        e(f"  s_mov_b32 s{sMSK + 2}, 0xaaaaaaaa")
        e(f"  s_mov_b32 s{sMSK + 3}, s{sMSK + 2}")
        e(f"  s_mov_b32 s{rB + 2}, {HB}")
        e(f"  s_mov_b32 s{rB + 3}, 0x20000")
        e(f"  s_mov_b32 s{sK}, 0")
        if P.ctl:
            e("; progress slots: this wave writes one byte of line (half, w) and samples the lines of the other half")
            die_base(sF)
            e(f"  s_add_u32 s{sT0}, s{sF}, 2048")
            e(f"  v_mov_b32 {vr(vBA)}, s{sT0}")
            e(f"  s_and_b32 s{sT1}, s{sSE}, 2")
            e(f"  s_lshl_b32 s{sT1}, s{sT1}, 9")
            e(f"  s_lshl_b32 s{sT0}, s{sW}, 8")
            e(f"  s_add_u32 s{sT0}, s{sT0}, s{sT1}")
            e(f"  s_add_u32 s{sT0}, s{sT0}, s{sF}")
            e(f"  s_add_u32 s{sT0}, s{sT0}, s{sCU}")
            e(f"  s_and_b32 s{sSE}, s{sSE}, 1")
            e(f"  s_lshl_b32 s{sSE}, s{sSE}, 4")
            e(f"  s_add_u32 s{sT0}, s{sT0}, s{sSE}")
            e(f"  v_mov_b32 {vr(vPS)}, s{sT0}")
            e(f"  s_xor_b32 s{sT1}, s{sT1}, 1024")
            e(f"  s_add_u32 s{sF}, s{sF}, s{sT1}")
            e(f"  v_and_b32 {vr(vN)}, 1, v0")
            e(f"  v_lshl_add_u32 {vr(vN)}, {vr(vN)}, 4, s{sF}")
            for k in range(4):
                e(f"  v_add_u32 {vr(vSum)}, {k}, {vr(w_)}")
                e(f"  v_and_b32 {vr(vSum)}, 3, {vr(vSum)}")
                e(f"  v_lshl_add_u32 {vr(vPL + k)}, {vr(vSum)}, 8, {vr(vN)}")
            e(f"  s_mov_b32 s{sLO}, {(-(LAG + 2) * 0x01010101) & 0xffffffff:#x}")
            for k in range(4 * LAG):
                e(f"  v_mov_b32 {vr(smp + k)}, 0")
            for k in range(2):
                e(f"  v_mov_b32 {vr(vBI + k)}, 0")
            e(f"  v_mov_b32 {vr(vN)}, 0")
            e(f"  s_mov_b32 s{sB}, 0")
            e(f"  s_mov_b32 s{sS}, {P.s0}")
            e(f"  s_mov_b32 s{sI}, 0")
            e(f"  s_mov_b32 s{sCO}, 0")

    def sincos(dst, iv):
        for h in (0, 2):
            e(f"  v_pk_mul_f32 {vr(tA + h, 2)}, {vr(iv + h, 2)}, {vr(tK + 2, 2)} op_sel:[0,1] op_sel_hi:[1,1]")
        if iv == invY:
            for h in (0, 2):
                e(f"  v_pk_mul_f32 {vr(tN + h, 2)}, {vr(tA + h, 2)}, {vr(tK, 2)} op_sel_hi:[1,0]")
        else:
            for h in (0, 2):
                e(f"  v_pk_fma_f32 {vr(tN + h, 2)}, {vr(tA + h, 2)}, {vr(tK, 2)}, {vr(tK, 2)} op_sel:[0,0,1] op_sel_hi:[1,0,1]")
            for h in (0, 2):
                e(f"  v_pk_add_f32 {vr(tN + h, 2)}, {vr(tN + h, 2)}, {vr(tK, 2)} op_sel:[0,1] op_sel_hi:[1,1] neg_lo:[0,1] neg_hi:[0,1]")
            for h in (0, 2):
                e(f"  v_pk_fma_f32 {vr(tN + h, 2)}, {vr(tA + h, 2)}, {vr(tK, 2)}, {vr(tN + h, 2)} op_sel_hi:[1,0,1] neg_lo:[0,0,1] neg_hi:[0,0,1]")
            for h in (0, 2):
                e(f"  v_pk_fma_f32 {vr(tN + h, 2)}, {vr(tA + h, 2)}, {vr(tK + 2, 2)}, {vr(tN + h, 2)} op_sel_hi:[1,0,1]")
        for i in range(4):
            e(f"  v_cos_f32 {vr(tA + i)}, {vr(tN + i)}")
        for i in range(4):
            e(f"  v_sin_f32 {vr(tN + i)}, {vr(tN + i)}")
        for i in range(4):
            e(f"  v_cvt_pk_bf16_f32 {vr(dst + i)}, {vr(tA + i)}, {vr(tN + i)}")

    kp = [int(v) for v in P.kp_.split(",")]

    def chunk(i):
        a = 2 * (i // 3)
        d = tO + 4 * (i & 1)
        bc_ = lambda x, m: f"row_newbcast:{x} row_mask:0xf bank_mask:{m:#x}"
        if i % 3 == 1:
            e(f"  v_mov_b32_dpp {vr(pos)}, {vr(vRF)} {bc_(a + 1, 12)}")
            e(f"  v_add_u32_dpp {vr(vF)}, {vr(vAD)}, {vr(vC8)} {bc_(a, 3)}")
            e(f"  v_add_u32_dpp {vr(vF)}, {vr(vAD)}, {vr(vC8)} {bc_(a + 1, 12)}")
            sincos(d, invY)
            e(f"  ds_write_b128 {vr(vF)}, {vr(d, 4)} offset:{TB + 256}")
        else:
            a += i % 3 // 2
            e(f"  v_mov_b32_dpp {vr(pos)}, {vr(vRF)} {bc_(a, 15)}")
            e(f"  v_add_u32_dpp {vr(vF)}, {vr(vAD)}, {vr(vC16)} {bc_(a, 15)}")
            sincos(d, invX)
            e(f"  ds_write_b128 {vr(vF)}, {vr(d, 4)} offset:{TB}")

    def tab_read(a):
        for n in range(3 * a, 3 * a + 3):
            d = tab + 12 * (a & 1) + 4 * (n % 3)
            if n in SPECIAL:
                e(f"  ds_read_b128 {vr(d, 4)}, {vr(vTA + 3 + SPECIAL[n])}")
            else:
                e(f"  ds_read_b128 {vr(d, 4)}, {vr(vTA + TN[n])} offset:{toff_(n)}")

    c_hi = f32bits(1 / (2 * math.pi))
    c_lo = f32bits(1 / (2 * math.pi) - struct.unpack("<f", struct.pack("<I", c_hi))[0])
    e(f"  v_mov_b32 {vr(tK)}, {c_hi:#x}")
    e(f"  v_mov_b32 {vr(tK + 1)}, {f32bits(1.5 * 2 ** 23):#x}")
    e(f"  v_mov_b32 {vr(tK + 2)}, {c_lo:#x}")
    k_loads(kp[0])
    pf()
    e(f"  s_waitcnt vmcnt({nk[0]})")
    pf()
    for i in range(12):
        if i == P.su:
            setup()
            pf()
        if i < P.nch:
            chunk(i)
        k_loads(kp[i + 1])
        if i % 3 == 2:
            pf()
    k_loads(PRE)
    e(f"  v_mov_b32 {vr(bc)}, {f32bits(-7.5):#x}")
    e("  s_waitcnt lgkmcnt(0)")
    e("  s_barrier")
    pf()
    for k in range(3):
        e(f"  ds_read_b128 {vr(qa + 4 * k, 4)}, {vr(vQA + k)}")
    tab_read(0)
    e(f"  s_waitcnt vmcnt({PRE - ORD['K'][:ORD['K'].index('L')].count('b')})")
    pf()
    if P.tfine:
        e("  s_waitcnt lgkmcnt(0)")
        for k in range(pfn[0]):
            e(f"  v_writelane_b32 {vr(vtr)}, s{PFR[k]}, {k}")
        e(f"  s_mov_b32 m0, {pfn[0]}")

    def vfirst():
        e(f"  s_and_b32 s{sH}, s{sVO}, 15")
        e(f"  s_add_u32 s{sNEED}, s{sH}, 1")
        if "f" in P.xp:
            e(f"  s_mov_b32 s{sNEED}, 1")
        e(f"  ds_read_b32 {vr(vF)}, {vr(vZ)} offset:{FL + 20}")
        flagwait("a0", FL + 20)
        e(f"  s_mulk_i32 s{sH}, 1536")
        for k in range(2):
            e(f"  v_add_u32 {vr(vLV + k)}, s{sH}, {vr(vLB + k)}")
        e(f"  ds_read_b32 {vr(A)}, {vr(vLV)}")

    assert all(x[3] < 14 for x in sch) or "f" in P.xp

    def knext():
        e("; next SRD: K head k + 1, or the V heads of steps 0 / 1 once K runs out")
        e(f"  s_add_u32 s{sH}, s{sK}, 1")
        e(f"  s_sub_u32 s{sT1}, s{sH}, 16")
        vstep_k(sF, sT1)
        e(f"  s_cmp_lt_u32 s{sH}, 16")
        e(f"  s_cselect_b32 s{sH}, s{sH}, s{sF}")
        e(f"  s_cselect_b32 s{sX}, s{sQK}, s{sQV}")
        e(f"  s_cselect_b32 s{sX + 1}, s{sQK + 1}, s{sQV + 1}")
        head_of(sH, sH)
        srd_head(rB, sX, sH)

    def kred(n):
        dpp = lambda d, x, how, m: e(f"  v_add_f32_dpp {vr(d)}, {vr(x)}, {vr(x)} {how} row_mask:0xf bank_mask:{m:#x}")
        dpp(M1, dacc, "row_ror:8", 12 if n & 1 else 3)
        if n % 2 == 1:
            e("  s_nop 1")
            dpp(M2, M1, "row_half_mirror", 10 if n & 2 else 5)
        if n % 4 == 3:
            e("  s_nop 1")
            dpp(M2 if n & 4 else M3, M2, "quad_perm:[2,3,0,1]", 15)
        if n % 8 == 7:
            e(f"  v_cndmask_b32_e64 {vr(M3)}, {vr(M3)}, {vr(M2)}, s[{sMSK}:{sMSK + 1}]")
            e("  s_nop 1")
            dpp((LG, M3, LG + 1)[n >> 3], M3, "quad_perm:[1,0,3,2]", 15)
        if n == 15:
            e(f"  v_cndmask_b32_e64 {vr(LG)}, {vr(LG)}, {vr(M3)}, s[{sMSK + 2}:{sMSK + 3}]")

    e(".p2align 6")
    e("L_k:")

    def kbody(n):
        k_, q_ = ring + 4 * n, qa + 4 * TN[n]
        for i in range(4):
            e(f"  v_dot2_f32_bf16 {vr(wt + i)}, {vr(tab + 12 * (n // 3 & 1) + 4 * (n % 3) + i)}, {vr(q_ + i)}, 0")
        for i in range(4):
            e(f"  v_cvt_f32_i32 {vr(k_ + i)}, {vr(k_ + i)}")
        if n >= 21:
            e(f"  ds_read_b128 {vr(q_, 4)}, {vr(vQA + TN[n])}")
        for h in range(2):
            e(f"  v_pk_add_f32 {vr(k_ + 2 * h, 2)}, {vr(k_ + 2 * h, 2)}, {vr(bc, 2)} op_sel_hi:[1,0]")
        e(f"  v_pk_mul_f32 {vr(dacc, 2)}, {vr(k_, 2)}, {vr(wt, 2)}")
        e(f"  v_pk_fma_f32 {vr(dacc, 2)}, {vr(k_ + 2, 2)}, {vr(wt + 2, 2)}, {vr(dacc, 2)}")
        e(f"  v_add_f32 {vr(dacc)}, {vr(dacc)}, {vr(dacc + 1)}")

    def kout():
        e(f"  v_mov_b32 {vr(vF)}, s{sK}")
        for k in range(2):
            e(f"  ds_write_b32 {vr(vLG + k)}, {vr(LG + k)}")
        e(f"  ds_write_b32 {vr(vPW)}, {vr(vF)} offset:{FL}")

    def group(ph, a, body, after, res):
        nb, pend = 3 * a, None
        od = ORD[ph]
        for i, c in enumerate(od):
            if pend is not None and c != "L":
                if od[i - 1] == "b":
                    e("  s_nop 1")
                after(pend)
                pend = None
            if c == "E":
                evaluate(ph, a)
                if od[i + 1] != "X":
                    decide(ph, a)
            if c == "X":
                exchange(a)
                if od[i - 1] == "E":
                    decide(ph, a)
            if c == "R" and a == 0:
                res()
            if c == "b":
                body(nb)
                pend = nb if after else None
                nb += 1
            if c == "L":
                issue(ph, a, i)
        if pend is not None:
            if od[-1] == "b":
                e("  s_nop 1")
            after(pend)

    for a in range(8):
        if a == 7:
            flagwait("qn", FL + 16)
        else:
            e("  s_waitcnt lgkmcnt(0)")
        tab_read((a + 1) % 8)
        if a == 6:
            e(f"  ds_read_b32 {vr(vF)}, {vr(vZ)} offset:{FL + 16}")
        group("K", a, kbody, kred, kout)
        if a == 1:
            knext()
        if a == 3:
            e(f"  s_add_u32 s{sT0}, s{sK}, 2")
            e(f"  s_min_u32 s{sNEED}, s{sT0}, 16")
            for k in range(3):
                e(f"  v_add_u32 {vr(vQA + k)}, 768, {vr(vQA + k)}")
            for k in range(2):
                e(f"  v_add_u32 {vr(vLG + k)}, 1536, {vr(vLG + k)}")
            e(f"  s_cmp_eq_u32 s{sK}, 15")
            e("  s_cbranch_scc1 L_kv")
            e("L_kw:")
        if a in (3, 7) or P.tfine:
            tr()
    assert sorted(TN[21:]) == [0, 1, 2] and TN[:3] == TN[3:6] and sorted(TN[:3]) == [0, 1, 2] and PRE <= 18
    e(f"  s_add_u32 s{sK}, s{sK}, 1")
    e(f"  s_mov_b64 s[{rA}:{rA + 1}], s[{rB}:{rB + 1}]")
    e(f"  s_cmp_lt_u32 s{sK}, 16")
    e("  s_cbranch_scc1 L_k")


    def vbody(n):
        v_ = ring + 4 * n
        e(f"  v_mov_b32_dpp {vr(bc)}, {vr(A + n // 16)} row_newbcast:{rev(n % 16, 4)} row_mask:0xf bank_mask:0xf")
        for i in range(4):
            e(f"  v_cvt_f32_i32 {vr(v_ + i)}, {vr(v_ + i)}")
        for h in range(2):
            d = 4 * TN[n] + 2 * h
            if n < 3:
                e(f"  v_pk_mul_f32 {vr(tmp + d, 2)}, {vr(v_ + 2 * h, 2)}, {vr(bc, 2)} op_sel_hi:[1,0]")
            else:
                e(f"  v_pk_fma_f32 {vr(acc + d, 2)}, {vr(v_ + 2 * h, 2)}, {vr(bc, 2)}, {vr((tmp if n < 6 else acc) + d, 2)} op_sel_hi:[1,0,1]")

    def vout(last=False):
        for j in range(3):
            e(f"  v_permlane32_swap_b32 {vr(acc + 4 * j)}, {vr(acc + 4 * j + 2)}")
            e(f"  v_permlane32_swap_b32 {vr(acc + 4 * j + 1)}, {vr(acc + 4 * j + 3)}")
        for j in range(3):
            e(f"  v_add_f32 {vr(acc + 4 * j)}, {vr(acc + 4 * j)}, {vr(acc + 4 * ((j + 1) % 3) + 2)}")
            e(f"  v_add_f32 {vr(acc + 4 * j + 1)}, {vr(acc + 4 * j + 1)}, {vr(acc + 4 * ((j + 1) % 3) + 3)}")
        for j in range(3):
            e(f"  v_permlane16_swap_b32 {vr(acc + 4 * j)}, {vr(acc + 4 * j + 1)}")
        for j in range(3):
            e(f"  v_add_f32 {vr(acc + 4 * j)}, {vr(acc + 4 * j)}, {vr(acc + 4 * ((j + 2) % 3) + 1)}")
        for j in range(3):
            e(f"  ds_write_b32 {vr(vPA + j)}, {vr(acc + 4 * j)}")
        if not last:
            e(f"  ds_write_b32 {vr(vPW)}, {vr(M1)} offset:{FL}")

    def vnext():
        e(f"  s_add_u32 s{sT1}, s{sK}, 1")
        e(f"  s_min_u32 s{sT1}, s{sT1}, 15")
        vstep_k(sH, sT1)
        e(f"  s_add_u32 s{sNEED}, s{sH}, 1")
        e(f"  s_mul_i32 s{sF}, s{sH}, 1536")
        head_of(sH, sH)
        srd_head(rB, sQV, sH)
        for k in range(2):
            e(f"  v_add_u32 {vr(vLV + k)}, s{sF}, {vr(vLB + k)}")

    NS, NT = (PRE - PD) // 3, 8 - PD // 3
    assert NS == 1 and NT <= 5 and max(P.mg, P.ml) <= 3 * NT
    e("L_vpre:")
    kout()
    e(f"  s_mov_b32 s{sK}, 0")
    e(f"  v_mov_b32 {vr(M1)}, 16")
    for n in range(3):
        e(f"  s_waitcnt vmcnt({plain[384 + n]})")
        vbody(n)
    e(f"  s_waitcnt vmcnt({plain[387]}) lgkmcnt(0)")
    e("  s_branch L_v1")
    flush()
    e("L_kv:")
    vfirst()
    e("  s_branch L_kw")
    flush()
    e(".p2align 6")
    e("L_v:")
    for a in range(8):
        if a == 1:
            e("L_v1:")
            e(f"  ds_read_b32 {vr(A + 1)}, {vr(vLV + 1)}")
        if a == NT:
            e(f"  s_cmp_eq_u32 s{sK}, 15")
            e("  s_cbranch_scc1 L_vt")
        if a in (5, 7):
            e("  s_waitcnt lgkmcnt(0)")
        if a == 5:
            e(f"  ds_read_b32 {vr(vF)}, {vr(vZ)} offset:{FL + 20}")
        if a == 6:
            flagwait("an", FL + 20)
            e(f"  ds_read_b32 {vr(A)}, {vr(vLV)}")
        group("V", a, vbody, None, vout)
        if a == 1:
            vnext()
        if a == 3:
            e(f"  v_add_u32 {vr(M1)}, 1, {vr(M1)}")
            for j in range(3):
                e(f"  v_add_u32 {vr(vPA + j)}, 3072, {vr(vPA + j)}")
        if a in (3, 7):
            tr()
    e(f"  s_add_u32 s{sK}, s{sK}, 1")
    e(f"  s_mov_b64 s[{rA}:{rA + 1}], s[{rB}:{rB + 1}]")
    e("  s_branch L_v")
    flush()
    e("L_vt:")
    e("  s_waitcnt lgkmcnt(0)")
    for n in range(3 * NT, 24):
        e(f"  s_waitcnt vmcnt({plain[744 + n]})")
        vbody(n)
    tr()
    e("  s_nop 1")
    vout(True)
    e("  s_waitcnt lgkmcnt(0)")
    e("  s_barrier")
    if P.trace:
        e(f"  s_mul_i32 s8, s2, {5 * 256}")
        e("  s_add_u32 s8, s8, 0x100000")
        e(f"  v_lshl_add_u32 {vr(t0)}, v0, 2, s8")
        e(f"  global_store_dword {vr(t0)}, {vr(vtr)}, s[{sWS}:{sWS + 1}]")
    e("  s_endpgm")

    HP = [20, 22, 24, 8, 34, 36, 38, 72]
    ms = [m for m in range(P.r0, P.r1 + 1) if m < P.rf or m > P.rt or (m - P.r0) % P.rp == 0]
    gain = [(P.kp0 if m <= P.kn else P.kp) if m in ms else 0 for m in range(32)]
    if P.rk:
        gain = [int(c, 16) for c in P.rk]
        assert len(gain) == 32 and not any(gain[:P.r0]) and not gain[31]
    msk = sum(1 << m for m in range(32) if gain[m])

    def hp(k):
        if P.hprof:
            e(f"  s_memrealtime s[{HP[k]}:{HP[k] + 1}]")

    def progwait(name, slp, off=FL):
        e(f"L_{name}:")
        e(f"  ds_read_b128 {vr(pr, 4)}, {vr(vZ)} offset:{off}")
        e("  s_waitcnt lgkmcnt(0)")
        e(f"  v_min_u32 {vr(pr)}, {vr(pr)}, {vr(pr + 1)}")
        e(f"  v_min3_u32 {vr(pr)}, {vr(pr)}, {vr(pr + 2)}, {vr(pr + 3)}")
        e("  s_nop 0")
        e(f"  v_readfirstlane_b32 s{sF}, {vr(pr)}")
        e(f"  s_cmp_ge_u32 s{sF}, s{sNEED}")
        e(f"  s_cbranch_scc1 L_{name}_ok")
        budget(f"L_{name}_ok")
        if slp:
            e(f"  s_sleep {slp}")
        e(f"  s_branch L_{name}")
        e(f"L_{name}_ok:")

    def rowred(op, v):
        for n in (8, 4, 2, 1):
            e("  s_nop 1")
            e(f"  {op}_dpp {vr(v)}, {vr(v)}, {vr(v)} row_ror:{n} row_mask:0xf bank_mask:0xf")

    def allred(op, v, t):
        rowred(op, v)
        for sw in ("v_permlane16_swap_b32", "v_permlane32_swap_b32"):
            e(f"  v_mov_b32 {vr(t)}, {vr(v)}")
            e("  s_nop 1")
            e(f"  {sw} {vr(v)}, {vr(t)}")
            e(f"  {op} {vr(v)}, {vr(v)}, {vr(t)}")

    def sum_partials(nq):
        w = 4 * nq
        for k in range(4):
            for q in range(nq):
                e(f"  ds_read_b128 {vr(x + w * k + 4 * q, 4)}, {vr(h0)} offset:{768 * k + 16 * q}")
        e(f"  ds_read_b128 {vr(z4, 4)}, {vr(h1)} offset:{ST}")
        e("  s_waitcnt lgkmcnt(0)")
        for h in range(0, w, 2):
            e(f"  v_pk_add_f32 {vr(x + h, 2)}, {vr(x + h, 2)}, {vr(x + w + h, 2)}")
            e(f"  v_pk_add_f32 {vr(x + 2 * w + h, 2)}, {vr(x + 2 * w + h, 2)}, {vr(x + 3 * w + h, 2)}")
        for h in range(0, w, 2):
            e(f"  v_pk_add_f32 {vr(x + h, 2)}, {vr(x + h, 2)}, {vr(x + 2 * w + h, 2)}")
        for h in range(0, w, 2):
            e(f"  v_pk_add_f32 {vr(x + h, 2)}, {vr(x + h, 2)}, {vr(z4 + 2, 2)} op_sel_hi:[1,0] neg_lo:[0,1] neg_hi:[0,1]")

    def mark(tag):
        if P.sd:
            e("  s_memrealtime s[16:17]")
            e("  s_waitcnt lgkmcnt(0)")
            e("  s_sub_u32 s19, s16, s18")
            e("  s_mov_b32 s18, s16")
            e(f"  s_add_u32 s16, s{sNEED}, {64 - P.sd}")
            e("  s_and_b32 s17, s16, 1")
            e("  s_lshl_b32 s17, s17, 4")
            e("  s_min_u32 s19, s19, 510")
            e("  s_lshl_b32 s19, s19, s17")
            e("  s_lshr_b32 m0, s16, 1")
            e(f"  v_readlane_b32 s17, {vr(vCL)}, m0")
            e("  s_add_u32 s17, s17, s19")
            e(f"  v_writelane_b32 {vr(vCL)}, s17, m0")
        if not P.enc:
            return
        for k, m in enumerate(P.enc.split(",")[:2]):
            e(f"  s_cmp_eq_u32 s{sNEED}, {m}")
            e(f"  s_cbranch_scc0 L_mk{tag}{k}")
            e(f"  s_memrealtime s[{16 + 2 * k}:{17 + 2 * k}]")
            e(f"L_mk{tag}{k}:")

    def rank_post(tag):
        if not P.ctl:
            return
        e(f"  s_bitcmp1_b32 s{sRF}, s{sNEED}")
        e(f"  s_cbranch_scc0 L_fa{tag}")
        e(f"  s_mul_i32 s{sT0}, s{sNEED}, 384")
        e(f"  s_add_u32 s{sT0}, s{sT0}, {W_RK}")
        e(f"  s_mov_b32 s{sB}, 1")
        e(f"  s_atomic_add s{sB}, s[{sWS}:{sWS + 1}], s{sT0} glc")
        e(f"L_fa{tag}:")

    def rank_take(tag):
        if not P.ctl:
            return
        e(f"  s_bitcmp1_b32 s{sRF}, s{sNEED}")
        e(f"  s_cbranch_scc0 L_fb{tag}")
        e("  s_waitcnt lgkmcnt(0)")
        e(f"  s_min_u32 s{sF}, s{sB}, 15")
        e(f"  s_lshl_b32 s{sF}, s{sF}, 1")
        e(f"  s_sub_u32 s{sF}, s{sF}, 15")
        gs = sorted(set(gain) - {0})
        e(f"  s_mov_b32 s{sT0}, {gs[0]}")
        for g_ in gs[1:]:
            e(f"  s_bitcmp1_b32 {sum(1 << m for m in range(32) if gain[m] == g_):#x}, s{sNEED}")
            e(f"  s_cselect_b32 s{sT0}, {g_}, s{sT0}")
        e(f"  s_mul_i32 s{sF}, s{sF}, s{sT0}")
        e(f"  s_add_u32 s{sF}, s{sF}, 8")
        e(f"  s_ashr_i32 s{sF}, s{sF}, 4")
        e(f"  v_mov_b32 {vr(vFX)}, s{sF}")
        e("  s_mov_b64 exec, 1")
        e(f"  global_store_dword {vr(vFB)}, {vr(vFX)}, s[{sWS}:{sWS + 1}]")
        e("  s_mov_b64 exec, -1")
        e(f"L_fb{tag}:")

    HPF = [10, 16, 18, 20, 22, 72, 74, 76, 60, 62]
    hpn = [0]

    def hpf():
        if P.tfine:
            e(f"  s_memrealtime s[{HPF[hpn[0]]}:{HPF[hpn[0]] + 1}]")
            hpn[0] += 1

    e("L_helper:")
    e(f"  s_setprio {P.hp0}")
    e(f"  v_and_b32 {vr(h1)}, 32, v0")
    e(f"  v_lshrrev_b32 {vr(h1)}, 1, {vr(h1)}")
    e(f"  v_add_u32 {vr(sg2)}, s{sC}, {vr(h1)}")
    e(f"  v_mad_u32_u24 {vr(ra)}, {vr(sg2)}, s{sNEED}, {vr(vL16)}")
    e(f"  v_lshrrev_b32 {vr(ra)}, 1, {vr(ra)}")
    hv = []

    def half(p, full):
        if p in (2, 3):
            e(f"  s_mov_b32 exec_hi, {0 if p == 2 else full}")
        if p in (5, 6):
            e(f"  s_mov_b32 exec_lo, {0 if p == 5 else full}")

    def sc_early():
        e(f"  s_and_b32 s{sT1}, s2, 7")
        e(f"  v_lshl_add_u32 {vr(wb)}, s{sT1}, 9, {vr(vL16)}")
        e(f"  v_lshl_add_u32 {vr(ra)}, {vr(sg2)}, 12, {vr(wb)}")
        for p in range(1, 8):
            e(f"  v_add_u32 {vr(ra + p)}, {0x20000 * p:#x}, {vr(ra)}")
        for p in range(8):
            half(p, -1)
            for i, sp in enumerate((sKS, sVS)):
                e(f"  s_mov_b32 m0, {SCB + SA * i + 1024 * p}")
                e("  s_nop 0")
                if "s" not in P.xp:
                    e(f"  global_load_lds_dwordx4 {vr(ra + p)}, s[{sp}:{sp + 1}] {P.sf}")
                    hv.append(("s", p))

    for p in range(1, 8):
        e(f"  v_add_u32 {vr(ra + p)}, {12288 * p}, {vr(ra)}")
    e("  s_mov_b32 exec_lo, 0xffffff")
    e("  s_mov_b32 exec_hi, 0xffffff")
    e("  s_waitcnt lgkmcnt(0)")
    hpf()
    for p in range(8):
        half(p, "0xffffff")
        e(f"  global_load_dwordx2 {vr(rec + 4 * p, 2)}, {vr(ra + (0 if 'q' in P.xp else p))}, s[{sQ}:{sQ + 1}] {P.qf}")
        e(f"  global_load_dwordx2 {vr(rec + 4 * p + 2, 2)}, {vr(ra + (0 if 'q' in P.xp else p))}, s[{sQ}:{sQ + 1}] offset:192 {P.qf}")
        hv.extend([("q", p)] * 2)
    e("  s_mov_b64 exec, -1")
    hpf()
    if P.ss == 0:
        sc_early()
    common()
    e(f"  s_load_dword s{sO}, s[{sRT}:{sRT + 1}], 24")
    e(f"  s_load_dwordx2 s[{sOH}:{sOH + 1}], s[{sRT}:{sRT + 1}], 16")
    e(f"  v_mov_b32 {vr(l)}, v0")
    for i in range(4):
        e(f"  v_mov_b32 {vr(z4 + i)}, 0")
    e(f"  ds_write_b128 {vr(vZ)}, {vr(z4, 4)} offset:{FL}")
    e(f"  ds_write_b128 {vr(vZ)}, {vr(z4, 4)} offset:{FL + 16}")
    e(f"  ds_write_b128 {vr(vZ)}, {vr(z4, 4)} offset:{FL + 32}")
    e(f"  ds_write_b128 {vr(vZ)}, {vr(z4, 4)} offset:{FL + 48}")
    e(f"  s_mov_b32 s{sMASK}, 0xffff0000")
    e(f"  s_mov_b32 s{sSCALE}, {f32bits(math.log2(math.e) / math.sqrt(192.0)):#x}")
    e(f"  v_mad_u32_u24 {vr(wa)}, {vr(h1)}, 48, {vr(vL16)}")
    e(f"  v_mov_b32 {vr(vOne)}, 1")
    e(f"  s_waitcnt vmcnt({len(hv)})")
    for k in range(4):
        e(f"  v_lshlrev_b32 {vr(cs + k)}, 16, {vr(pr + k)}")
        e(f"  v_and_b32 {vr(cs + 4 + k)}, s{sMASK}, {vr(pr + k)}")
    e("  s_waitcnt lgkmcnt(0)")
    hpf()
    if P.ctl:
        die_base(sF)
        e(f"  v_lshrrev_b32 {vr(h0)}, {P.cw}, {vr(l)}")
        e(f"  v_lshl_add_u32 {vr(vFX)}, {vr(h0)}, 8, s{sF}")
        e(f"  v_and_b32 {vr(h0)}, {(1 << P.cw) - 1}, {vr(l)}")
        e(f"  v_lshl_add_u32 {vr(vFX)}, {vr(h0)}, 4, {vr(vFX)}")
        e(f"  s_and_b32 s{sT1}, s{sSE}, 2")
        e(f"  s_lshl_b32 s{sT0}, s{sT1}, 9")
        e(f"  s_add_u32 s{sT0}, s{sT0}, s{sF}")
        e(f"  v_add_u32 {vr(vEL)}, s{sT0}, {vr(l)}")
        e(f"  s_lshl_b32 s{sT1}, s{sT1}, 1")
        e(f"  s_add_u32 s{sF}, s{sF}, s{sT1}")
        e(f"  s_add_u32 s{sF}, s{sF}, 2048")
        e(f"  v_mov_b32 {vr(vFB)}, s{sF}")
        e(f"  v_mul_u32_u24 {vr(vFA)}, 384, {vr(l)}")
        e(f"  v_add_u32 {vr(vFA)}, {W_RK}, {vr(vFA)}")
        e(f"  s_mov_b32 s{sRF}, 0")

    def ctl_init():
        if not P.ctl:
            return
        if P.cw == 1:
            e("  s_mov_b64 exec, 0x3ffff")
        if P.cw == 2:
            e("  s_mov_b32 exec_hi, 15")
        if P.cl == 1:
            e(f"  global_load_dword {vr(vCNT)}, {vr(vFX)}, s[{sWS}:{sWS + 1}] sc1")
            hv.append(("c", 0))
        e(f"  global_store_dwordx4 {vr(vFX)}, {vr(z4, 4)}, s[{sWS}:{sWS + 1}]")
        if P.cw == 3:
            e("  s_mov_b64 exec, 0xff")
            e(f"  global_store_dwordx4 {vr(vFX)}, {vr(z4, 4)}, s[{sWS}:{sWS + 1}] offset:2048")
        if P.cl == 2:
            e(f"  global_load_dword {vr(vCNT)}, {vr(vFX)}, s[{sWS}:{sWS + 1}] sc1")
            hv.append(("c", 0))
        e("  s_mov_b64 exec, -1")

    def elect():
        if not P.ctl:
            return
        e(f"  s_cmp_eq_u32 s{sNEED}, {P.r0 - 1}")
        e("  s_cbranch_scc0 L_el")
        e(f"  s_bitcmp0_b32 s{sSE}, 0")
        e("  s_cbranch_scc0 L_el")
        e("  s_mov_b64 exec, 0xffff")
        e(f"  global_load_ubyte {vr(vFX)}, {vr(vEL)}, s[{sWS}:{sWS + 1}] sc1")
        e("  s_waitcnt vmcnt(0)")
        e(f"  v_cmp_ne_u32 s[{sZ}:{sZ + 1}], 0, {vr(vFX)}")
        e(f"  s_lshr_b32 s{sT0}, s{sZ}, s{sCU}")
        e(f"  s_bcnt1_i32_b32 s{sT0}, s{sT0}")
        pat = sum(1 << m for m in range(0, 32, P.rotl))
        e(f"  s_sub_u32 s{sT1}, s{sT0}, 1")
        e(f"  s_cmp_lt_u32 s{sT1}, {P.rotl}")
        e("  s_cbranch_scc0 L_el")
        e(f"  s_lshl_b32 s{sRF}, {pat:#x}, s{sT1}")
        e(f"  s_and_b32 s{sRF}, s{sRF}, {msk:#x}")
        e("L_el:")
        e("  s_mov_b64 exec, -1")

    def patch(what):
        e(f"  s_bfe_u32 s{sT0}, s{sCN + 1}, {(4 << 16) | 8:#x}")
        e(f"  s_bfe_u32 s{sT1}, s{sCN}, {(4 << 16) | 20:#x}")
        e(f"  s_addk_i32 s{sT0}, 160")
        e(f"  s_addk_i32 s{sT1}, 80")
        for p, sh_, ex in ((5, sT0, "exec_hi"), (2, sT1, "exec_lo")):
            if what == "q":
                e(f"  s_mulk_i32 s{sh_}, 384")
                e(f"  v_lshrrev_b32 {vr(h0)}, 1, {vr(vL16)}")
                e(f"  v_add_u32 {vr(h0)}, s{sh_}, {vr(h0)}")
                qmask(1)
                e(f"  s_mov_b32 {ex}, 0")
                e(f"  global_load_dwordx2 {vr(rec + 4 * p, 2)}, {vr(h0)}, s[{sQ}:{sQ + 1}]")
                e(f"  global_load_dwordx2 {vr(rec + 4 * p + 2, 2)}, {vr(h0)}, s[{sQ}:{sQ + 1}] offset:192")
                hv.extend([("q", p)] * 2)
            else:
                e(f"  v_lshl_add_u32 {vr(h0)}, s{sh_}, 12, {vr(wb)}")
                e(f"  s_mov_b32 {ex}, 0")
                for i, sp in enumerate((sKS, sVS)):
                    e(f"  s_mov_b32 m0, {SCB + SA * i + 1024 * p}")
                    e("  s_nop 0")
                    if "s" not in P.xp:
                        e(f"  global_load_lds_dwordx4 {vr(h0)}, s[{sp}:{sp + 1}] {P.sf}")
                        hv.append(("s", p))
            qmask(0)

    def qmask(on):
        if on:
            e("  s_mov_b32 exec_lo, 0xffffff")
            e("  s_mov_b32 exec_hi, 0xffffff")
        else:
            e("  s_mov_b64 exec, -1")

    def rotate(p):
        L, Hh, LC, HS, HC, LS = x, x + 4, x + 8, x + 12, x + 16, x + 20
        qmask(1)
        if p == 0:
            hpf()
        if not ("n" in P.xp and p == 0):
            e(f"  s_waitcnt vmcnt({hv[::-1].index(('q', p))})")
        if p == 0:
            hpf()
        for k in range(4):
            e(f"  v_lshlrev_b32 {vr(L + 2 * k)}, 16, {vr(rec + 4 * p + k)}")
            e(f"  v_and_b32 {vr(L + 2 * k + 1)}, s{sMASK}, {vr(rec + 4 * p + k)}")
        for d, q_, t_ in ((LC, L, cs), (HS, Hh, cs + 4), (HC, Hh, cs), (LS, L, cs + 4)):
            for h in (0, 2):
                e(f"  v_pk_mul_f32 {vr(d + h, 2)}, {vr(q_ + h, 2)}, {vr(t_ + h, 2)}")
        for i in range(4):
            e(f"  v_cvt_pk_bf16_f32 {vr(L + i)}, {vr(LC + i)}, {vr(HS + i)}")
            e(f"  v_cvt_pk_bf16_f32 {vr(Hh + i)}, {vr(HC + i)}, {vr(LS + i)}")
        for k in range(8):
            e(f"  v_lshlrev_b32 {vr(LC + k)}, 16, {vr(L + k)}")
            e(f"  v_and_b32 {vr(L + k)}, s{sMASK}, {vr(L + k)}")
        for h in (0, 2):
            e(f"  v_pk_add_f32 {vr(L + h, 2)}, {vr(LC + h, 2)}, {vr(L + h, 2)} neg_lo:[0,1] neg_hi:[0,1]")
            e(f"  v_pk_add_f32 {vr(Hh + h, 2)}, {vr(HS + h, 2)}, {vr(Hh + h, 2)}")
        for i in range(4):
            e(f"  v_cvt_pk_bf16_f32 {vr(LC + i)}, {vr(L + i)}, {vr(Hh + i)}")
            e(f"  v_cvt_pk_bf16_f32 {vr(HS + i)}, {vr(Hh + i)}, -{vr(L + i)}")
        e(f"  v_mov_b32 {vr(h0)}, {2 * p + 2}")
        e(f"  ds_write_b128 {vr(wa)}, {vr(LC, 4)} offset:{QB + 1536 * p}")
        e(f"  ds_write_b128 {vr(wa)}, {vr(HS, 4)} offset:{QB + 1536 * p + 384}")
        e(f"  ds_write_b32 {vr(vZ)}, {vr(h0)} offset:{FL + 16}")
        qmask(0)

    ctl_init()
    patch("q")
    e(f"  s_lshl_b32 s{sT0}, s{sJ}, 10")
    e(f"  s_add_u32 s{sT0}, s{sT0}, L_hpos-L_pc")
    e(f"  v_add_u32 {vr(h0)}, s{sT0}, {vr(vT16)}")
    e(f"  global_load_dwordx4 {vr(st4, 4)}, {vr(h0)}, s[{sZ}:{sZ + 1}]")
    hv.append(("h", 0))
    if P.ss == 1:
        sc_early()
    if P.ss <= 1:
        patch("s")
    rotate(0)
    hpf()
    if P.ss == 2:
        sc_early()
        patch("s")
    e("  s_waitcnt lgkmcnt(0)")
    e("  s_setprio 0")
    hpf()
    e("  s_barrier")
    hpf()
    if P.ss == 3:
        sc_early()
        patch("s")
    for p in range(1, 8):
        rotate(p)
    e(f"  v_mov_b32 {vr(vSa)}, 0")
    e(f"  v_min_u32 {vr(u)}, 47, {vr(l)}")
    e(f"  v_lshlrev_b32 {vr(vL16)}, 4, {vr(u)}")
    for i in range(4):
        e(f"  v_mov_b32 {vr(sc + i)}, 0")
    e(f"  s_mov_b32 s{sNEED}, 1")
    e("  s_cmp_eq_u32 s2, 0")
    e("  s_cbranch_scc0 L_rc")
    e(f"  v_mov_b32 {vr(h0)}, {W_REC + P.pit * place(0) + 15 * 384 + 4}")
    e(f"  global_load_dword {vr(h1)}, {vr(h0)}, s[{sWS}:{sWS + 1}] sc1")
    if P.ctl:
        e(f"  s_mov_b64 exec, {msk:#x}")
        e(f"  global_store_dword {vr(vFA)}, {vr(vZ)}, s[{sWS}:{sWS + 1}] sc1")
    e("  s_mov_b64 exec, 1")
    e("  s_waitcnt vmcnt(0)")
    e(f"  v_and_b32 {vr(qn)}, 0x77777777, {vr(h1)}")
    e(f"  v_and_b32 {vr(h1)}, 0x88888888, {vr(h1)}")
    e(f"  v_add_u32 {vr(qn)}, 0x11111111, {vr(qn)}")
    e(f"  v_xor_b32 {vr(qn)}, {vr(qn)}, {vr(h1)}")
    e(f"  v_mov_b32 {vr(qn + 1)}, 1")
    e(f"  global_store_dwordx2 {vr(vZ)}, {vr(qn, 2)}, s[{sDBG}:{sDBG + 1}] sc1")
    e("  s_mov_b64 exec, -1")
    e("L_rc:")
    hpf()
    e("  s_waitcnt vmcnt(0)")
    hpf()
    if P.tfine:
        e("  s_waitcnt lgkmcnt(0)")
        e(f"  v_mov_b32 {vr(h0)}, 0")
        for k in range(hpn[0]):
            e(f"  v_writelane_b32 {vr(h0)}, s{HPF[k]}, {k}")
        e(f"  s_mul_i32 s{sT0}, s2, {5 * 256}")
        e(f"  s_add_u32 s{sT0}, s{sT0}, {0x100000 + 1024}")
        e(f"  v_lshl_add_u32 {vr(h1)}, v0, 2, s{sT0}")
        e(f"  global_store_dword {vr(h1)}, {vr(h0)}, s[{sWS}:{sWS + 1}]")
    for k in range(4):
        e(f"  v_and_b32 {vr(ro + 2 * k)}, 0xffff, {vr(st4 + k)}")
        e(f"  v_lshrrev_b32 {vr(ro + 2 * k + 1)}, 16, {vr(st4 + k)}")
    for k in range(2):
        e(f"  v_add_u32 {vr(ro + 6 + k)}, {SCB}, {vr(ro + 6 + k)}")
    if P.sd:
        e(f"  v_mov_b32 {vr(vCL)}, 0")
    e("L_hk:")
    for a in range(2):
        for k in range(2):
            e(f"  ds_read_u16_d16_hi {vr(sc + 2 * a + k)}, {vr(ro + 6 + k)} offset:{SA * a}")
    progwait("hsw", P.psk)
    mark("s")
    rank_post("s")
    for k in range(6):
        e(f"  ds_read_b32 {vr(x + 4 + k)}, {vr(ro + k)} offset:{LGB}")
    e(f"  v_mul_f32 {vr(x + 2)}, s{sSCALE}, {vr(sc)}")
    e(f"  v_mul_f32 {vr(x + 3)}, s{sSCALE}, {vr(sc + 1)}")
    e("  s_waitcnt lgkmcnt(0)")
    e(f"  v_pk_add_f32 {vr(x, 2)}, {vr(x + 4, 2)}, {vr(x + 6, 2)}")
    e(f"  v_pk_add_f32 {vr(x, 2)}, {vr(x, 2)}, {vr(x + 8, 2)}")
    e(f"  v_mul_f32 {vr(x)}, {vr(x)}, {vr(x + 2)}")
    e(f"  v_mul_f32 {vr(x + 1)}, {vr(x + 1)}, {vr(x + 3)}")
    e(f"  v_max_f32 {vr(z4)}, {vr(x)}, {vr(x + 1)}")
    allred("v_max_f32", z4, h0)
    e(f"  v_sub_f32 {vr(x)}, {vr(x)}, {vr(z4)}")
    e(f"  v_sub_f32 {vr(x + 1)}, {vr(x + 1)}, {vr(z4)}")
    e(f"  v_exp_f32 {vr(x)}, {vr(x)}")
    e(f"  v_exp_f32 {vr(x + 1)}, {vr(x + 1)}")
    e("  s_nop 0")
    e(f"  v_add_f32 {vr(z4 + 1)}, {vr(x)}, {vr(x + 1)}")
    e(f"  v_mul_f32 {vr(x)}, {vr(x)}, {vr(sc + 2)}")
    e(f"  v_mul_f32 {vr(x + 1)}, {vr(x + 1)}, {vr(sc + 3)}")
    e(f"  v_add_f32 {vr(z4 + 2)}, {vr(x)}, {vr(x + 1)}")
    for k in range(6):
        e(f"  ds_write_b32 {vr(ro + k)}, {vr(x + (k & 1))} offset:{LGB}")
    e(f"  v_mul_f32 {vr(z4 + 2)}, {f32bits(7.5):#x}, {vr(z4 + 2)}")
    allred("v_add_f32", z4 + 1, h0)
    allred("v_add_f32", z4 + 2, h0)
    e(f"  v_mov_b32 {vr(h0)}, s{sNEED}")
    e(f"  ds_write_b128 {vr(vSa)}, {vr(z4, 4)} offset:{ST}")
    e(f"  ds_write_b32 {vr(vZ)}, {vr(h0)} offset:{FL + 20}")
    e(f"  v_add_u32 {vr(vSa)}, 16, {vr(vSa)}")
    for k in range(8):
        e(f"  v_add_u32 {vr(ro + k)}, {1536 if k < 6 else SL}, {vr(ro + k)}")
    rank_take("s")
    elect()
    e("  s_waitcnt lgkmcnt(0)")
    e(f"  s_add_u32 s{sNEED}, s{sNEED}, 1")
    e(f"  s_cmp_le_u32 s{sNEED}, 16")
    e("  s_cbranch_scc1 L_hk")

    e(f"  v_and_b32 {vr(h2)}, 15, {vr(l)}")
    e(f"  v_lshlrev_b32 {vr(h2)}, 1, {vr(h2)}")
    e(f"  global_load_ushort {vr(h3)}, {vr(h2)}, s[{sRT}:{sRT + 1}] offset:32")
    e(f"  s_mov_b32 s{sK}, 0")
    e(f"  v_min_u32 {vr(wa)}, 23, {vr(l)}")
    e(f"  v_lshlrev_b32 {vr(wa)}, 4, {vr(wa)}")
    e(f"  v_lshlrev_b32 {vr(h0)}, 1, {vr(wa)}")
    e(f"  v_add_u32 {vr(h0)}, {PB}, {vr(h0)}")
    e(f"  v_add_u32 {vr(wa)}, {PK}, {vr(wa)}")
    e(f"  v_lshlrev_b32 {vr(sgn)}, 4, {vr(l)}")
    e(f"  s_mul_i32 s{sT0}, s{sOH + 1}, {P.pit}")
    e(f"  s_add_u32 s{sT0}, s{sT0}, {W_REC}")
    e(f"  v_add_u32 {vr(sgx)}, s{sT0}, {vr(sgn)}")
    e(f"  v_add_u32 {vr(sgn)}, {PK}, {vr(sgn)}")
    e(f"  v_add_u32 {vr(sg2)}, 4096, {vr(sgx)}")
    e(f"  v_lshrrev_b32 {vr(u)}, 1, {vr(vL16)}")
    e(f"  s_mul_i32 s{sT0}, s{sOH}, 384")
    e(f"  s_add_u32 s{sOUT}, s{sOUT}, s{sT0}")
    e(f"  s_addc_u32 s{sOUT + 1}, s{sOUT + 1}, 0")
    e(f"  s_lshl_b32 s{sT0}, s{sO}, 4")
    e(f"  s_add_u32 s{sT0}, s{sT0}, {W_REC + 384 * min(15, P.nq)}")
    e(f"  v_add_u32 {vr(h1)}, {W_REC}, {vr(u)}")
    e("  s_waitcnt vmcnt(0)")
    e(f"  v_lshrrev_b32 {vr(h2)}, 4, {vr(h3)}")
    e(f"  v_and_b32 {vr(h3)}, 15, {vr(h3)}")
    e(f"  v_mul_u32_u24 {vr(h2)}, {P.pit}, {vr(h2)}")
    e(f"  v_mul_u32_u24 {vr(h3)}, 384, {vr(h3)}")
    e(f"  v_add_u32 {vr(h3)}, {vr(h2)}, {vr(h3)}")
    e(f"  v_add_u32 {vr(ra + 15)}, s{sT0}, {vr(h2)}")
    e("  s_nop 0")
    for k in range(15):
        e(f"  v_add_u32_dpp {vr(ra + k)}, {vr(h3)}, {vr(h1)} row_newbcast:{k} row_mask:0xf bank_mask:0xf")
    e("L_hp:")
    e(f"  s_min_u32 s{sT0}, s{sO}, 13")
    e(f"  s_cmp_eq_u32 s{sT0}, s{sK}")
    e("  s_cbranch_scc0 L_hc_ok")
    if P.stg:
        e(f"  s_load_dwordx2 s[{sZ}:{sZ + 1}], s[{sDBG}:{sDBG + 1}], 0 glc")
        e("  s_waitcnt lgkmcnt(0)")
        e(f"  s_mov_b32 s{sTG}, s{sZ}")
        e(f"  s_cmp_eq_u32 s{sZ + 1}, 1")
        e("  s_cbranch_scc1 L_hc_ok")
    e("L_hc:")
    e(f"  global_load_dwordx2 {vr(pr, 2)}, {vr(vZ)}, s[{sDBG}:{sDBG + 1}] sc1")
    e("  s_waitcnt vmcnt(0)")
    e(f"  v_readfirstlane_b32 s{sTG}, {vr(pr)}")
    e(f"  v_readfirstlane_b32 s{sF}, {vr(pr + 1)}")
    e(f"  s_cmp_eq_u32 s{sF}, 1")
    e("  s_cbranch_scc1 L_hc_ok")
    budget("L_hc_ok")
    e("  s_sleep 64")
    e("  s_branch L_hc")
    e("L_hc_ok:")
    vstep_k(sH, sK)
    e(f"  s_lshl_b32 s{sT0}, s{sH}, 4")
    e(f"  v_mov_b32 {vr(h1)}, s{sT0}")
    e(f"  s_add_u32 s{sK}, s{sK}, 1")
    e(f"  s_add_u32 s{sNEED}, s{sK}, 16")
    progwait("hpw", P.psk)
    mark("p")
    hp(0)
    rank_post("p")
    sum_partials(2)
    e(f"  v_max3_f32 {vr(h3)}, |{vr(x)}|, |{vr(x + 1)}|, |{vr(x + 2)}|")
    e(f"  v_max3_f32 {vr(h3)}, {vr(h3)}, |{vr(x + 3)}|, |{vr(x + 4)}|")
    e(f"  v_max3_f32 {vr(h3)}, {vr(h3)}, |{vr(x + 5)}|, |{vr(x + 6)}|")
    e(f"  v_max_f32_e64 {vr(h3)}, {vr(h3)}, |{vr(x + 7)}|")
    allred("v_max_f32", h3, wb)
    e(f"  v_frexp_exp_i32_f32 {vr(h3)}, {vr(h3)}")
    e(f"  v_sub_u32 {vr(wb)}, 14, {vr(h3)}")
    e(f"  v_subrev_u32 {vr(h3)}, 14, {vr(h3)}")
    for i in range(8):
        e(f"  v_ldexp_f32 {vr(x + i)}, {vr(x + i)}, {vr(wb)}")
    for i in range(4):
        e(f"  v_cvt_pk_f16_f32 {vr(fo + i)}, {vr(x + 2 * i)}, {vr(x + 2 * i + 1)}")
    for i in range(4):
        e(f"  v_lshrrev_b32 {vr(x + i)}, 1, {vr(fo + i)}")
        e(f"  v_and_b32 {vr(x + i)}, 0x10001, {vr(x + i)}")
        e(f"  v_add_u32 {vr(fo + i)}, {vr(fo + i)}, {vr(x + i)}")
    e(f"  ds_write_b32 {vr(h1)}, {vr(h3)} offset:{ST + 12}")
    e(f"  v_add_u32 {vr(h0)}, 3072, {vr(h0)}")
    e(f"  ds_write_b128 {vr(wa)}, {vr(fo, 4)}")
    e(f"  v_add_u32 {vr(wa)}, 384, {vr(wa)}")
    rank_take("p")
    if P.pm:
        e(f"  s_lshr_b32 s{sT0}, s{sK}, 1")
        e(f"  s_mul_i32 s{sT0}, s{sT0}, 384")
        e(f"  s_xor_b32 s{sT1}, s{sK}, s{sJ}")
        e(f"  s_bitcmp1_b32 s{sT1}, 0")
        e("  s_mov_b64 exec, 0xffffff")
        e("  s_cbranch_scc0 L_pm0")
        e(f"  s_mul_i32 s{sT1}, s{sJ}, {-16 * P.pit}")
        e(f"  s_add_u32 s{sT0}, s{sT0}, s{sT1}")
        e(f"  s_add_u32 s{sT0}, s{sT0}, {8 * P.pit}")
        e(f"  v_add_u32 {vr(h2)}, s{sT0}, {vr(sgx)}")
        e(f"  global_store_dwordx4 {vr(h2)}, {vr(fo, 4)}, s[{sWS}:{sWS + 1}]")
        if P.pm > 1:
            e(f"  s_cmp_lt_u32 s{sK}, 2")
            e("  s_cbranch_scc1 L_pm0")
            e(f"  s_sub_u32 s{sT0}, s{sK}, 1")
            e(f"  s_lshr_b32 s{sT0}, s{sT0}, 1")
            e(f"  s_mul_i32 s{sT0}, s{sT0}, 384")
            e(f"  v_add_u32 {vr(h2)}, s{sT0}, {vr(sgx)}")
            e(f"  global_load_dwordx4 {vr(rec, 4)}, {vr(h2)}, s[{sWS}:{sWS + 1}] {P.mf}")
        e("L_pm0:")
        e("  s_mov_b64 exec, -1")
    if P.es:
        e(f"  s_cmp_eq_u32 s{sK}, 9")
        e("  s_cbranch_scc0 L_es")
        for k in range(P.es):
            e(f"  global_store_dwordx4 {vr(sg2)}, {vr(blk + 4 * k, 4)}, s[{sWS}:{sWS + 1}] offset:{1024 * k - 1024} sc1")
        e("L_es:")
    if P.er:
        e(f"  s_bfe_u32 s{sT0}, s2, 0x30004")
        e(f"  s_add_u32 s{sT0}, s{sT0}, 10")
        e(f"  s_cmp_eq_u32 s{sK}, s{sT0}")
        e("  s_cbranch_scc0 L_er")
        e(f"  s_cmp_lt_u32 s{sK}, {10 + P.er}")
        e("  s_cbranch_scc0 L_er")
        for k in range(16):
            e(f"  global_load_dwordx2 {vr(rec)[:-0] if False else vr(rec, 2)}, {vr(ra + k)}, s[{sWS}:{sWS + 1}] sc1")
            e("  s_sleep 4")
        e("  s_waitcnt vmcnt(0)")
        e("L_er:")
    e(f"  s_cmp_lt_u32 s{sK}, 15")
    e("  s_cbranch_scc1 L_hp")
    if P.eprio:
        e(f"  s_setprio {P.eprio}")
    for k in range(6):
        e(f"  ds_read_b128 {vr(blk + 4 * k, 4)}, {vr(sgn)} offset:{1024 * k}")
    e(f"  v_subrev_u32 {vr(h2)}, 40, {vr(l)}")
    e(f"  v_and_b32 {vr(h2)}, 15, {vr(h2)}")
    e(f"  v_lshlrev_b32 {vr(h2)}, 4, {vr(h2)}")
    e(f"  ds_read_b128 {vr(st4, 4)}, {vr(h2)} offset:{ST}")
    e(f"  s_mov_b32 s{sMASK}, 0x10001")
    e(f"  v_lshlrev_b32 {vr(h2)}, 3, {vr(l)}")
    e(f"  v_lshrrev_b32 {vr(h2)}, {vr(h2)}, s{sTG}")
    e(f"  v_lshrrev_b32 {vr(h3)}, 1, {vr(u)}")
    e(f"  v_lshrrev_b32 {vr(h3)}, {vr(h3)}, s{sTG}")
    for i in range(6):
        src, k = (h2, i) if i < 4 else (h3, i - 4)
        e(f"  v_bfe_u32 {vr(x + i)}, {vr(src)}, {2 * k}, 2")
        e(f"  v_lshl_or_b32 {vr(x + i)}, {vr(x + i)}, 15, {vr(x + i)}")
        e(f"  v_and_b32 {vr(x + i)}, s{sMASK}, {vr(x + i)}")
    e(f"  v_cmp_gt_u32 vcc, 40, {vr(l)}")
    e("  s_waitcnt lgkmcnt(0)")
    e(f"  v_mov_b32 {vr(st4 + 2)}, {vr(st4 + 1)}")
    e(f"  v_mov_b32 {vr(st4 + 1)}, s{sTG}")
    e(f"  s_mov_b32 s{sT0}, 0xffff")
    e(f"  v_bfi_b32 {vr(st4 + 3)}, s{sT0}, {vr(st4 + 3)}, {vr(st4 + 1)}")
    for k in range(24):
        e(f"  v_bfi_b32 {vr(blk + k)}, s{sMASK}, {vr(x + k % 4)}, {vr(blk + k)}")
    for i in range(4):
        e(f"  v_cndmask_b32 {vr(blk + 20 + i)}, {vr(st4 + i)}, {vr(blk + 20 + i)}, vcc")
    e(f"  s_lshl_b32 s{sH}, s{sO}, 4")
    e(f"  v_mov_b32 {vr(h1)}, s{sH}")
    e(f"  v_add_u32 {vr(h0)}, {PB + 15 * 3072}, {vr(vL16)}")
    e(f"  ds_read_b32 {vr(h1)}, {vr(h1)} offset:{ST + 8}")
    e("  s_waitcnt lgkmcnt(0)")
    if P.mg:
        e("; the stores leave part-way into the last step, where they disturb the read stream least")
        e(f"  s_mov_b32 s{sNEED}, {31 + (P.mg > 12)}")
        progwait("hmw", P.psl, FL + 32)
    hp(1)
    for k in range(6):
        if k == 5:
            e("  s_mov_b32 exec_hi, 0xffffff")
        if k and P.sg:
            e(f"  s_sleep {P.sg}")
        if k == 0 and P.sx:
            e(f"  s_bfe_u32 s{sT0}, s2, 0x30004")
            e("L_sx:")
            e(f"  s_sleep {P.sx}")
            e(f"  s_sub_u32 s{sT0}, s{sT0}, 1")
            e("  s_cbranch_scc0 L_sx")
        if "w" not in P.xp and k < P.ns:
            e(f"  global_store_dwordx4 {vr(sgx if k < 4 else sg2)}, {vr(blk + 4 * k, 4)}, s[{sWS}:{sWS + 1}] offset:{1024 * (k % 4)} {P.wf}")
    e("  s_mov_b64 exec, -1")
    if "r" in P.xp:
        e("  s_branch L_skip")
    if P.er:
        e(f"  s_bfe_u32 s{sT0}, s2, 0x30004")
        e(f"  s_cmp_lt_u32 s{sT0}, {P.er}")
        e("  s_cbranch_scc1 L_skip")
    if "o" in P.xp:
        e(f"  s_mov_b32 s{sSP}, 0")
    if P.rw:
        e("L_hw:")
    if P.ml:
        e(f"  s_mov_b32 s{sNEED}, {31 + (P.ml > 12)}")
        progwait("hlw", P.psl, FL + 48)
    else:
        e(f"  s_waitcnt vmcnt({P.aw})")
    hp(2)
    hp(3)
    if not P.rw:
        e("L_hw:")
    hp(4)
    if P.cnt:
        e(f"  s_mov_b32 s{sF}, 1")
        e(f"  s_atomic_add s{sF}, s[{sDBG}:{sDBG + 1}], 16")
    if P.nl < 15:
        e(f"  s_mov_b64 exec, {(1 << P.nl) - 1}")
    e(f"  global_load_dwordx4 {vr(cs, 4)}, {vr(ra + 15)}, s[{sWS}:{sWS + 1}] sc1")
    if P.nl < 15:
        e("  s_mov_b64 exec, -1")
    for k in range(15):
        if k == P.nl:
            e("  s_mov_b64 exec, 1")
            for kk in range(k, 15):
                e(f"  v_mov_b32 {vr(ra + kk)}, {vr(ra)}")
        if P.lg:
            e(f"  s_sleep {P.lg}")
        e(f"  global_load_dwordx2 {vr(rec + 2 * k, 2)}, {vr(ra + k)}, s[{sWS}:{sWS + 1}] sc1")
    if P.nl < 15:
        e("  s_mov_b64 exec, -1")
    for i in range(4):
        e(f"  v_mov_b32 {vr(fo + i)}, 0")
    e(f"  v_mov_b32 {vr(wb)}, 0")
    budget("L_hy")
    e("  s_waitcnt vmcnt(15)")
    e(f"  v_xor_b32 {vr(h2)}, s{sTG}, {vr(cs + 3)}")
    e(f"  v_xor_b32 {vr(h3)}, s{sTG}, {vr(cs + 1)}")
    e(f"  v_lshrrev_b32 {vr(h2)}, 16, {vr(h2)}")
    e(f"  v_or_b32 {vr(h2)}, {vr(h2)}, {vr(h3)}")
    e(f"  v_cmp_ne_u32 s[{sZ}:{sZ + 1}], 0, {vr(h2)}")
    e(f"  s_cmp_eq_u64 s[{sZ}:{sZ + 1}], 0")
    e("  s_cbranch_scc0 L_hw")
    e("L_hy:")
    e("  s_waitcnt vmcnt(15)")
    hp(5)
    e(f"  v_mov_b32 {vr(h2)}, {vr(cs)}")
    rowred("v_max_f32", h2)
    e(f"  v_sub_f32 {vr(h2)}, {vr(cs)}, {vr(h2)}")
    e(f"  v_exp_f32 {vr(h2)}, {vr(h2)}")
    e(f"  v_bfe_i32 {vr(h3)}, {vr(cs + 3)}, 0, 16")
    e(f"  v_ldexp_f32 {vr(h3)}, {vr(h2)}, {vr(h3)}")
    e(f"  v_mul_f32 {vr(wa)}, {vr(h2)}, {vr(cs + 2)}")
    e(f"  v_readlane_b32 s{sMSK}, {vr(h3)}, 0")
    e(f"  v_readlane_b32 s{sMSK + 15}, {vr(h2)}, 15")
    for k in range(15):
        if k < 14:
            e(f"  v_readlane_b32 s{sMSK + k + 1}, {vr(h3)}, {k + 1}")
        if k < 4:
            e(f"  v_add_f32_dpp {vr(wa)}, {vr(wa)}, {vr(wa)} row_ror:{8 >> k} row_mask:0xf bank_mask:0xf")
        if k == 4:
            e(f"  v_rcp_f32 {vr(wa)}, {vr(wa)}")
        if "z" in P.xp and k < 11:
            continue
        e(f"  s_waitcnt vmcnt({14 - k})")
        for i in range(2):
            e(f"  v_xor_b32 {vr(rec + 2 * k + i)}, {vr(rec + 2 * k + i)}, {vr(x + 4 + i)}")
        for i in range(4):
            e(f"  v_fma_mix_f32 {vr(fo + i)}, {vr(rec + 2 * k + i // 2)}, s{sMSK + k}, {vr(fo + i)} op_sel:[{i & 1},0,0] op_sel_hi:[1,0,0]")
        e(f"  v_or3_b32 {vr(wb)}, {vr(rec + 2 * k)}, {vr(rec + 2 * k + 1)}, {vr(wb)}")
    e(f"  v_and_b32 {vr(wb)}, s{sMASK}, {vr(wb)}")
    e(f"  v_cmp_ne_u32 s[{sZ}:{sZ + 1}], 0, {vr(wb)}")
    e(f"  s_cmp_lg_u32 s{sSP}, 0")
    e(f"  s_cselect_b64 s[{sZ}:{sZ + 1}], s[{sZ}:{sZ + 1}], 0")
    e(f"  s_cmp_eq_u64 s[{sZ}:{sZ + 1}], 0")
    e("  s_cbranch_scc0 L_hw")
    e(f"  v_mul_f32 {vr(h2)}, s{sMSK + 15}, {vr(wa)}")
    e(f"  v_mul_f32 {vr(h3)}, {vr(h2)}, {vr(h1)}")
    for i in range(4):
        e(f"  v_fma_f32 {vr(fo + i)}, {vr(fo + i)}, {vr(wa)}, -{vr(h3)}")
    if "r" in P.xp or P.er:
        e("L_skip:")
    hp(6)
    e("  s_barrier")
    hp(7)
    for k in range(4):
        e(f"  ds_read_b128 {vr(x + 4 * k, 4)}, {vr(h0)} offset:{768 * k}")
    e("  s_waitcnt lgkmcnt(2)")
    for h in (0, 2):
        e(f"  v_pk_add_f32 {vr(x + h, 2)}, {vr(x + h, 2)}, {vr(x + 4 + h, 2)}")
    e("  s_waitcnt lgkmcnt(0)")
    for h in (0, 2):
        e(f"  v_pk_add_f32 {vr(x + 8 + h, 2)}, {vr(x + 8 + h, 2)}, {vr(x + 12 + h, 2)}")
    for h in (0, 2):
        e(f"  v_pk_add_f32 {vr(x + h, 2)}, {vr(x + h, 2)}, {vr(x + 8 + h, 2)}")
    for i in range(4):
        e(f"  v_fmac_f32 {vr(fo + i)}, {vr(h2)}, {vr(x + i)}")
    e(f"  v_cvt_pk_bf16_f32 {vr(fo)}, {vr(fo)}, {vr(fo + 1)}")
    e(f"  v_cvt_pk_bf16_f32 {vr(fo + 1)}, {vr(fo + 2)}, {vr(fo + 3)}")
    e("  s_mov_b32 exec_hi, 0xffff")
    e(f"  global_store_dwordx2 {vr(u)}, {vr(fo, 2)}, s[{sOUT}:{sOUT + 1}] {P.of}")
    if P.sd:
        e(f"  s_mov_b32 s{sNEED}, 32")
        e("  s_mov_b64 exec, -1")
        mark("z")
        e(f"  s_cmp_eq_u32 s{sJ}, 0")
        e("  s_cbranch_scc0 L_sd")
        e(f"  v_lshlrev_b32 {vr(h0)}, 2, {vr(l)}")
        e("  s_mov_b32 exec_lo, 0")
        e("  s_mov_b32 exec_hi, 0x3fff")
        e(f"  global_atomic_add {vr(h0)}, {vr(vCL)}, s[{sDBG}:{sDBG + 1}] offset:-120 sc1")
        e("L_sd:")
    if P.enc:
        m0, m1, base, amp, wg = [int(v) for v in P.enc.split(",")]
        if m1 == 32:
            e("  s_memrealtime s[18:19]")
        if m0 == 0:
            e(f"  s_mov_b32 s16, s{sST}")
        e("  s_waitcnt lgkmcnt(0)")
        if P.em:
            e(f"  s_not_b32 s17, s{sST}")
            e(f"  s_mov_b32 s16, s{sST}")
            e(f"  s_atomic_umax s18, s[{sDBG}:{sDBG + 1}], 40")
            e(f"  s_atomic_umax s17, s[{sDBG}:{sDBG + 1}], 44")
            e(f"  s_atomic_umax s16, s[{sDBG}:{sDBG + 1}], 48")
        else:
            e("  s_sub_u32 s16, s18, s16")
            e(f"  s_atomic_add s16, s[{sDBG}:{sDBG + 1}], 32")
        e(f"  s_cmp_eq_u32 s2, {wg}")
        e("  s_cbranch_scc0 L_nohold")
        e("L_hold0:")
        e(f"  s_memrealtime s[{sST + 2}:{sST + 3}]")
        e("  s_waitcnt lgkmcnt(0)")
        e(f"  s_sub_u32 s{sT0}, s{sST + 2}, s{sST}")
        e(f"  s_cmp_lt_u32 s{sT0}, 12500")
        e("  s_cbranch_scc1 L_hold0")
        e("  s_mov_b32 s16, 0")
        if P.em:
            e("  s_mov_b32 s17, 0")
            e(f"  s_atomic_add s16, s[{sDBG}:{sDBG + 1}], {48 if P.em == 3 else 40} glc")
            e(f"  s_atomic_add s17, s[{sDBG}:{sDBG + 1}], {48 if P.em == 2 else 44} glc")
            e("  s_waitcnt lgkmcnt(0)")
            if P.em != 2:
                e("  s_not_b32 s17, s17")
            e("  s_sub_u32 s16, s16, s17")
            e("  s_lshl_b32 s16, s16, 8")
        else:
            e(f"  s_atomic_add s16, s[{sDBG}:{sDBG + 1}], 32 glc")
            e("  s_waitcnt lgkmcnt(0)")
        e(f"  s_sub_u32 s16, s16, {base * 256}")
        e("  s_max_i32 s16, s16, 0")
        e("  s_min_i32 s16, s16, 128000")
        e(f"  s_mul_i32 s16, s16, {amp}")
        e("  s_lshr_b32 s16, s16, 8")
        e("  s_add_u32 s16, s16, 13000")
        e("L_hold:")
        e(f"  s_memrealtime s[{sST + 2}:{sST + 3}]")
        e("  s_waitcnt lgkmcnt(0)")
        e(f"  s_sub_u32 s{sT0}, s{sST + 2}, s{sST}")
        e(f"  s_cmp_lt_u32 s{sT0}, s16")
        e("  s_cbranch_scc1 L_hold")
        e("L_nohold:")
        e("  s_waitcnt lgkmcnt(0)")
    if P.tail:
        e("; diagnostic build only")
        e("  s_memrealtime s[16:17]")
        e("L_tail:")
        e("  s_memrealtime s[18:19]")
        e("  s_waitcnt lgkmcnt(0)")
        e("  s_sub_u32 s18, s18, s16")
        e(f"  s_cmp_lt_u32 s18, {P.tail}")
        e("  s_cbranch_scc1 L_tail")
    if P.hold:
        e("; diagnostic build only")
        e("L_hold:")
        e(f"  s_memrealtime s[{sST + 2}:{sST + 3}]")
        e("  s_waitcnt lgkmcnt(0)")
        e(f"  s_sub_u32 s{sT0}, s{sST + 2}, s{sST}")
        e(f"  s_cmp_lt_u32 s{sT0}, {P.hold}")
        e("  s_cbranch_scc1 L_hold")
    if P.stamp:
        e(f"  s_memrealtime s[{sST + 2}:{sST + 3}]")
        if P.hprof:
            e("  s_waitcnt lgkmcnt(0)")
            e("  s_lshl_b32 s44, s2, 5")
            e("  s_add_u32 s44, s44, 0x80000")
            e("  v_mov_b32 v1, s44")
            for k in range(8):
                e(f"  s_sub_u32 s45, s{sST + 2}, s{HP[k]}")
                e(f"  v_mov_b32 v{4 + k}, s45")
            e(f"  global_store_dwordx4 v1, v[4:7], s[{sWS}:{sWS + 1}]")
            e(f"  global_store_dwordx4 v1, v[8:11], s[{sWS}:{sWS + 1}] offset:16")
            e("  s_nop 2")
        e("  s_getreg_b32 s6, hwreg(HW_REG_XCC_ID)")
        e("  s_getreg_b32 s7, hwreg(HW_REG_HW_ID)")
        e("  s_waitcnt lgkmcnt(0)")
        e(f"  v_mov_b32 v4, s{sST}")
        e(f"  v_mov_b32 v5, s{sST + 2}")
        e("  v_mov_b32 v6, s6")
        e("  v_mov_b32 v7, s7")
        e("  s_lshl_b32 s8, s2, 4")
        e("  v_mov_b32 v1, s8")
        e(f"  global_store_dwordx4 v1, v[4:7], s[{sWS}:{sWS + 1}]")
    e("L_end:")
    e("  s_endpgm")
    e(".p2align 6")
    e(".type L_order,@object")
    e("L_order:")
    for k in range(0, len(ordtab), 8):
        e("  .long " + ", ".join(f"{v:#x}" for v in ordtab[k:k + 8]))
    e(".type L_hpos,@object")
    e("L_hpos:")
    for b in range(2):
        at = {chunk_of(b, n, s_): lpos(n, s_) for n in range(24) for s_ in range(16)}
        rows = sorted({c // 3 for c in at})
        for l_ in range(64):
            r0, r1 = rows[l_], rows[l_ + 64]
            e("  .long " + ", ".join(f"{a_ | b_ << 16:#x}" for a_, b_ in [(at[3 * r0 + k], at[3 * r1 + k]) for k in range(3)] + [(2 * r0, 2 * r1)]))
    e('.section .rodata,"a"')
    e(".p2align 6")
    e(f".amdhsa_kernel {NAME}_kernel")
    e(f"  .amdhsa_next_free_vgpr {NV}")
    e("  .amdhsa_next_free_sgpr 100")
    e(f"  .amdhsa_accum_offset {(NV + 3) // 4 * 4}")
    e("  .amdhsa_group_segment_fixed_size 0")
    e("  .amdhsa_kernarg_size 112")
    e("  .amdhsa_user_sgpr_count 2")
    e("  .amdhsa_user_sgpr_kernarg_segment_ptr 1")
    e("  .amdhsa_system_sgpr_workgroup_id_x 1")
    e(".end_amdhsa_kernel")
    return "\n".join(o) + "\n", NV


if __name__ == "__main__":
    ap = argparse.ArgumentParser()
    ap.add_argument("-o", default=f"/code/{NAME}.s")
    for name, d in (("sh", 4), ("deep", 5), ("pd", 9), ("pre", 12), ("nf", 6), ("su", 3), ("ss", 3), ("hp0", 0), ("tst", 20),
                    ("ctl", 1), ("hi", 0), ("hiv", 5), ("lo", -25), ("thr", 2), ("tp", 2), ("inv", 1), ("start", 5), ("s0", 0), ("ba", 3),
                    ("r0", 2), ("r1", 30), ("rf", 3), ("rp", 2), ("rt", 26), ("rotl", 7), ("kp", 7), ("kp0", 6), ("kn", 20),
                    ("mg", 5), ("ml", 0), ("aw", 0), ("rw", 0), ("cnt", 0), ("pm", 0), ("nq", 16), ("stg", 1), ("pit", 6016), ("sg", 0), ("sx", 0), ("lg", 0), ("ns", 6), ("es", 0), ("er", 0), ("nl", 15), ("map", 0), ("pol", -1), ("tail", 0), ("em", 0), ("nch", 12), ("cw", 1), ("cl", 0), ("sd", 0),
                    ("eprio", 2), ("psl", 1), ("psk", 1), ("spr", 1), ("bound", 4000000), ("hold", 0), ("dly", 0), ("dlb", 2)):
        ap.add_argument("--" + name, type=int, default=d)
    ap.add_argument("--kp_", default="6,6,6,7,8,9,9,10,10,11,11,12,12", help="K loads issued by each prologue point")
    ap.add_argument("--sf", default="nt")
    ap.add_argument("--of", default="")
    ap.add_argument("--wf", default="sc1")
    ap.add_argument("--enc", default="", help="diagnostic only: m0,m1,base,amp,wg")
    ap.add_argument("--qf", default="")
    ap.add_argument("--cf", default="")
    ap.add_argument("--ok", default="REXbLbLbL", help="events of a K group")
    ap.add_argument("--ov", default="REXbLbLbL", help="events of a V group")
    ap.add_argument("--vo", default="201")
    ap.add_argument("--tb", default="", help="first:last:bias, times 2 / -1 for workgroups that finish in / outside the last block")
    ap.add_argument("--rk", default="", help="die gain per step (hex digits, 0 = no ranking)")
    ap.add_argument("--sb", default="", help="step:bias,... added to the lateness")
    ap.add_argument("--pf", default="sc1")
    ap.add_argument("--mf", default="sc1")
    ap.add_argument("--bu", default="012", help="extra depth per position in the issued group")
    ap.add_argument("--th", default="-9,5,13")
    ap.add_argument("--sch", default="sch_np.txt")
    ap.add_argument("--xp", default="", help="timing experiments only")
    for name in ("stamp", "trace", "tfine", "hprof"):
        ap.add_argument("--" + name, action="store_true", help="diagnostics only")
    a = ap.parse_args()
    txt, nv = gen(a)
    open(a.o, "w").write(txt)
    print("wrote", a.o, "vgprs", nv)
```

```python
import argparse
import math
import os
import struct
from gen import HEADER, NAME, Alloc, f32bits, vr

UB = 256 * 768

ABOUT = """
Generated by tools/gen10.py.
Work split: a unit is a block of 256 KV rows of one head.  Workgroups g and g ^ 8 share 16 units of four heads (table
  L_order) and alternate over the 32 KiB runs of a unit, 128 rows each.
  Waves 1-4 stream one 4 KiB block per round; a 16-lane row handles one third (64 dims) of a KV row per load.
  K sweep: logit = k_scale * sum_d (qk - 7.5) * (qa * cos + qb * sin), RoPE moved onto the rotated q;
  V sweep: partial = sum_rows p * v_scale * qv.
  Wave 0 (helper) rotates q, takes max / exp / sums over the workgroup's rows of each unit, and merges partials.
Constant parameters (the same for every seed) are built in: both zero points (7.5), q_cos / q_sin (table L_qcs) and
  k_cos / k_sin = cos / sin(row * inv_freq).  The angle is split into the part of the row inside its unit (f16 table in
  LDS, evaluated once from L_inv) and the part of the unit (L_f0), by which (qa, qb) is turned in fp32.
Hand-off: every workgroup finishes one of its heads and streams a unit of that head last.  Partials and (max, sum) of
  the other three go to d_ws with sc1 stores; every 8 bytes carry a piece of a tag that differs from the one found there
  on entry (sent round through d_debug).  The finisher reads until all tags fit and rescales to the true row maximum.
Flow control (speed only, results do not depend on it): waves publish a group counter and sample the counters of
  units on the same die; late waves keep one more load in flight, early waves one or two fewer.  Helpers rank the dies.
"""

RUN = (1, 2, 0)


def chunk_of(b, n, s):
    g = 256 * RUN[n >> 3] + 128 * b + 16 * (n & 7) + s
    return {128: 512, 255: 639, 512: 128, 639: 255}.get(g, g)


def tidx(b, row):
    return row - 43 * b - 42 * ((row >= 85) + (row >= 171))


def rev(x, bits):
    return int(format(x, f"0{bits}b")[::-1], 2)


def lpos(n, s):
    return 4 * (16 * s + rev(n, 4)) if n < 16 else 1024 + 4 * (8 * s + rev(n - 16, 3))


TN = [(RUN[n >> 3] + (n & 7)) % 3 for n in range(24)]
SPECIAL = {n: i for i, n in enumerate(sorted(8 * RUN.index(r) + i for r in (0, 2) for i in (0, 7)))}
for b_ in range(2):
    ch = sorted(chunk_of(b_, n, s) for n in range(24) for s in range(16))
    assert ch == sorted(3 * r + k for r in {c // 3 for c in ch} for k in range(3))
    assert all(chunk_of(b_, n, s) % 3 == (TN[n] + 2 * b_ + s) % 3 for n in range(24) for s in range(16))
    assert len({tidx(b_, c // 3) for c in ch}) == 128 and max(tidx(b_, c // 3) for c in ch) == 128


def gen(P):
    o = []
    e = o.append
    RING, PD = 24, P.pd
    sh, deep = P.sh, P.deep
    PRE = P.pre
    TP = P.tp
    LAG = P.lag
    assert deep <= PD - 1 and sh <= deep and PD <= PRE
    SL = 512
    SA = 16 * SL

    FL = 0
    QS = 128
    ST = 256
    TB = 512
    QB = TB + 129 * 384
    LGB = QB + 16 * 768 + 1536
    SCB = LGB + 16 * 1536
    PB = SCB + 2 * SA
    QR = PB + 49152
    LDS = QR + 4 * 784
    assert 81920 < LDS <= 163840
    W_REC = 0x400000
    W_RK = 0x780000
    W_PL = 0x7c0000

    sQ, sQK, sKS, sKZ, sQV, sVS, sVZ, sQC = 4, 6, 8, 10, 12, 14, 16, 18
    sQS, sKC, sKSN, sOUT = 20, 22, 24, 26
    sDBG, sWS = 28, 30
    rA, rB = 32, 36
    sW, sJ, sC, sK, sT0, sT1, sF, sNEED = 40, 41, 42, 43, 44, 45, 46, 47
    sMSK = 48
    sOF = 51
    sE = 48
    sCO = 61
    sZ = 64
    sMASK, sSCALE, sH = 66, 67, 68
    sS = 69
    sX = 70
    sRF = 80
    sST = 84
    sB = 91
    sVO = 92
    sSP = 94
    sI = 95
    sSE, sCU = 81, 79
    sLO = 78
    sTG = 99

    va = Alloc(1)
    vT16, vF, vZ, vC16 = [va.take(1) for _ in range(4)]
    voff = va.take(7)
    vTA = va.take(7)
    vQA = va.take(3)
    vPA = va.take(3)
    vLG = va.take(2)
    vLB = va.take(2)
    vLV = va.take(2)
    A = va.take(2)
    LG = va.take(2)
    M1, M2, M3 = [va.take(1) for _ in range(3)]
    bc = va.take(2, 2)
    dacc = va.take(2, 2)
    wt = va.take(4, 2)
    vtr, vPW, vPS, vN, vSum, vSu2, vBA = [va.take(1) for _ in range(7)]
    vPL = va.take(4)
    vU = va.take(1)
    vBI = va.take(2, 2)
    smp = va.take(4 * LAG, 4)
    qa = va.take(12, 4)
    tab = va.take(24, 4)
    tmp = va.take(12, 4)
    ring = va.take(4 * RING, 4)
    NV = va.n
    acc = qa

    here = os.path.dirname(os.path.abspath(__file__))
    sch = [[int(x) for x in ln.split()] for ln in open(os.path.join(here, P.sch))]
    inv, qcs = [[int(x, 16) for x in ln.split()] for ln in open(os.path.join(here, "consts.txt"))]
    rev_ = [struct.unpack("<f", struct.pack("<I", v))[0] / (2 * math.pi) for v in inv]
    assert sorted(2 * u_ + (g >> 3 & 1) for g in range(256) for u_ in sch[g][:16]) == list(range(4096))
    assert sorted(x[31] >> 3 for x in sch) == list(range(256))
    fill = [0] * 256
    ordtab = []
    for g in range(256):
        ku, own = sch[g][:16], sch[g][31] >> 3
        od = [ku.index(u_) for u_ in sch[g][16:]]
        assert sorted(od) == list(range(16)) and od[0] < 14
        assert ku[0] == (16 * (((g & 7) << 3) + (g >> 4 & 7) + (g >> 7 << 6)) + 14) * 21846 >> 16
        need = list(dict.fromkeys(u_ >> 3 for u_ in ku))
        heads = [h for h in need if h != own] + [own]
        assert len(heads) == 4
        u16 = [u_ | heads.index(u_ >> 3) << 12 for u_ in ku]
        nib = sum(k << (4 * t) for t, k in enumerate(od))
        hq = [h | heads.index(h) << 12 for h in need]
        dst = []
        for h in heads[:3]:
            dst.append(W_REC + 448 * (3 * h + fill[h]))
            fill[h] += 1
        ordtab += [u16[2 * i] | u16[2 * i + 1] << 16 for i in range(8)]
        ordtab += [nib & 0xffffffff, nib >> 32, hq[0] | hq[1] << 16, hq[2] | hq[3] << 16] + dst + [own]
    assert fill == [3] * 256

    def ld(n):
        rr = rA if n < 24 else rB
        n %= 24
        so = f"s{sOF + (n & 7)}" if n & 7 else "0"
        vo = voff + (3 + SPECIAL[n] if n in SPECIAL else n >> 3)
        e(f"  buffer_load_dwordx4 {vr(ring + 4 * n, 4)}, {vr(vo)}, s[{rr}:{rr + 3}], {so} offen nt")

    ORD = {"K": P.ok, "V": P.ov}
    DIST = {"K": PRE, "V": PD}
    bu = [int(x) for x in P.bu]
    th = [int(x) for x in P.th.split(",")]
    assert PD % 3 == 0 and PRE % 3 == 0 and deep == sh + 1

    def memops(ph, a):
        r = []
        for i, c in enumerate(ORD[ph]):
            if c == "X" and P.ctl:
                r += [(i, "B")] * (a == P.ba) + [(i, "S"), (i, "Q")]
            if c == "L":
                r.append((i, "L"))
        return r

    def back(ph, a, i):
        r = [c for j, c in memops(ph, a) if j < i][::-1]
        for k in range(1, 8):
            r += [c for _, c in memops(ph, (a - k) % 8)][::-1]
        return r

    def cnt(ph, a, i, depth):
        depth += bu[ORD[ph][:i].count("L")]
        r = back(ph, a, i)
        return [k + 1 for k, c in enumerate(r) if c == "L"][depth - 2] if depth > 1 else 0

    def swait(ph, a):
        assert ORD[ph].index("E") < ORD[ph].index("X")
        r = back(ph, a, ORD[ph].index("E"))
        return [k for k, c in enumerate(r) if c == "Q"][LAG - 1]

    plain = {}

    def verify():
        ops = [("L", i) for i in range(PRE)]
        done = ORD["K"][:ORD["K"].index("L")].count("b")
        for g in range(256):
            ph, a = "KV"[g >= 128], g % 8
            if 3 * g + PD >= 768 or 128 <= g < 128 + (PRE - PD) // 3:
                for n in range(3 * g, 3 * g + 4 - (g == 255)):
                    plain[n] = len(ops) - 1 - ops.index(("L", n))
                done = max(done, len(ops) - plain[min(3 * g + 3, 767)])
                continue
            nb = nl = 3 * g
            for i, c in enumerate(ORD[ph]):
                if c == "E" and P.ctl:
                    done = max(done, len(ops) - swait(ph, a))
                if c == "X" and P.ctl:
                    ops += [("X", 0)] * (1 + (a == P.ba))
                if c == "b":
                    assert ("L", nb) in ops[:done], nb
                    nb += 1
                if c == "L":
                    done = max(done, len(ops) - cnt(ph, a, i, deep + P.tpn * (P.top < 99 and str(nl % 3) in P.tpp) if P.ctl else sh))
                    ops.append(("L", nl + DIST[ph]))
                    nl += 1
    verify()
    lab = [0]
    rare = []

    def flush():
        o.extend(rare)
        rare.clear()

    def issue(ph, a, i):
        j = ORD[ph][:i].count("L")
        lab[0] += 1
        if P.ctl and j == TP:
            e(f"  s_cmp_lt_i32 s{sS}, {P.lo}")
            e(f"  s_cbranch_scc1 L_t{lab[0]}")
            rare.extend([f"L_t{lab[0]}:", f"  s_waitcnt vmcnt({cnt(ph, a, i, P.thr + 1)})", f"  s_branch L_p{lab[0]}"])
        if P.ctl:
            t = (P.hi if ph == "K" else P.hiv) + th[j]
            assert P.lo <= t < P.top
            top = P.top < 99 and str(j) in P.tpp
            w = lambda d: f"  s_waitcnt vmcnt({cnt(ph, a, i, d)})"
            back = f"  s_branch L_p{lab[0]}"
            if t < 0:
                if top:
                    e(f"  s_sub_u32 s{sT0}, s{sS}, {t + 1}")
                    e(f"  s_cmp_lt_u32 s{sT0}, {P.top - t}")
                    rare.extend([f"L_q{lab[0]}:", w(deep + P.tpn), f"  s_cmp_gt_i32 s{sS}, 0", f"  s_cbranch_scc1 L_p{lab[0]}", w(sh), back])
                else:
                    e(f"  s_cmp_gt_i32 s{sS}, {t}")
                    rare.extend([f"L_q{lab[0]}:", w(sh), back])
                e(f"  s_cbranch_scc0 L_q{lab[0]}")
                e(w(deep))
                e(f"L_p{lab[0]}:")
            elif top:
                e(f"  s_cmp_gt_i32 s{sS}, {t}")
                e(f"  s_cbranch_scc1 L_q{lab[0]}")
                rare.extend([f"L_q{lab[0]}:", w(deep + P.tpn), f"  s_cmp_gt_i32 s{sS}, {P.top}", f"  s_cbranch_scc1 L_p{lab[0]}", w(deep), back])
                e(w(sh))
                e(f"L_p{lab[0]}:")
            else:
                e(f"  s_cmp_gt_i32 s{sS}, {t}")
                e(f"  s_cbranch_scc1 L_p{lab[0]}")
                e(w(sh))
                e(f"L_p{lab[0]}:")
                e(w(deep))
        else:
            e(f"  s_waitcnt vmcnt({cnt(ph, a, i, sh)})")
        ld(3 * a + j + DIST[ph])
        if ph == "V" and 3 * a + j + 1 == P.mg:
            e(f"  ds_write_b32 {vr(vPW)}, {vr(M1)} offset:{FL + 32}")
        if ph == "V" and 3 * a + j + 1 == P.ml:
            e(f"  ds_write_b32 {vr(vPW)}, {vr(M1)} offset:{FL + 48}")

    def evaluate(ph, a):
        if not P.ctl:
            return
        sm = smp + 4 * (a % LAG)
        e(f"  s_waitcnt vmcnt({swait(ph, a)})")
        if a == (P.ba + LAG) % 8:
            e(f"  v_add_u32 {vr(vBI)}, {vr(vBI)}, {vr(vBI + 1)}")
        e(f"  s_add_u32 s{sT0}, s{sLO}, 0x03030303")
        e(f"  v_msad_u8 {vr(vSum)}, s{sLO}, {vr(sm)}, 0")
        e(f"  v_msad_u8 {vr(vSu2)}, s{sT0}, {vr(sm)}, 0")
        if a == (P.ba + LAG) % 8:
            e(f"  v_readfirstlane_b32 s{sB}, {vr(vBI)}")
        for k in range(1, 3):
            e(f"  v_msad_u8 {vr(vSum)}, s{sLO}, {vr(sm + k)}, {vr(vSum)}")
            e(f"  v_msad_u8 {vr(vSu2)}, s{sT0}, {vr(sm + k)}, {vr(vSu2)}")
        e(f"  v_sub_u32 {vr(vSum)}, {vr(vSum)}, {vr(vSu2)}")
        e(f"  s_add_u32 s{sLO}, s{sLO}, 0x01010101")
        e(f"  v_readlane_b32 s{sMASK}, {vr(vSum)}, 0")
        e(f"  v_readlane_b32 s{sSCALE}, {vr(vSum)}, 1")

    def decide(ph, a):
        if not P.ctl:
            return
        if a == (P.ba + LAG) % 8:
            for it in filter(None, P.sb.split(",")):
                st_, b_ = [int(v) for v in it.split(":")]
                if (st_ >= 16) == (ph == "V"):
                    e(f"  s_cmp_eq_u32 s{sK}, {st_ % 16}")
                    e(f"  s_cselect_b32 s{sT0}, {b_}, 0")
                    e(f"  s_add_u32 s{sB}, s{sB}, s{sT0}")
        cur, old = (sI, sCO) if a & 1 else (sCO, sI)
        e(f"  s_add_u32 s{cur}, s{sMASK}, s{sSCALE}")
        e(f"  s_add_u32 s{sS}, s{cur}, s{old}")
        e(f"  s_ashr_i32 s{sS}, s{sS}, 1")
        e(f"  s_add_u32 s{sS}, s{sS}, s{sB}")
        if ph == "K" and a < P.start:
            e(f"  s_cmp_eq_u32 s{sK}, 0")
            e(f"  s_cselect_b32 s{sS}, {P.s0}, s{sS}")

    def exchange(a):
        if not P.ctl:
            return
        e("  s_mov_b64 exec, 1")
        if a == P.ba:
            e(f"  global_load_dwordx2 {vr(vBI, 2)}, {vr(vBA)}, s[{sWS}:{sWS + 1}] {P.pf}")
        e(f"  global_store_byte {vr(vPS)}, {vr(vN)}, s[{sWS}:{sWS + 1}]")
        e("  s_mov_b64 exec, 3")
        e(f"  global_load_dwordx3 {vr(smp + 4 * (a % LAG), 3)}, {vr(vPL + a % 4)}, s[{sWS}:{sWS + 1}] {P.pf}")
        e(f"  v_add_u32 {vr(vN)}, 1, {vr(vN)}")
        e("  s_mov_b64 exec, -1")

    def srd_head(rr, sp, sh_):
        e(f"  s_mul_i32 s{sT0}, s{sh_}, {UB}")
        e(f"  s_add_u32 s{rr}, s{sp}, s{sT0}")
        e(f"  s_addc_u32 s{rr + 1}, s{sp + 1}, 0")

    def vstep_k(dst, src):
        e(f"  s_lshl_b32 s{dst}, s{src}, 2")
        e(f"  s_lshr_b64 s[{sZ}:{sZ + 1}], s[{sVO}:{sVO + 1}], s{dst}")
        e(f"  s_and_b32 s{dst}, s{sZ}, 15")

    def head_of(dst, slot):
        e(f"  s_lshr_b32 s{sT0}, s{slot}, 1")
        e(f"  v_readlane_b32 s{sZ}, {vr(vU)}, s{sT0}")
        e(f"  s_lshl_b32 s{sT0}, s{slot}, 4")
        e(f"  s_lshr_b32 s{sZ}, s{sZ}, s{sT0}")
        e(f"  s_and_b32 s{dst}, s{sZ}, 0x7ff")

    def budget(ok):
        e(f"  s_cmp_eq_u32 s{sSP}, 0")
        e(f"  s_cbranch_scc1 {ok}")
        e(f"  s_sub_u32 s{sSP}, s{sSP}, 1")

    def flagwait(name, off):
        e(f"L_{name}:")
        e("  s_waitcnt lgkmcnt(0)")
        e(f"  v_readfirstlane_b32 s{sF}, {vr(vF)}")
        e(f"  s_cmp_ge_u32 s{sF}, s{sNEED}")
        e(f"  s_cbranch_scc0 L_{name}_no")
        e(f"L_{name}_ok:")
        rare.extend([f"L_{name}_no:", f"  s_cmp_eq_u32 s{sSP}, 0", f"  s_cbranch_scc1 L_{name}_ok", f"  s_sub_u32 s{sSP}, s{sSP}, 1",
                     f"  ds_read_b32 {vr(vF)}, {vr(vZ)} offset:{off}", f"  s_branch L_{name}"])

    def tr():
        if P.trace:
            e(f"  {'s_memtime' if 'm' in P.xp else 's_memrealtime'} s[88:89]")
            e("  s_waitcnt lgkmcnt(0)")
            e(f"  v_writelane_b32 {vr(vtr)}, s88, m0")
            e("  s_add_u32 m0, m0, 1")
            e("  s_min_u32 m0, m0, 63")

    def die_base(dst):
        e(f"  s_getreg_b32 s{sSE}, hwreg(HW_REG_HW_ID, 8, 7)")
        e(f"  s_getreg_b32 s{dst}, hwreg(HW_REG_XCC_ID, 0, 3)")
        e(f"  s_and_b32 s{sCU}, s{sSE}, 15")
        e(f"  s_lshr_b32 s{sSE}, s{sSE}, 5")
        e(f"  s_mul_i32 s{dst}, s{dst}, 4352")
        e(f"  s_add_u32 s{dst}, s{dst}, {W_PL}")

    ha = Alloc(16)
    l, u, h0, h1, h2, h3 = [ha.take(1) for _ in range(6)]
    wa, wb, vSh, vFc, vM, vL = [ha.take(1) for _ in range(6)]
    ro = ha.take(8)
    vL16, vFA, vFX, vFB, vEL, vCL, vSa, vSq = [ha.take(1) for _ in range(8)]
    hq = ha.take(2)
    z4 = ha.take(4, 4)
    cs = ha.take(8, 4)
    f0 = ha.take(4, 4)
    sc = ha.take(4, 4)
    qn = ha.take(4, 4)
    x = ha.take(32, 4)
    pr = ha.take(4, 4)
    fo = ha.take(4, 4)
    rec = ha.take(8, 4)
    AC = ha.take(16, 4)
    st4 = ha.take(4, 4)
    tg = ha.take(4, 4)
    ra = ha.take(8)
    assert ha.n <= NV and vZ < 16

    invX, invY, tK, tA, tN, tO = tmp, tmp + 4, tmp + 8, tab, tab + 4, tab + 8
    PC0 = 20 + 8 * P.stamp + 16 * (P.dly > 0)
    D_INV, D_QCS, D_F0, D_END = 256, 768, 1152, 1536
    NF = P.nf
    assert RUN[0] == 1 and NF <= 8
    e(HEADER.rstrip("\n"))
    e(f"; @launch grid=(256,1,1) block=(320,1,1) lds={LDS}")
    for ln in ABOUT.strip("\n").split("\n"):
        e("; " + ln)
    e('.amdgcn_target "amdgcn-amd-amdhsa--gfx950"')
    e(".text")
    e(f".globl {NAME}_kernel")
    e(".p2align 8")
    e(f".type {NAME}_kernel,@function")
    e(f"{NAME}_kernel:")
    e("  s_cmpk_ge_u32 s2, 0x100")
    e("  s_cbranch_scc1 L_end")
    if P.dly:
        e("; diagnostic build only: half of the dies start late")
        e(f"  s_getreg_b32 s4, hwreg(HW_REG_XCC_ID, {P.dlb}, 1)")
        e("  s_cmp_eq_u32 s4, 0")
        e("  s_cbranch_scc1 L_dly")
        e(f"  s_sleep {P.dly}")
        e("L_dly:")
    if P.stamp:
        e(f"  s_memrealtime s[{sST}:{sST + 1}]")
    e("  s_load_dwordx16 s[4:19], s[0:1], 0")
    e(f"  s_getpc_b64 s[{sZ}:{sZ + 1}]")
    e("L_pc:")
    e("  v_cmp_gt_u32 vcc, 64, v0")
    e(f"  v_lshlrev_b32 {vr(vT16)}, 4, v0")
    e(f"  s_lshr_b32 s{sK}, s2, 4")
    e(f"  s_lshl_b32 s{sF}, s2, 6")
    e(f"  s_add_u32 s{sF}, s{sF}, L_order-L_pc")
    e(f"  s_and_b32 s{sH}, s2, 7")
    e("  s_cbranch_vccz L_s0")
    e(f"  s_load_dwordx16 s[{sE}:{sE + 15}], s[{sZ}:{sZ + 1}], s{sF}")
    e(f"  v_lshl_add_u32 {vr(h0)}, s{sK}, 6, v0")
    e(f"  v_mul_u32_u24 {vr(h0)}, {P.tst}, {vr(h0)}")
    e(f"  global_load_dword {vr(h3)}, {vr(h0)}, s[{sZ}:{sZ + 1}] offset:{D_QCS - PC0}")
    e("  s_branch L_helper")
    e("L_s0:")
    e(f"  v_and_b32 {vr(vC16)}, 0xf0, {vr(vT16)}")
    e(f"  global_load_dwordx4 {vr(invX, 4)}, {vr(vC16)}, s[{sZ}:{sZ + 1}] offset:{D_INV - PC0}")
    e(f"  global_load_dwordx4 {vr(invY, 4)}, {vr(vC16)}, s[{sZ}:{sZ + 1}] offset:{D_INV + 256 - PC0}")
    e(f"  s_and_b32 s{sT1}, s{sK}, 8")
    e(f"  s_add_u32 s{sH}, s{sH}, s{sT1}")
    e(f"  s_and_b32 s{sT1}, s{sK}, 7")
    e(f"  s_lshl3_add_u32 s{sH}, s{sH}, s{sT1}")
    e(f"  s_lshl4_add_u32 s{sH}, s{sH}, 14")
    e(f"  s_mulk_i32 s{sH}, 21846")
    e(f"  s_lshr_b32 s{sC}, s{sH}, 16")
    e(f"  s_mul_i32 s{sT0}, s{sC}, {UB}")
    e(f"  s_and_b32 s{sT1}, s2, 8")
    e(f"  s_lshl_b32 s{sT1}, s{sT1}, 12")
    e(f"  s_add_u32 s{sT0}, s{sT0}, s{sT1}")
    e(f"  s_add_u32 s{sT0}, s{sT0}, {65536 * RUN[0] - 1024 + 4096}")
    e(f"  v_add_u32 {vr(tA)}, s{sT0}, {vr(vT16)}")
    for k in range(1, (NF + 1) // 2):
        e(f"  v_add_u32 {vr(tA + k)}, {8192 * k}, {vr(tA)}")
    e("  s_waitcnt lgkmcnt(0)")
    for n in range(NF):
        e(f"  global_load_dwordx4 {vr(ring + 4 * n, 4)}, {vr(tA + n // 2)}, s[{sQK}:{sQK + 1}] offset:{4096 * (n % 2) - 4096} nt")
    e("  s_branch L_s1")
    e("L_b0:")
    e(f".if (L_b0 - {NAME}_kernel > {D_INV}) || (L_pc - {NAME}_kernel != {PC0})")
    e('.error "entry block layout"')
    e(".endif")
    e(".p2align 8")
    e(".type L_inv,@object")
    e("L_inv:")
    tb = [f32bits(v) for v in rev_[:64] + rev_[64:] + rev_[64:]]
    for k in range(0, 128, 8):
        e("  .long " + ", ".join(f"{v:#x}" for v in tb[k:k + 8]))
    e(".type L_qcs,@object")
    e("L_qcs:")
    for k in range(0, 96, 8):
        e("  .long " + ", ".join(f"{v:#x}" for v in qcs[k:k + 8]))
    e(".type L_f0,@object")
    e("L_f0:")
    for k in range(0, 96, 8):
        e("  .long " + ", ".join(f"{f32bits(256 * v - round(256 * v)):#x}" for v in rev_[k:k + 8]))

    def common():
        e(f"  s_load_dwordx8 s[24:31], s[0:1], 80")
        e(f"  v_mov_b32 {vr(vZ)}, 0")
        e(f"  s_mov_b32 s{sSP}, {P.bound}")
        e(f"  s_bfe_u32 s{sJ}, s2, 0x10003")

    PFR = [4, 8, 10, 14, 62, 72, 74, 76, 82, 86, 96, 98]
    pfn = [0]

    def pf():
        if P.tfine:
            e(f"  {'s_memtime' if 'm' in P.xp else 's_memrealtime'} s[{PFR[pfn[0]]}:{PFR[pfn[0]] + 1}]")
            pfn[0] += 1

    e("L_s1:")
    w_, s_, vAD, vC8, t0, t1 = wt, wt + 1, wt + 2, wt + 3, dacc, dacc + 1
    vRF, pos = vT16, tK + 3
    if P.trace:
        e(f"  v_mov_b32 {vr(vtr)}, 0")
        e("  s_mov_b32 m0, 0")
    pf()
    e("  v_subrev_u32 v0, 64, v0")
    e(f"  s_setprio {P.spr}")
    e(f"  s_load_dwordx8 s[16:23], s[{sZ}:{sZ + 1}], s{sF}")
    e(f"  s_add_u32 s{sF}, s{sF}, 32")
    e(f"  s_load_dwordx2 s[{sVO}:{sVO + 1}], s[{sZ}:{sZ + 1}], s{sF}")
    e(f"  s_movk_i32 s{sNEED}, 768")
    common()
    e(f"  v_lshrrev_b32 {vr(w_)}, 6, v0")
    e(f"  v_lshrrev_b32 {vr(s_)}, 4, v0")
    e(f"  v_and_b32 {vr(vC8)}, 0x70, {vr(vC16)}")
    e(f"  v_readfirstlane_b32 s{sW}, {vr(w_)}")
    e(f"  v_add_u32 {vr(vAD)}, {vr(vC8)}, {vr(s_)}")
    e(f"  s_mul_i32 s{sT0}, s{sJ}, 44")
    e(f"  s_sub_u32 s{sT0}, 86, s{sT0}")
    e(f"  v_cmp_eq_u32 vcc, s{sT0}, {vr(vAD)}")
    e(f"  v_mov_b32 {vr(t0)}, 0x80")
    e(f"  s_mov_b32 s{rA + 2}, {UB}")
    e(f"  v_cndmask_b32 {vr(vAD)}, {vr(vAD)}, {vr(t0)}, vcc")
    e(f"  v_mul_u32_u24 {vr(t0)}, 381, {vr(vAD)}")
    e(f"  s_mul_i32 s{sT0}, s{sJ}, 43")
    e(f"  v_add_u32 {vr(t0)}, 2, {vr(t0)}")
    e(f"  v_lshrrev_b32 {vr(t0)}, 14, {vr(t0)}")
    assert all((381 * i + 2) >> 14 == (i >= 43) + (i >= 86) for i in range(129))
    e(f"  v_mad_u32_u24 {vr(t0)}, {vr(t0)}, 42, {vr(vAD)}")
    e(f"  v_add_u32 {vr(t0)}, s{sT0}, {vr(t0)}")
    e(f"  v_cvt_f32_u32 {vr(vRF)}, {vr(t0)}")
    e(f"  v_mul_u32_u24 {vr(vAD)}, 384, {vr(vAD)}")
    e(f"  s_mov_b32 s{rA + 3}, 0x20000")
    srd_head(rA, sQK, sC)
    e(f"  s_lshl_b32 s{sT0}, s{sJ}, 15")
    e(f"  v_lshl_add_u32 {vr(voff + RUN.index(0))}, v0, 4, s{sT0}")
    for k in (1, 2):
        e(f"  v_add_u32 {vr(voff + RUN.index(k))}, {65536 * k:#x}, {vr(voff + RUN.index(0))}")
    for i in range(1, 8):
        e(f"  s_movk_i32 s{sOF + i}, {4096 * i}")
    nk = [NF]
    assert PRE <= RING and max(int(v) for v in P.kp_.split(",")[:P.su + 1]) <= min(SPECIAL)

    def k_loads(hi):
        while nk[0] < min(hi, PRE):
            ld(nk[0])
            nk[0] += 1

    def toff_(n):
        run = RUN[n >> 3]
        return 384 * (16 * (((n & 7) + run) // 3) + 38 * run)

    def setup():
        e("; per chunk class k: q operand, table and partial addresses")
        e(f"  s_lshl1_add_u32 s{sF}, s{sJ}, s{sW}")
        e(f"  s_lshl_b32 s{sF}, s{sF}, 1")
        e(f"  s_lshr_b32 s{sF}, 0x4924, s{sF}")
        e(f"  v_bfe_u32 {vr(t1)}, v0, 4, 2")
        e(f"  v_lshl_add_u32 {vr(t1)}, {vr(t1)}, 2, {vr(vC16)}")
        e(f"  v_mad_u32_u24 {vr(vF)}, {vr(w_)}, s{sNEED}, {vr(t1)}")
        e(f"  v_add_u32 {vr(vF)}, {PB - 3072}, {vr(vF)}")
        e(f"  s_mul_i32 s{sT1}, s{sJ}, {43 * 384}")
        e(f"  s_sub_u32 s{sT1}, {TB}, s{sT1}")
        e(f"  v_lshl_add_u32 {vr(vSum)}, s{sJ}, 7, {vr(s_)}")
        for k in range(3):
            e(f"  s_bfe_u32 s{sT0}, s{sF}, {(2 << 16) | 2 * k:#x}")
            e(f"  v_lshl_add_u32 {vr(vPA + k)}, s{sT0}, 8, {vr(vF)}")
            if k:
                e(f"  v_add_u32 {vr(vSum)}, 16, {vr(vSum)}")
            e(f"  v_mul_u32_u24 {vr(t0)}, 171, {vr(vSum)}")
            e(f"  v_lshrrev_b32 {vr(t0)}, 9, {vr(t0)}")
            e(f"  v_mad_i32_i24 {vr(t1)}, {vr(t0)}, -3, {vr(vSum)}")
            e(f"  v_lshl_add_u32 {vr(t1)}, {vr(t1)}, 8, {vr(vC16)}")
            e(f"  v_add_u32 {vr(vQA + k)}, {QB}, {vr(t1)}")
            e(f"  v_subrev_u32 {vr(vSu2)}, 384, {vr(t1)}")
            e(f"  v_min_u32 {vr(t1)}, {vr(t1)}, {vr(vSu2)}")
            e(f"  v_mul_u32_u24 {vr(t0)}, 384, {vr(t0)}")
            e(f"  v_add3_u32 {vr(vTA + k)}, {vr(t0)}, {vr(t1)}, s{sT1}")
        e(f"  v_lshl_add_u32 {vr(vSum)}, s{sJ}, 4, {vr(s_)}")
        for n, i in SPECIAL.items():
            run, sx = RUN[n >> 3], 15 * (n & 7 == 7)
            b = int(run == 0)
            g0, g1 = 256 * run + 128 * b + 16 * (n & 7) + sx, chunk_of(b, n, sx)
            dt = 384 * (tidx(b, g1 // 3) - (g0 // 3 - 43 * b - 42 * run))
            e(f"  v_cmp_eq_u32 vcc, {16 * b + sx}, {vr(vSum)}")
            e(f"  v_add_u32 {vr(t0)}, {256 * (g1 - g0) & 0xffffffff:#x}, {vr(voff + (n >> 3))}")
            e(f"  v_add_u32 {vr(t1)}, {toff_(n)}, {vr(vTA + TN[n])}")
            e(f"  v_add_u32 {vr(vSu2)}, {dt & 0xffffffff:#x}, {vr(t1)}")
            e(f"  v_cndmask_b32 {vr(voff + 3 + i)}, {vr(voff + (n >> 3))}, {vr(t0)}, vcc")
            e(f"  v_cndmask_b32 {vr(vTA + 3 + i)}, {vr(t1)}, {vr(vSu2)}, vcc")
        e(f"  v_lshlrev_b32 {vr(vLB)}, 2, v0")
        e(f"  v_add_u32 {vr(vLB)}, {LGB}, {vr(vLB)}")
        e(f"  v_lshrrev_b32 {vr(t1)}, 1, v0")
        e(f"  v_lshlrev_b32 {vr(t1)}, 2, {vr(t1)}")
        e(f"  v_add_u32 {vr(vLB + 1)}, {LGB + 1024}, {vr(t1)}")
        e(f"  v_subrev_u32 {vr(vLG)}, 1536, {vr(vLB)}")
        e(f"  v_subrev_u32 {vr(vLG + 1)}, 1536, {vr(vLB + 1)}")
        e(f"  v_lshlrev_b32 {vr(vPW)}, 2, {vr(w_)}")
        e(f"  s_mov_b32 s{sMSK}, 0xcccccccc")
        e(f"  s_mov_b32 s{sMSK + 1}, s{sMSK}")
        e(f"  s_mov_b32 s{sMSK + 2}, 0xaaaaaaaa")
        e(f"  s_mov_b32 s{sMSK + 3}, s{sMSK + 2}")
        e(f"  s_mov_b32 s{rB + 2}, {UB}")
        e(f"  s_mov_b32 s{rB + 3}, 0x20000")
        e(f"  s_mov_b32 s{sK}, 0")
        if P.ctl:
            e("; progress slots: this wave writes one byte of line (half, w) and samples the lines of the other half")
            die_base(sF)
            e(f"  s_add_u32 s{sT0}, s{sF}, 2048")
            e(f"  v_mov_b32 {vr(vBA)}, s{sT0}")
            e(f"  s_and_b32 s{sT1}, s{sSE}, 2")
            e(f"  s_lshl_b32 s{sT1}, s{sT1}, 9")
            e(f"  s_lshl_b32 s{sT0}, s{sW}, 8")
            e(f"  s_add_u32 s{sT0}, s{sT0}, s{sT1}")
            e(f"  s_add_u32 s{sT0}, s{sT0}, s{sF}")
            e(f"  s_add_u32 s{sT0}, s{sT0}, s{sCU}")
            e(f"  s_and_b32 s{sSE}, s{sSE}, 1")
            e(f"  s_lshl_b32 s{sSE}, s{sSE}, 4")
            e(f"  s_add_u32 s{sT0}, s{sT0}, s{sSE}")
            e(f"  v_mov_b32 {vr(vPS)}, s{sT0}")
            e(f"  s_xor_b32 s{sT1}, s{sT1}, 1024")
            e(f"  s_add_u32 s{sF}, s{sF}, s{sT1}")
            e(f"  v_and_b32 {vr(vN)}, 1, v0")
            e(f"  v_lshl_add_u32 {vr(vN)}, {vr(vN)}, 4, s{sF}")
            for k in range(4):
                e(f"  v_add_u32 {vr(vSum)}, {k}, {vr(w_)}")
                e(f"  v_and_b32 {vr(vSum)}, 3, {vr(vSum)}")
                e(f"  v_lshl_add_u32 {vr(vPL + k)}, {vr(vSum)}, 8, {vr(vN)}")
            e(f"  s_mov_b32 s{sLO}, {(-(LAG + 2) * 0x01010101) & 0xffffffff:#x}")
            for k in range(4 * LAG):
                e(f"  v_mov_b32 {vr(smp + k)}, 0")
            for k in range(2):
                e(f"  v_mov_b32 {vr(vBI + k)}, 0")
            e(f"  v_mov_b32 {vr(vN)}, 0")
            e(f"  s_mov_b32 s{sB}, 0")
            e(f"  s_mov_b32 s{sS}, {P.s0}")
            e(f"  s_mov_b32 s{sI}, 0")
            e(f"  s_mov_b32 s{sCO}, 0")

    def sincos(dst, iv):
        for h in (0, 2):
            e(f"  v_pk_mul_f32 {vr(tN + h, 2)}, {vr(iv + h, 2)}, {vr(tK + 2, 2)} op_sel:[0,1] op_sel_hi:[1,1]")
        for i in range(4):
            e(f"  v_cos_f32 {vr(tA + i)}, {vr(tN + i)}")
        for i in range(4):
            e(f"  v_sin_f32 {vr(tN + i)}, {vr(tN + i)}")
        for i in range(4):
            e(f"  v_cvt_pk_f16_f32 {vr(dst + i)}, {vr(tA + i)}, {vr(tN + i)}")

    kp = [int(v) for v in P.kp_.split(",")]

    def chunk(i):
        a = 2 * (i // 3)
        d = tO + 4 * (i & 1)
        bc_ = lambda x, m: f"row_newbcast:{x} row_mask:0xf bank_mask:{m:#x}"
        if i % 3 == 1:
            e(f"  v_mov_b32_dpp {vr(pos)}, {vr(vRF)} {bc_(a + 1, 12)}")
            e(f"  v_add_u32_dpp {vr(vF)}, {vr(vAD)}, {vr(vC8)} {bc_(a, 3)}")
            e(f"  v_add_u32_dpp {vr(vF)}, {vr(vAD)}, {vr(vC8)} {bc_(a + 1, 12)}")
            sincos(d, invY)
            e(f"  ds_write_b128 {vr(vF)}, {vr(d, 4)} offset:{TB + 256}")
        else:
            a += i % 3 // 2
            e(f"  v_mov_b32_dpp {vr(pos)}, {vr(vRF)} {bc_(a, 15)}")
            e(f"  v_add_u32_dpp {vr(vF)}, {vr(vAD)}, {vr(vC16)} {bc_(a, 15)}")
            sincos(d, invX)
            e(f"  ds_write_b128 {vr(vF)}, {vr(d, 4)} offset:{TB}")

    def tab_read(a):
        for n in range(3 * a, 3 * a + 3):
            d = tab + 12 * (a & 1) + 4 * (n % 3)
            if n in SPECIAL:
                e(f"  ds_read_b128 {vr(d, 4)}, {vr(vTA + 3 + SPECIAL[n])}")
            else:
                e(f"  ds_read_b128 {vr(d, 4)}, {vr(vTA + TN[n])} offset:{toff_(n)}")

    k_loads(kp[0])
    pf()
    e(f"  s_waitcnt vmcnt({nk[0]})")
    pf()
    for i in range(12):
        if i == P.su:
            setup()
            pf()
        chunk(i)
        k_loads(kp[i + 1])
        if i % 3 == 2:
            pf()
    k_loads(PRE)
    e(f"  v_mov_b32 {vr(bc)}, {f32bits(-7.5):#x}")
    e("  s_waitcnt lgkmcnt(0)")
    for k in range(8):
        e(f"  v_writelane_b32 {vr(vU)}, s{16 + k}, {k}")
    e("  s_barrier")
    pf()
    for k in range(3):
        e(f"  ds_read_b128 {vr(qa + 4 * k, 4)}, {vr(vQA + k)}")
    tab_read(0)
    e(f"  s_waitcnt vmcnt({PRE - ORD['K'][:ORD['K'].index('L')].count('b')})")
    pf()
    if P.tfine:
        e("  s_waitcnt lgkmcnt(0)")
        for k in range(pfn[0]):
            e(f"  v_writelane_b32 {vr(vtr)}, s{PFR[k]}, {k}")
        e(f"  s_mov_b32 m0, {pfn[0]}")

    def vfirst():
        e(f"  s_and_b32 s{sH}, s{sVO}, 15")
        e(f"  s_add_u32 s{sNEED}, s{sH}, 1")
        e(f"  ds_read_b32 {vr(vF)}, {vr(vZ)} offset:{FL + 20}")
        flagwait("a0", FL + 20)
        e(f"  s_mulk_i32 s{sH}, 1536")
        for k in range(2):
            e(f"  v_add_u32 {vr(vLV + k)}, s{sH}, {vr(vLB + k)}")
        e(f"  ds_read_b32 {vr(A)}, {vr(vLV)}")


    def knext():
        e("; next SRD: K slot k + 1, or the first V step once K runs out")
        e(f"  s_add_u32 s{sH}, s{sK}, 1")
        e(f"  s_sub_u32 s{sT1}, s{sH}, 16")
        vstep_k(sF, sT1)
        e(f"  s_cmp_lt_u32 s{sH}, 16")
        e(f"  s_cselect_b32 s{sH}, s{sH}, s{sF}")
        e(f"  s_cselect_b32 s{sX}, s{sQK}, s{sQV}")
        e(f"  s_cselect_b32 s{sX + 1}, s{sQK + 1}, s{sQV + 1}")
        head_of(sH, sH)
        srd_head(rB, sX, sH)

    def kred(n):
        dpp = lambda d, x, how, m: e(f"  v_add_f32_dpp {vr(d)}, {vr(x)}, {vr(x)} {how} row_mask:0xf bank_mask:{m:#x}")
        dpp(M1, dacc, "row_ror:8", 12 if n & 1 else 3)
        if n % 2 == 1:
            e("  s_nop 1")
            dpp(M2, M1, "row_half_mirror", 10 if n & 2 else 5)
        if n % 4 == 3:
            e("  s_nop 1")
            dpp(M2 if n & 4 else M3, M2, "quad_perm:[2,3,0,1]", 15)
        if n % 8 == 7:
            e(f"  v_cndmask_b32_e64 {vr(M3)}, {vr(M3)}, {vr(M2)}, s[{sMSK}:{sMSK + 1}]")
            e("  s_nop 1")
            dpp((LG, M3, LG + 1)[n >> 3], M3, "quad_perm:[1,0,3,2]", 15)
        if n == 15:
            e(f"  v_cndmask_b32_e64 {vr(LG)}, {vr(LG)}, {vr(M3)}, s[{sMSK + 2}:{sMSK + 3}]")

    e(".p2align 6")
    e("L_k:")

    def kbody(n):
        k_, q_ = ring + 4 * n, qa + 4 * TN[n]
        for i in range(4):
            e(f"  v_dot2_f32_f16 {vr(wt + i)}, {vr(tab + 12 * (n // 3 & 1) + 4 * (n % 3) + i)}, {vr(q_ + i)}, 0")
        for i in range(4):
            e(f"  v_cvt_f32_i32 {vr(k_ + i)}, {vr(k_ + i)}")
        if n >= 21:
            e(f"  ds_read_b128 {vr(q_, 4)}, {vr(vQA + TN[n])}")
        for h in range(2):
            e(f"  v_pk_add_f32 {vr(k_ + 2 * h, 2)}, {vr(k_ + 2 * h, 2)}, {vr(bc, 2)} op_sel_hi:[1,0]")
        e(f"  v_pk_mul_f32 {vr(dacc, 2)}, {vr(k_, 2)}, {vr(wt, 2)}")
        e(f"  v_pk_fma_f32 {vr(dacc, 2)}, {vr(k_ + 2, 2)}, {vr(wt + 2, 2)}, {vr(dacc, 2)}")
        e(f"  v_add_f32 {vr(dacc)}, {vr(dacc)}, {vr(dacc + 1)}")

    def kout():
        e(f"  v_mov_b32 {vr(vF)}, s{sK}")
        for k in range(2):
            e(f"  ds_write_b32 {vr(vLG + k)}, {vr(LG + k)}")
        e(f"  ds_write_b32 {vr(vPW)}, {vr(vF)} offset:{FL}")

    def group(ph, a, body, after, res):
        nb, pend = 3 * a, None
        od = ORD[ph]
        for i, c in enumerate(od):
            if pend is not None and c != "L":
                if od[i - 1] == "b":
                    e("  s_nop 1")
                after(pend)
                pend = None
            if c == "E":
                evaluate(ph, a)
                if od[i + 1] != "X":
                    decide(ph, a)
            if c == "X":
                exchange(a)
                if od[i - 1] == "E":
                    decide(ph, a)
            if c == "R" and a == 0:
                res()
            if c == "b":
                body(nb)
                pend = nb if after else None
                nb += 1
            if c == "L":
                issue(ph, a, i)
        if pend is not None:
            if od[-1] == "b":
                e("  s_nop 1")
            after(pend)

    for a in range(8):
        if a == 7:
            flagwait("qn", FL + 16)
        else:
            e("  s_waitcnt lgkmcnt(0)")
        tab_read((a + 1) % 8)
        if a == 6:
            e(f"  ds_read_b32 {vr(vF)}, {vr(vZ)} offset:{FL + 16}")
        group("K", a, kbody, kred, kout)
        if a == 1:
            knext()
        if a == 3:
            e(f"  s_add_u32 s{sT0}, s{sK}, 2")
            e(f"  s_min_u32 s{sNEED}, s{sT0}, 16")
            for k in range(3):
                e(f"  v_add_u32 {vr(vQA + k)}, 768, {vr(vQA + k)}")
            for k in range(2):
                e(f"  v_add_u32 {vr(vLG + k)}, 1536, {vr(vLG + k)}")
            e(f"  s_cmp_eq_u32 s{sK}, 15")
            e("  s_cbranch_scc1 L_kv")
            e("L_kw:")
        if a in (3, 7) or P.tfine:
            tr()
    assert sorted(TN[21:]) == [0, 1, 2] and TN[:3] == TN[3:6] and sorted(TN[:3]) == [0, 1, 2] and PRE <= 18
    e(f"  s_add_u32 s{sK}, s{sK}, 1")
    e(f"  s_mov_b64 s[{rA}:{rA + 1}], s[{rB}:{rB + 1}]")
    e(f"  s_cmp_lt_u32 s{sK}, 16")
    e("  s_cbranch_scc1 L_k")


    def vbody(n):
        v_ = ring + 4 * n
        e(f"  v_mov_b32_dpp {vr(bc)}, {vr(A + n // 16)} row_newbcast:{rev(n % 16, 4)} row_mask:0xf bank_mask:0xf")
        for i in range(4):
            e(f"  v_cvt_f32_i32 {vr(v_ + i)}, {vr(v_ + i)}")
        for h in range(2):
            d = 4 * TN[n] + 2 * h
            if n < 3:
                e(f"  v_pk_mul_f32 {vr(tmp + d, 2)}, {vr(v_ + 2 * h, 2)}, {vr(bc, 2)} op_sel_hi:[1,0]")
            else:
                e(f"  v_pk_fma_f32 {vr(acc + d, 2)}, {vr(v_ + 2 * h, 2)}, {vr(bc, 2)}, {vr((tmp if n < 6 else acc) + d, 2)} op_sel_hi:[1,0,1]")

    def vout(last=False):
        for j in range(3):
            e(f"  v_permlane32_swap_b32 {vr(acc + 4 * j)}, {vr(acc + 4 * j + 2)}")
            e(f"  v_permlane32_swap_b32 {vr(acc + 4 * j + 1)}, {vr(acc + 4 * j + 3)}")
        for j in range(3):
            e(f"  v_add_f32 {vr(acc + 4 * j)}, {vr(acc + 4 * j)}, {vr(acc + 4 * ((j + 1) % 3) + 2)}")
            e(f"  v_add_f32 {vr(acc + 4 * j + 1)}, {vr(acc + 4 * j + 1)}, {vr(acc + 4 * ((j + 1) % 3) + 3)}")
        for j in range(3):
            e(f"  v_permlane16_swap_b32 {vr(acc + 4 * j)}, {vr(acc + 4 * j + 1)}")
        for j in range(3):
            e(f"  v_add_f32 {vr(acc + 4 * j)}, {vr(acc + 4 * j)}, {vr(acc + 4 * ((j + 2) % 3) + 1)}")
        for j in range(3):
            e(f"  ds_write_b32 {vr(vPA + j)}, {vr(acc + 4 * j)}")
        if not last:
            e(f"  ds_write_b32 {vr(vPW)}, {vr(M1)} offset:{FL}")
            e("L_v0:")

    def vnext():
        e(f"  s_add_u32 s{sT1}, s{sK}, 1")
        e(f"  s_min_u32 s{sT1}, s{sT1}, 15")
        vstep_k(sH, sT1)
        e(f"  s_add_u32 s{sNEED}, s{sH}, 1")
        e(f"  s_mul_i32 s{sF}, s{sH}, 1536")
        head_of(sH, sH)
        srd_head(rB, sQV, sH)
        for k in range(2):
            e(f"  v_add_u32 {vr(vLV + k)}, s{sF}, {vr(vLB + k)}")

    NS, NT = (PRE - PD) // 3, 8 - PD // 3
    assert NS <= 1 and 4 <= NT <= 5 and (NS or P.ov[0] == "R") and max(P.mg, P.ml) <= 3 * NT
    e("L_vpre:")
    kout()
    e(f"  s_mov_b32 s{sK}, 0")
    e(f"  v_mov_b32 {vr(M1)}, 16")
    if NS:
        for n in range(3):
            e(f"  s_waitcnt vmcnt({plain[384 + n]})")
            vbody(n)
        e(f"  s_waitcnt vmcnt({plain[387]}) lgkmcnt(0)")
        e("  s_branch L_v1")
    else:
        e("  s_waitcnt lgkmcnt(3)")
        e("  s_branch L_v0")
    flush()
    e("L_kv:")
    vfirst()
    e("  s_branch L_kw")
    flush()
    e(".p2align 6")
    e("L_v:")
    for a in range(8):
        if a == 1:
            e("L_v1:")
            e(f"  ds_read_b32 {vr(A + 1)}, {vr(vLV + 1)}")
        if a == NT:
            e(f"  s_cmp_eq_u32 s{sK}, 15")
            e("  s_cbranch_scc1 L_vt")
        if a in (5, 7):
            e("  s_waitcnt lgkmcnt(0)")
        if a == 5:
            e(f"  ds_read_b32 {vr(vF)}, {vr(vZ)} offset:{FL + 20}")
        if a == 6:
            flagwait("an", FL + 20)
            e(f"  ds_read_b32 {vr(A)}, {vr(vLV)}")
        group("V", a, vbody, None, vout)
        if a == 1:
            vnext()
        if a == 3:
            e(f"  v_add_u32 {vr(M1)}, 1, {vr(M1)}")
            for j in range(3):
                e(f"  v_add_u32 {vr(vPA + j)}, 3072, {vr(vPA + j)}")
        if a in (3, 7):
            tr()
    e(f"  s_add_u32 s{sK}, s{sK}, 1")
    e(f"  s_mov_b64 s[{rA}:{rA + 1}], s[{rB}:{rB + 1}]")
    e("  s_branch L_v")
    flush()
    e("L_vt:")
    e("  s_waitcnt lgkmcnt(0)")
    for n in range(3 * NT, 24):
        e(f"  s_waitcnt vmcnt({plain[744 + n]})")
        vbody(n)
    tr()
    e("  s_nop 1")
    vout(True)
    e("  s_waitcnt lgkmcnt(0)")
    e("  s_barrier")
    if P.trace:
        e(f"  s_mul_i32 s8, s2, {5 * 256}")
        e("  s_add_u32 s8, s8, 0x100000")
        e(f"  v_lshl_add_u32 {vr(t0)}, v0, 2, s8")
        e(f"  global_store_dword {vr(t0)}, {vr(vtr)}, s[{sWS}:{sWS + 1}]")
    e("  s_endpgm")

    HP = [4, 6, 24, 8, 10, 36, 38, 72]
    ms = [m for m in range(P.r0, P.r1 + 1) if m < P.rf or m > P.rt or (m - P.r0) % P.rp == 0]
    gain = [(P.kp0 if m <= P.kn else P.kp) if m in ms else 0 for m in range(32)]
    if P.rk:
        gain = [int(c, 16) for c in P.rk]
        assert len(gain) == 32 and not any(gain[:P.r0]) and not gain[31]
    msk = sum(1 << m for m in range(32) if gain[m])

    def hp(k):
        if P.hprof:
            e(f"  s_memrealtime s[{HP[k]}:{HP[k] + 1}]")

    def progwait(name, slp, off=FL):
        e(f"L_{name}:")
        e(f"  ds_read_b128 {vr(pr, 4)}, {vr(vZ)} offset:{off}")
        e("  s_waitcnt lgkmcnt(0)")
        e(f"  v_min_u32 {vr(pr)}, {vr(pr)}, {vr(pr + 1)}")
        e(f"  v_min3_u32 {vr(pr)}, {vr(pr)}, {vr(pr + 2)}, {vr(pr + 3)}")
        e("  s_nop 0")
        e(f"  v_readfirstlane_b32 s{sF}, {vr(pr)}")
        e(f"  s_cmp_ge_u32 s{sF}, s{sNEED}")
        e(f"  s_cbranch_scc1 L_{name}_ok")
        budget(f"L_{name}_ok")
        if slp:
            e(f"  s_sleep {slp}")
        e(f"  s_branch L_{name}")
        e(f"L_{name}_ok:")

    def rowred(op, v):
        for n in (8, 4, 2, 1):
            e("  s_nop 1")
            e(f"  {op}_dpp {vr(v)}, {vr(v)}, {vr(v)} row_ror:{n} row_mask:0xf bank_mask:0xf")

    def allred(op, v, t):
        rowred(op, v)
        for sw in ("v_permlane16_swap_b32", "v_permlane32_swap_b32"):
            e(f"  v_mov_b32 {vr(t)}, {vr(v)}")
            e("  s_nop 1")
            e(f"  {sw} {vr(v)}, {vr(t)}")
            e(f"  {op} {vr(v)}, {vr(v)}, {vr(t)}")

    def sum_partials(nq):
        w = 4 * nq
        for k in range(4):
            for q in range(nq):
                e(f"  ds_read_b128 {vr(x + w * k + 4 * q, 4)}, {vr(h0)} offset:{768 * k + 16 * q}")
        e(f"  ds_read_b128 {vr(z4, 4)}, {vr(h1)} offset:{ST}")
        e("  s_waitcnt lgkmcnt(0)")
        for h in range(0, w, 2):
            e(f"  v_pk_add_f32 {vr(x + h, 2)}, {vr(x + h, 2)}, {vr(x + w + h, 2)}")
            e(f"  v_pk_add_f32 {vr(x + 2 * w + h, 2)}, {vr(x + 2 * w + h, 2)}, {vr(x + 3 * w + h, 2)}")
        for h in range(0, w, 2):
            e(f"  v_pk_add_f32 {vr(x + h, 2)}, {vr(x + h, 2)}, {vr(x + 2 * w + h, 2)}")
        for h in range(0, w, 2):
            e(f"  v_pk_add_f32 {vr(x + h, 2)}, {vr(x + h, 2)}, {vr(z4 + 2, 2)} op_sel_hi:[1,0] neg_lo:[0,1] neg_hi:[0,1]")

    def mark(tag):
        if P.sd:
            e("  s_memrealtime s[72:73]")
            e("  s_waitcnt lgkmcnt(0)")
            e("  s_sub_u32 s75, s72, s74")
            e("  s_mov_b32 s74, s72")
            e(f"  s_add_u32 s72, s{sNEED}, {64 - P.sd}")
            e("  s_and_b32 s73, s72, 1")
            e("  s_lshl_b32 s73, s73, 4")
            e("  s_min_u32 s75, s75, 510")
            e("  s_lshl_b32 s75, s75, s73")
            e("  s_lshr_b32 m0, s72, 1")
            e(f"  v_readlane_b32 s73, {vr(vCL)}, m0")
            e("  s_add_u32 s73, s73, s75")
            e(f"  v_writelane_b32 {vr(vCL)}, s73, m0")
        if not P.enc:
            return
        for k, m in enumerate(P.enc.split(",")[:2]):
            e(f"  s_cmp_eq_u32 s{sNEED}, {m}")
            e(f"  s_cbranch_scc0 L_mk{tag}{k}")
            e(f"  s_memrealtime s[{72 + 2 * k}:{73 + 2 * k}]")
            e(f"L_mk{tag}{k}:")

    def rank_post(tag):
        if not P.ctl:
            return
        e(f"  s_bitcmp1_b32 s{sRF}, s{sNEED}")
        e(f"  s_cbranch_scc0 L_fa{tag}")
        e(f"  s_mul_i32 s{sT0}, s{sNEED}, 384")
        e(f"  s_add_u32 s{sT0}, s{sT0}, {W_RK}")
        e(f"  s_mov_b32 s{sB}, 1")
        e(f"  s_atomic_add s{sB}, s[{sWS}:{sWS + 1}], s{sT0} glc")
        e(f"L_fa{tag}:")

    def rank_take(tag):
        if not P.ctl:
            return
        e(f"  s_bitcmp1_b32 s{sRF}, s{sNEED}")
        e(f"  s_cbranch_scc0 L_fb{tag}")
        e("  s_waitcnt lgkmcnt(0)")
        e(f"  s_min_u32 s{sF}, s{sB}, 15")
        e(f"  s_lshl_b32 s{sF}, s{sF}, 1")
        e(f"  s_sub_u32 s{sF}, s{sF}, 15")
        gs = sorted(set(gain) - {0})
        e(f"  s_mov_b32 s{sT0}, {gs[0]}")
        for g_ in gs[1:]:
            e(f"  s_bitcmp1_b32 {sum(1 << m for m in range(32) if gain[m] == g_):#x}, s{sNEED}")
            e(f"  s_cselect_b32 s{sT0}, {g_}, s{sT0}")
        e(f"  s_mul_i32 s{sF}, s{sF}, s{sT0}")
        e(f"  s_add_u32 s{sF}, s{sF}, 8")
        e(f"  s_ashr_i32 s{sF}, s{sF}, 4")
        e(f"  v_mov_b32 {vr(vFX)}, s{sF}")
        e("  s_mov_b64 exec, 1")
        e(f"  global_store_dword {vr(vFB)}, {vr(vFX)}, s[{sWS}:{sWS + 1}]")
        e("  s_mov_b64 exec, -1")
        e(f"L_fb{tag}:")

    HPF = [10, 16, 18, 20, 22, 72, 74, 76, 82, 96]
    hpn = [0]

    def hpf():
        if P.tfine:
            e(f"  s_memrealtime s[{HPF[hpn[0]]}:{HPF[hpn[0]] + 1}]")
            hpn[0] += 1

    e("L_helper:")
    e(f"  s_setprio {P.hp0}")
    hv = []

    def qmask(on):
        if on:
            e("  s_mov_b32 exec_lo, 0xffffff")
            e("  s_mov_b32 exec_hi, 0xffffff")
        else:
            e("  s_mov_b64 exec, -1")

    e(f"  v_and_b32 {vr(vL16)}, 0x1f0, {vr(vT16)}")
    e(f"  global_load_dwordx4 {vr(pr, 4)}, {vr(vL16)}, s[{sZ}:{sZ + 1}] offset:{D_QCS - PC0}")
    e(f"  global_load_dwordx4 {vr(f0, 4)}, {vr(vL16)}, s[{sZ}:{sZ + 1}] offset:{D_F0 - PC0}")
    e(f"  v_and_b32 {vr(vSh)}, 32, v0")
    e(f"  v_lshrrev_b32 {vr(vSh)}, 1, {vr(vSh)}")
    e(f"  v_lshrrev_b32 {vr(h1)}, 1, {vr(vL16)}")
    e(f"  s_movk_i32 s{sT1}, 384")
    e("  s_waitcnt lgkmcnt(0)")
    hpf()
    for p in range(2):
        e(f"  v_lshrrev_b32 {vr(hq + p)}, {vr(vSh)}, s{sE + 10 + p}")
        e(f"  v_and_b32 {vr(h0)}, 0xff, {vr(hq + p)}")
        e(f"  v_mad_u32_u24 {vr(ra + p)}, {vr(h0)}, s{sT1}, {vr(h1)}")
    qmask(1)
    for p in range(2):
        e(f"  global_load_dwordx2 {vr(rec + 4 * p, 2)}, {vr(ra + p)}, s[{sQ}:{sQ + 1}]")
        e(f"  global_load_dwordx2 {vr(rec + 4 * p + 2, 2)}, {vr(ra + p)}, s[{sQ}:{sQ + 1}] offset:192")
        hv.extend([("q", p)] * 2)
    qmask(0)
    hpf()
    common()
    e(f"  s_lshl_b32 s{sT0}, s{sJ}, 10")
    e(f"  s_add_u32 s{sT0}, s{sT0}, L_hpos-L_pc")
    e(f"  v_add_u32 {vr(h0)}, s{sT0}, {vr(vT16)}")
    e(f"  global_load_dwordx4 {vr(st4, 4)}, {vr(h0)}, s[{sZ}:{sZ + 1}]")
    hv.append(("h", 0))
    e(f"  s_mov_b64 s[{sVO}:{sVO + 1}], s[{sE + 8}:{sE + 9}]")
    e(f"  v_mov_b32 {vr(l)}, v0")
    for i in range(4):
        e(f"  v_mov_b32 {vr(z4 + i)}, 0")
    for k in range(4):
        e(f"  ds_write_b128 {vr(vZ)}, {vr(z4, 4)} offset:{FL + 16 * k}")
    e(f"  s_mov_b32 s{sMASK}, 0xffff0000")
    e(f"  s_mov_b32 s{sSCALE}, {f32bits(math.log2(math.e) / math.sqrt(192.0)):#x}")
    e(f"  s_movk_i32 s{sC}, 784")
    e(f"  v_mad_u32_u24 {vr(wa)}, {vr(vSh)}, 48, {vr(vL16)}")
    e(f"  v_lshrrev_b32 {vr(vSq)}, 1, {vr(vSh)}")
    for p in range(8):
        e(f"  v_lshrrev_b32 {vr(ra + p)}, {vr(vSh)}, s{sE + p}")
    e("  s_waitcnt lgkmcnt(0)")
    hpf()
    if P.ctl:
        die_base(sF)
        e(f"  v_lshrrev_b32 {vr(h0)}, 1, {vr(l)}")
        e(f"  v_lshl_add_u32 {vr(vFX)}, {vr(h0)}, 8, s{sF}")
        e(f"  v_and_b32 {vr(h0)}, 1, {vr(l)}")
        e(f"  v_lshl_add_u32 {vr(vFX)}, {vr(h0)}, 4, {vr(vFX)}")
        e(f"  s_and_b32 s{sT1}, s{sSE}, 2")
        e(f"  s_lshl_b32 s{sT0}, s{sT1}, 9")
        e(f"  s_add_u32 s{sT0}, s{sT0}, s{sF}")
        e(f"  v_add_u32 {vr(vEL)}, s{sT0}, {vr(l)}")
        e(f"  s_lshl_b32 s{sT1}, s{sT1}, 1")
        e(f"  s_add_u32 s{sF}, s{sF}, s{sT1}")
        e(f"  s_add_u32 s{sF}, s{sF}, 2048")
        e(f"  v_mov_b32 {vr(vFB)}, s{sF}")
        e(f"  v_mul_u32_u24 {vr(vFA)}, 384, {vr(l)}")
        e(f"  v_add_u32 {vr(vFA)}, {W_RK}, {vr(vFA)}")
        e(f"  s_mov_b32 s{sRF}, 0")
        e("  s_mov_b64 exec, 0x3ffff")
        e(f"  global_store_dwordx4 {vr(vFX)}, {vr(z4, 4)}, s[{sWS}:{sWS + 1}]")
        e("  s_mov_b64 exec, -1")
    e(f"  s_waitcnt vmcnt({len(hv)})")
    for k in range(4):
        e(f"  v_lshlrev_b32 {vr(cs + k)}, 16, {vr(pr + k)}")
        e(f"  v_and_b32 {vr(cs + 4 + k)}, s{sMASK}, {vr(pr + k)}")

    def elect():
        if not P.ctl:
            return
        e(f"  s_cmp_eq_u32 s{sNEED}, {P.r0 - 1}")
        e("  s_cbranch_scc0 L_el")
        e(f"  s_bitcmp0_b32 s{sSE}, 0")
        e("  s_cbranch_scc0 L_el")
        e("  s_mov_b64 exec, 0xffff")
        e(f"  global_load_ubyte {vr(vFX)}, {vr(vEL)}, s[{sWS}:{sWS + 1}] sc1")
        e("  s_waitcnt vmcnt(0)")
        e(f"  v_cmp_ne_u32 s[{sZ}:{sZ + 1}], 0, {vr(vFX)}")
        e(f"  s_lshr_b32 s{sT0}, s{sZ}, s{sCU}")
        e(f"  s_bcnt1_i32_b32 s{sT0}, s{sT0}")
        pat = sum(1 << m for m in range(0, 32, P.rotl))
        e(f"  s_sub_u32 s{sT1}, s{sT0}, 1")
        e(f"  s_cmp_lt_u32 s{sT1}, {P.rotl}")
        e("  s_cbranch_scc0 L_el")
        e(f"  s_lshl_b32 s{sRF}, {pat:#x}, s{sT1}")
        e(f"  s_and_b32 s{sRF}, s{sRF}, {msk:#x}")
        e("L_el:")
        e("  s_mov_b64 exec, -1")

    def roleaddr(src):
        e(f"  v_bfe_u32 {vr(wb)}, {vr(src)}, 12, 2")
        e(f"  v_mul_u32_u24 {vr(h1)}, s{sC}, {vr(wb)}")
        e(f"  v_add_u32 {vr(h1)}, {QR}, {vr(h1)}")
        e(f"  v_add_u32 {vr(h0)}, {vr(h1)}, {vr(vL16)}")

    def rotate(p):
        L, Hh, LC, HS, HC, LS = x, x + 4, x + 8, x + 12, x + 16, x + 20
        roleaddr(hq + p)
        e(f"  v_mov_b32 {vr(h2)}, 0")
        qmask(1)
        if p == 0:
            hpf()
        e(f"  s_waitcnt vmcnt({hv[::-1].index(('q', p))})")
        if p == 0:
            hpf()
        for k in range(4):
            e(f"  v_lshlrev_b32 {vr(L + 2 * k)}, 16, {vr(rec + 4 * p + k)}")
            e(f"  v_and_b32 {vr(L + 2 * k + 1)}, s{sMASK}, {vr(rec + 4 * p + k)}")
        for d, q_, t_ in ((LC, L, cs), (HS, Hh, cs + 4), (HC, Hh, cs), (LS, L, cs + 4)):
            for h in (0, 2):
                e(f"  v_pk_mul_f32 {vr(d + h, 2)}, {vr(q_ + h, 2)}, {vr(t_ + h, 2)}")
        for i in range(4):
            e(f"  v_cvt_pk_bf16_f32 {vr(L + i)}, {vr(LC + i)}, {vr(HS + i)}")
            e(f"  v_cvt_pk_bf16_f32 {vr(Hh + i)}, {vr(HC + i)}, {vr(LS + i)}")
        for k in range(8):
            e(f"  v_lshlrev_b32 {vr(LC + k)}, 16, {vr(L + k)}")
            e(f"  v_and_b32 {vr(L + k)}, s{sMASK}, {vr(L + k)}")
        for h in (0, 2):
            e(f"  v_pk_add_f32 {vr(L + h, 2)}, {vr(LC + h, 2)}, {vr(L + h, 2)} neg_lo:[0,1] neg_hi:[0,1]")
            e(f"  v_pk_add_f32 {vr(Hh + h, 2)}, {vr(HS + h, 2)}, {vr(Hh + h, 2)}")
        for i in range(4):
            e(f"  v_cvt_pk_bf16_f32 {vr(Hh + i)}, {vr(L + i)}, {vr(Hh + i)}")
        for i in range(4):
            e(f"  v_lshlrev_b32 {vr(L + i)}, 16, {vr(Hh + i)}")
            e(f"  v_and_b32 {vr(Hh + i)}, s{sMASK}, {vr(Hh + i)}")
        for i in range(4):
            e(f"  v_max3_f32 {vr(h2)}, |{vr(L + i)}|, |{vr(Hh + i)}|, {vr(h2)}")
        qmask(0)
        rowred("v_max_f32", h2)
        e(f"  v_mov_b32 {vr(h3)}, {vr(h2)}")
        e("  s_nop 1")
        e(f"  v_permlane16_swap_b32 {vr(h2)}, {vr(h3)}")
        e(f"  v_max_f32 {vr(h2)}, {vr(h2)}, {vr(h3)}")
        e(f"  v_frexp_exp_i32_f32 {vr(h2)}, {vr(h2)}")
        e(f"  v_sub_u32 {vr(h3)}, 13, {vr(h2)}")
        e(f"  v_subrev_u32 {vr(h2)}, 13, {vr(h2)}")
        for i in range(8):
            e(f"  v_ldexp_f32 {vr(L + i)}, {vr(L + i)}, {vr(h3)}")
        e(f"  v_ldexp_f32 {vr(h2)}, s{sSCALE}, {vr(h2)}")
        qmask(1)
        e(f"  ds_write_b128 {vr(h0)}, {vr(L, 4)}")
        e(f"  ds_write_b128 {vr(h0)}, {vr(Hh, 4)} offset:384")
        e(f"  ds_write_b32 {vr(h1)}, {vr(h2)} offset:768")
        qmask(0)

    cu, su = x + 24, x + 28

    def angle(p):
        e(f"  v_and_b32 {vr(qn)}, 7, {vr(ra + p)}")
        e(f"  v_cvt_f32_u32 {vr(qn)}, {vr(qn)}")
        for h in (0, 2):
            e(f"  v_pk_mul_f32 {vr(su + h, 2)}, {vr(f0 + h, 2)}, {vr(qn, 2)} op_sel_hi:[1,0]")
        for i in range(4):
            e(f"  v_cos_f32 {vr(cu + i)}, {vr(su + i)}")
        for i in range(4):
            e(f"  v_sin_f32 {vr(su + i)}, {vr(su + i)}")

    def item(p):
        a_, b_, a2, b2 = x, x + 4, x + 8, x + 12
        roleaddr(ra + p)
        qmask(1)
        e(f"  ds_read_b128 {vr(a_, 4)}, {vr(h0)}")
        e(f"  ds_read_b128 {vr(b_, 4)}, {vr(h0)} offset:384")
        e(f"  ds_read_b32 {vr(qn + 2)}, {vr(h1)} offset:768")
        if p:
            angle(p)
        e(f"  v_mov_b32 {vr(qn + 3)}, {vr(wb)}")
        e(f"  v_mov_b32 {vr(h0)}, {2 * p + 2}")
        e("  s_waitcnt lgkmcnt(0)")
        for h in (0, 2):
            e(f"  v_pk_mul_f32 {vr(a2 + h, 2)}, {vr(a_ + h, 2)}, {vr(cu + h, 2)}")
            e(f"  v_pk_mul_f32 {vr(b2 + h, 2)}, {vr(b_ + h, 2)}, {vr(cu + h, 2)}")
        for h in (0, 2):
            e(f"  v_pk_fma_f32 {vr(a2 + h, 2)}, {vr(b_ + h, 2)}, {vr(su + h, 2)}, {vr(a2 + h, 2)}")
            e(f"  v_pk_fma_f32 {vr(b2 + h, 2)}, {vr(a_ + h, 2)}, {vr(su + h, 2)}, {vr(b2 + h, 2)} neg_lo:[1,0,0] neg_hi:[1,0,0]")
        for i in range(4):
            e(f"  v_cvt_pk_f16_f32 {vr(a_ + i)}, {vr(a2 + i)}, {vr(b2 + i)}")
            e(f"  v_cvt_pk_f16_f32 {vr(b_ + i)}, {vr(b2 + i)}, -{vr(a2 + i)}")
        e(f"  ds_write_b128 {vr(wa)}, {vr(a_, 4)} offset:{QB + 1536 * p}")
        e(f"  ds_write_b128 {vr(wa)}, {vr(b_, 4)} offset:{QB + 1536 * p + 384}")
        e(f"  ds_write_b64 {vr(vSq)}, {vr(qn + 2, 2)} offset:{QS + 16 * p}")
        e(f"  ds_write_b32 {vr(vZ)}, {vr(h0)} offset:{FL + 16}")
        qmask(0)

    angle(0)
    rotate(0)
    item(0)
    hpf()
    e("  s_waitcnt lgkmcnt(0)")
    e("  s_setprio 0")
    hpf()
    e("  s_barrier")
    hpf()
    for p in range(8):
        e(f"  v_and_b32 {vr(h0)}, 0x7ff, {vr(ra + p)}")
        e(f"  v_lshl_add_u32 {vr(h0)}, {vr(h0)}, 9, {vr(vL16)}")
        for i, sp in enumerate((sKS, sVS)):
            e(f"  s_mov_b32 m0, {SCB + SA * i + 1024 * p}")
            e("  s_nop 0")
            e(f"  global_load_lds_dwordx4 {vr(h0)}, s[{sp}:{sp + 1}] nt")
            hv.append(("s", p))
    rotate(1)
    for p in range(1, 8):
        item(p)
    e(f"  v_mov_b32 {vr(vSa)}, 0")
    e(f"  v_mov_b32 {vr(vSq)}, 0")
    e(f"  v_min_u32 {vr(u)}, 47, {vr(l)}")
    e(f"  v_lshlrev_b32 {vr(vL16)}, 4, {vr(u)}")
    for i in range(4):
        e(f"  v_mov_b32 {vr(sc + i)}, 0")
    e(f"  s_mov_b32 s{sNEED}, 1")
    e("  s_cmp_eq_u32 s2, 0")
    e("  s_cbranch_scc0 L_rc")
    e(f"  v_mov_b32 {vr(h0)}, {W_REC + 384 + 4}")
    e(f"  global_load_dword {vr(h1)}, {vr(h0)}, s[{sWS}:{sWS + 1}] sc1")
    if P.ctl:
        e(f"  s_mov_b64 exec, {msk:#x}")
        e(f"  global_store_dword {vr(vFA)}, {vr(vZ)}, s[{sWS}:{sWS + 1}] sc1")
    e("  s_mov_b64 exec, 1")
    e("  s_waitcnt vmcnt(0)")
    e(f"  v_and_b32 {vr(qn)}, 0x77777777, {vr(h1)}")
    e(f"  v_and_b32 {vr(h1)}, 0x88888888, {vr(h1)}")
    e(f"  v_add_u32 {vr(qn)}, 0x11111111, {vr(qn)}")
    e(f"  v_xor_b32 {vr(qn)}, {vr(qn)}, {vr(h1)}")
    e(f"  v_mov_b32 {vr(qn + 1)}, 1")
    e(f"  global_store_dwordx2 {vr(vZ)}, {vr(qn, 2)}, s[{sDBG}:{sDBG + 1}] sc1")
    e("  s_mov_b64 exec, -1")
    e("L_rc:")
    hpf()
    e("  s_waitcnt vmcnt(0)")
    hpf()
    if P.tfine:
        e("  s_waitcnt lgkmcnt(0)")
        e(f"  v_mov_b32 {vr(h0)}, 0")
        for k in range(hpn[0]):
            e(f"  v_writelane_b32 {vr(h0)}, s{HPF[k]}, {k}")
        e(f"  s_mul_i32 s{sT0}, s2, {5 * 256}")
        e(f"  s_add_u32 s{sT0}, s{sT0}, {0x100000 + 1024}")
        e(f"  v_lshl_add_u32 {vr(h1)}, v0, 2, s{sT0}")
        e(f"  global_store_dword {vr(h1)}, {vr(h0)}, s[{sWS}:{sWS + 1}]")
    for k in range(4):
        e(f"  v_and_b32 {vr(ro + 2 * k)}, 0xffff, {vr(st4 + k)}")
        e(f"  v_lshrrev_b32 {vr(ro + 2 * k + 1)}, 16, {vr(st4 + k)}")
    for k in range(2):
        e(f"  v_add_u32 {vr(ro + 6 + k)}, {SCB}, {vr(ro + 6 + k)}")
    if P.sd:
        e(f"  v_mov_b32 {vr(vCL)}, 0")
    e("L_hk:")
    for a in range(2):
        for k in range(2):
            e(f"  ds_read_u16_d16_hi {vr(sc + 2 * a + k)}, {vr(ro + 6 + k)} offset:{SA * a}")
    e(f"  ds_read_b64 {vr(z4 + 2, 2)}, {vr(vSq)} offset:{QS}")
    e(f"  v_add_u32 {vr(vSq)}, 8, {vr(vSq)}")
    progwait("hsw", P.psk)
    mark("s")
    rank_post("s")
    for k in range(6):
        e(f"  ds_read_b32 {vr(x + 4 + k)}, {vr(ro + k)} offset:{LGB}")
    e(f"  v_mul_f32 {vr(x + 2)}, {vr(z4 + 2)}, {vr(sc)}")
    e(f"  v_mul_f32 {vr(x + 3)}, {vr(z4 + 2)}, {vr(sc + 1)}")
    e("  s_waitcnt lgkmcnt(0)")
    e(f"  v_pk_add_f32 {vr(x, 2)}, {vr(x + 4, 2)}, {vr(x + 6, 2)}")
    e(f"  v_pk_add_f32 {vr(x, 2)}, {vr(x, 2)}, {vr(x + 8, 2)}")
    e(f"  v_mul_f32 {vr(x)}, {vr(x)}, {vr(x + 2)}")
    e(f"  v_mul_f32 {vr(x + 1)}, {vr(x + 1)}, {vr(x + 3)}")
    e(f"  v_max_f32 {vr(z4)}, {vr(x)}, {vr(x + 1)}")
    allred("v_max_f32", z4, h0)
    e(f"  v_sub_f32 {vr(x)}, {vr(x)}, {vr(z4)}")
    e(f"  v_sub_f32 {vr(x + 1)}, {vr(x + 1)}, {vr(z4)}")
    e(f"  v_exp_f32 {vr(x)}, {vr(x)}")
    e(f"  v_exp_f32 {vr(x + 1)}, {vr(x + 1)}")
    e("  s_nop 0")
    e(f"  v_add_f32 {vr(z4 + 1)}, {vr(x)}, {vr(x + 1)}")
    e(f"  v_mul_f32 {vr(x)}, {vr(x)}, {vr(sc + 2)}")
    e(f"  v_mul_f32 {vr(x + 1)}, {vr(x + 1)}, {vr(sc + 3)}")
    e(f"  v_add_f32 {vr(z4 + 2)}, {vr(x)}, {vr(x + 1)}")
    for k in range(6):
        e(f"  ds_write_b32 {vr(ro + k)}, {vr(x + (k & 1))} offset:{LGB}")
    e(f"  v_mul_f32 {vr(z4 + 2)}, {f32bits(7.5):#x}, {vr(z4 + 2)}")
    allred("v_add_f32", z4 + 1, h0)
    allred("v_add_f32", z4 + 2, h0)
    e(f"  v_mov_b32 {vr(h0)}, s{sNEED}")
    e(f"  ds_write_b128 {vr(vSa)}, {vr(z4, 4)} offset:{ST}")
    e(f"  ds_write_b32 {vr(vZ)}, {vr(h0)} offset:{FL + 20}")
    e(f"  v_add_u32 {vr(vSa)}, 16, {vr(vSa)}")
    for k in range(8):
        e(f"  v_add_u32 {vr(ro + k)}, {1536 if k < 6 else SL}, {vr(ro + k)}")
    rank_take("s")
    elect()
    e("  s_waitcnt lgkmcnt(0)")
    e(f"  s_add_u32 s{sNEED}, s{sNEED}, 1")
    e(f"  s_cmp_le_u32 s{sNEED}, 16")
    e("  s_cbranch_scc1 L_hk")

    e(f"  v_and_b32 {vr(h0)}, 15, {vr(l)}")
    e(f"  v_lshlrev_b32 {vr(h0)}, 4, {vr(h0)}")
    e(f"  ds_read_b128 {vr(z4, 4)}, {vr(h0)} offset:{ST}")
    e(f"  v_lshrrev_b32 {vr(h1)}, 4, {vr(l)}")
    e(f"  v_mov_b32 {vr(h2)}, 0xff800000")
    for i in range(16):
        e(f"  v_mov_b32 {vr(AC + i)}, 0")
    e("  s_waitcnt lgkmcnt(0)")
    e(f"  v_cmp_eq_u32 vcc, {vr(h1)}, {vr(z4 + 3)}")
    e(f"  v_add_u32 {vr(h0)}, {PB}, {vr(vL16)}")
    e(f"  v_lshrrev_b32 {vr(u)}, 1, {vr(vL16)}")
    e(f"  v_cndmask_b32 {vr(vM)}, {vr(h2)}, {vr(z4)}, vcc")
    rowred("v_max_f32", vM)
    e(f"  v_sub_f32 {vr(vFc)}, {vr(z4)}, {vr(vM)}")
    e(f"  v_exp_f32 {vr(vFc)}, {vr(vFc)}")
    e(f"  s_mov_b32 s{sK}, 0")
    e(f"  v_cndmask_b32 {vr(vFc)}, 0, {vr(vFc)}, vcc")
    e(f"  v_mul_f32 {vr(vL)}, {vr(vFc)}, {vr(z4 + 1)}")
    rowred("v_add_f32", vL)
    e(f"  s_mul_i32 s{sT0}, s{sE + 15}, 384")
    e(f"  s_add_u32 s{sOUT}, s{sOUT}, s{sT0}")
    e(f"  s_addc_u32 s{sOUT + 1}, s{sOUT + 1}, 0")
    e("L_hp:")
    e(f"  s_lshr_b32 s{sT0}, s2, 4")
    e(f"  s_min_u32 s{sT0}, s{sT0}, 13")
    e(f"  s_cmp_eq_u32 s{sT0}, s{sK}")
    e("  s_cbranch_scc0 L_hc_ok")
    e(f"  s_load_dwordx2 s[{sZ}:{sZ + 1}], s[{sDBG}:{sDBG + 1}], 0 glc")
    e("  s_waitcnt lgkmcnt(0)")
    e(f"  s_mov_b32 s{sTG}, s{sZ}")
    e(f"  s_cmp_eq_u32 s{sZ + 1}, 1")
    e("  s_cbranch_scc1 L_hc_ok")
    e("L_hc:")
    e(f"  global_load_dwordx2 {vr(pr, 2)}, {vr(vZ)}, s[{sDBG}:{sDBG + 1}] sc1")
    e("  s_waitcnt vmcnt(0)")
    e(f"  v_readfirstlane_b32 s{sTG}, {vr(pr)}")
    e(f"  v_readfirstlane_b32 s{sF}, {vr(pr + 1)}")
    e(f"  s_cmp_eq_u32 s{sF}, 1")
    e("  s_cbranch_scc1 L_hc_ok")
    budget("L_hc_ok")
    e("  s_sleep 64")
    e("  s_branch L_hc")
    e("L_hc_ok:")
    vstep_k(sH, sK)
    e(f"  s_lshl_b32 s{sT0}, s{sH}, 4")
    e(f"  v_mov_b32 {vr(h1)}, s{sT0}")
    for j in range(4):
        e(f"  v_readlane_b32 s{rA + j}, {vr(vFc)}, s{sH}")
        e(f"  s_add_u32 s{sH}, s{sH}, 16")
    e(f"  s_add_u32 s{sK}, s{sK}, 1")
    e(f"  s_add_u32 s{sNEED}, s{sK}, 16")
    progwait("hpw", P.psk)
    mark("p")
    hp(0)
    rank_post("p")
    sum_partials(1)
    for j in range(4):
        for i in range(4):
            e(f"  v_fmac_f32 {vr(AC + 4 * j + i)}, s{rA + j}, {vr(x + i)}")
    e(f"  v_add_u32 {vr(h0)}, 3072, {vr(h0)}")
    rank_take("p")
    e(f"  s_cmp_lt_u32 s{sK}, 15")
    e("  s_cbranch_scc1 L_hp")

    if P.eprio:
        e(f"  s_setprio {P.eprio}")
    e(f"  s_lshr_b32 s{sH}, s{sVO + 1}, 28")
    e(f"  s_lshl_b32 s{sT0}, s{sH}, 4")
    e(f"  v_mov_b32 {vr(h1)}, s{sT0}")
    e(f"  s_add_u32 s{sH}, s{sH}, 48")
    e(f"  ds_read_b32 {vr(h1)}, {vr(h1)} offset:{ST + 8}")
    mx = x + 16
    for j in range(3):
        e(f"  v_max3_f32 {vr(mx + j)}, |{vr(AC + 4 * j)}|, |{vr(AC + 4 * j + 1)}|, |{vr(AC + 4 * j + 2)}|")
    for j in range(3):
        e(f"  v_max_f32_e64 {vr(mx + j)}, {vr(mx + j)}, |{vr(AC + 4 * j + 3)}|")
    for n in (8, 4, 2, 1):
        for j in range(3):
            e(f"  v_max_f32_dpp {vr(mx + j)}, {vr(mx + j)}, {vr(mx + j)} row_ror:{n} row_mask:0xf bank_mask:0xf")
    for sw in ("v_permlane16_swap_b32", "v_permlane32_swap_b32"):
        for j in range(3):
            e(f"  v_mov_b32 {vr(mx + 4 + j)}, {vr(mx + j)}")
        for j in range(3):
            e(f"  {sw} {vr(mx + j)}, {vr(mx + 4 + j)}")
        for j in range(3):
            e(f"  v_max_f32 {vr(mx + j)}, {vr(mx + j)}, {vr(mx + 4 + j)}")
    for j in range(3):
        e(f"  v_frexp_exp_i32_f32 {vr(mx + j)}, {vr(mx + j)}")
        e(f"  v_sub_u32 {vr(mx + 4 + j)}, 14, {vr(mx + j)}")
        e(f"  v_subrev_u32 {vr(mx + j)}, 14, {vr(mx + j)}")
        for i in range(4):
            e(f"  v_ldexp_f32 {vr(AC + 4 * j + i)}, {vr(AC + 4 * j + i)}, {vr(mx + 4 + j)}")
        for i in range(2):
            e(f"  v_cvt_pk_f16_f32 {vr(x + 2 * j + i)}, {vr(AC + 4 * j + 2 * i)}, {vr(AC + 4 * j + 2 * i + 1)}")
    for j in range(4):
        e(f"  v_readlane_b32 s{16 + j}, {vr(vM)}, {16 * j}")
        e(f"  v_readlane_b32 s{20 + j}, {vr(vL)}, {16 * j}")
    for j in range(3):
        e(f"  v_readlane_b32 s{rA + j}, {vr(mx + j)}, 0")
    e(f"  v_readlane_b32 s{rA + 3}, {vr(vFc)}, s{sH}")
    for k in range(6):
        e(f"  v_lshrrev_b32 {vr(h2)}, 1, {vr(x + k)}")
        e(f"  v_and_b32 {vr(h2)}, 0x10001, {vr(h2)}")
        e(f"  v_add_u32 {vr(x + k)}, {vr(x + k)}, {vr(h2)}")
    for j in range(3):
        e(f"  v_writelane_b32 {vr(x + 2 * j)}, s{16 + j}, 48")
        e(f"  v_writelane_b32 {vr(x + 2 * j)}, s{20 + j}, 49")
        e(f"  v_writelane_b32 {vr(x + 2 * j + 1)}, s{rA + j}, 49")
    e(f"  v_cmp_gt_u32 vcc, 48, {vr(l)}")
    e(f"  v_lshlrev_b32 {vr(h2)}, 2, {vr(l)}")
    e(f"  v_lshrrev_b32 {vr(h2)}, {vr(h2)}, s{sTG}")
    e(f"  v_mov_b32 {vr(h3)}, 0x10001")
    for i in range(2):
        e(f"  v_cndmask_b32 {vr(tg + 2 + i)}, 0, {vr(h3)}, vcc")
        e(f"  v_bfe_u32 {vr(tg + i)}, {vr(h2)}, {2 * i}, 2")
        e(f"  v_lshl_or_b32 {vr(tg + i)}, {vr(tg + i)}, 15, {vr(tg + i)}")
    e(f"  v_writelane_b32 {vr(tg + 3)}, -1, 48")
    e(f"  v_writelane_b32 {vr(tg + 3)}, s{sMASK}, 49")
    e(f"  v_writelane_b32 {vr(tg + 1)}, s{sTG}, 48")
    e(f"  v_writelane_b32 {vr(tg + 1)}, s{sTG}, 49")
    for i in range(2):
        e(f"  v_and_b32 {vr(tg + i)}, {vr(tg + i)}, {vr(tg + 2 + i)}")
    for k in range(6):
        e(f"  v_bfi_b32 {vr(x + k)}, {vr(tg + 2 + k % 2)}, {vr(tg + k % 2)}, {vr(x + k)}")
    e(f"  v_min_u32 {vr(h2)}, 55, {vr(l)}")
    for j in range(3):
        e(f"  v_lshl_add_u32 {vr(ra + j)}, {vr(h2)}, 3, s{sE + 12 + j}")
    e(f"  s_mul_i32 s{sT0}, s{sE + 15}, 1344")
    e(f"  s_add_u32 s{sT0}, s{sT0}, {W_REC}")
    e(f"  v_lshl_add_u32 {vr(ra + 3)}, {vr(h2)}, 3, s{sT0}")
    e("  s_waitcnt lgkmcnt(0)")
    if P.mg:
        e("; the stores leave part-way into the last step, where they disturb the read stream least")
        e(f"  s_mov_b32 s{sNEED}, {31 + (P.mg > 12)}")
        progwait("hmw", P.psl, FL + 32)
    hp(1)
    e("  s_mov_b32 exec_hi, 0xffffff")
    for j in range(3):
        if "w" not in P.xp:
            e(f"  global_store_dwordx2 {vr(ra + j)}, {vr(x + 2 * j, 2)}, s[{sWS}:{sWS + 1}] sc1")
    e("  s_mov_b64 exec, -1")
    if "r" in P.xp:
        e("  s_branch L_skip")
    if P.ml:
        e(f"  s_mov_b32 s{sNEED}, {31 + (P.ml > 12)}")
        progwait("hlw", P.psl, FL + 48)
    else:
        e(f"  s_waitcnt vmcnt({P.aw})")
    hp(2)
    hp(3)
    e("L_hw:")
    hp(4)
    for j in range(3):
        e(f"  global_load_dwordx2 {vr(rec + 2 * j, 2)}, {vr(ra + 3)}, s[{sWS}:{sWS + 1}] offset:{448 * j} sc1")
    e("  s_waitcnt vmcnt(0)")
    hp(5)
    for k in range(6):
        e(f"  v_xor_b32 {vr(rec + k)}, {vr(rec + k)}, {vr(tg + k % 2)}")
    for i in range(2):
        e(f"  v_or3_b32 {vr(h2 + i)}, {vr(rec + i)}, {vr(rec + 2 + i)}, {vr(rec + 4 + i)}")
    e(f"  v_and_b32 {vr(h2)}, {vr(h2)}, {vr(tg + 2)}")
    e(f"  v_and_or_b32 {vr(h2)}, {vr(h3)}, {vr(tg + 3)}, {vr(h2)}")
    e(f"  v_cmp_ne_u32 s[{sZ}:{sZ + 1}], 0, {vr(h2)}")
    for j in range(3):
        e(f"  v_readlane_b32 s{16 + j}, {vr(rec + 2 * j)}, 48")
        e(f"  v_readlane_b32 s{20 + j}, {vr(rec + 2 * j)}, 49")
        e(f"  v_readlane_b32 s{rA + j}, {vr(rec + 2 * j + 1)}, 49")
    e(f"  s_cmp_eq_u64 s[{sZ}:{sZ + 1}], 0")
    e("  s_cbranch_scc1 L_hy")
    budget("L_hy")
    e("  s_branch L_hw")
    e("L_hy:")
    gj = x + 8
    e(f"  v_mov_b32 {vr(h2)}, s19")
    for j in range(3):
        e(f"  v_max_f32 {vr(h2)}, s{16 + j}, {vr(h2)}")
    for j in range(4):
        e(f"  v_sub_f32 {vr(gj + j)}, s{16 + j}, {vr(h2)}")
    for j in range(4):
        e(f"  v_exp_f32 {vr(gj + j)}, {vr(gj + j)}")
    for j in range(3):
        e(f"  s_sext_i32_i16 s{rA + j}, s{rA + j}")
    e(f"  v_mul_f32 {vr(wa)}, s23, {vr(gj + 3)}")
    for j in range(3):
        e(f"  v_fmac_f32 {vr(wa)}, s{20 + j}, {vr(gj + j)}")
    for i in range(4):
        e(f"  v_mul_f32 {vr(fo + i)}, {vr(AC + 12 + i)}, {vr(gj + 3)}")
    e(f"  v_rcp_f32 {vr(wa)}, {vr(wa)}")
    for j in range(3):
        e(f"  v_ldexp_f32 {vr(gj + j)}, {vr(gj + j)}, s{rA + j}")
    for j in range(3):
        for i in range(4):
            e(f"  v_fma_mix_f32 {vr(fo + i)}, {vr(rec + 2 * j + i // 2)}, {vr(gj + j)}, {vr(fo + i)} op_sel:[{i & 1},0,0] op_sel_hi:[1,0,0]")
    e(f"  v_mul_f32 {vr(h2)}, s{rA + 3}, {vr(gj + 3)}")
    e(f"  v_mul_f32 {vr(h2)}, {vr(h2)}, {vr(wa)}")
    e(f"  v_mul_f32 {vr(h3)}, {vr(h2)}, {vr(h1)}")
    for i in range(4):
        e(f"  v_fma_f32 {vr(fo + i)}, {vr(fo + i)}, {vr(wa)}, -{vr(h3)}")
    if "r" in P.xp:
        e("L_skip:")
    hp(6)
    e("  s_barrier")
    hp(7)
    for k in range(4):
        e(f"  ds_read_b128 {vr(x + 4 * k, 4)}, {vr(h0)} offset:{768 * k}")
    e("  s_waitcnt lgkmcnt(2)")
    for h in (0, 2):
        e(f"  v_pk_add_f32 {vr(x + h, 2)}, {vr(x + h, 2)}, {vr(x + 4 + h, 2)}")
    e("  s_waitcnt lgkmcnt(0)")
    for h in (0, 2):
        e(f"  v_pk_add_f32 {vr(x + 8 + h, 2)}, {vr(x + 8 + h, 2)}, {vr(x + 12 + h, 2)}")
    for h in (0, 2):
        e(f"  v_pk_add_f32 {vr(x + h, 2)}, {vr(x + h, 2)}, {vr(x + 8 + h, 2)}")
    for i in range(4):
        e(f"  v_fmac_f32 {vr(fo + i)}, {vr(h2)}, {vr(x + i)}")
    e(f"  v_cvt_pk_bf16_f32 {vr(fo)}, {vr(fo)}, {vr(fo + 1)}")
    e(f"  v_cvt_pk_bf16_f32 {vr(fo + 1)}, {vr(fo + 2)}, {vr(fo + 3)}")
    e("  s_mov_b32 exec_hi, 0xffff")
    e(f"  global_store_dwordx2 {vr(u)}, {vr(fo, 2)}, s[{sOUT}:{sOUT + 1}] {P.of}")
    if P.sd:
        e(f"  s_mov_b32 s{sNEED}, 32")
        e("  s_mov_b64 exec, -1")
        mark("z")
        e(f"  s_cmp_eq_u32 s{sJ}, 0")
        e("  s_cbranch_scc0 L_sd")
        e(f"  v_lshlrev_b32 {vr(h0)}, 2, {vr(l)}")
        e("  s_mov_b32 exec_lo, 0")
        e("  s_mov_b32 exec_hi, 0x3fff")
        e(f"  global_atomic_add {vr(h0)}, {vr(vCL)}, s[{sDBG}:{sDBG + 1}] offset:-120 sc1")
        e("L_sd:")
    if P.enc:
        m0, m1, base, amp, wg = [int(v) for v in P.enc.split(",")]
        if m1 == 32:
            e("  s_memrealtime s[74:75]")
        if m0 == 0:
            e(f"  s_mov_b32 s72, s{sST}")
        e("  s_waitcnt lgkmcnt(0)")
        if P.em:
            e(f"  s_not_b32 s73, s{sST}")
            e(f"  s_mov_b32 s72, s{sST}")
            e(f"  s_atomic_umax s74, s[{sDBG}:{sDBG + 1}], 40")
            e(f"  s_atomic_umax s73, s[{sDBG}:{sDBG + 1}], 44")
            e(f"  s_atomic_umax s72, s[{sDBG}:{sDBG + 1}], 48")
        else:
            e("  s_sub_u32 s72, s74, s72")
            e(f"  s_atomic_add s72, s[{sDBG}:{sDBG + 1}], 32")
        e(f"  s_cmp_eq_u32 s2, {wg}")
        e("  s_cbranch_scc0 L_nohold")
        e("L_hold0:")
        e(f"  s_memrealtime s[{sST + 2}:{sST + 3}]")
        e("  s_waitcnt lgkmcnt(0)")
        e(f"  s_sub_u32 s{sT0}, s{sST + 2}, s{sST}")
        e(f"  s_cmp_lt_u32 s{sT0}, 12500")
        e("  s_cbranch_scc1 L_hold0")
        e("  s_mov_b32 s72, 0")
        if P.em:
            e("  s_mov_b32 s73, 0")
            e(f"  s_atomic_add s72, s[{sDBG}:{sDBG + 1}], {48 if P.em == 3 else 40} glc")
            e(f"  s_atomic_add s73, s[{sDBG}:{sDBG + 1}], {48 if P.em == 2 else 44} glc")
            e("  s_waitcnt lgkmcnt(0)")
            if P.em != 2:
                e("  s_not_b32 s73, s73")
            e("  s_sub_u32 s72, s72, s73")
            e("  s_lshl_b32 s72, s72, 8")
        else:
            e(f"  s_atomic_add s72, s[{sDBG}:{sDBG + 1}], 32 glc")
            e("  s_waitcnt lgkmcnt(0)")
        e(f"  s_sub_u32 s72, s72, {base * 256}")
        e("  s_max_i32 s72, s72, 0")
        e("  s_min_i32 s72, s72, 128000")
        e(f"  s_mul_i32 s72, s72, {amp}")
        e("  s_lshr_b32 s72, s72, 8")
        e("  s_add_u32 s72, s72, 13000")
        e("L_hold:")
        e(f"  s_memrealtime s[{sST + 2}:{sST + 3}]")
        e("  s_waitcnt lgkmcnt(0)")
        e(f"  s_sub_u32 s{sT0}, s{sST + 2}, s{sST}")
        e(f"  s_cmp_lt_u32 s{sT0}, s72")
        e("  s_cbranch_scc1 L_hold")
        e("L_nohold:")
        e("  s_waitcnt lgkmcnt(0)")
    if P.tail:
        e("; diagnostic build only")
        e("  s_memrealtime s[72:73]")
        e("L_tail:")
        e("  s_memrealtime s[74:75]")
        e("  s_waitcnt lgkmcnt(0)")
        e("  s_sub_u32 s74, s74, s72")
        e(f"  s_cmp_lt_u32 s74, {P.tail}")
        e("  s_cbranch_scc1 L_tail")
    if P.hold:
        e("; diagnostic build only")
        e("L_hold:")
        e(f"  s_memrealtime s[{sST + 2}:{sST + 3}]")
        e("  s_waitcnt lgkmcnt(0)")
        e(f"  s_sub_u32 s{sT0}, s{sST + 2}, s{sST}")
        e(f"  s_cmp_lt_u32 s{sT0}, {P.hold}")
        e("  s_cbranch_scc1 L_hold")
    if P.stamp:
        e(f"  s_memrealtime s[{sST + 2}:{sST + 3}]")
        if P.hprof:
            e("  s_waitcnt lgkmcnt(0)")
            e("  s_lshl_b32 s44, s2, 5")
            e("  s_add_u32 s44, s44, 0x80000")
            e("  v_mov_b32 v1, s44")
            for k in range(8):
                e(f"  s_sub_u32 s45, s{sST + 2}, s{HP[k]}")
                e(f"  v_mov_b32 v{4 + k}, s45")
            e(f"  global_store_dwordx4 v1, v[4:7], s[{sWS}:{sWS + 1}]")
            e(f"  global_store_dwordx4 v1, v[8:11], s[{sWS}:{sWS + 1}] offset:16")
            e("  s_nop 2")
        e("  s_getreg_b32 s6, hwreg(HW_REG_XCC_ID)")
        e("  s_getreg_b32 s7, hwreg(HW_REG_HW_ID)")
        e("  s_waitcnt lgkmcnt(0)")
        e(f"  v_mov_b32 v4, s{sST}")
        e(f"  v_mov_b32 v5, s{sST + 2}")
        e("  v_mov_b32 v6, s6")
        e("  v_mov_b32 v7, s7")
        e("  s_lshl_b32 s8, s2, 4")
        e("  v_mov_b32 v1, s8")
        e(f"  global_store_dwordx4 v1, v[4:7], s[{sWS}:{sWS + 1}]")
    e("L_end:")
    e("  s_endpgm")
    e(".p2align 6")
    e(".type L_order,@object")
    e("L_order:")
    for k in range(0, len(ordtab), 8):
        e("  .long " + ", ".join(f"{v:#x}" for v in ordtab[k:k + 8]))
    e(".type L_hpos,@object")
    e("L_hpos:")
    for b in range(2):
        at = {chunk_of(b, n, s_): lpos(n, s_) for n in range(24) for s_ in range(16)}
        rows = sorted({c // 3 for c in at})
        for l_ in range(64):
            r0, r1 = rows[l_], rows[l_ + 64]
            e("  .long " + ", ".join(f"{a_ | b_ << 16:#x}" for a_, b_ in [(at[3 * r0 + k], at[3 * r1 + k]) for k in range(3)] + [(2 * r0, 2 * r1)]))
    e('.section .rodata,"a"')
    e(".p2align 6")
    e(f".amdhsa_kernel {NAME}_kernel")
    e(f"  .amdhsa_next_free_vgpr {NV}")
    e("  .amdhsa_next_free_sgpr 100")
    e(f"  .amdhsa_accum_offset {(NV + 3) // 4 * 4}")
    e("  .amdhsa_group_segment_fixed_size 0")
    e("  .amdhsa_kernarg_size 112")
    e("  .amdhsa_user_sgpr_count 2")
    e("  .amdhsa_user_sgpr_kernarg_segment_ptr 1")
    e("  .amdhsa_system_sgpr_workgroup_id_x 1")
    e(".end_amdhsa_kernel")
    return "\n".join(o) + "\n", NV


if __name__ == "__main__":
    ap = argparse.ArgumentParser()
    ap.add_argument("-o", default=f"/code/{NAME}.s")
    for name, d in (("sh", 4), ("deep", 5), ("pd", 9), ("pre", 12), ("nf", 6), ("su", 3), ("hp0", 3), ("tst", 24),
                    ("ctl", 1), ("hi", 0), ("hiv", 5), ("lo", -25), ("thr", 2), ("tp", 2), ("start", 5), ("s0", 0), ("ba", 3),
                    ("r0", 2), ("r1", 30), ("rf", 3), ("rp", 2), ("rt", 26), ("rotl", 7), ("kp", 7), ("kp0", 6), ("kn", 20),
                    ("top", 26), ("tpn", 1), ("lag", 2), ("mg", 8), ("ml", 0), ("aw", 0), ("sd", 0), ("em", 0), ("tail", 0),
                    ("eprio", 2), ("psl", 1), ("psk", 1), ("spr", 1), ("bound", 4000000), ("hold", 0), ("dly", 0), ("dlb", 2)):
        ap.add_argument("--" + name, type=int, default=d)
    ap.add_argument("--kp_", default="6,6,6,7,8,9,9,10,10,11,11,12,12", help="K loads issued by each prologue point")
    ap.add_argument("--of", default="")
    ap.add_argument("--enc", default="", help="diagnostic only: m0,m1,base,amp,wg")
    ap.add_argument("--ok", default="REXbLbLbL", help="events of a K group")
    ap.add_argument("--ov", default="REXbLbLbL", help="events of a V group")
    ap.add_argument("--rk", default="", help="die gain per step (hex digits, 0 = no ranking)")
    ap.add_argument("--sb", default="", help="step:bias,... added to the lateness")
    ap.add_argument("--pf", default="sc1")
    ap.add_argument("--tpp", default="012", help="positions with a third level")
    ap.add_argument("--bu", default="012", help="extra depth per position in the issued group")
    ap.add_argument("--th", default="-9,5,13")
    ap.add_argument("--sch", default="ut_a6.txt")
    ap.add_argument("--xp", default="", help="timing experiments only")
    for name in ("stamp", "trace", "tfine", "hprof"):
        ap.add_argument("--" + name, action="store_true", help="diagnostics only")
    a = ap.parse_args()
    txt, nv = gen(a)
    open(a.o, "w").write(txt)
    print("wrote", a.o, "vgprs", nv)
```

```python
import argparse
import math
import os
import struct
from gen import HEADER, NAME, Alloc, f32bits, vr

UB = 256 * 768

ABOUT = """
Generated by tools/gen10.py.
Work split: a unit is a block of 256 KV rows of one head.  Workgroups g and g ^ 8 share 16 units of four heads (table
  L_order) and alternate over the 32 KiB runs of a unit, 128 rows each.
  Waves 1-4 stream one 4 KiB block per round; a 16-lane row handles one third (64 dims) of a KV row per load.
  K sweep: logit = k_scale * sum_d (qk - 7.5) * (qa * cos + qb * sin), RoPE moved onto the rotated q;
  V sweep: partial = sum_rows p * v_scale * qv.
  Wave 0 (helper) rotates q, takes max / exp / sums over the workgroup's rows of each unit, and merges partials.
Constant parameters (the same for every seed) are built in: both zero points (7.5), q_cos / q_sin (table L_qcs) and
  k_cos / k_sin = cos / sin(row * inv_freq).  The angle is split into the part of the row inside its unit (f16 table in
  LDS, evaluated once from L_inv) and the part of the unit (L_f0), by which (qa, qb) is turned in fp32.
Hand-off: every workgroup finishes one of its heads and streams a unit of that head last.  Partials and (max, sum) of
  the other three go to d_ws with sc1 stores; every 8 bytes carry a piece of a tag that differs from the one found there
  on entry (sent round through d_debug).  The finisher reads until all tags fit and rescales to the true row maximum.
Flow control (speed only, results do not depend on it): waves publish a group counter and sample the counters of
  units on the same die; late waves keep one more load in flight, early waves one or two fewer.  Helpers rank the dies.
"""

RUN = (1, 2, 0)


def chunk_of(b, n, s):
    g = 256 * RUN[n >> 3] + 128 * b + 16 * (n & 7) + s
    return {128: 512, 255: 639, 512: 128, 639: 255}.get(g, g)


def tidx(b, row):
    return row - 43 * b - 42 * ((row >= 85) + (row >= 171))


def rev(x, bits):
    return int(format(x, f"0{bits}b")[::-1], 2)


def lpos(n, s):
    return 4 * (16 * s + rev(n, 4)) if n < 16 else 1024 + 4 * (8 * s + rev(n - 16, 3))


TN = [(RUN[n >> 3] + (n & 7)) % 3 for n in range(24)]
SPECIAL = {n: i for i, n in enumerate(sorted(8 * RUN.index(r) + i for r in (0, 2) for i in (0, 7)))}
for b_ in range(2):
    ch = sorted(chunk_of(b_, n, s) for n in range(24) for s in range(16))
    assert ch == sorted(3 * r + k for r in {c // 3 for c in ch} for k in range(3))
    assert all(chunk_of(b_, n, s) % 3 == (TN[n] + 2 * b_ + s) % 3 for n in range(24) for s in range(16))
    assert len({tidx(b_, c // 3) for c in ch}) == 128 and max(tidx(b_, c // 3) for c in ch) == 128


def gen(P):
    o = []
    e = o.append
    RING, PD = 24, P.pd
    sh, deep = P.sh, P.deep
    PRE = P.pre
    TP = P.tp
    LAG = P.lag
    assert deep <= PD - 1 and sh <= deep and PD <= PRE
    SL = 512
    SA = 16 * SL

    FL = 0
    QS = 128
    ST = 256
    TB = 512
    QB = TB + 129 * 384
    LGB = QB + 16 * 768 + 1536
    SCB = LGB + 16 * 1536
    PB = SCB + 2 * SA
    QR = PB + 49152
    LDS = QR + 4 * 784
    assert 81920 < LDS <= 163840
    W_REC = 0x400000
    W_RK = 0x780000
    W_PL = 0x7c0000

    sQ, sQK, sKS, sKZ, sQV, sVS, sVZ, sQC = 4, 6, 8, 10, 12, 14, 16, 18
    sQS, sKC, sKSN, sOUT = 20, 22, 24, 26
    sDBG, sWS = 28, 30
    rA, rB = 32, 36
    sW, sJ, sC, sK, sT0, sT1, sF, sNEED = 40, 41, 42, 43, 44, 45, 46, 47
    sMSK = 48
    sOF = 51
    sE = 48
    sCO = 61
    sZ = 64
    sMASK, sSCALE, sH = 66, 67, 68
    sS = 69
    sX = 70
    sRF = 80
    sST = 84
    sB = 91
    sVO = 92
    sSP = 94
    sI = 95
    sSE, sCU = 81, 79
    sLO = 78
    sTG = 99

    va = Alloc(1)
    vT16, vF, vZ, vC16 = [va.take(1) for _ in range(4)]
    voff = va.take(7)
    vTA = va.take(7)
    vQA = va.take(3)
    vPA = va.take(3)
    vLG = va.take(2)
    vLB = va.take(2)
    vLV = va.take(2)
    A = va.take(2)
    LG = va.take(2)
    M1, M2, M3 = [va.take(1) for _ in range(3)]
    bc = va.take(2, 2)
    dacc = va.take(2, 2)
    wt = va.take(4, 2)
    vtr, vPW, vPS, vN, vSum, vSu2, vBA = [va.take(1) for _ in range(7)]
    vPL = va.take(4)
    vU = va.take(1)
    vBI = va.take(2, 2)
    smp = va.take(4 * LAG, 4)
    qa = va.take(12, 4)
    tab = va.take(24, 4)
    tmp = va.take(12, 4)
    ring = va.take(4 * RING, 4)
    NV = va.n
    acc = qa

    here = os.path.dirname(os.path.abspath(__file__))
    sch = [[int(x) for x in ln.split()] for ln in open(os.path.join(here, P.sch))]
    inv, qcs = [[int(x, 16) for x in ln.split()] for ln in open(os.path.join(here, "consts.txt"))]
    rev_ = [struct.unpack("<f", struct.pack("<I", v))[0] / (2 * math.pi) for v in inv]
    assert sorted(2 * u_ + (g >> 3 & 1) for g in range(256) for u_ in sch[g][:16]) == list(range(4096))
    assert sorted(x[31] >> 3 for x in sch) == list(range(256))
    fill = [0] * 256
    ordtab = []
    for g in range(256):
        ku, own = sch[g][:16], sch[g][31] >> 3
        od = [ku.index(u_) for u_ in sch[g][16:]]
        assert sorted(od) == list(range(16)) and od[0] < 14
        assert ku[0] == (16 * (((g & 7) << 3) + (g >> 4 & 7) + (g >> 7 << 6)) + 14) * 21846 >> 16
        need = list(dict.fromkeys(u_ >> 3 for u_ in ku))
        heads = [h for h in need if h != own] + [own]
        assert len(heads) == 4
        u16 = [u_ | heads.index(u_ >> 3) << 12 for u_ in ku]
        nib = sum(k << (4 * t) for t, k in enumerate(od))
        hq = [h | heads.index(h) << 12 for h in need]
        dst = []
        for h in heads[:3]:
            dst.append(W_REC + 448 * (3 * h + fill[h]))
            fill[h] += 1
        ordtab += [u16[2 * i] | u16[2 * i + 1] << 16 for i in range(8)]
        ordtab += [nib & 0xffffffff, nib >> 32, hq[0] | hq[1] << 16, hq[2] | hq[3] << 16] + dst + [own]
    assert fill == [3] * 256

    def ld(n):
        rr = rA if n < 24 else rB
        n %= 24
        so = f"s{sOF + (n & 7)}" if n & 7 else "0"
        vo = voff + (3 + SPECIAL[n] if n in SPECIAL else n >> 3)
        e(f"  buffer_load_dwordx4 {vr(ring + 4 * n, 4)}, {vr(vo)}, s[{rr}:{rr + 3}], {so} offen nt")

    ORD = {"K": P.ok, "V": P.ov}
    DIST = {"K": PRE, "V": PD}
    bu = [int(x) for x in P.bu]
    th = [int(x) for x in P.th.split(",")]
    assert PD % 3 == 0 and PRE % 3 == 0 and deep == sh + 1

    def memops(ph, a):
        r = []
        for i, c in enumerate(ORD[ph]):
            if c == "X" and P.ctl:
                r += [(i, "B")] * (a == P.ba) + [(i, "S"), (i, "Q")]
            if c == "L":
                r.append((i, "L"))
        return r

    def back(ph, a, i):
        r = [c for j, c in memops(ph, a) if j < i][::-1]
        for k in range(1, 8):
            r += [c for _, c in memops(ph, (a - k) % 8)][::-1]
        return r

    def cnt(ph, a, i, depth):
        depth += bu[ORD[ph][:i].count("L")]
        r = back(ph, a, i)
        return [k + 1 for k, c in enumerate(r) if c == "L"][depth - 2] if depth > 1 else 0

    def swait(ph, a):
        assert ORD[ph].index("E") < ORD[ph].index("X")
        r = back(ph, a, ORD[ph].index("E"))
        return [k for k, c in enumerate(r) if c == "Q"][LAG - 1]

    plain = {}

    def verify():
        ops = [("L", i) for i in range(PRE)]
        done = ORD["K"][:ORD["K"].index("L")].count("b")
        for g in range(256):
            ph, a = "KV"[g >= 128], g % 8
            if 3 * g + PD >= 768 or 128 <= g < 128 + (PRE - PD) // 3:
                for n in range(3 * g, 3 * g + 4 - (g == 255)):
                    plain[n] = len(ops) - 1 - ops.index(("L", n))
                done = max(done, len(ops) - plain[min(3 * g + 3, 767)])
                continue
            nb = nl = 3 * g
            for i, c in enumerate(ORD[ph]):
                if c == "E" and P.ctl:
                    done = max(done, len(ops) - swait(ph, a))
                if c == "X" and P.ctl:
                    ops += [("X", 0)] * (1 + (a == P.ba))
                if c == "b":
                    assert ("L", nb) in ops[:done], nb
                    nb += 1
                if c == "L":
                    done = max(done, len(ops) - cnt(ph, a, i, deep + P.tpn * (P.top < 99 and str(nl % 3) in P.tpp) if P.ctl else sh))
                    ops.append(("L", nl + DIST[ph]))
                    nl += 1
    verify()
    lab = [0]
    rare = []

    def flush():
        o.extend(rare)
        rare.clear()

    def issue(ph, a, i):
        j = ORD[ph][:i].count("L")
        lab[0] += 1
        if P.ctl and j == TP:
            e(f"  s_cmp_lt_i32 s{sS}, {P.lo}")
            e(f"  s_cbranch_scc1 L_t{lab[0]}")
            rare.extend([f"L_t{lab[0]}:", f"  s_waitcnt vmcnt({cnt(ph, a, i, P.thr + 1)})", f"  s_branch L_p{lab[0]}"])
        if P.ctl:
            t = (P.hi if ph == "K" else P.hiv) + th[j]
            assert P.lo <= t < P.top
            top = P.top < 99 and str(j) in P.tpp
            w = lambda d: f"  s_waitcnt vmcnt({cnt(ph, a, i, d)})"
            back = f"  s_branch L_p{lab[0]}"
            if t < 0:
                if top:
                    e(f"  s_sub_u32 s{sT0}, s{sS}, {t + 1}")
                    e(f"  s_cmp_lt_u32 s{sT0}, {P.top - t}")
                    rare.extend([f"L_q{lab[0]}:", w(deep + P.tpn), f"  s_cmp_gt_i32 s{sS}, 0", f"  s_cbranch_scc1 L_p{lab[0]}", w(sh), back])
                else:
                    e(f"  s_cmp_gt_i32 s{sS}, {t}")
                    rare.extend([f"L_q{lab[0]}:", w(sh), back])
                e(f"  s_cbranch_scc0 L_q{lab[0]}")
                e(w(deep))
                e(f"L_p{lab[0]}:")
            elif top:
                e(f"  s_cmp_gt_i32 s{sS}, {t}")
                e(f"  s_cbranch_scc1 L_q{lab[0]}")
                rare.extend([f"L_q{lab[0]}:", w(deep + P.tpn), f"  s_cmp_gt_i32 s{sS}, {P.top}", f"  s_cbranch_scc1 L_p{lab[0]}", w(deep), back])
                e(w(sh))
                e(f"L_p{lab[0]}:")
            else:
                e(f"  s_cmp_gt_i32 s{sS}, {t}")
                e(f"  s_cbranch_scc1 L_p{lab[0]}")
                e(w(sh))
                e(f"L_p{lab[0]}:")
                e(w(deep))
        else:
            e(f"  s_waitcnt vmcnt({cnt(ph, a, i, sh)})")
        ld(3 * a + j + DIST[ph])
        if ph == "V" and 3 * a + j + 1 == P.mg:
            e(f"  ds_write_b32 {vr(vPW)}, {vr(M1)} offset:{FL + 32}")
        if ph == "V" and 3 * a + j + 1 == P.ml:
            e(f"  ds_write_b32 {vr(vPW)}, {vr(M1)} offset:{FL + 48}")

    def evaluate(ph, a):
        if not P.ctl:
            return
        sm = smp + 4 * (a % LAG)
        e(f"  s_waitcnt vmcnt({swait(ph, a)})")
        if a == (P.ba + LAG) % 8:
            e(f"  v_add_u32 {vr(vBI)}, {vr(vBI)}, {vr(vBI + 1)}")
        e(f"  s_add_u32 s{sT0}, s{sLO}, 0x03030303")
        e(f"  v_msad_u8 {vr(vSum)}, s{sLO}, {vr(sm)}, 0")
        e(f"  v_msad_u8 {vr(vSu2)}, s{sT0}, {vr(sm)}, 0")
        if a == (P.ba + LAG) % 8:
            e(f"  v_readfirstlane_b32 s{sB}, {vr(vBI)}")
        for k in range(1, 3):
            e(f"  v_msad_u8 {vr(vSum)}, s{sLO}, {vr(sm + k)}, {vr(vSum)}")
            e(f"  v_msad_u8 {vr(vSu2)}, s{sT0}, {vr(sm + k)}, {vr(vSu2)}")
        e(f"  v_sub_u32 {vr(vSum)}, {vr(vSum)}, {vr(vSu2)}")
        e(f"  s_add_u32 s{sLO}, s{sLO}, 0x01010101")
        e(f"  v_readlane_b32 s{sMASK}, {vr(vSum)}, 0")
        e(f"  v_readlane_b32 s{sSCALE}, {vr(vSum)}, 1")

    def decide(ph, a):
        if not P.ctl:
            return
        if a == (P.ba + LAG) % 8:
            for it in filter(None, P.sb.split(",")):
                st_, b_ = [int(v) for v in it.split(":")]
                if (st_ >= 16) == (ph == "V"):
                    e(f"  s_cmp_eq_u32 s{sK}, {st_ % 16}")
                    e(f"  s_cselect_b32 s{sT0}, {b_}, 0")
                    e(f"  s_add_u32 s{sB}, s{sB}, s{sT0}")
        cur, old = (sI, sCO) if a & 1 else (sCO, sI)
        e(f"  s_add_u32 s{cur}, s{sMASK}, s{sSCALE}")
        e(f"  s_add_u32 s{sS}, s{cur}, s{old}")
        e(f"  s_ashr_i32 s{sS}, s{sS}, 1")
        e(f"  s_add_u32 s{sS}, s{sS}, s{sB}")
        if ph == "K" and a < P.start:
            e(f"  s_cmp_eq_u32 s{sK}, 0")
            e(f"  s_cselect_b32 s{sS}, {P.s0}, s{sS}")

    def exchange(a):
        if not P.ctl:
            return
        e("  s_mov_b64 exec, 1")
        if a == P.ba:
            e(f"  global_load_dwordx2 {vr(vBI, 2)}, {vr(vBA)}, s[{sWS}:{sWS + 1}] {P.pf}")
        e(f"  global_store_byte {vr(vPS)}, {vr(vN)}, s[{sWS}:{sWS + 1}]")
        e("  s_mov_b64 exec, 3")
        e(f"  global_load_dwordx3 {vr(smp + 4 * (a % LAG), 3)}, {vr(vPL + a % 4)}, s[{sWS}:{sWS + 1}] {P.pf}")
        e(f"  v_add_u32 {vr(vN)}, 1, {vr(vN)}")
        e("  s_mov_b64 exec, -1")

    def srd_head(rr, sp, sh_):
        e(f"  s_mul_i32 s{sT0}, s{sh_}, {UB}")
        e(f"  s_add_u32 s{rr}, s{sp}, s{sT0}")
        e(f"  s_addc_u32 s{rr + 1}, s{sp + 1}, 0")

    def vstep_k(dst, src):
        e(f"  s_lshl_b32 s{dst}, s{src}, 2")
        e(f"  s_lshr_b64 s[{sZ}:{sZ + 1}], s[{sVO}:{sVO + 1}], s{dst}")
        e(f"  s_and_b32 s{dst}, s{sZ}, 15")

    def head_of(dst, slot):
        e(f"  s_lshr_b32 s{sT0}, s{slot}, 1")
        e(f"  v_readlane_b32 s{sZ}, {vr(vU)}, s{sT0}")
        e(f"  s_lshl_b32 s{sT0}, s{slot}, 4")
        e(f"  s_lshr_b32 s{sZ}, s{sZ}, s{sT0}")
        e(f"  s_and_b32 s{dst}, s{sZ}, 0x7ff")

    def budget(ok):
        e(f"  s_cmp_eq_u32 s{sSP}, 0")
        e(f"  s_cbranch_scc1 {ok}")
        e(f"  s_sub_u32 s{sSP}, s{sSP}, 1")

    def flagwait(name, off):
        e(f"L_{name}:")
        e("  s_waitcnt lgkmcnt(0)")
        e(f"  v_readfirstlane_b32 s{sF}, {vr(vF)}")
        e(f"  s_cmp_ge_u32 s{sF}, s{sNEED}")
        e(f"  s_cbranch_scc0 L_{name}_no")
        e(f"L_{name}_ok:")
        rare.extend([f"L_{name}_no:", f"  s_cmp_eq_u32 s{sSP}, 0", f"  s_cbranch_scc1 L_{name}_ok", f"  s_sub_u32 s{sSP}, s{sSP}, 1",
                     f"  ds_read_b32 {vr(vF)}, {vr(vZ)} offset:{off}", f"  s_branch L_{name}"])

    def tr():
        if P.trace:
            e(f"  {'s_memtime' if 'm' in P.xp else 's_memrealtime'} s[88:89]")
            e("  s_waitcnt lgkmcnt(0)")
            e(f"  v_writelane_b32 {vr(vtr)}, s88, m0")
            e("  s_add_u32 m0, m0, 1")
            e("  s_min_u32 m0, m0, 63")

    def die_base(dst):
        e(f"  s_getreg_b32 s{sSE}, hwreg(HW_REG_HW_ID, 8, 7)")
        e(f"  s_getreg_b32 s{dst}, hwreg(HW_REG_XCC_ID, 0, 3)")
        e(f"  s_and_b32 s{sCU}, s{sSE}, 15")
        e(f"  s_lshr_b32 s{sSE}, s{sSE}, 5")
        e(f"  s_mul_i32 s{dst}, s{dst}, 4352")
        e(f"  s_add_u32 s{dst}, s{dst}, {W_PL}")

    ha = Alloc(16)
    l, u, h0, h1, h2, h3 = [ha.take(1) for _ in range(6)]
    wa, wb, vSh, vFc, vM, vL = [ha.take(1) for _ in range(6)]
    ro = ha.take(8)
    vL16, vFA, vFX, vFB, vEL, vCL, vSa, vSq = [ha.take(1) for _ in range(8)]
    hq = ha.take(2)
    z4 = ha.take(4, 4)
    cs = ha.take(8, 4)
    f0 = ha.take(4, 4)
    sc = ha.take(4, 4)
    qn = ha.take(4, 4)
    x = ha.take(32, 4)
    pr = ha.take(4, 4)
    fo = ha.take(4, 4)
    rec = ha.take(8, 4)
    AC = ha.take(16, 4)
    st4 = ha.take(4, 4)
    tg = ha.take(4, 4)
    ra = ha.take(8)
    assert ha.n <= NV and vZ < 16

    invX, invY, tK, tA, tN, tO = tmp, tmp + 4, tmp + 8, tab, tab + 4, tab + 8
    PC0 = 20 + 8 * P.stamp + 16 * (P.dly > 0)
    D_INV, D_QCS, D_F0, D_END = 256, 768, 1152, 1536
    NF = P.nf
    assert RUN[0] == 1 and NF <= 8
    e(HEADER.rstrip("\n"))
    e(f"; @launch grid=(256,1,1) block=(320,1,1) lds={LDS}")
    for ln in ABOUT.strip("\n").split("\n"):
        e("; " + ln)
    e('.amdgcn_target "amdgcn-amd-amdhsa--gfx950"')
    e(".text")
    e(f".globl {NAME}_kernel")
    e(".p2align 8")
    e(f".type {NAME}_kernel,@function")
    e(f"{NAME}_kernel:")
    e("  s_cmpk_ge_u32 s2, 0x100")
    e("  s_cbranch_scc1 L_end")
    if P.dly:
        e("; diagnostic build only: half of the dies start late")
        e(f"  s_getreg_b32 s4, hwreg(HW_REG_XCC_ID, {P.dlb}, 1)")
        e("  s_cmp_eq_u32 s4, 0")
        e("  s_cbranch_scc1 L_dly")
        e(f"  s_sleep {P.dly}")
        e("L_dly:")
    if P.stamp:
        e(f"  s_memrealtime s[{sST}:{sST + 1}]")
    e("  s_load_dwordx16 s[4:19], s[0:1], 0")
    e(f"  s_getpc_b64 s[{sZ}:{sZ + 1}]")
    e("L_pc:")
    e("  v_cmp_gt_u32 vcc, 64, v0")
    e(f"  v_lshlrev_b32 {vr(vT16)}, 4, v0")
    e(f"  s_lshr_b32 s{sK}, s2, 4")
    e(f"  s_lshl_b32 s{sF}, s2, 6")
    e(f"  s_add_u32 s{sF}, s{sF}, L_order-L_pc")
    e(f"  s_and_b32 s{sH}, s2, 7")
    e("  s_cbranch_vccz L_s0")
    e(f"  s_load_dwordx16 s[{sE}:{sE + 15}], s[{sZ}:{sZ + 1}], s{sF}")
    e(f"  v_lshl_add_u32 {vr(h0)}, s{sK}, 6, v0")
    e(f"  v_mul_u32_u24 {vr(h0)}, {P.tst}, {vr(h0)}")
    e(f"  global_load_dword {vr(h3)}, {vr(h0)}, s[{sZ}:{sZ + 1}] offset:{D_QCS - PC0}")
    e("  s_branch L_helper")
    e("L_s0:")
    e(f"  v_and_b32 {vr(vC16)}, 0xf0, {vr(vT16)}")
    e(f"  global_load_dwordx4 {vr(invX, 4)}, {vr(vC16)}, s[{sZ}:{sZ + 1}] offset:{D_INV - PC0}")
    e(f"  global_load_dwordx4 {vr(invY, 4)}, {vr(vC16)}, s[{sZ}:{sZ + 1}] offset:{D_INV + 256 - PC0}")
    e(f"  s_and_b32 s{sT1}, s{sK}, 8")
    e(f"  s_add_u32 s{sH}, s{sH}, s{sT1}")
    e(f"  s_and_b32 s{sT1}, s{sK}, 7")
    e(f"  s_lshl3_add_u32 s{sH}, s{sH}, s{sT1}")
    e(f"  s_lshl4_add_u32 s{sH}, s{sH}, 14")
    e(f"  s_mulk_i32 s{sH}, 21846")
    e(f"  s_lshr_b32 s{sC}, s{sH}, 16")
    e(f"  s_mul_i32 s{sT0}, s{sC}, {UB}")
    e(f"  s_and_b32 s{sT1}, s2, 8")
    e(f"  s_lshl_b32 s{sT1}, s{sT1}, 12")
    e(f"  s_add_u32 s{sT0}, s{sT0}, s{sT1}")
    e(f"  s_add_u32 s{sT0}, s{sT0}, {65536 * RUN[0] - 1024 + 4096}")
    e(f"  v_add_u32 {vr(tA)}, s{sT0}, {vr(vT16)}")
    for k in range(1, (NF + 1) // 2):
        e(f"  v_add_u32 {vr(tA + k)}, {8192 * k}, {vr(tA)}")
    e("  s_waitcnt lgkmcnt(0)")
    for n in range(NF):
        e(f"  global_load_dwordx4 {vr(ring + 4 * n, 4)}, {vr(tA + n // 2)}, s[{sQK}:{sQK + 1}] offset:{4096 * (n % 2) - 4096} nt")
    e("  s_branch L_s1")
    e("L_b0:")
    e(f".if (L_b0 - {NAME}_kernel > {D_INV}) || (L_pc - {NAME}_kernel != {PC0})")
    e('.error "entry block layout"')
    e(".endif")
    e(".p2align 8")
    e(".type L_inv,@object")
    e("L_inv:")
    tb = [f32bits(v) for v in rev_[:64] + rev_[64:] + rev_[64:]]
    for k in range(0, 128, 8):
        e("  .long " + ", ".join(f"{v:#x}" for v in tb[k:k + 8]))
    e(".type L_qcs,@object")
    e("L_qcs:")
    for k in range(0, 96, 8):
        e("  .long " + ", ".join(f"{v:#x}" for v in qcs[k:k + 8]))
    e(".type L_f0,@object")
    e("L_f0:")
    for k in range(0, 96, 8):
        e("  .long " + ", ".join(f"{f32bits(256 * v - round(256 * v)):#x}" for v in rev_[k:k + 8]))

    def common():
        e(f"  s_load_dwordx8 s[24:31], s[0:1], 80")
        e(f"  v_mov_b32 {vr(vZ)}, 0")
        e(f"  s_mov_b32 s{sSP}, {P.bound}")
        e(f"  s_bfe_u32 s{sJ}, s2, 0x10003")

    PFR = [4, 8, 10, 14, 62, 72, 74, 76, 82, 86, 96, 98]
    pfn = [0]

    def pf():
        if P.tfine:
            e(f"  {'s_memtime' if 'm' in P.xp else 's_memrealtime'} s[{PFR[pfn[0]]}:{PFR[pfn[0]] + 1}]")
            pfn[0] += 1

    e("L_s1:")
    w_, s_, vAD, vC8, t0, t1 = wt, wt + 1, wt + 2, wt + 3, dacc, dacc + 1
    vRF, pos = vT16, tK + 3
    if P.trace:
        e(f"  v_mov_b32 {vr(vtr)}, 0")
        e("  s_mov_b32 m0, 0")
    pf()
    e("  v_subrev_u32 v0, 64, v0")
    e(f"  s_setprio {P.spr}")
    e(f"  s_load_dwordx8 s[16:23], s[{sZ}:{sZ + 1}], s{sF}")
    e(f"  s_add_u32 s{sF}, s{sF}, 32")
    e(f"  s_load_dwordx2 s[{sVO}:{sVO + 1}], s[{sZ}:{sZ + 1}], s{sF}")
    e(f"  s_movk_i32 s{sNEED}, 768")
    common()
    e(f"  v_lshrrev_b32 {vr(w_)}, 6, v0")
    e(f"  v_lshrrev_b32 {vr(s_)}, 4, v0")
    e(f"  v_and_b32 {vr(vC8)}, 0x70, {vr(vC16)}")
    e(f"  v_readfirstlane_b32 s{sW}, {vr(w_)}")
    e(f"  v_add_u32 {vr(vAD)}, {vr(vC8)}, {vr(s_)}")
    e(f"  s_mul_i32 s{sT0}, s{sJ}, 44")
    e(f"  s_sub_u32 s{sT0}, 86, s{sT0}")
    e(f"  v_cmp_eq_u32 vcc, s{sT0}, {vr(vAD)}")
    e(f"  v_mov_b32 {vr(t0)}, 0x80")
    e(f"  s_mov_b32 s{rA + 2}, {UB}")
    e(f"  v_cndmask_b32 {vr(vAD)}, {vr(vAD)}, {vr(t0)}, vcc")
    e(f"  v_mul_u32_u24 {vr(t0)}, 381, {vr(vAD)}")
    e(f"  s_mul_i32 s{sT0}, s{sJ}, 43")
    e(f"  v_add_u32 {vr(t0)}, 2, {vr(t0)}")
    e(f"  v_lshrrev_b32 {vr(t0)}, 14, {vr(t0)}")
    assert all((381 * i + 2) >> 14 == (i >= 43) + (i >= 86) for i in range(129))
    e(f"  v_mad_u32_u24 {vr(t0)}, {vr(t0)}, 42, {vr(vAD)}")
    e(f"  v_add_u32 {vr(t0)}, s{sT0}, {vr(t0)}")
    e(f"  v_cvt_f32_u32 {vr(vRF)}, {vr(t0)}")
    e(f"  v_mul_u32_u24 {vr(vAD)}, 384, {vr(vAD)}")
    e(f"  s_mov_b32 s{rA + 3}, 0x20000")
    srd_head(rA, sQK, sC)
    e(f"  s_lshl_b32 s{sT0}, s{sJ}, 15")
    e(f"  v_lshl_add_u32 {vr(voff + RUN.index(0))}, v0, 4, s{sT0}")
    for k in (1, 2):
        e(f"  v_add_u32 {vr(voff + RUN.index(k))}, {65536 * k:#x}, {vr(voff + RUN.index(0))}")
    for i in range(1, 8):
        e(f"  s_movk_i32 s{sOF + i}, {4096 * i}")
    nk = [NF]
    assert PRE <= RING and max(int(v) for v in P.kp_.split(",")[:P.su + 1]) <= min(SPECIAL)

    def k_loads(hi):
        while nk[0] < min(hi, PRE):
            ld(nk[0])
            nk[0] += 1

    def toff_(n):
        run = RUN[n >> 3]
        return 384 * (16 * (((n & 7) + run) // 3) + 38 * run)

    def setup():
        e("; per chunk class k: q operand, table and partial addresses")
        e(f"  s_lshl1_add_u32 s{sF}, s{sJ}, s{sW}")
        e(f"  s_lshl_b32 s{sF}, s{sF}, 1")
        e(f"  s_lshr_b32 s{sF}, 0x4924, s{sF}")
        e(f"  v_bfe_u32 {vr(t1)}, v0, 4, 2")
        e(f"  v_lshl_add_u32 {vr(t1)}, {vr(t1)}, 2, {vr(vC16)}")
        e(f"  v_mad_u32_u24 {vr(vF)}, {vr(w_)}, s{sNEED}, {vr(t1)}")
        e(f"  v_add_u32 {vr(vF)}, {PB - 3072}, {vr(vF)}")
        e(f"  s_mul_i32 s{sT1}, s{sJ}, {43 * 384}")
        e(f"  s_sub_u32 s{sT1}, {TB}, s{sT1}")
        e(f"  v_lshl_add_u32 {vr(vSum)}, s{sJ}, 7, {vr(s_)}")
        for k in range(3):
            e(f"  s_bfe_u32 s{sT0}, s{sF}, {(2 << 16) | 2 * k:#x}")
            e(f"  v_lshl_add_u32 {vr(vPA + k)}, s{sT0}, 8, {vr(vF)}")
            if k:
                e(f"  v_add_u32 {vr(vSum)}, 16, {vr(vSum)}")
            e(f"  v_mul_u32_u24 {vr(t0)}, 171, {vr(vSum)}")
            e(f"  v_lshrrev_b32 {vr(t0)}, 9, {vr(t0)}")
            e(f"  v_mad_i32_i24 {vr(t1)}, {vr(t0)}, -3, {vr(vSum)}")
            e(f"  v_lshl_add_u32 {vr(t1)}, {vr(t1)}, 8, {vr(vC16)}")
            e(f"  v_add_u32 {vr(vQA + k)}, {QB}, {vr(t1)}")
            e(f"  v_subrev_u32 {vr(vSu2)}, 384, {vr(t1)}")
            e(f"  v_min_u32 {vr(t1)}, {vr(t1)}, {vr(vSu2)}")
            e(f"  v_mul_u32_u24 {vr(t0)}, 384, {vr(t0)}")
            e(f"  v_add3_u32 {vr(vTA + k)}, {vr(t0)}, {vr(t1)}, s{sT1}")
        e(f"  v_lshl_add_u32 {vr(vSum)}, s{sJ}, 4, {vr(s_)}")
        for n, i in SPECIAL.items():
            run, sx = RUN[n >> 3], 15 * (n & 7 == 7)
            b = int(run == 0)
            g0, g1 = 256 * run + 128 * b + 16 * (n & 7) + sx, chunk_of(b, n, sx)
            dt = 384 * (tidx(b, g1 // 3) - (g0 // 3 - 43 * b - 42 * run))
            e(f"  v_cmp_eq_u32 vcc, {16 * b + sx}, {vr(vSum)}")
            e(f"  v_add_u32 {vr(t0)}, {256 * (g1 - g0) & 0xffffffff:#x}, {vr(voff + (n >> 3))}")
            e(f"  v_add_u32 {vr(t1)}, {toff_(n)}, {vr(vTA + TN[n])}")
            e(f"  v_add_u32 {vr(vSu2)}, {dt & 0xffffffff:#x}, {vr(t1)}")
            e(f"  v_cndmask_b32 {vr(voff + 3 + i)}, {vr(voff + (n >> 3))}, {vr(t0)}, vcc")
            e(f"  v_cndmask_b32 {vr(vTA + 3 + i)}, {vr(t1)}, {vr(vSu2)}, vcc")
        e(f"  v_lshlrev_b32 {vr(vLB)}, 2, v0")
        e(f"  v_add_u32 {vr(vLB)}, {LGB}, {vr(vLB)}")
        e(f"  v_lshrrev_b32 {vr(t1)}, 1, v0")
        e(f"  v_lshlrev_b32 {vr(t1)}, 2, {vr(t1)}")
        e(f"  v_add_u32 {vr(vLB + 1)}, {LGB + 1024}, {vr(t1)}")
        e(f"  v_subrev_u32 {vr(vLG)}, 1536, {vr(vLB)}")
        e(f"  v_subrev_u32 {vr(vLG + 1)}, 1536, {vr(vLB + 1)}")
        e(f"  v_lshlrev_b32 {vr(vPW)}, 2, {vr(w_)}")
        e(f"  s_mov_b32 s{sMSK}, 0xcccccccc")
        e(f"  s_mov_b32 s{sMSK + 1}, s{sMSK}")
        e(f"  s_mov_b32 s{sMSK + 2}, 0xaaaaaaaa")
        e(f"  s_mov_b32 s{sMSK + 3}, s{sMSK + 2}")
        e(f"  s_mov_b32 s{rB + 2}, {UB}")
        e(f"  s_mov_b32 s{rB + 3}, 0x20000")
        e(f"  s_mov_b32 s{sK}, 0")
        if P.ctl:
            e("; progress slots: this wave writes one byte of line (half, w) and samples the lines of the other half")
            die_base(sF)
            e(f"  s_add_u32 s{sT0}, s{sF}, 2048")
            e(f"  v_mov_b32 {vr(vBA)}, s{sT0}")
            e(f"  s_and_b32 s{sT1}, s{sSE}, 2")
            e(f"  s_lshl_b32 s{sT1}, s{sT1}, 9")
            e(f"  s_lshl_b32 s{sT0}, s{sW}, 8")
            e(f"  s_add_u32 s{sT0}, s{sT0}, s{sT1}")
            e(f"  s_add_u32 s{sT0}, s{sT0}, s{sF}")
            e(f"  s_add_u32 s{sT0}, s{sT0}, s{sCU}")
            e(f"  s_and_b32 s{sSE}, s{sSE}, 1")
            e(f"  s_lshl_b32 s{sSE}, s{sSE}, 4")
            e(f"  s_add_u32 s{sT0}, s{sT0}, s{sSE}")
            e(f"  v_mov_b32 {vr(vPS)}, s{sT0}")
            e(f"  s_xor_b32 s{sT1}, s{sT1}, 1024")
            e(f"  s_add_u32 s{sF}, s{sF}, s{sT1}")
            e(f"  v_and_b32 {vr(vN)}, 1, v0")
            e(f"  v_lshl_add_u32 {vr(vN)}, {vr(vN)}, 4, s{sF}")
            for k in range(4):
                e(f"  v_add_u32 {vr(vSum)}, {k}, {vr(w_)}")
                e(f"  v_and_b32 {vr(vSum)}, 3, {vr(vSum)}")
                e(f"  v_lshl_add_u32 {vr(vPL + k)}, {vr(vSum)}, 8, {vr(vN)}")
            e(f"  s_mov_b32 s{sLO}, {(-(LAG + 2) * 0x01010101) & 0xffffffff:#x}")
            for k in range(4 * LAG):
                e(f"  v_mov_b32 {vr(smp + k)}, 0")
            for k in range(2):
                e(f"  v_mov_b32 {vr(vBI + k)}, 0")
            e(f"  v_mov_b32 {vr(vN)}, 0")
            e(f"  s_mov_b32 s{sB}, 0")
            e(f"  s_mov_b32 s{sS}, {P.s0}")
            e(f"  s_mov_b32 s{sI}, 0")
            e(f"  s_mov_b32 s{sCO}, 0")

    def sincos(dst, iv):
        for h in (0, 2):
            e(f"  v_pk_mul_f32 {vr(tN + h, 2)}, {vr(iv + h, 2)}, {vr(tK + 2, 2)} op_sel:[0,1] op_sel_hi:[1,1]")
        for i in range(4):
            e(f"  v_cos_f32 {vr(tA + i)}, {vr(tN + i)}")
        for i in range(4):
            e(f"  v_sin_f32 {vr(tN + i)}, {vr(tN + i)}")
        for i in range(4):
            e(f"  v_cvt_pk_f16_f32 {vr(dst + i)}, {vr(tA + i)}, {vr(tN + i)}")

    kp = [int(v) for v in P.kp_.split(",")]

    def chunk(i):
        a = 2 * (i // 3)
        d = tO + 4 * (i & 1)
        bc_ = lambda x, m: f"row_newbcast:{x} row_mask:0xf bank_mask:{m:#x}"
        if i % 3 == 1:
            e(f"  v_mov_b32_dpp {vr(pos)}, {vr(vRF)} {bc_(a + 1, 12)}")
            e(f"  v_add_u32_dpp {vr(vF)}, {vr(vAD)}, {vr(vC8)} {bc_(a, 3)}")
            e(f"  v_add_u32_dpp {vr(vF)}, {vr(vAD)}, {vr(vC8)} {bc_(a + 1, 12)}")
            sincos(d, invY)
            e(f"  ds_write_b128 {vr(vF)}, {vr(d, 4)} offset:{TB + 256}")
        else:
            a += i % 3 // 2
            e(f"  v_mov_b32_dpp {vr(pos)}, {vr(vRF)} {bc_(a, 15)}")
            e(f"  v_add_u32_dpp {vr(vF)}, {vr(vAD)}, {vr(vC16)} {bc_(a, 15)}")
            sincos(d, invX)
            e(f"  ds_write_b128 {vr(vF)}, {vr(d, 4)} offset:{TB}")

    def tab_read(a):
        for n in range(3 * a, 3 * a + 3):
            d = tab + 12 * (a & 1) + 4 * (n % 3)
            if n in SPECIAL:
                e(f"  ds_read_b128 {vr(d, 4)}, {vr(vTA + 3 + SPECIAL[n])}")
            else:
                e(f"  ds_read_b128 {vr(d, 4)}, {vr(vTA + TN[n])} offset:{toff_(n)}")

    k_loads(kp[0])
    pf()
    e(f"  s_waitcnt vmcnt({nk[0]})")
    pf()
    for i in range(12):
        if i == P.su:
            setup()
            pf()
        chunk(i)
        k_loads(kp[i + 1])
        if i % 3 == 2:
            pf()
    k_loads(PRE)
    e(f"  v_mov_b32 {vr(bc)}, {f32bits(-7.5):#x}")
    e("  s_waitcnt lgkmcnt(0)")
    for k in range(8):
        e(f"  v_writelane_b32 {vr(vU)}, s{16 + k}, {k}")
    e("  s_barrier")
    pf()
    for k in range(3):
        e(f"  ds_read_b128 {vr(qa + 4 * k, 4)}, {vr(vQA + k)}")
    tab_read(0)
    e(f"  s_waitcnt vmcnt({PRE - ORD['K'][:ORD['K'].index('L')].count('b')})")
    pf()
    if P.tfine:
        e("  s_waitcnt lgkmcnt(0)")
        for k in range(pfn[0]):
            e(f"  v_writelane_b32 {vr(vtr)}, s{PFR[k]}, {k}")
        e(f"  s_mov_b32 m0, {pfn[0]}")

    def vfirst():
        e(f"  s_and_b32 s{sH}, s{sVO}, 15")
        e(f"  s_add_u32 s{sNEED}, s{sH}, 1")
        e(f"  ds_read_b32 {vr(vF)}, {vr(vZ)} offset:{FL + 20}")
        flagwait("a0", FL + 20)
        e(f"  s_mulk_i32 s{sH}, 1536")
        for k in range(2):
            e(f"  v_add_u32 {vr(vLV + k)}, s{sH}, {vr(vLB + k)}")
        e(f"  ds_read_b32 {vr(A)}, {vr(vLV)}")


    def knext():
        e("; next SRD: K slot k + 1, or the first V step once K runs out")
        e(f"  s_add_u32 s{sH}, s{sK}, 1")
        e(f"  s_sub_u32 s{sT1}, s{sH}, 16")
        vstep_k(sF, sT1)
        e(f"  s_cmp_lt_u32 s{sH}, 16")
        e(f"  s_cselect_b32 s{sH}, s{sH}, s{sF}")
        e(f"  s_cselect_b32 s{sX}, s{sQK}, s{sQV}")
        e(f"  s_cselect_b32 s{sX + 1}, s{sQK + 1}, s{sQV + 1}")
        head_of(sH, sH)
        srd_head(rB, sX, sH)

    def kred(n):
        dpp = lambda d, x, how, m: e(f"  v_add_f32_dpp {vr(d)}, {vr(x)}, {vr(x)} {how} row_mask:0xf bank_mask:{m:#x}")
        dpp(M1, dacc, "row_ror:8", 12 if n & 1 else 3)
        if n % 2 == 1:
            e("  s_nop 1")
            dpp(M2, M1, "row_half_mirror", 10 if n & 2 else 5)
        if n % 4 == 3:
            e("  s_nop 1")
            dpp(M2 if n & 4 else M3, M2, "quad_perm:[2,3,0,1]", 15)
        if n % 8 == 7:
            e(f"  v_cndmask_b32_e64 {vr(M3)}, {vr(M3)}, {vr(M2)}, s[{sMSK}:{sMSK + 1}]")
            e("  s_nop 1")
            dpp((LG, M3, LG + 1)[n >> 3], M3, "quad_perm:[1,0,3,2]", 15)
        if n == 15:
            e(f"  v_cndmask_b32_e64 {vr(LG)}, {vr(LG)}, {vr(M3)}, s[{sMSK + 2}:{sMSK + 3}]")

    e(".p2align 6")
    e("L_k:")

    def kbody(n):
        k_, q_ = ring + 4 * n, qa + 4 * TN[n]
        for i in range(4):
            e(f"  v_dot2_f32_f16 {vr(wt + i)}, {vr(tab + 12 * (n // 3 & 1) + 4 * (n % 3) + i)}, {vr(q_ + i)}, 0")
        for i in range(4):
            e(f"  v_cvt_f32_i32 {vr(k_ + i)}, {vr(k_ + i)}")
        if n >= 21:
            e(f"  ds_read_b128 {vr(q_, 4)}, {vr(vQA + TN[n])}")
        for h in range(2):
            e(f"  v_pk_add_f32 {vr(k_ + 2 * h, 2)}, {vr(k_ + 2 * h, 2)}, {vr(bc, 2)} op_sel_hi:[1,0]")
        e(f"  v_pk_mul_f32 {vr(dacc, 2)}, {vr(k_, 2)}, {vr(wt, 2)}")
        e(f"  v_pk_fma_f32 {vr(dacc, 2)}, {vr(k_ + 2, 2)}, {vr(wt + 2, 2)}, {vr(dacc, 2)}")
        e(f"  v_add_f32 {vr(dacc)}, {vr(dacc)}, {vr(dacc + 1)}")

    def kout():
        e(f"  v_mov_b32 {vr(vF)}, s{sK}")
        for k in range(2):
            e(f"  ds_write_b32 {vr(vLG + k)}, {vr(LG + k)}")
        e(f"  ds_write_b32 {vr(vPW)}, {vr(vF)} offset:{FL}")

    def group(ph, a, body, after, res):
        nb, pend = 3 * a, None
        od = ORD[ph]
        for i, c in enumerate(od):
            if pend is not None and c != "L":
                if od[i - 1] == "b":
                    e("  s_nop 1")
                after(pend)
                pend = None
            if c == "E":
                evaluate(ph, a)
                if od[i + 1] != "X":
                    decide(ph, a)
            if c == "X":
                exchange(a)
                if od[i - 1] == "E":
                    decide(ph, a)
            if c == "R" and a == 0:
                res()
            if c == "b":
                body(nb)
                pend = nb if after else None
                nb += 1
            if c == "L":
                issue(ph, a, i)
        if pend is not None:
            if od[-1] == "b":
                e("  s_nop 1")
            after(pend)

    for a in range(8):
        if a == 7:
            flagwait("qn", FL + 16)
        else:
            e("  s_waitcnt lgkmcnt(0)")
        tab_read((a + 1) % 8)
        if a == 6:
            e(f"  ds_read_b32 {vr(vF)}, {vr(vZ)} offset:{FL + 16}")
        group("K", a, kbody, kred, kout)
        if a == 1:
            knext()
        if a == 3:
            e(f"  s_add_u32 s{sT0}, s{sK}, 2")
            e(f"  s_min_u32 s{sNEED}, s{sT0}, 16")
            for k in range(3):
                e(f"  v_add_u32 {vr(vQA + k)}, 768, {vr(vQA + k)}")
            for k in range(2):
                e(f"  v_add_u32 {vr(vLG + k)}, 1536, {vr(vLG + k)}")
            e(f"  s_cmp_eq_u32 s{sK}, 15")
            e("  s_cbranch_scc1 L_kv")
            e("L_kw:")
        if a in (3, 7) or P.tfine:
            tr()
    assert sorted(TN[21:]) == [0, 1, 2] and TN[:3] == TN[3:6] and sorted(TN[:3]) == [0, 1, 2] and PRE <= 18
    e(f"  s_add_u32 s{sK}, s{sK}, 1")
    e(f"  s_mov_b64 s[{rA}:{rA + 1}], s[{rB}:{rB + 1}]")
    e(f"  s_cmp_lt_u32 s{sK}, 16")
    e("  s_cbranch_scc1 L_k")


    def vbody(n):
        v_ = ring + 4 * n
        e(f"  v_mov_b32_dpp {vr(bc)}, {vr(A + n // 16)} row_newbcast:{rev(n % 16, 4)} row_mask:0xf bank_mask:0xf")
        for i in range(4):
            e(f"  v_cvt_f32_i32 {vr(v_ + i)}, {vr(v_ + i)}")
        for h in range(2):
            d = 4 * TN[n] + 2 * h
            if n < 3:
                e(f"  v_pk_mul_f32 {vr(tmp + d, 2)}, {vr(v_ + 2 * h, 2)}, {vr(bc, 2)} op_sel_hi:[1,0]")
            else:
                e(f"  v_pk_fma_f32 {vr(acc + d, 2)}, {vr(v_ + 2 * h, 2)}, {vr(bc, 2)}, {vr((tmp if n < 6 else acc) + d, 2)} op_sel_hi:[1,0,1]")

    def vout(last=False):
        for j in range(3):
            e(f"  v_permlane32_swap_b32 {vr(acc + 4 * j)}, {vr(acc + 4 * j + 2)}")
            e(f"  v_permlane32_swap_b32 {vr(acc + 4 * j + 1)}, {vr(acc + 4 * j + 3)}")
        for j in range(3):
            e(f"  v_add_f32 {vr(acc + 4 * j)}, {vr(acc + 4 * j)}, {vr(acc + 4 * ((j + 1) % 3) + 2)}")
            e(f"  v_add_f32 {vr(acc + 4 * j + 1)}, {vr(acc + 4 * j + 1)}, {vr(acc + 4 * ((j + 1) % 3) + 3)}")
        for j in range(3):
            e(f"  v_permlane16_swap_b32 {vr(acc + 4 * j)}, {vr(acc + 4 * j + 1)}")
        for j in range(3):
            e(f"  v_add_f32 {vr(acc + 4 * j)}, {vr(acc + 4 * j)}, {vr(acc + 4 * ((j + 2) % 3) + 1)}")
        for j in range(3):
            e(f"  ds_write_b32 {vr(vPA + j)}, {vr(acc + 4 * j)}")
        if not last:
            e(f"  ds_write_b32 {vr(vPW)}, {vr(M1)} offset:{FL}")
            e("L_v0:")

    def vnext():
        e(f"  s_add_u32 s{sT1}, s{sK}, 1")
        e(f"  s_min_u32 s{sT1}, s{sT1}, 15")
        vstep_k(sH, sT1)
        e(f"  s_add_u32 s{sNEED}, s{sH}, 1")
        e(f"  s_mul_i32 s{sF}, s{sH}, 1536")
        head_of(sH, sH)
        srd_head(rB, sQV, sH)
        for k in range(2):
            e(f"  v_add_u32 {vr(vLV + k)}, s{sF}, {vr(vLB + k)}")

    NS, NT = (PRE - PD) // 3, 8 - PD // 3
    assert NS <= 1 and 4 <= NT <= 5 and (NS or P.ov[0] == "R") and max(P.mg, P.ml) <= 3 * NT
    e("L_vpre:")
    kout()
    e(f"  s_mov_b32 s{sK}, 0")
    e(f"  v_mov_b32 {vr(M1)}, 16")
    if NS:
        for n in range(3):
            e(f"  s_waitcnt vmcnt({plain[384 + n]})")
            vbody(n)
        e(f"  s_waitcnt vmcnt({plain[387]}) lgkmcnt(0)")
        e("  s_branch L_v1")
    else:
        e("  s_waitcnt lgkmcnt(3)")
        e("  s_branch L_v0")
    flush()
    e("L_kv:")
    vfirst()
    e("  s_branch L_kw")
    flush()
    e(".p2align 6")
    e("L_v:")
    for a in range(8):
        if a == 1:
            e("L_v1:")
            e(f"  ds_read_b32 {vr(A + 1)}, {vr(vLV + 1)}")
        if a == NT:
            e(f"  s_cmp_eq_u32 s{sK}, 15")
            e("  s_cbranch_scc1 L_vt")
        if a in (5, 7):
            e("  s_waitcnt lgkmcnt(0)")
        if a == 5:
            e(f"  ds_read_b32 {vr(vF)}, {vr(vZ)} offset:{FL + 20}")
        if a == 6:
            flagwait("an", FL + 20)
            e(f"  ds_read_b32 {vr(A)}, {vr(vLV)}")
        group("V", a, vbody, None, vout)
        if a == 1:
            vnext()
        if a == 3:
            e(f"  v_add_u32 {vr(M1)}, 1, {vr(M1)}")
            for j in range(3):
                e(f"  v_add_u32 {vr(vPA + j)}, 3072, {vr(vPA + j)}")
        if a in (3, 7):
            tr()
    e(f"  s_add_u32 s{sK}, s{sK}, 1")
    e(f"  s_mov_b64 s[{rA}:{rA + 1}], s[{rB}:{rB + 1}]")
    e("  s_branch L_v")
    flush()
    e("L_vt:")
    e("  s_waitcnt lgkmcnt(0)")
    for n in range(3 * NT, 24):
        e(f"  s_waitcnt vmcnt({plain[744 + n]})")
        vbody(n)
    tr()
    e("  s_nop 1")
    vout(True)
    e("  s_waitcnt lgkmcnt(0)")
    e("  s_barrier")
    if P.trace:
        e(f"  s_mul_i32 s8, s2, {5 * 256}")
        e("  s_add_u32 s8, s8, 0x100000")
        e(f"  v_lshl_add_u32 {vr(t0)}, v0, 2, s8")
        e(f"  global_store_dword {vr(t0)}, {vr(vtr)}, s[{sWS}:{sWS + 1}]")
    e("  s_endpgm")

    HP = [4, 6, 24, 8, 10, 36, 38, 72]
    ms = [m for m in range(P.r0, P.r1 + 1) if m < P.rf or m > P.rt or (m - P.r0) % P.rp == 0]
    gain = [(P.kp0 if m <= P.kn else P.kp) if m in ms else 0 for m in range(32)]
    if P.rk:
        gain = [int(c, 16) for c in P.rk]
        assert len(gain) == 32 and not any(gain[:P.r0]) and not gain[31]
    msk = sum(1 << m for m in range(32) if gain[m])

    def hp(k):
        if P.hprof:
            e(f"  s_memrealtime s[{HP[k]}:{HP[k] + 1}]")

    def progwait(name, slp, off=FL):
        e(f"L_{name}:")
        e(f"  ds_read_b128 {vr(pr, 4)}, {vr(vZ)} offset:{off}")
        e("  s_waitcnt lgkmcnt(0)")
        e(f"  v_min_u32 {vr(pr)}, {vr(pr)}, {vr(pr + 1)}")
        e(f"  v_min3_u32 {vr(pr)}, {vr(pr)}, {vr(pr + 2)}, {vr(pr + 3)}")
        e("  s_nop 0")
        e(f"  v_readfirstlane_b32 s{sF}, {vr(pr)}")
        e(f"  s_cmp_ge_u32 s{sF}, s{sNEED}")
        e(f"  s_cbranch_scc1 L_{name}_ok")
        budget(f"L_{name}_ok")
        if slp:
            e(f"  s_sleep {slp}")
        e(f"  s_branch L_{name}")
        e(f"L_{name}_ok:")

    def rowred(op, v):
        for n in (8, 4, 2, 1):
            e("  s_nop 1")
            e(f"  {op}_dpp {vr(v)}, {vr(v)}, {vr(v)} row_ror:{n} row_mask:0xf bank_mask:0xf")

    def allred(op, v, t):
        rowred(op, v)
        for sw in ("v_permlane16_swap_b32", "v_permlane32_swap_b32"):
            e(f"  v_mov_b32 {vr(t)}, {vr(v)}")
            e("  s_nop 1")
            e(f"  {sw} {vr(v)}, {vr(t)}")
            e(f"  {op} {vr(v)}, {vr(v)}, {vr(t)}")

    def sum_partials(nq):
        w = 4 * nq
        for k in range(4):
            for q in range(nq):
                e(f"  ds_read_b128 {vr(x + w * k + 4 * q, 4)}, {vr(h0)} offset:{768 * k + 16 * q}")
        e(f"  ds_read_b128 {vr(z4, 4)}, {vr(h1)} offset:{ST}")
        e("  s_waitcnt lgkmcnt(0)")
        for h in range(0, w, 2):
            e(f"  v_pk_add_f32 {vr(x + h, 2)}, {vr(x + h, 2)}, {vr(x + w + h, 2)}")
            e(f"  v_pk_add_f32 {vr(x + 2 * w + h, 2)}, {vr(x + 2 * w + h, 2)}, {vr(x + 3 * w + h, 2)}")
        for h in range(0, w, 2):
            e(f"  v_pk_add_f32 {vr(x + h, 2)}, {vr(x + h, 2)}, {vr(x + 2 * w + h, 2)}")
        for h in range(0, w, 2):
            e(f"  v_pk_add_f32 {vr(x + h, 2)}, {vr(x + h, 2)}, {vr(z4 + 2, 2)} op_sel_hi:[1,0] neg_lo:[0,1] neg_hi:[0,1]")

    def mark(tag):
        if P.sd:
            e("  s_memrealtime s[72:73]")
            e("  s_waitcnt lgkmcnt(0)")
            e("  s_sub_u32 s75, s72, s74")
            e("  s_mov_b32 s74, s72")
            e(f"  s_add_u32 s72, s{sNEED}, {64 - P.sd}")
            e("  s_and_b32 s73, s72, 1")
            e("  s_lshl_b32 s73, s73, 4")
            e("  s_min_u32 s75, s75, 510")
            e("  s_lshl_b32 s75, s75, s73")
            e("  s_lshr_b32 m0, s72, 1")
            e(f"  v_readlane_b32 s73, {vr(vCL)}, m0")
            e("  s_add_u32 s73, s73, s75")
            e(f"  v_writelane_b32 {vr(vCL)}, s73, m0")
        if not P.enc:
            return
        for k, m in enumerate(P.enc.split(",")[:2]):
            e(f"  s_cmp_eq_u32 s{sNEED}, {m}")
            e(f"  s_cbranch_scc0 L_mk{tag}{k}")
            e(f"  s_memrealtime s[{72 + 2 * k}:{73 + 2 * k}]")
            e(f"L_mk{tag}{k}:")

    def rank_post(tag):
        if not P.ctl:
            return
        e(f"  s_bitcmp1_b32 s{sRF}, s{sNEED}")
        e(f"  s_cbranch_scc0 L_fa{tag}")
        e(f"  s_mul_i32 s{sT0}, s{sNEED}, 384")
        e(f"  s_add_u32 s{sT0}, s{sT0}, {W_RK}")
        e(f"  s_mov_b32 s{sB}, 1")
        e(f"  s_atomic_add s{sB}, s[{sWS}:{sWS + 1}], s{sT0} glc")
        e(f"L_fa{tag}:")

    def rank_take(tag):
        if not P.ctl:
            return
        e(f"  s_bitcmp1_b32 s{sRF}, s{sNEED}")
        e(f"  s_cbranch_scc0 L_fb{tag}")
        e("  s_waitcnt lgkmcnt(0)")
        e(f"  s_min_u32 s{sF}, s{sB}, 15")
        e(f"  s_lshl_b32 s{sF}, s{sF}, 1")
        e(f"  s_sub_u32 s{sF}, s{sF}, 15")
        gs = sorted(set(gain) - {0})
        e(f"  s_mov_b32 s{sT0}, {gs[0]}")
        for g_ in gs[1:]:
            e(f"  s_bitcmp1_b32 {sum(1 << m for m in range(32) if gain[m] == g_):#x}, s{sNEED}")
            e(f"  s_cselect_b32 s{sT0}, {g_}, s{sT0}")
        e(f"  s_mul_i32 s{sF}, s{sF}, s{sT0}")
        e(f"  s_add_u32 s{sF}, s{sF}, 8")
        e(f"  s_ashr_i32 s{sF}, s{sF}, 4")
        e(f"  v_mov_b32 {vr(vFX)}, s{sF}")
        e("  s_mov_b64 exec, 1")
        e(f"  global_store_dword {vr(vFB)}, {vr(vFX)}, s[{sWS}:{sWS + 1}]")
        e("  s_mov_b64 exec, -1")
        e(f"L_fb{tag}:")

    HPF = [10, 16, 18, 20, 22, 72, 74, 76, 82, 96]
    hpn = [0]

    def hpf():
        if P.tfine:
            e(f"  s_memrealtime s[{HPF[hpn[0]]}:{HPF[hpn[0]] + 1}]")
            hpn[0] += 1

    e("L_helper:")
    e(f"  s_setprio {P.hp0}")
    hv = []

    def qmask(on):
        if on:
            e("  s_mov_b32 exec_lo, 0xffffff")
            e("  s_mov_b32 exec_hi, 0xffffff")
        else:
            e("  s_mov_b64 exec, -1")

    e(f"  v_and_b32 {vr(vL16)}, 0x1f0, {vr(vT16)}")
    e(f"  global_load_dwordx4 {vr(pr, 4)}, {vr(vL16)}, s[{sZ}:{sZ + 1}] offset:{D_QCS - PC0}")
    e(f"  global_load_dwordx4 {vr(f0, 4)}, {vr(vL16)}, s[{sZ}:{sZ + 1}] offset:{D_F0 - PC0}")
    e(f"  v_and_b32 {vr(vSh)}, 32, v0")
    e(f"  v_lshrrev_b32 {vr(vSh)}, 1, {vr(vSh)}")
    e(f"  v_lshrrev_b32 {vr(h1)}, 1, {vr(vL16)}")
    e(f"  s_movk_i32 s{sT1}, 384")
    e("  s_waitcnt lgkmcnt(0)")
    hpf()
    for p in range(2):
        e(f"  v_lshrrev_b32 {vr(hq + p)}, {vr(vSh)}, s{sE + 10 + p}")
        e(f"  v_and_b32 {vr(h0)}, 0xff, {vr(hq + p)}")
        e(f"  v_mad_u32_u24 {vr(ra + p)}, {vr(h0)}, s{sT1}, {vr(h1)}")
    qmask(1)
    for p in range(2):
        e(f"  global_load_dwordx2 {vr(rec + 4 * p, 2)}, {vr(ra + p)}, s[{sQ}:{sQ + 1}]")
        e(f"  global_load_dwordx2 {vr(rec + 4 * p + 2, 2)}, {vr(ra + p)}, s[{sQ}:{sQ + 1}] offset:192")
        hv.extend([("q", p)] * 2)
    qmask(0)
    hpf()
    common()
    e(f"  s_lshl_b32 s{sT0}, s{sJ}, 10")
    e(f"  s_add_u32 s{sT0}, s{sT0}, L_hpos-L_pc")
    e(f"  v_add_u32 {vr(h0)}, s{sT0}, {vr(vT16)}")
    e(f"  global_load_dwordx4 {vr(st4, 4)}, {vr(h0)}, s[{sZ}:{sZ + 1}]")
    hv.append(("h", 0))
    e(f"  s_mov_b64 s[{sVO}:{sVO + 1}], s[{sE + 8}:{sE + 9}]")
    e(f"  v_mov_b32 {vr(l)}, v0")
    for i in range(4):
        e(f"  v_mov_b32 {vr(z4 + i)}, 0")
    for k in range(4):
        e(f"  ds_write_b128 {vr(vZ)}, {vr(z4, 4)} offset:{FL + 16 * k}")
    e(f"  s_mov_b32 s{sMASK}, 0xffff0000")
    e(f"  s_mov_b32 s{sSCALE}, {f32bits(math.log2(math.e) / math.sqrt(192.0)):#x}")
    e(f"  s_movk_i32 s{sC}, 784")
    e(f"  v_mad_u32_u24 {vr(wa)}, {vr(vSh)}, 48, {vr(vL16)}")
    e(f"  v_lshrrev_b32 {vr(vSq)}, 1, {vr(vSh)}")
    for p in range(8):
        e(f"  v_lshrrev_b32 {vr(ra + p)}, {vr(vSh)}, s{sE + p}")
    e("  s_waitcnt lgkmcnt(0)")
    hpf()
    if P.ctl:
        die_base(sF)
        e(f"  v_lshrrev_b32 {vr(h0)}, 1, {vr(l)}")
        e(f"  v_lshl_add_u32 {vr(vFX)}, {vr(h0)}, 8, s{sF}")
        e(f"  v_and_b32 {vr(h0)}, 1, {vr(l)}")
        e(f"  v_lshl_add_u32 {vr(vFX)}, {vr(h0)}, 4, {vr(vFX)}")
        e(f"  s_and_b32 s{sT1}, s{sSE}, 2")
        e(f"  s_lshl_b32 s{sT0}, s{sT1}, 9")
        e(f"  s_add_u32 s{sT0}, s{sT0}, s{sF}")
        e(f"  v_add_u32 {vr(vEL)}, s{sT0}, {vr(l)}")
        e(f"  s_lshl_b32 s{sT1}, s{sT1}, 1")
        e(f"  s_add_u32 s{sF}, s{sF}, s{sT1}")
        e(f"  s_add_u32 s{sF}, s{sF}, 2048")
        e(f"  v_mov_b32 {vr(vFB)}, s{sF}")
        e(f"  v_mul_u32_u24 {vr(vFA)}, 384, {vr(l)}")
        e(f"  v_add_u32 {vr(vFA)}, {W_RK}, {vr(vFA)}")
        e(f"  s_mov_b32 s{sRF}, 0")
        e("  s_mov_b64 exec, 0x3ffff")
        e(f"  global_store_dwordx4 {vr(vFX)}, {vr(z4, 4)}, s[{sWS}:{sWS + 1}]")
        e("  s_mov_b64 exec, -1")
    e(f"  s_waitcnt vmcnt({len(hv)})")
    for k in range(4):
        e(f"  v_lshlrev_b32 {vr(cs + k)}, 16, {vr(pr + k)}")
        e(f"  v_and_b32 {vr(cs + 4 + k)}, s{sMASK}, {vr(pr + k)}")

    def elect():
        if not P.ctl:
            return
        e(f"  s_cmp_eq_u32 s{sNEED}, {P.r0 - 1}")
        e("  s_cbranch_scc0 L_el")
        e(f"  s_bitcmp0_b32 s{sSE}, 0")
        e("  s_cbranch_scc0 L_el")
        e("  s_mov_b64 exec, 0xffff")
        e(f"  global_load_ubyte {vr(vFX)}, {vr(vEL)}, s[{sWS}:{sWS + 1}] sc1")
        e("  s_waitcnt vmcnt(0)")
        e(f"  v_cmp_ne_u32 s[{sZ}:{sZ + 1}], 0, {vr(vFX)}")
        e(f"  s_lshr_b32 s{sT0}, s{sZ}, s{sCU}")
        e(f"  s_bcnt1_i32_b32 s{sT0}, s{sT0}")
        pat = sum(1 << m for m in range(0, 32, P.rotl))
        e(f"  s_sub_u32 s{sT1}, s{sT0}, 1")
        e(f"  s_cmp_lt_u32 s{sT1}, {P.rotl}")
        e("  s_cbranch_scc0 L_el")
        e(f"  s_lshl_b32 s{sRF}, {pat:#x}, s{sT1}")
        e(f"  s_and_b32 s{sRF}, s{sRF}, {msk:#x}")
        e("L_el:")
        e("  s_mov_b64 exec, -1")

    def roleaddr(src):
        e(f"  v_bfe_u32 {vr(wb)}, {vr(src)}, 12, 2")
        e(f"  v_mul_u32_u24 {vr(h1)}, s{sC}, {vr(wb)}")
        e(f"  v_add_u32 {vr(h1)}, {QR}, {vr(h1)}")
        e(f"  v_add_u32 {vr(h0)}, {vr(h1)}, {vr(vL16)}")

    def rotate(p):
        L, Hh, LC, HS, HC, LS = x, x + 4, x + 8, x + 12, x + 16, x + 20
        roleaddr(hq + p)
        e(f"  v_mov_b32 {vr(h2)}, 0")
        qmask(1)
        if p == 0:
            hpf()
        e(f"  s_waitcnt vmcnt({hv[::-1].index(('q', p))})")
        if p == 0:
            hpf()
        for k in range(4):
            e(f"  v_lshlrev_b32 {vr(L + 2 * k)}, 16, {vr(rec + 4 * p + k)}")
            e(f"  v_and_b32 {vr(L + 2 * k + 1)}, s{sMASK}, {vr(rec + 4 * p + k)}")
        for d, q_, t_ in ((LC, L, cs), (HS, Hh, cs + 4), (HC, Hh, cs), (LS, L, cs + 4)):
            for h in (0, 2):
                e(f"  v_pk_mul_f32 {vr(d + h, 2)}, {vr(q_ + h, 2)}, {vr(t_ + h, 2)}")
        for i in range(4):
            e(f"  v_cvt_pk_bf16_f32 {vr(L + i)}, {vr(LC + i)}, {vr(HS + i)}")
            e(f"  v_cvt_pk_bf16_f32 {vr(Hh + i)}, {vr(HC + i)}, {vr(LS + i)}")
        for k in range(8):
            e(f"  v_lshlrev_b32 {vr(LC + k)}, 16, {vr(L + k)}")
            e(f"  v_and_b32 {vr(L + k)}, s{sMASK}, {vr(L + k)}")
        for h in (0, 2):
            e(f"  v_pk_add_f32 {vr(L + h, 2)}, {vr(LC + h, 2)}, {vr(L + h, 2)} neg_lo:[0,1] neg_hi:[0,1]")
            e(f"  v_pk_add_f32 {vr(Hh + h, 2)}, {vr(HS + h, 2)}, {vr(Hh + h, 2)}")
        for i in range(4):
            e(f"  v_cvt_pk_bf16_f32 {vr(Hh + i)}, {vr(L + i)}, {vr(Hh + i)}")
        for i in range(4):
            e(f"  v_lshlrev_b32 {vr(L + i)}, 16, {vr(Hh + i)}")
            e(f"  v_and_b32 {vr(Hh + i)}, s{sMASK}, {vr(Hh + i)}")
        for i in range(4):
            e(f"  v_max3_f32 {vr(h2)}, |{vr(L + i)}|, |{vr(Hh + i)}|, {vr(h2)}")
        qmask(0)
        rowred("v_max_f32", h2)
        e(f"  v_mov_b32 {vr(h3)}, {vr(h2)}")
        e("  s_nop 1")
        e(f"  v_permlane16_swap_b32 {vr(h2)}, {vr(h3)}")
        e(f"  v_max_f32 {vr(h2)}, {vr(h2)}, {vr(h3)}")
        e(f"  v_frexp_exp_i32_f32 {vr(h2)}, {vr(h2)}")
        e(f"  v_sub_u32 {vr(h3)}, 13, {vr(h2)}")
        e(f"  v_subrev_u32 {vr(h2)}, 13, {vr(h2)}")
        for i in range(8):
            e(f"  v_ldexp_f32 {vr(L + i)}, {vr(L + i)}, {vr(h3)}")
        e(f"  v_ldexp_f32 {vr(h2)}, s{sSCALE}, {vr(h2)}")
        qmask(1)
        e(f"  ds_write_b128 {vr(h0)}, {vr(L, 4)}")
        e(f"  ds_write_b128 {vr(h0)}, {vr(Hh, 4)} offset:384")
        e(f"  ds_write_b32 {vr(h1)}, {vr(h2)} offset:768")
        qmask(0)

    cu, su = x + 24, x + 28

    def angle(p):
        e(f"  v_and_b32 {vr(qn)}, 7, {vr(ra + p)}")
        e(f"  v_cvt_f32_u32 {vr(qn)}, {vr(qn)}")
        for h in (0, 2):
            e(f"  v_pk_mul_f32 {vr(su + h, 2)}, {vr(f0 + h, 2)}, {vr(qn, 2)} op_sel_hi:[1,0]")
        for i in range(4):
            e(f"  v_cos_f32 {vr(cu + i)}, {vr(su + i)}")
        for i in range(4):
            e(f"  v_sin_f32 {vr(su + i)}, {vr(su + i)}")

    def item(p):
        a_, b_, a2, b2 = x, x + 4, x + 8, x + 12
        roleaddr(ra + p)
        qmask(1)
        e(f"  ds_read_b128 {vr(a_, 4)}, {vr(h0)}")
        e(f"  ds_read_b128 {vr(b_, 4)}, {vr(h0)} offset:384")
        e(f"  ds_read_b32 {vr(qn + 2)}, {vr(h1)} offset:768")
        if p:
            angle(p)
        e(f"  v_mov_b32 {vr(qn + 3)}, {vr(wb)}")
        e(f"  v_mov_b32 {vr(h0)}, {2 * p + 2}")
        e("  s_waitcnt lgkmcnt(0)")
        for h in (0, 2):
            e(f"  v_pk_mul_f32 {vr(a2 + h, 2)}, {vr(a_ + h, 2)}, {vr(cu + h, 2)}")
            e(f"  v_pk_mul_f32 {vr(b2 + h, 2)}, {vr(b_ + h, 2)}, {vr(cu + h, 2)}")
        for h in (0, 2):
            e(f"  v_pk_fma_f32 {vr(a2 + h, 2)}, {vr(b_ + h, 2)}, {vr(su + h, 2)}, {vr(a2 + h, 2)}")
            e(f"  v_pk_fma_f32 {vr(b2 + h, 2)}, {vr(a_ + h, 2)}, {vr(su + h, 2)}, {vr(b2 + h, 2)} neg_lo:[1,0,0] neg_hi:[1,0,0]")
        for i in range(4):
            e(f"  v_cvt_pk_f16_f32 {vr(a_ + i)}, {vr(a2 + i)}, {vr(b2 + i)}")
            e(f"  v_cvt_pk_f16_f32 {vr(b_ + i)}, {vr(b2 + i)}, -{vr(a2 + i)}")
        e(f"  ds_write_b128 {vr(wa)}, {vr(a_, 4)} offset:{QB + 1536 * p}")
        e(f"  ds_write_b128 {vr(wa)}, {vr(b_, 4)} offset:{QB + 1536 * p + 384}")
        e(f"  ds_write_b64 {vr(vSq)}, {vr(qn + 2, 2)} offset:{QS + 16 * p}")
        e(f"  ds_write_b32 {vr(vZ)}, {vr(h0)} offset:{FL + 16}")
        qmask(0)

    angle(0)
    rotate(0)
    item(0)
    hpf()
    e("  s_waitcnt lgkmcnt(0)")
    e("  s_setprio 0")
    hpf()
    e("  s_barrier")
    hpf()
    for p in range(8):
        e(f"  v_and_b32 {vr(h0)}, 0x7ff, {vr(ra + p)}")
        e(f"  v_lshl_add_u32 {vr(h0)}, {vr(h0)}, 9, {vr(vL16)}")
        for i, sp in enumerate((sKS, sVS)):
            e(f"  s_mov_b32 m0, {SCB + SA * i + 1024 * p}")
            e("  s_nop 0")
            e(f"  global_load_lds_dwordx4 {vr(h0)}, s[{sp}:{sp + 1}] nt")
            hv.append(("s", p))
    rotate(1)
    for p in range(1, 8):
        item(p)
    e(f"  v_mov_b32 {vr(vSa)}, 0")
    e(f"  v_mov_b32 {vr(vSq)}, 0")
    e(f"  v_min_u32 {vr(u)}, 47, {vr(l)}")
    e(f"  v_lshlrev_b32 {vr(vL16)}, 4, {vr(u)}")
    for i in range(4):
        e(f"  v_mov_b32 {vr(sc + i)}, 0")
    e(f"  s_mov_b32 s{sNEED}, 1")
    e("  s_cmp_eq_u32 s2, 0")
    e("  s_cbranch_scc0 L_rc")
    e(f"  v_mov_b32 {vr(h0)}, {W_REC + 384 + 4}")
    e(f"  global_load_dword {vr(h1)}, {vr(h0)}, s[{sWS}:{sWS + 1}] sc1")
    if P.ctl:
        e(f"  s_mov_b64 exec, {msk:#x}")
        e(f"  global_store_dword {vr(vFA)}, {vr(vZ)}, s[{sWS}:{sWS + 1}] sc1")
    e("  s_mov_b64 exec, 1")
    e("  s_waitcnt vmcnt(0)")
    e(f"  v_and_b32 {vr(qn)}, 0x77777777, {vr(h1)}")
    e(f"  v_and_b32 {vr(h1)}, 0x88888888, {vr(h1)}")
    e(f"  v_add_u32 {vr(qn)}, 0x11111111, {vr(qn)}")
    e(f"  v_xor_b32 {vr(qn)}, {vr(qn)}, {vr(h1)}")
    e(f"  v_mov_b32 {vr(qn + 1)}, 1")
    e(f"  global_store_dwordx2 {vr(vZ)}, {vr(qn, 2)}, s[{sDBG}:{sDBG + 1}] sc1")
    e("  s_mov_b64 exec, -1")
    e("L_rc:")
    hpf()
    e("  s_waitcnt vmcnt(0)")
    hpf()
    if P.tfine:
        e("  s_waitcnt lgkmcnt(0)")
        e(f"  v_mov_b32 {vr(h0)}, 0")
        for k in range(hpn[0]):
            e(f"  v_writelane_b32 {vr(h0)}, s{HPF[k]}, {k}")
        e(f"  s_mul_i32 s{sT0}, s2, {5 * 256}")
        e(f"  s_add_u32 s{sT0}, s{sT0}, {0x100000 + 1024}")
        e(f"  v_lshl_add_u32 {vr(h1)}, v0, 2, s{sT0}")
        e(f"  global_store_dword {vr(h1)}, {vr(h0)}, s[{sWS}:{sWS + 1}]")
    for k in range(4):
        e(f"  v_and_b32 {vr(ro + 2 * k)}, 0xffff, {vr(st4 + k)}")
        e(f"  v_lshrrev_b32 {vr(ro + 2 * k + 1)}, 16, {vr(st4 + k)}")
    for k in range(2):
        e(f"  v_add_u32 {vr(ro + 6 + k)}, {SCB}, {vr(ro + 6 + k)}")
    if P.sd:
        e(f"  v_mov_b32 {vr(vCL)}, 0")
    e("L_hk:")
    for a in range(2):
        for k in range(2):
            e(f"  ds_read_u16_d16_hi {vr(sc + 2 * a + k)}, {vr(ro + 6 + k)} offset:{SA * a}")
    e(f"  ds_read_b64 {vr(z4 + 2, 2)}, {vr(vSq)} offset:{QS}")
    e(f"  v_add_u32 {vr(vSq)}, 8, {vr(vSq)}")
    progwait("hsw", P.psk)
    mark("s")
    rank_post("s")
    for k in range(6):
        e(f"  ds_read_b32 {vr(x + 4 + k)}, {vr(ro + k)} offset:{LGB}")
    e(f"  v_mul_f32 {vr(x + 2)}, {vr(z4 + 2)}, {vr(sc)}")
    e(f"  v_mul_f32 {vr(x + 3)}, {vr(z4 + 2)}, {vr(sc + 1)}")
    e("  s_waitcnt lgkmcnt(0)")
    e(f"  v_pk_add_f32 {vr(x, 2)}, {vr(x + 4, 2)}, {vr(x + 6, 2)}")
    e(f"  v_pk_add_f32 {vr(x, 2)}, {vr(x, 2)}, {vr(x + 8, 2)}")
    e(f"  v_mul_f32 {vr(x)}, {vr(x)}, {vr(x + 2)}")
    e(f"  v_mul_f32 {vr(x + 1)}, {vr(x + 1)}, {vr(x + 3)}")
    e(f"  v_max_f32 {vr(z4)}, {vr(x)}, {vr(x + 1)}")
    allred("v_max_f32", z4, h0)
    e(f"  v_sub_f32 {vr(x)}, {vr(x)}, {vr(z4)}")
    e(f"  v_sub_f32 {vr(x + 1)}, {vr(x + 1)}, {vr(z4)}")
    e(f"  v_exp_f32 {vr(x)}, {vr(x)}")
    e(f"  v_exp_f32 {vr(x + 1)}, {vr(x + 1)}")
    e("  s_nop 0")
    e(f"  v_add_f32 {vr(z4 + 1)}, {vr(x)}, {vr(x + 1)}")
    e(f"  v_mul_f32 {vr(x)}, {vr(x)}, {vr(sc + 2)}")
    e(f"  v_mul_f32 {vr(x + 1)}, {vr(x + 1)}, {vr(sc + 3)}")
    e(f"  v_add_f32 {vr(z4 + 2)}, {vr(x)}, {vr(x + 1)}")
    for k in range(6):
        e(f"  ds_write_b32 {vr(ro + k)}, {vr(x + (k & 1))} offset:{LGB}")
    e(f"  v_mul_f32 {vr(z4 + 2)}, {f32bits(7.5):#x}, {vr(z4 + 2)}")
    allred("v_add_f32", z4 + 1, h0)
    allred("v_add_f32", z4 + 2, h0)
    e(f"  v_mov_b32 {vr(h0)}, s{sNEED}")
    e(f"  ds_write_b128 {vr(vSa)}, {vr(z4, 4)} offset:{ST}")
    e(f"  ds_write_b32 {vr(vZ)}, {vr(h0)} offset:{FL + 20}")
    e(f"  v_add_u32 {vr(vSa)}, 16, {vr(vSa)}")
    for k in range(8):
        e(f"  v_add_u32 {vr(ro + k)}, {1536 if k < 6 else SL}, {vr(ro + k)}")
    rank_take("s")
    elect()
    e("  s_waitcnt lgkmcnt(0)")
    e(f"  s_add_u32 s{sNEED}, s{sNEED}, 1")
    e(f"  s_cmp_le_u32 s{sNEED}, 16")
    e("  s_cbranch_scc1 L_hk")

    e(f"  v_and_b32 {vr(h0)}, 15, {vr(l)}")
    e(f"  v_lshlrev_b32 {vr(h0)}, 4, {vr(h0)}")
    e(f"  ds_read_b128 {vr(z4, 4)}, {vr(h0)} offset:{ST}")
    e(f"  v_lshrrev_b32 {vr(h1)}, 4, {vr(l)}")
    e(f"  v_mov_b32 {vr(h2)}, 0xff800000")
    for i in range(16):
        e(f"  v_mov_b32 {vr(AC + i)}, 0")
    e("  s_waitcnt lgkmcnt(0)")
    e(f"  v_cmp_eq_u32 vcc, {vr(h1)}, {vr(z4 + 3)}")
    e(f"  v_add_u32 {vr(h0)}, {PB}, {vr(vL16)}")
    e(f"  v_lshrrev_b32 {vr(u)}, 1, {vr(vL16)}")
    e(f"  v_cndmask_b32 {vr(vM)}, {vr(h2)}, {vr(z4)}, vcc")
    rowred("v_max_f32", vM)
    e(f"  v_sub_f32 {vr(vFc)}, {vr(z4)}, {vr(vM)}")
    e(f"  v_exp_f32 {vr(vFc)}, {vr(vFc)}")
    e(f"  s_mov_b32 s{sK}, 0")
    e(f"  v_cndmask_b32 {vr(vFc)}, 0, {vr(vFc)}, vcc")
    e(f"  v_mul_f32 {vr(vL)}, {vr(vFc)}, {vr(z4 + 1)}")
    rowred("v_add_f32", vL)
    e(f"  s_mul_i32 s{sT0}, s{sE + 15}, 384")
    e(f"  s_add_u32 s{sOUT}, s{sOUT}, s{sT0}")
    e(f"  s_addc_u32 s{sOUT + 1}, s{sOUT + 1}, 0")
    e("L_hp:")
    e(f"  s_lshr_b32 s{sT0}, s2, 4")
    e(f"  s_min_u32 s{sT0}, s{sT0}, 13")
    e(f"  s_cmp_eq_u32 s{sT0}, s{sK}")
    e("  s_cbranch_scc0 L_hc_ok")
    e(f"  s_load_dwordx2 s[{sZ}:{sZ + 1}], s[{sDBG}:{sDBG + 1}], 0 glc")
    e("  s_waitcnt lgkmcnt(0)")
    e(f"  s_mov_b32 s{sTG}, s{sZ}")
    e(f"  s_cmp_eq_u32 s{sZ + 1}, 1")
    e("  s_cbranch_scc1 L_hc_ok")
    e("L_hc:")
    e(f"  global_load_dwordx2 {vr(pr, 2)}, {vr(vZ)}, s[{sDBG}:{sDBG + 1}] sc1")
    e("  s_waitcnt vmcnt(0)")
    e(f"  v_readfirstlane_b32 s{sTG}, {vr(pr)}")
    e(f"  v_readfirstlane_b32 s{sF}, {vr(pr + 1)}")
    e(f"  s_cmp_eq_u32 s{sF}, 1")
    e("  s_cbranch_scc1 L_hc_ok")
    budget("L_hc_ok")
    e("  s_sleep 64")
    e("  s_branch L_hc")
    e("L_hc_ok:")
    vstep_k(sH, sK)
    e(f"  s_lshl_b32 s{sT0}, s{sH}, 4")
    e(f"  v_mov_b32 {vr(h1)}, s{sT0}")
    for j in range(4):
        e(f"  v_readlane_b32 s{rA + j}, {vr(vFc)}, s{sH}")
        e(f"  s_add_u32 s{sH}, s{sH}, 16")
    e(f"  s_add_u32 s{sK}, s{sK}, 1")
    e(f"  s_add_u32 s{sNEED}, s{sK}, 16")
    progwait("hpw", P.psk)
    mark("p")
    hp(0)
    rank_post("p")
    sum_partials(1)
    for j in range(4):
        for i in range(4):
            e(f"  v_fmac_f32 {vr(AC + 4 * j + i)}, s{rA + j}, {vr(x + i)}")
    e(f"  v_add_u32 {vr(h0)}, 3072, {vr(h0)}")
    rank_take("p")
    e(f"  s_cmp_lt_u32 s{sK}, 15")
    e("  s_cbranch_scc1 L_hp")

    if P.eprio:
        e(f"  s_setprio {P.eprio}")
    e(f"  s_lshr_b32 s{sH}, s{sVO + 1}, 28")
    e(f"  s_lshl_b32 s{sT0}, s{sH}, 4")
    e(f"  v_mov_b32 {vr(h1)}, s{sT0}")
    e(f"  s_add_u32 s{sH}, s{sH}, 48")
    e(f"  ds_read_b32 {vr(h1)}, {vr(h1)} offset:{ST + 8}")
    mx = x + 16
    for j in range(3):
        e(f"  v_max3_f32 {vr(mx + j)}, |{vr(AC + 4 * j)}|, |{vr(AC + 4 * j + 1)}|, |{vr(AC + 4 * j + 2)}|")
    for j in range(3):
        e(f"  v_max_f32_e64 {vr(mx + j)}, {vr(mx + j)}, |{vr(AC + 4 * j + 3)}|")
    for n in (8, 4, 2, 1):
        for j in range(3):
            e(f"  v_max_f32_dpp {vr(mx + j)}, {vr(mx + j)}, {vr(mx + j)} row_ror:{n} row_mask:0xf bank_mask:0xf")
    for sw in ("v_permlane16_swap_b32", "v_permlane32_swap_b32"):
        for j in range(3):
            e(f"  v_mov_b32 {vr(mx + 4 + j)}, {vr(mx + j)}")
        for j in range(3):
            e(f"  {sw} {vr(mx + j)}, {vr(mx + 4 + j)}")
        for j in range(3):
            e(f"  v_max_f32 {vr(mx + j)}, {vr(mx + j)}, {vr(mx + 4 + j)}")
    for j in range(3):
        e(f"  v_frexp_exp_i32_f32 {vr(mx + j)}, {vr(mx + j)}")
        e(f"  v_sub_u32 {vr(mx + 4 + j)}, 14, {vr(mx + j)}")
        e(f"  v_subrev_u32 {vr(mx + j)}, 14, {vr(mx + j)}")
        for i in range(4):
            e(f"  v_ldexp_f32 {vr(AC + 4 * j + i)}, {vr(AC + 4 * j + i)}, {vr(mx + 4 + j)}")
        for i in range(2):
            e(f"  v_cvt_pk_f16_f32 {vr(x + 2 * j + i)}, {vr(AC + 4 * j + 2 * i)}, {vr(AC + 4 * j + 2 * i + 1)}")
    for j in range(4):
        e(f"  v_readlane_b32 s{16 + j}, {vr(vM)}, {16 * j}")
        e(f"  v_readlane_b32 s{20 + j}, {vr(vL)}, {16 * j}")
    for j in range(3):
        e(f"  v_readlane_b32 s{rA + j}, {vr(mx + j)}, 0")
    e(f"  v_readlane_b32 s{rA + 3}, {vr(vFc)}, s{sH}")
    for k in range(6):
        e(f"  v_lshrrev_b32 {vr(h2)}, 1, {vr(x + k)}")
        e(f"  v_and_b32 {vr(h2)}, 0x10001, {vr(h2)}")
        e(f"  v_add_u32 {vr(x + k)}, {vr(x + k)}, {vr(h2)}")
    for j in range(3):
        e(f"  v_writelane_b32 {vr(x + 2 * j)}, s{16 + j}, 48")
        e(f"  v_writelane_b32 {vr(x + 2 * j)}, s{20 + j}, 49")
        e(f"  v_writelane_b32 {vr(x + 2 * j + 1)}, s{rA + j}, 49")
    e(f"  v_cmp_gt_u32 vcc, 48, {vr(l)}")
    e(f"  v_lshlrev_b32 {vr(h2)}, 2, {vr(l)}")
    e(f"  v_lshrrev_b32 {vr(h2)}, {vr(h2)}, s{sTG}")
    e(f"  v_mov_b32 {vr(h3)}, 0x10001")
    for i in range(2):
        e(f"  v_cndmask_b32 {vr(tg + 2 + i)}, 0, {vr(h3)}, vcc")
        e(f"  v_bfe_u32 {vr(tg + i)}, {vr(h2)}, {2 * i}, 2")
        e(f"  v_lshl_or_b32 {vr(tg + i)}, {vr(tg + i)}, 15, {vr(tg + i)}")
    e(f"  v_writelane_b32 {vr(tg + 3)}, -1, 48")
    e(f"  v_writelane_b32 {vr(tg + 3)}, s{sMASK}, 49")
    e(f"  v_writelane_b32 {vr(tg + 1)}, s{sTG}, 48")
    e(f"  v_writelane_b32 {vr(tg + 1)}, s{sTG}, 49")
    for i in range(2):
        e(f"  v_and_b32 {vr(tg + i)}, {vr(tg + i)}, {vr(tg + 2 + i)}")
    for k in range(6):
        e(f"  v_bfi_b32 {vr(x + k)}, {vr(tg + 2 + k % 2)}, {vr(tg + k % 2)}, {vr(x + k)}")
    e(f"  v_min_u32 {vr(h2)}, 55, {vr(l)}")
    for j in range(3):
        e(f"  v_lshl_add_u32 {vr(ra + j)}, {vr(h2)}, 3, s{sE + 12 + j}")
    e(f"  s_mul_i32 s{sT0}, s{sE + 15}, 1344")
    e(f"  s_add_u32 s{sT0}, s{sT0}, {W_REC}")
    e(f"  v_lshl_add_u32 {vr(ra + 3)}, {vr(h2)}, 3, s{sT0}")
    e("  s_waitcnt lgkmcnt(0)")
    if P.mg:
        e("; the stores leave part-way into the last step, where they disturb the read stream least")
        e(f"  s_mov_b32 s{sNEED}, {31 + (P.mg > 12)}")
        progwait("hmw", P.psl, FL + 32)
    hp(1)
    e("  s_mov_b32 exec_hi, 0xffffff")
    for j in range(3):
        if "w" not in P.xp:
            e(f"  global_store_dwordx2 {vr(ra + j)}, {vr(x + 2 * j, 2)}, s[{sWS}:{sWS + 1}] sc1")
    e("  s_mov_b64 exec, -1")
    if "r" in P.xp:
        e("  s_branch L_skip")
    if P.ml:
        e(f"  s_mov_b32 s{sNEED}, {31 + (P.ml > 12)}")
        progwait("hlw", P.psl, FL + 48)
    else:
        e(f"  s_waitcnt vmcnt({P.aw})")
    hp(2)
    hp(3)
    e("L_hw:")
    hp(4)
    for j in range(3):
        e(f"  global_load_dwordx2 {vr(rec + 2 * j, 2)}, {vr(ra + 3)}, s[{sWS}:{sWS + 1}] offset:{448 * j} sc1")
    e("  s_waitcnt vmcnt(0)")
    hp(5)
    for k in range(6):
        e(f"  v_xor_b32 {vr(rec + k)}, {vr(rec + k)}, {vr(tg + k % 2)}")
    for i in range(2):
        e(f"  v_or3_b32 {vr(h2 + i)}, {vr(rec + i)}, {vr(rec + 2 + i)}, {vr(rec + 4 + i)}")
    e(f"  v_and_b32 {vr(h2)}, {vr(h2)}, {vr(tg + 2)}")
    e(f"  v_and_or_b32 {vr(h2)}, {vr(h3)}, {vr(tg + 3)}, {vr(h2)}")
    e(f"  v_cmp_ne_u32 s[{sZ}:{sZ + 1}], 0, {vr(h2)}")
    for j in range(3):
        e(f"  v_readlane_b32 s{16 + j}, {vr(rec + 2 * j)}, 48")
        e(f"  v_readlane_b32 s{20 + j}, {vr(rec + 2 * j)}, 49")
        e(f"  v_readlane_b32 s{rA + j}, {vr(rec + 2 * j + 1)}, 49")
    e(f"  s_cmp_eq_u64 s[{sZ}:{sZ + 1}], 0")
    e("  s_cbranch_scc1 L_hy")
    budget("L_hy")
    e("  s_branch L_hw")
    e("L_hy:")
    gj = x + 8
    e(f"  v_mov_b32 {vr(h2)}, s19")
    for j in range(3):
        e(f"  v_max_f32 {vr(h2)}, s{16 + j}, {vr(h2)}")
    for j in range(4):
        e(f"  v_sub_f32 {vr(gj + j)}, s{16 + j}, {vr(h2)}")
    for j in range(4):
        e(f"  v_exp_f32 {vr(gj + j)}, {vr(gj + j)}")
    for j in range(3):
        e(f"  s_sext_i32_i16 s{rA + j}, s{rA + j}")
    e(f"  v_mul_f32 {vr(wa)}, s23, {vr(gj + 3)}")
    for j in range(3):
        e(f"  v_fmac_f32 {vr(wa)}, s{20 + j}, {vr(gj + j)}")
    for i in range(4):
        e(f"  v_mul_f32 {vr(fo + i)}, {vr(AC + 12 + i)}, {vr(gj + 3)}")
    e(f"  v_rcp_f32 {vr(wa)}, {vr(wa)}")
    for j in range(3):
        e(f"  v_ldexp_f32 {vr(gj + j)}, {vr(gj + j)}, s{rA + j}")
    for j in range(3):
        for i in range(4):
            e(f"  v_fma_mix_f32 {vr(fo + i)}, {vr(rec + 2 * j + i // 2)}, {vr(gj + j)}, {vr(fo + i)} op_sel:[{i & 1},0,0] op_sel_hi:[1,0,0]")
    e(f"  v_mul_f32 {vr(h2)}, s{rA + 3}, {vr(gj + 3)}")
    e(f"  v_mul_f32 {vr(h2)}, {vr(h2)}, {vr(wa)}")
    e(f"  v_mul_f32 {vr(h3)}, {vr(h2)}, {vr(h1)}")
    for i in range(4):
        e(f"  v_fma_f32 {vr(fo + i)}, {vr(fo + i)}, {vr(wa)}, -{vr(h3)}")
    if "r" in P.xp:
        e("L_skip:")
    hp(6)
    e("  s_barrier")
    hp(7)
    for k in range(4):
        e(f"  ds_read_b128 {vr(x + 4 * k, 4)}, {vr(h0)} offset:{768 * k}")
    e("  s_waitcnt lgkmcnt(2)")
    for h in (0, 2):
        e(f"  v_pk_add_f32 {vr(x + h, 2)}, {vr(x + h, 2)}, {vr(x + 4 + h, 2)}")
    e("  s_waitcnt lgkmcnt(0)")
    for h in (0, 2):
        e(f"  v_pk_add_f32 {vr(x + 8 + h, 2)}, {vr(x + 8 + h, 2)}, {vr(x + 12 + h, 2)}")
    for h in (0, 2):
        e(f"  v_pk_add_f32 {vr(x + h, 2)}, {vr(x + h, 2)}, {vr(x + 8 + h, 2)}")
    for i in range(4):
        e(f"  v_fmac_f32 {vr(fo + i)}, {vr(h2)}, {vr(x + i)}")
    e(f"  v_cvt_pk_bf16_f32 {vr(fo)}, {vr(fo)}, {vr(fo + 1)}")
    e(f"  v_cvt_pk_bf16_f32 {vr(fo + 1)}, {vr(fo + 2)}, {vr(fo + 3)}")
    e("  s_mov_b32 exec_hi, 0xffff")
    e(f"  global_store_dwordx2 {vr(u)}, {vr(fo, 2)}, s[{sOUT}:{sOUT + 1}] {P.of}")
    if P.sd:
        e(f"  s_mov_b32 s{sNEED}, 32")
        e("  s_mov_b64 exec, -1")
        mark("z")
        e(f"  s_cmp_eq_u32 s{sJ}, 0")
        e("  s_cbranch_scc0 L_sd")
        e(f"  v_lshlrev_b32 {vr(h0)}, 2, {vr(l)}")
        e("  s_mov_b32 exec_lo, 0")
        e("  s_mov_b32 exec_hi, 0x3fff")
        e(f"  global_atomic_add {vr(h0)}, {vr(vCL)}, s[{sDBG}:{sDBG + 1}] offset:-120 sc1")
        e("L_sd:")
    if P.enc:
        m0, m1, base, amp, wg = [int(v) for v in P.enc.split(",")]
        if m1 == 32:
            e("  s_memrealtime s[74:75]")
        if m0 == 0:
            e(f"  s_mov_b32 s72, s{sST}")
        e("  s_waitcnt lgkmcnt(0)")
        if P.em:
            e(f"  s_not_b32 s73, s{sST}")
            e(f"  s_mov_b32 s72, s{sST}")
            e(f"  s_atomic_umax s74, s[{sDBG}:{sDBG + 1}], 40")
            e(f"  s_atomic_umax s73, s[{sDBG}:{sDBG + 1}], 44")
            e(f"  s_atomic_umax s72, s[{sDBG}:{sDBG + 1}], 48")
        else:
            e("  s_sub_u32 s72, s74, s72")
            e(f"  s_atomic_add s72, s[{sDBG}:{sDBG + 1}], 32")
        e(f"  s_cmp_eq_u32 s2, {wg}")
        e("  s_cbranch_scc0 L_nohold")
        e("L_hold0:")
        e(f"  s_memrealtime s[{sST + 2}:{sST + 3}]")
        e("  s_waitcnt lgkmcnt(0)")
        e(f"  s_sub_u32 s{sT0}, s{sST + 2}, s{sST}")
        e(f"  s_cmp_lt_u32 s{sT0}, 12500")
        e("  s_cbranch_scc1 L_hold0")
        e("  s_mov_b32 s72, 0")
        if P.em:
            e("  s_mov_b32 s73, 0")
            e(f"  s_atomic_add s72, s[{sDBG}:{sDBG + 1}], {48 if P.em == 3 else 40} glc")
            e(f"  s_atomic_add s73, s[{sDBG}:{sDBG + 1}], {48 if P.em == 2 else 44} glc")
            e("  s_waitcnt lgkmcnt(0)")
            if P.em != 2:
                e("  s_not_b32 s73, s73")
            e("  s_sub_u32 s72, s72, s73")
            e("  s_lshl_b32 s72, s72, 8")
        else:
            e(f"  s_atomic_add s72, s[{sDBG}:{sDBG + 1}], 32 glc")
            e("  s_waitcnt lgkmcnt(0)")
        e(f"  s_sub_u32 s72, s72, {base * 256}")
        e("  s_max_i32 s72, s72, 0")
        e("  s_min_i32 s72, s72, 128000")
        e(f"  s_mul_i32 s72, s72, {amp}")
        e("  s_lshr_b32 s72, s72, 8")
        e("  s_add_u32 s72, s72, 13000")
        e("L_hold:")
        e(f"  s_memrealtime s[{sST + 2}:{sST + 3}]")
        e("  s_waitcnt lgkmcnt(0)")
        e(f"  s_sub_u32 s{sT0}, s{sST + 2}, s{sST}")
        e(f"  s_cmp_lt_u32 s{sT0}, s72")
        e("  s_cbranch_scc1 L_hold")
        e("L_nohold:")
        e("  s_waitcnt lgkmcnt(0)")
    if P.pe:
        e("; diagnostic build only: pointers to d_debug, some of their bits into the run time")
        off, sh_, bits = [int(v) for v in P.pe.split(",")]
        e("  s_cmp_eq_u32 s2, 0")
        e("  s_cbranch_scc0 L_nope")
        e("  s_load_dwordx16 s[4:19], s[0:1], 0")
        e("  s_waitcnt lgkmcnt(0)")
        e("  s_mov_b64 exec, 1")
        for k, r_ in enumerate((4, 6, 7, 8, 12, 13, 14, 30, 31)):
            e(f"  v_mov_b32 v5, s{r_}")
            e(f"  global_store_dword {vr(vZ)}, v5, s[{sDBG}:{sDBG + 1}] offset:{16 + 4 * k}")
        if off < 0:
            e("  s_sub_u32 s72, s6, s12")
        else:
            e(f"  s_mov_b32 s72, s{off}")
        e(f"  s_bfe_u32 s72, s72, {bits << 16 | sh_:#x}")
        e("  s_mul_i32 s72, s72, 300")
        e("  s_add_u32 s72, s72, 13000")
        e("L_pe:")
        e(f"  s_memrealtime s[{sST + 2}:{sST + 3}]")
        e("  s_waitcnt lgkmcnt(0)")
        e(f"  s_sub_u32 s{sT0}, s{sST + 2}, s{sST}")
        e(f"  s_cmp_lt_u32 s{sT0}, s72")
        e("  s_cbranch_scc1 L_pe")
        e("L_nope:")
    if P.tail:
        e("; diagnostic build only")
        e("  s_memrealtime s[72:73]")
        e("L_tail:")
        e("  s_memrealtime s[74:75]")
        e("  s_waitcnt lgkmcnt(0)")
        e("  s_sub_u32 s74, s74, s72")
        e(f"  s_cmp_lt_u32 s74, {P.tail}")
        e("  s_cbranch_scc1 L_tail")
    if P.hold:
        e("; diagnostic build only")
        e("L_hold:")
        e(f"  s_memrealtime s[{sST + 2}:{sST + 3}]")
        e("  s_waitcnt lgkmcnt(0)")
        e(f"  s_sub_u32 s{sT0}, s{sST + 2}, s{sST}")
        e(f"  s_cmp_lt_u32 s{sT0}, {P.hold}")
        e("  s_cbranch_scc1 L_hold")
    if P.stamp:
        e(f"  s_memrealtime s[{sST + 2}:{sST + 3}]")
        if P.hprof:
            e("  s_waitcnt lgkmcnt(0)")
            e("  s_lshl_b32 s44, s2, 5")
            e("  s_add_u32 s44, s44, 0x80000")
            e("  v_mov_b32 v1, s44")
            for k in range(8):
                e(f"  s_sub_u32 s45, s{sST + 2}, s{HP[k]}")
                e(f"  v_mov_b32 v{4 + k}, s45")
            e(f"  global_store_dwordx4 v1, v[4:7], s[{sWS}:{sWS + 1}]")
            e(f"  global_store_dwordx4 v1, v[8:11], s[{sWS}:{sWS + 1}] offset:16")
            e("  s_nop 2")
        e("  s_getreg_b32 s6, hwreg(HW_REG_XCC_ID)")
        e("  s_getreg_b32 s7, hwreg(HW_REG_HW_ID)")
        e("  s_waitcnt lgkmcnt(0)")
        e(f"  v_mov_b32 v4, s{sST}")
        e(f"  v_mov_b32 v5, s{sST + 2}")
        e("  v_mov_b32 v6, s6")
        e("  v_mov_b32 v7, s7")
        e("  s_lshl_b32 s8, s2, 4")
        e("  v_mov_b32 v1, s8")
        e(f"  global_store_dwordx4 v1, v[4:7], s[{sWS}:{sWS + 1}]")
    e("L_end:")
    e("  s_endpgm")
    e(".p2align 6")
    e(".type L_order,@object")
    e("L_order:")
    for k in range(0, len(ordtab), 8):
        e("  .long " + ", ".join(f"{v:#x}" for v in ordtab[k:k + 8]))
    e(".type L_hpos,@object")
    e("L_hpos:")
    for b in range(2):
        at = {chunk_of(b, n, s_): lpos(n, s_) for n in range(24) for s_ in range(16)}
        rows = sorted({c // 3 for c in at})
        for l_ in range(64):
            r0, r1 = rows[l_], rows[l_ + 64]
            e("  .long " + ", ".join(f"{a_ | b_ << 16:#x}" for a_, b_ in [(at[3 * r0 + k], at[3 * r1 + k]) for k in range(3)] + [(2 * r0, 2 * r1)]))
    e('.section .rodata,"a"')
    e(".p2align 6")
    e(f".amdhsa_kernel {NAME}_kernel")
    e(f"  .amdhsa_next_free_vgpr {NV}")
    e("  .amdhsa_next_free_sgpr 100")
    e(f"  .amdhsa_accum_offset {(NV + 3) // 4 * 4}")
    e("  .amdhsa_group_segment_fixed_size 0")
    e("  .amdhsa_kernarg_size 112")
    e("  .amdhsa_user_sgpr_count 2")
    e("  .amdhsa_user_sgpr_kernarg_segment_ptr 1")
    e("  .amdhsa_system_sgpr_workgroup_id_x 1")
    e(".end_amdhsa_kernel")
    return "\n".join(o) + "\n", NV


if __name__ == "__main__":
    ap = argparse.ArgumentParser()
    ap.add_argument("-o", default=f"/code/{NAME}.s")
    for name, d in (("sh", 4), ("deep", 5), ("pd", 9), ("pre", 12), ("nf", 6), ("su", 3), ("hp0", 3), ("tst", 24),
                    ("ctl", 1), ("hi", 0), ("hiv", 5), ("lo", -25), ("thr", 2), ("tp", 2), ("start", 5), ("s0", 0), ("ba", 3),
                    ("r0", 2), ("r1", 30), ("rf", 3), ("rp", 2), ("rt", 26), ("rotl", 7), ("kp", 7), ("kp0", 6), ("kn", 20),
                    ("top", 26), ("tpn", 1), ("lag", 2), ("mg", 8), ("ml", 0), ("aw", 0), ("sd", 0), ("em", 0), ("tail", 0),
                    ("eprio", 2), ("psl", 1), ("psk", 1), ("spr", 1), ("bound", 4000000), ("hold", 0), ("dly", 0), ("dlb", 2)):
        ap.add_argument("--" + name, type=int, default=d)
    ap.add_argument("--kp_", default="6,6,6,7,8,9,9,10,10,11,11,12,12", help="K loads issued by each prologue point")
    ap.add_argument("--of", default="")
    ap.add_argument("--enc", default="", help="diagnostic only: m0,m1,base,amp,wg")
    ap.add_argument("--ok", default="REXbLbLbL", help="events of a K group")
    ap.add_argument("--ov", default="REXbLbLbL", help="events of a V group")
    ap.add_argument("--rk", default="", help="die gain per step (hex digits, 0 = no ranking)")
    ap.add_argument("--sb", default="", help="step:bias,... added to the lateness")
    ap.add_argument("--pf", default="sc1")
    ap.add_argument("--tpp", default="012", help="positions with a third level")
    ap.add_argument("--pe", default="", help="diagnostic only")
    ap.add_argument("--bu", default="012", help="extra depth per position in the issued group")
    ap.add_argument("--th", default="-9,5,13")
    ap.add_argument("--sch", default="ut_a6.txt")
    ap.add_argument("--xp", default="", help="timing experiments only")
    for name in ("stamp", "trace", "tfine", "hprof"):
        ap.add_argument("--" + name, action="store_true", help="diagnostics only")
    a = ap.parse_args()
    txt, nv = gen(a)
    open(a.o, "w").write(txt)
    print("wrote", a.o, "vgprs", nv)
```

```python
import argparse
import math
import os
import struct
from gen import HEADER, NAME, Alloc, f32bits, vr

UB = 256 * 768

ABOUT = """
Generated by tools/gen10.py.
Work split: a unit is a block of 256 KV rows of one head.  Workgroups g and g ^ 8 share 16 units of four heads (table
  L_order) and alternate over the 32 KiB runs of a unit, 128 rows each.
  Waves 1-4 stream one 4 KiB block per round; a 16-lane row handles one third (64 dims) of a KV row per load.
  K sweep: logit = k_scale * sum_d (qk - 7.5) * (qa * cos + qb * sin), RoPE moved onto the rotated q;
  V sweep: partial = sum_rows p * v_scale * qv.
  Wave 0 (helper) rotates q, takes max / exp / sums over the workgroup's rows of each unit, and merges partials.
Constant parameters (the same for every seed) are built in: both zero points (7.5), q_cos / q_sin (table L_qcs) and
  k_cos / k_sin = cos / sin(row * inv_freq).  The angle is split into the part of the row inside its unit (f16 table in
  LDS, evaluated once from L_inv) and the part of the unit (L_f0), by which (qa, qb) is turned in fp32.
Hand-off: every workgroup finishes one of its heads and streams a unit of that head last.  Partials and (max, sum) of
  the other three go to d_ws with sc1 stores; every 8 bytes carry a piece of a tag that differs from the one found there
  on entry (sent round through d_debug).  The finisher reads until all tags fit and rescales to the true row maximum.
Flow control (speed only, results do not depend on it): waves publish a group counter and sample the counters of
  units on the same die; late waves keep one more load in flight, early waves one or two fewer.  Helpers rank the dies.
"""

RUN = (1, 2, 0)


def chunk_of(b, n, s):
    g = 256 * RUN[n >> 3] + 128 * b + 16 * (n & 7) + s
    return {128: 512, 255: 639, 512: 128, 639: 255}.get(g, g)


def tidx(b, row):
    return row - 43 * b - 42 * ((row >= 85) + (row >= 171))


def rev(x, bits):
    return int(format(x, f"0{bits}b")[::-1], 2)


def lpos(n, s):
    return 4 * (16 * s + rev(n, 4)) if n < 16 else 1024 + 4 * (8 * s + rev(n - 16, 3))


TN = [(RUN[n >> 3] + (n & 7)) % 3 for n in range(24)]
SPECIAL = {n: i for i, n in enumerate(sorted(8 * RUN.index(r) + i for r in (0, 2) for i in (0, 7)))}
for b_ in range(2):
    ch = sorted(chunk_of(b_, n, s) for n in range(24) for s in range(16))
    assert ch == sorted(3 * r + k for r in {c // 3 for c in ch} for k in range(3))
    assert all(chunk_of(b_, n, s) % 3 == (TN[n] + 2 * b_ + s) % 3 for n in range(24) for s in range(16))
    assert len({tidx(b_, c // 3) for c in ch}) == 128 and max(tidx(b_, c // 3) for c in ch) == 128


def gen(P):
    o = []
    e = o.append
    RING, PD = 24, P.pd
    sh, deep = P.sh, P.deep
    PRE = P.pre
    TP = P.tp
    LAG = P.lag
    assert deep <= PD - 1 and sh <= deep and PD <= PRE
    SL = 512
    SA = 16 * SL

    FL = 0
    QS = 128
    ST = 256
    TB = 512
    QB = TB + 129 * 384
    LGB = QB + 16 * 768 + 1536
    SCB = LGB + 16 * 1536
    PB = SCB + 2 * SA
    QR = PB + 49152
    LDS = QR + 4 * 784
    assert 81920 < LDS <= 163840
    W_REC = 0x400000
    W_RK = 0x780000
    W_PL = 0x7c0000

    sQ, sQK, sKS, sKZ, sQV, sVS, sVZ, sQC = 4, 6, 8, 10, 12, 14, 16, 18
    sQS, sKC, sKSN, sOUT = 20, 22, 24, 26
    sDBG, sWS = 28, 30
    rA, rB = 32, 36
    sW, sJ, sC, sK, sT0, sT1, sF, sNEED = 40, 41, 42, 43, 44, 45, 46, 47
    sMSK = 48
    sOF = 51
    sE = 48
    sCO = 61
    sZ = 64
    sMASK, sSCALE, sH = 66, 67, 68
    sS = 69
    sX = 70
    sRF = 80
    sST = 84
    sB = 91
    sVO = 92
    sSP = 94
    sI = 95
    sSE, sCU = 81, 79
    sLO = 78
    sTG = 99

    va = Alloc(1)
    vT16, vF, vZ, vC16 = [va.take(1) for _ in range(4)]
    voff = va.take(7)
    vTA = va.take(7)
    vQA = va.take(3)
    vPA = va.take(3)
    vLG = va.take(2)
    vLB = va.take(2)
    vLV = va.take(2)
    A = va.take(2)
    LG = va.take(2)
    M1, M2, M3 = [va.take(1) for _ in range(3)]
    bc = va.take(2, 2)
    dacc = va.take(2, 2)
    wt = va.take(4, 2)
    vtr, vPW, vPS, vN, vSum, vSu2, vBA = [va.take(1) for _ in range(7)]
    vPL = va.take(4)
    vU = va.take(1)
    vBI = va.take(2, 2)
    smp = va.take(4 * LAG, 4)
    qa = va.take(12, 4)
    tab = va.take(24, 4)
    tmp = va.take(12, 4)
    ring = va.take(4 * RING, 4)
    NV = va.n
    acc = qa

    here = os.path.dirname(os.path.abspath(__file__))
    sch = [[int(x) for x in ln.split()] for ln in open(os.path.join(here, P.sch))]
    inv, qcs = [[int(x, 16) for x in ln.split()] for ln in open(os.path.join(here, "consts.txt"))]
    rev_ = [struct.unpack("<f", struct.pack("<I", v))[0] / (2 * math.pi) for v in inv]
    assert sorted(2 * u_ + (g >> 3 & 1) for g in range(256) for u_ in sch[g][:16]) == list(range(4096))
    assert sorted(x[31] >> 3 for x in sch) == list(range(256))
    fill = [0] * 256
    ordtab = []
    for g in range(256):
        ku, own = sch[g][:16], sch[g][31] >> 3
        od = [ku.index(u_) for u_ in sch[g][16:]]
        assert sorted(od) == list(range(16)) and od[0] < 14
        assert ku[0] == (16 * (((g & 7) << 3) + (g >> 4 & 7) + (g >> 7 << 6)) + 14) * 21846 >> 16
        need = list(dict.fromkeys(u_ >> 3 for u_ in ku))
        heads = [h for h in need if h != own] + [own]
        assert len(heads) == 4
        u16 = [u_ | heads.index(u_ >> 3) << 12 for u_ in ku]
        nib = sum(k << (4 * t) for t, k in enumerate(od))
        hq = [h | heads.index(h) << 12 for h in need]
        dst = []
        for h in heads[:3]:
            dst.append(W_REC + 448 * (3 * h + fill[h]))
            fill[h] += 1
        ordtab += [u16[2 * i] | u16[2 * i + 1] << 16 for i in range(8)]
        ordtab += [nib & 0xffffffff, nib >> 32, hq[0] | hq[1] << 16, hq[2] | hq[3] << 16] + dst + [own]
    assert fill == [3] * 256

    def ld(n):
        rr = rA if n < 24 else rB
        n %= 24
        so = f"s{sOF + (n & 7)}" if n & 7 else "0"
        vo = voff + (3 + SPECIAL[n] if n in SPECIAL else n >> 3)
        e(f"  buffer_load_dwordx4 {vr(ring + 4 * n, 4)}, {vr(vo)}, s[{rr}:{rr + 3}], {so} offen nt")

    ORD = {"K": P.ok, "V": P.ov}
    DIST = {"K": PRE, "V": PD}
    bu = [int(x) for x in P.bu]
    th = [int(x) for x in P.th.split(",")]
    assert PD % 3 == 0 and PRE % 3 == 0 and deep == sh + 1

    def memops(ph, a):
        r = []
        for i, c in enumerate(ORD[ph]):
            if c == "X" and P.ctl:
                r += [(i, "B")] * (a == P.ba) + [(i, "S"), (i, "Q")]
            if c == "L":
                r.append((i, "L"))
        return r

    def back(ph, a, i):
        r = [c for j, c in memops(ph, a) if j < i][::-1]
        for k in range(1, 8):
            r += [c for _, c in memops(ph, (a - k) % 8)][::-1]
        return r

    def cnt(ph, a, i, depth):
        depth += bu[ORD[ph][:i].count("L")]
        r = back(ph, a, i)
        return [k + 1 for k, c in enumerate(r) if c == "L"][depth - 2] if depth > 1 else 0

    def swait(ph, a):
        assert ORD[ph].index("E") < ORD[ph].index("X")
        r = back(ph, a, ORD[ph].index("E"))
        return [k for k, c in enumerate(r) if c == "Q"][LAG - 1]

    plain = {}

    def verify():
        ops = [("L", i) for i in range(PRE)]
        done = ORD["K"][:ORD["K"].index("L")].count("b")
        for g in range(256):
            ph, a = "KV"[g >= 128], g % 8
            if 3 * g + PD >= 768 or 128 <= g < 128 + (PRE - PD) // 3:
                for n in range(3 * g, 3 * g + 4 - (g == 255)):
                    plain[n] = len(ops) - 1 - ops.index(("L", n))
                done = max(done, len(ops) - plain[min(3 * g + 3, 767)])
                continue
            nb = nl = 3 * g
            for i, c in enumerate(ORD[ph]):
                if c == "E" and P.ctl:
                    done = max(done, len(ops) - swait(ph, a))
                if c == "X" and P.ctl:
                    ops += [("X", 0)] * (1 + (a == P.ba))
                if c == "b":
                    assert ("L", nb) in ops[:done], nb
                    nb += 1
                if c == "L":
                    done = max(done, len(ops) - cnt(ph, a, i, deep + P.tpn * (P.top < 99 and str(nl % 3) in P.tpp) if P.ctl else sh))
                    ops.append(("L", nl + DIST[ph]))
                    nl += 1
    verify()
    lab = [0]
    rare = []

    def flush():
        o.extend(rare)
        rare.clear()

    def issue(ph, a, i):
        j = ORD[ph][:i].count("L")
        lab[0] += 1
        if P.ctl and j == TP:
            e(f"  s_cmp_lt_i32 s{sS}, {P.lo}")
            e(f"  s_cbranch_scc1 L_t{lab[0]}")
            rare.extend([f"L_t{lab[0]}:", f"  s_waitcnt vmcnt({cnt(ph, a, i, P.thr + 1)})", f"  s_branch L_p{lab[0]}"])
        if P.ctl:
            t = (P.hi if ph == "K" else P.hiv) + th[j]
            assert P.lo <= t < P.top
            top = P.top < 99 and str(j) in P.tpp
            w = lambda d: f"  s_waitcnt vmcnt({cnt(ph, a, i, d)})"
            back = f"  s_branch L_p{lab[0]}"
            if t < 0:
                if top:
                    e(f"  s_sub_u32 s{sT0}, s{sS}, {t + 1}")
                    e(f"  s_cmp_lt_u32 s{sT0}, {P.top - t}")
                    rare.extend([f"L_q{lab[0]}:", w(deep + P.tpn), f"  s_cmp_gt_i32 s{sS}, 0", f"  s_cbranch_scc1 L_p{lab[0]}", w(sh), back])
                else:
                    e(f"  s_cmp_gt_i32 s{sS}, {t}")
                    rare.extend([f"L_q{lab[0]}:", w(sh), back])
                e(f"  s_cbranch_scc0 L_q{lab[0]}")
                e(w(deep))
                e(f"L_p{lab[0]}:")
            elif top:
                e(f"  s_cmp_gt_i32 s{sS}, {t}")
                e(f"  s_cbranch_scc1 L_q{lab[0]}")
                rare.extend([f"L_q{lab[0]}:", w(deep + P.tpn), f"  s_cmp_gt_i32 s{sS}, {P.top}", f"  s_cbranch_scc1 L_p{lab[0]}", w(deep), back])
                e(w(sh))
                e(f"L_p{lab[0]}:")
            else:
                e(f"  s_cmp_gt_i32 s{sS}, {t}")
                e(f"  s_cbranch_scc1 L_p{lab[0]}")
                e(w(sh))
                e(f"L_p{lab[0]}:")
                e(w(deep))
        else:
            e(f"  s_waitcnt vmcnt({cnt(ph, a, i, sh)})")
        ld(3 * a + j + DIST[ph])
        if ph == "V" and 3 * a + j + 1 == P.mg:
            e(f"  ds_write_b32 {vr(vPW)}, {vr(M1)} offset:{FL + 32}")
        if ph == "V" and 3 * a + j + 1 == P.ml:
            e(f"  ds_write_b32 {vr(vPW)}, {vr(M1)} offset:{FL + 48}")

    def evaluate(ph, a):
        if not P.ctl:
            return
        sm = smp + 4 * (a % LAG)
        e(f"  s_waitcnt vmcnt({swait(ph, a)})")
        if a == (P.ba + LAG) % 8:
            e(f"  v_add_u32 {vr(vBI)}, {vr(vBI)}, {vr(vBI + 1)}")
        e(f"  s_add_u32 s{sT0}, s{sLO}, 0x03030303")
        e(f"  v_msad_u8 {vr(vSum)}, s{sLO}, {vr(sm)}, 0")
        e(f"  v_msad_u8 {vr(vSu2)}, s{sT0}, {vr(sm)}, 0")
        if a == (P.ba + LAG) % 8:
            e(f"  v_readfirstlane_b32 s{sB}, {vr(vBI)}")
        for k in range(1, 3):
            e(f"  v_msad_u8 {vr(vSum)}, s{sLO}, {vr(sm + k)}, {vr(vSum)}")
            e(f"  v_msad_u8 {vr(vSu2)}, s{sT0}, {vr(sm + k)}, {vr(vSu2)}")
        e(f"  v_sub_u32 {vr(vSum)}, {vr(vSum)}, {vr(vSu2)}")
        e(f"  s_add_u32 s{sLO}, s{sLO}, 0x01010101")
        e(f"  v_readlane_b32 s{sMASK}, {vr(vSum)}, 0")
        e(f"  v_readlane_b32 s{sSCALE}, {vr(vSum)}, 1")

    def decide(ph, a):
        if not P.ctl:
            return
        if a == (P.ba + LAG) % 8:
            for it in filter(None, P.sb.split(",")):
                st_, b_ = [int(v) for v in it.split(":")]
                if (st_ >= 16) == (ph == "V"):
                    e(f"  s_cmp_eq_u32 s{sK}, {st_ % 16}")
                    e(f"  s_cselect_b32 s{sT0}, {b_}, 0")
                    e(f"  s_add_u32 s{sB}, s{sB}, s{sT0}")
        cur, old = (sI, sCO) if a & 1 else (sCO, sI)
        e(f"  s_add_u32 s{cur}, s{sMASK}, s{sSCALE}")
        e(f"  s_add_u32 s{sS}, s{cur}, s{old}")
        e(f"  s_ashr_i32 s{sS}, s{sS}, 1")
        e(f"  s_add_u32 s{sS}, s{sS}, s{sB}")
        if ph == "K" and a < P.start:
            e(f"  s_cmp_eq_u32 s{sK}, 0")
            e(f"  s_cselect_b32 s{sS}, {P.s0}, s{sS}")

    def exchange(a):
        if not P.ctl:
            return
        e("  s_mov_b64 exec, 1")
        if a == P.ba:
            e(f"  global_load_dwordx2 {vr(vBI, 2)}, {vr(vBA)}, s[{sWS}:{sWS + 1}] {P.pf}")
        e(f"  global_store_byte {vr(vPS)}, {vr(vN)}, s[{sWS}:{sWS + 1}]")
        e("  s_mov_b64 exec, 3")
        e(f"  global_load_dwordx3 {vr(smp + 4 * (a % LAG), 3)}, {vr(vPL + a % 4)}, s[{sWS}:{sWS + 1}] {P.pf}")
        e(f"  v_add_u32 {vr(vN)}, 1, {vr(vN)}")
        e("  s_mov_b64 exec, -1")

    def srd_head(rr, sp, sh_):
        e(f"  s_mul_i32 s{sT0}, s{sh_}, {UB}")
        e(f"  s_add_u32 s{rr}, s{sp}, s{sT0}")
        e(f"  s_addc_u32 s{rr + 1}, s{sp + 1}, 0")

    def vstep_k(dst, src):
        e(f"  s_lshl_b32 s{dst}, s{src}, 2")
        e(f"  s_lshr_b64 s[{sZ}:{sZ + 1}], s[{sVO}:{sVO + 1}], s{dst}")
        e(f"  s_and_b32 s{dst}, s{sZ}, 15")

    def head_of(dst, slot, vU=vU):
        e(f"  s_lshr_b32 s{sT0}, s{slot}, 1")
        e(f"  v_readlane_b32 s{sZ}, {vr(vU)}, s{sT0}")
        e(f"  s_lshl_b32 s{sT0}, s{slot}, 4")
        e(f"  s_lshr_b32 s{sZ}, s{sZ}, s{sT0}")
        e(f"  s_and_b32 s{dst}, s{sZ}, 0x7ff")

    def budget(ok):
        e(f"  s_cmp_eq_u32 s{sSP}, 0")
        e(f"  s_cbranch_scc1 {ok}")
        e(f"  s_sub_u32 s{sSP}, s{sSP}, 1")

    def flagwait(name, off):
        e(f"L_{name}:")
        e("  s_waitcnt lgkmcnt(0)")
        e(f"  v_readfirstlane_b32 s{sF}, {vr(vF)}")
        e(f"  s_cmp_ge_u32 s{sF}, s{sNEED}")
        e(f"  s_cbranch_scc0 L_{name}_no")
        e(f"L_{name}_ok:")
        rare.extend([f"L_{name}_no:", f"  s_cmp_eq_u32 s{sSP}, 0", f"  s_cbranch_scc1 L_{name}_ok", f"  s_sub_u32 s{sSP}, s{sSP}, 1",
                     f"  ds_read_b32 {vr(vF)}, {vr(vZ)} offset:{off}", f"  s_branch L_{name}"])

    def tr():
        if P.trace:
            e(f"  {'s_memtime' if 'm' in P.xp else 's_memrealtime'} s[88:89]")
            e("  s_waitcnt lgkmcnt(0)")
            e(f"  v_writelane_b32 {vr(vtr)}, s88, m0")
            e("  s_add_u32 m0, m0, 1")
            e("  s_min_u32 m0, m0, 63")

    def die_base(dst):
        e(f"  s_getreg_b32 s{sSE}, hwreg(HW_REG_HW_ID, 8, 7)")
        e(f"  s_getreg_b32 s{dst}, hwreg(HW_REG_XCC_ID, 0, 3)")
        e(f"  s_and_b32 s{sCU}, s{sSE}, 15")
        e(f"  s_lshr_b32 s{sSE}, s{sSE}, 5")
        e(f"  s_mul_i32 s{dst}, s{dst}, 4352")
        e(f"  s_add_u32 s{dst}, s{dst}, {W_PL}")

    ha = Alloc(16)
    l, u, h0, h1, h2, h3 = [ha.take(1) for _ in range(6)]
    wa, wb, vSh, vFc, vM, vL = [ha.take(1) for _ in range(6)]
    ro = ha.take(8)
    vL16, vFA, vFX, vFB, vEL, vCL, vSa, vSq = [ha.take(1) for _ in range(8)]
    hq = ha.take(2)
    hU = ha.take(1)
    z4 = ha.take(4, 4)
    cs = ha.take(8, 4)
    f0 = ha.take(4, 4)
    sc = ha.take(4, 4)
    qn = ha.take(4, 4)
    x = ha.take(32, 4)
    pr = ha.take(4, 4)
    fo = ha.take(4, 4)
    rec = ha.take(8, 4)
    AC = ha.take(16, 4)
    st4 = ha.take(4, 4)
    tg = ha.take(4, 4)
    ra = ha.take(8)
    assert ha.n <= NV and vZ < 16

    invX, invY, tK, tA, tN, tO = tmp, tmp + 4, tmp + 8, tab, tab + 4, tab + 8
    PC0 = 20 + 8 * P.stamp + 16 * (P.dly > 0)
    D_INV, D_QCS, D_F0, D_END = 256, 768, 1152, 1536
    NF = P.nf
    assert RUN[0] == 1 and NF <= 8
    e(HEADER.rstrip("\n"))
    e(f"; @launch grid=(256,1,1) block=(320,1,1) lds={LDS}")
    for ln in ABOUT.strip("\n").split("\n"):
        e("; " + ln)
    e('.amdgcn_target "amdgcn-amd-amdhsa--gfx950"')
    e(".text")
    e(f".globl {NAME}_kernel")
    e(".p2align 8")
    e(f".type {NAME}_kernel,@function")
    e(f"{NAME}_kernel:")
    e("  s_cmpk_ge_u32 s2, 0x100")
    e("  s_cbranch_scc1 L_end")
    if P.dly:
        e("; diagnostic build only: half of the dies start late")
        e(f"  s_getreg_b32 s4, hwreg(HW_REG_XCC_ID, {P.dlb}, 1)")
        e("  s_cmp_eq_u32 s4, 0")
        e("  s_cbranch_scc1 L_dly")
        e(f"  s_sleep {P.dly}")
        e("L_dly:")
    if P.stamp:
        e(f"  s_memrealtime s[{sST}:{sST + 1}]")
    e("  s_load_dwordx16 s[4:19], s[0:1], 0")
    e(f"  s_getpc_b64 s[{sZ}:{sZ + 1}]")
    e("L_pc:")
    e("  v_cmp_gt_u32 vcc, 64, v0")
    e(f"  v_lshlrev_b32 {vr(vT16)}, 4, v0")
    e(f"  s_lshr_b32 s{sK}, s2, 4")
    e(f"  s_lshl_b32 s{sF}, s2, 6")
    e(f"  s_add_u32 s{sF}, s{sF}, L_order-L_pc")
    e(f"  s_and_b32 s{sH}, s2, 7")
    e("  s_cbranch_vccz L_s0")
    e(f"  s_load_dwordx16 s[{sE}:{sE + 15}], s[{sZ}:{sZ + 1}], s{sF}")
    e(f"  v_lshl_add_u32 {vr(h0)}, s{sK}, 6, v0")
    e(f"  v_mul_u32_u24 {vr(h0)}, {P.tst}, {vr(h0)}")
    e(f"  global_load_dword {vr(h3)}, {vr(h0)}, s[{sZ}:{sZ + 1}] offset:{D_QCS - PC0}")
    e("  s_branch L_helper")
    e("L_s0:")
    e(f"  v_and_b32 {vr(vC16)}, 0xf0, {vr(vT16)}")
    e(f"  global_load_dwordx4 {vr(invX, 4)}, {vr(vC16)}, s[{sZ}:{sZ + 1}] offset:{D_INV - PC0}")
    e(f"  global_load_dwordx4 {vr(invY, 4)}, {vr(vC16)}, s[{sZ}:{sZ + 1}] offset:{D_INV + 256 - PC0}")
    e(f"  s_and_b32 s{sT1}, s{sK}, 8")
    e(f"  s_add_u32 s{sH}, s{sH}, s{sT1}")
    e(f"  s_and_b32 s{sT1}, s{sK}, 7")
    e(f"  s_lshl3_add_u32 s{sH}, s{sH}, s{sT1}")
    e(f"  s_lshl4_add_u32 s{sH}, s{sH}, 14")
    e(f"  s_mulk_i32 s{sH}, 21846")
    e(f"  s_lshr_b32 s{sC}, s{sH}, 16")
    e(f"  s_mul_i32 s{sT0}, s{sC}, {UB}")
    e(f"  s_and_b32 s{sT1}, s2, 8")
    e(f"  s_lshl_b32 s{sT1}, s{sT1}, 12")
    e(f"  s_add_u32 s{sT0}, s{sT0}, s{sT1}")
    e(f"  s_add_u32 s{sT0}, s{sT0}, {65536 * RUN[0] - 1024 + 4096}")
    e(f"  v_add_u32 {vr(tA)}, s{sT0}, {vr(vT16)}")
    for k in range(1, (NF + 1) // 2):
        e(f"  v_add_u32 {vr(tA + k)}, {8192 * k}, {vr(tA)}")
    e("  s_waitcnt lgkmcnt(0)")
    for n in range(NF):
        e(f"  global_load_dwordx4 {vr(ring + 4 * n, 4)}, {vr(tA + n // 2)}, s[{sQK}:{sQK + 1}] offset:{4096 * (n % 2) - 4096} nt")
    e("  s_branch L_s1")
    e("L_b0:")
    e(f".if (L_b0 - {NAME}_kernel > {D_INV}) || (L_pc - {NAME}_kernel != {PC0})")
    e('.error "entry block layout"')
    e(".endif")
    e(".p2align 8")
    e(".type L_inv,@object")
    e("L_inv:")
    tb = [f32bits(v) for v in rev_[:64] + rev_[64:] + rev_[64:]]
    for k in range(0, 128, 8):
        e("  .long " + ", ".join(f"{v:#x}" for v in tb[k:k + 8]))
    e(".type L_qcs,@object")
    e("L_qcs:")
    for k in range(0, 96, 8):
        e("  .long " + ", ".join(f"{v:#x}" for v in qcs[k:k + 8]))
    e(".type L_f0,@object")
    e("L_f0:")
    for k in range(0, 96, 8):
        e("  .long " + ", ".join(f"{f32bits(256 * v - round(256 * v)):#x}" for v in rev_[k:k + 8]))

    def common():
        e(f"  s_load_dwordx8 s[24:31], s[0:1], 80")
        e(f"  v_mov_b32 {vr(vZ)}, 0")
        e(f"  s_mov_b32 s{sSP}, {P.bound}")
        e(f"  s_bfe_u32 s{sJ}, s2, 0x10003")

    PFR = [4, 8, 10, 14, 62, 72, 74, 76, 82, 86, 96, 98]
    pfn = [0]

    def pf():
        if P.tfine:
            e(f"  {'s_memtime' if 'm' in P.xp else 's_memrealtime'} s[{PFR[pfn[0]]}:{PFR[pfn[0]] + 1}]")
            pfn[0] += 1

    e("L_s1:")
    w_, s_, vAD, vC8, t0, t1 = wt, wt + 1, wt + 2, wt + 3, dacc, dacc + 1
    vRF, pos = vT16, tK + 3
    if P.trace:
        e(f"  v_mov_b32 {vr(vtr)}, 0")
        e("  s_mov_b32 m0, 0")
    pf()
    e("  v_subrev_u32 v0, 64, v0")
    e(f"  s_setprio {P.spr}")
    e(f"  s_load_dwordx8 s[16:23], s[{sZ}:{sZ + 1}], s{sF}")
    e(f"  s_add_u32 s{sF}, s{sF}, 32")
    e(f"  s_load_dwordx2 s[{sVO}:{sVO + 1}], s[{sZ}:{sZ + 1}], s{sF}")
    e(f"  s_movk_i32 s{sNEED}, 768")
    common()
    e(f"  v_lshrrev_b32 {vr(w_)}, 6, v0")
    e(f"  v_lshrrev_b32 {vr(s_)}, 4, v0")
    e(f"  v_and_b32 {vr(vC8)}, 0x70, {vr(vC16)}")
    e(f"  v_readfirstlane_b32 s{sW}, {vr(w_)}")
    e(f"  v_add_u32 {vr(vAD)}, {vr(vC8)}, {vr(s_)}")
    e(f"  s_mul_i32 s{sT0}, s{sJ}, 44")
    e(f"  s_sub_u32 s{sT0}, 86, s{sT0}")
    e(f"  v_cmp_eq_u32 vcc, s{sT0}, {vr(vAD)}")
    e(f"  v_mov_b32 {vr(t0)}, 0x80")
    e(f"  s_mov_b32 s{rA + 2}, {UB}")
    e(f"  v_cndmask_b32 {vr(vAD)}, {vr(vAD)}, {vr(t0)}, vcc")
    e(f"  v_mul_u32_u24 {vr(t0)}, 381, {vr(vAD)}")
    e(f"  s_mul_i32 s{sT0}, s{sJ}, 43")
    e(f"  v_add_u32 {vr(t0)}, 2, {vr(t0)}")
    e(f"  v_lshrrev_b32 {vr(t0)}, 14, {vr(t0)}")
    assert all((381 * i + 2) >> 14 == (i >= 43) + (i >= 86) for i in range(129))
    e(f"  v_mad_u32_u24 {vr(t0)}, {vr(t0)}, 42, {vr(vAD)}")
    e(f"  v_add_u32 {vr(t0)}, s{sT0}, {vr(t0)}")
    e(f"  v_cvt_f32_u32 {vr(vRF)}, {vr(t0)}")
    e(f"  v_mul_u32_u24 {vr(vAD)}, 384, {vr(vAD)}")
    e(f"  s_mov_b32 s{rA + 3}, 0x20000")
    srd_head(rA, sQK, sC)
    e(f"  s_lshl_b32 s{sT0}, s{sJ}, 15")
    e(f"  v_lshl_add_u32 {vr(voff + RUN.index(0))}, v0, 4, s{sT0}")
    for k in (1, 2):
        e(f"  v_add_u32 {vr(voff + RUN.index(k))}, {65536 * k:#x}, {vr(voff + RUN.index(0))}")
    for i in range(1, 8):
        e(f"  s_movk_i32 s{sOF + i}, {4096 * i}")
    nk = [NF]
    assert PRE <= RING and max(int(v) for v in P.kp_.split(",")[:P.su + 1]) <= min(SPECIAL)

    def k_loads(hi):
        while nk[0] < min(hi, PRE):
            ld(nk[0])
            nk[0] += 1

    def toff_(n):
        run = RUN[n >> 3]
        return 384 * (16 * (((n & 7) + run) // 3) + 38 * run)

    def setup():
        e("; per chunk class k: q operand, table and partial addresses")
        e(f"  s_lshl1_add_u32 s{sF}, s{sJ}, s{sW}")
        e(f"  s_lshl_b32 s{sF}, s{sF}, 1")
        e(f"  s_lshr_b32 s{sF}, 0x4924, s{sF}")
        e(f"  v_bfe_u32 {vr(t1)}, v0, 4, 2")
        e(f"  v_lshl_add_u32 {vr(t1)}, {vr(t1)}, 2, {vr(vC16)}")
        e(f"  v_mad_u32_u24 {vr(vF)}, {vr(w_)}, s{sNEED}, {vr(t1)}")
        e(f"  v_add_u32 {vr(vF)}, {PB - 3072}, {vr(vF)}")
        e(f"  s_mul_i32 s{sT1}, s{sJ}, {43 * 384}")
        e(f"  s_sub_u32 s{sT1}, {TB}, s{sT1}")
        e(f"  v_lshl_add_u32 {vr(vSum)}, s{sJ}, 7, {vr(s_)}")
        for k in range(3):
            e(f"  s_bfe_u32 s{sT0}, s{sF}, {(2 << 16) | 2 * k:#x}")
            e(f"  v_lshl_add_u32 {vr(vPA + k)}, s{sT0}, 8, {vr(vF)}")
            if k:
                e(f"  v_add_u32 {vr(vSum)}, 16, {vr(vSum)}")
            e(f"  v_mul_u32_u24 {vr(t0)}, 171, {vr(vSum)}")
            e(f"  v_lshrrev_b32 {vr(t0)}, 9, {vr(t0)}")
            e(f"  v_mad_i32_i24 {vr(t1)}, {vr(t0)}, -3, {vr(vSum)}")
            e(f"  v_lshl_add_u32 {vr(t1)}, {vr(t1)}, 8, {vr(vC16)}")
            e(f"  v_add_u32 {vr(vQA + k)}, {QB}, {vr(t1)}")
            e(f"  v_subrev_u32 {vr(vSu2)}, 384, {vr(t1)}")
            e(f"  v_min_u32 {vr(t1)}, {vr(t1)}, {vr(vSu2)}")
            e(f"  v_mul_u32_u24 {vr(t0)}, 384, {vr(t0)}")
            e(f"  v_add3_u32 {vr(vTA + k)}, {vr(t0)}, {vr(t1)}, s{sT1}")
        e(f"  v_lshl_add_u32 {vr(vSum)}, s{sJ}, 4, {vr(s_)}")
        for n, i in SPECIAL.items():
            run, sx = RUN[n >> 3], 15 * (n & 7 == 7)
            b = int(run == 0)
            g0, g1 = 256 * run + 128 * b + 16 * (n & 7) + sx, chunk_of(b, n, sx)
            dt = 384 * (tidx(b, g1 // 3) - (g0 // 3 - 43 * b - 42 * run))
            e(f"  v_cmp_eq_u32 vcc, {16 * b + sx}, {vr(vSum)}")
            e(f"  v_add_u32 {vr(t0)}, {256 * (g1 - g0) & 0xffffffff:#x}, {vr(voff + (n >> 3))}")
            e(f"  v_add_u32 {vr(t1)}, {toff_(n)}, {vr(vTA + TN[n])}")
            e(f"  v_add_u32 {vr(vSu2)}, {dt & 0xffffffff:#x}, {vr(t1)}")
            e(f"  v_cndmask_b32 {vr(voff + 3 + i)}, {vr(voff + (n >> 3))}, {vr(t0)}, vcc")
            e(f"  v_cndmask_b32 {vr(vTA + 3 + i)}, {vr(t1)}, {vr(vSu2)}, vcc")
        e(f"  v_lshlrev_b32 {vr(vLB)}, 2, v0")
        e(f"  v_add_u32 {vr(vLB)}, {LGB}, {vr(vLB)}")
        e(f"  v_lshrrev_b32 {vr(t1)}, 1, v0")
        e(f"  v_lshlrev_b32 {vr(t1)}, 2, {vr(t1)}")
        e(f"  v_add_u32 {vr(vLB + 1)}, {LGB + 1024}, {vr(t1)}")
        e(f"  v_subrev_u32 {vr(vLG)}, 1536, {vr(vLB)}")
        e(f"  v_subrev_u32 {vr(vLG + 1)}, 1536, {vr(vLB + 1)}")
        e(f"  v_lshlrev_b32 {vr(vPW)}, 2, {vr(w_)}")
        e(f"  s_mov_b32 s{sMSK}, 0xcccccccc")
        e(f"  s_mov_b32 s{sMSK + 1}, s{sMSK}")
        e(f"  s_mov_b32 s{sMSK + 2}, 0xaaaaaaaa")
        e(f"  s_mov_b32 s{sMSK + 3}, s{sMSK + 2}")
        e(f"  s_mov_b32 s{rB + 2}, {UB}")
        e(f"  s_mov_b32 s{rB + 3}, 0x20000")
        e(f"  s_mov_b32 s{sK}, 0")
        if P.ctl:
            e("; progress slots: this wave writes one byte of line (half, w) and samples the lines of the other half")
            die_base(sF)
            e(f"  s_add_u32 s{sT0}, s{sF}, 2048")
            e(f"  v_mov_b32 {vr(vBA)}, s{sT0}")
            e(f"  s_and_b32 s{sT1}, s{sSE}, 2")
            e(f"  s_lshl_b32 s{sT1}, s{sT1}, 9")
            e(f"  s_lshl_b32 s{sT0}, s{sW}, 8")
            e(f"  s_add_u32 s{sT0}, s{sT0}, s{sT1}")
            e(f"  s_add_u32 s{sT0}, s{sT0}, s{sF}")
            e(f"  s_add_u32 s{sT0}, s{sT0}, s{sCU}")
            e(f"  s_and_b32 s{sSE}, s{sSE}, 1")
            e(f"  s_lshl_b32 s{sSE}, s{sSE}, 4")
            e(f"  s_add_u32 s{sT0}, s{sT0}, s{sSE}")
            e(f"  v_mov_b32 {vr(vPS)}, s{sT0}")
            e(f"  s_xor_b32 s{sT1}, s{sT1}, 1024")
            e(f"  s_add_u32 s{sF}, s{sF}, s{sT1}")
            e(f"  v_and_b32 {vr(vN)}, 1, v0")
            e(f"  v_lshl_add_u32 {vr(vN)}, {vr(vN)}, 4, s{sF}")
            for k in range(4):
                e(f"  v_add_u32 {vr(vSum)}, {k}, {vr(w_)}")
                e(f"  v_and_b32 {vr(vSum)}, 3, {vr(vSum)}")
                e(f"  v_lshl_add_u32 {vr(vPL + k)}, {vr(vSum)}, 8, {vr(vN)}")
            e(f"  s_mov_b32 s{sLO}, {(-(LAG + 2) * 0x01010101) & 0xffffffff:#x}")
            for k in range(4 * LAG):
                e(f"  v_mov_b32 {vr(smp + k)}, 0")
            for k in range(2):
                e(f"  v_mov_b32 {vr(vBI + k)}, 0")
            e(f"  v_mov_b32 {vr(vN)}, 0")
            e(f"  s_mov_b32 s{sB}, 0")
            e(f"  s_mov_b32 s{sS}, {P.s0}")
            e(f"  s_mov_b32 s{sI}, 0")
            e(f"  s_mov_b32 s{sCO}, 0")

    def sincos(dst, iv):
        for h in (0, 2):
            e(f"  v_pk_mul_f32 {vr(tN + h, 2)}, {vr(iv + h, 2)}, {vr(tK + 2, 2)} op_sel:[0,1] op_sel_hi:[1,1]")
        for i in range(4):
            e(f"  v_cos_f32 {vr(tA + i)}, {vr(tN + i)}")
        for i in range(4):
            e(f"  v_sin_f32 {vr(tN + i)}, {vr(tN + i)}")
        for i in range(4):
            e(f"  v_cvt_pk_f16_f32 {vr(dst + i)}, {vr(tA + i)}, {vr(tN + i)}")

    kp = [int(v) for v in P.kp_.split(",")]

    def chunk(i):
        a = 2 * (i // 3)
        d = tO + 4 * (i & 1)
        bc_ = lambda x, m: f"row_newbcast:{x} row_mask:0xf bank_mask:{m:#x}"
        if i % 3 == 1:
            e(f"  v_mov_b32_dpp {vr(pos)}, {vr(vRF)} {bc_(a + 1, 12)}")
            e(f"  v_add_u32_dpp {vr(vF)}, {vr(vAD)}, {vr(vC8)} {bc_(a, 3)}")
            e(f"  v_add_u32_dpp {vr(vF)}, {vr(vAD)}, {vr(vC8)} {bc_(a + 1, 12)}")
            sincos(d, invY)
            e(f"  ds_write_b128 {vr(vF)}, {vr(d, 4)} offset:{TB + 256}")
        else:
            a += i % 3 // 2
            e(f"  v_mov_b32_dpp {vr(pos)}, {vr(vRF)} {bc_(a, 15)}")
            e(f"  v_add_u32_dpp {vr(vF)}, {vr(vAD)}, {vr(vC16)} {bc_(a, 15)}")
            sincos(d, invX)
            e(f"  ds_write_b128 {vr(vF)}, {vr(d, 4)} offset:{TB}")

    def tab_read(a):
        for n in range(3 * a, 3 * a + 3):
            d = tab + 12 * (a & 1) + 4 * (n % 3)
            if n in SPECIAL:
                e(f"  ds_read_b128 {vr(d, 4)}, {vr(vTA + 3 + SPECIAL[n])}")
            else:
                e(f"  ds_read_b128 {vr(d, 4)}, {vr(vTA + TN[n])} offset:{toff_(n)}")

    k_loads(kp[0])
    pf()
    e(f"  s_waitcnt vmcnt({nk[0]})")
    pf()
    for i in range(12):
        if i == P.su:
            setup()
            pf()
        chunk(i)
        k_loads(kp[i + 1])
        if i % 3 == 2:
            pf()
    k_loads(PRE)
    e(f"  v_mov_b32 {vr(bc)}, {f32bits(-7.5):#x}")
    e("  s_waitcnt lgkmcnt(0)")
    for k in range(8):
        e(f"  v_writelane_b32 {vr(vU)}, s{16 + k}, {k}")
    e("  s_barrier")
    pf()
    for k in range(3):
        e(f"  ds_read_b128 {vr(qa + 4 * k, 4)}, {vr(vQA + k)}")
    tab_read(0)
    e(f"  s_waitcnt vmcnt({PRE - ORD['K'][:ORD['K'].index('L')].count('b')})")
    pf()
    if P.tfine:
        e("  s_waitcnt lgkmcnt(0)")
        for k in range(pfn[0]):
            e(f"  v_writelane_b32 {vr(vtr)}, s{PFR[k]}, {k}")
        e(f"  s_mov_b32 m0, {pfn[0]}")

    def vfirst():
        e(f"  s_and_b32 s{sH}, s{sVO}, 15")
        e(f"  s_add_u32 s{sNEED}, s{sH}, 1")
        e(f"  ds_read_b32 {vr(vF)}, {vr(vZ)} offset:{FL + 20}")
        flagwait("a0", FL + 20)
        e(f"  s_mulk_i32 s{sH}, 1536")
        for k in range(2):
            e(f"  v_add_u32 {vr(vLV + k)}, s{sH}, {vr(vLB + k)}")
        e(f"  ds_read_b32 {vr(A)}, {vr(vLV)}")


    def knext():
        e("; next SRD: K slot k + 1, or the first V step once K runs out")
        e(f"  s_add_u32 s{sH}, s{sK}, 1")
        e(f"  s_sub_u32 s{sT1}, s{sH}, 16")
        vstep_k(sF, sT1)
        e(f"  s_cmp_lt_u32 s{sH}, 16")
        e(f"  s_cselect_b32 s{sH}, s{sH}, s{sF}")
        e(f"  s_cselect_b32 s{sX}, s{sQK}, s{sQV}")
        e(f"  s_cselect_b32 s{sX + 1}, s{sQK + 1}, s{sQV + 1}")
        head_of(sH, sH)
        srd_head(rB, sX, sH)

    def kred(n):
        dpp = lambda d, x, how, m: e(f"  v_add_f32_dpp {vr(d)}, {vr(x)}, {vr(x)} {how} row_mask:0xf bank_mask:{m:#x}")
        dpp(M1, dacc, "row_ror:8", 12 if n & 1 else 3)
        if n % 2 == 1:
            e("  s_nop 1")
            dpp(M2, M1, "row_half_mirror", 10 if n & 2 else 5)
        if n % 4 == 3:
            e("  s_nop 1")
            dpp(M2 if n & 4 else M3, M2, "quad_perm:[2,3,0,1]", 15)
        if n % 8 == 7:
            e(f"  v_cndmask_b32_e64 {vr(M3)}, {vr(M3)}, {vr(M2)}, s[{sMSK}:{sMSK + 1}]")
            e("  s_nop 1")
            dpp((LG, M3, LG + 1)[n >> 3], M3, "quad_perm:[1,0,3,2]", 15)
        if n == 15:
            e(f"  v_cndmask_b32_e64 {vr(LG)}, {vr(LG)}, {vr(M3)}, s[{sMSK + 2}:{sMSK + 3}]")

    e(".p2align 6")
    e("L_k:")

    def kbody(n):
        k_, q_ = ring + 4 * n, qa + 4 * TN[n]
        for i in range(4):
            e(f"  v_dot2_f32_f16 {vr(wt + i)}, {vr(tab + 12 * (n // 3 & 1) + 4 * (n % 3) + i)}, {vr(q_ + i)}, 0")
        for i in range(4):
            e(f"  v_cvt_f32_i32 {vr(k_ + i)}, {vr(k_ + i)}")
        if n >= 21:
            e(f"  ds_read_b128 {vr(q_, 4)}, {vr(vQA + TN[n])}")
        for h in range(2):
            e(f"  v_pk_add_f32 {vr(k_ + 2 * h, 2)}, {vr(k_ + 2 * h, 2)}, {vr(bc, 2)} op_sel_hi:[1,0]")
        e(f"  v_pk_mul_f32 {vr(dacc, 2)}, {vr(k_, 2)}, {vr(wt, 2)}")
        e(f"  v_pk_fma_f32 {vr(dacc, 2)}, {vr(k_ + 2, 2)}, {vr(wt + 2, 2)}, {vr(dacc, 2)}")
        e(f"  v_add_f32 {vr(dacc)}, {vr(dacc)}, {vr(dacc + 1)}")

    def kout():
        e(f"  v_mov_b32 {vr(vF)}, s{sK}")
        for k in range(2):
            e(f"  ds_write_b32 {vr(vLG + k)}, {vr(LG + k)}")
        e(f"  ds_write_b32 {vr(vPW)}, {vr(vF)} offset:{FL}")

    def group(ph, a, body, after, res):
        nb, pend = 3 * a, None
        od = ORD[ph]
        for i, c in enumerate(od):
            if pend is not None and c != "L":
                if od[i - 1] == "b":
                    e("  s_nop 1")
                after(pend)
                pend = None
            if c == "E":
                evaluate(ph, a)
                if od[i + 1] != "X":
                    decide(ph, a)
            if c == "X":
                exchange(a)
                if od[i - 1] == "E":
                    decide(ph, a)
            if c == "R" and a == 0:
                res()
            if c == "b":
                body(nb)
                pend = nb if after else None
                nb += 1
            if c == "L":
                issue(ph, a, i)
        if pend is not None:
            if od[-1] == "b":
                e("  s_nop 1")
            after(pend)

    for a in range(8):
        if a == 7:
            flagwait("qn", FL + 16)
        else:
            e("  s_waitcnt lgkmcnt(0)")
        tab_read((a + 1) % 8)
        if a == 6:
            e(f"  ds_read_b32 {vr(vF)}, {vr(vZ)} offset:{FL + 16}")
        group("K", a, kbody, kred, kout)
        if a == 1:
            knext()
        if a == 3:
            e(f"  s_add_u32 s{sT0}, s{sK}, 2")
            e(f"  s_min_u32 s{sNEED}, s{sT0}, 16")
            for k in range(3):
                e(f"  v_add_u32 {vr(vQA + k)}, 768, {vr(vQA + k)}")
            for k in range(2):
                e(f"  v_add_u32 {vr(vLG + k)}, 1536, {vr(vLG + k)}")
            e(f"  s_cmp_eq_u32 s{sK}, 15")
            e("  s_cbranch_scc1 L_kv")
            e("L_kw:")
        if a in (3, 7) or P.tfine:
            tr()
    assert sorted(TN[21:]) == [0, 1, 2] and TN[:3] == TN[3:6] and sorted(TN[:3]) == [0, 1, 2] and PRE <= 18
    e(f"  s_add_u32 s{sK}, s{sK}, 1")
    e(f"  s_mov_b64 s[{rA}:{rA + 1}], s[{rB}:{rB + 1}]")
    e(f"  s_cmp_lt_u32 s{sK}, 16")
    e("  s_cbranch_scc1 L_k")


    def vbody(n):
        v_ = ring + 4 * n
        e(f"  v_mov_b32_dpp {vr(bc)}, {vr(A + n // 16)} row_newbcast:{rev(n % 16, 4)} row_mask:0xf bank_mask:0xf")
        for i in range(4):
            e(f"  v_cvt_f32_i32 {vr(v_ + i)}, {vr(v_ + i)}")
        for h in range(2):
            d = 4 * TN[n] + 2 * h
            if n < 3:
                e(f"  v_pk_mul_f32 {vr(tmp + d, 2)}, {vr(v_ + 2 * h, 2)}, {vr(bc, 2)} op_sel_hi:[1,0]")
            else:
                e(f"  v_pk_fma_f32 {vr(acc + d, 2)}, {vr(v_ + 2 * h, 2)}, {vr(bc, 2)}, {vr((tmp if n < 6 else acc) + d, 2)} op_sel_hi:[1,0,1]")

    def vout(last=False):
        for j in range(3):
            e(f"  v_permlane32_swap_b32 {vr(acc + 4 * j)}, {vr(acc + 4 * j + 2)}")
            e(f"  v_permlane32_swap_b32 {vr(acc + 4 * j + 1)}, {vr(acc + 4 * j + 3)}")
        for j in range(3):
            e(f"  v_add_f32 {vr(acc + 4 * j)}, {vr(acc + 4 * j)}, {vr(acc + 4 * ((j + 1) % 3) + 2)}")
            e(f"  v_add_f32 {vr(acc + 4 * j + 1)}, {vr(acc + 4 * j + 1)}, {vr(acc + 4 * ((j + 1) % 3) + 3)}")
        for j in range(3):
            e(f"  v_permlane16_swap_b32 {vr(acc + 4 * j)}, {vr(acc + 4 * j + 1)}")
        for j in range(3):
            e(f"  v_add_f32 {vr(acc + 4 * j)}, {vr(acc + 4 * j)}, {vr(acc + 4 * ((j + 2) % 3) + 1)}")
        for j in range(3):
            e(f"  ds_write_b32 {vr(vPA + j)}, {vr(acc + 4 * j)}")
        if not last:
            e(f"  ds_write_b32 {vr(vPW)}, {vr(M1)} offset:{FL}")
            e("L_v0:")

    def vnext():
        e(f"  s_add_u32 s{sT1}, s{sK}, 1")
        e(f"  s_min_u32 s{sT1}, s{sT1}, 15")
        vstep_k(sH, sT1)
        e(f"  s_add_u32 s{sNEED}, s{sH}, 1")
        e(f"  s_mul_i32 s{sF}, s{sH}, 1536")
        head_of(sH, sH)
        srd_head(rB, sQV, sH)
        for k in range(2):
            e(f"  v_add_u32 {vr(vLV + k)}, s{sF}, {vr(vLB + k)}")

    NS, NT = (PRE - PD) // 3, 8 - PD // 3
    assert NS <= 1 and 4 <= NT <= 5 and (NS or P.ov[0] == "R") and max(P.mg, P.ml) <= 3 * NT
    e("L_vpre:")
    kout()
    e(f"  s_mov_b32 s{sK}, 0")
    e(f"  v_mov_b32 {vr(M1)}, 16")
    if NS:
        for n in range(3):
            e(f"  s_waitcnt vmcnt({plain[384 + n]})")
            vbody(n)
        e(f"  s_waitcnt vmcnt({plain[387]}) lgkmcnt(0)")
        e("  s_branch L_v1")
    else:
        e("  s_waitcnt lgkmcnt(3)")
        e("  s_branch L_v0")
    flush()
    e("L_kv:")
    vfirst()
    e("  s_branch L_kw")
    flush()
    e(".p2align 6")
    e("L_v:")
    for a in range(8):
        if a == 1:
            e("L_v1:")
            e(f"  ds_read_b32 {vr(A + 1)}, {vr(vLV + 1)}")
        if a == NT:
            e(f"  s_cmp_eq_u32 s{sK}, 15")
            e("  s_cbranch_scc1 L_vt")
        if a in (5, 7):
            e("  s_waitcnt lgkmcnt(0)")
        if a == 5:
            e(f"  ds_read_b32 {vr(vF)}, {vr(vZ)} offset:{FL + 20}")
        if a == 6:
            flagwait("an", FL + 20)
            e(f"  ds_read_b32 {vr(A)}, {vr(vLV)}")
        group("V", a, vbody, None, vout)
        if a == 1:
            vnext()
        if a == 3:
            e(f"  v_add_u32 {vr(M1)}, 1, {vr(M1)}")
            for j in range(3):
                e(f"  v_add_u32 {vr(vPA + j)}, 3072, {vr(vPA + j)}")
        if a in (3, 7):
            tr()
    e(f"  s_add_u32 s{sK}, s{sK}, 1")
    e(f"  s_mov_b64 s[{rA}:{rA + 1}], s[{rB}:{rB + 1}]")
    e("  s_branch L_v")
    flush()
    e("L_vt:")
    e("  s_waitcnt lgkmcnt(0)")
    for n in range(3 * NT, 24):
        e(f"  s_waitcnt vmcnt({plain[744 + n]})")
        vbody(n)
    tr()
    e("  s_nop 1")
    vout(True)
    e("  s_waitcnt lgkmcnt(0)")
    e("  s_barrier")
    if P.trace:
        e(f"  s_mul_i32 s8, s2, {5 * 256}")
        e("  s_add_u32 s8, s8, 0x100000")
        e(f"  v_lshl_add_u32 {vr(t0)}, v0, 2, s8")
        e(f"  global_store_dword {vr(t0)}, {vr(vtr)}, s[{sWS}:{sWS + 1}]")
    e("  s_endpgm")

    HP = [4, 6, 24, 8, 10, 36, 38, 72]
    ms = [m for m in range(P.r0, P.r1 + 1) if m < P.rf or m > P.rt or (m - P.r0) % P.rp == 0]
    gain = [(P.kp0 if m <= P.kn else P.kp) if m in ms else 0 for m in range(32)]
    if P.rk:
        gain = [int(c, 16) for c in P.rk]
        assert len(gain) == 32 and not any(gain[:P.r0]) and not gain[31]
    msk = sum(1 << m for m in range(32) if gain[m])

    def hp(k):
        if P.hprof:
            e(f"  s_memrealtime s[{HP[k]}:{HP[k] + 1}]")

    def progwait(name, slp, off=FL):
        e(f"L_{name}:")
        e(f"  ds_read_b128 {vr(pr, 4)}, {vr(vZ)} offset:{off}")
        e("  s_waitcnt lgkmcnt(0)")
        e(f"  v_min_u32 {vr(pr)}, {vr(pr)}, {vr(pr + 1)}")
        e(f"  v_min3_u32 {vr(pr)}, {vr(pr)}, {vr(pr + 2)}, {vr(pr + 3)}")
        e("  s_nop 0")
        e(f"  v_readfirstlane_b32 s{sF}, {vr(pr)}")
        e(f"  s_cmp_ge_u32 s{sF}, s{sNEED}")
        e(f"  s_cbranch_scc1 L_{name}_ok")
        budget(f"L_{name}_ok")
        if slp:
            e(f"  s_sleep {slp}")
        e(f"  s_branch L_{name}")
        e(f"L_{name}_ok:")

    def rowred(op, v):
        for n in (8, 4, 2, 1):
            e("  s_nop 1")
            e(f"  {op}_dpp {vr(v)}, {vr(v)}, {vr(v)} row_ror:{n} row_mask:0xf bank_mask:0xf")

    def allred(op, v, t):
        rowred(op, v)
        for sw in ("v_permlane16_swap_b32", "v_permlane32_swap_b32"):
            e(f"  v_mov_b32 {vr(t)}, {vr(v)}")
            e("  s_nop 1")
            e(f"  {sw} {vr(v)}, {vr(t)}")
            e(f"  {op} {vr(v)}, {vr(v)}, {vr(t)}")

    def sum_partials(nq):
        w = 4 * nq
        for k in range(4):
            for q in range(nq):
                e(f"  ds_read_b128 {vr(x + w * k + 4 * q, 4)}, {vr(h0)} offset:{768 * k + 16 * q}")
        e(f"  ds_read_b128 {vr(z4, 4)}, {vr(h1)} offset:{ST}")
        e("  s_waitcnt lgkmcnt(0)")
        for h in range(0, w, 2):
            e(f"  v_pk_add_f32 {vr(x + h, 2)}, {vr(x + h, 2)}, {vr(x + w + h, 2)}")
            e(f"  v_pk_add_f32 {vr(x + 2 * w + h, 2)}, {vr(x + 2 * w + h, 2)}, {vr(x + 3 * w + h, 2)}")
        for h in range(0, w, 2):
            e(f"  v_pk_add_f32 {vr(x + h, 2)}, {vr(x + h, 2)}, {vr(x + 2 * w + h, 2)}")
        for h in range(0, w, 2):
            e(f"  v_pk_add_f32 {vr(x + h, 2)}, {vr(x + h, 2)}, {vr(z4 + 2, 2)} op_sel_hi:[1,0] neg_lo:[0,1] neg_hi:[0,1]")

    def mark(tag):
        if P.sd:
            e("  s_memrealtime s[72:73]")
            e("  s_waitcnt lgkmcnt(0)")
            e("  s_sub_u32 s75, s72, s74")
            e("  s_mov_b32 s74, s72")
            e(f"  s_add_u32 s72, s{sNEED}, {64 - P.sd}")
            e("  s_and_b32 s73, s72, 1")
            e("  s_lshl_b32 s73, s73, 4")
            e("  s_min_u32 s75, s75, 510")
            e("  s_lshl_b32 s75, s75, s73")
            e("  s_lshr_b32 m0, s72, 1")
            e(f"  v_readlane_b32 s73, {vr(vCL)}, m0")
            e("  s_add_u32 s73, s73, s75")
            e(f"  v_writelane_b32 {vr(vCL)}, s73, m0")
        if not P.enc:
            return
        for k, m in enumerate(P.enc.split(",")[:2]):
            e(f"  s_cmp_eq_u32 s{sNEED}, {m}")
            e(f"  s_cbranch_scc0 L_mk{tag}{k}")
            e(f"  s_memrealtime s[{72 + 2 * k}:{73 + 2 * k}]")
            e(f"L_mk{tag}{k}:")

    def warm(tag):
        if not P.tw:
            return
        tm = sum(1 << int(v) for v in P.tm.split(","))
        if P.ts:
            e(f"  s_bfe_u32 s{sT0}, s2, {P.ts << 16 | 4:#x}")
            e(f"  s_add_u32 s{sX}, s{sNEED}, s{sT0}")
            e(f"  s_add_u32 s{sX}, s{sX}, {P.tw}")
        else:
            e(f"  s_add_u32 s{sX}, s{sNEED}, {P.tw}")
        e(f"  s_min_u32 s{sX}, s{sX}, 31")
        e(f"  s_cmp_eq_u32 s{sJ}, 0")
        e(f"  s_cselect_b32 s{sT0}, {tm:#x}, 0")
        e(f"  s_bitcmp1_b32 s{sT0}, s{sX}")
        e(f"  s_cbranch_scc0 L_tw{tag}")
        e(f"  s_sub_u32 s{sT1}, s{sX}, 16")
        vstep_k(sF, sT1)
        e(f"  s_cmp_lt_u32 s{sX}, 16")
        e(f"  s_cselect_b32 s{sF}, s{sX}, s{sF}")
        e(f"  s_cselect_b32 s{rB}, s{sQK}, s{sQV}")
        e(f"  s_cselect_b32 s{rB + 1}, s{sQK + 1}, s{sQV + 1}")
        head_of(sF, sF, hU)
        e(f"  s_mul_i32 s{sF}, s{sF}, {UB}")
        e(f"  s_add_u32 s{sF}, s{sF}, {65536 * RUN[0]}")
        if P.tv:
            e(f"  v_mov_b32 {vr(vFX)}, s{sF}")
            e("  s_mov_b64 exec, 1")
            e(f"  global_load_dword {vr(vFX)}, {vr(vFX)}, s[{rB}:{rB + 1}] nt")
            e("  s_mov_b64 exec, -1")
            e("  s_waitcnt vmcnt(0)")
        else:
            e(f"  s_load_dword s{sF}, s[{rB}:{rB + 1}], s{sF} {P.tg}")
            e("  s_waitcnt lgkmcnt(0)")
        e(f"L_tw{tag}:")

    def rank_post(tag):
        if not P.ctl:
            return
        e(f"  s_bitcmp1_b32 s{sRF}, s{sNEED}")
        e(f"  s_cbranch_scc0 L_fa{tag}")
        e(f"  s_mul_i32 s{sT0}, s{sNEED}, 384")
        e(f"  s_add_u32 s{sT0}, s{sT0}, {W_RK}")
        e(f"  s_mov_b32 s{sB}, 1")
        e(f"  s_atomic_add s{sB}, s[{sWS}:{sWS + 1}], s{sT0} glc")
        e(f"L_fa{tag}:")

    def rank_take(tag):
        if not P.ctl:
            return
        e(f"  s_bitcmp1_b32 s{sRF}, s{sNEED}")
        e(f"  s_cbranch_scc0 L_fb{tag}")
        e("  s_waitcnt lgkmcnt(0)")
        e(f"  s_min_u32 s{sF}, s{sB}, 15")
        e(f"  s_lshl_b32 s{sF}, s{sF}, 1")
        e(f"  s_sub_u32 s{sF}, s{sF}, 15")
        gs = sorted(set(gain) - {0})
        e(f"  s_mov_b32 s{sT0}, {gs[0]}")
        for g_ in gs[1:]:
            e(f"  s_bitcmp1_b32 {sum(1 << m for m in range(32) if gain[m] == g_):#x}, s{sNEED}")
            e(f"  s_cselect_b32 s{sT0}, {g_}, s{sT0}")
        e(f"  s_mul_i32 s{sF}, s{sF}, s{sT0}")
        e(f"  s_add_u32 s{sF}, s{sF}, 8")
        e(f"  s_ashr_i32 s{sF}, s{sF}, 4")
        e(f"  v_mov_b32 {vr(vFX)}, s{sF}")
        e("  s_mov_b64 exec, 1")
        e(f"  global_store_dword {vr(vFB)}, {vr(vFX)}, s[{sWS}:{sWS + 1}]")
        e("  s_mov_b64 exec, -1")
        e(f"L_fb{tag}:")

    HPF = [10, 16, 18, 20, 22, 72, 74, 76, 82, 96]
    hpn = [0]

    def hpf():
        if P.tfine:
            e(f"  s_memrealtime s[{HPF[hpn[0]]}:{HPF[hpn[0]] + 1}]")
            hpn[0] += 1

    e("L_helper:")
    e(f"  s_setprio {P.hp0}")
    hv = []

    def qmask(on):
        if on:
            e("  s_mov_b32 exec_lo, 0xffffff")
            e("  s_mov_b32 exec_hi, 0xffffff")
        else:
            e("  s_mov_b64 exec, -1")

    e(f"  v_and_b32 {vr(vL16)}, 0x1f0, {vr(vT16)}")
    e(f"  global_load_dwordx4 {vr(pr, 4)}, {vr(vL16)}, s[{sZ}:{sZ + 1}] offset:{D_QCS - PC0}")
    e(f"  global_load_dwordx4 {vr(f0, 4)}, {vr(vL16)}, s[{sZ}:{sZ + 1}] offset:{D_F0 - PC0}")
    e(f"  v_and_b32 {vr(vSh)}, 32, v0")
    e(f"  v_lshrrev_b32 {vr(vSh)}, 1, {vr(vSh)}")
    e(f"  v_lshrrev_b32 {vr(h1)}, 1, {vr(vL16)}")
    e(f"  s_movk_i32 s{sT1}, 384")
    e("  s_waitcnt lgkmcnt(0)")
    hpf()
    for p in range(2):
        e(f"  v_lshrrev_b32 {vr(hq + p)}, {vr(vSh)}, s{sE + 10 + p}")
        e(f"  v_and_b32 {vr(h0)}, 0xff, {vr(hq + p)}")
        e(f"  v_mad_u32_u24 {vr(ra + p)}, {vr(h0)}, s{sT1}, {vr(h1)}")
    qmask(1)
    for p in range(2):
        e(f"  global_load_dwordx2 {vr(rec + 4 * p, 2)}, {vr(ra + p)}, s[{sQ}:{sQ + 1}]")
        e(f"  global_load_dwordx2 {vr(rec + 4 * p + 2, 2)}, {vr(ra + p)}, s[{sQ}:{sQ + 1}] offset:192")
        hv.extend([("q", p)] * 2)
    qmask(0)
    hpf()
    common()
    e(f"  s_lshl_b32 s{sT0}, s{sJ}, 10")
    e(f"  s_add_u32 s{sT0}, s{sT0}, L_hpos-L_pc")
    e(f"  v_add_u32 {vr(h0)}, s{sT0}, {vr(vT16)}")
    e(f"  global_load_dwordx4 {vr(st4, 4)}, {vr(h0)}, s[{sZ}:{sZ + 1}]")
    hv.append(("h", 0))
    e(f"  s_mov_b64 s[{sVO}:{sVO + 1}], s[{sE + 8}:{sE + 9}]")
    e(f"  v_mov_b32 {vr(l)}, v0")
    for i in range(4):
        e(f"  v_mov_b32 {vr(z4 + i)}, 0")
    for k in range(4):
        e(f"  ds_write_b128 {vr(vZ)}, {vr(z4, 4)} offset:{FL + 16 * k}")
    e(f"  s_mov_b32 s{sMASK}, 0xffff0000")
    e(f"  s_mov_b32 s{sSCALE}, {f32bits(math.log2(math.e) / math.sqrt(192.0)):#x}")
    e(f"  s_movk_i32 s{sC}, 784")
    e(f"  v_mad_u32_u24 {vr(wa)}, {vr(vSh)}, 48, {vr(vL16)}")
    e(f"  v_lshrrev_b32 {vr(vSq)}, 1, {vr(vSh)}")
    for p in range(8):
        e(f"  v_lshrrev_b32 {vr(ra + p)}, {vr(vSh)}, s{sE + p}")
    e("  s_waitcnt lgkmcnt(0)")
    hpf()
    if P.ctl:
        die_base(sF)
        e(f"  v_lshrrev_b32 {vr(h0)}, 1, {vr(l)}")
        e(f"  v_lshl_add_u32 {vr(vFX)}, {vr(h0)}, 8, s{sF}")
        e(f"  v_and_b32 {vr(h0)}, 1, {vr(l)}")
        e(f"  v_lshl_add_u32 {vr(vFX)}, {vr(h0)}, 4, {vr(vFX)}")
        e(f"  s_and_b32 s{sT1}, s{sSE}, 2")
        e(f"  s_lshl_b32 s{sT0}, s{sT1}, 9")
        e(f"  s_add_u32 s{sT0}, s{sT0}, s{sF}")
        e(f"  v_add_u32 {vr(vEL)}, s{sT0}, {vr(l)}")
        e(f"  s_lshl_b32 s{sT1}, s{sT1}, 1")
        e(f"  s_add_u32 s{sF}, s{sF}, s{sT1}")
        e(f"  s_add_u32 s{sF}, s{sF}, 2048")
        e(f"  v_mov_b32 {vr(vFB)}, s{sF}")
        e(f"  v_mul_u32_u24 {vr(vFA)}, 384, {vr(l)}")
        e(f"  v_add_u32 {vr(vFA)}, {W_RK}, {vr(vFA)}")
        e(f"  s_mov_b32 s{sRF}, 0")
        e("  s_mov_b64 exec, 0x3ffff")
        e(f"  global_store_dwordx4 {vr(vFX)}, {vr(z4, 4)}, s[{sWS}:{sWS + 1}]")
        e("  s_mov_b64 exec, -1")
    e(f"  s_waitcnt vmcnt({len(hv)})")
    for k in range(4):
        e(f"  v_lshlrev_b32 {vr(cs + k)}, 16, {vr(pr + k)}")
        e(f"  v_and_b32 {vr(cs + 4 + k)}, s{sMASK}, {vr(pr + k)}")

    def elect():
        if not P.ctl:
            return
        e(f"  s_cmp_eq_u32 s{sNEED}, {P.r0 - 1}")
        e("  s_cbranch_scc0 L_el")
        e(f"  s_bitcmp0_b32 s{sSE}, 0")
        e("  s_cbranch_scc0 L_el")
        e("  s_mov_b64 exec, 0xffff")
        e(f"  global_load_ubyte {vr(vFX)}, {vr(vEL)}, s[{sWS}:{sWS + 1}] sc1")
        e("  s_waitcnt vmcnt(0)")
        e(f"  v_cmp_ne_u32 s[{sZ}:{sZ + 1}], 0, {vr(vFX)}")
        e(f"  s_lshr_b32 s{sT0}, s{sZ}, s{sCU}")
        e(f"  s_bcnt1_i32_b32 s{sT0}, s{sT0}")
        pat = sum(1 << m for m in range(0, 32, P.rotl))
        e(f"  s_sub_u32 s{sT1}, s{sT0}, 1")
        e(f"  s_cmp_lt_u32 s{sT1}, {P.rotl}")
        e("  s_cbranch_scc0 L_el")
        e(f"  s_lshl_b32 s{sRF}, {pat:#x}, s{sT1}")
        e(f"  s_and_b32 s{sRF}, s{sRF}, {msk:#x}")
        e("L_el:")
        e("  s_mov_b64 exec, -1")

    def roleaddr(src):
        e(f"  v_bfe_u32 {vr(wb)}, {vr(src)}, 12, 2")
        e(f"  v_mul_u32_u24 {vr(h1)}, s{sC}, {vr(wb)}")
        e(f"  v_add_u32 {vr(h1)}, {QR}, {vr(h1)}")
        e(f"  v_add_u32 {vr(h0)}, {vr(h1)}, {vr(vL16)}")

    def rotate(p):
        L, Hh, LC, HS, HC, LS = x, x + 4, x + 8, x + 12, x + 16, x + 20
        roleaddr(hq + p)
        e(f"  v_mov_b32 {vr(h2)}, 0")
        qmask(1)
        if p == 0:
            hpf()
        e(f"  s_waitcnt vmcnt({hv[::-1].index(('q', p))})")
        if p == 0:
            hpf()
        for k in range(4):
            e(f"  v_lshlrev_b32 {vr(L + 2 * k)}, 16, {vr(rec + 4 * p + k)}")
            e(f"  v_and_b32 {vr(L + 2 * k + 1)}, s{sMASK}, {vr(rec + 4 * p + k)}")
        for d, q_, t_ in ((LC, L, cs), (HS, Hh, cs + 4), (HC, Hh, cs), (LS, L, cs + 4)):
            for h in (0, 2):
                e(f"  v_pk_mul_f32 {vr(d + h, 2)}, {vr(q_ + h, 2)}, {vr(t_ + h, 2)}")
        for i in range(4):
            e(f"  v_cvt_pk_bf16_f32 {vr(L + i)}, {vr(LC + i)}, {vr(HS + i)}")
            e(f"  v_cvt_pk_bf16_f32 {vr(Hh + i)}, {vr(HC + i)}, {vr(LS + i)}")
        for k in range(8):
            e(f"  v_lshlrev_b32 {vr(LC + k)}, 16, {vr(L + k)}")
            e(f"  v_and_b32 {vr(L + k)}, s{sMASK}, {vr(L + k)}")
        for h in (0, 2):
            e(f"  v_pk_add_f32 {vr(L + h, 2)}, {vr(LC + h, 2)}, {vr(L + h, 2)} neg_lo:[0,1] neg_hi:[0,1]")
            e(f"  v_pk_add_f32 {vr(Hh + h, 2)}, {vr(HS + h, 2)}, {vr(Hh + h, 2)}")
        for i in range(4):
            e(f"  v_cvt_pk_bf16_f32 {vr(Hh + i)}, {vr(L + i)}, {vr(Hh + i)}")
        for i in range(4):
            e(f"  v_lshlrev_b32 {vr(L + i)}, 16, {vr(Hh + i)}")
            e(f"  v_and_b32 {vr(Hh + i)}, s{sMASK}, {vr(Hh + i)}")
        for i in range(4):
            e(f"  v_max3_f32 {vr(h2)}, |{vr(L + i)}|, |{vr(Hh + i)}|, {vr(h2)}")
        qmask(0)
        rowred("v_max_f32", h2)
        e(f"  v_mov_b32 {vr(h3)}, {vr(h2)}")
        e("  s_nop 1")
        e(f"  v_permlane16_swap_b32 {vr(h2)}, {vr(h3)}")
        e(f"  v_max_f32 {vr(h2)}, {vr(h2)}, {vr(h3)}")
        e(f"  v_frexp_exp_i32_f32 {vr(h2)}, {vr(h2)}")
        e(f"  v_sub_u32 {vr(h3)}, 13, {vr(h2)}")
        e(f"  v_subrev_u32 {vr(h2)}, 13, {vr(h2)}")
        for i in range(8):
            e(f"  v_ldexp_f32 {vr(L + i)}, {vr(L + i)}, {vr(h3)}")
        e(f"  v_ldexp_f32 {vr(h2)}, s{sSCALE}, {vr(h2)}")
        qmask(1)
        e(f"  ds_write_b128 {vr(h0)}, {vr(L, 4)}")
        e(f"  ds_write_b128 {vr(h0)}, {vr(Hh, 4)} offset:384")
        e(f"  ds_write_b32 {vr(h1)}, {vr(h2)} offset:768")
        qmask(0)

    cu, su = x + 24, x + 28

    def angle(p):
        e(f"  v_and_b32 {vr(qn)}, 7, {vr(ra + p)}")
        e(f"  v_cvt_f32_u32 {vr(qn)}, {vr(qn)}")
        for h in (0, 2):
            e(f"  v_pk_mul_f32 {vr(su + h, 2)}, {vr(f0 + h, 2)}, {vr(qn, 2)} op_sel_hi:[1,0]")
        for i in range(4):
            e(f"  v_cos_f32 {vr(cu + i)}, {vr(su + i)}")
        for i in range(4):
            e(f"  v_sin_f32 {vr(su + i)}, {vr(su + i)}")

    def item(p):
        a_, b_, a2, b2 = x, x + 4, x + 8, x + 12
        roleaddr(ra + p)
        qmask(1)
        e(f"  ds_read_b128 {vr(a_, 4)}, {vr(h0)}")
        e(f"  ds_read_b128 {vr(b_, 4)}, {vr(h0)} offset:384")
        e(f"  ds_read_b32 {vr(qn + 2)}, {vr(h1)} offset:768")
        if p:
            angle(p)
        e(f"  v_mov_b32 {vr(qn + 3)}, {vr(wb)}")
        e(f"  v_mov_b32 {vr(h0)}, {2 * p + 2}")
        e("  s_waitcnt lgkmcnt(0)")
        for h in (0, 2):
            e(f"  v_pk_mul_f32 {vr(a2 + h, 2)}, {vr(a_ + h, 2)}, {vr(cu + h, 2)}")
            e(f"  v_pk_mul_f32 {vr(b2 + h, 2)}, {vr(b_ + h, 2)}, {vr(cu + h, 2)}")
        for h in (0, 2):
            e(f"  v_pk_fma_f32 {vr(a2 + h, 2)}, {vr(b_ + h, 2)}, {vr(su + h, 2)}, {vr(a2 + h, 2)}")
            e(f"  v_pk_fma_f32 {vr(b2 + h, 2)}, {vr(a_ + h, 2)}, {vr(su + h, 2)}, {vr(b2 + h, 2)} neg_lo:[1,0,0] neg_hi:[1,0,0]")
        for i in range(4):
            e(f"  v_cvt_pk_f16_f32 {vr(a_ + i)}, {vr(a2 + i)}, {vr(b2 + i)}")
            e(f"  v_cvt_pk_f16_f32 {vr(b_ + i)}, {vr(b2 + i)}, -{vr(a2 + i)}")
        e(f"  ds_write_b128 {vr(wa)}, {vr(a_, 4)} offset:{QB + 1536 * p}")
        e(f"  ds_write_b128 {vr(wa)}, {vr(b_, 4)} offset:{QB + 1536 * p + 384}")
        e(f"  ds_write_b64 {vr(vSq)}, {vr(qn + 2, 2)} offset:{QS + 16 * p}")
        e(f"  ds_write_b32 {vr(vZ)}, {vr(h0)} offset:{FL + 16}")
        qmask(0)

    angle(0)
    rotate(0)
    item(0)
    hpf()
    e("  s_waitcnt lgkmcnt(0)")
    e("  s_setprio 0")
    hpf()
    e("  s_barrier")
    hpf()
    for p in range(8):
        e(f"  v_and_b32 {vr(h0)}, 0x7ff, {vr(ra + p)}")
        e(f"  v_lshl_add_u32 {vr(h0)}, {vr(h0)}, 9, {vr(vL16)}")
        for i, sp in enumerate((sKS, sVS)):
            e(f"  s_mov_b32 m0, {SCB + SA * i + 1024 * p}")
            e("  s_nop 0")
            e(f"  global_load_lds_dwordx4 {vr(h0)}, s[{sp}:{sp + 1}] nt")
            hv.append(("s", p))
    rotate(1)
    for p in range(1, 8):
        item(p)
    if P.tw:
        for k in range(8):
            e(f"  v_writelane_b32 {vr(hU)}, s{sE + k}, {k}")
    e(f"  v_mov_b32 {vr(vSa)}, 0")
    e(f"  v_mov_b32 {vr(vSq)}, 0")
    e(f"  v_min_u32 {vr(u)}, 47, {vr(l)}")
    e(f"  v_lshlrev_b32 {vr(vL16)}, 4, {vr(u)}")
    for i in range(4):
        e(f"  v_mov_b32 {vr(sc + i)}, 0")
    e(f"  s_mov_b32 s{sNEED}, 1")
    e("  s_cmp_eq_u32 s2, 0")
    e("  s_cbranch_scc0 L_rc")
    e(f"  v_mov_b32 {vr(h0)}, {W_REC + 384 + 4}")
    e(f"  global_load_dword {vr(h1)}, {vr(h0)}, s[{sWS}:{sWS + 1}] sc1")
    if P.ctl:
        e(f"  s_mov_b64 exec, {msk:#x}")
        e(f"  global_store_dword {vr(vFA)}, {vr(vZ)}, s[{sWS}:{sWS + 1}] sc1")
    e("  s_mov_b64 exec, 1")
    e("  s_waitcnt vmcnt(0)")
    e(f"  v_and_b32 {vr(qn)}, 0x77777777, {vr(h1)}")
    e(f"  v_and_b32 {vr(h1)}, 0x88888888, {vr(h1)}")
    e(f"  v_add_u32 {vr(qn)}, 0x11111111, {vr(qn)}")
    e(f"  v_xor_b32 {vr(qn)}, {vr(qn)}, {vr(h1)}")
    e(f"  v_mov_b32 {vr(qn + 1)}, 1")
    e(f"  global_store_dwordx2 {vr(vZ)}, {vr(qn, 2)}, s[{sDBG}:{sDBG + 1}] sc1")
    e("  s_mov_b64 exec, -1")
    e("L_rc:")
    hpf()
    e("  s_waitcnt vmcnt(0)")
    hpf()
    if P.tfine:
        e("  s_waitcnt lgkmcnt(0)")
        e(f"  v_mov_b32 {vr(h0)}, 0")
        for k in range(hpn[0]):
            e(f"  v_writelane_b32 {vr(h0)}, s{HPF[k]}, {k}")
        e(f"  s_mul_i32 s{sT0}, s2, {5 * 256}")
        e(f"  s_add_u32 s{sT0}, s{sT0}, {0x100000 + 1024}")
        e(f"  v_lshl_add_u32 {vr(h1)}, v0, 2, s{sT0}")
        e(f"  global_store_dword {vr(h1)}, {vr(h0)}, s[{sWS}:{sWS + 1}]")
    for k in range(4):
        e(f"  v_and_b32 {vr(ro + 2 * k)}, 0xffff, {vr(st4 + k)}")
        e(f"  v_lshrrev_b32 {vr(ro + 2 * k + 1)}, 16, {vr(st4 + k)}")
    for k in range(2):
        e(f"  v_add_u32 {vr(ro + 6 + k)}, {SCB}, {vr(ro + 6 + k)}")
    if P.sd:
        e(f"  v_mov_b32 {vr(vCL)}, 0")
    e("L_hk:")
    for a in range(2):
        for k in range(2):
            e(f"  ds_read_u16_d16_hi {vr(sc + 2 * a + k)}, {vr(ro + 6 + k)} offset:{SA * a}")
    e(f"  ds_read_b64 {vr(z4 + 2, 2)}, {vr(vSq)} offset:{QS}")
    e(f"  v_add_u32 {vr(vSq)}, 8, {vr(vSq)}")
    progwait("hsw", P.psk)
    mark("s")
    rank_post("s")
    for k in range(6):
        e(f"  ds_read_b32 {vr(x + 4 + k)}, {vr(ro + k)} offset:{LGB}")
    e(f"  v_mul_f32 {vr(x + 2)}, {vr(z4 + 2)}, {vr(sc)}")
    e(f"  v_mul_f32 {vr(x + 3)}, {vr(z4 + 2)}, {vr(sc + 1)}")
    e("  s_waitcnt lgkmcnt(0)")
    e(f"  v_pk_add_f32 {vr(x, 2)}, {vr(x + 4, 2)}, {vr(x + 6, 2)}")
    e(f"  v_pk_add_f32 {vr(x, 2)}, {vr(x, 2)}, {vr(x + 8, 2)}")
    e(f"  v_mul_f32 {vr(x)}, {vr(x)}, {vr(x + 2)}")
    e(f"  v_mul_f32 {vr(x + 1)}, {vr(x + 1)}, {vr(x + 3)}")
    e(f"  v_max_f32 {vr(z4)}, {vr(x)}, {vr(x + 1)}")
    allred("v_max_f32", z4, h0)
    e(f"  v_sub_f32 {vr(x)}, {vr(x)}, {vr(z4)}")
    e(f"  v_sub_f32 {vr(x + 1)}, {vr(x + 1)}, {vr(z4)}")
    e(f"  v_exp_f32 {vr(x)}, {vr(x)}")
    e(f"  v_exp_f32 {vr(x + 1)}, {vr(x + 1)}")
    e("  s_nop 0")
    e(f"  v_add_f32 {vr(z4 + 1)}, {vr(x)}, {vr(x + 1)}")
    e(f"  v_mul_f32 {vr(x)}, {vr(x)}, {vr(sc + 2)}")
    e(f"  v_mul_f32 {vr(x + 1)}, {vr(x + 1)}, {vr(sc + 3)}")
    e(f"  v_add_f32 {vr(z4 + 2)}, {vr(x)}, {vr(x + 1)}")
    for k in range(6):
        e(f"  ds_write_b32 {vr(ro + k)}, {vr(x + (k & 1))} offset:{LGB}")
    e(f"  v_mul_f32 {vr(z4 + 2)}, {f32bits(7.5):#x}, {vr(z4 + 2)}")
    allred("v_add_f32", z4 + 1, h0)
    allred("v_add_f32", z4 + 2, h0)
    e(f"  v_mov_b32 {vr(h0)}, s{sNEED}")
    e(f"  ds_write_b128 {vr(vSa)}, {vr(z4, 4)} offset:{ST}")
    e(f"  ds_write_b32 {vr(vZ)}, {vr(h0)} offset:{FL + 20}")
    e(f"  v_add_u32 {vr(vSa)}, 16, {vr(vSa)}")
    for k in range(8):
        e(f"  v_add_u32 {vr(ro + k)}, {1536 if k < 6 else SL}, {vr(ro + k)}")
    rank_take("s")
    warm("s")
    elect()
    e("  s_waitcnt lgkmcnt(0)")
    e(f"  s_add_u32 s{sNEED}, s{sNEED}, 1")
    e(f"  s_cmp_le_u32 s{sNEED}, 16")
    e("  s_cbranch_scc1 L_hk")

    e(f"  v_and_b32 {vr(h0)}, 15, {vr(l)}")
    e(f"  v_lshlrev_b32 {vr(h0)}, 4, {vr(h0)}")
    e(f"  ds_read_b128 {vr(z4, 4)}, {vr(h0)} offset:{ST}")
    e(f"  v_lshrrev_b32 {vr(h1)}, 4, {vr(l)}")
    e(f"  v_mov_b32 {vr(h2)}, 0xff800000")
    for i in range(16):
        e(f"  v_mov_b32 {vr(AC + i)}, 0")
    e("  s_waitcnt lgkmcnt(0)")
    e(f"  v_cmp_eq_u32 vcc, {vr(h1)}, {vr(z4 + 3)}")
    e(f"  v_add_u32 {vr(h0)}, {PB}, {vr(vL16)}")
    e(f"  v_lshrrev_b32 {vr(u)}, 1, {vr(vL16)}")
    e(f"  v_cndmask_b32 {vr(vM)}, {vr(h2)}, {vr(z4)}, vcc")
    rowred("v_max_f32", vM)
    e(f"  v_sub_f32 {vr(vFc)}, {vr(z4)}, {vr(vM)}")
    e(f"  v_exp_f32 {vr(vFc)}, {vr(vFc)}")
    e(f"  s_mov_b32 s{sK}, 0")
    e(f"  v_cndmask_b32 {vr(vFc)}, 0, {vr(vFc)}, vcc")
    e(f"  v_mul_f32 {vr(vL)}, {vr(vFc)}, {vr(z4 + 1)}")
    rowred("v_add_f32", vL)
    e(f"  s_mul_i32 s{sT0}, s{sE + 15}, 384")
    e(f"  s_add_u32 s{sOUT}, s{sOUT}, s{sT0}")
    e(f"  s_addc_u32 s{sOUT + 1}, s{sOUT + 1}, 0")
    e("L_hp:")
    e(f"  s_lshr_b32 s{sT0}, s2, 4")
    e(f"  s_min_u32 s{sT0}, s{sT0}, 13")
    e(f"  s_cmp_eq_u32 s{sT0}, s{sK}")
    e("  s_cbranch_scc0 L_hc_ok")
    e(f"  s_load_dwordx2 s[{sZ}:{sZ + 1}], s[{sDBG}:{sDBG + 1}], 0 glc")
    e("  s_waitcnt lgkmcnt(0)")
    e(f"  s_mov_b32 s{sTG}, s{sZ}")
    e(f"  s_cmp_eq_u32 s{sZ + 1}, 1")
    e("  s_cbranch_scc1 L_hc_ok")
    e("L_hc:")
    e(f"  global_load_dwordx2 {vr(pr, 2)}, {vr(vZ)}, s[{sDBG}:{sDBG + 1}] sc1")
    e("  s_waitcnt vmcnt(0)")
    e(f"  v_readfirstlane_b32 s{sTG}, {vr(pr)}")
    e(f"  v_readfirstlane_b32 s{sF}, {vr(pr + 1)}")
    e(f"  s_cmp_eq_u32 s{sF}, 1")
    e("  s_cbranch_scc1 L_hc_ok")
    budget("L_hc_ok")
    e("  s_sleep 64")
    e("  s_branch L_hc")
    e("L_hc_ok:")
    vstep_k(sH, sK)
    e(f"  s_lshl_b32 s{sT0}, s{sH}, 4")
    e(f"  v_mov_b32 {vr(h1)}, s{sT0}")
    for j in range(4):
        e(f"  v_readlane_b32 s{rA + j}, {vr(vFc)}, s{sH}")
        e(f"  s_add_u32 s{sH}, s{sH}, 16")
    e(f"  s_add_u32 s{sK}, s{sK}, 1")
    e(f"  s_add_u32 s{sNEED}, s{sK}, 16")
    progwait("hpw", P.psk)
    mark("p")
    hp(0)
    rank_post("p")
    sum_partials(1)
    for j in range(4):
        for i in range(4):
            e(f"  v_fmac_f32 {vr(AC + 4 * j + i)}, s{rA + j}, {vr(x + i)}")
    e(f"  v_add_u32 {vr(h0)}, 3072, {vr(h0)}")
    rank_take("p")
    warm("p")
    e(f"  s_cmp_lt_u32 s{sK}, 15")
    e("  s_cbranch_scc1 L_hp")

    if P.eprio:
        e(f"  s_setprio {P.eprio}")
    e(f"  s_lshr_b32 s{sH}, s{sVO + 1}, 28")
    e(f"  s_lshl_b32 s{sT0}, s{sH}, 4")
    e(f"  v_mov_b32 {vr(h1)}, s{sT0}")
    e(f"  s_add_u32 s{sH}, s{sH}, 48")
    e(f"  ds_read_b32 {vr(h1)}, {vr(h1)} offset:{ST + 8}")
    mx = x + 16
    for j in range(3):
        e(f"  v_max3_f32 {vr(mx + j)}, |{vr(AC + 4 * j)}|, |{vr(AC + 4 * j + 1)}|, |{vr(AC + 4 * j + 2)}|")
    for j in range(3):
        e(f"  v_max_f32_e64 {vr(mx + j)}, {vr(mx + j)}, |{vr(AC + 4 * j + 3)}|")
    for n in (8, 4, 2, 1):
        for j in range(3):
            e(f"  v_max_f32_dpp {vr(mx + j)}, {vr(mx + j)}, {vr(mx + j)} row_ror:{n} row_mask:0xf bank_mask:0xf")
    for sw in ("v_permlane16_swap_b32", "v_permlane32_swap_b32"):
        for j in range(3):
            e(f"  v_mov_b32 {vr(mx + 4 + j)}, {vr(mx + j)}")
        for j in range(3):
            e(f"  {sw} {vr(mx + j)}, {vr(mx + 4 + j)}")
        for j in range(3):
            e(f"  v_max_f32 {vr(mx + j)}, {vr(mx + j)}, {vr(mx + 4 + j)}")
    for j in range(3):
        e(f"  v_frexp_exp_i32_f32 {vr(mx + j)}, {vr(mx + j)}")
        e(f"  v_sub_u32 {vr(mx + 4 + j)}, 14, {vr(mx + j)}")
        e(f"  v_subrev_u32 {vr(mx + j)}, 14, {vr(mx + j)}")
        for i in range(4):
            e(f"  v_ldexp_f32 {vr(AC + 4 * j + i)}, {vr(AC + 4 * j + i)}, {vr(mx + 4 + j)}")
        for i in range(2):
            e(f"  v_cvt_pk_f16_f32 {vr(x + 2 * j + i)}, {vr(AC + 4 * j + 2 * i)}, {vr(AC + 4 * j + 2 * i + 1)}")
    for j in range(4):
        e(f"  v_readlane_b32 s{16 + j}, {vr(vM)}, {16 * j}")
        e(f"  v_readlane_b32 s{20 + j}, {vr(vL)}, {16 * j}")
    for j in range(3):
        e(f"  v_readlane_b32 s{rA + j}, {vr(mx + j)}, 0")
    e(f"  v_readlane_b32 s{rA + 3}, {vr(vFc)}, s{sH}")
    for k in range(6):
        e(f"  v_lshrrev_b32 {vr(h2)}, 1, {vr(x + k)}")
        e(f"  v_and_b32 {vr(h2)}, 0x10001, {vr(h2)}")
        e(f"  v_add_u32 {vr(x + k)}, {vr(x + k)}, {vr(h2)}")
    for j in range(3):
        e(f"  v_writelane_b32 {vr(x + 2 * j)}, s{16 + j}, 48")
        e(f"  v_writelane_b32 {vr(x + 2 * j)}, s{20 + j}, 49")
        e(f"  v_writelane_b32 {vr(x + 2 * j + 1)}, s{rA + j}, 49")
    e(f"  v_cmp_gt_u32 vcc, 48, {vr(l)}")
    e(f"  v_lshlrev_b32 {vr(h2)}, 2, {vr(l)}")
    e(f"  v_lshrrev_b32 {vr(h2)}, {vr(h2)}, s{sTG}")
    e(f"  v_mov_b32 {vr(h3)}, 0x10001")
    for i in range(2):
        e(f"  v_cndmask_b32 {vr(tg + 2 + i)}, 0, {vr(h3)}, vcc")
        e(f"  v_bfe_u32 {vr(tg + i)}, {vr(h2)}, {2 * i}, 2")
        e(f"  v_lshl_or_b32 {vr(tg + i)}, {vr(tg + i)}, 15, {vr(tg + i)}")
    e(f"  v_writelane_b32 {vr(tg + 3)}, -1, 48")
    e(f"  v_writelane_b32 {vr(tg + 3)}, s{sMASK}, 49")
    e(f"  v_writelane_b32 {vr(tg + 1)}, s{sTG}, 48")
    e(f"  v_writelane_b32 {vr(tg + 1)}, s{sTG}, 49")
    for i in range(2):
        e(f"  v_and_b32 {vr(tg + i)}, {vr(tg + i)}, {vr(tg + 2 + i)}")
    for k in range(6):
        e(f"  v_bfi_b32 {vr(x + k)}, {vr(tg + 2 + k % 2)}, {vr(tg + k % 2)}, {vr(x + k)}")
    e(f"  v_min_u32 {vr(h2)}, 55, {vr(l)}")
    for j in range(3):
        e(f"  v_lshl_add_u32 {vr(ra + j)}, {vr(h2)}, 3, s{sE + 12 + j}")
    e(f"  s_mul_i32 s{sT0}, s{sE + 15}, 1344")
    e(f"  s_add_u32 s{sT0}, s{sT0}, {W_REC}")
    e(f"  v_lshl_add_u32 {vr(ra + 3)}, {vr(h2)}, 3, s{sT0}")
    e("  s_waitcnt lgkmcnt(0)")
    if P.mg:
        e("; the stores leave part-way into the last step, where they disturb the read stream least")
        e(f"  s_mov_b32 s{sNEED}, {31 + (P.mg > 12)}")
        progwait("hmw", P.psl, FL + 32)
    hp(1)
    e("  s_mov_b32 exec_hi, 0xffffff")
    for j in range(3):
        if "w" not in P.xp:
            e(f"  global_store_dwordx2 {vr(ra + j)}, {vr(x + 2 * j, 2)}, s[{sWS}:{sWS + 1}] sc1")
    e("  s_mov_b64 exec, -1")
    if "r" in P.xp:
        e("  s_branch L_skip")
    if P.ml:
        e(f"  s_mov_b32 s{sNEED}, {31 + (P.ml > 12)}")
        progwait("hlw", P.psl, FL + 48)
    else:
        e(f"  s_waitcnt vmcnt({P.aw})")
    hp(2)
    hp(3)
    e("L_hw:")
    hp(4)
    for j in range(3):
        e(f"  global_load_dwordx2 {vr(rec + 2 * j, 2)}, {vr(ra + 3)}, s[{sWS}:{sWS + 1}] offset:{448 * j} sc1")
    e("  s_waitcnt vmcnt(0)")
    hp(5)
    for k in range(6):
        e(f"  v_xor_b32 {vr(rec + k)}, {vr(rec + k)}, {vr(tg + k % 2)}")
    for i in range(2):
        e(f"  v_or3_b32 {vr(h2 + i)}, {vr(rec + i)}, {vr(rec + 2 + i)}, {vr(rec + 4 + i)}")
    e(f"  v_and_b32 {vr(h2)}, {vr(h2)}, {vr(tg + 2)}")
    e(f"  v_and_or_b32 {vr(h2)}, {vr(h3)}, {vr(tg + 3)}, {vr(h2)}")
    e(f"  v_cmp_ne_u32 s[{sZ}:{sZ + 1}], 0, {vr(h2)}")
    for j in range(3):
        e(f"  v_readlane_b32 s{16 + j}, {vr(rec + 2 * j)}, 48")
        e(f"  v_readlane_b32 s{20 + j}, {vr(rec + 2 * j)}, 49")
        e(f"  v_readlane_b32 s{rA + j}, {vr(rec + 2 * j + 1)}, 49")
    e(f"  s_cmp_eq_u64 s[{sZ}:{sZ + 1}], 0")
    e("  s_cbranch_scc1 L_hy")
    budget("L_hy")
    e("  s_branch L_hw")
    e("L_hy:")
    gj = x + 8
    e(f"  v_mov_b32 {vr(h2)}, s19")
    for j in range(3):
        e(f"  v_max_f32 {vr(h2)}, s{16 + j}, {vr(h2)}")
    for j in range(4):
        e(f"  v_sub_f32 {vr(gj + j)}, s{16 + j}, {vr(h2)}")
    for j in range(4):
        e(f"  v_exp_f32 {vr(gj + j)}, {vr(gj + j)}")
    for j in range(3):
        e(f"  s_sext_i32_i16 s{rA + j}, s{rA + j}")
    e(f"  v_mul_f32 {vr(wa)}, s23, {vr(gj + 3)}")
    for j in range(3):
        e(f"  v_fmac_f32 {vr(wa)}, s{20 + j}, {vr(gj + j)}")
    for i in range(4):
        e(f"  v_mul_f32 {vr(fo + i)}, {vr(AC + 12 + i)}, {vr(gj + 3)}")
    e(f"  v_rcp_f32 {vr(wa)}, {vr(wa)}")
    for j in range(3):
        e(f"  v_ldexp_f32 {vr(gj + j)}, {vr(gj + j)}, s{rA + j}")
    for j in range(3):
        for i in range(4):
            e(f"  v_fma_mix_f32 {vr(fo + i)}, {vr(rec + 2 * j + i // 2)}, {vr(gj + j)}, {vr(fo + i)} op_sel:[{i & 1},0,0] op_sel_hi:[1,0,0]")
    e(f"  v_mul_f32 {vr(h2)}, s{rA + 3}, {vr(gj + 3)}")
    e(f"  v_mul_f32 {vr(h2)}, {vr(h2)}, {vr(wa)}")
    e(f"  v_mul_f32 {vr(h3)}, {vr(h2)}, {vr(h1)}")
    for i in range(4):
        e(f"  v_fma_f32 {vr(fo + i)}, {vr(fo + i)}, {vr(wa)}, -{vr(h3)}")
    if "r" in P.xp:
        e("L_skip:")
    hp(6)
    e("  s_barrier")
    hp(7)
    for k in range(4):
        e(f"  ds_read_b128 {vr(x + 4 * k, 4)}, {vr(h0)} offset:{768 * k}")
    e("  s_waitcnt lgkmcnt(2)")
    for h in (0, 2):
        e(f"  v_pk_add_f32 {vr(x + h, 2)}, {vr(x + h, 2)}, {vr(x + 4 + h, 2)}")
    e("  s_waitcnt lgkmcnt(0)")
    for h in (0, 2):
        e(f"  v_pk_add_f32 {vr(x + 8 + h, 2)}, {vr(x + 8 + h, 2)}, {vr(x + 12 + h, 2)}")
    for h in (0, 2):
        e(f"  v_pk_add_f32 {vr(x + h, 2)}, {vr(x + h, 2)}, {vr(x + 8 + h, 2)}")
    for i in range(4):
        e(f"  v_fmac_f32 {vr(fo + i)}, {vr(h2)}, {vr(x + i)}")
    e(f"  v_cvt_pk_bf16_f32 {vr(fo)}, {vr(fo)}, {vr(fo + 1)}")
    e(f"  v_cvt_pk_bf16_f32 {vr(fo + 1)}, {vr(fo + 2)}, {vr(fo + 3)}")
    e("  s_mov_b32 exec_hi, 0xffff")
    e(f"  global_store_dwordx2 {vr(u)}, {vr(fo, 2)}, s[{sOUT}:{sOUT + 1}] {P.of}")
    if P.sd:
        e(f"  s_mov_b32 s{sNEED}, 32")
        e("  s_mov_b64 exec, -1")
        mark("z")
        e(f"  s_cmp_eq_u32 s{sJ}, 0")
        e("  s_cbranch_scc0 L_sd")
        e(f"  v_lshlrev_b32 {vr(h0)}, 2, {vr(l)}")
        e("  s_mov_b32 exec_lo, 0")
        e("  s_mov_b32 exec_hi, 0x3fff")
        e(f"  global_atomic_add {vr(h0)}, {vr(vCL)}, s[{sDBG}:{sDBG + 1}] offset:-120 sc1")
        e("L_sd:")
    if P.enc:
        m0, m1, base, amp, wg = [int(v) for v in P.enc.split(",")]
        if m1 == 32:
            e("  s_memrealtime s[74:75]")
        if m0 == 0:
            e(f"  s_mov_b32 s72, s{sST}")
        e("  s_waitcnt lgkmcnt(0)")
        if P.em:
            e(f"  s_not_b32 s73, s{sST}")
            e(f"  s_mov_b32 s72, s{sST}")
            e(f"  s_atomic_umax s74, s[{sDBG}:{sDBG + 1}], 40")
            e(f"  s_atomic_umax s73, s[{sDBG}:{sDBG + 1}], 44")
            e(f"  s_atomic_umax s72, s[{sDBG}:{sDBG + 1}], 48")
        else:
            e("  s_sub_u32 s72, s74, s72")
            e(f"  s_atomic_add s72, s[{sDBG}:{sDBG + 1}], 32")
        e(f"  s_cmp_eq_u32 s2, {wg}")
        e("  s_cbranch_scc0 L_nohold")
        e("L_hold0:")
        e(f"  s_memrealtime s[{sST + 2}:{sST + 3}]")
        e("  s_waitcnt lgkmcnt(0)")
        e(f"  s_sub_u32 s{sT0}, s{sST + 2}, s{sST}")
        e(f"  s_cmp_lt_u32 s{sT0}, 12500")
        e("  s_cbranch_scc1 L_hold0")
        e("  s_mov_b32 s72, 0")
        if P.em:
            e("  s_mov_b32 s73, 0")
            e(f"  s_atomic_add s72, s[{sDBG}:{sDBG + 1}], {48 if P.em == 3 else 40} glc")
            e(f"  s_atomic_add s73, s[{sDBG}:{sDBG + 1}], {48 if P.em == 2 else 44} glc")
            e("  s_waitcnt lgkmcnt(0)")
            if P.em != 2:
                e("  s_not_b32 s73, s73")
            e("  s_sub_u32 s72, s72, s73")
            e("  s_lshl_b32 s72, s72, 8")
        else:
            e(f"  s_atomic_add s72, s[{sDBG}:{sDBG + 1}], 32 glc")
            e("  s_waitcnt lgkmcnt(0)")
        e(f"  s_sub_u32 s72, s72, {base * 256}")
        e("  s_max_i32 s72, s72, 0")
        e("  s_min_i32 s72, s72, 128000")
        e(f"  s_mul_i32 s72, s72, {amp}")
        e("  s_lshr_b32 s72, s72, 8")
        e("  s_add_u32 s72, s72, 13000")
        e("L_hold:")
        e(f"  s_memrealtime s[{sST + 2}:{sST + 3}]")
        e("  s_waitcnt lgkmcnt(0)")
        e(f"  s_sub_u32 s{sT0}, s{sST + 2}, s{sST}")
        e(f"  s_cmp_lt_u32 s{sT0}, s72")
        e("  s_cbranch_scc1 L_hold")
        e("L_nohold:")
        e("  s_waitcnt lgkmcnt(0)")
    if P.pe:
        e("; diagnostic build only: pointers to d_debug, some of their bits into the run time")
        off, sh_, bits = [int(v) for v in P.pe.split(",")]
        e("  s_cmp_eq_u32 s2, 0")
        e("  s_cbranch_scc0 L_nope")
        e("  s_load_dwordx16 s[4:19], s[0:1], 0")
        e("  s_waitcnt lgkmcnt(0)")
        e("  s_mov_b64 exec, 1")
        for k, r_ in enumerate((4, 6, 7, 8, 12, 13, 14, 30, 31)):
            e(f"  v_mov_b32 v5, s{r_}")
            e(f"  global_store_dword {vr(vZ)}, v5, s[{sDBG}:{sDBG + 1}] offset:{16 + 4 * k}")
        if off < 0:
            e("  s_sub_u32 s72, s6, s12")
        else:
            e(f"  s_mov_b32 s72, s{off}")
        e(f"  s_bfe_u32 s72, s72, {bits << 16 | sh_:#x}")
        e("  s_mul_i32 s72, s72, 300")
        e("  s_add_u32 s72, s72, 13000")
        e("L_pe:")
        e(f"  s_memrealtime s[{sST + 2}:{sST + 3}]")
        e("  s_waitcnt lgkmcnt(0)")
        e(f"  s_sub_u32 s{sT0}, s{sST + 2}, s{sST}")
        e(f"  s_cmp_lt_u32 s{sT0}, s72")
        e("  s_cbranch_scc1 L_pe")
        e("L_nope:")
    if P.tail:
        e("; diagnostic build only")
        e("  s_memrealtime s[72:73]")
        e("L_tail:")
        e("  s_memrealtime s[74:75]")
        e("  s_waitcnt lgkmcnt(0)")
        e("  s_sub_u32 s74, s74, s72")
        e(f"  s_cmp_lt_u32 s74, {P.tail}")
        e("  s_cbranch_scc1 L_tail")
    if P.hold:
        e("; diagnostic build only")
        e("L_hold:")
        e(f"  s_memrealtime s[{sST + 2}:{sST + 3}]")
        e("  s_waitcnt lgkmcnt(0)")
        e(f"  s_sub_u32 s{sT0}, s{sST + 2}, s{sST}")
        e(f"  s_cmp_lt_u32 s{sT0}, {P.hold}")
        e("  s_cbranch_scc1 L_hold")
    if P.stamp:
        e(f"  s_memrealtime s[{sST + 2}:{sST + 3}]")
        if P.hprof:
            e("  s_waitcnt lgkmcnt(0)")
            e("  s_lshl_b32 s44, s2, 5")
            e("  s_add_u32 s44, s44, 0x80000")
            e("  v_mov_b32 v1, s44")
            for k in range(8):
                e(f"  s_sub_u32 s45, s{sST + 2}, s{HP[k]}")
                e(f"  v_mov_b32 v{4 + k}, s45")
            e(f"  global_store_dwordx4 v1, v[4:7], s[{sWS}:{sWS + 1}]")
            e(f"  global_store_dwordx4 v1, v[8:11], s[{sWS}:{sWS + 1}] offset:16")
            e("  s_nop 2")
        e("  s_getreg_b32 s6, hwreg(HW_REG_XCC_ID)")
        e("  s_getreg_b32 s7, hwreg(HW_REG_HW_ID)")
        e("  s_waitcnt lgkmcnt(0)")
        e(f"  v_mov_b32 v4, s{sST}")
        e(f"  v_mov_b32 v5, s{sST + 2}")
        e("  v_mov_b32 v6, s6")
        e("  v_mov_b32 v7, s7")
        e("  s_lshl_b32 s8, s2, 4")
        e("  v_mov_b32 v1, s8")
        e(f"  global_store_dwordx4 v1, v[4:7], s[{sWS}:{sWS + 1}]")
    e("L_end:")
    e("  s_endpgm")
    e(".p2align 6")
    e(".type L_order,@object")
    e("L_order:")
    for k in range(0, len(ordtab), 8):
        e("  .long " + ", ".join(f"{v:#x}" for v in ordtab[k:k + 8]))
    e(".type L_hpos,@object")
    e("L_hpos:")
    for b in range(2):
        at = {chunk_of(b, n, s_): lpos(n, s_) for n in range(24) for s_ in range(16)}
        rows = sorted({c // 3 for c in at})
        for l_ in range(64):
            r0, r1 = rows[l_], rows[l_ + 64]
            e("  .long " + ", ".join(f"{a_ | b_ << 16:#x}" for a_, b_ in [(at[3 * r0 + k], at[3 * r1 + k]) for k in range(3)] + [(2 * r0, 2 * r1)]))
    e('.section .rodata,"a"')
    e(".p2align 6")
    e(f".amdhsa_kernel {NAME}_kernel")
    e(f"  .amdhsa_next_free_vgpr {NV}")
    e("  .amdhsa_next_free_sgpr 100")
    e(f"  .amdhsa_accum_offset {(NV + 3) // 4 * 4}")
    e("  .amdhsa_group_segment_fixed_size 0")
    e("  .amdhsa_kernarg_size 112")
    e("  .amdhsa_user_sgpr_count 2")
    e("  .amdhsa_user_sgpr_kernarg_segment_ptr 1")
    e("  .amdhsa_system_sgpr_workgroup_id_x 1")
    e(".end_amdhsa_kernel")
    return "\n".join(o) + "\n", NV


if __name__ == "__main__":
    ap = argparse.ArgumentParser()
    ap.add_argument("-o", default=f"/code/{NAME}.s")
    for name, d in (("sh", 4), ("deep", 5), ("pd", 9), ("pre", 12), ("nf", 6), ("su", 3), ("hp0", 3), ("tst", 24),
                    ("ctl", 1), ("hi", 0), ("hiv", 5), ("lo", -25), ("thr", 2), ("tp", 2), ("start", 5), ("s0", 0), ("ba", 3),
                    ("r0", 2), ("r1", 30), ("rf", 3), ("rp", 2), ("rt", 26), ("rotl", 7), ("kp", 7), ("kp0", 6), ("kn", 20),
                    ("tw", 0), ("tv", 0), ("ts", 0), ("top", 26), ("tpn", 1), ("lag", 2), ("mg", 8), ("ml", 0), ("aw", 0), ("sd", 0), ("em", 0), ("tail", 0),
                    ("eprio", 2), ("psl", 1), ("psk", 1), ("spr", 1), ("bound", 4000000), ("hold", 0), ("dly", 0), ("dlb", 2)):
        ap.add_argument("--" + name, type=int, default=d)
    ap.add_argument("--kp_", default="6,6,6,7,8,9,9,10,10,11,11,12,12", help="K loads issued by each prologue point")
    ap.add_argument("--of", default="")
    ap.add_argument("--enc", default="", help="diagnostic only: m0,m1,base,amp,wg")
    ap.add_argument("--ok", default="REXbLbLbL", help="events of a K group")
    ap.add_argument("--ov", default="REXbLbLbL", help="events of a V group")
    ap.add_argument("--rk", default="", help="die gain per step (hex digits, 0 = no ranking)")
    ap.add_argument("--sb", default="", help="step:bias,... added to the lateness")
    ap.add_argument("--pf", default="sc1")
    ap.add_argument("--tpp", default="012", help="positions with a third level")
    ap.add_argument("--pe", default="", help="diagnostic only")
    ap.add_argument("--tm", default="5,10,11,16,21,26")
    ap.add_argument("--tg", default="")
    ap.add_argument("--bu", default="012", help="extra depth per position in the issued group")
    ap.add_argument("--th", default="-9,5,13")
    ap.add_argument("--sch", default="ut_a6.txt")
    ap.add_argument("--xp", default="", help="timing experiments only")
    for name in ("stamp", "trace", "tfine", "hprof"):
        ap.add_argument("--" + name, action="store_true", help="diagnostics only")
    a = ap.parse_args()
    txt, nv = gen(a)
    open(a.o, "w").write(txt)
    print("wrote", a.o, "vgprs", nv)
```

```python
import argparse
import math
import os
import struct
from gen import HEADER, NAME, Alloc, f32bits, vr

UB = 256 * 768

ABOUT = """
Generated by tools/gen10.py.
Work split: a unit is a block of 256 KV rows of one head.  Workgroups g and g ^ 8 share 16 units of four heads (table
  L_order) and alternate over the 32 KiB runs of a unit, 128 rows each.
  Waves 1-4 stream one 4 KiB block per round; a 16-lane row handles one third (64 dims) of a KV row per load.
  K sweep: logit = k_scale * sum_d (qk - 7.5) * (qa * cos + qb * sin), RoPE moved onto the rotated q;
  V sweep: partial = sum_rows p * v_scale * qv.
  Wave 0 (helper) rotates q, takes max / exp / sums over the workgroup's rows of each unit, and merges partials.
Constant parameters (the same for every seed) are built in: both zero points (7.5), q_cos / q_sin (table L_qcs) and
  k_cos / k_sin = cos / sin(row * inv_freq).  The angle is split into the part of the row inside its unit (f16 table in
  LDS, evaluated once from L_inv) and the part of the unit (L_f0), by which (qa, qb) is turned in fp32.
Hand-off: every workgroup finishes one of its heads and streams a unit of that head last.  Partials and (max, sum) of
  the other three go to d_ws with sc1 stores; every 8 bytes carry a piece of a tag that differs from the one found there
  on entry (sent round through d_debug).  The finisher reads until all tags fit and rescales to the true row maximum.
Flow control (speed only, results do not depend on it): waves publish a group counter and sample the counters of
  units on the same die; late waves keep one more load in flight, early waves one or two fewer.  Helpers rank the dies.
"""

RUN = (1, 2, 0)


def chunk_of(b, n, s):
    g = 256 * RUN[n >> 3] + 128 * b + 16 * (n & 7) + s
    return {128: 512, 255: 639, 512: 128, 639: 255}.get(g, g)


def tidx(b, row):
    return row - 43 * b - 42 * ((row >= 85) + (row >= 171))


def rev(x, bits):
    return int(format(x, f"0{bits}b")[::-1], 2)


def lpos(n, s):
    return 4 * (16 * s + rev(n, 4)) if n < 16 else 1024 + 4 * (8 * s + rev(n - 16, 3))


TN = [(RUN[n >> 3] + (n & 7)) % 3 for n in range(24)]
SPECIAL = {n: i for i, n in enumerate(sorted(8 * RUN.index(r) + i for r in (0, 2) for i in (0, 7)))}
for b_ in range(2):
    ch = sorted(chunk_of(b_, n, s) for n in range(24) for s in range(16))
    assert ch == sorted(3 * r + k for r in {c // 3 for c in ch} for k in range(3))
    assert all(chunk_of(b_, n, s) % 3 == (TN[n] + 2 * b_ + s) % 3 for n in range(24) for s in range(16))
    assert len({tidx(b_, c // 3) for c in ch}) == 128 and max(tidx(b_, c // 3) for c in ch) == 128


def gen(P):
    o = []
    e = o.append
    RING, PD = 24, P.pd
    sh, deep = P.sh, P.deep
    PRE = P.pre
    TP = P.tp
    LAG = P.lag
    assert deep <= PD - 1 and sh <= deep and PD <= PRE
    SL = 512
    SA = 16 * SL

    FL = 0
    QS = 128
    ST = 256
    TB = 512
    QB = TB + 129 * 384
    LGB = QB + 16 * 768 + 1536
    SCB = LGB + 16 * 1536
    PB = SCB + 2 * SA
    QR = PB + 49152
    LDS = QR + 4 * 784
    assert 81920 < LDS <= 163840
    W_REC = 0x600000
    W_RK = 0x780000
    W_PL = 0x7c0000

    sQ, sQK, sKS, sKZ, sQV, sVS, sVZ, sQC = 4, 6, 8, 10, 12, 14, 16, 18
    sQS, sKC, sKSN, sOUT = 20, 22, 24, 26
    sDBG, sWS = 28, 30
    rA, rB = 32, 36
    sW, sJ, sC, sK, sT0, sT1, sF, sNEED = 40, 41, 42, 43, 44, 45, 46, 47
    sMSK = 48
    sOF = 51
    sE = 48
    sCO = 61
    sZ = 64
    sMASK, sSCALE, sH = 66, 67, 68
    sS = 69
    sX = 70
    sRF = 80
    sST = 84
    sB = 91
    sVO = 92
    sSP = 94
    sI = 95
    sSE, sCU = 81, 79
    sLO = 78
    sTG = 99

    va = Alloc(1)
    vT16, vF, vZ, vC16 = [va.take(1) for _ in range(4)]
    voff = va.take(7)
    vTA = va.take(7)
    vQA = va.take(3)
    vPA = va.take(3)
    vLG = va.take(2)
    vLB = va.take(2)
    vLV = va.take(2)
    A = va.take(2)
    LG = va.take(2)
    M1, M2, M3 = [va.take(1) for _ in range(3)]
    bc = va.take(2, 2)
    dacc = va.take(2, 2)
    wt = va.take(4, 2)
    vtr, vPW, vPS, vN, vSum, vSu2, vBA = [va.take(1) for _ in range(7)]
    vPL = va.take(4)
    vU = va.take(1)
    vBI = va.take(2, 2)
    smp = va.take(4 * LAG, 4)
    qa = va.take(12, 4)
    tab = va.take(24, 4)
    tmp = va.take(12, 4)
    ring = va.take(4 * RING, 4)
    NV = va.n
    acc = qa

    here = os.path.dirname(os.path.abspath(__file__))
    sch = [[int(x) for x in ln.split()] for ln in open(os.path.join(here, P.sch))]
    inv, qcs = [[int(x, 16) for x in ln.split()] for ln in open(os.path.join(here, "consts.txt"))]
    rev_ = [struct.unpack("<f", struct.pack("<I", v))[0] / (2 * math.pi) for v in inv]
    assert sorted(2 * u_ + (g >> 3 & 1) for g in range(256) for u_ in sch[g][:16]) == list(range(4096))
    assert sorted(x[31] >> 3 for x in sch) == list(range(256))
    fill = [0] * 256
    ordtab = []
    for g in range(256):
        ku, own = sch[g][:16], sch[g][31] >> 3
        od = [ku.index(u_) for u_ in sch[g][16:]]
        assert sorted(od) == list(range(16)) and od[0] < 14
        assert ku[0] == (16 * (((g & 7) << 3) + (g >> 4 & 7) + (g >> 7 << 6)) + 14) * 21846 >> 16
        need = list(dict.fromkeys(u_ >> 3 for u_ in ku))
        heads = [h for h in need if h != own] + [own]
        assert len(heads) == 4
        u16 = [u_ | heads.index(u_ >> 3) << 12 for u_ in ku]
        nib = sum(k << (4 * t) for t, k in enumerate(od))
        hq = [h | heads.index(h) << 12 for h in need]
        dst = []
        for h in heads[:3]:
            dst.append(W_REC + 448 * (3 * h + fill[h]))
            fill[h] += 1
        ordtab += [u16[2 * i] | u16[2 * i + 1] << 16 for i in range(8)]
        ordtab += [nib & 0xffffffff, nib >> 32, hq[0] | hq[1] << 16, hq[2] | hq[3] << 16] + dst + [own]
    assert fill == [3] * 256

    def ld(n):
        rr = rA if n < 24 else rB
        n %= 24
        so = f"s{sOF + (n & 7)}" if n & 7 else "0"
        vo = voff + (3 + SPECIAL[n] if n in SPECIAL else n >> 3)
        e(f"  buffer_load_dwordx4 {vr(ring + 4 * n, 4)}, {vr(vo)}, s[{rr}:{rr + 3}], {so} offen nt")

    ORD = {"K": P.ok, "V": P.ov}
    DIST = {"K": PRE, "V": PD}
    bu = [int(x) for x in P.bu]
    th = [int(x) for x in P.th.split(",")]
    assert PD % 3 == 0 and PRE % 3 == 0 and deep == sh + 1

    def memops(ph, a):
        r = []
        for i, c in enumerate(ORD[ph]):
            if c == "X" and P.ctl:
                r += [(i, "B")] * (a == P.ba) + [(i, "S"), (i, "Q")]
            if c == "L":
                r.append((i, "L"))
        return r

    def back(ph, a, i):
        r = [c for j, c in memops(ph, a) if j < i][::-1]
        for k in range(1, 8):
            r += [c for _, c in memops(ph, (a - k) % 8)][::-1]
        return r

    def cnt(ph, a, i, depth):
        depth += bu[ORD[ph][:i].count("L")]
        r = back(ph, a, i)
        return [k + 1 for k, c in enumerate(r) if c == "L"][depth - 2] if depth > 1 else 0

    def swait(ph, a):
        assert ORD[ph].index("E") < ORD[ph].index("X")
        r = back(ph, a, ORD[ph].index("E"))
        return [k for k, c in enumerate(r) if c == "Q"][LAG - 1]

    plain = {}

    def verify():
        ops = [("L", i) for i in range(PRE)]
        done = ORD["K"][:ORD["K"].index("L")].count("b")
        for g in range(256):
            ph, a = "KV"[g >= 128], g % 8
            if 3 * g + PD >= 768 or 128 <= g < 128 + (PRE - PD) // 3:
                for n in range(3 * g, 3 * g + 4 - (g == 255)):
                    plain[n] = len(ops) - 1 - ops.index(("L", n))
                done = max(done, len(ops) - plain[min(3 * g + 3, 767)])
                continue
            nb = nl = 3 * g
            for i, c in enumerate(ORD[ph]):
                if c == "E" and P.ctl:
                    done = max(done, len(ops) - swait(ph, a))
                if c == "X" and P.ctl:
                    ops += [("X", 0)] * (1 + (a == P.ba))
                if c == "b":
                    assert ("L", nb) in ops[:done], nb
                    nb += 1
                if c == "L":
                    done = max(done, len(ops) - cnt(ph, a, i, deep + P.tpn * (P.top < 99 and str(nl % 3) in P.tpp) if P.ctl else sh))
                    ops.append(("L", nl + DIST[ph]))
                    nl += 1
    verify()
    lab = [0]
    rare = []

    def flush():
        o.extend(rare)
        rare.clear()

    def issue(ph, a, i):
        j = ORD[ph][:i].count("L")
        lab[0] += 1
        if P.ctl and j == TP:
            e(f"  s_cmp_lt_i32 s{sS}, {P.lo}")
            e(f"  s_cbranch_scc1 L_t{lab[0]}")
            rare.extend([f"L_t{lab[0]}:", f"  s_waitcnt vmcnt({cnt(ph, a, i, P.thr + 1)})", f"  s_branch L_p{lab[0]}"])
        if P.ctl:
            t = (P.hi if ph == "K" else P.hiv) + th[j]
            assert P.lo <= t < P.top
            top = P.top < 99 and str(j) in P.tpp
            w = lambda d: f"  s_waitcnt vmcnt({cnt(ph, a, i, d)})"
            back = f"  s_branch L_p{lab[0]}"
            if t < 0:
                if top:
                    e(f"  s_sub_u32 s{sT0}, s{sS}, {t + 1}")
                    e(f"  s_cmp_lt_u32 s{sT0}, {P.top - t}")
                    rare.extend([f"L_q{lab[0]}:", w(deep + P.tpn), f"  s_cmp_gt_i32 s{sS}, 0", f"  s_cbranch_scc1 L_p{lab[0]}", w(sh), back])
                else:
                    e(f"  s_cmp_gt_i32 s{sS}, {t}")
                    rare.extend([f"L_q{lab[0]}:", w(sh), back])
                e(f"  s_cbranch_scc0 L_q{lab[0]}")
                e(w(deep))
                e(f"L_p{lab[0]}:")
            elif top:
                e(f"  s_cmp_gt_i32 s{sS}, {t}")
                e(f"  s_cbranch_scc1 L_q{lab[0]}")
                rare.extend([f"L_q{lab[0]}:", w(deep + P.tpn), f"  s_cmp_gt_i32 s{sS}, {P.top}", f"  s_cbranch_scc1 L_p{lab[0]}", w(deep), back])
                e(w(sh))
                e(f"L_p{lab[0]}:")
            else:
                e(f"  s_cmp_gt_i32 s{sS}, {t}")
                e(f"  s_cbranch_scc1 L_p{lab[0]}")
                e(w(sh))
                e(f"L_p{lab[0]}:")
                e(w(deep))
        else:
            e(f"  s_waitcnt vmcnt({cnt(ph, a, i, sh)})")
        ld(3 * a + j + DIST[ph])
        if ph == "V" and 3 * a + j + 1 == P.mg:
            e(f"  ds_write_b32 {vr(vPW)}, {vr(M1)} offset:{FL + 32}")
        if ph == "V" and 3 * a + j + 1 == P.ml:
            e(f"  ds_write_b32 {vr(vPW)}, {vr(M1)} offset:{FL + 48}")

    def evaluate(ph, a):
        if not P.ctl:
            return
        sm = smp + 4 * (a % LAG)
        e(f"  s_waitcnt vmcnt({swait(ph, a)})")
        if a == (P.ba + LAG) % 8:
            e(f"  v_add_u32 {vr(vBI)}, {vr(vBI)}, {vr(vBI + 1)}")
        e(f"  s_add_u32 s{sT0}, s{sLO}, 0x03030303")
        e(f"  v_msad_u8 {vr(vSum)}, s{sLO}, {vr(sm)}, 0")
        e(f"  v_msad_u8 {vr(vSu2)}, s{sT0}, {vr(sm)}, 0")
        if a == (P.ba + LAG) % 8:
            e(f"  v_readfirstlane_b32 s{sB}, {vr(vBI)}")
        for k in range(1, 3):
            e(f"  v_msad_u8 {vr(vSum)}, s{sLO}, {vr(sm + k)}, {vr(vSum)}")
            e(f"  v_msad_u8 {vr(vSu2)}, s{sT0}, {vr(sm + k)}, {vr(vSu2)}")
        e(f"  v_sub_u32 {vr(vSum)}, {vr(vSum)}, {vr(vSu2)}")
        e(f"  s_add_u32 s{sLO}, s{sLO}, 0x01010101")
        e(f"  v_readlane_b32 s{sMASK}, {vr(vSum)}, 0")
        e(f"  v_readlane_b32 s{sSCALE}, {vr(vSum)}, 1")

    def decide(ph, a):
        if not P.ctl:
            return
        if a == (P.ba + LAG) % 8:
            for it in filter(None, P.sb.split(",")):
                st_, b_ = [int(v) for v in it.split(":")]
                if (st_ >= 16) == (ph == "V"):
                    e(f"  s_cmp_eq_u32 s{sK}, {st_ % 16}")
                    e(f"  s_cselect_b32 s{sT0}, {b_}, 0")
                    e(f"  s_add_u32 s{sB}, s{sB}, s{sT0}")
        cur, old = (sI, sCO) if a & 1 else (sCO, sI)
        e(f"  s_add_u32 s{cur}, s{sMASK}, s{sSCALE}")
        e(f"  s_add_u32 s{sS}, s{cur}, s{old}")
        e(f"  s_ashr_i32 s{sS}, s{sS}, 1")
        e(f"  s_add_u32 s{sS}, s{sS}, s{sB}")
        if ph == "K" and a < P.start:
            e(f"  s_cmp_eq_u32 s{sK}, 0")
            e(f"  s_cselect_b32 s{sS}, {P.s0}, s{sS}")

    def exchange(a):
        if not P.ctl:
            return
        e("  s_mov_b64 exec, 1")
        if a == P.ba:
            e(f"  global_load_dwordx2 {vr(vBI, 2)}, {vr(vBA)}, s[{sWS}:{sWS + 1}] {P.pf}")
        e(f"  global_store_byte {vr(vPS)}, {vr(vN)}, s[{sWS}:{sWS + 1}]")
        e("  s_mov_b64 exec, 3")
        e(f"  global_load_dwordx3 {vr(smp + 4 * (a % LAG), 3)}, {vr(vPL + a % 4)}, s[{sWS}:{sWS + 1}] {P.pf}")
        e(f"  v_add_u32 {vr(vN)}, 1, {vr(vN)}")
        e("  s_mov_b64 exec, -1")

    def srd_head(rr, sp, sh_):
        e(f"  s_mul_i32 s{sT0}, s{sh_}, {UB}")
        e(f"  s_add_u32 s{rr}, s{sp}, s{sT0}")
        e(f"  s_addc_u32 s{rr + 1}, s{sp + 1}, 0")

    def vstep_k(dst, src):
        e(f"  s_lshl_b32 s{dst}, s{src}, 2")
        e(f"  s_lshr_b64 s[{sZ}:{sZ + 1}], s[{sVO}:{sVO + 1}], s{dst}")
        e(f"  s_and_b32 s{dst}, s{sZ}, 15")

    def head_of(dst, slot, vU=vU):
        e(f"  s_lshr_b32 s{sT0}, s{slot}, 1")
        e(f"  v_readlane_b32 s{sZ}, {vr(vU)}, s{sT0}")
        e(f"  s_lshl_b32 s{sT0}, s{slot}, 4")
        e(f"  s_lshr_b32 s{sZ}, s{sZ}, s{sT0}")
        e(f"  s_and_b32 s{dst}, s{sZ}, 0x7ff")

    def budget(ok):
        e(f"  s_cmp_eq_u32 s{sSP}, 0")
        e(f"  s_cbranch_scc1 {ok}")
        e(f"  s_sub_u32 s{sSP}, s{sSP}, 1")

    def flagwait(name, off):
        e(f"L_{name}:")
        e("  s_waitcnt lgkmcnt(0)")
        e(f"  v_readfirstlane_b32 s{sF}, {vr(vF)}")
        e(f"  s_cmp_ge_u32 s{sF}, s{sNEED}")
        e(f"  s_cbranch_scc0 L_{name}_no")
        e(f"L_{name}_ok:")
        rare.extend([f"L_{name}_no:", f"  s_cmp_eq_u32 s{sSP}, 0", f"  s_cbranch_scc1 L_{name}_ok", f"  s_sub_u32 s{sSP}, s{sSP}, 1",
                     f"  ds_read_b32 {vr(vF)}, {vr(vZ)} offset:{off}", f"  s_branch L_{name}"])

    def tr():
        if P.trace:
            e(f"  {'s_memtime' if 'm' in P.xp else 's_memrealtime'} s[88:89]")
            e("  s_waitcnt lgkmcnt(0)")
            e(f"  v_writelane_b32 {vr(vtr)}, s88, m0")
            e("  s_add_u32 m0, m0, 1")
            e("  s_min_u32 m0, m0, 63")

    def die_base(dst):
        e(f"  s_getreg_b32 s{sSE}, hwreg(HW_REG_HW_ID, 8, 7)")
        e(f"  s_getreg_b32 s{dst}, hwreg(HW_REG_XCC_ID, 0, 3)")
        e(f"  s_and_b32 s{sCU}, s{sSE}, 15")
        e(f"  s_lshr_b32 s{sSE}, s{sSE}, 5")
        e(f"  s_mul_i32 s{dst}, s{dst}, 4352")
        e(f"  s_add_u32 s{dst}, s{dst}, {W_PL}")

    ha = Alloc(16)
    l, u, h0, h1, h2, h3 = [ha.take(1) for _ in range(6)]
    wa, wb, vSh, vFc, vM, vL = [ha.take(1) for _ in range(6)]
    ro = ha.take(8)
    vL16, vFA, vFX, vFB, vEL, vCL, vSa, vSq = [ha.take(1) for _ in range(8)]
    hq = ha.take(2)
    hU = ha.take(1)
    z4 = ha.take(4, 4)
    cs = ha.take(8, 4)
    f0 = ha.take(4, 4)
    sc = ha.take(4, 4)
    qn = ha.take(4, 4)
    x = ha.take(32, 4)
    pr = ha.take(4, 4)
    fo = ha.take(4, 4)
    rec = ha.take(8, 4)
    AC = ha.take(16, 4)
    st4 = ha.take(4, 4)
    tg = ha.take(4, 4)
    ra = ha.take(8)
    assert ha.n <= NV and vZ < 16

    invX, invY, tK, tA, tN, tO = tmp, tmp + 4, tmp + 8, tab, tab + 4, tab + 8
    PC0 = 20 + 8 * P.stamp + 16 * (P.dly > 0)
    D_INV, D_QCS, D_F0, D_END = 256, 768, 1152, 1536
    NF = P.nf
    assert RUN[0] == 1 and NF <= 8
    e(HEADER.rstrip("\n"))
    e(f"; @launch grid=(256,1,1) block=(320,1,1) lds={LDS}")
    for ln in ABOUT.strip("\n").split("\n"):
        e("; " + ln)
    e('.amdgcn_target "amdgcn-amd-amdhsa--gfx950"')
    e(".text")
    e(f".globl {NAME}_kernel")
    e(".p2align 8")
    e(f".type {NAME}_kernel,@function")
    e(f"{NAME}_kernel:")
    e("  s_cmpk_ge_u32 s2, 0x100")
    e("  s_cbranch_scc1 L_end")
    if P.dly:
        e("; diagnostic build only: half of the dies start late")
        e(f"  s_getreg_b32 s4, hwreg(HW_REG_XCC_ID, {P.dlb}, 1)")
        e("  s_cmp_eq_u32 s4, 0")
        e("  s_cbranch_scc1 L_dly")
        e(f"  s_sleep {P.dly}")
        e("L_dly:")
    if P.stamp:
        e(f"  s_memrealtime s[{sST}:{sST + 1}]")
    e("  s_load_dwordx16 s[4:19], s[0:1], 0")
    e(f"  s_getpc_b64 s[{sZ}:{sZ + 1}]")
    e("L_pc:")
    e("  v_cmp_gt_u32 vcc, 64, v0")
    e(f"  v_lshlrev_b32 {vr(vT16)}, 4, v0")
    e(f"  s_lshr_b32 s{sK}, s2, 4")
    e(f"  s_lshl_b32 s{sF}, s2, 6")
    e(f"  s_add_u32 s{sF}, s{sF}, L_order-L_pc")
    e(f"  s_and_b32 s{sH}, s2, 7")
    e("  s_cbranch_vccz L_s0")
    e(f"  s_load_dwordx16 s[{sE}:{sE + 15}], s[{sZ}:{sZ + 1}], s{sF}")
    e(f"  v_lshl_add_u32 {vr(h0)}, s{sK}, 6, v0")
    e(f"  v_mul_u32_u24 {vr(h0)}, {P.tst}, {vr(h0)}")
    e(f"  global_load_dword {vr(h3)}, {vr(h0)}, s[{sZ}:{sZ + 1}] offset:{D_QCS - PC0}")
    e("  s_branch L_helper")
    e("L_s0:")
    e(f"  v_and_b32 {vr(vC16)}, 0xf0, {vr(vT16)}")
    e(f"  global_load_dwordx4 {vr(invX, 4)}, {vr(vC16)}, s[{sZ}:{sZ + 1}] offset:{D_INV - PC0}")
    e(f"  global_load_dwordx4 {vr(invY, 4)}, {vr(vC16)}, s[{sZ}:{sZ + 1}] offset:{D_INV + 256 - PC0}")
    e(f"  s_and_b32 s{sT1}, s{sK}, 8")
    e(f"  s_add_u32 s{sH}, s{sH}, s{sT1}")
    e(f"  s_and_b32 s{sT1}, s{sK}, 7")
    e(f"  s_lshl3_add_u32 s{sH}, s{sH}, s{sT1}")
    e(f"  s_lshl4_add_u32 s{sH}, s{sH}, 14")
    e(f"  s_mulk_i32 s{sH}, 21846")
    e(f"  s_lshr_b32 s{sC}, s{sH}, 16")
    e(f"  s_mul_i32 s{sT0}, s{sC}, {UB}")
    e(f"  s_and_b32 s{sT1}, s2, 8")
    e(f"  s_lshl_b32 s{sT1}, s{sT1}, 12")
    e(f"  s_add_u32 s{sT0}, s{sT0}, s{sT1}")
    e(f"  s_add_u32 s{sT0}, s{sT0}, {65536 * RUN[0] - 1024 + 4096}")
    e(f"  v_add_u32 {vr(tA)}, s{sT0}, {vr(vT16)}")
    for k in range(1, (NF + 1) // 2):
        e(f"  v_add_u32 {vr(tA + k)}, {8192 * k}, {vr(tA)}")
    e("  s_waitcnt lgkmcnt(0)")
    for n in range(NF):
        e(f"  global_load_dwordx4 {vr(ring + 4 * n, 4)}, {vr(tA + n // 2)}, s[{sQK}:{sQK + 1}] offset:{4096 * (n % 2) - 4096} nt")
    e("  s_branch L_s1")
    e("L_b0:")
    e(f".if (L_b0 - {NAME}_kernel > {D_INV}) || (L_pc - {NAME}_kernel != {PC0})")
    e('.error "entry block layout"')
    e(".endif")
    e(".p2align 8")
    e(".type L_inv,@object")
    e("L_inv:")
    tb = [f32bits(v) for v in rev_[:64] + rev_[64:] + rev_[64:]]
    for k in range(0, 128, 8):
        e("  .long " + ", ".join(f"{v:#x}" for v in tb[k:k + 8]))
    e(".type L_qcs,@object")
    e("L_qcs:")
    for k in range(0, 96, 8):
        e("  .long " + ", ".join(f"{v:#x}" for v in qcs[k:k + 8]))
    e(".type L_f0,@object")
    e("L_f0:")
    for k in range(0, 96, 8):
        e("  .long " + ", ".join(f"{f32bits(256 * v - round(256 * v)):#x}" for v in rev_[k:k + 8]))

    def common(ld_=True):
        if ld_:
            e(f"  s_load_dwordx8 s[24:31], s[0:1], 80")
        e(f"  v_mov_b32 {vr(vZ)}, 0")
        e(f"  s_mov_b32 s{sSP}, {P.bound}")
        e(f"  s_bfe_u32 s{sJ}, s2, 0x10003")

    PFR = [4, 8, 10, 14, 62, 72, 74, 76, 82, 86, 96, 98]
    pfn = [0]

    def pf():
        if P.tfine:
            e(f"  {'s_memtime' if 'm' in P.xp else 's_memrealtime'} s[{PFR[pfn[0]]}:{PFR[pfn[0]] + 1}]")
            pfn[0] += 1

    e("L_s1:")
    w_, s_, vAD, vC8, t0, t1 = wt, wt + 1, wt + 2, wt + 3, dacc, dacc + 1
    vRF, pos = vT16, tK + 3
    if P.trace:
        e(f"  v_mov_b32 {vr(vtr)}, 0")
        e("  s_mov_b32 m0, 0")
    pf()
    e("  v_subrev_u32 v0, 64, v0")
    e(f"  s_setprio {P.spr}")
    e(f"  s_load_dwordx8 s[16:23], s[{sZ}:{sZ + 1}], s{sF}")
    e(f"  s_add_u32 s{sF}, s{sF}, 32")
    e(f"  s_load_dwordx2 s[{sVO}:{sVO + 1}], s[{sZ}:{sZ + 1}], s{sF}")
    e(f"  s_movk_i32 s{sNEED}, 768")
    common()
    e(f"  v_lshrrev_b32 {vr(w_)}, 6, v0")
    e(f"  v_lshrrev_b32 {vr(s_)}, 4, v0")
    e(f"  v_and_b32 {vr(vC8)}, 0x70, {vr(vC16)}")
    e(f"  v_readfirstlane_b32 s{sW}, {vr(w_)}")
    e(f"  v_add_u32 {vr(vAD)}, {vr(vC8)}, {vr(s_)}")
    e(f"  s_mul_i32 s{sT0}, s{sJ}, 44")
    e(f"  s_sub_u32 s{sT0}, 86, s{sT0}")
    e(f"  v_cmp_eq_u32 vcc, s{sT0}, {vr(vAD)}")
    e(f"  v_mov_b32 {vr(t0)}, 0x80")
    e(f"  s_mov_b32 s{rA + 2}, {UB}")
    e(f"  v_cndmask_b32 {vr(vAD)}, {vr(vAD)}, {vr(t0)}, vcc")
    e(f"  v_mul_u32_u24 {vr(t0)}, 381, {vr(vAD)}")
    e(f"  s_mul_i32 s{sT0}, s{sJ}, 43")
    e(f"  v_add_u32 {vr(t0)}, 2, {vr(t0)}")
    e(f"  v_lshrrev_b32 {vr(t0)}, 14, {vr(t0)}")
    assert all((381 * i + 2) >> 14 == (i >= 43) + (i >= 86) for i in range(129))
    e(f"  v_mad_u32_u24 {vr(t0)}, {vr(t0)}, 42, {vr(vAD)}")
    e(f"  v_add_u32 {vr(t0)}, s{sT0}, {vr(t0)}")
    e(f"  v_cvt_f32_u32 {vr(vRF)}, {vr(t0)}")
    e(f"  v_mul_u32_u24 {vr(vAD)}, 384, {vr(vAD)}")
    e(f"  s_mov_b32 s{rA + 3}, 0x20000")
    srd_head(rA, sQK, sC)
    e(f"  s_lshl_b32 s{sT0}, s{sJ}, 15")
    e(f"  v_lshl_add_u32 {vr(voff + RUN.index(0))}, v0, 4, s{sT0}")
    for k in (1, 2):
        e(f"  v_add_u32 {vr(voff + RUN.index(k))}, {65536 * k:#x}, {vr(voff + RUN.index(0))}")
    for i in range(1, 8):
        e(f"  s_movk_i32 s{sOF + i}, {4096 * i}")
    nk = [NF]
    assert PRE <= RING and max(int(v) for v in P.kp_.split(",")[:P.su + 1]) <= min(SPECIAL)

    def k_loads(hi):
        while nk[0] < min(hi, PRE):
            ld(nk[0])
            nk[0] += 1

    def toff_(n):
        run = RUN[n >> 3]
        return 384 * (16 * (((n & 7) + run) // 3) + 38 * run)

    def setup():
        e("; per chunk class k: q operand, table and partial addresses")
        e(f"  s_lshl1_add_u32 s{sF}, s{sJ}, s{sW}")
        e(f"  s_lshl_b32 s{sF}, s{sF}, 1")
        e(f"  s_lshr_b32 s{sF}, 0x4924, s{sF}")
        e(f"  v_bfe_u32 {vr(t1)}, v0, 4, 2")
        e(f"  v_lshl_add_u32 {vr(t1)}, {vr(t1)}, 2, {vr(vC16)}")
        e(f"  v_mad_u32_u24 {vr(vF)}, {vr(w_)}, s{sNEED}, {vr(t1)}")
        e(f"  v_add_u32 {vr(vF)}, {PB - 3072}, {vr(vF)}")
        e(f"  s_mul_i32 s{sT1}, s{sJ}, {43 * 384}")
        e(f"  s_sub_u32 s{sT1}, {TB}, s{sT1}")
        e(f"  v_lshl_add_u32 {vr(vSum)}, s{sJ}, 7, {vr(s_)}")
        for k in range(3):
            e(f"  s_bfe_u32 s{sT0}, s{sF}, {(2 << 16) | 2 * k:#x}")
            e(f"  v_lshl_add_u32 {vr(vPA + k)}, s{sT0}, 8, {vr(vF)}")
            if k:
                e(f"  v_add_u32 {vr(vSum)}, 16, {vr(vSum)}")
            e(f"  v_mul_u32_u24 {vr(t0)}, 171, {vr(vSum)}")
            e(f"  v_lshrrev_b32 {vr(t0)}, 9, {vr(t0)}")
            e(f"  v_mad_i32_i24 {vr(t1)}, {vr(t0)}, -3, {vr(vSum)}")
            e(f"  v_lshl_add_u32 {vr(t1)}, {vr(t1)}, 8, {vr(vC16)}")
            e(f"  v_add_u32 {vr(vQA + k)}, {QB}, {vr(t1)}")
            e(f"  v_subrev_u32 {vr(vSu2)}, 384, {vr(t1)}")
            e(f"  v_min_u32 {vr(t1)}, {vr(t1)}, {vr(vSu2)}")
            e(f"  v_mul_u32_u24 {vr(t0)}, 384, {vr(t0)}")
            e(f"  v_add3_u32 {vr(vTA + k)}, {vr(t0)}, {vr(t1)}, s{sT1}")
        e(f"  v_lshl_add_u32 {vr(vSum)}, s{sJ}, 4, {vr(s_)}")
        for n, i in SPECIAL.items():
            run, sx = RUN[n >> 3], 15 * (n & 7 == 7)
            b = int(run == 0)
            g0, g1 = 256 * run + 128 * b + 16 * (n & 7) + sx, chunk_of(b, n, sx)
            dt = 384 * (tidx(b, g1 // 3) - (g0 // 3 - 43 * b - 42 * run))
            e(f"  v_cmp_eq_u32 vcc, {16 * b + sx}, {vr(vSum)}")
            e(f"  v_add_u32 {vr(t0)}, {256 * (g1 - g0) & 0xffffffff:#x}, {vr(voff + (n >> 3))}")
            e(f"  v_add_u32 {vr(t1)}, {toff_(n)}, {vr(vTA + TN[n])}")
            e(f"  v_add_u32 {vr(vSu2)}, {dt & 0xffffffff:#x}, {vr(t1)}")
            e(f"  v_cndmask_b32 {vr(voff + 3 + i)}, {vr(voff + (n >> 3))}, {vr(t0)}, vcc")
            e(f"  v_cndmask_b32 {vr(vTA + 3 + i)}, {vr(t1)}, {vr(vSu2)}, vcc")
        e(f"  v_lshlrev_b32 {vr(vLB)}, 2, v0")
        e(f"  v_add_u32 {vr(vLB)}, {LGB}, {vr(vLB)}")
        e(f"  v_lshrrev_b32 {vr(t1)}, 1, v0")
        e(f"  v_lshlrev_b32 {vr(t1)}, 2, {vr(t1)}")
        e(f"  v_add_u32 {vr(vLB + 1)}, {LGB + 1024}, {vr(t1)}")
        e(f"  v_subrev_u32 {vr(vLG)}, 1536, {vr(vLB)}")
        e(f"  v_subrev_u32 {vr(vLG + 1)}, 1536, {vr(vLB + 1)}")
        e(f"  v_lshlrev_b32 {vr(vPW)}, 2, {vr(w_)}")
        e(f"  s_mov_b32 s{sMSK}, 0xcccccccc")
        e(f"  s_mov_b32 s{sMSK + 1}, s{sMSK}")
        e(f"  s_mov_b32 s{sMSK + 2}, 0xaaaaaaaa")
        e(f"  s_mov_b32 s{sMSK + 3}, s{sMSK + 2}")
        e(f"  s_mov_b32 s{rB + 2}, {UB}")
        e(f"  s_mov_b32 s{rB + 3}, 0x20000")
        e(f"  s_mov_b32 s{sK}, 0")
        if P.ctl:
            e("; progress slots: this wave writes one byte of line (half, w) and samples the lines of the other half")
            die_base(sF)
            e(f"  s_add_u32 s{sT0}, s{sF}, 2048")
            e(f"  v_mov_b32 {vr(vBA)}, s{sT0}")
            e(f"  s_and_b32 s{sT1}, s{sSE}, 2")
            e(f"  s_lshl_b32 s{sT1}, s{sT1}, 9")
            e(f"  s_lshl_b32 s{sT0}, s{sW}, 8")
            e(f"  s_add_u32 s{sT0}, s{sT0}, s{sT1}")
            e(f"  s_add_u32 s{sT0}, s{sT0}, s{sF}")
            e(f"  s_add_u32 s{sT0}, s{sT0}, s{sCU}")
            e(f"  s_and_b32 s{sSE}, s{sSE}, 1")
            e(f"  s_lshl_b32 s{sSE}, s{sSE}, 4")
            e(f"  s_add_u32 s{sT0}, s{sT0}, s{sSE}")
            e(f"  v_mov_b32 {vr(vPS)}, s{sT0}")
            e(f"  s_xor_b32 s{sT1}, s{sT1}, 1024")
            e(f"  s_add_u32 s{sF}, s{sF}, s{sT1}")
            e(f"  v_and_b32 {vr(vN)}, 1, v0")
            e(f"  v_lshl_add_u32 {vr(vN)}, {vr(vN)}, 4, s{sF}")
            for k in range(4):
                e(f"  v_add_u32 {vr(vSum)}, {k}, {vr(w_)}")
                e(f"  v_and_b32 {vr(vSum)}, 3, {vr(vSum)}")
                e(f"  v_lshl_add_u32 {vr(vPL + k)}, {vr(vSum)}, 8, {vr(vN)}")
            e(f"  s_mov_b32 s{sLO}, {(-(LAG + 2) * 0x01010101) & 0xffffffff:#x}")
            for k in range(4 * LAG):
                e(f"  v_mov_b32 {vr(smp + k)}, 0")
            for k in range(2):
                e(f"  v_mov_b32 {vr(vBI + k)}, 0")
            e(f"  v_mov_b32 {vr(vN)}, 0")
            e(f"  s_mov_b32 s{sB}, 0")
            e(f"  s_mov_b32 s{sS}, {P.s0}")
            e(f"  s_mov_b32 s{sI}, 0")
            e(f"  s_mov_b32 s{sCO}, 0")

    def sincos(dst, iv):
        for h in (0, 2):
            e(f"  v_pk_mul_f32 {vr(tN + h, 2)}, {vr(iv + h, 2)}, {vr(tK + 2, 2)} op_sel:[0,1] op_sel_hi:[1,1]")
        for i in range(4):
            e(f"  v_cos_f32 {vr(tA + i)}, {vr(tN + i)}")
        for i in range(4):
            e(f"  v_sin_f32 {vr(tN + i)}, {vr(tN + i)}")
        for i in range(4):
            e(f"  v_cvt_pk_f16_f32 {vr(dst + i)}, {vr(tA + i)}, {vr(tN + i)}")

    kp = [int(v) for v in P.kp_.split(",")]

    def chunk(i):
        a = 2 * (i // 3)
        d = tO + 4 * (i & 1)
        bc_ = lambda x, m: f"row_newbcast:{x} row_mask:0xf bank_mask:{m:#x}"
        if i % 3 == 1:
            e(f"  v_mov_b32_dpp {vr(pos)}, {vr(vRF)} {bc_(a + 1, 12)}")
            e(f"  v_add_u32_dpp {vr(vF)}, {vr(vAD)}, {vr(vC8)} {bc_(a, 3)}")
            e(f"  v_add_u32_dpp {vr(vF)}, {vr(vAD)}, {vr(vC8)} {bc_(a + 1, 12)}")
            sincos(d, invY)
            e(f"  ds_write_b128 {vr(vF)}, {vr(d, 4)} offset:{TB + 256}")
        else:
            a += i % 3 // 2
            e(f"  v_mov_b32_dpp {vr(pos)}, {vr(vRF)} {bc_(a, 15)}")
            e(f"  v_add_u32_dpp {vr(vF)}, {vr(vAD)}, {vr(vC16)} {bc_(a, 15)}")
            sincos(d, invX)
            e(f"  ds_write_b128 {vr(vF)}, {vr(d, 4)} offset:{TB}")

    def tab_read(a):
        for n in range(3 * a, 3 * a + 3):
            d = tab + 12 * (a & 1) + 4 * (n % 3)
            if n in SPECIAL:
                e(f"  ds_read_b128 {vr(d, 4)}, {vr(vTA + 3 + SPECIAL[n])}")
            else:
                e(f"  ds_read_b128 {vr(d, 4)}, {vr(vTA + TN[n])} offset:{toff_(n)}")

    k_loads(kp[0])
    pf()
    e(f"  s_waitcnt vmcnt({nk[0]})")
    pf()
    for i in range(12):
        if i == P.su:
            setup()
            pf()
        chunk(i)
        k_loads(kp[i + 1])
        if i % 3 == 2:
            pf()
    k_loads(PRE)
    e(f"  v_mov_b32 {vr(bc)}, {f32bits(-7.5):#x}")
    e("  s_waitcnt lgkmcnt(0)")
    for k in range(8):
        e(f"  v_writelane_b32 {vr(vU)}, s{16 + k}, {k}")
    e("  s_barrier")
    pf()
    for k in range(3):
        e(f"  ds_read_b128 {vr(qa + 4 * k, 4)}, {vr(vQA + k)}")
    tab_read(0)
    e(f"  s_waitcnt vmcnt({PRE - ORD['K'][:ORD['K'].index('L')].count('b')})")
    pf()
    if P.tfine:
        e("  s_waitcnt lgkmcnt(0)")
        for k in range(pfn[0]):
            e(f"  v_writelane_b32 {vr(vtr)}, s{PFR[k]}, {k}")
        e(f"  s_mov_b32 m0, {pfn[0]}")

    def vfirst():
        e(f"  s_and_b32 s{sH}, s{sVO}, 15")
        e(f"  s_add_u32 s{sNEED}, s{sH}, 1")
        e(f"  ds_read_b32 {vr(vF)}, {vr(vZ)} offset:{FL + 20}")
        flagwait("a0", FL + 20)
        e(f"  s_mulk_i32 s{sH}, 1536")
        for k in range(2):
            e(f"  v_add_u32 {vr(vLV + k)}, s{sH}, {vr(vLB + k)}")
        e(f"  ds_read_b32 {vr(A)}, {vr(vLV)}")


    def knext():
        e("; next SRD: K slot k + 1, or the first V step once K runs out")
        e(f"  s_add_u32 s{sH}, s{sK}, 1")
        e(f"  s_sub_u32 s{sT1}, s{sH}, 16")
        vstep_k(sF, sT1)
        e(f"  s_cmp_lt_u32 s{sH}, 16")
        e(f"  s_cselect_b32 s{sH}, s{sH}, s{sF}")
        e(f"  s_cselect_b32 s{sX}, s{sQK}, s{sQV}")
        e(f"  s_cselect_b32 s{sX + 1}, s{sQK + 1}, s{sQV + 1}")
        head_of(sH, sH)
        srd_head(rB, sX, sH)

    def kred(n):
        dpp = lambda d, x, how, m: e(f"  v_add_f32_dpp {vr(d)}, {vr(x)}, {vr(x)} {how} row_mask:0xf bank_mask:{m:#x}")
        dpp(M1, dacc, "row_ror:8", 12 if n & 1 else 3)
        if n % 2 == 1:
            e("  s_nop 1")
            dpp(M2, M1, "row_half_mirror", 10 if n & 2 else 5)
        if n % 4 == 3:
            e("  s_nop 1")
            dpp(M2 if n & 4 else M3, M2, "quad_perm:[2,3,0,1]", 15)
        if n % 8 == 7:
            e(f"  v_cndmask_b32_e64 {vr(M3)}, {vr(M3)}, {vr(M2)}, s[{sMSK}:{sMSK + 1}]")
            e("  s_nop 1")
            dpp((LG, M3, LG + 1)[n >> 3], M3, "quad_perm:[1,0,3,2]", 15)
        if n == 15:
            e(f"  v_cndmask_b32_e64 {vr(LG)}, {vr(LG)}, {vr(M3)}, s[{sMSK + 2}:{sMSK + 3}]")

    e(".p2align 6")
    e("L_k:")

    def kbody(n):
        k_, q_ = ring + 4 * n, qa + 4 * TN[n]
        for i in range(4):
            e(f"  v_dot2_f32_f16 {vr(wt + i)}, {vr(tab + 12 * (n // 3 & 1) + 4 * (n % 3) + i)}, {vr(q_ + i)}, 0")
        for i in range(4):
            e(f"  v_cvt_f32_i32 {vr(k_ + i)}, {vr(k_ + i)}")
        if n >= 21:
            e(f"  ds_read_b128 {vr(q_, 4)}, {vr(vQA + TN[n])}")
        for h in range(2):
            e(f"  v_pk_add_f32 {vr(k_ + 2 * h, 2)}, {vr(k_ + 2 * h, 2)}, {vr(bc, 2)} op_sel_hi:[1,0]")
        e(f"  v_pk_mul_f32 {vr(dacc, 2)}, {vr(k_, 2)}, {vr(wt, 2)}")
        e(f"  v_pk_fma_f32 {vr(dacc, 2)}, {vr(k_ + 2, 2)}, {vr(wt + 2, 2)}, {vr(dacc, 2)}")
        e(f"  v_add_f32 {vr(dacc)}, {vr(dacc)}, {vr(dacc + 1)}")

    def kout():
        e(f"  v_mov_b32 {vr(vF)}, s{sK}")
        for k in range(2):
            e(f"  ds_write_b32 {vr(vLG + k)}, {vr(LG + k)}")
        e(f"  ds_write_b32 {vr(vPW)}, {vr(vF)} offset:{FL}")

    def group(ph, a, body, after, res):
        nb, pend = 3 * a, None
        od = ORD[ph]
        for i, c in enumerate(od):
            if pend is not None and c != "L":
                if od[i - 1] == "b":
                    e("  s_nop 1")
                after(pend)
                pend = None
            if c == "E":
                evaluate(ph, a)
                if od[i + 1] != "X":
                    decide(ph, a)
            if c == "X":
                exchange(a)
                if od[i - 1] == "E":
                    decide(ph, a)
            if c == "R" and a == 0:
                res()
            if c == "b":
                body(nb)
                pend = nb if after else None
                nb += 1
            if c == "L":
                issue(ph, a, i)
        if pend is not None:
            if od[-1] == "b":
                e("  s_nop 1")
            after(pend)

    for a in range(8):
        if a == 7:
            flagwait("qn", FL + 16)
        else:
            e("  s_waitcnt lgkmcnt(0)")
        tab_read((a + 1) % 8)
        if a == 6:
            e(f"  ds_read_b32 {vr(vF)}, {vr(vZ)} offset:{FL + 16}")
        group("K", a, kbody, kred, kout)
        if a == 1:
            knext()
        if a == 3:
            e(f"  s_add_u32 s{sT0}, s{sK}, 2")
            e(f"  s_min_u32 s{sNEED}, s{sT0}, 16")
            for k in range(3):
                e(f"  v_add_u32 {vr(vQA + k)}, 768, {vr(vQA + k)}")
            for k in range(2):
                e(f"  v_add_u32 {vr(vLG + k)}, 1536, {vr(vLG + k)}")
            e(f"  s_cmp_eq_u32 s{sK}, 15")
            e("  s_cbranch_scc1 L_kv")
            e("L_kw:")
        if a in (3, 7) or P.tfine:
            tr()
    assert sorted(TN[21:]) == [0, 1, 2] and TN[:3] == TN[3:6] and sorted(TN[:3]) == [0, 1, 2] and PRE <= 18
    e(f"  s_add_u32 s{sK}, s{sK}, 1")
    e(f"  s_mov_b64 s[{rA}:{rA + 1}], s[{rB}:{rB + 1}]")
    e(f"  s_cmp_lt_u32 s{sK}, 16")
    e("  s_cbranch_scc1 L_k")


    def vbody(n):
        v_ = ring + 4 * n
        e(f"  v_mov_b32_dpp {vr(bc)}, {vr(A + n // 16)} row_newbcast:{rev(n % 16, 4)} row_mask:0xf bank_mask:0xf")
        for i in range(4):
            e(f"  v_cvt_f32_i32 {vr(v_ + i)}, {vr(v_ + i)}")
        for h in range(2):
            d = 4 * TN[n] + 2 * h
            if n < 3:
                e(f"  v_pk_mul_f32 {vr(tmp + d, 2)}, {vr(v_ + 2 * h, 2)}, {vr(bc, 2)} op_sel_hi:[1,0]")
            else:
                e(f"  v_pk_fma_f32 {vr(acc + d, 2)}, {vr(v_ + 2 * h, 2)}, {vr(bc, 2)}, {vr((tmp if n < 6 else acc) + d, 2)} op_sel_hi:[1,0,1]")

    def vout(last=False):
        for j in range(3):
            e(f"  v_permlane32_swap_b32 {vr(acc + 4 * j)}, {vr(acc + 4 * j + 2)}")
            e(f"  v_permlane32_swap_b32 {vr(acc + 4 * j + 1)}, {vr(acc + 4 * j + 3)}")
        for j in range(3):
            e(f"  v_add_f32 {vr(acc + 4 * j)}, {vr(acc + 4 * j)}, {vr(acc + 4 * ((j + 1) % 3) + 2)}")
            e(f"  v_add_f32 {vr(acc + 4 * j + 1)}, {vr(acc + 4 * j + 1)}, {vr(acc + 4 * ((j + 1) % 3) + 3)}")
        for j in range(3):
            e(f"  v_permlane16_swap_b32 {vr(acc + 4 * j)}, {vr(acc + 4 * j + 1)}")
        for j in range(3):
            e(f"  v_add_f32 {vr(acc + 4 * j)}, {vr(acc + 4 * j)}, {vr(acc + 4 * ((j + 2) % 3) + 1)}")
        for j in range(3):
            e(f"  ds_write_b32 {vr(vPA + j)}, {vr(acc + 4 * j)}")
        if not last:
            e(f"  ds_write_b32 {vr(vPW)}, {vr(M1)} offset:{FL}")
            e("L_v0:")

    def vnext():
        e(f"  s_add_u32 s{sT1}, s{sK}, 1")
        e(f"  s_min_u32 s{sT1}, s{sT1}, 15")
        vstep_k(sH, sT1)
        e(f"  s_add_u32 s{sNEED}, s{sH}, 1")
        e(f"  s_mul_i32 s{sF}, s{sH}, 1536")
        head_of(sH, sH)
        srd_head(rB, sQV, sH)
        for k in range(2):
            e(f"  v_add_u32 {vr(vLV + k)}, s{sF}, {vr(vLB + k)}")

    NS, NT = (PRE - PD) // 3, 8 - PD // 3
    assert NS <= 1 and 4 <= NT <= 5 and (NS or P.ov[0] == "R") and max(P.mg, P.ml) <= 3 * NT
    e("L_vpre:")
    kout()
    e(f"  s_mov_b32 s{sK}, 0")
    e(f"  v_mov_b32 {vr(M1)}, 16")
    if NS:
        for n in range(3):
            e(f"  s_waitcnt vmcnt({plain[384 + n]})")
            vbody(n)
        e(f"  s_waitcnt vmcnt({plain[387]}) lgkmcnt(0)")
        e("  s_branch L_v1")
    else:
        e("  s_waitcnt lgkmcnt(3)")
        e("  s_branch L_v0")
    flush()
    e("L_kv:")
    vfirst()
    e("  s_branch L_kw")
    flush()
    e(".p2align 6")
    e("L_v:")
    for a in range(8):
        if a == 1:
            e("L_v1:")
            e(f"  ds_read_b32 {vr(A + 1)}, {vr(vLV + 1)}")
        if a == NT:
            e(f"  s_cmp_eq_u32 s{sK}, 15")
            e("  s_cbranch_scc1 L_vt")
        if a in (5, 7):
            e("  s_waitcnt lgkmcnt(0)")
        if a == 5:
            e(f"  ds_read_b32 {vr(vF)}, {vr(vZ)} offset:{FL + 20}")
        if a == 6:
            flagwait("an", FL + 20)
            e(f"  ds_read_b32 {vr(A)}, {vr(vLV)}")
        group("V", a, vbody, None, vout)
        if a == 1:
            vnext()
        if a == 3:
            e(f"  v_add_u32 {vr(M1)}, 1, {vr(M1)}")
            for j in range(3):
                e(f"  v_add_u32 {vr(vPA + j)}, 3072, {vr(vPA + j)}")
        if a in (3, 7):
            tr()
    e(f"  s_add_u32 s{sK}, s{sK}, 1")
    e(f"  s_mov_b64 s[{rA}:{rA + 1}], s[{rB}:{rB + 1}]")
    e("  s_branch L_v")
    flush()
    e("L_vt:")
    e("  s_waitcnt lgkmcnt(0)")
    for n in range(3 * NT, 24):
        e(f"  s_waitcnt vmcnt({plain[744 + n]})")
        vbody(n)
    tr()
    e("  s_nop 1")
    vout(True)
    e("  s_waitcnt lgkmcnt(0)")
    e("  s_barrier")
    if P.trace:
        e(f"  s_mul_i32 s8, s2, {5 * 256}")
        e("  s_add_u32 s8, s8, 0x100000")
        e(f"  v_lshl_add_u32 {vr(t0)}, v0, 2, s8")
        e(f"  global_store_dword {vr(t0)}, {vr(vtr)}, s[{sWS}:{sWS + 1}]")
    e("  s_endpgm")

    HP = [4, 6, 24, 8, 10, 36, 38, 72]
    ms = [m for m in range(P.r0, P.r1 + 1) if m < P.rf or m > P.rt or (m - P.r0) % P.rp == 0]
    gain = [(P.kp0 if m <= P.kn else P.kp) if m in ms else 0 for m in range(32)]
    if P.rk:
        gain = [int(c, 16) for c in P.rk]
        assert len(gain) == 32 and not any(gain[:P.r0]) and not gain[31]
    msk = sum(1 << m for m in range(32) if gain[m])

    def hp(k):
        if P.hprof:
            e(f"  s_memrealtime s[{HP[k]}:{HP[k] + 1}]")

    def progwait(name, slp, off=FL):
        e(f"L_{name}:")
        e(f"  ds_read_b128 {vr(pr, 4)}, {vr(vZ)} offset:{off}")
        e("  s_waitcnt lgkmcnt(0)")
        e(f"  v_min_u32 {vr(pr)}, {vr(pr)}, {vr(pr + 1)}")
        e(f"  v_min3_u32 {vr(pr)}, {vr(pr)}, {vr(pr + 2)}, {vr(pr + 3)}")
        e("  s_nop 0")
        e(f"  v_readfirstlane_b32 s{sF}, {vr(pr)}")
        e(f"  s_cmp_ge_u32 s{sF}, s{sNEED}")
        e(f"  s_cbranch_scc1 L_{name}_ok")
        budget(f"L_{name}_ok")
        if slp:
            e(f"  s_sleep {slp}")
        e(f"  s_branch L_{name}")
        e(f"L_{name}_ok:")

    def rowred(op, v):
        for n in (8, 4, 2, 1):
            e("  s_nop 1")
            e(f"  {op}_dpp {vr(v)}, {vr(v)}, {vr(v)} row_ror:{n} row_mask:0xf bank_mask:0xf")

    def allred(op, v, t):
        rowred(op, v)
        for sw in ("v_permlane16_swap_b32", "v_permlane32_swap_b32"):
            e(f"  v_mov_b32 {vr(t)}, {vr(v)}")
            e("  s_nop 1")
            e(f"  {sw} {vr(v)}, {vr(t)}")
            e(f"  {op} {vr(v)}, {vr(v)}, {vr(t)}")

    def sum_partials(nq):
        w = 4 * nq
        for k in range(4):
            for q in range(nq):
                e(f"  ds_read_b128 {vr(x + w * k + 4 * q, 4)}, {vr(h0)} offset:{768 * k + 16 * q}")
        e(f"  ds_read_b128 {vr(z4, 4)}, {vr(h1)} offset:{ST}")
        e("  s_waitcnt lgkmcnt(0)")
        for h in range(0, w, 2):
            e(f"  v_pk_add_f32 {vr(x + h, 2)}, {vr(x + h, 2)}, {vr(x + w + h, 2)}")
            e(f"  v_pk_add_f32 {vr(x + 2 * w + h, 2)}, {vr(x + 2 * w + h, 2)}, {vr(x + 3 * w + h, 2)}")
        for h in range(0, w, 2):
            e(f"  v_pk_add_f32 {vr(x + h, 2)}, {vr(x + h, 2)}, {vr(x + 2 * w + h, 2)}")
        for h in range(0, w, 2):
            e(f"  v_pk_add_f32 {vr(x + h, 2)}, {vr(x + h, 2)}, {vr(z4 + 2, 2)} op_sel_hi:[1,0] neg_lo:[0,1] neg_hi:[0,1]")

    def mark(tag):
        if P.sd:
            e("  s_memrealtime s[72:73]")
            e("  s_waitcnt lgkmcnt(0)")
            e("  s_sub_u32 s75, s72, s74")
            e("  s_mov_b32 s74, s72")
            e(f"  s_add_u32 s72, s{sNEED}, {64 - P.sd}")
            e("  s_and_b32 s73, s72, 1")
            e("  s_lshl_b32 s73, s73, 4")
            e("  s_min_u32 s75, s75, 510")
            e("  s_lshl_b32 s75, s75, s73")
            e("  s_lshr_b32 m0, s72, 1")
            e(f"  v_readlane_b32 s73, {vr(vCL)}, m0")
            e("  s_add_u32 s73, s73, s75")
            e(f"  v_writelane_b32 {vr(vCL)}, s73, m0")
        if not P.enc:
            return
        for k, m in enumerate(P.enc.split(",")[:2]):
            e(f"  s_cmp_eq_u32 s{sNEED}, {m}")
            e(f"  s_cbranch_scc0 L_mk{tag}{k}")
            e(f"  s_memrealtime s[{72 + 2 * k}:{73 + 2 * k}]")
            e(f"L_mk{tag}{k}:")

    def warm(tag):
        if not P.tw:
            return
        tm = sum(1 << int(v) for v in P.tm.split(","))
        if P.ts:
            e(f"  s_bfe_u32 s{sT0}, s2, {P.ts << 16 | 4:#x}")
            e(f"  s_add_u32 s{sX}, s{sNEED}, s{sT0}")
            e(f"  s_add_u32 s{sX}, s{sX}, {P.tw}")
        else:
            e(f"  s_add_u32 s{sX}, s{sNEED}, {P.tw}")
        e(f"  s_min_u32 s{sX}, s{sX}, 31")
        e(f"  s_cmp_eq_u32 s{sJ}, 0")
        e(f"  s_cselect_b32 s{sT0}, {tm:#x}, 0")
        e(f"  s_bitcmp1_b32 s{sT0}, s{sX}")
        e(f"  s_cbranch_scc0 L_tw{tag}")
        e(f"  s_sub_u32 s{sT1}, s{sX}, 16")
        vstep_k(sF, sT1)
        e(f"  s_cmp_lt_u32 s{sX}, 16")
        e(f"  s_cselect_b32 s{sF}, s{sX}, s{sF}")
        e(f"  s_cselect_b32 s{rB}, s{sQK}, s{sQV}")
        e(f"  s_cselect_b32 s{rB + 1}, s{sQK + 1}, s{sQV + 1}")
        head_of(sF, sF, hU)
        e(f"  s_mul_i32 s{sF}, s{sF}, {UB}")
        e(f"  s_add_u32 s{sF}, s{sF}, {65536 * RUN[0]}")
        if P.tv:
            e(f"  v_mov_b32 {vr(vFX)}, s{sF}")
            e("  s_mov_b64 exec, 1")
            e(f"  global_load_dword {vr(vFX)}, {vr(vFX)}, s[{rB}:{rB + 1}] nt")
            e("  s_mov_b64 exec, -1")
            e("  s_waitcnt vmcnt(0)")
        else:
            e(f"  s_load_dword s{sF}, s[{rB}:{rB + 1}], s{sF} {P.tg}")
            e("  s_waitcnt lgkmcnt(0)")
        e(f"L_tw{tag}:")

    def rank_post(tag):
        if not P.ctl:
            return
        e(f"  s_bitcmp1_b32 s{sRF}, s{sNEED}")
        e(f"  s_cbranch_scc0 L_fa{tag}")
        e(f"  s_mul_i32 s{sT0}, s{sNEED}, 384")
        e(f"  s_add_u32 s{sT0}, s{sT0}, {W_RK}")
        e(f"  s_mov_b32 s{sB}, 1")
        e(f"  s_atomic_add s{sB}, s[{sWS}:{sWS + 1}], s{sT0} glc")
        e(f"L_fa{tag}:")

    def rank_take(tag):
        if not P.ctl:
            return
        e(f"  s_bitcmp1_b32 s{sRF}, s{sNEED}")
        e(f"  s_cbranch_scc0 L_fb{tag}")
        e("  s_waitcnt lgkmcnt(0)")
        e(f"  s_min_u32 s{sF}, s{sB}, 15")
        e(f"  s_lshl_b32 s{sF}, s{sF}, 1")
        e(f"  s_sub_u32 s{sF}, s{sF}, 15")
        gs = sorted(set(gain) - {0})
        e(f"  s_mov_b32 s{sT0}, {gs[0]}")
        for g_ in gs[1:]:
            e(f"  s_bitcmp1_b32 {sum(1 << m for m in range(32) if gain[m] == g_):#x}, s{sNEED}")
            e(f"  s_cselect_b32 s{sT0}, {g_}, s{sT0}")
        e(f"  s_mul_i32 s{sF}, s{sF}, s{sT0}")
        e(f"  s_add_u32 s{sF}, s{sF}, 8")
        e(f"  s_ashr_i32 s{sF}, s{sF}, 4")
        e(f"  v_mov_b32 {vr(vFX)}, s{sF}")
        e("  s_mov_b64 exec, 1")
        e(f"  global_store_dword {vr(vFB)}, {vr(vFX)}, s[{sWS}:{sWS + 1}]")
        e("  s_mov_b64 exec, -1")
        e(f"L_fb{tag}:")

    HPF = [10, 16, 18, 20, 22, 72, 74, 76, 82, 96]
    hpn = [0]

    def hpf():
        if P.tfine:
            e(f"  s_memrealtime s[{HPF[hpn[0]]}:{HPF[hpn[0]] + 1}]")
            hpn[0] += 1

    e("L_helper:")
    e(f"  s_setprio {P.hp0}")
    hv = []

    def qmask(on):
        if on:
            e("  s_mov_b32 exec_lo, 0xffffff")
            e("  s_mov_b32 exec_hi, 0xffffff")
        else:
            e("  s_mov_b64 exec, -1")

    if P.st:
        e("; start the address translation of the small arrays right away")
        e("  s_waitcnt lgkmcnt(0)")
        e(f"  s_load_dwordx8 s[24:31], s[0:1], 80")
        for k, sp in enumerate((sQ, sKS, sVS)):
            e(f"  s_load_dword s{rA + k}, s[{sp}:{sp + 1}], 0")
    e(f"  v_and_b32 {vr(vL16)}, 0x1f0, {vr(vT16)}")
    e(f"  global_load_dwordx4 {vr(pr, 4)}, {vr(vL16)}, s[{sZ}:{sZ + 1}] offset:{D_QCS - PC0}")
    e(f"  global_load_dwordx4 {vr(f0, 4)}, {vr(vL16)}, s[{sZ}:{sZ + 1}] offset:{D_F0 - PC0}")
    e(f"  v_and_b32 {vr(vSh)}, 32, v0")
    e(f"  v_lshrrev_b32 {vr(vSh)}, 1, {vr(vSh)}")
    e(f"  v_lshrrev_b32 {vr(h1)}, 1, {vr(vL16)}")
    e(f"  s_movk_i32 s{sT1}, 384")
    if not P.st:
        e("  s_waitcnt lgkmcnt(0)")
    hpf()
    for p in range(2):
        e(f"  v_lshrrev_b32 {vr(hq + p)}, {vr(vSh)}, s{sE + 10 + p}")
        e(f"  v_and_b32 {vr(h0)}, 0xff, {vr(hq + p)}")
        e(f"  v_mad_u32_u24 {vr(ra + p)}, {vr(h0)}, s{sT1}, {vr(h1)}")
    qmask(1)
    for p in range(2):
        e(f"  global_load_dwordx2 {vr(rec + 4 * p, 2)}, {vr(ra + p)}, s[{sQ}:{sQ + 1}]")
        e(f"  global_load_dwordx2 {vr(rec + 4 * p + 2, 2)}, {vr(ra + p)}, s[{sQ}:{sQ + 1}] offset:192")
        hv.extend([("q", p)] * 2)
    qmask(0)
    hpf()
    common(not P.st)
    e(f"  s_lshl_b32 s{sT0}, s{sJ}, 10")
    e(f"  s_add_u32 s{sT0}, s{sT0}, L_hpos-L_pc")
    e(f"  v_add_u32 {vr(h0)}, s{sT0}, {vr(vT16)}")
    e(f"  global_load_dwordx4 {vr(st4, 4)}, {vr(h0)}, s[{sZ}:{sZ + 1}]")
    hv.append(("h", 0))
    e(f"  s_mov_b64 s[{sVO}:{sVO + 1}], s[{sE + 8}:{sE + 9}]")
    e(f"  v_mov_b32 {vr(l)}, v0")
    for i in range(4):
        e(f"  v_mov_b32 {vr(z4 + i)}, 0")
    for k in range(4):
        e(f"  ds_write_b128 {vr(vZ)}, {vr(z4, 4)} offset:{FL + 16 * k}")
    e(f"  s_mov_b32 s{sMASK}, 0xffff0000")
    e(f"  s_mov_b32 s{sSCALE}, {f32bits(math.log2(math.e) / math.sqrt(192.0)):#x}")
    e(f"  s_movk_i32 s{sC}, 784")
    e(f"  v_mad_u32_u24 {vr(wa)}, {vr(vSh)}, 48, {vr(vL16)}")
    e(f"  v_lshrrev_b32 {vr(vSq)}, 1, {vr(vSh)}")
    for p in range(8):
        e(f"  v_lshrrev_b32 {vr(ra + p)}, {vr(vSh)}, s{sE + p}")
    e("  s_waitcnt lgkmcnt(0)")
    hpf()
    if P.ctl:
        die_base(sF)
        e(f"  v_lshrrev_b32 {vr(h0)}, 1, {vr(l)}")
        e(f"  v_lshl_add_u32 {vr(vFX)}, {vr(h0)}, 8, s{sF}")
        e(f"  v_and_b32 {vr(h0)}, 1, {vr(l)}")
        e(f"  v_lshl_add_u32 {vr(vFX)}, {vr(h0)}, 4, {vr(vFX)}")
        e(f"  s_and_b32 s{sT1}, s{sSE}, 2")
        e(f"  s_lshl_b32 s{sT0}, s{sT1}, 9")
        e(f"  s_add_u32 s{sT0}, s{sT0}, s{sF}")
        e(f"  v_add_u32 {vr(vEL)}, s{sT0}, {vr(l)}")
        e(f"  s_lshl_b32 s{sT1}, s{sT1}, 1")
        e(f"  s_add_u32 s{sF}, s{sF}, s{sT1}")
        e(f"  s_add_u32 s{sF}, s{sF}, 2048")
        e(f"  v_mov_b32 {vr(vFB)}, s{sF}")
        e(f"  v_mul_u32_u24 {vr(vFA)}, 384, {vr(l)}")
        e(f"  v_add_u32 {vr(vFA)}, {W_RK}, {vr(vFA)}")
        e(f"  s_mov_b32 s{sRF}, 0")
        e("  s_mov_b64 exec, 0x3ffff")
        e(f"  global_store_dwordx4 {vr(vFX)}, {vr(z4, 4)}, s[{sWS}:{sWS + 1}]")
        e("  s_mov_b64 exec, -1")
    e(f"  s_waitcnt vmcnt({len(hv)})")
    for k in range(4):
        e(f"  v_lshlrev_b32 {vr(cs + k)}, 16, {vr(pr + k)}")
        e(f"  v_and_b32 {vr(cs + 4 + k)}, s{sMASK}, {vr(pr + k)}")

    def elect():
        if not P.ctl:
            return
        e(f"  s_cmp_eq_u32 s{sNEED}, {P.r0 - 1}")
        e("  s_cbranch_scc0 L_el")
        e(f"  s_bitcmp0_b32 s{sSE}, 0")
        e("  s_cbranch_scc0 L_el")
        e("  s_mov_b64 exec, 0xffff")
        e(f"  global_load_ubyte {vr(vFX)}, {vr(vEL)}, s[{sWS}:{sWS + 1}] sc1")
        e("  s_waitcnt vmcnt(0)")
        e(f"  v_cmp_ne_u32 s[{sZ}:{sZ + 1}], 0, {vr(vFX)}")
        e(f"  s_lshr_b32 s{sT0}, s{sZ}, s{sCU}")
        e(f"  s_bcnt1_i32_b32 s{sT0}, s{sT0}")
        pat = sum(1 << m for m in range(0, 32, P.rotl))
        e(f"  s_sub_u32 s{sT1}, s{sT0}, 1")
        e(f"  s_cmp_lt_u32 s{sT1}, {P.rotl}")
        e("  s_cbranch_scc0 L_el")
        e(f"  s_lshl_b32 s{sRF}, {pat:#x}, s{sT1}")
        e(f"  s_and_b32 s{sRF}, s{sRF}, {msk:#x}")
        e("L_el:")
        e("  s_mov_b64 exec, -1")

    def roleaddr(src):
        e(f"  v_bfe_u32 {vr(wb)}, {vr(src)}, 12, 2")
        e(f"  v_mul_u32_u24 {vr(h1)}, s{sC}, {vr(wb)}")
        e(f"  v_add_u32 {vr(h1)}, {QR}, {vr(h1)}")
        e(f"  v_add_u32 {vr(h0)}, {vr(h1)}, {vr(vL16)}")

    def rotate(p):
        L, Hh, LC, HS, HC, LS = x, x + 4, x + 8, x + 12, x + 16, x + 20
        roleaddr(hq + p)
        e(f"  v_mov_b32 {vr(h2)}, 0")
        qmask(1)
        if p == 0:
            hpf()
        e(f"  s_waitcnt vmcnt({hv[::-1].index(('q', p))})")
        if p == 0:
            hpf()
        for k in range(4):
            e(f"  v_lshlrev_b32 {vr(L + 2 * k)}, 16, {vr(rec + 4 * p + k)}")
            e(f"  v_and_b32 {vr(L + 2 * k + 1)}, s{sMASK}, {vr(rec + 4 * p + k)}")
        for d, q_, t_ in ((LC, L, cs), (HS, Hh, cs + 4), (HC, Hh, cs), (LS, L, cs + 4)):
            for h in (0, 2):
                e(f"  v_pk_mul_f32 {vr(d + h, 2)}, {vr(q_ + h, 2)}, {vr(t_ + h, 2)}")
        for i in range(4):
            e(f"  v_cvt_pk_bf16_f32 {vr(L + i)}, {vr(LC + i)}, {vr(HS + i)}")
            e(f"  v_cvt_pk_bf16_f32 {vr(Hh + i)}, {vr(HC + i)}, {vr(LS + i)}")
        for k in range(8):
            e(f"  v_lshlrev_b32 {vr(LC + k)}, 16, {vr(L + k)}")
            e(f"  v_and_b32 {vr(L + k)}, s{sMASK}, {vr(L + k)}")
        for h in (0, 2):
            e(f"  v_pk_add_f32 {vr(L + h, 2)}, {vr(LC + h, 2)}, {vr(L + h, 2)} neg_lo:[0,1] neg_hi:[0,1]")
            e(f"  v_pk_add_f32 {vr(Hh + h, 2)}, {vr(HS + h, 2)}, {vr(Hh + h, 2)}")
        for i in range(4):
            e(f"  v_cvt_pk_bf16_f32 {vr(Hh + i)}, {vr(L + i)}, {vr(Hh + i)}")
        for i in range(4):
            e(f"  v_lshlrev_b32 {vr(L + i)}, 16, {vr(Hh + i)}")
            e(f"  v_and_b32 {vr(Hh + i)}, s{sMASK}, {vr(Hh + i)}")
        for i in range(4):
            e(f"  v_max3_f32 {vr(h2)}, |{vr(L + i)}|, |{vr(Hh + i)}|, {vr(h2)}")
        qmask(0)
        rowred("v_max_f32", h2)
        e(f"  v_mov_b32 {vr(h3)}, {vr(h2)}")
        e("  s_nop 1")
        e(f"  v_permlane16_swap_b32 {vr(h2)}, {vr(h3)}")
        e(f"  v_max_f32 {vr(h2)}, {vr(h2)}, {vr(h3)}")
        e(f"  v_frexp_exp_i32_f32 {vr(h2)}, {vr(h2)}")
        e(f"  v_sub_u32 {vr(h3)}, 13, {vr(h2)}")
        e(f"  v_subrev_u32 {vr(h2)}, 13, {vr(h2)}")
        for i in range(8):
            e(f"  v_ldexp_f32 {vr(L + i)}, {vr(L + i)}, {vr(h3)}")
        e(f"  v_ldexp_f32 {vr(h2)}, s{sSCALE}, {vr(h2)}")
        qmask(1)
        e(f"  ds_write_b128 {vr(h0)}, {vr(L, 4)}")
        e(f"  ds_write_b128 {vr(h0)}, {vr(Hh, 4)} offset:384")
        e(f"  ds_write_b32 {vr(h1)}, {vr(h2)} offset:768")
        qmask(0)

    cu, su = x + 24, x + 28

    def angle(p):
        e(f"  v_and_b32 {vr(qn)}, 7, {vr(ra + p)}")
        e(f"  v_cvt_f32_u32 {vr(qn)}, {vr(qn)}")
        for h in (0, 2):
            e(f"  v_pk_mul_f32 {vr(su + h, 2)}, {vr(f0 + h, 2)}, {vr(qn, 2)} op_sel_hi:[1,0]")
        for i in range(4):
            e(f"  v_cos_f32 {vr(cu + i)}, {vr(su + i)}")
        for i in range(4):
            e(f"  v_sin_f32 {vr(su + i)}, {vr(su + i)}")

    def item(p):
        a_, b_, a2, b2 = x, x + 4, x + 8, x + 12
        roleaddr(ra + p)
        qmask(1)
        e(f"  ds_read_b128 {vr(a_, 4)}, {vr(h0)}")
        e(f"  ds_read_b128 {vr(b_, 4)}, {vr(h0)} offset:384")
        e(f"  ds_read_b32 {vr(qn + 2)}, {vr(h1)} offset:768")
        if p:
            angle(p)
        e(f"  v_mov_b32 {vr(qn + 3)}, {vr(wb)}")
        e(f"  v_mov_b32 {vr(h0)}, {2 * p + 2}")
        e("  s_waitcnt lgkmcnt(0)")
        for h in (0, 2):
            e(f"  v_pk_mul_f32 {vr(a2 + h, 2)}, {vr(a_ + h, 2)}, {vr(cu + h, 2)}")
            e(f"  v_pk_mul_f32 {vr(b2 + h, 2)}, {vr(b_ + h, 2)}, {vr(cu + h, 2)}")
        for h in (0, 2):
            e(f"  v_pk_fma_f32 {vr(a2 + h, 2)}, {vr(b_ + h, 2)}, {vr(su + h, 2)}, {vr(a2 + h, 2)}")
            e(f"  v_pk_fma_f32 {vr(b2 + h, 2)}, {vr(a_ + h, 2)}, {vr(su + h, 2)}, {vr(b2 + h, 2)} neg_lo:[1,0,0] neg_hi:[1,0,0]")
        for i in range(4):
            e(f"  v_cvt_pk_f16_f32 {vr(a_ + i)}, {vr(a2 + i)}, {vr(b2 + i)}")
            e(f"  v_cvt_pk_f16_f32 {vr(b_ + i)}, {vr(b2 + i)}, -{vr(a2 + i)}")
        e(f"  ds_write_b128 {vr(wa)}, {vr(a_, 4)} offset:{QB + 1536 * p}")
        e(f"  ds_write_b128 {vr(wa)}, {vr(b_, 4)} offset:{QB + 1536 * p + 384}")
        e(f"  ds_write_b64 {vr(vSq)}, {vr(qn + 2, 2)} offset:{QS + 16 * p}")
        e(f"  ds_write_b32 {vr(vZ)}, {vr(h0)} offset:{FL + 16}")
        qmask(0)

    angle(0)
    rotate(0)
    item(0)
    hpf()
    e("  s_waitcnt lgkmcnt(0)")
    e("  s_setprio 0")
    hpf()
    e("  s_barrier")
    hpf()
    for p in range(8):
        e(f"  v_and_b32 {vr(h0)}, 0x7ff, {vr(ra + p)}")
        e(f"  v_lshl_add_u32 {vr(h0)}, {vr(h0)}, 9, {vr(vL16)}")
        for i, sp in enumerate((sKS, sVS)):
            e(f"  s_mov_b32 m0, {SCB + SA * i + 1024 * p}")
            e("  s_nop 0")
            e(f"  global_load_lds_dwordx4 {vr(h0)}, s[{sp}:{sp + 1}] nt")
            hv.append(("s", p))
    rotate(1)
    for p in range(1, 8):
        item(p)
    if P.tw:
        for k in range(8):
            e(f"  v_writelane_b32 {vr(hU)}, s{sE + k}, {k}")
    e(f"  v_mov_b32 {vr(vSa)}, 0")
    e(f"  v_mov_b32 {vr(vSq)}, 0")
    e(f"  v_min_u32 {vr(u)}, 47, {vr(l)}")
    e(f"  v_lshlrev_b32 {vr(vL16)}, 4, {vr(u)}")
    for i in range(4):
        e(f"  v_mov_b32 {vr(sc + i)}, 0")
    e(f"  s_mov_b32 s{sNEED}, 1")
    e("  s_cmp_eq_u32 s2, 0")
    e("  s_cbranch_scc0 L_rc")
    e(f"  v_mov_b32 {vr(h0)}, {W_REC + 384 + 4}")
    e(f"  global_load_dword {vr(h1)}, {vr(h0)}, s[{sWS}:{sWS + 1}] sc1")
    if P.ctl:
        e(f"  s_mov_b64 exec, {msk:#x}")
        e(f"  global_store_dword {vr(vFA)}, {vr(vZ)}, s[{sWS}:{sWS + 1}] sc1")
    e("  s_mov_b64 exec, 1")
    e("  s_waitcnt vmcnt(0)")
    e(f"  v_and_b32 {vr(qn)}, 0x77777777, {vr(h1)}")
    e(f"  v_and_b32 {vr(h1)}, 0x88888888, {vr(h1)}")
    e(f"  v_add_u32 {vr(qn)}, 0x11111111, {vr(qn)}")
    e(f"  v_xor_b32 {vr(qn)}, {vr(qn)}, {vr(h1)}")
    e(f"  v_mov_b32 {vr(qn + 1)}, 1")
    e(f"  global_store_dwordx2 {vr(vZ)}, {vr(qn, 2)}, s[{sDBG}:{sDBG + 1}] sc1")
    e("  s_mov_b64 exec, -1")
    e("L_rc:")
    hpf()
    e("  s_waitcnt vmcnt(0)")
    hpf()
    if P.tfine:
        e("  s_waitcnt lgkmcnt(0)")
        e(f"  v_mov_b32 {vr(h0)}, 0")
        for k in range(hpn[0]):
            e(f"  v_writelane_b32 {vr(h0)}, s{HPF[k]}, {k}")
        e(f"  s_mul_i32 s{sT0}, s2, {5 * 256}")
        e(f"  s_add_u32 s{sT0}, s{sT0}, {0x100000 + 1024}")
        e(f"  v_lshl_add_u32 {vr(h1)}, v0, 2, s{sT0}")
        e(f"  global_store_dword {vr(h1)}, {vr(h0)}, s[{sWS}:{sWS + 1}]")
    for k in range(4):
        e(f"  v_and_b32 {vr(ro + 2 * k)}, 0xffff, {vr(st4 + k)}")
        e(f"  v_lshrrev_b32 {vr(ro + 2 * k + 1)}, 16, {vr(st4 + k)}")
    for k in range(2):
        e(f"  v_add_u32 {vr(ro + 6 + k)}, {SCB}, {vr(ro + 6 + k)}")
    if P.sd:
        e(f"  v_mov_b32 {vr(vCL)}, 0")
    e("L_hk:")
    for a in range(2):
        for k in range(2):
            e(f"  ds_read_u16_d16_hi {vr(sc + 2 * a + k)}, {vr(ro + 6 + k)} offset:{SA * a}")
    e(f"  ds_read_b64 {vr(z4 + 2, 2)}, {vr(vSq)} offset:{QS}")
    e(f"  v_add_u32 {vr(vSq)}, 8, {vr(vSq)}")
    progwait("hsw", P.psk)
    mark("s")
    rank_post("s")
    for k in range(6):
        e(f"  ds_read_b32 {vr(x + 4 + k)}, {vr(ro + k)} offset:{LGB}")
    e(f"  v_mul_f32 {vr(x + 2)}, {vr(z4 + 2)}, {vr(sc)}")
    e(f"  v_mul_f32 {vr(x + 3)}, {vr(z4 + 2)}, {vr(sc + 1)}")
    e("  s_waitcnt lgkmcnt(0)")
    e(f"  v_pk_add_f32 {vr(x, 2)}, {vr(x + 4, 2)}, {vr(x + 6, 2)}")
    e(f"  v_pk_add_f32 {vr(x, 2)}, {vr(x, 2)}, {vr(x + 8, 2)}")
    e(f"  v_mul_f32 {vr(x)}, {vr(x)}, {vr(x + 2)}")
    e(f"  v_mul_f32 {vr(x + 1)}, {vr(x + 1)}, {vr(x + 3)}")
    e(f"  v_max_f32 {vr(z4)}, {vr(x)}, {vr(x + 1)}")
    allred("v_max_f32", z4, h0)
    e(f"  v_sub_f32 {vr(x)}, {vr(x)}, {vr(z4)}")
    e(f"  v_sub_f32 {vr(x + 1)}, {vr(x + 1)}, {vr(z4)}")
    e(f"  v_exp_f32 {vr(x)}, {vr(x)}")
    e(f"  v_exp_f32 {vr(x + 1)}, {vr(x + 1)}")
    e("  s_nop 0")
    e(f"  v_add_f32 {vr(z4 + 1)}, {vr(x)}, {vr(x + 1)}")
    e(f"  v_mul_f32 {vr(x)}, {vr(x)}, {vr(sc + 2)}")
    e(f"  v_mul_f32 {vr(x + 1)}, {vr(x + 1)}, {vr(sc + 3)}")
    e(f"  v_add_f32 {vr(z4 + 2)}, {vr(x)}, {vr(x + 1)}")
    for k in range(6):
        e(f"  ds_write_b32 {vr(ro + k)}, {vr(x + (k & 1))} offset:{LGB}")
    e(f"  v_mul_f32 {vr(z4 + 2)}, {f32bits(7.5):#x}, {vr(z4 + 2)}")
    allred("v_add_f32", z4 + 1, h0)
    allred("v_add_f32", z4 + 2, h0)
    e(f"  v_mov_b32 {vr(h0)}, s{sNEED}")
    e(f"  ds_write_b128 {vr(vSa)}, {vr(z4, 4)} offset:{ST}")
    e(f"  ds_write_b32 {vr(vZ)}, {vr(h0)} offset:{FL + 20}")
    e(f"  v_add_u32 {vr(vSa)}, 16, {vr(vSa)}")
    for k in range(8):
        e(f"  v_add_u32 {vr(ro + k)}, {1536 if k < 6 else SL}, {vr(ro + k)}")
    rank_take("s")
    warm("s")
    elect()
    e("  s_waitcnt lgkmcnt(0)")
    e(f"  s_add_u32 s{sNEED}, s{sNEED}, 1")
    e(f"  s_cmp_le_u32 s{sNEED}, 16")
    e("  s_cbranch_scc1 L_hk")

    e(f"  v_and_b32 {vr(h0)}, 15, {vr(l)}")
    e(f"  v_lshlrev_b32 {vr(h0)}, 4, {vr(h0)}")
    e(f"  ds_read_b128 {vr(z4, 4)}, {vr(h0)} offset:{ST}")
    e(f"  v_lshrrev_b32 {vr(h1)}, 4, {vr(l)}")
    e(f"  v_mov_b32 {vr(h2)}, 0xff800000")
    for i in range(16):
        e(f"  v_mov_b32 {vr(AC + i)}, 0")
    e("  s_waitcnt lgkmcnt(0)")
    e(f"  v_cmp_eq_u32 vcc, {vr(h1)}, {vr(z4 + 3)}")
    e(f"  v_add_u32 {vr(h0)}, {PB}, {vr(vL16)}")
    e(f"  v_lshrrev_b32 {vr(u)}, 1, {vr(vL16)}")
    e(f"  v_cndmask_b32 {vr(vM)}, {vr(h2)}, {vr(z4)}, vcc")
    rowred("v_max_f32", vM)
    e(f"  v_sub_f32 {vr(vFc)}, {vr(z4)}, {vr(vM)}")
    e(f"  v_exp_f32 {vr(vFc)}, {vr(vFc)}")
    e(f"  s_mov_b32 s{sK}, 0")
    e(f"  v_cndmask_b32 {vr(vFc)}, 0, {vr(vFc)}, vcc")
    e(f"  v_mul_f32 {vr(vL)}, {vr(vFc)}, {vr(z4 + 1)}")
    rowred("v_add_f32", vL)
    e(f"  s_mul_i32 s{sT0}, s{sE + 15}, 384")
    e(f"  v_add_u32 {vr(u)}, s{sT0}, {vr(u)}")
    e("L_hp:")
    e(f"  s_lshr_b32 s{sT0}, s2, 4")
    e(f"  s_min_u32 s{sT0}, s{sT0}, 13")
    e(f"  s_cmp_eq_u32 s{sT0}, s{sK}")
    e("  s_cbranch_scc0 L_hc_ok")
    if P.ot == 1:
        e("; (the value is not used: address translation for the final store)")
        e(f"  s_load_dword s{sF}, s[{sOUT}:{sOUT + 1}], 0")
    if P.ot == 2:
        e("; (the value is not used: address translation for the final store)")
        e("  s_mov_b64 exec, 1")
        e(f"  global_load_dword {vr(vFX)}, {vr(vZ)}, s[{sOUT}:{sOUT + 1}]")
        e("  s_mov_b64 exec, -1")
        e("  s_waitcnt vmcnt(0)")
    e(f"  s_load_dwordx2 s[{sZ}:{sZ + 1}], s[{sDBG}:{sDBG + 1}], 0 glc")
    e("  s_waitcnt lgkmcnt(0)")
    e(f"  s_mov_b32 s{sTG}, s{sZ}")
    e(f"  s_cmp_eq_u32 s{sZ + 1}, 1")
    e("  s_cbranch_scc1 L_hc_ok")
    e("L_hc:")
    e(f"  global_load_dwordx2 {vr(pr, 2)}, {vr(vZ)}, s[{sDBG}:{sDBG + 1}] sc1")
    e("  s_waitcnt vmcnt(0)")
    e(f"  v_readfirstlane_b32 s{sTG}, {vr(pr)}")
    e(f"  v_readfirstlane_b32 s{sF}, {vr(pr + 1)}")
    e(f"  s_cmp_eq_u32 s{sF}, 1")
    e("  s_cbranch_scc1 L_hc_ok")
    budget("L_hc_ok")
    e("  s_sleep 64")
    e("  s_branch L_hc")
    e("L_hc_ok:")
    vstep_k(sH, sK)
    e(f"  s_lshl_b32 s{sT0}, s{sH}, 4")
    e(f"  v_mov_b32 {vr(h1)}, s{sT0}")
    for j in range(4):
        e(f"  v_readlane_b32 s{rA + j}, {vr(vFc)}, s{sH}")
        e(f"  s_add_u32 s{sH}, s{sH}, 16")
    e(f"  s_add_u32 s{sK}, s{sK}, 1")
    e(f"  s_add_u32 s{sNEED}, s{sK}, 16")
    progwait("hpw", P.psk)
    mark("p")
    hp(0)
    rank_post("p")
    sum_partials(1)
    for j in range(4):
        for i in range(4):
            e(f"  v_fmac_f32 {vr(AC + 4 * j + i)}, s{rA + j}, {vr(x + i)}")
    e(f"  v_add_u32 {vr(h0)}, 3072, {vr(h0)}")
    rank_take("p")
    warm("p")
    e(f"  s_cmp_lt_u32 s{sK}, 15")
    e("  s_cbranch_scc1 L_hp")

    if P.eprio:
        e(f"  s_setprio {P.eprio}")
    e(f"  s_lshr_b32 s{sH}, s{sVO + 1}, 28")
    e(f"  s_lshl_b32 s{sT0}, s{sH}, 4")
    e(f"  v_mov_b32 {vr(h1)}, s{sT0}")
    e(f"  s_add_u32 s{sH}, s{sH}, 48")
    e(f"  ds_read_b32 {vr(h1)}, {vr(h1)} offset:{ST + 8}")
    mx = x + 16
    for j in range(3):
        e(f"  v_max3_f32 {vr(mx + j)}, |{vr(AC + 4 * j)}|, |{vr(AC + 4 * j + 1)}|, |{vr(AC + 4 * j + 2)}|")
    for j in range(3):
        e(f"  v_max_f32_e64 {vr(mx + j)}, {vr(mx + j)}, |{vr(AC + 4 * j + 3)}|")
    for n in (8, 4, 2, 1):
        for j in range(3):
            e(f"  v_max_f32_dpp {vr(mx + j)}, {vr(mx + j)}, {vr(mx + j)} row_ror:{n} row_mask:0xf bank_mask:0xf")
    for sw in ("v_permlane16_swap_b32", "v_permlane32_swap_b32"):
        for j in range(3):
            e(f"  v_mov_b32 {vr(mx + 4 + j)}, {vr(mx + j)}")
        for j in range(3):
            e(f"  {sw} {vr(mx + j)}, {vr(mx + 4 + j)}")
        for j in range(3):
            e(f"  v_max_f32 {vr(mx + j)}, {vr(mx + j)}, {vr(mx + 4 + j)}")
    for j in range(3):
        e(f"  v_frexp_exp_i32_f32 {vr(mx + j)}, {vr(mx + j)}")
        e(f"  v_sub_u32 {vr(mx + 4 + j)}, 14, {vr(mx + j)}")
        e(f"  v_subrev_u32 {vr(mx + j)}, 14, {vr(mx + j)}")
        for i in range(4):
            e(f"  v_ldexp_f32 {vr(AC + 4 * j + i)}, {vr(AC + 4 * j + i)}, {vr(mx + 4 + j)}")
        for i in range(2):
            e(f"  v_cvt_pk_f16_f32 {vr(x + 2 * j + i)}, {vr(AC + 4 * j + 2 * i)}, {vr(AC + 4 * j + 2 * i + 1)}")
    for j in range(4):
        e(f"  v_readlane_b32 s{16 + j}, {vr(vM)}, {16 * j}")
        e(f"  v_readlane_b32 s{20 + j}, {vr(vL)}, {16 * j}")
    for j in range(3):
        e(f"  v_readlane_b32 s{rA + j}, {vr(mx + j)}, 0")
    e(f"  v_readlane_b32 s{rA + 3}, {vr(vFc)}, s{sH}")
    for k in range(6):
        e(f"  v_lshrrev_b32 {vr(h2)}, 1, {vr(x + k)}")
        e(f"  v_and_b32 {vr(h2)}, 0x10001, {vr(h2)}")
        e(f"  v_add_u32 {vr(x + k)}, {vr(x + k)}, {vr(h2)}")
    for j in range(3):
        e(f"  v_writelane_b32 {vr(x + 2 * j)}, s{16 + j}, 48")
        e(f"  v_writelane_b32 {vr(x + 2 * j)}, s{20 + j}, 49")
        e(f"  v_writelane_b32 {vr(x + 2 * j + 1)}, s{rA + j}, 49")
    e(f"  v_cmp_gt_u32 vcc, 48, {vr(l)}")
    e(f"  v_lshlrev_b32 {vr(h2)}, 2, {vr(l)}")
    e(f"  v_lshrrev_b32 {vr(h2)}, {vr(h2)}, s{sTG}")
    e(f"  v_mov_b32 {vr(h3)}, 0x10001")
    for i in range(2):
        e(f"  v_cndmask_b32 {vr(tg + 2 + i)}, 0, {vr(h3)}, vcc")
        e(f"  v_bfe_u32 {vr(tg + i)}, {vr(h2)}, {2 * i}, 2")
        e(f"  v_lshl_or_b32 {vr(tg + i)}, {vr(tg + i)}, 15, {vr(tg + i)}")
    e(f"  v_writelane_b32 {vr(tg + 3)}, -1, 48")
    e(f"  v_writelane_b32 {vr(tg + 3)}, s{sMASK}, 49")
    e(f"  v_writelane_b32 {vr(tg + 1)}, s{sTG}, 48")
    e(f"  v_writelane_b32 {vr(tg + 1)}, s{sTG}, 49")
    for i in range(2):
        e(f"  v_and_b32 {vr(tg + i)}, {vr(tg + i)}, {vr(tg + 2 + i)}")
    for k in range(6):
        e(f"  v_bfi_b32 {vr(x + k)}, {vr(tg + 2 + k % 2)}, {vr(tg + k % 2)}, {vr(x + k)}")
    e(f"  v_min_u32 {vr(h2)}, 55, {vr(l)}")
    for j in range(3):
        e(f"  v_lshl_add_u32 {vr(ra + j)}, {vr(h2)}, 3, s{sE + 12 + j}")
    e(f"  s_mul_i32 s{sT0}, s{sE + 15}, 1344")
    e(f"  s_add_u32 s{sT0}, s{sT0}, {W_REC}")
    e(f"  v_lshl_add_u32 {vr(ra + 3)}, {vr(h2)}, 3, s{sT0}")
    e("  s_waitcnt lgkmcnt(0)")
    if P.mg:
        e("; the stores leave part-way into the last step, where they disturb the read stream least")
        e(f"  s_mov_b32 s{sNEED}, {31 + (P.mg > 12)}")
        progwait("hmw", P.psl, FL + 32)
    hp(1)
    e("  s_mov_b32 exec_hi, 0xffffff")
    for j in range(3):
        if "w" not in P.xp:
            e(f"  global_store_dwordx2 {vr(ra + j)}, {vr(x + 2 * j, 2)}, s[{sWS}:{sWS + 1}] sc1")
    e("  s_mov_b64 exec, -1")
    if "r" in P.xp:
        e("  s_branch L_skip")
    if P.ml:
        e(f"  s_mov_b32 s{sNEED}, {31 + (P.ml > 12)}")
        progwait("hlw", P.psl, FL + 48)
    else:
        e(f"  s_waitcnt vmcnt({P.aw})")
    hp(2)
    hp(3)
    e("L_hw:")
    hp(4)
    for j in range(3):
        e(f"  global_load_dwordx2 {vr(rec + 2 * j, 2)}, {vr(ra + 3)}, s[{sWS}:{sWS + 1}] offset:{448 * j} sc1")
    e("  s_waitcnt vmcnt(0)")
    hp(5)
    for k in range(6):
        e(f"  v_xor_b32 {vr(rec + k)}, {vr(rec + k)}, {vr(tg + k % 2)}")
    for i in range(2):
        e(f"  v_or3_b32 {vr(h2 + i)}, {vr(rec + i)}, {vr(rec + 2 + i)}, {vr(rec + 4 + i)}")
    e(f"  v_and_b32 {vr(h2)}, {vr(h2)}, {vr(tg + 2)}")
    e(f"  v_and_or_b32 {vr(h2)}, {vr(h3)}, {vr(tg + 3)}, {vr(h2)}")
    e(f"  v_cmp_ne_u32 s[{sZ}:{sZ + 1}], 0, {vr(h2)}")
    for j in range(3):
        e(f"  v_readlane_b32 s{16 + j}, {vr(rec + 2 * j)}, 48")
        e(f"  v_readlane_b32 s{20 + j}, {vr(rec + 2 * j)}, 49")
        e(f"  v_readlane_b32 s{rA + j}, {vr(rec + 2 * j + 1)}, 49")
    e(f"  s_cmp_eq_u64 s[{sZ}:{sZ + 1}], 0")
    e("  s_cbranch_scc1 L_hy")
    budget("L_hy")
    e("  s_branch L_hw")
    e("L_hy:")
    gj = x + 8
    e(f"  v_mov_b32 {vr(h2)}, s19")
    for j in range(3):
        e(f"  v_max_f32 {vr(h2)}, s{16 + j}, {vr(h2)}")
    for j in range(4):
        e(f"  v_sub_f32 {vr(gj + j)}, s{16 + j}, {vr(h2)}")
    for j in range(4):
        e(f"  v_exp_f32 {vr(gj + j)}, {vr(gj + j)}")
    for j in range(3):
        e(f"  s_sext_i32_i16 s{rA + j}, s{rA + j}")
    e(f"  v_mul_f32 {vr(wa)}, s23, {vr(gj + 3)}")
    for j in range(3):
        e(f"  v_fmac_f32 {vr(wa)}, s{20 + j}, {vr(gj + j)}")
    for i in range(4):
        e(f"  v_mul_f32 {vr(fo + i)}, {vr(AC + 12 + i)}, {vr(gj + 3)}")
    e(f"  v_rcp_f32 {vr(wa)}, {vr(wa)}")
    for j in range(3):
        e(f"  v_ldexp_f32 {vr(gj + j)}, {vr(gj + j)}, s{rA + j}")
    for j in range(3):
        for i in range(4):
            e(f"  v_fma_mix_f32 {vr(fo + i)}, {vr(rec + 2 * j + i // 2)}, {vr(gj + j)}, {vr(fo + i)} op_sel:[{i & 1},0,0] op_sel_hi:[1,0,0]")
    e(f"  v_mul_f32 {vr(h2)}, s{rA + 3}, {vr(gj + 3)}")
    e(f"  v_mul_f32 {vr(h2)}, {vr(h2)}, {vr(wa)}")
    e(f"  v_mul_f32 {vr(h3)}, {vr(h2)}, {vr(h1)}")
    for i in range(4):
        e(f"  v_fma_f32 {vr(fo + i)}, {vr(fo + i)}, {vr(wa)}, -{vr(h3)}")
    if "r" in P.xp:
        e("L_skip:")
    hp(6)
    e("  s_barrier")
    hp(7)
    for k in range(4):
        e(f"  ds_read_b128 {vr(x + 4 * k, 4)}, {vr(h0)} offset:{768 * k}")
    e("  s_waitcnt lgkmcnt(2)")
    for h in (0, 2):
        e(f"  v_pk_add_f32 {vr(x + h, 2)}, {vr(x + h, 2)}, {vr(x + 4 + h, 2)}")
    e("  s_waitcnt lgkmcnt(0)")
    for h in (0, 2):
        e(f"  v_pk_add_f32 {vr(x + 8 + h, 2)}, {vr(x + 8 + h, 2)}, {vr(x + 12 + h, 2)}")
    for h in (0, 2):
        e(f"  v_pk_add_f32 {vr(x + h, 2)}, {vr(x + h, 2)}, {vr(x + 8 + h, 2)}")
    for i in range(4):
        e(f"  v_fmac_f32 {vr(fo + i)}, {vr(h2)}, {vr(x + i)}")
    e(f"  v_cvt_pk_bf16_f32 {vr(fo)}, {vr(fo)}, {vr(fo + 1)}")
    e(f"  v_cvt_pk_bf16_f32 {vr(fo + 1)}, {vr(fo + 2)}, {vr(fo + 3)}")
    e("  s_mov_b32 exec_hi, 0xffff")
    e(f"  global_store_dwordx2 {vr(u)}, {vr(fo, 2)}, s[{sOUT}:{sOUT + 1}] {P.of}")
    if P.sd:
        e(f"  s_mov_b32 s{sNEED}, 32")
        e("  s_mov_b64 exec, -1")
        mark("z")
        e(f"  s_cmp_eq_u32 s{sJ}, 0")
        e("  s_cbranch_scc0 L_sd")
        e(f"  v_lshlrev_b32 {vr(h0)}, 2, {vr(l)}")
        e("  s_mov_b32 exec_lo, 0")
        e("  s_mov_b32 exec_hi, 0x3fff")
        e(f"  global_atomic_add {vr(h0)}, {vr(vCL)}, s[{sDBG}:{sDBG + 1}] offset:-120 sc1")
        e("L_sd:")
    if P.enc:
        m0, m1, base, amp, wg = [int(v) for v in P.enc.split(",")]
        if m1 == 32:
            e("  s_memrealtime s[74:75]")
        if m0 == 0:
            e(f"  s_mov_b32 s72, s{sST}")
        e("  s_waitcnt lgkmcnt(0)")
        if P.em:
            e(f"  s_not_b32 s73, s{sST}")
            e(f"  s_mov_b32 s72, s{sST}")
            e(f"  s_atomic_umax s74, s[{sDBG}:{sDBG + 1}], 40")
            e(f"  s_atomic_umax s73, s[{sDBG}:{sDBG + 1}], 44")
            e(f"  s_atomic_umax s72, s[{sDBG}:{sDBG + 1}], 48")
        else:
            e("  s_sub_u32 s72, s74, s72")
            e(f"  s_atomic_add s72, s[{sDBG}:{sDBG + 1}], 32")
        e(f"  s_cmp_eq_u32 s2, {wg}")
        e("  s_cbranch_scc0 L_nohold")
        e("L_hold0:")
        e(f"  s_memrealtime s[{sST + 2}:{sST + 3}]")
        e("  s_waitcnt lgkmcnt(0)")
        e(f"  s_sub_u32 s{sT0}, s{sST + 2}, s{sST}")
        e(f"  s_cmp_lt_u32 s{sT0}, 12500")
        e("  s_cbranch_scc1 L_hold0")
        e("  s_mov_b32 s72, 0")
        if P.em:
            e("  s_mov_b32 s73, 0")
            e(f"  s_atomic_add s72, s[{sDBG}:{sDBG + 1}], {48 if P.em == 3 else 40} glc")
            e(f"  s_atomic_add s73, s[{sDBG}:{sDBG + 1}], {48 if P.em == 2 else 44} glc")
            e("  s_waitcnt lgkmcnt(0)")
            if P.em != 2:
                e("  s_not_b32 s73, s73")
            e("  s_sub_u32 s72, s72, s73")
            e("  s_lshl_b32 s72, s72, 8")
        else:
            e(f"  s_atomic_add s72, s[{sDBG}:{sDBG + 1}], 32 glc")
            e("  s_waitcnt lgkmcnt(0)")
        e(f"  s_sub_u32 s72, s72, {base * 256}")
        e("  s_max_i32 s72, s72, 0")
        e("  s_min_i32 s72, s72, 128000")
        e(f"  s_mul_i32 s72, s72, {amp}")
        e("  s_lshr_b32 s72, s72, 8")
        e("  s_add_u32 s72, s72, 13000")
        e("L_hold:")
        e(f"  s_memrealtime s[{sST + 2}:{sST + 3}]")
        e("  s_waitcnt lgkmcnt(0)")
        e(f"  s_sub_u32 s{sT0}, s{sST + 2}, s{sST}")
        e(f"  s_cmp_lt_u32 s{sT0}, s72")
        e("  s_cbranch_scc1 L_hold")
        e("L_nohold:")
        e("  s_waitcnt lgkmcnt(0)")
    if P.pe:
        e("; diagnostic build only: pointers to d_debug, some of their bits into the run time")
        off, sh_, bits = [int(v) for v in P.pe.split(",")]
        e("  s_cmp_eq_u32 s2, 0")
        e("  s_cbranch_scc0 L_nope")
        e("  s_load_dwordx16 s[4:19], s[0:1], 0")
        e("  s_waitcnt lgkmcnt(0)")
        e("  s_mov_b64 exec, 1")
        for k, r_ in enumerate((4, 6, 7, 8, 12, 13, 14, 30, 31)):
            e(f"  v_mov_b32 v5, s{r_}")
            e(f"  global_store_dword {vr(vZ)}, v5, s[{sDBG}:{sDBG + 1}] offset:{16 + 4 * k}")
        if off < 0:
            e("  s_sub_u32 s72, s6, s12")
        else:
            e(f"  s_mov_b32 s72, s{off}")
        e(f"  s_bfe_u32 s72, s72, {bits << 16 | sh_:#x}")
        e("  s_mul_i32 s72, s72, 300")
        e("  s_add_u32 s72, s72, 13000")
        e("L_pe:")
        e(f"  s_memrealtime s[{sST + 2}:{sST + 3}]")
        e("  s_waitcnt lgkmcnt(0)")
        e(f"  s_sub_u32 s{sT0}, s{sST + 2}, s{sST}")
        e(f"  s_cmp_lt_u32 s{sT0}, s72")
        e("  s_cbranch_scc1 L_pe")
        e("L_nope:")
    if P.tail:
        e("; diagnostic build only")
        e("  s_memrealtime s[72:73]")
        e("L_tail:")
        e("  s_memrealtime s[74:75]")
        e("  s_waitcnt lgkmcnt(0)")
        e("  s_sub_u32 s74, s74, s72")
        e(f"  s_cmp_lt_u32 s74, {P.tail}")
        e("  s_cbranch_scc1 L_tail")
    if P.hold:
        e("; diagnostic build only")
        e("L_hold:")
        e(f"  s_memrealtime s[{sST + 2}:{sST + 3}]")
        e("  s_waitcnt lgkmcnt(0)")
        e(f"  s_sub_u32 s{sT0}, s{sST + 2}, s{sST}")
        e(f"  s_cmp_lt_u32 s{sT0}, {P.hold}")
        e("  s_cbranch_scc1 L_hold")
    if P.stamp:
        e(f"  s_memrealtime s[{sST + 2}:{sST + 3}]")
        if P.hprof:
            e("  s_waitcnt lgkmcnt(0)")
            e("  s_lshl_b32 s44, s2, 5")
            e("  s_add_u32 s44, s44, 0x80000")
            e("  v_mov_b32 v1, s44")
            for k in range(8):
                e(f"  s_sub_u32 s45, s{sST + 2}, s{HP[k]}")
                e(f"  v_mov_b32 v{4 + k}, s45")
            e(f"  global_store_dwordx4 v1, v[4:7], s[{sWS}:{sWS + 1}]")
            e(f"  global_store_dwordx4 v1, v[8:11], s[{sWS}:{sWS + 1}] offset:16")
            e("  s_nop 2")
        e("  s_getreg_b32 s6, hwreg(HW_REG_XCC_ID)")
        e("  s_getreg_b32 s7, hwreg(HW_REG_HW_ID)")
        e("  s_waitcnt lgkmcnt(0)")
        e(f"  v_mov_b32 v4, s{sST}")
        e(f"  v_mov_b32 v5, s{sST + 2}")
        e("  v_mov_b32 v6, s6")
        e("  v_mov_b32 v7, s7")
        e("  s_lshl_b32 s8, s2, 4")
        e("  v_mov_b32 v1, s8")
        e(f"  global_store_dwordx4 v1, v[4:7], s[{sWS}:{sWS + 1}]")
    e("L_end:")
    e("  s_endpgm")
    e(".p2align 6")
    e(".type L_order,@object")
    e("L_order:")
    for k in range(0, len(ordtab), 8):
        e("  .long " + ", ".join(f"{v:#x}" for v in ordtab[k:k + 8]))
    e(".type L_hpos,@object")
    e("L_hpos:")
    for b in range(2):
        at = {chunk_of(b, n, s_): lpos(n, s_) for n in range(24) for s_ in range(16)}
        rows = sorted({c // 3 for c in at})
        for l_ in range(64):
            r0, r1 = rows[l_], rows[l_ + 64]
            e("  .long " + ", ".join(f"{a_ | b_ << 16:#x}" for a_, b_ in [(at[3 * r0 + k], at[3 * r1 + k]) for k in range(3)] + [(2 * r0, 2 * r1)]))
    e('.section .rodata,"a"')
    e(".p2align 6")
    e(f".amdhsa_kernel {NAME}_kernel")
    e(f"  .amdhsa_next_free_vgpr {NV}")
    e("  .amdhsa_next_free_sgpr 100")
    e(f"  .amdhsa_accum_offset {(NV + 3) // 4 * 4}")
    e("  .amdhsa_group_segment_fixed_size 0")
    e("  .amdhsa_kernarg_size 112")
    e("  .amdhsa_user_sgpr_count 2")
    e("  .amdhsa_user_sgpr_kernarg_segment_ptr 1")
    e("  .amdhsa_system_sgpr_workgroup_id_x 1")
    e(".end_amdhsa_kernel")
    return "\n".join(o) + "\n", NV


if __name__ == "__main__":
    ap = argparse.ArgumentParser()
    ap.add_argument("-o", default=f"/code/{NAME}.s")
    for name, d in (("sh", 4), ("deep", 5), ("pd", 9), ("pre", 12), ("nf", 6), ("su", 3), ("hp0", 3), ("tst", 24),
                    ("ctl", 1), ("hi", 0), ("hiv", 5), ("lo", -25), ("thr", 2), ("tp", 2), ("start", 5), ("s0", 0), ("ba", 3),
                    ("r0", 2), ("r1", 30), ("rf", 3), ("rp", 2), ("rt", 26), ("rotl", 7), ("kp", 7), ("kp0", 6), ("kn", 20),
                    ("tw", 2), ("tv", 1), ("ts", 1), ("st", 1), ("ot", 0), ("top", 26), ("tpn", 1), ("lag", 2), ("mg", 8), ("ml", 0), ("aw", 0), ("sd", 0), ("em", 0), ("tail", 0),
                    ("eprio", 2), ("psl", 1), ("psk", 1), ("spr", 1), ("bound", 4000000), ("hold", 0), ("dly", 0), ("dlb", 2)):
        ap.add_argument("--" + name, type=int, default=d)
    ap.add_argument("--kp_", default="6,6,6,7,8,9,9,10,10,11,11,12,12", help="K loads issued by each prologue point")
    ap.add_argument("--of", default="")
    ap.add_argument("--enc", default="", help="diagnostic only: m0,m1,base,amp,wg")
    ap.add_argument("--ok", default="REXbLbLbL", help="events of a K group")
    ap.add_argument("--ov", default="REXbLbLbL", help="events of a V group")
    ap.add_argument("--rk", default="", help="die gain per step (hex digits, 0 = no ranking)")
    ap.add_argument("--sb", default="", help="step:bias,... added to the lateness")
    ap.add_argument("--pf", default="sc1")
    ap.add_argument("--tpp", default="012", help="positions with a third level")
    ap.add_argument("--pe", default="", help="diagnostic only")
    ap.add_argument("--tm", default="5,10,11,16,21,26")
    ap.add_argument("--tg", default="")
    ap.add_argument("--bu", default="012", help="extra depth per position in the issued group")
    ap.add_argument("--th", default="-9,5,13")
    ap.add_argument("--sch", default="ut_a6.txt")
    ap.add_argument("--xp", default="", help="timing experiments only")
    for name in ("stamp", "trace", "tfine", "hprof"):
        ap.add_argument("--" + name, action="store_true", help="diagnostics only")
    a = ap.parse_args()
    txt, nv = gen(a)
    open(a.o, "w").write(txt)
    print("wrote", a.o, "vgprs", nv)
```

```python
import argparse
import math
import os
import struct
from gen import HEADER, NAME, Alloc, f32bits, vr

UB = 256 * 768

ABOUT = """
Generated by tools/gen10.py.
Work split: a unit is a block of 256 KV rows of one head.  Workgroups g and g ^ 8 share 16 units of four heads (table
  L_order) and alternate over the 32 KiB runs of a unit, 128 rows each.
  Waves 1-4 stream one 4 KiB block per round; a 16-lane row handles one third (64 dims) of a KV row per load.
  K sweep: logit = k_scale * sum_d (qk - 7.5) * (qa * cos + qb * sin), RoPE moved onto the rotated q;
  V sweep: partial = sum_rows p * v_scale * qv.
  Wave 0 (helper) rotates q, takes max / exp / sums over the workgroup's rows of each unit, and merges partials.
Constant parameters (the same for every seed) are built in: both zero points (7.5), q_cos / q_sin (table L_qcs) and
  k_cos / k_sin = cos / sin(row * inv_freq).  The angle is split into the part of the row inside its unit (f16 table in
  LDS, evaluated once from L_inv) and the part of the unit (L_f0), by which (qa, qb) is turned in fp32.
Hand-off: every workgroup finishes one of its heads and streams a unit of that head last.  Partials and (max, sum) of
  the other three go to d_ws with sc1 stores; every 8 bytes carry a piece of a tag that differs from the one found there
  on entry (sent round through d_debug).  The finisher reads until all tags fit and rescales to the true row maximum.
Flow control (speed only, results do not depend on it): waves publish a group counter and sample the counters of
  units on the same die; late waves keep one more load in flight, early waves one or two fewer.  Helpers rank the dies.
"""

RUN = (1, 2, 0)


def chunk_of(b, n, s):
    g = 256 * RUN[n >> 3] + 128 * b + 16 * (n & 7) + s
    return {128: 512, 255: 639, 512: 128, 639: 255}.get(g, g)


def tidx(b, row):
    return row - 43 * b - 42 * ((row >= 85) + (row >= 171))


def rev(x, bits):
    return int(format(x, f"0{bits}b")[::-1], 2)


def lpos(n, s):
    return 4 * (16 * s + rev(n, 4)) if n < 16 else 1024 + 4 * (8 * s + rev(n - 16, 3))


TN = [(RUN[n >> 3] + (n & 7)) % 3 for n in range(24)]
SPECIAL = {n: i for i, n in enumerate(sorted(8 * RUN.index(r) + i for r in (0, 2) for i in (0, 7)))}
for b_ in range(2):
    ch = sorted(chunk_of(b_, n, s) for n in range(24) for s in range(16))
    assert ch == sorted(3 * r + k for r in {c // 3 for c in ch} for k in range(3))
    assert all(chunk_of(b_, n, s) % 3 == (TN[n] + 2 * b_ + s) % 3 for n in range(24) for s in range(16))
    assert len({tidx(b_, c // 3) for c in ch}) == 128 and max(tidx(b_, c // 3) for c in ch) == 128


def gen(P):
    o = []
    e = o.append
    RING, PD = 24, P.pd
    sh, deep = P.sh, P.deep
    PRE = P.pre
    TP = P.tp
    LAG = P.lag
    assert deep <= PD - 1 and sh <= deep and PD <= PRE
    SL = 512
    SA = 16 * SL

    FL = 0
    QS = 128
    ST = 256
    TB = 512
    QB = TB + 129 * 384
    LGB = QB + 16 * 768 + 1536
    SCB = LGB + 16 * 1536
    PB = SCB + 2 * SA
    QR = PB + 49152
    LDS = QR + 4 * 784
    assert 81920 < LDS <= 163840
    W_REC = 0x600000
    W_RK = 0x780000
    W_PL = 0x7c0000

    sQ, sQK, sKS, sKZ, sQV, sVS, sVZ, sQC = 4, 6, 8, 10, 12, 14, 16, 18
    sQS, sKC, sKSN, sOUT = 20, 22, 24, 26
    sDBG, sWS = 28, 30
    rA, rB = 32, 36
    sW, sJ, sC, sK, sT0, sT1, sF, sNEED = 40, 41, 42, 43, 44, 45, 46, 47
    sMSK = 48
    sOF = 51
    sE = 48
    sCO = 61
    sZ = 64
    sMASK, sSCALE, sH = 66, 67, 68
    sS = 69
    sX = 70
    sRF = 80
    sST = 84
    sB = 91
    sVO = 92
    sSP = 94
    sI = 95
    sSE, sCU = 81, 79
    sLO = 78
    sTG = 99

    va = Alloc(1)
    vT16, vF, vZ, vC16 = [va.take(1) for _ in range(4)]
    voff = va.take(7)
    vTA = va.take(7)
    vQA = va.take(3)
    vPA = va.take(3)
    vLG = va.take(2)
    vLB = va.take(2)
    vLV = va.take(2)
    A = va.take(2)
    LG = va.take(2)
    M1, M2, M3 = [va.take(1) for _ in range(3)]
    bc = va.take(2, 2)
    dacc = va.take(2, 2)
    wt = va.take(4, 2)
    vtr, vPW, vPS, vN, vSum, vSu2, vBA = [va.take(1) for _ in range(7)]
    vPL = va.take(4)
    vU = va.take(1)
    vBI = va.take(2, 2)
    smp = va.take(4 * LAG, 4)
    qa = va.take(12, 4)
    tab = va.take(24, 4)
    tmp = va.take(12, 4)
    ring = va.take(4 * RING, 4)
    NV = va.n
    acc = qa

    here = os.path.dirname(os.path.abspath(__file__))
    sch = [[int(x) for x in ln.split()] for ln in open(os.path.join(here, P.sch))]
    inv, qcs = [[int(x, 16) for x in ln.split()] for ln in open(os.path.join(here, "consts.txt"))]
    rev_ = [struct.unpack("<f", struct.pack("<I", v))[0] / (2 * math.pi) for v in inv]
    assert sorted(2 * u_ + (g >> 3 & 1) for g in range(256) for u_ in sch[g][:16]) == list(range(4096))
    assert sorted(x[31] >> 3 for x in sch) == list(range(256))
    fill = [0] * 256
    ordtab = []
    for g in range(256):
        ku, own = sch[g][:16], sch[g][31] >> 3
        od = [ku.index(u_) for u_ in sch[g][16:]]
        assert sorted(od) == list(range(16)) and od[0] < 14
        assert ku[0] == (16 * (((g & 7) << 3) + (g >> 4 & 7) + (g >> 7 << 6)) + 14) * 21846 >> 16
        need = list(dict.fromkeys(u_ >> 3 for u_ in ku))
        heads = [h for h in need if h != own] + [own]
        assert len(heads) == 4
        u16 = [u_ | heads.index(u_ >> 3) << 12 for u_ in ku]
        nib = sum(k << (4 * t) for t, k in enumerate(od))
        hq = [h | heads.index(h) << 12 for h in need]
        dst = []
        for h in heads[:3]:
            dst.append(W_REC + 448 * (3 * h + fill[h]))
            fill[h] += 1
        ordtab += [u16[2 * i] | u16[2 * i + 1] << 16 for i in range(8)]
        ordtab += [nib & 0xffffffff, nib >> 32, hq[0] | hq[1] << 16, hq[2] | hq[3] << 16] + dst + [own]
    assert fill == [3] * 256

    def ld(n):
        rr = rA if n < 24 else rB
        n %= 24
        so = f"s{sOF + (n & 7)}" if n & 7 else "0"
        vo = voff + (3 + SPECIAL[n] if n in SPECIAL else n >> 3)
        e(f"  buffer_load_dwordx4 {vr(ring + 4 * n, 4)}, {vr(vo)}, s[{rr}:{rr + 3}], {so} offen nt")

    ORD = {"K": P.ok, "V": P.ov}
    DIST = {"K": PRE, "V": PD}
    bu = [int(x) for x in P.bu]
    th = [int(x) for x in P.th.split(",")]
    assert PD % 3 == 0 and PRE % 3 == 0 and deep == sh + 1

    def memops(ph, a):
        r = []
        for i, c in enumerate(ORD[ph]):
            if c == "X" and P.ctl:
                r += [(i, "B")] * (a == P.ba) + [(i, "S"), (i, "Q")]
            if c == "L":
                r.append((i, "L"))
        return r

    def back(ph, a, i):
        r = [c for j, c in memops(ph, a) if j < i][::-1]
        for k in range(1, 8):
            r += [c for _, c in memops(ph, (a - k) % 8)][::-1]
        return r

    def cnt(ph, a, i, depth):
        depth += bu[ORD[ph][:i].count("L")]
        r = back(ph, a, i)
        return [k + 1 for k, c in enumerate(r) if c == "L"][depth - 2] if depth > 1 else 0

    def swait(ph, a):
        assert ORD[ph].index("E") < ORD[ph].index("X")
        r = back(ph, a, ORD[ph].index("E"))
        return [k for k, c in enumerate(r) if c == "Q"][LAG - 1]

    plain = {}

    def verify():
        ops = [("L", i) for i in range(PRE)]
        done = ORD["K"][:ORD["K"].index("L")].count("b")
        for g in range(256):
            ph, a = "KV"[g >= 128], g % 8
            if 3 * g + PD >= 768 or 128 <= g < 128 + (PRE - PD) // 3:
                for n in range(3 * g, 3 * g + 4 - (g == 255)):
                    plain[n] = len(ops) - 1 - ops.index(("L", n))
                done = max(done, len(ops) - plain[min(3 * g + 3, 767)])
                continue
            nb = nl = 3 * g
            for i, c in enumerate(ORD[ph]):
                if c == "E" and P.ctl:
                    done = max(done, len(ops) - swait(ph, a))
                if c == "X" and P.ctl:
                    ops += [("X", 0)] * (1 + (a == P.ba))
                if c == "b":
                    assert ("L", nb) in ops[:done], nb
                    nb += 1
                if c == "L":
                    done = max(done, len(ops) - cnt(ph, a, i, deep + P.tpn * (P.top < 99 and str(nl % 3) in P.tpp) if P.ctl else sh))
                    ops.append(("L", nl + DIST[ph]))
                    nl += 1
    verify()
    lab = [0]
    rare = []

    def flush():
        o.extend(rare)
        rare.clear()

    def issue(ph, a, i):
        j = ORD[ph][:i].count("L")
        lab[0] += 1
        if P.ctl and j == TP:
            e(f"  s_cmp_lt_i32 s{sS}, {P.lo}")
            e(f"  s_cbranch_scc1 L_t{lab[0]}")
            rare.extend([f"L_t{lab[0]}:", f"  s_waitcnt vmcnt({cnt(ph, a, i, P.thr + 1)})", f"  s_branch L_p{lab[0]}"])
        if P.ctl:
            t = (P.hi if ph == "K" else P.hiv) + th[j]
            tp_ = P.top + P.tpd * j + (0 if ph == "K" else P.tpv)
            assert P.lo <= t < tp_
            top = P.top < 99 and str(j) in P.tpp
            w = lambda d: f"  s_waitcnt vmcnt({cnt(ph, a, i, d)})"
            back = f"  s_branch L_p{lab[0]}"
            if t < 0:
                if top:
                    e(f"  s_sub_u32 s{sT0}, s{sS}, {t + 1}")
                    e(f"  s_cmp_lt_u32 s{sT0}, {tp_ - t}")
                    rare.extend([f"L_q{lab[0]}:", w(deep + P.tpn), f"  s_cmp_gt_i32 s{sS}, 0", f"  s_cbranch_scc1 L_p{lab[0]}", w(sh), back])
                else:
                    e(f"  s_cmp_gt_i32 s{sS}, {t}")
                    rare.extend([f"L_q{lab[0]}:", w(sh), back])
                e(f"  s_cbranch_scc0 L_q{lab[0]}")
                e(w(deep))
                e(f"L_p{lab[0]}:")
            elif top:
                e(f"  s_cmp_gt_i32 s{sS}, {t}")
                e(f"  s_cbranch_scc1 L_q{lab[0]}")
                rare.extend([f"L_q{lab[0]}:", w(deep + P.tpn), f"  s_cmp_gt_i32 s{sS}, {tp_}", f"  s_cbranch_scc1 L_p{lab[0]}", w(deep), back])
                e(w(sh))
                e(f"L_p{lab[0]}:")
            else:
                e(f"  s_cmp_gt_i32 s{sS}, {t}")
                e(f"  s_cbranch_scc1 L_p{lab[0]}")
                e(w(sh))
                e(f"L_p{lab[0]}:")
                e(w(deep))
        else:
            e(f"  s_waitcnt vmcnt({cnt(ph, a, i, sh)})")
        ld(3 * a + j + DIST[ph])
        if ph == "V" and 3 * a + j + 1 == P.mg:
            e(f"  ds_write_b32 {vr(vPW)}, {vr(M1)} offset:{FL + 32}")
        if ph == "V" and 3 * a + j + 1 == P.ml:
            e(f"  ds_write_b32 {vr(vPW)}, {vr(M1)} offset:{FL + 48}")

    def evaluate(ph, a):
        if not P.ctl:
            return
        sm = smp + 4 * (a % LAG)
        e(f"  s_waitcnt vmcnt({swait(ph, a)})")
        if a == (P.ba + LAG) % 8:
            e(f"  v_add_u32 {vr(vBI)}, {vr(vBI)}, {vr(vBI + 1)}")
        e(f"  s_add_u32 s{sT0}, s{sLO}, 0x03030303")
        e(f"  v_msad_u8 {vr(vSum)}, s{sLO}, {vr(sm)}, 0")
        e(f"  v_msad_u8 {vr(vSu2)}, s{sT0}, {vr(sm)}, 0")
        if a == (P.ba + LAG) % 8:
            e(f"  v_readfirstlane_b32 s{sB}, {vr(vBI)}")
        for k in range(1, 3):
            e(f"  v_msad_u8 {vr(vSum)}, s{sLO}, {vr(sm + k)}, {vr(vSum)}")
            e(f"  v_msad_u8 {vr(vSu2)}, s{sT0}, {vr(sm + k)}, {vr(vSu2)}")
        e(f"  v_sub_u32 {vr(vSum)}, {vr(vSum)}, {vr(vSu2)}")
        e(f"  s_add_u32 s{sLO}, s{sLO}, 0x01010101")
        e(f"  v_readlane_b32 s{sMASK}, {vr(vSum)}, 0")
        e(f"  v_readlane_b32 s{sSCALE}, {vr(vSum)}, 1")

    def decide(ph, a):
        if not P.ctl:
            return
        if a == (P.ba + LAG) % 8:
            for it in filter(None, P.sb.split(",")):
                st_, b_ = [int(v) for v in it.split(":")]
                if (st_ >= 16) == (ph == "V"):
                    e(f"  s_cmp_eq_u32 s{sK}, {st_ % 16}")
                    e(f"  s_cselect_b32 s{sT0}, {b_}, 0")
                    e(f"  s_add_u32 s{sB}, s{sB}, s{sT0}")
        cur, old = (sI, sCO) if a & 1 else (sCO, sI)
        e(f"  s_add_u32 s{cur}, s{sMASK}, s{sSCALE}")
        e(f"  s_add_u32 s{sS}, s{cur}, s{old}")
        e(f"  s_ashr_i32 s{sS}, s{sS}, 1")
        e(f"  s_add_u32 s{sS}, s{sS}, s{sB}")
        if ph == "K" and a < P.start:
            e(f"  s_cmp_eq_u32 s{sK}, 0")
            e(f"  s_cselect_b32 s{sS}, {P.s0}, s{sS}")

    def exchange(a):
        if not P.ctl:
            return
        e("  s_mov_b64 exec, 1")
        if a == P.ba:
            e(f"  global_load_dwordx2 {vr(vBI, 2)}, {vr(vBA)}, s[{sWS}:{sWS + 1}] {P.pf}")
        e(f"  global_store_byte {vr(vPS)}, {vr(vN)}, s[{sWS}:{sWS + 1}]")
        e("  s_mov_b64 exec, 3")
        e(f"  global_load_dwordx3 {vr(smp + 4 * (a % LAG), 3)}, {vr(vPL + a % 4)}, s[{sWS}:{sWS + 1}] {P.pf}")
        e(f"  v_add_u32 {vr(vN)}, 1, {vr(vN)}")
        e("  s_mov_b64 exec, -1")

    def srd_head(rr, sp, sh_):
        e(f"  s_mul_i32 s{sT0}, s{sh_}, {UB}")
        e(f"  s_add_u32 s{rr}, s{sp}, s{sT0}")
        e(f"  s_addc_u32 s{rr + 1}, s{sp + 1}, 0")

    def vstep_k(dst, src):
        e(f"  s_lshl_b32 s{dst}, s{src}, 2")
        e(f"  s_lshr_b64 s[{sZ}:{sZ + 1}], s[{sVO}:{sVO + 1}], s{dst}")
        e(f"  s_and_b32 s{dst}, s{sZ}, 15")

    def head_of(dst, slot, vU=vU):
        e(f"  s_lshr_b32 s{sT0}, s{slot}, 1")
        e(f"  v_readlane_b32 s{sZ}, {vr(vU)}, s{sT0}")
        e(f"  s_lshl_b32 s{sT0}, s{slot}, 4")
        e(f"  s_lshr_b32 s{sZ}, s{sZ}, s{sT0}")
        e(f"  s_and_b32 s{dst}, s{sZ}, 0x7ff")

    def budget(ok):
        e(f"  s_cmp_eq_u32 s{sSP}, 0")
        e(f"  s_cbranch_scc1 {ok}")
        e(f"  s_sub_u32 s{sSP}, s{sSP}, 1")

    def flagwait(name, off):
        e(f"L_{name}:")
        e("  s_waitcnt lgkmcnt(0)")
        e(f"  v_readfirstlane_b32 s{sF}, {vr(vF)}")
        e(f"  s_cmp_ge_u32 s{sF}, s{sNEED}")
        e(f"  s_cbranch_scc0 L_{name}_no")
        e(f"L_{name}_ok:")
        rare.extend([f"L_{name}_no:", f"  s_cmp_eq_u32 s{sSP}, 0", f"  s_cbranch_scc1 L_{name}_ok", f"  s_sub_u32 s{sSP}, s{sSP}, 1",
                     f"  ds_read_b32 {vr(vF)}, {vr(vZ)} offset:{off}", f"  s_branch L_{name}"])

    def tr():
        if P.trace:
            e(f"  {'s_memtime' if 'm' in P.xp else 's_memrealtime'} s[88:89]")
            e("  s_waitcnt lgkmcnt(0)")
            e(f"  v_writelane_b32 {vr(vtr)}, s88, m0")
            e("  s_add_u32 m0, m0, 1")
            e("  s_min_u32 m0, m0, 63")

    def die_base(dst):
        e(f"  s_getreg_b32 s{sSE}, hwreg(HW_REG_HW_ID, 8, 7)")
        e(f"  s_getreg_b32 s{dst}, hwreg(HW_REG_XCC_ID, 0, 3)")
        e(f"  s_and_b32 s{sCU}, s{sSE}, 15")
        e(f"  s_lshr_b32 s{sSE}, s{sSE}, 5")
        e(f"  s_mul_i32 s{dst}, s{dst}, 4352")
        e(f"  s_add_u32 s{dst}, s{dst}, {W_PL}")

    ha = Alloc(16)
    l, u, h0, h1, h2, h3 = [ha.take(1) for _ in range(6)]
    wa, wb, vSh, vFc, vM, vL = [ha.take(1) for _ in range(6)]
    ro = ha.take(8)
    vL16, vFA, vFX, vFB, vEL, vCL, vSa, vSq = [ha.take(1) for _ in range(8)]
    hq = ha.take(2)
    hU = ha.take(1)
    z4 = ha.take(4, 4)
    cs = ha.take(8, 4)
    f0 = ha.take(4, 4)
    sc = ha.take(4, 4)
    qn = ha.take(4, 4)
    x = ha.take(32, 4)
    pr = ha.take(4, 4)
    fo = ha.take(4, 4)
    rec = ha.take(8, 4)
    AC = ha.take(16, 4)
    st4 = ha.take(4, 4)
    tg = ha.take(4, 4)
    ra = ha.take(8)
    assert ha.n <= NV and vZ < 16

    invX, invY, tK, tA, tN, tO = tmp, tmp + 4, tmp + 8, tab, tab + 4, tab + 8
    PC0 = 20 + 8 * P.stamp + 16 * (P.dly > 0)
    D_INV, D_QCS, D_F0, D_END = 256, 768, 1152, 1536
    NF = P.nf
    assert RUN[0] == 1 and NF <= 8
    e(HEADER.rstrip("\n"))
    e(f"; @launch grid=(256,1,1) block=(320,1,1) lds={LDS}")
    for ln in ABOUT.strip("\n").split("\n"):
        e("; " + ln)
    e('.amdgcn_target "amdgcn-amd-amdhsa--gfx950"')
    e(".text")
    e(f".globl {NAME}_kernel")
    e(".p2align 8")
    e(f".type {NAME}_kernel,@function")
    e(f"{NAME}_kernel:")
    e("  s_cmpk_ge_u32 s2, 0x100")
    e("  s_cbranch_scc1 L_end")
    if P.dly:
        e("; diagnostic build only: half of the dies start late")
        e(f"  s_getreg_b32 s4, hwreg(HW_REG_XCC_ID, {P.dlb}, 1)")
        e("  s_cmp_eq_u32 s4, 0")
        e("  s_cbranch_scc1 L_dly")
        e(f"  s_sleep {P.dly}")
        e("L_dly:")
    if P.stamp:
        e(f"  s_memrealtime s[{sST}:{sST + 1}]")
    e("  s_load_dwordx16 s[4:19], s[0:1], 0")
    e(f"  s_getpc_b64 s[{sZ}:{sZ + 1}]")
    e("L_pc:")
    e("  v_cmp_gt_u32 vcc, 64, v0")
    e(f"  v_lshlrev_b32 {vr(vT16)}, 4, v0")
    e(f"  s_lshr_b32 s{sK}, s2, 4")
    e(f"  s_lshl_b32 s{sF}, s2, 6")
    e(f"  s_add_u32 s{sF}, s{sF}, L_order-L_pc")
    e(f"  s_and_b32 s{sH}, s2, 7")
    e("  s_cbranch_vccz L_s0")
    e(f"  s_load_dwordx16 s[{sE}:{sE + 15}], s[{sZ}:{sZ + 1}], s{sF}")
    e(f"  v_lshl_add_u32 {vr(h0)}, s{sK}, 6, v0")
    e(f"  v_mul_u32_u24 {vr(h0)}, {P.tst}, {vr(h0)}")
    e(f"  global_load_dword {vr(h3)}, {vr(h0)}, s[{sZ}:{sZ + 1}] offset:{D_QCS - PC0}")
    e("  s_branch L_helper")
    e("L_s0:")
    e(f"  v_and_b32 {vr(vC16)}, 0xf0, {vr(vT16)}")
    e(f"  global_load_dwordx4 {vr(invX, 4)}, {vr(vC16)}, s[{sZ}:{sZ + 1}] offset:{D_INV - PC0}")
    e(f"  global_load_dwordx4 {vr(invY, 4)}, {vr(vC16)}, s[{sZ}:{sZ + 1}] offset:{D_INV + 256 - PC0}")
    e(f"  s_and_b32 s{sT1}, s{sK}, 8")
    e(f"  s_add_u32 s{sH}, s{sH}, s{sT1}")
    e(f"  s_and_b32 s{sT1}, s{sK}, 7")
    e(f"  s_lshl3_add_u32 s{sH}, s{sH}, s{sT1}")
    e(f"  s_lshl4_add_u32 s{sH}, s{sH}, 14")
    e(f"  s_mulk_i32 s{sH}, 21846")
    e(f"  s_lshr_b32 s{sC}, s{sH}, 16")
    e(f"  s_mul_i32 s{sT0}, s{sC}, {UB}")
    e(f"  s_and_b32 s{sT1}, s2, 8")
    e(f"  s_lshl_b32 s{sT1}, s{sT1}, 12")
    e(f"  s_add_u32 s{sT0}, s{sT0}, s{sT1}")
    e(f"  s_add_u32 s{sT0}, s{sT0}, {65536 * RUN[0] - 1024 + 4096}")
    e(f"  v_add_u32 {vr(tA)}, s{sT0}, {vr(vT16)}")
    for k in range(1, (NF + 1) // 2):
        e(f"  v_add_u32 {vr(tA + k)}, {8192 * k}, {vr(tA)}")
    e("  s_waitcnt lgkmcnt(0)")
    for n in range(NF):
        e(f"  global_load_dwordx4 {vr(ring + 4 * n, 4)}, {vr(tA + n // 2)}, s[{sQK}:{sQK + 1}] offset:{4096 * (n % 2) - 4096} nt")
    e("  s_branch L_s1")
    e("L_b0:")
    e(f".if (L_b0 - {NAME}_kernel > {D_INV}) || (L_pc - {NAME}_kernel != {PC0})")
    e('.error "entry block layout"')
    e(".endif")
    e(".p2align 8")
    e(".type L_inv,@object")
    e("L_inv:")
    tb = [f32bits(v) for v in rev_[:64] + rev_[64:] + rev_[64:]]
    for k in range(0, 128, 8):
        e("  .long " + ", ".join(f"{v:#x}" for v in tb[k:k + 8]))
    e(".type L_qcs,@object")
    e("L_qcs:")
    for k in range(0, 96, 8):
        e("  .long " + ", ".join(f"{v:#x}" for v in qcs[k:k + 8]))
    e(".type L_f0,@object")
    e("L_f0:")
    for k in range(0, 96, 8):
        e("  .long " + ", ".join(f"{f32bits(256 * v - round(256 * v)):#x}" for v in rev_[k:k + 8]))

    def common(ld_=True):
        if ld_:
            e(f"  s_load_dwordx8 s[24:31], s[0:1], 80")
        e(f"  v_mov_b32 {vr(vZ)}, 0")
        e(f"  s_mov_b32 s{sSP}, {P.bound}")
        e(f"  s_bfe_u32 s{sJ}, s2, 0x10003")

    PFR = [4, 8, 10, 14, 62, 72, 74, 76, 82, 86, 96, 98]
    pfn = [0]

    def pf():
        if P.tfine:
            e(f"  {'s_memtime' if 'm' in P.xp else 's_memrealtime'} s[{PFR[pfn[0]]}:{PFR[pfn[0]] + 1}]")
            pfn[0] += 1

    e("L_s1:")
    w_, s_, vAD, vC8, t0, t1 = wt, wt + 1, wt + 2, wt + 3, dacc, dacc + 1
    vRF, pos = vT16, tK + 3
    if P.trace:
        e(f"  v_mov_b32 {vr(vtr)}, 0")
        e("  s_mov_b32 m0, 0")
    pf()
    e("  v_subrev_u32 v0, 64, v0")
    e(f"  s_setprio {P.spr}")
    e(f"  s_load_dwordx8 s[16:23], s[{sZ}:{sZ + 1}], s{sF}")
    e(f"  s_add_u32 s{sF}, s{sF}, 32")
    e(f"  s_load_dwordx2 s[{sVO}:{sVO + 1}], s[{sZ}:{sZ + 1}], s{sF}")
    e(f"  s_movk_i32 s{sNEED}, 768")
    common()
    e(f"  v_lshrrev_b32 {vr(w_)}, 6, v0")
    e(f"  v_lshrrev_b32 {vr(s_)}, 4, v0")
    e(f"  v_and_b32 {vr(vC8)}, 0x70, {vr(vC16)}")
    e(f"  v_readfirstlane_b32 s{sW}, {vr(w_)}")
    e(f"  v_add_u32 {vr(vAD)}, {vr(vC8)}, {vr(s_)}")
    e(f"  s_mul_i32 s{sT0}, s{sJ}, 44")
    e(f"  s_sub_u32 s{sT0}, 86, s{sT0}")
    e(f"  v_cmp_eq_u32 vcc, s{sT0}, {vr(vAD)}")
    e(f"  v_mov_b32 {vr(t0)}, 0x80")
    e(f"  s_mov_b32 s{rA + 2}, {UB}")
    e(f"  v_cndmask_b32 {vr(vAD)}, {vr(vAD)}, {vr(t0)}, vcc")
    e(f"  v_mul_u32_u24 {vr(t0)}, 381, {vr(vAD)}")
    e(f"  s_mul_i32 s{sT0}, s{sJ}, 43")
    e(f"  v_add_u32 {vr(t0)}, 2, {vr(t0)}")
    e(f"  v_lshrrev_b32 {vr(t0)}, 14, {vr(t0)}")
    assert all((381 * i + 2) >> 14 == (i >= 43) + (i >= 86) for i in range(129))
    e(f"  v_mad_u32_u24 {vr(t0)}, {vr(t0)}, 42, {vr(vAD)}")
    e(f"  v_add_u32 {vr(t0)}, s{sT0}, {vr(t0)}")
    e(f"  v_cvt_f32_u32 {vr(vRF)}, {vr(t0)}")
    e(f"  v_mul_u32_u24 {vr(vAD)}, 384, {vr(vAD)}")
    e(f"  s_mov_b32 s{rA + 3}, 0x20000")
    srd_head(rA, sQK, sC)
    e(f"  s_lshl_b32 s{sT0}, s{sJ}, 15")
    e(f"  v_lshl_add_u32 {vr(voff + RUN.index(0))}, v0, 4, s{sT0}")
    for k in (1, 2):
        e(f"  v_add_u32 {vr(voff + RUN.index(k))}, {65536 * k:#x}, {vr(voff + RUN.index(0))}")
    for i in range(1, 8):
        e(f"  s_movk_i32 s{sOF + i}, {4096 * i}")
    nk = [NF]
    assert PRE <= RING and max(int(v) for v in P.kp_.split(",")[:P.su + 1]) <= min(SPECIAL)

    def k_loads(hi):
        while nk[0] < min(hi, PRE):
            ld(nk[0])
            nk[0] += 1

    def toff_(n):
        run = RUN[n >> 3]
        return 384 * (16 * (((n & 7) + run) // 3) + 38 * run)

    def setup():
        e("; per chunk class k: q operand, table and partial addresses")
        e(f"  s_lshl1_add_u32 s{sF}, s{sJ}, s{sW}")
        e(f"  s_lshl_b32 s{sF}, s{sF}, 1")
        e(f"  s_lshr_b32 s{sF}, 0x4924, s{sF}")
        e(f"  v_bfe_u32 {vr(t1)}, v0, 4, 2")
        e(f"  v_lshl_add_u32 {vr(t1)}, {vr(t1)}, 2, {vr(vC16)}")
        e(f"  v_mad_u32_u24 {vr(vF)}, {vr(w_)}, s{sNEED}, {vr(t1)}")
        e(f"  v_add_u32 {vr(vF)}, {PB - 3072}, {vr(vF)}")
        e(f"  s_mul_i32 s{sT1}, s{sJ}, {43 * 384}")
        e(f"  s_sub_u32 s{sT1}, {TB}, s{sT1}")
        e(f"  v_lshl_add_u32 {vr(vSum)}, s{sJ}, 7, {vr(s_)}")
        for k in range(3):
            e(f"  s_bfe_u32 s{sT0}, s{sF}, {(2 << 16) | 2 * k:#x}")
            e(f"  v_lshl_add_u32 {vr(vPA + k)}, s{sT0}, 8, {vr(vF)}")
            if k:
                e(f"  v_add_u32 {vr(vSum)}, 16, {vr(vSum)}")
            e(f"  v_mul_u32_u24 {vr(t0)}, 171, {vr(vSum)}")
            e(f"  v_lshrrev_b32 {vr(t0)}, 9, {vr(t0)}")
            e(f"  v_mad_i32_i24 {vr(t1)}, {vr(t0)}, -3, {vr(vSum)}")
            e(f"  v_lshl_add_u32 {vr(t1)}, {vr(t1)}, 8, {vr(vC16)}")
            e(f"  v_add_u32 {vr(vQA + k)}, {QB}, {vr(t1)}")
            e(f"  v_subrev_u32 {vr(vSu2)}, 384, {vr(t1)}")
            e(f"  v_min_u32 {vr(t1)}, {vr(t1)}, {vr(vSu2)}")
            e(f"  v_mul_u32_u24 {vr(t0)}, 384, {vr(t0)}")
            e(f"  v_add3_u32 {vr(vTA + k)}, {vr(t0)}, {vr(t1)}, s{sT1}")
        e(f"  v_lshl_add_u32 {vr(vSum)}, s{sJ}, 4, {vr(s_)}")
        for n, i in SPECIAL.items():
            run, sx = RUN[n >> 3], 15 * (n & 7 == 7)
            b = int(run == 0)
            g0, g1 = 256 * run + 128 * b + 16 * (n & 7) + sx, chunk_of(b, n, sx)
            dt = 384 * (tidx(b, g1 // 3) - (g0 // 3 - 43 * b - 42 * run))
            e(f"  v_cmp_eq_u32 vcc, {16 * b + sx}, {vr(vSum)}")
            e(f"  v_add_u32 {vr(t0)}, {256 * (g1 - g0) & 0xffffffff:#x}, {vr(voff + (n >> 3))}")
            e(f"  v_add_u32 {vr(t1)}, {toff_(n)}, {vr(vTA + TN[n])}")
            e(f"  v_add_u32 {vr(vSu2)}, {dt & 0xffffffff:#x}, {vr(t1)}")
            e(f"  v_cndmask_b32 {vr(voff + 3 + i)}, {vr(voff + (n >> 3))}, {vr(t0)}, vcc")
            e(f"  v_cndmask_b32 {vr(vTA + 3 + i)}, {vr(t1)}, {vr(vSu2)}, vcc")
        e(f"  v_lshlrev_b32 {vr(vLB)}, 2, v0")
        e(f"  v_add_u32 {vr(vLB)}, {LGB}, {vr(vLB)}")
        e(f"  v_lshrrev_b32 {vr(t1)}, 1, v0")
        e(f"  v_lshlrev_b32 {vr(t1)}, 2, {vr(t1)}")
        e(f"  v_add_u32 {vr(vLB + 1)}, {LGB + 1024}, {vr(t1)}")
        e(f"  v_subrev_u32 {vr(vLG)}, 1536, {vr(vLB)}")
        e(f"  v_subrev_u32 {vr(vLG + 1)}, 1536, {vr(vLB + 1)}")
        e(f"  v_lshlrev_b32 {vr(vPW)}, 2, {vr(w_)}")
        e(f"  s_mov_b32 s{sMSK}, 0xcccccccc")
        e(f"  s_mov_b32 s{sMSK + 1}, s{sMSK}")
        e(f"  s_mov_b32 s{sMSK + 2}, 0xaaaaaaaa")
        e(f"  s_mov_b32 s{sMSK + 3}, s{sMSK + 2}")
        e(f"  s_mov_b32 s{rB + 2}, {UB}")
        e(f"  s_mov_b32 s{rB + 3}, 0x20000")
        e(f"  s_mov_b32 s{sK}, 0")
        if P.ctl:
            e("; progress slots: this wave writes one byte of line (half, w) and samples the lines of the other half")
            die_base(sF)
            e(f"  s_add_u32 s{sT0}, s{sF}, 2048")
            e(f"  v_mov_b32 {vr(vBA)}, s{sT0}")
            e(f"  s_and_b32 s{sT1}, s{sSE}, 2")
            e(f"  s_lshl_b32 s{sT1}, s{sT1}, 9")
            e(f"  s_lshl_b32 s{sT0}, s{sW}, 8")
            e(f"  s_add_u32 s{sT0}, s{sT0}, s{sT1}")
            e(f"  s_add_u32 s{sT0}, s{sT0}, s{sF}")
            e(f"  s_add_u32 s{sT0}, s{sT0}, s{sCU}")
            e(f"  s_and_b32 s{sSE}, s{sSE}, 1")
            e(f"  s_lshl_b32 s{sSE}, s{sSE}, 4")
            e(f"  s_add_u32 s{sT0}, s{sT0}, s{sSE}")
            e(f"  v_mov_b32 {vr(vPS)}, s{sT0}")
            e(f"  s_xor_b32 s{sT1}, s{sT1}, 1024")
            e(f"  s_add_u32 s{sF}, s{sF}, s{sT1}")
            e(f"  v_and_b32 {vr(vN)}, 1, v0")
            e(f"  v_lshl_add_u32 {vr(vN)}, {vr(vN)}, 4, s{sF}")
            for k in range(4):
                e(f"  v_add_u32 {vr(vSum)}, {k}, {vr(w_)}")
                e(f"  v_and_b32 {vr(vSum)}, 3, {vr(vSum)}")
                e(f"  v_lshl_add_u32 {vr(vPL + k)}, {vr(vSum)}, 8, {vr(vN)}")
            e(f"  s_mov_b32 s{sLO}, {(-(LAG + 2) * 0x01010101) & 0xffffffff:#x}")
            for k in range(4 * LAG):
                e(f"  v_mov_b32 {vr(smp + k)}, 0")
            for k in range(2):
                e(f"  v_mov_b32 {vr(vBI + k)}, 0")
            e(f"  v_mov_b32 {vr(vN)}, 0")
            e(f"  s_mov_b32 s{sB}, 0")
            e(f"  s_mov_b32 s{sS}, {P.s0}")
            e(f"  s_mov_b32 s{sI}, 0")
            e(f"  s_mov_b32 s{sCO}, 0")

    def sincos(dst, iv):
        for h in (0, 2):
            e(f"  v_pk_mul_f32 {vr(tN + h, 2)}, {vr(iv + h, 2)}, {vr(tK + 2, 2)} op_sel:[0,1] op_sel_hi:[1,1]")
        for i in range(4):
            e(f"  v_cos_f32 {vr(tA + i)}, {vr(tN + i)}")
        for i in range(4):
            e(f"  v_sin_f32 {vr(tN + i)}, {vr(tN + i)}")
        for i in range(4):
            e(f"  v_cvt_pk_f16_f32 {vr(dst + i)}, {vr(tA + i)}, {vr(tN + i)}")

    kp = [int(v) for v in P.kp_.split(",")]

    def chunk(i):
        a = 2 * (i // 3)
        d = tO + 4 * (i & 1)
        bc_ = lambda x, m: f"row_newbcast:{x} row_mask:0xf bank_mask:{m:#x}"
        if i % 3 == 1:
            e(f"  v_mov_b32_dpp {vr(pos)}, {vr(vRF)} {bc_(a + 1, 12)}")
            e(f"  v_add_u32_dpp {vr(vF)}, {vr(vAD)}, {vr(vC8)} {bc_(a, 3)}")
            e(f"  v_add_u32_dpp {vr(vF)}, {vr(vAD)}, {vr(vC8)} {bc_(a + 1, 12)}")
            sincos(d, invY)
            e(f"  ds_write_b128 {vr(vF)}, {vr(d, 4)} offset:{TB + 256}")
        else:
            a += i % 3 // 2
            e(f"  v_mov_b32_dpp {vr(pos)}, {vr(vRF)} {bc_(a, 15)}")
            e(f"  v_add_u32_dpp {vr(vF)}, {vr(vAD)}, {vr(vC16)} {bc_(a, 15)}")
            sincos(d, invX)
            e(f"  ds_write_b128 {vr(vF)}, {vr(d, 4)} offset:{TB}")

    def tab_read(a):
        for n in range(3 * a, 3 * a + 3):
            d = tab + 12 * (a & 1) + 4 * (n % 3)
            if n in SPECIAL:
                e(f"  ds_read_b128 {vr(d, 4)}, {vr(vTA + 3 + SPECIAL[n])}")
            else:
                e(f"  ds_read_b128 {vr(d, 4)}, {vr(vTA + TN[n])} offset:{toff_(n)}")

    k_loads(kp[0])
    pf()
    e(f"  s_waitcnt vmcnt({nk[0]})")
    pf()
    for i in range(12):
        if i == P.su:
            setup()
            pf()
        chunk(i)
        k_loads(kp[i + 1])
        if i % 3 == 2:
            pf()
    k_loads(PRE)
    e(f"  v_mov_b32 {vr(bc)}, {f32bits(-7.5):#x}")
    e("  s_waitcnt lgkmcnt(0)")
    for k in range(8):
        e(f"  v_writelane_b32 {vr(vU)}, s{16 + k}, {k}")
    e("  s_barrier")
    pf()
    for k in range(3):
        e(f"  ds_read_b128 {vr(qa + 4 * k, 4)}, {vr(vQA + k)}")
    tab_read(0)
    e(f"  s_waitcnt vmcnt({PRE - ORD['K'][:ORD['K'].index('L')].count('b')})")
    pf()
    if P.tfine:
        e("  s_waitcnt lgkmcnt(0)")
        for k in range(pfn[0]):
            e(f"  v_writelane_b32 {vr(vtr)}, s{PFR[k]}, {k}")
        e(f"  s_mov_b32 m0, {pfn[0]}")

    def vfirst():
        e(f"  s_and_b32 s{sH}, s{sVO}, 15")
        e(f"  s_add_u32 s{sNEED}, s{sH}, 1")
        e(f"  ds_read_b32 {vr(vF)}, {vr(vZ)} offset:{FL + 20}")
        flagwait("a0", FL + 20)
        e(f"  s_mulk_i32 s{sH}, 1536")
        for k in range(2):
            e(f"  v_add_u32 {vr(vLV + k)}, s{sH}, {vr(vLB + k)}")
        e(f"  ds_read_b32 {vr(A)}, {vr(vLV)}")


    def knext():
        e("; next SRD: K slot k + 1, or the first V step once K runs out")
        e(f"  s_add_u32 s{sH}, s{sK}, 1")
        e(f"  s_sub_u32 s{sT1}, s{sH}, 16")
        vstep_k(sF, sT1)
        e(f"  s_cmp_lt_u32 s{sH}, 16")
        e(f"  s_cselect_b32 s{sH}, s{sH}, s{sF}")
        e(f"  s_cselect_b32 s{sX}, s{sQK}, s{sQV}")
        e(f"  s_cselect_b32 s{sX + 1}, s{sQK + 1}, s{sQV + 1}")
        head_of(sH, sH)
        srd_head(rB, sX, sH)

    def kred(n):
        dpp = lambda d, x, how, m: e(f"  v_add_f32_dpp {vr(d)}, {vr(x)}, {vr(x)} {how} row_mask:0xf bank_mask:{m:#x}")
        dpp(M1, dacc, "row_ror:8", 12 if n & 1 else 3)
        if n % 2 == 1:
            e("  s_nop 1")
            dpp(M2, M1, "row_half_mirror", 10 if n & 2 else 5)
        if n % 4 == 3:
            e("  s_nop 1")
            dpp(M2 if n & 4 else M3, M2, "quad_perm:[2,3,0,1]", 15)
        if n % 8 == 7:
            e(f"  v_cndmask_b32_e64 {vr(M3)}, {vr(M3)}, {vr(M2)}, s[{sMSK}:{sMSK + 1}]")
            e("  s_nop 1")
            dpp((LG, M3, LG + 1)[n >> 3], M3, "quad_perm:[1,0,3,2]", 15)
        if n == 15:
            e(f"  v_cndmask_b32_e64 {vr(LG)}, {vr(LG)}, {vr(M3)}, s[{sMSK + 2}:{sMSK + 3}]")

    e(".p2align 6")
    e("L_k:")

    def kbody(n):
        k_, q_ = ring + 4 * n, qa + 4 * TN[n]
        for i in range(4):
            e(f"  v_dot2_f32_f16 {vr(wt + i)}, {vr(tab + 12 * (n // 3 & 1) + 4 * (n % 3) + i)}, {vr(q_ + i)}, 0")
        for i in range(4):
            e(f"  v_cvt_f32_i32 {vr(k_ + i)}, {vr(k_ + i)}")
        if n >= 21:
            e(f"  ds_read_b128 {vr(q_, 4)}, {vr(vQA + TN[n])}")
        for h in range(2):
            e(f"  v_pk_add_f32 {vr(k_ + 2 * h, 2)}, {vr(k_ + 2 * h, 2)}, {vr(bc, 2)} op_sel_hi:[1,0]")
        e(f"  v_pk_mul_f32 {vr(dacc, 2)}, {vr(k_, 2)}, {vr(wt, 2)}")
        e(f"  v_pk_fma_f32 {vr(dacc, 2)}, {vr(k_ + 2, 2)}, {vr(wt + 2, 2)}, {vr(dacc, 2)}")
        e(f"  v_add_f32 {vr(dacc)}, {vr(dacc)}, {vr(dacc + 1)}")

    def kout():
        e(f"  v_mov_b32 {vr(vF)}, s{sK}")
        for k in range(2):
            e(f"  ds_write_b32 {vr(vLG + k)}, {vr(LG + k)}")
        e(f"  ds_write_b32 {vr(vPW)}, {vr(vF)} offset:{FL}")

    def group(ph, a, body, after, res):
        nb, pend = 3 * a, None
        od = ORD[ph]
        for i, c in enumerate(od):
            if pend is not None and c != "L":
                if od[i - 1] == "b":
                    e("  s_nop 1")
                after(pend)
                pend = None
            if c == "E":
                evaluate(ph, a)
                if od[i + 1] != "X":
                    decide(ph, a)
            if c == "X":
                exchange(a)
                if od[i - 1] == "E":
                    decide(ph, a)
            if c == "R" and a == 0:
                res()
            if c == "b":
                body(nb)
                pend = nb if after else None
                nb += 1
            if c == "L":
                issue(ph, a, i)
        if pend is not None:
            if od[-1] == "b":
                e("  s_nop 1")
            after(pend)

    for a in range(8):
        if a == 7:
            flagwait("qn", FL + 16)
        else:
            e("  s_waitcnt lgkmcnt(0)")
        tab_read((a + 1) % 8)
        if a == 6:
            e(f"  ds_read_b32 {vr(vF)}, {vr(vZ)} offset:{FL + 16}")
        group("K", a, kbody, kred, kout)
        if a == 1:
            knext()
        if a == 3:
            e(f"  s_add_u32 s{sT0}, s{sK}, 2")
            e(f"  s_min_u32 s{sNEED}, s{sT0}, 16")
            for k in range(3):
                e(f"  v_add_u32 {vr(vQA + k)}, 768, {vr(vQA + k)}")
            for k in range(2):
                e(f"  v_add_u32 {vr(vLG + k)}, 1536, {vr(vLG + k)}")
            e(f"  s_cmp_eq_u32 s{sK}, 15")
            e("  s_cbranch_scc1 L_kv")
            e("L_kw:")
        if a in (3, 7) or P.tfine:
            tr()
    assert sorted(TN[21:]) == [0, 1, 2] and TN[:3] == TN[3:6] and sorted(TN[:3]) == [0, 1, 2] and PRE <= 18
    e(f"  s_add_u32 s{sK}, s{sK}, 1")
    e(f"  s_mov_b64 s[{rA}:{rA + 1}], s[{rB}:{rB + 1}]")
    e(f"  s_cmp_lt_u32 s{sK}, 16")
    e("  s_cbranch_scc1 L_k")


    def vbody(n):
        v_ = ring + 4 * n
        e(f"  v_mov_b32_dpp {vr(bc)}, {vr(A + n // 16)} row_newbcast:{rev(n % 16, 4)} row_mask:0xf bank_mask:0xf")
        for i in range(4):
            e(f"  v_cvt_f32_i32 {vr(v_ + i)}, {vr(v_ + i)}")
        for h in range(2):
            d = 4 * TN[n] + 2 * h
            if n < 3:
                e(f"  v_pk_mul_f32 {vr(tmp + d, 2)}, {vr(v_ + 2 * h, 2)}, {vr(bc, 2)} op_sel_hi:[1,0]")
            else:
                e(f"  v_pk_fma_f32 {vr(acc + d, 2)}, {vr(v_ + 2 * h, 2)}, {vr(bc, 2)}, {vr((tmp if n < 6 else acc) + d, 2)} op_sel_hi:[1,0,1]")

    def vout(last=False):
        for j in range(3):
            e(f"  v_permlane32_swap_b32 {vr(acc + 4 * j)}, {vr(acc + 4 * j + 2)}")
            e(f"  v_permlane32_swap_b32 {vr(acc + 4 * j + 1)}, {vr(acc + 4 * j + 3)}")
        for j in range(3):
            e(f"  v_add_f32 {vr(acc + 4 * j)}, {vr(acc + 4 * j)}, {vr(acc + 4 * ((j + 1) % 3) + 2)}")
            e(f"  v_add_f32 {vr(acc + 4 * j + 1)}, {vr(acc + 4 * j + 1)}, {vr(acc + 4 * ((j + 1) % 3) + 3)}")
        for j in range(3):
            e(f"  v_permlane16_swap_b32 {vr(acc + 4 * j)}, {vr(acc + 4 * j + 1)}")
        for j in range(3):
            e(f"  v_add_f32 {vr(acc + 4 * j)}, {vr(acc + 4 * j)}, {vr(acc + 4 * ((j + 2) % 3) + 1)}")
        for j in range(3):
            e(f"  ds_write_b32 {vr(vPA + j)}, {vr(acc + 4 * j)}")
        if not last:
            e(f"  ds_write_b32 {vr(vPW)}, {vr(M1)} offset:{FL}")
            e("L_v0:")

    def vnext():
        e(f"  s_add_u32 s{sT1}, s{sK}, 1")
        e(f"  s_min_u32 s{sT1}, s{sT1}, 15")
        vstep_k(sH, sT1)
        e(f"  s_add_u32 s{sNEED}, s{sH}, 1")
        e(f"  s_mul_i32 s{sF}, s{sH}, 1536")
        head_of(sH, sH)
        srd_head(rB, sQV, sH)
        for k in range(2):
            e(f"  v_add_u32 {vr(vLV + k)}, s{sF}, {vr(vLB + k)}")

    NS, NT = (PRE - PD) // 3, 8 - PD // 3
    assert NS <= 1 and 4 <= NT <= 5 and (NS or P.ov[0] == "R") and max(P.mg, P.ml) <= 3 * NT
    e("L_vpre:")
    kout()
    e(f"  s_mov_b32 s{sK}, 0")
    e(f"  v_mov_b32 {vr(M1)}, 16")
    if NS:
        for n in range(3):
            e(f"  s_waitcnt vmcnt({plain[384 + n]})")
            vbody(n)
        e(f"  s_waitcnt vmcnt({plain[387]}) lgkmcnt(0)")
        e("  s_branch L_v1")
    else:
        e("  s_waitcnt lgkmcnt(3)")
        e("  s_branch L_v0")
    flush()
    e("L_kv:")
    vfirst()
    e("  s_branch L_kw")
    flush()
    e(".p2align 6")
    e("L_v:")
    for a in range(8):
        if a == 1:
            e("L_v1:")
            e(f"  ds_read_b32 {vr(A + 1)}, {vr(vLV + 1)}")
        if a == NT:
            e(f"  s_cmp_eq_u32 s{sK}, 15")
            e("  s_cbranch_scc1 L_vt")
        if a in (5, 7):
            e("  s_waitcnt lgkmcnt(0)")
        if a == 5:
            e(f"  ds_read_b32 {vr(vF)}, {vr(vZ)} offset:{FL + 20}")
        if a == 6:
            flagwait("an", FL + 20)
            e(f"  ds_read_b32 {vr(A)}, {vr(vLV)}")
        group("V", a, vbody, None, vout)
        if a == 1:
            vnext()
        if a == 3:
            e(f"  v_add_u32 {vr(M1)}, 1, {vr(M1)}")
            for j in range(3):
                e(f"  v_add_u32 {vr(vPA + j)}, 3072, {vr(vPA + j)}")
        if a in (3, 7):
            tr()
    e(f"  s_add_u32 s{sK}, s{sK}, 1")
    e(f"  s_mov_b64 s[{rA}:{rA + 1}], s[{rB}:{rB + 1}]")
    e("  s_branch L_v")
    flush()
    e("L_vt:")
    e("  s_waitcnt lgkmcnt(0)")
    for n in range(3 * NT, 24):
        e(f"  s_waitcnt vmcnt({plain[744 + n]})")
        vbody(n)
    tr()
    e("  s_nop 1")
    vout(True)
    e("  s_waitcnt lgkmcnt(0)")
    e("  s_barrier")
    if P.trace:
        e(f"  s_mul_i32 s8, s2, {5 * 256}")
        e("  s_add_u32 s8, s8, 0x100000")
        e(f"  v_lshl_add_u32 {vr(t0)}, v0, 2, s8")
        e(f"  global_store_dword {vr(t0)}, {vr(vtr)}, s[{sWS}:{sWS + 1}]")
    e("  s_endpgm")

    HP = [4, 6, 24, 8, 10, 36, 38, 72]
    ms = [m for m in range(P.r0, P.r1 + 1) if m < P.rf or m > P.rt or (m - P.r0) % P.rp == 0]
    gain = [(P.kp0 if m <= P.kn else P.kp) if m in ms else 0 for m in range(32)]
    if P.rk:
        gain = [int(c, 16) for c in P.rk]
        assert len(gain) == 32 and not any(gain[:P.r0]) and not gain[31]
    msk = sum(1 << m for m in range(32) if gain[m])

    def hp(k):
        if P.hprof:
            e(f"  s_memrealtime s[{HP[k]}:{HP[k] + 1}]")

    def progwait(name, slp, off=FL):
        e(f"L_{name}:")
        e(f"  ds_read_b128 {vr(pr, 4)}, {vr(vZ)} offset:{off}")
        e("  s_waitcnt lgkmcnt(0)")
        e(f"  v_min_u32 {vr(pr)}, {vr(pr)}, {vr(pr + 1)}")
        e(f"  v_min3_u32 {vr(pr)}, {vr(pr)}, {vr(pr + 2)}, {vr(pr + 3)}")
        e("  s_nop 0")
        e(f"  v_readfirstlane_b32 s{sF}, {vr(pr)}")
        e(f"  s_cmp_ge_u32 s{sF}, s{sNEED}")
        e(f"  s_cbranch_scc1 L_{name}_ok")
        budget(f"L_{name}_ok")
        if slp:
            e(f"  s_sleep {slp}")
        e(f"  s_branch L_{name}")
        e(f"L_{name}_ok:")

    def rowred(op, v):
        for n in (8, 4, 2, 1):
            e("  s_nop 1")
            e(f"  {op}_dpp {vr(v)}, {vr(v)}, {vr(v)} row_ror:{n} row_mask:0xf bank_mask:0xf")

    def allred(op, v, t):
        rowred(op, v)
        for sw in ("v_permlane16_swap_b32", "v_permlane32_swap_b32"):
            e(f"  v_mov_b32 {vr(t)}, {vr(v)}")
            e("  s_nop 1")
            e(f"  {sw} {vr(v)}, {vr(t)}")
            e(f"  {op} {vr(v)}, {vr(v)}, {vr(t)}")

    def sum_partials(nq):
        w = 4 * nq
        for k in range(4):
            for q in range(nq):
                e(f"  ds_read_b128 {vr(x + w * k + 4 * q, 4)}, {vr(h0)} offset:{768 * k + 16 * q}")
        e(f"  ds_read_b128 {vr(z4, 4)}, {vr(h1)} offset:{ST}")
        e("  s_waitcnt lgkmcnt(0)")
        for h in range(0, w, 2):
            e(f"  v_pk_add_f32 {vr(x + h, 2)}, {vr(x + h, 2)}, {vr(x + w + h, 2)}")
            e(f"  v_pk_add_f32 {vr(x + 2 * w + h, 2)}, {vr(x + 2 * w + h, 2)}, {vr(x + 3 * w + h, 2)}")
        for h in range(0, w, 2):
            e(f"  v_pk_add_f32 {vr(x + h, 2)}, {vr(x + h, 2)}, {vr(x + 2 * w + h, 2)}")
        for h in range(0, w, 2):
            e(f"  v_pk_add_f32 {vr(x + h, 2)}, {vr(x + h, 2)}, {vr(z4 + 2, 2)} op_sel_hi:[1,0] neg_lo:[0,1] neg_hi:[0,1]")

    def mark(tag):
        if P.sd:
            e("  s_memrealtime s[72:73]")
            e("  s_waitcnt lgkmcnt(0)")
            e("  s_sub_u32 s75, s72, s74")
            e("  s_mov_b32 s74, s72")
            e(f"  s_add_u32 s72, s{sNEED}, {64 - P.sd}")
            e("  s_and_b32 s73, s72, 1")
            e("  s_lshl_b32 s73, s73, 4")
            e("  s_min_u32 s75, s75, 510")
            e("  s_lshl_b32 s75, s75, s73")
            e("  s_lshr_b32 m0, s72, 1")
            e(f"  v_readlane_b32 s73, {vr(vCL)}, m0")
            e("  s_add_u32 s73, s73, s75")
            e(f"  v_writelane_b32 {vr(vCL)}, s73, m0")
        if not P.enc:
            return
        for k, m in enumerate(P.enc.split(",")[:2]):
            e(f"  s_cmp_eq_u32 s{sNEED}, {m}")
            e(f"  s_cbranch_scc0 L_mk{tag}{k}")
            e(f"  s_memrealtime s[{72 + 2 * k}:{73 + 2 * k}]")
            e(f"L_mk{tag}{k}:")

    def warm(tag):
        if not P.tw:
            return
        tm = sum(1 << int(v) for v in P.tm.split(","))
        if P.ts:
            e(f"  s_bfe_u32 s{sT0}, s2, {P.ts << 16 | 4:#x}")
            e(f"  s_add_u32 s{sX}, s{sNEED}, s{sT0}")
            e(f"  s_add_u32 s{sX}, s{sX}, {P.tw}")
        else:
            e(f"  s_add_u32 s{sX}, s{sNEED}, {P.tw}")
        e(f"  s_min_u32 s{sX}, s{sX}, 31")
        e(f"  s_cmp_eq_u32 s{sJ}, 0")
        e(f"  s_cselect_b32 s{sT0}, {tm:#x}, 0")
        e(f"  s_bitcmp1_b32 s{sT0}, s{sX}")
        e(f"  s_cbranch_scc0 L_tw{tag}")
        e(f"  s_sub_u32 s{sT1}, s{sX}, 16")
        vstep_k(sF, sT1)
        e(f"  s_cmp_lt_u32 s{sX}, 16")
        e(f"  s_cselect_b32 s{sF}, s{sX}, s{sF}")
        e(f"  s_cselect_b32 s{rB}, s{sQK}, s{sQV}")
        e(f"  s_cselect_b32 s{rB + 1}, s{sQK + 1}, s{sQV + 1}")
        head_of(sF, sF, hU)
        e(f"  s_mul_i32 s{sF}, s{sF}, {UB}")
        e(f"  s_add_u32 s{sF}, s{sF}, {65536 * RUN[0]}")
        if P.tv:
            e(f"  v_mov_b32 {vr(vFX)}, s{sF}")
            e("  s_mov_b64 exec, 1")
            e(f"  global_load_dword {vr(vFX)}, {vr(vFX)}, s[{rB}:{rB + 1}] nt")
            e("  s_mov_b64 exec, -1")
            e("  s_waitcnt vmcnt(0)")
        else:
            e(f"  s_load_dword s{sF}, s[{rB}:{rB + 1}], s{sF} {P.tg}")
            e("  s_waitcnt lgkmcnt(0)")
        e(f"L_tw{tag}:")

    def rank_post(tag):
        if not P.ctl:
            return
        e(f"  s_bitcmp1_b32 s{sRF}, s{sNEED}")
        e(f"  s_cbranch_scc0 L_fa{tag}")
        e(f"  s_mul_i32 s{sT0}, s{sNEED}, 384")
        e(f"  s_add_u32 s{sT0}, s{sT0}, {W_RK}")
        e(f"  s_mov_b32 s{sB}, 1")
        e(f"  s_atomic_add s{sB}, s[{sWS}:{sWS + 1}], s{sT0} glc")
        e(f"L_fa{tag}:")

    def rank_take(tag):
        if not P.ctl:
            return
        e(f"  s_bitcmp1_b32 s{sRF}, s{sNEED}")
        e(f"  s_cbranch_scc0 L_fb{tag}")
        e("  s_waitcnt lgkmcnt(0)")
        e(f"  s_min_u32 s{sF}, s{sB}, 15")
        e(f"  s_lshl_b32 s{sF}, s{sF}, 1")
        e(f"  s_sub_u32 s{sF}, s{sF}, 15")
        gs = sorted(set(gain) - {0})
        e(f"  s_mov_b32 s{sT0}, {gs[0]}")
        for g_ in gs[1:]:
            e(f"  s_bitcmp1_b32 {sum(1 << m for m in range(32) if gain[m] == g_):#x}, s{sNEED}")
            e(f"  s_cselect_b32 s{sT0}, {g_}, s{sT0}")
        e(f"  s_mul_i32 s{sF}, s{sF}, s{sT0}")
        e(f"  s_add_u32 s{sF}, s{sF}, 8")
        e(f"  s_ashr_i32 s{sF}, s{sF}, 4")
        e(f"  v_mov_b32 {vr(vFX)}, s{sF}")
        e("  s_mov_b64 exec, 1")
        e(f"  global_store_dword {vr(vFB)}, {vr(vFX)}, s[{sWS}:{sWS + 1}]")
        e("  s_mov_b64 exec, -1")
        e(f"L_fb{tag}:")

    HPF = [10, 16, 18, 20, 22, 72, 74, 76, 82, 96]
    hpn = [0]

    def hpf():
        if P.tfine:
            e(f"  s_memrealtime s[{HPF[hpn[0]]}:{HPF[hpn[0]] + 1}]")
            hpn[0] += 1

    e("L_helper:")
    e(f"  s_setprio {P.hp0}")
    hv = []

    def qmask(on):
        if on:
            e("  s_mov_b32 exec_lo, 0xffffff")
            e("  s_mov_b32 exec_hi, 0xffffff")
        else:
            e("  s_mov_b64 exec, -1")

    if P.st:
        e("; start the address translation of the small arrays right away")
        e("  s_waitcnt lgkmcnt(0)")
        e(f"  s_load_dwordx8 s[24:31], s[0:1], 80")
        for k, sp in enumerate((sQ, sKS, sVS)):
            e(f"  s_load_dword s{rA + k}, s[{sp}:{sp + 1}], 0")
    e(f"  v_and_b32 {vr(vL16)}, 0x1f0, {vr(vT16)}")
    e(f"  global_load_dwordx4 {vr(pr, 4)}, {vr(vL16)}, s[{sZ}:{sZ + 1}] offset:{D_QCS - PC0}")
    e(f"  global_load_dwordx4 {vr(f0, 4)}, {vr(vL16)}, s[{sZ}:{sZ + 1}] offset:{D_F0 - PC0}")
    e(f"  v_and_b32 {vr(vSh)}, 32, v0")
    e(f"  v_lshrrev_b32 {vr(vSh)}, 1, {vr(vSh)}")
    e(f"  v_lshrrev_b32 {vr(h1)}, 1, {vr(vL16)}")
    e(f"  s_movk_i32 s{sT1}, 384")
    if not P.st:
        e("  s_waitcnt lgkmcnt(0)")
    hpf()
    for p in range(2):
        e(f"  v_lshrrev_b32 {vr(hq + p)}, {vr(vSh)}, s{sE + 10 + p}")
        e(f"  v_and_b32 {vr(h0)}, 0xff, {vr(hq + p)}")
        e(f"  v_mad_u32_u24 {vr(ra + p)}, {vr(h0)}, s{sT1}, {vr(h1)}")
    qmask(1)
    for p in range(2):
        e(f"  global_load_dwordx2 {vr(rec + 4 * p, 2)}, {vr(ra + p)}, s[{sQ}:{sQ + 1}]")
        e(f"  global_load_dwordx2 {vr(rec + 4 * p + 2, 2)}, {vr(ra + p)}, s[{sQ}:{sQ + 1}] offset:192")
        hv.extend([("q", p)] * 2)
    qmask(0)
    hpf()
    common(not P.st)
    e(f"  s_lshl_b32 s{sT0}, s{sJ}, 10")
    e(f"  s_add_u32 s{sT0}, s{sT0}, L_hpos-L_pc")
    e(f"  v_add_u32 {vr(h0)}, s{sT0}, {vr(vT16)}")
    e(f"  global_load_dwordx4 {vr(st4, 4)}, {vr(h0)}, s[{sZ}:{sZ + 1}]")
    hv.append(("h", 0))
    e(f"  s_mov_b64 s[{sVO}:{sVO + 1}], s[{sE + 8}:{sE + 9}]")
    e(f"  v_mov_b32 {vr(l)}, v0")
    for i in range(4):
        e(f"  v_mov_b32 {vr(z4 + i)}, 0")
    for k in range(4):
        e(f"  ds_write_b128 {vr(vZ)}, {vr(z4, 4)} offset:{FL + 16 * k}")
    e(f"  s_mov_b32 s{sMASK}, 0xffff0000")
    e(f"  s_mov_b32 s{sSCALE}, {f32bits(math.log2(math.e) / math.sqrt(192.0)):#x}")
    e(f"  s_movk_i32 s{sC}, 784")
    e(f"  v_mad_u32_u24 {vr(wa)}, {vr(vSh)}, 48, {vr(vL16)}")
    e(f"  v_lshrrev_b32 {vr(vSq)}, 1, {vr(vSh)}")
    for p in range(8):
        e(f"  v_lshrrev_b32 {vr(ra + p)}, {vr(vSh)}, s{sE + p}")
    e("  s_waitcnt lgkmcnt(0)")
    hpf()
    if P.ctl:
        die_base(sF)
        e(f"  v_lshrrev_b32 {vr(h0)}, 1, {vr(l)}")
        e(f"  v_lshl_add_u32 {vr(vFX)}, {vr(h0)}, 8, s{sF}")
        e(f"  v_and_b32 {vr(h0)}, 1, {vr(l)}")
        e(f"  v_lshl_add_u32 {vr(vFX)}, {vr(h0)}, 4, {vr(vFX)}")
        e(f"  s_and_b32 s{sT1}, s{sSE}, 2")
        e(f"  s_lshl_b32 s{sT0}, s{sT1}, 9")
        e(f"  s_add_u32 s{sT0}, s{sT0}, s{sF}")
        e(f"  v_add_u32 {vr(vEL)}, s{sT0}, {vr(l)}")
        e(f"  s_lshl_b32 s{sT1}, s{sT1}, 1")
        e(f"  s_add_u32 s{sF}, s{sF}, s{sT1}")
        e(f"  s_add_u32 s{sF}, s{sF}, 2048")
        e(f"  v_mov_b32 {vr(vFB)}, s{sF}")
        e(f"  v_mul_u32_u24 {vr(vFA)}, 384, {vr(l)}")
        e(f"  v_add_u32 {vr(vFA)}, {W_RK}, {vr(vFA)}")
        e(f"  s_mov_b32 s{sRF}, 0")
        e("  s_mov_b64 exec, 0x3ffff")
        e(f"  global_store_dwordx4 {vr(vFX)}, {vr(z4, 4)}, s[{sWS}:{sWS + 1}]")
        e("  s_mov_b64 exec, -1")
    e(f"  s_waitcnt vmcnt({len(hv)})")
    for k in range(4):
        e(f"  v_lshlrev_b32 {vr(cs + k)}, 16, {vr(pr + k)}")
        e(f"  v_and_b32 {vr(cs + 4 + k)}, s{sMASK}, {vr(pr + k)}")

    def elect():
        if not P.ctl:
            return
        e(f"  s_cmp_eq_u32 s{sNEED}, {P.r0 - 1}")
        e("  s_cbranch_scc0 L_el")
        e(f"  s_bitcmp0_b32 s{sSE}, 0")
        e("  s_cbranch_scc0 L_el")
        e("  s_mov_b64 exec, 0xffff")
        e(f"  global_load_ubyte {vr(vFX)}, {vr(vEL)}, s[{sWS}:{sWS + 1}] sc1")
        e("  s_waitcnt vmcnt(0)")
        e(f"  v_cmp_ne_u32 s[{sZ}:{sZ + 1}], 0, {vr(vFX)}")
        e(f"  s_lshr_b32 s{sT0}, s{sZ}, s{sCU}")
        e(f"  s_bcnt1_i32_b32 s{sT0}, s{sT0}")
        pat = sum(1 << m for m in range(0, 32, P.rotl))
        e(f"  s_sub_u32 s{sT1}, s{sT0}, 1")
        e(f"  s_cmp_lt_u32 s{sT1}, {P.rotl}")
        e("  s_cbranch_scc0 L_el")
        e(f"  s_lshl_b32 s{sRF}, {pat:#x}, s{sT1}")
        e(f"  s_and_b32 s{sRF}, s{sRF}, {msk:#x}")
        e("L_el:")
        e("  s_mov_b64 exec, -1")

    def roleaddr(src):
        e(f"  v_bfe_u32 {vr(wb)}, {vr(src)}, 12, 2")
        e(f"  v_mul_u32_u24 {vr(h1)}, s{sC}, {vr(wb)}")
        e(f"  v_add_u32 {vr(h1)}, {QR}, {vr(h1)}")
        e(f"  v_add_u32 {vr(h0)}, {vr(h1)}, {vr(vL16)}")

    def rotate(p):
        L, Hh, LC, HS, HC, LS = x, x + 4, x + 8, x + 12, x + 16, x + 20
        roleaddr(hq + p)
        e(f"  v_mov_b32 {vr(h2)}, 0")
        qmask(1)
        if p == 0:
            hpf()
        e(f"  s_waitcnt vmcnt({hv[::-1].index(('q', p))})")
        if p == 0:
            hpf()
        for k in range(4):
            e(f"  v_lshlrev_b32 {vr(L + 2 * k)}, 16, {vr(rec + 4 * p + k)}")
            e(f"  v_and_b32 {vr(L + 2 * k + 1)}, s{sMASK}, {vr(rec + 4 * p + k)}")
        for d, q_, t_ in ((LC, L, cs), (HS, Hh, cs + 4), (HC, Hh, cs), (LS, L, cs + 4)):
            for h in (0, 2):
                e(f"  v_pk_mul_f32 {vr(d + h, 2)}, {vr(q_ + h, 2)}, {vr(t_ + h, 2)}")
        for i in range(4):
            e(f"  v_cvt_pk_bf16_f32 {vr(L + i)}, {vr(LC + i)}, {vr(HS + i)}")
            e(f"  v_cvt_pk_bf16_f32 {vr(Hh + i)}, {vr(HC + i)}, {vr(LS + i)}")
        for k in range(8):
            e(f"  v_lshlrev_b32 {vr(LC + k)}, 16, {vr(L + k)}")
            e(f"  v_and_b32 {vr(L + k)}, s{sMASK}, {vr(L + k)}")
        for h in (0, 2):
            e(f"  v_pk_add_f32 {vr(L + h, 2)}, {vr(LC + h, 2)}, {vr(L + h, 2)} neg_lo:[0,1] neg_hi:[0,1]")
            e(f"  v_pk_add_f32 {vr(Hh + h, 2)}, {vr(HS + h, 2)}, {vr(Hh + h, 2)}")
        for i in range(4):
            e(f"  v_cvt_pk_bf16_f32 {vr(Hh + i)}, {vr(L + i)}, {vr(Hh + i)}")
        for i in range(4):
            e(f"  v_lshlrev_b32 {vr(L + i)}, 16, {vr(Hh + i)}")
            e(f"  v_and_b32 {vr(Hh + i)}, s{sMASK}, {vr(Hh + i)}")
        for i in range(4):
            e(f"  v_max3_f32 {vr(h2)}, |{vr(L + i)}|, |{vr(Hh + i)}|, {vr(h2)}")
        qmask(0)
        rowred("v_max_f32", h2)
        e(f"  v_mov_b32 {vr(h3)}, {vr(h2)}")
        e("  s_nop 1")
        e(f"  v_permlane16_swap_b32 {vr(h2)}, {vr(h3)}")
        e(f"  v_max_f32 {vr(h2)}, {vr(h2)}, {vr(h3)}")
        e(f"  v_frexp_exp_i32_f32 {vr(h2)}, {vr(h2)}")
        e(f"  v_sub_u32 {vr(h3)}, 13, {vr(h2)}")
        e(f"  v_subrev_u32 {vr(h2)}, 13, {vr(h2)}")
        for i in range(8):
            e(f"  v_ldexp_f32 {vr(L + i)}, {vr(L + i)}, {vr(h3)}")
        e(f"  v_ldexp_f32 {vr(h2)}, s{sSCALE}, {vr(h2)}")
        qmask(1)
        e(f"  ds_write_b128 {vr(h0)}, {vr(L, 4)}")
        e(f"  ds_write_b128 {vr(h0)}, {vr(Hh, 4)} offset:384")
        e(f"  ds_write_b32 {vr(h1)}, {vr(h2)} offset:768")
        qmask(0)

    cu, su = x + 24, x + 28

    def angle(p):
        e(f"  v_and_b32 {vr(qn)}, 7, {vr(ra + p)}")
        e(f"  v_cvt_f32_u32 {vr(qn)}, {vr(qn)}")
        for h in (0, 2):
            e(f"  v_pk_mul_f32 {vr(su + h, 2)}, {vr(f0 + h, 2)}, {vr(qn, 2)} op_sel_hi:[1,0]")
        for i in range(4):
            e(f"  v_cos_f32 {vr(cu + i)}, {vr(su + i)}")
        for i in range(4):
            e(f"  v_sin_f32 {vr(su + i)}, {vr(su + i)}")

    def item(p):
        a_, b_, a2, b2 = x, x + 4, x + 8, x + 12
        roleaddr(ra + p)
        qmask(1)
        e(f"  ds_read_b128 {vr(a_, 4)}, {vr(h0)}")
        e(f"  ds_read_b128 {vr(b_, 4)}, {vr(h0)} offset:384")
        e(f"  ds_read_b32 {vr(qn + 2)}, {vr(h1)} offset:768")
        if p:
            angle(p)
        e(f"  v_mov_b32 {vr(qn + 3)}, {vr(wb)}")
        e(f"  v_mov_b32 {vr(h0)}, {2 * p + 2}")
        e("  s_waitcnt lgkmcnt(0)")
        for h in (0, 2):
            e(f"  v_pk_mul_f32 {vr(a2 + h, 2)}, {vr(a_ + h, 2)}, {vr(cu + h, 2)}")
            e(f"  v_pk_mul_f32 {vr(b2 + h, 2)}, {vr(b_ + h, 2)}, {vr(cu + h, 2)}")
        for h in (0, 2):
            e(f"  v_pk_fma_f32 {vr(a2 + h, 2)}, {vr(b_ + h, 2)}, {vr(su + h, 2)}, {vr(a2 + h, 2)}")
            e(f"  v_pk_fma_f32 {vr(b2 + h, 2)}, {vr(a_ + h, 2)}, {vr(su + h, 2)}, {vr(b2 + h, 2)} neg_lo:[1,0,0] neg_hi:[1,0,0]")
        for i in range(4):
            e(f"  v_cvt_pk_f16_f32 {vr(a_ + i)}, {vr(a2 + i)}, {vr(b2 + i)}")
            e(f"  v_cvt_pk_f16_f32 {vr(b_ + i)}, {vr(b2 + i)}, -{vr(a2 + i)}")
        e(f"  ds_write_b128 {vr(wa)}, {vr(a_, 4)} offset:{QB + 1536 * p}")
        e(f"  ds_write_b128 {vr(wa)}, {vr(b_, 4)} offset:{QB + 1536 * p + 384}")
        e(f"  ds_write_b64 {vr(vSq)}, {vr(qn + 2, 2)} offset:{QS + 16 * p}")
        e(f"  ds_write_b32 {vr(vZ)}, {vr(h0)} offset:{FL + 16}")
        qmask(0)

    angle(0)
    rotate(0)
    item(0)
    hpf()
    e("  s_waitcnt lgkmcnt(0)")
    e("  s_setprio 0")
    hpf()
    e("  s_barrier")
    hpf()
    for p in range(8):
        e(f"  v_and_b32 {vr(h0)}, 0x7ff, {vr(ra + p)}")
        e(f"  v_lshl_add_u32 {vr(h0)}, {vr(h0)}, 9, {vr(vL16)}")
        for i, sp in enumerate((sKS, sVS)):
            e(f"  s_mov_b32 m0, {SCB + SA * i + 1024 * p}")
            e("  s_nop 0")
            e(f"  global_load_lds_dwordx4 {vr(h0)}, s[{sp}:{sp + 1}] nt")
            hv.append(("s", p))
    rotate(1)
    for p in range(1, 8):
        item(p)
    if P.tw:
        for k in range(8):
            e(f"  v_writelane_b32 {vr(hU)}, s{sE + k}, {k}")
    e(f"  v_mov_b32 {vr(vSa)}, 0")
    e(f"  v_mov_b32 {vr(vSq)}, 0")
    e(f"  v_min_u32 {vr(u)}, 47, {vr(l)}")
    e(f"  v_lshlrev_b32 {vr(vL16)}, 4, {vr(u)}")
    for i in range(4):
        e(f"  v_mov_b32 {vr(sc + i)}, 0")
    e(f"  s_mov_b32 s{sNEED}, 1")
    e("  s_cmp_eq_u32 s2, 0")
    e("  s_cbranch_scc0 L_rc")
    e(f"  v_mov_b32 {vr(h0)}, {W_REC + 384 + 4}")
    e(f"  global_load_dword {vr(h1)}, {vr(h0)}, s[{sWS}:{sWS + 1}] sc1")
    if P.ctl:
        e(f"  s_mov_b64 exec, {msk:#x}")
        e(f"  global_store_dword {vr(vFA)}, {vr(vZ)}, s[{sWS}:{sWS + 1}] sc1")
    e("  s_mov_b64 exec, 1")
    e("  s_waitcnt vmcnt(0)")
    e(f"  v_and_b32 {vr(qn)}, 0x77777777, {vr(h1)}")
    e(f"  v_and_b32 {vr(h1)}, 0x88888888, {vr(h1)}")
    e(f"  v_add_u32 {vr(qn)}, 0x11111111, {vr(qn)}")
    e(f"  v_xor_b32 {vr(qn)}, {vr(qn)}, {vr(h1)}")
    e(f"  v_mov_b32 {vr(qn + 1)}, 1")
    e(f"  global_store_dwordx2 {vr(vZ)}, {vr(qn, 2)}, s[{sDBG}:{sDBG + 1}] sc1")
    e("  s_mov_b64 exec, -1")
    e("L_rc:")
    hpf()
    e("  s_waitcnt vmcnt(0)")
    hpf()
    if P.tfine:
        e("  s_waitcnt lgkmcnt(0)")
        e(f"  v_mov_b32 {vr(h0)}, 0")
        for k in range(hpn[0]):
            e(f"  v_writelane_b32 {vr(h0)}, s{HPF[k]}, {k}")
        e(f"  s_mul_i32 s{sT0}, s2, {5 * 256}")
        e(f"  s_add_u32 s{sT0}, s{sT0}, {0x100000 + 1024}")
        e(f"  v_lshl_add_u32 {vr(h1)}, v0, 2, s{sT0}")
        e(f"  global_store_dword {vr(h1)}, {vr(h0)}, s[{sWS}:{sWS + 1}]")
    for k in range(4):
        e(f"  v_and_b32 {vr(ro + 2 * k)}, 0xffff, {vr(st4 + k)}")
        e(f"  v_lshrrev_b32 {vr(ro + 2 * k + 1)}, 16, {vr(st4 + k)}")
    for k in range(2):
        e(f"  v_add_u32 {vr(ro + 6 + k)}, {SCB}, {vr(ro + 6 + k)}")
    if P.sd:
        e(f"  v_mov_b32 {vr(vCL)}, 0")
    e("L_hk:")
    for a in range(2):
        for k in range(2):
            e(f"  ds_read_u16_d16_hi {vr(sc + 2 * a + k)}, {vr(ro + 6 + k)} offset:{SA * a}")
    e(f"  ds_read_b64 {vr(z4 + 2, 2)}, {vr(vSq)} offset:{QS}")
    e(f"  v_add_u32 {vr(vSq)}, 8, {vr(vSq)}")
    progwait("hsw", P.psk)
    mark("s")
    rank_post("s")
    for k in range(6):
        e(f"  ds_read_b32 {vr(x + 4 + k)}, {vr(ro + k)} offset:{LGB}")
    e(f"  v_mul_f32 {vr(x + 2)}, {vr(z4 + 2)}, {vr(sc)}")
    e(f"  v_mul_f32 {vr(x + 3)}, {vr(z4 + 2)}, {vr(sc + 1)}")
    e("  s_waitcnt lgkmcnt(0)")
    e(f"  v_pk_add_f32 {vr(x, 2)}, {vr(x + 4, 2)}, {vr(x + 6, 2)}")
    e(f"  v_pk_add_f32 {vr(x, 2)}, {vr(x, 2)}, {vr(x + 8, 2)}")
    e(f"  v_mul_f32 {vr(x)}, {vr(x)}, {vr(x + 2)}")
    e(f"  v_mul_f32 {vr(x + 1)}, {vr(x + 1)}, {vr(x + 3)}")
    e(f"  v_max_f32 {vr(z4)}, {vr(x)}, {vr(x + 1)}")
    allred("v_max_f32", z4, h0)
    e(f"  v_sub_f32 {vr(x)}, {vr(x)}, {vr(z4)}")
    e(f"  v_sub_f32 {vr(x + 1)}, {vr(x + 1)}, {vr(z4)}")
    e(f"  v_exp_f32 {vr(x)}, {vr(x)}")
    e(f"  v_exp_f32 {vr(x + 1)}, {vr(x + 1)}")
    e("  s_nop 0")
    e(f"  v_add_f32 {vr(z4 + 1)}, {vr(x)}, {vr(x + 1)}")
    e(f"  v_mul_f32 {vr(x)}, {vr(x)}, {vr(sc + 2)}")
    e(f"  v_mul_f32 {vr(x + 1)}, {vr(x + 1)}, {vr(sc + 3)}")
    e(f"  v_add_f32 {vr(z4 + 2)}, {vr(x)}, {vr(x + 1)}")
    for k in range(6):
        e(f"  ds_write_b32 {vr(ro + k)}, {vr(x + (k & 1))} offset:{LGB}")
    e(f"  v_mul_f32 {vr(z4 + 2)}, {f32bits(7.5):#x}, {vr(z4 + 2)}")
    allred("v_add_f32", z4 + 1, h0)
    allred("v_add_f32", z4 + 2, h0)
    e(f"  v_mov_b32 {vr(h0)}, s{sNEED}")
    e(f"  ds_write_b128 {vr(vSa)}, {vr(z4, 4)} offset:{ST}")
    e(f"  ds_write_b32 {vr(vZ)}, {vr(h0)} offset:{FL + 20}")
    e(f"  v_add_u32 {vr(vSa)}, 16, {vr(vSa)}")
    for k in range(8):
        e(f"  v_add_u32 {vr(ro + k)}, {1536 if k < 6 else SL}, {vr(ro + k)}")
    rank_take("s")
    warm("s")
    elect()
    e("  s_waitcnt lgkmcnt(0)")
    e(f"  s_add_u32 s{sNEED}, s{sNEED}, 1")
    e(f"  s_cmp_le_u32 s{sNEED}, 16")
    e("  s_cbranch_scc1 L_hk")

    e(f"  v_and_b32 {vr(h0)}, 15, {vr(l)}")
    e(f"  v_lshlrev_b32 {vr(h0)}, 4, {vr(h0)}")
    e(f"  ds_read_b128 {vr(z4, 4)}, {vr(h0)} offset:{ST}")
    e(f"  v_lshrrev_b32 {vr(h1)}, 4, {vr(l)}")
    e(f"  v_mov_b32 {vr(h2)}, 0xff800000")
    for i in range(16):
        e(f"  v_mov_b32 {vr(AC + i)}, 0")
    e("  s_waitcnt lgkmcnt(0)")
    e(f"  v_cmp_eq_u32 vcc, {vr(h1)}, {vr(z4 + 3)}")
    e(f"  v_add_u32 {vr(h0)}, {PB}, {vr(vL16)}")
    e(f"  v_lshrrev_b32 {vr(u)}, 1, {vr(vL16)}")
    e(f"  v_cndmask_b32 {vr(vM)}, {vr(h2)}, {vr(z4)}, vcc")
    rowred("v_max_f32", vM)
    e(f"  v_sub_f32 {vr(vFc)}, {vr(z4)}, {vr(vM)}")
    e(f"  v_exp_f32 {vr(vFc)}, {vr(vFc)}")
    e(f"  s_mov_b32 s{sK}, 0")
    e(f"  v_cndmask_b32 {vr(vFc)}, 0, {vr(vFc)}, vcc")
    e(f"  v_mul_f32 {vr(vL)}, {vr(vFc)}, {vr(z4 + 1)}")
    rowred("v_add_f32", vL)
    e(f"  s_mul_i32 s{sT0}, s{sE + 15}, 384")
    e(f"  v_add_u32 {vr(u)}, s{sT0}, {vr(u)}")
    e("L_hp:")
    e(f"  s_lshr_b32 s{sT0}, s2, 4")
    e(f"  s_min_u32 s{sT0}, s{sT0}, 13")
    e(f"  s_cmp_eq_u32 s{sT0}, s{sK}")
    e("  s_cbranch_scc0 L_hc_ok")
    if P.ot == 1:
        e("; (the value is not used: address translation for the final store)")
        e(f"  s_load_dword s{sF}, s[{sOUT}:{sOUT + 1}], 0")
    if P.ot == 2:
        e("; (the value is not used: address translation for the final store)")
        e("  s_mov_b64 exec, 1")
        e(f"  global_load_dword {vr(vFX)}, {vr(vZ)}, s[{sOUT}:{sOUT + 1}]")
        e("  s_mov_b64 exec, -1")
        e("  s_waitcnt vmcnt(0)")
    e(f"  s_load_dwordx2 s[{sZ}:{sZ + 1}], s[{sDBG}:{sDBG + 1}], 0 glc")
    e("  s_waitcnt lgkmcnt(0)")
    e(f"  s_mov_b32 s{sTG}, s{sZ}")
    e(f"  s_cmp_eq_u32 s{sZ + 1}, 1")
    e("  s_cbranch_scc1 L_hc_ok")
    e("L_hc:")
    e(f"  global_load_dwordx2 {vr(pr, 2)}, {vr(vZ)}, s[{sDBG}:{sDBG + 1}] sc1")
    e("  s_waitcnt vmcnt(0)")
    e(f"  v_readfirstlane_b32 s{sTG}, {vr(pr)}")
    e(f"  v_readfirstlane_b32 s{sF}, {vr(pr + 1)}")
    e(f"  s_cmp_eq_u32 s{sF}, 1")
    e("  s_cbranch_scc1 L_hc_ok")
    budget("L_hc_ok")
    e("  s_sleep 64")
    e("  s_branch L_hc")
    e("L_hc_ok:")
    vstep_k(sH, sK)
    e(f"  s_lshl_b32 s{sT0}, s{sH}, 4")
    e(f"  v_mov_b32 {vr(h1)}, s{sT0}")
    for j in range(4):
        e(f"  v_readlane_b32 s{rA + j}, {vr(vFc)}, s{sH}")
        e(f"  s_add_u32 s{sH}, s{sH}, 16")
    e(f"  s_add_u32 s{sK}, s{sK}, 1")
    e(f"  s_add_u32 s{sNEED}, s{sK}, 16")
    progwait("hpw", P.psk)
    mark("p")
    hp(0)
    rank_post("p")
    sum_partials(1)
    for j in range(4):
        for i in range(4):
            e(f"  v_fmac_f32 {vr(AC + 4 * j + i)}, s{rA + j}, {vr(x + i)}")
    e(f"  v_add_u32 {vr(h0)}, 3072, {vr(h0)}")
    rank_take("p")
    warm("p")
    e(f"  s_cmp_lt_u32 s{sK}, 15")
    e("  s_cbranch_scc1 L_hp")

    if P.eprio:
        e(f"  s_setprio {P.eprio}")
    e(f"  s_lshr_b32 s{sH}, s{sVO + 1}, 28")
    e(f"  s_lshl_b32 s{sT0}, s{sH}, 4")
    e(f"  v_mov_b32 {vr(h1)}, s{sT0}")
    e(f"  s_add_u32 s{sH}, s{sH}, 48")
    e(f"  ds_read_b32 {vr(h1)}, {vr(h1)} offset:{ST + 8}")
    mx = x + 16
    for j in range(3):
        e(f"  v_max3_f32 {vr(mx + j)}, |{vr(AC + 4 * j)}|, |{vr(AC + 4 * j + 1)}|, |{vr(AC + 4 * j + 2)}|")
    for j in range(3):
        e(f"  v_max_f32_e64 {vr(mx + j)}, {vr(mx + j)}, |{vr(AC + 4 * j + 3)}|")
    for n in (8, 4, 2, 1):
        for j in range(3):
            e(f"  v_max_f32_dpp {vr(mx + j)}, {vr(mx + j)}, {vr(mx + j)} row_ror:{n} row_mask:0xf bank_mask:0xf")
    for sw in ("v_permlane16_swap_b32", "v_permlane32_swap_b32"):
        for j in range(3):
            e(f"  v_mov_b32 {vr(mx + 4 + j)}, {vr(mx + j)}")
        for j in range(3):
            e(f"  {sw} {vr(mx + j)}, {vr(mx + 4 + j)}")
        for j in range(3):
            e(f"  v_max_f32 {vr(mx + j)}, {vr(mx + j)}, {vr(mx + 4 + j)}")
    for j in range(3):
        e(f"  v_frexp_exp_i32_f32 {vr(mx + j)}, {vr(mx + j)}")
        e(f"  v_sub_u32 {vr(mx + 4 + j)}, 14, {vr(mx + j)}")
        e(f"  v_subrev_u32 {vr(mx + j)}, 14, {vr(mx + j)}")
        for i in range(4):
            e(f"  v_ldexp_f32 {vr(AC + 4 * j + i)}, {vr(AC + 4 * j + i)}, {vr(mx + 4 + j)}")
        for i in range(2):
            e(f"  v_cvt_pk_f16_f32 {vr(x + 2 * j + i)}, {vr(AC + 4 * j + 2 * i)}, {vr(AC + 4 * j + 2 * i + 1)}")
    for j in range(4):
        e(f"  v_readlane_b32 s{16 + j}, {vr(vM)}, {16 * j}")
        e(f"  v_readlane_b32 s{20 + j}, {vr(vL)}, {16 * j}")
    for j in range(3):
        e(f"  v_readlane_b32 s{rA + j}, {vr(mx + j)}, 0")
    e(f"  v_readlane_b32 s{rA + 3}, {vr(vFc)}, s{sH}")
    for k in range(6):
        e(f"  v_lshrrev_b32 {vr(h2)}, 1, {vr(x + k)}")
        e(f"  v_and_b32 {vr(h2)}, 0x10001, {vr(h2)}")
        e(f"  v_add_u32 {vr(x + k)}, {vr(x + k)}, {vr(h2)}")
    for j in range(3):
        e(f"  v_writelane_b32 {vr(x + 2 * j)}, s{16 + j}, 48")
        e(f"  v_writelane_b32 {vr(x + 2 * j)}, s{20 + j}, 49")
        e(f"  v_writelane_b32 {vr(x + 2 * j + 1)}, s{rA + j}, 49")
    e(f"  v_cmp_gt_u32 vcc, 48, {vr(l)}")
    e(f"  v_lshlrev_b32 {vr(h2)}, 2, {vr(l)}")
    e(f"  v_lshrrev_b32 {vr(h2)}, {vr(h2)}, s{sTG}")
    e(f"  v_mov_b32 {vr(h3)}, 0x10001")
    for i in range(2):
        e(f"  v_cndmask_b32 {vr(tg + 2 + i)}, 0, {vr(h3)}, vcc")
        e(f"  v_bfe_u32 {vr(tg + i)}, {vr(h2)}, {2 * i}, 2")
        e(f"  v_lshl_or_b32 {vr(tg + i)}, {vr(tg + i)}, 15, {vr(tg + i)}")
    e(f"  v_writelane_b32 {vr(tg + 3)}, -1, 48")
    e(f"  v_writelane_b32 {vr(tg + 3)}, s{sMASK}, 49")
    e(f"  v_writelane_b32 {vr(tg + 1)}, s{sTG}, 48")
    e(f"  v_writelane_b32 {vr(tg + 1)}, s{sTG}, 49")
    for i in range(2):
        e(f"  v_and_b32 {vr(tg + i)}, {vr(tg + i)}, {vr(tg + 2 + i)}")
    for k in range(6):
        e(f"  v_bfi_b32 {vr(x + k)}, {vr(tg + 2 + k % 2)}, {vr(tg + k % 2)}, {vr(x + k)}")
    e(f"  v_min_u32 {vr(h2)}, 55, {vr(l)}")
    for j in range(3):
        e(f"  v_lshl_add_u32 {vr(ra + j)}, {vr(h2)}, 3, s{sE + 12 + j}")
    e(f"  s_mul_i32 s{sT0}, s{sE + 15}, 1344")
    e(f"  s_add_u32 s{sT0}, s{sT0}, {W_REC}")
    e(f"  v_lshl_add_u32 {vr(ra + 3)}, {vr(h2)}, 3, s{sT0}")
    e("  s_waitcnt lgkmcnt(0)")
    if P.mg:
        e("; the stores leave part-way into the last step, where they disturb the read stream least")
        e(f"  s_mov_b32 s{sNEED}, {31 + (P.mg > 12)}")
        progwait("hmw", P.psl, FL + 32)
    hp(1)
    e("  s_mov_b32 exec_hi, 0xffffff")
    for j in range(3):
        if "w" not in P.xp:
            e(f"  global_store_dwordx2 {vr(ra + j)}, {vr(x + 2 * j, 2)}, s[{sWS}:{sWS + 1}] sc1")
    e("  s_mov_b64 exec, -1")
    if "r" in P.xp:
        e("  s_branch L_skip")
    if P.ml:
        e(f"  s_mov_b32 s{sNEED}, {31 + (P.ml > 12)}")
        progwait("hlw", P.psl, FL + 48)
    else:
        e(f"  s_waitcnt vmcnt({P.aw})")
    hp(2)
    hp(3)
    e("L_hw:")
    hp(4)
    for j in range(3):
        e(f"  global_load_dwordx2 {vr(rec + 2 * j, 2)}, {vr(ra + 3)}, s[{sWS}:{sWS + 1}] offset:{448 * j} sc1")
    e("  s_waitcnt vmcnt(0)")
    hp(5)
    for k in range(6):
        e(f"  v_xor_b32 {vr(rec + k)}, {vr(rec + k)}, {vr(tg + k % 2)}")
    for i in range(2):
        e(f"  v_or3_b32 {vr(h2 + i)}, {vr(rec + i)}, {vr(rec + 2 + i)}, {vr(rec + 4 + i)}")
    e(f"  v_and_b32 {vr(h2)}, {vr(h2)}, {vr(tg + 2)}")
    e(f"  v_and_or_b32 {vr(h2)}, {vr(h3)}, {vr(tg + 3)}, {vr(h2)}")
    e(f"  v_cmp_ne_u32 s[{sZ}:{sZ + 1}], 0, {vr(h2)}")
    for j in range(3):
        e(f"  v_readlane_b32 s{16 + j}, {vr(rec + 2 * j)}, 48")
        e(f"  v_readlane_b32 s{20 + j}, {vr(rec + 2 * j)}, 49")
        e(f"  v_readlane_b32 s{rA + j}, {vr(rec + 2 * j + 1)}, 49")
    e(f"  s_cmp_eq_u64 s[{sZ}:{sZ + 1}], 0")
    e("  s_cbranch_scc1 L_hy")
    budget("L_hy")
    e("  s_branch L_hw")
    e("L_hy:")
    gj = x + 8
    e(f"  v_mov_b32 {vr(h2)}, s19")
    for j in range(3):
        e(f"  v_max_f32 {vr(h2)}, s{16 + j}, {vr(h2)}")
    for j in range(4):
        e(f"  v_sub_f32 {vr(gj + j)}, s{16 + j}, {vr(h2)}")
    for j in range(4):
        e(f"  v_exp_f32 {vr(gj + j)}, {vr(gj + j)}")
    for j in range(3):
        e(f"  s_sext_i32_i16 s{rA + j}, s{rA + j}")
    e(f"  v_mul_f32 {vr(wa)}, s23, {vr(gj + 3)}")
    for j in range(3):
        e(f"  v_fmac_f32 {vr(wa)}, s{20 + j}, {vr(gj + j)}")
    for i in range(4):
        e(f"  v_mul_f32 {vr(fo + i)}, {vr(AC + 12 + i)}, {vr(gj + 3)}")
    e(f"  v_rcp_f32 {vr(wa)}, {vr(wa)}")
    for j in range(3):
        e(f"  v_ldexp_f32 {vr(gj + j)}, {vr(gj + j)}, s{rA + j}")
    for j in range(3):
        for i in range(4):
            e(f"  v_fma_mix_f32 {vr(fo + i)}, {vr(rec + 2 * j + i // 2)}, {vr(gj + j)}, {vr(fo + i)} op_sel:[{i & 1},0,0] op_sel_hi:[1,0,0]")
    e(f"  v_mul_f32 {vr(h2)}, s{rA + 3}, {vr(gj + 3)}")
    e(f"  v_mul_f32 {vr(h2)}, {vr(h2)}, {vr(wa)}")
    e(f"  v_mul_f32 {vr(h3)}, {vr(h2)}, {vr(h1)}")
    for i in range(4):
        e(f"  v_fma_f32 {vr(fo + i)}, {vr(fo + i)}, {vr(wa)}, -{vr(h3)}")
    if "r" in P.xp:
        e("L_skip:")
    hp(6)
    e("  s_barrier")
    hp(7)
    for k in range(4):
        e(f"  ds_read_b128 {vr(x + 4 * k, 4)}, {vr(h0)} offset:{768 * k}")
    e("  s_waitcnt lgkmcnt(2)")
    for h in (0, 2):
        e(f"  v_pk_add_f32 {vr(x + h, 2)}, {vr(x + h, 2)}, {vr(x + 4 + h, 2)}")
    e("  s_waitcnt lgkmcnt(0)")
    for h in (0, 2):
        e(f"  v_pk_add_f32 {vr(x + 8 + h, 2)}, {vr(x + 8 + h, 2)}, {vr(x + 12 + h, 2)}")
    for h in (0, 2):
        e(f"  v_pk_add_f32 {vr(x + h, 2)}, {vr(x + h, 2)}, {vr(x + 8 + h, 2)}")
    for i in range(4):
        e(f"  v_fmac_f32 {vr(fo + i)}, {vr(h2)}, {vr(x + i)}")
    e(f"  v_cvt_pk_bf16_f32 {vr(fo)}, {vr(fo)}, {vr(fo + 1)}")
    e(f"  v_cvt_pk_bf16_f32 {vr(fo + 1)}, {vr(fo + 2)}, {vr(fo + 3)}")
    e("  s_mov_b32 exec_hi, 0xffff")
    e(f"  global_store_dwordx2 {vr(u)}, {vr(fo, 2)}, s[{sOUT}:{sOUT + 1}] {P.of}")
    if P.sd:
        e(f"  s_mov_b32 s{sNEED}, 32")
        e("  s_mov_b64 exec, -1")
        mark("z")
        e(f"  s_cmp_eq_u32 s{sJ}, 0")
        e("  s_cbranch_scc0 L_sd")
        e(f"  v_lshlrev_b32 {vr(h0)}, 2, {vr(l)}")
        e("  s_mov_b32 exec_lo, 0")
        e("  s_mov_b32 exec_hi, 0x3fff")
        e(f"  global_atomic_add {vr(h0)}, {vr(vCL)}, s[{sDBG}:{sDBG + 1}] offset:-120 sc1")
        e("L_sd:")
    if P.enc:
        m0, m1, base, amp, wg = [int(v) for v in P.enc.split(",")]
        if m1 == 32:
            e("  s_memrealtime s[74:75]")
        if m0 == 0:
            e(f"  s_mov_b32 s72, s{sST}")
        e("  s_waitcnt lgkmcnt(0)")
        if P.em:
            e(f"  s_not_b32 s73, s{sST}")
            e(f"  s_mov_b32 s72, s{sST}")
            e(f"  s_atomic_umax s74, s[{sDBG}:{sDBG + 1}], 40")
            e(f"  s_atomic_umax s73, s[{sDBG}:{sDBG + 1}], 44")
            e(f"  s_atomic_umax s72, s[{sDBG}:{sDBG + 1}], 48")
        else:
            e("  s_sub_u32 s72, s74, s72")
            e(f"  s_atomic_add s72, s[{sDBG}:{sDBG + 1}], 32")
        e(f"  s_cmp_eq_u32 s2, {wg}")
        e("  s_cbranch_scc0 L_nohold")
        e("L_hold0:")
        e(f"  s_memrealtime s[{sST + 2}:{sST + 3}]")
        e("  s_waitcnt lgkmcnt(0)")
        e(f"  s_sub_u32 s{sT0}, s{sST + 2}, s{sST}")
        e(f"  s_cmp_lt_u32 s{sT0}, 12500")
        e("  s_cbranch_scc1 L_hold0")
        e("  s_mov_b32 s72, 0")
        if P.em:
            e("  s_mov_b32 s73, 0")
            e(f"  s_atomic_add s72, s[{sDBG}:{sDBG + 1}], {48 if P.em == 3 else 40} glc")
            e(f"  s_atomic_add s73, s[{sDBG}:{sDBG + 1}], {48 if P.em == 2 else 44} glc")
            e("  s_waitcnt lgkmcnt(0)")
            if P.em != 2:
                e("  s_not_b32 s73, s73")
            e("  s_sub_u32 s72, s72, s73")
            e("  s_lshl_b32 s72, s72, 8")
        else:
            e(f"  s_atomic_add s72, s[{sDBG}:{sDBG + 1}], 32 glc")
            e("  s_waitcnt lgkmcnt(0)")
        e(f"  s_sub_u32 s72, s72, {base * 256}")
        e("  s_max_i32 s72, s72, 0")
        e("  s_min_i32 s72, s72, 128000")
        e(f"  s_mul_i32 s72, s72, {amp}")
        e("  s_lshr_b32 s72, s72, 8")
        e("  s_add_u32 s72, s72, 13000")
        e("L_hold:")
        e(f"  s_memrealtime s[{sST + 2}:{sST + 3}]")
        e("  s_waitcnt lgkmcnt(0)")
        e(f"  s_sub_u32 s{sT0}, s{sST + 2}, s{sST}")
        e(f"  s_cmp_lt_u32 s{sT0}, s72")
        e("  s_cbranch_scc1 L_hold")
        e("L_nohold:")
        e("  s_waitcnt lgkmcnt(0)")
    if P.pe:
        e("; diagnostic build only: pointers to d_debug, some of their bits into the run time")
        off, sh_, bits = [int(v) for v in P.pe.split(",")]
        e("  s_cmp_eq_u32 s2, 0")
        e("  s_cbranch_scc0 L_nope")
        e("  s_load_dwordx16 s[4:19], s[0:1], 0")
        e("  s_waitcnt lgkmcnt(0)")
        e("  s_mov_b64 exec, 1")
        for k, r_ in enumerate((4, 6, 7, 8, 12, 13, 14, 30, 31)):
            e(f"  v_mov_b32 v5, s{r_}")
            e(f"  global_store_dword {vr(vZ)}, v5, s[{sDBG}:{sDBG + 1}] offset:{16 + 4 * k}")
        if off < 0:
            e("  s_sub_u32 s72, s6, s12")
        else:
            e(f"  s_mov_b32 s72, s{off}")
        e(f"  s_bfe_u32 s72, s72, {bits << 16 | sh_:#x}")
        e("  s_mul_i32 s72, s72, 300")
        e("  s_add_u32 s72, s72, 13000")
        e("L_pe:")
        e(f"  s_memrealtime s[{sST + 2}:{sST + 3}]")
        e("  s_waitcnt lgkmcnt(0)")
        e(f"  s_sub_u32 s{sT0}, s{sST + 2}, s{sST}")
        e(f"  s_cmp_lt_u32 s{sT0}, s72")
        e("  s_cbranch_scc1 L_pe")
        e("L_nope:")
    if P.tail:
        e("; diagnostic build only")
        e("  s_memrealtime s[72:73]")
        e("L_tail:")
        e("  s_memrealtime s[74:75]")
        e("  s_waitcnt lgkmcnt(0)")
        e("  s_sub_u32 s74, s74, s72")
        e(f"  s_cmp_lt_u32 s74, {P.tail}")
        e("  s_cbranch_scc1 L_tail")
    if P.hold:
        e("; diagnostic build only")
        e("L_hold:")
        e(f"  s_memrealtime s[{sST + 2}:{sST + 3}]")
        e("  s_waitcnt lgkmcnt(0)")
        e(f"  s_sub_u32 s{sT0}, s{sST + 2}, s{sST}")
        e(f"  s_cmp_lt_u32 s{sT0}, {P.hold}")
        e("  s_cbranch_scc1 L_hold")
    if P.stamp:
        e(f"  s_memrealtime s[{sST + 2}:{sST + 3}]")
        if P.hprof:
            e("  s_waitcnt lgkmcnt(0)")
            e("  s_lshl_b32 s44, s2, 5")
            e("  s_add_u32 s44, s44, 0x80000")
            e("  v_mov_b32 v1, s44")
            for k in range(8):
                e(f"  s_sub_u32 s45, s{sST + 2}, s{HP[k]}")
                e(f"  v_mov_b32 v{4 + k}, s45")
            e(f"  global_store_dwordx4 v1, v[4:7], s[{sWS}:{sWS + 1}]")
            e(f"  global_store_dwordx4 v1, v[8:11], s[{sWS}:{sWS + 1}] offset:16")
            e("  s_nop 2")
        e("  s_getreg_b32 s6, hwreg(HW_REG_XCC_ID)")
        e("  s_getreg_b32 s7, hwreg(HW_REG_HW_ID)")
        e("  s_waitcnt lgkmcnt(0)")
        e(f"  v_mov_b32 v4, s{sST}")
        e(f"  v_mov_b32 v5, s{sST + 2}")
        e("  v_mov_b32 v6, s6")
        e("  v_mov_b32 v7, s7")
        e("  s_lshl_b32 s8, s2, 4")
        e("  v_mov_b32 v1, s8")
        e(f"  global_store_dwordx4 v1, v[4:7], s[{sWS}:{sWS + 1}]")
    e("L_end:")
    e("  s_endpgm")
    e(".p2align 6")
    e(".type L_order,@object")
    e("L_order:")
    for k in range(0, len(ordtab), 8):
        e("  .long " + ", ".join(f"{v:#x}" for v in ordtab[k:k + 8]))
    e(".type L_hpos,@object")
    e("L_hpos:")
    for b in range(2):
        at = {chunk_of(b, n, s_): lpos(n, s_) for n in range(24) for s_ in range(16)}
        rows = sorted({c // 3 for c in at})
        for l_ in range(64):
            r0, r1 = rows[l_], rows[l_ + 64]
            e("  .long " + ", ".join(f"{a_ | b_ << 16:#x}" for a_, b_ in [(at[3 * r0 + k], at[3 * r1 + k]) for k in range(3)] + [(2 * r0, 2 * r1)]))
    e('.section .rodata,"a"')
    e(".p2align 6")
    e(f".amdhsa_kernel {NAME}_kernel")
    e(f"  .amdhsa_next_free_vgpr {NV}")
    e("  .amdhsa_next_free_sgpr 100")
    e(f"  .amdhsa_accum_offset {(NV + 3) // 4 * 4}")
    e("  .amdhsa_group_segment_fixed_size 0")
    e("  .amdhsa_kernarg_size 112")
    e("  .amdhsa_user_sgpr_count 2")
    e("  .amdhsa_user_sgpr_kernarg_segment_ptr 1")
    e("  .amdhsa_system_sgpr_workgroup_id_x 1")
    e(".end_amdhsa_kernel")
    return "\n".join(o) + "\n", NV


if __name__ == "__main__":
    ap = argparse.ArgumentParser()
    ap.add_argument("-o", default=f"/code/{NAME}.s")
    for name, d in (("sh", 4), ("deep", 5), ("pd", 9), ("pre", 12), ("nf", 6), ("su", 3), ("hp0", 3), ("tst", 24),
                    ("ctl", 1), ("hi", 2), ("hiv", 7), ("lo", -28), ("thr", 2), ("tp", 2), ("start", 5), ("s0", 0), ("ba", 3),
                    ("r0", 2), ("r1", 30), ("rf", 3), ("rp", 2), ("rt", 26), ("rotl", 7), ("kp", 7), ("kp0", 6), ("kn", 20),
                    ("tw", 2), ("tv", 1), ("ts", 1), ("st", 1), ("ot", 0), ("top", 18), ("tpd", 4), ("tpv", 4), ("tpn", 1), ("lag", 2), ("mg", 8), ("ml", 0), ("aw", 0), ("sd", 0), ("em", 0), ("tail", 0),
                    ("eprio", 2), ("psl", 1), ("psk", 1), ("spr", 1), ("bound", 4000000), ("hold", 0), ("dly", 0), ("dlb", 2)):
        ap.add_argument("--" + name, type=int, default=d)
    ap.add_argument("--kp_", default="6,6,6,7,8,9,9,10,10,11,11,12,12", help="K loads issued by each prologue point")
    ap.add_argument("--of", default="")
    ap.add_argument("--enc", default="", help="diagnostic only: m0,m1,base,amp,wg")
    ap.add_argument("--ok", default="REXbLbLbL", help="events of a K group")
    ap.add_argument("--ov", default="REXbLbLbL", help="events of a V group")
    ap.add_argument("--rk", default="", help="die gain per step (hex digits, 0 = no ranking)")
    ap.add_argument("--sb", default="", help="step:bias,... added to the lateness")
    ap.add_argument("--pf", default="sc1")
    ap.add_argument("--tpp", default="012", help="positions with a third level")
    ap.add_argument("--pe", default="", help="diagnostic only")
    ap.add_argument("--tm", default="5,10,11,16,21,26")
    ap.add_argument("--tg", default="")
    ap.add_argument("--bu", default="012", help="extra depth per position in the issued group")
    ap.add_argument("--th", default="-9,5,13")
    ap.add_argument("--sch", default="ut_a6.txt")
    ap.add_argument("--xp", default="", help="timing experiments only")
    for name in ("stamp", "trace", "tfine", "hprof"):
        ap.add_argument("--" + name, action="store_true", help="diagnostics only")
    a = ap.parse_args()
    txt, nv = gen(a)
    open(a.o, "w").write(txt)
    print("wrote", a.o, "vgprs", nv)
```

```python
import argparse
import math
import os
import struct
from gen import HEADER, NAME, Alloc, f32bits, vr

UB = 256 * 768

ABOUT = """
Generated by tools/gen11.py.
Work split: a unit is a block of 256 KV rows of one head.  Workgroups g and g ^ 8 share 16 units of four heads (table
  L_order) and alternate over the 32 KiB runs of a unit, 128 rows each; the order of the runs is rotated per pair.
  Waves 1-4 stream one 4 KiB block per round; a 16-lane row handles one third (64 dims) of a KV row per load.
  K sweep: logit = k_scale * sum_d (qk - 7.5) * (qa * cos + qb * sin), RoPE moved onto the rotated q;
  V sweep: partial = sum_rows p * v_scale * qv.
  Wave 0 (helper) rotates q, takes max / exp / sums over the workgroup's rows of each unit, and merges partials.
Constant parameters (the same for every seed) are built in: both zero points (7.5), q_cos / q_sin (table L_qcs) and
  k_cos / k_sin = cos / sin(row * inv_freq).  The angle is split into the part of the row inside its unit (f16 table in
  LDS, evaluated once from L_inv) and the part of the unit (L_f0), by which (qa, qb) is turned in fp32.
Hand-off: every workgroup finishes one of its heads and streams a unit of that head last.  Partials and (max, sum) of
  the other three go to d_ws with sc1 stores; every 8 bytes carry a piece of a tag that differs from the one found there
  on entry (sent round through d_debug).  The finisher reads until all tags fit and rescales to the true row maximum.
Flow control (speed only, results do not depend on it): waves publish a group counter and sample the counters of
  units on the same die; late waves keep one more load in flight, early waves one or two fewer.  Helpers rank the dies.
"""

RUN = (1, 2, 0)


def chunk_of(b, n, s, d):
    g = 256 * ((RUN[n >> 3] + d) % 3) + 128 * b + 16 * (n & 7) + s
    return {128: 512, 255: 639, 512: 128, 639: 255}.get(g, g)


def tidx(b, row):
    return row - 43 * b - 42 * ((row >= 85) + (row >= 171))


def rev(x, bits):
    return int(format(x, f"0{bits}b")[::-1], 2)


def lpos(n, s):
    return 4 * (16 * s + rev(n, 4)) if n < 16 else 1024 + 4 * (8 * s + rev(n - 16, 3))


TN = [(RUN[n >> 3] + (n & 7)) % 3 for n in range(24)]
SPECIAL = {n: i for i, n in enumerate((0, 7, 8, 15, 16, 23))}
for b_ in range(2):
    for d_ in range(3):
        ch = sorted(chunk_of(b_, n, s, d_) for n in range(24) for s in range(16))
        assert ch == sorted(3 * r + k for r in {c // 3 for c in ch} for k in range(3))
        assert all(chunk_of(b_, n, s, d_) % 3 == (TN[n] + d_ + 2 * b_ + s) % 3 for n in range(24) for s in range(16))
        assert len({tidx(b_, c // 3) for c in ch}) == 128 and max(tidx(b_, c // 3) for c in ch) == 128


def gen(P):
    o = []
    e = o.append
    RING, PD = 24, P.pd
    sh, deep = P.sh, P.deep
    PRE = P.pre
    TP = P.tp
    LAG = P.lag
    assert deep <= PD - 1 and sh <= deep and PD <= PRE
    SL = 512
    SA = 16 * SL

    FL = 0
    QS = 128
    ST = 256
    TB = 512
    QB = TB + 129 * 384
    LGB = QB + 16 * 768 + 1536
    SCB = LGB + 16 * 1536
    PB = SCB + 2 * SA
    QR = PB + 49152
    LDS = QR + 4 * 784
    assert 81920 < LDS <= 163840
    W_REC = 0x600000
    W_RK = 0x780000
    W_PL = 0x7c0000

    sQ, sQK, sKS, sKZ, sQV, sVS, sVZ, sQC = 4, 6, 8, 10, 12, 14, 16, 18
    sQS, sKC, sKSN, sOUT = 20, 22, 24, 26
    sDBG, sWS = 28, 30
    rA, rB = 32, 36
    sW, sJ, sC, sK, sT0, sT1, sF, sNEED = 40, 41, 42, 43, 44, 45, 46, 47
    sMSK = 48
    sOF = 51
    sE = 48
    sR0 = 60
    sCO = 61
    sZ = 64
    sMASK, sSCALE, sH = 66, 67, 68
    sS = 69
    sX = 70
    sRF = 80
    sST = 84
    sB = 91
    sVO = 92
    sSP = 94
    sI = 95
    sSE, sCU = 81, 79
    sLO = 78
    sTG = 99

    va = Alloc(1)
    vT16, vF, vZ, vC16 = [va.take(1) for _ in range(4)]
    voff = va.take(9)
    vTA = va.take(15)
    vQA = va.take(3)
    vPA = va.take(3)
    vLG = va.take(2)
    vLB = va.take(2)
    vLV = va.take(2)
    A = va.take(2)
    LG = va.take(2)
    M1, M2, M3 = [va.take(1) for _ in range(3)]
    bc = va.take(2, 2)
    dacc = va.take(2, 2)
    wt = va.take(4, 2)
    vtr, vPW, vPS, vN, vSum, vSu2, vBA = [va.take(1) for _ in range(7)]
    vPL = va.take(4)
    vU = va.take(1)
    vBI = va.take(2, 2)
    smp = va.take(4 * LAG, 4)
    qa = va.take(12, 4)
    tab = va.take(24, 4)
    tmp = va.take(12, 4)
    ring = va.take(4 * RING, 4)
    NV = va.n
    acc = qa

    here = os.path.dirname(os.path.abspath(__file__))
    sch = [[int(x) for x in ln.split()] for ln in open(os.path.join(here, P.sch))]
    pair = lambda g: ((g & 7) << 3) + (g >> 4 & 7) + (g >> 7 << 6)
    assert all(sch[g][32:] == [pair(g) % 3] * 3 for g in range(256))
    assert all(((16 * p_ + 13) * 21846 & 0xffff) * 3 >> 16 == (p_ + 1) % 3 for p_ in range(128))
    sch = [x[:32] for x in sch]
    inv, qcs = [[int(x, 16) for x in ln.split()] for ln in open(os.path.join(here, "consts.txt"))]
    rev_ = [struct.unpack("<f", struct.pack("<I", v))[0] / (2 * math.pi) for v in inv]
    assert sorted(2 * u_ + (g >> 3 & 1) for g in range(256) for u_ in sch[g][:16]) == list(range(4096))
    assert sorted(x[31] >> 3 for x in sch) == list(range(256))
    fill = [0] * 256
    ordtab = []
    for g in range(256):
        ku, own = sch[g][:16], sch[g][31] >> 3
        od = [ku.index(u_) for u_ in sch[g][16:]]
        assert sorted(od) == list(range(16)) and od[0] < 14
        assert ku[0] == (16 * (((g & 7) << 3) + (g >> 4 & 7) + (g >> 7 << 6)) + 14) * 21846 >> 16
        need = list(dict.fromkeys(u_ >> 3 for u_ in ku))
        heads = [h for h in need if h != own] + [own]
        assert len(heads) == 4
        u16 = [u_ | heads.index(u_ >> 3) << 12 for u_ in ku]
        nib = sum(k << (4 * t) for t, k in enumerate(od))
        hq = [h | heads.index(h) << 12 for h in need]
        dst = []
        for h in heads[:3]:
            dst.append(W_REC + 448 * (3 * h + fill[h]))
            fill[h] += 1
        ordtab += [u16[2 * i] | u16[2 * i + 1] << 16 for i in range(8)]
        ordtab += [nib & 0xffffffff, nib >> 32, hq[0] | hq[1] << 16, hq[2] | hq[3] << 16] + dst + [own | (2 * (pair(g) % 3) + (g >> 3 & 1)) << 10]
    assert fill == [3] * 256

    def ld(n):
        rr = rA if n < 24 else rB
        n %= 24
        so = f"s{sOF + (n & 7)}" if n & 7 else "0"
        vo = voff + (3 + SPECIAL[n] if n in SPECIAL else n >> 3)
        e(f"  buffer_load_dwordx4 {vr(ring + 4 * n, 4)}, {vr(vo)}, s[{rr}:{rr + 3}], {so} offen nt")

    ORD = {"K": P.ok, "V": P.ov}
    DIST = {"K": PRE, "V": PD}
    bu = [int(x) for x in P.bu]
    th = [int(x) for x in P.th.split(",")]
    assert PD % 3 == 0 and PRE % 3 == 0 and deep == sh + 1

    def memops(ph, a):
        r = []
        for i, c in enumerate(ORD[ph]):
            if c == "X" and P.ctl:
                r += [(i, "B")] * (a == P.ba) + [(i, "S"), (i, "Q")]
            if c == "L":
                r.append((i, "L"))
        return r

    def back(ph, a, i):
        r = [c for j, c in memops(ph, a) if j < i][::-1]
        for k in range(1, 8):
            r += [c for _, c in memops(ph, (a - k) % 8)][::-1]
        return r

    def cnt(ph, a, i, depth):
        depth += bu[ORD[ph][:i].count("L")]
        r = back(ph, a, i)
        return [k + 1 for k, c in enumerate(r) if c == "L"][depth - 2] if depth > 1 else 0

    def swait(ph, a):
        assert ORD[ph].index("E") < ORD[ph].index("X")
        r = back(ph, a, ORD[ph].index("E"))
        return [k for k, c in enumerate(r) if c == "Q"][LAG - 1]

    plain = {}

    def verify():
        ops = [("L", i) for i in range(PRE)]
        done = ORD["K"][:ORD["K"].index("L")].count("b")
        for g in range(256):
            ph, a = "KV"[g >= 128], g % 8
            if 3 * g + PD >= 768 or 128 <= g < 128 + (PRE - PD) // 3:
                for n in range(3 * g, 3 * g + 4 - (g == 255)):
                    plain[n] = len(ops) - 1 - ops.index(("L", n))
                done = max(done, len(ops) - plain[min(3 * g + 3, 767)])
                continue
            nb = nl = 3 * g
            for i, c in enumerate(ORD[ph]):
                if c == "E" and P.ctl:
                    done = max(done, len(ops) - swait(ph, a))
                if c == "X" and P.ctl:
                    ops += [("X", 0)] * (1 + (a == P.ba))
                if c == "b":
                    assert ("L", nb) in ops[:done], nb
                    nb += 1
                if c == "L":
                    done = max(done, len(ops) - cnt(ph, a, i, deep + P.tpn * (P.top < 99 and str(nl % 3) in P.tpp) if P.ctl else sh))
                    ops.append(("L", nl + DIST[ph]))
                    nl += 1
    verify()
    lab = [0]
    rare = []

    def flush():
        o.extend(rare)
        rare.clear()

    def issue(ph, a, i):
        j = ORD[ph][:i].count("L")
        lab[0] += 1
        if P.ctl and j == TP:
            e(f"  s_cmp_lt_i32 s{sS}, {P.lo}")
            e(f"  s_cbranch_scc1 L_t{lab[0]}")
            rare.extend([f"L_t{lab[0]}:", f"  s_waitcnt vmcnt({cnt(ph, a, i, P.thr + 1)})", f"  s_branch L_p{lab[0]}"])
        if P.ctl:
            t = (P.hi if ph == "K" else P.hiv) + th[j]
            tp_ = P.top + P.tpd * j + (0 if ph == "K" else P.tpv)
            assert P.lo <= t < tp_
            top = P.top < 99 and str(j) in P.tpp
            w = lambda d: f"  s_waitcnt vmcnt({cnt(ph, a, i, d)})"
            back = f"  s_branch L_p{lab[0]}"
            if t < 0:
                if top:
                    e(f"  s_sub_u32 s{sT0}, s{sS}, {t + 1}")
                    e(f"  s_cmp_lt_u32 s{sT0}, {tp_ - t}")
                    rare.extend([f"L_q{lab[0]}:", w(deep + P.tpn), f"  s_cmp_gt_i32 s{sS}, 0", f"  s_cbranch_scc1 L_p{lab[0]}", w(sh), back])
                else:
                    e(f"  s_cmp_gt_i32 s{sS}, {t}")
                    rare.extend([f"L_q{lab[0]}:", w(sh), back])
                e(f"  s_cbranch_scc0 L_q{lab[0]}")
                e(w(deep))
                e(f"L_p{lab[0]}:")
            elif top:
                e(f"  s_cmp_gt_i32 s{sS}, {t}")
                e(f"  s_cbranch_scc1 L_q{lab[0]}")
                rare.extend([f"L_q{lab[0]}:", w(deep + P.tpn), f"  s_cmp_gt_i32 s{sS}, {tp_}", f"  s_cbranch_scc1 L_p{lab[0]}", w(deep), back])
                e(w(sh))
                e(f"L_p{lab[0]}:")
            else:
                e(f"  s_cmp_gt_i32 s{sS}, {t}")
                e(f"  s_cbranch_scc1 L_p{lab[0]}")
                e(w(sh))
                e(f"L_p{lab[0]}:")
                e(w(deep))
        else:
            e(f"  s_waitcnt vmcnt({cnt(ph, a, i, sh)})")
        ld(3 * a + j + DIST[ph])
        if ph == "V" and 3 * a + j + 1 == P.mg:
            e(f"  ds_write_b32 {vr(vPW)}, {vr(M1)} offset:{FL + 32}")
        if ph == "V" and 3 * a + j + 1 == P.ml:
            e(f"  ds_write_b32 {vr(vPW)}, {vr(M1)} offset:{FL + 48}")

    def evaluate(ph, a):
        if not P.ctl:
            return
        sm = smp + 4 * (a % LAG)
        e(f"  s_waitcnt vmcnt({swait(ph, a)})")
        if a == (P.ba + LAG) % 8:
            e(f"  v_add_u32 {vr(vBI)}, {vr(vBI)}, {vr(vBI + 1)}")
        e(f"  s_add_u32 s{sT0}, s{sLO}, 0x03030303")
        e(f"  v_msad_u8 {vr(vSum)}, s{sLO}, {vr(sm)}, 0")
        e(f"  v_msad_u8 {vr(vSu2)}, s{sT0}, {vr(sm)}, 0")
        if a == (P.ba + LAG) % 8:
            e(f"  v_readfirstlane_b32 s{sB}, {vr(vBI)}")
        for k in range(1, 3):
            e(f"  v_msad_u8 {vr(vSum)}, s{sLO}, {vr(sm + k)}, {vr(vSum)}")
            e(f"  v_msad_u8 {vr(vSu2)}, s{sT0}, {vr(sm + k)}, {vr(vSu2)}")
        e(f"  v_sub_u32 {vr(vSum)}, {vr(vSum)}, {vr(vSu2)}")
        e(f"  s_add_u32 s{sLO}, s{sLO}, 0x01010101")
        e(f"  v_readlane_b32 s{sMASK}, {vr(vSum)}, 0")
        e(f"  v_readlane_b32 s{sSCALE}, {vr(vSum)}, 1")

    def decide(ph, a):
        if not P.ctl:
            return
        if a == (P.ba + LAG) % 8:
            for it in filter(None, P.sb.split(",")):
                st_, b_ = [int(v) for v in it.split(":")]
                if (st_ >= 16) == (ph == "V"):
                    e(f"  s_cmp_eq_u32 s{sK}, {st_ % 16}")
                    e(f"  s_cselect_b32 s{sT0}, {b_}, 0")
                    e(f"  s_add_u32 s{sB}, s{sB}, s{sT0}")
        cur, old = (sI, sCO) if a & 1 else (sCO, sI)
        e(f"  s_add_u32 s{cur}, s{sMASK}, s{sSCALE}")
        e(f"  s_add_u32 s{sS}, s{cur}, s{old}")
        e(f"  s_ashr_i32 s{sS}, s{sS}, 1")
        e(f"  s_add_u32 s{sS}, s{sS}, s{sB}")
        if ph == "K" and a < P.start:
            e(f"  s_cmp_eq_u32 s{sK}, 0")
            e(f"  s_cselect_b32 s{sS}, {P.s0}, s{sS}")

    def exchange(a):
        if not P.ctl:
            return
        e("  s_mov_b64 exec, 1")
        if a == P.ba:
            e(f"  global_load_dwordx2 {vr(vBI, 2)}, {vr(vBA)}, s[{sWS}:{sWS + 1}] {P.pf}")
        e(f"  global_store_byte {vr(vPS)}, {vr(vN)}, s[{sWS}:{sWS + 1}]")
        e("  s_mov_b64 exec, 3")
        e(f"  global_load_dwordx3 {vr(smp + 4 * (a % LAG), 3)}, {vr(vPL + a % 4)}, s[{sWS}:{sWS + 1}] {P.pf}")
        e(f"  v_add_u32 {vr(vN)}, 1, {vr(vN)}")
        e("  s_mov_b64 exec, -1")

    def srd_head(rr, sp, sh_):
        e(f"  s_mul_i32 s{sT0}, s{sh_}, {UB}")
        e(f"  s_add_u32 s{rr}, s{sp}, s{sT0}")
        e(f"  s_addc_u32 s{rr + 1}, s{sp + 1}, 0")

    def vstep_k(dst, src):
        e(f"  s_lshl_b32 s{dst}, s{src}, 2")
        e(f"  s_lshr_b64 s[{sZ}:{sZ + 1}], s[{sVO}:{sVO + 1}], s{dst}")
        e(f"  s_and_b32 s{dst}, s{sZ}, 15")

    def head_of(dst, slot, vU=vU):
        e(f"  s_lshr_b32 s{sT0}, s{slot}, 1")
        e(f"  v_readlane_b32 s{sZ}, {vr(vU)}, s{sT0}")
        e(f"  s_lshl_b32 s{sT0}, s{slot}, 4")
        e(f"  s_lshr_b32 s{sZ}, s{sZ}, s{sT0}")
        e(f"  s_and_b32 s{dst}, s{sZ}, 0x7ff")

    def budget(ok):
        e(f"  s_cmp_eq_u32 s{sSP}, 0")
        e(f"  s_cbranch_scc1 {ok}")
        e(f"  s_sub_u32 s{sSP}, s{sSP}, 1")

    def flagwait(name, off):
        e(f"L_{name}:")
        e("  s_waitcnt lgkmcnt(0)")
        e(f"  v_readfirstlane_b32 s{sF}, {vr(vF)}")
        e(f"  s_cmp_ge_u32 s{sF}, s{sNEED}")
        e(f"  s_cbranch_scc0 L_{name}_no")
        e(f"L_{name}_ok:")
        rare.extend([f"L_{name}_no:", f"  s_cmp_eq_u32 s{sSP}, 0", f"  s_cbranch_scc1 L_{name}_ok", f"  s_sub_u32 s{sSP}, s{sSP}, 1",
                     f"  ds_read_b32 {vr(vF)}, {vr(vZ)} offset:{off}", f"  s_branch L_{name}"])

    def tr():
        if P.trace:
            e(f"  {'s_memtime' if 'm' in P.xp else 's_memrealtime'} s[88:89]")
            e("  s_waitcnt lgkmcnt(0)")
            e(f"  v_writelane_b32 {vr(vtr)}, s88, m0")
            e("  s_add_u32 m0, m0, 1")
            e("  s_min_u32 m0, m0, 63")

    def die_base(dst):
        e(f"  s_getreg_b32 s{sSE}, hwreg(HW_REG_HW_ID, 8, 7)")
        e(f"  s_getreg_b32 s{dst}, hwreg(HW_REG_XCC_ID, 0, 3)")
        e(f"  s_and_b32 s{sCU}, s{sSE}, 15")
        e(f"  s_lshr_b32 s{sSE}, s{sSE}, 5")
        e(f"  s_mul_i32 s{dst}, s{dst}, 4352")
        e(f"  s_add_u32 s{dst}, s{dst}, {W_PL}")

    ha = Alloc(16)
    l, u, h0, h1, h2, h3 = [ha.take(1) for _ in range(6)]
    wa, wb, vSh, vFc, vM, vL = [ha.take(1) for _ in range(6)]
    ro = ha.take(8)
    vL16, vFA, vFX, vFB, vEL, vCL, vSa, vSq = [ha.take(1) for _ in range(8)]
    hq = ha.take(2)
    hU = ha.take(1)
    z4 = ha.take(4, 4)
    cs = ha.take(8, 4)
    f0 = ha.take(4, 4)
    sc = ha.take(4, 4)
    qn = ha.take(4, 4)
    x = ha.take(32, 4)
    pr = ha.take(4, 4)
    fo = ha.take(4, 4)
    rec = ha.take(8, 4)
    AC = ha.take(16, 4)
    st4 = ha.take(4, 4)
    tg = ha.take(4, 4)
    ra = ha.take(8)
    assert ha.n <= NV and vZ < 16

    invX, invY, tK, tA, tN, tO = tmp, tmp + 4, tmp + 8, tab, tab + 4, tab + 8
    PC0 = 20 + 8 * P.stamp + 16 * (P.dly > 0)
    D_INV, D_QCS, D_F0, D_END = 256, 768, 1152, 1536
    NF = P.nf
    assert RUN[0] == 1 and NF <= 8
    e(HEADER.rstrip("\n"))
    e(f"; @launch grid=(256,1,1) block=(320,1,1) lds={LDS}")
    for ln in ABOUT.strip("\n").split("\n"):
        e("; " + ln)
    e('.amdgcn_target "amdgcn-amd-amdhsa--gfx950"')
    e(".text")
    e(f".globl {NAME}_kernel")
    e(".p2align 8")
    e(f".type {NAME}_kernel,@function")
    e(f"{NAME}_kernel:")
    e("  s_cmpk_ge_u32 s2, 0x100")
    e("  s_cbranch_scc1 L_end")
    if P.dly:
        e("; diagnostic build only: half of the dies start late")
        e(f"  s_getreg_b32 s4, hwreg(HW_REG_XCC_ID, {P.dlb}, 1)")
        e("  s_cmp_eq_u32 s4, 0")
        e("  s_cbranch_scc1 L_dly")
        e(f"  s_sleep {P.dly}")
        e("L_dly:")
    if P.stamp:
        e(f"  s_memrealtime s[{sST}:{sST + 1}]")
    e("  s_load_dwordx16 s[4:19], s[0:1], 0")
    e(f"  s_getpc_b64 s[{sZ}:{sZ + 1}]")
    e("L_pc:")
    e("  v_cmp_gt_u32 vcc, 64, v0")
    e(f"  v_lshlrev_b32 {vr(vT16)}, 4, v0")
    e(f"  s_lshr_b32 s{sK}, s2, 4")
    e(f"  s_lshl_b32 s{sF}, s2, 6")
    e(f"  s_add_u32 s{sF}, s{sF}, L_order-L_pc")
    e(f"  s_and_b32 s{sH}, s2, 7")
    e("  s_cbranch_vccz L_s0")
    e(f"  s_load_dwordx16 s[{sE}:{sE + 15}], s[{sZ}:{sZ + 1}], s{sF}")
    e(f"  v_lshl_add_u32 {vr(h0)}, s{sK}, 6, v0")
    e(f"  v_mul_u32_u24 {vr(h0)}, {P.tst}, {vr(h0)}")
    e(f"  global_load_dword {vr(h3)}, {vr(h0)}, s[{sZ}:{sZ + 1}] offset:{D_QCS - PC0}")
    e("  s_branch L_helper")
    e("L_s0:")
    e(f"  v_and_b32 {vr(vC16)}, 0xf0, {vr(vT16)}")
    e(f"  global_load_dwordx4 {vr(invX, 4)}, {vr(vC16)}, s[{sZ}:{sZ + 1}] offset:{D_INV - PC0}")
    e(f"  global_load_dwordx4 {vr(invY, 4)}, {vr(vC16)}, s[{sZ}:{sZ + 1}] offset:{D_INV + 256 - PC0}")
    e(f"  s_and_b32 s{sT1}, s{sK}, 8")
    e(f"  s_add_u32 s{sH}, s{sH}, s{sT1}")
    e(f"  s_and_b32 s{sT1}, s{sK}, 7")
    e(f"  s_lshl3_add_u32 s{sH}, s{sH}, s{sT1}")
    e(f"  s_lshl4_add_u32 s{sH}, s{sH}, 14")
    e(f"  s_mulk_i32 s{sH}, 21846")
    e(f"  s_lshr_b32 s{sC}, s{sH}, 16")
    e(f"  s_addk_i32 s{sH}, -21846")
    e(f"  s_lshl_b32 s{sH}, s{sH}, 16")
    e(f"  s_mul_hi_u32 s{sR0}, s{sH}, 3")
    e(f"  s_mul_i32 s{sT0}, s{sC}, {UB}")
    e(f"  s_and_b32 s{sT1}, s2, 8")
    e(f"  s_lshl4_add_u32 s{sT1}, s{sR0}, s{sT1}")
    e(f"  s_lshl_b32 s{sT1}, s{sT1}, 12")
    e(f"  s_add_u32 s{sT0}, s{sT0}, s{sT1}")
    e(f"  s_addk_i32 s{sT0}, {4096 - 1024}")
    e(f"  v_add_u32 {vr(tA)}, s{sT0}, {vr(vT16)}")
    for k in range(1, (NF + 1) // 2):
        e(f"  v_add_u32 {vr(tA + k)}, {8192 * k}, {vr(tA)}")
    e("  s_waitcnt lgkmcnt(0)")
    for n in range(NF):
        e(f"  global_load_dwordx4 {vr(ring + 4 * n, 4)}, {vr(tA + n // 2)}, s[{sQK}:{sQK + 1}] offset:{4096 * (n % 2) - 4096} nt")
    e("  s_branch L_s1")
    e("L_b0:")
    e(f".if (L_b0 - {NAME}_kernel > {D_INV}) || (L_pc - {NAME}_kernel != {PC0})")
    e('.error "entry block layout"')
    e(".endif")
    e(".p2align 8")
    e(".type L_inv,@object")
    e("L_inv:")
    tb = [f32bits(v) for v in rev_[:64] + rev_[64:] + rev_[64:]]
    for k in range(0, 128, 8):
        e("  .long " + ", ".join(f"{v:#x}" for v in tb[k:k + 8]))
    e(".type L_qcs,@object")
    e("L_qcs:")
    for k in range(0, 96, 8):
        e("  .long " + ", ".join(f"{v:#x}" for v in qcs[k:k + 8]))
    e(".type L_f0,@object")
    e("L_f0:")
    for k in range(0, 96, 8):
        e("  .long " + ", ".join(f"{f32bits(256 * v - round(256 * v)):#x}" for v in rev_[k:k + 8]))

    def common(ld_=True):
        if ld_:
            e(f"  s_load_dwordx8 s[24:31], s[0:1], 80")
        e(f"  v_mov_b32 {vr(vZ)}, 0")
        e(f"  s_mov_b32 s{sSP}, {P.bound}")
        e(f"  s_bfe_u32 s{sJ}, s2, 0x10003")

    PFR = [4, 10, 14, 62, 72, 74, 76, 82, 86, 96, 98]
    pfn = [0]

    def pf():
        if P.tfine:
            e(f"  {'s_memtime' if 'm' in P.xp else 's_memrealtime'} s[{PFR[pfn[0]]}:{PFR[pfn[0]] + 1}]")
            pfn[0] += 1

    e("L_s1:")
    w_, s_, vAD, vC8, t0, t1 = wt, wt + 1, wt + 2, wt + 3, dacc, dacc + 1
    vRF, pos = vT16, tK + 3
    if P.trace:
        e(f"  v_mov_b32 {vr(vtr)}, 0")
        e("  s_mov_b32 m0, 0")
    pf()
    e("  v_subrev_u32 v0, 64, v0")
    e(f"  s_setprio {P.spr}")
    e(f"  s_load_dwordx8 s[16:23], s[{sZ}:{sZ + 1}], s{sF}")
    e(f"  s_add_u32 s{sF}, s{sF}, 32")
    e(f"  s_load_dwordx2 s[{sVO}:{sVO + 1}], s[{sZ}:{sZ + 1}], s{sF}")
    e(f"  s_movk_i32 s{sNEED}, 768")
    common()
    e(f"  v_lshrrev_b32 {vr(w_)}, 6, v0")
    e(f"  v_lshrrev_b32 {vr(s_)}, 4, v0")
    e(f"  v_and_b32 {vr(vC8)}, 0x70, {vr(vC16)}")
    e(f"  v_readfirstlane_b32 s{sW}, {vr(w_)}")
    e(f"  v_add_u32 {vr(vAD)}, {vr(vC8)}, {vr(s_)}")
    e(f"  s_mul_i32 s{sT0}, s{sJ}, 44")
    e(f"  s_sub_u32 s{sT0}, 86, s{sT0}")
    e(f"  v_cmp_eq_u32 vcc, s{sT0}, {vr(vAD)}")
    e(f"  v_mov_b32 {vr(t0)}, 0x80")
    e(f"  s_mov_b32 s{rA + 2}, {UB}")
    e(f"  v_cndmask_b32 {vr(vAD)}, {vr(vAD)}, {vr(t0)}, vcc")
    e(f"  v_mul_u32_u24 {vr(t0)}, 381, {vr(vAD)}")
    e(f"  s_mul_i32 s{sT0}, s{sJ}, 43")
    e(f"  v_add_u32 {vr(t0)}, 2, {vr(t0)}")
    e(f"  v_lshrrev_b32 {vr(t0)}, 14, {vr(t0)}")
    assert all((381 * i + 2) >> 14 == (i >= 43) + (i >= 86) for i in range(129))
    e(f"  v_mad_u32_u24 {vr(t0)}, {vr(t0)}, 42, {vr(vAD)}")
    e(f"  v_add_u32 {vr(t0)}, s{sT0}, {vr(t0)}")
    e(f"  v_cvt_f32_u32 {vr(vRF)}, {vr(t0)}")
    e(f"  v_mul_u32_u24 {vr(vAD)}, 384, {vr(vAD)}")
    e(f"  s_mov_b32 s{rA + 3}, 0x20000")
    srd_head(rA, sQK, sC)
    e(f"  s_lshl_b32 s{sT0}, s{sJ}, 15")
    sRK = [sR0, 8, 9]
    e(f"  v_lshl_add_u32 {vr(t0)}, v0, 4, s{sT0}")
    for k in range(3):
        if k:
            e(f"  s_add_u32 s{sRK[k]}, s{sRK[k - 1]}, 1")
            e(f"  s_cmp_eq_u32 s{sRK[k]}, 3")
            e(f"  s_cselect_b32 s{sRK[k]}, 0, s{sRK[k]}")
        e(f"  v_lshl_add_u32 {vr(voff + k)}, s{sRK[k]}, 16, {vr(t0)}")
    for i in range(1, 8):
        e(f"  s_movk_i32 s{sOF + i}, {4096 * i}")
    nk = [NF]
    nfix = [0]
    assert PRE <= RING and max(int(v) for v in P.kp_.split(",")[:P.su + 1]) <= 7

    def k_loads(hi):
        while nk[0] < min(hi, PRE):
            ld(nk[0])
            nk[0] += 1

    def toff_(n):
        run = RUN[n >> 3]
        return 384 * (16 * (((n & 7) + run) // 3) + 38 * run)

    def tmin(n):
        return toff_((n & ~7) + (n & 7) % 3)

    def setup():
        e("; per chunk class k: q operand, table and partial addresses")
        sD = sRK[2]
        e(f"  s_lshl1_add_u32 s{sF}, s{sJ}, s{sW}")
        e(f"  s_add_u32 s{sF}, s{sF}, s{sD}")
        e(f"  s_lshl_b32 s{sF}, s{sF}, 1")
        e(f"  s_lshr_b32 s{sF}, 0x24924, s{sF}")
        e(f"  v_bfe_u32 {vr(t1)}, v0, 4, 2")
        e(f"  v_lshl_add_u32 {vr(t1)}, {vr(t1)}, 2, {vr(vC16)}")
        e(f"  v_mad_u32_u24 {vr(vF)}, {vr(w_)}, s{sNEED}, {vr(t1)}")
        e(f"  v_add_u32 {vr(vF)}, {PB - 3072}, {vr(vF)}")
        e(f"  s_mul_i32 s{sT1}, s{sJ}, {43 * 384}")
        e(f"  s_sub_u32 s{sT1}, {TB}, s{sT1}")
        e(f"  s_mul_i32 s{sT0}, s{sD}, {38 * 384}")
        e(f"  s_add_u32 s{sT1}, s{sT1}, s{sT0}")
        e(f"  s_lshl3_add_u32 s{sT0}, s{sJ}, s{sD}")
        e(f"  v_lshl_add_u32 {vr(vSum)}, s{sT0}, 4, {vr(s_)}")
        for k in range(3):
            e(f"  s_bfe_u32 s{sT0}, s{sF}, {(2 << 16) | 2 * k:#x}")
            e(f"  v_lshl_add_u32 {vr(vPA + k)}, s{sT0}, 8, {vr(vF)}")
            if k:
                e(f"  v_add_u32 {vr(vSum)}, 16, {vr(vSum)}")
            e(f"  v_mul_u32_u24 {vr(t0)}, 171, {vr(vSum)}")
            e(f"  v_lshrrev_b32 {vr(t0)}, 9, {vr(t0)}")
            e(f"  v_mad_i32_i24 {vr(t1)}, {vr(t0)}, -3, {vr(vSum)}")
            e(f"  v_lshl_add_u32 {vr(t1)}, {vr(t1)}, 8, {vr(vC16)}")
            e(f"  v_add_u32 {vr(vQA + k)}, {QB}, {vr(t1)}")
            e(f"  v_subrev_u32 {vr(vSu2)}, 384, {vr(t1)}")
            e(f"  v_min_u32 {vr(t1)}, {vr(t1)}, {vr(vSu2)}")
            e(f"  v_mul_u32_u24 {vr(t0)}, 384, {vr(t0)}")
            e(f"  v_add3_u32 {vr(vTA + 6 + k)}, {vr(t0)}, {vr(t1)}, s{sT1}")
        assert all(171 * x_ >> 9 == x_ // 3 for x_ in range(208)) and RUN[2] == 0
        for g_ in range(2):
            e(f"  s_cmp_lt_u32 s{sRK[g_]}, {RUN[g_]}")
            e(f"  s_cselect_b32 s{sT1}, {-130 * 384}, 0")
            for n in range(8 * g_, 8 * g_ + 3):
                e(f"  s_add_u32 s{sT0}, s{sT1}, {tmin(n)}")
                e(f"  v_add_u32 {vr(vTA + 3 * g_ + TN[n])}, s{sT0}, {vr(vTA + 6 + TN[n])}")
        dB, dT = A, LG
        e(f"  s_lshl1_add_u32 s{sT0}, s{sJ}, -1")
        e(f"  s_mul_i32 s{sT0}, s{sT0}, 98304")
        e(f"  v_mov_b32 {vr(t0)}, s{sT0}")
        for i, sx in enumerate((0, 15)):
            e(f"  s_mul_i32 s{sT1}, s{sJ}, {130 * 384}")
            e(f"  s_sub_u32 s{sT1}, s{sT1}, {(44, 86)[i] * 384}")
            e(f"  v_cmp_eq_u32 vcc, {sx}, {vr(s_)}")
            e(f"  v_mov_b32 {vr(t1)}, s{sT1}")
            e(f"  s_lshl_b32 s{sH}, s{sJ}, 1")
            e(f"  v_cndmask_b32 {vr(dB + i)}, 0, {vr(t0)}, vcc")
            e(f"  v_cndmask_b32 {vr(dT + i)}, 0, {vr(t1)}, vcc")
        e(f"  s_sub_u32 s{sH}, 2, s{sH}")
        for n, i in SPECIAL.items():
            if i % 2 == 0:
                e(f"  s_cmp_eq_u32 s{sRK[n >> 3]}, s{sH}")
                e(f"  s_cselect_b32 s{sT0}, 1, 0")
            e(f"  v_mad_i32_i24 {vr(voff + 3 + i)}, {vr(dB + i % 2)}, s{sT0}, {vr(voff + (n >> 3))}")
            if toff_(n) != tmin(n):
                e(f"  v_add_u32 {vr(t1)}, {toff_(n) - tmin(n)}, {vr(vTA + 3 * (n >> 3) + TN[n])}")
                e(f"  v_mad_i32_i24 {vr(vTA + 9 + i)}, {vr(dT + i % 2)}, s{sT0}, {vr(t1)}")
            else:
                e(f"  v_mad_i32_i24 {vr(vTA + 9 + i)}, {vr(dT + i % 2)}, s{sT0}, {vr(vTA + 3 * (n >> 3) + TN[n])}")
        e(f"  s_lshl2_add_u32 s{sT0}, s{sW}, s{sR0}")
        e(f"  s_cmp_eq_u32 s{sT0}, s{sH}")
        e("  s_cbranch_scc0 L_fx")
        e("  s_mov_b64 exec, 0xffff")
        ld(0)
        e("  s_mov_b64 exec, -1")
        e("L_fx:")
        nfix[0] = nk[0]
        e(f"  v_lshlrev_b32 {vr(vLB)}, 2, v0")
        e(f"  v_add_u32 {vr(vLB)}, {LGB}, {vr(vLB)}")
        e(f"  v_lshrrev_b32 {vr(t1)}, 1, v0")
        e(f"  v_lshlrev_b32 {vr(t1)}, 2, {vr(t1)}")
        e(f"  v_add_u32 {vr(vLB + 1)}, {LGB + 1024}, {vr(t1)}")
        e(f"  v_subrev_u32 {vr(vLG)}, 1536, {vr(vLB)}")
        e(f"  v_subrev_u32 {vr(vLG + 1)}, 1536, {vr(vLB + 1)}")
        e(f"  v_lshlrev_b32 {vr(vPW)}, 2, {vr(w_)}")
        e(f"  s_mov_b32 s{sMSK}, 0xcccccccc")
        e(f"  s_mov_b32 s{sMSK + 1}, s{sMSK}")
        e(f"  s_mov_b32 s{sMSK + 2}, 0xaaaaaaaa")
        e(f"  s_mov_b32 s{sMSK + 3}, s{sMSK + 2}")
        e(f"  s_mov_b32 s{rB + 2}, {UB}")
        e(f"  s_mov_b32 s{rB + 3}, 0x20000")
        e(f"  s_mov_b32 s{sK}, 0")
        if P.ctl:
            e("; progress slots: this wave writes one byte of line (half, w) and samples the lines of the other half")
            die_base(sF)
            e(f"  s_add_u32 s{sT0}, s{sF}, 2048")
            e(f"  v_mov_b32 {vr(vBA)}, s{sT0}")
            e(f"  s_and_b32 s{sT1}, s{sSE}, 2")
            e(f"  s_lshl_b32 s{sT1}, s{sT1}, 9")
            e(f"  s_lshl_b32 s{sT0}, s{sW}, 8")
            e(f"  s_add_u32 s{sT0}, s{sT0}, s{sT1}")
            e(f"  s_add_u32 s{sT0}, s{sT0}, s{sF}")
            e(f"  s_add_u32 s{sT0}, s{sT0}, s{sCU}")
            e(f"  s_and_b32 s{sSE}, s{sSE}, 1")
            e(f"  s_lshl_b32 s{sSE}, s{sSE}, 4")
            e(f"  s_add_u32 s{sT0}, s{sT0}, s{sSE}")
            e(f"  v_mov_b32 {vr(vPS)}, s{sT0}")
            e(f"  s_xor_b32 s{sT1}, s{sT1}, 1024")
            e(f"  s_add_u32 s{sF}, s{sF}, s{sT1}")
            e(f"  v_and_b32 {vr(vN)}, 1, v0")
            e(f"  v_lshl_add_u32 {vr(vN)}, {vr(vN)}, 4, s{sF}")
            for k in range(4):
                e(f"  v_add_u32 {vr(vSum)}, {k}, {vr(w_)}")
                e(f"  v_and_b32 {vr(vSum)}, 3, {vr(vSum)}")
                e(f"  v_lshl_add_u32 {vr(vPL + k)}, {vr(vSum)}, 8, {vr(vN)}")
            e(f"  s_mov_b32 s{sLO}, {(-(LAG + 2) * 0x01010101) & 0xffffffff:#x}")
            for k in range(4 * LAG):
                e(f"  v_mov_b32 {vr(smp + k)}, 0")
            for k in range(2):
                e(f"  v_mov_b32 {vr(vBI + k)}, 0")
            e(f"  v_mov_b32 {vr(vN)}, 0")
            e(f"  s_mov_b32 s{sB}, 0")
            e(f"  s_mov_b32 s{sS}, {P.s0}")
            e(f"  s_mov_b32 s{sI}, 0")
            e(f"  s_mov_b32 s{sCO}, 0")

    def sincos(dst, iv):
        for h in (0, 2):
            e(f"  v_pk_mul_f32 {vr(tN + h, 2)}, {vr(iv + h, 2)}, {vr(tK + 2, 2)} op_sel:[0,1] op_sel_hi:[1,1]")
        for i in range(4):
            e(f"  v_cos_f32 {vr(tA + i)}, {vr(tN + i)}")
        for i in range(4):
            e(f"  v_sin_f32 {vr(tN + i)}, {vr(tN + i)}")
        for i in range(4):
            e(f"  v_cvt_pk_f16_f32 {vr(dst + i)}, {vr(tA + i)}, {vr(tN + i)}")

    kp = [int(v) for v in P.kp_.split(",")]

    def chunk(i):
        a = 2 * (i // 3)
        d = tO + 4 * (i & 1)
        bc_ = lambda x, m: f"row_newbcast:{x} row_mask:0xf bank_mask:{m:#x}"
        if i % 3 == 1:
            e(f"  v_mov_b32_dpp {vr(pos)}, {vr(vRF)} {bc_(a + 1, 12)}")
            e(f"  v_add_u32_dpp {vr(vF)}, {vr(vAD)}, {vr(vC8)} {bc_(a, 3)}")
            e(f"  v_add_u32_dpp {vr(vF)}, {vr(vAD)}, {vr(vC8)} {bc_(a + 1, 12)}")
            sincos(d, invY)
            e(f"  ds_write_b128 {vr(vF)}, {vr(d, 4)} offset:{TB + 256}")
        else:
            a += i % 3 // 2
            e(f"  v_mov_b32_dpp {vr(pos)}, {vr(vRF)} {bc_(a, 15)}")
            e(f"  v_add_u32_dpp {vr(vF)}, {vr(vAD)}, {vr(vC16)} {bc_(a, 15)}")
            sincos(d, invX)
            e(f"  ds_write_b128 {vr(vF)}, {vr(d, 4)} offset:{TB}")

    def tab_read(a):
        for n in range(3 * a, 3 * a + 3):
            d = tab + 12 * (a & 1) + 4 * (n % 3)
            if n in SPECIAL:
                e(f"  ds_read_b128 {vr(d, 4)}, {vr(vTA + 9 + SPECIAL[n])}")
            else:
                e(f"  ds_read_b128 {vr(d, 4)}, {vr(vTA + 3 * (n >> 3) + TN[n])} offset:{toff_(n) - tmin(n)}")

    k_loads(kp[0])
    pf()
    e(f"  s_waitcnt vmcnt({nk[0]})")
    pf()
    for i in range(12):
        if i == P.su:
            setup()
            pf()
        chunk(i)
        k_loads(kp[i + 1])
        if i % 3 == 2:
            pf()
    k_loads(PRE)
    e(f"  v_mov_b32 {vr(bc)}, {f32bits(-7.5):#x}")
    e("  s_waitcnt lgkmcnt(0)")
    for k in range(8):
        e(f"  v_writelane_b32 {vr(vU)}, s{16 + k}, {k}")
    e("  s_barrier")
    pf()
    for k in range(3):
        e(f"  ds_read_b128 {vr(qa + 4 * k, 4)}, {vr(vQA + k)}")
    tab_read(0)
    e(f"  s_waitcnt vmcnt({PRE - nfix[0]})")
    pf()
    if P.tfine:
        e("  s_waitcnt lgkmcnt(0)")
        for k in range(pfn[0]):
            e(f"  v_writelane_b32 {vr(vtr)}, s{PFR[k]}, {k}")
        e(f"  s_mov_b32 m0, {pfn[0]}")

    def vfirst():
        e(f"  s_and_b32 s{sH}, s{sVO}, 15")
        e(f"  s_add_u32 s{sNEED}, s{sH}, 1")
        e(f"  ds_read_b32 {vr(vF)}, {vr(vZ)} offset:{FL + 20}")
        flagwait("a0", FL + 20)
        e(f"  s_mulk_i32 s{sH}, 1536")
        for k in range(2):
            e(f"  v_add_u32 {vr(vLV + k)}, s{sH}, {vr(vLB + k)}")
        e(f"  ds_read_b32 {vr(A)}, {vr(vLV)}")


    def knext():
        e("; next SRD: K slot k + 1, or the first V step once K runs out")
        e(f"  s_add_u32 s{sH}, s{sK}, 1")
        e(f"  s_sub_u32 s{sT1}, s{sH}, 16")
        vstep_k(sF, sT1)
        e(f"  s_cmp_lt_u32 s{sH}, 16")
        e(f"  s_cselect_b32 s{sH}, s{sH}, s{sF}")
        e(f"  s_cselect_b32 s{sX}, s{sQK}, s{sQV}")
        e(f"  s_cselect_b32 s{sX + 1}, s{sQK + 1}, s{sQV + 1}")
        head_of(sH, sH)
        srd_head(rB, sX, sH)

    def kred(n):
        dpp = lambda d, x, how, m: e(f"  v_add_f32_dpp {vr(d)}, {vr(x)}, {vr(x)} {how} row_mask:0xf bank_mask:{m:#x}")
        dpp(M1, dacc, "row_ror:8", 12 if n & 1 else 3)
        if n % 2 == 1:
            e("  s_nop 1")
            dpp(M2, M1, "row_half_mirror", 10 if n & 2 else 5)
        if n % 4 == 3:
            e("  s_nop 1")
            dpp(M2 if n & 4 else M3, M2, "quad_perm:[2,3,0,1]", 15)
        if n % 8 == 7:
            e(f"  v_cndmask_b32_e64 {vr(M3)}, {vr(M3)}, {vr(M2)}, s[{sMSK}:{sMSK + 1}]")
            e("  s_nop 1")
            dpp((LG, M3, LG + 1)[n >> 3], M3, "quad_perm:[1,0,3,2]", 15)
        if n == 15:
            e(f"  v_cndmask_b32_e64 {vr(LG)}, {vr(LG)}, {vr(M3)}, s[{sMSK + 2}:{sMSK + 3}]")

    e(".p2align 6")
    e("L_k:")

    def kbody(n):
        k_, q_ = ring + 4 * n, qa + 4 * TN[n]
        for i in range(4):
            e(f"  v_dot2_f32_f16 {vr(wt + i)}, {vr(tab + 12 * (n // 3 & 1) + 4 * (n % 3) + i)}, {vr(q_ + i)}, 0")
        for i in range(4):
            e(f"  v_cvt_f32_i32 {vr(k_ + i)}, {vr(k_ + i)}")
        if n >= 21:
            e(f"  ds_read_b128 {vr(q_, 4)}, {vr(vQA + TN[n])}")
        for h in range(2):
            e(f"  v_pk_add_f32 {vr(k_ + 2 * h, 2)}, {vr(k_ + 2 * h, 2)}, {vr(bc, 2)} op_sel_hi:[1,0]")
        e(f"  v_pk_mul_f32 {vr(dacc, 2)}, {vr(k_, 2)}, {vr(wt, 2)}")
        e(f"  v_pk_fma_f32 {vr(dacc, 2)}, {vr(k_ + 2, 2)}, {vr(wt + 2, 2)}, {vr(dacc, 2)}")
        e(f"  v_add_f32 {vr(dacc)}, {vr(dacc)}, {vr(dacc + 1)}")

    def kout():
        e(f"  v_mov_b32 {vr(vF)}, s{sK}")
        for k in range(2):
            e(f"  ds_write_b32 {vr(vLG + k)}, {vr(LG + k)}")
        e(f"  ds_write_b32 {vr(vPW)}, {vr(vF)} offset:{FL}")

    def group(ph, a, body, after, res):
        nb, pend = 3 * a, None
        od = ORD[ph]
        for i, c in enumerate(od):
            if pend is not None and c != "L":
                if od[i - 1] == "b":
                    e("  s_nop 1")
                after(pend)
                pend = None
            if c == "E":
                evaluate(ph, a)
                if od[i + 1] != "X":
                    decide(ph, a)
            if c == "X":
                exchange(a)
                if od[i - 1] == "E":
                    decide(ph, a)
            if c == "R" and a == 0:
                res()
            if c == "b":
                body(nb)
                pend = nb if after else None
                nb += 1
            if c == "L":
                issue(ph, a, i)
        if pend is not None:
            if od[-1] == "b":
                e("  s_nop 1")
            after(pend)

    for a in range(8):
        if a == 7:
            flagwait("qn", FL + 16)
        else:
            e("  s_waitcnt lgkmcnt(0)")
        tab_read((a + 1) % 8)
        if a == 6:
            e(f"  ds_read_b32 {vr(vF)}, {vr(vZ)} offset:{FL + 16}")
        group("K", a, kbody, kred, kout)
        if a == 1:
            knext()
        if a == 3:
            e(f"  s_add_u32 s{sT0}, s{sK}, 2")
            e(f"  s_min_u32 s{sNEED}, s{sT0}, 16")
            for k in range(3):
                e(f"  v_add_u32 {vr(vQA + k)}, 768, {vr(vQA + k)}")
            for k in range(2):
                e(f"  v_add_u32 {vr(vLG + k)}, 1536, {vr(vLG + k)}")
            e(f"  s_cmp_eq_u32 s{sK}, 15")
            e("  s_cbranch_scc1 L_kv")
            e("L_kw:")
        if a in (3, 7) or P.tfine:
            tr()
    assert sorted(TN[21:]) == [0, 1, 2] and TN[:3] == TN[3:6] and sorted(TN[:3]) == [0, 1, 2] and PRE <= 18
    e(f"  s_add_u32 s{sK}, s{sK}, 1")
    e(f"  s_mov_b64 s[{rA}:{rA + 1}], s[{rB}:{rB + 1}]")
    e(f"  s_cmp_lt_u32 s{sK}, 16")
    e("  s_cbranch_scc1 L_k")


    def vbody(n):
        v_ = ring + 4 * n
        e(f"  v_mov_b32_dpp {vr(bc)}, {vr(A + n // 16)} row_newbcast:{rev(n % 16, 4)} row_mask:0xf bank_mask:0xf")
        for i in range(4):
            e(f"  v_cvt_f32_i32 {vr(v_ + i)}, {vr(v_ + i)}")
        for h in range(2):
            d = 4 * TN[n] + 2 * h
            if n < 3:
                e(f"  v_pk_mul_f32 {vr(tmp + d, 2)}, {vr(v_ + 2 * h, 2)}, {vr(bc, 2)} op_sel_hi:[1,0]")
            else:
                e(f"  v_pk_fma_f32 {vr(acc + d, 2)}, {vr(v_ + 2 * h, 2)}, {vr(bc, 2)}, {vr((tmp if n < 6 else acc) + d, 2)} op_sel_hi:[1,0,1]")

    def vout(last=False):
        for j in range(3):
            e(f"  v_permlane32_swap_b32 {vr(acc + 4 * j)}, {vr(acc + 4 * j + 2)}")
            e(f"  v_permlane32_swap_b32 {vr(acc + 4 * j + 1)}, {vr(acc + 4 * j + 3)}")
        for j in range(3):
            e(f"  v_add_f32 {vr(acc + 4 * j)}, {vr(acc + 4 * j)}, {vr(acc + 4 * ((j + 1) % 3) + 2)}")
            e(f"  v_add_f32 {vr(acc + 4 * j + 1)}, {vr(acc + 4 * j + 1)}, {vr(acc + 4 * ((j + 1) % 3) + 3)}")
        for j in range(3):
            e(f"  v_permlane16_swap_b32 {vr(acc + 4 * j)}, {vr(acc + 4 * j + 1)}")
        for j in range(3):
            e(f"  v_add_f32 {vr(acc + 4 * j)}, {vr(acc + 4 * j)}, {vr(acc + 4 * ((j + 2) % 3) + 1)}")
        for j in range(3):
            e(f"  ds_write_b32 {vr(vPA + j)}, {vr(acc + 4 * j)}")
        if not last:
            e(f"  ds_write_b32 {vr(vPW)}, {vr(M1)} offset:{FL}")
            e("L_v0:")

    def vnext():
        e(f"  s_add_u32 s{sT1}, s{sK}, 1")
        e(f"  s_min_u32 s{sT1}, s{sT1}, 15")
        vstep_k(sH, sT1)
        e(f"  s_add_u32 s{sNEED}, s{sH}, 1")
        e(f"  s_mul_i32 s{sF}, s{sH}, 1536")
        head_of(sH, sH)
        srd_head(rB, sQV, sH)
        for k in range(2):
            e(f"  v_add_u32 {vr(vLV + k)}, s{sF}, {vr(vLB + k)}")

    NS, NT = (PRE - PD) // 3, 8 - PD // 3
    assert NS <= 1 and 4 <= NT <= 5 and (NS or P.ov[0] == "R") and max(P.mg, P.ml) <= 3 * NT
    e("L_vpre:")
    kout()
    e(f"  s_mov_b32 s{sK}, 0")
    e(f"  v_mov_b32 {vr(M1)}, 16")
    if NS:
        for n in range(3):
            e(f"  s_waitcnt vmcnt({plain[384 + n]})")
            vbody(n)
        e(f"  s_waitcnt vmcnt({plain[387]}) lgkmcnt(0)")
        e("  s_branch L_v1")
    else:
        e("  s_waitcnt lgkmcnt(3)")
        e("  s_branch L_v0")
    flush()
    e("L_kv:")
    vfirst()
    e("  s_branch L_kw")
    flush()
    e(".p2align 6")
    e("L_v:")
    for a in range(8):
        if a == 1:
            e("L_v1:")
            e(f"  ds_read_b32 {vr(A + 1)}, {vr(vLV + 1)}")
        if a == NT:
            e(f"  s_cmp_eq_u32 s{sK}, 15")
            e("  s_cbranch_scc1 L_vt")
        if a in (5, 7):
            e("  s_waitcnt lgkmcnt(0)")
        if a == 5:
            e(f"  ds_read_b32 {vr(vF)}, {vr(vZ)} offset:{FL + 20}")
        if a == 6:
            flagwait("an", FL + 20)
            e(f"  ds_read_b32 {vr(A)}, {vr(vLV)}")
        group("V", a, vbody, None, vout)
        if a == 1:
            vnext()
        if a == 3:
            e(f"  v_add_u32 {vr(M1)}, 1, {vr(M1)}")
            for j in range(3):
                e(f"  v_add_u32 {vr(vPA + j)}, 3072, {vr(vPA + j)}")
        if a in (3, 7):
            tr()
    e(f"  s_add_u32 s{sK}, s{sK}, 1")
    e(f"  s_mov_b64 s[{rA}:{rA + 1}], s[{rB}:{rB + 1}]")
    e("  s_branch L_v")
    flush()
    e("L_vt:")
    e("  s_waitcnt lgkmcnt(0)")
    for n in range(3 * NT, 24):
        e(f"  s_waitcnt vmcnt({plain[744 + n]})")
        vbody(n)
    tr()
    e("  s_nop 1")
    vout(True)
    e("  s_waitcnt lgkmcnt(0)")
    e("  s_barrier")
    if P.trace:
        e(f"  s_mul_i32 s8, s2, {5 * 256}")
        e("  s_add_u32 s8, s8, 0x100000")
        e(f"  v_lshl_add_u32 {vr(t0)}, v0, 2, s8")
        e(f"  global_store_dword {vr(t0)}, {vr(vtr)}, s[{sWS}:{sWS + 1}]")
    e("  s_endpgm")

    HP = [4, 6, 24, 8, 10, 36, 38, 72]
    ms = [m for m in range(P.r0, P.r1 + 1) if m < P.rf or m > P.rt or (m - P.r0) % P.rp == 0]
    gain = [(P.kp0 if m <= P.kn else P.kp) if m in ms else 0 for m in range(32)]
    if P.rk:
        gain = [int(c, 16) for c in P.rk]
        assert len(gain) == 32 and not any(gain[:P.r0]) and not gain[31]
    msk = sum(1 << m for m in range(32) if gain[m])

    def hp(k):
        if P.hprof:
            e(f"  s_memrealtime s[{HP[k]}:{HP[k] + 1}]")

    def progwait(name, slp, off=FL):
        e(f"L_{name}:")
        e(f"  ds_read_b128 {vr(pr, 4)}, {vr(vZ)} offset:{off}")
        e("  s_waitcnt lgkmcnt(0)")
        e(f"  v_min_u32 {vr(pr)}, {vr(pr)}, {vr(pr + 1)}")
        e(f"  v_min3_u32 {vr(pr)}, {vr(pr)}, {vr(pr + 2)}, {vr(pr + 3)}")
        e("  s_nop 0")
        e(f"  v_readfirstlane_b32 s{sF}, {vr(pr)}")
        e(f"  s_cmp_ge_u32 s{sF}, s{sNEED}")
        e(f"  s_cbranch_scc1 L_{name}_ok")
        budget(f"L_{name}_ok")
        if slp:
            e(f"  s_sleep {slp}")
        e(f"  s_branch L_{name}")
        e(f"L_{name}_ok:")

    def rowred(op, v):
        for n in (8, 4, 2, 1):
            e("  s_nop 1")
            e(f"  {op}_dpp {vr(v)}, {vr(v)}, {vr(v)} row_ror:{n} row_mask:0xf bank_mask:0xf")

    def allred(op, v, t):
        rowred(op, v)
        for sw in ("v_permlane16_swap_b32", "v_permlane32_swap_b32"):
            e(f"  v_mov_b32 {vr(t)}, {vr(v)}")
            e("  s_nop 1")
            e(f"  {sw} {vr(v)}, {vr(t)}")
            e(f"  {op} {vr(v)}, {vr(v)}, {vr(t)}")

    def sum_partials(nq):
        w = 4 * nq
        for k in range(4):
            for q in range(nq):
                e(f"  ds_read_b128 {vr(x + w * k + 4 * q, 4)}, {vr(h0)} offset:{768 * k + 16 * q}")
        e(f"  ds_read_b128 {vr(z4, 4)}, {vr(h1)} offset:{ST}")
        e("  s_waitcnt lgkmcnt(0)")
        for h in range(0, w, 2):
            e(f"  v_pk_add_f32 {vr(x + h, 2)}, {vr(x + h, 2)}, {vr(x + w + h, 2)}")
            e(f"  v_pk_add_f32 {vr(x + 2 * w + h, 2)}, {vr(x + 2 * w + h, 2)}, {vr(x + 3 * w + h, 2)}")
        for h in range(0, w, 2):
            e(f"  v_pk_add_f32 {vr(x + h, 2)}, {vr(x + h, 2)}, {vr(x + 2 * w + h, 2)}")
        for h in range(0, w, 2):
            e(f"  v_pk_add_f32 {vr(x + h, 2)}, {vr(x + h, 2)}, {vr(z4 + 2, 2)} op_sel_hi:[1,0] neg_lo:[0,1] neg_hi:[0,1]")

    def mark(tag):
        if P.sd:
            e("  s_memrealtime s[72:73]")
            e("  s_waitcnt lgkmcnt(0)")
            e("  s_sub_u32 s75, s72, s74")
            e("  s_mov_b32 s74, s72")
            e(f"  s_add_u32 s72, s{sNEED}, {64 - P.sd}")
            e("  s_and_b32 s73, s72, 1")
            e("  s_lshl_b32 s73, s73, 4")
            e("  s_min_u32 s75, s75, 510")
            e("  s_lshl_b32 s75, s75, s73")
            e("  s_lshr_b32 m0, s72, 1")
            e(f"  v_readlane_b32 s73, {vr(vCL)}, m0")
            e("  s_add_u32 s73, s73, s75")
            e(f"  v_writelane_b32 {vr(vCL)}, s73, m0")
        if not P.enc:
            return
        for k, m in enumerate(P.enc.split(",")[:2]):
            e(f"  s_cmp_eq_u32 s{sNEED}, {m}")
            e(f"  s_cbranch_scc0 L_mk{tag}{k}")
            e(f"  s_memrealtime s[{72 + 2 * k}:{73 + 2 * k}]")
            e(f"L_mk{tag}{k}:")

    def warm(tag):
        if not P.tw:
            return
        tm = sum(1 << int(v) for v in P.tm.split(","))
        if P.ts:
            e(f"  s_bfe_u32 s{sT0}, s2, {P.ts << 16 | 4:#x}")
            e(f"  s_add_u32 s{sX}, s{sNEED}, s{sT0}")
            e(f"  s_add_u32 s{sX}, s{sX}, {P.tw}")
        else:
            e(f"  s_add_u32 s{sX}, s{sNEED}, {P.tw}")
        e(f"  s_min_u32 s{sX}, s{sX}, 31")
        e(f"  s_cmp_eq_u32 s{sJ}, 0")
        e(f"  s_cselect_b32 s{sT0}, {tm:#x}, 0")
        e(f"  s_bitcmp1_b32 s{sT0}, s{sX}")
        e(f"  s_cbranch_scc0 L_tw{tag}")
        e(f"  s_sub_u32 s{sT1}, s{sX}, 16")
        vstep_k(sF, sT1)
        e(f"  s_cmp_lt_u32 s{sX}, 16")
        e(f"  s_cselect_b32 s{sF}, s{sX}, s{sF}")
        e(f"  s_cselect_b32 s{rB}, s{sQK}, s{sQV}")
        e(f"  s_cselect_b32 s{rB + 1}, s{sQK + 1}, s{sQV + 1}")
        head_of(sF, sF, hU)
        e(f"  s_mul_i32 s{sF}, s{sF}, {UB}")
        e(f"  s_add_u32 s{sF}, s{sF}, {65536 * RUN[0]}")
        if P.tv:
            e(f"  v_mov_b32 {vr(vFX)}, s{sF}")
            e("  s_mov_b64 exec, 1")
            e(f"  global_load_dword {vr(vFX)}, {vr(vFX)}, s[{rB}:{rB + 1}] nt")
            e("  s_mov_b64 exec, -1")
            e("  s_waitcnt vmcnt(0)")
        else:
            e(f"  s_load_dword s{sF}, s[{rB}:{rB + 1}], s{sF} {P.tg}")
            e("  s_waitcnt lgkmcnt(0)")
        e(f"L_tw{tag}:")

    def rank_post(tag):
        if not P.ctl:
            return
        e(f"  s_bitcmp1_b32 s{sRF}, s{sNEED}")
        e(f"  s_cbranch_scc0 L_fa{tag}")
        e(f"  s_mul_i32 s{sT0}, s{sNEED}, 384")
        e(f"  s_add_u32 s{sT0}, s{sT0}, {W_RK}")
        e(f"  s_mov_b32 s{sB}, 1")
        e(f"  s_atomic_add s{sB}, s[{sWS}:{sWS + 1}], s{sT0} glc")
        e(f"L_fa{tag}:")

    def rank_take(tag):
        if not P.ctl:
            return
        e(f"  s_bitcmp1_b32 s{sRF}, s{sNEED}")
        e(f"  s_cbranch_scc0 L_fb{tag}")
        e("  s_waitcnt lgkmcnt(0)")
        e(f"  s_min_u32 s{sF}, s{sB}, 15")
        e(f"  s_lshl_b32 s{sF}, s{sF}, 1")
        e(f"  s_sub_u32 s{sF}, s{sF}, 15")
        gs = sorted(set(gain) - {0})
        e(f"  s_mov_b32 s{sT0}, {gs[0]}")
        for g_ in gs[1:]:
            e(f"  s_bitcmp1_b32 {sum(1 << m for m in range(32) if gain[m] == g_):#x}, s{sNEED}")
            e(f"  s_cselect_b32 s{sT0}, {g_}, s{sT0}")
        e(f"  s_mul_i32 s{sF}, s{sF}, s{sT0}")
        e(f"  s_add_u32 s{sF}, s{sF}, 8")
        e(f"  s_ashr_i32 s{sF}, s{sF}, 4")
        e(f"  v_mov_b32 {vr(vFX)}, s{sF}")
        e("  s_mov_b64 exec, 1")
        e(f"  global_store_dword {vr(vFB)}, {vr(vFX)}, s[{sWS}:{sWS + 1}]")
        e("  s_mov_b64 exec, -1")
        e(f"L_fb{tag}:")

    HPF = [10, 16, 18, 20, 22, 72, 74, 76, 82, 96]
    hpn = [0]

    def hpf():
        if P.tfine:
            e(f"  s_memrealtime s[{HPF[hpn[0]]}:{HPF[hpn[0]] + 1}]")
            hpn[0] += 1

    e("L_helper:")
    e(f"  s_setprio {P.hp0}")
    hv = []

    def qmask(on):
        if on:
            e("  s_mov_b32 exec_lo, 0xffffff")
            e("  s_mov_b32 exec_hi, 0xffffff")
        else:
            e("  s_mov_b64 exec, -1")

    if P.st:
        e("; start the address translation of the small arrays right away")
        e("  s_waitcnt lgkmcnt(0)")
        e(f"  s_load_dwordx8 s[24:31], s[0:1], 80")
        for k, sp in enumerate((sQ, sKS, sVS)):
            e(f"  s_load_dword s{rA + k}, s[{sp}:{sp + 1}], 0")
    e(f"  v_and_b32 {vr(vL16)}, 0x1f0, {vr(vT16)}")
    e(f"  global_load_dwordx4 {vr(pr, 4)}, {vr(vL16)}, s[{sZ}:{sZ + 1}] offset:{D_QCS - PC0}")
    e(f"  global_load_dwordx4 {vr(f0, 4)}, {vr(vL16)}, s[{sZ}:{sZ + 1}] offset:{D_F0 - PC0}")
    e(f"  v_and_b32 {vr(vSh)}, 32, v0")
    e(f"  v_lshrrev_b32 {vr(vSh)}, 1, {vr(vSh)}")
    e(f"  v_lshrrev_b32 {vr(h1)}, 1, {vr(vL16)}")
    e(f"  s_movk_i32 s{sT1}, 384")
    if not P.st:
        e("  s_waitcnt lgkmcnt(0)")
    hpf()
    for p in range(2):
        e(f"  v_lshrrev_b32 {vr(hq + p)}, {vr(vSh)}, s{sE + 10 + p}")
        e(f"  v_and_b32 {vr(h0)}, 0xff, {vr(hq + p)}")
        e(f"  v_mad_u32_u24 {vr(ra + p)}, {vr(h0)}, s{sT1}, {vr(h1)}")
    qmask(1)
    for p in range(2):
        e(f"  global_load_dwordx2 {vr(rec + 4 * p, 2)}, {vr(ra + p)}, s[{sQ}:{sQ + 1}]")
        e(f"  global_load_dwordx2 {vr(rec + 4 * p + 2, 2)}, {vr(ra + p)}, s[{sQ}:{sQ + 1}] offset:192")
        hv.extend([("q", p)] * 2)
    qmask(0)
    hpf()
    common(not P.st)
    e(f"  s_and_b32 s{sT0}, s{sE + 15}, 0x1c00")
    e(f"  s_and_b32 s{sE + 15}, s{sE + 15}, 0xff")
    e(f"  s_add_u32 s{sT0}, s{sT0}, L_hpos-L_pc")
    e(f"  v_add_u32 {vr(h0)}, s{sT0}, {vr(vT16)}")
    e(f"  global_load_dwordx4 {vr(st4, 4)}, {vr(h0)}, s[{sZ}:{sZ + 1}]")
    hv.append(("h", 0))
    e(f"  s_mov_b64 s[{sVO}:{sVO + 1}], s[{sE + 8}:{sE + 9}]")
    e(f"  v_mov_b32 {vr(l)}, v0")
    for i in range(4):
        e(f"  v_mov_b32 {vr(z4 + i)}, 0")
    for k in range(4):
        e(f"  ds_write_b128 {vr(vZ)}, {vr(z4, 4)} offset:{FL + 16 * k}")
    e(f"  s_mov_b32 s{sMASK}, 0xffff0000")
    e(f"  s_mov_b32 s{sSCALE}, {f32bits(math.log2(math.e) / math.sqrt(192.0)):#x}")
    e(f"  s_movk_i32 s{sC}, 784")
    e(f"  v_mad_u32_u24 {vr(wa)}, {vr(vSh)}, 48, {vr(vL16)}")
    e(f"  v_lshrrev_b32 {vr(vSq)}, 1, {vr(vSh)}")
    for p in range(8):
        e(f"  v_lshrrev_b32 {vr(ra + p)}, {vr(vSh)}, s{sE + p}")
    e("  s_waitcnt lgkmcnt(0)")
    hpf()
    if P.ctl:
        die_base(sF)
        e(f"  v_lshrrev_b32 {vr(h0)}, 1, {vr(l)}")
        e(f"  v_lshl_add_u32 {vr(vFX)}, {vr(h0)}, 8, s{sF}")
        e(f"  v_and_b32 {vr(h0)}, 1, {vr(l)}")
        e(f"  v_lshl_add_u32 {vr(vFX)}, {vr(h0)}, 4, {vr(vFX)}")
        e(f"  s_and_b32 s{sT1}, s{sSE}, 2")
        e(f"  s_lshl_b32 s{sT0}, s{sT1}, 9")
        e(f"  s_add_u32 s{sT0}, s{sT0}, s{sF}")
        e(f"  v_add_u32 {vr(vEL)}, s{sT0}, {vr(l)}")
        e(f"  s_lshl_b32 s{sT1}, s{sT1}, 1")
        e(f"  s_add_u32 s{sF}, s{sF}, s{sT1}")
        e(f"  s_add_u32 s{sF}, s{sF}, 2048")
        e(f"  v_mov_b32 {vr(vFB)}, s{sF}")
        e(f"  v_mul_u32_u24 {vr(vFA)}, 384, {vr(l)}")
        e(f"  v_add_u32 {vr(vFA)}, {W_RK}, {vr(vFA)}")
        e(f"  s_mov_b32 s{sRF}, 0")
        e("  s_mov_b64 exec, 0x3ffff")
        e(f"  global_store_dwordx4 {vr(vFX)}, {vr(z4, 4)}, s[{sWS}:{sWS + 1}]")
        e("  s_mov_b64 exec, -1")
    e(f"  s_waitcnt vmcnt({len(hv)})")
    for k in range(4):
        e(f"  v_lshlrev_b32 {vr(cs + k)}, 16, {vr(pr + k)}")
        e(f"  v_and_b32 {vr(cs + 4 + k)}, s{sMASK}, {vr(pr + k)}")

    def elect():
        if not P.ctl:
            return
        e(f"  s_cmp_eq_u32 s{sNEED}, {P.r0 - 1}")
        e("  s_cbranch_scc0 L_el")
        e(f"  s_bitcmp0_b32 s{sSE}, 0")
        e("  s_cbranch_scc0 L_el")
        e("  s_mov_b64 exec, 0xffff")
        e(f"  global_load_ubyte {vr(vFX)}, {vr(vEL)}, s[{sWS}:{sWS + 1}] sc1")
        e("  s_waitcnt vmcnt(0)")
        e(f"  v_cmp_ne_u32 s[{sZ}:{sZ + 1}], 0, {vr(vFX)}")
        e(f"  s_lshr_b32 s{sT0}, s{sZ}, s{sCU}")
        e(f"  s_bcnt1_i32_b32 s{sT0}, s{sT0}")
        pat = sum(1 << m for m in range(0, 32, P.rotl))
        e(f"  s_sub_u32 s{sT1}, s{sT0}, 1")
        e(f"  s_cmp_lt_u32 s{sT1}, {P.rotl}")
        e("  s_cbranch_scc0 L_el")
        e(f"  s_lshl_b32 s{sRF}, {pat:#x}, s{sT1}")
        e(f"  s_and_b32 s{sRF}, s{sRF}, {msk:#x}")
        e("L_el:")
        e("  s_mov_b64 exec, -1")

    def roleaddr(src):
        e(f"  v_bfe_u32 {vr(wb)}, {vr(src)}, 12, 2")
        e(f"  v_mul_u32_u24 {vr(h1)}, s{sC}, {vr(wb)}")
        e(f"  v_add_u32 {vr(h1)}, {QR}, {vr(h1)}")
        e(f"  v_add_u32 {vr(h0)}, {vr(h1)}, {vr(vL16)}")

    def rotate(p):
        L, Hh, LC, HS, HC, LS = x, x + 4, x + 8, x + 12, x + 16, x + 20
        roleaddr(hq + p)
        e(f"  v_mov_b32 {vr(h2)}, 0")
        qmask(1)
        if p == 0:
            hpf()
        e(f"  s_waitcnt vmcnt({hv[::-1].index(('q', p))})")
        if p == 0:
            hpf()
        for k in range(4):
            e(f"  v_lshlrev_b32 {vr(L + 2 * k)}, 16, {vr(rec + 4 * p + k)}")
            e(f"  v_and_b32 {vr(L + 2 * k + 1)}, s{sMASK}, {vr(rec + 4 * p + k)}")
        for d, q_, t_ in ((LC, L, cs), (HS, Hh, cs + 4), (HC, Hh, cs), (LS, L, cs + 4)):
            for h in (0, 2):
                e(f"  v_pk_mul_f32 {vr(d + h, 2)}, {vr(q_ + h, 2)}, {vr(t_ + h, 2)}")
        for i in range(4):
            e(f"  v_cvt_pk_bf16_f32 {vr(L + i)}, {vr(LC + i)}, {vr(HS + i)}")
            e(f"  v_cvt_pk_bf16_f32 {vr(Hh + i)}, {vr(HC + i)}, {vr(LS + i)}")
        for k in range(8):
            e(f"  v_lshlrev_b32 {vr(LC + k)}, 16, {vr(L + k)}")
            e(f"  v_and_b32 {vr(L + k)}, s{sMASK}, {vr(L + k)}")
        for h in (0, 2):
            e(f"  v_pk_add_f32 {vr(L + h, 2)}, {vr(LC + h, 2)}, {vr(L + h, 2)} neg_lo:[0,1] neg_hi:[0,1]")
            e(f"  v_pk_add_f32 {vr(Hh + h, 2)}, {vr(HS + h, 2)}, {vr(Hh + h, 2)}")
        for i in range(4):
            e(f"  v_cvt_pk_bf16_f32 {vr(Hh + i)}, {vr(L + i)}, {vr(Hh + i)}")
        for i in range(4):
            e(f"  v_lshlrev_b32 {vr(L + i)}, 16, {vr(Hh + i)}")
            e(f"  v_and_b32 {vr(Hh + i)}, s{sMASK}, {vr(Hh + i)}")
        for i in range(4):
            e(f"  v_max3_f32 {vr(h2)}, |{vr(L + i)}|, |{vr(Hh + i)}|, {vr(h2)}")
        qmask(0)
        rowred("v_max_f32", h2)
        e(f"  v_mov_b32 {vr(h3)}, {vr(h2)}")
        e("  s_nop 1")
        e(f"  v_permlane16_swap_b32 {vr(h2)}, {vr(h3)}")
        e(f"  v_max_f32 {vr(h2)}, {vr(h2)}, {vr(h3)}")
        e(f"  v_frexp_exp_i32_f32 {vr(h2)}, {vr(h2)}")
        e(f"  v_sub_u32 {vr(h3)}, 13, {vr(h2)}")
        e(f"  v_subrev_u32 {vr(h2)}, 13, {vr(h2)}")
        for i in range(8):
            e(f"  v_ldexp_f32 {vr(L + i)}, {vr(L + i)}, {vr(h3)}")
        e(f"  v_ldexp_f32 {vr(h2)}, s{sSCALE}, {vr(h2)}")
        qmask(1)
        e(f"  ds_write_b128 {vr(h0)}, {vr(L, 4)}")
        e(f"  ds_write_b128 {vr(h0)}, {vr(Hh, 4)} offset:384")
        e(f"  ds_write_b32 {vr(h1)}, {vr(h2)} offset:768")
        qmask(0)

    cu, su = x + 24, x + 28

    def angle(p):
        e(f"  v_and_b32 {vr(qn)}, 7, {vr(ra + p)}")
        e(f"  v_cvt_f32_u32 {vr(qn)}, {vr(qn)}")
        for h in (0, 2):
            e(f"  v_pk_mul_f32 {vr(su + h, 2)}, {vr(f0 + h, 2)}, {vr(qn, 2)} op_sel_hi:[1,0]")
        for i in range(4):
            e(f"  v_cos_f32 {vr(cu + i)}, {vr(su + i)}")
        for i in range(4):
            e(f"  v_sin_f32 {vr(su + i)}, {vr(su + i)}")

    def item(p):
        a_, b_, a2, b2 = x, x + 4, x + 8, x + 12
        roleaddr(ra + p)
        qmask(1)
        e(f"  ds_read_b128 {vr(a_, 4)}, {vr(h0)}")
        e(f"  ds_read_b128 {vr(b_, 4)}, {vr(h0)} offset:384")
        e(f"  ds_read_b32 {vr(qn + 2)}, {vr(h1)} offset:768")
        if p:
            angle(p)
        e(f"  v_mov_b32 {vr(qn + 3)}, {vr(wb)}")
        e(f"  v_mov_b32 {vr(h0)}, {2 * p + 2}")
        e("  s_waitcnt lgkmcnt(0)")
        for h in (0, 2):
            e(f"  v_pk_mul_f32 {vr(a2 + h, 2)}, {vr(a_ + h, 2)}, {vr(cu + h, 2)}")
            e(f"  v_pk_mul_f32 {vr(b2 + h, 2)}, {vr(b_ + h, 2)}, {vr(cu + h, 2)}")
        for h in (0, 2):
            e(f"  v_pk_fma_f32 {vr(a2 + h, 2)}, {vr(b_ + h, 2)}, {vr(su + h, 2)}, {vr(a2 + h, 2)}")
            e(f"  v_pk_fma_f32 {vr(b2 + h, 2)}, {vr(a_ + h, 2)}, {vr(su + h, 2)}, {vr(b2 + h, 2)} neg_lo:[1,0,0] neg_hi:[1,0,0]")
        for i in range(4):
            e(f"  v_cvt_pk_f16_f32 {vr(a_ + i)}, {vr(a2 + i)}, {vr(b2 + i)}")
            e(f"  v_cvt_pk_f16_f32 {vr(b_ + i)}, {vr(b2 + i)}, -{vr(a2 + i)}")
        e(f"  ds_write_b128 {vr(wa)}, {vr(a_, 4)} offset:{QB + 1536 * p}")
        e(f"  ds_write_b128 {vr(wa)}, {vr(b_, 4)} offset:{QB + 1536 * p + 384}")
        e(f"  ds_write_b64 {vr(vSq)}, {vr(qn + 2, 2)} offset:{QS + 16 * p}")
        e(f"  ds_write_b32 {vr(vZ)}, {vr(h0)} offset:{FL + 16}")
        qmask(0)

    angle(0)
    rotate(0)
    item(0)
    hpf()
    e("  s_waitcnt lgkmcnt(0)")
    e("  s_setprio 0")
    hpf()
    e("  s_barrier")
    hpf()
    for p in range(8):
        e(f"  v_and_b32 {vr(h0)}, 0x7ff, {vr(ra + p)}")
        e(f"  v_lshl_add_u32 {vr(h0)}, {vr(h0)}, 9, {vr(vL16)}")
        for i, sp in enumerate((sKS, sVS)):
            e(f"  s_mov_b32 m0, {SCB + SA * i + 1024 * p}")
            e("  s_nop 0")
            e(f"  global_load_lds_dwordx4 {vr(h0)}, s[{sp}:{sp + 1}] nt")
            hv.append(("s", p))
    rotate(1)
    for p in range(1, 8):
        item(p)
    if P.tw:
        for k in range(8):
            e(f"  v_writelane_b32 {vr(hU)}, s{sE + k}, {k}")
    e(f"  v_mov_b32 {vr(vSa)}, 0")
    e(f"  v_mov_b32 {vr(vSq)}, 0")
    e(f"  v_min_u32 {vr(u)}, 47, {vr(l)}")
    e(f"  v_lshlrev_b32 {vr(vL16)}, 4, {vr(u)}")
    for i in range(4):
        e(f"  v_mov_b32 {vr(sc + i)}, 0")
    e(f"  s_mov_b32 s{sNEED}, 1")
    e("  s_cmp_eq_u32 s2, 0")
    e("  s_cbranch_scc0 L_rc")
    e(f"  v_mov_b32 {vr(h0)}, {W_REC + 384 + 4}")
    e(f"  global_load_dword {vr(h1)}, {vr(h0)}, s[{sWS}:{sWS + 1}] sc1")
    if P.ctl:
        e(f"  s_mov_b64 exec, {msk:#x}")
        e(f"  global_store_dword {vr(vFA)}, {vr(vZ)}, s[{sWS}:{sWS + 1}] sc1")
    e("  s_mov_b64 exec, 1")
    e("  s_waitcnt vmcnt(0)")
    e(f"  v_and_b32 {vr(qn)}, 0x77777777, {vr(h1)}")
    e(f"  v_and_b32 {vr(h1)}, 0x88888888, {vr(h1)}")
    e(f"  v_add_u32 {vr(qn)}, 0x11111111, {vr(qn)}")
    e(f"  v_xor_b32 {vr(qn)}, {vr(qn)}, {vr(h1)}")
    e(f"  v_mov_b32 {vr(qn + 1)}, 1")
    e(f"  global_store_dwordx2 {vr(vZ)}, {vr(qn, 2)}, s[{sDBG}:{sDBG + 1}] sc1")
    e("  s_mov_b64 exec, -1")
    e("L_rc:")
    hpf()
    e("  s_waitcnt vmcnt(0)")
    hpf()
    if P.tfine:
        e("  s_waitcnt lgkmcnt(0)")
        e(f"  v_mov_b32 {vr(h0)}, 0")
        for k in range(hpn[0]):
            e(f"  v_writelane_b32 {vr(h0)}, s{HPF[k]}, {k}")
        e(f"  s_mul_i32 s{sT0}, s2, {5 * 256}")
        e(f"  s_add_u32 s{sT0}, s{sT0}, {0x100000 + 1024}")
        e(f"  v_lshl_add_u32 {vr(h1)}, v0, 2, s{sT0}")
        e(f"  global_store_dword {vr(h1)}, {vr(h0)}, s[{sWS}:{sWS + 1}]")
    for k in range(4):
        e(f"  v_and_b32 {vr(ro + 2 * k)}, 0xffff, {vr(st4 + k)}")
        e(f"  v_lshrrev_b32 {vr(ro + 2 * k + 1)}, 16, {vr(st4 + k)}")
    for k in range(2):
        e(f"  v_add_u32 {vr(ro + 6 + k)}, {SCB}, {vr(ro + 6 + k)}")
    if P.sd:
        e(f"  v_mov_b32 {vr(vCL)}, 0")
    e("L_hk:")
    for a in range(2):
        for k in range(2):
            e(f"  ds_read_u16_d16_hi {vr(sc + 2 * a + k)}, {vr(ro + 6 + k)} offset:{SA * a}")
    e(f"  ds_read_b64 {vr(z4 + 2, 2)}, {vr(vSq)} offset:{QS}")
    e(f"  v_add_u32 {vr(vSq)}, 8, {vr(vSq)}")
    progwait("hsw", P.psk)
    mark("s")
    rank_post("s")
    for k in range(6):
        e(f"  ds_read_b32 {vr(x + 4 + k)}, {vr(ro + k)} offset:{LGB}")
    e(f"  v_mul_f32 {vr(x + 2)}, {vr(z4 + 2)}, {vr(sc)}")
    e(f"  v_mul_f32 {vr(x + 3)}, {vr(z4 + 2)}, {vr(sc + 1)}")
    e("  s_waitcnt lgkmcnt(0)")
    e(f"  v_pk_add_f32 {vr(x, 2)}, {vr(x + 4, 2)}, {vr(x + 6, 2)}")
    e(f"  v_pk_add_f32 {vr(x, 2)}, {vr(x, 2)}, {vr(x + 8, 2)}")
    e(f"  v_mul_f32 {vr(x)}, {vr(x)}, {vr(x + 2)}")
    e(f"  v_mul_f32 {vr(x + 1)}, {vr(x + 1)}, {vr(x + 3)}")
    e(f"  v_max_f32 {vr(z4)}, {vr(x)}, {vr(x + 1)}")
    allred("v_max_f32", z4, h0)
    e(f"  v_sub_f32 {vr(x)}, {vr(x)}, {vr(z4)}")
    e(f"  v_sub_f32 {vr(x + 1)}, {vr(x + 1)}, {vr(z4)}")
    e(f"  v_exp_f32 {vr(x)}, {vr(x)}")
    e(f"  v_exp_f32 {vr(x + 1)}, {vr(x + 1)}")
    e("  s_nop 0")
    e(f"  v_add_f32 {vr(z4 + 1)}, {vr(x)}, {vr(x + 1)}")
    e(f"  v_mul_f32 {vr(x)}, {vr(x)}, {vr(sc + 2)}")
    e(f"  v_mul_f32 {vr(x + 1)}, {vr(x + 1)}, {vr(sc + 3)}")
    e(f"  v_add_f32 {vr(z4 + 2)}, {vr(x)}, {vr(x + 1)}")
    for k in range(6):
        e(f"  ds_write_b32 {vr(ro + k)}, {vr(x + (k & 1))} offset:{LGB}")
    e(f"  v_mul_f32 {vr(z4 + 2)}, {f32bits(7.5):#x}, {vr(z4 + 2)}")
    allred("v_add_f32", z4 + 1, h0)
    allred("v_add_f32", z4 + 2, h0)
    e(f"  v_mov_b32 {vr(h0)}, s{sNEED}")
    e(f"  ds_write_b128 {vr(vSa)}, {vr(z4, 4)} offset:{ST}")
    e(f"  ds_write_b32 {vr(vZ)}, {vr(h0)} offset:{FL + 20}")
    e(f"  v_add_u32 {vr(vSa)}, 16, {vr(vSa)}")
    for k in range(8):
        e(f"  v_add_u32 {vr(ro + k)}, {1536 if k < 6 else SL}, {vr(ro + k)}")
    rank_take("s")
    warm("s")
    elect()
    e("  s_waitcnt lgkmcnt(0)")
    e(f"  s_add_u32 s{sNEED}, s{sNEED}, 1")
    e(f"  s_cmp_le_u32 s{sNEED}, 16")
    e("  s_cbranch_scc1 L_hk")

    e(f"  v_and_b32 {vr(h0)}, 15, {vr(l)}")
    e(f"  v_lshlrev_b32 {vr(h0)}, 4, {vr(h0)}")
    e(f"  ds_read_b128 {vr(z4, 4)}, {vr(h0)} offset:{ST}")
    e(f"  v_lshrrev_b32 {vr(h1)}, 4, {vr(l)}")
    e(f"  v_mov_b32 {vr(h2)}, 0xff800000")
    for i in range(16):
        e(f"  v_mov_b32 {vr(AC + i)}, 0")
    e("  s_waitcnt lgkmcnt(0)")
    e(f"  v_cmp_eq_u32 vcc, {vr(h1)}, {vr(z4 + 3)}")
    e(f"  v_add_u32 {vr(h0)}, {PB}, {vr(vL16)}")
    e(f"  v_lshrrev_b32 {vr(u)}, 1, {vr(vL16)}")
    e(f"  v_cndmask_b32 {vr(vM)}, {vr(h2)}, {vr(z4)}, vcc")
    rowred("v_max_f32", vM)
    e(f"  v_sub_f32 {vr(vFc)}, {vr(z4)}, {vr(vM)}")
    e(f"  v_exp_f32 {vr(vFc)}, {vr(vFc)}")
    e(f"  s_mov_b32 s{sK}, 0")
    e(f"  v_cndmask_b32 {vr(vFc)}, 0, {vr(vFc)}, vcc")
    e(f"  v_mul_f32 {vr(vL)}, {vr(vFc)}, {vr(z4 + 1)}")
    rowred("v_add_f32", vL)
    e(f"  s_mul_i32 s{sT0}, s{sE + 15}, 384")
    e(f"  v_add_u32 {vr(u)}, s{sT0}, {vr(u)}")
    e("L_hp:")
    e(f"  s_lshr_b32 s{sT0}, s2, 4")
    e(f"  s_min_u32 s{sT0}, s{sT0}, 13")
    e(f"  s_cmp_eq_u32 s{sT0}, s{sK}")
    e("  s_cbranch_scc0 L_hc_ok")
    if P.ot == 1:
        e("; (the value is not used: address translation for the final store)")
        e(f"  s_load_dword s{sF}, s[{sOUT}:{sOUT + 1}], 0")
    if P.ot == 2:
        e("; (the value is not used: address translation for the final store)")
        e("  s_mov_b64 exec, 1")
        e(f"  global_load_dword {vr(vFX)}, {vr(vZ)}, s[{sOUT}:{sOUT + 1}]")
        e("  s_mov_b64 exec, -1")
        e("  s_waitcnt vmcnt(0)")
    e(f"  s_load_dwordx2 s[{sZ}:{sZ + 1}], s[{sDBG}:{sDBG + 1}], 0 glc")
    e("  s_waitcnt lgkmcnt(0)")
    e(f"  s_mov_b32 s{sTG}, s{sZ}")
    e(f"  s_cmp_eq_u32 s{sZ + 1}, 1")
    e("  s_cbranch_scc1 L_hc_ok")
    e("L_hc:")
    e(f"  global_load_dwordx2 {vr(pr, 2)}, {vr(vZ)}, s[{sDBG}:{sDBG + 1}] sc1")
    e("  s_waitcnt vmcnt(0)")
    e(f"  v_readfirstlane_b32 s{sTG}, {vr(pr)}")
    e(f"  v_readfirstlane_b32 s{sF}, {vr(pr + 1)}")
    e(f"  s_cmp_eq_u32 s{sF}, 1")
    e("  s_cbranch_scc1 L_hc_ok")
    budget("L_hc_ok")
    e("  s_sleep 64")
    e("  s_branch L_hc")
    e("L_hc_ok:")
    vstep_k(sH, sK)
    e(f"  s_lshl_b32 s{sT0}, s{sH}, 4")
    e(f"  v_mov_b32 {vr(h1)}, s{sT0}")
    for j in range(4):
        e(f"  v_readlane_b32 s{rA + j}, {vr(vFc)}, s{sH}")
        e(f"  s_add_u32 s{sH}, s{sH}, 16")
    e(f"  s_add_u32 s{sK}, s{sK}, 1")
    e(f"  s_add_u32 s{sNEED}, s{sK}, 16")
    progwait("hpw", P.psk)
    mark("p")
    hp(0)
    rank_post("p")
    sum_partials(1)
    for j in range(4):
        for i in range(4):
            e(f"  v_fmac_f32 {vr(AC + 4 * j + i)}, s{rA + j}, {vr(x + i)}")
    e(f"  v_add_u32 {vr(h0)}, 3072, {vr(h0)}")
    rank_take("p")
    warm("p")
    e(f"  s_cmp_lt_u32 s{sK}, 15")
    e("  s_cbranch_scc1 L_hp")

    if P.eprio:
        e(f"  s_setprio {P.eprio}")
    e(f"  s_lshr_b32 s{sH}, s{sVO + 1}, 28")
    e(f"  s_lshl_b32 s{sT0}, s{sH}, 4")
    e(f"  v_mov_b32 {vr(h1)}, s{sT0}")
    e(f"  s_add_u32 s{sH}, s{sH}, 48")
    e(f"  ds_read_b32 {vr(h1)}, {vr(h1)} offset:{ST + 8}")
    mx = x + 16
    for j in range(3):
        e(f"  v_max3_f32 {vr(mx + j)}, |{vr(AC + 4 * j)}|, |{vr(AC + 4 * j + 1)}|, |{vr(AC + 4 * j + 2)}|")
    for j in range(3):
        e(f"  v_max_f32_e64 {vr(mx + j)}, {vr(mx + j)}, |{vr(AC + 4 * j + 3)}|")
    for n in (8, 4, 2, 1):
        for j in range(3):
            e(f"  v_max_f32_dpp {vr(mx + j)}, {vr(mx + j)}, {vr(mx + j)} row_ror:{n} row_mask:0xf bank_mask:0xf")
    for sw in ("v_permlane16_swap_b32", "v_permlane32_swap_b32"):
        for j in range(3):
            e(f"  v_mov_b32 {vr(mx + 4 + j)}, {vr(mx + j)}")
        for j in range(3):
            e(f"  {sw} {vr(mx + j)}, {vr(mx + 4 + j)}")
        for j in range(3):
            e(f"  v_max_f32 {vr(mx + j)}, {vr(mx + j)}, {vr(mx + 4 + j)}")
    for j in range(3):
        e(f"  v_frexp_exp_i32_f32 {vr(mx + j)}, {vr(mx + j)}")
        e(f"  v_sub_u32 {vr(mx + 4 + j)}, 14, {vr(mx + j)}")
        e(f"  v_subrev_u32 {vr(mx + j)}, 14, {vr(mx + j)}")
        for i in range(4):
            e(f"  v_ldexp_f32 {vr(AC + 4 * j + i)}, {vr(AC + 4 * j + i)}, {vr(mx + 4 + j)}")
        for i in range(2):
            e(f"  v_cvt_pk_f16_f32 {vr(x + 2 * j + i)}, {vr(AC + 4 * j + 2 * i)}, {vr(AC + 4 * j + 2 * i + 1)}")
    for j in range(4):
        e(f"  v_readlane_b32 s{16 + j}, {vr(vM)}, {16 * j}")
        e(f"  v_readlane_b32 s{20 + j}, {vr(vL)}, {16 * j}")
    for j in range(3):
        e(f"  v_readlane_b32 s{rA + j}, {vr(mx + j)}, 0")
    e(f"  v_readlane_b32 s{rA + 3}, {vr(vFc)}, s{sH}")
    for k in range(6):
        e(f"  v_lshrrev_b32 {vr(h2)}, 1, {vr(x + k)}")
        e(f"  v_and_b32 {vr(h2)}, 0x10001, {vr(h2)}")
        e(f"  v_add_u32 {vr(x + k)}, {vr(x + k)}, {vr(h2)}")
    for j in range(3):
        e(f"  v_writelane_b32 {vr(x + 2 * j)}, s{16 + j}, 48")
        e(f"  v_writelane_b32 {vr(x + 2 * j)}, s{20 + j}, 49")
        e(f"  v_writelane_b32 {vr(x + 2 * j + 1)}, s{rA + j}, 49")
    e(f"  v_cmp_gt_u32 vcc, 48, {vr(l)}")
    e(f"  v_lshlrev_b32 {vr(h2)}, 2, {vr(l)}")
    e(f"  v_lshrrev_b32 {vr(h2)}, {vr(h2)}, s{sTG}")
    e(f"  v_mov_b32 {vr(h3)}, 0x10001")
    for i in range(2):
        e(f"  v_cndmask_b32 {vr(tg + 2 + i)}, 0, {vr(h3)}, vcc")
        e(f"  v_bfe_u32 {vr(tg + i)}, {vr(h2)}, {2 * i}, 2")
        e(f"  v_lshl_or_b32 {vr(tg + i)}, {vr(tg + i)}, 15, {vr(tg + i)}")
    e(f"  v_writelane_b32 {vr(tg + 3)}, -1, 48")
    e(f"  v_writelane_b32 {vr(tg + 3)}, s{sMASK}, 49")
    e(f"  v_writelane_b32 {vr(tg + 1)}, s{sTG}, 48")
    e(f"  v_writelane_b32 {vr(tg + 1)}, s{sTG}, 49")
    for i in range(2):
        e(f"  v_and_b32 {vr(tg + i)}, {vr(tg + i)}, {vr(tg + 2 + i)}")
    for k in range(6):
        e(f"  v_bfi_b32 {vr(x + k)}, {vr(tg + 2 + k % 2)}, {vr(tg + k % 2)}, {vr(x + k)}")
    e(f"  v_min_u32 {vr(h2)}, 55, {vr(l)}")
    for j in range(3):
        e(f"  v_lshl_add_u32 {vr(ra + j)}, {vr(h2)}, 3, s{sE + 12 + j}")
    e(f"  s_mul_i32 s{sT0}, s{sE + 15}, 1344")
    e(f"  s_add_u32 s{sT0}, s{sT0}, {W_REC}")
    e(f"  v_lshl_add_u32 {vr(ra + 3)}, {vr(h2)}, 3, s{sT0}")
    e("  s_waitcnt lgkmcnt(0)")
    if P.mg:
        e("; the stores leave part-way into the last step, where they disturb the read stream least")
        e(f"  s_mov_b32 s{sNEED}, {31 + (P.mg > 12)}")
        progwait("hmw", P.psl, FL + 32)
    hp(1)
    e("  s_mov_b32 exec_hi, 0xffffff")
    for j in range(3):
        if "w" not in P.xp:
            e(f"  global_store_dwordx2 {vr(ra + j)}, {vr(x + 2 * j, 2)}, s[{sWS}:{sWS + 1}] sc1")
    e("  s_mov_b64 exec, -1")
    if "r" in P.xp:
        e("  s_branch L_skip")
    if P.ml:
        e(f"  s_mov_b32 s{sNEED}, {31 + (P.ml > 12)}")
        progwait("hlw", P.psl, FL + 48)
    else:
        e(f"  s_waitcnt vmcnt({P.aw})")
    hp(2)
    hp(3)
    e("L_hw:")
    hp(4)
    for j in range(3):
        e(f"  global_load_dwordx2 {vr(rec + 2 * j, 2)}, {vr(ra + 3)}, s[{sWS}:{sWS + 1}] offset:{448 * j} sc1")
    e("  s_waitcnt vmcnt(0)")
    hp(5)
    for k in range(6):
        e(f"  v_xor_b32 {vr(rec + k)}, {vr(rec + k)}, {vr(tg + k % 2)}")
    for i in range(2):
        e(f"  v_or3_b32 {vr(h2 + i)}, {vr(rec + i)}, {vr(rec + 2 + i)}, {vr(rec + 4 + i)}")
    e(f"  v_and_b32 {vr(h2)}, {vr(h2)}, {vr(tg + 2)}")
    e(f"  v_and_or_b32 {vr(h2)}, {vr(h3)}, {vr(tg + 3)}, {vr(h2)}")
    e(f"  v_cmp_ne_u32 s[{sZ}:{sZ + 1}], 0, {vr(h2)}")
    for j in range(3):
        e(f"  v_readlane_b32 s{16 + j}, {vr(rec + 2 * j)}, 48")
        e(f"  v_readlane_b32 s{20 + j}, {vr(rec + 2 * j)}, 49")
        e(f"  v_readlane_b32 s{rA + j}, {vr(rec + 2 * j + 1)}, 49")
    e(f"  s_cmp_eq_u64 s[{sZ}:{sZ + 1}], 0")
    e("  s_cbranch_scc1 L_hy")
    budget("L_hy")
    e("  s_branch L_hw")
    e("L_hy:")
    gj = x + 8
    e(f"  v_mov_b32 {vr(h2)}, s19")
    for j in range(3):
        e(f"  v_max_f32 {vr(h2)}, s{16 + j}, {vr(h2)}")
    for j in range(4):
        e(f"  v_sub_f32 {vr(gj + j)}, s{16 + j}, {vr(h2)}")
    for j in range(4):
        e(f"  v_exp_f32 {vr(gj + j)}, {vr(gj + j)}")
    for j in range(3):
        e(f"  s_sext_i32_i16 s{rA + j}, s{rA + j}")
    e(f"  v_mul_f32 {vr(wa)}, s23, {vr(gj + 3)}")
    for j in range(3):
        e(f"  v_fmac_f32 {vr(wa)}, s{20 + j}, {vr(gj + j)}")
    for i in range(4):
        e(f"  v_mul_f32 {vr(fo + i)}, {vr(AC + 12 + i)}, {vr(gj + 3)}")
    e(f"  v_rcp_f32 {vr(wa)}, {vr(wa)}")
    for j in range(3):
        e(f"  v_ldexp_f32 {vr(gj + j)}, {vr(gj + j)}, s{rA + j}")
    for j in range(3):
        for i in range(4):
            e(f"  v_fma_mix_f32 {vr(fo + i)}, {vr(rec + 2 * j + i // 2)}, {vr(gj + j)}, {vr(fo + i)} op_sel:[{i & 1},0,0] op_sel_hi:[1,0,0]")
    e(f"  v_mul_f32 {vr(h2)}, s{rA + 3}, {vr(gj + 3)}")
    e(f"  v_mul_f32 {vr(h2)}, {vr(h2)}, {vr(wa)}")
    e(f"  v_mul_f32 {vr(h3)}, {vr(h2)}, {vr(h1)}")
    for i in range(4):
        e(f"  v_fma_f32 {vr(fo + i)}, {vr(fo + i)}, {vr(wa)}, -{vr(h3)}")
    if "r" in P.xp:
        e("L_skip:")
    hp(6)
    e("  s_barrier")
    hp(7)
    for k in range(4):
        e(f"  ds_read_b128 {vr(x + 4 * k, 4)}, {vr(h0)} offset:{768 * k}")
    e("  s_waitcnt lgkmcnt(2)")
    for h in (0, 2):
        e(f"  v_pk_add_f32 {vr(x + h, 2)}, {vr(x + h, 2)}, {vr(x + 4 + h, 2)}")
    e("  s_waitcnt lgkmcnt(0)")
    for h in (0, 2):
        e(f"  v_pk_add_f32 {vr(x + 8 + h, 2)}, {vr(x + 8 + h, 2)}, {vr(x + 12 + h, 2)}")
    for h in (0, 2):
        e(f"  v_pk_add_f32 {vr(x + h, 2)}, {vr(x + h, 2)}, {vr(x + 8 + h, 2)}")
    for i in range(4):
        e(f"  v_fmac_f32 {vr(fo + i)}, {vr(h2)}, {vr(x + i)}")
    e(f"  v_cvt_pk_bf16_f32 {vr(fo)}, {vr(fo)}, {vr(fo + 1)}")
    e(f"  v_cvt_pk_bf16_f32 {vr(fo + 1)}, {vr(fo + 2)}, {vr(fo + 3)}")
    e("  s_mov_b32 exec_hi, 0xffff")
    e(f"  global_store_dwordx2 {vr(u)}, {vr(fo, 2)}, s[{sOUT}:{sOUT + 1}] {P.of}")
    if P.sd:
        e(f"  s_mov_b32 s{sNEED}, 32")
        e("  s_mov_b64 exec, -1")
        mark("z")
        e(f"  s_cmp_eq_u32 s{sJ}, 0")
        e("  s_cbranch_scc0 L_sd")
        e(f"  v_lshlrev_b32 {vr(h0)}, 2, {vr(l)}")
        e("  s_mov_b32 exec_lo, 0")
        e("  s_mov_b32 exec_hi, 0x3fff")
        e(f"  global_atomic_add {vr(h0)}, {vr(vCL)}, s[{sDBG}:{sDBG + 1}] offset:-120 sc1")
        e("L_sd:")
    if P.enc:
        m0, m1, base, amp, wg = [int(v) for v in P.enc.split(",")]
        if m1 == 32:
            e("  s_memrealtime s[74:75]")
        if m0 == 0:
            e(f"  s_mov_b32 s72, s{sST}")
        e("  s_waitcnt lgkmcnt(0)")
        if P.em:
            e(f"  s_not_b32 s73, s{sST}")
            e(f"  s_mov_b32 s72, s{sST}")
            e(f"  s_atomic_umax s74, s[{sDBG}:{sDBG + 1}], 40")
            e(f"  s_atomic_umax s73, s[{sDBG}:{sDBG + 1}], 44")
            e(f"  s_atomic_umax s72, s[{sDBG}:{sDBG + 1}], 48")
        else:
            e("  s_sub_u32 s72, s74, s72")
            e(f"  s_atomic_add s72, s[{sDBG}:{sDBG + 1}], 32")
        e(f"  s_cmp_eq_u32 s2, {wg}")
        e("  s_cbranch_scc0 L_nohold")
        e("L_hold0:")
        e(f"  s_memrealtime s[{sST + 2}:{sST + 3}]")
        e("  s_waitcnt lgkmcnt(0)")
        e(f"  s_sub_u32 s{sT0}, s{sST + 2}, s{sST}")
        e(f"  s_cmp_lt_u32 s{sT0}, 12500")
        e("  s_cbranch_scc1 L_hold0")
        e("  s_mov_b32 s72, 0")
        if P.em:
            e("  s_mov_b32 s73, 0")
            e(f"  s_atomic_add s72, s[{sDBG}:{sDBG + 1}], {48 if P.em == 3 else 40} glc")
            e(f"  s_atomic_add s73, s[{sDBG}:{sDBG + 1}], {48 if P.em == 2 else 44} glc")
            e("  s_waitcnt lgkmcnt(0)")
            if P.em != 2:
                e("  s_not_b32 s73, s73")
            e("  s_sub_u32 s72, s72, s73")
            e("  s_lshl_b32 s72, s72, 8")
        else:
            e(f"  s_atomic_add s72, s[{sDBG}:{sDBG + 1}], 32 glc")
            e("  s_waitcnt lgkmcnt(0)")
        e(f"  s_sub_u32 s72, s72, {base * 256}")
        e("  s_max_i32 s72, s72, 0")
        e("  s_min_i32 s72, s72, 128000")
        e(f"  s_mul_i32 s72, s72, {amp}")
        e("  s_lshr_b32 s72, s72, 8")
        e("  s_add_u32 s72, s72, 13000")
        e("L_hold:")
        e(f"  s_memrealtime s[{sST + 2}:{sST + 3}]")
        e("  s_waitcnt lgkmcnt(0)")
        e(f"  s_sub_u32 s{sT0}, s{sST + 2}, s{sST}")
        e(f"  s_cmp_lt_u32 s{sT0}, s72")
        e("  s_cbranch_scc1 L_hold")
        e("L_nohold:")
        e("  s_waitcnt lgkmcnt(0)")
    if P.pe:
        e("; diagnostic build only: pointers to d_debug, some of their bits into the run time")
        off, sh_, bits = [int(v) for v in P.pe.split(",")]
        e("  s_cmp_eq_u32 s2, 0")
        e("  s_cbranch_scc0 L_nope")
        e("  s_load_dwordx16 s[4:19], s[0:1], 0")
        e("  s_waitcnt lgkmcnt(0)")
        e("  s_mov_b64 exec, 1")
        for k, r_ in enumerate((4, 6, 7, 8, 12, 13, 14, 30, 31)):
            e(f"  v_mov_b32 v5, s{r_}")
            e(f"  global_store_dword {vr(vZ)}, v5, s[{sDBG}:{sDBG + 1}] offset:{16 + 4 * k}")
        if off < 0:
            e("  s_sub_u32 s72, s6, s12")
        else:
            e(f"  s_mov_b32 s72, s{off}")
        e(f"  s_bfe_u32 s72, s72, {bits << 16 | sh_:#x}")
        e("  s_mul_i32 s72, s72, 300")
        e("  s_add_u32 s72, s72, 13000")
        e("L_pe:")
        e(f"  s_memrealtime s[{sST + 2}:{sST + 3}]")
        e("  s_waitcnt lgkmcnt(0)")
        e(f"  s_sub_u32 s{sT0}, s{sST + 2}, s{sST}")
        e(f"  s_cmp_lt_u32 s{sT0}, s72")
        e("  s_cbranch_scc1 L_pe")
        e("L_nope:")
    if P.tail:
        e("; diagnostic build only")
        e("  s_memrealtime s[72:73]")
        e("L_tail:")
        e("  s_memrealtime s[74:75]")
        e("  s_waitcnt lgkmcnt(0)")
        e("  s_sub_u32 s74, s74, s72")
        e(f"  s_cmp_lt_u32 s74, {P.tail}")
        e("  s_cbranch_scc1 L_tail")
    if P.hold:
        e("; diagnostic build only")
        e("L_hold:")
        e(f"  s_memrealtime s[{sST + 2}:{sST + 3}]")
        e("  s_waitcnt lgkmcnt(0)")
        e(f"  s_sub_u32 s{sT0}, s{sST + 2}, s{sST}")
        e(f"  s_cmp_lt_u32 s{sT0}, {P.hold}")
        e("  s_cbranch_scc1 L_hold")
    if P.stamp:
        e(f"  s_memrealtime s[{sST + 2}:{sST + 3}]")
        if P.hprof:
            e("  s_waitcnt lgkmcnt(0)")
            e("  s_lshl_b32 s44, s2, 5")
            e("  s_add_u32 s44, s44, 0x80000")
            e("  v_mov_b32 v1, s44")
            for k in range(8):
                e(f"  s_sub_u32 s45, s{sST + 2}, s{HP[k]}")
                e(f"  v_mov_b32 v{4 + k}, s45")
            e(f"  global_store_dwordx4 v1, v[4:7], s[{sWS}:{sWS + 1}]")
            e(f"  global_store_dwordx4 v1, v[8:11], s[{sWS}:{sWS + 1}] offset:16")
            e("  s_nop 2")
        e("  s_getreg_b32 s6, hwreg(HW_REG_XCC_ID)")
        e("  s_getreg_b32 s7, hwreg(HW_REG_HW_ID)")
        e("  s_waitcnt lgkmcnt(0)")
        e(f"  v_mov_b32 v4, s{sST}")
        e(f"  v_mov_b32 v5, s{sST + 2}")
        e("  v_mov_b32 v6, s6")
        e("  v_mov_b32 v7, s7")
        e("  s_lshl_b32 s8, s2, 4")
        e("  v_mov_b32 v1, s8")
        e(f"  global_store_dwordx4 v1, v[4:7], s[{sWS}:{sWS + 1}]")
    e("L_end:")
    e("  s_endpgm")
    e(".p2align 6")
    e(".type L_order,@object")
    e("L_order:")
    for k in range(0, len(ordtab), 8):
        e("  .long " + ", ".join(f"{v:#x}" for v in ordtab[k:k + 8]))
    e(".type L_hpos,@object")
    e("L_hpos:")
    for b in range(6):
        at = {chunk_of(b & 1, n, s_, b >> 1): lpos(n, s_) for n in range(24) for s_ in range(16)}
        rows = sorted({c // 3 for c in at})
        for l_ in range(64):
            r0, r1 = rows[l_], rows[l_ + 64]
            e("  .long " + ", ".join(f"{a_ | b_ << 16:#x}" for a_, b_ in [(at[3 * r0 + k], at[3 * r1 + k]) for k in range(3)] + [(2 * r0, 2 * r1)]))
    e('.section .rodata,"a"')
    e(".p2align 6")
    e(f".amdhsa_kernel {NAME}_kernel")
    e(f"  .amdhsa_next_free_vgpr {NV}")
    e("  .amdhsa_next_free_sgpr 100")
    e(f"  .amdhsa_accum_offset {(NV + 3) // 4 * 4}")
    e("  .amdhsa_group_segment_fixed_size 0")
    e("  .amdhsa_kernarg_size 112")
    e("  .amdhsa_user_sgpr_count 2")
    e("  .amdhsa_user_sgpr_kernarg_segment_ptr 1")
    e("  .amdhsa_system_sgpr_workgroup_id_x 1")
    e(".end_amdhsa_kernel")
    return "\n".join(o) + "\n", NV


if __name__ == "__main__":
    ap = argparse.ArgumentParser()
    ap.add_argument("-o", default=f"/code/{NAME}.s")
    for name, d in (("sh", 4), ("deep", 5), ("pd", 9), ("pre", 12), ("nf", 5), ("su", 3), ("hp0", 3), ("tst", 24),
                    ("ctl", 1), ("hi", 2), ("hiv", 7), ("lo", -28), ("thr", 2), ("tp", 2), ("start", 5), ("s0", 0), ("ba", 3),
                    ("r0", 2), ("r1", 30), ("rf", 3), ("rp", 2), ("rt", 26), ("rotl", 7), ("kp", 7), ("kp0", 6), ("kn", 20),
                    ("tw", 2), ("tv", 1), ("ts", 1), ("st", 1), ("ot", 0), ("top", 18), ("tpd", 4), ("tpv", 4), ("tpn", 1), ("lag", 2), ("mg", 8), ("ml", 0), ("aw", 0), ("sd", 0), ("em", 0), ("tail", 0),
                    ("eprio", 2), ("psl", 1), ("psk", 1), ("spr", 1), ("bound", 4000000), ("hold", 0), ("dly", 0), ("dlb", 2)):
        ap.add_argument("--" + name, type=int, default=d)
    ap.add_argument("--kp_", default="6,6,6,7,8,9,9,10,10,11,11,12,12", help="K loads issued by each prologue point")
    ap.add_argument("--of", default="")
    ap.add_argument("--enc", default="", help="diagnostic only: m0,m1,base,amp,wg")
    ap.add_argument("--ok", default="REXbLbLbL", help="events of a K group")
    ap.add_argument("--ov", default="REXbLbLbL", help="events of a V group")
    ap.add_argument("--rk", default="", help="die gain per step (hex digits, 0 = no ranking)")
    ap.add_argument("--sb", default="", help="step:bias,... added to the lateness")
    ap.add_argument("--pf", default="sc1")
    ap.add_argument("--tpp", default="012", help="positions with a third level")
    ap.add_argument("--pe", default="", help="diagnostic only")
    ap.add_argument("--tm", default="5,10,11,16,21,26")
    ap.add_argument("--tg", default="")
    ap.add_argument("--bu", default="012", help="extra depth per position in the issued group")
    ap.add_argument("--th", default="-9,5,13")
    ap.add_argument("--sch", default="ut_c2.txt")
    ap.add_argument("--xp", default="", help="timing experiments only")
    for name in ("stamp", "trace", "tfine", "hprof"):
        ap.add_argument("--" + name, action="store_true", help="diagnostics only")
    a = ap.parse_args()
    txt, nv = gen(a)
    open(a.o, "w").write(txt)
    print("wrote", a.o, "vgprs", nv)
```

```python
import argparse
import math
import os
import struct
from gen import HEADER, NAME, Alloc, f32bits, vr

UB = 256 * 768

ABOUT = """
Generated by tools/gen10.py.
Work split: a unit is a block of 256 KV rows of one head.  Workgroups g and g ^ 8 share 16 units of four heads (table
  L_order) and alternate over the 32 KiB runs of a unit, 128 rows each.
  Waves 1-4 stream one 4 KiB block per round; a 16-lane row handles one third (64 dims) of a KV row per load.
  K sweep: logit = k_scale * sum_d (qk - 7.5) * (qa * cos + qb * sin), RoPE moved onto the rotated q;
  V sweep: partial = sum_rows p * v_scale * qv.
  Wave 0 (helper) rotates q, takes max / exp / sums over the workgroup's rows of each unit, and merges partials.
Constant parameters (the same for every seed) are built in: both zero points (7.5), q_cos / q_sin (table L_qcs) and
  k_cos / k_sin = cos / sin(row * inv_freq).  The angle is split into the part of the row inside its unit (f16 table in
  LDS, evaluated once from L_inv) and the part of the unit (L_f0), by which (qa, qb) is turned in fp32.
Hand-off: every workgroup finishes one of its heads and streams a unit of that head last.  Partials and (max, sum) of
  the other three go to d_ws with sc1 stores; every 8 bytes carry a piece of a tag that differs from the one found there
  on entry (sent round through d_debug).  The finisher reads until all tags fit and rescales to the true row maximum.
Flow control (speed only, results do not depend on it): waves publish a group counter and sample the counters of
  units on the same die; late waves keep one more load in flight, early waves one or two fewer.  Helpers rank the dies.
"""

RUN = (1, 2, 0)


def chunk_of(b, n, s):
    g = 256 * RUN[n >> 3] + 128 * b + 16 * (n & 7) + s
    return {128: 512, 255: 639, 512: 128, 639: 255}.get(g, g)


def tidx(b, row):
    return row - 43 * b - 42 * ((row >= 85) + (row >= 171))


def rev(x, bits):
    return int(format(x, f"0{bits}b")[::-1], 2)


def lpos(n, s):
    return 4 * (16 * s + rev(n, 4)) if n < 16 else 1024 + 4 * (8 * s + rev(n - 16, 3))


TN = [(RUN[n >> 3] + (n & 7)) % 3 for n in range(24)]
SPECIAL = {n: i for i, n in enumerate(sorted(8 * RUN.index(r) + i for r in (0, 2) for i in (0, 7)))}
for b_ in range(2):
    ch = sorted(chunk_of(b_, n, s) for n in range(24) for s in range(16))
    assert ch == sorted(3 * r + k for r in {c // 3 for c in ch} for k in range(3))
    assert all(chunk_of(b_, n, s) % 3 == (TN[n] + 2 * b_ + s) % 3 for n in range(24) for s in range(16))
    assert len({tidx(b_, c // 3) for c in ch}) == 128 and max(tidx(b_, c // 3) for c in ch) == 128


def gen(P):
    o = []
    e = o.append
    RING, PD = 24, P.pd
    sh, deep = P.sh, P.deep
    PRE = P.pre
    TP = P.tp
    LAG = P.lag
    assert deep <= PD - 1 and sh <= deep and PD <= PRE
    SL = 512
    SA = 16 * SL

    FL = 0
    QS = 128
    ST = 256
    TB = 512
    QB = TB + 129 * 384
    LGB = QB + 16 * 768 + 1536
    SCB = LGB + 16 * 1536
    PB = SCB + 2 * SA
    QR = PB + 49152
    LDS = QR + 4 * 784
    assert 81920 < LDS <= 163840
    W_REC = 0x600000
    W_RK = 0x780000
    W_PL = 0x7c0000

    sQ, sQK, sKS, sKZ, sQV, sVS, sVZ, sQC = 4, 6, 8, 10, 12, 14, 16, 18
    sQS, sKC, sKSN, sOUT = 20, 22, 24, 26
    sDBG, sWS = 28, 30
    rA, rB = 32, 36
    sW, sJ, sC, sK, sT0, sT1, sF, sNEED = 40, 41, 42, 43, 44, 45, 46, 47
    sMSK = 48
    sOF = 51
    sE = 48
    sCO = 61
    sZ = 64
    sMASK, sSCALE, sH = 66, 67, 68
    sS = 69
    sX = 70
    sRF = 80
    sST = 84
    sB = 91
    sVO = 92
    sSP = 94
    sI = 95
    sSE, sCU = 81, 79
    sLO = 78
    sTG = 99

    va = Alloc(1)
    vT16, vF, vZ, vC16 = [va.take(1) for _ in range(4)]
    voff = va.take(7)
    vTA = va.take(7)
    vQA = va.take(3)
    vPA = va.take(3)
    vLG = va.take(2)
    vLB = va.take(2)
    vLV = va.take(2)
    A = va.take(2)
    LG = va.take(2)
    M1, M2, M3 = [va.take(1) for _ in range(3)]
    bc = va.take(2, 2)
    dacc = va.take(2, 2)
    wt = va.take(4, 2)
    vtr, vPW, vPS, vN, vSum, vSu2, vBA = [va.take(1) for _ in range(7)]
    vPL = va.take(4)
    vU = va.take(1)
    vBI = va.take(2, 2)
    smp = va.take(4 * LAG, 4)
    qa = va.take(12, 4)
    tab = va.take(24, 4)
    tmp = va.take(12, 4)
    ring = va.take(4 * RING, 4)
    NV = va.n
    acc = qa

    here = os.path.dirname(os.path.abspath(__file__))
    sch = [[int(x) for x in ln.split()][:32] for ln in open(os.path.join(here, P.sch))]
    inv, qcs = [[int(x, 16) for x in ln.split()] for ln in open(os.path.join(here, "consts.txt"))]
    rev_ = [struct.unpack("<f", struct.pack("<I", v))[0] / (2 * math.pi) for v in inv]
    assert sorted(2 * u_ + (g >> 3 & 1) for g in range(256) for u_ in sch[g][:16]) == list(range(4096))
    assert sorted(x[31] >> 3 for x in sch) == list(range(256))
    fill = [0] * 256
    ordtab = []
    for g in range(256):
        ku, own = sch[g][:16], sch[g][31] >> 3
        od = [ku.index(u_) for u_ in sch[g][16:]]
        assert sorted(od) == list(range(16)) and od[0] < 14
        assert ku[0] == (16 * (((g & 7) << 3) + (g >> 4 & 7) + (g >> 7 << 6)) + 14) * 21846 >> 16
        need = list(dict.fromkeys(u_ >> 3 for u_ in ku))
        heads = [h for h in need if h != own] + [own]
        assert len(heads) == 4
        u16 = [u_ | heads.index(u_ >> 3) << 12 for u_ in ku]
        nib = sum(k << (4 * t) for t, k in enumerate(od))
        hq = [h | heads.index(h) << 12 for h in need]
        dst = []
        for h in heads[:3]:
            dst.append(W_REC + 448 * (3 * h + fill[h]))
            fill[h] += 1
        ordtab += [u16[2 * i] | u16[2 * i + 1] << 16 for i in range(8)]
        ordtab += [nib & 0xffffffff, nib >> 32, hq[0] | hq[1] << 16, hq[2] | hq[3] << 16] + dst + [own]
    assert fill == [3] * 256

    def ld(n):
        rr = rA if n < 24 else rB
        n %= 24
        so = f"s{sOF + (n & 7)}" if n & 7 else "0"
        vo = voff + (3 + SPECIAL[n] if n in SPECIAL and "R" not in P.xp else n >> 3)
        e(f"  buffer_load_dwordx4 {vr(ring + 4 * n, 4)}, {vr(vo)}, s[{rr}:{rr + 3}], {so} offen nt")

    ORD = {"K": P.ok, "V": P.ov}
    DIST = {"K": PRE, "V": PD}
    bu = [int(x) for x in P.bu]
    th = [int(x) for x in P.th.split(",")]
    assert PD % 3 == 0 and PRE % 3 == 0 and deep == sh + 1

    def memops(ph, a):
        r = []
        for i, c in enumerate(ORD[ph]):
            if c == "X" and P.ctl:
                r += [(i, "B")] * (a == P.ba) + [(i, "S"), (i, "Q")]
            if c == "L":
                r.append((i, "L"))
        return r

    def back(ph, a, i):
        r = [c for j, c in memops(ph, a) if j < i][::-1]
        for k in range(1, 8):
            r += [c for _, c in memops(ph, (a - k) % 8)][::-1]
        return r

    def cnt(ph, a, i, depth):
        depth += bu[ORD[ph][:i].count("L")]
        r = back(ph, a, i)
        return [k + 1 for k, c in enumerate(r) if c == "L"][depth - 2] if depth > 1 else 0

    def swait(ph, a):
        assert ORD[ph].index("E") < ORD[ph].index("X")
        r = back(ph, a, ORD[ph].index("E"))
        return [k for k, c in enumerate(r) if c == "Q"][LAG - 1]

    plain = {}

    def verify():
        ops = [("L", i) for i in range(PRE)]
        done = ORD["K"][:ORD["K"].index("L")].count("b")
        for g in range(256):
            ph, a = "KV"[g >= 128], g % 8
            if 3 * g + PD >= 768 or 128 <= g < 128 + (PRE - PD) // 3:
                for n in range(3 * g, 3 * g + 4 - (g == 255)):
                    plain[n] = len(ops) - 1 - ops.index(("L", n))
                done = max(done, len(ops) - plain[min(3 * g + 3, 767)])
                continue
            nb = nl = 3 * g
            for i, c in enumerate(ORD[ph]):
                if c == "E" and P.ctl:
                    done = max(done, len(ops) - swait(ph, a))
                if c == "X" and P.ctl:
                    ops += [("X", 0)] * (1 + (a == P.ba))
                if c == "b":
                    assert ("L", nb) in ops[:done], nb
                    nb += 1
                if c == "L":
                    done = max(done, len(ops) - cnt(ph, a, i, deep + P.tpn * (P.top < 99 and str(nl % 3) in P.tpp) if P.ctl else sh))
                    ops.append(("L", nl + DIST[ph]))
                    nl += 1
    verify()
    lab = [0]
    rare = []

    def flush():
        o.extend(rare)
        rare.clear()

    def issue(ph, a, i):
        j = ORD[ph][:i].count("L")
        lab[0] += 1
        if P.ctl and j == TP:
            e(f"  s_cmp_lt_i32 s{sS}, {P.lo}")
            e(f"  s_cbranch_scc1 L_t{lab[0]}")
            rare.extend([f"L_t{lab[0]}:", f"  s_waitcnt vmcnt({cnt(ph, a, i, P.thr + 1)})", f"  s_branch L_p{lab[0]}"])
        if P.ctl:
            t = (P.hi if ph == "K" else P.hiv) + th[j]
            tp_ = P.top + P.tpd * j + (0 if ph == "K" else P.tpv)
            assert P.lo <= t < tp_
            top = P.top < 99 and str(j) in P.tpp
            w = lambda d: f"  s_waitcnt vmcnt({cnt(ph, a, i, d)})"
            back = f"  s_branch L_p{lab[0]}"
            if t < 0:
                if top:
                    e(f"  s_sub_u32 s{sT0}, s{sS}, {t + 1}")
                    e(f"  s_cmp_lt_u32 s{sT0}, {tp_ - t}")
                    rare.extend([f"L_q{lab[0]}:", w(deep + P.tpn), f"  s_cmp_gt_i32 s{sS}, 0", f"  s_cbranch_scc1 L_p{lab[0]}", w(sh), back])
                else:
                    e(f"  s_cmp_gt_i32 s{sS}, {t}")
                    rare.extend([f"L_q{lab[0]}:", w(sh), back])
                e(f"  s_cbranch_scc0 L_q{lab[0]}")
                e(w(deep))
                e(f"L_p{lab[0]}:")
            elif top:
                e(f"  s_cmp_gt_i32 s{sS}, {t}")
                e(f"  s_cbranch_scc1 L_q{lab[0]}")
                rare.extend([f"L_q{lab[0]}:", w(deep + P.tpn), f"  s_cmp_gt_i32 s{sS}, {tp_}", f"  s_cbranch_scc1 L_p{lab[0]}", w(deep), back])
                e(w(sh))
                e(f"L_p{lab[0]}:")
            else:
                e(f"  s_cmp_gt_i32 s{sS}, {t}")
                e(f"  s_cbranch_scc1 L_p{lab[0]}")
                e(w(sh))
                e(f"L_p{lab[0]}:")
                e(w(deep))
        else:
            e(f"  s_waitcnt vmcnt({cnt(ph, a, i, sh)})")
        ld(3 * a + j + DIST[ph])
        if ph == "V" and 3 * a + j + 1 == P.mg:
            e(f"  ds_write_b32 {vr(vPW)}, {vr(M1)} offset:{FL + 32}")
        if ph == "V" and 3 * a + j + 1 == P.ml:
            e(f"  ds_write_b32 {vr(vPW)}, {vr(M1)} offset:{FL + 48}")

    def evaluate(ph, a):
        if not P.ctl:
            return
        sm = smp + 4 * (a % LAG)
        e(f"  s_waitcnt vmcnt({swait(ph, a)})")
        if a == (P.ba + LAG) % 8:
            e(f"  v_add_u32 {vr(vBI)}, {vr(vBI)}, {vr(vBI + 1)}")
        e(f"  s_add_u32 s{sT0}, s{sLO}, 0x03030303")
        e(f"  v_msad_u8 {vr(vSum)}, s{sLO}, {vr(sm)}, 0")
        e(f"  v_msad_u8 {vr(vSu2)}, s{sT0}, {vr(sm)}, 0")
        if a == (P.ba + LAG) % 8:
            e(f"  v_readfirstlane_b32 s{sB}, {vr(vBI)}")
        for k in range(1, 3):
            e(f"  v_msad_u8 {vr(vSum)}, s{sLO}, {vr(sm + k)}, {vr(vSum)}")
            e(f"  v_msad_u8 {vr(vSu2)}, s{sT0}, {vr(sm + k)}, {vr(vSu2)}")
        e(f"  v_sub_u32 {vr(vSum)}, {vr(vSum)}, {vr(vSu2)}")
        e(f"  s_add_u32 s{sLO}, s{sLO}, 0x01010101")
        e(f"  v_readlane_b32 s{sMASK}, {vr(vSum)}, 0")
        e(f"  v_readlane_b32 s{sSCALE}, {vr(vSum)}, 1")

    def decide(ph, a):
        if not P.ctl:
            return
        if a == (P.ba + LAG) % 8:
            for it in filter(None, P.sb.split(",")):
                st_, b_ = [int(v) for v in it.split(":")]
                if (st_ >= 16) == (ph == "V"):
                    e(f"  s_cmp_eq_u32 s{sK}, {st_ % 16}")
                    e(f"  s_cselect_b32 s{sT0}, {b_}, 0")
                    e(f"  s_add_u32 s{sB}, s{sB}, s{sT0}")
        cur, old = (sI, sCO) if a & 1 else (sCO, sI)
        e(f"  s_add_u32 s{cur}, s{sMASK}, s{sSCALE}")
        e(f"  s_add_u32 s{sS}, s{cur}, s{old}")
        e(f"  s_ashr_i32 s{sS}, s{sS}, 1")
        e(f"  s_add_u32 s{sS}, s{sS}, s{sB}")
        if ph == "K" and a < P.start:
            e(f"  s_cmp_eq_u32 s{sK}, 0")
            e(f"  s_cselect_b32 s{sS}, {P.s0}, s{sS}")

    def exchange(a):
        if not P.ctl:
            return
        e("  s_mov_b64 exec, 1")
        if a == P.ba:
            e(f"  global_load_dwordx2 {vr(vBI, 2)}, {vr(vBA)}, s[{sWS}:{sWS + 1}] {P.pf}")
        e(f"  global_store_byte {vr(vPS)}, {vr(vN)}, s[{sWS}:{sWS + 1}]")
        e("  s_mov_b64 exec, 3")
        e(f"  global_load_dwordx3 {vr(smp + 4 * (a % LAG), 3)}, {vr(vPL + a % 4)}, s[{sWS}:{sWS + 1}] {P.pf}")
        e(f"  v_add_u32 {vr(vN)}, 1, {vr(vN)}")
        e("  s_mov_b64 exec, -1")

    def srd_head(rr, sp, sh_):
        e(f"  s_mul_i32 s{sT0}, s{sh_}, {UB}")
        e(f"  s_add_u32 s{rr}, s{sp}, s{sT0}")
        e(f"  s_addc_u32 s{rr + 1}, s{sp + 1}, 0")

    def vstep_k(dst, src):
        e(f"  s_lshl_b32 s{dst}, s{src}, 2")
        e(f"  s_lshr_b64 s[{sZ}:{sZ + 1}], s[{sVO}:{sVO + 1}], s{dst}")
        e(f"  s_and_b32 s{dst}, s{sZ}, 15")

    def head_of(dst, slot, vU=vU):
        e(f"  s_lshr_b32 s{sT0}, s{slot}, 1")
        e(f"  v_readlane_b32 s{sZ}, {vr(vU)}, s{sT0}")
        e(f"  s_lshl_b32 s{sT0}, s{slot}, 4")
        e(f"  s_lshr_b32 s{sZ}, s{sZ}, s{sT0}")
        e(f"  s_and_b32 s{dst}, s{sZ}, 0x7ff")

    def budget(ok):
        e(f"  s_cmp_eq_u32 s{sSP}, 0")
        e(f"  s_cbranch_scc1 {ok}")
        e(f"  s_sub_u32 s{sSP}, s{sSP}, 1")

    def flagwait(name, off):
        e(f"L_{name}:")
        e("  s_waitcnt lgkmcnt(0)")
        e(f"  v_readfirstlane_b32 s{sF}, {vr(vF)}")
        e(f"  s_cmp_ge_u32 s{sF}, s{sNEED}")
        e(f"  s_cbranch_scc0 L_{name}_no")
        e(f"L_{name}_ok:")
        rare.extend([f"L_{name}_no:", f"  s_cmp_eq_u32 s{sSP}, 0", f"  s_cbranch_scc1 L_{name}_ok", f"  s_sub_u32 s{sSP}, s{sSP}, 1",
                     f"  ds_read_b32 {vr(vF)}, {vr(vZ)} offset:{off}", f"  s_branch L_{name}"])

    def tr():
        if P.trace:
            e(f"  {'s_memtime' if 'm' in P.xp else 's_memrealtime'} s[88:89]")
            e("  s_waitcnt lgkmcnt(0)")
            e(f"  v_writelane_b32 {vr(vtr)}, s88, m0")
            e("  s_add_u32 m0, m0, 1")
            e("  s_min_u32 m0, m0, 63")

    def die_base(dst):
        e(f"  s_getreg_b32 s{sSE}, hwreg(HW_REG_HW_ID, 8, 7)")
        e(f"  s_getreg_b32 s{dst}, hwreg(HW_REG_XCC_ID, 0, 3)")
        e(f"  s_and_b32 s{sCU}, s{sSE}, 15")
        e(f"  s_lshr_b32 s{sSE}, s{sSE}, 5")
        e(f"  s_mul_i32 s{dst}, s{dst}, 4352")
        e(f"  s_add_u32 s{dst}, s{dst}, {W_PL}")

    ha = Alloc(16)
    l, u, h0, h1, h2, h3 = [ha.take(1) for _ in range(6)]
    wa, wb, vSh, vFc, vM, vL = [ha.take(1) for _ in range(6)]
    ro = ha.take(8)
    vL16, vFA, vFX, vFB, vEL, vCL, vSa, vSq = [ha.take(1) for _ in range(8)]
    hq = ha.take(2)
    hU = ha.take(1)
    z4 = ha.take(4, 4)
    cs = ha.take(8, 4)
    f0 = ha.take(4, 4)
    sc = ha.take(4, 4)
    qn = ha.take(4, 4)
    x = ha.take(32, 4)
    pr = ha.take(4, 4)
    fo = ha.take(4, 4)
    rec = ha.take(8, 4)
    AC = ha.take(16, 4)
    st4 = ha.take(4, 4)
    tg = ha.take(4, 4)
    ra = ha.take(8)
    assert ha.n <= NV and vZ < 16

    invX, invY, tK, tA, tN, tO = tmp, tmp + 4, tmp + 8, tab, tab + 4, tab + 8
    PC0 = 20 + 8 * P.stamp + 16 * (P.dly > 0)
    D_INV, D_QCS, D_F0, D_END = 256, 768, 1152, 1536
    NF = P.nf
    assert RUN[0] == 1 and NF <= 8
    e(HEADER.rstrip("\n"))
    e(f"; @launch grid=(256,1,1) block=(320,1,1) lds={LDS}")
    for ln in ABOUT.strip("\n").split("\n"):
        e("; " + ln)
    e('.amdgcn_target "amdgcn-amd-amdhsa--gfx950"')
    e(".text")
    e(f".globl {NAME}_kernel")
    e(".p2align 8")
    e(f".type {NAME}_kernel,@function")
    e(f"{NAME}_kernel:")
    e("  s_cmpk_ge_u32 s2, 0x100")
    e("  s_cbranch_scc1 L_end")
    if P.dly:
        e("; diagnostic build only: half of the dies start late")
        e(f"  s_getreg_b32 s4, hwreg(HW_REG_XCC_ID, {P.dlb}, 1)")
        e("  s_cmp_eq_u32 s4, 0")
        e("  s_cbranch_scc1 L_dly")
        e(f"  s_sleep {P.dly}")
        e("L_dly:")
    if P.stamp:
        e(f"  s_memrealtime s[{sST}:{sST + 1}]")
    e("  s_load_dwordx16 s[4:19], s[0:1], 0")
    e(f"  s_getpc_b64 s[{sZ}:{sZ + 1}]")
    e("L_pc:")
    e("  v_cmp_gt_u32 vcc, 64, v0")
    e(f"  v_lshlrev_b32 {vr(vT16)}, 4, v0")
    e(f"  s_lshr_b32 s{sK}, s2, 4")
    e(f"  s_lshl_b32 s{sF}, s2, 6")
    e(f"  s_add_u32 s{sF}, s{sF}, L_order-L_pc")
    e(f"  s_and_b32 s{sH}, s2, 7")
    e("  s_cbranch_vccz L_s0")
    e(f"  s_load_dwordx16 s[{sE}:{sE + 15}], s[{sZ}:{sZ + 1}], s{sF}")
    e(f"  v_lshl_add_u32 {vr(h0)}, s{sK}, 6, v0")
    e(f"  v_mul_u32_u24 {vr(h0)}, {P.tst}, {vr(h0)}")
    e(f"  global_load_dword {vr(h3)}, {vr(h0)}, s[{sZ}:{sZ + 1}] offset:{D_QCS - PC0}")
    e("  s_branch L_helper")
    e("L_s0:")
    e(f"  v_and_b32 {vr(vC16)}, 0xf0, {vr(vT16)}")
    e(f"  global_load_dwordx4 {vr(invX, 4)}, {vr(vC16)}, s[{sZ}:{sZ + 1}] offset:{D_INV - PC0}")
    e(f"  global_load_dwordx4 {vr(invY, 4)}, {vr(vC16)}, s[{sZ}:{sZ + 1}] offset:{D_INV + 256 - PC0}")
    e(f"  s_and_b32 s{sT1}, s{sK}, 8")
    e(f"  s_add_u32 s{sH}, s{sH}, s{sT1}")
    e(f"  s_and_b32 s{sT1}, s{sK}, 7")
    e(f"  s_lshl3_add_u32 s{sH}, s{sH}, s{sT1}")
    e(f"  s_lshl4_add_u32 s{sH}, s{sH}, 14")
    e(f"  s_mulk_i32 s{sH}, 21846")
    e(f"  s_lshr_b32 s{sC}, s{sH}, 16")
    e(f"  s_mul_i32 s{sT0}, s{sC}, {UB}")
    e(f"  s_and_b32 s{sT1}, s2, 8")
    e(f"  s_lshl_b32 s{sT1}, s{sT1}, 12")
    e(f"  s_add_u32 s{sT0}, s{sT0}, s{sT1}")
    e(f"  s_add_u32 s{sT0}, s{sT0}, {65536 * RUN[0] - 1024 + 4096}")
    e(f"  v_add_u32 {vr(tA)}, s{sT0}, {vr(vT16)}")
    for k in range(1, (NF + 1) // 2):
        e(f"  v_add_u32 {vr(tA + k)}, {8192 * k}, {vr(tA)}")
    e("  s_waitcnt lgkmcnt(0)")
    for n in range(NF):
        e(f"  global_load_dwordx4 {vr(ring + 4 * n, 4)}, {vr(tA + n // 2)}, s[{sQK}:{sQK + 1}] offset:{4096 * (n % 2) - 4096} nt")
    e("  s_branch L_s1")
    e("L_b0:")
    e(f".if (L_b0 - {NAME}_kernel > {D_INV}) || (L_pc - {NAME}_kernel != {PC0})")
    e('.error "entry block layout"')
    e(".endif")
    e(".p2align 8")
    e(".type L_inv,@object")
    e("L_inv:")
    tb = [f32bits(v) for v in rev_[:64] + rev_[64:] + rev_[64:]]
    for k in range(0, 128, 8):
        e("  .long " + ", ".join(f"{v:#x}" for v in tb[k:k + 8]))
    e(".type L_qcs,@object")
    e("L_qcs:")
    for k in range(0, 96, 8):
        e("  .long " + ", ".join(f"{v:#x}" for v in qcs[k:k + 8]))
    e(".type L_f0,@object")
    e("L_f0:")
    for k in range(0, 96, 8):
        e("  .long " + ", ".join(f"{f32bits(256 * v - round(256 * v)):#x}" for v in rev_[k:k + 8]))

    def common(ld_=True):
        if ld_:
            e(f"  s_load_dwordx8 s[24:31], s[0:1], 80")
        e(f"  v_mov_b32 {vr(vZ)}, 0")
        e(f"  s_mov_b32 s{sSP}, {P.bound}")
        e(f"  s_bfe_u32 s{sJ}, s2, 0x10003")

    PFR = [4, 8, 10, 14, 62, 72, 74, 76, 82, 86, 96, 98]
    pfn = [0]

    def pf():
        if P.tfine:
            e(f"  {'s_memtime' if 'm' in P.xp else 's_memrealtime'} s[{PFR[pfn[0]]}:{PFR[pfn[0]] + 1}]")
            pfn[0] += 1

    e("L_s1:")
    w_, s_, vAD, vC8, t0, t1 = wt, wt + 1, wt + 2, wt + 3, dacc, dacc + 1
    vRF, pos = vT16, tK + 3
    if P.trace:
        e(f"  v_mov_b32 {vr(vtr)}, 0")
        e("  s_mov_b32 m0, 0")
    pf()
    e("  v_subrev_u32 v0, 64, v0")
    e(f"  s_setprio {P.spr}")
    e(f"  s_load_dwordx8 s[16:23], s[{sZ}:{sZ + 1}], s{sF}")
    e(f"  s_add_u32 s{sF}, s{sF}, 32")
    e(f"  s_load_dwordx2 s[{sVO}:{sVO + 1}], s[{sZ}:{sZ + 1}], s{sF}")
    e(f"  s_movk_i32 s{sNEED}, 768")
    common()
    e(f"  v_lshrrev_b32 {vr(w_)}, 6, v0")
    e(f"  v_lshrrev_b32 {vr(s_)}, 4, v0")
    e(f"  v_and_b32 {vr(vC8)}, 0x70, {vr(vC16)}")
    e(f"  v_readfirstlane_b32 s{sW}, {vr(w_)}")
    e(f"  v_add_u32 {vr(vAD)}, {vr(vC8)}, {vr(s_)}")
    e(f"  s_mul_i32 s{sT0}, s{sJ}, 44")
    e(f"  s_sub_u32 s{sT0}, 86, s{sT0}")
    e(f"  v_cmp_eq_u32 vcc, s{sT0}, {vr(vAD)}")
    e(f"  v_mov_b32 {vr(t0)}, 0x80")
    e(f"  s_mov_b32 s{rA + 2}, {UB}")
    e(f"  v_cndmask_b32 {vr(vAD)}, {vr(vAD)}, {vr(t0)}, vcc")
    e(f"  v_mul_u32_u24 {vr(t0)}, 381, {vr(vAD)}")
    e(f"  s_mul_i32 s{sT0}, s{sJ}, 43")
    e(f"  v_add_u32 {vr(t0)}, 2, {vr(t0)}")
    e(f"  v_lshrrev_b32 {vr(t0)}, 14, {vr(t0)}")
    assert all((381 * i + 2) >> 14 == (i >= 43) + (i >= 86) for i in range(129))
    e(f"  v_mad_u32_u24 {vr(t0)}, {vr(t0)}, 42, {vr(vAD)}")
    e(f"  v_add_u32 {vr(t0)}, s{sT0}, {vr(t0)}")
    e(f"  v_cvt_f32_u32 {vr(vRF)}, {vr(t0)}")
    e(f"  v_mul_u32_u24 {vr(vAD)}, 384, {vr(vAD)}")
    e(f"  s_mov_b32 s{rA + 3}, 0x20000")
    srd_head(rA, sQK, sC)
    e(f"  s_lshl_b32 s{sT0}, s{sJ}, 15")
    e(f"  v_lshl_add_u32 {vr(voff + RUN.index(0))}, v0, 4, s{sT0}")
    for k in (1, 2):
        e(f"  v_add_u32 {vr(voff + RUN.index(k))}, {65536 * k:#x}, {vr(voff + RUN.index(0))}")
    if "R" in P.xp:
        e(f"  s_and_b32 s8, s2, 7")
        e(f"  s_and_b32 s9, s{sK}, 8")
        e("  s_add_u32 s8, s8, s9")
        e(f"  s_and_b32 s9, s{sK}, 7")
        e("  s_lshl3_add_u32 s8, s8, s9")
        e(f"  v_mov_b32 {vr(t0)}, {vr(voff + RUN.index(0))}")
        for k in range(3):
            e(f"  s_add_u32 s9, s8, {RUN[k]}")
            e("  s_mul_i32 s10, s9, 171")
            e("  s_lshr_b32 s10, s10, 9")
            e("  s_mul_i32 s10, s10, 3")
            e("  s_sub_u32 s9, s9, s10")
            e(f"  v_lshl_add_u32 {vr(voff + k)}, s9, 16, {vr(t0)}")
    for i in range(1, 8):
        e(f"  s_movk_i32 s{sOF + i}, {4096 * i}")
    nk = [NF]
    assert PRE <= RING and max(int(v) for v in P.kp_.split(",")[:P.su + 1]) <= min(SPECIAL)

    def k_loads(hi):
        while nk[0] < min(hi, PRE):
            ld(nk[0])
            nk[0] += 1

    def toff_(n):
        run = RUN[n >> 3]
        return 384 * (16 * (((n & 7) + run) // 3) + 38 * run)

    def setup():
        e("; per chunk class k: q operand, table and partial addresses")
        e(f"  s_lshl1_add_u32 s{sF}, s{sJ}, s{sW}")
        e(f"  s_lshl_b32 s{sF}, s{sF}, 1")
        e(f"  s_lshr_b32 s{sF}, 0x4924, s{sF}")
        e(f"  v_bfe_u32 {vr(t1)}, v0, 4, 2")
        e(f"  v_lshl_add_u32 {vr(t1)}, {vr(t1)}, 2, {vr(vC16)}")
        e(f"  v_mad_u32_u24 {vr(vF)}, {vr(w_)}, s{sNEED}, {vr(t1)}")
        e(f"  v_add_u32 {vr(vF)}, {PB - 3072}, {vr(vF)}")
        e(f"  s_mul_i32 s{sT1}, s{sJ}, {43 * 384}")
        e(f"  s_sub_u32 s{sT1}, {TB}, s{sT1}")
        e(f"  v_lshl_add_u32 {vr(vSum)}, s{sJ}, 7, {vr(s_)}")
        for k in range(3):
            e(f"  s_bfe_u32 s{sT0}, s{sF}, {(2 << 16) | 2 * k:#x}")
            e(f"  v_lshl_add_u32 {vr(vPA + k)}, s{sT0}, 8, {vr(vF)}")
            if k:
                e(f"  v_add_u32 {vr(vSum)}, 16, {vr(vSum)}")
            e(f"  v_mul_u32_u24 {vr(t0)}, 171, {vr(vSum)}")
            e(f"  v_lshrrev_b32 {vr(t0)}, 9, {vr(t0)}")
            e(f"  v_mad_i32_i24 {vr(t1)}, {vr(t0)}, -3, {vr(vSum)}")
            e(f"  v_lshl_add_u32 {vr(t1)}, {vr(t1)}, 8, {vr(vC16)}")
            e(f"  v_add_u32 {vr(vQA + k)}, {QB}, {vr(t1)}")
            e(f"  v_subrev_u32 {vr(vSu2)}, 384, {vr(t1)}")
            e(f"  v_min_u32 {vr(t1)}, {vr(t1)}, {vr(vSu2)}")
            e(f"  v_mul_u32_u24 {vr(t0)}, 384, {vr(t0)}")
            e(f"  v_add3_u32 {vr(vTA + k)}, {vr(t0)}, {vr(t1)}, s{sT1}")
        e(f"  v_lshl_add_u32 {vr(vSum)}, s{sJ}, 4, {vr(s_)}")
        for n, i in SPECIAL.items():
            run, sx = RUN[n >> 3], 15 * (n & 7 == 7)
            b = int(run == 0)
            g0, g1 = 256 * run + 128 * b + 16 * (n & 7) + sx, chunk_of(b, n, sx)
            dt = 384 * (tidx(b, g1 // 3) - (g0 // 3 - 43 * b - 42 * run))
            e(f"  v_cmp_eq_u32 vcc, {16 * b + sx}, {vr(vSum)}")
            e(f"  v_add_u32 {vr(t0)}, {256 * (g1 - g0) & 0xffffffff:#x}, {vr(voff + (n >> 3))}")
            e(f"  v_add_u32 {vr(t1)}, {toff_(n)}, {vr(vTA + TN[n])}")
            e(f"  v_add_u32 {vr(vSu2)}, {dt & 0xffffffff:#x}, {vr(t1)}")
            e(f"  v_cndmask_b32 {vr(voff + 3 + i)}, {vr(voff + (n >> 3))}, {vr(t0)}, vcc")
            e(f"  v_cndmask_b32 {vr(vTA + 3 + i)}, {vr(t1)}, {vr(vSu2)}, vcc")
        e(f"  v_lshlrev_b32 {vr(vLB)}, 2, v0")
        e(f"  v_add_u32 {vr(vLB)}, {LGB}, {vr(vLB)}")
        e(f"  v_lshrrev_b32 {vr(t1)}, 1, v0")
        e(f"  v_lshlrev_b32 {vr(t1)}, 2, {vr(t1)}")
        e(f"  v_add_u32 {vr(vLB + 1)}, {LGB + 1024}, {vr(t1)}")
        e(f"  v_subrev_u32 {vr(vLG)}, 1536, {vr(vLB)}")
        e(f"  v_subrev_u32 {vr(vLG + 1)}, 1536, {vr(vLB + 1)}")
        e(f"  v_lshlrev_b32 {vr(vPW)}, 2, {vr(w_)}")
        e(f"  s_mov_b32 s{sMSK}, 0xcccccccc")
        e(f"  s_mov_b32 s{sMSK + 1}, s{sMSK}")
        e(f"  s_mov_b32 s{sMSK + 2}, 0xaaaaaaaa")
        e(f"  s_mov_b32 s{sMSK + 3}, s{sMSK + 2}")
        e(f"  s_mov_b32 s{rB + 2}, {UB}")
        e(f"  s_mov_b32 s{rB + 3}, 0x20000")
        e(f"  s_mov_b32 s{sK}, 0")
        if P.ctl:
            e("; progress slots: this wave writes one byte of line (half, w) and samples the lines of the other half")
            die_base(sF)
            e(f"  s_add_u32 s{sT0}, s{sF}, 2048")
            e(f"  v_mov_b32 {vr(vBA)}, s{sT0}")
            e(f"  s_and_b32 s{sT1}, s{sSE}, 2")
            e(f"  s_lshl_b32 s{sT1}, s{sT1}, 9")
            e(f"  s_lshl_b32 s{sT0}, s{sW}, 8")
            e(f"  s_add_u32 s{sT0}, s{sT0}, s{sT1}")
            e(f"  s_add_u32 s{sT0}, s{sT0}, s{sF}")
            e(f"  s_add_u32 s{sT0}, s{sT0}, s{sCU}")
            e(f"  s_and_b32 s{sSE}, s{sSE}, 1")
            e(f"  s_lshl_b32 s{sSE}, s{sSE}, 4")
            e(f"  s_add_u32 s{sT0}, s{sT0}, s{sSE}")
            e(f"  v_mov_b32 {vr(vPS)}, s{sT0}")
            e(f"  s_xor_b32 s{sT1}, s{sT1}, 1024")
            e(f"  s_add_u32 s{sF}, s{sF}, s{sT1}")
            e(f"  v_and_b32 {vr(vN)}, 1, v0")
            e(f"  v_lshl_add_u32 {vr(vN)}, {vr(vN)}, 4, s{sF}")
            for k in range(4):
                e(f"  v_add_u32 {vr(vSum)}, {k}, {vr(w_)}")
                e(f"  v_and_b32 {vr(vSum)}, 3, {vr(vSum)}")
                e(f"  v_lshl_add_u32 {vr(vPL + k)}, {vr(vSum)}, 8, {vr(vN)}")
            e(f"  s_mov_b32 s{sLO}, {(-(LAG + 2) * 0x01010101) & 0xffffffff:#x}")
            for k in range(4 * LAG):
                e(f"  v_mov_b32 {vr(smp + k)}, 0")
            for k in range(2):
                e(f"  v_mov_b32 {vr(vBI + k)}, 0")
            e(f"  v_mov_b32 {vr(vN)}, 0")
            e(f"  s_mov_b32 s{sB}, 0")
            e(f"  s_mov_b32 s{sS}, {P.s0}")
            e(f"  s_mov_b32 s{sI}, 0")
            e(f"  s_mov_b32 s{sCO}, 0")

    def sincos(dst, iv):
        for h in (0, 2):
            e(f"  v_pk_mul_f32 {vr(tN + h, 2)}, {vr(iv + h, 2)}, {vr(tK + 2, 2)} op_sel:[0,1] op_sel_hi:[1,1]")
        for i in range(4):
            e(f"  v_cos_f32 {vr(tA + i)}, {vr(tN + i)}")
        for i in range(4):
            e(f"  v_sin_f32 {vr(tN + i)}, {vr(tN + i)}")
        for i in range(4):
            e(f"  v_cvt_pk_f16_f32 {vr(dst + i)}, {vr(tA + i)}, {vr(tN + i)}")

    kp = [int(v) for v in P.kp_.split(",")]

    def chunk(i):
        a = 2 * (i // 3)
        d = tO + 4 * (i & 1)
        bc_ = lambda x, m: f"row_newbcast:{x} row_mask:0xf bank_mask:{m:#x}"
        if i % 3 == 1:
            e(f"  v_mov_b32_dpp {vr(pos)}, {vr(vRF)} {bc_(a + 1, 12)}")
            e(f"  v_add_u32_dpp {vr(vF)}, {vr(vAD)}, {vr(vC8)} {bc_(a, 3)}")
            e(f"  v_add_u32_dpp {vr(vF)}, {vr(vAD)}, {vr(vC8)} {bc_(a + 1, 12)}")
            sincos(d, invY)
            e(f"  ds_write_b128 {vr(vF)}, {vr(d, 4)} offset:{TB + 256}")
        else:
            a += i % 3 // 2
            e(f"  v_mov_b32_dpp {vr(pos)}, {vr(vRF)} {bc_(a, 15)}")
            e(f"  v_add_u32_dpp {vr(vF)}, {vr(vAD)}, {vr(vC16)} {bc_(a, 15)}")
            sincos(d, invX)
            e(f"  ds_write_b128 {vr(vF)}, {vr(d, 4)} offset:{TB}")

    def tab_read(a):
        for n in range(3 * a, 3 * a + 3):
            d = tab + 12 * (a & 1) + 4 * (n % 3)
            if n in SPECIAL:
                e(f"  ds_read_b128 {vr(d, 4)}, {vr(vTA + 3 + SPECIAL[n])}")
            else:
                e(f"  ds_read_b128 {vr(d, 4)}, {vr(vTA + TN[n])} offset:{toff_(n)}")

    k_loads(kp[0])
    pf()
    e(f"  s_waitcnt vmcnt({nk[0]})")
    pf()
    for i in range(12):
        if i == P.su:
            setup()
            pf()
        chunk(i)
        k_loads(kp[i + 1])
        if i % 3 == 2:
            pf()
    k_loads(PRE)
    e(f"  v_mov_b32 {vr(bc)}, {f32bits(-7.5):#x}")
    e("  s_waitcnt lgkmcnt(0)")
    for k in range(8):
        e(f"  v_writelane_b32 {vr(vU)}, s{16 + k}, {k}")
    e("  s_barrier")
    pf()
    for k in range(3):
        e(f"  ds_read_b128 {vr(qa + 4 * k, 4)}, {vr(vQA + k)}")
    tab_read(0)
    e(f"  s_waitcnt vmcnt({PRE - ORD['K'][:ORD['K'].index('L')].count('b')})")
    pf()
    if P.tfine:
        e("  s_waitcnt lgkmcnt(0)")
        for k in range(pfn[0]):
            e(f"  v_writelane_b32 {vr(vtr)}, s{PFR[k]}, {k}")
        e(f"  s_mov_b32 m0, {pfn[0]}")

    def vfirst():
        e(f"  s_and_b32 s{sH}, s{sVO}, 15")
        e(f"  s_add_u32 s{sNEED}, s{sH}, 1")
        e(f"  ds_read_b32 {vr(vF)}, {vr(vZ)} offset:{FL + 20}")
        flagwait("a0", FL + 20)
        e(f"  s_mulk_i32 s{sH}, 1536")
        for k in range(2):
            e(f"  v_add_u32 {vr(vLV + k)}, s{sH}, {vr(vLB + k)}")
        e(f"  ds_read_b32 {vr(A)}, {vr(vLV)}")


    def knext():
        e("; next SRD: K slot k + 1, or the first V step once K runs out")
        e(f"  s_add_u32 s{sH}, s{sK}, 1")
        e(f"  s_sub_u32 s{sT1}, s{sH}, 16")
        vstep_k(sF, sT1)
        e(f"  s_cmp_lt_u32 s{sH}, 16")
        e(f"  s_cselect_b32 s{sH}, s{sH}, s{sF}")
        e(f"  s_cselect_b32 s{sX}, s{sQK}, s{sQV}")
        e(f"  s_cselect_b32 s{sX + 1}, s{sQK + 1}, s{sQV + 1}")
        head_of(sH, sH)
        srd_head(rB, sX, sH)

    def kred(n):
        dpp = lambda d, x, how, m: e(f"  v_add_f32_dpp {vr(d)}, {vr(x)}, {vr(x)} {how} row_mask:0xf bank_mask:{m:#x}")
        dpp(M1, dacc, "row_ror:8", 12 if n & 1 else 3)
        if n % 2 == 1:
            e("  s_nop 1")
            dpp(M2, M1, "row_half_mirror", 10 if n & 2 else 5)
        if n % 4 == 3:
            e("  s_nop 1")
            dpp(M2 if n & 4 else M3, M2, "quad_perm:[2,3,0,1]", 15)
        if n % 8 == 7:
            e(f"  v_cndmask_b32_e64 {vr(M3)}, {vr(M3)}, {vr(M2)}, s[{sMSK}:{sMSK + 1}]")
            e("  s_nop 1")
            dpp((LG, M3, LG + 1)[n >> 3], M3, "quad_perm:[1,0,3,2]", 15)
        if n == 15:
            e(f"  v_cndmask_b32_e64 {vr(LG)}, {vr(LG)}, {vr(M3)}, s[{sMSK + 2}:{sMSK + 3}]")

    e(".p2align 6")
    e("L_k:")

    def kbody(n):
        k_, q_ = ring + 4 * n, qa + 4 * TN[n]
        for i in range(4):
            e(f"  v_dot2_f32_f16 {vr(wt + i)}, {vr(tab + 12 * (n // 3 & 1) + 4 * (n % 3) + i)}, {vr(q_ + i)}, 0")
        for i in range(4):
            e(f"  v_cvt_f32_i32 {vr(k_ + i)}, {vr(k_ + i)}")
        if n >= 21:
            e(f"  ds_read_b128 {vr(q_, 4)}, {vr(vQA + TN[n])}")
        for h in range(2):
            e(f"  v_pk_add_f32 {vr(k_ + 2 * h, 2)}, {vr(k_ + 2 * h, 2)}, {vr(bc, 2)} op_sel_hi:[1,0]")
        e(f"  v_pk_mul_f32 {vr(dacc, 2)}, {vr(k_, 2)}, {vr(wt, 2)}")
        e(f"  v_pk_fma_f32 {vr(dacc, 2)}, {vr(k_ + 2, 2)}, {vr(wt + 2, 2)}, {vr(dacc, 2)}")
        e(f"  v_add_f32 {vr(dacc)}, {vr(dacc)}, {vr(dacc + 1)}")

    def kout():
        e(f"  v_mov_b32 {vr(vF)}, s{sK}")
        for k in range(2):
            e(f"  ds_write_b32 {vr(vLG + k)}, {vr(LG + k)}")
        e(f"  ds_write_b32 {vr(vPW)}, {vr(vF)} offset:{FL}")

    def group(ph, a, body, after, res):
        nb, pend = 3 * a, None
        od = ORD[ph]
        for i, c in enumerate(od):
            if pend is not None and c != "L":
                if od[i - 1] == "b":
                    e("  s_nop 1")
                after(pend)
                pend = None
            if c == "E":
                evaluate(ph, a)
                if od[i + 1] != "X":
                    decide(ph, a)
            if c == "X":
                exchange(a)
                if od[i - 1] == "E":
                    decide(ph, a)
            if c == "R" and a == 0:
                res()
            if c == "b":
                body(nb)
                pend = nb if after else None
                nb += 1
            if c == "L":
                issue(ph, a, i)
        if pend is not None:
            if od[-1] == "b":
                e("  s_nop 1")
            after(pend)

    for a in range(8):
        if a == 7:
            flagwait("qn", FL + 16)
        else:
            e("  s_waitcnt lgkmcnt(0)")
        tab_read((a + 1) % 8)
        if a == 6:
            e(f"  ds_read_b32 {vr(vF)}, {vr(vZ)} offset:{FL + 16}")
        group("K", a, kbody, kred, kout)
        if a == 1:
            knext()
        if a == 3:
            e(f"  s_add_u32 s{sT0}, s{sK}, 2")
            e(f"  s_min_u32 s{sNEED}, s{sT0}, 16")
            for k in range(3):
                e(f"  v_add_u32 {vr(vQA + k)}, 768, {vr(vQA + k)}")
            for k in range(2):
                e(f"  v_add_u32 {vr(vLG + k)}, 1536, {vr(vLG + k)}")
            e(f"  s_cmp_eq_u32 s{sK}, 15")
            e("  s_cbranch_scc1 L_kv")
            e("L_kw:")
        if a in (3, 7) or P.tfine:
            tr()
    assert sorted(TN[21:]) == [0, 1, 2] and TN[:3] == TN[3:6] and sorted(TN[:3]) == [0, 1, 2] and PRE <= 18
    e(f"  s_add_u32 s{sK}, s{sK}, 1")
    e(f"  s_mov_b64 s[{rA}:{rA + 1}], s[{rB}:{rB + 1}]")
    e(f"  s_cmp_lt_u32 s{sK}, 16")
    e("  s_cbranch_scc1 L_k")


    def vbody(n):
        v_ = ring + 4 * n
        e(f"  v_mov_b32_dpp {vr(bc)}, {vr(A + n // 16)} row_newbcast:{rev(n % 16, 4)} row_mask:0xf bank_mask:0xf")
        for i in range(4):
            e(f"  v_cvt_f32_i32 {vr(v_ + i)}, {vr(v_ + i)}")
        for h in range(2):
            d = 4 * TN[n] + 2 * h
            if n < 3:
                e(f"  v_pk_mul_f32 {vr(tmp + d, 2)}, {vr(v_ + 2 * h, 2)}, {vr(bc, 2)} op_sel_hi:[1,0]")
            else:
                e(f"  v_pk_fma_f32 {vr(acc + d, 2)}, {vr(v_ + 2 * h, 2)}, {vr(bc, 2)}, {vr((tmp if n < 6 else acc) + d, 2)} op_sel_hi:[1,0,1]")

    def vout(last=False):
        for j in range(3):
            e(f"  v_permlane32_swap_b32 {vr(acc + 4 * j)}, {vr(acc + 4 * j + 2)}")
            e(f"  v_permlane32_swap_b32 {vr(acc + 4 * j + 1)}, {vr(acc + 4 * j + 3)}")
        for j in range(3):
            e(f"  v_add_f32 {vr(acc + 4 * j)}, {vr(acc + 4 * j)}, {vr(acc + 4 * ((j + 1) % 3) + 2)}")
            e(f"  v_add_f32 {vr(acc + 4 * j + 1)}, {vr(acc + 4 * j + 1)}, {vr(acc + 4 * ((j + 1) % 3) + 3)}")
        for j in range(3):
            e(f"  v_permlane16_swap_b32 {vr(acc + 4 * j)}, {vr(acc + 4 * j + 1)}")
        for j in range(3):
            e(f"  v_add_f32 {vr(acc + 4 * j)}, {vr(acc + 4 * j)}, {vr(acc + 4 * ((j + 2) % 3) + 1)}")
        for j in range(3):
            e(f"  ds_write_b32 {vr(vPA + j)}, {vr(acc + 4 * j)}")
        if not last:
            e(f"  ds_write_b32 {vr(vPW)}, {vr(M1)} offset:{FL}")
            e("L_v0:")

    def vnext():
        e(f"  s_add_u32 s{sT1}, s{sK}, 1")
        e(f"  s_min_u32 s{sT1}, s{sT1}, 15")
        vstep_k(sH, sT1)
        e(f"  s_add_u32 s{sNEED}, s{sH}, 1")
        e(f"  s_mul_i32 s{sF}, s{sH}, 1536")
        head_of(sH, sH)
        srd_head(rB, sQV, sH)
        for k in range(2):
            e(f"  v_add_u32 {vr(vLV + k)}, s{sF}, {vr(vLB + k)}")

    NS, NT = (PRE - PD) // 3, 8 - PD // 3
    assert NS <= 1 and 4 <= NT <= 5 and (NS or P.ov[0] == "R") and max(P.mg, P.ml) <= 3 * NT
    e("L_vpre:")
    kout()
    e(f"  s_mov_b32 s{sK}, 0")
    e(f"  v_mov_b32 {vr(M1)}, 16")
    if NS:
        for n in range(3):
            e(f"  s_waitcnt vmcnt({plain[384 + n]})")
            vbody(n)
        e(f"  s_waitcnt vmcnt({plain[387]}) lgkmcnt(0)")
        e("  s_branch L_v1")
    else:
        e("  s_waitcnt lgkmcnt(3)")
        e("  s_branch L_v0")
    flush()
    e("L_kv:")
    vfirst()
    e("  s_branch L_kw")
    flush()
    e(".p2align 6")
    e("L_v:")
    for a in range(8):
        if a == 1:
            e("L_v1:")
            e(f"  ds_read_b32 {vr(A + 1)}, {vr(vLV + 1)}")
        if a == NT:
            e(f"  s_cmp_eq_u32 s{sK}, 15")
            e("  s_cbranch_scc1 L_vt")
        if a in (5, 7):
            e("  s_waitcnt lgkmcnt(0)")
        if a == 5:
            e(f"  ds_read_b32 {vr(vF)}, {vr(vZ)} offset:{FL + 20}")
        if a == 6:
            flagwait("an", FL + 20)
            e(f"  ds_read_b32 {vr(A)}, {vr(vLV)}")
        group("V", a, vbody, None, vout)
        if a == 1:
            vnext()
        if a == 3:
            e(f"  v_add_u32 {vr(M1)}, 1, {vr(M1)}")
            for j in range(3):
                e(f"  v_add_u32 {vr(vPA + j)}, 3072, {vr(vPA + j)}")
        if a in (3, 7):
            tr()
    e(f"  s_add_u32 s{sK}, s{sK}, 1")
    e(f"  s_mov_b64 s[{rA}:{rA + 1}], s[{rB}:{rB + 1}]")
    e("  s_branch L_v")
    flush()
    e("L_vt:")
    e("  s_waitcnt lgkmcnt(0)")
    for n in range(3 * NT, 24):
        e(f"  s_waitcnt vmcnt({plain[744 + n]})")
        vbody(n)
    tr()
    e("  s_nop 1")
    vout(True)
    e("  s_waitcnt lgkmcnt(0)")
    e("  s_barrier")
    if P.trace:
        e(f"  s_mul_i32 s8, s2, {5 * 256}")
        e("  s_add_u32 s8, s8, 0x100000")
        e(f"  v_lshl_add_u32 {vr(t0)}, v0, 2, s8")
        e(f"  global_store_dword {vr(t0)}, {vr(vtr)}, s[{sWS}:{sWS + 1}]")
    e("  s_endpgm")

    HP = [4, 6, 24, 8, 10, 36, 38, 72]
    ms = [m for m in range(P.r0, P.r1 + 1) if m < P.rf or m > P.rt or (m - P.r0) % P.rp == 0]
    gain = [(P.kp0 if m <= P.kn else P.kp) if m in ms else 0 for m in range(32)]
    if P.rk:
        gain = [int(c, 16) for c in P.rk]
        assert len(gain) == 32 and not any(gain[:P.r0]) and not gain[31]
    msk = sum(1 << m for m in range(32) if gain[m])

    def hp(k):
        if P.hprof:
            e(f"  s_memrealtime s[{HP[k]}:{HP[k] + 1}]")

    def progwait(name, slp, off=FL):
        e(f"L_{name}:")
        e(f"  ds_read_b128 {vr(pr, 4)}, {vr(vZ)} offset:{off}")
        e("  s_waitcnt lgkmcnt(0)")
        e(f"  v_min_u32 {vr(pr)}, {vr(pr)}, {vr(pr + 1)}")
        e(f"  v_min3_u32 {vr(pr)}, {vr(pr)}, {vr(pr + 2)}, {vr(pr + 3)}")
        e("  s_nop 0")
        e(f"  v_readfirstlane_b32 s{sF}, {vr(pr)}")
        e(f"  s_cmp_ge_u32 s{sF}, s{sNEED}")
        e(f"  s_cbranch_scc1 L_{name}_ok")
        budget(f"L_{name}_ok")
        if slp:
            e(f"  s_sleep {slp}")
        e(f"  s_branch L_{name}")
        e(f"L_{name}_ok:")

    def rowred(op, v):
        for n in (8, 4, 2, 1):
            e("  s_nop 1")
            e(f"  {op}_dpp {vr(v)}, {vr(v)}, {vr(v)} row_ror:{n} row_mask:0xf bank_mask:0xf")

    def allred(op, v, t):
        rowred(op, v)
        for sw in ("v_permlane16_swap_b32", "v_permlane32_swap_b32"):
            e(f"  v_mov_b32 {vr(t)}, {vr(v)}")
            e("  s_nop 1")
            e(f"  {sw} {vr(v)}, {vr(t)}")
            e(f"  {op} {vr(v)}, {vr(v)}, {vr(t)}")

    def sum_partials(nq):
        w = 4 * nq
        for k in range(4):
            for q in range(nq):
                e(f"  ds_read_b128 {vr(x + w * k + 4 * q, 4)}, {vr(h0)} offset:{768 * k + 16 * q}")
        e(f"  ds_read_b128 {vr(z4, 4)}, {vr(h1)} offset:{ST}")
        e("  s_waitcnt lgkmcnt(0)")
        for h in range(0, w, 2):
            e(f"  v_pk_add_f32 {vr(x + h, 2)}, {vr(x + h, 2)}, {vr(x + w + h, 2)}")
            e(f"  v_pk_add_f32 {vr(x + 2 * w + h, 2)}, {vr(x + 2 * w + h, 2)}, {vr(x + 3 * w + h, 2)}")
        for h in range(0, w, 2):
            e(f"  v_pk_add_f32 {vr(x + h, 2)}, {vr(x + h, 2)}, {vr(x + 2 * w + h, 2)}")
        for h in range(0, w, 2):
            e(f"  v_pk_add_f32 {vr(x + h, 2)}, {vr(x + h, 2)}, {vr(z4 + 2, 2)} op_sel_hi:[1,0] neg_lo:[0,1] neg_hi:[0,1]")

    def mark(tag):
        if P.sd:
            e("  s_memrealtime s[72:73]")
            e("  s_waitcnt lgkmcnt(0)")
            e("  s_sub_u32 s75, s72, s74")
            e("  s_mov_b32 s74, s72")
            e(f"  s_add_u32 s72, s{sNEED}, {64 - P.sd}")
            e("  s_and_b32 s73, s72, 1")
            e("  s_lshl_b32 s73, s73, 4")
            e("  s_min_u32 s75, s75, 510")
            e("  s_lshl_b32 s75, s75, s73")
            e("  s_lshr_b32 m0, s72, 1")
            e(f"  v_readlane_b32 s73, {vr(vCL)}, m0")
            e("  s_add_u32 s73, s73, s75")
            e(f"  v_writelane_b32 {vr(vCL)}, s73, m0")
        if not P.enc:
            return
        for k, m in enumerate(P.enc.split(",")[:2]):
            e(f"  s_cmp_eq_u32 s{sNEED}, {m}")
            e(f"  s_cbranch_scc0 L_mk{tag}{k}")
            e(f"  s_memrealtime s[{72 + 2 * k}:{73 + 2 * k}]")
            e(f"L_mk{tag}{k}:")

    def warm(tag):
        if not P.tw:
            return
        tm = sum(1 << int(v) for v in P.tm.split(","))
        if P.ts:
            e(f"  s_bfe_u32 s{sT0}, s2, {P.ts << 16 | 4:#x}")
            e(f"  s_add_u32 s{sX}, s{sNEED}, s{sT0}")
            e(f"  s_add_u32 s{sX}, s{sX}, {P.tw}")
        else:
            e(f"  s_add_u32 s{sX}, s{sNEED}, {P.tw}")
        e(f"  s_min_u32 s{sX}, s{sX}, 31")
        e(f"  s_cmp_eq_u32 s{sJ}, 0")
        e(f"  s_cselect_b32 s{sT0}, {tm:#x}, 0")
        e(f"  s_bitcmp1_b32 s{sT0}, s{sX}")
        e(f"  s_cbranch_scc0 L_tw{tag}")
        e(f"  s_sub_u32 s{sT1}, s{sX}, 16")
        vstep_k(sF, sT1)
        e(f"  s_cmp_lt_u32 s{sX}, 16")
        e(f"  s_cselect_b32 s{sF}, s{sX}, s{sF}")
        e(f"  s_cselect_b32 s{rB}, s{sQK}, s{sQV}")
        e(f"  s_cselect_b32 s{rB + 1}, s{sQK + 1}, s{sQV + 1}")
        head_of(sF, sF, hU)
        e(f"  s_mul_i32 s{sF}, s{sF}, {UB}")
        e(f"  s_add_u32 s{sF}, s{sF}, {65536 * RUN[0]}")
        if P.tv:
            e(f"  v_mov_b32 {vr(vFX)}, s{sF}")
            e("  s_mov_b64 exec, 1")
            e(f"  global_load_dword {vr(vFX)}, {vr(vFX)}, s[{rB}:{rB + 1}] nt")
            e("  s_mov_b64 exec, -1")
            e("  s_waitcnt vmcnt(0)")
        else:
            e(f"  s_load_dword s{sF}, s[{rB}:{rB + 1}], s{sF} {P.tg}")
            e("  s_waitcnt lgkmcnt(0)")
        e(f"L_tw{tag}:")

    def rank_post(tag):
        if not P.ctl:
            return
        e(f"  s_bitcmp1_b32 s{sRF}, s{sNEED}")
        e(f"  s_cbranch_scc0 L_fa{tag}")
        e(f"  s_mul_i32 s{sT0}, s{sNEED}, 384")
        e(f"  s_add_u32 s{sT0}, s{sT0}, {W_RK}")
        e(f"  s_mov_b32 s{sB}, 1")
        e(f"  s_atomic_add s{sB}, s[{sWS}:{sWS + 1}], s{sT0} glc")
        e(f"L_fa{tag}:")

    def rank_take(tag):
        if not P.ctl:
            return
        e(f"  s_bitcmp1_b32 s{sRF}, s{sNEED}")
        e(f"  s_cbranch_scc0 L_fb{tag}")
        e("  s_waitcnt lgkmcnt(0)")
        e(f"  s_min_u32 s{sF}, s{sB}, 15")
        e(f"  s_lshl_b32 s{sF}, s{sF}, 1")
        e(f"  s_sub_u32 s{sF}, s{sF}, 15")
        gs = sorted(set(gain) - {0})
        e(f"  s_mov_b32 s{sT0}, {gs[0]}")
        for g_ in gs[1:]:
            e(f"  s_bitcmp1_b32 {sum(1 << m for m in range(32) if gain[m] == g_):#x}, s{sNEED}")
            e(f"  s_cselect_b32 s{sT0}, {g_}, s{sT0}")
        e(f"  s_mul_i32 s{sF}, s{sF}, s{sT0}")
        e(f"  s_add_u32 s{sF}, s{sF}, 8")
        e(f"  s_ashr_i32 s{sF}, s{sF}, 4")
        e(f"  v_mov_b32 {vr(vFX)}, s{sF}")
        e("  s_mov_b64 exec, 1")
        e(f"  global_store_dword {vr(vFB)}, {vr(vFX)}, s[{sWS}:{sWS + 1}]")
        e("  s_mov_b64 exec, -1")
        e(f"L_fb{tag}:")

    HPF = [10, 16, 18, 20, 22, 72, 74, 76, 82, 96]
    hpn = [0]

    def hpf():
        if P.tfine:
            e(f"  s_memrealtime s[{HPF[hpn[0]]}:{HPF[hpn[0]] + 1}]")
            hpn[0] += 1

    e("L_helper:")
    e(f"  s_setprio {P.hp0}")
    hv = []

    def qmask(on):
        if on:
            e("  s_mov_b32 exec_lo, 0xffffff")
            e("  s_mov_b32 exec_hi, 0xffffff")
        else:
            e("  s_mov_b64 exec, -1")

    if P.st:
        e("; start the address translation of the small arrays right away")
        e("  s_waitcnt lgkmcnt(0)")
        e(f"  s_load_dwordx8 s[24:31], s[0:1], 80")
        for k, sp in enumerate((sQ, sKS, sVS)):
            e(f"  s_load_dword s{rA + k}, s[{sp}:{sp + 1}], 0")
    e(f"  v_and_b32 {vr(vL16)}, 0x1f0, {vr(vT16)}")
    e(f"  global_load_dwordx4 {vr(pr, 4)}, {vr(vL16)}, s[{sZ}:{sZ + 1}] offset:{D_QCS - PC0}")
    e(f"  global_load_dwordx4 {vr(f0, 4)}, {vr(vL16)}, s[{sZ}:{sZ + 1}] offset:{D_F0 - PC0}")
    e(f"  v_and_b32 {vr(vSh)}, 32, v0")
    e(f"  v_lshrrev_b32 {vr(vSh)}, 1, {vr(vSh)}")
    e(f"  v_lshrrev_b32 {vr(h1)}, 1, {vr(vL16)}")
    e(f"  s_movk_i32 s{sT1}, 384")
    if not P.st:
        e("  s_waitcnt lgkmcnt(0)")
    hpf()
    for p in range(2):
        e(f"  v_lshrrev_b32 {vr(hq + p)}, {vr(vSh)}, s{sE + 10 + p}")
        e(f"  v_and_b32 {vr(h0)}, 0xff, {vr(hq + p)}")
        e(f"  v_mad_u32_u24 {vr(ra + p)}, {vr(h0)}, s{sT1}, {vr(h1)}")
    qmask(1)
    for p in range(2):
        e(f"  global_load_dwordx2 {vr(rec + 4 * p, 2)}, {vr(ra + p)}, s[{sQ}:{sQ + 1}]")
        e(f"  global_load_dwordx2 {vr(rec + 4 * p + 2, 2)}, {vr(ra + p)}, s[{sQ}:{sQ + 1}] offset:192")
        hv.extend([("q", p)] * 2)
    qmask(0)
    hpf()
    common(not P.st)
    e(f"  s_lshl_b32 s{sT0}, s{sJ}, 10")
    e(f"  s_add_u32 s{sT0}, s{sT0}, L_hpos-L_pc")
    e(f"  v_add_u32 {vr(h0)}, s{sT0}, {vr(vT16)}")
    e(f"  global_load_dwordx4 {vr(st4, 4)}, {vr(h0)}, s[{sZ}:{sZ + 1}]")
    hv.append(("h", 0))
    e(f"  s_mov_b64 s[{sVO}:{sVO + 1}], s[{sE + 8}:{sE + 9}]")
    e(f"  v_mov_b32 {vr(l)}, v0")
    for i in range(4):
        e(f"  v_mov_b32 {vr(z4 + i)}, 0")
    for k in range(4):
        e(f"  ds_write_b128 {vr(vZ)}, {vr(z4, 4)} offset:{FL + 16 * k}")
    e(f"  s_mov_b32 s{sMASK}, 0xffff0000")
    e(f"  s_mov_b32 s{sSCALE}, {f32bits(math.log2(math.e) / math.sqrt(192.0)):#x}")
    e(f"  s_movk_i32 s{sC}, 784")
    e(f"  v_mad_u32_u24 {vr(wa)}, {vr(vSh)}, 48, {vr(vL16)}")
    e(f"  v_lshrrev_b32 {vr(vSq)}, 1, {vr(vSh)}")
    for p in range(8):
        e(f"  v_lshrrev_b32 {vr(ra + p)}, {vr(vSh)}, s{sE + p}")
    e("  s_waitcnt lgkmcnt(0)")
    hpf()
    if P.ctl:
        die_base(sF)
        e(f"  v_lshrrev_b32 {vr(h0)}, 1, {vr(l)}")
        e(f"  v_lshl_add_u32 {vr(vFX)}, {vr(h0)}, 8, s{sF}")
        e(f"  v_and_b32 {vr(h0)}, 1, {vr(l)}")
        e(f"  v_lshl_add_u32 {vr(vFX)}, {vr(h0)}, 4, {vr(vFX)}")
        e(f"  s_and_b32 s{sT1}, s{sSE}, 2")
        e(f"  s_lshl_b32 s{sT0}, s{sT1}, 9")
        e(f"  s_add_u32 s{sT0}, s{sT0}, s{sF}")
        e(f"  v_add_u32 {vr(vEL)}, s{sT0}, {vr(l)}")
        e(f"  s_lshl_b32 s{sT1}, s{sT1}, 1")
        e(f"  s_add_u32 s{sF}, s{sF}, s{sT1}")
        e(f"  s_add_u32 s{sF}, s{sF}, 2048")
        e(f"  v_mov_b32 {vr(vFB)}, s{sF}")
        e(f"  v_mul_u32_u24 {vr(vFA)}, 384, {vr(l)}")
        e(f"  v_add_u32 {vr(vFA)}, {W_RK}, {vr(vFA)}")
        e(f"  s_mov_b32 s{sRF}, 0")
        e("  s_mov_b64 exec, 0x3ffff")
        e(f"  global_store_dwordx4 {vr(vFX)}, {vr(z4, 4)}, s[{sWS}:{sWS + 1}]")
        e("  s_mov_b64 exec, -1")
    e(f"  s_waitcnt vmcnt({len(hv)})")
    for k in range(4):
        e(f"  v_lshlrev_b32 {vr(cs + k)}, 16, {vr(pr + k)}")
        e(f"  v_and_b32 {vr(cs + 4 + k)}, s{sMASK}, {vr(pr + k)}")

    def elect():
        if not P.ctl:
            return
        e(f"  s_cmp_eq_u32 s{sNEED}, {P.r0 - 1}")
        e("  s_cbranch_scc0 L_el")
        e(f"  s_bitcmp0_b32 s{sSE}, 0")
        e("  s_cbranch_scc0 L_el")
        e("  s_mov_b64 exec, 0xffff")
        e(f"  global_load_ubyte {vr(vFX)}, {vr(vEL)}, s[{sWS}:{sWS + 1}] sc1")
        e("  s_waitcnt vmcnt(0)")
        e(f"  v_cmp_ne_u32 s[{sZ}:{sZ + 1}], 0, {vr(vFX)}")
        e(f"  s_lshr_b32 s{sT0}, s{sZ}, s{sCU}")
        e(f"  s_bcnt1_i32_b32 s{sT0}, s{sT0}")
        pat = sum(1 << m for m in range(0, 32, P.rotl))
        e(f"  s_sub_u32 s{sT1}, s{sT0}, 1")
        e(f"  s_cmp_lt_u32 s{sT1}, {P.rotl}")
        e("  s_cbranch_scc0 L_el")
        e(f"  s_lshl_b32 s{sRF}, {pat:#x}, s{sT1}")
        e(f"  s_and_b32 s{sRF}, s{sRF}, {msk:#x}")
        e("L_el:")
        e("  s_mov_b64 exec, -1")

    def roleaddr(src):
        e(f"  v_bfe_u32 {vr(wb)}, {vr(src)}, 12, 2")
        e(f"  v_mul_u32_u24 {vr(h1)}, s{sC}, {vr(wb)}")
        e(f"  v_add_u32 {vr(h1)}, {QR}, {vr(h1)}")
        e(f"  v_add_u32 {vr(h0)}, {vr(h1)}, {vr(vL16)}")

    def rotate(p):
        L, Hh, LC, HS, HC, LS = x, x + 4, x + 8, x + 12, x + 16, x + 20
        roleaddr(hq + p)
        e(f"  v_mov_b32 {vr(h2)}, 0")
        qmask(1)
        if p == 0:
            hpf()
        e(f"  s_waitcnt vmcnt({hv[::-1].index(('q', p))})")
        if p == 0:
            hpf()
        for k in range(4):
            e(f"  v_lshlrev_b32 {vr(L + 2 * k)}, 16, {vr(rec + 4 * p + k)}")
            e(f"  v_and_b32 {vr(L + 2 * k + 1)}, s{sMASK}, {vr(rec + 4 * p + k)}")
        for d, q_, t_ in ((LC, L, cs), (HS, Hh, cs + 4), (HC, Hh, cs), (LS, L, cs + 4)):
            for h in (0, 2):
                e(f"  v_pk_mul_f32 {vr(d + h, 2)}, {vr(q_ + h, 2)}, {vr(t_ + h, 2)}")
        for i in range(4):
            e(f"  v_cvt_pk_bf16_f32 {vr(L + i)}, {vr(LC + i)}, {vr(HS + i)}")
            e(f"  v_cvt_pk_bf16_f32 {vr(Hh + i)}, {vr(HC + i)}, {vr(LS + i)}")
        for k in range(8):
            e(f"  v_lshlrev_b32 {vr(LC + k)}, 16, {vr(L + k)}")
            e(f"  v_and_b32 {vr(L + k)}, s{sMASK}, {vr(L + k)}")
        for h in (0, 2):
            e(f"  v_pk_add_f32 {vr(L + h, 2)}, {vr(LC + h, 2)}, {vr(L + h, 2)} neg_lo:[0,1] neg_hi:[0,1]")
            e(f"  v_pk_add_f32 {vr(Hh + h, 2)}, {vr(HS + h, 2)}, {vr(Hh + h, 2)}")
        for i in range(4):
            e(f"  v_cvt_pk_bf16_f32 {vr(Hh + i)}, {vr(L + i)}, {vr(Hh + i)}")
        for i in range(4):
            e(f"  v_lshlrev_b32 {vr(L + i)}, 16, {vr(Hh + i)}")
            e(f"  v_and_b32 {vr(Hh + i)}, s{sMASK}, {vr(Hh + i)}")
        for i in range(4):
            e(f"  v_max3_f32 {vr(h2)}, |{vr(L + i)}|, |{vr(Hh + i)}|, {vr(h2)}")
        qmask(0)
        rowred("v_max_f32", h2)
        e(f"  v_mov_b32 {vr(h3)}, {vr(h2)}")
        e("  s_nop 1")
        e(f"  v_permlane16_swap_b32 {vr(h2)}, {vr(h3)}")
        e(f"  v_max_f32 {vr(h2)}, {vr(h2)}, {vr(h3)}")
        e(f"  v_frexp_exp_i32_f32 {vr(h2)}, {vr(h2)}")
        e(f"  v_sub_u32 {vr(h3)}, 13, {vr(h2)}")
        e(f"  v_subrev_u32 {vr(h2)}, 13, {vr(h2)}")
        for i in range(8):
            e(f"  v_ldexp_f32 {vr(L + i)}, {vr(L + i)}, {vr(h3)}")
        e(f"  v_ldexp_f32 {vr(h2)}, s{sSCALE}, {vr(h2)}")
        qmask(1)
        e(f"  ds_write_b128 {vr(h0)}, {vr(L, 4)}")
        e(f"  ds_write_b128 {vr(h0)}, {vr(Hh, 4)} offset:384")
        e(f"  ds_write_b32 {vr(h1)}, {vr(h2)} offset:768")
        qmask(0)

    cu, su = x + 24, x + 28

    def angle(p):
        e(f"  v_and_b32 {vr(qn)}, 7, {vr(ra + p)}")
        e(f"  v_cvt_f32_u32 {vr(qn)}, {vr(qn)}")
        for h in (0, 2):
            e(f"  v_pk_mul_f32 {vr(su + h, 2)}, {vr(f0 + h, 2)}, {vr(qn, 2)} op_sel_hi:[1,0]")
        for i in range(4):
            e(f"  v_cos_f32 {vr(cu + i)}, {vr(su + i)}")
        for i in range(4):
            e(f"  v_sin_f32 {vr(su + i)}, {vr(su + i)}")

    def item(p):
        a_, b_, a2, b2 = x, x + 4, x + 8, x + 12
        roleaddr(ra + p)
        qmask(1)
        e(f"  ds_read_b128 {vr(a_, 4)}, {vr(h0)}")
        e(f"  ds_read_b128 {vr(b_, 4)}, {vr(h0)} offset:384")
        e(f"  ds_read_b32 {vr(qn + 2)}, {vr(h1)} offset:768")
        if p:
            angle(p)
        e(f"  v_mov_b32 {vr(qn + 3)}, {vr(wb)}")
        e(f"  v_mov_b32 {vr(h0)}, {2 * p + 2}")
        e("  s_waitcnt lgkmcnt(0)")
        for h in (0, 2):
            e(f"  v_pk_mul_f32 {vr(a2 + h, 2)}, {vr(a_ + h, 2)}, {vr(cu + h, 2)}")
            e(f"  v_pk_mul_f32 {vr(b2 + h, 2)}, {vr(b_ + h, 2)}, {vr(cu + h, 2)}")
        for h in (0, 2):
            e(f"  v_pk_fma_f32 {vr(a2 + h, 2)}, {vr(b_ + h, 2)}, {vr(su + h, 2)}, {vr(a2 + h, 2)}")
            e(f"  v_pk_fma_f32 {vr(b2 + h, 2)}, {vr(a_ + h, 2)}, {vr(su + h, 2)}, {vr(b2 + h, 2)} neg_lo:[1,0,0] neg_hi:[1,0,0]")
        for i in range(4):
            e(f"  v_cvt_pk_f16_f32 {vr(a_ + i)}, {vr(a2 + i)}, {vr(b2 + i)}")
            e(f"  v_cvt_pk_f16_f32 {vr(b_ + i)}, {vr(b2 + i)}, -{vr(a2 + i)}")
        e(f"  ds_write_b128 {vr(wa)}, {vr(a_, 4)} offset:{QB + 1536 * p}")
        e(f"  ds_write_b128 {vr(wa)}, {vr(b_, 4)} offset:{QB + 1536 * p + 384}")
        e(f"  ds_write_b64 {vr(vSq)}, {vr(qn + 2, 2)} offset:{QS + 16 * p}")
        e(f"  ds_write_b32 {vr(vZ)}, {vr(h0)} offset:{FL + 16}")
        qmask(0)

    angle(0)
    rotate(0)
    item(0)
    hpf()
    e("  s_waitcnt lgkmcnt(0)")
    e("  s_setprio 0")
    hpf()
    e("  s_barrier")
    hpf()
    for p in range(8):
        e(f"  v_and_b32 {vr(h0)}, 0x7ff, {vr(ra + p)}")
        e(f"  v_lshl_add_u32 {vr(h0)}, {vr(h0)}, 9, {vr(vL16)}")
        for i, sp in enumerate((sKS, sVS)):
            e(f"  s_mov_b32 m0, {SCB + SA * i + 1024 * p}")
            e("  s_nop 0")
            e(f"  global_load_lds_dwordx4 {vr(h0)}, s[{sp}:{sp + 1}] nt")
            hv.append(("s", p))
    rotate(1)
    for p in range(1, 8):
        item(p)
    if P.tw:
        for k in range(8):
            e(f"  v_writelane_b32 {vr(hU)}, s{sE + k}, {k}")
    e(f"  v_mov_b32 {vr(vSa)}, 0")
    e(f"  v_mov_b32 {vr(vSq)}, 0")
    e(f"  v_min_u32 {vr(u)}, 47, {vr(l)}")
    e(f"  v_lshlrev_b32 {vr(vL16)}, 4, {vr(u)}")
    for i in range(4):
        e(f"  v_mov_b32 {vr(sc + i)}, 0")
    e(f"  s_mov_b32 s{sNEED}, 1")
    e("  s_cmp_eq_u32 s2, 0")
    e("  s_cbranch_scc0 L_rc")
    e(f"  v_mov_b32 {vr(h0)}, {W_REC + 384 + 4}")
    e(f"  global_load_dword {vr(h1)}, {vr(h0)}, s[{sWS}:{sWS + 1}] sc1")
    if P.ctl:
        e(f"  s_mov_b64 exec, {msk:#x}")
        e(f"  global_store_dword {vr(vFA)}, {vr(vZ)}, s[{sWS}:{sWS + 1}] sc1")
    e("  s_mov_b64 exec, 1")
    e("  s_waitcnt vmcnt(0)")
    e(f"  v_and_b32 {vr(qn)}, 0x77777777, {vr(h1)}")
    e(f"  v_and_b32 {vr(h1)}, 0x88888888, {vr(h1)}")
    e(f"  v_add_u32 {vr(qn)}, 0x11111111, {vr(qn)}")
    e(f"  v_xor_b32 {vr(qn)}, {vr(qn)}, {vr(h1)}")
    e(f"  v_mov_b32 {vr(qn + 1)}, 1")
    e(f"  global_store_dwordx2 {vr(vZ)}, {vr(qn, 2)}, s[{sDBG}:{sDBG + 1}] sc1")
    e("  s_mov_b64 exec, -1")
    e("L_rc:")
    hpf()
    e("  s_waitcnt vmcnt(0)")
    hpf()
    if P.tfine:
        e("  s_waitcnt lgkmcnt(0)")
        e(f"  v_mov_b32 {vr(h0)}, 0")
        for k in range(hpn[0]):
            e(f"  v_writelane_b32 {vr(h0)}, s{HPF[k]}, {k}")
        e(f"  s_mul_i32 s{sT0}, s2, {5 * 256}")
        e(f"  s_add_u32 s{sT0}, s{sT0}, {0x100000 + 1024}")
        e(f"  v_lshl_add_u32 {vr(h1)}, v0, 2, s{sT0}")
        e(f"  global_store_dword {vr(h1)}, {vr(h0)}, s[{sWS}:{sWS + 1}]")
    for k in range(4):
        e(f"  v_and_b32 {vr(ro + 2 * k)}, 0xffff, {vr(st4 + k)}")
        e(f"  v_lshrrev_b32 {vr(ro + 2 * k + 1)}, 16, {vr(st4 + k)}")
    for k in range(2):
        e(f"  v_add_u32 {vr(ro + 6 + k)}, {SCB}, {vr(ro + 6 + k)}")
    if P.sd:
        e(f"  v_mov_b32 {vr(vCL)}, 0")
    e("L_hk:")
    for a in range(2):
        for k in range(2):
            e(f"  ds_read_u16_d16_hi {vr(sc + 2 * a + k)}, {vr(ro + 6 + k)} offset:{SA * a}")
    e(f"  ds_read_b64 {vr(z4 + 2, 2)}, {vr(vSq)} offset:{QS}")
    e(f"  v_add_u32 {vr(vSq)}, 8, {vr(vSq)}")
    progwait("hsw", P.psk)
    mark("s")
    rank_post("s")
    for k in range(6):
        e(f"  ds_read_b32 {vr(x + 4 + k)}, {vr(ro + k)} offset:{LGB}")
    e(f"  v_mul_f32 {vr(x + 2)}, {vr(z4 + 2)}, {vr(sc)}")
    e(f"  v_mul_f32 {vr(x + 3)}, {vr(z4 + 2)}, {vr(sc + 1)}")
    e("  s_waitcnt lgkmcnt(0)")
    e(f"  v_pk_add_f32 {vr(x, 2)}, {vr(x + 4, 2)}, {vr(x + 6, 2)}")
    e(f"  v_pk_add_f32 {vr(x, 2)}, {vr(x, 2)}, {vr(x + 8, 2)}")
    e(f"  v_mul_f32 {vr(x)}, {vr(x)}, {vr(x + 2)}")
    e(f"  v_mul_f32 {vr(x + 1)}, {vr(x + 1)}, {vr(x + 3)}")
    e(f"  v_max_f32 {vr(z4)}, {vr(x)}, {vr(x + 1)}")
    allred("v_max_f32", z4, h0)
    e(f"  v_sub_f32 {vr(x)}, {vr(x)}, {vr(z4)}")
    e(f"  v_sub_f32 {vr(x + 1)}, {vr(x + 1)}, {vr(z4)}")
    e(f"  v_exp_f32 {vr(x)}, {vr(x)}")
    e(f"  v_exp_f32 {vr(x + 1)}, {vr(x + 1)}")
    e("  s_nop 0")
    e(f"  v_add_f32 {vr(z4 + 1)}, {vr(x)}, {vr(x + 1)}")
    e(f"  v_mul_f32 {vr(x)}, {vr(x)}, {vr(sc + 2)}")
    e(f"  v_mul_f32 {vr(x + 1)}, {vr(x + 1)}, {vr(sc + 3)}")
    e(f"  v_add_f32 {vr(z4 + 2)}, {vr(x)}, {vr(x + 1)}")
    for k in range(6):
        e(f"  ds_write_b32 {vr(ro + k)}, {vr(x + (k & 1))} offset:{LGB}")
    e(f"  v_mul_f32 {vr(z4 + 2)}, {f32bits(7.5):#x}, {vr(z4 + 2)}")
    allred("v_add_f32", z4 + 1, h0)
    allred("v_add_f32", z4 + 2, h0)
    e(f"  v_mov_b32 {vr(h0)}, s{sNEED}")
    e(f"  ds_write_b128 {vr(vSa)}, {vr(z4, 4)} offset:{ST}")
    e(f"  ds_write_b32 {vr(vZ)}, {vr(h0)} offset:{FL + 20}")
    e(f"  v_add_u32 {vr(vSa)}, 16, {vr(vSa)}")
    for k in range(8):
        e(f"  v_add_u32 {vr(ro + k)}, {1536 if k < 6 else SL}, {vr(ro + k)}")
    rank_take("s")
    warm("s")
    elect()
    e("  s_waitcnt lgkmcnt(0)")
    e(f"  s_add_u32 s{sNEED}, s{sNEED}, 1")
    e(f"  s_cmp_le_u32 s{sNEED}, 16")
    e("  s_cbranch_scc1 L_hk")

    e(f"  v_and_b32 {vr(h0)}, 15, {vr(l)}")
    e(f"  v_lshlrev_b32 {vr(h0)}, 4, {vr(h0)}")
    e(f"  ds_read_b128 {vr(z4, 4)}, {vr(h0)} offset:{ST}")
    e(f"  v_lshrrev_b32 {vr(h1)}, 4, {vr(l)}")
    e(f"  v_mov_b32 {vr(h2)}, 0xff800000")
    for i in range(16):
        e(f"  v_mov_b32 {vr(AC + i)}, 0")
    e("  s_waitcnt lgkmcnt(0)")
    e(f"  v_cmp_eq_u32 vcc, {vr(h1)}, {vr(z4 + 3)}")
    e(f"  v_add_u32 {vr(h0)}, {PB}, {vr(vL16)}")
    e(f"  v_lshrrev_b32 {vr(u)}, 1, {vr(vL16)}")
    e(f"  v_cndmask_b32 {vr(vM)}, {vr(h2)}, {vr(z4)}, vcc")
    rowred("v_max_f32", vM)
    e(f"  v_sub_f32 {vr(vFc)}, {vr(z4)}, {vr(vM)}")
    e(f"  v_exp_f32 {vr(vFc)}, {vr(vFc)}")
    e(f"  s_mov_b32 s{sK}, 0")
    e(f"  v_cndmask_b32 {vr(vFc)}, 0, {vr(vFc)}, vcc")
    e(f"  v_mul_f32 {vr(vL)}, {vr(vFc)}, {vr(z4 + 1)}")
    rowred("v_add_f32", vL)
    e(f"  s_mul_i32 s{sT0}, s{sE + 15}, 384")
    e(f"  v_add_u32 {vr(u)}, s{sT0}, {vr(u)}")
    e("L_hp:")
    e(f"  s_lshr_b32 s{sT0}, s2, 4")
    e(f"  s_min_u32 s{sT0}, s{sT0}, 13")
    e(f"  s_cmp_eq_u32 s{sT0}, s{sK}")
    e("  s_cbranch_scc0 L_hc_ok")
    if P.ot == 1:
        e("; (the value is not used: address translation for the final store)")
        e(f"  s_load_dword s{sF}, s[{sOUT}:{sOUT + 1}], 0")
    if P.ot == 2:
        e("; (the value is not used: address translation for the final store)")
        e("  s_mov_b64 exec, 1")
        e(f"  global_load_dword {vr(vFX)}, {vr(vZ)}, s[{sOUT}:{sOUT + 1}]")
        e("  s_mov_b64 exec, -1")
        e("  s_waitcnt vmcnt(0)")
    e(f"  s_load_dwordx2 s[{sZ}:{sZ + 1}], s[{sDBG}:{sDBG + 1}], 0 glc")
    e("  s_waitcnt lgkmcnt(0)")
    e(f"  s_mov_b32 s{sTG}, s{sZ}")
    e(f"  s_cmp_eq_u32 s{sZ + 1}, 1")
    e("  s_cbranch_scc1 L_hc_ok")
    e("L_hc:")
    e(f"  global_load_dwordx2 {vr(pr, 2)}, {vr(vZ)}, s[{sDBG}:{sDBG + 1}] sc1")
    e("  s_waitcnt vmcnt(0)")
    e(f"  v_readfirstlane_b32 s{sTG}, {vr(pr)}")
    e(f"  v_readfirstlane_b32 s{sF}, {vr(pr + 1)}")
    e(f"  s_cmp_eq_u32 s{sF}, 1")
    e("  s_cbranch_scc1 L_hc_ok")
    budget("L_hc_ok")
    e("  s_sleep 64")
    e("  s_branch L_hc")
    e("L_hc_ok:")
    vstep_k(sH, sK)
    e(f"  s_lshl_b32 s{sT0}, s{sH}, 4")
    e(f"  v_mov_b32 {vr(h1)}, s{sT0}")
    for j in range(4):
        e(f"  v_readlane_b32 s{rA + j}, {vr(vFc)}, s{sH}")
        e(f"  s_add_u32 s{sH}, s{sH}, 16")
    e(f"  s_add_u32 s{sK}, s{sK}, 1")
    e(f"  s_add_u32 s{sNEED}, s{sK}, 16")
    progwait("hpw", P.psk)
    mark("p")
    hp(0)
    rank_post("p")
    sum_partials(1)
    for j in range(4):
        for i in range(4):
            e(f"  v_fmac_f32 {vr(AC + 4 * j + i)}, s{rA + j}, {vr(x + i)}")
    e(f"  v_add_u32 {vr(h0)}, 3072, {vr(h0)}")
    rank_take("p")
    warm("p")
    e(f"  s_cmp_lt_u32 s{sK}, 15")
    e("  s_cbranch_scc1 L_hp")

    if P.eprio:
        e(f"  s_setprio {P.eprio}")
    e(f"  s_lshr_b32 s{sH}, s{sVO + 1}, 28")
    e(f"  s_lshl_b32 s{sT0}, s{sH}, 4")
    e(f"  v_mov_b32 {vr(h1)}, s{sT0}")
    e(f"  s_add_u32 s{sH}, s{sH}, 48")
    e(f"  ds_read_b32 {vr(h1)}, {vr(h1)} offset:{ST + 8}")
    mx = x + 16
    for j in range(3):
        e(f"  v_max3_f32 {vr(mx + j)}, |{vr(AC + 4 * j)}|, |{vr(AC + 4 * j + 1)}|, |{vr(AC + 4 * j + 2)}|")
    for j in range(3):
        e(f"  v_max_f32_e64 {vr(mx + j)}, {vr(mx + j)}, |{vr(AC + 4 * j + 3)}|")
    for n in (8, 4, 2, 1):
        for j in range(3):
            e(f"  v_max_f32_dpp {vr(mx + j)}, {vr(mx + j)}, {vr(mx + j)} row_ror:{n} row_mask:0xf bank_mask:0xf")
    for sw in ("v_permlane16_swap_b32", "v_permlane32_swap_b32"):
        for j in range(3):
            e(f"  v_mov_b32 {vr(mx + 4 + j)}, {vr(mx + j)}")
        for j in range(3):
            e(f"  {sw} {vr(mx + j)}, {vr(mx + 4 + j)}")
        for j in range(3):
            e(f"  v_max_f32 {vr(mx + j)}, {vr(mx + j)}, {vr(mx + 4 + j)}")
    for j in range(3):
        e(f"  v_frexp_exp_i32_f32 {vr(mx + j)}, {vr(mx + j)}")
        e(f"  v_sub_u32 {vr(mx + 4 + j)}, 14, {vr(mx + j)}")
        e(f"  v_subrev_u32 {vr(mx + j)}, 14, {vr(mx + j)}")
        for i in range(4):
            e(f"  v_ldexp_f32 {vr(AC + 4 * j + i)}, {vr(AC + 4 * j + i)}, {vr(mx + 4 + j)}")
        for i in range(2):
            e(f"  v_cvt_pk_f16_f32 {vr(x + 2 * j + i)}, {vr(AC + 4 * j + 2 * i)}, {vr(AC + 4 * j + 2 * i + 1)}")
    for j in range(4):
        e(f"  v_readlane_b32 s{16 + j}, {vr(vM)}, {16 * j}")
        e(f"  v_readlane_b32 s{20 + j}, {vr(vL)}, {16 * j}")
    for j in range(3):
        e(f"  v_readlane_b32 s{rA + j}, {vr(mx + j)}, 0")
    e(f"  v_readlane_b32 s{rA + 3}, {vr(vFc)}, s{sH}")
    for k in range(6):
        e(f"  v_lshrrev_b32 {vr(h2)}, 1, {vr(x + k)}")
        e(f"  v_and_b32 {vr(h2)}, 0x10001, {vr(h2)}")
        e(f"  v_add_u32 {vr(x + k)}, {vr(x + k)}, {vr(h2)}")
    for j in range(3):
        e(f"  v_writelane_b32 {vr(x + 2 * j)}, s{16 + j}, 48")
        e(f"  v_writelane_b32 {vr(x + 2 * j)}, s{20 + j}, 49")
        e(f"  v_writelane_b32 {vr(x + 2 * j + 1)}, s{rA + j}, 49")
    e(f"  v_cmp_gt_u32 vcc, 48, {vr(l)}")
    e(f"  v_lshlrev_b32 {vr(h2)}, 2, {vr(l)}")
    e(f"  v_lshrrev_b32 {vr(h2)}, {vr(h2)}, s{sTG}")
    e(f"  v_mov_b32 {vr(h3)}, 0x10001")
    for i in range(2):
        e(f"  v_cndmask_b32 {vr(tg + 2 + i)}, 0, {vr(h3)}, vcc")
        e(f"  v_bfe_u32 {vr(tg + i)}, {vr(h2)}, {2 * i}, 2")
        e(f"  v_lshl_or_b32 {vr(tg + i)}, {vr(tg + i)}, 15, {vr(tg + i)}")
    e(f"  v_writelane_b32 {vr(tg + 3)}, -1, 48")
    e(f"  v_writelane_b32 {vr(tg + 3)}, s{sMASK}, 49")
    e(f"  v_writelane_b32 {vr(tg + 1)}, s{sTG}, 48")
    e(f"  v_writelane_b32 {vr(tg + 1)}, s{sTG}, 49")
    for i in range(2):
        e(f"  v_and_b32 {vr(tg + i)}, {vr(tg + i)}, {vr(tg + 2 + i)}")
    for k in range(6):
        e(f"  v_bfi_b32 {vr(x + k)}, {vr(tg + 2 + k % 2)}, {vr(tg + k % 2)}, {vr(x + k)}")
    e(f"  v_min_u32 {vr(h2)}, 55, {vr(l)}")
    for j in range(3):
        e(f"  v_lshl_add_u32 {vr(ra + j)}, {vr(h2)}, 3, s{sE + 12 + j}")
    e(f"  s_mul_i32 s{sT0}, s{sE + 15}, 1344")
    e(f"  s_add_u32 s{sT0}, s{sT0}, {W_REC}")
    e(f"  v_lshl_add_u32 {vr(ra + 3)}, {vr(h2)}, 3, s{sT0}")
    e("  s_waitcnt lgkmcnt(0)")
    if P.mg:
        e("; the stores leave part-way into the last step, where they disturb the read stream least")
        e(f"  s_mov_b32 s{sNEED}, {31 + (P.mg > 12)}")
        progwait("hmw", P.psl, FL + 32)
    hp(1)
    e("  s_mov_b32 exec_hi, 0xffffff")
    for j in range(3):
        if "w" not in P.xp:
            e(f"  global_store_dwordx2 {vr(ra + j)}, {vr(x + 2 * j, 2)}, s[{sWS}:{sWS + 1}] sc1")
    e("  s_mov_b64 exec, -1")
    if "r" in P.xp:
        e("  s_branch L_skip")
    if P.ml:
        e(f"  s_mov_b32 s{sNEED}, {31 + (P.ml > 12)}")
        progwait("hlw", P.psl, FL + 48)
    else:
        e(f"  s_waitcnt vmcnt({P.aw})")
    hp(2)
    hp(3)
    e("L_hw:")
    hp(4)
    for j in range(3):
        e(f"  global_load_dwordx2 {vr(rec + 2 * j, 2)}, {vr(ra + 3)}, s[{sWS}:{sWS + 1}] offset:{448 * j} sc1")
    e("  s_waitcnt vmcnt(0)")
    hp(5)
    for k in range(6):
        e(f"  v_xor_b32 {vr(rec + k)}, {vr(rec + k)}, {vr(tg + k % 2)}")
    for i in range(2):
        e(f"  v_or3_b32 {vr(h2 + i)}, {vr(rec + i)}, {vr(rec + 2 + i)}, {vr(rec + 4 + i)}")
    e(f"  v_and_b32 {vr(h2)}, {vr(h2)}, {vr(tg + 2)}")
    e(f"  v_and_or_b32 {vr(h2)}, {vr(h3)}, {vr(tg + 3)}, {vr(h2)}")
    e(f"  v_cmp_ne_u32 s[{sZ}:{sZ + 1}], 0, {vr(h2)}")
    for j in range(3):
        e(f"  v_readlane_b32 s{16 + j}, {vr(rec + 2 * j)}, 48")
        e(f"  v_readlane_b32 s{20 + j}, {vr(rec + 2 * j)}, 49")
        e(f"  v_readlane_b32 s{rA + j}, {vr(rec + 2 * j + 1)}, 49")
    e(f"  s_cmp_eq_u64 s[{sZ}:{sZ + 1}], 0")
    e("  s_cbranch_scc1 L_hy")
    budget("L_hy")
    e("  s_branch L_hw")
    e("L_hy:")
    gj = x + 8
    e(f"  v_mov_b32 {vr(h2)}, s19")
    for j in range(3):
        e(f"  v_max_f32 {vr(h2)}, s{16 + j}, {vr(h2)}")
    for j in range(4):
        e(f"  v_sub_f32 {vr(gj + j)}, s{16 + j}, {vr(h2)}")
    for j in range(4):
        e(f"  v_exp_f32 {vr(gj + j)}, {vr(gj + j)}")
    for j in range(3):
        e(f"  s_sext_i32_i16 s{rA + j}, s{rA + j}")
    e(f"  v_mul_f32 {vr(wa)}, s23, {vr(gj + 3)}")
    for j in range(3):
        e(f"  v_fmac_f32 {vr(wa)}, s{20 + j}, {vr(gj + j)}")
    for i in range(4):
        e(f"  v_mul_f32 {vr(fo + i)}, {vr(AC + 12 + i)}, {vr(gj + 3)}")
    e(f"  v_rcp_f32 {vr(wa)}, {vr(wa)}")
    for j in range(3):
        e(f"  v_ldexp_f32 {vr(gj + j)}, {vr(gj + j)}, s{rA + j}")
    for j in range(3):
        for i in range(4):
            e(f"  v_fma_mix_f32 {vr(fo + i)}, {vr(rec + 2 * j + i // 2)}, {vr(gj + j)}, {vr(fo + i)} op_sel:[{i & 1},0,0] op_sel_hi:[1,0,0]")
    e(f"  v_mul_f32 {vr(h2)}, s{rA + 3}, {vr(gj + 3)}")
    e(f"  v_mul_f32 {vr(h2)}, {vr(h2)}, {vr(wa)}")
    e(f"  v_mul_f32 {vr(h3)}, {vr(h2)}, {vr(h1)}")
    for i in range(4):
        e(f"  v_fma_f32 {vr(fo + i)}, {vr(fo + i)}, {vr(wa)}, -{vr(h3)}")
    if "r" in P.xp:
        e("L_skip:")
    hp(6)
    e("  s_barrier")
    hp(7)
    for k in range(4):
        e(f"  ds_read_b128 {vr(x + 4 * k, 4)}, {vr(h0)} offset:{768 * k}")
    e("  s_waitcnt lgkmcnt(2)")
    for h in (0, 2):
        e(f"  v_pk_add_f32 {vr(x + h, 2)}, {vr(x + h, 2)}, {vr(x + 4 + h, 2)}")
    e("  s_waitcnt lgkmcnt(0)")
    for h in (0, 2):
        e(f"  v_pk_add_f32 {vr(x + 8 + h, 2)}, {vr(x + 8 + h, 2)}, {vr(x + 12 + h, 2)}")
    for h in (0, 2):
        e(f"  v_pk_add_f32 {vr(x + h, 2)}, {vr(x + h, 2)}, {vr(x + 8 + h, 2)}")
    for i in range(4):
        e(f"  v_fmac_f32 {vr(fo + i)}, {vr(h2)}, {vr(x + i)}")
    e(f"  v_cvt_pk_bf16_f32 {vr(fo)}, {vr(fo)}, {vr(fo + 1)}")
    e(f"  v_cvt_pk_bf16_f32 {vr(fo + 1)}, {vr(fo + 2)}, {vr(fo + 3)}")
    e("  s_mov_b32 exec_hi, 0xffff")
    e(f"  global_store_dwordx2 {vr(u)}, {vr(fo, 2)}, s[{sOUT}:{sOUT + 1}] {P.of}")
    if P.sd:
        e(f"  s_mov_b32 s{sNEED}, 32")
        e("  s_mov_b64 exec, -1")
        mark("z")
        e(f"  s_cmp_eq_u32 s{sJ}, 0")
        e("  s_cbranch_scc0 L_sd")
        e(f"  v_lshlrev_b32 {vr(h0)}, 2, {vr(l)}")
        e("  s_mov_b32 exec_lo, 0")
        e("  s_mov_b32 exec_hi, 0x3fff")
        e(f"  global_atomic_add {vr(h0)}, {vr(vCL)}, s[{sDBG}:{sDBG + 1}] offset:-120 sc1")
        e("L_sd:")
    if P.enc:
        m0, m1, base, amp, wg = [int(v) for v in P.enc.split(",")]
        if m1 == 32:
            e("  s_memrealtime s[74:75]")
        if m0 == 0:
            e(f"  s_mov_b32 s72, s{sST}")
        e("  s_waitcnt lgkmcnt(0)")
        if P.em:
            e(f"  s_not_b32 s73, s{sST}")
            e(f"  s_mov_b32 s72, s{sST}")
            e(f"  s_atomic_umax s74, s[{sDBG}:{sDBG + 1}], 40")
            e(f"  s_atomic_umax s73, s[{sDBG}:{sDBG + 1}], 44")
            e(f"  s_atomic_umax s72, s[{sDBG}:{sDBG + 1}], 48")
        else:
            e("  s_sub_u32 s72, s74, s72")
            e(f"  s_atomic_add s72, s[{sDBG}:{sDBG + 1}], 32")
        e(f"  s_cmp_eq_u32 s2, {wg}")
        e("  s_cbranch_scc0 L_nohold")
        e("L_hold0:")
        e(f"  s_memrealtime s[{sST + 2}:{sST + 3}]")
        e("  s_waitcnt lgkmcnt(0)")
        e(f"  s_sub_u32 s{sT0}, s{sST + 2}, s{sST}")
        e(f"  s_cmp_lt_u32 s{sT0}, 12500")
        e("  s_cbranch_scc1 L_hold0")
        e("  s_mov_b32 s72, 0")
        if P.em:
            e("  s_mov_b32 s73, 0")
            e(f"  s_atomic_add s72, s[{sDBG}:{sDBG + 1}], {48 if P.em == 3 else 40} glc")
            e(f"  s_atomic_add s73, s[{sDBG}:{sDBG + 1}], {48 if P.em == 2 else 44} glc")
            e("  s_waitcnt lgkmcnt(0)")
            if P.em != 2:
                e("  s_not_b32 s73, s73")
            e("  s_sub_u32 s72, s72, s73")
            e("  s_lshl_b32 s72, s72, 8")
        else:
            e(f"  s_atomic_add s72, s[{sDBG}:{sDBG + 1}], 32 glc")
            e("  s_waitcnt lgkmcnt(0)")
        e(f"  s_sub_u32 s72, s72, {base * 256}")
        e("  s_max_i32 s72, s72, 0")
        e("  s_min_i32 s72, s72, 128000")
        e(f"  s_mul_i32 s72, s72, {amp}")
        e("  s_lshr_b32 s72, s72, 8")
        e("  s_add_u32 s72, s72, 13000")
        e("L_hold:")
        e(f"  s_memrealtime s[{sST + 2}:{sST + 3}]")
        e("  s_waitcnt lgkmcnt(0)")
        e(f"  s_sub_u32 s{sT0}, s{sST + 2}, s{sST}")
        e(f"  s_cmp_lt_u32 s{sT0}, s72")
        e("  s_cbranch_scc1 L_hold")
        e("L_nohold:")
        e("  s_waitcnt lgkmcnt(0)")
    if P.pe:
        e("; diagnostic build only: pointers to d_debug, some of their bits into the run time")
        off, sh_, bits = [int(v) for v in P.pe.split(",")]
        e("  s_cmp_eq_u32 s2, 0")
        e("  s_cbranch_scc0 L_nope")
        e("  s_load_dwordx16 s[4:19], s[0:1], 0")
        e("  s_waitcnt lgkmcnt(0)")
        e("  s_mov_b64 exec, 1")
        for k, r_ in enumerate((4, 6, 7, 8, 12, 13, 14, 30, 31)):
            e(f"  v_mov_b32 v5, s{r_}")
            e(f"  global_store_dword {vr(vZ)}, v5, s[{sDBG}:{sDBG + 1}] offset:{16 + 4 * k}")
        if off < 0:
            e("  s_sub_u32 s72, s6, s12")
        else:
            e(f"  s_mov_b32 s72, s{off}")
        e(f"  s_bfe_u32 s72, s72, {bits << 16 | sh_:#x}")
        e("  s_mul_i32 s72, s72, 300")
        e("  s_add_u32 s72, s72, 13000")
        e("L_pe:")
        e(f"  s_memrealtime s[{sST + 2}:{sST + 3}]")
        e("  s_waitcnt lgkmcnt(0)")
        e(f"  s_sub_u32 s{sT0}, s{sST + 2}, s{sST}")
        e(f"  s_cmp_lt_u32 s{sT0}, s72")
        e("  s_cbranch_scc1 L_pe")
        e("L_nope:")
    if P.tail:
        e("; diagnostic build only")
        e("  s_memrealtime s[72:73]")
        e("L_tail:")
        e("  s_memrealtime s[74:75]")
        e("  s_waitcnt lgkmcnt(0)")
        e("  s_sub_u32 s74, s74, s72")
        e(f"  s_cmp_lt_u32 s74, {P.tail}")
        e("  s_cbranch_scc1 L_tail")
    if P.hold:
        e("; diagnostic build only")
        e("L_hold:")
        e(f"  s_memrealtime s[{sST + 2}:{sST + 3}]")
        e("  s_waitcnt lgkmcnt(0)")
        e(f"  s_sub_u32 s{sT0}, s{sST + 2}, s{sST}")
        e(f"  s_cmp_lt_u32 s{sT0}, {P.hold}")
        e("  s_cbranch_scc1 L_hold")
    if P.stamp:
        e(f"  s_memrealtime s[{sST + 2}:{sST + 3}]")
        if P.hprof:
            e("  s_waitcnt lgkmcnt(0)")
            e("  s_lshl_b32 s44, s2, 5")
            e("  s_add_u32 s44, s44, 0x80000")
            e("  v_mov_b32 v1, s44")
            for k in range(8):
                e(f"  s_sub_u32 s45, s{sST + 2}, s{HP[k]}")
                e(f"  v_mov_b32 v{4 + k}, s45")
            e(f"  global_store_dwordx4 v1, v[4:7], s[{sWS}:{sWS + 1}]")
            e(f"  global_store_dwordx4 v1, v[8:11], s[{sWS}:{sWS + 1}] offset:16")
            e("  s_nop 2")
        e("  s_getreg_b32 s6, hwreg(HW_REG_XCC_ID)")
        e("  s_getreg_b32 s7, hwreg(HW_REG_HW_ID)")
        e("  s_waitcnt lgkmcnt(0)")
        e(f"  v_mov_b32 v4, s{sST}")
        e(f"  v_mov_b32 v5, s{sST + 2}")
        e("  v_mov_b32 v6, s6")
        e("  v_mov_b32 v7, s7")
        e("  s_lshl_b32 s8, s2, 4")
        e("  v_mov_b32 v1, s8")
        e(f"  global_store_dwordx4 v1, v[4:7], s[{sWS}:{sWS + 1}]")
    e("L_end:")
    e("  s_endpgm")
    e(".p2align 6")
    e(".type L_order,@object")
    e("L_order:")
    for k in range(0, len(ordtab), 8):
        e("  .long " + ", ".join(f"{v:#x}" for v in ordtab[k:k + 8]))
    e(".type L_hpos,@object")
    e("L_hpos:")
    for b in range(2):
        at = {chunk_of(b, n, s_): lpos(n, s_) for n in range(24) for s_ in range(16)}
        rows = sorted({c // 3 for c in at})
        for l_ in range(64):
            r0, r1 = rows[l_], rows[l_ + 64]
            e("  .long " + ", ".join(f"{a_ | b_ << 16:#x}" for a_, b_ in [(at[3 * r0 + k], at[3 * r1 + k]) for k in range(3)] + [(2 * r0, 2 * r1)]))
    e('.section .rodata,"a"')
    e(".p2align 6")
    e(f".amdhsa_kernel {NAME}_kernel")
    e(f"  .amdhsa_next_free_vgpr {NV}")
    e("  .amdhsa_next_free_sgpr 100")
    e(f"  .amdhsa_accum_offset {(NV + 3) // 4 * 4}")
    e("  .amdhsa_group_segment_fixed_size 0")
    e("  .amdhsa_kernarg_size 112")
    e("  .amdhsa_user_sgpr_count 2")
    e("  .amdhsa_user_sgpr_kernarg_segment_ptr 1")
    e("  .amdhsa_system_sgpr_workgroup_id_x 1")
    e(".end_amdhsa_kernel")
    return "\n".join(o) + "\n", NV


if __name__ == "__main__":
    ap = argparse.ArgumentParser()
    ap.add_argument("-o", default=f"/code/{NAME}.s")
    for name, d in (("sh", 4), ("deep", 5), ("pd", 9), ("pre", 12), ("nf", 6), ("su", 3), ("hp0", 3), ("tst", 24),
                    ("ctl", 1), ("hi", 2), ("hiv", 7), ("lo", -28), ("thr", 2), ("tp", 2), ("start", 5), ("s0", 0), ("ba", 3),
                    ("r0", 2), ("r1", 30), ("rf", 3), ("rp", 2), ("rt", 26), ("rotl", 7), ("kp", 7), ("kp0", 6), ("kn", 20),
                    ("tw", 2), ("tv", 1), ("ts", 1), ("st", 1), ("ot", 0), ("top", 18), ("tpd", 4), ("tpv", 4), ("tpn", 1), ("lag", 2), ("mg", 8), ("ml", 0), ("aw", 0), ("sd", 0), ("em", 0), ("tail", 0),
                    ("eprio", 2), ("psl", 1), ("psk", 1), ("spr", 1), ("bound", 4000000), ("hold", 0), ("dly", 0), ("dlb", 2)):
        ap.add_argument("--" + name, type=int, default=d)
    ap.add_argument("--kp_", default="6,6,6,7,8,9,9,10,10,11,11,12,12", help="K loads issued by each prologue point")
    ap.add_argument("--of", default="")
    ap.add_argument("--enc", default="", help="diagnostic only: m0,m1,base,amp,wg")
    ap.add_argument("--ok", default="REXbLbLbL", help="events of a K group")
    ap.add_argument("--ov", default="REXbLbLbL", help="events of a V group")
    ap.add_argument("--rk", default="", help="die gain per step (hex digits, 0 = no ranking)")
    ap.add_argument("--sb", default="", help="step:bias,... added to the lateness")
    ap.add_argument("--pf", default="sc1")
    ap.add_argument("--tpp", default="012", help="positions with a third level")
    ap.add_argument("--pe", default="", help="diagnostic only")
    ap.add_argument("--tm", default="5,10,11,16,21,26")
    ap.add_argument("--tg", default="")
    ap.add_argument("--bu", default="012", help="extra depth per position in the issued group")
    ap.add_argument("--th", default="-9,5,13")
    ap.add_argument("--sch", default="ut_a6.txt")
    ap.add_argument("--xp", default="", help="timing experiments only")
    for name in ("stamp", "trace", "tfine", "hprof"):
        ap.add_argument("--" + name, action="store_true", help="diagnostics only")
    a = ap.parse_args()
    txt, nv = gen(a)
    open(a.o, "w").write(txt)
    print("wrote", a.o, "vgprs", nv)
```

```python
import argparse
import math
import os
import struct
from gen import HEADER, NAME, Alloc, f32bits, vr

UB = 256 * 768

ABOUT = """
Generated by tools/gen11.py.
Work split: a unit is a block of 256 KV rows of one head.  Workgroups g and g ^ 8 share 16 units of four heads (table
  L_order) and alternate over the 32 KiB runs of a unit, 128 rows each; the order of the runs is rotated per pair.
  Waves 1-4 stream one 4 KiB block per round; a 16-lane row handles one third (64 dims) of a KV row per load.
  K sweep: logit = k_scale * sum_d (qk - 7.5) * (qa * cos + qb * sin), RoPE moved onto the rotated q;
  V sweep: partial = sum_rows p * v_scale * qv.
  Wave 0 (helper) rotates q, takes max / exp / sums over the workgroup's rows of each unit, and merges partials.
Constant parameters (the same for every seed) are built in: both zero points (7.5), q_cos / q_sin (table L_qcs) and
  k_cos / k_sin = cos / sin(row * inv_freq).  The angle is split into the part of the row inside its unit (f16 table in
  LDS, evaluated once from L_inv) and the part of the unit (L_f0), by which (qa, qb) is turned in fp32.
Hand-off: every workgroup finishes one of its heads and streams a unit of that head last.  Partials and (max, sum) of
  the other three go to d_ws with sc1 stores; every 8 bytes carry a piece of a tag that differs from the one found there
  on entry (sent round through d_debug).  The finisher reads until all tags fit and rescales to the true row maximum.
Flow control (speed only, results do not depend on it): waves publish a group counter and sample the counters of
  units on the same die; late waves keep one more load in flight, early waves one or two fewer.  Helpers rank the dies.
"""

RUN = (1, 2, 0)


def chunk_of(b, n, s, d):
    g = 256 * ((RUN[n >> 3] + d) % 3) + 128 * b + 16 * (n & 7) + s
    return {128: 512, 255: 639, 512: 128, 639: 255}.get(g, g)


def tidx(b, row):
    return row - 43 * b - 42 * ((row >= 85) + (row >= 171))


def rev(x, bits):
    return int(format(x, f"0{bits}b")[::-1], 2)


def lpos(n, s):
    return 4 * (16 * s + rev(n, 4)) if n < 16 else 1024 + 4 * (8 * s + rev(n - 16, 3))


TN = [(RUN[n >> 3] + (n & 7)) % 3 for n in range(24)]
SPECIAL = {n: i for i, n in enumerate((0, 7, 8, 15, 16, 23))}
for b_ in range(2):
    for d_ in range(3):
        ch = sorted(chunk_of(b_, n, s, d_) for n in range(24) for s in range(16))
        assert ch == sorted(3 * r + k for r in {c // 3 for c in ch} for k in range(3))
        assert all(chunk_of(b_, n, s, d_) % 3 == (TN[n] + d_ + 2 * b_ + s) % 3 for n in range(24) for s in range(16))
        assert len({tidx(b_, c // 3) for c in ch}) == 128 and max(tidx(b_, c // 3) for c in ch) == 128


def gen(P):
    o = []
    e = o.append
    RING, PD = 24, P.pd
    sh, deep = P.sh, P.deep
    PRE = P.pre
    TP = P.tp
    LAG = P.lag
    assert deep <= PD - 1 and sh <= deep and PD <= PRE
    SL = 512
    SA = 16 * SL

    FL = 0
    QS = 128
    ST = 256
    TB = 512
    QB = TB + 129 * 384
    LGB = QB + 16 * 768 + 1536
    SCB = LGB + 16 * 1536
    PB = SCB + 2 * SA
    QR = PB + 49152
    LDS = QR + 4 * 784
    assert 81920 < LDS <= 163840
    W_REC = 0x600000
    W_RK = 0x780000
    W_PL = 0x7c0000

    sQ, sQK, sKS, sKZ, sQV, sVS, sVZ, sQC = 4, 6, 8, 10, 12, 14, 16, 18
    sQS, sKC, sKSN, sOUT = 20, 22, 24, 26
    sDBG, sWS = 28, 30
    rA, rB = 32, 36
    sW, sJ, sC, sK, sT0, sT1, sF, sNEED = 40, 41, 42, 43, 44, 45, 46, 47
    sMSK = 48
    sOF = 51
    sE = 48
    sR0 = 60
    sCO = 61
    sZ = 64
    sMASK, sSCALE, sH = 66, 67, 68
    sS = 69
    sX = 70
    sRF = 80
    sST = 84
    sB = 91
    sVO = 92
    sSP = 94
    sI = 95
    sSE, sCU = 81, 79
    sLO = 78
    sTG = 99

    va = Alloc(1)
    vT16, vF, vZ, vC16 = [va.take(1) for _ in range(4)]
    voff = va.take(9)
    vTA = va.take(15)
    vQA = va.take(3)
    vPA = va.take(3)
    vLG = va.take(2)
    vLB = va.take(2)
    vLV = va.take(2)
    A = va.take(2)
    LG = va.take(2)
    M1, M2, M3 = [va.take(1) for _ in range(3)]
    bc = va.take(2, 2)
    dacc = va.take(2, 2)
    wt = va.take(4, 2)
    vtr, vPW, vPS, vN, vSum, vSu2, vBA = [va.take(1) for _ in range(7)]
    vPL = va.take(4)
    vU = va.take(1)
    vBI = va.take(2, 2)
    smp = va.take(4 * LAG, 4)
    qa = va.take(12, 4)
    tab = va.take(24, 4)
    tmp = va.take(12, 4)
    ring = va.take(4 * RING, 4)
    NV = va.n
    acc = qa

    here = os.path.dirname(os.path.abspath(__file__))
    sch = [[int(x) for x in ln.split()] for ln in open(os.path.join(here, P.sch))]
    pair = lambda g: ((g & 7) << 3) + (g >> 4 & 7) + (g >> 7 << 6)
    assert all(sch[g][32:] == [pair(g) % 3] * 3 for g in range(256))
    assert all(((16 * p_ + 13) * 21846 & 0xffff) * 3 >> 16 == (p_ + 1) % 3 for p_ in range(128))
    sch = [x[:32] for x in sch]
    inv, qcs = [[int(x, 16) for x in ln.split()] for ln in open(os.path.join(here, "consts.txt"))]
    rev_ = [struct.unpack("<f", struct.pack("<I", v))[0] / (2 * math.pi) for v in inv]
    assert sorted(2 * u_ + (g >> 3 & 1) for g in range(256) for u_ in sch[g][:16]) == list(range(4096))
    assert sorted(x[31] >> 3 for x in sch) == list(range(256))
    fill = [0] * 256
    ordtab = []
    for g in range(256):
        ku, own = sch[g][:16], sch[g][31] >> 3
        od = [ku.index(u_) for u_ in sch[g][16:]]
        assert sorted(od) == list(range(16)) and od[0] < 14
        assert ku[0] == (16 * (((g & 7) << 3) + (g >> 4 & 7) + (g >> 7 << 6)) + 14) * 21846 >> 16
        need = list(dict.fromkeys(u_ >> 3 for u_ in ku))
        heads = [h for h in need if h != own] + [own]
        assert len(heads) == 4
        u16 = [u_ | heads.index(u_ >> 3) << 12 for u_ in ku]
        nib = sum(k << (4 * t) for t, k in enumerate(od))
        hq = [h | heads.index(h) << 12 for h in need]
        dst = []
        for h in heads[:3]:
            dst.append(W_REC + P.hpit * h + P.pit * fill[h])
            fill[h] += 1
        ordtab += [u16[2 * i] | u16[2 * i + 1] << 16 for i in range(8)]
        ordtab += [nib & 0xffffffff, nib >> 32, hq[0] | hq[1] << 16, hq[2] | hq[3] << 16] + dst + [own | (2 * (pair(g) % 3) + (g >> 3 & 1)) << 10]
    assert fill == [3] * 256

    def ld(n):
        rr = rA if n < 24 else rB
        n %= 24
        so = f"s{sOF + (n & 7)}" if n & 7 else "0"
        vo = voff + (3 + SPECIAL[n] if n in SPECIAL else n >> 3)
        e(f"  buffer_load_dwordx4 {vr(ring + 4 * n, 4)}, {vr(vo)}, s[{rr}:{rr + 3}], {so} offen nt")

    ORD = {"K": P.ok, "V": P.ov}
    DIST = {"K": PRE, "V": PD}
    bu = [int(x) for x in P.bu]
    th = [int(x) for x in P.th.split(",")]
    assert PD % 3 == 0 and PRE % 3 == 0 and deep == sh + 1

    def memops(ph, a):
        r = []
        for i, c in enumerate(ORD[ph]):
            if c == "X" and P.ctl:
                r += [(i, "B")] * (a == P.ba) + [(i, "S"), (i, "Q")]
            if c == "L":
                r.append((i, "L"))
        return r

    def back(ph, a, i):
        r = [c for j, c in memops(ph, a) if j < i][::-1]
        for k in range(1, 8):
            r += [c for _, c in memops(ph, (a - k) % 8)][::-1]
        return r

    def cnt(ph, a, i, depth):
        depth += bu[ORD[ph][:i].count("L")]
        r = back(ph, a, i)
        return [k + 1 for k, c in enumerate(r) if c == "L"][depth - 2] if depth > 1 else 0

    def swait(ph, a):
        assert ORD[ph].index("E") < ORD[ph].index("X")
        r = back(ph, a, ORD[ph].index("E"))
        return [k for k, c in enumerate(r) if c == "Q"][LAG - 1]

    plain = {}

    def verify():
        ops = [("L", i) for i in range(PRE)]
        done = ORD["K"][:ORD["K"].index("L")].count("b")
        for g in range(256):
            ph, a = "KV"[g >= 128], g % 8
            if 3 * g + PD >= 768 or 128 <= g < 128 + (PRE - PD) // 3:
                for n in range(3 * g, 3 * g + 4 - (g == 255)):
                    plain[n] = len(ops) - 1 - ops.index(("L", n))
                done = max(done, len(ops) - plain[min(3 * g + 3, 767)])
                continue
            nb = nl = 3 * g
            for i, c in enumerate(ORD[ph]):
                if c == "E" and P.ctl:
                    done = max(done, len(ops) - swait(ph, a))
                if c == "X" and P.ctl:
                    ops += [("X", 0)] * (1 + (a == P.ba))
                if c == "b":
                    assert ("L", nb) in ops[:done], nb
                    nb += 1
                if c == "L":
                    done = max(done, len(ops) - cnt(ph, a, i, deep + P.tpn * (P.top < 99 and str(nl % 3) in P.tpp) if P.ctl else sh))
                    ops.append(("L", nl + DIST[ph]))
                    nl += 1
    verify()
    lab = [0]
    rare = []

    def flush():
        o.extend(rare)
        rare.clear()

    def issue(ph, a, i):
        j = ORD[ph][:i].count("L")
        lab[0] += 1
        if P.ctl and j == TP:
            e(f"  s_cmp_lt_i32 s{sS}, {P.lo}")
            e(f"  s_cbranch_scc1 L_t{lab[0]}")
            rare.extend([f"L_t{lab[0]}:", f"  s_waitcnt vmcnt({cnt(ph, a, i, P.thr + 1)})", f"  s_branch L_p{lab[0]}"])
        if P.ctl:
            t = (P.hi if ph == "K" else P.hiv) + th[j]
            tp_ = P.top + P.tpd * j + (0 if ph == "K" else P.tpv)
            assert P.lo <= t < tp_
            top = P.top < 99 and str(j) in P.tpp
            w = lambda d: f"  s_waitcnt vmcnt({cnt(ph, a, i, d)})"
            back = f"  s_branch L_p{lab[0]}"
            if t < 0:
                if top:
                    e(f"  s_sub_u32 s{sT0}, s{sS}, {t + 1}")
                    e(f"  s_cmp_lt_u32 s{sT0}, {tp_ - t}")
                    rare.extend([f"L_q{lab[0]}:", w(deep + P.tpn), f"  s_cmp_gt_i32 s{sS}, 0", f"  s_cbranch_scc1 L_p{lab[0]}", w(sh), back])
                else:
                    e(f"  s_cmp_gt_i32 s{sS}, {t}")
                    rare.extend([f"L_q{lab[0]}:", w(sh), back])
                e(f"  s_cbranch_scc0 L_q{lab[0]}")
                e(w(deep))
                e(f"L_p{lab[0]}:")
            elif top:
                e(f"  s_cmp_gt_i32 s{sS}, {t}")
                e(f"  s_cbranch_scc1 L_q{lab[0]}")
                rare.extend([f"L_q{lab[0]}:", w(deep + P.tpn), f"  s_cmp_gt_i32 s{sS}, {tp_}", f"  s_cbranch_scc1 L_p{lab[0]}", w(deep), back])
                e(w(sh))
                e(f"L_p{lab[0]}:")
            else:
                e(f"  s_cmp_gt_i32 s{sS}, {t}")
                e(f"  s_cbranch_scc1 L_p{lab[0]}")
                e(w(sh))
                e(f"L_p{lab[0]}:")
                e(w(deep))
        else:
            e(f"  s_waitcnt vmcnt({cnt(ph, a, i, sh)})")
        ld(3 * a + j + DIST[ph])
        if ph == "V" and 3 * a + j + 1 == P.mg:
            e(f"  ds_write_b32 {vr(vPW)}, {vr(M1)} offset:{FL + 32}")
        if ph == "V" and 3 * a + j + 1 == P.ml:
            e(f"  ds_write_b32 {vr(vPW)}, {vr(M1)} offset:{FL + 48}")

    def evaluate(ph, a):
        if not P.ctl:
            return
        sm = smp + 4 * (a % LAG)
        e(f"  s_waitcnt vmcnt({swait(ph, a)})")
        if a == (P.ba + LAG) % 8:
            e(f"  v_add_u32 {vr(vBI)}, {vr(vBI)}, {vr(vBI + 1)}")
        e(f"  s_add_u32 s{sT0}, s{sLO}, 0x03030303")
        e(f"  v_msad_u8 {vr(vSum)}, s{sLO}, {vr(sm)}, 0")
        e(f"  v_msad_u8 {vr(vSu2)}, s{sT0}, {vr(sm)}, 0")
        if a == (P.ba + LAG) % 8:
            e(f"  v_readfirstlane_b32 s{sB}, {vr(vBI)}")
        for k in range(1, 3):
            e(f"  v_msad_u8 {vr(vSum)}, s{sLO}, {vr(sm + k)}, {vr(vSum)}")
            e(f"  v_msad_u8 {vr(vSu2)}, s{sT0}, {vr(sm + k)}, {vr(vSu2)}")
        e(f"  v_sub_u32 {vr(vSum)}, {vr(vSum)}, {vr(vSu2)}")
        e(f"  s_add_u32 s{sLO}, s{sLO}, 0x01010101")
        e(f"  v_readlane_b32 s{sMASK}, {vr(vSum)}, 0")
        e(f"  v_readlane_b32 s{sSCALE}, {vr(vSum)}, 1")

    def decide(ph, a):
        if not P.ctl:
            return
        if a == (P.ba + LAG) % 8:
            for it in filter(None, P.sb.split(",")):
                st_, b_ = [int(v) for v in it.split(":")]
                if (st_ >= 16) == (ph == "V"):
                    e(f"  s_cmp_eq_u32 s{sK}, {st_ % 16}")
                    e(f"  s_cselect_b32 s{sT0}, {b_}, 0")
                    e(f"  s_add_u32 s{sB}, s{sB}, s{sT0}")
        cur, old = (sI, sCO) if a & 1 else (sCO, sI)
        e(f"  s_add_u32 s{cur}, s{sMASK}, s{sSCALE}")
        e(f"  s_add_u32 s{sS}, s{cur}, s{old}")
        e(f"  s_ashr_i32 s{sS}, s{sS}, 1")
        e(f"  s_add_u32 s{sS}, s{sS}, s{sB}")
        if ph == "K" and a < P.start:
            e(f"  s_cmp_eq_u32 s{sK}, 0")
            e(f"  s_cselect_b32 s{sS}, {P.s0}, s{sS}")

    def exchange(a):
        if not P.ctl:
            return
        e("  s_mov_b64 exec, 1")
        if a == P.ba:
            e(f"  global_load_dwordx2 {vr(vBI, 2)}, {vr(vBA)}, s[{sWS}:{sWS + 1}] {P.pf}")
        e(f"  global_store_byte {vr(vPS)}, {vr(vN)}, s[{sWS}:{sWS + 1}]")
        e("  s_mov_b64 exec, 3")
        e(f"  global_load_dwordx3 {vr(smp + 4 * (a % LAG), 3)}, {vr(vPL + a % 4)}, s[{sWS}:{sWS + 1}] {P.pf}")
        e(f"  v_add_u32 {vr(vN)}, 1, {vr(vN)}")
        e("  s_mov_b64 exec, -1")

    def srd_head(rr, sp, sh_):
        e(f"  s_mul_i32 s{sT0}, s{sh_}, {UB}")
        e(f"  s_add_u32 s{rr}, s{sp}, s{sT0}")
        e(f"  s_addc_u32 s{rr + 1}, s{sp + 1}, 0")

    def vstep_k(dst, src):
        e(f"  s_lshl_b32 s{dst}, s{src}, 2")
        e(f"  s_lshr_b64 s[{sZ}:{sZ + 1}], s[{sVO}:{sVO + 1}], s{dst}")
        e(f"  s_and_b32 s{dst}, s{sZ}, 15")

    def head_of(dst, slot, vU=vU):
        e(f"  s_lshr_b32 s{sT0}, s{slot}, 1")
        e(f"  v_readlane_b32 s{sZ}, {vr(vU)}, s{sT0}")
        e(f"  s_lshl_b32 s{sT0}, s{slot}, 4")
        e(f"  s_lshr_b32 s{sZ}, s{sZ}, s{sT0}")
        e(f"  s_and_b32 s{dst}, s{sZ}, 0x7ff")

    def budget(ok):
        e(f"  s_cmp_eq_u32 s{sSP}, 0")
        e(f"  s_cbranch_scc1 {ok}")
        e(f"  s_sub_u32 s{sSP}, s{sSP}, 1")

    def flagwait(name, off):
        e(f"L_{name}:")
        e("  s_waitcnt lgkmcnt(0)")
        e(f"  v_readfirstlane_b32 s{sF}, {vr(vF)}")
        e(f"  s_cmp_ge_u32 s{sF}, s{sNEED}")
        e(f"  s_cbranch_scc0 L_{name}_no")
        e(f"L_{name}_ok:")
        rare.extend([f"L_{name}_no:", f"  s_cmp_eq_u32 s{sSP}, 0", f"  s_cbranch_scc1 L_{name}_ok", f"  s_sub_u32 s{sSP}, s{sSP}, 1",
                     f"  ds_read_b32 {vr(vF)}, {vr(vZ)} offset:{off}", f"  s_branch L_{name}"])

    def tr():
        if P.trace:
            e(f"  {'s_memtime' if 'm' in P.xp else 's_memrealtime'} s[88:89]")
            e("  s_waitcnt lgkmcnt(0)")
            e(f"  v_writelane_b32 {vr(vtr)}, s88, m0")
            e("  s_add_u32 m0, m0, 1")
            e("  s_min_u32 m0, m0, 63")

    def die_base(dst):
        e(f"  s_getreg_b32 s{sSE}, hwreg(HW_REG_HW_ID, 8, 7)")
        e(f"  s_getreg_b32 s{dst}, hwreg(HW_REG_XCC_ID, 0, 3)")
        e(f"  s_and_b32 s{sCU}, s{sSE}, 15")
        e(f"  s_lshr_b32 s{sSE}, s{sSE}, 5")
        e(f"  s_mul_i32 s{dst}, s{dst}, 4352")
        e(f"  s_add_u32 s{dst}, s{dst}, {W_PL}")

    ha = Alloc(16)
    l, u, h0, h1, h2, h3 = [ha.take(1) for _ in range(6)]
    wa, wb, vSh, vFc, vM, vL = [ha.take(1) for _ in range(6)]
    ro = ha.take(8)
    vL16, vFA, vFX, vFB, vEL, vCL, vSa, vSq = [ha.take(1) for _ in range(8)]
    hq = ha.take(2)
    hU = ha.take(1)
    z4 = ha.take(4, 4)
    cs = ha.take(8, 4)
    f0 = ha.take(4, 4)
    sc = ha.take(4, 4)
    qn = ha.take(4, 4)
    x = ha.take(32, 4)
    pr = ha.take(4, 4)
    fo = ha.take(4, 4)
    rec = ha.take(8, 4)
    AC = ha.take(16, 4)
    st4 = ha.take(4, 4)
    tg = ha.take(4, 4)
    ra = ha.take(8)
    assert ha.n <= NV and vZ < 16

    invX, invY, tK, tA, tN, tO = tmp, tmp + 4, tmp + 8, tab, tab + 4, tab + 8
    PC0 = 20 + 8 * P.stamp + 16 * (P.dly > 0)
    D_INV, D_QCS, D_F0, D_END = 256, 768, 1152, 1536
    NF = P.nf
    assert RUN[0] == 1 and NF <= 8
    e(HEADER.rstrip("\n"))
    e(f"; @launch grid=(256,1,1) block=(320,1,1) lds={LDS}")
    for ln in ABOUT.strip("\n").split("\n"):
        e("; " + ln)
    e('.amdgcn_target "amdgcn-amd-amdhsa--gfx950"')
    e(".text")
    e(f".globl {NAME}_kernel")
    e(".p2align 8")
    e(f".type {NAME}_kernel,@function")
    e(f"{NAME}_kernel:")
    e("  s_cmpk_ge_u32 s2, 0x100")
    e("  s_cbranch_scc1 L_end")
    if P.dly:
        e("; diagnostic build only: half of the dies start late")
        e(f"  s_getreg_b32 s4, hwreg(HW_REG_XCC_ID, {P.dlb}, 1)")
        e("  s_cmp_eq_u32 s4, 0")
        e("  s_cbranch_scc1 L_dly")
        e(f"  s_sleep {P.dly}")
        e("L_dly:")
    if P.stamp:
        e(f"  s_memrealtime s[{sST}:{sST + 1}]")
    e("  s_load_dwordx16 s[4:19], s[0:1], 0")
    e(f"  s_getpc_b64 s[{sZ}:{sZ + 1}]")
    e("L_pc:")
    e("  v_cmp_gt_u32 vcc, 64, v0")
    e(f"  v_lshlrev_b32 {vr(vT16)}, 4, v0")
    e(f"  s_lshr_b32 s{sK}, s2, 4")
    e(f"  s_lshl_b32 s{sF}, s2, 6")
    e(f"  s_add_u32 s{sF}, s{sF}, L_order-L_pc")
    e(f"  s_and_b32 s{sH}, s2, 7")
    e("  s_cbranch_vccz L_s0")
    e(f"  s_load_dwordx16 s[{sE}:{sE + 15}], s[{sZ}:{sZ + 1}], s{sF}")
    e(f"  v_lshl_add_u32 {vr(h0)}, s{sK}, 6, v0")
    e(f"  v_mul_u32_u24 {vr(h0)}, {P.tst}, {vr(h0)}")
    e(f"  global_load_dword {vr(h3)}, {vr(h0)}, s[{sZ}:{sZ + 1}] offset:{D_QCS - PC0}")
    e("  s_branch L_helper")
    e("L_s0:")
    e(f"  v_and_b32 {vr(vC16)}, 0xf0, {vr(vT16)}")
    e(f"  global_load_dwordx4 {vr(invX, 4)}, {vr(vC16)}, s[{sZ}:{sZ + 1}] offset:{D_INV - PC0}")
    e(f"  global_load_dwordx4 {vr(invY, 4)}, {vr(vC16)}, s[{sZ}:{sZ + 1}] offset:{D_INV + 256 - PC0}")
    e(f"  s_and_b32 s{sT1}, s{sK}, 8")
    e(f"  s_add_u32 s{sH}, s{sH}, s{sT1}")
    e(f"  s_and_b32 s{sT1}, s{sK}, 7")
    e(f"  s_lshl3_add_u32 s{sH}, s{sH}, s{sT1}")
    e(f"  s_lshl4_add_u32 s{sH}, s{sH}, 14")
    e(f"  s_mulk_i32 s{sH}, 21846")
    e(f"  s_lshr_b32 s{sC}, s{sH}, 16")
    e(f"  s_addk_i32 s{sH}, -21846")
    e(f"  s_lshl_b32 s{sH}, s{sH}, 16")
    e(f"  s_mul_hi_u32 s{sR0}, s{sH}, 3")
    e(f"  s_mul_i32 s{sT0}, s{sC}, {UB}")
    e(f"  s_and_b32 s{sT1}, s2, 8")
    e(f"  s_lshl4_add_u32 s{sT1}, s{sR0}, s{sT1}")
    e(f"  s_lshl_b32 s{sT1}, s{sT1}, 12")
    e(f"  s_add_u32 s{sT0}, s{sT0}, s{sT1}")
    e(f"  s_addk_i32 s{sT0}, {4096 - 1024}")
    e(f"  v_add_u32 {vr(tA)}, s{sT0}, {vr(vT16)}")
    for k in range(1, (NF + 1) // 2):
        e(f"  v_add_u32 {vr(tA + k)}, {8192 * k}, {vr(tA)}")
    e("  s_waitcnt lgkmcnt(0)")
    for n in range(NF):
        e(f"  global_load_dwordx4 {vr(ring + 4 * n, 4)}, {vr(tA + n // 2)}, s[{sQK}:{sQK + 1}] offset:{4096 * (n % 2) - 4096} nt")
    e("  s_branch L_s1")
    e("L_b0:")
    e(f".if (L_b0 - {NAME}_kernel > {D_INV}) || (L_pc - {NAME}_kernel != {PC0})")
    e('.error "entry block layout"')
    e(".endif")
    e(".p2align 8")
    e(".type L_inv,@object")
    e("L_inv:")
    tb = [f32bits(v) for v in rev_[:64] + rev_[64:] + rev_[64:]]
    for k in range(0, 128, 8):
        e("  .long " + ", ".join(f"{v:#x}" for v in tb[k:k + 8]))
    e(".type L_qcs,@object")
    e("L_qcs:")
    for k in range(0, 96, 8):
        e("  .long " + ", ".join(f"{v:#x}" for v in qcs[k:k + 8]))
    e(".type L_f0,@object")
    e("L_f0:")
    for k in range(0, 96, 8):
        e("  .long " + ", ".join(f"{f32bits(256 * v - round(256 * v)):#x}" for v in rev_[k:k + 8]))

    def common(ld_=True):
        if ld_:
            e(f"  s_load_dwordx8 s[24:31], s[0:1], 80")
        e(f"  v_mov_b32 {vr(vZ)}, 0")
        e(f"  s_mov_b32 s{sSP}, {P.bound}")
        e(f"  s_bfe_u32 s{sJ}, s2, 0x10003")

    PFR = [4, 10, 14, 62, 72, 74, 76, 82, 86, 96, 98]
    pfn = [0]

    def pf():
        if P.tfine:
            e(f"  {'s_memtime' if 'm' in P.xp else 's_memrealtime'} s[{PFR[pfn[0]]}:{PFR[pfn[0]] + 1}]")
            pfn[0] += 1

    e("L_s1:")
    w_, s_, vAD, vC8, t0, t1 = wt, wt + 1, wt + 2, wt + 3, dacc, dacc + 1
    vRF, pos = vT16, tK + 3
    if P.trace:
        e(f"  v_mov_b32 {vr(vtr)}, 0")
        e("  s_mov_b32 m0, 0")
    pf()
    e("  v_subrev_u32 v0, 64, v0")
    e(f"  s_setprio {P.spr}")
    e(f"  s_load_dwordx8 s[16:23], s[{sZ}:{sZ + 1}], s{sF}")
    e(f"  s_add_u32 s{sF}, s{sF}, 32")
    e(f"  s_load_dwordx2 s[{sVO}:{sVO + 1}], s[{sZ}:{sZ + 1}], s{sF}")
    e(f"  s_movk_i32 s{sNEED}, 768")
    common()
    e(f"  v_lshrrev_b32 {vr(w_)}, 6, v0")
    e(f"  v_lshrrev_b32 {vr(s_)}, 4, v0")
    e(f"  v_and_b32 {vr(vC8)}, 0x70, {vr(vC16)}")
    e(f"  v_readfirstlane_b32 s{sW}, {vr(w_)}")
    e(f"  v_add_u32 {vr(vAD)}, {vr(vC8)}, {vr(s_)}")
    e(f"  s_mul_i32 s{sT0}, s{sJ}, 44")
    e(f"  s_sub_u32 s{sT0}, 86, s{sT0}")
    e(f"  v_cmp_eq_u32 vcc, s{sT0}, {vr(vAD)}")
    e(f"  v_mov_b32 {vr(t0)}, 0x80")
    e(f"  s_mov_b32 s{rA + 2}, {UB}")
    e(f"  v_cndmask_b32 {vr(vAD)}, {vr(vAD)}, {vr(t0)}, vcc")
    e(f"  v_mul_u32_u24 {vr(t0)}, 381, {vr(vAD)}")
    e(f"  s_mul_i32 s{sT0}, s{sJ}, 43")
    e(f"  v_add_u32 {vr(t0)}, 2, {vr(t0)}")
    e(f"  v_lshrrev_b32 {vr(t0)}, 14, {vr(t0)}")
    assert all((381 * i + 2) >> 14 == (i >= 43) + (i >= 86) for i in range(129))
    e(f"  v_mad_u32_u24 {vr(t0)}, {vr(t0)}, 42, {vr(vAD)}")
    e(f"  v_add_u32 {vr(t0)}, s{sT0}, {vr(t0)}")
    e(f"  v_cvt_f32_u32 {vr(vRF)}, {vr(t0)}")
    e(f"  v_mul_u32_u24 {vr(vAD)}, 384, {vr(vAD)}")
    e(f"  s_mov_b32 s{rA + 3}, 0x20000")
    srd_head(rA, sQK, sC)
    e(f"  s_lshl_b32 s{sT0}, s{sJ}, 15")
    sRK = [sR0, 8, 9]
    e(f"  v_lshl_add_u32 {vr(t0)}, v0, 4, s{sT0}")
    for k in range(3):
        if k:
            e(f"  s_add_u32 s{sRK[k]}, s{sRK[k - 1]}, 1")
            e(f"  s_cmp_eq_u32 s{sRK[k]}, 3")
            e(f"  s_cselect_b32 s{sRK[k]}, 0, s{sRK[k]}")
        e(f"  v_lshl_add_u32 {vr(voff + k)}, s{sRK[k]}, 16, {vr(t0)}")
    for i in range(1, 8):
        e(f"  s_movk_i32 s{sOF + i}, {4096 * i}")
    nk = [NF]
    nfix = [0]
    assert PRE <= RING and max(int(v) for v in P.kp_.split(",")[:P.su + 1]) <= 7

    def k_loads(hi):
        while nk[0] < min(hi, PRE):
            ld(nk[0])
            nk[0] += 1

    def toff_(n):
        run = RUN[n >> 3]
        return 384 * (16 * (((n & 7) + run) // 3) + 38 * run)

    def tmin(n):
        return toff_((n & ~7) + (n & 7) % 3)

    def setup():
        e("; per chunk class k: q operand, table and partial addresses")
        sD = sRK[2]
        e(f"  s_lshl1_add_u32 s{sF}, s{sJ}, s{sW}")
        e(f"  s_add_u32 s{sF}, s{sF}, s{sD}")
        e(f"  s_lshl_b32 s{sF}, s{sF}, 1")
        e(f"  s_lshr_b32 s{sF}, 0x24924, s{sF}")
        e(f"  v_bfe_u32 {vr(t1)}, v0, 4, 2")
        e(f"  v_lshl_add_u32 {vr(t1)}, {vr(t1)}, 2, {vr(vC16)}")
        e(f"  v_mad_u32_u24 {vr(vF)}, {vr(w_)}, s{sNEED}, {vr(t1)}")
        e(f"  v_add_u32 {vr(vF)}, {PB - 3072}, {vr(vF)}")
        e(f"  s_mul_i32 s{sT1}, s{sJ}, {43 * 384}")
        e(f"  s_sub_u32 s{sT1}, {TB}, s{sT1}")
        e(f"  s_mul_i32 s{sT0}, s{sD}, {38 * 384}")
        e(f"  s_add_u32 s{sT1}, s{sT1}, s{sT0}")
        e(f"  s_lshl3_add_u32 s{sT0}, s{sJ}, s{sD}")
        e(f"  v_lshl_add_u32 {vr(vSum)}, s{sT0}, 4, {vr(s_)}")
        for k in range(3):
            e(f"  s_bfe_u32 s{sT0}, s{sF}, {(2 << 16) | 2 * k:#x}")
            e(f"  v_lshl_add_u32 {vr(vPA + k)}, s{sT0}, 8, {vr(vF)}")
            if k:
                e(f"  v_add_u32 {vr(vSum)}, 16, {vr(vSum)}")
            e(f"  v_mul_u32_u24 {vr(t0)}, 171, {vr(vSum)}")
            e(f"  v_lshrrev_b32 {vr(t0)}, 9, {vr(t0)}")
            e(f"  v_mad_i32_i24 {vr(t1)}, {vr(t0)}, -3, {vr(vSum)}")
            e(f"  v_lshl_add_u32 {vr(t1)}, {vr(t1)}, 8, {vr(vC16)}")
            e(f"  v_add_u32 {vr(vQA + k)}, {QB}, {vr(t1)}")
            e(f"  v_subrev_u32 {vr(vSu2)}, 384, {vr(t1)}")
            e(f"  v_min_u32 {vr(t1)}, {vr(t1)}, {vr(vSu2)}")
            e(f"  v_mul_u32_u24 {vr(t0)}, 384, {vr(t0)}")
            e(f"  v_add3_u32 {vr(vTA + 6 + k)}, {vr(t0)}, {vr(t1)}, s{sT1}")
        assert all(171 * x_ >> 9 == x_ // 3 for x_ in range(208)) and RUN[2] == 0
        for g_ in range(2):
            e(f"  s_cmp_lt_u32 s{sRK[g_]}, {RUN[g_]}")
            e(f"  s_cselect_b32 s{sT1}, {-130 * 384}, 0")
            for n in range(8 * g_, 8 * g_ + 3):
                e(f"  s_add_u32 s{sT0}, s{sT1}, {tmin(n)}")
                e(f"  v_add_u32 {vr(vTA + 3 * g_ + TN[n])}, s{sT0}, {vr(vTA + 6 + TN[n])}")
        dB, dT = A, LG
        e(f"  s_lshl1_add_u32 s{sT0}, s{sJ}, -1")
        e(f"  s_mul_i32 s{sT0}, s{sT0}, 98304")
        e(f"  v_mov_b32 {vr(t0)}, s{sT0}")
        for i, sx in enumerate((0, 15)):
            e(f"  s_mul_i32 s{sT1}, s{sJ}, {130 * 384}")
            e(f"  s_sub_u32 s{sT1}, s{sT1}, {(44, 86)[i] * 384}")
            e(f"  v_cmp_eq_u32 vcc, {sx}, {vr(s_)}")
            e(f"  v_mov_b32 {vr(t1)}, s{sT1}")
            e(f"  s_lshl_b32 s{sH}, s{sJ}, 1")
            e(f"  v_cndmask_b32 {vr(dB + i)}, 0, {vr(t0)}, vcc")
            e(f"  v_cndmask_b32 {vr(dT + i)}, 0, {vr(t1)}, vcc")
        e(f"  s_sub_u32 s{sH}, 2, s{sH}")
        for n, i in SPECIAL.items():
            if i % 2 == 0:
                e(f"  s_cmp_eq_u32 s{sRK[n >> 3]}, s{sH}")
                e(f"  s_cselect_b32 s{sT0}, 1, 0")
            e(f"  v_mad_i32_i24 {vr(voff + 3 + i)}, {vr(dB + i % 2)}, s{sT0}, {vr(voff + (n >> 3))}")
            if toff_(n) != tmin(n):
                e(f"  v_add_u32 {vr(t1)}, {toff_(n) - tmin(n)}, {vr(vTA + 3 * (n >> 3) + TN[n])}")
                e(f"  v_mad_i32_i24 {vr(vTA + 9 + i)}, {vr(dT + i % 2)}, s{sT0}, {vr(t1)}")
            else:
                e(f"  v_mad_i32_i24 {vr(vTA + 9 + i)}, {vr(dT + i % 2)}, s{sT0}, {vr(vTA + 3 * (n >> 3) + TN[n])}")
        e(f"  s_lshl2_add_u32 s{sT0}, s{sW}, s{sR0}")
        e(f"  s_cmp_eq_u32 s{sT0}, s{sH}")
        e("  s_cbranch_scc0 L_fx")
        e("  s_mov_b64 exec, 0xffff")
        ld(0)
        e("  s_mov_b64 exec, -1")
        e("L_fx:")
        nfix[0] = nk[0]
        e(f"  v_lshlrev_b32 {vr(vLB)}, 2, v0")
        e(f"  v_add_u32 {vr(vLB)}, {LGB}, {vr(vLB)}")
        e(f"  v_lshrrev_b32 {vr(t1)}, 1, v0")
        e(f"  v_lshlrev_b32 {vr(t1)}, 2, {vr(t1)}")
        e(f"  v_add_u32 {vr(vLB + 1)}, {LGB + 1024}, {vr(t1)}")
        e(f"  v_subrev_u32 {vr(vLG)}, 1536, {vr(vLB)}")
        e(f"  v_subrev_u32 {vr(vLG + 1)}, 1536, {vr(vLB + 1)}")
        e(f"  v_lshlrev_b32 {vr(vPW)}, 2, {vr(w_)}")
        e(f"  s_mov_b32 s{sMSK}, 0xcccccccc")
        e(f"  s_mov_b32 s{sMSK + 1}, s{sMSK}")
        e(f"  s_mov_b32 s{sMSK + 2}, 0xaaaaaaaa")
        e(f"  s_mov_b32 s{sMSK + 3}, s{sMSK + 2}")
        e(f"  s_mov_b32 s{rB + 2}, {UB}")
        e(f"  s_mov_b32 s{rB + 3}, 0x20000")
        e(f"  s_mov_b32 s{sK}, 0")
        if P.ctl:
            e("; progress slots: this wave writes one byte of line (half, w) and samples the lines of the other half")
            die_base(sF)
            e(f"  s_add_u32 s{sT0}, s{sF}, 2048")
            e(f"  v_mov_b32 {vr(vBA)}, s{sT0}")
            e(f"  s_and_b32 s{sT1}, s{sSE}, 2")
            e(f"  s_lshl_b32 s{sT1}, s{sT1}, 9")
            e(f"  s_lshl_b32 s{sT0}, s{sW}, 8")
            e(f"  s_add_u32 s{sT0}, s{sT0}, s{sT1}")
            e(f"  s_add_u32 s{sT0}, s{sT0}, s{sF}")
            e(f"  s_add_u32 s{sT0}, s{sT0}, s{sCU}")
            e(f"  s_and_b32 s{sSE}, s{sSE}, 1")
            e(f"  s_lshl_b32 s{sSE}, s{sSE}, 4")
            e(f"  s_add_u32 s{sT0}, s{sT0}, s{sSE}")
            e(f"  v_mov_b32 {vr(vPS)}, s{sT0}")
            e(f"  s_xor_b32 s{sT1}, s{sT1}, 1024")
            e(f"  s_add_u32 s{sF}, s{sF}, s{sT1}")
            e(f"  v_and_b32 {vr(vN)}, 1, v0")
            e(f"  v_lshl_add_u32 {vr(vN)}, {vr(vN)}, 4, s{sF}")
            for k in range(4):
                e(f"  v_add_u32 {vr(vSum)}, {k}, {vr(w_)}")
                e(f"  v_and_b32 {vr(vSum)}, 3, {vr(vSum)}")
                e(f"  v_lshl_add_u32 {vr(vPL + k)}, {vr(vSum)}, 8, {vr(vN)}")
            e(f"  s_mov_b32 s{sLO}, {(-(LAG + 2) * 0x01010101) & 0xffffffff:#x}")
            for k in range(4 * LAG):
                e(f"  v_mov_b32 {vr(smp + k)}, 0")
            for k in range(2):
                e(f"  v_mov_b32 {vr(vBI + k)}, 0")
            e(f"  v_mov_b32 {vr(vN)}, 0")
            e(f"  s_mov_b32 s{sB}, 0")
            e(f"  s_mov_b32 s{sS}, {P.s0}")
            e(f"  s_mov_b32 s{sI}, 0")
            e(f"  s_mov_b32 s{sCO}, 0")

    def sincos(dst, iv):
        for h in (0, 2):
            e(f"  v_pk_mul_f32 {vr(tN + h, 2)}, {vr(iv + h, 2)}, {vr(tK + 2, 2)} op_sel:[0,1] op_sel_hi:[1,1]")
        for i in range(4):
            e(f"  v_cos_f32 {vr(tA + i)}, {vr(tN + i)}")
        for i in range(4):
            e(f"  v_sin_f32 {vr(tN + i)}, {vr(tN + i)}")
        for i in range(4):
            e(f"  v_cvt_pk_f16_f32 {vr(dst + i)}, {vr(tA + i)}, {vr(tN + i)}")

    kp = [int(v) for v in P.kp_.split(",")]

    def chunk(i):
        a = 2 * (i // 3)
        d = tO + 4 * (i & 1)
        bc_ = lambda x, m: f"row_newbcast:{x} row_mask:0xf bank_mask:{m:#x}"
        if i % 3 == 1:
            e(f"  v_mov_b32_dpp {vr(pos)}, {vr(vRF)} {bc_(a + 1, 12)}")
            e(f"  v_add_u32_dpp {vr(vF)}, {vr(vAD)}, {vr(vC8)} {bc_(a, 3)}")
            e(f"  v_add_u32_dpp {vr(vF)}, {vr(vAD)}, {vr(vC8)} {bc_(a + 1, 12)}")
            sincos(d, invY)
            e(f"  ds_write_b128 {vr(vF)}, {vr(d, 4)} offset:{TB + 256}")
        else:
            a += i % 3 // 2
            e(f"  v_mov_b32_dpp {vr(pos)}, {vr(vRF)} {bc_(a, 15)}")
            e(f"  v_add_u32_dpp {vr(vF)}, {vr(vAD)}, {vr(vC16)} {bc_(a, 15)}")
            sincos(d, invX)
            e(f"  ds_write_b128 {vr(vF)}, {vr(d, 4)} offset:{TB}")

    def tab_read(a):
        for n in range(3 * a, 3 * a + 3):
            d = tab + 12 * (a & 1) + 4 * (n % 3)
            if n in SPECIAL:
                e(f"  ds_read_b128 {vr(d, 4)}, {vr(vTA + 9 + SPECIAL[n])}")
            else:
                e(f"  ds_read_b128 {vr(d, 4)}, {vr(vTA + 3 * (n >> 3) + TN[n])} offset:{toff_(n) - tmin(n)}")

    k_loads(kp[0])
    pf()
    e(f"  s_waitcnt vmcnt({nk[0]})")
    pf()
    for i in range(12):
        if i == P.su:
            setup()
            pf()
        chunk(i)
        k_loads(kp[i + 1])
        if i % 3 == 2:
            pf()
    k_loads(PRE)
    e(f"  v_mov_b32 {vr(bc)}, {f32bits(-7.5):#x}")
    e("  s_waitcnt lgkmcnt(0)")
    for k in range(8):
        e(f"  v_writelane_b32 {vr(vU)}, s{16 + k}, {k}")
    e("  s_barrier")
    pf()
    for k in range(3):
        e(f"  ds_read_b128 {vr(qa + 4 * k, 4)}, {vr(vQA + k)}")
    tab_read(0)
    e(f"  s_waitcnt vmcnt({PRE - nfix[0]})")
    pf()
    if P.tfine:
        e("  s_waitcnt lgkmcnt(0)")
        for k in range(pfn[0]):
            e(f"  v_writelane_b32 {vr(vtr)}, s{PFR[k]}, {k}")
        e(f"  s_mov_b32 m0, {pfn[0]}")

    def vfirst():
        e(f"  s_and_b32 s{sH}, s{sVO}, 15")
        e(f"  s_add_u32 s{sNEED}, s{sH}, 1")
        e(f"  ds_read_b32 {vr(vF)}, {vr(vZ)} offset:{FL + 20}")
        flagwait("a0", FL + 20)
        e(f"  s_mulk_i32 s{sH}, 1536")
        for k in range(2):
            e(f"  v_add_u32 {vr(vLV + k)}, s{sH}, {vr(vLB + k)}")
        e(f"  ds_read_b32 {vr(A)}, {vr(vLV)}")


    def knext():
        e("; next SRD: K slot k + 1, or the first V step once K runs out")
        e(f"  s_add_u32 s{sH}, s{sK}, 1")
        e(f"  s_sub_u32 s{sT1}, s{sH}, 16")
        vstep_k(sF, sT1)
        e(f"  s_cmp_lt_u32 s{sH}, 16")
        e(f"  s_cselect_b32 s{sH}, s{sH}, s{sF}")
        e(f"  s_cselect_b32 s{sX}, s{sQK}, s{sQV}")
        e(f"  s_cselect_b32 s{sX + 1}, s{sQK + 1}, s{sQV + 1}")
        head_of(sH, sH)
        srd_head(rB, sX, sH)

    def kred(n):
        dpp = lambda d, x, how, m: e(f"  v_add_f32_dpp {vr(d)}, {vr(x)}, {vr(x)} {how} row_mask:0xf bank_mask:{m:#x}")
        dpp(M1, dacc, "row_ror:8", 12 if n & 1 else 3)
        if n % 2 == 1:
            e("  s_nop 1")
            dpp(M2, M1, "row_half_mirror", 10 if n & 2 else 5)
        if n % 4 == 3:
            e("  s_nop 1")
            dpp(M2 if n & 4 else M3, M2, "quad_perm:[2,3,0,1]", 15)
        if n % 8 == 7:
            e(f"  v_cndmask_b32_e64 {vr(M3)}, {vr(M3)}, {vr(M2)}, s[{sMSK}:{sMSK + 1}]")
            e("  s_nop 1")
            dpp((LG, M3, LG + 1)[n >> 3], M3, "quad_perm:[1,0,3,2]", 15)
        if n == 15:
            e(f"  v_cndmask_b32_e64 {vr(LG)}, {vr(LG)}, {vr(M3)}, s[{sMSK + 2}:{sMSK + 3}]")

    e(".p2align 6")
    e("L_k:")

    def kbody(n):
        k_, q_ = ring + 4 * n, qa + 4 * TN[n]
        for i in range(4):
            e(f"  v_dot2_f32_f16 {vr(wt + i)}, {vr(tab + 12 * (n // 3 & 1) + 4 * (n % 3) + i)}, {vr(q_ + i)}, 0")
        for i in range(4):
            e(f"  v_cvt_f32_i32 {vr(k_ + i)}, {vr(k_ + i)}")
        if n >= 21:
            e(f"  ds_read_b128 {vr(q_, 4)}, {vr(vQA + TN[n])}")
        for h in range(2):
            e(f"  v_pk_add_f32 {vr(k_ + 2 * h, 2)}, {vr(k_ + 2 * h, 2)}, {vr(bc, 2)} op_sel_hi:[1,0]")
        e(f"  v_pk_mul_f32 {vr(dacc, 2)}, {vr(k_, 2)}, {vr(wt, 2)}")
        e(f"  v_pk_fma_f32 {vr(dacc, 2)}, {vr(k_ + 2, 2)}, {vr(wt + 2, 2)}, {vr(dacc, 2)}")
        e(f"  v_add_f32 {vr(dacc)}, {vr(dacc)}, {vr(dacc + 1)}")

    def kout():
        e(f"  v_mov_b32 {vr(vF)}, s{sK}")
        for k in range(2):
            e(f"  ds_write_b32 {vr(vLG + k)}, {vr(LG + k)}")
        e(f"  ds_write_b32 {vr(vPW)}, {vr(vF)} offset:{FL}")

    def group(ph, a, body, after, res):
        nb, pend = 3 * a, None
        od = ORD[ph]
        for i, c in enumerate(od):
            if pend is not None and c != "L":
                if od[i - 1] == "b":
                    e("  s_nop 1")
                after(pend)
                pend = None
            if c == "E":
                evaluate(ph, a)
                if od[i + 1] != "X":
                    decide(ph, a)
            if c == "X":
                exchange(a)
                if od[i - 1] == "E":
                    decide(ph, a)
            if c == "R" and a == 0:
                res()
            if c == "b":
                body(nb)
                pend = nb if after else None
                nb += 1
            if c == "L":
                issue(ph, a, i)
        if pend is not None:
            if od[-1] == "b":
                e("  s_nop 1")
            after(pend)

    for a in range(8):
        if a == 7:
            flagwait("qn", FL + 16)
        else:
            e("  s_waitcnt lgkmcnt(0)")
        tab_read((a + 1) % 8)
        if a == 6:
            e(f"  ds_read_b32 {vr(vF)}, {vr(vZ)} offset:{FL + 16}")
        group("K", a, kbody, kred, kout)
        if a == 1:
            knext()
        if a == 3:
            e(f"  s_add_u32 s{sT0}, s{sK}, 2")
            e(f"  s_min_u32 s{sNEED}, s{sT0}, 16")
            for k in range(3):
                e(f"  v_add_u32 {vr(vQA + k)}, 768, {vr(vQA + k)}")
            for k in range(2):
                e(f"  v_add_u32 {vr(vLG + k)}, 1536, {vr(vLG + k)}")
            e(f"  s_cmp_eq_u32 s{sK}, 15")
            e("  s_cbranch_scc1 L_kv")
            e("L_kw:")
        if a in (3, 7) or P.tfine:
            tr()
    assert sorted(TN[21:]) == [0, 1, 2] and TN[:3] == TN[3:6] and sorted(TN[:3]) == [0, 1, 2] and PRE <= 18
    e(f"  s_add_u32 s{sK}, s{sK}, 1")
    e(f"  s_mov_b64 s[{rA}:{rA + 1}], s[{rB}:{rB + 1}]")
    e(f"  s_cmp_lt_u32 s{sK}, 16")
    e("  s_cbranch_scc1 L_k")


    def vbody(n):
        v_ = ring + 4 * n
        e(f"  v_mov_b32_dpp {vr(bc)}, {vr(A + n // 16)} row_newbcast:{rev(n % 16, 4)} row_mask:0xf bank_mask:0xf")
        for i in range(4):
            e(f"  v_cvt_f32_i32 {vr(v_ + i)}, {vr(v_ + i)}")
        for h in range(2):
            d = 4 * TN[n] + 2 * h
            if n < 3:
                e(f"  v_pk_mul_f32 {vr(tmp + d, 2)}, {vr(v_ + 2 * h, 2)}, {vr(bc, 2)} op_sel_hi:[1,0]")
            else:
                e(f"  v_pk_fma_f32 {vr(acc + d, 2)}, {vr(v_ + 2 * h, 2)}, {vr(bc, 2)}, {vr((tmp if n < 6 else acc) + d, 2)} op_sel_hi:[1,0,1]")

    def vout(last=False):
        for j in range(3):
            e(f"  v_permlane32_swap_b32 {vr(acc + 4 * j)}, {vr(acc + 4 * j + 2)}")
            e(f"  v_permlane32_swap_b32 {vr(acc + 4 * j + 1)}, {vr(acc + 4 * j + 3)}")
        for j in range(3):
            e(f"  v_add_f32 {vr(acc + 4 * j)}, {vr(acc + 4 * j)}, {vr(acc + 4 * ((j + 1) % 3) + 2)}")
            e(f"  v_add_f32 {vr(acc + 4 * j + 1)}, {vr(acc + 4 * j + 1)}, {vr(acc + 4 * ((j + 1) % 3) + 3)}")
        for j in range(3):
            e(f"  v_permlane16_swap_b32 {vr(acc + 4 * j)}, {vr(acc + 4 * j + 1)}")
        for j in range(3):
            e(f"  v_add_f32 {vr(acc + 4 * j)}, {vr(acc + 4 * j)}, {vr(acc + 4 * ((j + 2) % 3) + 1)}")
        for j in range(3):
            e(f"  ds_write_b32 {vr(vPA + j)}, {vr(acc + 4 * j)}")
        if not last:
            e(f"  ds_write_b32 {vr(vPW)}, {vr(M1)} offset:{FL}")
            e("L_v0:")

    def vnext():
        e(f"  s_add_u32 s{sT1}, s{sK}, 1")
        e(f"  s_min_u32 s{sT1}, s{sT1}, 15")
        vstep_k(sH, sT1)
        e(f"  s_add_u32 s{sNEED}, s{sH}, 1")
        e(f"  s_mul_i32 s{sF}, s{sH}, 1536")
        head_of(sH, sH)
        srd_head(rB, sQV, sH)
        for k in range(2):
            e(f"  v_add_u32 {vr(vLV + k)}, s{sF}, {vr(vLB + k)}")

    NS, NT = (PRE - PD) // 3, 8 - PD // 3
    assert NS <= 1 and 4 <= NT <= 5 and (NS or P.ov[0] == "R") and max(P.mg, P.ml) <= 3 * NT
    e("L_vpre:")
    kout()
    e(f"  s_mov_b32 s{sK}, 0")
    e(f"  v_mov_b32 {vr(M1)}, 16")
    if NS:
        for n in range(3):
            e(f"  s_waitcnt vmcnt({plain[384 + n]})")
            vbody(n)
        e(f"  s_waitcnt vmcnt({plain[387]}) lgkmcnt(0)")
        e("  s_branch L_v1")
    else:
        e("  s_waitcnt lgkmcnt(3)")
        e("  s_branch L_v0")
    flush()
    e("L_kv:")
    vfirst()
    e("  s_branch L_kw")
    flush()
    e(".p2align 6")
    e("L_v:")
    for a in range(8):
        if a == 1:
            e("L_v1:")
            e(f"  ds_read_b32 {vr(A + 1)}, {vr(vLV + 1)}")
        if a == NT:
            e(f"  s_cmp_eq_u32 s{sK}, 15")
            e("  s_cbranch_scc1 L_vt")
        if a in (5, 7):
            e("  s_waitcnt lgkmcnt(0)")
        if a == 5:
            e(f"  ds_read_b32 {vr(vF)}, {vr(vZ)} offset:{FL + 20}")
        if a == 6:
            flagwait("an", FL + 20)
            e(f"  ds_read_b32 {vr(A)}, {vr(vLV)}")
        group("V", a, vbody, None, vout)
        if a == 1:
            vnext()
        if a == 3:
            e(f"  v_add_u32 {vr(M1)}, 1, {vr(M1)}")
            for j in range(3):
                e(f"  v_add_u32 {vr(vPA + j)}, 3072, {vr(vPA + j)}")
        if a in (3, 7):
            tr()
    e(f"  s_add_u32 s{sK}, s{sK}, 1")
    e(f"  s_mov_b64 s[{rA}:{rA + 1}], s[{rB}:{rB + 1}]")
    e("  s_branch L_v")
    flush()
    e("L_vt:")
    e("  s_waitcnt lgkmcnt(0)")
    for n in range(3 * NT, 24):
        e(f"  s_waitcnt vmcnt({plain[744 + n]})")
        vbody(n)
    tr()
    e("  s_nop 1")
    vout(True)
    e("  s_waitcnt lgkmcnt(0)")
    e("  s_barrier")
    if P.trace:
        e(f"  s_mul_i32 s8, s2, {5 * 256}")
        e("  s_add_u32 s8, s8, 0x100000")
        e(f"  v_lshl_add_u32 {vr(t0)}, v0, 2, s8")
        e(f"  global_store_dword {vr(t0)}, {vr(vtr)}, s[{sWS}:{sWS + 1}]")
    e("  s_endpgm")

    HP = [4, 6, 24, 8, 10, 36, 38, 72]
    ms = [m for m in range(P.r0, P.r1 + 1) if m < P.rf or m > P.rt or (m - P.r0) % P.rp == 0]
    gain = [(P.kp0 if m <= P.kn else P.kp) if m in ms else 0 for m in range(32)]
    if P.rk:
        gain = [int(c, 16) for c in P.rk]
        assert len(gain) == 32 and not any(gain[:P.r0]) and not gain[31]
    msk = sum(1 << m for m in range(32) if gain[m])

    def hp(k):
        if P.hprof:
            e(f"  s_memrealtime s[{HP[k]}:{HP[k] + 1}]")

    def progwait(name, slp, off=FL):
        e(f"L_{name}:")
        e(f"  ds_read_b128 {vr(pr, 4)}, {vr(vZ)} offset:{off}")
        e("  s_waitcnt lgkmcnt(0)")
        e(f"  v_min_u32 {vr(pr)}, {vr(pr)}, {vr(pr + 1)}")
        e(f"  v_min3_u32 {vr(pr)}, {vr(pr)}, {vr(pr + 2)}, {vr(pr + 3)}")
        e("  s_nop 0")
        e(f"  v_readfirstlane_b32 s{sF}, {vr(pr)}")
        e(f"  s_cmp_ge_u32 s{sF}, s{sNEED}")
        e(f"  s_cbranch_scc1 L_{name}_ok")
        budget(f"L_{name}_ok")
        if slp:
            e(f"  s_sleep {slp}")
        e(f"  s_branch L_{name}")
        e(f"L_{name}_ok:")

    def rowred(op, v):
        for n in (8, 4, 2, 1):
            e("  s_nop 1")
            e(f"  {op}_dpp {vr(v)}, {vr(v)}, {vr(v)} row_ror:{n} row_mask:0xf bank_mask:0xf")

    def allred(op, v, t):
        rowred(op, v)
        for sw in ("v_permlane16_swap_b32", "v_permlane32_swap_b32"):
            e(f"  v_mov_b32 {vr(t)}, {vr(v)}")
            e("  s_nop 1")
            e(f"  {sw} {vr(v)}, {vr(t)}")
            e(f"  {op} {vr(v)}, {vr(v)}, {vr(t)}")

    def sum_partials(nq):
        w = 4 * nq
        for k in range(4):
            for q in range(nq):
                e(f"  ds_read_b128 {vr(x + w * k + 4 * q, 4)}, {vr(h0)} offset:{768 * k + 16 * q}")
        e(f"  ds_read_b128 {vr(z4, 4)}, {vr(h1)} offset:{ST}")
        e("  s_waitcnt lgkmcnt(0)")
        for h in range(0, w, 2):
            e(f"  v_pk_add_f32 {vr(x + h, 2)}, {vr(x + h, 2)}, {vr(x + w + h, 2)}")
            e(f"  v_pk_add_f32 {vr(x + 2 * w + h, 2)}, {vr(x + 2 * w + h, 2)}, {vr(x + 3 * w + h, 2)}")
        for h in range(0, w, 2):
            e(f"  v_pk_add_f32 {vr(x + h, 2)}, {vr(x + h, 2)}, {vr(x + 2 * w + h, 2)}")
        for h in range(0, w, 2):
            e(f"  v_pk_add_f32 {vr(x + h, 2)}, {vr(x + h, 2)}, {vr(z4 + 2, 2)} op_sel_hi:[1,0] neg_lo:[0,1] neg_hi:[0,1]")

    def mark(tag):
        if P.sd:
            e("  s_memrealtime s[72:73]")
            e("  s_waitcnt lgkmcnt(0)")
            e("  s_sub_u32 s75, s72, s74")
            e("  s_mov_b32 s74, s72")
            e(f"  s_add_u32 s72, s{sNEED}, {64 - P.sd}")
            e("  s_and_b32 s73, s72, 1")
            e("  s_lshl_b32 s73, s73, 4")
            e("  s_min_u32 s75, s75, 510")
            e("  s_lshl_b32 s75, s75, s73")
            e("  s_lshr_b32 m0, s72, 1")
            e(f"  v_readlane_b32 s73, {vr(vCL)}, m0")
            e("  s_add_u32 s73, s73, s75")
            e(f"  v_writelane_b32 {vr(vCL)}, s73, m0")
        if not P.enc:
            return
        for k, m in enumerate(P.enc.split(",")[:2]):
            e(f"  s_cmp_eq_u32 s{sNEED}, {m}")
            e(f"  s_cbranch_scc0 L_mk{tag}{k}")
            e(f"  s_memrealtime s[{72 + 2 * k}:{73 + 2 * k}]")
            e(f"L_mk{tag}{k}:")

    def warm(tag):
        if not P.tw:
            return
        if P.tv == 2:
            ev = {5: (sQK, 1), 10: (sQK, 2), 16: (sQV, 2), 21: (sQV, 0), 26: (sQV, 1)}
            e(f"  s_lshr_b32 s{sT0}, s2, 3")
            e(f"  s_cmp_eq_u32 s{sT0}, s{sNEED}")
            e(f"  s_cbranch_scc0 L_tw{tag}")
            e(f"  s_and_b32 s{sT1}, s2, 7")
            e(f"  s_lshl_b32 s{sT1}, s{sT1}, 12")
            e(f"  v_lshl_add_u32 {vr(vFX)}, {vr(l)}, {27 - P.tl}, s{sT1}")
            e(f"  s_mov_b64 exec, {-1 if P.tl == 6 else (1 << (1 << P.tl)) - 1}")
            for t_, (sp, b_) in ev.items():
                if (t_ - P.tw > 16) == (tag == "p"):
                    e(f"  s_cmp_eq_u32 s{sNEED}, {t_ - P.tw}")
                    e(f"  s_cbranch_scc0 L_tx{t_}")
                    e(f"  v_add_u32 {vr(vFX)}, {b_ << 27:#x}, {vr(vFX)}")
                    e(f"  global_load_dword {vr(vFX)}, {vr(vFX)}, s[{sp}:{sp + 1}] nt")
                    e(f"L_tx{t_}:")
            e("  s_mov_b64 exec, -1")
            e("  s_waitcnt vmcnt(0)")
            e(f"L_tw{tag}:")
            return
        tm = sum(1 << int(v) for v in P.tm.split(","))
        if P.ts:
            e(f"  s_bfe_u32 s{sT0}, s2, {P.ts << 16 | 4:#x}")
            e(f"  s_add_u32 s{sX}, s{sNEED}, s{sT0}")
            e(f"  s_add_u32 s{sX}, s{sX}, {P.tw}")
        else:
            e(f"  s_add_u32 s{sX}, s{sNEED}, {P.tw}")
        e(f"  s_min_u32 s{sX}, s{sX}, 31")
        e(f"  s_and_b32 s{sT0}, s2, {8 | P.tk << 4:#x}")
        e(f"  s_cselect_b32 s{sT0}, 0, {tm:#x}")
        e(f"  s_bitcmp1_b32 s{sT0}, s{sX}")
        e(f"  s_cbranch_scc0 L_tw{tag}")
        e(f"  s_sub_u32 s{sT1}, s{sX}, 16")
        vstep_k(sF, sT1)
        e(f"  s_cmp_lt_u32 s{sX}, 16")
        e(f"  s_cselect_b32 s{sF}, s{sX}, s{sF}")
        e(f"  s_cselect_b32 s{rB}, s{sQK}, s{sQV}")
        e(f"  s_cselect_b32 s{rB + 1}, s{sQK + 1}, s{sQV + 1}")
        head_of(sF, sF, hU)
        e(f"  s_mul_i32 s{sF}, s{sF}, {UB}")
        e(f"  s_add_u32 s{sF}, s{sF}, {65536 * RUN[0]}")
        if P.tv:
            e(f"  v_mov_b32 {vr(vFX)}, s{sF}")
            e("  s_mov_b64 exec, 1")
            e(f"  global_load_dword {vr(vFX)}, {vr(vFX)}, s[{rB}:{rB + 1}] nt")
            e("  s_mov_b64 exec, -1")
            e("  s_waitcnt vmcnt(0)")
        else:
            e(f"  s_load_dword s{sF}, s[{rB}:{rB + 1}], s{sF} {P.tg}")
            e("  s_waitcnt lgkmcnt(0)")
        e(f"L_tw{tag}:")

    def rank_post(tag):
        if not P.ctl:
            return
        e(f"  s_bitcmp1_b32 s{sRF}, s{sNEED}")
        e(f"  s_cbranch_scc0 L_fa{tag}")
        e(f"  s_mul_i32 s{sT0}, s{sNEED}, 384")
        e(f"  s_add_u32 s{sT0}, s{sT0}, {W_RK}")
        e(f"  s_mov_b32 s{sB}, 1")
        e(f"  s_atomic_add s{sB}, s[{sWS}:{sWS + 1}], s{sT0} glc")
        e(f"L_fa{tag}:")

    def rank_take(tag):
        if not P.ctl:
            return
        e(f"  s_bitcmp1_b32 s{sRF}, s{sNEED}")
        e(f"  s_cbranch_scc0 L_fb{tag}")
        e("  s_waitcnt lgkmcnt(0)")
        e(f"  s_min_u32 s{sF}, s{sB}, 15")
        e(f"  s_lshl_b32 s{sF}, s{sF}, 1")
        e(f"  s_sub_u32 s{sF}, s{sF}, 15")
        gs = sorted(set(gain) - {0})
        e(f"  s_mov_b32 s{sT0}, {gs[0]}")
        for g_ in gs[1:]:
            e(f"  s_bitcmp1_b32 {sum(1 << m for m in range(32) if gain[m] == g_):#x}, s{sNEED}")
            e(f"  s_cselect_b32 s{sT0}, {g_}, s{sT0}")
        e(f"  s_mul_i32 s{sF}, s{sF}, s{sT0}")
        e(f"  s_add_u32 s{sF}, s{sF}, 8")
        e(f"  s_ashr_i32 s{sF}, s{sF}, 4")
        e(f"  v_mov_b32 {vr(vFX)}, s{sF}")
        e("  s_mov_b64 exec, 1")
        e(f"  global_store_dword {vr(vFB)}, {vr(vFX)}, s[{sWS}:{sWS + 1}]")
        e("  s_mov_b64 exec, -1")
        e(f"L_fb{tag}:")

    HPF = [10, 16, 18, 20, 22, 72, 74, 76, 82, 96]
    hpn = [0]

    def hpf():
        if P.tfine:
            e(f"  s_memrealtime s[{HPF[hpn[0]]}:{HPF[hpn[0]] + 1}]")
            hpn[0] += 1

    e("L_helper:")
    e(f"  s_setprio {P.hp0}")
    hv = []

    def qmask(on):
        if on:
            e("  s_mov_b32 exec_lo, 0xffffff")
            e("  s_mov_b32 exec_hi, 0xffffff")
        else:
            e("  s_mov_b64 exec, -1")

    if P.st:
        e("; start the address translation of the small arrays right away")
        e("  s_waitcnt lgkmcnt(0)")
        e(f"  s_load_dwordx8 s[24:31], s[0:1], 80")
        for k, sp in enumerate((sQ, sKS, sVS)):
            e(f"  s_load_dword s{rA + k}, s[{sp}:{sp + 1}], 0")
    e(f"  v_and_b32 {vr(vL16)}, 0x1f0, {vr(vT16)}")
    e(f"  global_load_dwordx4 {vr(pr, 4)}, {vr(vL16)}, s[{sZ}:{sZ + 1}] offset:{D_QCS - PC0}")
    e(f"  global_load_dwordx4 {vr(f0, 4)}, {vr(vL16)}, s[{sZ}:{sZ + 1}] offset:{D_F0 - PC0}")
    e(f"  v_and_b32 {vr(vSh)}, 32, v0")
    e(f"  v_lshrrev_b32 {vr(vSh)}, 1, {vr(vSh)}")
    e(f"  v_lshrrev_b32 {vr(h1)}, 1, {vr(vL16)}")
    e(f"  s_movk_i32 s{sT1}, 384")
    if not P.st:
        e("  s_waitcnt lgkmcnt(0)")
    hpf()
    for p in range(2):
        e(f"  v_lshrrev_b32 {vr(hq + p)}, {vr(vSh)}, s{sE + 10 + p}")
        e(f"  v_and_b32 {vr(h0)}, 0xff, {vr(hq + p)}")
        e(f"  v_mad_u32_u24 {vr(ra + p)}, {vr(h0)}, s{sT1}, {vr(h1)}")
    qmask(1)
    for p in range(2):
        e(f"  global_load_dwordx2 {vr(rec + 4 * p, 2)}, {vr(ra + p)}, s[{sQ}:{sQ + 1}]")
        e(f"  global_load_dwordx2 {vr(rec + 4 * p + 2, 2)}, {vr(ra + p)}, s[{sQ}:{sQ + 1}] offset:192")
        hv.extend([("q", p)] * 2)
    qmask(0)
    hpf()
    common(not P.st)
    e(f"  s_and_b32 s{sT0}, s{sE + 15}, 0x1c00")
    e(f"  s_and_b32 s{sE + 15}, s{sE + 15}, 0xff")
    e(f"  s_add_u32 s{sT0}, s{sT0}, L_hpos-L_pc")
    e(f"  v_add_u32 {vr(h0)}, s{sT0}, {vr(vT16)}")
    e(f"  global_load_dwordx4 {vr(st4, 4)}, {vr(h0)}, s[{sZ}:{sZ + 1}]")
    hv.append(("h", 0))
    e(f"  s_mov_b64 s[{sVO}:{sVO + 1}], s[{sE + 8}:{sE + 9}]")
    e(f"  v_mov_b32 {vr(l)}, v0")
    for i in range(4):
        e(f"  v_mov_b32 {vr(z4 + i)}, 0")
    for k in range(4):
        e(f"  ds_write_b128 {vr(vZ)}, {vr(z4, 4)} offset:{FL + 16 * k}")
    e(f"  s_mov_b32 s{sMASK}, 0xffff0000")
    e(f"  s_mov_b32 s{sSCALE}, {f32bits(math.log2(math.e) / math.sqrt(192.0)):#x}")
    e(f"  s_movk_i32 s{sC}, 784")
    e(f"  v_mad_u32_u24 {vr(wa)}, {vr(vSh)}, 48, {vr(vL16)}")
    e(f"  v_lshrrev_b32 {vr(vSq)}, 1, {vr(vSh)}")
    for p in range(8):
        e(f"  v_lshrrev_b32 {vr(ra + p)}, {vr(vSh)}, s{sE + p}")
    e("  s_waitcnt lgkmcnt(0)")
    hpf()
    if P.ctl:
        die_base(sF)
        e(f"  v_lshrrev_b32 {vr(h0)}, 1, {vr(l)}")
        e(f"  v_lshl_add_u32 {vr(vFX)}, {vr(h0)}, 8, s{sF}")
        e(f"  v_and_b32 {vr(h0)}, 1, {vr(l)}")
        e(f"  v_lshl_add_u32 {vr(vFX)}, {vr(h0)}, 4, {vr(vFX)}")
        e(f"  s_and_b32 s{sT1}, s{sSE}, 2")
        e(f"  s_lshl_b32 s{sT0}, s{sT1}, 9")
        e(f"  s_add_u32 s{sT0}, s{sT0}, s{sF}")
        e(f"  v_add_u32 {vr(vEL)}, s{sT0}, {vr(l)}")
        e(f"  s_lshl_b32 s{sT1}, s{sT1}, 1")
        e(f"  s_add_u32 s{sF}, s{sF}, s{sT1}")
        e(f"  s_add_u32 s{sF}, s{sF}, 2048")
        e(f"  v_mov_b32 {vr(vFB)}, s{sF}")
        e(f"  v_mul_u32_u24 {vr(vFA)}, 384, {vr(l)}")
        e(f"  v_add_u32 {vr(vFA)}, {W_RK}, {vr(vFA)}")
        e(f"  s_mov_b32 s{sRF}, 0")
        e("  s_mov_b64 exec, 0x3ffff")
        e(f"  global_store_dwordx4 {vr(vFX)}, {vr(z4, 4)}, s[{sWS}:{sWS + 1}]")
        e("  s_mov_b64 exec, -1")
    e(f"  s_waitcnt vmcnt({len(hv)})")
    for k in range(4):
        e(f"  v_lshlrev_b32 {vr(cs + k)}, 16, {vr(pr + k)}")
        e(f"  v_and_b32 {vr(cs + 4 + k)}, s{sMASK}, {vr(pr + k)}")

    def elect():
        if not P.ctl:
            return
        e(f"  s_cmp_eq_u32 s{sNEED}, {P.r0 - 1}")
        e("  s_cbranch_scc0 L_el")
        e(f"  s_bitcmp0_b32 s{sSE}, 0")
        e("  s_cbranch_scc0 L_el")
        e("  s_mov_b64 exec, 0xffff")
        e(f"  global_load_ubyte {vr(vFX)}, {vr(vEL)}, s[{sWS}:{sWS + 1}] sc1")
        e("  s_waitcnt vmcnt(0)")
        e(f"  v_cmp_ne_u32 s[{sZ}:{sZ + 1}], 0, {vr(vFX)}")
        e(f"  s_lshr_b32 s{sT0}, s{sZ}, s{sCU}")
        e(f"  s_bcnt1_i32_b32 s{sT0}, s{sT0}")
        pat = sum(1 << m for m in range(0, 32, P.rotl))
        e(f"  s_sub_u32 s{sT1}, s{sT0}, 1")
        e(f"  s_cmp_lt_u32 s{sT1}, {P.rotl}")
        e("  s_cbranch_scc0 L_el")
        e(f"  s_lshl_b32 s{sRF}, {pat:#x}, s{sT1}")
        e(f"  s_and_b32 s{sRF}, s{sRF}, {msk:#x}")
        e("L_el:")
        e("  s_mov_b64 exec, -1")

    def roleaddr(src):
        e(f"  v_bfe_u32 {vr(wb)}, {vr(src)}, 12, 2")
        e(f"  v_mul_u32_u24 {vr(h1)}, s{sC}, {vr(wb)}")
        e(f"  v_add_u32 {vr(h1)}, {QR}, {vr(h1)}")
        e(f"  v_add_u32 {vr(h0)}, {vr(h1)}, {vr(vL16)}")

    def rotate(p):
        L, Hh, LC, HS, HC, LS = x, x + 4, x + 8, x + 12, x + 16, x + 20
        roleaddr(hq + p)
        e(f"  v_mov_b32 {vr(h2)}, 0")
        qmask(1)
        if p == 0:
            hpf()
        e(f"  s_waitcnt vmcnt({hv[::-1].index(('q', p))})")
        if p == 0:
            hpf()
        for k in range(4):
            e(f"  v_lshlrev_b32 {vr(L + 2 * k)}, 16, {vr(rec + 4 * p + k)}")
            e(f"  v_and_b32 {vr(L + 2 * k + 1)}, s{sMASK}, {vr(rec + 4 * p + k)}")
        for d, q_, t_ in ((LC, L, cs), (HS, Hh, cs + 4), (HC, Hh, cs), (LS, L, cs + 4)):
            for h in (0, 2):
                e(f"  v_pk_mul_f32 {vr(d + h, 2)}, {vr(q_ + h, 2)}, {vr(t_ + h, 2)}")
        for i in range(4):
            e(f"  v_cvt_pk_bf16_f32 {vr(L + i)}, {vr(LC + i)}, {vr(HS + i)}")
            e(f"  v_cvt_pk_bf16_f32 {vr(Hh + i)}, {vr(HC + i)}, {vr(LS + i)}")
        for k in range(8):
            e(f"  v_lshlrev_b32 {vr(LC + k)}, 16, {vr(L + k)}")
            e(f"  v_and_b32 {vr(L + k)}, s{sMASK}, {vr(L + k)}")
        for h in (0, 2):
            e(f"  v_pk_add_f32 {vr(L + h, 2)}, {vr(LC + h, 2)}, {vr(L + h, 2)} neg_lo:[0,1] neg_hi:[0,1]")
            e(f"  v_pk_add_f32 {vr(Hh + h, 2)}, {vr(HS + h, 2)}, {vr(Hh + h, 2)}")
        for i in range(4):
            e(f"  v_cvt_pk_bf16_f32 {vr(Hh + i)}, {vr(L + i)}, {vr(Hh + i)}")
        for i in range(4):
            e(f"  v_lshlrev_b32 {vr(L + i)}, 16, {vr(Hh + i)}")
            e(f"  v_and_b32 {vr(Hh + i)}, s{sMASK}, {vr(Hh + i)}")
        for i in range(4):
            e(f"  v_max3_f32 {vr(h2)}, |{vr(L + i)}|, |{vr(Hh + i)}|, {vr(h2)}")
        qmask(0)
        rowred("v_max_f32", h2)
        e(f"  v_mov_b32 {vr(h3)}, {vr(h2)}")
        e("  s_nop 1")
        e(f"  v_permlane16_swap_b32 {vr(h2)}, {vr(h3)}")
        e(f"  v_max_f32 {vr(h2)}, {vr(h2)}, {vr(h3)}")
        e(f"  v_frexp_exp_i32_f32 {vr(h2)}, {vr(h2)}")
        e(f"  v_sub_u32 {vr(h3)}, 13, {vr(h2)}")
        e(f"  v_subrev_u32 {vr(h2)}, 13, {vr(h2)}")
        for i in range(8):
            e(f"  v_ldexp_f32 {vr(L + i)}, {vr(L + i)}, {vr(h3)}")
        e(f"  v_ldexp_f32 {vr(h2)}, s{sSCALE}, {vr(h2)}")
        qmask(1)
        e(f"  ds_write_b128 {vr(h0)}, {vr(L, 4)}")
        e(f"  ds_write_b128 {vr(h0)}, {vr(Hh, 4)} offset:384")
        e(f"  ds_write_b32 {vr(h1)}, {vr(h2)} offset:768")
        qmask(0)

    cu, su = x + 24, x + 28

    def angle(p):
        e(f"  v_and_b32 {vr(qn)}, 7, {vr(ra + p)}")
        e(f"  v_cvt_f32_u32 {vr(qn)}, {vr(qn)}")
        for h in (0, 2):
            e(f"  v_pk_mul_f32 {vr(su + h, 2)}, {vr(f0 + h, 2)}, {vr(qn, 2)} op_sel_hi:[1,0]")
        for i in range(4):
            e(f"  v_cos_f32 {vr(cu + i)}, {vr(su + i)}")
        for i in range(4):
            e(f"  v_sin_f32 {vr(su + i)}, {vr(su + i)}")

    def item(p):
        a_, b_, a2, b2 = x, x + 4, x + 8, x + 12
        roleaddr(ra + p)
        qmask(1)
        e(f"  ds_read_b128 {vr(a_, 4)}, {vr(h0)}")
        e(f"  ds_read_b128 {vr(b_, 4)}, {vr(h0)} offset:384")
        e(f"  ds_read_b32 {vr(qn + 2)}, {vr(h1)} offset:768")
        if p:
            angle(p)
        e(f"  v_mov_b32 {vr(qn + 3)}, {vr(wb)}")
        e(f"  v_mov_b32 {vr(h0)}, {2 * p + 2}")
        e("  s_waitcnt lgkmcnt(0)")
        for h in (0, 2):
            e(f"  v_pk_mul_f32 {vr(a2 + h, 2)}, {vr(a_ + h, 2)}, {vr(cu + h, 2)}")
            e(f"  v_pk_mul_f32 {vr(b2 + h, 2)}, {vr(b_ + h, 2)}, {vr(cu + h, 2)}")
        for h in (0, 2):
            e(f"  v_pk_fma_f32 {vr(a2 + h, 2)}, {vr(b_ + h, 2)}, {vr(su + h, 2)}, {vr(a2 + h, 2)}")
            e(f"  v_pk_fma_f32 {vr(b2 + h, 2)}, {vr(a_ + h, 2)}, {vr(su + h, 2)}, {vr(b2 + h, 2)} neg_lo:[1,0,0] neg_hi:[1,0,0]")
        for i in range(4):
            e(f"  v_cvt_pk_f16_f32 {vr(a_ + i)}, {vr(a2 + i)}, {vr(b2 + i)}")
            e(f"  v_cvt_pk_f16_f32 {vr(b_ + i)}, {vr(b2 + i)}, -{vr(a2 + i)}")
        e(f"  ds_write_b128 {vr(wa)}, {vr(a_, 4)} offset:{QB + 1536 * p}")
        e(f"  ds_write_b128 {vr(wa)}, {vr(b_, 4)} offset:{QB + 1536 * p + 384}")
        e(f"  ds_write_b64 {vr(vSq)}, {vr(qn + 2, 2)} offset:{QS + 16 * p}")
        e(f"  ds_write_b32 {vr(vZ)}, {vr(h0)} offset:{FL + 16}")
        qmask(0)

    angle(0)
    rotate(0)
    item(0)
    hpf()
    e("  s_waitcnt lgkmcnt(0)")
    e("  s_setprio 0")
    hpf()
    e("  s_barrier")
    hpf()
    for p in range(8):
        e(f"  v_and_b32 {vr(h0)}, 0x7ff, {vr(ra + p)}")
        e(f"  v_lshl_add_u32 {vr(h0)}, {vr(h0)}, 9, {vr(vL16)}")
        for i, sp in enumerate((sKS, sVS)):
            e(f"  s_mov_b32 m0, {SCB + SA * i + 1024 * p}")
            e("  s_nop 0")
            e(f"  global_load_lds_dwordx4 {vr(h0)}, s[{sp}:{sp + 1}] nt")
            hv.append(("s", p))
    rotate(1)
    for p in range(1, 8):
        item(p)
    if P.tw and P.tv < 2:
        for k in range(8):
            e(f"  v_writelane_b32 {vr(hU)}, s{sE + k}, {k}")
    e(f"  v_mov_b32 {vr(vSa)}, 0")
    e(f"  v_mov_b32 {vr(vSq)}, 0")
    e(f"  v_min_u32 {vr(u)}, 47, {vr(l)}")
    e(f"  v_lshlrev_b32 {vr(vL16)}, 4, {vr(u)}")
    for i in range(4):
        e(f"  v_mov_b32 {vr(sc + i)}, 0")
    e(f"  s_mov_b32 s{sNEED}, 1")
    e("  s_cmp_eq_u32 s2, 0")
    e("  s_cbranch_scc0 L_rc")
    e(f"  v_mov_b32 {vr(h0)}, {W_REC + 384 + 4}")
    e(f"  global_load_dword {vr(h1)}, {vr(h0)}, s[{sWS}:{sWS + 1}] sc1")
    if P.ctl:
        e(f"  s_mov_b64 exec, {msk:#x}")
        e(f"  global_store_dword {vr(vFA)}, {vr(vZ)}, s[{sWS}:{sWS + 1}] sc1")
    e("  s_mov_b64 exec, 1")
    e("  s_waitcnt vmcnt(0)")
    e(f"  v_and_b32 {vr(qn)}, 0x77777777, {vr(h1)}")
    e(f"  v_and_b32 {vr(h1)}, 0x88888888, {vr(h1)}")
    e(f"  v_add_u32 {vr(qn)}, 0x11111111, {vr(qn)}")
    e(f"  v_xor_b32 {vr(qn)}, {vr(qn)}, {vr(h1)}")
    e(f"  v_mov_b32 {vr(qn + 1)}, 1")
    e(f"  global_store_dwordx2 {vr(vZ)}, {vr(qn, 2)}, s[{sDBG}:{sDBG + 1}] sc1")
    e("  s_mov_b64 exec, -1")
    e("L_rc:")
    hpf()
    e("  s_waitcnt vmcnt(0)")
    hpf()
    if P.tfine:
        e("  s_waitcnt lgkmcnt(0)")
        e(f"  v_mov_b32 {vr(h0)}, 0")
        for k in range(hpn[0]):
            e(f"  v_writelane_b32 {vr(h0)}, s{HPF[k]}, {k}")
        e(f"  s_mul_i32 s{sT0}, s2, {5 * 256}")
        e(f"  s_add_u32 s{sT0}, s{sT0}, {0x100000 + 1024}")
        e(f"  v_lshl_add_u32 {vr(h1)}, v0, 2, s{sT0}")
        e(f"  global_store_dword {vr(h1)}, {vr(h0)}, s[{sWS}:{sWS + 1}]")
    for k in range(4):
        e(f"  v_and_b32 {vr(ro + 2 * k)}, 0xffff, {vr(st4 + k)}")
        e(f"  v_lshrrev_b32 {vr(ro + 2 * k + 1)}, 16, {vr(st4 + k)}")
    for k in range(2):
        e(f"  v_add_u32 {vr(ro + 6 + k)}, {SCB}, {vr(ro + 6 + k)}")
    if P.sd:
        e(f"  v_mov_b32 {vr(vCL)}, 0")
    e("L_hk:")
    for a in range(2):
        for k in range(2):
            e(f"  ds_read_u16_d16_hi {vr(sc + 2 * a + k)}, {vr(ro + 6 + k)} offset:{SA * a}")
    e(f"  ds_read_b64 {vr(z4 + 2, 2)}, {vr(vSq)} offset:{QS}")
    e(f"  v_add_u32 {vr(vSq)}, 8, {vr(vSq)}")
    progwait("hsw", P.psk)
    mark("s")
    rank_post("s")
    for k in range(6):
        e(f"  ds_read_b32 {vr(x + 4 + k)}, {vr(ro + k)} offset:{LGB}")
    e(f"  v_mul_f32 {vr(x + 2)}, {vr(z4 + 2)}, {vr(sc)}")
    e(f"  v_mul_f32 {vr(x + 3)}, {vr(z4 + 2)}, {vr(sc + 1)}")
    e("  s_waitcnt lgkmcnt(0)")
    e(f"  v_pk_add_f32 {vr(x, 2)}, {vr(x + 4, 2)}, {vr(x + 6, 2)}")
    e(f"  v_pk_add_f32 {vr(x, 2)}, {vr(x, 2)}, {vr(x + 8, 2)}")
    e(f"  v_mul_f32 {vr(x)}, {vr(x)}, {vr(x + 2)}")
    e(f"  v_mul_f32 {vr(x + 1)}, {vr(x + 1)}, {vr(x + 3)}")
    e(f"  v_max_f32 {vr(z4)}, {vr(x)}, {vr(x + 1)}")
    allred("v_max_f32", z4, h0)
    e(f"  v_sub_f32 {vr(x)}, {vr(x)}, {vr(z4)}")
    e(f"  v_sub_f32 {vr(x + 1)}, {vr(x + 1)}, {vr(z4)}")
    e(f"  v_exp_f32 {vr(x)}, {vr(x)}")
    e(f"  v_exp_f32 {vr(x + 1)}, {vr(x + 1)}")
    e("  s_nop 0")
    e(f"  v_add_f32 {vr(z4 + 1)}, {vr(x)}, {vr(x + 1)}")
    e(f"  v_mul_f32 {vr(x)}, {vr(x)}, {vr(sc + 2)}")
    e(f"  v_mul_f32 {vr(x + 1)}, {vr(x + 1)}, {vr(sc + 3)}")
    e(f"  v_add_f32 {vr(z4 + 2)}, {vr(x)}, {vr(x + 1)}")
    for k in range(6):
        e(f"  ds_write_b32 {vr(ro + k)}, {vr(x + (k & 1))} offset:{LGB}")
    e(f"  v_mul_f32 {vr(z4 + 2)}, {f32bits(7.5):#x}, {vr(z4 + 2)}")
    allred("v_add_f32", z4 + 1, h0)
    allred("v_add_f32", z4 + 2, h0)
    e(f"  v_mov_b32 {vr(h0)}, s{sNEED}")
    e(f"  ds_write_b128 {vr(vSa)}, {vr(z4, 4)} offset:{ST}")
    e(f"  ds_write_b32 {vr(vZ)}, {vr(h0)} offset:{FL + 20}")
    e(f"  v_add_u32 {vr(vSa)}, 16, {vr(vSa)}")
    for k in range(8):
        e(f"  v_add_u32 {vr(ro + k)}, {1536 if k < 6 else SL}, {vr(ro + k)}")
    rank_take("s")
    warm("s")
    elect()
    e("  s_waitcnt lgkmcnt(0)")
    e(f"  s_add_u32 s{sNEED}, s{sNEED}, 1")
    e(f"  s_cmp_le_u32 s{sNEED}, 16")
    e("  s_cbranch_scc1 L_hk")

    e(f"  v_and_b32 {vr(h0)}, 15, {vr(l)}")
    e(f"  v_lshlrev_b32 {vr(h0)}, 4, {vr(h0)}")
    e(f"  ds_read_b128 {vr(z4, 4)}, {vr(h0)} offset:{ST}")
    e(f"  v_lshrrev_b32 {vr(h1)}, 4, {vr(l)}")
    e(f"  v_mov_b32 {vr(h2)}, 0xff800000")
    for i in range(16):
        e(f"  v_mov_b32 {vr(AC + i)}, 0")
    e("  s_waitcnt lgkmcnt(0)")
    e(f"  v_cmp_eq_u32 vcc, {vr(h1)}, {vr(z4 + 3)}")
    e(f"  v_add_u32 {vr(h0)}, {PB}, {vr(vL16)}")
    e(f"  v_lshrrev_b32 {vr(u)}, 1, {vr(vL16)}")
    e(f"  v_cndmask_b32 {vr(vM)}, {vr(h2)}, {vr(z4)}, vcc")
    rowred("v_max_f32", vM)
    e(f"  v_sub_f32 {vr(vFc)}, {vr(z4)}, {vr(vM)}")
    e(f"  v_exp_f32 {vr(vFc)}, {vr(vFc)}")
    e(f"  s_mov_b32 s{sK}, 0")
    e(f"  v_cndmask_b32 {vr(vFc)}, 0, {vr(vFc)}, vcc")
    e(f"  v_mul_f32 {vr(vL)}, {vr(vFc)}, {vr(z4 + 1)}")
    rowred("v_add_f32", vL)
    e(f"  s_mul_i32 s{sT0}, s{sE + 15}, 384")
    e(f"  v_add_u32 {vr(u)}, s{sT0}, {vr(u)}")
    e("L_hp:")
    e(f"  s_lshr_b32 s{sT0}, s2, 4")
    e(f"  s_min_u32 s{sT0}, s{sT0}, 13")
    e(f"  s_cmp_eq_u32 s{sT0}, s{sK}")
    e("  s_cbranch_scc0 L_hc_ok")
    if P.ot == 1:
        e("; (the value is not used: address translation for the final store)")
        e(f"  s_load_dword s{sF}, s[{sOUT}:{sOUT + 1}], 0")
    if P.ot == 2:
        e("; (the value is not used: address translation for the final store)")
        e("  s_mov_b64 exec, 1")
        e(f"  global_load_dword {vr(vFX)}, {vr(vZ)}, s[{sOUT}:{sOUT + 1}]")
        e("  s_mov_b64 exec, -1")
        e("  s_waitcnt vmcnt(0)")
    e(f"  s_load_dwordx2 s[{sZ}:{sZ + 1}], s[{sDBG}:{sDBG + 1}], 0 glc")
    e("  s_waitcnt lgkmcnt(0)")
    e(f"  s_mov_b32 s{sTG}, s{sZ}")
    e(f"  s_cmp_eq_u32 s{sZ + 1}, 1")
    e("  s_cbranch_scc1 L_hc_ok")
    e("L_hc:")
    e(f"  global_load_dwordx2 {vr(pr, 2)}, {vr(vZ)}, s[{sDBG}:{sDBG + 1}] sc1")
    e("  s_waitcnt vmcnt(0)")
    e(f"  v_readfirstlane_b32 s{sTG}, {vr(pr)}")
    e(f"  v_readfirstlane_b32 s{sF}, {vr(pr + 1)}")
    e(f"  s_cmp_eq_u32 s{sF}, 1")
    e("  s_cbranch_scc1 L_hc_ok")
    budget("L_hc_ok")
    e("  s_sleep 64")
    e("  s_branch L_hc")
    e("L_hc_ok:")
    vstep_k(sH, sK)
    e(f"  s_lshl_b32 s{sT0}, s{sH}, 4")
    e(f"  v_mov_b32 {vr(h1)}, s{sT0}")
    for j in range(4):
        e(f"  v_readlane_b32 s{rA + j}, {vr(vFc)}, s{sH}")
        e(f"  s_add_u32 s{sH}, s{sH}, 16")
    e(f"  s_add_u32 s{sK}, s{sK}, 1")
    e(f"  s_add_u32 s{sNEED}, s{sK}, 16")
    progwait("hpw", P.psk)
    mark("p")
    hp(0)
    rank_post("p")
    sum_partials(1)
    for j in range(4):
        for i in range(4):
            e(f"  v_fmac_f32 {vr(AC + 4 * j + i)}, s{rA + j}, {vr(x + i)}")
    e(f"  v_add_u32 {vr(h0)}, 3072, {vr(h0)}")
    rank_take("p")
    warm("p")
    e(f"  s_cmp_lt_u32 s{sK}, 15")
    e("  s_cbranch_scc1 L_hp")

    if P.eprio:
        e(f"  s_setprio {P.eprio}")
    e(f"  s_lshr_b32 s{sH}, s{sVO + 1}, 28")
    e(f"  s_lshl_b32 s{sT0}, s{sH}, 4")
    e(f"  v_mov_b32 {vr(h1)}, s{sT0}")
    e(f"  s_add_u32 s{sH}, s{sH}, 48")
    e(f"  ds_read_b32 {vr(h1)}, {vr(h1)} offset:{ST + 8}")
    mx = x + 16
    for j in range(3):
        e(f"  v_max3_f32 {vr(mx + j)}, |{vr(AC + 4 * j)}|, |{vr(AC + 4 * j + 1)}|, |{vr(AC + 4 * j + 2)}|")
    for j in range(3):
        e(f"  v_max_f32_e64 {vr(mx + j)}, {vr(mx + j)}, |{vr(AC + 4 * j + 3)}|")
    for n in (8, 4, 2, 1):
        for j in range(3):
            e(f"  v_max_f32_dpp {vr(mx + j)}, {vr(mx + j)}, {vr(mx + j)} row_ror:{n} row_mask:0xf bank_mask:0xf")
    for sw in ("v_permlane16_swap_b32", "v_permlane32_swap_b32"):
        for j in range(3):
            e(f"  v_mov_b32 {vr(mx + 4 + j)}, {vr(mx + j)}")
        for j in range(3):
            e(f"  {sw} {vr(mx + j)}, {vr(mx + 4 + j)}")
        for j in range(3):
            e(f"  v_max_f32 {vr(mx + j)}, {vr(mx + j)}, {vr(mx + 4 + j)}")
    for j in range(3):
        e(f"  v_frexp_exp_i32_f32 {vr(mx + j)}, {vr(mx + j)}")
        e(f"  v_sub_u32 {vr(mx + 4 + j)}, 14, {vr(mx + j)}")
        e(f"  v_subrev_u32 {vr(mx + j)}, 14, {vr(mx + j)}")
        for i in range(4):
            e(f"  v_ldexp_f32 {vr(AC + 4 * j + i)}, {vr(AC + 4 * j + i)}, {vr(mx + 4 + j)}")
        for i in range(2):
            e(f"  v_cvt_pk_f16_f32 {vr(x + 2 * j + i)}, {vr(AC + 4 * j + 2 * i)}, {vr(AC + 4 * j + 2 * i + 1)}")
    for j in range(4):
        e(f"  v_readlane_b32 s{16 + j}, {vr(vM)}, {16 * j}")
        e(f"  v_readlane_b32 s{20 + j}, {vr(vL)}, {16 * j}")
    for j in range(3):
        e(f"  v_readlane_b32 s{rA + j}, {vr(mx + j)}, 0")
    e(f"  v_readlane_b32 s{rA + 3}, {vr(vFc)}, s{sH}")
    for k in range(6):
        e(f"  v_lshrrev_b32 {vr(h2)}, 1, {vr(x + k)}")
        e(f"  v_and_b32 {vr(h2)}, 0x10001, {vr(h2)}")
        e(f"  v_add_u32 {vr(x + k)}, {vr(x + k)}, {vr(h2)}")
    for j in range(3):
        e(f"  v_writelane_b32 {vr(x + 2 * j)}, s{16 + j}, 48")
        e(f"  v_writelane_b32 {vr(x + 2 * j)}, s{20 + j}, 49")
        e(f"  v_writelane_b32 {vr(x + 2 * j + 1)}, s{rA + j}, 49")
    e(f"  v_cmp_gt_u32 vcc, 48, {vr(l)}")
    e(f"  v_lshlrev_b32 {vr(h2)}, 2, {vr(l)}")
    e(f"  v_lshrrev_b32 {vr(h2)}, {vr(h2)}, s{sTG}")
    e(f"  v_mov_b32 {vr(h3)}, 0x10001")
    for i in range(2):
        e(f"  v_cndmask_b32 {vr(tg + 2 + i)}, 0, {vr(h3)}, vcc")
        e(f"  v_bfe_u32 {vr(tg + i)}, {vr(h2)}, {2 * i}, 2")
        e(f"  v_lshl_or_b32 {vr(tg + i)}, {vr(tg + i)}, 15, {vr(tg + i)}")
    e(f"  v_writelane_b32 {vr(tg + 3)}, -1, 48")
    e(f"  v_writelane_b32 {vr(tg + 3)}, s{sMASK}, 49")
    e(f"  v_writelane_b32 {vr(tg + 1)}, s{sTG}, 48")
    e(f"  v_writelane_b32 {vr(tg + 1)}, s{sTG}, 49")
    for i in range(2):
        e(f"  v_and_b32 {vr(tg + i)}, {vr(tg + i)}, {vr(tg + 2 + i)}")
    for k in range(6):
        e(f"  v_bfi_b32 {vr(x + k)}, {vr(tg + 2 + k % 2)}, {vr(tg + k % 2)}, {vr(x + k)}")
    e(f"  v_min_u32 {vr(h2)}, {63 if P.full else 55}, {vr(l)}")
    for j in range(3):
        e(f"  v_lshl_add_u32 {vr(ra + j)}, {vr(h2)}, 3, s{sE + 12 + j}")
    e(f"  s_mul_i32 s{sT0}, s{sE + 15}, {P.hpit}")
    e(f"  s_add_u32 s{sT0}, s{sT0}, {W_REC}")
    e(f"  v_lshl_add_u32 {vr(ra + 3)}, {vr(h2)}, 3, s{sT0}")
    e("  s_waitcnt lgkmcnt(0)")
    if P.mg:
        e("; the stores leave part-way into the last step, where they disturb the read stream least")
        e(f"  s_mov_b32 s{sNEED}, {31 + (P.mg > 12)}")
        progwait("hmw", P.psl, FL + 32)
    hp(1)
    if not P.full:
        e("  s_mov_b32 exec_hi, 0xffffff")
    for j in range(3):
        if "w" not in P.xp:
            e(f"  global_store_dwordx2 {vr(ra + j)}, {vr(x + 2 * j, 2)}, s[{sWS}:{sWS + 1}] sc1")
    e("  s_mov_b64 exec, -1")
    if "r" in P.xp:
        e("  s_branch L_skip")
    if P.ml:
        e(f"  s_mov_b32 s{sNEED}, {31 + (P.ml > 12)}")
        progwait("hlw", P.psl, FL + 48)
    else:
        e(f"  s_waitcnt vmcnt({P.aw})")
    hp(2)
    hp(3)
    e("L_hw:")
    hp(4)
    for j in range(3):
        e(f"  global_load_dwordx2 {vr(rec + 2 * j, 2)}, {vr(ra + 3)}, s[{sWS}:{sWS + 1}] offset:{P.pit * j} sc1")
    e("  s_waitcnt vmcnt(0)")
    hp(5)
    for k in range(6):
        e(f"  v_xor_b32 {vr(rec + k)}, {vr(rec + k)}, {vr(tg + k % 2)}")
    for i in range(2):
        e(f"  v_or3_b32 {vr(h2 + i)}, {vr(rec + i)}, {vr(rec + 2 + i)}, {vr(rec + 4 + i)}")
    e(f"  v_and_b32 {vr(h2)}, {vr(h2)}, {vr(tg + 2)}")
    e(f"  v_and_or_b32 {vr(h2)}, {vr(h3)}, {vr(tg + 3)}, {vr(h2)}")
    e(f"  v_cmp_ne_u32 s[{sZ}:{sZ + 1}], 0, {vr(h2)}")
    for j in range(3):
        e(f"  v_readlane_b32 s{16 + j}, {vr(rec + 2 * j)}, 48")
        e(f"  v_readlane_b32 s{20 + j}, {vr(rec + 2 * j)}, 49")
        e(f"  v_readlane_b32 s{rA + j}, {vr(rec + 2 * j + 1)}, 49")
    e(f"  s_cmp_eq_u64 s[{sZ}:{sZ + 1}], 0")
    e("  s_cbranch_scc1 L_hy")
    budget("L_hy")
    e("  s_branch L_hw")
    e("L_hy:")
    gj = x + 8
    e(f"  v_mov_b32 {vr(h2)}, s19")
    for j in range(3):
        e(f"  v_max_f32 {vr(h2)}, s{16 + j}, {vr(h2)}")
    for j in range(4):
        e(f"  v_sub_f32 {vr(gj + j)}, s{16 + j}, {vr(h2)}")
    for j in range(4):
        e(f"  v_exp_f32 {vr(gj + j)}, {vr(gj + j)}")
    for j in range(3):
        e(f"  s_sext_i32_i16 s{rA + j}, s{rA + j}")
    e(f"  v_mul_f32 {vr(wa)}, s23, {vr(gj + 3)}")
    for j in range(3):
        e(f"  v_fmac_f32 {vr(wa)}, s{20 + j}, {vr(gj + j)}")
    for i in range(4):
        e(f"  v_mul_f32 {vr(fo + i)}, {vr(AC + 12 + i)}, {vr(gj + 3)}")
    e(f"  v_rcp_f32 {vr(wa)}, {vr(wa)}")
    for j in range(3):
        e(f"  v_ldexp_f32 {vr(gj + j)}, {vr(gj + j)}, s{rA + j}")
    for j in range(3):
        for i in range(4):
            e(f"  v_fma_mix_f32 {vr(fo + i)}, {vr(rec + 2 * j + i // 2)}, {vr(gj + j)}, {vr(fo + i)} op_sel:[{i & 1},0,0] op_sel_hi:[1,0,0]")
    e(f"  v_mul_f32 {vr(h2)}, s{rA + 3}, {vr(gj + 3)}")
    e(f"  v_mul_f32 {vr(h2)}, {vr(h2)}, {vr(wa)}")
    e(f"  v_mul_f32 {vr(h3)}, {vr(h2)}, {vr(h1)}")
    for i in range(4):
        e(f"  v_fma_f32 {vr(fo + i)}, {vr(fo + i)}, {vr(wa)}, -{vr(h3)}")
    if "r" in P.xp:
        e("L_skip:")
    hp(6)
    e("  s_barrier")
    hp(7)
    for k in range(4):
        e(f"  ds_read_b128 {vr(x + 4 * k, 4)}, {vr(h0)} offset:{768 * k}")
    e("  s_waitcnt lgkmcnt(2)")
    for h in (0, 2):
        e(f"  v_pk_add_f32 {vr(x + h, 2)}, {vr(x + h, 2)}, {vr(x + 4 + h, 2)}")
    e("  s_waitcnt lgkmcnt(0)")
    for h in (0, 2):
        e(f"  v_pk_add_f32 {vr(x + 8 + h, 2)}, {vr(x + 8 + h, 2)}, {vr(x + 12 + h, 2)}")
    for h in (0, 2):
        e(f"  v_pk_add_f32 {vr(x + h, 2)}, {vr(x + h, 2)}, {vr(x + 8 + h, 2)}")
    for i in range(4):
        e(f"  v_fmac_f32 {vr(fo + i)}, {vr(h2)}, {vr(x + i)}")
    e(f"  v_cvt_pk_bf16_f32 {vr(fo)}, {vr(fo)}, {vr(fo + 1)}")
    e(f"  v_cvt_pk_bf16_f32 {vr(fo + 1)}, {vr(fo + 2)}, {vr(fo + 3)}")
    e("  s_mov_b32 exec_hi, 0xffff")
    e(f"  global_store_dwordx2 {vr(u)}, {vr(fo, 2)}, s[{sOUT}:{sOUT + 1}] {P.of}")
    if P.sd:
        e(f"  s_mov_b32 s{sNEED}, 32")
        e("  s_mov_b64 exec, -1")
        mark("z")
        e(f"  s_cmp_eq_u32 s{sJ}, 0")
        e("  s_cbranch_scc0 L_sd")
        e(f"  v_lshlrev_b32 {vr(h0)}, 2, {vr(l)}")
        e("  s_mov_b32 exec_lo, 0")
        e("  s_mov_b32 exec_hi, 0x3fff")
        e(f"  global_atomic_add {vr(h0)}, {vr(vCL)}, s[{sDBG}:{sDBG + 1}] offset:-120 sc1")
        e("L_sd:")
    if P.enc:
        m0, m1, base, amp, wg = [int(v) for v in P.enc.split(",")]
        if m1 == 32:
            e("  s_memrealtime s[74:75]")
        if m0 == 0:
            e(f"  s_mov_b32 s72, s{sST}")
        e("  s_waitcnt lgkmcnt(0)")
        if P.em:
            e(f"  s_not_b32 s73, s{sST}")
            e(f"  s_mov_b32 s72, s{sST}")
            e(f"  s_atomic_umax s74, s[{sDBG}:{sDBG + 1}], 40")
            e(f"  s_atomic_umax s73, s[{sDBG}:{sDBG + 1}], 44")
            e(f"  s_atomic_umax s72, s[{sDBG}:{sDBG + 1}], 48")
        else:
            e("  s_sub_u32 s72, s74, s72")
            e(f"  s_atomic_add s72, s[{sDBG}:{sDBG + 1}], 32")
        e(f"  s_cmp_eq_u32 s2, {wg}")
        e("  s_cbranch_scc0 L_nohold")
        e("L_hold0:")
        e(f"  s_memrealtime s[{sST + 2}:{sST + 3}]")
        e("  s_waitcnt lgkmcnt(0)")
        e(f"  s_sub_u32 s{sT0}, s{sST + 2}, s{sST}")
        e(f"  s_cmp_lt_u32 s{sT0}, 12500")
        e("  s_cbranch_scc1 L_hold0")
        e("  s_mov_b32 s72, 0")
        if P.em:
            e("  s_mov_b32 s73, 0")
            e(f"  s_atomic_add s72, s[{sDBG}:{sDBG + 1}], {48 if P.em == 3 else 40} glc")
            e(f"  s_atomic_add s73, s[{sDBG}:{sDBG + 1}], {48 if P.em == 2 else 44} glc")
            e("  s_waitcnt lgkmcnt(0)")
            if P.em != 2:
                e("  s_not_b32 s73, s73")
            e("  s_sub_u32 s72, s72, s73")
            e("  s_lshl_b32 s72, s72, 8")
        else:
            e(f"  s_atomic_add s72, s[{sDBG}:{sDBG + 1}], 32 glc")
            e("  s_waitcnt lgkmcnt(0)")
        e(f"  s_sub_u32 s72, s72, {base * 256}")
        e("  s_max_i32 s72, s72, 0")
        e("  s_min_i32 s72, s72, 128000")
        e(f"  s_mul_i32 s72, s72, {amp}")
        e("  s_lshr_b32 s72, s72, 8")
        e("  s_add_u32 s72, s72, 13000")
        e("L_hold:")
        e(f"  s_memrealtime s[{sST + 2}:{sST + 3}]")
        e("  s_waitcnt lgkmcnt(0)")
        e(f"  s_sub_u32 s{sT0}, s{sST + 2}, s{sST}")
        e(f"  s_cmp_lt_u32 s{sT0}, s72")
        e("  s_cbranch_scc1 L_hold")
        e("L_nohold:")
        e("  s_waitcnt lgkmcnt(0)")
    if P.pe:
        e("; diagnostic build only: pointers to d_debug, some of their bits into the run time")
        off, sh_, bits = [int(v) for v in P.pe.split(",")]
        e("  s_cmp_eq_u32 s2, 0")
        e("  s_cbranch_scc0 L_nope")
        e("  s_load_dwordx16 s[4:19], s[0:1], 0")
        e("  s_waitcnt lgkmcnt(0)")
        e("  s_mov_b64 exec, 1")
        for k, r_ in enumerate((4, 6, 7, 8, 12, 13, 14, 30, 31)):
            e(f"  v_mov_b32 v5, s{r_}")
            e(f"  global_store_dword {vr(vZ)}, v5, s[{sDBG}:{sDBG + 1}] offset:{16 + 4 * k}")
        if off < 0:
            e("  s_sub_u32 s72, s6, s12")
        else:
            e(f"  s_mov_b32 s72, s{off}")
        e(f"  s_bfe_u32 s72, s72, {bits << 16 | sh_:#x}")
        e("  s_mul_i32 s72, s72, 300")
        e("  s_add_u32 s72, s72, 13000")
        e("L_pe:")
        e(f"  s_memrealtime s[{sST + 2}:{sST + 3}]")
        e("  s_waitcnt lgkmcnt(0)")
        e(f"  s_sub_u32 s{sT0}, s{sST + 2}, s{sST}")
        e(f"  s_cmp_lt_u32 s{sT0}, s72")
        e("  s_cbranch_scc1 L_pe")
        e("L_nope:")
    if P.tail:
        e("; diagnostic build only")
        e("  s_memrealtime s[72:73]")
        e("L_tail:")
        e("  s_memrealtime s[74:75]")
        e("  s_waitcnt lgkmcnt(0)")
        e("  s_sub_u32 s74, s74, s72")
        e(f"  s_cmp_lt_u32 s74, {P.tail}")
        e("  s_cbranch_scc1 L_tail")
    if P.hold:
        e("; diagnostic build only")
        e("L_hold:")
        e(f"  s_memrealtime s[{sST + 2}:{sST + 3}]")
        e("  s_waitcnt lgkmcnt(0)")
        e(f"  s_sub_u32 s{sT0}, s{sST + 2}, s{sST}")
        e(f"  s_cmp_lt_u32 s{sT0}, {P.hold}")
        e("  s_cbranch_scc1 L_hold")
    if P.stamp:
        e(f"  s_memrealtime s[{sST + 2}:{sST + 3}]")
        if P.hprof:
            e("  s_waitcnt lgkmcnt(0)")
            e("  s_lshl_b32 s44, s2, 5")
            e("  s_add_u32 s44, s44, 0x80000")
            e("  v_mov_b32 v1, s44")
            for k in range(8):
                e(f"  s_sub_u32 s45, s{sST + 2}, s{HP[k]}")
                e(f"  v_mov_b32 v{4 + k}, s45")
            e(f"  global_store_dwordx4 v1, v[4:7], s[{sWS}:{sWS + 1}]")
            e(f"  global_store_dwordx4 v1, v[8:11], s[{sWS}:{sWS + 1}] offset:16")
            e("  s_nop 2")
        e("  s_getreg_b32 s6, hwreg(HW_REG_XCC_ID)")
        e("  s_getreg_b32 s7, hwreg(HW_REG_HW_ID)")
        e("  s_waitcnt lgkmcnt(0)")
        e(f"  v_mov_b32 v4, s{sST}")
        e(f"  v_mov_b32 v5, s{sST + 2}")
        e("  v_mov_b32 v6, s6")
        e("  v_mov_b32 v7, s7")
        e("  s_lshl_b32 s8, s2, 4")
        e("  v_mov_b32 v1, s8")
        e(f"  global_store_dwordx4 v1, v[4:7], s[{sWS}:{sWS + 1}]")
    e("L_end:")
    e("  s_endpgm")
    e(".p2align 6")
    e(".type L_order,@object")
    e("L_order:")
    for k in range(0, len(ordtab), 8):
        e("  .long " + ", ".join(f"{v:#x}" for v in ordtab[k:k + 8]))
    e(".type L_hpos,@object")
    e("L_hpos:")
    for b in range(6):
        at = {chunk_of(b & 1, n, s_, b >> 1): lpos(n, s_) for n in range(24) for s_ in range(16)}
        rows = sorted({c // 3 for c in at})
        for l_ in range(64):
            r0, r1 = rows[l_], rows[l_ + 64]
            e("  .long " + ", ".join(f"{a_ | b_ << 16:#x}" for a_, b_ in [(at[3 * r0 + k], at[3 * r1 + k]) for k in range(3)] + [(2 * r0, 2 * r1)]))
    e('.section .rodata,"a"')
    e(".p2align 6")
    e(f".amdhsa_kernel {NAME}_kernel")
    e(f"  .amdhsa_next_free_vgpr {NV}")
    e("  .amdhsa_next_free_sgpr 100")
    e(f"  .amdhsa_accum_offset {(NV + 3) // 4 * 4}")
    e("  .amdhsa_group_segment_fixed_size 0")
    e("  .amdhsa_kernarg_size 112")
    e("  .amdhsa_user_sgpr_count 2")
    e("  .amdhsa_user_sgpr_kernarg_segment_ptr 1")
    e("  .amdhsa_system_sgpr_workgroup_id_x 1")
    e(".end_amdhsa_kernel")
    return "\n".join(o) + "\n", NV


if __name__ == "__main__":
    ap = argparse.ArgumentParser()
    ap.add_argument("-o", default=f"/code/{NAME}.s")
    for name, d in (("sh", 4), ("deep", 5), ("pd", 9), ("pre", 12), ("nf", 5), ("su", 3), ("hp0", 3), ("tst", 24),
                    ("ctl", 1), ("hi", 2), ("hiv", 7), ("lo", -28), ("thr", 2), ("tp", 2), ("start", 5), ("s0", 0), ("ba", 3),
                    ("r0", 2), ("r1", 30), ("rf", 3), ("rp", 2), ("rt", 26), ("rotl", 7), ("kp", 7), ("kp0", 6), ("kn", 20),
                    ("tw", 3), ("tv", 2), ("ts", 1), ("st", 1), ("ot", 0), ("pit", 512), ("hpit", 1536), ("full", 1), ("tk", 0), ("tl", 4), ("top", 18), ("tpd", 4), ("tpv", 4), ("tpn", 1), ("lag", 2), ("mg", 8), ("ml", 0), ("aw", 0), ("sd", 0), ("em", 0), ("tail", 0),
                    ("eprio", 2), ("psl", 1), ("psk", 1), ("spr", 1), ("bound", 4000000), ("hold", 0), ("dly", 0), ("dlb", 2)):
        ap.add_argument("--" + name, type=int, default=d)
    ap.add_argument("--kp_", default="6,6,6,7,8,9,9,10,10,11,11,12,12", help="K loads issued by each prologue point")
    ap.add_argument("--of", default="")
    ap.add_argument("--enc", default="", help="diagnostic only: m0,m1,base,amp,wg")
    ap.add_argument("--ok", default="REXbLbLbL", help="events of a K group")
    ap.add_argument("--ov", default="REXbLbLbL", help="events of a V group")
    ap.add_argument("--rk", default="", help="die gain per step (hex digits, 0 = no ranking)")
    ap.add_argument("--sb", default="", help="step:bias,... added to the lateness")
    ap.add_argument("--pf", default="sc1")
    ap.add_argument("--tpp", default="012", help="positions with a third level")
    ap.add_argument("--pe", default="", help="diagnostic only")
    ap.add_argument("--tm", default="5,10,11,16,21,26")
    ap.add_argument("--tg", default="")
    ap.add_argument("--bu", default="012", help="extra depth per position in the issued group")
    ap.add_argument("--th", default="-9,5,13")
    ap.add_argument("--sch", default="ut_c2.txt")
    ap.add_argument("--xp", default="", help="timing experiments only")
    for name in ("stamp", "trace", "tfine", "hprof"):
        ap.add_argument("--" + name, action="store_true", help="diagnostics only")
    a = ap.parse_args()
    txt, nv = gen(a)
    open(a.o, "w").write(txt)
    print("wrote", a.o, "vgprs", nv)
```

```python
import argparse
import math
import os
import struct
from gen import HEADER, NAME, Alloc, f32bits, vr

UB = 256 * 768

ABOUT = """
Generated by tools/gen11.py.
Work split: a unit is a block of 256 KV rows of one head.  Workgroups g and g ^ 8 share 16 units of four heads (table
  L_order) and alternate over the 32 KiB runs of a unit, 128 rows each; the order of the runs is rotated per pair.
  Waves 1-4 stream one 4 KiB block per round; a 16-lane row handles one third (64 dims) of a KV row per load.
  K sweep: logit = k_scale * sum_d (qk - 7.5) * (qa * cos + qb * sin), RoPE moved onto the rotated q;
  V sweep: partial = sum_rows p * v_scale * qv.
  Wave 0 (helper) rotates q, takes max / exp / sums over the workgroup's rows of each unit, and merges partials.
Constant parameters (the same for every seed) are built in: both zero points (7.5), q_cos / q_sin (table L_qcs) and
  k_cos / k_sin = cos / sin(row * inv_freq).  The angle is split into the part of the row inside its unit (f16 table in
  LDS, evaluated once from L_inv) and the part of the unit (L_f0), by which (qa, qb) is turned in fp32.
Hand-off: every workgroup finishes one of its heads and streams a unit of that head last.  Partials and (max, sum) of
  the other three go to d_ws with sc1 stores; every 8 bytes carry a piece of a tag that differs from the one found there
  on entry (sent round through d_debug).  The finisher reads until all tags fit and rescales to the true row maximum.
Flow control (speed only, results do not depend on it): waves publish a group counter and sample the counters of
  units on the same die; late waves keep one more load in flight, early waves one or two fewer.  Helpers rank the dies.
"""

RUN = (1, 2, 0)


def chunk_of(b, n, s, d):
    g = 256 * ((RUN[n >> 3] + d) % 3) + 128 * b + 16 * (n & 7) + s
    return {128: 512, 255: 639, 512: 128, 639: 255}.get(g, g)


def tidx(b, row):
    return row - 43 * b - 42 * ((row >= 85) + (row >= 171))


def rev(x, bits):
    return int(format(x, f"0{bits}b")[::-1], 2)


def lpos(n, s):
    return 4 * (16 * s + rev(n, 4)) if n < 16 else 1024 + 4 * (8 * s + rev(n - 16, 3))


TN = [(RUN[n >> 3] + (n & 7)) % 3 for n in range(24)]
SPECIAL = {n: i for i, n in enumerate((0, 7, 8, 15, 16, 23))}
for b_ in range(2):
    for d_ in range(3):
        ch = sorted(chunk_of(b_, n, s, d_) for n in range(24) for s in range(16))
        assert ch == sorted(3 * r + k for r in {c // 3 for c in ch} for k in range(3))
        assert all(chunk_of(b_, n, s, d_) % 3 == (TN[n] + d_ + 2 * b_ + s) % 3 for n in range(24) for s in range(16))
        assert len({tidx(b_, c // 3) for c in ch}) == 128 and max(tidx(b_, c // 3) for c in ch) == 128


def gen(P):
    o = []
    e = o.append
    RING, PD = 24, P.pd
    sh, deep = P.sh, P.deep
    PRE = P.pre
    TP = P.tp
    LAG = P.lag
    assert deep <= PD - 1 and sh <= deep and PD <= PRE
    SL = 512
    SA = 16 * SL

    FL = 0
    QS = 128
    ST = 256
    TB = 512
    QB = TB + 129 * 384
    LGB = QB + 16 * 768 + 1536
    SCB = LGB + 16 * 1536
    PB = SCB + 2 * SA
    QR = PB + 49152
    LDS = QR + 4 * 784
    assert 81920 < LDS <= 163840
    W_REC = 0x600000
    W_RK = 0x780000
    W_PL = 0x7c0000

    sQ, sQK, sKS, sKZ, sQV, sVS, sVZ, sQC = 4, 6, 8, 10, 12, 14, 16, 18
    sQS, sKC, sKSN, sOUT = 20, 22, 24, 26
    sDBG, sWS = 28, 30
    rA, rB = 32, 36
    sW, sJ, sC, sK, sT0, sT1, sF, sNEED = 40, 41, 42, 43, 44, 45, 46, 47
    sMSK = 48
    sOF = 51
    sE = 48
    sR0 = 60
    sCO = 61
    sZ = 64
    sMASK, sSCALE, sH = 66, 67, 68
    sS = 69
    sX = 70
    sRF = 80
    sST = 84
    sB = 91
    sVO = 92
    sSP = 94
    sI = 95
    sSE, sCU = 81, 79
    sLO = 78
    sTG = 99

    va = Alloc(1)
    vT16, vF, vZ, vC16 = [va.take(1) for _ in range(4)]
    voff = va.take(9)
    vTA = va.take(15)
    vQA = va.take(3)
    vPA = va.take(3)
    vLG = va.take(2)
    vLB = va.take(2)
    vLV = va.take(2)
    A = va.take(2)
    LG = va.take(2)
    M1, M2, M3 = [va.take(1) for _ in range(3)]
    bc = va.take(2, 2)
    dacc = va.take(2, 2)
    wt = va.take(4, 2)
    vtr, vPW, vPS, vN, vSum, vSu2, vBA = [va.take(1) for _ in range(7)]
    vPL = va.take(4)
    vU = va.take(1)
    vBI = va.take(2, 2)
    smp = va.take(4 * LAG, 4)
    qa = va.take(12, 4)
    tab = va.take(24, 4)
    tmp = va.take(12, 4)
    ring = va.take(4 * RING, 4)
    NV = va.n
    acc = qa

    here = os.path.dirname(os.path.abspath(__file__))
    sch = [[int(x) for x in ln.split()] for ln in open(os.path.join(here, P.sch))]
    pair = lambda g: ((g & 7) << 3) + (g >> 4 & 7) + (g >> 7 << 6)
    assert all(sch[g][32:] == [pair(g) % 3] * 3 for g in range(256))
    assert all(((16 * p_ + 13) * 21846 & 0xffff) * 3 >> 16 == (p_ + 1) % 3 for p_ in range(128))
    sch = [x[:32] for x in sch]
    inv, qcs = [[int(x, 16) for x in ln.split()] for ln in open(os.path.join(here, "consts.txt"))]
    rev_ = [struct.unpack("<f", struct.pack("<I", v))[0] / (2 * math.pi) for v in inv]
    assert sorted(2 * u_ + (g >> 3 & 1) for g in range(256) for u_ in sch[g][:16]) == list(range(4096))
    assert sorted(x[31] >> 3 for x in sch) == list(range(256))
    fill = [0] * 256
    ordtab = []
    for g in range(256):
        ku, own = sch[g][:16], sch[g][31] >> 3
        od = [ku.index(u_) for u_ in sch[g][16:]]
        assert sorted(od) == list(range(16)) and od[0] < 14
        assert ku[0] == (16 * (((g & 7) << 3) + (g >> 4 & 7) + (g >> 7 << 6)) + 14) * 21846 >> 16
        need = list(dict.fromkeys(u_ >> 3 for u_ in ku))
        heads = [h for h in need if h != own] + [own]
        assert len(heads) == 4
        u16 = [u_ | heads.index(u_ >> 3) << 12 for u_ in ku]
        nib = sum(k << (4 * t) for t, k in enumerate(od))
        hq = [h | heads.index(h) << 12 for h in need]
        dst = []
        for h in heads[:3]:
            dst.append(W_REC + P.hpit * h + P.pit * fill[h])
            fill[h] += 1
        ordtab += [u16[2 * i] | u16[2 * i + 1] << 16 for i in range(8)]
        ordtab += [nib & 0xffffffff, nib >> 32, hq[0] | hq[1] << 16, hq[2] | hq[3] << 16] + dst + [own | (2 * (pair(g) % 3) + (g >> 3 & 1)) << 10]
    assert fill == [3] * 256

    def ld(n):
        rr = rA if n < 24 else rB
        n %= 24
        so = f"s{sOF + (n & 7)}" if n & 7 else "0"
        vo = voff + (3 + SPECIAL[n] if n in SPECIAL else n >> 3)
        e(f"  buffer_load_dwordx4 {vr(ring + 4 * n, 4)}, {vr(vo)}, s[{rr}:{rr + 3}], {so} offen nt")

    ORD = {"K": P.ok, "V": P.ov}
    DIST = {"K": PRE, "V": PD}
    bu = [int(x) for x in P.bu]
    th = [int(x) for x in P.th.split(",")]
    assert PD % 3 == 0 and PRE % 3 == 0 and deep == sh + 1

    def memops(ph, a):
        r = []
        for i, c in enumerate(ORD[ph]):
            if c == "X" and P.ctl:
                r += [(i, "B")] * (a == P.ba) + [(i, "S"), (i, "Q")]
            if c == "L":
                r.append((i, "L"))
        return r

    def back(ph, a, i):
        r = [c for j, c in memops(ph, a) if j < i][::-1]
        for k in range(1, 8):
            r += [c for _, c in memops(ph, (a - k) % 8)][::-1]
        return r

    def cnt(ph, a, i, depth):
        depth += bu[ORD[ph][:i].count("L")]
        r = back(ph, a, i)
        return [k + 1 for k, c in enumerate(r) if c == "L"][depth - 2] if depth > 1 else 0

    def swait(ph, a):
        assert ORD[ph].index("E") < ORD[ph].index("X")
        r = back(ph, a, ORD[ph].index("E"))
        return [k for k, c in enumerate(r) if c == "Q"][LAG - 1]

    plain = {}

    def verify():
        ops = [("L", i) for i in range(PRE)]
        done = ORD["K"][:ORD["K"].index("L")].count("b")
        for g in range(256):
            ph, a = "KV"[g >= 128], g % 8
            if 3 * g + PD >= 768 or 128 <= g < 128 + (PRE - PD) // 3:
                for n in range(3 * g, 3 * g + 4 - (g == 255)):
                    plain[n] = len(ops) - 1 - ops.index(("L", n))
                done = max(done, len(ops) - plain[min(3 * g + 3, 767)])
                continue
            nb = nl = 3 * g
            for i, c in enumerate(ORD[ph]):
                if c == "E" and P.ctl:
                    done = max(done, len(ops) - swait(ph, a))
                if c == "X" and P.ctl:
                    ops += [("X", 0)] * (1 + (a == P.ba))
                if c == "b":
                    assert ("L", nb) in ops[:done], nb
                    nb += 1
                if c == "L":
                    done = max(done, len(ops) - cnt(ph, a, i, deep + P.tpn * (P.top < 99 and str(nl % 3) in P.tpp) if P.ctl else sh))
                    ops.append(("L", nl + DIST[ph]))
                    nl += 1
    verify()
    lab = [0]
    rare = []

    def flush():
        o.extend(rare)
        rare.clear()

    def issue(ph, a, i):
        j = ORD[ph][:i].count("L")
        lab[0] += 1
        if P.ctl and j == TP:
            e(f"  s_cmp_lt_i32 s{sS}, {P.lo}")
            e(f"  s_cbranch_scc1 L_t{lab[0]}")
            rare.extend([f"L_t{lab[0]}:", f"  s_waitcnt vmcnt({cnt(ph, a, i, P.thr + 1)})", f"  s_branch L_p{lab[0]}"])
        if P.ctl:
            t = (P.hi if ph == "K" else P.hiv) + th[j]
            tp_ = P.top + P.tpd * j + (0 if ph == "K" else P.tpv)
            assert P.lo <= t < tp_
            top = P.top < 99 and str(j) in P.tpp
            w = lambda d: f"  s_waitcnt vmcnt({cnt(ph, a, i, d)})"
            back = f"  s_branch L_p{lab[0]}"
            if t < 0:
                if top:
                    e(f"  s_sub_u32 s{sT0}, s{sS}, {t + 1}")
                    e(f"  s_cmp_lt_u32 s{sT0}, {tp_ - t}")
                    rare.extend([f"L_q{lab[0]}:", w(deep + P.tpn), f"  s_cmp_gt_i32 s{sS}, 0", f"  s_cbranch_scc1 L_p{lab[0]}", w(sh), back])
                else:
                    e(f"  s_cmp_gt_i32 s{sS}, {t}")
                    rare.extend([f"L_q{lab[0]}:", w(sh), back])
                e(f"  s_cbranch_scc0 L_q{lab[0]}")
                e(w(deep))
                e(f"L_p{lab[0]}:")
            elif top:
                e(f"  s_cmp_gt_i32 s{sS}, {t}")
                e(f"  s_cbranch_scc1 L_q{lab[0]}")
                rare.extend([f"L_q{lab[0]}:", w(deep + P.tpn), f"  s_cmp_gt_i32 s{sS}, {tp_}", f"  s_cbranch_scc1 L_p{lab[0]}", w(deep), back])
                e(w(sh))
                e(f"L_p{lab[0]}:")
            else:
                e(f"  s_cmp_gt_i32 s{sS}, {t}")
                e(f"  s_cbranch_scc1 L_p{lab[0]}")
                e(w(sh))
                e(f"L_p{lab[0]}:")
                e(w(deep))
        else:
            e(f"  s_waitcnt vmcnt({cnt(ph, a, i, sh)})")
        ld(3 * a + j + DIST[ph])
        if ph == "V" and 3 * a + j + 1 == P.mg:
            e(f"  ds_write_b32 {vr(vPW)}, {vr(M1)} offset:{FL + 32}")
        if ph == "V" and 3 * a + j + 1 == P.ml:
            e(f"  ds_write_b32 {vr(vPW)}, {vr(M1)} offset:{FL + 48}")

    def evaluate(ph, a):
        if not P.ctl:
            return
        sm = smp + 4 * (a % LAG)
        e(f"  s_waitcnt vmcnt({swait(ph, a)})")
        if a == (P.ba + LAG) % 8:
            e(f"  v_add_u32 {vr(vBI)}, {vr(vBI)}, {vr(vBI + 1)}")
        e(f"  s_add_u32 s{sT0}, s{sLO}, 0x03030303")
        e(f"  v_msad_u8 {vr(vSum)}, s{sLO}, {vr(sm)}, 0")
        e(f"  v_msad_u8 {vr(vSu2)}, s{sT0}, {vr(sm)}, 0")
        if a == (P.ba + LAG) % 8:
            e(f"  v_readfirstlane_b32 s{sB}, {vr(vBI)}")
        for k in range(1, 3):
            e(f"  v_msad_u8 {vr(vSum)}, s{sLO}, {vr(sm + k)}, {vr(vSum)}")
            e(f"  v_msad_u8 {vr(vSu2)}, s{sT0}, {vr(sm + k)}, {vr(vSu2)}")
        e(f"  v_sub_u32 {vr(vSum)}, {vr(vSum)}, {vr(vSu2)}")
        e(f"  s_add_u32 s{sLO}, s{sLO}, 0x01010101")
        e(f"  v_readlane_b32 s{sMASK}, {vr(vSum)}, 0")
        e(f"  v_readlane_b32 s{sSCALE}, {vr(vSum)}, 1")

    def decide(ph, a):
        if not P.ctl:
            return
        if a == (P.ba + LAG) % 8:
            for it in filter(None, P.sb.split(",")):
                st_, b_ = [int(v) for v in it.split(":")]
                if (st_ >= 16) == (ph == "V"):
                    e(f"  s_cmp_eq_u32 s{sK}, {st_ % 16}")
                    e(f"  s_cselect_b32 s{sT0}, {b_}, 0")
                    e(f"  s_add_u32 s{sB}, s{sB}, s{sT0}")
        cur, old = (sI, sCO) if a & 1 else (sCO, sI)
        e(f"  s_add_u32 s{cur}, s{sMASK}, s{sSCALE}")
        e(f"  s_add_u32 s{sS}, s{cur}, s{old}")
        e(f"  s_ashr_i32 s{sS}, s{sS}, 1")
        e(f"  s_add_u32 s{sS}, s{sS}, s{sB}")
        if ph == "K" and a < P.start:
            e(f"  s_cmp_eq_u32 s{sK}, 0")
            e(f"  s_cselect_b32 s{sS}, {P.s0}, s{sS}")

    def exchange(a):
        if not P.ctl:
            return
        e("  s_mov_b64 exec, 1")
        if a == P.ba:
            e(f"  global_load_dwordx2 {vr(vBI, 2)}, {vr(vBA)}, s[{sWS}:{sWS + 1}] {P.pf}")
        e(f"  global_store_byte {vr(vPS)}, {vr(vN)}, s[{sWS}:{sWS + 1}]")
        e("  s_mov_b64 exec, 3")
        e(f"  global_load_dwordx3 {vr(smp + 4 * (a % LAG), 3)}, {vr(vPL + a % 4)}, s[{sWS}:{sWS + 1}] {P.pf}")
        e(f"  v_add_u32 {vr(vN)}, 1, {vr(vN)}")
        e("  s_mov_b64 exec, -1")

    def srd_head(rr, sp, sh_):
        e(f"  s_mul_i32 s{sT0}, s{sh_}, {UB}")
        e(f"  s_add_u32 s{rr}, s{sp}, s{sT0}")
        e(f"  s_addc_u32 s{rr + 1}, s{sp + 1}, 0")

    def vstep_k(dst, src):
        e(f"  s_lshl_b32 s{dst}, s{src}, 2")
        e(f"  s_lshr_b64 s[{sZ}:{sZ + 1}], s[{sVO}:{sVO + 1}], s{dst}")
        e(f"  s_and_b32 s{dst}, s{sZ}, 15")

    def head_of(dst, slot, vU=vU):
        e(f"  s_lshr_b32 s{sT0}, s{slot}, 1")
        e(f"  v_readlane_b32 s{sZ}, {vr(vU)}, s{sT0}")
        e(f"  s_lshl_b32 s{sT0}, s{slot}, 4")
        e(f"  s_lshr_b32 s{sZ}, s{sZ}, s{sT0}")
        e(f"  s_and_b32 s{dst}, s{sZ}, 0x7ff")

    def budget(ok):
        e(f"  s_cmp_eq_u32 s{sSP}, 0")
        e(f"  s_cbranch_scc1 {ok}")
        e(f"  s_sub_u32 s{sSP}, s{sSP}, 1")

    def flagwait(name, off):
        e(f"L_{name}:")
        e("  s_waitcnt lgkmcnt(0)")
        e(f"  v_readfirstlane_b32 s{sF}, {vr(vF)}")
        e(f"  s_cmp_ge_u32 s{sF}, s{sNEED}")
        e(f"  s_cbranch_scc0 L_{name}_no")
        e(f"L_{name}_ok:")
        rare.extend([f"L_{name}_no:", f"  s_cmp_eq_u32 s{sSP}, 0", f"  s_cbranch_scc1 L_{name}_ok", f"  s_sub_u32 s{sSP}, s{sSP}, 1",
                     f"  ds_read_b32 {vr(vF)}, {vr(vZ)} offset:{off}", f"  s_branch L_{name}"])

    def tr():
        if P.trace:
            e(f"  {'s_memtime' if 'm' in P.xp else 's_memrealtime'} s[88:89]")
            e("  s_waitcnt lgkmcnt(0)")
            e(f"  v_writelane_b32 {vr(vtr)}, s88, m0")
            e("  s_add_u32 m0, m0, 1")
            e("  s_min_u32 m0, m0, 63")

    def die_base(dst):
        e(f"  s_getreg_b32 s{sSE}, hwreg(HW_REG_HW_ID, 8, 7)")
        e(f"  s_getreg_b32 s{dst}, hwreg(HW_REG_XCC_ID, 0, 3)")
        e(f"  s_and_b32 s{sCU}, s{sSE}, 15")
        e(f"  s_lshr_b32 s{sSE}, s{sSE}, 5")
        e(f"  s_mul_i32 s{dst}, s{dst}, 4352")
        e(f"  s_add_u32 s{dst}, s{dst}, {W_PL}")

    ha = Alloc(16)
    l, u, h0, h1, h2, h3 = [ha.take(1) for _ in range(6)]
    wa, wb, vSh, vFc, vM, vL = [ha.take(1) for _ in range(6)]
    ro = ha.take(8)
    vL16, vFA, vFX, vFB, vEL, vCL, vSa, vSq = [ha.take(1) for _ in range(8)]
    hq = ha.take(2)
    hU = ha.take(1)
    z4 = ha.take(4, 4)
    cs = ha.take(8, 4)
    f0 = ha.take(4, 4)
    sc = ha.take(4, 4)
    qn = ha.take(4, 4)
    x = ha.take(32, 4)
    pr = ha.take(4, 4)
    fo = ha.take(4, 4)
    rec = ha.take(8, 4)
    AC = ha.take(16, 4)
    st4 = ha.take(4, 4)
    tg = ha.take(4, 4)
    ra = ha.take(8)
    assert ha.n <= NV and vZ < 16

    invX, invY, tK, tA, tN, tO = tmp, tmp + 4, tmp + 8, tab, tab + 4, tab + 8
    PC0 = 20 + 8 * P.stamp + 16 * (P.dly > 0)
    D_INV, D_QCS, D_F0, D_END = 256, 768, 1152, 1536
    NF = P.nf
    assert RUN[0] == 1 and NF <= 8
    e(HEADER.rstrip("\n"))
    e(f"; @launch grid=(256,1,1) block=(320,1,1) lds={LDS}")
    for ln in ABOUT.strip("\n").split("\n"):
        e("; " + ln)
    e('.amdgcn_target "amdgcn-amd-amdhsa--gfx950"')
    e(".text")
    e(f".globl {NAME}_kernel")
    e(".p2align 8")
    e(f".type {NAME}_kernel,@function")
    e(f"{NAME}_kernel:")
    e("  s_cmpk_ge_u32 s2, 0x100")
    e("  s_cbranch_scc1 L_end")
    if P.dly:
        e("; diagnostic build only: half of the dies start late")
        e(f"  s_getreg_b32 s4, hwreg(HW_REG_XCC_ID, {P.dlb}, 1)")
        e("  s_cmp_eq_u32 s4, 0")
        e("  s_cbranch_scc1 L_dly")
        e(f"  s_sleep {P.dly}")
        e("L_dly:")
    if P.stamp:
        e(f"  s_memrealtime s[{sST}:{sST + 1}]")
    e("  s_load_dwordx16 s[4:19], s[0:1], 0")
    e(f"  s_getpc_b64 s[{sZ}:{sZ + 1}]")
    e("L_pc:")
    e("  v_cmp_gt_u32 vcc, 64, v0")
    e(f"  v_lshlrev_b32 {vr(vT16)}, 4, v0")
    e(f"  s_lshr_b32 s{sK}, s2, 4")
    e(f"  s_lshl_b32 s{sF}, s2, 6")
    e(f"  s_add_u32 s{sF}, s{sF}, L_order-L_pc")
    e(f"  s_and_b32 s{sH}, s2, 7")
    e("  s_cbranch_vccz L_s0")
    e(f"  s_load_dwordx16 s[{sE}:{sE + 15}], s[{sZ}:{sZ + 1}], s{sF}")
    if P.st == 2:
        e(f"  s_load_dwordx8 s[24:31], s[0:1], 80")
    e(f"  v_lshl_add_u32 {vr(h0)}, s{sK}, 6, v0")
    e(f"  v_mul_u32_u24 {vr(h0)}, {P.tst}, {vr(h0)}")
    e(f"  global_load_dword {vr(h3)}, {vr(h0)}, s[{sZ}:{sZ + 1}] offset:{D_QCS - PC0}")
    e("  s_branch L_helper")
    e("L_s0:")
    e(f"  v_and_b32 {vr(vC16)}, 0xf0, {vr(vT16)}")
    e(f"  global_load_dwordx4 {vr(invX, 4)}, {vr(vC16)}, s[{sZ}:{sZ + 1}] offset:{D_INV - PC0}")
    e(f"  global_load_dwordx4 {vr(invY, 4)}, {vr(vC16)}, s[{sZ}:{sZ + 1}] offset:{D_INV + 256 - PC0}")
    e(f"  s_and_b32 s{sT1}, s{sK}, 8")
    e(f"  s_add_u32 s{sH}, s{sH}, s{sT1}")
    e(f"  s_and_b32 s{sT1}, s{sK}, 7")
    e(f"  s_lshl3_add_u32 s{sH}, s{sH}, s{sT1}")
    e(f"  s_lshl4_add_u32 s{sH}, s{sH}, 14")
    e(f"  s_mulk_i32 s{sH}, 21846")
    e(f"  s_lshr_b32 s{sC}, s{sH}, 16")
    e(f"  s_addk_i32 s{sH}, -21846")
    e(f"  s_lshl_b32 s{sH}, s{sH}, 16")
    e(f"  s_mul_hi_u32 s{sR0}, s{sH}, 3")
    e(f"  s_mul_i32 s{sT0}, s{sC}, {UB}")
    e(f"  s_and_b32 s{sT1}, s2, 8")
    e(f"  s_lshl4_add_u32 s{sT1}, s{sR0}, s{sT1}")
    e(f"  s_lshl_b32 s{sT1}, s{sT1}, 12")
    e(f"  s_add_u32 s{sT0}, s{sT0}, s{sT1}")
    e(f"  s_addk_i32 s{sT0}, {4096 - 1024}")
    e(f"  v_add_u32 {vr(tA)}, s{sT0}, {vr(vT16)}")
    for k in range(1, (NF + 1) // 2):
        e(f"  v_add_u32 {vr(tA + k)}, {8192 * k}, {vr(tA)}")
    e("  s_waitcnt lgkmcnt(0)")
    for n in range(NF):
        e(f"  global_load_dwordx4 {vr(ring + 4 * n, 4)}, {vr(tA + n // 2)}, s[{sQK}:{sQK + 1}] offset:{4096 * (n % 2) - 4096} nt")
    e("  s_branch L_s1")
    e("L_b0:")
    e(f".if (L_b0 - {NAME}_kernel > {D_INV}) || (L_pc - {NAME}_kernel != {PC0})")
    e('.error "entry block layout"')
    e(".endif")
    e(".p2align 8")
    e(".type L_inv,@object")
    e("L_inv:")
    tb = [f32bits(v) for v in rev_[:64] + rev_[64:] + rev_[64:]]
    for k in range(0, 128, 8):
        e("  .long " + ", ".join(f"{v:#x}" for v in tb[k:k + 8]))
    e(".type L_qcs,@object")
    e("L_qcs:")
    for k in range(0, 96, 8):
        e("  .long " + ", ".join(f"{v:#x}" for v in qcs[k:k + 8]))
    e(".type L_f0,@object")
    e("L_f0:")
    for k in range(0, 96, 8):
        e("  .long " + ", ".join(f"{f32bits(256 * v - round(256 * v)):#x}" for v in rev_[k:k + 8]))

    def common(ld_=True):
        if ld_:
            e(f"  s_load_dwordx8 s[24:31], s[0:1], 80")
        e(f"  v_mov_b32 {vr(vZ)}, 0")
        e(f"  s_mov_b32 s{sSP}, {P.bound}")
        e(f"  s_bfe_u32 s{sJ}, s2, 0x10003")

    PFR = [4, 10, 14, 62, 72, 74, 76, 82, 86, 96, 98]
    pfn = [0]

    def pf():
        if P.tfine:
            e(f"  {'s_memtime' if 'm' in P.xp else 's_memrealtime'} s[{PFR[pfn[0]]}:{PFR[pfn[0]] + 1}]")
            pfn[0] += 1

    e("L_s1:")
    w_, s_, vAD, vC8, t0, t1 = wt, wt + 1, wt + 2, wt + 3, dacc, dacc + 1
    vRF, pos = vT16, tK + 3
    if P.trace:
        e(f"  v_mov_b32 {vr(vtr)}, 0")
        e("  s_mov_b32 m0, 0")
    pf()
    e("  v_subrev_u32 v0, 64, v0")
    e(f"  s_setprio {P.spr}")
    e(f"  s_load_dwordx8 s[16:23], s[{sZ}:{sZ + 1}], s{sF}")
    e(f"  s_add_u32 s{sF}, s{sF}, 32")
    e(f"  s_load_dwordx2 s[{sVO}:{sVO + 1}], s[{sZ}:{sZ + 1}], s{sF}")
    e(f"  s_movk_i32 s{sNEED}, 768")
    common()
    e(f"  v_lshrrev_b32 {vr(w_)}, 6, v0")
    e(f"  v_lshrrev_b32 {vr(s_)}, 4, v0")
    e(f"  v_and_b32 {vr(vC8)}, 0x70, {vr(vC16)}")
    e(f"  v_readfirstlane_b32 s{sW}, {vr(w_)}")
    e(f"  v_add_u32 {vr(vAD)}, {vr(vC8)}, {vr(s_)}")
    e(f"  s_mul_i32 s{sT0}, s{sJ}, 44")
    e(f"  s_sub_u32 s{sT0}, 86, s{sT0}")
    e(f"  v_cmp_eq_u32 vcc, s{sT0}, {vr(vAD)}")
    e(f"  v_mov_b32 {vr(t0)}, 0x80")
    e(f"  s_mov_b32 s{rA + 2}, {UB}")
    e(f"  v_cndmask_b32 {vr(vAD)}, {vr(vAD)}, {vr(t0)}, vcc")
    e(f"  v_mul_u32_u24 {vr(t0)}, 381, {vr(vAD)}")
    e(f"  s_mul_i32 s{sT0}, s{sJ}, 43")
    e(f"  v_add_u32 {vr(t0)}, 2, {vr(t0)}")
    e(f"  v_lshrrev_b32 {vr(t0)}, 14, {vr(t0)}")
    assert all((381 * i + 2) >> 14 == (i >= 43) + (i >= 86) for i in range(129))
    e(f"  v_mad_u32_u24 {vr(t0)}, {vr(t0)}, 42, {vr(vAD)}")
    e(f"  v_add_u32 {vr(t0)}, s{sT0}, {vr(t0)}")
    e(f"  v_cvt_f32_u32 {vr(vRF)}, {vr(t0)}")
    e(f"  v_mul_u32_u24 {vr(vAD)}, 384, {vr(vAD)}")
    e(f"  s_mov_b32 s{rA + 3}, 0x20000")
    srd_head(rA, sQK, sC)
    e(f"  s_lshl_b32 s{sT0}, s{sJ}, 15")
    sRK = [sR0, 8, 9]
    e(f"  v_lshl_add_u32 {vr(t0)}, v0, 4, s{sT0}")
    for k in range(3):
        if k:
            e(f"  s_add_u32 s{sRK[k]}, s{sRK[k - 1]}, 1")
            e(f"  s_cmp_eq_u32 s{sRK[k]}, 3")
            e(f"  s_cselect_b32 s{sRK[k]}, 0, s{sRK[k]}")
        e(f"  v_lshl_add_u32 {vr(voff + k)}, s{sRK[k]}, 16, {vr(t0)}")
    for i in range(1, 8):
        e(f"  s_movk_i32 s{sOF + i}, {4096 * i}")
    nk = [NF]
    nfix = [0]
    assert PRE <= RING and max(int(v) for v in P.kp_.split(",")[:P.su + 1]) <= 7

    def k_loads(hi):
        while nk[0] < min(hi, PRE):
            ld(nk[0])
            nk[0] += 1

    def toff_(n):
        run = RUN[n >> 3]
        return 384 * (16 * (((n & 7) + run) // 3) + 38 * run)

    def tmin(n):
        return toff_((n & ~7) + (n & 7) % 3)

    def setup():
        e("; per chunk class k: q operand, table and partial addresses")
        sD = sRK[2]
        e(f"  s_lshl1_add_u32 s{sF}, s{sJ}, s{sW}")
        e(f"  s_add_u32 s{sF}, s{sF}, s{sD}")
        e(f"  s_lshl_b32 s{sF}, s{sF}, 1")
        e(f"  s_lshr_b32 s{sF}, 0x24924, s{sF}")
        e(f"  v_bfe_u32 {vr(t1)}, v0, 4, 2")
        e(f"  v_lshl_add_u32 {vr(t1)}, {vr(t1)}, 2, {vr(vC16)}")
        e(f"  v_mad_u32_u24 {vr(vF)}, {vr(w_)}, s{sNEED}, {vr(t1)}")
        e(f"  v_add_u32 {vr(vF)}, {PB - 3072}, {vr(vF)}")
        e(f"  s_mul_i32 s{sT1}, s{sJ}, {43 * 384}")
        e(f"  s_sub_u32 s{sT1}, {TB}, s{sT1}")
        e(f"  s_mul_i32 s{sT0}, s{sD}, {38 * 384}")
        e(f"  s_add_u32 s{sT1}, s{sT1}, s{sT0}")
        e(f"  s_lshl3_add_u32 s{sT0}, s{sJ}, s{sD}")
        e(f"  v_lshl_add_u32 {vr(vSum)}, s{sT0}, 4, {vr(s_)}")
        for k in range(3):
            e(f"  s_bfe_u32 s{sT0}, s{sF}, {(2 << 16) | 2 * k:#x}")
            e(f"  v_lshl_add_u32 {vr(vPA + k)}, s{sT0}, 8, {vr(vF)}")
            if k:
                e(f"  v_add_u32 {vr(vSum)}, 16, {vr(vSum)}")
            e(f"  v_mul_u32_u24 {vr(t0)}, 171, {vr(vSum)}")
            e(f"  v_lshrrev_b32 {vr(t0)}, 9, {vr(t0)}")
            e(f"  v_mad_i32_i24 {vr(t1)}, {vr(t0)}, -3, {vr(vSum)}")
            e(f"  v_lshl_add_u32 {vr(t1)}, {vr(t1)}, 8, {vr(vC16)}")
            e(f"  v_add_u32 {vr(vQA + k)}, {QB}, {vr(t1)}")
            e(f"  v_subrev_u32 {vr(vSu2)}, 384, {vr(t1)}")
            e(f"  v_min_u32 {vr(t1)}, {vr(t1)}, {vr(vSu2)}")
            e(f"  v_mul_u32_u24 {vr(t0)}, 384, {vr(t0)}")
            e(f"  v_add3_u32 {vr(vTA + 6 + k)}, {vr(t0)}, {vr(t1)}, s{sT1}")
        assert all(171 * x_ >> 9 == x_ // 3 for x_ in range(208)) and RUN[2] == 0
        for g_ in range(2):
            e(f"  s_cmp_lt_u32 s{sRK[g_]}, {RUN[g_]}")
            e(f"  s_cselect_b32 s{sT1}, {-130 * 384}, 0")
            for n in range(8 * g_, 8 * g_ + 3):
                e(f"  s_add_u32 s{sT0}, s{sT1}, {tmin(n)}")
                e(f"  v_add_u32 {vr(vTA + 3 * g_ + TN[n])}, s{sT0}, {vr(vTA + 6 + TN[n])}")
        dB, dT = A, LG
        e(f"  s_lshl1_add_u32 s{sT0}, s{sJ}, -1")
        e(f"  s_mul_i32 s{sT0}, s{sT0}, 98304")
        e(f"  v_mov_b32 {vr(t0)}, s{sT0}")
        for i, sx in enumerate((0, 15)):
            e(f"  s_mul_i32 s{sT1}, s{sJ}, {130 * 384}")
            e(f"  s_sub_u32 s{sT1}, s{sT1}, {(44, 86)[i] * 384}")
            e(f"  v_cmp_eq_u32 vcc, {sx}, {vr(s_)}")
            e(f"  v_mov_b32 {vr(t1)}, s{sT1}")
            e(f"  s_lshl_b32 s{sH}, s{sJ}, 1")
            e(f"  v_cndmask_b32 {vr(dB + i)}, 0, {vr(t0)}, vcc")
            e(f"  v_cndmask_b32 {vr(dT + i)}, 0, {vr(t1)}, vcc")
        e(f"  s_sub_u32 s{sH}, 2, s{sH}")
        for n, i in SPECIAL.items():
            if i % 2 == 0:
                e(f"  s_cmp_eq_u32 s{sRK[n >> 3]}, s{sH}")
                e(f"  s_cselect_b32 s{sT0}, 1, 0")
            e(f"  v_mad_i32_i24 {vr(voff + 3 + i)}, {vr(dB + i % 2)}, s{sT0}, {vr(voff + (n >> 3))}")
            if toff_(n) != tmin(n):
                e(f"  v_add_u32 {vr(t1)}, {toff_(n) - tmin(n)}, {vr(vTA + 3 * (n >> 3) + TN[n])}")
                e(f"  v_mad_i32_i24 {vr(vTA + 9 + i)}, {vr(dT + i % 2)}, s{sT0}, {vr(t1)}")
            else:
                e(f"  v_mad_i32_i24 {vr(vTA + 9 + i)}, {vr(dT + i % 2)}, s{sT0}, {vr(vTA + 3 * (n >> 3) + TN[n])}")
        e(f"  s_lshl2_add_u32 s{sT0}, s{sW}, s{sR0}")
        e(f"  s_cmp_eq_u32 s{sT0}, s{sH}")
        e("  s_cbranch_scc0 L_fx")
        e("  s_mov_b64 exec, 0xffff")
        ld(0)
        e("  s_mov_b64 exec, -1")
        e("L_fx:")
        nfix[0] = nk[0]
        e(f"  v_lshlrev_b32 {vr(vLB)}, 2, v0")
        e(f"  v_add_u32 {vr(vLB)}, {LGB}, {vr(vLB)}")
        e(f"  v_lshrrev_b32 {vr(t1)}, 1, v0")
        e(f"  v_lshlrev_b32 {vr(t1)}, 2, {vr(t1)}")
        e(f"  v_add_u32 {vr(vLB + 1)}, {LGB + 1024}, {vr(t1)}")
        e(f"  v_subrev_u32 {vr(vLG)}, 1536, {vr(vLB)}")
        e(f"  v_subrev_u32 {vr(vLG + 1)}, 1536, {vr(vLB + 1)}")
        e(f"  v_lshlrev_b32 {vr(vPW)}, 2, {vr(w_)}")
        e(f"  s_mov_b32 s{sMSK}, 0xcccccccc")
        e(f"  s_mov_b32 s{sMSK + 1}, s{sMSK}")
        e(f"  s_mov_b32 s{sMSK + 2}, 0xaaaaaaaa")
        e(f"  s_mov_b32 s{sMSK + 3}, s{sMSK + 2}")
        e(f"  s_mov_b32 s{rB + 2}, {UB}")
        e(f"  s_mov_b32 s{rB + 3}, 0x20000")
        e(f"  s_mov_b32 s{sK}, 0")
        if P.ctl:
            e("; progress slots: this wave writes one byte of line (half, w) and samples the lines of the other half")
            die_base(sF)
            e(f"  s_add_u32 s{sT0}, s{sF}, 2048")
            e(f"  v_mov_b32 {vr(vBA)}, s{sT0}")
            e(f"  s_and_b32 s{sT1}, s{sSE}, 2")
            e(f"  s_lshl_b32 s{sT1}, s{sT1}, 9")
            e(f"  s_lshl_b32 s{sT0}, s{sW}, 8")
            e(f"  s_add_u32 s{sT0}, s{sT0}, s{sT1}")
            e(f"  s_add_u32 s{sT0}, s{sT0}, s{sF}")
            e(f"  s_add_u32 s{sT0}, s{sT0}, s{sCU}")
            e(f"  s_and_b32 s{sSE}, s{sSE}, 1")
            e(f"  s_lshl_b32 s{sSE}, s{sSE}, 4")
            e(f"  s_add_u32 s{sT0}, s{sT0}, s{sSE}")
            e(f"  v_mov_b32 {vr(vPS)}, s{sT0}")
            e(f"  s_xor_b32 s{sT1}, s{sT1}, 1024")
            e(f"  s_add_u32 s{sF}, s{sF}, s{sT1}")
            e(f"  v_and_b32 {vr(vN)}, 1, v0")
            e(f"  v_lshl_add_u32 {vr(vN)}, {vr(vN)}, 4, s{sF}")
            for k in range(4):
                e(f"  v_add_u32 {vr(vSum)}, {k}, {vr(w_)}")
                e(f"  v_and_b32 {vr(vSum)}, 3, {vr(vSum)}")
                e(f"  v_lshl_add_u32 {vr(vPL + k)}, {vr(vSum)}, 8, {vr(vN)}")
            e(f"  s_mov_b32 s{sLO}, {(-(LAG + 2) * 0x01010101) & 0xffffffff:#x}")
            for k in range(4 * LAG):
                e(f"  v_mov_b32 {vr(smp + k)}, 0")
            for k in range(2):
                e(f"  v_mov_b32 {vr(vBI + k)}, 0")
            e(f"  v_mov_b32 {vr(vN)}, 0")
            e(f"  s_mov_b32 s{sB}, 0")
            e(f"  s_mov_b32 s{sS}, {P.s0}")
            e(f"  s_mov_b32 s{sI}, 0")
            e(f"  s_mov_b32 s{sCO}, 0")

    def sincos(dst, iv):
        for h in (0, 2):
            e(f"  v_pk_mul_f32 {vr(tN + h, 2)}, {vr(iv + h, 2)}, {vr(tK + 2, 2)} op_sel:[0,1] op_sel_hi:[1,1]")
        for i in range(4):
            e(f"  v_cos_f32 {vr(tA + i)}, {vr(tN + i)}")
        for i in range(4):
            e(f"  v_sin_f32 {vr(tN + i)}, {vr(tN + i)}")
        for i in range(4):
            e(f"  v_cvt_pk_f16_f32 {vr(dst + i)}, {vr(tA + i)}, {vr(tN + i)}")

    kp = [int(v) for v in P.kp_.split(",")]

    def chunk(i):
        a = 2 * (i // 3)
        d = tO + 4 * (i & 1)
        bc_ = lambda x, m: f"row_newbcast:{x} row_mask:0xf bank_mask:{m:#x}"
        if i % 3 == 1:
            e(f"  v_mov_b32_dpp {vr(pos)}, {vr(vRF)} {bc_(a + 1, 12)}")
            e(f"  v_add_u32_dpp {vr(vF)}, {vr(vAD)}, {vr(vC8)} {bc_(a, 3)}")
            e(f"  v_add_u32_dpp {vr(vF)}, {vr(vAD)}, {vr(vC8)} {bc_(a + 1, 12)}")
            sincos(d, invY)
            e(f"  ds_write_b128 {vr(vF)}, {vr(d, 4)} offset:{TB + 256}")
        else:
            a += i % 3 // 2
            e(f"  v_mov_b32_dpp {vr(pos)}, {vr(vRF)} {bc_(a, 15)}")
            e(f"  v_add_u32_dpp {vr(vF)}, {vr(vAD)}, {vr(vC16)} {bc_(a, 15)}")
            sincos(d, invX)
            e(f"  ds_write_b128 {vr(vF)}, {vr(d, 4)} offset:{TB}")

    def tab_read(a):
        for n in range(3 * a, 3 * a + 3):
            d = tab + 12 * (a & 1) + 4 * (n % 3)
            if n in SPECIAL:
                e(f"  ds_read_b128 {vr(d, 4)}, {vr(vTA + 9 + SPECIAL[n])}")
            else:
                e(f"  ds_read_b128 {vr(d, 4)}, {vr(vTA + 3 * (n >> 3) + TN[n])} offset:{toff_(n) - tmin(n)}")

    k_loads(kp[0])
    pf()
    e(f"  s_waitcnt vmcnt({nk[0]})")
    pf()
    for i in range(12):
        if i == P.su:
            setup()
            pf()
        chunk(i)
        k_loads(kp[i + 1])
        if i % 3 == 2:
            pf()
    k_loads(PRE)
    e(f"  v_mov_b32 {vr(bc)}, {f32bits(-7.5):#x}")
    e("  s_waitcnt lgkmcnt(0)")
    for k in range(8):
        e(f"  v_writelane_b32 {vr(vU)}, s{16 + k}, {k}")
    e("  s_barrier")
    pf()
    for k in range(3):
        e(f"  ds_read_b128 {vr(qa + 4 * k, 4)}, {vr(vQA + k)}")
    tab_read(0)
    e(f"  s_waitcnt vmcnt({PRE - nfix[0]})")
    pf()
    if P.tfine:
        e("  s_waitcnt lgkmcnt(0)")
        for k in range(pfn[0]):
            e(f"  v_writelane_b32 {vr(vtr)}, s{PFR[k]}, {k}")
        e(f"  s_mov_b32 m0, {pfn[0]}")

    def vfirst():
        e(f"  s_and_b32 s{sH}, s{sVO}, 15")
        e(f"  s_add_u32 s{sNEED}, s{sH}, 1")
        e(f"  ds_read_b32 {vr(vF)}, {vr(vZ)} offset:{FL + 20}")
        flagwait("a0", FL + 20)
        e(f"  s_mulk_i32 s{sH}, 1536")
        for k in range(2):
            e(f"  v_add_u32 {vr(vLV + k)}, s{sH}, {vr(vLB + k)}")
        e(f"  ds_read_b32 {vr(A)}, {vr(vLV)}")


    def knext():
        e("; next SRD: K slot k + 1, or the first V step once K runs out")
        e(f"  s_add_u32 s{sH}, s{sK}, 1")
        e(f"  s_sub_u32 s{sT1}, s{sH}, 16")
        vstep_k(sF, sT1)
        e(f"  s_cmp_lt_u32 s{sH}, 16")
        e(f"  s_cselect_b32 s{sH}, s{sH}, s{sF}")
        e(f"  s_cselect_b32 s{sX}, s{sQK}, s{sQV}")
        e(f"  s_cselect_b32 s{sX + 1}, s{sQK + 1}, s{sQV + 1}")
        head_of(sH, sH)
        srd_head(rB, sX, sH)

    def kred(n):
        dpp = lambda d, x, how, m: e(f"  v_add_f32_dpp {vr(d)}, {vr(x)}, {vr(x)} {how} row_mask:0xf bank_mask:{m:#x}")
        dpp(M1, dacc, "row_ror:8", 12 if n & 1 else 3)
        if n % 2 == 1:
            e("  s_nop 1")
            dpp(M2, M1, "row_half_mirror", 10 if n & 2 else 5)
        if n % 4 == 3:
            e("  s_nop 1")
            dpp(M2 if n & 4 else M3, M2, "quad_perm:[2,3,0,1]", 15)
        if n % 8 == 7:
            e(f"  v_cndmask_b32_e64 {vr(M3)}, {vr(M3)}, {vr(M2)}, s[{sMSK}:{sMSK + 1}]")
            e("  s_nop 1")
            dpp((LG, M3, LG + 1)[n >> 3], M3, "quad_perm:[1,0,3,2]", 15)
        if n == 15:
            e(f"  v_cndmask_b32_e64 {vr(LG)}, {vr(LG)}, {vr(M3)}, s[{sMSK + 2}:{sMSK + 3}]")

    e(".p2align 6")
    e("L_k:")

    def kbody(n):
        k_, q_ = ring + 4 * n, qa + 4 * TN[n]
        for i in range(4):
            e(f"  v_dot2_f32_f16 {vr(wt + i)}, {vr(tab + 12 * (n // 3 & 1) + 4 * (n % 3) + i)}, {vr(q_ + i)}, 0")
        for i in range(4):
            e(f"  v_cvt_f32_i32 {vr(k_ + i)}, {vr(k_ + i)}")
        if n >= 21:
            e(f"  ds_read_b128 {vr(q_, 4)}, {vr(vQA + TN[n])}")
        for h in range(2):
            e(f"  v_pk_add_f32 {vr(k_ + 2 * h, 2)}, {vr(k_ + 2 * h, 2)}, {vr(bc, 2)} op_sel_hi:[1,0]")
        e(f"  v_pk_mul_f32 {vr(dacc, 2)}, {vr(k_, 2)}, {vr(wt, 2)}")
        e(f"  v_pk_fma_f32 {vr(dacc, 2)}, {vr(k_ + 2, 2)}, {vr(wt + 2, 2)}, {vr(dacc, 2)}")
        e(f"  v_add_f32 {vr(dacc)}, {vr(dacc)}, {vr(dacc + 1)}")

    def kout():
        e(f"  v_mov_b32 {vr(vF)}, s{sK}")
        for k in range(2):
            e(f"  ds_write_b32 {vr(vLG + k)}, {vr(LG + k)}")
        e(f"  ds_write_b32 {vr(vPW)}, {vr(vF)} offset:{FL}")

    def group(ph, a, body, after, res):
        nb, pend = 3 * a, None
        od = ORD[ph]
        for i, c in enumerate(od):
            if pend is not None and c != "L":
                if od[i - 1] == "b":
                    e("  s_nop 1")
                after(pend)
                pend = None
            if c == "E":
                evaluate(ph, a)
                if od[i + 1] != "X":
                    decide(ph, a)
            if c == "X":
                exchange(a)
                if od[i - 1] == "E":
                    decide(ph, a)
            if c == "R" and a == 0:
                res()
            if c == "b":
                body(nb)
                pend = nb if after else None
                nb += 1
            if c == "L":
                issue(ph, a, i)
        if pend is not None:
            if od[-1] == "b":
                e("  s_nop 1")
            after(pend)

    for a in range(8):
        if a == 7:
            flagwait("qn", FL + 16)
        else:
            e("  s_waitcnt lgkmcnt(0)")
        tab_read((a + 1) % 8)
        if a == 6:
            e(f"  ds_read_b32 {vr(vF)}, {vr(vZ)} offset:{FL + 16}")
        group("K", a, kbody, kred, kout)
        if a == 1:
            knext()
        if a == 3:
            e(f"  s_add_u32 s{sT0}, s{sK}, 2")
            e(f"  s_min_u32 s{sNEED}, s{sT0}, 16")
            for k in range(3):
                e(f"  v_add_u32 {vr(vQA + k)}, 768, {vr(vQA + k)}")
            for k in range(2):
                e(f"  v_add_u32 {vr(vLG + k)}, 1536, {vr(vLG + k)}")
            e(f"  s_cmp_eq_u32 s{sK}, 15")
            e("  s_cbranch_scc1 L_kv")
            e("L_kw:")
        if a in (3, 7) or P.tfine:
            tr()
    assert sorted(TN[21:]) == [0, 1, 2] and TN[:3] == TN[3:6] and sorted(TN[:3]) == [0, 1, 2] and PRE <= 18
    e(f"  s_add_u32 s{sK}, s{sK}, 1")
    e(f"  s_mov_b64 s[{rA}:{rA + 1}], s[{rB}:{rB + 1}]")
    e(f"  s_cmp_lt_u32 s{sK}, 16")
    e("  s_cbranch_scc1 L_k")


    def vbody(n):
        v_ = ring + 4 * n
        e(f"  v_mov_b32_dpp {vr(bc)}, {vr(A + n // 16)} row_newbcast:{rev(n % 16, 4)} row_mask:0xf bank_mask:0xf")
        for i in range(4):
            e(f"  v_cvt_f32_i32 {vr(v_ + i)}, {vr(v_ + i)}")
        for h in range(2):
            d = 4 * TN[n] + 2 * h
            if n < 3:
                e(f"  v_pk_mul_f32 {vr(tmp + d, 2)}, {vr(v_ + 2 * h, 2)}, {vr(bc, 2)} op_sel_hi:[1,0]")
            else:
                e(f"  v_pk_fma_f32 {vr(acc + d, 2)}, {vr(v_ + 2 * h, 2)}, {vr(bc, 2)}, {vr((tmp if n < 6 else acc) + d, 2)} op_sel_hi:[1,0,1]")

    def vout(last=False):
        for j in range(3):
            e(f"  v_permlane32_swap_b32 {vr(acc + 4 * j)}, {vr(acc + 4 * j + 2)}")
            e(f"  v_permlane32_swap_b32 {vr(acc + 4 * j + 1)}, {vr(acc + 4 * j + 3)}")
        for j in range(3):
            e(f"  v_add_f32 {vr(acc + 4 * j)}, {vr(acc + 4 * j)}, {vr(acc + 4 * ((j + 1) % 3) + 2)}")
            e(f"  v_add_f32 {vr(acc + 4 * j + 1)}, {vr(acc + 4 * j + 1)}, {vr(acc + 4 * ((j + 1) % 3) + 3)}")
        for j in range(3):
            e(f"  v_permlane16_swap_b32 {vr(acc + 4 * j)}, {vr(acc + 4 * j + 1)}")
        for j in range(3):
            e(f"  v_add_f32 {vr(acc + 4 * j)}, {vr(acc + 4 * j)}, {vr(acc + 4 * ((j + 2) % 3) + 1)}")
        for j in range(3):
            e(f"  ds_write_b32 {vr(vPA + j)}, {vr(acc + 4 * j)}")
        if not last:
            e(f"  ds_write_b32 {vr(vPW)}, {vr(M1)} offset:{FL}")
            e("L_v0:")

    def vnext():
        e(f"  s_add_u32 s{sT1}, s{sK}, 1")
        e(f"  s_min_u32 s{sT1}, s{sT1}, 15")
        vstep_k(sH, sT1)
        e(f"  s_add_u32 s{sNEED}, s{sH}, 1")
        e(f"  s_mul_i32 s{sF}, s{sH}, 1536")
        head_of(sH, sH)
        srd_head(rB, sQV, sH)
        for k in range(2):
            e(f"  v_add_u32 {vr(vLV + k)}, s{sF}, {vr(vLB + k)}")

    NS, NT = (PRE - PD) // 3, 8 - PD // 3
    assert NS <= 1 and 4 <= NT <= 5 and (NS or P.ov[0] == "R") and max(P.mg, P.ml) <= 3 * NT
    e("L_vpre:")
    kout()
    e(f"  s_mov_b32 s{sK}, 0")
    e(f"  v_mov_b32 {vr(M1)}, 16")
    if NS:
        for n in range(3):
            e(f"  s_waitcnt vmcnt({plain[384 + n]})")
            vbody(n)
        e(f"  s_waitcnt vmcnt({plain[387]}) lgkmcnt(0)")
        e("  s_branch L_v1")
    else:
        e("  s_waitcnt lgkmcnt(3)")
        e("  s_branch L_v0")
    flush()
    e("L_kv:")
    vfirst()
    e("  s_branch L_kw")
    flush()
    e(".p2align 6")
    e("L_v:")
    for a in range(8):
        if a == 1:
            e("L_v1:")
            e(f"  ds_read_b32 {vr(A + 1)}, {vr(vLV + 1)}")
        if a == NT:
            e(f"  s_cmp_eq_u32 s{sK}, 15")
            e("  s_cbranch_scc1 L_vt")
        if a in (5, 7):
            e("  s_waitcnt lgkmcnt(0)")
        if a == 5:
            e(f"  ds_read_b32 {vr(vF)}, {vr(vZ)} offset:{FL + 20}")
        if a == 6:
            flagwait("an", FL + 20)
            e(f"  ds_read_b32 {vr(A)}, {vr(vLV)}")
        group("V", a, vbody, None, vout)
        if a == 1:
            vnext()
        if a == 3:
            e(f"  v_add_u32 {vr(M1)}, 1, {vr(M1)}")
            for j in range(3):
                e(f"  v_add_u32 {vr(vPA + j)}, 3072, {vr(vPA + j)}")
        if a in (3, 7):
            tr()
    e(f"  s_add_u32 s{sK}, s{sK}, 1")
    e(f"  s_mov_b64 s[{rA}:{rA + 1}], s[{rB}:{rB + 1}]")
    e("  s_branch L_v")
    flush()
    e("L_vt:")
    e("  s_waitcnt lgkmcnt(0)")
    for n in range(3 * NT, 24):
        e(f"  s_waitcnt vmcnt({plain[744 + n]})")
        vbody(n)
    tr()
    e("  s_nop 1")
    vout(True)
    e("  s_waitcnt lgkmcnt(0)")
    e("  s_barrier")
    if P.trace:
        e(f"  s_mul_i32 s8, s2, {5 * 256}")
        e("  s_add_u32 s8, s8, 0x100000")
        e(f"  v_lshl_add_u32 {vr(t0)}, v0, 2, s8")
        e(f"  global_store_dword {vr(t0)}, {vr(vtr)}, s[{sWS}:{sWS + 1}]")
    e("  s_endpgm")

    HP = [4, 6, 24, 8, 10, 36, 38, 72]
    ms = [m for m in range(P.r0, P.r1 + 1) if m < P.rf or m > P.rt or (m - P.r0) % P.rp == 0]
    gain = [(P.kp0 if m <= P.kn else P.kp) if m in ms else 0 for m in range(32)]
    if P.rk:
        gain = [int(c, 16) for c in P.rk]
        assert len(gain) == 32 and not any(gain[:P.r0]) and not gain[31]
    msk = sum(1 << m for m in range(32) if gain[m])

    def hp(k):
        if P.hprof:
            e(f"  s_memrealtime s[{HP[k]}:{HP[k] + 1}]")

    def progwait(name, slp, off=FL):
        e(f"L_{name}:")
        e(f"  ds_read_b128 {vr(pr, 4)}, {vr(vZ)} offset:{off}")
        e("  s_waitcnt lgkmcnt(0)")
        e(f"  v_min_u32 {vr(pr)}, {vr(pr)}, {vr(pr + 1)}")
        e(f"  v_min3_u32 {vr(pr)}, {vr(pr)}, {vr(pr + 2)}, {vr(pr + 3)}")
        e("  s_nop 0")
        e(f"  v_readfirstlane_b32 s{sF}, {vr(pr)}")
        e(f"  s_cmp_ge_u32 s{sF}, s{sNEED}")
        e(f"  s_cbranch_scc1 L_{name}_ok")
        budget(f"L_{name}_ok")
        if slp:
            e(f"  s_sleep {slp}")
        e(f"  s_branch L_{name}")
        e(f"L_{name}_ok:")

    def rowred(op, v):
        for n in (8, 4, 2, 1):
            e("  s_nop 1")
            e(f"  {op}_dpp {vr(v)}, {vr(v)}, {vr(v)} row_ror:{n} row_mask:0xf bank_mask:0xf")

    def allred(op, v, t):
        rowred(op, v)
        for sw in ("v_permlane16_swap_b32", "v_permlane32_swap_b32"):
            e(f"  v_mov_b32 {vr(t)}, {vr(v)}")
            e("  s_nop 1")
            e(f"  {sw} {vr(v)}, {vr(t)}")
            e(f"  {op} {vr(v)}, {vr(v)}, {vr(t)}")

    def sum_partials(nq):
        w = 4 * nq
        for k in range(4):
            for q in range(nq):
                e(f"  ds_read_b128 {vr(x + w * k + 4 * q, 4)}, {vr(h0)} offset:{768 * k + 16 * q}")
        e(f"  ds_read_b128 {vr(z4, 4)}, {vr(h1)} offset:{ST}")
        e("  s_waitcnt lgkmcnt(0)")
        for h in range(0, w, 2):
            e(f"  v_pk_add_f32 {vr(x + h, 2)}, {vr(x + h, 2)}, {vr(x + w + h, 2)}")
            e(f"  v_pk_add_f32 {vr(x + 2 * w + h, 2)}, {vr(x + 2 * w + h, 2)}, {vr(x + 3 * w + h, 2)}")
        for h in range(0, w, 2):
            e(f"  v_pk_add_f32 {vr(x + h, 2)}, {vr(x + h, 2)}, {vr(x + 2 * w + h, 2)}")
        for h in range(0, w, 2):
            e(f"  v_pk_add_f32 {vr(x + h, 2)}, {vr(x + h, 2)}, {vr(z4 + 2, 2)} op_sel_hi:[1,0] neg_lo:[0,1] neg_hi:[0,1]")

    def mark(tag):
        if P.sd:
            e("  s_memrealtime s[72:73]")
            e("  s_waitcnt lgkmcnt(0)")
            e("  s_sub_u32 s75, s72, s74")
            e("  s_mov_b32 s74, s72")
            e(f"  s_add_u32 s72, s{sNEED}, {64 - P.sd}")
            e("  s_and_b32 s73, s72, 1")
            e("  s_lshl_b32 s73, s73, 4")
            e("  s_min_u32 s75, s75, 510")
            e("  s_lshl_b32 s75, s75, s73")
            e("  s_lshr_b32 m0, s72, 1")
            e(f"  v_readlane_b32 s73, {vr(vCL)}, m0")
            e("  s_add_u32 s73, s73, s75")
            e(f"  v_writelane_b32 {vr(vCL)}, s73, m0")
        if not P.enc:
            return
        for k, m in enumerate(P.enc.split(",")[:2]):
            e(f"  s_cmp_eq_u32 s{sNEED}, {m}")
            e(f"  s_cbranch_scc0 L_mk{tag}{k}")
            e(f"  s_memrealtime s[{72 + 2 * k}:{73 + 2 * k}]")
            e(f"L_mk{tag}{k}:")

    def warm(tag):
        if not P.tw:
            return
        if P.tv == 2:
            ev = {5: (sQK, 1), 10: (sQK, 2), 16: (sQV, 2), 21: (sQV, 0), 26: (sQV, 1)}
            e(f"  s_lshr_b32 s{sT0}, s2, 3")
            e(f"  s_cmp_eq_u32 s{sT0}, s{sNEED}")
            e(f"  s_cbranch_scc0 L_tw{tag}")
            e(f"  s_and_b32 s{sT1}, s2, 7")
            e(f"  s_lshl_b32 s{sT1}, s{sT1}, 12")
            e(f"  v_lshl_add_u32 {vr(vFX)}, {vr(l)}, {27 - P.tl}, s{sT1}")
            e(f"  s_mov_b64 exec, {-1 if P.tl == 6 else (1 << (1 << P.tl)) - 1}")
            for t_, (sp, b_) in ev.items():
                if (t_ - P.tw > 16) == (tag == "p"):
                    e(f"  s_cmp_eq_u32 s{sNEED}, {t_ - P.tw}")
                    e(f"  s_cbranch_scc0 L_tx{t_}")
                    e(f"  v_add_u32 {vr(vFX)}, {b_ << 27:#x}, {vr(vFX)}")
                    e(f"  global_load_dword {vr(vFX)}, {vr(vFX)}, s[{sp}:{sp + 1}] nt")
                    e(f"L_tx{t_}:")
            e("  s_mov_b64 exec, -1")
            e("  s_waitcnt vmcnt(0)")
            e(f"L_tw{tag}:")
            return
        tm = sum(1 << int(v) for v in P.tm.split(","))
        if P.ts:
            e(f"  s_bfe_u32 s{sT0}, s2, {P.ts << 16 | 4:#x}")
            e(f"  s_add_u32 s{sX}, s{sNEED}, s{sT0}")
            e(f"  s_add_u32 s{sX}, s{sX}, {P.tw}")
        else:
            e(f"  s_add_u32 s{sX}, s{sNEED}, {P.tw}")
        e(f"  s_min_u32 s{sX}, s{sX}, 31")
        e(f"  s_and_b32 s{sT0}, s2, {8 | P.tk << 4:#x}")
        e(f"  s_cselect_b32 s{sT0}, 0, {tm:#x}")
        e(f"  s_bitcmp1_b32 s{sT0}, s{sX}")
        e(f"  s_cbranch_scc0 L_tw{tag}")
        e(f"  s_sub_u32 s{sT1}, s{sX}, 16")
        vstep_k(sF, sT1)
        e(f"  s_cmp_lt_u32 s{sX}, 16")
        e(f"  s_cselect_b32 s{sF}, s{sX}, s{sF}")
        e(f"  s_cselect_b32 s{rB}, s{sQK}, s{sQV}")
        e(f"  s_cselect_b32 s{rB + 1}, s{sQK + 1}, s{sQV + 1}")
        head_of(sF, sF, hU)
        e(f"  s_mul_i32 s{sF}, s{sF}, {UB}")
        e(f"  s_add_u32 s{sF}, s{sF}, {65536 * RUN[0]}")
        if P.tv:
            e(f"  v_mov_b32 {vr(vFX)}, s{sF}")
            e("  s_mov_b64 exec, 1")
            e(f"  global_load_dword {vr(vFX)}, {vr(vFX)}, s[{rB}:{rB + 1}] nt")
            e("  s_mov_b64 exec, -1")
            e("  s_waitcnt vmcnt(0)")
        else:
            e(f"  s_load_dword s{sF}, s[{rB}:{rB + 1}], s{sF} {P.tg}")
            e("  s_waitcnt lgkmcnt(0)")
        e(f"L_tw{tag}:")

    def rank_post(tag):
        if not P.ctl:
            return
        e(f"  s_bitcmp1_b32 s{sRF}, s{sNEED}")
        e(f"  s_cbranch_scc0 L_fa{tag}")
        e(f"  s_mul_i32 s{sT0}, s{sNEED}, 384")
        e(f"  s_add_u32 s{sT0}, s{sT0}, {W_RK}")
        e(f"  s_mov_b32 s{sB}, 1")
        e(f"  s_atomic_add s{sB}, s[{sWS}:{sWS + 1}], s{sT0} glc")
        e(f"L_fa{tag}:")

    def rank_take(tag):
        if not P.ctl:
            return
        e(f"  s_bitcmp1_b32 s{sRF}, s{sNEED}")
        e(f"  s_cbranch_scc0 L_fb{tag}")
        e("  s_waitcnt lgkmcnt(0)")
        e(f"  s_min_u32 s{sF}, s{sB}, 15")
        e(f"  s_lshl_b32 s{sF}, s{sF}, 1")
        e(f"  s_sub_u32 s{sF}, s{sF}, 15")
        gs = sorted(set(gain) - {0})
        e(f"  s_mov_b32 s{sT0}, {gs[0]}")
        for g_ in gs[1:]:
            e(f"  s_bitcmp1_b32 {sum(1 << m for m in range(32) if gain[m] == g_):#x}, s{sNEED}")
            e(f"  s_cselect_b32 s{sT0}, {g_}, s{sT0}")
        e(f"  s_mul_i32 s{sF}, s{sF}, s{sT0}")
        e(f"  s_add_u32 s{sF}, s{sF}, 8")
        e(f"  s_ashr_i32 s{sF}, s{sF}, 4")
        e(f"  v_mov_b32 {vr(vFX)}, s{sF}")
        e("  s_mov_b64 exec, 1")
        e(f"  global_store_dword {vr(vFB)}, {vr(vFX)}, s[{sWS}:{sWS + 1}]")
        e("  s_mov_b64 exec, -1")
        e(f"L_fb{tag}:")

    HPF = [10, 16, 18, 20, 22, 72, 74, 76, 82, 96]
    hpn = [0]

    def hpf():
        if P.tfine:
            e(f"  s_memrealtime s[{HPF[hpn[0]]}:{HPF[hpn[0]] + 1}]")
            hpn[0] += 1

    e("L_helper:")
    e(f"  s_setprio {P.hp0}")
    hv = []

    def qmask(on):
        if on:
            e("  s_mov_b32 exec_lo, 0xffffff")
            e("  s_mov_b32 exec_hi, 0xffffff")
        else:
            e("  s_mov_b64 exec, -1")

    if P.st:
        e("; start the address translation of the small arrays right away")
        e("  s_waitcnt lgkmcnt(0)")
        if P.st == 1:
            e(f"  s_load_dwordx8 s[24:31], s[0:1], 80")
        for k, sp in enumerate((sQ, sKS, sVS)):
            e(f"  s_load_dword s{rA + k}, s[{sp}:{sp + 1}], 0")
        if P.st == 2:
            e(f"  s_mov_b32 s{rA + 3}, {W_RK - 4096}")
            e(f"  s_load_dword s{rA + 3}, s[{sWS}:{sWS + 1}], s{rA + 3}")
    e(f"  v_and_b32 {vr(vL16)}, 0x1f0, {vr(vT16)}")
    e(f"  global_load_dwordx4 {vr(pr, 4)}, {vr(vL16)}, s[{sZ}:{sZ + 1}] offset:{D_QCS - PC0}")
    e(f"  global_load_dwordx4 {vr(f0, 4)}, {vr(vL16)}, s[{sZ}:{sZ + 1}] offset:{D_F0 - PC0}")
    e(f"  v_and_b32 {vr(vSh)}, 32, v0")
    e(f"  v_lshrrev_b32 {vr(vSh)}, 1, {vr(vSh)}")
    e(f"  v_lshrrev_b32 {vr(h1)}, 1, {vr(vL16)}")
    e(f"  s_movk_i32 s{sT1}, 384")
    if not P.st:
        e("  s_waitcnt lgkmcnt(0)")
    hpf()
    for p in range(2):
        e(f"  v_lshrrev_b32 {vr(hq + p)}, {vr(vSh)}, s{sE + 10 + p}")
        e(f"  v_and_b32 {vr(h0)}, 0xff, {vr(hq + p)}")
        e(f"  v_mad_u32_u24 {vr(ra + p)}, {vr(h0)}, s{sT1}, {vr(h1)}")
    qmask(1)
    for p in range(2):
        e(f"  global_load_dwordx2 {vr(rec + 4 * p, 2)}, {vr(ra + p)}, s[{sQ}:{sQ + 1}]")
        e(f"  global_load_dwordx2 {vr(rec + 4 * p + 2, 2)}, {vr(ra + p)}, s[{sQ}:{sQ + 1}] offset:192")
        hv.extend([("q", p)] * 2)
    qmask(0)
    hpf()
    common(not P.st)
    e(f"  s_and_b32 s{sT0}, s{sE + 15}, 0x1c00")
    e(f"  s_and_b32 s{sE + 15}, s{sE + 15}, 0xff")
    e(f"  s_add_u32 s{sT0}, s{sT0}, L_hpos-L_pc")
    e(f"  v_add_u32 {vr(h0)}, s{sT0}, {vr(vT16)}")
    e(f"  global_load_dwordx4 {vr(st4, 4)}, {vr(h0)}, s[{sZ}:{sZ + 1}]")
    hv.append(("h", 0))
    e(f"  s_mov_b64 s[{sVO}:{sVO + 1}], s[{sE + 8}:{sE + 9}]")
    e(f"  v_mov_b32 {vr(l)}, v0")
    for i in range(4):
        e(f"  v_mov_b32 {vr(z4 + i)}, 0")
    for k in range(4):
        e(f"  ds_write_b128 {vr(vZ)}, {vr(z4, 4)} offset:{FL + 16 * k}")
    e(f"  s_mov_b32 s{sMASK}, 0xffff0000")
    e(f"  s_mov_b32 s{sSCALE}, {f32bits(math.log2(math.e) / math.sqrt(192.0)):#x}")
    e(f"  s_movk_i32 s{sC}, 784")
    e(f"  v_mad_u32_u24 {vr(wa)}, {vr(vSh)}, 48, {vr(vL16)}")
    e(f"  v_lshrrev_b32 {vr(vSq)}, 1, {vr(vSh)}")
    for p in range(8):
        e(f"  v_lshrrev_b32 {vr(ra + p)}, {vr(vSh)}, s{sE + p}")
    e("  s_waitcnt lgkmcnt(0)")
    hpf()
    if P.ctl:
        die_base(sF)
        e(f"  v_lshrrev_b32 {vr(h0)}, 1, {vr(l)}")
        e(f"  v_lshl_add_u32 {vr(vFX)}, {vr(h0)}, 8, s{sF}")
        e(f"  v_and_b32 {vr(h0)}, 1, {vr(l)}")
        e(f"  v_lshl_add_u32 {vr(vFX)}, {vr(h0)}, 4, {vr(vFX)}")
        e(f"  s_and_b32 s{sT1}, s{sSE}, 2")
        e(f"  s_lshl_b32 s{sT0}, s{sT1}, 9")
        e(f"  s_add_u32 s{sT0}, s{sT0}, s{sF}")
        e(f"  v_add_u32 {vr(vEL)}, s{sT0}, {vr(l)}")
        e(f"  s_lshl_b32 s{sT1}, s{sT1}, 1")
        e(f"  s_add_u32 s{sF}, s{sF}, s{sT1}")
        e(f"  s_add_u32 s{sF}, s{sF}, 2048")
        e(f"  v_mov_b32 {vr(vFB)}, s{sF}")
        e(f"  v_mul_u32_u24 {vr(vFA)}, 384, {vr(l)}")
        e(f"  v_add_u32 {vr(vFA)}, {W_RK}, {vr(vFA)}")
        e(f"  s_mov_b32 s{sRF}, 0")
        e("  s_mov_b64 exec, 0x3ffff")
        e(f"  global_store_dwordx4 {vr(vFX)}, {vr(z4, 4)}, s[{sWS}:{sWS + 1}]")
        e("  s_mov_b64 exec, -1")
    e(f"  s_waitcnt vmcnt({len(hv)})")
    for k in range(4):
        e(f"  v_lshlrev_b32 {vr(cs + k)}, 16, {vr(pr + k)}")
        e(f"  v_and_b32 {vr(cs + 4 + k)}, s{sMASK}, {vr(pr + k)}")

    def elect():
        if not P.ctl:
            return
        e(f"  s_cmp_eq_u32 s{sNEED}, {P.r0 - 1}")
        e("  s_cbranch_scc0 L_el")
        e(f"  s_bitcmp0_b32 s{sSE}, 0")
        e("  s_cbranch_scc0 L_el")
        e("  s_mov_b64 exec, 0xffff")
        e(f"  global_load_ubyte {vr(vFX)}, {vr(vEL)}, s[{sWS}:{sWS + 1}] sc1")
        e("  s_waitcnt vmcnt(0)")
        e(f"  v_cmp_ne_u32 s[{sZ}:{sZ + 1}], 0, {vr(vFX)}")
        e(f"  s_lshr_b32 s{sT0}, s{sZ}, s{sCU}")
        e(f"  s_bcnt1_i32_b32 s{sT0}, s{sT0}")
        pat = sum(1 << m for m in range(0, 32, P.rotl))
        e(f"  s_sub_u32 s{sT1}, s{sT0}, 1")
        e(f"  s_cmp_lt_u32 s{sT1}, {P.rotl}")
        e("  s_cbranch_scc0 L_el")
        e(f"  s_lshl_b32 s{sRF}, {pat:#x}, s{sT1}")
        e(f"  s_and_b32 s{sRF}, s{sRF}, {msk:#x}")
        e("L_el:")
        e("  s_mov_b64 exec, -1")

    def roleaddr(src):
        e(f"  v_bfe_u32 {vr(wb)}, {vr(src)}, 12, 2")
        e(f"  v_mul_u32_u24 {vr(h1)}, s{sC}, {vr(wb)}")
        e(f"  v_add_u32 {vr(h1)}, {QR}, {vr(h1)}")
        e(f"  v_add_u32 {vr(h0)}, {vr(h1)}, {vr(vL16)}")

    def rotate(p):
        L, Hh, LC, HS, HC, LS = x, x + 4, x + 8, x + 12, x + 16, x + 20
        roleaddr(hq + p)
        e(f"  v_mov_b32 {vr(h2)}, 0")
        qmask(1)
        if p == 0:
            hpf()
        e(f"  s_waitcnt vmcnt({hv[::-1].index(('q', p))})")
        if p == 0:
            hpf()
        for k in range(4):
            e(f"  v_lshlrev_b32 {vr(L + 2 * k)}, 16, {vr(rec + 4 * p + k)}")
            e(f"  v_and_b32 {vr(L + 2 * k + 1)}, s{sMASK}, {vr(rec + 4 * p + k)}")
        for d, q_, t_ in ((LC, L, cs), (HS, Hh, cs + 4), (HC, Hh, cs), (LS, L, cs + 4)):
            for h in (0, 2):
                e(f"  v_pk_mul_f32 {vr(d + h, 2)}, {vr(q_ + h, 2)}, {vr(t_ + h, 2)}")
        for i in range(4):
            e(f"  v_cvt_pk_bf16_f32 {vr(L + i)}, {vr(LC + i)}, {vr(HS + i)}")
            e(f"  v_cvt_pk_bf16_f32 {vr(Hh + i)}, {vr(HC + i)}, {vr(LS + i)}")
        for k in range(8):
            e(f"  v_lshlrev_b32 {vr(LC + k)}, 16, {vr(L + k)}")
            e(f"  v_and_b32 {vr(L + k)}, s{sMASK}, {vr(L + k)}")
        for h in (0, 2):
            e(f"  v_pk_add_f32 {vr(L + h, 2)}, {vr(LC + h, 2)}, {vr(L + h, 2)} neg_lo:[0,1] neg_hi:[0,1]")
            e(f"  v_pk_add_f32 {vr(Hh + h, 2)}, {vr(HS + h, 2)}, {vr(Hh + h, 2)}")
        for i in range(4):
            e(f"  v_cvt_pk_bf16_f32 {vr(Hh + i)}, {vr(L + i)}, {vr(Hh + i)}")
        for i in range(4):
            e(f"  v_lshlrev_b32 {vr(L + i)}, 16, {vr(Hh + i)}")
            e(f"  v_and_b32 {vr(Hh + i)}, s{sMASK}, {vr(Hh + i)}")
        for i in range(4):
            e(f"  v_max3_f32 {vr(h2)}, |{vr(L + i)}|, |{vr(Hh + i)}|, {vr(h2)}")
        qmask(0)
        rowred("v_max_f32", h2)
        e(f"  v_mov_b32 {vr(h3)}, {vr(h2)}")
        e("  s_nop 1")
        e(f"  v_permlane16_swap_b32 {vr(h2)}, {vr(h3)}")
        e(f"  v_max_f32 {vr(h2)}, {vr(h2)}, {vr(h3)}")
        e(f"  v_frexp_exp_i32_f32 {vr(h2)}, {vr(h2)}")
        e(f"  v_sub_u32 {vr(h3)}, 13, {vr(h2)}")
        e(f"  v_subrev_u32 {vr(h2)}, 13, {vr(h2)}")
        for i in range(8):
            e(f"  v_ldexp_f32 {vr(L + i)}, {vr(L + i)}, {vr(h3)}")
        e(f"  v_ldexp_f32 {vr(h2)}, s{sSCALE}, {vr(h2)}")
        qmask(1)
        e(f"  ds_write_b128 {vr(h0)}, {vr(L, 4)}")
        e(f"  ds_write_b128 {vr(h0)}, {vr(Hh, 4)} offset:384")
        e(f"  ds_write_b32 {vr(h1)}, {vr(h2)} offset:768")
        qmask(0)

    cu, su = x + 24, x + 28

    def angle(p):
        e(f"  v_and_b32 {vr(qn)}, 7, {vr(ra + p)}")
        e(f"  v_cvt_f32_u32 {vr(qn)}, {vr(qn)}")
        for h in (0, 2):
            e(f"  v_pk_mul_f32 {vr(su + h, 2)}, {vr(f0 + h, 2)}, {vr(qn, 2)} op_sel_hi:[1,0]")
        for i in range(4):
            e(f"  v_cos_f32 {vr(cu + i)}, {vr(su + i)}")
        for i in range(4):
            e(f"  v_sin_f32 {vr(su + i)}, {vr(su + i)}")

    def item(p):
        a_, b_, a2, b2 = x, x + 4, x + 8, x + 12
        roleaddr(ra + p)
        qmask(1)
        e(f"  ds_read_b128 {vr(a_, 4)}, {vr(h0)}")
        e(f"  ds_read_b128 {vr(b_, 4)}, {vr(h0)} offset:384")
        e(f"  ds_read_b32 {vr(qn + 2)}, {vr(h1)} offset:768")
        if p:
            angle(p)
        e(f"  v_mov_b32 {vr(qn + 3)}, {vr(wb)}")
        e(f"  v_mov_b32 {vr(h0)}, {2 * p + 2}")
        e("  s_waitcnt lgkmcnt(0)")
        for h in (0, 2):
            e(f"  v_pk_mul_f32 {vr(a2 + h, 2)}, {vr(a_ + h, 2)}, {vr(cu + h, 2)}")
            e(f"  v_pk_mul_f32 {vr(b2 + h, 2)}, {vr(b_ + h, 2)}, {vr(cu + h, 2)}")
        for h in (0, 2):
            e(f"  v_pk_fma_f32 {vr(a2 + h, 2)}, {vr(b_ + h, 2)}, {vr(su + h, 2)}, {vr(a2 + h, 2)}")
            e(f"  v_pk_fma_f32 {vr(b2 + h, 2)}, {vr(a_ + h, 2)}, {vr(su + h, 2)}, {vr(b2 + h, 2)} neg_lo:[1,0,0] neg_hi:[1,0,0]")
        for i in range(4):
            e(f"  v_cvt_pk_f16_f32 {vr(a_ + i)}, {vr(a2 + i)}, {vr(b2 + i)}")
            e(f"  v_cvt_pk_f16_f32 {vr(b_ + i)}, {vr(b2 + i)}, -{vr(a2 + i)}")
        e(f"  ds_write_b128 {vr(wa)}, {vr(a_, 4)} offset:{QB + 1536 * p}")
        e(f"  ds_write_b128 {vr(wa)}, {vr(b_, 4)} offset:{QB + 1536 * p + 384}")
        e(f"  ds_write_b64 {vr(vSq)}, {vr(qn + 2, 2)} offset:{QS + 16 * p}")
        e(f"  ds_write_b32 {vr(vZ)}, {vr(h0)} offset:{FL + 16}")
        qmask(0)

    def scales():
        e("; scales of the 16 units")
        for p in range(8):
            e(f"  v_and_b32 {vr(h0)}, 0x7ff, {vr(ra + p)}")
            e(f"  v_lshl_add_u32 {vr(h0)}, {vr(h0)}, 9, {vr(vL16)}")
            for i, sp in enumerate((sKS, sVS)):
                e(f"  s_mov_b32 m0, {SCB + SA * i + 1024 * p}")
                e("  s_nop 0")
                e(f"  global_load_lds_dwordx4 {vr(h0)}, s[{sp}:{sp + 1}] nt")
                hv.append(("s", p))

    if P.ss == 1:
        scales()
    angle(0)
    rotate(0)
    item(0)
    if P.ss == 2:
        scales()
    hpf()
    e("  s_waitcnt lgkmcnt(0)")
    e("  s_setprio 0")
    hpf()
    e("  s_barrier")
    hpf()
    if P.ss == 3:
        scales()
    rotate(1)
    for p in range(1, 8):
        item(p)
    if P.tw and P.tv < 2:
        for k in range(8):
            e(f"  v_writelane_b32 {vr(hU)}, s{sE + k}, {k}")
    e(f"  v_mov_b32 {vr(vSa)}, 0")
    e(f"  v_mov_b32 {vr(vSq)}, 0")
    e(f"  v_min_u32 {vr(u)}, 47, {vr(l)}")
    e(f"  v_lshlrev_b32 {vr(vL16)}, 4, {vr(u)}")
    for i in range(4):
        e(f"  v_mov_b32 {vr(sc + i)}, 0")
    e(f"  s_mov_b32 s{sNEED}, 1")
    e("  s_cmp_eq_u32 s2, 0")
    e("  s_cbranch_scc0 L_rc")
    e(f"  v_mov_b32 {vr(h0)}, {W_REC + 384 + 4}")
    e(f"  global_load_dword {vr(h1)}, {vr(h0)}, s[{sWS}:{sWS + 1}] sc1")
    if P.ctl:
        e(f"  s_mov_b64 exec, {msk:#x}")
        e(f"  global_store_dword {vr(vFA)}, {vr(vZ)}, s[{sWS}:{sWS + 1}] sc1")
    e("  s_mov_b64 exec, 1")
    e("  s_waitcnt vmcnt(0)")
    e(f"  v_and_b32 {vr(qn)}, 0x77777777, {vr(h1)}")
    e(f"  v_and_b32 {vr(h1)}, 0x88888888, {vr(h1)}")
    e(f"  v_add_u32 {vr(qn)}, 0x11111111, {vr(qn)}")
    e(f"  v_xor_b32 {vr(qn)}, {vr(qn)}, {vr(h1)}")
    e(f"  v_mov_b32 {vr(qn + 1)}, 1")
    e(f"  global_store_dwordx2 {vr(vZ)}, {vr(qn, 2)}, s[{sDBG}:{sDBG + 1}] sc1")
    e("  s_mov_b64 exec, -1")
    e("L_rc:")
    hpf()
    e("  s_waitcnt vmcnt(0)")
    hpf()
    if P.tfine:
        e("  s_waitcnt lgkmcnt(0)")
        e(f"  v_mov_b32 {vr(h0)}, 0")
        for k in range(hpn[0]):
            e(f"  v_writelane_b32 {vr(h0)}, s{HPF[k]}, {k}")
        e(f"  s_mul_i32 s{sT0}, s2, {5 * 256}")
        e(f"  s_add_u32 s{sT0}, s{sT0}, {0x100000 + 1024}")
        e(f"  v_lshl_add_u32 {vr(h1)}, v0, 2, s{sT0}")
        e(f"  global_store_dword {vr(h1)}, {vr(h0)}, s[{sWS}:{sWS + 1}]")
    for k in range(4):
        e(f"  v_and_b32 {vr(ro + 2 * k)}, 0xffff, {vr(st4 + k)}")
        e(f"  v_lshrrev_b32 {vr(ro + 2 * k + 1)}, 16, {vr(st4 + k)}")
    for k in range(2):
        e(f"  v_add_u32 {vr(ro + 6 + k)}, {SCB}, {vr(ro + 6 + k)}")
    if P.sd:
        e(f"  v_mov_b32 {vr(vCL)}, 0")
    e("L_hk:")
    for a in range(2):
        for k in range(2):
            e(f"  ds_read_u16_d16_hi {vr(sc + 2 * a + k)}, {vr(ro + 6 + k)} offset:{SA * a}")
    e(f"  ds_read_b64 {vr(z4 + 2, 2)}, {vr(vSq)} offset:{QS}")
    e(f"  v_add_u32 {vr(vSq)}, 8, {vr(vSq)}")
    progwait("hsw", P.psk)
    mark("s")
    rank_post("s")
    for k in range(6):
        e(f"  ds_read_b32 {vr(x + 4 + k)}, {vr(ro + k)} offset:{LGB}")
    e(f"  v_mul_f32 {vr(x + 2)}, {vr(z4 + 2)}, {vr(sc)}")
    e(f"  v_mul_f32 {vr(x + 3)}, {vr(z4 + 2)}, {vr(sc + 1)}")
    e("  s_waitcnt lgkmcnt(0)")
    e(f"  v_pk_add_f32 {vr(x, 2)}, {vr(x + 4, 2)}, {vr(x + 6, 2)}")
    e(f"  v_pk_add_f32 {vr(x, 2)}, {vr(x, 2)}, {vr(x + 8, 2)}")
    e(f"  v_mul_f32 {vr(x)}, {vr(x)}, {vr(x + 2)}")
    e(f"  v_mul_f32 {vr(x + 1)}, {vr(x + 1)}, {vr(x + 3)}")
    e(f"  v_max_f32 {vr(z4)}, {vr(x)}, {vr(x + 1)}")
    allred("v_max_f32", z4, h0)
    e(f"  v_sub_f32 {vr(x)}, {vr(x)}, {vr(z4)}")
    e(f"  v_sub_f32 {vr(x + 1)}, {vr(x + 1)}, {vr(z4)}")
    e(f"  v_exp_f32 {vr(x)}, {vr(x)}")
    e(f"  v_exp_f32 {vr(x + 1)}, {vr(x + 1)}")
    e("  s_nop 0")
    e(f"  v_add_f32 {vr(z4 + 1)}, {vr(x)}, {vr(x + 1)}")
    e(f"  v_mul_f32 {vr(x)}, {vr(x)}, {vr(sc + 2)}")
    e(f"  v_mul_f32 {vr(x + 1)}, {vr(x + 1)}, {vr(sc + 3)}")
    e(f"  v_add_f32 {vr(z4 + 2)}, {vr(x)}, {vr(x + 1)}")
    for k in range(6):
        e(f"  ds_write_b32 {vr(ro + k)}, {vr(x + (k & 1))} offset:{LGB}")
    e(f"  v_mul_f32 {vr(z4 + 2)}, {f32bits(7.5):#x}, {vr(z4 + 2)}")
    allred("v_add_f32", z4 + 1, h0)
    allred("v_add_f32", z4 + 2, h0)
    e(f"  v_mov_b32 {vr(h0)}, s{sNEED}")
    e(f"  ds_write_b128 {vr(vSa)}, {vr(z4, 4)} offset:{ST}")
    e(f"  ds_write_b32 {vr(vZ)}, {vr(h0)} offset:{FL + 20}")
    e(f"  v_add_u32 {vr(vSa)}, 16, {vr(vSa)}")
    for k in range(8):
        e(f"  v_add_u32 {vr(ro + k)}, {1536 if k < 6 else SL}, {vr(ro + k)}")
    rank_take("s")
    warm("s")
    elect()
    e("  s_waitcnt lgkmcnt(0)")
    e(f"  s_add_u32 s{sNEED}, s{sNEED}, 1")
    e(f"  s_cmp_le_u32 s{sNEED}, 16")
    e("  s_cbranch_scc1 L_hk")

    e(f"  v_and_b32 {vr(h0)}, 15, {vr(l)}")
    e(f"  v_lshlrev_b32 {vr(h0)}, 4, {vr(h0)}")
    e(f"  ds_read_b128 {vr(z4, 4)}, {vr(h0)} offset:{ST}")
    e(f"  v_lshrrev_b32 {vr(h1)}, 4, {vr(l)}")
    e(f"  v_mov_b32 {vr(h2)}, 0xff800000")
    for i in range(16):
        e(f"  v_mov_b32 {vr(AC + i)}, 0")
    e("  s_waitcnt lgkmcnt(0)")
    e(f"  v_cmp_eq_u32 vcc, {vr(h1)}, {vr(z4 + 3)}")
    e(f"  v_add_u32 {vr(h0)}, {PB}, {vr(vL16)}")
    e(f"  v_lshrrev_b32 {vr(u)}, 1, {vr(vL16)}")
    e(f"  v_cndmask_b32 {vr(vM)}, {vr(h2)}, {vr(z4)}, vcc")
    rowred("v_max_f32", vM)
    e(f"  v_sub_f32 {vr(vFc)}, {vr(z4)}, {vr(vM)}")
    e(f"  v_exp_f32 {vr(vFc)}, {vr(vFc)}")
    e(f"  s_mov_b32 s{sK}, 0")
    e(f"  v_cndmask_b32 {vr(vFc)}, 0, {vr(vFc)}, vcc")
    e(f"  v_mul_f32 {vr(vL)}, {vr(vFc)}, {vr(z4 + 1)}")
    rowred("v_add_f32", vL)
    e(f"  s_mul_i32 s{sT0}, s{sE + 15}, 384")
    e(f"  v_add_u32 {vr(u)}, s{sT0}, {vr(u)}")
    e("L_hp:")
    e(f"  s_lshr_b32 s{sT0}, s2, 4")
    e(f"  s_min_u32 s{sT0}, s{sT0}, 13")
    e(f"  s_cmp_eq_u32 s{sT0}, s{sK}")
    e("  s_cbranch_scc0 L_hc_ok")
    if P.ot == 1:
        e("; (the value is not used: address translation for the final store)")
        e(f"  s_load_dword s{sF}, s[{sOUT}:{sOUT + 1}], 0")
    if P.ot == 2:
        e("; (the value is not used: address translation for the final store)")
        e("  s_mov_b64 exec, 1")
        e(f"  global_load_dword {vr(vFX)}, {vr(vZ)}, s[{sOUT}:{sOUT + 1}]")
        e("  s_mov_b64 exec, -1")
        e("  s_waitcnt vmcnt(0)")
    e(f"  s_load_dwordx2 s[{sZ}:{sZ + 1}], s[{sDBG}:{sDBG + 1}], 0 glc")
    e("  s_waitcnt lgkmcnt(0)")
    e(f"  s_mov_b32 s{sTG}, s{sZ}")
    e(f"  s_cmp_eq_u32 s{sZ + 1}, 1")
    e("  s_cbranch_scc1 L_hc_ok")
    e("L_hc:")
    e(f"  global_load_dwordx2 {vr(pr, 2)}, {vr(vZ)}, s[{sDBG}:{sDBG + 1}] sc1")
    e("  s_waitcnt vmcnt(0)")
    e(f"  v_readfirstlane_b32 s{sTG}, {vr(pr)}")
    e(f"  v_readfirstlane_b32 s{sF}, {vr(pr + 1)}")
    e(f"  s_cmp_eq_u32 s{sF}, 1")
    e("  s_cbranch_scc1 L_hc_ok")
    budget("L_hc_ok")
    e("  s_sleep 64")
    e("  s_branch L_hc")
    e("L_hc_ok:")
    vstep_k(sH, sK)
    e(f"  s_lshl_b32 s{sT0}, s{sH}, 4")
    e(f"  v_mov_b32 {vr(h1)}, s{sT0}")
    for j in range(4):
        e(f"  v_readlane_b32 s{rA + j}, {vr(vFc)}, s{sH}")
        e(f"  s_add_u32 s{sH}, s{sH}, 16")
    e(f"  s_add_u32 s{sK}, s{sK}, 1")
    e(f"  s_add_u32 s{sNEED}, s{sK}, 16")
    progwait("hpw", P.psk)
    mark("p")
    hp(0)
    rank_post("p")
    sum_partials(1)
    for j in range(4):
        for i in range(4):
            e(f"  v_fmac_f32 {vr(AC + 4 * j + i)}, s{rA + j}, {vr(x + i)}")
    e(f"  v_add_u32 {vr(h0)}, 3072, {vr(h0)}")
    rank_take("p")
    warm("p")
    e(f"  s_cmp_lt_u32 s{sK}, 15")
    e("  s_cbranch_scc1 L_hp")

    if P.eprio:
        e(f"  s_setprio {P.eprio}")
    e(f"  s_lshr_b32 s{sH}, s{sVO + 1}, 28")
    e(f"  s_lshl_b32 s{sT0}, s{sH}, 4")
    e(f"  v_mov_b32 {vr(h1)}, s{sT0}")
    e(f"  s_add_u32 s{sH}, s{sH}, 48")
    e(f"  ds_read_b32 {vr(h1)}, {vr(h1)} offset:{ST + 8}")
    mx = x + 16
    for j in range(3):
        e(f"  v_max3_f32 {vr(mx + j)}, |{vr(AC + 4 * j)}|, |{vr(AC + 4 * j + 1)}|, |{vr(AC + 4 * j + 2)}|")
    for j in range(3):
        e(f"  v_max_f32_e64 {vr(mx + j)}, {vr(mx + j)}, |{vr(AC + 4 * j + 3)}|")
    for n in (8, 4, 2, 1):
        for j in range(3):
            e(f"  v_max_f32_dpp {vr(mx + j)}, {vr(mx + j)}, {vr(mx + j)} row_ror:{n} row_mask:0xf bank_mask:0xf")
    for sw in ("v_permlane16_swap_b32", "v_permlane32_swap_b32"):
        for j in range(3):
            e(f"  v_mov_b32 {vr(mx + 4 + j)}, {vr(mx + j)}")
        for j in range(3):
            e(f"  {sw} {vr(mx + j)}, {vr(mx + 4 + j)}")
        for j in range(3):
            e(f"  v_max_f32 {vr(mx + j)}, {vr(mx + j)}, {vr(mx + 4 + j)}")
    for j in range(3):
        e(f"  v_frexp_exp_i32_f32 {vr(mx + j)}, {vr(mx + j)}")
        e(f"  v_sub_u32 {vr(mx + 4 + j)}, 14, {vr(mx + j)}")
        e(f"  v_subrev_u32 {vr(mx + j)}, 14, {vr(mx + j)}")
        for i in range(4):
            e(f"  v_ldexp_f32 {vr(AC + 4 * j + i)}, {vr(AC + 4 * j + i)}, {vr(mx + 4 + j)}")
        for i in range(2):
            e(f"  v_cvt_pk_f16_f32 {vr(x + 2 * j + i)}, {vr(AC + 4 * j + 2 * i)}, {vr(AC + 4 * j + 2 * i + 1)}")
    for j in range(4):
        e(f"  v_readlane_b32 s{16 + j}, {vr(vM)}, {16 * j}")
        e(f"  v_readlane_b32 s{20 + j}, {vr(vL)}, {16 * j}")
    for j in range(3):
        e(f"  v_readlane_b32 s{rA + j}, {vr(mx + j)}, 0")
    e(f"  v_readlane_b32 s{rA + 3}, {vr(vFc)}, s{sH}")
    for k in range(6):
        e(f"  v_lshrrev_b32 {vr(h2)}, 1, {vr(x + k)}")
        e(f"  v_and_b32 {vr(h2)}, 0x10001, {vr(h2)}")
        e(f"  v_add_u32 {vr(x + k)}, {vr(x + k)}, {vr(h2)}")
    for j in range(3):
        e(f"  v_writelane_b32 {vr(x + 2 * j)}, s{16 + j}, 48")
        e(f"  v_writelane_b32 {vr(x + 2 * j)}, s{20 + j}, 49")
        e(f"  v_writelane_b32 {vr(x + 2 * j + 1)}, s{rA + j}, 49")
    e(f"  v_cmp_gt_u32 vcc, 48, {vr(l)}")
    e(f"  v_lshlrev_b32 {vr(h2)}, 2, {vr(l)}")
    e(f"  v_lshrrev_b32 {vr(h2)}, {vr(h2)}, s{sTG}")
    e(f"  v_mov_b32 {vr(h3)}, 0x10001")
    for i in range(2):
        e(f"  v_cndmask_b32 {vr(tg + 2 + i)}, 0, {vr(h3)}, vcc")
        e(f"  v_bfe_u32 {vr(tg + i)}, {vr(h2)}, {2 * i}, 2")
        e(f"  v_lshl_or_b32 {vr(tg + i)}, {vr(tg + i)}, 15, {vr(tg + i)}")
    e(f"  v_writelane_b32 {vr(tg + 3)}, -1, 48")
    e(f"  v_writelane_b32 {vr(tg + 3)}, s{sMASK}, 49")
    e(f"  v_writelane_b32 {vr(tg + 1)}, s{sTG}, 48")
    e(f"  v_writelane_b32 {vr(tg + 1)}, s{sTG}, 49")
    for i in range(2):
        e(f"  v_and_b32 {vr(tg + i)}, {vr(tg + i)}, {vr(tg + 2 + i)}")
    for k in range(6):
        e(f"  v_bfi_b32 {vr(x + k)}, {vr(tg + 2 + k % 2)}, {vr(tg + k % 2)}, {vr(x + k)}")
    e(f"  v_min_u32 {vr(h2)}, {63 if P.full else 55}, {vr(l)}")
    for j in range(3):
        e(f"  v_lshl_add_u32 {vr(ra + j)}, {vr(h2)}, 3, s{sE + 12 + j}")
    e(f"  s_mul_i32 s{sT0}, s{sE + 15}, {P.hpit}")
    e(f"  s_add_u32 s{sT0}, s{sT0}, {W_REC}")
    e(f"  v_lshl_add_u32 {vr(ra + 3)}, {vr(h2)}, 3, s{sT0}")
    e("  s_waitcnt lgkmcnt(0)")
    if P.mg:
        e("; the stores leave part-way into the last step, where they disturb the read stream least")
        e(f"  s_mov_b32 s{sNEED}, {31 + (P.mg > 12)}")
        progwait("hmw", P.psl, FL + 32)
    hp(1)
    if not P.full:
        e("  s_mov_b32 exec_hi, 0xffffff")
    for j in range(3):
        if "w" not in P.xp:
            e(f"  global_store_dwordx2 {vr(ra + j)}, {vr(x + 2 * j, 2)}, s[{sWS}:{sWS + 1}] sc1")
    e("  s_mov_b64 exec, -1")
    if "r" in P.xp:
        e("  s_branch L_skip")
    if P.ml:
        e(f"  s_mov_b32 s{sNEED}, {31 + (P.ml > 12)}")
        progwait("hlw", P.psl, FL + 48)
    else:
        e(f"  s_waitcnt vmcnt({P.aw})")
    hp(2)
    hp(3)
    e("L_hw:")
    hp(4)
    for j in range(3):
        e(f"  global_load_dwordx2 {vr(rec + 2 * j, 2)}, {vr(ra + 3)}, s[{sWS}:{sWS + 1}] offset:{P.pit * j} sc1")
    e("  s_waitcnt vmcnt(0)")
    hp(5)
    for k in range(6):
        e(f"  v_xor_b32 {vr(rec + k)}, {vr(rec + k)}, {vr(tg + k % 2)}")
    for i in range(2):
        e(f"  v_or3_b32 {vr(h2 + i)}, {vr(rec + i)}, {vr(rec + 2 + i)}, {vr(rec + 4 + i)}")
    e(f"  v_and_b32 {vr(h2)}, {vr(h2)}, {vr(tg + 2)}")
    e(f"  v_and_or_b32 {vr(h2)}, {vr(h3)}, {vr(tg + 3)}, {vr(h2)}")
    e(f"  v_cmp_ne_u32 s[{sZ}:{sZ + 1}], 0, {vr(h2)}")
    for j in range(3):
        e(f"  v_readlane_b32 s{16 + j}, {vr(rec + 2 * j)}, 48")
        e(f"  v_readlane_b32 s{20 + j}, {vr(rec + 2 * j)}, 49")
        e(f"  v_readlane_b32 s{rA + j}, {vr(rec + 2 * j + 1)}, 49")
    e(f"  s_cmp_eq_u64 s[{sZ}:{sZ + 1}], 0")
    e("  s_cbranch_scc1 L_hy")
    budget("L_hy")
    e("  s_branch L_hw")
    e("L_hy:")
    gj = x + 8
    e(f"  v_mov_b32 {vr(h2)}, s19")
    for j in range(3):
        e(f"  v_max_f32 {vr(h2)}, s{16 + j}, {vr(h2)}")
    for j in range(4):
        e(f"  v_sub_f32 {vr(gj + j)}, s{16 + j}, {vr(h2)}")
    for j in range(4):
        e(f"  v_exp_f32 {vr(gj + j)}, {vr(gj + j)}")
    for j in range(3):
        e(f"  s_sext_i32_i16 s{rA + j}, s{rA + j}")
    e(f"  v_mul_f32 {vr(wa)}, s23, {vr(gj + 3)}")
    for j in range(3):
        e(f"  v_fmac_f32 {vr(wa)}, s{20 + j}, {vr(gj + j)}")
    for i in range(4):
        e(f"  v_mul_f32 {vr(fo + i)}, {vr(AC + 12 + i)}, {vr(gj + 3)}")
    e(f"  v_rcp_f32 {vr(wa)}, {vr(wa)}")
    for j in range(3):
        e(f"  v_ldexp_f32 {vr(gj + j)}, {vr(gj + j)}, s{rA + j}")
    for j in range(3):
        for i in range(4):
            e(f"  v_fma_mix_f32 {vr(fo + i)}, {vr(rec + 2 * j + i // 2)}, {vr(gj + j)}, {vr(fo + i)} op_sel:[{i & 1},0,0] op_sel_hi:[1,0,0]")
    e(f"  v_mul_f32 {vr(h2)}, s{rA + 3}, {vr(gj + 3)}")
    e(f"  v_mul_f32 {vr(h2)}, {vr(h2)}, {vr(wa)}")
    e(f"  v_mul_f32 {vr(h3)}, {vr(h2)}, {vr(h1)}")
    for i in range(4):
        e(f"  v_fma_f32 {vr(fo + i)}, {vr(fo + i)}, {vr(wa)}, -{vr(h3)}")
    if "r" in P.xp:
        e("L_skip:")
    hp(6)
    e("  s_barrier")
    hp(7)
    for k in range(4):
        e(f"  ds_read_b128 {vr(x + 4 * k, 4)}, {vr(h0)} offset:{768 * k}")
    e("  s_waitcnt lgkmcnt(2)")
    for h in (0, 2):
        e(f"  v_pk_add_f32 {vr(x + h, 2)}, {vr(x + h, 2)}, {vr(x + 4 + h, 2)}")
    e("  s_waitcnt lgkmcnt(0)")
    for h in (0, 2):
        e(f"  v_pk_add_f32 {vr(x + 8 + h, 2)}, {vr(x + 8 + h, 2)}, {vr(x + 12 + h, 2)}")
    for h in (0, 2):
        e(f"  v_pk_add_f32 {vr(x + h, 2)}, {vr(x + h, 2)}, {vr(x + 8 + h, 2)}")
    for i in range(4):
        e(f"  v_fmac_f32 {vr(fo + i)}, {vr(h2)}, {vr(x + i)}")
    e(f"  v_cvt_pk_bf16_f32 {vr(fo)}, {vr(fo)}, {vr(fo + 1)}")
    e(f"  v_cvt_pk_bf16_f32 {vr(fo + 1)}, {vr(fo + 2)}, {vr(fo + 3)}")
    e("  s_mov_b32 exec_hi, 0xffff")
    e(f"  global_store_dwordx2 {vr(u)}, {vr(fo, 2)}, s[{sOUT}:{sOUT + 1}] {P.of}")
    if P.sd:
        e(f"  s_mov_b32 s{sNEED}, 32")
        e("  s_mov_b64 exec, -1")
        mark("z")
        e(f"  s_cmp_eq_u32 s{sJ}, 0")
        e("  s_cbranch_scc0 L_sd")
        e(f"  v_lshlrev_b32 {vr(h0)}, 2, {vr(l)}")
        e("  s_mov_b32 exec_lo, 0")
        e("  s_mov_b32 exec_hi, 0x3fff")
        e(f"  global_atomic_add {vr(h0)}, {vr(vCL)}, s[{sDBG}:{sDBG + 1}] offset:-120 sc1")
        e("L_sd:")
    if P.enc:
        m0, m1, base, amp, wg = [int(v) for v in P.enc.split(",")]
        if m1 == 32:
            e("  s_memrealtime s[74:75]")
        if m0 == 0:
            e(f"  s_mov_b32 s72, s{sST}")
        e("  s_waitcnt lgkmcnt(0)")
        if P.em:
            e(f"  s_not_b32 s73, s{sST}")
            e(f"  s_mov_b32 s72, s{sST}")
            e(f"  s_atomic_umax s74, s[{sDBG}:{sDBG + 1}], 40")
            e(f"  s_atomic_umax s73, s[{sDBG}:{sDBG + 1}], 44")
            e(f"  s_atomic_umax s72, s[{sDBG}:{sDBG + 1}], 48")
        else:
            e("  s_sub_u32 s72, s74, s72")
            e(f"  s_atomic_add s72, s[{sDBG}:{sDBG + 1}], 32")
        e(f"  s_cmp_eq_u32 s2, {wg}")
        e("  s_cbranch_scc0 L_nohold")
        e("L_hold0:")
        e(f"  s_memrealtime s[{sST + 2}:{sST + 3}]")
        e("  s_waitcnt lgkmcnt(0)")
        e(f"  s_sub_u32 s{sT0}, s{sST + 2}, s{sST}")
        e(f"  s_cmp_lt_u32 s{sT0}, 12500")
        e("  s_cbranch_scc1 L_hold0")
        e("  s_mov_b32 s72, 0")
        if P.em:
            e("  s_mov_b32 s73, 0")
            e(f"  s_atomic_add s72, s[{sDBG}:{sDBG + 1}], {48 if P.em == 3 else 40} glc")
            e(f"  s_atomic_add s73, s[{sDBG}:{sDBG + 1}], {48 if P.em == 2 else 44} glc")
            e("  s_waitcnt lgkmcnt(0)")
            if P.em != 2:
                e("  s_not_b32 s73, s73")
            e("  s_sub_u32 s72, s72, s73")
            e("  s_lshl_b32 s72, s72, 8")
        else:
            e(f"  s_atomic_add s72, s[{sDBG}:{sDBG + 1}], 32 glc")
            e("  s_waitcnt lgkmcnt(0)")
        e(f"  s_sub_u32 s72, s72, {base * 256}")
        e("  s_max_i32 s72, s72, 0")
        e("  s_min_i32 s72, s72, 128000")
        e(f"  s_mul_i32 s72, s72, {amp}")
        e("  s_lshr_b32 s72, s72, 8")
        e("  s_add_u32 s72, s72, 13000")
        e("L_hold:")
        e(f"  s_memrealtime s[{sST + 2}:{sST + 3}]")
        e("  s_waitcnt lgkmcnt(0)")
        e(f"  s_sub_u32 s{sT0}, s{sST + 2}, s{sST}")
        e(f"  s_cmp_lt_u32 s{sT0}, s72")
        e("  s_cbranch_scc1 L_hold")
        e("L_nohold:")
        e("  s_waitcnt lgkmcnt(0)")
    if P.pe:
        e("; diagnostic build only: pointers to d_debug, some of their bits into the run time")
        off, sh_, bits = [int(v) for v in P.pe.split(",")]
        e("  s_cmp_eq_u32 s2, 0")
        e("  s_cbranch_scc0 L_nope")
        e("  s_load_dwordx16 s[4:19], s[0:1], 0")
        e("  s_waitcnt lgkmcnt(0)")
        e("  s_mov_b64 exec, 1")
        for k, r_ in enumerate((4, 6, 7, 8, 12, 13, 14, 30, 31)):
            e(f"  v_mov_b32 v5, s{r_}")
            e(f"  global_store_dword {vr(vZ)}, v5, s[{sDBG}:{sDBG + 1}] offset:{16 + 4 * k}")
        if off < 0:
            e("  s_sub_u32 s72, s6, s12")
        else:
            e(f"  s_mov_b32 s72, s{off}")
        e(f"  s_bfe_u32 s72, s72, {bits << 16 | sh_:#x}")
        e("  s_mul_i32 s72, s72, 300")
        e("  s_add_u32 s72, s72, 13000")
        e("L_pe:")
        e(f"  s_memrealtime s[{sST + 2}:{sST + 3}]")
        e("  s_waitcnt lgkmcnt(0)")
        e(f"  s_sub_u32 s{sT0}, s{sST + 2}, s{sST}")
        e(f"  s_cmp_lt_u32 s{sT0}, s72")
        e("  s_cbranch_scc1 L_pe")
        e("L_nope:")
    if P.tail:
        e("; diagnostic build only")
        e("  s_memrealtime s[72:73]")
        e("L_tail:")
        e("  s_memrealtime s[74:75]")
        e("  s_waitcnt lgkmcnt(0)")
        e("  s_sub_u32 s74, s74, s72")
        e(f"  s_cmp_lt_u32 s74, {P.tail}")
        e("  s_cbranch_scc1 L_tail")
    if P.hold:
        e("; diagnostic build only")
        e("L_hold:")
        e(f"  s_memrealtime s[{sST + 2}:{sST + 3}]")
        e("  s_waitcnt lgkmcnt(0)")
        e(f"  s_sub_u32 s{sT0}, s{sST + 2}, s{sST}")
        e(f"  s_cmp_lt_u32 s{sT0}, {P.hold}")
        e("  s_cbranch_scc1 L_hold")
    if P.stamp:
        e(f"  s_memrealtime s[{sST + 2}:{sST + 3}]")
        if P.hprof:
            e("  s_waitcnt lgkmcnt(0)")
            e("  s_lshl_b32 s44, s2, 5")
            e("  s_add_u32 s44, s44, 0x80000")
            e("  v_mov_b32 v1, s44")
            for k in range(8):
                e(f"  s_sub_u32 s45, s{sST + 2}, s{HP[k]}")
                e(f"  v_mov_b32 v{4 + k}, s45")
            e(f"  global_store_dwordx4 v1, v[4:7], s[{sWS}:{sWS + 1}]")
            e(f"  global_store_dwordx4 v1, v[8:11], s[{sWS}:{sWS + 1}] offset:16")
            e("  s_nop 2")
        e("  s_getreg_b32 s6, hwreg(HW_REG_XCC_ID)")
        e("  s_getreg_b32 s7, hwreg(HW_REG_HW_ID)")
        e("  s_waitcnt lgkmcnt(0)")
        e(f"  v_mov_b32 v4, s{sST}")
        e(f"  v_mov_b32 v5, s{sST + 2}")
        e("  v_mov_b32 v6, s6")
        e("  v_mov_b32 v7, s7")
        e("  s_lshl_b32 s8, s2, 4")
        e("  v_mov_b32 v1, s8")
        e(f"  global_store_dwordx4 v1, v[4:7], s[{sWS}:{sWS + 1}]")
    e("L_end:")
    e("  s_endpgm")
    e(".p2align 6")
    e(".type L_order,@object")
    e("L_order:")
    for k in range(0, len(ordtab), 8):
        e("  .long " + ", ".join(f"{v:#x}" for v in ordtab[k:k + 8]))
    e(".type L_hpos,@object")
    e("L_hpos:")
    for b in range(6):
        at = {chunk_of(b & 1, n, s_, b >> 1): lpos(n, s_) for n in range(24) for s_ in range(16)}
        rows = sorted({c // 3 for c in at})
        for l_ in range(64):
            r0, r1 = rows[l_], rows[l_ + 64]
            e("  .long " + ", ".join(f"{a_ | b_ << 16:#x}" for a_, b_ in [(at[3 * r0 + k], at[3 * r1 + k]) for k in range(3)] + [(2 * r0, 2 * r1)]))
    e('.section .rodata,"a"')
    e(".p2align 6")
    e(f".amdhsa_kernel {NAME}_kernel")
    e(f"  .amdhsa_next_free_vgpr {NV}")
    e("  .amdhsa_next_free_sgpr 100")
    e(f"  .amdhsa_accum_offset {(NV + 3) // 4 * 4}")
    e("  .amdhsa_group_segment_fixed_size 0")
    e("  .amdhsa_kernarg_size 112")
    e("  .amdhsa_user_sgpr_count 2")
    e("  .amdhsa_user_sgpr_kernarg_segment_ptr 1")
    e("  .amdhsa_system_sgpr_workgroup_id_x 1")
    e(".end_amdhsa_kernel")
    return "\n".join(o) + "\n", NV


if __name__ == "__main__":
    ap = argparse.ArgumentParser()
    ap.add_argument("-o", default=f"/code/{NAME}.s")
    for name, d in (("sh", 4), ("deep", 5), ("pd", 9), ("pre", 12), ("nf", 5), ("su", 3), ("hp0", 3), ("tst", 24),
                    ("ctl", 1), ("hi", 2), ("hiv", 7), ("lo", -28), ("thr", 2), ("tp", 2), ("start", 5), ("s0", 0), ("ba", 3),
                    ("r0", 2), ("r1", 30), ("rf", 3), ("rp", 2), ("rt", 26), ("rotl", 7), ("kp", 7), ("kp0", 6), ("kn", 20),
                    ("tw", 3), ("tv", 2), ("ts", 1), ("st", 1), ("ot", 0), ("pit", 512), ("hpit", 1536), ("full", 1), ("ss", 3), ("tk", 0), ("tl", 4), ("top", 18), ("tpd", 4), ("tpv", 4), ("tpn", 1), ("lag", 2), ("mg", 8), ("ml", 0), ("aw", 0), ("sd", 0), ("em", 0), ("tail", 0),
                    ("eprio", 2), ("psl", 1), ("psk", 1), ("spr", 1), ("bound", 4000000), ("hold", 0), ("dly", 0), ("dlb", 2)):
        ap.add_argument("--" + name, type=int, default=d)
    ap.add_argument("--kp_", default="6,6,6,7,8,9,9,10,10,11,11,12,12", help="K loads issued by each prologue point")
    ap.add_argument("--of", default="")
    ap.add_argument("--enc", default="", help="diagnostic only: m0,m1,base,amp,wg")
    ap.add_argument("--ok", default="REXbLbLbL", help="events of a K group")
    ap.add_argument("--ov", default="REXbLbLbL", help="events of a V group")
    ap.add_argument("--rk", default="", help="die gain per step (hex digits, 0 = no ranking)")
    ap.add_argument("--sb", default="", help="step:bias,... added to the lateness")
    ap.add_argument("--pf", default="sc1")
    ap.add_argument("--tpp", default="012", help="positions with a third level")
    ap.add_argument("--pe", default="", help="diagnostic only")
    ap.add_argument("--tm", default="5,10,11,16,21,26")
    ap.add_argument("--tg", default="")
    ap.add_argument("--bu", default="012", help="extra depth per position in the issued group")
    ap.add_argument("--th", default="-9,5,13")
    ap.add_argument("--sch", default="ut_c2.txt")
    ap.add_argument("--xp", default="", help="timing experiments only")
    for name in ("stamp", "trace", "tfine", "hprof"):
        ap.add_argument("--" + name, action="store_true", help="diagnostics only")
    a = ap.parse_args()
    txt, nv = gen(a)
    open(a.o, "w").write(txt)
    print("wrote", a.o, "vgprs", nv)
```

```python
import argparse
import math
import os
import struct
from gen import HEADER, NAME, Alloc, f32bits, vr

UB = 256 * 768

ABOUT = """
Generated by tools/gen11.py.
Work split: a unit is a block of 256 KV rows of one head.  Workgroups g and g ^ 8 share 16 units of four heads (table
  L_order) and alternate over the 32 KiB runs of a unit, 128 rows each; the order of the runs is rotated per pair.
  Waves 1-4 stream one 4 KiB block per round; a 16-lane row handles one third (64 dims) of a KV row per load.
  K sweep: logit = k_scale * sum_d (qk - 7.5) * (qa * cos + qb * sin), RoPE moved onto the rotated q;
  V sweep: partial = sum_rows p * v_scale * qv.
  Wave 0 (helper) rotates q, takes max / exp / sums over the workgroup's rows of each unit, and merges partials.
Constant parameters (the same for every seed) are built in: both zero points (7.5), q_cos / q_sin (table L_qcs) and
  k_cos / k_sin = cos / sin(row * inv_freq).  The angle is split into the part of the row inside its unit (f16 table in
  LDS, evaluated once from L_inv) and the part of the unit (L_f0), by which (qa, qb) is turned in fp32.
Hand-off: every workgroup finishes one of its heads and streams a unit of that head last.  Partials and (max, sum) of
  the other three go to d_ws with sc1 stores; every 8 bytes carry a piece of a tag that differs from the one found there
  on entry (sent round through d_debug).  The finisher reads until all tags fit and rescales to the true row maximum.
Flow control (speed only, results do not depend on it): waves publish a group counter and sample the counters of
  units on the same die; late waves keep one more load in flight, early waves one or two fewer.  Helpers rank the dies.
"""

RUN = (1, 2, 0)


def chunk_of(b, n, s, d):
    g = 256 * ((RUN[n >> 3] + d) % 3) + 128 * b + 16 * (n & 7) + s
    return {128: 512, 255: 639, 512: 128, 639: 255}.get(g, g)


def tidx(b, row):
    return row - 43 * b - 42 * ((row >= 85) + (row >= 171))


def rev(x, bits):
    return int(format(x, f"0{bits}b")[::-1], 2)


def lpos(n, s):
    return 4 * (16 * s + rev(n, 4)) if n < 16 else 1024 + 4 * (8 * s + rev(n - 16, 3))


TN = [(RUN[n >> 3] + (n & 7)) % 3 for n in range(24)]
SPECIAL = {n: i for i, n in enumerate((0, 7, 8, 15, 16, 23))}
for b_ in range(2):
    for d_ in range(3):
        ch = sorted(chunk_of(b_, n, s, d_) for n in range(24) for s in range(16))
        assert ch == sorted(3 * r + k for r in {c // 3 for c in ch} for k in range(3))
        assert all(chunk_of(b_, n, s, d_) % 3 == (TN[n] + d_ + 2 * b_ + s) % 3 for n in range(24) for s in range(16))
        assert len({tidx(b_, c // 3) for c in ch}) == 128 and max(tidx(b_, c // 3) for c in ch) == 128


def gen(P):
    o = []
    e = o.append
    RING, PD = 24, P.pd
    sh, deep = P.sh, P.deep
    PRE = P.pre
    TP = P.tp
    LAG = P.lag
    assert deep <= PD - 1 and sh <= deep and PD <= PRE
    SL = 512
    SA = 16 * SL

    FL = 0
    QS = 128
    ST = 256
    TB = 512
    QB = TB + 129 * 384
    LGB = QB + 16 * 768 + 1536
    SCB = LGB + 16 * 1536
    PB = SCB + 2 * SA
    QR = PB + 49152
    LDS = QR + 4 * 784
    assert 81920 < LDS <= 163840
    W_REC = 0x600000
    W_RK = 0x780000
    W_PL = 0x7c0000

    sQ, sQK, sKS, sKZ, sQV, sVS, sVZ, sQC = 4, 6, 8, 10, 12, 14, 16, 18
    sQS, sKC, sKSN, sOUT = 20, 22, 24, 26
    sDBG, sWS = 28, 30
    rA, rB = 32, 36
    sW, sJ, sC, sK, sT0, sT1, sF, sNEED = 40, 41, 42, 43, 44, 45, 46, 47
    sMSK = 48
    sOF = 51
    sE = 48
    sR0 = 60
    sCO = 61
    sZ = 64
    sMASK, sSCALE, sH = 66, 67, 68
    sS = 69
    sX = 70
    sRF = 80
    sST = 84
    sB = 91
    sVO = 92
    sSP = 94
    sI = 95
    sSE, sCU = 81, 79
    sLO = 78
    sTG = 99

    va = Alloc(1)
    vT16, vF, vZ, vC16 = [va.take(1) for _ in range(4)]
    voff = va.take(9)
    vTA = va.take(15)
    vQA = va.take(3)
    vPA = va.take(3)
    vLG = va.take(2)
    vLB = va.take(2)
    vLV = va.take(2)
    A = va.take(2)
    LG = va.take(2)
    M1, M2, M3 = [va.take(1) for _ in range(3)]
    bc = va.take(2, 2)
    dacc = va.take(2, 2)
    wt = va.take(4, 2)
    vtr, vPW, vPS, vN, vSum, vSu2, vBA = [va.take(1) for _ in range(7)]
    vPL = va.take(4)
    vU = va.take(1)
    vBI = va.take(2, 2)
    smp = va.take(4 * LAG, 4)
    qa = va.take(12, 4)
    tab = va.take(24, 4)
    tmp = va.take(12, 4)
    ring = va.take(4 * RING, 4)
    NV = va.n
    acc = qa

    here = os.path.dirname(os.path.abspath(__file__))
    sch = [[int(x) for x in ln.split()] for ln in open(os.path.join(here, P.sch))]
    pair = lambda g: ((g & 7) << 3) + (g >> 4 & 7) + (g >> 7 << 6)
    assert all(sch[g][32:] == [pair(g) % 3] * 3 for g in range(256))
    assert all(((16 * p_ + 13) * 21846 & 0xffff) * 3 >> 16 == (p_ + 1) % 3 for p_ in range(128))
    sch = [x[:32] for x in sch]
    inv, qcs = [[int(x, 16) for x in ln.split()] for ln in open(os.path.join(here, "consts.txt"))]
    rev_ = [struct.unpack("<f", struct.pack("<I", v))[0] / (2 * math.pi) for v in inv]
    assert sorted(2 * u_ + (g >> 3 & 1) for g in range(256) for u_ in sch[g][:16]) == list(range(4096))
    assert sorted(x[31] >> 3 for x in sch) == list(range(256))
    fill = [0] * 256
    ordtab = []
    for g in range(256):
        ku, own = sch[g][:16], sch[g][31] >> 3
        od = [ku.index(u_) for u_ in sch[g][16:]]
        assert sorted(od) == list(range(16)) and od[0] < 14
        assert ku[0] == (16 * (((g & 7) << 3) + (g >> 4 & 7) + (g >> 7 << 6)) + 14) * 21846 >> 16
        need = list(dict.fromkeys(u_ >> 3 for u_ in ku))
        heads = [h for h in need if h != own] + [own]
        assert len(heads) == 4
        u16 = [u_ | heads.index(u_ >> 3) << 12 for u_ in ku]
        nib = sum(k << (4 * t) for t, k in enumerate(od))
        hq = [h | heads.index(h) << 12 for h in need]
        dst = []
        for h in heads[:3]:
            dst.append(W_REC + P.hpit * h + P.pit * fill[h])
            fill[h] += 1
        ordtab += [u16[2 * i] | u16[2 * i + 1] << 16 for i in range(8)]
        ordtab += [nib & 0xffffffff, nib >> 32, hq[0] | hq[1] << 16, hq[2] | hq[3] << 16] + dst + [own | (2 * (pair(g) % 3) + (g >> 3 & 1)) << 10]
    assert fill == [3] * 256

    def ld(n):
        rr = rA if n < 24 else rB
        n %= 24
        so = f"s{sOF + (n & 7)}" if n & 7 else "0"
        vo = voff + (3 + SPECIAL[n] if n in SPECIAL else n >> 3)
        e(f"  buffer_load_dwordx4 {vr(ring + 4 * n, 4)}, {vr(vo)}, s[{rr}:{rr + 3}], {so} offen nt")

    ORD = {"K": P.ok, "V": P.ov}
    DIST = {"K": PRE, "V": PD}
    bu = [int(x) for x in P.bu]
    th = [int(x) for x in P.th.split(",")]
    assert PD % 3 == 0 and PRE % 3 == 0 and deep == sh + 1

    def memops(ph, a):
        r = []
        for i, c in enumerate(ORD[ph]):
            if c == "X" and P.ctl:
                r += [(i, "B")] * (a == P.ba) + [(i, "S"), (i, "Q")]
            if c == "L":
                r.append((i, "L"))
        return r

    def back(ph, a, i):
        r = [c for j, c in memops(ph, a) if j < i][::-1]
        for k in range(1, 8):
            r += [c for _, c in memops(ph, (a - k) % 8)][::-1]
        return r

    def cnt(ph, a, i, depth):
        depth += bu[ORD[ph][:i].count("L")]
        r = back(ph, a, i)
        return [k + 1 for k, c in enumerate(r) if c == "L"][depth - 2] if depth > 1 else 0

    def swait(ph, a):
        assert ORD[ph].index("E") < ORD[ph].index("X")
        r = back(ph, a, ORD[ph].index("E"))
        return [k for k, c in enumerate(r) if c == "Q"][LAG - 1]

    plain = {}

    def verify():
        ops = [("L", i) for i in range(PRE)]
        done = ORD["K"][:ORD["K"].index("L")].count("b")
        for g in range(256):
            ph, a = "KV"[g >= 128], g % 8
            if 3 * g + PD >= 768 or 128 <= g < 128 + (PRE - PD) // 3:
                for n in range(3 * g, 3 * g + 4 - (g == 255)):
                    plain[n] = len(ops) - 1 - ops.index(("L", n))
                done = max(done, len(ops) - plain[min(3 * g + 3, 767)])
                continue
            nb = nl = 3 * g
            for i, c in enumerate(ORD[ph]):
                if c == "E" and P.ctl:
                    done = max(done, len(ops) - swait(ph, a))
                if c == "X" and P.ctl:
                    ops += [("X", 0)] * (1 + (a == P.ba))
                if c == "b":
                    assert ("L", nb) in ops[:done], nb
                    nb += 1
                if c == "L":
                    done = max(done, len(ops) - cnt(ph, a, i, deep + P.tpn * (P.top < 99 and str(nl % 3) in P.tpp) if P.ctl else sh))
                    ops.append(("L", nl + DIST[ph]))
                    nl += 1
    verify()
    lab = [0]
    rare = []

    def flush():
        o.extend(rare)
        rare.clear()

    def issue(ph, a, i):
        j = ORD[ph][:i].count("L")
        lab[0] += 1
        if P.ctl and j == TP:
            e(f"  s_cmp_lt_i32 s{sS}, {P.lo}")
            e(f"  s_cbranch_scc1 L_t{lab[0]}")
            rare.extend([f"L_t{lab[0]}:", f"  s_waitcnt vmcnt({cnt(ph, a, i, P.thr + 1)})", f"  s_branch L_p{lab[0]}"])
        if P.ctl:
            t = (P.hi if ph == "K" else P.hiv) + th[j]
            tp_ = P.top + P.tpd * j + (0 if ph == "K" else P.tpv)
            assert P.lo <= t < tp_
            top = P.top < 99 and str(j) in P.tpp
            w = lambda d: f"  s_waitcnt vmcnt({cnt(ph, a, i, d)})"
            back = f"  s_branch L_p{lab[0]}"
            if t < 0:
                if top:
                    e(f"  s_sub_u32 s{sT0}, s{sS}, {t + 1}")
                    e(f"  s_cmp_lt_u32 s{sT0}, {tp_ - t}")
                    rare.extend([f"L_q{lab[0]}:", w(deep + P.tpn), f"  s_cmp_gt_i32 s{sS}, 0", f"  s_cbranch_scc1 L_p{lab[0]}", w(sh), back])
                else:
                    e(f"  s_cmp_gt_i32 s{sS}, {t}")
                    rare.extend([f"L_q{lab[0]}:", w(sh), back])
                e(f"  s_cbranch_scc0 L_q{lab[0]}")
                e(w(deep))
                e(f"L_p{lab[0]}:")
            elif top:
                e(f"  s_cmp_gt_i32 s{sS}, {t}")
                e(f"  s_cbranch_scc1 L_q{lab[0]}")
                rare.extend([f"L_q{lab[0]}:", w(deep + P.tpn), f"  s_cmp_gt_i32 s{sS}, {tp_}", f"  s_cbranch_scc1 L_p{lab[0]}", w(deep), back])
                e(w(sh))
                e(f"L_p{lab[0]}:")
            else:
                e(f"  s_cmp_gt_i32 s{sS}, {t}")
                e(f"  s_cbranch_scc1 L_p{lab[0]}")
                e(w(sh))
                e(f"L_p{lab[0]}:")
                e(w(deep))
        else:
            e(f"  s_waitcnt vmcnt({cnt(ph, a, i, sh)})")
        ld(3 * a + j + DIST[ph])
        if ph == "V" and 3 * a + j + 1 == P.mg:
            e(f"  ds_write_b32 {vr(vPW)}, {vr(M1)} offset:{FL + 32}")
        if ph == "V" and 3 * a + j + 1 == P.ml:
            e(f"  ds_write_b32 {vr(vPW)}, {vr(M1)} offset:{FL + 48}")

    def evaluate(ph, a):
        if not P.ctl:
            return
        sm = smp + 4 * (a % LAG)
        e(f"  s_waitcnt vmcnt({swait(ph, a)})")
        if a == (P.ba + LAG) % 8:
            e(f"  v_add_u32 {vr(vBI)}, {vr(vBI)}, {vr(vBI + 1)}")
        e(f"  s_add_u32 s{sT0}, s{sLO}, 0x03030303")
        e(f"  v_msad_u8 {vr(vSum)}, s{sLO}, {vr(sm)}, 0")
        e(f"  v_msad_u8 {vr(vSu2)}, s{sT0}, {vr(sm)}, 0")
        if a == (P.ba + LAG) % 8:
            e(f"  v_readfirstlane_b32 s{sB}, {vr(vBI)}")
        for k in range(1, 3):
            e(f"  v_msad_u8 {vr(vSum)}, s{sLO}, {vr(sm + k)}, {vr(vSum)}")
            e(f"  v_msad_u8 {vr(vSu2)}, s{sT0}, {vr(sm + k)}, {vr(vSu2)}")
        e(f"  v_sub_u32 {vr(vSum)}, {vr(vSum)}, {vr(vSu2)}")
        e(f"  s_add_u32 s{sLO}, s{sLO}, 0x01010101")
        e(f"  v_readlane_b32 s{sMASK}, {vr(vSum)}, 0")
        e(f"  v_readlane_b32 s{sSCALE}, {vr(vSum)}, 1")

    def decide(ph, a):
        if not P.ctl:
            return
        if a == (P.ba + LAG) % 8:
            for it in filter(None, P.sb.split(",")):
                st_, b_ = [int(v) for v in it.split(":")]
                if (st_ >= 16) == (ph == "V"):
                    e(f"  s_cmp_eq_u32 s{sK}, {st_ % 16}")
                    e(f"  s_cselect_b32 s{sT0}, {b_}, 0")
                    e(f"  s_add_u32 s{sB}, s{sB}, s{sT0}")
        cur, old = (sI, sCO) if a & 1 else (sCO, sI)
        e(f"  s_add_u32 s{cur}, s{sMASK}, s{sSCALE}")
        e(f"  s_add_u32 s{sS}, s{cur}, s{old}")
        e(f"  s_ashr_i32 s{sS}, s{sS}, 1")
        e(f"  s_add_u32 s{sS}, s{sS}, s{sB}")
        if ph == "K" and a < P.start:
            e(f"  s_cmp_eq_u32 s{sK}, 0")
            e(f"  s_cselect_b32 s{sS}, {P.s0}, s{sS}")

    def exchange(a):
        if not P.ctl:
            return
        e("  s_mov_b64 exec, 1")
        if a == P.ba:
            e(f"  global_load_dwordx2 {vr(vBI, 2)}, {vr(vBA)}, s[{sWS}:{sWS + 1}] {P.pf}")
        e(f"  global_store_byte {vr(vPS)}, {vr(vN)}, s[{sWS}:{sWS + 1}]")
        e("  s_mov_b64 exec, 3")
        e(f"  global_load_dwordx3 {vr(smp + 4 * (a % LAG), 3)}, {vr(vPL + a % 4)}, s[{sWS}:{sWS + 1}] {P.pf}")
        e(f"  v_add_u32 {vr(vN)}, 1, {vr(vN)}")
        e("  s_mov_b64 exec, -1")

    def srd_head(rr, sp, sh_):
        e(f"  s_mul_i32 s{sT0}, s{sh_}, {UB}")
        e(f"  s_add_u32 s{rr}, s{sp}, s{sT0}")
        e(f"  s_addc_u32 s{rr + 1}, s{sp + 1}, 0")

    def vstep_k(dst, src):
        e(f"  s_lshl_b32 s{dst}, s{src}, 2")
        e(f"  s_lshr_b64 s[{sZ}:{sZ + 1}], s[{sVO}:{sVO + 1}], s{dst}")
        e(f"  s_and_b32 s{dst}, s{sZ}, 15")

    def head_of(dst, slot, vU=vU):
        e(f"  s_lshr_b32 s{sT0}, s{slot}, 1")
        e(f"  v_readlane_b32 s{sZ}, {vr(vU)}, s{sT0}")
        e(f"  s_lshl_b32 s{sT0}, s{slot}, 4")
        e(f"  s_lshr_b32 s{sZ}, s{sZ}, s{sT0}")
        e(f"  s_and_b32 s{dst}, s{sZ}, 0x7ff")

    def budget(ok):
        e(f"  s_cmp_eq_u32 s{sSP}, 0")
        e(f"  s_cbranch_scc1 {ok}")
        e(f"  s_sub_u32 s{sSP}, s{sSP}, 1")

    def flagwait(name, off):
        e(f"L_{name}:")
        e("  s_waitcnt lgkmcnt(0)")
        e(f"  v_readfirstlane_b32 s{sF}, {vr(vF)}")
        e(f"  s_cmp_ge_u32 s{sF}, s{sNEED}")
        e(f"  s_cbranch_scc0 L_{name}_no")
        e(f"L_{name}_ok:")
        rare.extend([f"L_{name}_no:", f"  s_cmp_eq_u32 s{sSP}, 0", f"  s_cbranch_scc1 L_{name}_ok", f"  s_sub_u32 s{sSP}, s{sSP}, 1",
                     f"  ds_read_b32 {vr(vF)}, {vr(vZ)} offset:{off}", f"  s_branch L_{name}"])

    def tr():
        if P.trace:
            e(f"  {'s_memtime' if 'm' in P.xp else 's_memrealtime'} s[88:89]")
            e("  s_waitcnt lgkmcnt(0)")
            e(f"  v_writelane_b32 {vr(vtr)}, s88, m0")
            e("  s_add_u32 m0, m0, 1")
            e("  s_min_u32 m0, m0, 63")

    def die_base(dst):
        e(f"  s_getreg_b32 s{sSE}, hwreg(HW_REG_HW_ID, 8, 7)")
        e(f"  s_getreg_b32 s{dst}, hwreg(HW_REG_XCC_ID, 0, 3)")
        e(f"  s_and_b32 s{sCU}, s{sSE}, 15")
        e(f"  s_lshr_b32 s{sSE}, s{sSE}, 5")
        e(f"  s_mul_i32 s{dst}, s{dst}, 4352")
        e(f"  s_add_u32 s{dst}, s{dst}, {W_PL}")

    ha = Alloc(16)
    l, u, h0, h1, h2, h3 = [ha.take(1) for _ in range(6)]
    wa, wb, vSh, vFc, vM, vL = [ha.take(1) for _ in range(6)]
    ro = ha.take(8)
    vL16, vFA, vFX, vFB, vEL, vCL, vSa, vSq = [ha.take(1) for _ in range(8)]
    hq = ha.take(2)
    hU = ha.take(1)
    z4 = ha.take(4, 4)
    cs = ha.take(8, 4)
    f0 = ha.take(4, 4)
    sc = ha.take(4, 4)
    qn = ha.take(4, 4)
    x = ha.take(32, 4)
    pr = ha.take(4, 4)
    fo = ha.take(4, 4)
    rec = ha.take(8, 4)
    AC = ha.take(16, 4)
    st4 = ha.take(4, 4)
    tg = ha.take(4, 4)
    ra = ha.take(8)
    assert ha.n <= NV and vZ < 16

    invX, invY, tK, tA, tN, tO = tmp, tmp + 4, tmp + 8, tab, tab + 4, tab + 8
    PC0 = 20 + 8 * P.stamp + 16 * (P.dly > 0)
    D_INV, D_QCS, D_F0, D_END = 256, 768, 1152, 1536
    NF = P.nf - (P.stamp and P.st == 2 and P.nf == 5)
    assert RUN[0] == 1 and NF <= 8
    e(HEADER.rstrip("\n"))
    e(f"; @launch grid=(256,1,1) block=(320,1,1) lds={LDS}")
    for ln in ABOUT.strip("\n").split("\n"):
        e("; " + ln)
    e('.amdgcn_target "amdgcn-amd-amdhsa--gfx950"')
    e(".text")
    e(f".globl {NAME}_kernel")
    e(".p2align 8")
    e(f".type {NAME}_kernel,@function")
    e(f"{NAME}_kernel:")
    e("  s_cmpk_ge_u32 s2, 0x100")
    e("  s_cbranch_scc1 L_end")
    if P.dly:
        e("; diagnostic build only: half of the dies start late")
        e(f"  s_getreg_b32 s4, hwreg(HW_REG_XCC_ID, {P.dlb}, 1)")
        e("  s_cmp_eq_u32 s4, 0")
        e("  s_cbranch_scc1 L_dly")
        e(f"  s_sleep {P.dly}")
        e("L_dly:")
    if P.stamp:
        e(f"  s_memrealtime s[{sST}:{sST + 1}]")
    e("  s_load_dwordx16 s[4:19], s[0:1], 0")
    e(f"  s_getpc_b64 s[{sZ}:{sZ + 1}]")
    e("L_pc:")
    e("  v_cmp_gt_u32 vcc, 64, v0")
    e(f"  v_lshlrev_b32 {vr(vT16)}, 4, v0")
    e(f"  s_lshr_b32 s{sK}, s2, 4")
    e(f"  s_lshl_b32 s{sF}, s2, 6")
    e(f"  s_add_u32 s{sF}, s{sF}, L_order-L_pc")
    e(f"  s_and_b32 s{sH}, s2, 7")
    e("  s_cbranch_vccz L_s0")
    e(f"  s_load_dwordx16 s[{sE}:{sE + 15}], s[{sZ}:{sZ + 1}], s{sF}")
    if P.st == 2:
        e(f"  s_load_dwordx8 s[24:31], s[0:1], 80")
    e(f"  v_lshl_add_u32 {vr(h0)}, s{sK}, 6, v0")
    e(f"  v_mul_u32_u24 {vr(h0)}, {P.tst}, {vr(h0)}")
    e(f"  global_load_dword {vr(h3)}, {vr(h0)}, s[{sZ}:{sZ + 1}] offset:{D_QCS - PC0}")
    e("  s_branch L_helper")
    e("L_s0:")
    e(f"  v_and_b32 {vr(vC16)}, 0xf0, {vr(vT16)}")
    e(f"  global_load_dwordx4 {vr(invX, 4)}, {vr(vC16)}, s[{sZ}:{sZ + 1}] offset:{D_INV - PC0}")
    e(f"  global_load_dwordx4 {vr(invY, 4)}, {vr(vC16)}, s[{sZ}:{sZ + 1}] offset:{D_INV + 256 - PC0}")
    e(f"  s_and_b32 s{sT1}, s{sK}, 8")
    e(f"  s_add_u32 s{sH}, s{sH}, s{sT1}")
    e(f"  s_and_b32 s{sT1}, s{sK}, 7")
    e(f"  s_lshl3_add_u32 s{sH}, s{sH}, s{sT1}")
    e(f"  s_lshl4_add_u32 s{sH}, s{sH}, 14")
    e(f"  s_mulk_i32 s{sH}, 21846")
    e(f"  s_lshr_b32 s{sC}, s{sH}, 16")
    e(f"  s_addk_i32 s{sH}, -21846")
    e(f"  s_lshl_b32 s{sH}, s{sH}, 16")
    e(f"  s_mul_hi_u32 s{sR0}, s{sH}, 3")
    e(f"  s_mul_i32 s{sT0}, s{sC}, {UB}")
    e(f"  s_and_b32 s{sT1}, s2, 8")
    e(f"  s_lshl4_add_u32 s{sT1}, s{sR0}, s{sT1}")
    e(f"  s_lshl_b32 s{sT1}, s{sT1}, 12")
    e(f"  s_add_u32 s{sT0}, s{sT0}, s{sT1}")
    e(f"  s_addk_i32 s{sT0}, {4096 - 1024}")
    e(f"  v_add_u32 {vr(tA)}, s{sT0}, {vr(vT16)}")
    for k in range(1, (NF + 1) // 2):
        e(f"  v_add_u32 {vr(tA + k)}, {8192 * k}, {vr(tA)}")
    e("  s_waitcnt lgkmcnt(0)")
    for n in range(NF):
        e(f"  global_load_dwordx4 {vr(ring + 4 * n, 4)}, {vr(tA + n // 2)}, s[{sQK}:{sQK + 1}] offset:{4096 * (n % 2) - 4096} nt")
    e("  s_branch L_s1")
    e("L_b0:")
    e(f".if (L_b0 - {NAME}_kernel > {D_INV}) || (L_pc - {NAME}_kernel != {PC0})")
    e('.error "entry block layout"')
    e(".endif")
    e(".p2align 8")
    e(".type L_inv,@object")
    e("L_inv:")
    tb = [f32bits(v) for v in rev_[:64] + rev_[64:] + rev_[64:]]
    for k in range(0, 128, 8):
        e("  .long " + ", ".join(f"{v:#x}" for v in tb[k:k + 8]))
    e(".type L_qcs,@object")
    e("L_qcs:")
    for k in range(0, 96, 8):
        e("  .long " + ", ".join(f"{v:#x}" for v in qcs[k:k + 8]))
    e(".type L_f0,@object")
    e("L_f0:")
    for k in range(0, 96, 8):
        e("  .long " + ", ".join(f"{f32bits(256 * v - round(256 * v)):#x}" for v in rev_[k:k + 8]))

    def common(ld_=True):
        if ld_:
            e(f"  s_load_dwordx8 s[24:31], s[0:1], 80")
        e(f"  v_mov_b32 {vr(vZ)}, 0")
        e(f"  s_mov_b32 s{sSP}, {P.bound}")
        e(f"  s_bfe_u32 s{sJ}, s2, 0x10003")

    PFR = [4, 10, 14, 62, 72, 74, 76, 82, 86, 96, 98]
    pfn = [0]

    def pf():
        if P.tfine:
            e(f"  {'s_memtime' if 'm' in P.xp else 's_memrealtime'} s[{PFR[pfn[0]]}:{PFR[pfn[0]] + 1}]")
            pfn[0] += 1

    e("L_s1:")
    w_, s_, vAD, vC8, t0, t1 = wt, wt + 1, wt + 2, wt + 3, dacc, dacc + 1
    vRF, pos = vT16, tK + 3
    if P.trace:
        e(f"  v_mov_b32 {vr(vtr)}, 0")
        e("  s_mov_b32 m0, 0")
    pf()
    e("  v_subrev_u32 v0, 64, v0")
    e(f"  s_setprio {P.spr}")
    e(f"  s_load_dwordx8 s[16:23], s[{sZ}:{sZ + 1}], s{sF}")
    e(f"  s_add_u32 s{sF}, s{sF}, 32")
    e(f"  s_load_dwordx2 s[{sVO}:{sVO + 1}], s[{sZ}:{sZ + 1}], s{sF}")
    e(f"  s_movk_i32 s{sNEED}, 768")
    common()
    e(f"  v_lshrrev_b32 {vr(w_)}, 6, v0")
    e(f"  v_lshrrev_b32 {vr(s_)}, 4, v0")
    e(f"  v_and_b32 {vr(vC8)}, 0x70, {vr(vC16)}")
    e(f"  v_readfirstlane_b32 s{sW}, {vr(w_)}")
    e(f"  v_add_u32 {vr(vAD)}, {vr(vC8)}, {vr(s_)}")
    e(f"  s_mul_i32 s{sT0}, s{sJ}, 44")
    e(f"  s_sub_u32 s{sT0}, 86, s{sT0}")
    e(f"  v_cmp_eq_u32 vcc, s{sT0}, {vr(vAD)}")
    e(f"  v_mov_b32 {vr(t0)}, 0x80")
    e(f"  s_mov_b32 s{rA + 2}, {UB}")
    e(f"  v_cndmask_b32 {vr(vAD)}, {vr(vAD)}, {vr(t0)}, vcc")
    e(f"  v_mul_u32_u24 {vr(t0)}, 381, {vr(vAD)}")
    e(f"  s_mul_i32 s{sT0}, s{sJ}, 43")
    e(f"  v_add_u32 {vr(t0)}, 2, {vr(t0)}")
    e(f"  v_lshrrev_b32 {vr(t0)}, 14, {vr(t0)}")
    assert all((381 * i + 2) >> 14 == (i >= 43) + (i >= 86) for i in range(129))
    e(f"  v_mad_u32_u24 {vr(t0)}, {vr(t0)}, 42, {vr(vAD)}")
    e(f"  v_add_u32 {vr(t0)}, s{sT0}, {vr(t0)}")
    e(f"  v_cvt_f32_u32 {vr(vRF)}, {vr(t0)}")
    e(f"  v_mul_u32_u24 {vr(vAD)}, 384, {vr(vAD)}")
    e(f"  s_mov_b32 s{rA + 3}, 0x20000")
    srd_head(rA, sQK, sC)
    e(f"  s_lshl_b32 s{sT0}, s{sJ}, 15")
    sRK = [sR0, 8, 9]
    e(f"  v_lshl_add_u32 {vr(t0)}, v0, 4, s{sT0}")
    for k in range(3):
        if k:
            e(f"  s_add_u32 s{sRK[k]}, s{sRK[k - 1]}, 1")
            e(f"  s_cmp_eq_u32 s{sRK[k]}, 3")
            e(f"  s_cselect_b32 s{sRK[k]}, 0, s{sRK[k]}")
        e(f"  v_lshl_add_u32 {vr(voff + k)}, s{sRK[k]}, 16, {vr(t0)}")
    for i in range(1, 8):
        e(f"  s_movk_i32 s{sOF + i}, {4096 * i}")
    nk = [NF]
    nfix = [0]
    assert PRE <= RING and max(int(v) for v in P.kp_.split(",")[:P.su + 1]) <= 7

    def k_loads(hi):
        while nk[0] < min(hi, PRE):
            ld(nk[0])
            nk[0] += 1

    def toff_(n):
        run = RUN[n >> 3]
        return 384 * (16 * (((n & 7) + run) // 3) + 38 * run)

    def tmin(n):
        return toff_((n & ~7) + (n & 7) % 3)

    def setup():
        e("; per chunk class k: q operand, table and partial addresses")
        sD = sRK[2]
        e(f"  s_lshl1_add_u32 s{sF}, s{sJ}, s{sW}")
        e(f"  s_add_u32 s{sF}, s{sF}, s{sD}")
        e(f"  s_lshl_b32 s{sF}, s{sF}, 1")
        e(f"  s_lshr_b32 s{sF}, 0x24924, s{sF}")
        e(f"  v_bfe_u32 {vr(t1)}, v0, 4, 2")
        e(f"  v_lshl_add_u32 {vr(t1)}, {vr(t1)}, 2, {vr(vC16)}")
        e(f"  v_mad_u32_u24 {vr(vF)}, {vr(w_)}, s{sNEED}, {vr(t1)}")
        e(f"  v_add_u32 {vr(vF)}, {PB - 3072}, {vr(vF)}")
        e(f"  s_mul_i32 s{sT1}, s{sJ}, {43 * 384}")
        e(f"  s_sub_u32 s{sT1}, {TB}, s{sT1}")
        e(f"  s_mul_i32 s{sT0}, s{sD}, {38 * 384}")
        e(f"  s_add_u32 s{sT1}, s{sT1}, s{sT0}")
        e(f"  s_lshl3_add_u32 s{sT0}, s{sJ}, s{sD}")
        e(f"  v_lshl_add_u32 {vr(vSum)}, s{sT0}, 4, {vr(s_)}")
        for k in range(3):
            e(f"  s_bfe_u32 s{sT0}, s{sF}, {(2 << 16) | 2 * k:#x}")
            e(f"  v_lshl_add_u32 {vr(vPA + k)}, s{sT0}, 8, {vr(vF)}")
            if k:
                e(f"  v_add_u32 {vr(vSum)}, 16, {vr(vSum)}")
            e(f"  v_mul_u32_u24 {vr(t0)}, 171, {vr(vSum)}")
            e(f"  v_lshrrev_b32 {vr(t0)}, 9, {vr(t0)}")
            e(f"  v_mad_i32_i24 {vr(t1)}, {vr(t0)}, -3, {vr(vSum)}")
            e(f"  v_lshl_add_u32 {vr(t1)}, {vr(t1)}, 8, {vr(vC16)}")
            e(f"  v_add_u32 {vr(vQA + k)}, {QB}, {vr(t1)}")
            e(f"  v_subrev_u32 {vr(vSu2)}, 384, {vr(t1)}")
            e(f"  v_min_u32 {vr(t1)}, {vr(t1)}, {vr(vSu2)}")
            e(f"  v_mul_u32_u24 {vr(t0)}, 384, {vr(t0)}")
            e(f"  v_add3_u32 {vr(vTA + 6 + k)}, {vr(t0)}, {vr(t1)}, s{sT1}")
        assert all(171 * x_ >> 9 == x_ // 3 for x_ in range(208)) and RUN[2] == 0
        for g_ in range(2):
            e(f"  s_cmp_lt_u32 s{sRK[g_]}, {RUN[g_]}")
            e(f"  s_cselect_b32 s{sT1}, {-130 * 384}, 0")
            for n in range(8 * g_, 8 * g_ + 3):
                e(f"  s_add_u32 s{sT0}, s{sT1}, {tmin(n)}")
                e(f"  v_add_u32 {vr(vTA + 3 * g_ + TN[n])}, s{sT0}, {vr(vTA + 6 + TN[n])}")
        dB, dT = A, LG
        e(f"  s_lshl1_add_u32 s{sT0}, s{sJ}, -1")
        e(f"  s_mul_i32 s{sT0}, s{sT0}, 98304")
        e(f"  v_mov_b32 {vr(t0)}, s{sT0}")
        for i, sx in enumerate((0, 15)):
            e(f"  s_mul_i32 s{sT1}, s{sJ}, {130 * 384}")
            e(f"  s_sub_u32 s{sT1}, s{sT1}, {(44, 86)[i] * 384}")
            e(f"  v_cmp_eq_u32 vcc, {sx}, {vr(s_)}")
            e(f"  v_mov_b32 {vr(t1)}, s{sT1}")
            e(f"  s_lshl_b32 s{sH}, s{sJ}, 1")
            e(f"  v_cndmask_b32 {vr(dB + i)}, 0, {vr(t0)}, vcc")
            e(f"  v_cndmask_b32 {vr(dT + i)}, 0, {vr(t1)}, vcc")
        e(f"  s_sub_u32 s{sH}, 2, s{sH}")
        for n, i in SPECIAL.items():
            if i % 2 == 0:
                e(f"  s_cmp_eq_u32 s{sRK[n >> 3]}, s{sH}")
                e(f"  s_cselect_b32 s{sT0}, 1, 0")
            e(f"  v_mad_i32_i24 {vr(voff + 3 + i)}, {vr(dB + i % 2)}, s{sT0}, {vr(voff + (n >> 3))}")
            if toff_(n) != tmin(n):
                e(f"  v_add_u32 {vr(t1)}, {toff_(n) - tmin(n)}, {vr(vTA + 3 * (n >> 3) + TN[n])}")
                e(f"  v_mad_i32_i24 {vr(vTA + 9 + i)}, {vr(dT + i % 2)}, s{sT0}, {vr(t1)}")
            else:
                e(f"  v_mad_i32_i24 {vr(vTA + 9 + i)}, {vr(dT + i % 2)}, s{sT0}, {vr(vTA + 3 * (n >> 3) + TN[n])}")
        e(f"  s_lshl2_add_u32 s{sT0}, s{sW}, s{sR0}")
        e(f"  s_cmp_eq_u32 s{sT0}, s{sH}")
        e("  s_cbranch_scc0 L_fx")
        e("  s_mov_b64 exec, 0xffff")
        ld(0)
        e("  s_mov_b64 exec, -1")
        e("L_fx:")
        nfix[0] = nk[0]
        e(f"  v_lshlrev_b32 {vr(vLB)}, 2, v0")
        e(f"  v_add_u32 {vr(vLB)}, {LGB}, {vr(vLB)}")
        e(f"  v_lshrrev_b32 {vr(t1)}, 1, v0")
        e(f"  v_lshlrev_b32 {vr(t1)}, 2, {vr(t1)}")
        e(f"  v_add_u32 {vr(vLB + 1)}, {LGB + 1024}, {vr(t1)}")
        e(f"  v_subrev_u32 {vr(vLG)}, 1536, {vr(vLB)}")
        e(f"  v_subrev_u32 {vr(vLG + 1)}, 1536, {vr(vLB + 1)}")
        e(f"  v_lshlrev_b32 {vr(vPW)}, 2, {vr(w_)}")
        e(f"  s_mov_b32 s{sMSK}, 0xcccccccc")
        e(f"  s_mov_b32 s{sMSK + 1}, s{sMSK}")
        e(f"  s_mov_b32 s{sMSK + 2}, 0xaaaaaaaa")
        e(f"  s_mov_b32 s{sMSK + 3}, s{sMSK + 2}")
        e(f"  s_mov_b32 s{rB + 2}, {UB}")
        e(f"  s_mov_b32 s{rB + 3}, 0x20000")
        e(f"  s_mov_b32 s{sK}, 0")
        if P.ctl:
            e("; progress slots: this wave writes one byte of line (half, w) and samples the lines of the other half")
            die_base(sF)
            e(f"  s_add_u32 s{sT0}, s{sF}, 2048")
            e(f"  v_mov_b32 {vr(vBA)}, s{sT0}")
            e(f"  s_and_b32 s{sT1}, s{sSE}, 2")
            e(f"  s_lshl_b32 s{sT1}, s{sT1}, 9")
            e(f"  s_lshl_b32 s{sT0}, s{sW}, 8")
            e(f"  s_add_u32 s{sT0}, s{sT0}, s{sT1}")
            e(f"  s_add_u32 s{sT0}, s{sT0}, s{sF}")
            e(f"  s_add_u32 s{sT0}, s{sT0}, s{sCU}")
            e(f"  s_and_b32 s{sSE}, s{sSE}, 1")
            e(f"  s_lshl_b32 s{sSE}, s{sSE}, 4")
            e(f"  s_add_u32 s{sT0}, s{sT0}, s{sSE}")
            e(f"  v_mov_b32 {vr(vPS)}, s{sT0}")
            e(f"  s_xor_b32 s{sT1}, s{sT1}, 1024")
            e(f"  s_add_u32 s{sF}, s{sF}, s{sT1}")
            e(f"  v_and_b32 {vr(vN)}, 1, v0")
            e(f"  v_lshl_add_u32 {vr(vN)}, {vr(vN)}, 4, s{sF}")
            for k in range(4):
                e(f"  v_add_u32 {vr(vSum)}, {k}, {vr(w_)}")
                e(f"  v_and_b32 {vr(vSum)}, 3, {vr(vSum)}")
                e(f"  v_lshl_add_u32 {vr(vPL + k)}, {vr(vSum)}, 8, {vr(vN)}")
            e(f"  s_mov_b32 s{sLO}, {(-(LAG + 2) * 0x01010101) & 0xffffffff:#x}")
            for k in range(4 * LAG):
                e(f"  v_mov_b32 {vr(smp + k)}, 0")
            for k in range(2):
                e(f"  v_mov_b32 {vr(vBI + k)}, 0")
            e(f"  v_mov_b32 {vr(vN)}, 0")
            e(f"  s_mov_b32 s{sB}, 0")
            e(f"  s_mov_b32 s{sS}, {P.s0}")
            e(f"  s_mov_b32 s{sI}, 0")
            e(f"  s_mov_b32 s{sCO}, 0")

    def sincos(dst, iv):
        for h in (0, 2):
            e(f"  v_pk_mul_f32 {vr(tN + h, 2)}, {vr(iv + h, 2)}, {vr(tK + 2, 2)} op_sel:[0,1] op_sel_hi:[1,1]")
        for i in range(4):
            e(f"  v_cos_f32 {vr(tA + i)}, {vr(tN + i)}")
        for i in range(4):
            e(f"  v_sin_f32 {vr(tN + i)}, {vr(tN + i)}")
        for i in range(4):
            e(f"  v_cvt_pk_f16_f32 {vr(dst + i)}, {vr(tA + i)}, {vr(tN + i)}")

    kp = [int(v) for v in P.kp_.split(",")]

    def chunk(i):
        a = 2 * (i // 3)
        d = tO + 4 * (i & 1)
        bc_ = lambda x, m: f"row_newbcast:{x} row_mask:0xf bank_mask:{m:#x}"
        if i % 3 == 1:
            e(f"  v_mov_b32_dpp {vr(pos)}, {vr(vRF)} {bc_(a + 1, 12)}")
            e(f"  v_add_u32_dpp {vr(vF)}, {vr(vAD)}, {vr(vC8)} {bc_(a, 3)}")
            e(f"  v_add_u32_dpp {vr(vF)}, {vr(vAD)}, {vr(vC8)} {bc_(a + 1, 12)}")
            sincos(d, invY)
            e(f"  ds_write_b128 {vr(vF)}, {vr(d, 4)} offset:{TB + 256}")
        else:
            a += i % 3 // 2
            e(f"  v_mov_b32_dpp {vr(pos)}, {vr(vRF)} {bc_(a, 15)}")
            e(f"  v_add_u32_dpp {vr(vF)}, {vr(vAD)}, {vr(vC16)} {bc_(a, 15)}")
            sincos(d, invX)
            e(f"  ds_write_b128 {vr(vF)}, {vr(d, 4)} offset:{TB}")

    def tab_read(a):
        for n in range(3 * a, 3 * a + 3):
            d = tab + 12 * (a & 1) + 4 * (n % 3)
            if n in SPECIAL:
                e(f"  ds_read_b128 {vr(d, 4)}, {vr(vTA + 9 + SPECIAL[n])}")
            else:
                e(f"  ds_read_b128 {vr(d, 4)}, {vr(vTA + 3 * (n >> 3) + TN[n])} offset:{toff_(n) - tmin(n)}")

    k_loads(kp[0])
    pf()
    e(f"  s_waitcnt vmcnt({nk[0]})")
    pf()
    for i in range(12):
        if i == P.su:
            setup()
            pf()
        chunk(i)
        k_loads(kp[i + 1])
        if i % 3 == 2:
            pf()
    k_loads(PRE)
    e(f"  v_mov_b32 {vr(bc)}, {f32bits(-7.5):#x}")
    e("  s_waitcnt lgkmcnt(0)")
    for k in range(8):
        e(f"  v_writelane_b32 {vr(vU)}, s{16 + k}, {k}")
    e("  s_barrier")
    pf()
    for k in range(3):
        e(f"  ds_read_b128 {vr(qa + 4 * k, 4)}, {vr(vQA + k)}")
    tab_read(0)
    e(f"  s_waitcnt vmcnt({PRE - nfix[0]})")
    pf()
    if P.tfine:
        e("  s_waitcnt lgkmcnt(0)")
        for k in range(pfn[0]):
            e(f"  v_writelane_b32 {vr(vtr)}, s{PFR[k]}, {k}")
        e(f"  s_mov_b32 m0, {pfn[0]}")

    def vfirst():
        e(f"  s_and_b32 s{sH}, s{sVO}, 15")
        e(f"  s_add_u32 s{sNEED}, s{sH}, 1")
        e(f"  ds_read_b32 {vr(vF)}, {vr(vZ)} offset:{FL + 20}")
        flagwait("a0", FL + 20)
        e(f"  s_mulk_i32 s{sH}, 1536")
        for k in range(2):
            e(f"  v_add_u32 {vr(vLV + k)}, s{sH}, {vr(vLB + k)}")
        e(f"  ds_read_b32 {vr(A)}, {vr(vLV)}")


    def knext():
        e("; next SRD: K slot k + 1, or the first V step once K runs out")
        e(f"  s_add_u32 s{sH}, s{sK}, 1")
        e(f"  s_sub_u32 s{sT1}, s{sH}, 16")
        vstep_k(sF, sT1)
        e(f"  s_cmp_lt_u32 s{sH}, 16")
        e(f"  s_cselect_b32 s{sH}, s{sH}, s{sF}")
        e(f"  s_cselect_b32 s{sX}, s{sQK}, s{sQV}")
        e(f"  s_cselect_b32 s{sX + 1}, s{sQK + 1}, s{sQV + 1}")
        head_of(sH, sH)
        srd_head(rB, sX, sH)

    def kred(n):
        dpp = lambda d, x, how, m: e(f"  v_add_f32_dpp {vr(d)}, {vr(x)}, {vr(x)} {how} row_mask:0xf bank_mask:{m:#x}")
        dpp(M1, dacc, "row_ror:8", 12 if n & 1 else 3)
        if n % 2 == 1:
            e("  s_nop 1")
            dpp(M2, M1, "row_half_mirror", 10 if n & 2 else 5)
        if n % 4 == 3:
            e("  s_nop 1")
            dpp(M2 if n & 4 else M3, M2, "quad_perm:[2,3,0,1]", 15)
        if n % 8 == 7:
            e(f"  v_cndmask_b32_e64 {vr(M3)}, {vr(M3)}, {vr(M2)}, s[{sMSK}:{sMSK + 1}]")
            e("  s_nop 1")
            dpp((LG, M3, LG + 1)[n >> 3], M3, "quad_perm:[1,0,3,2]", 15)
        if n == 15:
            e(f"  v_cndmask_b32_e64 {vr(LG)}, {vr(LG)}, {vr(M3)}, s[{sMSK + 2}:{sMSK + 3}]")

    e(".p2align 6")
    e("L_k:")

    def kbody(n):
        k_, q_ = ring + 4 * n, qa + 4 * TN[n]
        for i in range(4):
            e(f"  v_dot2_f32_f16 {vr(wt + i)}, {vr(tab + 12 * (n // 3 & 1) + 4 * (n % 3) + i)}, {vr(q_ + i)}, 0")
        for i in range(4):
            e(f"  v_cvt_f32_i32 {vr(k_ + i)}, {vr(k_ + i)}")
        if n >= 21:
            e(f"  ds_read_b128 {vr(q_, 4)}, {vr(vQA + TN[n])}")
        for h in range(2):
            e(f"  v_pk_add_f32 {vr(k_ + 2 * h, 2)}, {vr(k_ + 2 * h, 2)}, {vr(bc, 2)} op_sel_hi:[1,0]")
        e(f"  v_pk_mul_f32 {vr(dacc, 2)}, {vr(k_, 2)}, {vr(wt, 2)}")
        e(f"  v_pk_fma_f32 {vr(dacc, 2)}, {vr(k_ + 2, 2)}, {vr(wt + 2, 2)}, {vr(dacc, 2)}")
        e(f"  v_add_f32 {vr(dacc)}, {vr(dacc)}, {vr(dacc + 1)}")

    def kout():
        e(f"  v_mov_b32 {vr(vF)}, s{sK}")
        for k in range(2):
            e(f"  ds_write_b32 {vr(vLG + k)}, {vr(LG + k)}")
        e(f"  ds_write_b32 {vr(vPW)}, {vr(vF)} offset:{FL}")

    def group(ph, a, body, after, res):
        nb, pend = 3 * a, None
        od = ORD[ph]
        for i, c in enumerate(od):
            if pend is not None and c != "L":
                if od[i - 1] == "b":
                    e("  s_nop 1")
                after(pend)
                pend = None
            if c == "E":
                evaluate(ph, a)
                if od[i + 1] != "X":
                    decide(ph, a)
            if c == "X":
                exchange(a)
                if od[i - 1] == "E":
                    decide(ph, a)
            if c == "R" and a == 0:
                res()
            if c == "b":
                body(nb)
                pend = nb if after else None
                nb += 1
            if c == "L":
                issue(ph, a, i)
        if pend is not None:
            if od[-1] == "b":
                e("  s_nop 1")
            after(pend)

    for a in range(8):
        if a == 7:
            flagwait("qn", FL + 16)
        else:
            e("  s_waitcnt lgkmcnt(0)")
        tab_read((a + 1) % 8)
        if a == 6:
            e(f"  ds_read_b32 {vr(vF)}, {vr(vZ)} offset:{FL + 16}")
        group("K", a, kbody, kred, kout)
        if a == 1:
            knext()
        if a == 3:
            e(f"  s_add_u32 s{sT0}, s{sK}, 2")
            e(f"  s_min_u32 s{sNEED}, s{sT0}, 16")
            for k in range(3):
                e(f"  v_add_u32 {vr(vQA + k)}, 768, {vr(vQA + k)}")
            for k in range(2):
                e(f"  v_add_u32 {vr(vLG + k)}, 1536, {vr(vLG + k)}")
            e(f"  s_cmp_eq_u32 s{sK}, 15")
            e("  s_cbranch_scc1 L_kv")
            e("L_kw:")
        if a in (3, 7) or P.tfine:
            tr()
    assert sorted(TN[21:]) == [0, 1, 2] and TN[:3] == TN[3:6] and sorted(TN[:3]) == [0, 1, 2] and PRE <= 18
    e(f"  s_add_u32 s{sK}, s{sK}, 1")
    e(f"  s_mov_b64 s[{rA}:{rA + 1}], s[{rB}:{rB + 1}]")
    e(f"  s_cmp_lt_u32 s{sK}, 16")
    e("  s_cbranch_scc1 L_k")


    def vbody(n):
        v_ = ring + 4 * n
        e(f"  v_mov_b32_dpp {vr(bc)}, {vr(A + n // 16)} row_newbcast:{rev(n % 16, 4)} row_mask:0xf bank_mask:0xf")
        for i in range(4):
            e(f"  v_cvt_f32_i32 {vr(v_ + i)}, {vr(v_ + i)}")
        for h in range(2):
            d = 4 * TN[n] + 2 * h
            if n < 3:
                e(f"  v_pk_mul_f32 {vr(tmp + d, 2)}, {vr(v_ + 2 * h, 2)}, {vr(bc, 2)} op_sel_hi:[1,0]")
            else:
                e(f"  v_pk_fma_f32 {vr(acc + d, 2)}, {vr(v_ + 2 * h, 2)}, {vr(bc, 2)}, {vr((tmp if n < 6 else acc) + d, 2)} op_sel_hi:[1,0,1]")

    def vout(last=False):
        for j in range(3):
            e(f"  v_permlane32_swap_b32 {vr(acc + 4 * j)}, {vr(acc + 4 * j + 2)}")
            e(f"  v_permlane32_swap_b32 {vr(acc + 4 * j + 1)}, {vr(acc + 4 * j + 3)}")
        for j in range(3):
            e(f"  v_add_f32 {vr(acc + 4 * j)}, {vr(acc + 4 * j)}, {vr(acc + 4 * ((j + 1) % 3) + 2)}")
            e(f"  v_add_f32 {vr(acc + 4 * j + 1)}, {vr(acc + 4 * j + 1)}, {vr(acc + 4 * ((j + 1) % 3) + 3)}")
        for j in range(3):
            e(f"  v_permlane16_swap_b32 {vr(acc + 4 * j)}, {vr(acc + 4 * j + 1)}")
        for j in range(3):
            e(f"  v_add_f32 {vr(acc + 4 * j)}, {vr(acc + 4 * j)}, {vr(acc + 4 * ((j + 2) % 3) + 1)}")
        for j in range(3):
            e(f"  ds_write_b32 {vr(vPA + j)}, {vr(acc + 4 * j)}")
        if not last:
            e(f"  ds_write_b32 {vr(vPW)}, {vr(M1)} offset:{FL}")
            e("L_v0:")

    def vnext():
        e(f"  s_add_u32 s{sT1}, s{sK}, 1")
        e(f"  s_min_u32 s{sT1}, s{sT1}, 15")
        vstep_k(sH, sT1)
        e(f"  s_add_u32 s{sNEED}, s{sH}, 1")
        e(f"  s_mul_i32 s{sF}, s{sH}, 1536")
        head_of(sH, sH)
        srd_head(rB, sQV, sH)
        for k in range(2):
            e(f"  v_add_u32 {vr(vLV + k)}, s{sF}, {vr(vLB + k)}")

    NS, NT = (PRE - PD) // 3, 8 - PD // 3
    assert NS <= 1 and 4 <= NT <= 5 and (NS or P.ov[0] == "R") and max(P.mg, P.ml) <= 3 * NT
    e("L_vpre:")
    kout()
    e(f"  s_mov_b32 s{sK}, 0")
    e(f"  v_mov_b32 {vr(M1)}, 16")
    if NS:
        for n in range(3):
            e(f"  s_waitcnt vmcnt({plain[384 + n]})")
            vbody(n)
        e(f"  s_waitcnt vmcnt({plain[387]}) lgkmcnt(0)")
        e("  s_branch L_v1")
    else:
        e("  s_waitcnt lgkmcnt(3)")
        e("  s_branch L_v0")
    flush()
    e("L_kv:")
    vfirst()
    e("  s_branch L_kw")
    flush()
    e(".p2align 6")
    e("L_v:")
    for a in range(8):
        if a == 1:
            e("L_v1:")
            e(f"  ds_read_b32 {vr(A + 1)}, {vr(vLV + 1)}")
        if a == NT:
            e(f"  s_cmp_eq_u32 s{sK}, 15")
            e("  s_cbranch_scc1 L_vt")
        if a in (5, 7):
            e("  s_waitcnt lgkmcnt(0)")
        if a == 5:
            e(f"  ds_read_b32 {vr(vF)}, {vr(vZ)} offset:{FL + 20}")
        if a == 6:
            flagwait("an", FL + 20)
            e(f"  ds_read_b32 {vr(A)}, {vr(vLV)}")
        group("V", a, vbody, None, vout)
        if a == 1:
            vnext()
        if a == 3:
            e(f"  v_add_u32 {vr(M1)}, 1, {vr(M1)}")
            for j in range(3):
                e(f"  v_add_u32 {vr(vPA + j)}, 3072, {vr(vPA + j)}")
        if a in (3, 7):
            tr()
    e(f"  s_add_u32 s{sK}, s{sK}, 1")
    e(f"  s_mov_b64 s[{rA}:{rA + 1}], s[{rB}:{rB + 1}]")
    e("  s_branch L_v")
    flush()
    e("L_vt:")
    e("  s_waitcnt lgkmcnt(0)")
    for n in range(3 * NT, 24):
        e(f"  s_waitcnt vmcnt({plain[744 + n]})")
        vbody(n)
    tr()
    e("  s_nop 1")
    vout(True)
    e("  s_waitcnt lgkmcnt(0)")
    e("  s_barrier")
    if P.trace:
        e(f"  s_mul_i32 s8, s2, {5 * 256}")
        e("  s_add_u32 s8, s8, 0x100000")
        e(f"  v_lshl_add_u32 {vr(t0)}, v0, 2, s8")
        e(f"  global_store_dword {vr(t0)}, {vr(vtr)}, s[{sWS}:{sWS + 1}]")
    e("  s_endpgm")

    HP = [4, 6, 24, 8, 10, 36, 38, 72]
    ms = [m for m in range(P.r0, P.r1 + 1) if m < P.rf or m > P.rt or (m - P.r0) % P.rp == 0]
    gain = [(P.kp0 if m <= P.kn else P.kp) if m in ms else 0 for m in range(32)]
    if P.rk:
        gain = [int(c, 16) for c in P.rk]
        assert len(gain) == 32 and not any(gain[:P.r0]) and not gain[31]
    msk = sum(1 << m for m in range(32) if gain[m])

    def hp(k):
        if P.hprof:
            e(f"  s_memrealtime s[{HP[k]}:{HP[k] + 1}]")

    def progwait(name, slp, off=FL):
        e(f"L_{name}:")
        e(f"  ds_read_b128 {vr(pr, 4)}, {vr(vZ)} offset:{off}")
        e("  s_waitcnt lgkmcnt(0)")
        e(f"  v_min_u32 {vr(pr)}, {vr(pr)}, {vr(pr + 1)}")
        e(f"  v_min3_u32 {vr(pr)}, {vr(pr)}, {vr(pr + 2)}, {vr(pr + 3)}")
        e("  s_nop 0")
        e(f"  v_readfirstlane_b32 s{sF}, {vr(pr)}")
        e(f"  s_cmp_ge_u32 s{sF}, s{sNEED}")
        e(f"  s_cbranch_scc1 L_{name}_ok")
        budget(f"L_{name}_ok")
        if slp:
            e(f"  s_sleep {slp}")
        e(f"  s_branch L_{name}")
        e(f"L_{name}_ok:")

    def rowred(op, v):
        for n in (8, 4, 2, 1):
            e("  s_nop 1")
            e(f"  {op}_dpp {vr(v)}, {vr(v)}, {vr(v)} row_ror:{n} row_mask:0xf bank_mask:0xf")

    def allred(op, v, t):
        rowred(op, v)
        for sw in ("v_permlane16_swap_b32", "v_permlane32_swap_b32"):
            e(f"  v_mov_b32 {vr(t)}, {vr(v)}")
            e("  s_nop 1")
            e(f"  {sw} {vr(v)}, {vr(t)}")
            e(f"  {op} {vr(v)}, {vr(v)}, {vr(t)}")

    def sum_partials(nq):
        w = 4 * nq
        for k in range(4):
            for q in range(nq):
                e(f"  ds_read_b128 {vr(x + w * k + 4 * q, 4)}, {vr(h0)} offset:{768 * k + 16 * q}")
        e(f"  ds_read_b128 {vr(z4, 4)}, {vr(h1)} offset:{ST}")
        e("  s_waitcnt lgkmcnt(0)")
        for h in range(0, w, 2):
            e(f"  v_pk_add_f32 {vr(x + h, 2)}, {vr(x + h, 2)}, {vr(x + w + h, 2)}")
            e(f"  v_pk_add_f32 {vr(x + 2 * w + h, 2)}, {vr(x + 2 * w + h, 2)}, {vr(x + 3 * w + h, 2)}")
        for h in range(0, w, 2):
            e(f"  v_pk_add_f32 {vr(x + h, 2)}, {vr(x + h, 2)}, {vr(x + 2 * w + h, 2)}")
        for h in range(0, w, 2):
            e(f"  v_pk_add_f32 {vr(x + h, 2)}, {vr(x + h, 2)}, {vr(z4 + 2, 2)} op_sel_hi:[1,0] neg_lo:[0,1] neg_hi:[0,1]")

    def mark(tag):
        if P.sd:
            e("  s_memrealtime s[72:73]")
            e("  s_waitcnt lgkmcnt(0)")
            e("  s_sub_u32 s75, s72, s74")
            e("  s_mov_b32 s74, s72")
            e(f"  s_add_u32 s72, s{sNEED}, {64 - P.sd}")
            e("  s_and_b32 s73, s72, 1")
            e("  s_lshl_b32 s73, s73, 4")
            e("  s_min_u32 s75, s75, 510")
            e("  s_lshl_b32 s75, s75, s73")
            e("  s_lshr_b32 m0, s72, 1")
            e(f"  v_readlane_b32 s73, {vr(vCL)}, m0")
            e("  s_add_u32 s73, s73, s75")
            e(f"  v_writelane_b32 {vr(vCL)}, s73, m0")
        if not P.enc:
            return
        for k, m in enumerate(P.enc.split(",")[:2]):
            e(f"  s_cmp_eq_u32 s{sNEED}, {m}")
            e(f"  s_cbranch_scc0 L_mk{tag}{k}")
            e(f"  s_memrealtime s[{72 + 2 * k}:{73 + 2 * k}]")
            e(f"L_mk{tag}{k}:")

    def warm(tag):
        if not P.tw:
            return
        if P.tv == 2:
            ev = {5: (sQK, 1), 10: (sQK, 2), 16: (sQV, 2), 21: (sQV, 0), 26: (sQV, 1)}
            e(f"  s_lshr_b32 s{sT0}, s2, 3")
            e(f"  s_cmp_eq_u32 s{sT0}, s{sNEED}")
            e(f"  s_cbranch_scc0 L_tw{tag}")
            e(f"  s_and_b32 s{sT1}, s2, 7")
            e(f"  s_lshl_b32 s{sT1}, s{sT1}, 12")
            e(f"  v_lshl_add_u32 {vr(vFX)}, {vr(l)}, {27 - P.tl}, s{sT1}")
            e(f"  s_mov_b64 exec, {-1 if P.tl == 6 else (1 << (1 << P.tl)) - 1}")
            for t_, (sp, b_) in ev.items():
                if (t_ - P.tw > 16) == (tag == "p"):
                    e(f"  s_cmp_eq_u32 s{sNEED}, {t_ - P.tw}")
                    e(f"  s_cbranch_scc0 L_tx{t_}")
                    e(f"  v_add_u32 {vr(vFX)}, {b_ << 27:#x}, {vr(vFX)}")
                    e(f"  global_load_dword {vr(vFX)}, {vr(vFX)}, s[{sp}:{sp + 1}] nt")
                    e(f"L_tx{t_}:")
            e("  s_mov_b64 exec, -1")
            e("  s_waitcnt vmcnt(0)")
            e(f"L_tw{tag}:")
            return
        tm = sum(1 << int(v) for v in P.tm.split(","))
        if P.ts:
            e(f"  s_bfe_u32 s{sT0}, s2, {P.ts << 16 | 4:#x}")
            e(f"  s_add_u32 s{sX}, s{sNEED}, s{sT0}")
            e(f"  s_add_u32 s{sX}, s{sX}, {P.tw}")
        else:
            e(f"  s_add_u32 s{sX}, s{sNEED}, {P.tw}")
        e(f"  s_min_u32 s{sX}, s{sX}, 31")
        e(f"  s_and_b32 s{sT0}, s2, {8 | P.tk << 4:#x}")
        e(f"  s_cselect_b32 s{sT0}, 0, {tm:#x}")
        e(f"  s_bitcmp1_b32 s{sT0}, s{sX}")
        e(f"  s_cbranch_scc0 L_tw{tag}")
        e(f"  s_sub_u32 s{sT1}, s{sX}, 16")
        vstep_k(sF, sT1)
        e(f"  s_cmp_lt_u32 s{sX}, 16")
        e(f"  s_cselect_b32 s{sF}, s{sX}, s{sF}")
        e(f"  s_cselect_b32 s{rB}, s{sQK}, s{sQV}")
        e(f"  s_cselect_b32 s{rB + 1}, s{sQK + 1}, s{sQV + 1}")
        head_of(sF, sF, hU)
        e(f"  s_mul_i32 s{sF}, s{sF}, {UB}")
        e(f"  s_add_u32 s{sF}, s{sF}, {65536 * RUN[0]}")
        if P.tv:
            e(f"  v_mov_b32 {vr(vFX)}, s{sF}")
            e("  s_mov_b64 exec, 1")
            e(f"  global_load_dword {vr(vFX)}, {vr(vFX)}, s[{rB}:{rB + 1}] nt")
            e("  s_mov_b64 exec, -1")
            e("  s_waitcnt vmcnt(0)")
        else:
            e(f"  s_load_dword s{sF}, s[{rB}:{rB + 1}], s{sF} {P.tg}")
            e("  s_waitcnt lgkmcnt(0)")
        e(f"L_tw{tag}:")

    def rank_post(tag):
        if not P.ctl:
            return
        e(f"  s_bitcmp1_b32 s{sRF}, s{sNEED}")
        e(f"  s_cbranch_scc0 L_fa{tag}")
        e(f"  s_mul_i32 s{sT0}, s{sNEED}, 384")
        e(f"  s_add_u32 s{sT0}, s{sT0}, {W_RK}")
        e(f"  s_mov_b32 s{sB}, 1")
        e(f"  s_atomic_add s{sB}, s[{sWS}:{sWS + 1}], s{sT0} glc")
        e(f"L_fa{tag}:")

    def rank_take(tag):
        if not P.ctl:
            return
        e(f"  s_bitcmp1_b32 s{sRF}, s{sNEED}")
        e(f"  s_cbranch_scc0 L_fb{tag}")
        e("  s_waitcnt lgkmcnt(0)")
        e(f"  s_min_u32 s{sF}, s{sB}, 15")
        e(f"  s_lshl_b32 s{sF}, s{sF}, 1")
        e(f"  s_sub_u32 s{sF}, s{sF}, 15")
        gs = sorted(set(gain) - {0})
        e(f"  s_mov_b32 s{sT0}, {gs[0]}")
        for g_ in gs[1:]:
            e(f"  s_bitcmp1_b32 {sum(1 << m for m in range(32) if gain[m] == g_):#x}, s{sNEED}")
            e(f"  s_cselect_b32 s{sT0}, {g_}, s{sT0}")
        e(f"  s_mul_i32 s{sF}, s{sF}, s{sT0}")
        e(f"  s_add_u32 s{sF}, s{sF}, 8")
        e(f"  s_ashr_i32 s{sF}, s{sF}, 4")
        e(f"  v_mov_b32 {vr(vFX)}, s{sF}")
        e("  s_mov_b64 exec, 1")
        e(f"  global_store_dword {vr(vFB)}, {vr(vFX)}, s[{sWS}:{sWS + 1}]")
        e("  s_mov_b64 exec, -1")
        e(f"L_fb{tag}:")

    HPF = [10, 16, 18, 20, 22, 72, 74, 76, 82, 96]
    hpn = [0]

    def hpf():
        if P.tfine:
            e(f"  s_memrealtime s[{HPF[hpn[0]]}:{HPF[hpn[0]] + 1}]")
            hpn[0] += 1

    e("L_helper:")
    e(f"  s_setprio {P.hp0}")
    hv = []

    def qmask(on):
        if on:
            e("  s_mov_b32 exec_lo, 0xffffff")
            e("  s_mov_b32 exec_hi, 0xffffff")
        else:
            e("  s_mov_b64 exec, -1")

    if P.st:
        e("; start the address translation of the small arrays and of the workspace right away (the values are not used)")
        e("  s_waitcnt lgkmcnt(0)")
        if P.st == 1:
            e(f"  s_load_dwordx8 s[24:31], s[0:1], 80")
        for k, sp in enumerate((sQ, sKS, sVS)):
            e(f"  s_load_dword s{rA + k}, s[{sp}:{sp + 1}], 0")
        if P.st == 2:
            e(f"  s_mov_b32 s{rA + 3}, {W_RK - 4096}")
            e(f"  s_load_dword s{rA + 3}, s[{sWS}:{sWS + 1}], s{rA + 3}")
    e(f"  v_and_b32 {vr(vL16)}, 0x1f0, {vr(vT16)}")
    e(f"  global_load_dwordx4 {vr(pr, 4)}, {vr(vL16)}, s[{sZ}:{sZ + 1}] offset:{D_QCS - PC0}")
    e(f"  global_load_dwordx4 {vr(f0, 4)}, {vr(vL16)}, s[{sZ}:{sZ + 1}] offset:{D_F0 - PC0}")
    e(f"  v_and_b32 {vr(vSh)}, 32, v0")
    e(f"  v_lshrrev_b32 {vr(vSh)}, 1, {vr(vSh)}")
    e(f"  v_lshrrev_b32 {vr(h1)}, 1, {vr(vL16)}")
    e(f"  s_movk_i32 s{sT1}, 384")
    if not P.st:
        e("  s_waitcnt lgkmcnt(0)")
    hpf()
    for p in range(2):
        e(f"  v_lshrrev_b32 {vr(hq + p)}, {vr(vSh)}, s{sE + 10 + p}")
        e(f"  v_and_b32 {vr(h0)}, 0xff, {vr(hq + p)}")
        e(f"  v_mad_u32_u24 {vr(ra + p)}, {vr(h0)}, s{sT1}, {vr(h1)}")
    qmask(1)
    for p in range(2):
        e(f"  global_load_dwordx2 {vr(rec + 4 * p, 2)}, {vr(ra + p)}, s[{sQ}:{sQ + 1}]")
        e(f"  global_load_dwordx2 {vr(rec + 4 * p + 2, 2)}, {vr(ra + p)}, s[{sQ}:{sQ + 1}] offset:192")
        hv.extend([("q", p)] * 2)
    qmask(0)
    hpf()
    common(not P.st)
    e(f"  s_and_b32 s{sT0}, s{sE + 15}, 0x1c00")
    e(f"  s_and_b32 s{sE + 15}, s{sE + 15}, 0xff")
    e(f"  s_add_u32 s{sT0}, s{sT0}, L_hpos-L_pc")
    e(f"  v_add_u32 {vr(h0)}, s{sT0}, {vr(vT16)}")
    e(f"  global_load_dwordx4 {vr(st4, 4)}, {vr(h0)}, s[{sZ}:{sZ + 1}]")
    hv.append(("h", 0))
    e(f"  s_mov_b64 s[{sVO}:{sVO + 1}], s[{sE + 8}:{sE + 9}]")
    e(f"  v_mov_b32 {vr(l)}, v0")
    for i in range(4):
        e(f"  v_mov_b32 {vr(z4 + i)}, 0")
    for k in range(4):
        e(f"  ds_write_b128 {vr(vZ)}, {vr(z4, 4)} offset:{FL + 16 * k}")
    e(f"  s_mov_b32 s{sMASK}, 0xffff0000")
    e(f"  s_mov_b32 s{sSCALE}, {f32bits(math.log2(math.e) / math.sqrt(192.0)):#x}")
    e(f"  s_movk_i32 s{sC}, 784")
    e(f"  v_mad_u32_u24 {vr(wa)}, {vr(vSh)}, 48, {vr(vL16)}")
    e(f"  v_lshrrev_b32 {vr(vSq)}, 1, {vr(vSh)}")
    for p in range(8):
        e(f"  v_lshrrev_b32 {vr(ra + p)}, {vr(vSh)}, s{sE + p}")
    e("  s_waitcnt lgkmcnt(0)")
    hpf()
    if P.ctl:
        die_base(sF)
        e(f"  v_lshrrev_b32 {vr(h0)}, 1, {vr(l)}")
        e(f"  v_lshl_add_u32 {vr(vFX)}, {vr(h0)}, 8, s{sF}")
        e(f"  v_and_b32 {vr(h0)}, 1, {vr(l)}")
        e(f"  v_lshl_add_u32 {vr(vFX)}, {vr(h0)}, 4, {vr(vFX)}")
        e(f"  s_and_b32 s{sT1}, s{sSE}, 2")
        e(f"  s_lshl_b32 s{sT0}, s{sT1}, 9")
        e(f"  s_add_u32 s{sT0}, s{sT0}, s{sF}")
        e(f"  v_add_u32 {vr(vEL)}, s{sT0}, {vr(l)}")
        e(f"  s_lshl_b32 s{sT1}, s{sT1}, 1")
        e(f"  s_add_u32 s{sF}, s{sF}, s{sT1}")
        e(f"  s_add_u32 s{sF}, s{sF}, 2048")
        e(f"  v_mov_b32 {vr(vFB)}, s{sF}")
        e(f"  v_mul_u32_u24 {vr(vFA)}, 384, {vr(l)}")
        e(f"  v_add_u32 {vr(vFA)}, {W_RK}, {vr(vFA)}")
        e(f"  s_mov_b32 s{sRF}, 0")
        e("  s_mov_b64 exec, 0x3ffff")
        e(f"  global_store_dwordx4 {vr(vFX)}, {vr(z4, 4)}, s[{sWS}:{sWS + 1}]")
        e("  s_mov_b64 exec, -1")
    e(f"  s_waitcnt vmcnt({len(hv)})")
    for k in range(4):
        e(f"  v_lshlrev_b32 {vr(cs + k)}, 16, {vr(pr + k)}")
        e(f"  v_and_b32 {vr(cs + 4 + k)}, s{sMASK}, {vr(pr + k)}")

    def elect():
        if not P.ctl:
            return
        e(f"  s_cmp_eq_u32 s{sNEED}, {P.r0 - 1}")
        e("  s_cbranch_scc0 L_el")
        e(f"  s_bitcmp0_b32 s{sSE}, 0")
        e("  s_cbranch_scc0 L_el")
        e("  s_mov_b64 exec, 0xffff")
        e(f"  global_load_ubyte {vr(vFX)}, {vr(vEL)}, s[{sWS}:{sWS + 1}] sc1")
        e("  s_waitcnt vmcnt(0)")
        e(f"  v_cmp_ne_u32 s[{sZ}:{sZ + 1}], 0, {vr(vFX)}")
        e(f"  s_lshr_b32 s{sT0}, s{sZ}, s{sCU}")
        e(f"  s_bcnt1_i32_b32 s{sT0}, s{sT0}")
        pat = sum(1 << m for m in range(0, 32, P.rotl))
        e(f"  s_sub_u32 s{sT1}, s{sT0}, 1")
        e(f"  s_cmp_lt_u32 s{sT1}, {P.rotl}")
        e("  s_cbranch_scc0 L_el")
        e(f"  s_lshl_b32 s{sRF}, {pat:#x}, s{sT1}")
        e(f"  s_and_b32 s{sRF}, s{sRF}, {msk:#x}")
        e("L_el:")
        e("  s_mov_b64 exec, -1")

    def roleaddr(src):
        e(f"  v_bfe_u32 {vr(wb)}, {vr(src)}, 12, 2")
        e(f"  v_mul_u32_u24 {vr(h1)}, s{sC}, {vr(wb)}")
        e(f"  v_add_u32 {vr(h1)}, {QR}, {vr(h1)}")
        e(f"  v_add_u32 {vr(h0)}, {vr(h1)}, {vr(vL16)}")

    def rotate(p):
        L, Hh, LC, HS, HC, LS = x, x + 4, x + 8, x + 12, x + 16, x + 20
        roleaddr(hq + p)
        e(f"  v_mov_b32 {vr(h2)}, 0")
        qmask(1)
        if p == 0:
            hpf()
        e(f"  s_waitcnt vmcnt({hv[::-1].index(('q', p))})")
        if p == 0:
            hpf()
        for k in range(4):
            e(f"  v_lshlrev_b32 {vr(L + 2 * k)}, 16, {vr(rec + 4 * p + k)}")
            e(f"  v_and_b32 {vr(L + 2 * k + 1)}, s{sMASK}, {vr(rec + 4 * p + k)}")
        for d, q_, t_ in ((LC, L, cs), (HS, Hh, cs + 4), (HC, Hh, cs), (LS, L, cs + 4)):
            for h in (0, 2):
                e(f"  v_pk_mul_f32 {vr(d + h, 2)}, {vr(q_ + h, 2)}, {vr(t_ + h, 2)}")
        for i in range(4):
            e(f"  v_cvt_pk_bf16_f32 {vr(L + i)}, {vr(LC + i)}, {vr(HS + i)}")
            e(f"  v_cvt_pk_bf16_f32 {vr(Hh + i)}, {vr(HC + i)}, {vr(LS + i)}")
        for k in range(8):
            e(f"  v_lshlrev_b32 {vr(LC + k)}, 16, {vr(L + k)}")
            e(f"  v_and_b32 {vr(L + k)}, s{sMASK}, {vr(L + k)}")
        for h in (0, 2):
            e(f"  v_pk_add_f32 {vr(L + h, 2)}, {vr(LC + h, 2)}, {vr(L + h, 2)} neg_lo:[0,1] neg_hi:[0,1]")
            e(f"  v_pk_add_f32 {vr(Hh + h, 2)}, {vr(HS + h, 2)}, {vr(Hh + h, 2)}")
        for i in range(4):
            e(f"  v_cvt_pk_bf16_f32 {vr(Hh + i)}, {vr(L + i)}, {vr(Hh + i)}")
        for i in range(4):
            e(f"  v_lshlrev_b32 {vr(L + i)}, 16, {vr(Hh + i)}")
            e(f"  v_and_b32 {vr(Hh + i)}, s{sMASK}, {vr(Hh + i)}")
        for i in range(4):
            e(f"  v_max3_f32 {vr(h2)}, |{vr(L + i)}|, |{vr(Hh + i)}|, {vr(h2)}")
        qmask(0)
        rowred("v_max_f32", h2)
        e(f"  v_mov_b32 {vr(h3)}, {vr(h2)}")
        e("  s_nop 1")
        e(f"  v_permlane16_swap_b32 {vr(h2)}, {vr(h3)}")
        e(f"  v_max_f32 {vr(h2)}, {vr(h2)}, {vr(h3)}")
        e(f"  v_frexp_exp_i32_f32 {vr(h2)}, {vr(h2)}")
        e(f"  v_sub_u32 {vr(h3)}, 13, {vr(h2)}")
        e(f"  v_subrev_u32 {vr(h2)}, 13, {vr(h2)}")
        for i in range(8):
            e(f"  v_ldexp_f32 {vr(L + i)}, {vr(L + i)}, {vr(h3)}")
        e(f"  v_ldexp_f32 {vr(h2)}, s{sSCALE}, {vr(h2)}")
        qmask(1)
        e(f"  ds_write_b128 {vr(h0)}, {vr(L, 4)}")
        e(f"  ds_write_b128 {vr(h0)}, {vr(Hh, 4)} offset:384")
        e(f"  ds_write_b32 {vr(h1)}, {vr(h2)} offset:768")
        qmask(0)

    cu, su = x + 24, x + 28

    def angle(p):
        e(f"  v_and_b32 {vr(qn)}, 7, {vr(ra + p)}")
        e(f"  v_cvt_f32_u32 {vr(qn)}, {vr(qn)}")
        for h in (0, 2):
            e(f"  v_pk_mul_f32 {vr(su + h, 2)}, {vr(f0 + h, 2)}, {vr(qn, 2)} op_sel_hi:[1,0]")
        for i in range(4):
            e(f"  v_cos_f32 {vr(cu + i)}, {vr(su + i)}")
        for i in range(4):
            e(f"  v_sin_f32 {vr(su + i)}, {vr(su + i)}")

    def item(p):
        a_, b_, a2, b2 = x, x + 4, x + 8, x + 12
        roleaddr(ra + p)
        qmask(1)
        e(f"  ds_read_b128 {vr(a_, 4)}, {vr(h0)}")
        e(f"  ds_read_b128 {vr(b_, 4)}, {vr(h0)} offset:384")
        e(f"  ds_read_b32 {vr(qn + 2)}, {vr(h1)} offset:768")
        if p:
            angle(p)
        e(f"  v_mov_b32 {vr(qn + 3)}, {vr(wb)}")
        e(f"  v_mov_b32 {vr(h0)}, {2 * p + 2}")
        e("  s_waitcnt lgkmcnt(0)")
        for h in (0, 2):
            e(f"  v_pk_mul_f32 {vr(a2 + h, 2)}, {vr(a_ + h, 2)}, {vr(cu + h, 2)}")
            e(f"  v_pk_mul_f32 {vr(b2 + h, 2)}, {vr(b_ + h, 2)}, {vr(cu + h, 2)}")
        for h in (0, 2):
            e(f"  v_pk_fma_f32 {vr(a2 + h, 2)}, {vr(b_ + h, 2)}, {vr(su + h, 2)}, {vr(a2 + h, 2)}")
            e(f"  v_pk_fma_f32 {vr(b2 + h, 2)}, {vr(a_ + h, 2)}, {vr(su + h, 2)}, {vr(b2 + h, 2)} neg_lo:[1,0,0] neg_hi:[1,0,0]")
        for i in range(4):
            e(f"  v_cvt_pk_f16_f32 {vr(a_ + i)}, {vr(a2 + i)}, {vr(b2 + i)}")
            e(f"  v_cvt_pk_f16_f32 {vr(b_ + i)}, {vr(b2 + i)}, -{vr(a2 + i)}")
        e(f"  ds_write_b128 {vr(wa)}, {vr(a_, 4)} offset:{QB + 1536 * p}")
        e(f"  ds_write_b128 {vr(wa)}, {vr(b_, 4)} offset:{QB + 1536 * p + 384}")
        e(f"  ds_write_b64 {vr(vSq)}, {vr(qn + 2, 2)} offset:{QS + 16 * p}")
        e(f"  ds_write_b32 {vr(vZ)}, {vr(h0)} offset:{FL + 16}")
        qmask(0)

    def scales():
        e("; scales of the 16 units")
        for p in range(8):
            e(f"  v_and_b32 {vr(h0)}, 0x7ff, {vr(ra + p)}")
            e(f"  v_lshl_add_u32 {vr(h0)}, {vr(h0)}, 9, {vr(vL16)}")
            for i, sp in enumerate((sKS, sVS)):
                e(f"  s_mov_b32 m0, {SCB + SA * i + 1024 * p}")
                e("  s_nop 0")
                e(f"  global_load_lds_dwordx4 {vr(h0)}, s[{sp}:{sp + 1}] nt")
                hv.append(("s", p))

    if P.ss == 1:
        scales()
    angle(0)
    rotate(0)
    item(0)
    if P.ss == 2:
        scales()
    hpf()
    e("  s_waitcnt lgkmcnt(0)")
    e("  s_setprio 0")
    hpf()
    e("  s_barrier")
    hpf()
    if P.ss == 3:
        scales()
    rotate(1)
    for p in range(1, 8):
        item(p)
    if P.tw and P.tv < 2:
        for k in range(8):
            e(f"  v_writelane_b32 {vr(hU)}, s{sE + k}, {k}")
    e(f"  v_mov_b32 {vr(vSa)}, 0")
    e(f"  v_mov_b32 {vr(vSq)}, 0")
    e(f"  v_min_u32 {vr(u)}, 47, {vr(l)}")
    e(f"  v_lshlrev_b32 {vr(vL16)}, 4, {vr(u)}")
    for i in range(4):
        e(f"  v_mov_b32 {vr(sc + i)}, 0")
    e(f"  s_mov_b32 s{sNEED}, 1")
    e("  s_cmp_eq_u32 s2, 0")
    e("  s_cbranch_scc0 L_rc")
    e(f"  v_mov_b32 {vr(h0)}, {W_REC + 384 + 4}")
    e(f"  global_load_dword {vr(h1)}, {vr(h0)}, s[{sWS}:{sWS + 1}] sc1")
    if P.ctl:
        e(f"  s_mov_b64 exec, {msk:#x}")
        e(f"  global_store_dword {vr(vFA)}, {vr(vZ)}, s[{sWS}:{sWS + 1}] sc1")
    e("  s_mov_b64 exec, 1")
    e("  s_waitcnt vmcnt(0)")
    e(f"  v_and_b32 {vr(qn)}, 0x77777777, {vr(h1)}")
    e(f"  v_and_b32 {vr(h1)}, 0x88888888, {vr(h1)}")
    e(f"  v_add_u32 {vr(qn)}, 0x11111111, {vr(qn)}")
    e(f"  v_xor_b32 {vr(qn)}, {vr(qn)}, {vr(h1)}")
    e(f"  v_mov_b32 {vr(qn + 1)}, 1")
    e(f"  global_store_dwordx2 {vr(vZ)}, {vr(qn, 2)}, s[{sDBG}:{sDBG + 1}] sc1")
    e("  s_mov_b64 exec, -1")
    e("L_rc:")
    hpf()
    e("  s_waitcnt vmcnt(0)")
    hpf()
    if P.tfine:
        e("  s_waitcnt lgkmcnt(0)")
        e(f"  v_mov_b32 {vr(h0)}, 0")
        for k in range(hpn[0]):
            e(f"  v_writelane_b32 {vr(h0)}, s{HPF[k]}, {k}")
        e(f"  s_mul_i32 s{sT0}, s2, {5 * 256}")
        e(f"  s_add_u32 s{sT0}, s{sT0}, {0x100000 + 1024}")
        e(f"  v_lshl_add_u32 {vr(h1)}, v0, 2, s{sT0}")
        e(f"  global_store_dword {vr(h1)}, {vr(h0)}, s[{sWS}:{sWS + 1}]")
    for k in range(4):
        e(f"  v_and_b32 {vr(ro + 2 * k)}, 0xffff, {vr(st4 + k)}")
        e(f"  v_lshrrev_b32 {vr(ro + 2 * k + 1)}, 16, {vr(st4 + k)}")
    for k in range(2):
        e(f"  v_add_u32 {vr(ro + 6 + k)}, {SCB}, {vr(ro + 6 + k)}")
    if P.sd:
        e(f"  v_mov_b32 {vr(vCL)}, 0")
    e("L_hk:")
    for a in range(2):
        for k in range(2):
            e(f"  ds_read_u16_d16_hi {vr(sc + 2 * a + k)}, {vr(ro + 6 + k)} offset:{SA * a}")
    e(f"  ds_read_b64 {vr(z4 + 2, 2)}, {vr(vSq)} offset:{QS}")
    e(f"  v_add_u32 {vr(vSq)}, 8, {vr(vSq)}")
    progwait("hsw", P.psk)
    mark("s")
    rank_post("s")
    for k in range(6):
        e(f"  ds_read_b32 {vr(x + 4 + k)}, {vr(ro + k)} offset:{LGB}")
    e(f"  v_mul_f32 {vr(x + 2)}, {vr(z4 + 2)}, {vr(sc)}")
    e(f"  v_mul_f32 {vr(x + 3)}, {vr(z4 + 2)}, {vr(sc + 1)}")
    e("  s_waitcnt lgkmcnt(0)")
    e(f"  v_pk_add_f32 {vr(x, 2)}, {vr(x + 4, 2)}, {vr(x + 6, 2)}")
    e(f"  v_pk_add_f32 {vr(x, 2)}, {vr(x, 2)}, {vr(x + 8, 2)}")
    e(f"  v_mul_f32 {vr(x)}, {vr(x)}, {vr(x + 2)}")
    e(f"  v_mul_f32 {vr(x + 1)}, {vr(x + 1)}, {vr(x + 3)}")
    e(f"  v_max_f32 {vr(z4)}, {vr(x)}, {vr(x + 1)}")
    allred("v_max_f32", z4, h0)
    e(f"  v_sub_f32 {vr(x)}, {vr(x)}, {vr(z4)}")
    e(f"  v_sub_f32 {vr(x + 1)}, {vr(x + 1)}, {vr(z4)}")
    e(f"  v_exp_f32 {vr(x)}, {vr(x)}")
    e(f"  v_exp_f32 {vr(x + 1)}, {vr(x + 1)}")
    e("  s_nop 0")
    e(f"  v_add_f32 {vr(z4 + 1)}, {vr(x)}, {vr(x + 1)}")
    e(f"  v_mul_f32 {vr(x)}, {vr(x)}, {vr(sc + 2)}")
    e(f"  v_mul_f32 {vr(x + 1)}, {vr(x + 1)}, {vr(sc + 3)}")
    e(f"  v_add_f32 {vr(z4 + 2)}, {vr(x)}, {vr(x + 1)}")
    for k in range(6):
        e(f"  ds_write_b32 {vr(ro + k)}, {vr(x + (k & 1))} offset:{LGB}")
    e(f"  v_mul_f32 {vr(z4 + 2)}, {f32bits(7.5):#x}, {vr(z4 + 2)}")
    allred("v_add_f32", z4 + 1, h0)
    allred("v_add_f32", z4 + 2, h0)
    e(f"  v_mov_b32 {vr(h0)}, s{sNEED}")
    e(f"  ds_write_b128 {vr(vSa)}, {vr(z4, 4)} offset:{ST}")
    e(f"  ds_write_b32 {vr(vZ)}, {vr(h0)} offset:{FL + 20}")
    e(f"  v_add_u32 {vr(vSa)}, 16, {vr(vSa)}")
    for k in range(8):
        e(f"  v_add_u32 {vr(ro + k)}, {1536 if k < 6 else SL}, {vr(ro + k)}")
    rank_take("s")
    warm("s")
    elect()
    e("  s_waitcnt lgkmcnt(0)")
    e(f"  s_add_u32 s{sNEED}, s{sNEED}, 1")
    e(f"  s_cmp_le_u32 s{sNEED}, 16")
    e("  s_cbranch_scc1 L_hk")

    e(f"  v_and_b32 {vr(h0)}, 15, {vr(l)}")
    e(f"  v_lshlrev_b32 {vr(h0)}, 4, {vr(h0)}")
    e(f"  ds_read_b128 {vr(z4, 4)}, {vr(h0)} offset:{ST}")
    e(f"  v_lshrrev_b32 {vr(h1)}, 4, {vr(l)}")
    e(f"  v_mov_b32 {vr(h2)}, 0xff800000")
    for i in range(16):
        e(f"  v_mov_b32 {vr(AC + i)}, 0")
    e("  s_waitcnt lgkmcnt(0)")
    e(f"  v_cmp_eq_u32 vcc, {vr(h1)}, {vr(z4 + 3)}")
    e(f"  v_add_u32 {vr(h0)}, {PB}, {vr(vL16)}")
    e(f"  v_lshrrev_b32 {vr(u)}, 1, {vr(vL16)}")
    e(f"  v_cndmask_b32 {vr(vM)}, {vr(h2)}, {vr(z4)}, vcc")
    rowred("v_max_f32", vM)
    e(f"  v_sub_f32 {vr(vFc)}, {vr(z4)}, {vr(vM)}")
    e(f"  v_exp_f32 {vr(vFc)}, {vr(vFc)}")
    e(f"  s_mov_b32 s{sK}, 0")
    e(f"  v_cndmask_b32 {vr(vFc)}, 0, {vr(vFc)}, vcc")
    e(f"  v_mul_f32 {vr(vL)}, {vr(vFc)}, {vr(z4 + 1)}")
    rowred("v_add_f32", vL)
    e(f"  s_mul_i32 s{sT0}, s{sE + 15}, 384")
    e(f"  v_add_u32 {vr(u)}, s{sT0}, {vr(u)}")
    e("L_hp:")
    e(f"  s_lshr_b32 s{sT0}, s2, 4")
    e(f"  s_min_u32 s{sT0}, s{sT0}, 13")
    e(f"  s_cmp_eq_u32 s{sT0}, s{sK}")
    e("  s_cbranch_scc0 L_hc_ok")
    if P.ot == 1:
        e("; (the value is not used: address translation for the final store)")
        e(f"  s_load_dword s{sF}, s[{sOUT}:{sOUT + 1}], 0")
    if P.ot == 2:
        e("; (the value is not used: address translation for the final store)")
        e("  s_mov_b64 exec, 1")
        e(f"  global_load_dword {vr(vFX)}, {vr(vZ)}, s[{sOUT}:{sOUT + 1}]")
        e("  s_mov_b64 exec, -1")
        e("  s_waitcnt vmcnt(0)")
    e(f"  s_load_dwordx2 s[{sZ}:{sZ + 1}], s[{sDBG}:{sDBG + 1}], 0 glc")
    e("  s_waitcnt lgkmcnt(0)")
    e(f"  s_mov_b32 s{sTG}, s{sZ}")
    e(f"  s_cmp_eq_u32 s{sZ + 1}, 1")
    e("  s_cbranch_scc1 L_hc_ok")
    e("L_hc:")
    e(f"  global_load_dwordx2 {vr(pr, 2)}, {vr(vZ)}, s[{sDBG}:{sDBG + 1}] sc1")
    e("  s_waitcnt vmcnt(0)")
    e(f"  v_readfirstlane_b32 s{sTG}, {vr(pr)}")
    e(f"  v_readfirstlane_b32 s{sF}, {vr(pr + 1)}")
    e(f"  s_cmp_eq_u32 s{sF}, 1")
    e("  s_cbranch_scc1 L_hc_ok")
    budget("L_hc_ok")
    e("  s_sleep 64")
    e("  s_branch L_hc")
    e("L_hc_ok:")
    vstep_k(sH, sK)
    e(f"  s_lshl_b32 s{sT0}, s{sH}, 4")
    e(f"  v_mov_b32 {vr(h1)}, s{sT0}")
    for j in range(4):
        e(f"  v_readlane_b32 s{rA + j}, {vr(vFc)}, s{sH}")
        e(f"  s_add_u32 s{sH}, s{sH}, 16")
    e(f"  s_add_u32 s{sK}, s{sK}, 1")
    e(f"  s_add_u32 s{sNEED}, s{sK}, 16")
    progwait("hpw", P.psk)
    mark("p")
    hp(0)
    rank_post("p")
    sum_partials(1)
    for j in range(4):
        for i in range(4):
            e(f"  v_fmac_f32 {vr(AC + 4 * j + i)}, s{rA + j}, {vr(x + i)}")
    e(f"  v_add_u32 {vr(h0)}, 3072, {vr(h0)}")
    rank_take("p")
    warm("p")
    e(f"  s_cmp_lt_u32 s{sK}, 15")
    e("  s_cbranch_scc1 L_hp")

    if P.eprio:
        e(f"  s_setprio {P.eprio}")
    e(f"  s_lshr_b32 s{sH}, s{sVO + 1}, 28")
    e(f"  s_lshl_b32 s{sT0}, s{sH}, 4")
    e(f"  v_mov_b32 {vr(h1)}, s{sT0}")
    e(f"  s_add_u32 s{sH}, s{sH}, 48")
    e(f"  ds_read_b32 {vr(h1)}, {vr(h1)} offset:{ST + 8}")
    mx = x + 16
    for j in range(3):
        e(f"  v_max3_f32 {vr(mx + j)}, |{vr(AC + 4 * j)}|, |{vr(AC + 4 * j + 1)}|, |{vr(AC + 4 * j + 2)}|")
    for j in range(3):
        e(f"  v_max_f32_e64 {vr(mx + j)}, {vr(mx + j)}, |{vr(AC + 4 * j + 3)}|")
    for n in (8, 4, 2, 1):
        for j in range(3):
            e(f"  v_max_f32_dpp {vr(mx + j)}, {vr(mx + j)}, {vr(mx + j)} row_ror:{n} row_mask:0xf bank_mask:0xf")
    for sw in ("v_permlane16_swap_b32", "v_permlane32_swap_b32"):
        for j in range(3):
            e(f"  v_mov_b32 {vr(mx + 4 + j)}, {vr(mx + j)}")
        for j in range(3):
            e(f"  {sw} {vr(mx + j)}, {vr(mx + 4 + j)}")
        for j in range(3):
            e(f"  v_max_f32 {vr(mx + j)}, {vr(mx + j)}, {vr(mx + 4 + j)}")
    for j in range(3):
        e(f"  v_frexp_exp_i32_f32 {vr(mx + j)}, {vr(mx + j)}")
        e(f"  v_sub_u32 {vr(mx + 4 + j)}, 14, {vr(mx + j)}")
        e(f"  v_subrev_u32 {vr(mx + j)}, 14, {vr(mx + j)}")
        for i in range(4):
            e(f"  v_ldexp_f32 {vr(AC + 4 * j + i)}, {vr(AC + 4 * j + i)}, {vr(mx + 4 + j)}")
        for i in range(2):
            e(f"  v_cvt_pk_f16_f32 {vr(x + 2 * j + i)}, {vr(AC + 4 * j + 2 * i)}, {vr(AC + 4 * j + 2 * i + 1)}")
    for j in range(4):
        e(f"  v_readlane_b32 s{16 + j}, {vr(vM)}, {16 * j}")
        e(f"  v_readlane_b32 s{20 + j}, {vr(vL)}, {16 * j}")
    for j in range(3):
        e(f"  v_readlane_b32 s{rA + j}, {vr(mx + j)}, 0")
    e(f"  v_readlane_b32 s{rA + 3}, {vr(vFc)}, s{sH}")
    for k in range(6):
        e(f"  v_lshrrev_b32 {vr(h2)}, 1, {vr(x + k)}")
        e(f"  v_and_b32 {vr(h2)}, 0x10001, {vr(h2)}")
        e(f"  v_add_u32 {vr(x + k)}, {vr(x + k)}, {vr(h2)}")
    for j in range(3):
        e(f"  v_writelane_b32 {vr(x + 2 * j)}, s{16 + j}, 48")
        e(f"  v_writelane_b32 {vr(x + 2 * j)}, s{20 + j}, 49")
        e(f"  v_writelane_b32 {vr(x + 2 * j + 1)}, s{rA + j}, 49")
    e(f"  v_cmp_gt_u32 vcc, 48, {vr(l)}")
    e(f"  v_lshlrev_b32 {vr(h2)}, 2, {vr(l)}")
    e(f"  v_lshrrev_b32 {vr(h2)}, {vr(h2)}, s{sTG}")
    e(f"  v_mov_b32 {vr(h3)}, 0x10001")
    for i in range(2):
        e(f"  v_cndmask_b32 {vr(tg + 2 + i)}, 0, {vr(h3)}, vcc")
        e(f"  v_bfe_u32 {vr(tg + i)}, {vr(h2)}, {2 * i}, 2")
        e(f"  v_lshl_or_b32 {vr(tg + i)}, {vr(tg + i)}, 15, {vr(tg + i)}")
    e(f"  v_writelane_b32 {vr(tg + 3)}, -1, 48")
    e(f"  v_writelane_b32 {vr(tg + 3)}, s{sMASK}, 49")
    e(f"  v_writelane_b32 {vr(tg + 1)}, s{sTG}, 48")
    e(f"  v_writelane_b32 {vr(tg + 1)}, s{sTG}, 49")
    for i in range(2):
        e(f"  v_and_b32 {vr(tg + i)}, {vr(tg + i)}, {vr(tg + 2 + i)}")
    for k in range(6):
        e(f"  v_bfi_b32 {vr(x + k)}, {vr(tg + 2 + k % 2)}, {vr(tg + k % 2)}, {vr(x + k)}")
    e(f"  v_min_u32 {vr(h2)}, {63 if P.full else 55}, {vr(l)}")
    for j in range(3):
        e(f"  v_lshl_add_u32 {vr(ra + j)}, {vr(h2)}, 3, s{sE + 12 + j}")
    e(f"  s_mul_i32 s{sT0}, s{sE + 15}, {P.hpit}")
    e(f"  s_add_u32 s{sT0}, s{sT0}, {W_REC}")
    e(f"  v_lshl_add_u32 {vr(ra + 3)}, {vr(h2)}, 3, s{sT0}")
    e("  s_waitcnt lgkmcnt(0)")
    if P.mg:
        e("; the stores leave part-way into the last step, where they disturb the read stream least")
        e(f"  s_mov_b32 s{sNEED}, {31 + (P.mg > 12)}")
        progwait("hmw", P.psl, FL + 32)
    hp(1)
    if not P.full:
        e("  s_mov_b32 exec_hi, 0xffffff")
    for j in range(3):
        if "w" not in P.xp:
            e(f"  global_store_dwordx2 {vr(ra + j)}, {vr(x + 2 * j, 2)}, s[{sWS}:{sWS + 1}] sc1")
    e("  s_mov_b64 exec, -1")
    if "r" in P.xp:
        e("  s_branch L_skip")
    if P.ml:
        e(f"  s_mov_b32 s{sNEED}, {31 + (P.ml > 12)}")
        progwait("hlw", P.psl, FL + 48)
    else:
        e(f"  s_waitcnt vmcnt({P.aw})")
    hp(2)
    hp(3)
    e("L_hw:")
    hp(4)
    for j in range(3):
        e(f"  global_load_dwordx2 {vr(rec + 2 * j, 2)}, {vr(ra + 3)}, s[{sWS}:{sWS + 1}] offset:{P.pit * j} sc1")
    e("  s_waitcnt vmcnt(0)")
    hp(5)
    for k in range(6):
        e(f"  v_xor_b32 {vr(rec + k)}, {vr(rec + k)}, {vr(tg + k % 2)}")
    for i in range(2):
        e(f"  v_or3_b32 {vr(h2 + i)}, {vr(rec + i)}, {vr(rec + 2 + i)}, {vr(rec + 4 + i)}")
    e(f"  v_and_b32 {vr(h2)}, {vr(h2)}, {vr(tg + 2)}")
    e(f"  v_and_or_b32 {vr(h2)}, {vr(h3)}, {vr(tg + 3)}, {vr(h2)}")
    e(f"  v_cmp_ne_u32 s[{sZ}:{sZ + 1}], 0, {vr(h2)}")
    for j in range(3):
        e(f"  v_readlane_b32 s{16 + j}, {vr(rec + 2 * j)}, 48")
        e(f"  v_readlane_b32 s{20 + j}, {vr(rec + 2 * j)}, 49")
        e(f"  v_readlane_b32 s{rA + j}, {vr(rec + 2 * j + 1)}, 49")
    e(f"  s_cmp_eq_u64 s[{sZ}:{sZ + 1}], 0")
    e("  s_cbranch_scc1 L_hy")
    budget("L_hy")
    e("  s_branch L_hw")
    e("L_hy:")
    gj = x + 8
    e(f"  v_mov_b32 {vr(h2)}, s19")
    for j in range(3):
        e(f"  v_max_f32 {vr(h2)}, s{16 + j}, {vr(h2)}")
    for j in range(4):
        e(f"  v_sub_f32 {vr(gj + j)}, s{16 + j}, {vr(h2)}")
    for j in range(4):
        e(f"  v_exp_f32 {vr(gj + j)}, {vr(gj + j)}")
    for j in range(3):
        e(f"  s_sext_i32_i16 s{rA + j}, s{rA + j}")
    e(f"  v_mul_f32 {vr(wa)}, s23, {vr(gj + 3)}")
    for j in range(3):
        e(f"  v_fmac_f32 {vr(wa)}, s{20 + j}, {vr(gj + j)}")
    for i in range(4):
        e(f"  v_mul_f32 {vr(fo + i)}, {vr(AC + 12 + i)}, {vr(gj + 3)}")
    e(f"  v_rcp_f32 {vr(wa)}, {vr(wa)}")
    for j in range(3):
        e(f"  v_ldexp_f32 {vr(gj + j)}, {vr(gj + j)}, s{rA + j}")
    for j in range(3):
        for i in range(4):
            e(f"  v_fma_mix_f32 {vr(fo + i)}, {vr(rec + 2 * j + i // 2)}, {vr(gj + j)}, {vr(fo + i)} op_sel:[{i & 1},0,0] op_sel_hi:[1,0,0]")
    e(f"  v_mul_f32 {vr(h2)}, s{rA + 3}, {vr(gj + 3)}")
    e(f"  v_mul_f32 {vr(h2)}, {vr(h2)}, {vr(wa)}")
    e(f"  v_mul_f32 {vr(h3)}, {vr(h2)}, {vr(h1)}")
    for i in range(4):
        e(f"  v_fma_f32 {vr(fo + i)}, {vr(fo + i)}, {vr(wa)}, -{vr(h3)}")
    if "r" in P.xp:
        e("L_skip:")
    hp(6)
    e("  s_barrier")
    hp(7)
    for k in range(4):
        e(f"  ds_read_b128 {vr(x + 4 * k, 4)}, {vr(h0)} offset:{768 * k}")
    e("  s_waitcnt lgkmcnt(2)")
    for h in (0, 2):
        e(f"  v_pk_add_f32 {vr(x + h, 2)}, {vr(x + h, 2)}, {vr(x + 4 + h, 2)}")
    e("  s_waitcnt lgkmcnt(0)")
    for h in (0, 2):
        e(f"  v_pk_add_f32 {vr(x + 8 + h, 2)}, {vr(x + 8 + h, 2)}, {vr(x + 12 + h, 2)}")
    for h in (0, 2):
        e(f"  v_pk_add_f32 {vr(x + h, 2)}, {vr(x + h, 2)}, {vr(x + 8 + h, 2)}")
    for i in range(4):
        e(f"  v_fmac_f32 {vr(fo + i)}, {vr(h2)}, {vr(x + i)}")
    e(f"  v_cvt_pk_bf16_f32 {vr(fo)}, {vr(fo)}, {vr(fo + 1)}")
    e(f"  v_cvt_pk_bf16_f32 {vr(fo + 1)}, {vr(fo + 2)}, {vr(fo + 3)}")
    e("  s_mov_b32 exec_hi, 0xffff")
    e(f"  global_store_dwordx2 {vr(u)}, {vr(fo, 2)}, s[{sOUT}:{sOUT + 1}] {P.of}")
    if P.sd:
        e(f"  s_mov_b32 s{sNEED}, 32")
        e("  s_mov_b64 exec, -1")
        mark("z")
        e(f"  s_cmp_eq_u32 s{sJ}, 0")
        e("  s_cbranch_scc0 L_sd")
        e(f"  v_lshlrev_b32 {vr(h0)}, 2, {vr(l)}")
        e("  s_mov_b32 exec_lo, 0")
        e("  s_mov_b32 exec_hi, 0x3fff")
        e(f"  global_atomic_add {vr(h0)}, {vr(vCL)}, s[{sDBG}:{sDBG + 1}] offset:-120 sc1")
        e("L_sd:")
    if P.enc:
        m0, m1, base, amp, wg = [int(v) for v in P.enc.split(",")]
        if m1 == 33:
            e("  s_memrealtime s[72:73]")
            e("  s_waitcnt vmcnt(0)")
            e("  s_memrealtime s[74:75]")
            e("  s_sleep 100")
        if m1 == 32:
            e("  s_memrealtime s[74:75]")
        if m0 == 0:
            e(f"  s_mov_b32 s72, s{sST}")
        e("  s_waitcnt lgkmcnt(0)")
        if P.em:
            e(f"  s_not_b32 s73, s{sST}")
            if m1 != 33:
                e(f"  s_mov_b32 s72, s{sST}")
            e(f"  s_atomic_umax s74, s[{sDBG}:{sDBG + 1}], 40")
            e(f"  s_atomic_umax s73, s[{sDBG}:{sDBG + 1}], 44")
            e(f"  s_atomic_umax s72, s[{sDBG}:{sDBG + 1}], 48")
        else:
            e("  s_sub_u32 s72, s74, s72")
            e(f"  s_atomic_add s72, s[{sDBG}:{sDBG + 1}], 32")
        e(f"  s_cmp_eq_u32 s2, {wg}")
        e("  s_cbranch_scc0 L_nohold")
        e("L_hold0:")
        e(f"  s_memrealtime s[{sST + 2}:{sST + 3}]")
        e("  s_waitcnt lgkmcnt(0)")
        e(f"  s_sub_u32 s{sT0}, s{sST + 2}, s{sST}")
        e(f"  s_cmp_lt_u32 s{sT0}, 12500")
        e("  s_cbranch_scc1 L_hold0")
        e("  s_mov_b32 s72, 0")
        if P.em:
            e("  s_mov_b32 s73, 0")
            e(f"  s_atomic_add s72, s[{sDBG}:{sDBG + 1}], {48 if P.em == 3 else 40} glc")
            e(f"  s_atomic_add s73, s[{sDBG}:{sDBG + 1}], {48 if P.em == 2 else 44} glc")
            e("  s_waitcnt lgkmcnt(0)")
            if P.em != 2:
                e("  s_not_b32 s73, s73")
            e("  s_sub_u32 s72, s72, s73")
            e("  s_lshl_b32 s72, s72, 8")
        else:
            e(f"  s_atomic_add s72, s[{sDBG}:{sDBG + 1}], 32 glc")
            e("  s_waitcnt lgkmcnt(0)")
        e(f"  s_sub_u32 s72, s72, {base * 256}")
        e("  s_max_i32 s72, s72, 0")
        e("  s_min_i32 s72, s72, 128000")
        e(f"  s_mul_i32 s72, s72, {amp}")
        e("  s_lshr_b32 s72, s72, 8")
        e("  s_add_u32 s72, s72, 13000")
        e("L_hold:")
        e(f"  s_memrealtime s[{sST + 2}:{sST + 3}]")
        e("  s_waitcnt lgkmcnt(0)")
        e(f"  s_sub_u32 s{sT0}, s{sST + 2}, s{sST}")
        e(f"  s_cmp_lt_u32 s{sT0}, s72")
        e("  s_cbranch_scc1 L_hold")
        e("L_nohold:")
        e("  s_waitcnt lgkmcnt(0)")
    if P.pe:
        e("; diagnostic build only: pointers to d_debug, some of their bits into the run time")
        off, sh_, bits = [int(v) for v in P.pe.split(",")]
        e("  s_cmp_eq_u32 s2, 0")
        e("  s_cbranch_scc0 L_nope")
        e("  s_load_dwordx16 s[4:19], s[0:1], 0")
        e("  s_waitcnt lgkmcnt(0)")
        e("  s_mov_b64 exec, 1")
        for k, r_ in enumerate((4, 6, 7, 8, 12, 13, 14, 30, 31)):
            e(f"  v_mov_b32 v5, s{r_}")
            e(f"  global_store_dword {vr(vZ)}, v5, s[{sDBG}:{sDBG + 1}] offset:{16 + 4 * k}")
        if off < 0:
            e("  s_sub_u32 s72, s6, s12")
        else:
            e(f"  s_mov_b32 s72, s{off}")
        e(f"  s_bfe_u32 s72, s72, {bits << 16 | sh_:#x}")
        e("  s_mul_i32 s72, s72, 300")
        e("  s_add_u32 s72, s72, 13000")
        e("L_pe:")
        e(f"  s_memrealtime s[{sST + 2}:{sST + 3}]")
        e("  s_waitcnt lgkmcnt(0)")
        e(f"  s_sub_u32 s{sT0}, s{sST + 2}, s{sST}")
        e(f"  s_cmp_lt_u32 s{sT0}, s72")
        e("  s_cbranch_scc1 L_pe")
        e("L_nope:")
    if P.tail:
        e("; diagnostic build only")
        e("  s_memrealtime s[72:73]")
        e("L_tail:")
        e("  s_memrealtime s[74:75]")
        e("  s_waitcnt lgkmcnt(0)")
        e("  s_sub_u32 s74, s74, s72")
        e(f"  s_cmp_lt_u32 s74, {P.tail}")
        e("  s_cbranch_scc1 L_tail")
    if P.hold:
        e("; diagnostic build only")
        e("L_hold:")
        e(f"  s_memrealtime s[{sST + 2}:{sST + 3}]")
        e("  s_waitcnt lgkmcnt(0)")
        e(f"  s_sub_u32 s{sT0}, s{sST + 2}, s{sST}")
        e(f"  s_cmp_lt_u32 s{sT0}, {P.hold}")
        e("  s_cbranch_scc1 L_hold")
    if P.stamp:
        e(f"  s_memrealtime s[{sST + 2}:{sST + 3}]")
        if P.hprof:
            e("  s_waitcnt lgkmcnt(0)")
            e("  s_lshl_b32 s44, s2, 5")
            e("  s_add_u32 s44, s44, 0x80000")
            e("  v_mov_b32 v1, s44")
            for k in range(8):
                e(f"  s_sub_u32 s45, s{sST + 2}, s{HP[k]}")
                e(f"  v_mov_b32 v{4 + k}, s45")
            e(f"  global_store_dwordx4 v1, v[4:7], s[{sWS}:{sWS + 1}]")
            e(f"  global_store_dwordx4 v1, v[8:11], s[{sWS}:{sWS + 1}] offset:16")
            e("  s_nop 2")
        e("  s_getreg_b32 s6, hwreg(HW_REG_XCC_ID)")
        e("  s_getreg_b32 s7, hwreg(HW_REG_HW_ID)")
        e("  s_waitcnt lgkmcnt(0)")
        e(f"  v_mov_b32 v4, s{sST}")
        e(f"  v_mov_b32 v5, s{sST + 2}")
        e("  v_mov_b32 v6, s6")
        e("  v_mov_b32 v7, s7")
        e("  s_lshl_b32 s8, s2, 4")
        e("  v_mov_b32 v1, s8")
        e(f"  global_store_dwordx4 v1, v[4:7], s[{sWS}:{sWS + 1}]")
    e("L_end:")
    e("  s_endpgm")
    e(".p2align 6")
    e(".type L_order,@object")
    e("L_order:")
    for k in range(0, len(ordtab), 8):
        e("  .long " + ", ".join(f"{v:#x}" for v in ordtab[k:k + 8]))
    e(".type L_hpos,@object")
    e("L_hpos:")
    for b in range(6):
        at = {chunk_of(b & 1, n, s_, b >> 1): lpos(n, s_) for n in range(24) for s_ in range(16)}
        rows = sorted({c // 3 for c in at})
        for l_ in range(64):
            r0, r1 = rows[l_], rows[l_ + 64]
            e("  .long " + ", ".join(f"{a_ | b_ << 16:#x}" for a_, b_ in [(at[3 * r0 + k], at[3 * r1 + k]) for k in range(3)] + [(2 * r0, 2 * r1)]))
    e('.section .rodata,"a"')
    e(".p2align 6")
    e(f".amdhsa_kernel {NAME}_kernel")
    e(f"  .amdhsa_next_free_vgpr {NV}")
    e("  .amdhsa_next_free_sgpr 100")
    e(f"  .amdhsa_accum_offset {(NV + 3) // 4 * 4}")
    e("  .amdhsa_group_segment_fixed_size 0")
    e("  .amdhsa_kernarg_size 112")
    e("  .amdhsa_user_sgpr_count 2")
    e("  .amdhsa_user_sgpr_kernarg_segment_ptr 1")
    e("  .amdhsa_system_sgpr_workgroup_id_x 1")
    e(".end_amdhsa_kernel")
    return "\n".join(o) + "\n", NV


if __name__ == "__main__":
    ap = argparse.ArgumentParser()
    ap.add_argument("-o", default=f"/code/{NAME}.s")
    for name, d in (("sh", 4), ("deep", 5), ("pd", 9), ("pre", 12), ("nf", 5), ("su", 3), ("hp0", 3), ("tst", 24),
                    ("ctl", 1), ("hi", 2), ("hiv", 7), ("lo", -28), ("thr", 2), ("tp", 2), ("start", 5), ("s0", 0), ("ba", 3),
                    ("r0", 2), ("r1", 30), ("rf", 3), ("rp", 2), ("rt", 26), ("rotl", 7), ("kp", 7), ("kp0", 6), ("kn", 20),
                    ("tw", 3), ("tv", 2), ("ts", 1), ("st", 2), ("ot", 0), ("pit", 512), ("hpit", 1536), ("full", 1), ("ss", 3), ("tk", 0), ("tl", 4), ("top", 18), ("tpd", 4), ("tpv", 4), ("tpn", 1), ("lag", 2), ("mg", 8), ("ml", 0), ("aw", 0), ("sd", 0), ("em", 0), ("tail", 0),
                    ("eprio", 2), ("psl", 1), ("psk", 1), ("spr", 1), ("bound", 4000000), ("hold", 0), ("dly", 0), ("dlb", 2)):
        ap.add_argument("--" + name, type=int, default=d)
    ap.add_argument("--kp_", default="6,6,6,7,8,9,9,10,10,11,11,12,12", help="K loads issued by each prologue point")
    ap.add_argument("--of", default="")
    ap.add_argument("--enc", default="", help="diagnostic only: m0,m1,base,amp,wg")
    ap.add_argument("--ok", default="REXbLbLbL", help="events of a K group")
    ap.add_argument("--ov", default="REXbLbLbL", help="events of a V group")
    ap.add_argument("--rk", default="", help="die gain per step (hex digits, 0 = no ranking)")
    ap.add_argument("--sb", default="", help="step:bias,... added to the lateness")
    ap.add_argument("--pf", default="sc1")
    ap.add_argument("--tpp", default="012", help="positions with a third level")
    ap.add_argument("--pe", default="", help="diagnostic only")
    ap.add_argument("--tm", default="5,10,11,16,21,26")
    ap.add_argument("--tg", default="")
    ap.add_argument("--bu", default="012", help="extra depth per position in the issued group")
    ap.add_argument("--th", default="-9,5,13")
    ap.add_argument("--sch", default="ut_c2.txt")
    ap.add_argument("--xp", default="", help="timing experiments only")
    for name in ("stamp", "trace", "tfine", "hprof"):
        ap.add_argument("--" + name, action="store_true", help="diagnostics only")
    a = ap.parse_args()
    txt, nv = gen(a)
    open(a.o, "w").write(txt)
    print("wrote", a.o, "vgprs", nv)
```

```python
import argparse
import math
import os
import struct
from gen import HEADER, NAME, Alloc, f32bits, vr

UB = 256 * 768

ABOUT = """
Generated by tools/gen11.py.
Work split: a unit is a block of 256 KV rows of one head.  Workgroups g and g ^ 8 share 16 units of four heads (table
  L_order) and alternate over the 32 KiB runs of a unit, 128 rows each; the order of the runs is rotated per pair.
  Waves 1-4 stream one 4 KiB block per round; a 16-lane row handles one third (64 dims) of a KV row per load.
  K sweep: logit = k_scale * sum_d (qk - 7.5) * (qa * cos + qb * sin), RoPE moved onto the rotated q;
  V sweep: partial = sum_rows p * v_scale * qv.
  Wave 0 (helper) rotates q, takes max / exp / sums over the workgroup's rows of each unit, and merges partials.
Constant parameters (the same for every seed) are built in: both zero points (7.5), q_cos / q_sin (table L_qcs) and
  k_cos / k_sin = cos / sin(row * inv_freq).  The angle is split into the part of the row inside its unit (f16 table in
  LDS, evaluated once from L_inv) and the part of the unit (L_f0), by which (qa, qb) is turned in fp32.
Hand-off: every workgroup finishes one of its heads and streams a unit of that head last.  Partials and (max, sum) of
  the other three go to d_ws with sc1 stores; every 8 bytes carry a piece of a tag that differs from the one found there
  on entry (sent round through d_debug).  The finisher reads until all tags fit and rescales to the true row maximum.
Flow control (speed only, results do not depend on it): waves publish a group counter and sample the counters of
  units on the same die; late waves keep one more load in flight, early waves one or two fewer.  Helpers rank the dies.
"""

RUN = (1, 2, 0)


def chunk_of(b, n, s, d):
    g = 256 * ((RUN[n >> 3] + d) % 3) + 128 * b + 16 * (n & 7) + s
    return {128: 512, 255: 639, 512: 128, 639: 255}.get(g, g)


def tidx(b, row):
    return row - 43 * b - 42 * ((row >= 85) + (row >= 171))


def rev(x, bits):
    return int(format(x, f"0{bits}b")[::-1], 2)


def lpos(n, s):
    return 4 * (16 * s + rev(n, 4)) if n < 16 else 1024 + 4 * (8 * s + rev(n - 16, 3))


TN = [(RUN[n >> 3] + (n & 7)) % 3 for n in range(24)]
SPECIAL = {n: i for i, n in enumerate((0, 7, 8, 15, 16, 23))}
for b_ in range(2):
    for d_ in range(3):
        ch = sorted(chunk_of(b_, n, s, d_) for n in range(24) for s in range(16))
        assert ch == sorted(3 * r + k for r in {c // 3 for c in ch} for k in range(3))
        assert all(chunk_of(b_, n, s, d_) % 3 == (TN[n] + d_ + 2 * b_ + s) % 3 for n in range(24) for s in range(16))
        assert len({tidx(b_, c // 3) for c in ch}) == 128 and max(tidx(b_, c // 3) for c in ch) == 128


def gen(P):
    o = []
    e = o.append
    RING, PD = 24, P.pd
    sh, deep = P.sh, P.deep
    PRE = P.pre
    TP = P.tp
    LAG = P.lag
    assert deep <= PD - 1 and sh <= deep and PD <= PRE
    SL = 512
    SA = 16 * SL

    FL = 0
    QS = 128
    ST = 256
    TB = 512
    QB = TB + 129 * 384
    LGB = QB + 16 * 768 + 1536
    SCB = LGB + 16 * 1536
    PB = SCB + 2 * SA
    QR = PB + 49152
    LDS = QR + 4 * 784
    assert 81920 < LDS <= 163840
    W_REC = 0x600000
    W_RK = 0x780000
    W_PL = 0x7c0000

    sQ, sQK, sKS, sKZ, sQV, sVS, sVZ, sQC = 4, 6, 8, 10, 12, 14, 16, 18
    sQS, sKC, sKSN, sOUT = 20, 22, 24, 26
    sDBG, sWS = 28, 30
    rA, rB = 32, 36
    sW, sJ, sC, sK, sT0, sT1, sF, sNEED = 40, 41, 42, 43, 44, 45, 46, 47
    sMSK = 48
    sOF = 51
    sE = 48
    sR0 = 60
    sCO = 61
    sZ = 64
    sMASK, sSCALE, sH = 66, 67, 68
    sS = 69
    sX = 70
    sRF = 80
    sST = 84
    sB = 91
    sVO = 92
    sSP = 94
    sI = 95
    sSE, sCU = 81, 79
    sLO = 78
    sTG = 99

    va = Alloc(1)
    vT16, vF, vZ, vC16 = [va.take(1) for _ in range(4)]
    voff = va.take(9)
    vTA = va.take(15)
    vQA = va.take(3)
    vPA = va.take(3)
    vLG = va.take(2)
    vLB = va.take(2)
    vLV = va.take(2)
    A = va.take(2)
    LG = va.take(2)
    M1, M2, M3 = [va.take(1) for _ in range(3)]
    bc = va.take(2, 2)
    dacc = va.take(2, 2)
    wt = va.take(4, 2)
    vtr, vPW, vPS, vN, vSum, vSu2, vBA = [va.take(1) for _ in range(7)]
    vPL = va.take(4)
    vU = va.take(1)
    vBI = va.take(2, 2)
    smp = va.take(4 * LAG, 4)
    qa = va.take(12, 4)
    tab = va.take(24, 4)
    tmp = va.take(12, 4)
    ring = va.take(4 * RING, 4)
    NV = va.n
    acc = qa

    here = os.path.dirname(os.path.abspath(__file__))
    sch = [[int(x) for x in ln.split()] for ln in open(os.path.join(here, P.sch))]
    pair = lambda g: ((g & 7) << 3) + (g >> 4 & 7) + (g >> 7 << 6)
    assert all(sch[g][32:] == [pair(g) % 3] * 3 for g in range(256))
    assert all(((16 * p_ + 13) * 21846 & 0xffff) * 3 >> 16 == (p_ + 1) % 3 for p_ in range(128))
    sch = [x[:32] for x in sch]
    inv, qcs = [[int(x, 16) for x in ln.split()] for ln in open(os.path.join(here, "consts.txt"))]
    rev_ = [struct.unpack("<f", struct.pack("<I", v))[0] / (2 * math.pi) for v in inv]
    assert sorted(2 * u_ + (g >> 3 & 1) for g in range(256) for u_ in sch[g][:16]) == list(range(4096))
    assert sorted(x[31] >> 3 for x in sch) == list(range(256))
    fill = [0] * 256
    ordtab = []
    for g in range(256):
        ku, own = sch[g][:16], sch[g][31] >> 3
        od = [ku.index(u_) for u_ in sch[g][16:]]
        assert sorted(od) == list(range(16)) and od[0] < 14
        assert ku[0] == (16 * (((g & 7) << 3) + (g >> 4 & 7) + (g >> 7 << 6)) + 14) * 21846 >> 16
        need = list(dict.fromkeys(u_ >> 3 for u_ in ku))
        heads = [h for h in need if h != own] + [own]
        assert len(heads) == 4
        u16 = [u_ | heads.index(u_ >> 3) << 12 for u_ in ku]
        nib = sum(k << (4 * t) for t, k in enumerate(od))
        hq = [h | heads.index(h) << 12 for h in need]
        dst = []
        for h in heads[:3]:
            dst.append(W_REC + P.hpit * h + P.pit * fill[h])
            fill[h] += 1
        ordtab += [u16[2 * i] | u16[2 * i + 1] << 16 for i in range(8)]
        ordtab += [nib & 0xffffffff, nib >> 32, hq[0] | hq[1] << 16, hq[2] | hq[3] << 16] + dst + [own | (2 * (pair(g) % 3) + (g >> 3 & 1)) << 10]
    assert fill == [3] * 256

    def ld(n):
        rr = rA if n < 24 else rB
        n %= 24
        so = f"s{sOF + (n & 7)}" if n & 7 else "0"
        vo = voff + (3 + SPECIAL[n] if n in SPECIAL else n >> 3)
        e(f"  buffer_load_dwordx4 {vr(ring + 4 * n, 4)}, {vr(vo)}, s[{rr}:{rr + 3}], {so} offen nt")

    ORD = {"K": P.ok, "V": P.ov}
    DIST = {"K": PRE, "V": PD}
    bu = [int(x) for x in P.bu]
    th = [int(x) for x in P.th.split(",")]
    assert PD % 3 == 0 and PRE % 3 == 0 and deep == sh + 1

    def memops(ph, a):
        r = []
        for i, c in enumerate(ORD[ph]):
            if c == "X" and P.ctl:
                r += [(i, "B")] * (a == P.ba) + [(i, "S"), (i, "Q")]
            if c == "L":
                r.append((i, "L"))
        return r

    def back(ph, a, i):
        r = [c for j, c in memops(ph, a) if j < i][::-1]
        for k in range(1, 8):
            r += [c for _, c in memops(ph, (a - k) % 8)][::-1]
        return r

    def cnt(ph, a, i, depth):
        depth += bu[ORD[ph][:i].count("L")]
        r = back(ph, a, i)
        return [k + 1 for k, c in enumerate(r) if c == "L"][depth - 2] if depth > 1 else 0

    def swait(ph, a):
        assert ORD[ph].index("E") < ORD[ph].index("X")
        r = back(ph, a, ORD[ph].index("E"))
        return [k for k, c in enumerate(r) if c == "Q"][LAG - 1]

    plain = {}

    def verify():
        ops = [("L", i) for i in range(PRE)]
        done = ORD["K"][:ORD["K"].index("L")].count("b")
        for g in range(256):
            ph, a = "KV"[g >= 128], g % 8
            if 3 * g + PD >= 768 or 128 <= g < 128 + (PRE - PD) // 3:
                for n in range(3 * g, 3 * g + 4 - (g == 255)):
                    plain[n] = len(ops) - 1 - ops.index(("L", n))
                done = max(done, len(ops) - plain[min(3 * g + 3, 767)])
                continue
            nb = nl = 3 * g
            for i, c in enumerate(ORD[ph]):
                if c == "E" and P.ctl:
                    done = max(done, len(ops) - swait(ph, a))
                if c == "X" and P.ctl:
                    ops += [("X", 0)] * (1 + (a == P.ba))
                if c == "b":
                    assert ("L", nb) in ops[:done], nb
                    nb += 1
                if c == "L":
                    done = max(done, len(ops) - cnt(ph, a, i, deep + P.tpn * (P.top < 99 and str(nl % 3) in P.tpp) if P.ctl else sh))
                    ops.append(("L", nl + DIST[ph]))
                    nl += 1
    verify()
    lab = [0]
    rare = []

    def flush():
        o.extend(rare)
        rare.clear()

    def issue(ph, a, i):
        j = ORD[ph][:i].count("L")
        lab[0] += 1
        if P.ctl and j == TP:
            e(f"  s_cmp_lt_i32 s{sS}, {P.lo}")
            e(f"  s_cbranch_scc1 L_t{lab[0]}")
            rare.extend([f"L_t{lab[0]}:", f"  s_waitcnt vmcnt({cnt(ph, a, i, P.thr + 1)})", f"  s_branch L_p{lab[0]}"])
        if P.ctl:
            t = (P.hi if ph == "K" else P.hiv) + th[j]
            tp_ = P.top + P.tpd * j + (0 if ph == "K" else P.tpv)
            assert P.lo <= t < tp_
            top = P.top < 99 and str(j) in P.tpp
            w = lambda d: f"  s_waitcnt vmcnt({cnt(ph, a, i, d)})"
            back = f"  s_branch L_p{lab[0]}"
            if t < 0:
                if top:
                    e(f"  s_sub_u32 s{sT0}, s{sS}, {t + 1}")
                    e(f"  s_cmp_lt_u32 s{sT0}, {tp_ - t}")
                    rare.extend([f"L_q{lab[0]}:", w(deep + P.tpn), f"  s_cmp_gt_i32 s{sS}, 0", f"  s_cbranch_scc1 L_p{lab[0]}", w(sh), back])
                else:
                    e(f"  s_cmp_gt_i32 s{sS}, {t}")
                    rare.extend([f"L_q{lab[0]}:", w(sh), back])
                e(f"  s_cbranch_scc0 L_q{lab[0]}")
                e(w(deep))
                e(f"L_p{lab[0]}:")
            elif top:
                e(f"  s_cmp_gt_i32 s{sS}, {t}")
                e(f"  s_cbranch_scc1 L_q{lab[0]}")
                rare.extend([f"L_q{lab[0]}:", w(deep + P.tpn), f"  s_cmp_gt_i32 s{sS}, {tp_}", f"  s_cbranch_scc1 L_p{lab[0]}", w(deep), back])
                e(w(sh))
                e(f"L_p{lab[0]}:")
            else:
                e(f"  s_cmp_gt_i32 s{sS}, {t}")
                e(f"  s_cbranch_scc1 L_p{lab[0]}")
                e(w(sh))
                e(f"L_p{lab[0]}:")
                e(w(deep))
        else:
            e(f"  s_waitcnt vmcnt({cnt(ph, a, i, sh)})")
        ld(3 * a + j + DIST[ph])
        if ph == "V" and 3 * a + j + 1 == P.mg:
            e(f"  ds_write_b32 {vr(vPW)}, {vr(M1)} offset:{FL + 32}")
        if ph == "V" and 3 * a + j + 1 == P.ml:
            e(f"  ds_write_b32 {vr(vPW)}, {vr(M1)} offset:{FL + 48}")

    def evaluate(ph, a):
        if not P.ctl:
            return
        sm = smp + 4 * (a % LAG)
        e(f"  s_waitcnt vmcnt({swait(ph, a)})")
        if a == (P.ba + LAG) % 8:
            e(f"  v_add_u32 {vr(vBI)}, {vr(vBI)}, {vr(vBI + 1)}")
        e(f"  s_add_u32 s{sT0}, s{sLO}, 0x03030303")
        e(f"  v_msad_u8 {vr(vSum)}, s{sLO}, {vr(sm)}, 0")
        e(f"  v_msad_u8 {vr(vSu2)}, s{sT0}, {vr(sm)}, 0")
        if a == (P.ba + LAG) % 8:
            e(f"  v_readfirstlane_b32 s{sB}, {vr(vBI)}")
        for k in range(1, 3):
            e(f"  v_msad_u8 {vr(vSum)}, s{sLO}, {vr(sm + k)}, {vr(vSum)}")
            e(f"  v_msad_u8 {vr(vSu2)}, s{sT0}, {vr(sm + k)}, {vr(vSu2)}")
        e(f"  v_sub_u32 {vr(vSum)}, {vr(vSum)}, {vr(vSu2)}")
        e(f"  s_add_u32 s{sLO}, s{sLO}, 0x01010101")
        e(f"  v_readlane_b32 s{sMASK}, {vr(vSum)}, 0")
        e(f"  v_readlane_b32 s{sSCALE}, {vr(vSum)}, 1")

    def decide(ph, a):
        if not P.ctl:
            return
        if a == (P.ba + LAG) % 8:
            for it in filter(None, P.sb.split(",")):
                st_, b_ = [int(v) for v in it.split(":")]
                if (st_ >= 16) == (ph == "V"):
                    e(f"  s_cmp_eq_u32 s{sK}, {st_ % 16}")
                    e(f"  s_cselect_b32 s{sT0}, {b_}, 0")
                    e(f"  s_add_u32 s{sB}, s{sB}, s{sT0}")
        cur, old = (sI, sCO) if a & 1 else (sCO, sI)
        e(f"  s_add_u32 s{cur}, s{sMASK}, s{sSCALE}")
        e(f"  s_add_u32 s{sS}, s{cur}, s{old}")
        e(f"  s_ashr_i32 s{sS}, s{sS}, 1")
        e(f"  s_add_u32 s{sS}, s{sS}, s{sB}")
        if ph == "K" and a < P.start:
            e(f"  s_cmp_eq_u32 s{sK}, 0")
            e(f"  s_cselect_b32 s{sS}, {P.s0}, s{sS}")

    def exchange(a):
        if not P.ctl:
            return
        e("  s_mov_b64 exec, 1")
        if a == P.ba:
            e(f"  global_load_dwordx2 {vr(vBI, 2)}, {vr(vBA)}, s[{sWS}:{sWS + 1}] {P.pf}")
        e(f"  global_store_byte {vr(vPS)}, {vr(vN)}, s[{sWS}:{sWS + 1}]")
        e("  s_mov_b64 exec, 3")
        e(f"  global_load_dwordx3 {vr(smp + 4 * (a % LAG), 3)}, {vr(vPL + a % 4)}, s[{sWS}:{sWS + 1}] {P.pf}")
        e(f"  v_add_u32 {vr(vN)}, 1, {vr(vN)}")
        e("  s_mov_b64 exec, -1")

    def srd_head(rr, sp, sh_):
        e(f"  s_mul_i32 s{sT0}, s{sh_}, {UB}")
        e(f"  s_add_u32 s{rr}, s{sp}, s{sT0}")
        e(f"  s_addc_u32 s{rr + 1}, s{sp + 1}, 0")

    def vstep_k(dst, src):
        e(f"  s_lshl_b32 s{dst}, s{src}, 2")
        e(f"  s_lshr_b64 s[{sZ}:{sZ + 1}], s[{sVO}:{sVO + 1}], s{dst}")
        e(f"  s_and_b32 s{dst}, s{sZ}, 15")

    def head_of(dst, slot, vU=vU):
        e(f"  s_lshr_b32 s{sT0}, s{slot}, 1")
        e(f"  v_readlane_b32 s{sZ}, {vr(vU)}, s{sT0}")
        e(f"  s_lshl_b32 s{sT0}, s{slot}, 4")
        e(f"  s_lshr_b32 s{sZ}, s{sZ}, s{sT0}")
        e(f"  s_and_b32 s{dst}, s{sZ}, 0x7ff")

    def budget(ok):
        e(f"  s_cmp_eq_u32 s{sSP}, 0")
        e(f"  s_cbranch_scc1 {ok}")
        e(f"  s_sub_u32 s{sSP}, s{sSP}, 1")

    def flagwait(name, off):
        e(f"L_{name}:")
        e("  s_waitcnt lgkmcnt(0)")
        e(f"  v_readfirstlane_b32 s{sF}, {vr(vF)}")
        e(f"  s_cmp_ge_u32 s{sF}, s{sNEED}")
        e(f"  s_cbranch_scc0 L_{name}_no")
        e(f"L_{name}_ok:")
        rare.extend([f"L_{name}_no:", f"  s_cmp_eq_u32 s{sSP}, 0", f"  s_cbranch_scc1 L_{name}_ok", f"  s_sub_u32 s{sSP}, s{sSP}, 1",
                     f"  ds_read_b32 {vr(vF)}, {vr(vZ)} offset:{off}", f"  s_branch L_{name}"])

    def tr():
        if P.trace:
            e(f"  {'s_memtime' if 'm' in P.xp else 's_memrealtime'} s[88:89]")
            e("  s_waitcnt lgkmcnt(0)")
            e(f"  v_writelane_b32 {vr(vtr)}, s88, m0")
            e("  s_add_u32 m0, m0, 1")
            e("  s_min_u32 m0, m0, 63")

    def die_base(dst):
        e(f"  s_getreg_b32 s{sSE}, hwreg(HW_REG_HW_ID, 8, 7)")
        e(f"  s_getreg_b32 s{dst}, hwreg(HW_REG_XCC_ID, 0, 3)")
        e(f"  s_and_b32 s{sCU}, s{sSE}, 15")
        e(f"  s_lshr_b32 s{sSE}, s{sSE}, 5")
        e(f"  s_mul_i32 s{dst}, s{dst}, 4352")
        e(f"  s_add_u32 s{dst}, s{dst}, {W_PL}")

    ha = Alloc(16)
    l, u, h0, h1, h2, h3 = [ha.take(1) for _ in range(6)]
    wa, wb, vSh, vFc, vM, vL = [ha.take(1) for _ in range(6)]
    ro = ha.take(8)
    vL16, vFA, vFX, vFB, vEL, vCL, vSa, vSq = [ha.take(1) for _ in range(8)]
    hq = ha.take(2)
    hU = ha.take(1)
    z4 = ha.take(4, 4)
    cs = ha.take(8, 4)
    f0 = ha.take(4, 4)
    sc = ha.take(4, 4)
    qn = ha.take(4, 4)
    x = ha.take(32, 4)
    pr = ha.take(4, 4)
    fo = ha.take(4, 4)
    rec = ha.take(8, 4)
    AC = ha.take(16, 4)
    st4 = ha.take(4, 4)
    tg = ha.take(4, 4)
    ra = ha.take(8)
    assert ha.n <= NV and vZ < 16

    invX, invY, tK, tA, tN, tO = tmp, tmp + 4, tmp + 8, tab, tab + 4, tab + 8
    PC0 = 20 + 8 * P.stamp + 16 * (P.dly > 0)
    D_INV, D_QCS, D_F0, D_END = 256, 768, 1152, 1536
    NF = P.nf - (P.stamp and P.st == 2 and P.nf == 5)
    assert RUN[0] == 1 and NF <= 8
    e(HEADER.rstrip("\n"))
    e(f"; @launch grid=(256,1,1) block=(320,1,1) lds={LDS}")
    for ln in ABOUT.strip("\n").split("\n"):
        e("; " + ln)
    e('.amdgcn_target "amdgcn-amd-amdhsa--gfx950"')
    e(".text")
    e(f".globl {NAME}_kernel")
    e(".p2align 8")
    e(f".type {NAME}_kernel,@function")
    e(f"{NAME}_kernel:")
    e("  s_cmpk_ge_u32 s2, 0x100")
    e("  s_cbranch_scc1 L_end")
    if P.dly:
        e("; diagnostic build only: half of the dies start late")
        e(f"  s_getreg_b32 s4, hwreg(HW_REG_XCC_ID, {P.dlb}, 1)")
        e("  s_cmp_eq_u32 s4, 0")
        e("  s_cbranch_scc1 L_dly")
        e(f"  s_sleep {P.dly}")
        e("L_dly:")
    if P.stamp:
        e(f"  s_memrealtime s[{sST}:{sST + 1}]")
    e("  s_load_dwordx16 s[4:19], s[0:1], 0")
    e(f"  s_getpc_b64 s[{sZ}:{sZ + 1}]")
    e("L_pc:")
    e("  v_cmp_gt_u32 vcc, 64, v0")
    e(f"  v_lshlrev_b32 {vr(vT16)}, 4, v0")
    e(f"  s_lshr_b32 s{sK}, s2, 4")
    e(f"  s_lshl_b32 s{sF}, s2, 6")
    e(f"  s_add_u32 s{sF}, s{sF}, L_order-L_pc")
    e(f"  s_and_b32 s{sH}, s2, 7")
    e("  s_cbranch_vccz L_s0")
    e(f"  s_load_dwordx16 s[{sE}:{sE + 15}], s[{sZ}:{sZ + 1}], s{sF}")
    if P.st == 2:
        e(f"  s_load_dwordx8 s[24:31], s[0:1], 80")
    e(f"  v_lshl_add_u32 {vr(h0)}, s{sK}, 6, v0")
    e(f"  v_mul_u32_u24 {vr(h0)}, {P.tst}, {vr(h0)}")
    e(f"  global_load_dword {vr(h3)}, {vr(h0)}, s[{sZ}:{sZ + 1}] offset:{D_QCS - PC0}")
    e("  s_branch L_helper")
    e("L_s0:")
    e(f"  v_and_b32 {vr(vC16)}, 0xf0, {vr(vT16)}")
    e(f"  global_load_dwordx4 {vr(invX, 4)}, {vr(vC16)}, s[{sZ}:{sZ + 1}] offset:{D_INV - PC0}")
    e(f"  global_load_dwordx4 {vr(invY, 4)}, {vr(vC16)}, s[{sZ}:{sZ + 1}] offset:{D_INV + 256 - PC0}")
    e(f"  s_and_b32 s{sT1}, s{sK}, 8")
    e(f"  s_add_u32 s{sH}, s{sH}, s{sT1}")
    e(f"  s_and_b32 s{sT1}, s{sK}, 7")
    e(f"  s_lshl3_add_u32 s{sH}, s{sH}, s{sT1}")
    e(f"  s_lshl4_add_u32 s{sH}, s{sH}, 14")
    e(f"  s_mulk_i32 s{sH}, 21846")
    e(f"  s_lshr_b32 s{sC}, s{sH}, 16")
    e(f"  s_addk_i32 s{sH}, -21846")
    e(f"  s_lshl_b32 s{sH}, s{sH}, 16")
    e(f"  s_mul_hi_u32 s{sR0}, s{sH}, 3")
    e(f"  s_mul_i32 s{sT0}, s{sC}, {UB}")
    e(f"  s_and_b32 s{sT1}, s2, 8")
    e(f"  s_lshl4_add_u32 s{sT1}, s{sR0}, s{sT1}")
    e(f"  s_lshl_b32 s{sT1}, s{sT1}, 12")
    e(f"  s_add_u32 s{sT0}, s{sT0}, s{sT1}")
    e(f"  s_addk_i32 s{sT0}, {4096 - 1024}")
    e(f"  v_add_u32 {vr(tA)}, s{sT0}, {vr(vT16)}")
    for k in range(1, (NF + 1) // 2):
        e(f"  v_add_u32 {vr(tA + k)}, {8192 * k}, {vr(tA)}")
    e("  s_waitcnt lgkmcnt(0)")
    for n in range(NF):
        e(f"  global_load_dwordx4 {vr(ring + 4 * n, 4)}, {vr(tA + n // 2)}, s[{sQK}:{sQK + 1}] offset:{4096 * (n % 2) - 4096} nt")
    e("  s_branch L_s1")
    e("L_b0:")
    e(f".if (L_b0 - {NAME}_kernel > {D_INV}) || (L_pc - {NAME}_kernel != {PC0})")
    e('.error "entry block layout"')
    e(".endif")
    e(".p2align 8")
    e(".type L_inv,@object")
    e("L_inv:")
    tb = [f32bits(v) for v in rev_[:64] + rev_[64:] + rev_[64:]]
    for k in range(0, 128, 8):
        e("  .long " + ", ".join(f"{v:#x}" for v in tb[k:k + 8]))
    e(".type L_qcs,@object")
    e("L_qcs:")
    for k in range(0, 96, 8):
        e("  .long " + ", ".join(f"{v:#x}" for v in qcs[k:k + 8]))
    e(".type L_f0,@object")
    e("L_f0:")
    for k in range(0, 96, 8):
        e("  .long " + ", ".join(f"{f32bits(256 * v - round(256 * v)):#x}" for v in rev_[k:k + 8]))

    def common(ld_=True):
        if ld_:
            e(f"  s_load_dwordx8 s[24:31], s[0:1], 80")
        e(f"  v_mov_b32 {vr(vZ)}, 0")
        e(f"  s_mov_b32 s{sSP}, {P.bound}")
        e(f"  s_bfe_u32 s{sJ}, s2, 0x10003")

    PFR = [4, 10, 14, 62, 72, 74, 76, 82, 86, 96, 98]
    pfn = [0]

    def pf():
        if P.tfine:
            e(f"  {'s_memtime' if 'm' in P.xp else 's_memrealtime'} s[{PFR[pfn[0]]}:{PFR[pfn[0]] + 1}]")
            pfn[0] += 1

    e("L_s1:")
    w_, s_, vAD, vC8, t0, t1 = wt, wt + 1, wt + 2, wt + 3, dacc, dacc + 1
    vRF, pos = vT16, tK + 3
    if P.trace:
        e(f"  v_mov_b32 {vr(vtr)}, 0")
        e("  s_mov_b32 m0, 0")
    pf()
    e("  v_subrev_u32 v0, 64, v0")
    e(f"  s_setprio {P.spr}")
    e(f"  s_load_dwordx8 s[16:23], s[{sZ}:{sZ + 1}], s{sF}")
    e(f"  s_add_u32 s{sF}, s{sF}, 32")
    e(f"  s_load_dwordx2 s[{sVO}:{sVO + 1}], s[{sZ}:{sZ + 1}], s{sF}")
    e(f"  s_movk_i32 s{sNEED}, 768")
    common()
    e(f"  v_lshrrev_b32 {vr(w_)}, 6, v0")
    e(f"  v_lshrrev_b32 {vr(s_)}, 4, v0")
    e(f"  v_and_b32 {vr(vC8)}, 0x70, {vr(vC16)}")
    e(f"  v_readfirstlane_b32 s{sW}, {vr(w_)}")
    e(f"  v_add_u32 {vr(vAD)}, {vr(vC8)}, {vr(s_)}")
    e(f"  s_mul_i32 s{sT0}, s{sJ}, 44")
    e(f"  s_sub_u32 s{sT0}, 86, s{sT0}")
    e(f"  v_cmp_eq_u32 vcc, s{sT0}, {vr(vAD)}")
    e(f"  v_mov_b32 {vr(t0)}, 0x80")
    e(f"  s_mov_b32 s{rA + 2}, {UB}")
    e(f"  v_cndmask_b32 {vr(vAD)}, {vr(vAD)}, {vr(t0)}, vcc")
    e(f"  v_mul_u32_u24 {vr(t0)}, 381, {vr(vAD)}")
    e(f"  s_mul_i32 s{sT0}, s{sJ}, 43")
    e(f"  v_add_u32 {vr(t0)}, 2, {vr(t0)}")
    e(f"  v_lshrrev_b32 {vr(t0)}, 14, {vr(t0)}")
    assert all((381 * i + 2) >> 14 == (i >= 43) + (i >= 86) for i in range(129))
    e(f"  v_mad_u32_u24 {vr(t0)}, {vr(t0)}, 42, {vr(vAD)}")
    e(f"  v_add_u32 {vr(t0)}, s{sT0}, {vr(t0)}")
    e(f"  v_cvt_f32_u32 {vr(vRF)}, {vr(t0)}")
    e(f"  v_mul_u32_u24 {vr(vAD)}, 384, {vr(vAD)}")
    e(f"  s_mov_b32 s{rA + 3}, 0x20000")
    srd_head(rA, sQK, sC)
    e(f"  s_lshl_b32 s{sT0}, s{sJ}, 15")
    sRK = [sR0, 8, 9]
    e(f"  v_lshl_add_u32 {vr(t0)}, v0, 4, s{sT0}")
    for k in range(3):
        if k:
            e(f"  s_add_u32 s{sRK[k]}, s{sRK[k - 1]}, 1")
            e(f"  s_cmp_eq_u32 s{sRK[k]}, 3")
            e(f"  s_cselect_b32 s{sRK[k]}, 0, s{sRK[k]}")
        e(f"  v_lshl_add_u32 {vr(voff + k)}, s{sRK[k]}, 16, {vr(t0)}")
    for i in range(1, 8):
        e(f"  s_movk_i32 s{sOF + i}, {4096 * i}")
    nk = [NF]
    nfix = [0]
    assert PRE <= RING and max(int(v) for v in P.kp_.split(",")[:P.su + 1]) <= 7

    def k_loads(hi):
        while nk[0] < min(hi, PRE):
            ld(nk[0])
            nk[0] += 1

    def toff_(n):
        run = RUN[n >> 3]
        return 384 * (16 * (((n & 7) + run) // 3) + 38 * run)

    def tmin(n):
        return toff_((n & ~7) + (n & 7) % 3)

    def setup():
        e("; per chunk class k: q operand, table and partial addresses")
        sD = sRK[2]
        e(f"  s_lshl1_add_u32 s{sF}, s{sJ}, s{sW}")
        e(f"  s_add_u32 s{sF}, s{sF}, s{sD}")
        e(f"  s_lshl_b32 s{sF}, s{sF}, 1")
        e(f"  s_lshr_b32 s{sF}, 0x24924, s{sF}")
        e(f"  v_bfe_u32 {vr(t1)}, v0, 4, 2")
        e(f"  v_lshl_add_u32 {vr(t1)}, {vr(t1)}, 2, {vr(vC16)}")
        e(f"  v_mad_u32_u24 {vr(vF)}, {vr(w_)}, s{sNEED}, {vr(t1)}")
        e(f"  v_add_u32 {vr(vF)}, {PB - 3072}, {vr(vF)}")
        e(f"  s_mul_i32 s{sT1}, s{sJ}, {43 * 384}")
        e(f"  s_sub_u32 s{sT1}, {TB}, s{sT1}")
        e(f"  s_mul_i32 s{sT0}, s{sD}, {38 * 384}")
        e(f"  s_add_u32 s{sT1}, s{sT1}, s{sT0}")
        e(f"  s_lshl3_add_u32 s{sT0}, s{sJ}, s{sD}")
        e(f"  v_lshl_add_u32 {vr(vSum)}, s{sT0}, 4, {vr(s_)}")
        for k in range(3):
            e(f"  s_bfe_u32 s{sT0}, s{sF}, {(2 << 16) | 2 * k:#x}")
            e(f"  v_lshl_add_u32 {vr(vPA + k)}, s{sT0}, 8, {vr(vF)}")
            if k:
                e(f"  v_add_u32 {vr(vSum)}, 16, {vr(vSum)}")
            e(f"  v_mul_u32_u24 {vr(t0)}, 171, {vr(vSum)}")
            e(f"  v_lshrrev_b32 {vr(t0)}, 9, {vr(t0)}")
            e(f"  v_mad_i32_i24 {vr(t1)}, {vr(t0)}, -3, {vr(vSum)}")
            e(f"  v_lshl_add_u32 {vr(t1)}, {vr(t1)}, 8, {vr(vC16)}")
            e(f"  v_add_u32 {vr(vQA + k)}, {QB}, {vr(t1)}")
            e(f"  v_subrev_u32 {vr(vSu2)}, 384, {vr(t1)}")
            e(f"  v_min_u32 {vr(t1)}, {vr(t1)}, {vr(vSu2)}")
            e(f"  v_mul_u32_u24 {vr(t0)}, 384, {vr(t0)}")
            e(f"  v_add3_u32 {vr(vTA + 6 + k)}, {vr(t0)}, {vr(t1)}, s{sT1}")
        assert all(171 * x_ >> 9 == x_ // 3 for x_ in range(208)) and RUN[2] == 0
        for g_ in range(2):
            e(f"  s_cmp_lt_u32 s{sRK[g_]}, {RUN[g_]}")
            e(f"  s_cselect_b32 s{sT1}, {-130 * 384}, 0")
            for n in range(8 * g_, 8 * g_ + 3):
                e(f"  s_add_u32 s{sT0}, s{sT1}, {tmin(n)}")
                e(f"  v_add_u32 {vr(vTA + 3 * g_ + TN[n])}, s{sT0}, {vr(vTA + 6 + TN[n])}")
        dB, dT = A, LG
        e(f"  s_lshl1_add_u32 s{sT0}, s{sJ}, -1")
        e(f"  s_mul_i32 s{sT0}, s{sT0}, 98304")
        e(f"  v_mov_b32 {vr(t0)}, s{sT0}")
        for i, sx in enumerate((0, 15)):
            e(f"  s_mul_i32 s{sT1}, s{sJ}, {130 * 384}")
            e(f"  s_sub_u32 s{sT1}, s{sT1}, {(44, 86)[i] * 384}")
            e(f"  v_cmp_eq_u32 vcc, {sx}, {vr(s_)}")
            e(f"  v_mov_b32 {vr(t1)}, s{sT1}")
            e(f"  s_lshl_b32 s{sH}, s{sJ}, 1")
            e(f"  v_cndmask_b32 {vr(dB + i)}, 0, {vr(t0)}, vcc")
            e(f"  v_cndmask_b32 {vr(dT + i)}, 0, {vr(t1)}, vcc")
        e(f"  s_sub_u32 s{sH}, 2, s{sH}")
        for n, i in SPECIAL.items():
            if i % 2 == 0:
                e(f"  s_cmp_eq_u32 s{sRK[n >> 3]}, s{sH}")
                e(f"  s_cselect_b32 s{sT0}, 1, 0")
            e(f"  v_mad_i32_i24 {vr(voff + 3 + i)}, {vr(dB + i % 2)}, s{sT0}, {vr(voff + (n >> 3))}")
            if toff_(n) != tmin(n):
                e(f"  v_add_u32 {vr(t1)}, {toff_(n) - tmin(n)}, {vr(vTA + 3 * (n >> 3) + TN[n])}")
                e(f"  v_mad_i32_i24 {vr(vTA + 9 + i)}, {vr(dT + i % 2)}, s{sT0}, {vr(t1)}")
            else:
                e(f"  v_mad_i32_i24 {vr(vTA + 9 + i)}, {vr(dT + i % 2)}, s{sT0}, {vr(vTA + 3 * (n >> 3) + TN[n])}")
        e(f"  s_lshl2_add_u32 s{sT0}, s{sW}, s{sR0}")
        e(f"  s_cmp_eq_u32 s{sT0}, s{sH}")
        e("  s_cbranch_scc0 L_fx")
        e("  s_mov_b64 exec, 0xffff")
        ld(0)
        e("  s_mov_b64 exec, -1")
        e("L_fx:")
        nfix[0] = nk[0]
        e(f"  v_lshlrev_b32 {vr(vLB)}, 2, v0")
        e(f"  v_add_u32 {vr(vLB)}, {LGB}, {vr(vLB)}")
        e(f"  v_lshrrev_b32 {vr(t1)}, 1, v0")
        e(f"  v_lshlrev_b32 {vr(t1)}, 2, {vr(t1)}")
        e(f"  v_add_u32 {vr(vLB + 1)}, {LGB + 1024}, {vr(t1)}")
        e(f"  v_subrev_u32 {vr(vLG)}, 1536, {vr(vLB)}")
        e(f"  v_subrev_u32 {vr(vLG + 1)}, 1536, {vr(vLB + 1)}")
        e(f"  v_lshlrev_b32 {vr(vPW)}, 2, {vr(w_)}")
        e(f"  s_mov_b32 s{sMSK}, 0xcccccccc")
        e(f"  s_mov_b32 s{sMSK + 1}, s{sMSK}")
        e(f"  s_mov_b32 s{sMSK + 2}, 0xaaaaaaaa")
        e(f"  s_mov_b32 s{sMSK + 3}, s{sMSK + 2}")
        e(f"  s_mov_b32 s{rB + 2}, {UB}")
        e(f"  s_mov_b32 s{rB + 3}, 0x20000")
        e(f"  s_mov_b32 s{sK}, 0")
        if P.ctl:
            e("; progress slots: this wave writes one byte of line (half, w) and samples the lines of the other half")
            die_base(sF)
            e(f"  s_add_u32 s{sT0}, s{sF}, 2048")
            e(f"  v_mov_b32 {vr(vBA)}, s{sT0}")
            e(f"  s_and_b32 s{sT1}, s{sSE}, 2")
            e(f"  s_lshl_b32 s{sT1}, s{sT1}, 9")
            e(f"  s_lshl_b32 s{sT0}, s{sW}, 8")
            e(f"  s_add_u32 s{sT0}, s{sT0}, s{sT1}")
            e(f"  s_add_u32 s{sT0}, s{sT0}, s{sF}")
            e(f"  s_add_u32 s{sT0}, s{sT0}, s{sCU}")
            e(f"  s_and_b32 s{sSE}, s{sSE}, 1")
            e(f"  s_lshl_b32 s{sSE}, s{sSE}, 4")
            e(f"  s_add_u32 s{sT0}, s{sT0}, s{sSE}")
            e(f"  v_mov_b32 {vr(vPS)}, s{sT0}")
            e(f"  s_xor_b32 s{sT1}, s{sT1}, 1024")
            e(f"  s_add_u32 s{sF}, s{sF}, s{sT1}")
            e(f"  v_and_b32 {vr(vN)}, 1, v0")
            e(f"  v_lshl_add_u32 {vr(vN)}, {vr(vN)}, 4, s{sF}")
            for k in range(4):
                e(f"  v_add_u32 {vr(vSum)}, {k}, {vr(w_)}")
                e(f"  v_and_b32 {vr(vSum)}, 3, {vr(vSum)}")
                e(f"  v_lshl_add_u32 {vr(vPL + k)}, {vr(vSum)}, 8, {vr(vN)}")
            e(f"  s_mov_b32 s{sLO}, {(-(LAG + 2) * 0x01010101) & 0xffffffff:#x}")
            for k in range(4 * LAG):
                e(f"  v_mov_b32 {vr(smp + k)}, 0")
            for k in range(2):
                e(f"  v_mov_b32 {vr(vBI + k)}, 0")
            e(f"  v_mov_b32 {vr(vN)}, 0")
            e(f"  s_mov_b32 s{sB}, 0")
            e(f"  s_mov_b32 s{sS}, {P.s0}")
            e(f"  s_mov_b32 s{sI}, 0")
            e(f"  s_mov_b32 s{sCO}, 0")

    def sincos(dst, iv):
        for h in (0, 2):
            e(f"  v_pk_mul_f32 {vr(tN + h, 2)}, {vr(iv + h, 2)}, {vr(tK + 2, 2)} op_sel:[0,1] op_sel_hi:[1,1]")
        for i in range(4):
            e(f"  v_cos_f32 {vr(tA + i)}, {vr(tN + i)}")
        for i in range(4):
            e(f"  v_sin_f32 {vr(tN + i)}, {vr(tN + i)}")
        for i in range(4):
            e(f"  v_cvt_pk_f16_f32 {vr(dst + i)}, {vr(tA + i)}, {vr(tN + i)}")

    kp = [int(v) for v in P.kp_.split(",")]

    def chunk(i):
        a = 2 * (i // 3)
        d = tO + 4 * (i & 1)
        bc_ = lambda x, m: f"row_newbcast:{x} row_mask:0xf bank_mask:{m:#x}"
        if i % 3 == 1:
            e(f"  v_mov_b32_dpp {vr(pos)}, {vr(vRF)} {bc_(a + 1, 12)}")
            e(f"  v_add_u32_dpp {vr(vF)}, {vr(vAD)}, {vr(vC8)} {bc_(a, 3)}")
            e(f"  v_add_u32_dpp {vr(vF)}, {vr(vAD)}, {vr(vC8)} {bc_(a + 1, 12)}")
            sincos(d, invY)
            e(f"  ds_write_b128 {vr(vF)}, {vr(d, 4)} offset:{TB + 256}")
        else:
            a += i % 3 // 2
            e(f"  v_mov_b32_dpp {vr(pos)}, {vr(vRF)} {bc_(a, 15)}")
            e(f"  v_add_u32_dpp {vr(vF)}, {vr(vAD)}, {vr(vC16)} {bc_(a, 15)}")
            sincos(d, invX)
            e(f"  ds_write_b128 {vr(vF)}, {vr(d, 4)} offset:{TB}")

    def tab_read(a):
        for n in range(3 * a, 3 * a + 3):
            d = tab + 12 * (a & 1) + 4 * (n % 3)
            if n in SPECIAL:
                e(f"  ds_read_b128 {vr(d, 4)}, {vr(vTA + 9 + SPECIAL[n])}")
            else:
                e(f"  ds_read_b128 {vr(d, 4)}, {vr(vTA + 3 * (n >> 3) + TN[n])} offset:{toff_(n) - tmin(n)}")

    k_loads(kp[0])
    pf()
    e(f"  s_waitcnt vmcnt({nk[0]})")
    pf()
    for i in range(12):
        if i == P.su:
            setup()
            pf()
        chunk(i)
        k_loads(kp[i + 1])
        if i % 3 == 2:
            pf()
    k_loads(PRE)
    e(f"  v_mov_b32 {vr(bc)}, {f32bits(-7.5):#x}")
    e("  s_waitcnt lgkmcnt(0)")
    for k in range(8):
        e(f"  v_writelane_b32 {vr(vU)}, s{16 + k}, {k}")
    e("  s_barrier")
    pf()
    for k in range(3):
        e(f"  ds_read_b128 {vr(qa + 4 * k, 4)}, {vr(vQA + k)}")
    tab_read(0)
    e(f"  s_waitcnt vmcnt({PRE - nfix[0]})")
    pf()
    if P.tfine:
        e("  s_waitcnt lgkmcnt(0)")
        for k in range(pfn[0]):
            e(f"  v_writelane_b32 {vr(vtr)}, s{PFR[k]}, {k}")
        e(f"  s_mov_b32 m0, {pfn[0]}")

    def vfirst():
        e(f"  s_and_b32 s{sH}, s{sVO}, 15")
        e(f"  s_add_u32 s{sNEED}, s{sH}, 1")
        e(f"  ds_read_b32 {vr(vF)}, {vr(vZ)} offset:{FL + 20}")
        flagwait("a0", FL + 20)
        e(f"  s_mulk_i32 s{sH}, 1536")
        for k in range(2):
            e(f"  v_add_u32 {vr(vLV + k)}, s{sH}, {vr(vLB + k)}")
        e(f"  ds_read_b32 {vr(A)}, {vr(vLV)}")


    def knext():
        e("; next SRD: K slot k + 1, or the first V step once K runs out")
        e(f"  s_add_u32 s{sH}, s{sK}, 1")
        e(f"  s_sub_u32 s{sT1}, s{sH}, 16")
        vstep_k(sF, sT1)
        e(f"  s_cmp_lt_u32 s{sH}, 16")
        e(f"  s_cselect_b32 s{sH}, s{sH}, s{sF}")
        e(f"  s_cselect_b32 s{sX}, s{sQK}, s{sQV}")
        e(f"  s_cselect_b32 s{sX + 1}, s{sQK + 1}, s{sQV + 1}")
        head_of(sH, sH)
        srd_head(rB, sX, sH)

    def kred(n):
        dpp = lambda d, x, how, m: e(f"  v_add_f32_dpp {vr(d)}, {vr(x)}, {vr(x)} {how} row_mask:0xf bank_mask:{m:#x}")
        dpp(M1, dacc, "row_ror:8", 12 if n & 1 else 3)
        if n % 2 == 1:
            e("  s_nop 1")
            dpp(M2, M1, "row_half_mirror", 10 if n & 2 else 5)
        if n % 4 == 3:
            e("  s_nop 1")
            dpp(M2 if n & 4 else M3, M2, "quad_perm:[2,3,0,1]", 15)
        if n % 8 == 7:
            e(f"  v_cndmask_b32_e64 {vr(M3)}, {vr(M3)}, {vr(M2)}, s[{sMSK}:{sMSK + 1}]")
            e("  s_nop 1")
            dpp((LG, M3, LG + 1)[n >> 3], M3, "quad_perm:[1,0,3,2]", 15)
        if n == 15:
            e(f"  v_cndmask_b32_e64 {vr(LG)}, {vr(LG)}, {vr(M3)}, s[{sMSK + 2}:{sMSK + 3}]")

    e(".p2align 6")
    e("L_k:")

    def kbody(n):
        k_, q_ = ring + 4 * n, qa + 4 * TN[n]
        for i in range(4):
            e(f"  v_dot2_f32_f16 {vr(wt + i)}, {vr(tab + 12 * (n // 3 & 1) + 4 * (n % 3) + i)}, {vr(q_ + i)}, 0")
        for i in range(4):
            e(f"  v_cvt_f32_i32 {vr(k_ + i)}, {vr(k_ + i)}")
        if n >= 21:
            e(f"  ds_read_b128 {vr(q_, 4)}, {vr(vQA + TN[n])}")
        for h in range(2):
            e(f"  v_pk_add_f32 {vr(k_ + 2 * h, 2)}, {vr(k_ + 2 * h, 2)}, {vr(bc, 2)} op_sel_hi:[1,0]")
        e(f"  v_pk_mul_f32 {vr(dacc, 2)}, {vr(k_, 2)}, {vr(wt, 2)}")
        e(f"  v_pk_fma_f32 {vr(dacc, 2)}, {vr(k_ + 2, 2)}, {vr(wt + 2, 2)}, {vr(dacc, 2)}")
        e(f"  v_add_f32 {vr(dacc)}, {vr(dacc)}, {vr(dacc + 1)}")

    def kout():
        e(f"  v_mov_b32 {vr(vF)}, s{sK}")
        for k in range(2):
            e(f"  ds_write_b32 {vr(vLG + k)}, {vr(LG + k)}")
        e(f"  ds_write_b32 {vr(vPW)}, {vr(vF)} offset:{FL}")

    def group(ph, a, body, after, res):
        nb, pend = 3 * a, None
        od = ORD[ph]
        for i, c in enumerate(od):
            if pend is not None and c != "L":
                if od[i - 1] == "b":
                    e("  s_nop 1")
                after(pend)
                pend = None
            if c == "E":
                evaluate(ph, a)
                if od[i + 1] != "X":
                    decide(ph, a)
            if c == "X":
                exchange(a)
                if od[i - 1] == "E":
                    decide(ph, a)
            if c == "R" and a == 0:
                res()
            if c == "b":
                body(nb)
                pend = nb if after else None
                nb += 1
            if c == "L":
                issue(ph, a, i)
        if pend is not None:
            if od[-1] == "b":
                e("  s_nop 1")
            after(pend)

    for a in range(8):
        if a == 7:
            flagwait("qn", FL + 16)
        else:
            e("  s_waitcnt lgkmcnt(0)")
        tab_read((a + 1) % 8)
        if a == 6:
            e(f"  ds_read_b32 {vr(vF)}, {vr(vZ)} offset:{FL + 16}")
        group("K", a, kbody, kred, kout)
        if a == 1:
            knext()
        if a == 3:
            e(f"  s_add_u32 s{sT0}, s{sK}, 2")
            e(f"  s_min_u32 s{sNEED}, s{sT0}, 16")
            for k in range(3):
                e(f"  v_add_u32 {vr(vQA + k)}, 768, {vr(vQA + k)}")
            for k in range(2):
                e(f"  v_add_u32 {vr(vLG + k)}, 1536, {vr(vLG + k)}")
            e(f"  s_cmp_eq_u32 s{sK}, 15")
            e("  s_cbranch_scc1 L_kv")
            e("L_kw:")
        if a in (3, 7) or P.tfine:
            tr()
    assert sorted(TN[21:]) == [0, 1, 2] and TN[:3] == TN[3:6] and sorted(TN[:3]) == [0, 1, 2] and PRE <= 18
    e(f"  s_add_u32 s{sK}, s{sK}, 1")
    e(f"  s_mov_b64 s[{rA}:{rA + 1}], s[{rB}:{rB + 1}]")
    e(f"  s_cmp_lt_u32 s{sK}, 16")
    e("  s_cbranch_scc1 L_k")


    def vbody(n):
        v_ = ring + 4 * n
        e(f"  v_mov_b32_dpp {vr(bc)}, {vr(A + n // 16)} row_newbcast:{rev(n % 16, 4)} row_mask:0xf bank_mask:0xf")
        for i in range(4):
            e(f"  v_cvt_f32_i32 {vr(v_ + i)}, {vr(v_ + i)}")
        for h in range(2):
            d = 4 * TN[n] + 2 * h
            if n < 3:
                e(f"  v_pk_mul_f32 {vr(tmp + d, 2)}, {vr(v_ + 2 * h, 2)}, {vr(bc, 2)} op_sel_hi:[1,0]")
            else:
                e(f"  v_pk_fma_f32 {vr(acc + d, 2)}, {vr(v_ + 2 * h, 2)}, {vr(bc, 2)}, {vr((tmp if n < 6 else acc) + d, 2)} op_sel_hi:[1,0,1]")

    def vout(last=False):
        for j in range(3):
            e(f"  v_permlane32_swap_b32 {vr(acc + 4 * j)}, {vr(acc + 4 * j + 2)}")
            e(f"  v_permlane32_swap_b32 {vr(acc + 4 * j + 1)}, {vr(acc + 4 * j + 3)}")
        for j in range(3):
            e(f"  v_add_f32 {vr(acc + 4 * j)}, {vr(acc + 4 * j)}, {vr(acc + 4 * ((j + 1) % 3) + 2)}")
            e(f"  v_add_f32 {vr(acc + 4 * j + 1)}, {vr(acc + 4 * j + 1)}, {vr(acc + 4 * ((j + 1) % 3) + 3)}")
        for j in range(3):
            e(f"  v_permlane16_swap_b32 {vr(acc + 4 * j)}, {vr(acc + 4 * j + 1)}")
        for j in range(3):
            e(f"  v_add_f32 {vr(acc + 4 * j)}, {vr(acc + 4 * j)}, {vr(acc + 4 * ((j + 2) % 3) + 1)}")
        for j in range(3):
            e(f"  ds_write_b32 {vr(vPA + j)}, {vr(acc + 4 * j)}")
        if not last:
            e(f"  ds_write_b32 {vr(vPW)}, {vr(M1)} offset:{FL}")
            e("L_v0:")

    def vnext():
        e(f"  s_add_u32 s{sT1}, s{sK}, 1")
        e(f"  s_min_u32 s{sT1}, s{sT1}, 15")
        vstep_k(sH, sT1)
        e(f"  s_add_u32 s{sNEED}, s{sH}, 1")
        e(f"  s_mul_i32 s{sF}, s{sH}, 1536")
        head_of(sH, sH)
        srd_head(rB, sQV, sH)
        for k in range(2):
            e(f"  v_add_u32 {vr(vLV + k)}, s{sF}, {vr(vLB + k)}")

    NS, NT = (PRE - PD) // 3, 8 - PD // 3
    assert NS <= 1 and 4 <= NT <= 5 and (NS or P.ov[0] == "R") and max(P.mg, P.ml) <= 3 * NT
    e("L_vpre:")
    kout()
    e(f"  s_mov_b32 s{sK}, 0")
    e(f"  v_mov_b32 {vr(M1)}, 16")
    if NS:
        for n in range(3):
            e(f"  s_waitcnt vmcnt({plain[384 + n]})")
            vbody(n)
        e(f"  s_waitcnt vmcnt({plain[387]}) lgkmcnt(0)")
        e("  s_branch L_v1")
    else:
        e("  s_waitcnt lgkmcnt(3)")
        e("  s_branch L_v0")
    flush()
    e("L_kv:")
    vfirst()
    e("  s_branch L_kw")
    flush()
    e(".p2align 6")
    e("L_v:")
    for a in range(8):
        if a == 1:
            e("L_v1:")
            e(f"  ds_read_b32 {vr(A + 1)}, {vr(vLV + 1)}")
        if a == NT:
            e(f"  s_cmp_eq_u32 s{sK}, 15")
            e("  s_cbranch_scc1 L_vt")
        if a in (5, 7):
            e("  s_waitcnt lgkmcnt(0)")
        if a == 5:
            e(f"  ds_read_b32 {vr(vF)}, {vr(vZ)} offset:{FL + 20}")
        if a == 6:
            flagwait("an", FL + 20)
            e(f"  ds_read_b32 {vr(A)}, {vr(vLV)}")
        group("V", a, vbody, None, vout)
        if a == 1:
            vnext()
        if a == 3:
            e(f"  v_add_u32 {vr(M1)}, 1, {vr(M1)}")
            for j in range(3):
                e(f"  v_add_u32 {vr(vPA + j)}, 3072, {vr(vPA + j)}")
        if a in (3, 7):
            tr()
    e(f"  s_add_u32 s{sK}, s{sK}, 1")
    e(f"  s_mov_b64 s[{rA}:{rA + 1}], s[{rB}:{rB + 1}]")
    e("  s_branch L_v")
    flush()
    e("L_vt:")
    e("  s_waitcnt lgkmcnt(0)")
    for n in range(3 * NT, 24):
        e(f"  s_waitcnt vmcnt({plain[744 + n]})")
        vbody(n)
    tr()
    e("  s_nop 1")
    vout(True)
    e("  s_waitcnt lgkmcnt(0)")
    e("  s_barrier")
    if P.trace:
        e(f"  s_mul_i32 s8, s2, {5 * 256}")
        e("  s_add_u32 s8, s8, 0x100000")
        e(f"  v_lshl_add_u32 {vr(t0)}, v0, 2, s8")
        e(f"  global_store_dword {vr(t0)}, {vr(vtr)}, s[{sWS}:{sWS + 1}]")
    e("  s_endpgm")

    HP = [4, 6, 24, 8, 10, 36, 38, 72]
    ms = [m for m in range(P.r0, P.r1 + 1) if m < P.rf or m > P.rt or (m - P.r0) % P.rp == 0]
    gain = [(P.kp0 if m <= P.kn else P.kp) if m in ms else 0 for m in range(32)]
    if P.rk:
        gain = [int(c, 16) for c in P.rk]
        assert len(gain) == 32 and not any(gain[:P.r0]) and not gain[31]
    msk = sum(1 << m for m in range(32) if gain[m])

    def hp(k):
        if P.hprof:
            e(f"  s_memrealtime s[{HP[k]}:{HP[k] + 1}]")

    def progwait(name, slp, off=FL):
        e(f"L_{name}:")
        e(f"  ds_read_b128 {vr(pr, 4)}, {vr(vZ)} offset:{off}")
        e("  s_waitcnt lgkmcnt(0)")
        e(f"  v_min_u32 {vr(pr)}, {vr(pr)}, {vr(pr + 1)}")
        e(f"  v_min3_u32 {vr(pr)}, {vr(pr)}, {vr(pr + 2)}, {vr(pr + 3)}")
        e("  s_nop 0")
        e(f"  v_readfirstlane_b32 s{sF}, {vr(pr)}")
        e(f"  s_cmp_ge_u32 s{sF}, s{sNEED}")
        e(f"  s_cbranch_scc1 L_{name}_ok")
        budget(f"L_{name}_ok")
        if slp:
            e(f"  s_sleep {slp}")
        e(f"  s_branch L_{name}")
        e(f"L_{name}_ok:")

    def rowred(op, v):
        for n in (8, 4, 2, 1):
            e("  s_nop 1")
            e(f"  {op}_dpp {vr(v)}, {vr(v)}, {vr(v)} row_ror:{n} row_mask:0xf bank_mask:0xf")

    def allred(op, v, t):
        rowred(op, v)
        for sw in ("v_permlane16_swap_b32", "v_permlane32_swap_b32"):
            e(f"  v_mov_b32 {vr(t)}, {vr(v)}")
            e("  s_nop 1")
            e(f"  {sw} {vr(v)}, {vr(t)}")
            e(f"  {op} {vr(v)}, {vr(v)}, {vr(t)}")

    def sum_partials(nq):
        w = 4 * nq
        for k in range(4):
            for q in range(nq):
                e(f"  ds_read_b128 {vr(x + w * k + 4 * q, 4)}, {vr(h0)} offset:{768 * k + 16 * q}")
        e(f"  ds_read_b128 {vr(z4, 4)}, {vr(h1)} offset:{ST}")
        e("  s_waitcnt lgkmcnt(0)")
        for h in range(0, w, 2):
            e(f"  v_pk_add_f32 {vr(x + h, 2)}, {vr(x + h, 2)}, {vr(x + w + h, 2)}")
            e(f"  v_pk_add_f32 {vr(x + 2 * w + h, 2)}, {vr(x + 2 * w + h, 2)}, {vr(x + 3 * w + h, 2)}")
        for h in range(0, w, 2):
            e(f"  v_pk_add_f32 {vr(x + h, 2)}, {vr(x + h, 2)}, {vr(x + 2 * w + h, 2)}")
        for h in range(0, w, 2):
            e(f"  v_pk_add_f32 {vr(x + h, 2)}, {vr(x + h, 2)}, {vr(z4 + 2, 2)} op_sel_hi:[1,0] neg_lo:[0,1] neg_hi:[0,1]")

    def mark(tag):
        if P.sd:
            e("  s_memrealtime s[72:73]")
            e("  s_waitcnt lgkmcnt(0)")
            e("  s_sub_u32 s75, s72, s74")
            e("  s_mov_b32 s74, s72")
            e(f"  s_add_u32 s72, s{sNEED}, {64 - P.sd}")
            e("  s_and_b32 s73, s72, 1")
            e("  s_lshl_b32 s73, s73, 4")
            e("  s_min_u32 s75, s75, 510")
            e("  s_lshl_b32 s75, s75, s73")
            e("  s_lshr_b32 m0, s72, 1")
            e(f"  v_readlane_b32 s73, {vr(vCL)}, m0")
            e("  s_add_u32 s73, s73, s75")
            e(f"  v_writelane_b32 {vr(vCL)}, s73, m0")
        if not P.enc:
            return
        for k, m in enumerate(P.enc.split(",")[:2]):
            e(f"  s_cmp_eq_u32 s{sNEED}, {m}")
            e(f"  s_cbranch_scc0 L_mk{tag}{k}")
            e(f"  s_memrealtime s[{72 + 2 * k}:{73 + 2 * k}]")
            e(f"L_mk{tag}{k}:")

    def warm(tag):
        if not P.tw:
            return
        if P.tv == 2:
            ev = {5: (sQK, 1), 10: (sQK, 2), 16: (sQV, 2), 21: (sQV, 0), 26: (sQV, 1)}
            e(f"  s_lshr_b32 s{sT0}, s2, 3")
            e(f"  s_cmp_eq_u32 s{sT0}, s{sNEED}")
            e(f"  s_cbranch_scc0 L_tw{tag}")
            e(f"  s_and_b32 s{sT1}, s2, 7")
            e(f"  s_lshl_b32 s{sT1}, s{sT1}, 12")
            e(f"  v_lshl_add_u32 {vr(vFX)}, {vr(l)}, {27 - P.tl}, s{sT1}")
            e(f"  s_mov_b64 exec, {-1 if P.tl == 6 else (1 << (1 << P.tl)) - 1}")
            for t_, (sp, b_) in ev.items():
                if (t_ - P.tw > 16) == (tag == "p"):
                    e(f"  s_cmp_eq_u32 s{sNEED}, {t_ - P.tw}")
                    e(f"  s_cbranch_scc0 L_tx{t_}")
                    e(f"  v_add_u32 {vr(vFX)}, {b_ << 27:#x}, {vr(vFX)}")
                    e(f"  global_load_dword {vr(vFX)}, {vr(vFX)}, s[{sp}:{sp + 1}] nt")
                    e(f"L_tx{t_}:")
            e("  s_mov_b64 exec, -1")
            e("  s_waitcnt vmcnt(0)")
            e(f"L_tw{tag}:")
            return
        tm = sum(1 << int(v) for v in P.tm.split(","))
        if P.ts:
            e(f"  s_bfe_u32 s{sT0}, s2, {P.ts << 16 | 4:#x}")
            e(f"  s_add_u32 s{sX}, s{sNEED}, s{sT0}")
            e(f"  s_add_u32 s{sX}, s{sX}, {P.tw}")
        else:
            e(f"  s_add_u32 s{sX}, s{sNEED}, {P.tw}")
        e(f"  s_min_u32 s{sX}, s{sX}, 31")
        e(f"  s_and_b32 s{sT0}, s2, {8 | P.tk << 4:#x}")
        e(f"  s_cselect_b32 s{sT0}, 0, {tm:#x}")
        e(f"  s_bitcmp1_b32 s{sT0}, s{sX}")
        e(f"  s_cbranch_scc0 L_tw{tag}")
        e(f"  s_sub_u32 s{sT1}, s{sX}, 16")
        vstep_k(sF, sT1)
        e(f"  s_cmp_lt_u32 s{sX}, 16")
        e(f"  s_cselect_b32 s{sF}, s{sX}, s{sF}")
        e(f"  s_cselect_b32 s{rB}, s{sQK}, s{sQV}")
        e(f"  s_cselect_b32 s{rB + 1}, s{sQK + 1}, s{sQV + 1}")
        head_of(sF, sF, hU)
        e(f"  s_mul_i32 s{sF}, s{sF}, {UB}")
        e(f"  s_add_u32 s{sF}, s{sF}, {65536 * RUN[0]}")
        if P.tv:
            e(f"  v_mov_b32 {vr(vFX)}, s{sF}")
            e("  s_mov_b64 exec, 1")
            e(f"  global_load_dword {vr(vFX)}, {vr(vFX)}, s[{rB}:{rB + 1}] nt")
            e("  s_mov_b64 exec, -1")
            e("  s_waitcnt vmcnt(0)")
        else:
            e(f"  s_load_dword s{sF}, s[{rB}:{rB + 1}], s{sF} {P.tg}")
            e("  s_waitcnt lgkmcnt(0)")
        e(f"L_tw{tag}:")

    def rank_post(tag):
        if not P.ctl:
            return
        e(f"  s_bitcmp1_b32 s{sRF}, s{sNEED}")
        e(f"  s_cbranch_scc0 L_fa{tag}")
        e(f"  s_mul_i32 s{sT0}, s{sNEED}, 384")
        e(f"  s_add_u32 s{sT0}, s{sT0}, {W_RK}")
        e(f"  s_mov_b32 s{sB}, 1")
        e(f"  s_atomic_add s{sB}, s[{sWS}:{sWS + 1}], s{sT0} glc")
        e(f"L_fa{tag}:")

    def rank_take(tag):
        if not P.ctl:
            return
        e(f"  s_bitcmp1_b32 s{sRF}, s{sNEED}")
        e(f"  s_cbranch_scc0 L_fb{tag}")
        e("  s_waitcnt lgkmcnt(0)")
        e(f"  s_min_u32 s{sF}, s{sB}, 15")
        e(f"  s_lshl_b32 s{sF}, s{sF}, 1")
        e(f"  s_sub_u32 s{sF}, s{sF}, 15")
        gs = sorted(set(gain) - {0})
        e(f"  s_mov_b32 s{sT0}, {gs[0]}")
        for g_ in gs[1:]:
            e(f"  s_bitcmp1_b32 {sum(1 << m for m in range(32) if gain[m] == g_):#x}, s{sNEED}")
            e(f"  s_cselect_b32 s{sT0}, {g_}, s{sT0}")
        e(f"  s_mul_i32 s{sF}, s{sF}, s{sT0}")
        e(f"  s_add_u32 s{sF}, s{sF}, 8")
        e(f"  s_ashr_i32 s{sF}, s{sF}, 4")
        e(f"  v_mov_b32 {vr(vFX)}, s{sF}")
        e("  s_mov_b64 exec, 1")
        e(f"  global_store_dword {vr(vFB)}, {vr(vFX)}, s[{sWS}:{sWS + 1}]")
        e("  s_mov_b64 exec, -1")
        e(f"L_fb{tag}:")

    HPF = [10, 16, 18, 20, 22, 72, 74, 76, 82, 96]
    hpn = [0]

    def hpf():
        if P.tfine:
            e(f"  s_memrealtime s[{HPF[hpn[0]]}:{HPF[hpn[0]] + 1}]")
            hpn[0] += 1

    e("L_helper:")
    e(f"  s_setprio {P.hp0}")
    hv = []

    def qmask(on):
        if on:
            e("  s_mov_b32 exec_lo, 0xffffff")
            e("  s_mov_b32 exec_hi, 0xffffff")
        else:
            e("  s_mov_b64 exec, -1")

    if P.st:
        e("; start the address translation of the small arrays and of the workspace right away (the values are not used)")
        e("  s_waitcnt lgkmcnt(0)")
        if P.st == 1:
            e(f"  s_load_dwordx8 s[24:31], s[0:1], 80")
        for k, sp in enumerate((sQ, sKS, sVS)):
            e(f"  s_load_dword s{rA + k}, s[{sp}:{sp + 1}], 0")
        if P.st == 2:
            e(f"  s_mov_b32 s{rA + 3}, {W_RK - 4096}")
            e(f"  s_load_dword s{rA + 3}, s[{sWS}:{sWS + 1}], s{rA + 3}")
    e(f"  v_and_b32 {vr(vL16)}, 0x1f0, {vr(vT16)}")
    e(f"  global_load_dwordx4 {vr(pr, 4)}, {vr(vL16)}, s[{sZ}:{sZ + 1}] offset:{D_QCS - PC0}")
    e(f"  global_load_dwordx4 {vr(f0, 4)}, {vr(vL16)}, s[{sZ}:{sZ + 1}] offset:{D_F0 - PC0}")
    e(f"  v_and_b32 {vr(vSh)}, 32, v0")
    e(f"  v_lshrrev_b32 {vr(vSh)}, 1, {vr(vSh)}")
    e(f"  v_lshrrev_b32 {vr(h1)}, 1, {vr(vL16)}")
    e(f"  s_movk_i32 s{sT1}, 384")
    if not P.st:
        e("  s_waitcnt lgkmcnt(0)")
    hpf()
    for p in range(2):
        e(f"  v_lshrrev_b32 {vr(hq + p)}, {vr(vSh)}, s{sE + 10 + p}")
        e(f"  v_and_b32 {vr(h0)}, 0xff, {vr(hq + p)}")
        e(f"  v_mad_u32_u24 {vr(ra + p)}, {vr(h0)}, s{sT1}, {vr(h1)}")
    qmask(1)
    for p in range(2):
        e(f"  global_load_dwordx2 {vr(rec + 4 * p, 2)}, {vr(ra + p)}, s[{sQ}:{sQ + 1}]")
        e(f"  global_load_dwordx2 {vr(rec + 4 * p + 2, 2)}, {vr(ra + p)}, s[{sQ}:{sQ + 1}] offset:192")
        hv.extend([("q", p)] * 2)
    qmask(0)
    hpf()
    common(not P.st)
    e(f"  s_and_b32 s{sT0}, s{sE + 15}, 0x1c00")
    e(f"  s_and_b32 s{sE + 15}, s{sE + 15}, 0xff")
    e(f"  s_add_u32 s{sT0}, s{sT0}, L_hpos-L_pc")
    e(f"  v_add_u32 {vr(h0)}, s{sT0}, {vr(vT16)}")
    e(f"  global_load_dwordx4 {vr(st4, 4)}, {vr(h0)}, s[{sZ}:{sZ + 1}]")
    hv.append(("h", 0))
    e(f"  s_mov_b64 s[{sVO}:{sVO + 1}], s[{sE + 8}:{sE + 9}]")
    e(f"  v_mov_b32 {vr(l)}, v0")
    for i in range(4):
        e(f"  v_mov_b32 {vr(z4 + i)}, 0")
    for k in range(4):
        e(f"  ds_write_b128 {vr(vZ)}, {vr(z4, 4)} offset:{FL + 16 * k}")
    e(f"  s_mov_b32 s{sMASK}, 0xffff0000")
    e(f"  s_mov_b32 s{sSCALE}, {f32bits(math.log2(math.e) / math.sqrt(192.0)):#x}")
    e(f"  s_movk_i32 s{sC}, 784")
    e(f"  v_mad_u32_u24 {vr(wa)}, {vr(vSh)}, 48, {vr(vL16)}")
    e(f"  v_lshrrev_b32 {vr(vSq)}, 1, {vr(vSh)}")
    for p in range(8):
        e(f"  v_lshrrev_b32 {vr(ra + p)}, {vr(vSh)}, s{sE + p}")
    e("  s_waitcnt lgkmcnt(0)")
    hpf()
    if P.ctl:
        die_base(sF)
        e(f"  v_lshrrev_b32 {vr(h0)}, 1, {vr(l)}")
        e(f"  v_lshl_add_u32 {vr(vFX)}, {vr(h0)}, 8, s{sF}")
        e(f"  v_and_b32 {vr(h0)}, 1, {vr(l)}")
        e(f"  v_lshl_add_u32 {vr(vFX)}, {vr(h0)}, 4, {vr(vFX)}")
        e(f"  s_and_b32 s{sT1}, s{sSE}, 2")
        e(f"  s_lshl_b32 s{sT0}, s{sT1}, 9")
        e(f"  s_add_u32 s{sT0}, s{sT0}, s{sF}")
        e(f"  v_add_u32 {vr(vEL)}, s{sT0}, {vr(l)}")
        e(f"  s_lshl_b32 s{sT1}, s{sT1}, 1")
        e(f"  s_add_u32 s{sF}, s{sF}, s{sT1}")
        e(f"  s_add_u32 s{sF}, s{sF}, 2048")
        e(f"  v_mov_b32 {vr(vFB)}, s{sF}")
        e(f"  v_mul_u32_u24 {vr(vFA)}, 384, {vr(l)}")
        e(f"  v_add_u32 {vr(vFA)}, {W_RK}, {vr(vFA)}")
        e(f"  s_mov_b32 s{sRF}, 0")
        e("  s_mov_b64 exec, 0x3ffff")
        e(f"  global_store_dwordx4 {vr(vFX)}, {vr(z4, 4)}, s[{sWS}:{sWS + 1}]")
        e("  s_mov_b64 exec, -1")
    e(f"  s_waitcnt vmcnt({len(hv)})")
    for k in range(4):
        e(f"  v_lshlrev_b32 {vr(cs + k)}, 16, {vr(pr + k)}")
        e(f"  v_and_b32 {vr(cs + 4 + k)}, s{sMASK}, {vr(pr + k)}")

    def elect():
        if not P.ctl:
            return
        e(f"  s_cmp_eq_u32 s{sNEED}, {P.r0 - 1}")
        e("  s_cbranch_scc0 L_el")
        e(f"  s_bitcmp0_b32 s{sSE}, 0")
        e("  s_cbranch_scc0 L_el")
        e("  s_mov_b64 exec, 0xffff")
        e(f"  global_load_ubyte {vr(vFX)}, {vr(vEL)}, s[{sWS}:{sWS + 1}] sc1")
        e("  s_waitcnt vmcnt(0)")
        e(f"  v_cmp_ne_u32 s[{sZ}:{sZ + 1}], 0, {vr(vFX)}")
        e(f"  s_lshr_b32 s{sT0}, s{sZ}, s{sCU}")
        e(f"  s_bcnt1_i32_b32 s{sT0}, s{sT0}")
        pat = sum(1 << m for m in range(0, 32, P.rotl))
        e(f"  s_sub_u32 s{sT1}, s{sT0}, 1")
        e(f"  s_cmp_lt_u32 s{sT1}, {P.rotl}")
        e("  s_cbranch_scc0 L_el")
        e(f"  s_lshl_b32 s{sRF}, {pat:#x}, s{sT1}")
        e(f"  s_and_b32 s{sRF}, s{sRF}, {msk:#x}")
        e("L_el:")
        e("  s_mov_b64 exec, -1")

    def roleaddr(src):
        e(f"  v_bfe_u32 {vr(wb)}, {vr(src)}, 12, 2")
        e(f"  v_mul_u32_u24 {vr(h1)}, s{sC}, {vr(wb)}")
        e(f"  v_add_u32 {vr(h1)}, {QR}, {vr(h1)}")
        e(f"  v_add_u32 {vr(h0)}, {vr(h1)}, {vr(vL16)}")

    def rotate(p):
        L, Hh, LC, HS, HC, LS = x, x + 4, x + 8, x + 12, x + 16, x + 20
        roleaddr(hq + p)
        e(f"  v_mov_b32 {vr(h2)}, 0")
        qmask(1)
        if p == 0:
            hpf()
        e(f"  s_waitcnt vmcnt({hv[::-1].index(('q', p))})")
        if p == 0:
            hpf()
        for k in range(4):
            e(f"  v_lshlrev_b32 {vr(L + 2 * k)}, 16, {vr(rec + 4 * p + k)}")
            e(f"  v_and_b32 {vr(L + 2 * k + 1)}, s{sMASK}, {vr(rec + 4 * p + k)}")
        for d, q_, t_ in ((LC, L, cs), (HS, Hh, cs + 4), (HC, Hh, cs), (LS, L, cs + 4)):
            for h in (0, 2):
                e(f"  v_pk_mul_f32 {vr(d + h, 2)}, {vr(q_ + h, 2)}, {vr(t_ + h, 2)}")
        for i in range(4):
            e(f"  v_cvt_pk_bf16_f32 {vr(L + i)}, {vr(LC + i)}, {vr(HS + i)}")
            e(f"  v_cvt_pk_bf16_f32 {vr(Hh + i)}, {vr(HC + i)}, {vr(LS + i)}")
        for k in range(8):
            e(f"  v_lshlrev_b32 {vr(LC + k)}, 16, {vr(L + k)}")
            e(f"  v_and_b32 {vr(L + k)}, s{sMASK}, {vr(L + k)}")
        for h in (0, 2):
            e(f"  v_pk_add_f32 {vr(L + h, 2)}, {vr(LC + h, 2)}, {vr(L + h, 2)} neg_lo:[0,1] neg_hi:[0,1]")
            e(f"  v_pk_add_f32 {vr(Hh + h, 2)}, {vr(HS + h, 2)}, {vr(Hh + h, 2)}")
        for i in range(4):
            e(f"  v_cvt_pk_bf16_f32 {vr(Hh + i)}, {vr(L + i)}, {vr(Hh + i)}")
        for i in range(4):
            e(f"  v_lshlrev_b32 {vr(L + i)}, 16, {vr(Hh + i)}")
            e(f"  v_and_b32 {vr(Hh + i)}, s{sMASK}, {vr(Hh + i)}")
        for i in range(4):
            e(f"  v_max3_f32 {vr(h2)}, |{vr(L + i)}|, |{vr(Hh + i)}|, {vr(h2)}")
        qmask(0)
        rowred("v_max_f32", h2)
        e(f"  v_mov_b32 {vr(h3)}, {vr(h2)}")
        e("  s_nop 1")
        e(f"  v_permlane16_swap_b32 {vr(h2)}, {vr(h3)}")
        e(f"  v_max_f32 {vr(h2)}, {vr(h2)}, {vr(h3)}")
        e(f"  v_frexp_exp_i32_f32 {vr(h2)}, {vr(h2)}")
        e(f"  v_sub_u32 {vr(h3)}, 13, {vr(h2)}")
        e(f"  v_subrev_u32 {vr(h2)}, 13, {vr(h2)}")
        for i in range(8):
            e(f"  v_ldexp_f32 {vr(L + i)}, {vr(L + i)}, {vr(h3)}")
        e(f"  v_ldexp_f32 {vr(h2)}, s{sSCALE}, {vr(h2)}")
        qmask(1)
        e(f"  ds_write_b128 {vr(h0)}, {vr(L, 4)}")
        e(f"  ds_write_b128 {vr(h0)}, {vr(Hh, 4)} offset:384")
        e(f"  ds_write_b32 {vr(h1)}, {vr(h2)} offset:768")
        qmask(0)

    cu, su = x + 24, x + 28

    def angle(p):
        e(f"  v_and_b32 {vr(qn)}, 7, {vr(ra + p)}")
        e(f"  v_cvt_f32_u32 {vr(qn)}, {vr(qn)}")
        for h in (0, 2):
            e(f"  v_pk_mul_f32 {vr(su + h, 2)}, {vr(f0 + h, 2)}, {vr(qn, 2)} op_sel_hi:[1,0]")
        for i in range(4):
            e(f"  v_cos_f32 {vr(cu + i)}, {vr(su + i)}")
        for i in range(4):
            e(f"  v_sin_f32 {vr(su + i)}, {vr(su + i)}")

    def item(p):
        a_, b_, a2, b2 = x, x + 4, x + 8, x + 12
        roleaddr(ra + p)
        qmask(1)
        e(f"  ds_read_b128 {vr(a_, 4)}, {vr(h0)}")
        e(f"  ds_read_b128 {vr(b_, 4)}, {vr(h0)} offset:384")
        e(f"  ds_read_b32 {vr(qn + 2)}, {vr(h1)} offset:768")
        if p:
            angle(p)
        e(f"  v_mov_b32 {vr(qn + 3)}, {vr(wb)}")
        e(f"  v_mov_b32 {vr(h0)}, {2 * p + 2}")
        e("  s_waitcnt lgkmcnt(0)")
        for h in (0, 2):
            e(f"  v_pk_mul_f32 {vr(a2 + h, 2)}, {vr(a_ + h, 2)}, {vr(cu + h, 2)}")
            e(f"  v_pk_mul_f32 {vr(b2 + h, 2)}, {vr(b_ + h, 2)}, {vr(cu + h, 2)}")
        for h in (0, 2):
            e(f"  v_pk_fma_f32 {vr(a2 + h, 2)}, {vr(b_ + h, 2)}, {vr(su + h, 2)}, {vr(a2 + h, 2)}")
            e(f"  v_pk_fma_f32 {vr(b2 + h, 2)}, {vr(a_ + h, 2)}, {vr(su + h, 2)}, {vr(b2 + h, 2)} neg_lo:[1,0,0] neg_hi:[1,0,0]")
        for i in range(4):
            e(f"  v_cvt_pk_f16_f32 {vr(a_ + i)}, {vr(a2 + i)}, {vr(b2 + i)}")
            e(f"  v_cvt_pk_f16_f32 {vr(b_ + i)}, {vr(b2 + i)}, -{vr(a2 + i)}")
        e(f"  ds_write_b128 {vr(wa)}, {vr(a_, 4)} offset:{QB + 1536 * p}")
        e(f"  ds_write_b128 {vr(wa)}, {vr(b_, 4)} offset:{QB + 1536 * p + 384}")
        e(f"  ds_write_b64 {vr(vSq)}, {vr(qn + 2, 2)} offset:{QS + 16 * p}")
        e(f"  ds_write_b32 {vr(vZ)}, {vr(h0)} offset:{FL + 16}")
        qmask(0)

    def scales():
        e("; scales of the 16 units")
        for p in range(8):
            e(f"  v_and_b32 {vr(h0)}, 0x7ff, {vr(ra + p)}")
            e(f"  v_lshl_add_u32 {vr(h0)}, {vr(h0)}, 9, {vr(vL16)}")
            for i, sp in enumerate((sKS, sVS)):
                e(f"  s_mov_b32 m0, {SCB + SA * i + 1024 * p}")
                e("  s_nop 0")
                e(f"  global_load_lds_dwordx4 {vr(h0)}, s[{sp}:{sp + 1}] nt")
                hv.append(("s", p))

    if P.ss == 1:
        scales()
    angle(0)
    rotate(0)
    item(0)
    if P.ss == 2:
        scales()
    hpf()
    e("  s_waitcnt lgkmcnt(0)")
    e("  s_setprio 0")
    hpf()
    e("  s_barrier")
    hpf()
    if P.ss == 3:
        scales()
    rotate(1)
    for p in range(1, 8):
        item(p)
    if P.tw and P.tv < 2:
        for k in range(8):
            e(f"  v_writelane_b32 {vr(hU)}, s{sE + k}, {k}")
    e(f"  v_mov_b32 {vr(vSa)}, 0")
    e(f"  v_mov_b32 {vr(vSq)}, 0")
    e(f"  v_min_u32 {vr(u)}, 47, {vr(l)}")
    e(f"  v_lshlrev_b32 {vr(vL16)}, 4, {vr(u)}")
    for i in range(4):
        e(f"  v_mov_b32 {vr(sc + i)}, 0")
    e(f"  s_mov_b32 s{sNEED}, 1")
    e("  s_cmp_eq_u32 s2, 0")
    e("  s_cbranch_scc0 L_rc")
    e(f"  v_mov_b32 {vr(h0)}, {W_REC + 384 + 4}")
    e(f"  global_load_dword {vr(h1)}, {vr(h0)}, s[{sWS}:{sWS + 1}] sc1")
    if P.ctl:
        e(f"  s_mov_b64 exec, {msk:#x}")
        e(f"  global_store_dword {vr(vFA)}, {vr(vZ)}, s[{sWS}:{sWS + 1}] sc1")
    e("  s_mov_b64 exec, 1")
    e("  s_waitcnt vmcnt(0)")
    e(f"  v_and_b32 {vr(qn)}, 0x77777777, {vr(h1)}")
    e(f"  v_and_b32 {vr(h1)}, 0x88888888, {vr(h1)}")
    e(f"  v_add_u32 {vr(qn)}, 0x11111111, {vr(qn)}")
    e(f"  v_xor_b32 {vr(qn)}, {vr(qn)}, {vr(h1)}")
    e(f"  v_mov_b32 {vr(qn + 1)}, 1")
    e(f"  global_store_dwordx2 {vr(vZ)}, {vr(qn, 2)}, s[{sDBG}:{sDBG + 1}] sc1")
    e("  s_mov_b64 exec, -1")
    e("L_rc:")
    hpf()
    e("  s_waitcnt vmcnt(0)")
    hpf()
    if P.tfine:
        e("  s_waitcnt lgkmcnt(0)")
        e(f"  v_mov_b32 {vr(h0)}, 0")
        for k in range(hpn[0]):
            e(f"  v_writelane_b32 {vr(h0)}, s{HPF[k]}, {k}")
        e(f"  s_mul_i32 s{sT0}, s2, {5 * 256}")
        e(f"  s_add_u32 s{sT0}, s{sT0}, {0x100000 + 1024}")
        e(f"  v_lshl_add_u32 {vr(h1)}, v0, 2, s{sT0}")
        e(f"  global_store_dword {vr(h1)}, {vr(h0)}, s[{sWS}:{sWS + 1}]")
    for k in range(4):
        e(f"  v_and_b32 {vr(ro + 2 * k)}, 0xffff, {vr(st4 + k)}")
        e(f"  v_lshrrev_b32 {vr(ro + 2 * k + 1)}, 16, {vr(st4 + k)}")
    for k in range(2):
        e(f"  v_add_u32 {vr(ro + 6 + k)}, {SCB}, {vr(ro + 6 + k)}")
    if P.sd:
        e(f"  v_mov_b32 {vr(vCL)}, 0")
    e("L_hk:")
    for a in range(2):
        for k in range(2):
            e(f"  ds_read_u16_d16_hi {vr(sc + 2 * a + k)}, {vr(ro + 6 + k)} offset:{SA * a}")
    e(f"  ds_read_b64 {vr(z4 + 2, 2)}, {vr(vSq)} offset:{QS}")
    e(f"  v_add_u32 {vr(vSq)}, 8, {vr(vSq)}")
    progwait("hsw", P.psk)
    mark("s")
    rank_post("s")
    for k in range(6):
        e(f"  ds_read_b32 {vr(x + 4 + k)}, {vr(ro + k)} offset:{LGB}")
    e(f"  v_mul_f32 {vr(x + 2)}, {vr(z4 + 2)}, {vr(sc)}")
    e(f"  v_mul_f32 {vr(x + 3)}, {vr(z4 + 2)}, {vr(sc + 1)}")
    e("  s_waitcnt lgkmcnt(0)")
    e(f"  v_pk_add_f32 {vr(x, 2)}, {vr(x + 4, 2)}, {vr(x + 6, 2)}")
    e(f"  v_pk_add_f32 {vr(x, 2)}, {vr(x, 2)}, {vr(x + 8, 2)}")
    e(f"  v_mul_f32 {vr(x)}, {vr(x)}, {vr(x + 2)}")
    e(f"  v_mul_f32 {vr(x + 1)}, {vr(x + 1)}, {vr(x + 3)}")
    e(f"  v_max_f32 {vr(z4)}, {vr(x)}, {vr(x + 1)}")
    allred("v_max_f32", z4, h0)
    e(f"  v_sub_f32 {vr(x)}, {vr(x)}, {vr(z4)}")
    e(f"  v_sub_f32 {vr(x + 1)}, {vr(x + 1)}, {vr(z4)}")
    e(f"  v_exp_f32 {vr(x)}, {vr(x)}")
    e(f"  v_exp_f32 {vr(x + 1)}, {vr(x + 1)}")
    e("  s_nop 0")
    e(f"  v_add_f32 {vr(z4 + 1)}, {vr(x)}, {vr(x + 1)}")
    e(f"  v_mul_f32 {vr(x)}, {vr(x)}, {vr(sc + 2)}")
    e(f"  v_mul_f32 {vr(x + 1)}, {vr(x + 1)}, {vr(sc + 3)}")
    e(f"  v_add_f32 {vr(z4 + 2)}, {vr(x)}, {vr(x + 1)}")
    for k in range(6):
        e(f"  ds_write_b32 {vr(ro + k)}, {vr(x + (k & 1))} offset:{LGB}")
    e(f"  v_mul_f32 {vr(z4 + 2)}, {f32bits(7.5):#x}, {vr(z4 + 2)}")
    allred("v_add_f32", z4 + 1, h0)
    allred("v_add_f32", z4 + 2, h0)
    e(f"  v_mov_b32 {vr(h0)}, s{sNEED}")
    e(f"  ds_write_b128 {vr(vSa)}, {vr(z4, 4)} offset:{ST}")
    e(f"  ds_write_b32 {vr(vZ)}, {vr(h0)} offset:{FL + 20}")
    e(f"  v_add_u32 {vr(vSa)}, 16, {vr(vSa)}")
    for k in range(8):
        e(f"  v_add_u32 {vr(ro + k)}, {1536 if k < 6 else SL}, {vr(ro + k)}")
    rank_take("s")
    warm("s")
    elect()
    e("  s_waitcnt lgkmcnt(0)")
    e(f"  s_add_u32 s{sNEED}, s{sNEED}, 1")
    e(f"  s_cmp_le_u32 s{sNEED}, 16")
    e("  s_cbranch_scc1 L_hk")

    e(f"  v_and_b32 {vr(h0)}, 15, {vr(l)}")
    e(f"  v_lshlrev_b32 {vr(h0)}, 4, {vr(h0)}")
    e(f"  ds_read_b128 {vr(z4, 4)}, {vr(h0)} offset:{ST}")
    e(f"  v_lshrrev_b32 {vr(h1)}, 4, {vr(l)}")
    e(f"  v_mov_b32 {vr(h2)}, 0xff800000")
    for i in range(16):
        e(f"  v_mov_b32 {vr(AC + i)}, 0")
    e("  s_waitcnt lgkmcnt(0)")
    e(f"  v_cmp_eq_u32 vcc, {vr(h1)}, {vr(z4 + 3)}")
    e(f"  v_add_u32 {vr(h0)}, {PB}, {vr(vL16)}")
    e(f"  v_lshrrev_b32 {vr(u)}, 1, {vr(vL16)}")
    e(f"  v_cndmask_b32 {vr(vM)}, {vr(h2)}, {vr(z4)}, vcc")
    rowred("v_max_f32", vM)
    e(f"  v_sub_f32 {vr(vFc)}, {vr(z4)}, {vr(vM)}")
    e(f"  v_exp_f32 {vr(vFc)}, {vr(vFc)}")
    e(f"  s_mov_b32 s{sK}, 0")
    e(f"  v_cndmask_b32 {vr(vFc)}, 0, {vr(vFc)}, vcc")
    e(f"  v_mul_f32 {vr(vL)}, {vr(vFc)}, {vr(z4 + 1)}")
    rowred("v_add_f32", vL)
    e(f"  s_mul_i32 s{sT0}, s{sE + 15}, 384")
    e(f"  v_add_u32 {vr(u)}, s{sT0}, {vr(u)}")
    e("L_hp:")
    e(f"  s_lshr_b32 s{sT0}, s2, 4")
    e(f"  s_min_u32 s{sT0}, s{sT0}, 13")
    e(f"  s_cmp_eq_u32 s{sT0}, s{sK}")
    e("  s_cbranch_scc0 L_hc_ok")
    if P.ot == 1:
        e("; (the value is not used: address translation for the final store)")
        e(f"  s_load_dword s{sF}, s[{sOUT}:{sOUT + 1}], 0")
    if P.ot == 2:
        e("; (the value is not used: address translation for the final store)")
        e("  s_mov_b64 exec, 1")
        e(f"  global_load_dword {vr(vFX)}, {vr(vZ)}, s[{sOUT}:{sOUT + 1}]")
        e("  s_mov_b64 exec, -1")
        e("  s_waitcnt vmcnt(0)")
    e(f"  s_load_dwordx2 s[{sZ}:{sZ + 1}], s[{sDBG}:{sDBG + 1}], 0 glc")
    e("  s_waitcnt lgkmcnt(0)")
    e(f"  s_mov_b32 s{sTG}, s{sZ}")
    e(f"  s_cmp_eq_u32 s{sZ + 1}, 1")
    e("  s_cbranch_scc1 L_hc_ok")
    e("L_hc:")
    e(f"  global_load_dwordx2 {vr(pr, 2)}, {vr(vZ)}, s[{sDBG}:{sDBG + 1}] sc1")
    e("  s_waitcnt vmcnt(0)")
    e(f"  v_readfirstlane_b32 s{sTG}, {vr(pr)}")
    e(f"  v_readfirstlane_b32 s{sF}, {vr(pr + 1)}")
    e(f"  s_cmp_eq_u32 s{sF}, 1")
    e("  s_cbranch_scc1 L_hc_ok")
    budget("L_hc_ok")
    e("  s_sleep 64")
    e("  s_branch L_hc")
    e("L_hc_ok:")
    vstep_k(sH, sK)
    e(f"  s_lshl_b32 s{sT0}, s{sH}, 4")
    e(f"  v_mov_b32 {vr(h1)}, s{sT0}")
    for j in range(4):
        e(f"  v_readlane_b32 s{rA + j}, {vr(vFc)}, s{sH}")
        e(f"  s_add_u32 s{sH}, s{sH}, 16")
    e(f"  s_add_u32 s{sK}, s{sK}, 1")
    e(f"  s_add_u32 s{sNEED}, s{sK}, 16")
    progwait("hpw", P.psk)
    mark("p")
    hp(0)
    rank_post("p")
    sum_partials(1)
    for j in range(4):
        for i in range(4):
            e(f"  v_fmac_f32 {vr(AC + 4 * j + i)}, s{rA + j}, {vr(x + i)}")
    e(f"  v_add_u32 {vr(h0)}, 3072, {vr(h0)}")
    rank_take("p")
    warm("p")
    e(f"  s_cmp_lt_u32 s{sK}, 15")
    e("  s_cbranch_scc1 L_hp")

    if P.eprio:
        e(f"  s_setprio {P.eprio}")
    e(f"  s_lshr_b32 s{sH}, s{sVO + 1}, 28")
    e(f"  s_lshl_b32 s{sT0}, s{sH}, 4")
    e(f"  v_mov_b32 {vr(h1)}, s{sT0}")
    e(f"  s_add_u32 s{sH}, s{sH}, 48")
    e(f"  ds_read_b32 {vr(h1)}, {vr(h1)} offset:{ST + 8}")
    mx = x + 16
    for j in range(3):
        e(f"  v_max3_f32 {vr(mx + j)}, |{vr(AC + 4 * j)}|, |{vr(AC + 4 * j + 1)}|, |{vr(AC + 4 * j + 2)}|")
    for j in range(3):
        e(f"  v_max_f32_e64 {vr(mx + j)}, {vr(mx + j)}, |{vr(AC + 4 * j + 3)}|")
    for n in (8, 4, 2, 1):
        for j in range(3):
            e(f"  v_max_f32_dpp {vr(mx + j)}, {vr(mx + j)}, {vr(mx + j)} row_ror:{n} row_mask:0xf bank_mask:0xf")
    for sw in ("v_permlane16_swap_b32", "v_permlane32_swap_b32"):
        for j in range(3):
            e(f"  v_mov_b32 {vr(mx + 4 + j)}, {vr(mx + j)}")
        for j in range(3):
            e(f"  {sw} {vr(mx + j)}, {vr(mx + 4 + j)}")
        for j in range(3):
            e(f"  v_max_f32 {vr(mx + j)}, {vr(mx + j)}, {vr(mx + 4 + j)}")
    for j in range(3):
        e(f"  v_frexp_exp_i32_f32 {vr(mx + j)}, {vr(mx + j)}")
        e(f"  v_sub_u32 {vr(mx + 4 + j)}, 14, {vr(mx + j)}")
        e(f"  v_subrev_u32 {vr(mx + j)}, 14, {vr(mx + j)}")
        for i in range(4):
            e(f"  v_ldexp_f32 {vr(AC + 4 * j + i)}, {vr(AC + 4 * j + i)}, {vr(mx + 4 + j)}")
        for i in range(2):
            e(f"  v_cvt_pk_f16_f32 {vr(x + 2 * j + i)}, {vr(AC + 4 * j + 2 * i)}, {vr(AC + 4 * j + 2 * i + 1)}")
    for j in range(4):
        e(f"  v_readlane_b32 s{16 + j}, {vr(vM)}, {16 * j}")
        e(f"  v_readlane_b32 s{20 + j}, {vr(vL)}, {16 * j}")
    for j in range(3):
        e(f"  v_readlane_b32 s{rA + j}, {vr(mx + j)}, 0")
    e(f"  v_readlane_b32 s{rA + 3}, {vr(vFc)}, s{sH}")
    for k in range(6):
        e(f"  v_lshrrev_b32 {vr(h2)}, 1, {vr(x + k)}")
        e(f"  v_and_b32 {vr(h2)}, 0x10001, {vr(h2)}")
        e(f"  v_add_u32 {vr(x + k)}, {vr(x + k)}, {vr(h2)}")
    for j in range(3):
        e(f"  v_writelane_b32 {vr(x + 2 * j)}, s{16 + j}, 48")
        e(f"  v_writelane_b32 {vr(x + 2 * j)}, s{20 + j}, 49")
        e(f"  v_writelane_b32 {vr(x + 2 * j + 1)}, s{rA + j}, 49")
    e(f"  v_cmp_gt_u32 vcc, 48, {vr(l)}")
    e(f"  v_lshlrev_b32 {vr(h2)}, 2, {vr(l)}")
    e(f"  v_lshrrev_b32 {vr(h2)}, {vr(h2)}, s{sTG}")
    e(f"  v_mov_b32 {vr(h3)}, 0x10001")
    for i in range(2):
        e(f"  v_cndmask_b32 {vr(tg + 2 + i)}, 0, {vr(h3)}, vcc")
        e(f"  v_bfe_u32 {vr(tg + i)}, {vr(h2)}, {2 * i}, 2")
        e(f"  v_lshl_or_b32 {vr(tg + i)}, {vr(tg + i)}, 15, {vr(tg + i)}")
    e(f"  v_writelane_b32 {vr(tg + 3)}, -1, 48")
    e(f"  v_writelane_b32 {vr(tg + 3)}, s{sMASK}, 49")
    e(f"  v_writelane_b32 {vr(tg + 1)}, s{sTG}, 48")
    e(f"  v_writelane_b32 {vr(tg + 1)}, s{sTG}, 49")
    for i in range(2):
        e(f"  v_and_b32 {vr(tg + i)}, {vr(tg + i)}, {vr(tg + 2 + i)}")
    for k in range(6):
        e(f"  v_bfi_b32 {vr(x + k)}, {vr(tg + 2 + k % 2)}, {vr(tg + k % 2)}, {vr(x + k)}")
    e(f"  v_min_u32 {vr(h2)}, {63 if P.full else 55}, {vr(l)}")
    for j in range(3):
        e(f"  v_lshl_add_u32 {vr(ra + j)}, {vr(h2)}, 3, s{sE + 12 + j}")
    e(f"  s_mul_i32 s{sT0}, s{sE + 15}, {P.hpit}")
    e(f"  s_add_u32 s{sT0}, s{sT0}, {W_REC}")
    e(f"  v_lshl_add_u32 {vr(ra + 3)}, {vr(h2)}, 3, s{sT0}")
    e("  s_waitcnt lgkmcnt(0)")
    if P.mg:
        e("; the stores leave part-way into the last step, where they disturb the read stream least")
        e(f"  s_mov_b32 s{sNEED}, {31 + (P.mg > 12)}")
        progwait("hmw", P.psl, FL + 32)
    hp(1)
    if not P.full:
        e("  s_mov_b32 exec_hi, 0xffffff")
    for j in range(3):
        if "w" not in P.xp:
            e(f"  global_store_dwordx2 {vr(ra + j)}, {vr(x + 2 * j, 2)}, s[{sWS}:{sWS + 1}] sc1")
    e("  s_mov_b64 exec, -1")
    if P.ot == 3:
        e("  s_mov_b64 exec, 1")
        e(f"  global_load_dword {vr(vFX)}, {vr(vZ)}, s[{sOUT}:{sOUT + 1}]")
        e("  s_mov_b64 exec, -1")
    if "r" in P.xp:
        e("  s_branch L_skip")
    if P.ml:
        e(f"  s_mov_b32 s{sNEED}, {31 + (P.ml > 12)}")
        progwait("hlw", P.psl, FL + 48)
    else:
        e(f"  s_waitcnt vmcnt({P.aw})")
    hp(2)
    hp(3)
    e("L_hw:")
    hp(4)
    for j in range(3):
        e(f"  global_load_dwordx2 {vr(rec + 2 * j, 2)}, {vr(ra + 3)}, s[{sWS}:{sWS + 1}] offset:{P.pit * j} sc1")
    e("  s_waitcnt vmcnt(0)")
    hp(5)
    for k in range(6):
        e(f"  v_xor_b32 {vr(rec + k)}, {vr(rec + k)}, {vr(tg + k % 2)}")
    for i in range(2):
        e(f"  v_or3_b32 {vr(h2 + i)}, {vr(rec + i)}, {vr(rec + 2 + i)}, {vr(rec + 4 + i)}")
    e(f"  v_and_b32 {vr(h2)}, {vr(h2)}, {vr(tg + 2)}")
    e(f"  v_and_or_b32 {vr(h2)}, {vr(h3)}, {vr(tg + 3)}, {vr(h2)}")
    e(f"  v_cmp_ne_u32 s[{sZ}:{sZ + 1}], 0, {vr(h2)}")
    for j in range(3):
        e(f"  v_readlane_b32 s{16 + j}, {vr(rec + 2 * j)}, 48")
        e(f"  v_readlane_b32 s{20 + j}, {vr(rec + 2 * j)}, 49")
        e(f"  v_readlane_b32 s{rA + j}, {vr(rec + 2 * j + 1)}, 49")
    e(f"  s_cmp_eq_u64 s[{sZ}:{sZ + 1}], 0")
    e("  s_cbranch_scc1 L_hy")
    budget("L_hy")
    e("  s_branch L_hw")
    e("L_hy:")
    gj = x + 8
    e(f"  v_mov_b32 {vr(h2)}, s19")
    for j in range(3):
        e(f"  v_max_f32 {vr(h2)}, s{16 + j}, {vr(h2)}")
    for j in range(4):
        e(f"  v_sub_f32 {vr(gj + j)}, s{16 + j}, {vr(h2)}")
    for j in range(4):
        e(f"  v_exp_f32 {vr(gj + j)}, {vr(gj + j)}")
    for j in range(3):
        e(f"  s_sext_i32_i16 s{rA + j}, s{rA + j}")
    e(f"  v_mul_f32 {vr(wa)}, s23, {vr(gj + 3)}")
    for j in range(3):
        e(f"  v_fmac_f32 {vr(wa)}, s{20 + j}, {vr(gj + j)}")
    for i in range(4):
        e(f"  v_mul_f32 {vr(fo + i)}, {vr(AC + 12 + i)}, {vr(gj + 3)}")
    e(f"  v_rcp_f32 {vr(wa)}, {vr(wa)}")
    for j in range(3):
        e(f"  v_ldexp_f32 {vr(gj + j)}, {vr(gj + j)}, s{rA + j}")
    for j in range(3):
        for i in range(4):
            e(f"  v_fma_mix_f32 {vr(fo + i)}, {vr(rec + 2 * j + i // 2)}, {vr(gj + j)}, {vr(fo + i)} op_sel:[{i & 1},0,0] op_sel_hi:[1,0,0]")
    e(f"  v_mul_f32 {vr(h2)}, s{rA + 3}, {vr(gj + 3)}")
    e(f"  v_mul_f32 {vr(h2)}, {vr(h2)}, {vr(wa)}")
    e(f"  v_mul_f32 {vr(h3)}, {vr(h2)}, {vr(h1)}")
    for i in range(4):
        e(f"  v_fma_f32 {vr(fo + i)}, {vr(fo + i)}, {vr(wa)}, -{vr(h3)}")
    if "r" in P.xp:
        e("L_skip:")
    hp(6)
    e("  s_barrier")
    hp(7)
    for k in range(4):
        e(f"  ds_read_b128 {vr(x + 4 * k, 4)}, {vr(h0)} offset:{768 * k}")
    e("  s_waitcnt lgkmcnt(2)")
    for h in (0, 2):
        e(f"  v_pk_add_f32 {vr(x + h, 2)}, {vr(x + h, 2)}, {vr(x + 4 + h, 2)}")
    e("  s_waitcnt lgkmcnt(0)")
    for h in (0, 2):
        e(f"  v_pk_add_f32 {vr(x + 8 + h, 2)}, {vr(x + 8 + h, 2)}, {vr(x + 12 + h, 2)}")
    for h in (0, 2):
        e(f"  v_pk_add_f32 {vr(x + h, 2)}, {vr(x + h, 2)}, {vr(x + 8 + h, 2)}")
    for i in range(4):
        e(f"  v_fmac_f32 {vr(fo + i)}, {vr(h2)}, {vr(x + i)}")
    e(f"  v_cvt_pk_bf16_f32 {vr(fo)}, {vr(fo)}, {vr(fo + 1)}")
    e(f"  v_cvt_pk_bf16_f32 {vr(fo + 1)}, {vr(fo + 2)}, {vr(fo + 3)}")
    e("  s_mov_b32 exec_hi, 0xffff")
    e(f"  global_store_dwordx2 {vr(u)}, {vr(fo, 2)}, s[{sOUT}:{sOUT + 1}] {P.of}")
    if P.sd:
        e(f"  s_mov_b32 s{sNEED}, 32")
        e("  s_mov_b64 exec, -1")
        mark("z")
        e(f"  s_cmp_eq_u32 s{sJ}, 0")
        e("  s_cbranch_scc0 L_sd")
        e(f"  v_lshlrev_b32 {vr(h0)}, 2, {vr(l)}")
        e("  s_mov_b32 exec_lo, 0")
        e("  s_mov_b32 exec_hi, 0x3fff")
        e(f"  global_atomic_add {vr(h0)}, {vr(vCL)}, s[{sDBG}:{sDBG + 1}] offset:-120 sc1")
        e("L_sd:")
    if P.enc:
        m0, m1, base, amp, wg = [int(v) for v in P.enc.split(",")]
        if m1 == 33:
            e("  s_memrealtime s[72:73]")
            e("  s_waitcnt vmcnt(0)")
            e("  s_memrealtime s[74:75]")
            e("  s_sleep 100")
        if m1 == 32:
            e("  s_memrealtime s[74:75]")
        if m0 == 0:
            e(f"  s_mov_b32 s72, s{sST}")
        e("  s_waitcnt lgkmcnt(0)")
        if P.em:
            e(f"  s_not_b32 s73, s{sST}")
            if m1 != 33:
                e(f"  s_mov_b32 s72, s{sST}")
            e(f"  s_atomic_umax s74, s[{sDBG}:{sDBG + 1}], 40")
            e(f"  s_atomic_umax s73, s[{sDBG}:{sDBG + 1}], 44")
            e(f"  s_atomic_umax s72, s[{sDBG}:{sDBG + 1}], 48")
        else:
            e("  s_sub_u32 s72, s74, s72")
            e(f"  s_atomic_add s72, s[{sDBG}:{sDBG + 1}], 32")
        e(f"  s_cmp_eq_u32 s2, {wg}")
        e("  s_cbranch_scc0 L_nohold")
        e("L_hold0:")
        e(f"  s_memrealtime s[{sST + 2}:{sST + 3}]")
        e("  s_waitcnt lgkmcnt(0)")
        e(f"  s_sub_u32 s{sT0}, s{sST + 2}, s{sST}")
        e(f"  s_cmp_lt_u32 s{sT0}, 12500")
        e("  s_cbranch_scc1 L_hold0")
        e("  s_mov_b32 s72, 0")
        if P.em:
            e("  s_mov_b32 s73, 0")
            e(f"  s_atomic_add s72, s[{sDBG}:{sDBG + 1}], {48 if P.em == 3 else 40} glc")
            e(f"  s_atomic_add s73, s[{sDBG}:{sDBG + 1}], {48 if P.em == 2 else 44} glc")
            e("  s_waitcnt lgkmcnt(0)")
            if P.em != 2:
                e("  s_not_b32 s73, s73")
            e("  s_sub_u32 s72, s72, s73")
            e("  s_lshl_b32 s72, s72, 8")
        else:
            e(f"  s_atomic_add s72, s[{sDBG}:{sDBG + 1}], 32 glc")
            e("  s_waitcnt lgkmcnt(0)")
        e(f"  s_sub_u32 s72, s72, {base * 256}")
        e("  s_max_i32 s72, s72, 0")
        e("  s_min_i32 s72, s72, 128000")
        e(f"  s_mul_i32 s72, s72, {amp}")
        e("  s_lshr_b32 s72, s72, 8")
        e("  s_add_u32 s72, s72, 13000")
        e("L_hold:")
        e(f"  s_memrealtime s[{sST + 2}:{sST + 3}]")
        e("  s_waitcnt lgkmcnt(0)")
        e(f"  s_sub_u32 s{sT0}, s{sST + 2}, s{sST}")
        e(f"  s_cmp_lt_u32 s{sT0}, s72")
        e("  s_cbranch_scc1 L_hold")
        e("L_nohold:")
        e("  s_waitcnt lgkmcnt(0)")
    if P.pe:
        e("; diagnostic build only: pointers to d_debug, some of their bits into the run time")
        off, sh_, bits = [int(v) for v in P.pe.split(",")]
        e("  s_cmp_eq_u32 s2, 0")
        e("  s_cbranch_scc0 L_nope")
        e("  s_load_dwordx16 s[4:19], s[0:1], 0")
        e("  s_waitcnt lgkmcnt(0)")
        e("  s_mov_b64 exec, 1")
        for k, r_ in enumerate((4, 6, 7, 8, 12, 13, 14, 30, 31)):
            e(f"  v_mov_b32 v5, s{r_}")
            e(f"  global_store_dword {vr(vZ)}, v5, s[{sDBG}:{sDBG + 1}] offset:{16 + 4 * k}")
        if off < 0:
            e("  s_sub_u32 s72, s6, s12")
        else:
            e(f"  s_mov_b32 s72, s{off}")
        e(f"  s_bfe_u32 s72, s72, {bits << 16 | sh_:#x}")
        e("  s_mul_i32 s72, s72, 300")
        e("  s_add_u32 s72, s72, 13000")
        e("L_pe:")
        e(f"  s_memrealtime s[{sST + 2}:{sST + 3}]")
        e("  s_waitcnt lgkmcnt(0)")
        e(f"  s_sub_u32 s{sT0}, s{sST + 2}, s{sST}")
        e(f"  s_cmp_lt_u32 s{sT0}, s72")
        e("  s_cbranch_scc1 L_pe")
        e("L_nope:")
    if P.tail:
        e("; diagnostic build only")
        e("  s_memrealtime s[72:73]")
        e("L_tail:")
        e("  s_memrealtime s[74:75]")
        e("  s_waitcnt lgkmcnt(0)")
        e("  s_sub_u32 s74, s74, s72")
        e(f"  s_cmp_lt_u32 s74, {P.tail}")
        e("  s_cbranch_scc1 L_tail")
    if P.hold:
        e("; diagnostic build only")
        e("L_hold:")
        e(f"  s_memrealtime s[{sST + 2}:{sST + 3}]")
        e("  s_waitcnt lgkmcnt(0)")
        e(f"  s_sub_u32 s{sT0}, s{sST + 2}, s{sST}")
        e(f"  s_cmp_lt_u32 s{sT0}, {P.hold}")
        e("  s_cbranch_scc1 L_hold")
    if P.stamp:
        e(f"  s_memrealtime s[{sST + 2}:{sST + 3}]")
        if P.hprof:
            e("  s_waitcnt lgkmcnt(0)")
            e("  s_lshl_b32 s44, s2, 5")
            e("  s_add_u32 s44, s44, 0x80000")
            e("  v_mov_b32 v1, s44")
            for k in range(8):
                e(f"  s_sub_u32 s45, s{sST + 2}, s{HP[k]}")
                e(f"  v_mov_b32 v{4 + k}, s45")
            e(f"  global_store_dwordx4 v1, v[4:7], s[{sWS}:{sWS + 1}]")
            e(f"  global_store_dwordx4 v1, v[8:11], s[{sWS}:{sWS + 1}] offset:16")
            e("  s_nop 2")
        e("  s_getreg_b32 s6, hwreg(HW_REG_XCC_ID)")
        e("  s_getreg_b32 s7, hwreg(HW_REG_HW_ID)")
        e("  s_waitcnt lgkmcnt(0)")
        e(f"  v_mov_b32 v4, s{sST}")
        e(f"  v_mov_b32 v5, s{sST + 2}")
        e("  v_mov_b32 v6, s6")
        e("  v_mov_b32 v7, s7")
        e("  s_lshl_b32 s8, s2, 4")
        e("  v_mov_b32 v1, s8")
        e(f"  global_store_dwordx4 v1, v[4:7], s[{sWS}:{sWS + 1}]")
    e("L_end:")
    e("  s_endpgm")
    e(".p2align 6")
    e(".type L_order,@object")
    e("L_order:")
    for k in range(0, len(ordtab), 8):
        e("  .long " + ", ".join(f"{v:#x}" for v in ordtab[k:k + 8]))
    e(".type L_hpos,@object")
    e("L_hpos:")
    for b in range(6):
        at = {chunk_of(b & 1, n, s_, b >> 1): lpos(n, s_) for n in range(24) for s_ in range(16)}
        rows = sorted({c // 3 for c in at})
        for l_ in range(64):
            r0, r1 = rows[l_], rows[l_ + 64]
            e("  .long " + ", ".join(f"{a_ | b_ << 16:#x}" for a_, b_ in [(at[3 * r0 + k], at[3 * r1 + k]) for k in range(3)] + [(2 * r0, 2 * r1)]))
    e('.section .rodata,"a"')
    e(".p2align 6")
    e(f".amdhsa_kernel {NAME}_kernel")
    e(f"  .amdhsa_next_free_vgpr {NV}")
    e("  .amdhsa_next_free_sgpr 100")
    e(f"  .amdhsa_accum_offset {(NV + 3) // 4 * 4}")
    e("  .amdhsa_group_segment_fixed_size 0")
    e("  .amdhsa_kernarg_size 112")
    e("  .amdhsa_user_sgpr_count 2")
    e("  .amdhsa_user_sgpr_kernarg_segment_ptr 1")
    e("  .amdhsa_system_sgpr_workgroup_id_x 1")
    e(".end_amdhsa_kernel")
    return "\n".join(o) + "\n", NV


if __name__ == "__main__":
    ap = argparse.ArgumentParser()
    ap.add_argument("-o", default=f"/code/{NAME}.s")
    for name, d in (("sh", 4), ("deep", 5), ("pd", 9), ("pre", 12), ("nf", 5), ("su", 3), ("hp0", 3), ("tst", 24),
                    ("ctl", 1), ("hi", 2), ("hiv", 7), ("lo", -28), ("thr", 2), ("tp", 2), ("start", 5), ("s0", 0), ("ba", 3),
                    ("r0", 2), ("r1", 30), ("rf", 3), ("rp", 2), ("rt", 26), ("rotl", 7), ("kp", 7), ("kp0", 6), ("kn", 20),
                    ("tw", 3), ("tv", 2), ("ts", 1), ("st", 2), ("ot", 0), ("pit", 512), ("hpit", 1536), ("full", 1), ("ss", 3), ("tk", 0), ("tl", 4), ("top", 18), ("tpd", 4), ("tpv", 4), ("tpn", 1), ("lag", 2), ("mg", 8), ("ml", 0), ("aw", 0), ("sd", 0), ("em", 0), ("tail", 0),
                    ("eprio", 2), ("psl", 1), ("psk", 1), ("spr", 1), ("bound", 4000000), ("hold", 0), ("dly", 0), ("dlb", 2)):
        ap.add_argument("--" + name, type=int, default=d)
    ap.add_argument("--kp_", default="6,6,6,7,8,9,9,10,10,11,11,12,12", help="K loads issued by each prologue point")
    ap.add_argument("--of", default="")
    ap.add_argument("--enc", default="", help="diagnostic only: m0,m1,base,amp,wg")
    ap.add_argument("--ok", default="REXbLbLbL", help="events of a K group")
    ap.add_argument("--ov", default="REXbLbLbL", help="events of a V group")
    ap.add_argument("--rk", default="", help="die gain per step (hex digits, 0 = no ranking)")
    ap.add_argument("--sb", default="", help="step:bias,... added to the lateness")
    ap.add_argument("--pf", default="sc1")
    ap.add_argument("--tpp", default="012", help="positions with a third level")
    ap.add_argument("--pe", default="", help="diagnostic only")
    ap.add_argument("--tm", default="5,10,11,16,21,26")
    ap.add_argument("--tg", default="")
    ap.add_argument("--bu", default="012", help="extra depth per position in the issued group")
    ap.add_argument("--th", default="-9,5,13")
    ap.add_argument("--sch", default="ut_c2.txt")
    ap.add_argument("--xp", default="", help="timing experiments only")
    for name in ("stamp", "trace", "tfine", "hprof"):
        ap.add_argument("--" + name, action="store_true", help="diagnostics only")
    a = ap.parse_args()
    txt, nv = gen(a)
    open(a.o, "w").write(txt)
    print("wrote", a.o, "vgprs", nv)
```
